```python
import torch

def _softmax(x, axis=-1):
    return torch.softmax(x, dim=axis)
def _gelu(x):
    return torch.nn.functional.gelu(x, approximate="tanh")
def _silu(x):
    return torch.nn.functional.silu(x)
def _sigmoid(x):
    return torch.sigmoid(x)
def _layernorm(x, axis=-1, eps=1e-5):
    m = x.mean(dim=axis, keepdim=True)
    v = x.var(dim=axis, keepdim=True, unbiased=False)
    return (x - m) / torch.sqrt(v + eps)
def _scatter_add(tgt, idx, src, axis=0):
    return tgt.clone().index_add_(axis, idx, src)
def _segment_sum(src, seg, n):
    out = torch.zeros((n,) + src.shape[1:], dtype=src.dtype)
    return out.index_add_(0, seg, src)
def _pad(x, pw):
    flat = tuple(v for pair in reversed(pw) for v in pair)
    return torch.nn.functional.pad(x, flat)

kernel_name = 'gated_mix__grouped_kv_mqa__dense_activation_squared_relu__prompt'

def setup_inputs():

    _w = (lambda a: (lambda t: t.to(torch.bfloat16) if t.is_floating_point() else t)(torch.as_tensor(a)))
    def _A_setup():
        B, S, D, H = 1, 2048, 1024, 32
        Dh = D // H
        return {
            "x": _w((lambda *s: torch.randn(*s, dtype=torch.bfloat16) * 0.05)(B, S, D)),
            "wq": _w((lambda *s: torch.randn(*s, dtype=torch.bfloat16) * 0.8)(D, H * Dh)),
            "wk": _w((lambda *s: torch.randn(*s, dtype=torch.bfloat16) * 0.8)(D, Dh)),
            "wv": _w((lambda *s: torch.randn(*s, dtype=torch.bfloat16) * 0.1)(D, Dh)),
            "wo": _w((lambda *s: torch.randn(*s, dtype=torch.bfloat16) * 0.1)(H * Dh, D)),
        }
    _A_in = _A_setup()

    def _B_setup():
        B, S, D, F = 1, 2048, 1024, 3584
        return {
            "x": _w((lambda *s: torch.randn(*s, dtype=torch.bfloat16) * 0.05)(B, S, D)),
            "w1": _w((lambda *s: torch.randn(*s, dtype=torch.bfloat16) * 0.05)(D, F)),
            "b1": _w((lambda *s: torch.randn(*s, dtype=torch.bfloat16) * 0.05)(F)),
            "w2": _w((lambda *s: torch.randn(*s, dtype=torch.bfloat16) * 0.05)(F, D)),
            "b2": _w((lambda *s: torch.randn(*s, dtype=torch.bfloat16) * 0.05)(D)),
        }
    _B_in = _B_setup()

    return {
        "A_x": _A_in["x"],
        "A_wq": _A_in["wq"],
        "A_wk": _A_in["wk"],
        "A_wv": _A_in["wv"],
        "A_wo": _A_in["wo"],
        "B_x": _B_in["x"],
        "B_w1": _B_in["w1"],
        "B_b1": _B_in["b1"],
        "B_w2": _B_in["w2"],
        "B_b2": _B_in["b2"],
        "gate_w": _w((lambda *s: torch.randn(*s, dtype=torch.bfloat16) * 0.05)(1024) * 16.0),
    }

def reference(A_x, A_wq, A_wk, A_wv, A_wo, B_x, B_w1, B_b1, B_w2, B_b2, gate_w):
    def _A_ref(x, wq, wk, wv, wo):
        B, S, D = x.shape
        H = 32
        Dh = D // H
        q = (lambda x, *d: x.permute(*d))((x @ wq).reshape(B, S, H, Dh), 0, 2, 1, 3)
        k = x @ wk
        v = x @ wv
        scores = torch.einsum("bhqd,bkd->bhqk", q, k) * (Dh ** -0.5)
        p = _softmax(scores, axis=-1)
        o = torch.einsum("bhqk,bkd->bhqd", p, v)
        return (lambda x, *d: x.permute(*d))(o, 0, 2, 1, 3).reshape(B, S, H * Dh) @ wo

    def _B_ref(x, w1, b1, w2, b2):
        h = torch.einsum("bsd,df->bsf", x, w1) + b1
        zero = torch.zeros_like(h)
        r = torch.where(h > zero, h, zero)
        h = r * r
        out = torch.einsum("bsf,fd->bsd", h, w2) + b2
        return out

    x = A_x
    g = _sigmoid((x * gate_w).sum(-1, keepdims=True))
    a = _A_ref(x, A_wq, A_wk, A_wv, A_wo)
    b = _B_ref(x, B_w1, B_b1, B_w2, B_b2)
    return g * a + (1 - g) * b
```

```python
import re, struct

def f2u(x): return struct.unpack("<I", struct.pack("<f", x))[0]
def vr(a, n=1): return f"v{a}" if n == 1 else f"v[{a}:{a+n-1}]"
def sr(a, n=1): return f"s{a}" if n == 1 else f"s[{a}:{a+n-1}]"

class Wait:
    def __init__(s, vm=None, lg=None): s.vm = vm; s.lg = lg
    def text(s):
        p = []
        if s.vm is not None: p.append(f"vmcnt({min(s.vm,62)})")
        if s.lg is not None: p.append(f"lgkmcnt({min(s.lg,14)})")
        return "  s_waitcnt " + " ".join(p) if p else None

class Asm:
    def __init__(s):
        s.out = []; s.vmq = []; s.lgq = []; s.uid = 0
    def __call__(s, t):
        for l in t.split("\n"):
            l = l.strip()
            if l: s.out.append("  " + l)
    def label(s, n): s.out.append(n + ":")
    def raw(s, t): s.out.append(t)
    def newlabel(s, p="L"):
        s.uid += 1; return f"{p}_{s.uid}"
    def vm(s, t, tag=None): s(t); s.vmq.append(tag)
    def lg(s, t, tag=None): s(t); s.lgq.append(tag)
    @staticmethod
    def _need(q, tags):
        idx = -1
        for i, t in enumerate(q):
            if t in tags: idx = i
        if idx < 0: return None
        n = len(q) - idx - 1
        del q[:idx + 1]
        return n
    def wait(s, vm=(), lg=()):
        vm = vm if isinstance(vm, (list, set)) else ([vm] if vm != () else [])
        lg = lg if isinstance(lg, (list, set)) else ([lg] if lg != () else [])
        s.out.append(Wait(s._need(s.vmq, vm), s._need(s.lgq, lg)))
    def wait0(s, vm=True, lg=True):
        if vm: s.vmq.clear()
        if lg: s.lgq.clear()
        s.out.append(Wait(0 if vm else None, 0 if lg else None))
    def loop(s, body, name, nsim=3):
        runs = []
        for it in range(nsim):
            save = s.out; s.out = []
            body(it)
            runs.append(s.out); s.out = save
        base = runs[0]
        for r in runs[1:]:
            assert len(r) == len(base), (name, len(r), len(base))
            for a, b in zip(base, r):
                if isinstance(a, Wait):
                    for f in ("vm", "lg"):
                        x, y = getattr(a, f), getattr(b, f)
                        if x is None or (y is not None and y < x): setattr(a, f, y)
                else:
                    assert a == b, (name, a, b)
        s.out.extend(base)
    def text(s):
        o = []
        for l in s.out:
            if isinstance(l, Wait):
                t = l.text()
                if t: o.append(t)
            else: o.append(l)
        return "\n".join(o) + "\n"

def _regs(tok):
    tok = tok.strip()
    tok = re.sub(r"^-|^\||\|$|^abs\(|\)$", "", tok)
    m = re.fullmatch(r"([vsa])(\d+)", tok)
    if m: return {(m.group(1), int(m.group(2)))}
    m = re.fullmatch(r"([vsa])\[(\d+):(\d+)\]", tok)
    if m: return {(m.group(1), i) for i in range(int(m.group(2)), int(m.group(3)) + 1)}
    if tok == "vcc": return {("s", "vcc")}
    if tok == "m0": return {("s", "m0")}
    if tok == "exec": return {("s", "exec")}
    return set()
TRANS = ("v_exp_", "v_log_", "v_rcp_", "v_rsq_", "v_sqrt_", "v_sin_", "v_cos_")
def parse(line):
    line = line.split(";")[0].strip()
    if not line or line.endswith(":") or line.startswith("."): return None
    p = line.split(None, 1); op = p[0]
    ops = [x.strip() for x in p[1].split(",")] if len(p) > 1 else []
    if ops:
        last = ops[-1].split(); ops[-1] = last[0] if last else ""; mods = last[1:]
    else: mods = []
    d = dict(op=op, ops=ops, mods=mods, line=line, w=set(), r=set())
    R = [_regs(o) for o in ops]
    al = lambda xs: set().union(*xs) if xs else set()
    if op.startswith("v_mfma") or op.startswith("v_smfmac"):
        d["k"] = "mfma"; d["w"] = R[0]; d["ab"] = R[1] | R[2]; d["c"] = R[3] if op.startswith("v_mfma") else R[0]
        if op.startswith("v_smfmac"): d["ab"] |= R[3]
        d["r"] = d["ab"] | d["c"]; d["pass"] = 8 if ("32x32" in op or "16x16x64" in op) else 4
    elif op.startswith("v_permlane") and "swap" in op:
        d["k"] = "valu"; d["w"] = R[0] | R[1]; d["r"] = R[0] | R[1]
    elif op.startswith("v_cmp"):
        d["k"] = "valu"; d["w"] = R[0]; d["r"] = al(R[1:])
    elif op.startswith("v_"):
        d["k"] = "valu"; d["w"] = R[0]; d["r"] = al(R[1:])
        if "_co_" in op: d["w"] |= R[1]
        if op.startswith(("v_fmac", "v_dot2c")): d["r"] |= R[0]
    elif op.startswith(("buffer_", "global_")):
        d["k"] = "vmem"
        if op.startswith("buffer_inv") or op.startswith("buffer_wb"): pass
        elif "lds" in mods: d["r"] = al(R) | {("s", "m0")}; d["dma"] = True
        elif "load" in op: d["w"] = R[0]; d["r"] = al(R[1:])
        else:
            d["r"] = al(R)
            if op.endswith(("x3", "x4")): d["wide"] = R[0]
    elif op.startswith("ds_"):
        d["k"] = "ds"
        if "read" in op or "permute" in op or "rtn" in op: d["w"] = R[0]; d["r"] = al(R[1:])
        else: d["r"] = al(R)
    else:
        d["k"] = "salu"
        if op.startswith(("s_cmp", "s_cbranch", "s_branch", "s_waitcnt", "s_barrier", "s_nop", "s_setprio", "s_sleep", "s_endpgm")): d["r"] = al(R)
        elif R: d["w"] = R[0]; d["r"] = al(R[1:])
    d["ws"] = int(ops[0]) + 1 if op == "s_nop" else 1
    return d

def need(a, b):
    n = 0
    va = {x for x in a["w"] if x[0] != "s"}; sa = {x for x in a["w"] if x[0] == "s"}
    if a["k"] == "valu":
        if b["k"] == "mfma" and va & b["r"]: n = max(n, 2)
        if b["op"].startswith("v_permlane") and va & b["r"]: n = max(n, 2)
        if b["op"].startswith(("v_readfirstlane", "v_readlane")) and va & b["r"]: n = max(n, 1)
        if a["op"].startswith(TRANS) and b["k"] == "valu" and not b["op"].startswith(TRANS) and va & b["r"]: n = max(n, 1)
        if a["op"].startswith(TRANS) and b["k"] in ("vmem", "ds") and va & b["r"]: n = max(n, 1)
        if b["k"] == "vmem" and sa & b["r"]: n = max(n, 5)
        if b["k"] == "valu" and sa & b["r"]: n = max(n, 2)
        if b["k"] == "valu" and ("s", "vcc") in sa and b["op"].startswith("v_cndmask"): n = max(n, 2)
        if "dpp" in b["line"] and va & b["r"]: n = max(n, 2)
    if a["k"] == "mfma":
        p = a["pass"]
        if b["k"] == "mfma":
            if va & b["ab"]: n = max(n, {4: 8, 8: 12}[p])
            if va & b["c"] and not (va == b["c"] and p == b["pass"]): n = max(n, {4: 6, 8: 10}[p])
            if va & b["w"] and not (va & b["c"]): n = max(n, {4: 6, 8: 10}[p])
        elif va & (b["r"] | b["w"]): n = max(n, {4: 8, 8: 12}[p])
        if b["k"] == "valu" and a["c"] & b["w"]: n = max(n, {4: 3, 8: 7}[p])
    if a["k"] == "salu" and ("s", "m0") in sa and b.get("dma"): n = max(n, 1)
    if a.get("wide") and a["wide"] & b["w"]: n = max(n, 2 if b["k"] == "valu" else 1)
    return n

def check(text):
    ins = []; labels = {}
    for l in text.split("\n"):
        t = l.split(";")[0].strip()
        if t.endswith(":"): labels[t[:-1]] = len(ins); continue
        if t.startswith(".section") or t.startswith(".amdhsa_kernel"): break
        d = parse(l)
        if d: ins.append(d)
    def succ(i):
        d = ins[i]
        if d["op"] == "s_endpgm": return []
        if d["op"] == "s_branch": return [labels[d["ops"][0]]]
        if d["op"] == "s_cbranch_execz": return [i + 1]
        if d["op"].startswith("s_cbranch"): return [i + 1, labels[d["ops"][0]]]
        return [i + 1]
    bad = 0
    for i, a in enumerate(ins):
        if a["k"] not in ("valu", "mfma", "salu", "vmem"): continue
        stack = [(j, 0) for j in succ(i)]; seen = {}
        while stack:
            j, dist = stack.pop()
            if j >= len(ins) or dist >= 12 or seen.get(j, 99) <= dist: continue
            seen[j] = dist
            n = need(a, ins[j])
            if n > dist:
                bad += 1
                if bad < 6: print(f"HAZARD need {n} have {dist}: [{i}] {a['line']}  ->  [{j}] {ins[j]['line']}")
            for k in succ(j): stack.append((k, dist + ins[j]["ws"]))
    return bad
```

```python
import sys, math
from asmlib import *

KNAME = "gated_mix__grouped_kv_mqa__dense_activation_squared_relu__prompt_kernel"
OPT = dict(stop=0, ts=0, pd=8, forceslow=0, nodma=0, nokv=0, nopf=0, nords=0)
for a_ in sys.argv[2:]:
    k, v = a_.split("="); OPT[k] = int(v)

RBSZ = 144 * 8192
KV_OFF = 0x1200000; G_OFF = 0x1240000; FL_OFF = 0x1244000; WS_USED = 0x1248000
QD_OFF = 0x1400000; TS_OFF = 0x1800000
WS_SIZE = 0x2000000 if (OPT["stop"] or OPT["ts"]) else WS_USED
OOB = 0x40000000
W1R = 0; W1S = 14336
WQR = 57344; WQS = 4096
XR = 73728; XS = 16384
KVST = 122880
SYNC = 155648
LDS_BYTES = 155904
QX = XR
KVR = 90112
pX, pWQ, pWK, pWV, pWO, pW1, pB1, pW2, pB2, pGATE, pOUT, pDBG, pWS = 4, 6, 8, 10, 12, 16, 18, 20, 22, 24, 26, 28, 30
rA, rB, rC, rD, rWS, rDBG, rPF, rE = 32, 36, 40, 44, 48, 52, 56, 60
sRB, sCB, sRB2, sCB2, sI, sW = 64, 65, 66, 67, 68, 69
sT0, sT1, sT2, sT3, sT4, sT5 = 70, 71, 72, 73, 74, 75
sIT, sA, sB, sC, sD, sE, sF, sG = 76, 77, 78, 79, 80, 81, 82, 83
sTS = 84
SPIN_MAX = 1 << 18

a = Asm()
def srd(r, p, size):
    a(f"s_mov_b32 s{r}, s{p}\n s_mov_b32 s{r+1}, s{p+1}\n s_mov_b32 s{r+2}, {size}\n s_mov_b32 s{r+3}, 0x20000")
nts = [0]
STAMPS = {1: dict(g_b0=1, g_end1=2, g_bq=3, g_hst=4, g_pre=5, a_set=1, a_w0=2, a_8=3, a_16=4, a_24=5),
          0: dict(g_end1=1, g_flag=2, g_l2=3, g_hook=4, g_end=5, a_w0=1, a_16=2, a_bq=3, a_att=4, a_end=5)}[OPT["stop"]]
def stamp(n):
    i = STAMPS.get(n)
    if OPT["ts"] and i:
        a(f"s_memtime s[{sTS+2*i}:{sTS+2*i+1}]"); a.wait0(vm=False)
def mf16(d, x, y, c=None):
    a(f"v_mfma_f32_16x16x32_bf16 {vr(d,4)}, {vr(x,4)}, {vr(y,4)}, {vr(d,4) if c is None else c}")
def mf32(d, x, y, c=None):
    a(f"v_mfma_f32_32x32x16_bf16 {vr(d,16)}, {vr(x,4)}, {vr(y,4)}, {vr(d,16) if c is None else c}")
def dump_ts_and_end():
    if OPT["ts"]:
        a("s_memrealtime s[98:99]"); a.wait0()
        for i in range(8): a(f"v_mov_b32 v{8+i}, s{sTS+2*i}")
        a(f"s_lshl_b32 s{sT0}, s2, 8\n s_lshl_b32 s{sT1}, s3, 5\n s_add_u32 s{sT0}, s{sT0}, s{sT1}\n s_add_u32 s{sT0}, s{sT0}, {TS_OFF}")
        a(f"v_mov_b32 v2, 0\n s_mov_b64 exec, 1")
        a(f"buffer_store_dwordx4 v[8:11], v2, s[{rWS}:{rWS+3}], s{sT0} offen")
        a(f"buffer_store_dwordx4 v[12:15], v2, s[{rWS}:{rWS+3}], s{sT0} offen offset:16")
    a("s_endpgm")

def prologue():
    a("s_cmp_ge_u32 s2, 256\n s_cbranch_scc1 L_exit")
    a("s_load_dwordx16 s[4:19], s[0:1], 0\n s_load_dwordx8 s[20:27], s[0:1], 64\n s_load_dwordx4 s[28:31], s[0:1], 96")
    if OPT["ts"]:
        a(f"s_memtime s[{sTS}:{sTS+1}]\n s_memrealtime s[96:97]")
    a(f"""v_lshrrev_b32 v1, 6, v0
      v_and_b32 v0, 63, v0
      v_readfirstlane_b32 s3, v1
      s_lshr_b32 s{sI}, s2, 3
      s_and_b32 s{sT0}, s2, 7
      s_lshr_b32 s{sT1}, s{sT0}, 2
      s_lshl_b32 s{sT1}, s{sT1}, 3
      s_lshr_b32 s{sT2}, s{sI}, 2
      s_add_u32 s{sRB}, s{sT1}, s{sT2}
      s_and_b32 s{sT1}, s{sT0}, 3
      s_lshl_b32 s{sT1}, s{sT1}, 2
      s_and_b32 s{sT2}, s{sI}, 3
      s_add_u32 s{sCB}, s{sT1}, s{sT2}
      s_lshr_b32 s{sT1}, s{sT0}, 1
      s_lshl_b32 s{sT1}, s{sT1}, 2
      s_lshr_b32 s{sT2}, s{sI}, 3
      s_add_u32 s{sRB2}, s{sT1}, s{sT2}
      s_and_b32 s{sT1}, s{sT0}, 1
      s_lshl_b32 s{sT1}, s{sT1}, 3
      s_and_b32 s{sT2}, s{sI}, 7
      s_add_u32 s{sCB2}, s{sT1}, s{sT2}
      s_and_b32 s{sW}, s3, 3
      v_and_b32 v1, 15, v0
      v_lshrrev_b32 v2, 4, v0
      s_waitcnt lgkmcnt(0)""")
    srd(rWS, pWS, WS_SIZE)
    a("s_cmp_ge_u32 s3, 4\n s_cbranch_scc1 L_roleA")

ACC1 = 112
acc1 = lambda ft, rt: ACC1 + (ft * 4 + rt) * 4
XF = [64, 80]; WRING = 96
vX = [3, 4]; vXb = [5, 6]; vW1 = [7, 8]; vWq = [9, 10]; vPF, vJ, vLP = 11, 12, 13
def g_phase1():
    PD = OPT["pd"]
    sRG, sCG = sA, sB
    sXo, sPo, sPe, sPd = sC, sD, sE, sF
    a(f"s_and_b32 s{sRG}, s{sW}, 1\n s_lshr_b32 s{sCG}, s{sW}, 1")
    a(f"s_mov_b32 s{rPF+3}, 0x20000\n s_mov_b32 s{rE+3}, 0x20000")
    a(f"s_cmp_eq_u32 s{sW}, 0\n s_cbranch_scc1 L_pf0\n s_cmp_eq_u32 s{sW}, 1\n s_cbranch_scc1 L_pf1\n s_cmp_eq_u32 s{sW}, 2\n s_cbranch_scc1 L_pf2")
    def pfset(p, size, n, st0, ste, sto, p2, size2):
        a(f"s_mov_b32 s{rPF}, s{p}\n s_mov_b32 s{rPF+1}, s{p+1}\n s_mov_b32 s{rPF+2}, {size}")
        a(f"s_mov_b32 s{sT5}, {n}\n s_mov_b32 s{sPo}, {st0}\n s_mov_b32 s{sPe}, {ste & 0xffffffff}\n s_mov_b32 s{sPd}, {sto & 0xffffffff}")
        if p2 is not None:
            a(f"s_mov_b32 s{rE}, s{p2}\n s_mov_b32 s{rE+1}, s{p2+1}\n s_mov_b32 s{rE+2}, {size2}")
    pfset(pW2, 3584 * 2048, 8, 0, 1024, 1024, pWO, 1024 * 2048)
    a(f"s_mul_i32 s{sT0}, s2, 28672\n v_lshl_add_u32 v{vPF}, v0, 7, s{sT0}\n s_lshl_b32 s{sT1}, s2, 13\n s_mov_b32 s{sT2}, 64\n s_branch L_pfd")
    a.label("L_pf0")
    pfset(pX, 2048 * 2048, 16, 128, 32768, -32768 + 128, None, None)
    a(f"s_getpc_b64 s[{rE}:{rE+1}]")
    a.label("L_pc")
    a(f"s_mov_b32 s{rE+2}, L_codeend-L_pc")
    a(f"""s_lshl_b32 s{sT0}, s{sRB}, 7
      s_and_b32 s{sT1}, s{sI}, 3
      s_lshl_b32 s{sT1}, s{sT1}, 5
      s_add_u32 s{sT0}, s{sT0}, s{sT1}
      v_add_u32 v{vPF}, s{sT0}, v0
      v_lshlrev_b32 v{vPF}, 11, v{vPF}
      s_lshl_b32 s{sT1}, s{sI}, 10
      s_mov_b32 s{sT2}, 8
      s_branch L_pfd""")
    a.label("L_pf1")
    pfset(pW1, 1024 * 7168, 16, 2 * 32 * 7168, 32 * 7168, 32 * 7168, pWK, 65536)
    a(f"""s_lshr_b32 s{sT0}, s{sI}, 2
      s_lshl_b32 s{sT0}, s{sT0}, 2
      v_lshrrev_b32 v14, 2, v0
      v_add_u32 v14, s{sT0}, v14
      v_mul_u32_u24 v14, 7168, v14
      v_and_b32 v15, 3, v0
      s_mul_i32 s{sT0}, s{sCB}, 448
      v_lshl_add_u32 v14, v15, 7, v14
      v_add_u32 v{vPF}, s{sT0}, v14
      s_lshl_b32 s{sT1}, s{sI}, 11
      s_mov_b32 s{sT2}, 16
      s_branch L_pfd""")
    a.label("L_pf2")
    pfset(pWQ, 1024 * 2048, 4, 2 * 65536, 65536, 65536, pWV, 65536)
    a(f"""s_lshr_b32 s{sT0}, s{sI}, 2
      s_lshl_b32 s{sT0}, s{sT0}, 2
      v_add_u32 v14, s{sT0}, v0
      s_lshl_b32 s{sT0}, s{sCB}, 7
      v_lshl_add_u32 v{vPF}, v14, 11, s{sT0}
      s_lshl_b32 s{sT1}, s{sI}, 11
      s_mov_b32 s{sT2}, 16""")
    a.label("L_pfd")
    a(f"""v_mov_b32 v15, {OOB}
      v_cmp_gt_u32 vcc, s{sT5}, v0
      v_lshlrev_b32 v14, 7, v0
      s_nop 0
      v_cndmask_b32 v{vPF}, v15, v{vPF}, vcc
      v_cmp_gt_u32 vcc, s{sT2}, v0
      s_nop 1
      v_cndmask_b32 v14, v15, v14, vcc""")
    def pf(t):
        if OPT["nopf"]: return
        a.vm(f"buffer_load_dword v{vJ}, v{vPF}, s[{rPF}:{rPF+3}], s{sPo} offen")
        a(f"s_add_u32 s{sPo}, s{sPo}, s{sPe if t % 2 == 0 else sPd}")
    for t in range(2, PD): pf(t)
    a.vm(f"buffer_load_dword v{vJ}, v14, s[{rE}:{rE+3}], s{sT1} offen")
    srd(rA, pB1, 7168)
    a(f"""s_mul_i32 s{sT0}, s{sCB}, 448
      s_mul_i32 s{sT1}, s{sCG}, 224
      s_add_u32 s{sT0}, s{sT0}, s{sT1}
      v_lshlrev_b32 v14, 3, v2""")
    for ft in range(7):
        a.vm(f"buffer_load_dwordx2 v[{16+2*ft}:{17+2*ft}], v14, s[{rA}:{rA+3}], s{sT0} offen offset:{32*ft}", "bias")
    a(f"""v_lshrrev_b32 v14, 1, v1
      v_xor_b32 v14, v14, v2
      v_lshlrev_b32 v14, 4, v14
      v_lshl_add_u32 v14, v1, 7, v14
      s_lshl_b32 s{sT0}, s{sRG}, 13
      s_add_u32 s{sT0}, s{sT0}, {XR}
      v_add_u32 v{vXb[0]}, s{sT0}, v14
      v_xor_b32 v{vXb[1]}, 64, v{vXb[0]}
      v_mov_b32 v{vX[0]}, v{vXb[0]}
      v_mov_b32 v{vX[1]}, v{vXb[1]}
      s_mov_b32 s{sXo}, 0
      v_lshrrev_b32 v14, 2, v1
      v_lshl_add_u32 v14, v2, 3, v14
      v_and_b32 v15, 3, v1
      v_lshlrev_b32 v15, 3, v15
      v_mul_u32_u24 v30, 448, v14
      v_add_u32 v30, v30, v15
      s_mul_i32 s{sT0}, s{sCG}, 224
      v_add_u32 v30, s{sT0}, v30
      v_and_b32 v31, 1, v2
      v_lshlrev_b32 v32, 5, v31
      s_lshl_b32 s{sT1}, s{sCG}, 1
      s_sub_u32 s{sT1}, 1, s{sT1}
      v_mul_lo_u32 v32, v32, s{sT1}
      v_add_u32 v{vW1[0]}, v30, v32
      v_sub_u32 v{vW1[1]}, v30, v32
      v_lshrrev_b32 v32, 3, v1
      v_lshl_add_u32 v31, v32, 1, v31
      s_lshl_b32 s{sT0}, s{sCG}, 1
      v_xor_b32 v31, s{sT0}, v31
      v_lshl_add_u32 v15, v31, 5, v15
      v_lshl_add_u32 v15, v14, 7, v15
      v_add_u32 v{vWq[0]}, {WQR}, v15
      v_xor_b32 v{vWq[1]}, 32, v{vWq[0]}""")
    a(f"""v_and_b32 v14, 1, v2
      v_lshlrev_b32 v14, 10, v14
      v_lshrrev_b32 v15, 1, v2
      v_lshl_add_u32 v14, v15, 8, v14
      v_lshl_add_u32 v{vLP}, v1, 4, v14""")
    for r in range(32): a(f"v_mov_b32 v{ACC1+r}, 0")
    stamp("g_pre")
    a.wait(vm="bias")
    for ft in range(7):
        for rt in range(4):
            d = acc1(2 + ft, rt)
            a(f"v_lshlrev_b32 v{d}, 16, v{16+2*ft}\n v_and_b32 v{d+1}, 0xffff0000, v{16+2*ft}")
            a(f"v_lshlrev_b32 v{d+2}, 16, v{17+2*ft}\n v_and_b32 v{d+3}, 0xffff0000, v{17+2*ft}")
    def rdW(g, e):
        if OPT["nords"] and g > 2: return
        t, ft = divmod(g, 9); d = WRING + 4 * (g % 4) + 2 * e
        if ft < 2: a.lg(f"ds_read_b64_tr_b16 {vr(d,2)}, v{vWq[ft]} offset:{(t%4)*WQS + e*512}", ("W", g))
        else: a.lg(f"ds_read_b64_tr_b16 {vr(d,2)}, v{vW1[ft%2]} offset:{(t%4)*W1S + e*1792 + (ft-2)*32}", ("W", g))
    def rdX(t, rt):
        a.lg(f"ds_read_b128 {vr(XF[t%2]+4*rt,4)}, v{vX[t%2]} offset:{rt*2048}", ("X", t))
    a(f"s_mov_b32 s{sIT}, 0")
    a("s_barrier")
    stamp("g_b0")
    for rt in range(4): rdX(0, rt)
    for g in range(3): rdW(g, 0); rdW(g, 1)
    a.raw(".p2align 3")
    a.label("L_g1loop")
    def body(it):
        for ts in range(4):
            t = it * 4 + ts
            for ft in range(9):
                g = t * 9 + ft
                fill = [[], [], [], []]
                fill[0].append(lambda: rdW(g + 3, 0))
                fill[1].append(lambda: rdW(g + 3, 1))
                if ft == 5: fill[2].append(lambda: a("s_barrier")); fill[3].append(lambda: rdX(t + 1, 0))
                if ft == 6: fill[2].append(lambda: (rdX(t + 1, 1), rdX(t + 1, 2))); fill[3].append(lambda: rdX(t + 1, 3))
                if ft == 1: fill[2].append(lambda: pf(t))
                if ts % 2 == 1:
                    if ft == 2:
                        fill[2].append(lambda: a(f"s_add_u32 s{sXo}, s{sXo}, {XS}\n s_cmp_eq_u32 s{sXo}, {3*XS}"))
                        fill[3].append(lambda: a(f"s_cselect_b32 s{sXo}, 0, s{sXo}"))
                    if ft == 3:
                        fill[2].append(lambda: a(f"v_add_u32 v{vX[0]}, s{sXo}, v{vXb[0]}"))
                        fill[3].append(lambda: a(f"v_add_u32 v{vX[1]}, s{sXo}, v{vXb[1]}"))
                if ts == 3 and ft == 4:
                    fill[2].append(lambda: a(f"s_add_u32 s{sIT}, s{sIT}, 1\n s_cmp_ge_u32 s{sIT}, {(32-PD)//4}"))
                    fill[3].append(lambda: a(f"s_cselect_b32 s{sPo}, {OOB}, s{sPo}"))
                if ts == 3 and ft == 8:
                    fill[3].append(lambda: a(f"s_cmp_lt_u32 s{sIT}, 8"))
                a.wait(lg=[("W", g), ("X", t)] if ft == 0 else ("W", g))
                for rt in range(4):
                    mf16(acc1(ft, rt), WRING + 4 * (g % 4), XF[t % 2] + 4 * rt)
                    for f in fill[rt]: f()
        a("s_cbranch_scc1 L_g1loop")
    a.loop(body, "g1")
    a.wait0(vm=False)
    stamp("g_end1")
    c = f2u(32 ** -0.5 * math.log2(math.e))
    a(f"s_mov_b32 s{sT0}, {c}\n s_mov_b32 s{sT1}, {c}")
    a(f"""s_lshl_b32 s{sT2}, s{sRG}, 13
      s_lshl_b32 s{sT3}, s{sCG}, 11
      s_add_u32 s{sT2}, s{sT2}, s{sT3}
      s_add_u32 s{sT2}, s{sT2}, {QX}
      v_lshl_add_u32 v14, v0, 4, s{sT2}""")
    T = 16
    for p in range(2):
        for s_ in range(2):
            for h in range(2):
                d = acc1(s_, 2 * p + h)
                a(f"v_pk_mul_f32 {vr(d,2)}, {vr(d,2)}, s[{sT0}:{sT1}]\n v_pk_mul_f32 {vr(d+2,2)}, {vr(d+2,2)}, s[{sT0}:{sT1}]")
                a(f"v_cvt_pk_bf16_f32 v{T+2*h}, v{d}, v{d+1}\n v_cvt_pk_bf16_f32 v{T+2*h+1}, v{d+2}, v{d+3}")
            a(f"s_nop 1\n v_permlane16_swap_b32 v{T}, v{T+2}\n v_permlane16_swap_b32 v{T+1}, v{T+3}")
            a.lg(f"ds_write_b128 v14, {vr(T,4)} offset:{p*4096 + s_*1024}")
            T += 4
    a.wait0(vm=False)
    a("s_barrier")
def g_hstore():
    sRG, sCG = sA, sB
    a(f"""s_mul_i32 s{sT0}, s{sRB}, {RBSZ}
      s_mul_i32 s{sT1}, s{sCB}, {7*8192}
      s_add_u32 s{sT0}, s{sT0}, s{sT1}
      s_lshl_b32 s{sT1}, s{sRG}, 12
      s_add_u32 s{sT0}, s{sT0}, s{sT1}
      s_mul_i32 s{sT1}, s{sCG}, {3*8192+512}
      s_add_u32 s{sT0}, s{sT0}, s{sT1}
      s_mul_i32 s{sT2}, s{sCG}, {8192-1024}
      s_add_u32 s{sT2}, s{sT2}, 512
      s_sub_u32 s{sT3}, 8192, s{sT2}""")
    k = 0
    for ft in range(7):
        for p in range(2):
            T = 16 + 4 * (k % 4); k += 1
            for h in range(2):
                d = acc1(2 + ft, 2 * p + h)
                for r in range(4): a(f"v_max_f32 v{d+r}, 0, v{d+r}")
                a(f"v_pk_mul_f32 {vr(d,2)}, {vr(d,2)}, {vr(d,2)}\n v_pk_mul_f32 {vr(d+2,2)}, {vr(d+2,2)}, {vr(d+2,2)}")
                a(f"v_cvt_pk_bf16_f32 v{T+2*h}, v{d}, v{d+1}\n v_cvt_pk_bf16_f32 v{T+2*h+1}, v{d+2}, v{d+3}")
            a(f"s_nop 1\n v_permlane16_swap_b32 v{T}, v{T+2}\n v_permlane16_swap_b32 v{T+1}, v{T+3}")
            a.vm(f"buffer_store_dwordx4 {vr(T,4)}, v{vLP}, s[{rWS}:{rWS+3}], s{sT0} offen offset:{p*2048} sc1", "hst")
        a(f"s_add_u32 s{sT0}, s{sT0}, s{sT2 if ft % 2 == 0 else sT3}")

vO = 3
vKX, vKG, vKW, vKT0, vKT1, vKVD = 10, 11, 12, 13, 14, 15
KXF, KGF, KWF, KAC = 32, 64, 96, 128
def a_phase1():
    sISV, sR0, sSTG, sM, sSo, sSx, sM2 = sA, sB, sC, sD, sE, sF, sG
    a("s_setprio 1")
    srd(rA, pX, 2048 * 2048)
    a(f"s_cmp_ge_u32 s{sW}, 2\n s_cbranch_scc1 L_a1x")
    for path in range(2):
        if path == 1: a.label("L_a1x")
        a.vmq.clear(); a.lgq.clear()
        if path == 0:
            srd(rB, pW1, 1024 * 7168)
            a(f"s_mul_i32 s{sT0}, s{sW}, {16*7168}\n s_mul_i32 s{sT1}, s{sCB}, 448\n s_add_u32 s{sT0}, s{sT0}, s{sT1}")
            for i in range(7):
                a(f"""v_add_u32 v16, {64*i}, v0
                  v_mul_u32_u24 v17, 2341, v16
                  v_lshrrev_b32 v17, 16, v17
                  v_mul_u32_u24 v18, 28, v17
                  v_sub_u32 v16, v16, v18
                  v_lshrrev_b32 v18, 2, v17
                  v_and_b32 v18, 2, v18
                  v_xor_b32 v16, v16, v18
                  v_mul_u32_u24 v17, 7168, v17
                  v_lshl_add_u32 v16, v16, 4, v17
                  v_add_u32 v16, s{sT0}, v16
                  v_subrev_u32 v{vO+i}, {1024*(i%4)}, v16""")
            a(f"s_mul_i32 s{sM}, s{sW}, 7168\n s_mov_b32 s{sSo}, 0")
            def ldW(t):
                for i in range(7):
                    if i % 4 == 0: a(f"s_add_u32 m0, s{sM}, {(t%4)*W1S + i*1024}\n s_nop 0")
                    a.vm(f"buffer_load_dwordx4 v{vO+i}, s[{rB}:{rB+3}], s{sSo} offen offset:{1024*(i%4)} lds", ("W", t))
                a(f"s_add_u32 s{sSo}, s{sSo}, {32*7168}")
            def ldX(hb): pass
        else:
            srd(rB, pWQ, 1024 * 2048)
            a(f"""s_sub_u32 s{sT2}, s{sW}, 2
              v_lshrrev_b32 v16, 3, v0
              v_lshlrev_b32 v16, 11, v16
              v_and_b32 v17, 7, v0
              v_xor_b32 v18, v17, v2
              v_lshl_add_u32 v18, v18, 4, v16""")
            for i in range(4):
                a(f"v_xor_b32 v19, {64*(i%2)}, v18\n v_add_u32 v{vO+i}, {i*16384 - i*1024}, v19")
            a(f"""v_and_b32 v18, 1, v2
              v_lshlrev_b32 v18, 2, v18
              v_xor_b32 v18, v18, v17
              v_lshl_add_u32 v18, v18, 4, v16
              s_lshl_b32 s{sT0}, s{sCB}, 7
              s_lshl_b32 s{sT1}, s{sT2}, 15
              s_add_u32 s{sT0}, s{sT0}, s{sT1}
              v_add_u32 v{vO+4}, s{sT0}, v18
              v_xor_b32 v18, 32, v{vO+4}
              v_add_u32 v{vO+5}, {16384-1024}, v18
              s_lshl_b32 s{sM}, s{sT2}, 11
              s_add_u32 s{sM}, s{sM}, {WQR}
              s_lshl_b32 s{sM2}, s{sT2}, 13
              s_add_u32 s{sM2}, s{sM2}, {XR}
              s_mov_b32 s{sSo}, 0
              s_lshl_b32 s{sSx}, s{sRB}, 18
              s_lshl_b32 s{sT1}, s{sT2}, 17
              s_add_u32 s{sSx}, s{sSx}, s{sT1}""")
            def ldW(t):
                a(f"s_add_u32 m0, s{sM}, {(t%4)*WQS}\n s_nop 0")
                for i in range(2):
                    a.vm(f"buffer_load_dwordx4 v{vO+4+i}, s[{rB}:{rB+3}], s{sSo} offen offset:{1024*i} lds", ("W", t))
                a(f"s_add_u32 s{sSo}, s{sSo}, 65536")
            def ldX(hb):
                u, hf = divmod(hb, 2)
                a(f"s_add_u32 m0, s{sM2}, {(u%3)*XS + hf*4096}\n s_nop 0")
                for i in range(4):
                    a.vm(f"buffer_load_dwordx4 v{vO+i}, s[{rA}:{rA+3}], s{sSx} offen offset:{1024*i} lds", ("X", u))
                a(f"s_add_u32 s{sSx}, s{sSx}, {65536 if hf == 0 else (128-65536) & 0xffffffff}")
        ldW(0); ldX(0); ldX(1); ldW(1); ldX(2); ldX(3)
        a(f"""s_and_b32 s{sISV}, s{sCB}, 1
          s_lshr_b32 s{sR0}, s{sCB}, 1
          s_lshl_b32 s{sR0}, s{sR0}, 4
          s_lshl_b32 s{sT0}, s{sRB}, 7
          s_add_u32 s{sR0}, s{sR0}, s{sT0}
          s_cmp_eq_u32 s{sISV}, 0
          s_cselect_b32 s{rC}, s{pWK}, s{pWV}
          s_cselect_b32 s{rC+1}, s{pWK+1}, s{pWV+1}
          s_mov_b32 s{rC+2}, 65536
          s_mov_b32 s{rC+3}, 0x20000
          s_lshl_b32 s{sSTG}, s{sW}, 13
          s_add_u32 s{sSTG}, s{sSTG}, {KVST}
          s_lshl_b32 s{sT0}, s{sW}, 9
          v_lshl_add_u32 v{vKG}, v2, 4, s{sT0}
          v_add_u32 v16, s{sR0}, v1
          v_lshl_add_u32 v{vKX}, v16, 11, v{vKG}
          v_lshrrev_b32 v16, 4, v0
          v_and_b32 v16, 2, v16
          v_xor_b32 v16, v16, v0
          s_lshl_b32 s{sT0}, s{sW}, 14
          v_lshl_add_u32 v{vKW}, v16, 4, s{sT0}
          v_lshrrev_b32 v16, 2, v1
          v_lshl_add_u32 v16, v2, 3, v16
          v_and_b32 v17, 3, v1
          v_lshlrev_b32 v17, 3, v17
          v_lshl_add_u32 v16, v16, 6, v17
          v_and_b32 v17, 1, v2
          v_lshl_add_u32 v16, v17, 5, v16
          v_add_u32 v{vKT0}, s{sSTG}, v16
          v_xor_b32 v{vKT1}, 32, v{vKT0}
          v_lshlrev_b32 v{vKVD}, 4, v0""")
        srd(rD, pGATE, 2048); srd(rDBG, pDBG, 256)
        for r in range(12): a(f"v_mov_b32 v{KAC+r}, 0")
        if path == 0:
            a(f"""s_cmp_lg_u32 s{sW}, 0
              s_cbranch_scc1 L_noreset
              s_lshl_b32 s{sT0}, s{sRB}, 8
              s_lshl_b32 s{sT1}, s{sCB}, 4
              s_add_u32 s{sT0}, s{sT0}, s{sT1}
              s_add_u32 s{sT0}, s{sT0}, {FL_OFF}
              v_lshlrev_b32 v16, 12, v0
              v_mov_b32 v17, {SYNC}
              s_mov_b64 exec, 3
              buffer_store_dwordx4 v[{KAC}:{KAC+3}], v16, s[{rWS}:{rWS+3}], s{sT0} offen sc1
              ds_write_b32 v17, v{KAC}
              s_mov_b64 exec, -1""")
            a.label("L_noreset")
        def kvX(lo, hi):
            for i in range(lo, hi):
                a.vm(f"buffer_load_dwordx4 {vr(KXF+4*i,4)}, v{vKX}, s[{rA}:{rA+3}], 0 offen offset:{64*i}", "kx")
                a.vm(f"buffer_load_dwordx4 {vr(KGF+4*i,4)}, v{vKG}, s[{rD}:{rD+3}], 0 offen offset:{64*i}", "kx")
        def kvW(rho, half):
            a(f"s_add_u32 m0, s{sSTG}, {half*4096}\n s_mov_b32 s{sT0}, {rho*8192 + half*4096}")
            for i in range(4):
                a.vm(f"buffer_load_dwordx4 v{vKW}, s[{rC}:{rC+3}], s{sT0} offen offset:{1024*i} lds", ("kw", rho))
        def kvC(rho):
            a.wait(vm=[("kw", rho), "kx"])
            for i in range(4):
                for nt in range(2):
                    for e in range(2):
                        a.lg(f"ds_read_b64_tr_b16 {vr(KWF+8*i+4*nt+2*e,2)}, v{vKT0+nt} offset:{i*2048+e*256}", "kr")
            a.wait0(vm=False)
            lv, ld = a.newlabel("L_kv"), a.newlabel("L_kd")
            a(f"s_cmp_lg_u32 s{sISV}, 0\n s_cbranch_scc1 {lv}")
            for i in range(4):
                for nt in range(2): mf16(KAC + 4 * nt, KWF + 8 * i + 4 * nt, KXF + 16 * rho + 4 * i)
                mf16(KAC + 8, KGF + 16 * rho + 4 * i, KXF + 16 * rho + 4 * i)
            a(f"s_branch {ld}")
            a.label(lv)
            for i in range(4):
                for nt in range(2): mf16(KAC + 4 * nt, KXF + 16 * rho + 4 * i, KWF + 8 * i + 4 * nt)
            a.label(ld)
        def kvP():
            a(f"v_add_u32 v16, s{sSTG}, v{vKVD}\n s_nop 7")
            for nt in range(3): a.lg(f"ds_write_b128 v16, {vr(KAC+4*nt,4)} offset:{nt*1024}")
            a.wait0(vm=False)
        def kvF():
            a(f"s_cmp_lg_u32 s{sW}, 0\n s_cbranch_scc1 L_nofin")
            a(f"""v_lshrrev_b32 v16, 1, v2
              v_and_b32 v17, 1, v2
              v_lshlrev_b32 v18, 4, v1
              s_cmp_eq_u32 s{sISV}, 0
              s_cselect_b32 s{sT0}, 10, 8
              s_cselect_b32 s{sT1}, 9, 10
              s_lshl_b32 s{sT2}, 256, s{sISV}
              v_lshlrev_b32 v19, s{sT0}, v16
              v_lshlrev_b32 v20, s{sT1}, v17
              v_add3_u32 v19, v19, v20, v18
              v_add_u32 v19, {KVST}, v19
              v_add_u32 v20, s{sT2}, v19
              v_add_u32 v21, {KVST+2048}, v18""")
            for w in range(4):
                a(f"ds_read_b128 {vr(32+8*w,4)}, v19 offset:{w*8192}\n ds_read_b128 {vr(36+8*w,4)}, v20 offset:{w*8192}\n ds_read_b32 v{64+w}, v21 offset:{w*8192}")
            a(f"""s_lshr_b32 s{sT3}, s{sR0}, 5
              s_lshl_b32 s{sT3}, s{sT3}, 12
              s_add_u32 s{sT3}, s{sT3}, {KV_OFF}
              s_bfe_u32 s{sT4}, s{sR0}, 0x10004
              s_cmp_eq_u32 s{sISV}, 0
              s_cselect_b32 s{sT0}, 10, 9
              s_cselect_b32 s{sT1}, 9, 8
              s_cselect_b32 s{sT2}, 8, 10
              s_cselect_b32 s{sT5}, 0, 2048
              s_lshl_b32 s{sT4}, s{sT4}, s{sT2}
              s_add_u32 s{sT3}, s{sT3}, s{sT4}
              s_add_u32 s{sT3}, s{sT3}, s{sT5}
              v_lshlrev_b32 v19, s{sT0}, v16
              v_lshlrev_b32 v20, s{sT1}, v17
              v_add3_u32 v19, v19, v20, v18
              s_waitcnt lgkmcnt(0)""")
            for r in range(8):
                a(f"v_add_f32 v{32+r}, v{32+r}, v{40+r}\n v_add_f32 v{48+r}, v{48+r}, v{56+r}\n v_add_f32 v{32+r}, v{32+r}, v{48+r}")
            for r in range(4): a(f"v_cvt_pk_bf16_f32 v{40+r}, v{32+2*r}, v{33+2*r}")
            a(f"""buffer_store_dwordx4 v[40:43], v19, s[{rWS}:{rWS+3}], s{sT3} offen sc1
              v_add_f32 v64, v64, v65
              v_add_f32 v66, v66, v67
              v_add_f32 v64, v64, v66
              v_mul_f32 v64, {f2u(-math.log2(math.e))}, v64
              v_exp_f32 v64, v64
              s_lshl_b32 s{sT0}, s{sR0}, 2
              v_add_f32 v64, 1.0, v64
              v_rcp_f32 v64, v64
              s_add_u32 s{sT0}, s{sT0}, {G_OFF}
              s_cmp_eq_u32 s{sISV}, 0
              s_cselect_b32 s{sT0}, s{sT0}, {OOB}
              v_lshlrev_b32 v20, 2, v0
              s_mov_b64 exec, 0xffff
              buffer_store_dword v64, v20, s[{rWS}:{rWS+3}], s{sT0} offen sc1
              s_mov_b64 exec, -1""")
            a.label("L_nofin")
        def kvA():
            a(f"""s_cmp_lg_u32 s{sW}, 0
              s_cbranch_scc1 L_noarr
              s_waitcnt vmcnt(0)
              v_mov_b32 v16, 1
              v_mov_b32 v17, 0
              s_mov_b64 exec, 1
              buffer_atomic_add v16, v17, s[{rDBG}:{rDBG+3}], 0 offen
              s_mov_b64 exec, -1""")
            a.label("L_noarr")
        def kvPoll():
            a(f"""s_cmp_lg_u32 s{sW}, 0
              s_cbranch_scc1 L_nopoll
              s_mov_b32 s{sT1}, {SPIN_MAX}
              v_mov_b32 v17, 0""")
            a.label("L_poll")
            a(f"""buffer_load_dword v16, v17, s[{rDBG}:{rDBG+3}], 0 offen sc1
              s_waitcnt vmcnt(0)
              v_readfirstlane_b32 s{sT0}, v16
              s_sub_u32 s{sT1}, s{sT1}, 1
              s_cmp_eq_u32 s{sT1}, 0
              s_cbranch_scc1 L_nopoll
              s_cmp_lt_u32 s{sT0}, 256
              s_cbranch_scc1 L_poll""")
            a.label("L_nopoll")
        def kvD(c):
            if c == 0:
                a(f"s_add_u32 s{rE}, s{pWS}, {KV_OFF}\n s_addc_u32 s{rE+1}, s{pWS+1}, 0\n s_mov_b32 s{rE+2}, 0x40000\n s_mov_b32 s{rE+3}, 0x20000")
                a(f"s_lshl_b32 s{sIT}, s{sW}, 12")
            a(f"s_add_u32 m0, s{sIT}, {KVR + ((c+2)%4)*16384}\n s_add_u32 s{sT0}, s{sIT}, {c*16384}")
            for i in range(4):
                a.vm(f"buffer_load_dwordx4 v{vKVD}, s[{rE}:{rE+3}], s{sT0} offen offset:{1024*i} sc1 lds", ("kv", c))
        pre = {}; post = {2: lambda: kvX(0, 4), 3: lambda: kvX(4, 8), 4: lambda: kvW(0, 0), 5: lambda: kvW(0, 1),
                8: lambda: (kvC(0), kvW(1, 0)), 9: lambda: kvW(1, 1), 12: lambda: (kvC(1), kvP()),
                27: lambda: kvD(0), 28: lambda: kvD(1), 30: lambda: kvD(2)}
        if path == 0:
            post[13] = kvF; pre[16] = kvA; post[26] = kvPoll
        if OPT["nokv"]: pre = {}; post = {}
        stamp("a_set")
        for s_ in range(33):
            a.wait(vm=[("W", s_), ("X", s_ // 2)])
            if s_ == 0: stamp("a_w0")
            a("s_barrier")
            if s_ == 8: stamp("a_8")
            if s_ == 16: stamp("a_16")
            if s_ == 24: stamp("a_24")
            if s_ in pre: pre[s_]()
            if s_ + 2 < 32 and not OPT["nodma"]: ldW(s_ + 2)
            if s_ + 4 < 32 and not OPT["nodma"]: ldX(s_ + 4)
            if s_ in post: post[s_]()
        a.wait(vm=[("kv", 1)])
        if path == 0: a("s_branch L_a1done")
    a.label("L_a1done")
    a("s_barrier")

QF, OA, LA, SB, PB, KF, VF, ONES = 32, 48, 80, 88, 120, 136, 152, 168
vKc, vKn, vSy, vOne, vCnt, vG = 16, 17, 18, 19, 20, 21
def attention():
    sKo, sCn, sDo, sMb = sA, sB, sC, sD
    qf = lambda t, s_: QF + 8 * t + 4 * s_
    a(f"s_lshl_b32 s{sT0}, s{sW}, 12\n s_add_u32 s{sT1}, s{sT0}, {QX}\n v_lshl_add_u32 v22, v0, 4, s{sT1}")
    for i in range(4): a.lg(f"ds_read_b128 {vr(QF+4*i,4)}, v22 offset:{1024*i}", "q")
    a(f"v_add_u32 v{vKc}, {KVR+2*16384}, v{vKVD}\n v_add_u32 v{vKn}, {KVR+3*16384}, v{vKVD}")
    def rdK(T, reg):
        for s_ in range(2): a.lg(f"ds_read_b128 {vr(KF+8*(T%2)+4*s_,4)}, v{reg} offset:{(T%4)*4096+1024*s_}", ("K", T))
    def rdV(T, reg):
        for u in range(2): a.lg(f"ds_read_b128 {vr(VF+8*(T%2)+4*u,4)}, v{reg} offset:{(T%4)*4096+2048+1024*u}", ("V", T))
    rdK(0, vKc); rdV(0, vKc)
    a(f"""s_lshl_b32 s{sT1}, s{sRB}, 9
      s_lshl_b32 s{sT2}, s{sW}, 7
      s_add_u32 s{sT1}, s{sT1}, s{sT2}
      s_add_u32 s{sT1}, s{sT1}, {G_OFF}
      v_and_b32 v22, 31, v0
      v_lshlrev_b32 v22, 2, v22
      buffer_load_dword v{vG}, v22, s[{rWS}:{rWS+3}], s{sT1} offen sc1""")
    a(f"""v_lshrrev_b32 v22, 2, v1
      v_xor_b32 v22, v22, v2
      v_and_b32 v22, 1, v22
      v_and_b32 v23, 3, v1
      v_or_b32 v22, v22, v23
      v_cmp_eq_u32 vcc, 0, v22
      v_mov_b32 v23, 0x3f803f80
      v_mov_b32 v{vSy}, {SYNC}
      v_cndmask_b32 v{ONES}, 0, v23, vcc
      v_mov_b32 v{vOne}, 1
      s_mov_b32 s{sKo}, {3*16384}
      s_mov_b32 s{sCn}, 0
      s_add_u32 s{sDo}, s{sT0}, {3*16384}
      s_add_u32 s{sMb}, s{sT0}, {KVR}
      s_mov_b32 s{sIT}, 0""")
    for r in range(1, 4): a(f"v_mov_b32 v{ONES+r}, v{ONES}")
    for r in list(range(OA, OA + 40)) + [SB + 30, SB + 31] + list(range(PB + 12, PB + 16)) + list(range(VF + 12, VF + 16)):
        a(f"v_mov_b32 v{r}, 0")
    a.wait(lg=["q", ("K", 0)])
    mf32(SB, KF, qf(0, 0), "0"); mf32(SB, KF + 4, qf(0, 1))
    a("s_nop 7\n s_nop 3")
    a.raw(".p2align 3")
    a.label("L_att")
    def slot(n, hooks):
        T, t = divmod(n, 2); n1 = n + 1; T1, t1 = divmod(n1, 2); Tp, tp = divmod(n - 1, 2)
        S = SB + 16 * (n % 2); S1 = SB + 16 * (n1 % 2); Sp = S1
        P = PB + 8 * (n % 2); Pp = PB + 8 * ((n - 1) % 2)
        e = lambda i: a(f"v_exp_f32 v{S+i}, v{S+i}")
        c = lambda i: a(f"v_cvt_pk_bf16_f32 v{P+i}, v{S+2*i}, v{S+2*i+1}")
        h = lambda k: [f() for f in hooks.get(k, [])]
        h("top")
        e(0)
        a(f"v_cvt_pk_bf16_f32 v{Pp+7}, v{Sp+14}, v{Sp+15}")
        if t == 1: a.wait(lg=("K", T1))
        mf32(S1, KF + 8 * (T1 % 2), qf(t1, 0), "0")
        h(0); e(1); e(2); c(0); e(3)
        mf32(S1, KF + 8 * (T1 % 2) + 4, qf(t1, 1))
        h(1); e(4); c(1); e(5); e(6); c(2)
        mf32(OA + 16 * tp, VF + 8 * (Tp % 2) + 4, Pp + 4)
        h(2); e(7); e(8); c(3); e(9)
        mf16(LA + 4 * tp, ONES, Pp + 4)
        h(3); e(10); c(4); e(11)
        if t == 0: a.wait(lg=("V", T))
        mf32(OA + 16 * t, VF + 8 * (T % 2), P)
        h(4); e(12); c(5); e(13); e(14); c(6)
        mf16(LA + 4 * t, ONES, P)
        h(5); e(15)
    def body(c_):
        for k in range(8):
            n = 8 * c_ + k; T, t = divmod(n, 2)
            hk = {}
            reg = vKn if T % 4 == 3 else vKc
            if t == 0: hk[0] = [lambda: rdK(T + 1, reg)]
            else: hk[0] = [lambda: rdV(T + 1, reg)]
            if k == 5: hk[1] = [lambda: a.lg(f"ds_read_b32 v{vCnt}, v{vSy}", "cnt")]
            if k == 6:
                def chk():
                    a.wait(lg="cnt")
                    a(f"v_readfirstlane_b32 s{sT0}, v{vCnt}\n s_add_u32 s{sT1}, s{sKo}, {2*16384}\n s_and_b32 s{sT1}, s{sT1}, 0xffff")
                    a(f"s_add_u32 m0, s{sMb}, s{sT1}\n s_cmp_lt_u32 s{sT0}, s{sCn}\n s_cbranch_scc1 L_attspin")
                    a.label("L_attgo")
                hk["top"] = [chk]
                dma = lambda i: a.vm(f"buffer_load_dwordx4 v{vKVD}, s[{rE}:{rE+3}], s{sDo} offen offset:{1024*i} sc1 lds", ("kv", c_ + 3))
                hk[1] = [lambda: dma(0)]; hk[2] = [lambda: dma(1)]; hk[4] = [lambda: dma(2)]; hk[5] = [lambda: dma(3)]
            if k == 7:
                def arr():
                    a.wait(vm=("kv", c_ + 2))
                    a("s_mov_b64 exec, 1"); a.lg(f"ds_add_u32 v{vSy}, v{vOne}"); a("s_mov_b64 exec, -1")
                hk[1] = [arr]
                hk[2] = [lambda: a(f"s_add_u32 s{sDo}, s{sDo}, 16384\n s_add_u32 s{sCn}, s{sCn}, 4\n s_add_u32 s{sKo}, s{sKo}, 16384")]
                hk[3] = [lambda: a(f"s_and_b32 s{sKo}, s{sKo}, 0xffff\n v_mov_b32 v{vKc}, v{vKn}")]
                hk[4] = [lambda: a(f"s_add_u32 s{sT0}, s{sKo}, {KVR}\n v_add_u32 v{vKn}, s{sT0}, v{vKVD}")]
                hk[5] = [lambda: a(f"s_add_u32 s{sIT}, s{sIT}, 1\n s_cmp_lt_u32 s{sIT}, 16")]
            slot(n, hk)
        a("s_cbranch_scc1 L_att")
    a.loop(body, "att")
    a(f"s_nop 0\n v_cvt_pk_bf16_f32 v{PB+15}, v{SB+30}, v{SB+31}\n s_nop 1")
    mf32(OA + 16, VF + 12, PB + 12); mf16(LA + 4, ONES, PB + 12)
    a.wait0()
    stamp("a_att")
    a(f"s_nop 7\n s_nop 1\n s_mov_b32 s{sT0}, {f2u(2.0**-40)}\n s_mov_b32 s{sT1}, {f2u(2.0**100)}")
    a(f"v_max_f32 v23, v{LA}, v{LA+4}")
    for r in list(range(OA, OA + 32)) + [LA, LA + 4]: a(f"v_fma_f32 v23, v{r}, 0, v23")
    a(f"""      v_min_f32 v24, v{LA}, v{LA+4}
      v_cmp_nle_f32 vcc, v23, s{sT1}
      v_cmp_nge_f32 s[{sT2}:{sT3}], v24, s{sT0}
      s_or_b64 vcc, vcc, s[{sT2}:{sT3}]""")
    if OPT["forceslow"]: a("s_branch L_slow")
    a("s_cbranch_vccnz L_slow")
    a.label("L_attfin")
    a(f"""v_rcp_f32 v22, v{LA}
      v_rcp_f32 v24, v{LA+4}
      s_mul_i32 s{sT0}, s{sRB}, {RBSZ}
      s_lshl_b32 s{sT1}, s{sCB}, 14
      s_add_u32 s{sT0}, s{sT0}, s{sT1}
      s_lshl_b32 s{sT1}, s{sW}, 11
      s_add_u32 s{sT0}, s{sT0}, s{sT1}
      s_add_u32 s{sT0}, s{sT0}, {112*8192}
      s_add_u32 s{sT1}, s{sT0}, 8192
      v_mul_f32 v22, v22, v{vG}
      v_mul_f32 v24, v24, v{vG}
      v_and_b32 v26, 1, v2
      v_lshlrev_b32 v26, 10, v26
      v_lshrrev_b32 v27, 1, v2
      v_lshl_add_u32 v26, v27, 8, v26
      v_lshl_add_u32 v26, v1, 4, v26""")
    for t in range(2):
        for s_ in range(2):
            T_ = PB + 8 * t + 4 * s_
            for r in range(4):
                d = OA + 16 * t + 8 * s_ + 2 * r
                a(f"v_pk_mul_f32 {vr(d,2)}, {vr(d,2)}, {vr(22+2*t,2)} op_sel_hi:[1,0]\n v_cvt_pk_bf16_f32 v{T_+r}, v{d}, v{d+1}")
            a(f"s_nop 1\n v_permlane32_swap_b32 v{T_}, v{T_+2}\n v_permlane32_swap_b32 v{T_+1}, v{T_+3}")
            a(f"buffer_store_dwordx4 {vr(T_,4)}, v26, s[{rWS}:{rWS+3}], s{sT0+t} offen offset:{512*s_} sc1")
    setflag(4096)
    stamp("a_end")
    dump_ts_and_end()
    a.label("L_attspin")
    a(f"s_mov_b32 s{sT1}, {SPIN_MAX}")
    a.label("L_attspin2")
    a(f"""ds_read_b32 v{vCnt}, v{vSy}
      s_waitcnt lgkmcnt(0)
      v_readfirstlane_b32 s{sT0}, v{vCnt}
      s_sub_u32 s{sT1}, s{sT1}, 1
      s_cmp_eq_u32 s{sT1}, 0
      s_cbranch_scc1 L_attgo
      s_cmp_lt_u32 s{sT0}, s{sCn}
      s_cbranch_scc1 L_attspin2
      s_branch L_attgo""")
    a.label("L_slow")
    NM = 176
    a(f"v_mov_b32 v22, 0xff800000\n v_mov_b32 v23, 0xff800000\n s_mov_b32 s{sT0}, 0")
    a.label("L_slow1")
    a(f"buffer_load_dwordx4 {vr(KF,4)}, v{vKVD}, s[{rE}:{rE+3}], s{sT0} offen sc1\n buffer_load_dwordx4 {vr(KF+4,4)}, v{vKVD}, s[{rE}:{rE+3}], s{sT0} offen offset:1024 sc1\n s_waitcnt vmcnt(0)")
    for t in range(2):
        mf32(SB + 16 * t, KF, qf(t, 0), "0"); mf32(SB + 16 * t, KF + 4, qf(t, 1))
    a("s_nop 7\n s_nop 3")
    for t in range(2):
        for r in range(0, 16, 2): a(f"v_max3_f32 v{22+t}, v{SB+16*t+r}, v{SB+16*t+r+1}, v{22+t}")
    a(f"s_add_u32 s{sT0}, s{sT0}, 4096\n s_cmp_lt_u32 s{sT0}, 0x40000\n s_cbranch_scc1 L_slow1")
    a("v_mov_b32 v24, v22\n v_mov_b32 v25, v23\n s_nop 1\n v_permlane32_swap_b32 v22, v24\n v_permlane32_swap_b32 v23, v25\n v_max_f32 v22, v22, v24\n v_max_f32 v23, v23, v25")
    for t in range(2):
        for r in range(16): a(f"v_sub_f32 v{NM+16*t+r}, 0, v{22+t}")
    for r in range(OA, OA + 40): a(f"v_mov_b32 v{r}, 0")
    a(f"s_mov_b32 s{sT0}, 0")
    a.label("L_slow2")
    for i in range(4):
        a(f"buffer_load_dwordx4 {vr(KF+4*i,4)}, v{vKVD}, s[{rE}:{rE+3}], s{sT0} offen offset:{1024*i} sc1")
    a("s_waitcnt vmcnt(0)")
    for t in range(2):
        mf32(SB + 16 * t, KF, qf(t, 0), vr(NM + 16 * t, 16)); mf32(SB + 16 * t, KF + 4, qf(t, 1))
    a("s_nop 7\n s_nop 3")
    for r in range(32): a(f"v_exp_f32 v{SB+r}, v{SB+r}")
    a("s_nop 0")
    for r in range(16): a(f"v_cvt_pk_bf16_f32 v{PB+r}, v{SB+2*r}, v{SB+2*r+1}")
    a("s_nop 1")
    for t in range(2):
        for u in range(2):
            mf32(OA + 16 * t, KF + 8 + 4 * u, PB + 8 * t + 4 * u); mf16(LA + 4 * t, ONES, PB + 8 * t + 4 * u)
    a(f"s_add_u32 s{sT0}, s{sT0}, 4096\n s_cmp_lt_u32 s{sT0}, 0x40000\n s_cbranch_scc1 L_slow2")
    a("s_nop 7\n s_nop 3\n s_branch L_attfin")

def setflag(off):
    a(f"""s_lshl_b32 s{sT0}, s{sRB}, 8
      s_lshl_b32 s{sT1}, s{sCB}, 4
      s_add_u32 s{sT0}, s{sT0}, s{sT1}
      s_lshl_b32 s{sT1}, s{sW}, 2
      s_add_u32 s{sT0}, s{sT0}, s{sT1}
      s_add_u32 s{sT0}, s{sT0}, {FL_OFF+off}
      v_mov_b32 v14, 0
      v_mov_b32 v15, 1""")
    a.wait0(lg=False)
    a(f"s_mov_b64 exec, 1\n buffer_store_dword v15, v14, s[{rWS}:{rWS+3}], s{sT0} offen sc1\n s_mov_b64 exec, -1")
def waitflag(off, name):
    a(f"""s_lshl_b32 s{sT0}, s{sRB2}, 8
      s_lshl_b32 s{sT1}, s{sW}, 6
      s_add_u32 s{sT0}, s{sT0}, s{sT1}
      s_add_u32 s{sT0}, s{sT0}, {FL_OFF+off}
      s_mov_b32 s{sT1}, {SPIN_MAX}
      v_lshlrev_b32 v14, 2, v1""")
    a.label(name)
    a(f"""buffer_load_dword v15, v14, s[{rWS}:{rWS+3}], s{sT0} offen sc1
      s_waitcnt vmcnt(0)
      v_cmp_ne_u32 vcc, 1, v15
      s_sub_u32 s{sT1}, s{sT1}, 1
      s_cmp_eq_u32 s{sT1}, 0
      s_cbranch_scc1 {name}_x
      s_cbranch_vccnz {name}""")
    a.label(name + "_x")

ACC2, HR, WF = 128, 64, 32
acc2 = lambda rt, nt: ACC2 + (rt * 4 + nt) * 4
vWD, vWR, vH0, vH1, vGM = 3, 7, 11, 12, 16
sWo, sHo, sMw = sC, sD, sE
def g2_setup():
    srd(rB, pW2, 3584 * 2048)
    a(f"""v_lshrrev_b32 v14, 3, v0
      v_lshlrev_b32 v14, 11, v14
      v_and_b32 v15, 1, v2
      v_lshlrev_b32 v15, 2, v15
      v_and_b32 v30, 7, v0
      v_xor_b32 v15, v15, v30
      v_lshl_add_u32 v14, v15, 4, v14
      s_lshl_b32 s{sT0}, s{sCB2}, 7
      v_add_u32 v14, s{sT0}, v14""")
    for i in range(4): a(f"v_xor_b32 v15, {32*(i%2)}, v14\n v_add_u32 v{vWD+i}, {i*16384-i*1024}, v15")
    a(f"""s_lshl_b32 s{sMw}, s{sW}, 14
      s_mul_i32 s{sWo}, s{sW}, {896*2048}
      v_lshrrev_b32 v14, 2, v1
      v_lshl_add_u32 v14, v2, 3, v14
      v_and_b32 v15, 3, v1
      v_lshlrev_b32 v15, 3, v15
      v_lshl_add_u32 v14, v14, 7, v15
      v_and_b32 v15, 1, v2
      v_lshrrev_b32 v30, 3, v1
      v_lshl_add_u32 v15, v30, 1, v15
      v_lshl_add_u32 v14, v15, 5, v14
      v_add_u32 v14, s{sMw}, v14""")
    for nt in range(4): a(f"v_xor_b32 v{vWR+nt}, {32*nt}, v14")
def dmaW(i, k):
    if k == 0: a(f"s_add_u32 m0, s{sMw}, {(i%4)*4096}\n s_nop 0")
    a.vm(f"buffer_load_dwordx4 v{vWD+k}, s[{rB}:{rB+3}], s{sWo} offen offset:{1024*k} lds", ("W2", i))
    if k == 3: a(f"s_add_u32 s{sWo}, s{sWo}, 65536")
def g_phase2():
    def ldH(i, rt):
        a.vm(f"buffer_load_dwordx4 {vr(HR+32*(i%2)+4*rt,4)}, v{vH0 if rt < 4 else vH1}, s[{rWS}:{rWS+3}], s{sHo} offen offset:{1024*(rt%4)} sc1", ("H", i, rt))
        if rt == 7: a(f"s_add_u32 s{sHo}, s{sHo}, 8192")
    def rdW2(i, nt, e):
        a.lg(f"ds_read_b64_tr_b16 {vr(WF+16*(i%2)+4*nt+2*e,2)}, v{vWR+nt} offset:{(i%4)*4096+512*e}", ("W2", i))
    setflag(0)
    stamp("g_flag")
    a(f"""v_lshlrev_b32 v{vH0}, 4, v0
      v_add_u32 v{vH1}, 4096, v{vH0}
      s_mul_i32 s{sHo}, s{sRB2}, {RBSZ}
      s_mul_i32 s{sT1}, s{sW}, {28*8192}
      s_add_u32 s{sHo}, s{sHo}, s{sT1}
      s_lshl_b32 s{sT2}, s{sRB2}, 9
      s_add_u32 s{sT2}, s{sT2}, {G_OFF}
      v_lshlrev_b32 v14, 2, v1""")
    for rt in range(8): a(f"buffer_load_dword v{vGM+2*rt}, v14, s[{rWS}:{rWS+3}], s{sT2} offen offset:{64*rt} sc1")
    for r in range(128): a(f"v_mov_b32 v{ACC2+r}, 0")
    for nt in range(4): rdW2(0, nt, 0); rdW2(0, nt, 1)
    waitflag(0, "L_wh")
    for i in range(2):
        for rt in range(8): ldH(i, rt)
    for rt in range(8): a(f"v_sub_f32 v{vGM+2*rt}, 1.0, v{vGM+2*rt}")
    stamp("g_l2")
    a(f"s_mov_b32 s{sIT}, 0")
    a.raw(".p2align 3")
    a.label("L_g2loop")
    def body(it):
        for ts in range(4):
            i = 4 * it + ts
            if ts == 1: a(f"s_cmp_ge_u32 s{sIT}, 6\n s_cbranch_scc1 L_hookW"); a.label("L_hookW_r")
            if ts == 2: a(f"s_cmp_ge_u32 s{sIT}, 6\n s_cbranch_scc1 L_hookH"); a.label("L_hookH_r")
            for rt in range(8):
                a.wait(vm=("H", i, rt), lg=("W2", i) if rt == 0 else ())
                fill = [[], [], [], []]
                if rt < 4: fill[1].append(lambda: dmaW(i + 3, rt))
                if rt == 2: fill[2].append(lambda: a.wait(vm=("W2", i + 1)))
                if 3 <= rt < 7:
                    fill[0].append(lambda: rdW2(i + 1, rt - 3, 0)); fill[2].append(lambda: rdW2(i + 1, rt - 3, 1))
                fill[3].append(lambda: ldH(i + 2, rt))
                for nt in range(4):
                    mf16(acc2(rt, nt), WF + 16 * (i % 2) + 4 * nt, HR + 32 * (i % 2) + 4 * rt)
                    for f in fill[nt]: f()
        a(f"s_add_u32 s{sIT}, s{sIT}, 1\n s_cmp_eq_u32 s{sIT}, 7\n s_cbranch_scc1 L_hookS\n s_cmp_lt_u32 s{sIT}, 9\n s_cbranch_scc1 L_g2loop")
    a.loop(body, "g2")
    srd(rA, pB2, 2048); srd(rC, pOUT, 2048 * 2048)
    a(f"s_lshl_b32 s{sT0}, s{sCB2}, 7\n v_lshlrev_b32 v14, 3, v2")
    a.wait0()
    for nt in range(4): a.vm(f"buffer_load_dwordx2 {vr(WF+2*nt,2)}, v14, s[{rA}:{rA+3}], s{sT0} offen offset:{32*nt}", "b2")
    a("s_barrier")
    a(f"s_lshl_b32 s{sT1}, s{sW}, 13\n v_add_u32 v14, s{sT1}, v{vH0}\n v_add_u32 v15, 0x10000, v14")
    for d in range(4):
        l = a.newlabel("L_nw")
        a(f"s_cmp_eq_u32 s{sW}, {d}\n s_cbranch_scc1 {l}")
        for k in range(8): a(f"ds_write_b128 v{14 + d//2}, {vr(ACC2+32*d+4*k,4)} offset:{(d%2)*32768+1024*k}")
        a(f"s_branch {l}_e")
        a.label(l)
        for r in range(32): a(f"v_mov_b32 v{HR+r}, v{ACC2+32*d+r}")
        a(f"v_mov_b32 v{vWD}, v{vGM+4*d}\n v_mov_b32 v{vWD+1}, v{vGM+4*d+2}")
        a.label(l + "_e")
    a(f"s_lshl_b32 s{sT1}, s{sW}, 15\n v_add_u32 v14, s{sT1}, v{vH0}")
    a.wait0(vm=False)
    a("s_barrier")
    for m in range(1, 4):
        a(f"s_add_u32 s{sT1}, s{sW}, {m}\n s_and_b32 s{sT1}, s{sT1}, 3\n s_lshl_b32 s{sT1}, s{sT1}, 13\n v_add_u32 v15, s{sT1}, v14")
        for k in range(8): a.lg(f"ds_read_b128 {vr(ACC2+32*m+4*k,4)}, v15 offset:{1024*k}", ("r", m, k))
    a.wait(vm="b2")
    for nt in range(4):
        a(f"v_lshlrev_b32 v{WF+8+4*nt}, 16, v{WF+2*nt}\n v_and_b32 v{WF+9+4*nt}, 0xffff0000, v{WF+2*nt}")
        a(f"v_lshlrev_b32 v{WF+10+4*nt}, 16, v{WF+2*nt+1}\n v_and_b32 v{WF+11+4*nt}, 0xffff0000, v{WF+2*nt+1}")
    for k in range(8):
        for r in range(4): a(f"v_fmac_f32 v{HR+4*k+r}, v{vWD + k//4}, v{WF+8+4*(k%4)+r}")
    a(f"""s_lshl_b32 s{sT1}, s{sRB2}, 18
      s_lshl_b32 s{sT2}, s{sW}, 16
      s_add_u32 s{sT1}, s{sT1}, s{sT2}
      s_add_u32 s{sT0}, s{sT0}, s{sT1}
      s_add_u32 s{sT1}, s{sT0}, 32768
      v_and_b32 v14, 1, v2
      v_lshlrev_b32 v14, 5, v14
      v_lshrrev_b32 v15, 1, v2
      v_lshl_add_u32 v14, v15, 4, v14
      v_lshl_add_u32 v14, v1, 11, v14""")
    for m in range(1, 4):
        for k in range(8):
            a.wait(lg=("r", m, k))
            for r in (0, 2): a(f"v_pk_add_f32 {vr(HR+4*k+r,2)}, {vr(HR+4*k+r,2)}, {vr(ACC2+32*m+4*k+r,2)}")
            if m == 3 and k % 2 == 1:
                T_ = ACC2 + 2 * (k - 1); d = HR + 4 * (k - 1)
                for r in range(4): a(f"v_cvt_pk_bf16_f32 v{T_+r}, v{d+2*r}, v{d+2*r+1}")
                a(f"s_nop 1\n v_permlane16_swap_b32 v{T_}, v{T_+2}\n v_permlane16_swap_b32 v{T_+1}, v{T_+3}")
                a(f"buffer_store_dwordx4 {vr(T_,4)}, v14, s[{rC}:{rC+3}], s{sT0 + k//4} offen offset:{64*((k//2)%2)}")
    if OPT["ts"]: a.wait0(); stamp("g_end")
    dump_ts_and_end()
    a.label("L_hookW")
    a(f"""s_cmp_eq_u32 s{sIT}, 7
      s_cbranch_scc1 L_hookW_r
      s_mov_b32 s{rB}, s{pWO}
      s_mov_b32 s{rB+1}, s{pWO+1}
      s_mov_b32 s{rB+2}, {1024*2048}
      s_lshl_b32 s{sWo}, s{sW}, 19
      s_cmp_eq_u32 s{sIT}, 6
      s_cselect_b32 s{sWo}, s{sWo}, {OOB}
      s_branch L_hookW_r""")
    a.label("L_hookH")
    a(f"""s_cmp_eq_u32 s{sIT}, 7
      s_cbranch_scc1 L_hookH_r
      s_mov_b32 s{sHo}, {OOB}
      s_cmp_eq_u32 s{sIT}, 8
      s_cbranch_scc1 L_hookH_r""")
    stamp("g_hook")
    waitflag(4096, "L_wo")
    a(f"""s_mul_i32 s{sHo}, s{sRB2}, {RBSZ}
      s_lshl_b32 s{sT1}, s{sW}, 16
      s_add_u32 s{sHo}, s{sHo}, s{sT1}
      s_add_u32 s{sHo}, s{sHo}, {112*8192}
      s_branch L_hookH_r""")
    a.label("L_hookS")
    a("s_nop 3")
    for rt in range(8):
        for r in range(0, 16, 2):
            d = ACC2 + 16 * rt + r
            a(f"v_pk_mul_f32 {vr(d,2)}, {vr(d,2)}, {vr(vGM+2*rt,2)} op_sel_hi:[1,0]")
    a("s_nop 0\n s_branch L_g2loop")

prologue()
g_phase1()
if OPT["stop"] == 1:
    stamp("g_bq"); g_hstore(); a.wait0(); stamp("g_hst"); dump_ts_and_end()
else:
    g2_setup()
    for i in range(3):
        for k in range(4): dmaW(i, k)
    g_hstore()
    g_phase2()
a.label("L_roleA")
a_phase1()
if OPT["stop"] == 1:
    a(f"s_lshl_b32 s{sT0}, s{sW}, 12\n s_add_u32 s{sT1}, s{sT0}, {QX}\n v_lshl_add_u32 v16, v0, 4, s{sT1}")
    for i in range(4): a(f"ds_read_b128 {vr(32+4*i,4)}, v16 offset:{1024*i}")
    a(f"s_lshl_b32 s{sT1}, s{sRB}, 4\n s_add_u32 s{sT1}, s{sT1}, s{sCB}\n s_lshl_b32 s{sT1}, s{sT1}, 14\n s_add_u32 s{sT0}, s{sT0}, s{sT1}\n s_add_u32 s{sT0}, s{sT0}, {QD_OFF}")
    a.wait0()
    for i in range(4): a(f"buffer_store_dwordx4 {vr(32+4*i,4)}, v{vKVD}, s[{rWS}:{rWS+3}], s{sT0} offen offset:{1024*i}")
    dump_ts_and_end()
else:
    stamp("a_bq")
    attention()
a.label("L_exit")
a("s_endpgm")
a.label("L_codeend")

HDR = open("cdna_kernels/" + KNAME[:-7] + ".s.ref").read().split("; Override launch")[0]
text = HDR + f"; @launch grid=(256,1,1) block=(512,1,1) lds={LDS_BYTES}\n"
text += f'.amdgcn_target "amdgcn-amd-amdhsa--gfx950"\n.text\n.globl {KNAME}\n.p2align 8\n.type {KNAME},@function\n{KNAME}:\n'
body = a.text()
nbad = check(body)
text += body
text += f""".section .rodata,"a"
.p2align 6
.amdhsa_kernel {KNAME}
  .amdhsa_next_free_vgpr 256
  .amdhsa_next_free_sgpr 102
  .amdhsa_accum_offset 256
  .amdhsa_group_segment_fixed_size 0
  .amdhsa_kernarg_size 112
  .amdhsa_user_sgpr_count 2
  .amdhsa_user_sgpr_kernarg_segment_ptr 1
  .amdhsa_system_sgpr_workgroup_id_x 1
.end_amdhsa_kernel
"""
open(sys.argv[1], "w").write(text)
if nbad: sys.exit(f"{nbad} hazards")
```

```python
import sys, math
from asmlib import *

KNAME = "gated_mix__grouped_kv_mqa__dense_activation_squared_relu__prompt_kernel"
OPT = dict(stop=0, ts=0, pd=8, forceslow=0, nodma=0, nokv=0, nopf=0, nords=0, lead=6, pfnt=0, far=30, gprio=2, nog2=0, g2nold=0, anodma=0, g2prio=0, dbgts=0, slp=2)
for a_ in sys.argv[2:]:
    k, v = a_.split("="); OPT[k] = int(v)

RBSZ = 144 * 8192
KV_OFF = 0x1200000; G_OFF = 0x1240000; FL_OFF = 0x1244000; WS_USED = 0x1248000
QD_OFF = 0x1400000; TS_OFF = 0x1800000
WS_SIZE = 0x2000000 if (OPT["stop"] or OPT["ts"]) else WS_USED
OOB = 0x40000000
W1R = 0; W1S = 14336
WQR = 57344; WQS = 4096
XR = 73728; XS = 16384
KVST = 122880
SYNC = 155648
GT = SYNC + 256
LDS_BYTES = GT + 2048
QX = XR
KVR = 90112
pX, pWQ, pWK, pWV, pWO, pW1, pB1, pW2, pB2, pGATE, pOUT, pDBG, pWS = 4, 6, 8, 10, 12, 16, 18, 20, 22, 24, 26, 28, 30
rA, rB, rC, rD, rWS, rDBG, rPF, rE = 32, 36, 40, 44, 48, 52, 56, 60
sRB, sCB, sRB2, sCB2, sI, sW = 64, 65, 66, 67, 68, 69
sT0, sT1, sT2, sT3, sT4, sT5 = 70, 71, 72, 73, 74, 75
sIT, sA, sB, sC, sD, sE, sF, sG = 76, 77, 78, 79, 80, 81, 82, 83
sTS = 84
SPIN_MAX = 1 << 18

a = Asm()
def srd(r, p, size):
    a(f"s_mov_b32 s{r}, s{p}\n s_mov_b32 s{r+1}, s{p+1}\n s_mov_b32 s{r+2}, {size}\n s_mov_b32 s{r+3}, 0x20000")
nts = [0]
STAMPS = {1: dict(g_b0=1, g_end1=2, g_bq=3, g_hst=4, g_pre=5, a_set=1, a_w0=2, a_8=3, a_16=4, a_24=5),
          0: dict(g_end1=1, g_flag=2, g_l2=3, g_hook=4, g_end=5, a_w0=1, a_16=2, a_bq=3, a_att=4, a_end=5)}[OPT["stop"]]
def stamp(n):
    i = STAMPS.get(n)
    if OPT["ts"] and i:
        a(f"{'s_memrealtime' if OPT['ts'] == 2 else 's_memtime'} s[{sTS+2*i}:{sTS+2*i+1}]"); a.wait0(vm=False)
def mf16(d, x, y, c=None):
    a(f"v_mfma_f32_16x16x32_bf16 {vr(d,4)}, {vr(x,4)}, {vr(y,4)}, {vr(d,4) if c is None else c}")
def mf32(d, x, y, c=None):
    a(f"v_mfma_f32_32x32x16_bf16 {vr(d,16)}, {vr(x,4)}, {vr(y,4)}, {vr(d,16) if c is None else c}")
def dump_ts_and_end():
    if OPT["ts"]:
        a("s_memrealtime s[98:99]"); a.wait0()
        if OPT["dbgts"]:
            l = a.newlabel("L_nots")
            srd(rDBG, pDBG, 256)
            a(f"s_cmp_lg_u32 s2, 100\n s_cbranch_scc1 {l}\n s_cmp_lg_u32 s{sW}, 0\n s_cbranch_scc1 {l}")
            for i, k in enumerate((1, 2, 3, 4, 5, 7)): a(f"s_sub_u32 s{sT0}, s{sTS+2*k}, s96\n v_mov_b32 v{8+i}, s{sT0}")
            a(f"s_lshl_b32 s{sT0}, s3, 3\n s_add_u32 s{sT0}, s{sT0}, 8\n v_mov_b32 v2, 0\n s_mov_b64 exec, 1")
            a(f"buffer_store_dwordx2 v[8:9], v2, s[{rDBG}:{rDBG+3}], s{sT0} offen")
            a(f"buffer_store_dwordx4 v[10:13], v2, s[{rDBG}:{rDBG+3}], s{sT0} offen offset:8")
            a.label(l)
        else:
            for i in range(8): a(f"v_mov_b32 v{8+i}, s{sTS+2*i}")
            a(f"s_lshl_b32 s{sT0}, s2, 8\n s_lshl_b32 s{sT1}, s3, 5\n s_add_u32 s{sT0}, s{sT0}, s{sT1}\n s_add_u32 s{sT0}, s{sT0}, {TS_OFF}")
            a(f"v_mov_b32 v2, 0\n s_mov_b64 exec, 1")
            a(f"buffer_store_dwordx4 v[8:11], v2, s[{rWS}:{rWS+3}], s{sT0} offen")
            a(f"buffer_store_dwordx4 v[12:15], v2, s[{rWS}:{rWS+3}], s{sT0} offen offset:16")
    a("s_endpgm")

def prologue():
    a("s_cmp_ge_u32 s2, 256\n s_cbranch_scc1 L_exit")
    a("s_load_dwordx16 s[4:19], s[0:1], 0\n s_load_dwordx8 s[20:27], s[0:1], 64\n s_load_dwordx4 s[28:31], s[0:1], 96")
    if OPT["ts"]:
        a(f"s_memtime s[{sTS}:{sTS+1}]\n s_memrealtime s[96:97]")
    a(f"""v_lshrrev_b32 v1, 6, v0
      v_and_b32 v0, 63, v0
      v_readfirstlane_b32 s3, v1
      s_lshr_b32 s{sI}, s2, 3
      s_and_b32 s{sT0}, s2, 7
      s_lshr_b32 s{sT1}, s{sT0}, 2
      s_lshl_b32 s{sT1}, s{sT1}, 3
      s_lshr_b32 s{sT2}, s{sI}, 2
      s_add_u32 s{sRB}, s{sT1}, s{sT2}
      s_and_b32 s{sT1}, s{sT0}, 3
      s_lshl_b32 s{sT1}, s{sT1}, 2
      s_and_b32 s{sT2}, s{sI}, 3
      s_add_u32 s{sCB}, s{sT1}, s{sT2}
      s_lshr_b32 s{sT1}, s{sT0}, 1
      s_lshl_b32 s{sT1}, s{sT1}, 2
      s_lshr_b32 s{sT2}, s{sI}, 3
      s_add_u32 s{sRB2}, s{sT1}, s{sT2}
      s_and_b32 s{sT1}, s{sT0}, 1
      s_lshl_b32 s{sT1}, s{sT1}, 3
      s_and_b32 s{sT2}, s{sI}, 7
      s_add_u32 s{sCB2}, s{sT1}, s{sT2}
      s_and_b32 s{sW}, s3, 3
      v_and_b32 v1, 15, v0
      v_lshrrev_b32 v2, 4, v0
      s_waitcnt lgkmcnt(0)""")
    srd(rWS, pWS, WS_SIZE)
    a("s_cmp_ge_u32 s3, 4\n s_cbranch_scc1 L_roleA")

ACC1 = 112
acc1 = lambda ft, rt: ACC1 + (ft * 4 + rt) * 4
XF = [64, 80]; WRING = 96
vX = [3, 4]; vXb = [5, 6]; vW1 = [7, 8]; vWq = [9, 10]; vPF, vJ, vLP = 11, 12, 13
def g_phase1():
    PD = OPT["pd"]
    sRG, sCG = sA, sB
    sXo, sPo, sPe, sPd = sC, sD, sE, sF
    a(f"s_and_b32 s{sRG}, s{sW}, 1\n s_lshr_b32 s{sCG}, s{sW}, 1")
    srd(rA, pB1, 7168)
    a(f"""s_mul_i32 s{sT0}, s{sCB}, 448
      s_mul_i32 s{sT1}, s{sCG}, 224
      s_add_u32 s{sT0}, s{sT0}, s{sT1}
      v_lshlrev_b32 v14, 3, v2""")
    for ft in range(7):
        a.vm(f"buffer_load_dwordx2 v[{16+2*ft}:{17+2*ft}], v14, s[{rA}:{rA+3}], s{sT0} offen offset:{32*ft}", "bias")
    for r in range(32): a(f"v_mov_b32 v{ACC1+r}, 0")
    a(f"""s_cmp_eq_u32 s{sW}, 1
      s_cbranch_scc0 L_nocode
      s_getpc_b64 s[{rE}:{rE+1}]""")
    a.label("L_pc")
    a(f"""s_mov_b32 s{rE+2}, L_codeend-L_pc
      s_mov_b32 s{rE+3}, 0x20000
      s_lshl_b32 s{sT1}, s{sI}, 10
      v_lshlrev_b32 v15, 7, v0
      s_mov_b64 exec, 0xff
      buffer_load_dword v{vJ}, v15, s[{rE}:{rE+3}], s{sT1} offen
      s_mov_b64 exec, -1""")
    a.label("L_nocode")
    a(f"""v_lshrrev_b32 v14, 1, v1
      v_xor_b32 v14, v14, v2
      v_lshlrev_b32 v14, 4, v14
      v_lshl_add_u32 v14, v1, 7, v14
      s_lshl_b32 s{sT0}, s{sRG}, 13
      s_add_u32 s{sT0}, s{sT0}, {XR}
      v_add_u32 v{vXb[0]}, s{sT0}, v14
      v_xor_b32 v{vXb[1]}, 64, v{vXb[0]}
      v_mov_b32 v{vX[0]}, v{vXb[0]}
      v_mov_b32 v{vX[1]}, v{vXb[1]}
      s_mov_b32 s{sXo}, 0
      v_lshrrev_b32 v14, 2, v1
      v_lshl_add_u32 v14, v2, 3, v14
      v_and_b32 v15, 3, v1
      v_lshlrev_b32 v15, 3, v15
      v_mul_u32_u24 v30, 448, v14
      v_add_u32 v30, v30, v15
      s_mul_i32 s{sT0}, s{sCG}, 224
      v_add_u32 v30, s{sT0}, v30
      v_and_b32 v31, 1, v2
      v_lshlrev_b32 v32, 5, v31
      s_lshl_b32 s{sT1}, s{sCG}, 1
      s_sub_u32 s{sT1}, 1, s{sT1}
      v_mul_lo_u32 v32, v32, s{sT1}
      v_add_u32 v{vW1[0]}, v30, v32
      v_sub_u32 v{vW1[1]}, v30, v32
      v_lshrrev_b32 v32, 3, v1
      v_lshl_add_u32 v31, v32, 1, v31
      s_lshl_b32 s{sT0}, s{sCG}, 1
      v_xor_b32 v31, s{sT0}, v31
      v_lshl_add_u32 v15, v31, 5, v15
      v_lshl_add_u32 v15, v14, 7, v15
      v_add_u32 v{vWq[0]}, {WQR}, v15
      v_xor_b32 v{vWq[1]}, 32, v{vWq[0]}""")
    a(f"""v_and_b32 v14, 1, v2
      v_lshlrev_b32 v14, 10, v14
      v_lshrrev_b32 v15, 1, v2
      v_lshl_add_u32 v14, v15, 8, v14
      v_lshl_add_u32 v{vLP}, v1, 4, v14""")
    stamp("g_pre")
    a.wait0()
    for ft in range(7):
        d = acc1(2 + ft, 0)
        a(f"v_lshlrev_b32 v{d}, 16, v{16+2*ft}\n v_and_b32 v{d+1}, 0xffff0000, v{16+2*ft}")
        a(f"v_lshlrev_b32 v{d+2}, 16, v{17+2*ft}\n v_and_b32 v{d+3}, 0xffff0000, v{17+2*ft}")
        for rt in range(1, 4): a(f"v_mov_b64 {vr(d+4*rt,2)}, {vr(d,2)}\n v_mov_b64 {vr(d+4*rt+2,2)}, {vr(d+2,2)}")
    a(f"""s_cmp_eq_u32 s{sW}, 0
      s_cbranch_scc0 L_noreset
      v_mov_b32 v30, {SYNC}
      ds_write_b32 v30, v{ACC1}
      s_cmp_eq_u32 s2, 0
      s_cbranch_scc0 L_noreset
      v_lshlrev_b32 v15, 4, v0""")
    for i in range(9):
        if i % 4 == 0: a(f"s_mov_b32 s{sT0}, {FL_OFF + 1024*i}")
        a(f"buffer_store_dwordx4 v[{ACC1}:{ACC1+3}], v15, s[{rWS}:{rWS+3}], s{sT0} offen offset:{1024*(i%4)} sc1")
    a.label("L_noreset")
    srd(rDBG, pDBG, 256)
    a(f"s_or_b32 s{sT0}, s{sW}, s2\n s_cmp_eq_u32 s{sT0}, 0\n s_cselect_b32 s{sD}, 1, -1")
    a.wait0(vm=False)
    def rdW(g, e):
        if OPT["nords"] and g > 2: return
        t, ft = divmod(g, 9); d = WRING + 4 * (g % 4) + 2 * e
        if ft < 2: a.lg(f"ds_read_b64_tr_b16 {vr(d,2)}, v{vWq[ft]} offset:{(t%4)*WQS + e*512}", ("W", g))
        else: a.lg(f"ds_read_b64_tr_b16 {vr(d,2)}, v{vW1[ft%2]} offset:{(t%4)*W1S + e*1792 + (ft-2)*32}", ("W", g))
    def rdX(t, rt):
        a.lg(f"ds_read_b128 {vr(XF[t%2]+4*rt,4)}, v{vX[t%2]} offset:{rt*2048}", ("X", t))
    a(f"s_mov_b32 s{sIT}, 0")
    a("s_barrier")
    stamp("g_b0")
    for rt in range(4): rdX(0, rt)
    for g in range(3): rdW(g, 0); rdW(g, 1)
    a.raw(".p2align 3")
    a.label("L_g1loop")
    def body(it):
        for ts in range(4):
            t = it * 4 + ts
            for ft in range(9):
                g = t * 9 + ft
                fill = [[], [], [], []]
                fill[0].append(lambda: rdW(g + 3, 0))
                fill[1].append(lambda: rdW(g + 3, 1))
                if ft == 5: fill[2].append(lambda: a("s_barrier")); fill[3].append(lambda: rdX(t + 1, 0))
                if ft == 6: fill[2].append(lambda: (rdX(t + 1, 1), rdX(t + 1, 2))); fill[3].append(lambda: rdX(t + 1, 3))
                if ts % 2 == 1:
                    if ft == 2:
                        fill[2].append(lambda: a(f"s_add_u32 s{sXo}, s{sXo}, {XS}\n s_cmp_eq_u32 s{sXo}, {3*XS}"))
                        fill[3].append(lambda: a(f"s_cselect_b32 s{sXo}, 0, s{sXo}"))
                    if ft == 3:
                        fill[2].append(lambda: a(f"v_add_u32 v{vX[0]}, s{sXo}, v{vXb[0]}"))
                        fill[3].append(lambda: a(f"v_add_u32 v{vX[1]}, s{sXo}, v{vXb[1]}"))
                if ts == 0 and ft == 4:
                    fill[2].append(lambda: a(f"s_cmp_eq_u32 s{sIT}, s{sD}")); fill[3].append(lambda: (a("s_cbranch_scc1 L_arrive"), a.label("L_arrive_r")))
                if ts == 3 and ft == 8:
                    fill[2].append(lambda: a(f"s_add_u32 s{sIT}, s{sIT}, 1")); fill[3].append(lambda: a(f"s_cmp_lt_u32 s{sIT}, 8"))
                a.wait(lg=[("W", g), ("X", t)] if ft == 0 else ("W", g))
                for rt in range(4):
                    mf16(acc1(ft, rt), WRING + 4 * (g % 4), XF[t % 2] + 4 * rt)
                    for f in fill[rt]: f()
        a("s_cbranch_scc1 L_g1loop")
    a.loop(body, "g1")
    a.wait0(vm=False)
    stamp("g_end1")
    a(f"s_setprio {OPT['gprio']}")
    c = f2u(32 ** -0.5 * math.log2(math.e))
    a(f"s_mov_b32 s{sT0}, {c}\n s_mov_b32 s{sT1}, {c}")
    a(f"""s_lshl_b32 s{sT2}, s{sRG}, 13
      s_lshl_b32 s{sT3}, s{sCG}, 11
      s_add_u32 s{sT2}, s{sT2}, s{sT3}
      s_add_u32 s{sT2}, s{sT2}, {QX}
      v_lshl_add_u32 v14, v0, 4, s{sT2}""")
    T = 16
    for p in range(2):
        for s_ in range(2):
            for h in range(2):
                d = acc1(s_, 2 * p + h)
                a(f"v_pk_mul_f32 {vr(d,2)}, {vr(d,2)}, s[{sT0}:{sT1}]\n v_pk_mul_f32 {vr(d+2,2)}, {vr(d+2,2)}, s[{sT0}:{sT1}]")
                a(f"v_cvt_pk_bf16_f32 v{T+2*h}, v{d}, v{d+1}\n v_cvt_pk_bf16_f32 v{T+2*h+1}, v{d+2}, v{d+3}")
            a(f"s_nop 1\n v_permlane16_swap_b32 v{T}, v{T+2}\n v_permlane16_swap_b32 v{T+1}, v{T+3}")
            a.lg(f"ds_write_b128 v14, {vr(T,4)} offset:{p*4096 + s_*1024}")
            T += 4
    a.wait0(vm=False)
    a("s_barrier")
def g_hstore():
    sRG, sCG = sA, sB
    a(f"""s_mul_i32 s{sT0}, s{sRB}, {RBSZ}
      s_mul_i32 s{sT1}, s{sCB}, {7*8192}
      s_add_u32 s{sT0}, s{sT0}, s{sT1}
      s_lshl_b32 s{sT1}, s{sRG}, 12
      s_add_u32 s{sT0}, s{sT0}, s{sT1}
      s_mul_i32 s{sT1}, s{sCG}, {3*8192+512}
      s_add_u32 s{sT0}, s{sT0}, s{sT1}
      s_mul_i32 s{sT2}, s{sCG}, {8192-1024}
      s_add_u32 s{sT2}, s{sT2}, 512
      s_sub_u32 s{sT3}, 8192, s{sT2}""")
    k = 0
    for ft in range(7):
        for p in range(2):
            T = 16 + 4 * (k % 4); k += 1
            for h in range(2):
                d = acc1(2 + ft, 2 * p + h)
                for r in range(4): a(f"v_max_f32 v{d+r}, 0, v{d+r}")
                a(f"v_pk_mul_f32 {vr(d,2)}, {vr(d,2)}, {vr(d,2)}\n v_pk_mul_f32 {vr(d+2,2)}, {vr(d+2,2)}, {vr(d+2,2)}")
                a(f"v_cvt_pk_bf16_f32 v{T+2*h}, v{d}, v{d+1}\n v_cvt_pk_bf16_f32 v{T+2*h+1}, v{d+2}, v{d+3}")
            a(f"s_nop 1\n v_permlane16_swap_b32 v{T}, v{T+2}\n v_permlane16_swap_b32 v{T+1}, v{T+3}")
            a.vm(f"buffer_store_dwordx4 {vr(T,4)}, v{vLP}, s[{rWS}:{rWS+3}], s{sT0} offen offset:{p*2048} sc1", "hst")
        a(f"s_add_u32 s{sT0}, s{sT0}, s{sT2 if ft % 2 == 0 else sT3}")

vO = 3
vKX, vKG, vKW, vKT0, vKVD = 11, 12, 13, 24, 15
KXF, KGF, KWF, KAC = 32, 64, 96, 128
def a_phase1():
    sISV, sR0, sSTG, sM, sSo, sSx, sGrp = sA, sB, sC, sD, sE, sF, sG
    NT = " nt" if OPT["pfnt"] else ""
    LEAD = OPT["lead"]
    a("s_setprio 1")
    srd(rA, pX, 2048 * 2048)
    a(f"s_cmp_eq_u32 s{sW}, 2\n s_cbranch_scc1 L_a1x\n s_cmp_eq_u32 s{sW}, 3\n s_cbranch_scc1 L_a1p")
    for path in range(3):
        if path > 0: a.label(["", "L_a1x", "L_a1p"][path])
        a.vmq.clear(); a.lgq.clear()
        ldW = ldX = pfs = lambda t: None
        if path == 0:
            srd(rB, pW1, 1024 * 7168)
            a(f"s_mul_i32 s{sT0}, s{sW}, {16*7168}\n s_mul_i32 s{sT1}, s{sCB}, 448\n s_add_u32 s{sT0}, s{sT0}, s{sT1}")
            a(f"s_mul_i32 s{sM}, s{sW}, 7168\n s_mov_b32 s{sSo}, 0")
            def ldW(t):
                for i in range(7):
                    if t == 0:
                        a(f"""v_add_u32 v16, {64*i}, v0
                          v_mul_u32_u24 v17, 2341, v16
                          v_lshrrev_b32 v17, 16, v17
                          v_mul_u32_u24 v18, 28, v17
                          v_sub_u32 v16, v16, v18
                          v_lshrrev_b32 v18, 2, v17
                          v_and_b32 v18, 2, v18
                          v_xor_b32 v16, v16, v18
                          v_mul_u32_u24 v17, 7168, v17
                          v_lshl_add_u32 v16, v16, 4, v17
                          v_add_u32 v16, s{sT0}, v16
                          v_subrev_u32 v{vO+i}, {1024*(i%4)}, v16""")
                    if i % 4 == 0: a(f"s_add_u32 m0, s{sM}, {(t%4)*W1S + i*1024}\n s_nop 0")
                    a.vm(f"buffer_load_dwordx4 v{vO+i}, s[{rB}:{rB+3}], s{sSo} offen offset:{1024*(i%4)} lds", ("W", t))
                a(f"s_add_u32 s{sSo}, s{sSo}, {32*7168}")
        elif path == 1:
            srd(rB, pWQ, 1024 * 2048)
            a(f"""v_lshrrev_b32 v16, 3, v0
              v_lshlrev_b32 v16, 11, v16
              v_and_b32 v17, 7, v0
              v_xor_b32 v18, v17, v2
              v_lshl_add_u32 v18, v18, 4, v16
              v_and_b32 v20, 1, v2
              v_lshlrev_b32 v20, 2, v20
              v_xor_b32 v20, v20, v17
              v_lshl_add_u32 v20, v20, 4, v16
              s_lshl_b32 s{sSo}, s{sCB}, 7
              s_lshl_b32 s{sSx}, s{sRB}, 18""")
            for i in range(4):
                a(f"v_xor_b32 v19, {64*(i%2)}, v18\n v_add_u32 v{vO+i}, {i*16384 - i*1024}, v19")
                a(f"v_xor_b32 v19, {32*(i%2)}, v20\n v_add_u32 v{vO+4+i}, {i*16384 - i*1024}, v19")
            def ldW(t):
                a(f"s_mov_b32 m0, {WQR + (t%4)*WQS}\n s_nop 0")
                for i in range(4):
                    a.vm(f"buffer_load_dwordx4 v{vO+4+i}, s[{rB}:{rB+3}], s{sSo} offen offset:{1024*i} lds", ("W", t))
                a(f"s_add_u32 s{sSo}, s{sSo}, 65536")
            def ldX(hb):
                u, hf = divmod(hb, 2)
                for g2 in range(2):
                    a(f"s_mov_b32 m0, {XR + (u%3)*XS + hf*8192 + g2*4096}\n s_nop 0")
                    for i in range(4):
                        a.vm(f"buffer_load_dwordx4 v{vO+i}, s[{rA}:{rA+3}], s{sSx} offen offset:{1024*i} lds", ("X", u))
                    a(f"s_add_u32 s{sSx}, s{sSx}, {65536 if (hf, g2) != (1, 1) else (128-3*65536) & 0xffffffff}")
        else:
            srd(rB, pW1, 1024 * 7168); srd(rPF, pWQ, 1024 * 2048)
            a(f"""s_and_b32 s{sGrp}, s{sI}, 7
              s_lshl_b32 s{sT0}, s{sGrp}, 5
              s_and_b32 s{sT1}, s{sI}, 24
              s_add_u32 s{sT0}, s{sT0}, s{sT1}
              s_and_b32 s{sT1}, s2, 7
              s_add_u32 s{sT0}, s{sT0}, s{sT1}
              s_lshl_b32 s{sSx}, s{sT0}, 14
              s_mul_i32 s{sSo}, s{sT0}, 7168
              s_lshl_b32 s{sM}, s{sT0}, 11
              v_lshrrev_b32 v16, 3, v0
              v_and_b32 v17, 7, v0
              v_lshlrev_b32 v17, 7, v17
              v_lshl_add_u32 v{vO}, v16, 11, v17
              v_lshlrev_b32 v{vO+1}, 7, v0""")
            def pfW():
                a(f"s_mov_b32 exec_hi, 0xffffff\n buffer_load_dword v{vO+2}, v{vO+1}, s[{rB}:{rB+3}], s{sSo} offen{NT}")
                a(f"s_mov_b64 exec, 0xffff\n buffer_load_dword v{vO+2}, v{vO+1}, s[{rPF}:{rPF+3}], s{sM} offen{NT}\n s_mov_b64 exec, -1")
                a(f"s_add_u32 s{sSo}, s{sSo}, {256*7168}\n s_add_u32 s{sM}, s{sM}, {256*2048}")
            if not OPT["nopf"]:
                a(f"buffer_load_dword v{vO+2}, v{vO}, s[{rA}:{rA+3}], s{sSx} offen{NT}")
                a(f"s_cmp_ge_u32 s{sGrp}, {LEAD}\n s_cbranch_scc1 L_nopf0")
                pfW()
                a.label("L_nopf0")
            def pfs(t):
                if OPT["nopf"]: return
                if t + LEAD < 32:
                    l = a.newlabel("L_np")
                    a(f"s_cmp_lg_u32 s{sGrp}, {(t+LEAD)%8}\n s_cbranch_scc1 {l}")
                    pfW()
                    if t < 8: a(f"buffer_load_dword v{vO+2}, v{vO}, s[{rA}:{rA+3}], s{sSx} offen offset:1024{NT}")
                    a.label(l)
                if t == OPT["far"]:
                    srd(rB, pW2, 3584 * 2048); srd(rPF, pWO, 1024 * 2048)
                    a(f"s_mul_i32 s{sSo}, s2, 28672\n s_lshl_b32 s{sM}, s2, 13")
                    for i in range(4):
                        if i == 3: a("s_mov_b32 exec_hi, 0")
                        a.vm(f"buffer_load_dword v{vO+2}, v{vO+1}, s[{rB}:{rB+3}], s{sSo} offen")
                        a(f"s_add_u32 s{sSo}, s{sSo}, 8192")
                    a("s_mov_b64 exec, -1")
                    a.vm(f"buffer_load_dword v{vO+2}, v{vO+1}, s[{rPF}:{rPF+3}], s{sM} offen")
        ldW(0); ldX(0); ldX(1); ldW(1); ldX(2); ldX(3)
        a(f"""s_and_b32 s{sISV}, s{sCB}, 1
          s_lshr_b32 s{sR0}, s{sCB}, 1
          s_lshl_b32 s{sR0}, s{sR0}, 4
          s_lshl_b32 s{sT0}, s{sRB}, 7
          s_add_u32 s{sR0}, s{sR0}, s{sT0}
          s_cmp_eq_u32 s{sISV}, 0
          s_cselect_b32 s{rC}, s{pWK}, s{pWV}
          s_cselect_b32 s{rC+1}, s{pWK+1}, s{pWV+1}
          s_mov_b32 s{rC+2}, 65536
          s_mov_b32 s{rC+3}, 0x20000
          v_lshlrev_b32 v{vKVD}, 4, v0""")
        if path == 2:
            srd(rD, pGATE, 2048); srd(rDBG, pDBG, 256)
            a(f"s_lshl_b32 s{sT0}, s{sR0}, 5\n s_mov_b64 exec, 15\n buffer_load_dword v{vO+2}, v{vO+1}, s[{rC}:{rC+3}], s{sT0} offen\n s_mov_b64 exec, -1")
            a(f"s_mov_b32 m0, {GT}\n s_nop 0")
            for i in range(2): a.vm(f"buffer_load_dwordx4 v{vKVD}, s[{rD}:{rD+3}], 0 offen offset:{1024*i} lds", "gt")
            a("s_setprio 0")
        a(f"""s_lshl_b32 s{sSTG}, s{sW}, 13
          s_add_u32 s{sSTG}, s{sSTG}, {KVST}
          s_lshl_b32 s{sT0}, s{sW}, 7
          v_lshl_add_u32 v17, v2, 4, s{sT0}
          v_add_u32 v{vKG}, {GT}, v17
          v_add_u32 v16, s{sR0}, v1
          v_lshl_add_u32 v{vKX}, v16, 11, v17
          v_lshrrev_b32 v16, 4, v0
          v_and_b32 v16, 2, v16
          v_xor_b32 v16, v16, v0
          s_lshl_b32 s{sT0}, s{sW}, 12
          v_lshl_add_u32 v{vKW}, v16, 4, s{sT0}
          v_lshrrev_b32 v16, 2, v1
          v_lshl_add_u32 v16, v2, 3, v16
          v_and_b32 v17, 3, v1
          v_lshlrev_b32 v17, 3, v17
          v_lshl_add_u32 v16, v16, 6, v17
          v_and_b32 v17, 1, v2
          v_lshl_add_u32 v16, v17, 5, v16
          v_add_u32 v{vKT0}, s{sSTG}, v16
          v_xor_b32 v{vKT0+1}, 32, v{vKT0}""")
        for r in range(12): a(f"v_mov_b32 v{KAC+r}, 0")
        def kvX(rho):
            for i in range(2):
                a.vm(f"buffer_load_dwordx4 {vr(KXF+8*rho+4*i,4)}, v{vKX}, s[{rA}:{rA+3}], 0 offen offset:{512*rho+64*i}", ("kw", rho))
        def kvW(rho, half):
            a(f"s_add_u32 m0, s{sSTG}, {(rho%2)*4096}\n s_mov_b32 s{sT0}, {rho*16384}")
            for i in range(2 * half, 2 * half + 2):
                a.vm(f"buffer_load_dwordx4 v{vKW}, s[{rC}:{rC+3}], s{sT0} offen offset:{1024*i} lds", ("kw", rho))
        def kvC(rho):
            a.wait(vm=("kw", rho))
            for i in range(2):
                for nt in range(2):
                    for e in range(2):
                        a.lg(f"ds_read_b64_tr_b16 {vr(KWF+8*i+4*nt+2*e,2)}, v{vKT0+nt} offset:{(rho%2)*4096+i*2048+e*256}")
                a.lg(f"ds_read_b128 {vr(KGF+4*i,4)}, v{vKG} offset:{512*rho+64*i}")
            a.wait0(vm=False)
            lv, ld = a.newlabel("L_kv"), a.newlabel("L_kd")
            a(f"s_cmp_lg_u32 s{sISV}, 0\n s_cbranch_scc1 {lv}")
            for i in range(2):
                for nt in range(2): mf16(KAC + 4 * nt, KWF + 8 * i + 4 * nt, KXF + 8 * rho + 4 * i)
                mf16(KAC + 8, KGF + 4 * i, KXF + 8 * rho + 4 * i)
            a(f"s_branch {ld}")
            a.label(lv)
            for i in range(2):
                for nt in range(2): mf16(KAC + 4 * nt, KXF + 8 * rho + 4 * i, KWF + 8 * i + 4 * nt)
            a.label(ld)
        def kvP():
            a(f"v_add_u32 v16, s{sSTG}, v{vKVD}\n s_nop 7")
            for nt in range(3): a.lg(f"ds_write_b128 v16, {vr(KAC+4*nt,4)} offset:{nt*1024}")
            a.wait0(vm=False)
        def kvF():
            a(f"""v_lshrrev_b32 v16, 1, v2
              v_and_b32 v17, 1, v2
              v_lshlrev_b32 v18, 4, v1
              s_cmp_eq_u32 s{sISV}, 0
              s_cselect_b32 s{sT0}, 10, 8
              s_cselect_b32 s{sT1}, 9, 10
              s_lshl_b32 s{sT2}, 256, s{sISV}
              v_lshlrev_b32 v19, s{sT0}, v16
              v_lshlrev_b32 v20, s{sT1}, v17
              v_add3_u32 v19, v19, v20, v18
              v_add_u32 v19, {KVST}, v19
              v_add_u32 v20, s{sT2}, v19
              v_add_u32 v21, {KVST+2048}, v18""")
            for w in range(4):
                a(f"ds_read_b128 {vr(32+8*w,4)}, v19 offset:{w*8192}\n ds_read_b128 {vr(36+8*w,4)}, v20 offset:{w*8192}\n ds_read_b32 v{64+w}, v21 offset:{w*8192}")
            a(f"""s_lshr_b32 s{sT3}, s{sR0}, 5
              s_lshl_b32 s{sT3}, s{sT3}, 12
              s_add_u32 s{sT3}, s{sT3}, {KV_OFF}
              s_bfe_u32 s{sT4}, s{sR0}, 0x10004
              s_cmp_eq_u32 s{sISV}, 0
              s_cselect_b32 s{sT0}, 10, 9
              s_cselect_b32 s{sT1}, 9, 8
              s_cselect_b32 s{sT2}, 8, 10
              s_cselect_b32 s{sT5}, 0, 2048
              s_lshl_b32 s{sT4}, s{sT4}, s{sT2}
              s_add_u32 s{sT3}, s{sT3}, s{sT4}
              s_add_u32 s{sT3}, s{sT3}, s{sT5}
              v_lshlrev_b32 v19, s{sT0}, v16
              v_lshlrev_b32 v20, s{sT1}, v17
              v_add3_u32 v19, v19, v20, v18
              s_waitcnt lgkmcnt(0)""")
            for r in range(0, 8, 2):
                a(f"v_pk_add_f32 {vr(32+r,2)}, {vr(32+r,2)}, {vr(40+r,2)}\n v_pk_add_f32 {vr(48+r,2)}, {vr(48+r,2)}, {vr(56+r,2)}\n v_pk_add_f32 {vr(32+r,2)}, {vr(32+r,2)}, {vr(48+r,2)}")
            for r in range(4): a(f"v_cvt_pk_bf16_f32 v{40+r}, v{32+2*r}, v{33+2*r}")
            a(f"""buffer_store_dwordx4 v[40:43], v19, s[{rWS}:{rWS+3}], s{sT3} offen sc1
              v_add_f32 v64, v64, v65
              v_add_f32 v66, v66, v67
              v_add_f32 v64, v64, v66
              v_mul_f32 v64, {f2u(-math.log2(math.e))}, v64
              v_exp_f32 v64, v64
              s_lshl_b32 s{sT0}, s{sR0}, 2
              v_add_f32 v64, 1.0, v64
              v_rcp_f32 v64, v64
              s_add_u32 s{sT0}, s{sT0}, {G_OFF}
              s_cmp_eq_u32 s{sISV}, 0
              s_cselect_b32 s{sT0}, s{sT0}, {OOB}
              v_lshlrev_b32 v20, 2, v0
              s_mov_b64 exec, 0xffff
              buffer_store_dword v64, v20, s[{rWS}:{rWS+3}], s{sT0} offen sc1
              s_mov_b64 exec, -1""")
        def kvA():
            a(f"""s_lshl_b32 s{sT0}, s{sRB}, 4
              s_add_u32 s{sT0}, s{sT0}, s{sCB}
              s_lshl_b32 s{sT0}, s{sT0}, 2
              s_add_u32 s{sT0}, s{sT0}, {FL_OFF+8192}
              v_mov_b32 v16, 1
              v_mov_b32 v17, 0""")
            a.wait0(lg=False)
            a(f"""s_mov_b64 exec, 1
              buffer_store_dword v16, v17, s[{rWS}:{rWS+3}], s{sT0} offen sc1
              s_mov_b64 exec, -1""")
        def kvPoll0a():
            a(f"v_mov_b32 v17, 0\n buffer_load_dword v18, v17, s[{rDBG}:{rDBG+3}], 0 offen sc1")
        def kvPoll0():
            a(f"s_mov_b32 s{sT1}, {SPIN_MAX}")
            a.label("L_poll0")
            a(f"""s_waitcnt vmcnt(0)
              v_readfirstlane_b32 s{sT0}, v18
              s_sub_u32 s{sT1}, s{sT1}, 1
              s_cmp_ge_u32 s{sT0}, 1
              s_cbranch_scc1 L_poll0x
              buffer_load_dword v18, v17, s[{rDBG}:{rDBG+3}], 0 offen sc1
              s_cmp_lg_u32 s{sT1}, 0
              s_cbranch_scc1 L_poll0""")
            a.label("L_poll0x")
        def kvPoll1a():
            a(f"s_mov_b32 s{sT2}, {FL_OFF+8192}\n buffer_load_dwordx4 v[20:23], v{vKVD}, s[{rWS}:{rWS+3}], s{sT2} offen sc1")
        def kvPoll1():
            a(f"s_mov_b32 s{sT1}, {SPIN_MAX}")
            a.label("L_poll1")
            a(f"""s_waitcnt vmcnt(0)
              v_and_b32 v20, v20, v21
              v_and_b32 v22, v22, v23
              v_and_b32 v20, v20, v22
              v_cmp_ne_u32 vcc, 1, v20
              s_sub_u32 s{sT1}, s{sT1}, 1
              s_cbranch_vccz L_poll1x
              buffer_load_dwordx4 v[20:23], v{vKVD}, s[{rWS}:{rWS+3}], s{sT2} offen sc1
              s_cmp_lg_u32 s{sT1}, 0
              s_cbranch_scc1 L_poll1""")
            a.label("L_poll1x")
        def kvD(c):
            if c == 0:
                a(f"s_add_u32 s{rE}, s{pWS}, {KV_OFF}\n s_addc_u32 s{rE+1}, s{pWS+1}, 0\n s_mov_b32 s{rE+2}, 0x40000\n s_mov_b32 s{rE+3}, 0x20000")
                a(f"s_lshl_b32 s{sIT}, s{sW}, 12")
            a(f"s_add_u32 m0, s{sIT}, {KVR + ((c+2)%4)*16384}\n s_add_u32 s{sT0}, s{sIT}, {c*16384}")
            for i in range(4):
                a.vm(f"buffer_load_dwordx4 v{vKVD}, s[{rE}:{rE+3}], s{sT0} offen offset:{1024*i} sc1 lds", ("kv", c))
        post = {k: [] for k in range(33)}
        if not OPT["nokv"]:
            for rho in range(4):
                post[3*rho+6].append(lambda rho=rho: kvC(rho))
                post[3*rho+1].append(lambda rho=rho: kvX(rho))
                post[3*rho+2].append(lambda rho=rho: kvW(rho, 0)); post[3*rho+3].append(lambda rho=rho: kvW(rho, 1))
            post[15].append(kvP)
            if path == 2:
                post[4].append(lambda: a.wait(vm="gt"))
                post[16] += [kvF, kvPoll0a]; post[19] += [kvPoll0, kvA]; post[25].append(kvPoll1a); post[27].append(kvPoll1)
            for c in range(3): post[28 + c].append(lambda c=c: kvD(c))
        stamp("a_set")
        for s_ in range(33):
            a.wait(vm=[("W", s_), ("X", s_ // 2)])
            if s_ == 0: stamp("a_w0")
            a("s_barrier")
            if s_ in (8, 16, 24): stamp(f"a_{s_}")
            if s_ + 2 < 32 and not OPT["nodma"]: ldW(s_ + 2)
            if s_ + 4 < 32 and not OPT["nodma"]: ldX(s_ + 4)
            for f in post[s_]: f()
            pfs(s_)
        a.wait(vm=[("kv", 1)])
        if path < 2: a("s_branch L_a1done")
    a("s_setprio 1")
    a.vmq[:] = [("kv", 2)] * 4
    a.label("L_a1done")
    a("s_barrier")

QF, OA, LA, SB, PB, KF, VF, ONES = 32, 48, 80, 88, 120, 136, 152, 168
vKc, vKn, vSy, vOne, vCnt, vG = 16, 17, 18, 19, 20, 21
def attention():
    sKo, sCn, sDo, sMb = sA, sB, sC, sD
    qf = lambda t, s_: QF + 8 * t + 4 * s_
    a(f"s_lshl_b32 s{sT0}, s{sW}, 12\n s_add_u32 s{sT1}, s{sT0}, {QX}\n v_lshl_add_u32 v22, v0, 4, s{sT1}")
    for i in range(4): a.lg(f"ds_read_b128 {vr(QF+4*i,4)}, v22 offset:{1024*i}", "q")
    a(f"v_add_u32 v{vKc}, {KVR+2*16384}, v{vKVD}\n v_add_u32 v{vKn}, {KVR+3*16384}, v{vKVD}")
    def rdK(T, reg):
        for s_ in range(2): a.lg(f"ds_read_b128 {vr(KF+8*(T%2)+4*s_,4)}, v{reg} offset:{(T%4)*4096+1024*s_}", ("K", T))
    def rdV(T, reg):
        for u in range(2): a.lg(f"ds_read_b128 {vr(VF+8*(T%2)+4*u,4)}, v{reg} offset:{(T%4)*4096+2048+1024*u}", ("V", T))
    rdK(0, vKc); rdV(0, vKc)
    a(f"""s_lshl_b32 s{sT1}, s{sRB}, 9
      s_lshl_b32 s{sT2}, s{sW}, 7
      s_add_u32 s{sT1}, s{sT1}, s{sT2}
      s_add_u32 s{sT1}, s{sT1}, {G_OFF}
      v_and_b32 v22, 31, v0
      v_lshlrev_b32 v22, 2, v22
      buffer_load_dword v{vG}, v22, s[{rWS}:{rWS+3}], s{sT1} offen sc1""")
    a(f"""v_lshrrev_b32 v22, 2, v1
      v_xor_b32 v22, v22, v2
      v_and_b32 v22, 1, v22
      v_and_b32 v23, 3, v1
      v_or_b32 v22, v22, v23
      v_cmp_eq_u32 vcc, 0, v22
      v_mov_b32 v23, 0x3f803f80
      v_mov_b32 v{vSy}, {SYNC}
      v_cndmask_b32 v{ONES}, 0, v23, vcc
      v_mov_b32 v{vOne}, 1
      s_mov_b32 s{sKo}, {3*16384}
      s_mov_b32 s{sCn}, 0
      s_add_u32 s{sDo}, s{sT0}, {3*16384}
      s_add_u32 s{sMb}, s{sT0}, {KVR}
      s_mov_b32 s{sIT}, 0""")
    for r in range(1, 4): a(f"v_mov_b32 v{ONES+r}, v{ONES}")
    for r in list(range(OA, OA + 40)) + [SB + 30, SB + 31] + list(range(PB + 12, PB + 16)) + list(range(VF + 12, VF + 16)):
        a(f"v_mov_b32 v{r}, 0")
    a.wait(lg=["q", ("K", 0)])
    mf32(SB, KF, qf(0, 0), "0"); mf32(SB, KF + 4, qf(0, 1))
    a("s_nop 7\n s_nop 3")
    a.raw(".p2align 3")
    a.label("L_att")
    def slot(n, hooks):
        T, t = divmod(n, 2); n1 = n + 1; T1, t1 = divmod(n1, 2); Tp, tp = divmod(n - 1, 2)
        S = SB + 16 * (n % 2); S1 = SB + 16 * (n1 % 2); Sp = S1
        P = PB + 8 * (n % 2); Pp = PB + 8 * ((n - 1) % 2)
        e = lambda i: a(f"v_exp_f32 v{S+i}, v{S+i}")
        c = lambda i: a(f"v_cvt_pk_bf16_f32 v{P+i}, v{S+2*i}, v{S+2*i+1}")
        h = lambda k: [f() for f in hooks.get(k, [])]
        h("top")
        e(0)
        a(f"v_cvt_pk_bf16_f32 v{Pp+7}, v{Sp+14}, v{Sp+15}")
        if t == 1: a.wait(lg=("K", T1))
        mf32(S1, KF + 8 * (T1 % 2), qf(t1, 0), "0")
        h(0); e(1); e(2); c(0); e(3)
        mf32(S1, KF + 8 * (T1 % 2) + 4, qf(t1, 1))
        h(1); e(4); c(1); e(5); e(6); c(2)
        mf32(OA + 16 * tp, VF + 8 * (Tp % 2) + 4, Pp + 4)
        h(2); e(7); e(8); c(3); e(9)
        mf16(LA + 4 * tp, ONES, Pp + 4)
        h(3); e(10); c(4); e(11)
        if t == 0: a.wait(lg=("V", T))
        mf32(OA + 16 * t, VF + 8 * (T % 2), P)
        h(4); e(12); c(5); e(13); e(14); c(6)
        mf16(LA + 4 * t, ONES, P)
        h(5); e(15)
    def body(c_):
        for k in range(8):
            n = 8 * c_ + k; T, t = divmod(n, 2)
            hk = {}
            reg = vKn if T % 4 == 3 else vKc
            if t == 0: hk[0] = [lambda: rdK(T + 1, reg)]
            else: hk[0] = [lambda: rdV(T + 1, reg)]
            if k == 5: hk[1] = [lambda: a.lg(f"ds_read_b32 v{vCnt}, v{vSy}", "cnt")]
            if k == 6:
                def chk():
                    a.wait(lg="cnt")
                    a(f"v_readfirstlane_b32 s{sT0}, v{vCnt}\n s_add_u32 s{sT1}, s{sKo}, {2*16384}\n s_and_b32 s{sT1}, s{sT1}, 0xffff")
                    a(f"s_add_u32 m0, s{sMb}, s{sT1}\n s_cmp_lt_u32 s{sT0}, s{sCn}\n s_cbranch_scc1 L_attspin")
                    a.label("L_attgo")
                hk["top"] = [chk]
                dma = lambda i: a.vm(f"buffer_load_dwordx4 v{vKVD}, s[{rE}:{rE+3}], s{sDo} offen offset:{1024*i} sc1 lds", ("kv", c_ + 3))
                if OPT["anodma"]: dma = lambda i: None
                hk[1] = [lambda: dma(0)]; hk[2] = [lambda: dma(1)]; hk[4] = [lambda: dma(2)]; hk[5] = [lambda: dma(3)]
            if k == 7:
                def arr():
                    a.wait(vm=("kv", c_ + 2))
                    a("s_mov_b64 exec, 1"); a.lg(f"ds_add_u32 v{vSy}, v{vOne}"); a("s_mov_b64 exec, -1")
                hk[1] = [arr]
                hk[2] = [lambda: a(f"s_add_u32 s{sDo}, s{sDo}, 16384\n s_add_u32 s{sCn}, s{sCn}, 4\n s_add_u32 s{sKo}, s{sKo}, 16384")]
                hk[3] = [lambda: a(f"s_and_b32 s{sKo}, s{sKo}, 0xffff\n v_mov_b32 v{vKc}, v{vKn}")]
                hk[4] = [lambda: a(f"s_add_u32 s{sT0}, s{sKo}, {KVR}\n v_add_u32 v{vKn}, s{sT0}, v{vKVD}")]
                hk[5] = [lambda: a(f"s_add_u32 s{sIT}, s{sIT}, 1\n s_cmp_lt_u32 s{sIT}, 16")]
            slot(n, hk)
        a("s_cbranch_scc1 L_att")
    a.loop(body, "att")
    a(f"s_nop 0\n v_cvt_pk_bf16_f32 v{PB+15}, v{SB+30}, v{SB+31}\n s_nop 1")
    mf32(OA + 16, VF + 12, PB + 12); mf16(LA + 4, ONES, PB + 12)
    a.wait0()
    stamp("a_att")
    a(f"s_nop 7\n s_nop 1\n s_mov_b32 s{sT0}, {f2u(2.0**-40)}\n s_mov_b32 s{sT1}, {f2u(2.0**100)}")
    a(f"v_max_f32 v23, v{LA}, v{LA+4}")
    for r in list(range(OA, OA + 32)) + [LA, LA + 4]: a(f"v_fma_f32 v23, v{r}, 0, v23")
    a(f"""      v_min_f32 v24, v{LA}, v{LA+4}
      v_cmp_nle_f32 vcc, v23, s{sT1}
      v_cmp_nge_f32 s[{sT2}:{sT3}], v24, s{sT0}
      s_or_b64 vcc, vcc, s[{sT2}:{sT3}]""")
    if OPT["forceslow"]: a("s_branch L_slow")
    a("s_cbranch_vccnz L_slow")
    a.label("L_attfin")
    a(f"""v_rcp_f32 v22, v{LA}
      v_rcp_f32 v24, v{LA+4}
      s_mul_i32 s{sT0}, s{sRB}, {RBSZ}
      s_lshl_b32 s{sT1}, s{sCB}, 14
      s_add_u32 s{sT0}, s{sT0}, s{sT1}
      s_lshl_b32 s{sT1}, s{sW}, 11
      s_add_u32 s{sT0}, s{sT0}, s{sT1}
      s_add_u32 s{sT0}, s{sT0}, {112*8192}
      s_add_u32 s{sT1}, s{sT0}, 8192
      v_mul_f32 v22, v22, v{vG}
      v_mul_f32 v24, v24, v{vG}
      v_and_b32 v26, 1, v2
      v_lshlrev_b32 v26, 10, v26
      v_lshrrev_b32 v27, 1, v2
      v_lshl_add_u32 v26, v27, 8, v26
      v_lshl_add_u32 v26, v1, 4, v26""")
    for t in range(2):
        for s_ in range(2):
            T_ = PB + 8 * t + 4 * s_
            for r in range(4):
                d = OA + 16 * t + 8 * s_ + 2 * r
                a(f"v_pk_mul_f32 {vr(d,2)}, {vr(d,2)}, {vr(22+2*t,2)} op_sel_hi:[1,0]\n v_cvt_pk_bf16_f32 v{T_+r}, v{d}, v{d+1}")
            a(f"s_nop 1\n v_permlane32_swap_b32 v{T_}, v{T_+2}\n v_permlane32_swap_b32 v{T_+1}, v{T_+3}")
            a(f"buffer_store_dwordx4 {vr(T_,4)}, v26, s[{rWS}:{rWS+3}], s{sT0+t} offen offset:{512*s_} sc1")
    setflag(4096)
    stamp("a_end")
    dump_ts_and_end()
    a.label("L_attspin")
    a(f"s_mov_b32 s{sT1}, {SPIN_MAX}")
    a.label("L_attspin2")
    a(f"""ds_read_b32 v{vCnt}, v{vSy}
      s_waitcnt lgkmcnt(0)
      v_readfirstlane_b32 s{sT0}, v{vCnt}
      s_sub_u32 s{sT1}, s{sT1}, 1
      s_cmp_eq_u32 s{sT1}, 0
      s_cbranch_scc1 L_attgo
      s_cmp_lt_u32 s{sT0}, s{sCn}
      s_cbranch_scc1 L_attspin2
      s_branch L_attgo""")
    a.label("L_slow")
    NM = 176
    a(f"v_mov_b32 v22, 0xff800000\n v_mov_b32 v23, 0xff800000\n s_mov_b32 s{sT0}, 0")
    a.label("L_slow1")
    a(f"buffer_load_dwordx4 {vr(KF,4)}, v{vKVD}, s[{rE}:{rE+3}], s{sT0} offen sc1\n buffer_load_dwordx4 {vr(KF+4,4)}, v{vKVD}, s[{rE}:{rE+3}], s{sT0} offen offset:1024 sc1\n s_waitcnt vmcnt(0)")
    for t in range(2):
        mf32(SB + 16 * t, KF, qf(t, 0), "0"); mf32(SB + 16 * t, KF + 4, qf(t, 1))
    a("s_nop 7\n s_nop 3")
    for t in range(2):
        for r in range(0, 16, 2): a(f"v_max3_f32 v{22+t}, v{SB+16*t+r}, v{SB+16*t+r+1}, v{22+t}")
    a(f"s_add_u32 s{sT0}, s{sT0}, 4096\n s_cmp_lt_u32 s{sT0}, 0x40000\n s_cbranch_scc1 L_slow1")
    a("v_mov_b32 v24, v22\n v_mov_b32 v25, v23\n s_nop 1\n v_permlane32_swap_b32 v22, v24\n v_permlane32_swap_b32 v23, v25\n v_max_f32 v22, v22, v24\n v_max_f32 v23, v23, v25")
    for t in range(2):
        for r in range(16): a(f"v_sub_f32 v{NM+16*t+r}, 0, v{22+t}")
    for r in range(OA, OA + 40): a(f"v_mov_b32 v{r}, 0")
    a(f"s_mov_b32 s{sT0}, 0")
    a.label("L_slow2")
    for i in range(4):
        a(f"buffer_load_dwordx4 {vr(KF+4*i,4)}, v{vKVD}, s[{rE}:{rE+3}], s{sT0} offen offset:{1024*i} sc1")
    a("s_waitcnt vmcnt(0)")
    for t in range(2):
        mf32(SB + 16 * t, KF, qf(t, 0), vr(NM + 16 * t, 16)); mf32(SB + 16 * t, KF + 4, qf(t, 1))
    a("s_nop 7\n s_nop 3")
    for r in range(32): a(f"v_exp_f32 v{SB+r}, v{SB+r}")
    a("s_nop 0")
    for r in range(16): a(f"v_cvt_pk_bf16_f32 v{PB+r}, v{SB+2*r}, v{SB+2*r+1}")
    a("s_nop 1")
    for t in range(2):
        for u in range(2):
            mf32(OA + 16 * t, KF + 8 + 4 * u, PB + 8 * t + 4 * u); mf16(LA + 4 * t, ONES, PB + 8 * t + 4 * u)
    a(f"s_add_u32 s{sT0}, s{sT0}, 4096\n s_cmp_lt_u32 s{sT0}, 0x40000\n s_cbranch_scc1 L_slow2")
    a("s_nop 7\n s_nop 3\n s_branch L_attfin")

def setflag(off):
    a(f"""s_lshl_b32 s{sT0}, s{sRB}, 8
      s_lshl_b32 s{sT1}, s{sCB}, 4
      s_add_u32 s{sT0}, s{sT0}, s{sT1}
      s_lshl_b32 s{sT1}, s{sW}, 2
      s_add_u32 s{sT0}, s{sT0}, s{sT1}
      s_add_u32 s{sT0}, s{sT0}, {FL_OFF+off}
      v_mov_b32 v14, 0
      v_mov_b32 v15, 1""")
    a.wait0(lg=False)
    a(f"s_mov_b64 exec, 1\n buffer_store_dword v15, v14, s[{rWS}:{rWS+3}], s{sT0} offen sc1\n s_mov_b64 exec, -1")
def waitflag(off, name):
    a(f"""s_lshl_b32 s{sT0}, s{sRB2}, 8
      s_lshl_b32 s{sT1}, s{sW}, 6
      s_add_u32 s{sT0}, s{sT0}, s{sT1}
      s_add_u32 s{sT0}, s{sT0}, {FL_OFF+off}
      s_mov_b32 s{sT1}, {SPIN_MAX}
      v_lshlrev_b32 v14, 2, v1""")
    a.label(name)
    a(f"""buffer_load_dword v15, v14, s[{rWS}:{rWS+3}], s{sT0} offen sc1
      s_waitcnt vmcnt(0)
      v_cmp_ne_u32 vcc, 1, v15
      s_sub_u32 s{sT1}, s{sT1}, 1
      s_cbranch_vccz {name}_x
      s_sleep {OPT['slp']}
      s_cmp_lg_u32 s{sT1}, 0
      s_cbranch_scc1 {name}""")
    a.label(name + "_x")

ACC2, HR, WF = 128, 64, 32
acc2 = lambda rt, nt: ACC2 + (rt * 4 + nt) * 4
vWD, vWR, vH0, vH1, vGM = 3, 7, 11, 12, 16
sWo, sHo, sMw = sC, sD, sE
def g2_setup():
    srd(rB, pW2, 3584 * 2048)
    a(f"""v_lshrrev_b32 v14, 3, v0
      v_lshlrev_b32 v14, 11, v14
      v_and_b32 v15, 1, v2
      v_lshlrev_b32 v15, 2, v15
      v_and_b32 v30, 7, v0
      v_xor_b32 v15, v15, v30
      v_lshl_add_u32 v14, v15, 4, v14
      s_lshl_b32 s{sT0}, s{sCB2}, 7
      v_add_u32 v14, s{sT0}, v14""")
    for i in range(4): a(f"v_xor_b32 v15, {32*(i%2)}, v14\n v_add_u32 v{vWD+i}, {i*16384-i*1024}, v15")
    a(f"""s_lshl_b32 s{sMw}, s{sW}, 14
      s_mul_i32 s{sWo}, s{sW}, {896*2048}
      v_lshrrev_b32 v14, 2, v1
      v_lshl_add_u32 v14, v2, 3, v14
      v_and_b32 v15, 3, v1
      v_lshlrev_b32 v15, 3, v15
      v_lshl_add_u32 v14, v14, 7, v15
      v_and_b32 v15, 1, v2
      v_lshrrev_b32 v30, 3, v1
      v_lshl_add_u32 v15, v30, 1, v15
      v_lshl_add_u32 v14, v15, 5, v14
      v_add_u32 v14, s{sMw}, v14""")
    for nt in range(4): a(f"v_xor_b32 v{vWR+nt}, {32*nt}, v14")
def dmaW(i, k):
    if OPT["g2nold"] and i > 2: return
    if k == 0: a(f"s_add_u32 m0, s{sMw}, {(i%4)*4096}\n s_nop 0")
    a.vm(f"buffer_load_dwordx4 v{vWD+k}, s[{rB}:{rB+3}], s{sWo} offen offset:{1024*k} lds", ("W2", i))
    if k == 3: a(f"s_add_u32 s{sWo}, s{sWo}, 65536")
def g_phase2():
    def ldH(i, rt):
        if OPT["g2nold"] and i > 1: return
        a.vm(f"buffer_load_dwordx4 {vr(HR+32*(i%2)+4*rt,4)}, v{vH0 if rt < 4 else vH1}, s[{rWS}:{rWS+3}], s{sHo} offen offset:{1024*(rt%4)} sc1", ("H", i, rt))
        if rt == 7: a(f"s_add_u32 s{sHo}, s{sHo}, 8192")
    def rdW2(i, nt, e):
        a.lg(f"ds_read_b64_tr_b16 {vr(WF+16*(i%2)+4*nt+2*e,2)}, v{vWR+nt} offset:{(i%4)*4096+512*e}", ("W2", i))
    setflag(0)
    stamp("g_flag")
    if OPT["nog2"]: dump_ts_and_end()
    a(f"""v_lshlrev_b32 v{vH0}, 4, v0
      v_add_u32 v{vH1}, 4096, v{vH0}
      s_mul_i32 s{sHo}, s{sRB2}, {RBSZ}
      s_mul_i32 s{sT1}, s{sW}, {28*8192}
      s_add_u32 s{sHo}, s{sHo}, s{sT1}
      s_lshl_b32 s{sT2}, s{sRB2}, 9
      s_add_u32 s{sT2}, s{sT2}, {G_OFF}
      v_lshlrev_b32 v14, 2, v1""")
    for rt in range(8): a(f"buffer_load_dword v{vGM+2*rt}, v14, s[{rWS}:{rWS+3}], s{sT2} offen offset:{64*rt} sc1")
    for r in range(0, 128, 2): a(f"v_mov_b64 {vr(ACC2+r,2)}, 0")
    for nt in range(4): rdW2(0, nt, 0); rdW2(0, nt, 1)
    waitflag(0, "L_wh")
    for i in range(2):
        for rt in range(8): ldH(i, rt)
    for rt in range(8): a(f"v_sub_f32 v{vGM+2*rt}, 1.0, v{vGM+2*rt}")
    stamp("g_l2")
    a(f"s_setprio {OPT['g2prio']}")
    a(f"s_mov_b32 s{sIT}, 0")
    a.raw(".p2align 3")
    a.label("L_g2loop")
    def body(it):
        for ts in range(4):
            i = 4 * it + ts
            if ts == 1: a(f"s_cmp_ge_u32 s{sIT}, 6\n s_cbranch_scc1 L_hookW"); a.label("L_hookW_r")
            if ts == 2: a(f"s_cmp_ge_u32 s{sIT}, 6\n s_cbranch_scc1 L_hookH"); a.label("L_hookH_r")
            for rt in range(8):
                a.wait(vm=("H", i, rt), lg=("W2", i) if rt == 0 else ())
                fill = [[], [], [], []]
                if rt < 4: fill[1].append(lambda: dmaW(i + 3, rt))
                if rt == 2: fill[2].append(lambda: a.wait(vm=("W2", i + 1)))
                if 3 <= rt < 7:
                    fill[0].append(lambda: rdW2(i + 1, rt - 3, 0)); fill[2].append(lambda: rdW2(i + 1, rt - 3, 1))
                fill[3].append(lambda: ldH(i + 2, rt))
                for nt in range(4):
                    mf16(acc2(rt, nt), WF + 16 * (i % 2) + 4 * nt, HR + 32 * (i % 2) + 4 * rt)
                    for f in fill[nt]: f()
        a(f"s_add_u32 s{sIT}, s{sIT}, 1\n s_cmp_eq_u32 s{sIT}, 7\n s_cbranch_scc1 L_hookS\n s_cmp_lt_u32 s{sIT}, 9\n s_cbranch_scc1 L_g2loop")
    a.loop(body, "g2")
    srd(rA, pB2, 2048); srd(rC, pOUT, 2048 * 2048)
    a(f"s_lshl_b32 s{sT0}, s{sCB2}, 7\n v_lshlrev_b32 v14, 3, v2")
    a.wait0()
    for nt in range(4): a.vm(f"buffer_load_dwordx2 {vr(WF+2*nt,2)}, v14, s[{rA}:{rA+3}], s{sT0} offen offset:{32*nt}", "b2")
    a("s_barrier")
    a(f"s_lshl_b32 s{sT1}, s{sW}, 13\n v_add_u32 v14, s{sT1}, v{vH0}\n v_add_u32 v15, 0x10000, v14")
    for d in range(4):
        l = a.newlabel("L_nw")
        a(f"s_cmp_eq_u32 s{sW}, {d}\n s_cbranch_scc1 {l}")
        for k in range(8): a(f"ds_write_b128 v{14 + d//2}, {vr(ACC2+32*d+4*k,4)} offset:{(d%2)*32768+1024*k}")
        a(f"s_branch {l}_e")
        a.label(l)
        for r in range(32): a(f"v_mov_b32 v{HR+r}, v{ACC2+32*d+r}")
        a(f"v_mov_b32 v{vWD}, v{vGM+4*d}\n v_mov_b32 v{vWD+1}, v{vGM+4*d+2}")
        a.label(l + "_e")
    a(f"s_lshl_b32 s{sT1}, s{sW}, 15\n v_add_u32 v14, s{sT1}, v{vH0}")
    a.wait0(vm=False)
    a("s_barrier")
    for m in range(1, 4):
        a(f"s_add_u32 s{sT1}, s{sW}, {m}\n s_and_b32 s{sT1}, s{sT1}, 3\n s_lshl_b32 s{sT1}, s{sT1}, 13\n v_add_u32 v15, s{sT1}, v14")
        for k in range(8): a.lg(f"ds_read_b128 {vr(ACC2+32*m+4*k,4)}, v15 offset:{1024*k}", ("r", m, k))
    a.wait(vm="b2")
    for nt in range(4):
        a(f"v_lshlrev_b32 v{WF+8+4*nt}, 16, v{WF+2*nt}\n v_and_b32 v{WF+9+4*nt}, 0xffff0000, v{WF+2*nt}")
        a(f"v_lshlrev_b32 v{WF+10+4*nt}, 16, v{WF+2*nt+1}\n v_and_b32 v{WF+11+4*nt}, 0xffff0000, v{WF+2*nt+1}")
    for k in range(8):
        for r in range(4): a(f"v_fmac_f32 v{HR+4*k+r}, v{vWD + k//4}, v{WF+8+4*(k%4)+r}")
    a(f"""s_lshl_b32 s{sT1}, s{sRB2}, 18
      s_lshl_b32 s{sT2}, s{sW}, 16
      s_add_u32 s{sT1}, s{sT1}, s{sT2}
      s_add_u32 s{sT0}, s{sT0}, s{sT1}
      s_add_u32 s{sT1}, s{sT0}, 32768
      v_and_b32 v14, 1, v2
      v_lshlrev_b32 v14, 5, v14
      v_lshrrev_b32 v15, 1, v2
      v_lshl_add_u32 v14, v15, 4, v14
      v_lshl_add_u32 v14, v1, 11, v14""")
    for m in range(1, 4):
        for k in range(8):
            a.wait(lg=("r", m, k))
            for r in (0, 2): a(f"v_pk_add_f32 {vr(HR+4*k+r,2)}, {vr(HR+4*k+r,2)}, {vr(ACC2+32*m+4*k+r,2)}")
            if m == 3 and k % 2 == 1:
                T_ = ACC2 + 2 * (k - 1); d = HR + 4 * (k - 1)
                for r in range(4): a(f"v_cvt_pk_bf16_f32 v{T_+r}, v{d+2*r}, v{d+2*r+1}")
                a(f"s_nop 1\n v_permlane16_swap_b32 v{T_}, v{T_+2}\n v_permlane16_swap_b32 v{T_+1}, v{T_+3}")
                a(f"buffer_store_dwordx4 {vr(T_,4)}, v14, s[{rC}:{rC+3}], s{sT0 + k//4} offen offset:{64*((k//2)%2)}")
    if OPT["ts"]: a.wait0(); stamp("g_end")
    dump_ts_and_end()
    a.label("L_hookW")
    a(f"""s_cmp_eq_u32 s{sIT}, 7
      s_cbranch_scc1 L_hookW_r
      s_mov_b32 s{rB}, s{pWO}
      s_mov_b32 s{rB+1}, s{pWO+1}
      s_mov_b32 s{rB+2}, {1024*2048}
      s_lshl_b32 s{sWo}, s{sW}, 19
      s_cmp_eq_u32 s{sIT}, 6
      s_cselect_b32 s{sWo}, s{sWo}, {OOB}
      s_branch L_hookW_r""")
    a.label("L_hookH")
    a(f"""s_cmp_eq_u32 s{sIT}, 7
      s_cbranch_scc1 L_hookH_r
      s_mov_b32 s{sHo}, {OOB}
      s_cmp_eq_u32 s{sIT}, 8
      s_cbranch_scc1 L_hookH_r""")
    stamp("g_hook")
    waitflag(4096, "L_wo")
    a(f"""s_mul_i32 s{sHo}, s{sRB2}, {RBSZ}
      s_lshl_b32 s{sT1}, s{sW}, 16
      s_add_u32 s{sHo}, s{sHo}, s{sT1}
      s_add_u32 s{sHo}, s{sHo}, {112*8192}
      s_branch L_hookH_r""")
    a.label("L_hookS")
    a("s_nop 3")
    for rt in range(8):
        for r in range(0, 16, 2):
            d = ACC2 + 16 * rt + r
            a(f"v_pk_mul_f32 {vr(d,2)}, {vr(d,2)}, {vr(vGM+2*rt,2)} op_sel_hi:[1,0]")
    a("s_nop 0\n s_branch L_g2loop")

prologue()
g_phase1()
if OPT["stop"] == 1:
    stamp("g_bq"); g_hstore(); a.wait0(); stamp("g_hst"); dump_ts_and_end()
else:
    g2_setup()
    for i in range(3):
        for k in range(4): dmaW(i, k)
    g_hstore()
    g_phase2()
a.label("L_arrive")
a(f"""s_waitcnt vmcnt(0)
  v_mov_b32 v14, 1
  v_mov_b32 v15, 0
  s_mov_b64 exec, 1
  buffer_store_dword v14, v15, s[{rDBG}:{rDBG+3}], 0 offen sc1
  s_mov_b64 exec, -1
  s_branch L_arrive_r""")
a.label("L_roleA")
a_phase1()
if OPT["stop"] == 1:
    a(f"s_lshl_b32 s{sT0}, s{sW}, 12\n s_add_u32 s{sT1}, s{sT0}, {QX}\n v_lshl_add_u32 v16, v0, 4, s{sT1}")
    for i in range(4): a(f"ds_read_b128 {vr(32+4*i,4)}, v16 offset:{1024*i}")
    a(f"s_lshl_b32 s{sT1}, s{sRB}, 4\n s_add_u32 s{sT1}, s{sT1}, s{sCB}\n s_lshl_b32 s{sT1}, s{sT1}, 14\n s_add_u32 s{sT0}, s{sT0}, s{sT1}\n s_add_u32 s{sT0}, s{sT0}, {QD_OFF}")
    a.wait0()
    for i in range(4): a(f"buffer_store_dwordx4 {vr(32+4*i,4)}, v{vKVD}, s[{rWS}:{rWS+3}], s{sT0} offen offset:{1024*i}")
    dump_ts_and_end()
else:
    stamp("a_bq")
    attention()
a.label("L_exit")
a("s_endpgm")
a.label("L_codeend")

HDR = open("cdna_kernels/" + KNAME[:-7] + ".s.ref").read().split("; Override launch")[0]
text = HDR + f"; @launch grid=(256,1,1) block=(512,1,1) lds={LDS_BYTES}\n"
text += f'.amdgcn_target "amdgcn-amd-amdhsa--gfx950"\n.text\n.globl {KNAME}\n.p2align 8\n.type {KNAME},@function\n{KNAME}:\n'
body = a.text()
nbad = check(body)
text += body
text += f""".section .rodata,"a"
.p2align 6
.amdhsa_kernel {KNAME}
  .amdhsa_next_free_vgpr 256
  .amdhsa_next_free_sgpr 102
  .amdhsa_accum_offset 256
  .amdhsa_group_segment_fixed_size 0
  .amdhsa_kernarg_size 112
  .amdhsa_user_sgpr_count 2
  .amdhsa_user_sgpr_kernarg_segment_ptr 1
  .amdhsa_system_sgpr_workgroup_id_x 1
.end_amdhsa_kernel
"""
open(sys.argv[1], "w").write(text)
if nbad: sys.exit(f"{nbad} hazards")
```

```python
import sys, math
from asmlib import *

KNAME = "gated_mix__grouped_kv_mqa__dense_activation_squared_relu__prompt_kernel"
OPT = dict(stop=0, ts=0, pd=8, forceslow=0, nodma=0, nokv=0, nopf=0, nords=0, lead=6, pfnt=0, far=30, gprio=2, nog2=0, g2nold=0, anodma=0, g2prio=0, dbgts=0, slp=8, th=0)
for a_ in sys.argv[2:]:
    k, v = a_.split("="); OPT[k] = int(v)

RBSZ = 144 * 8192
KV_OFF = 0x1200000; G_OFF = 0x1240000; FL_OFF = 0x1244000; WS_USED = 0x1248000
QD_OFF = 0x1400000; TS_OFF = 0x1800000
WS_SIZE = 0x2000000 if (OPT["stop"] or OPT["ts"]) else WS_USED
OOB = 0x40000000
W1R = 0; W1S = 14336
WQR = 57344; WQS = 4096
XR = 73728; XS = 16384
KVST = 122880
SYNC = 155648
GT = SYNC + 256
LDS_BYTES = GT + 2048
QX = XR
KVR = 90112
pX, pWQ, pWK, pWV, pWO, pW1, pB1, pW2, pB2, pGATE, pOUT, pDBG, pWS = 4, 6, 8, 10, 12, 16, 18, 20, 22, 24, 26, 28, 30
rA, rB, rC, rD, rWS, rDBG, rPF, rE = 32, 36, 40, 44, 48, 52, 56, 60
sRB, sCB, sRB2, sCB2, sI, sW = 64, 65, 66, 67, 68, 69
sT0, sT1, sT2, sT3, sT4, sT5 = 70, 71, 72, 73, 74, 75
sIT, sA, sB, sC, sD, sE, sF, sG = 76, 77, 78, 79, 80, 81, 82, 83
sTS = 84
SPIN_MAX = 1 << 18

a = Asm()
def srd(r, p, size):
    a(f"s_mov_b32 s{r}, s{p}\n s_mov_b32 s{r+1}, s{p+1}\n s_mov_b32 s{r+2}, {size}\n s_mov_b32 s{r+3}, 0x20000")
nts = [0]
STAMPS = {1: dict(g_b0=1, g_end1=2, g_bq=3, g_hst=4, g_pre=5, a_set=1, a_w0=2, a_8=3, a_16=4, a_24=5),
          0: dict(g_end1=1, g_flag=2, g_l2=3, g_hook=4, g_end=5, a_w0=1, a_16=2, a_bq=3, a_att=4, a_end=5)}[OPT["stop"]]
def stamp(n):
    i = STAMPS.get(n)
    if OPT["ts"] and i:
        a(f"{'s_memrealtime' if OPT['ts'] == 2 else 's_memtime'} s[{sTS+2*i}:{sTS+2*i+1}]"); a.wait0(vm=False)
def mf16(d, x, y, c=None):
    a(f"v_mfma_f32_16x16x32_bf16 {vr(d,4)}, {vr(x,4)}, {vr(y,4)}, {vr(d,4) if c is None else c}")
def mf32(d, x, y, c=None):
    a(f"v_mfma_f32_32x32x16_bf16 {vr(d,16)}, {vr(x,4)}, {vr(y,4)}, {vr(d,16) if c is None else c}")
def dump_ts_and_end():
    if OPT["ts"]:
        a("s_memrealtime s[98:99]"); a.wait0()
        if OPT["dbgts"]:
            l = a.newlabel("L_nots")
            srd(rDBG, pDBG, 256)
            a(f"s_cmp_lg_u32 s2, 100\n s_cbranch_scc1 {l}\n s_cmp_lg_u32 s{sW}, 0\n s_cbranch_scc1 {l}")
            for i, k in enumerate((1, 2, 3, 4, 5, 7)): a(f"s_sub_u32 s{sT0}, s{sTS+2*k}, s96\n v_mov_b32 v{8+i}, s{sT0}")
            a(f"s_lshl_b32 s{sT0}, s3, 3\n s_add_u32 s{sT0}, s{sT0}, 8\n v_mov_b32 v2, 0\n s_mov_b64 exec, 1")
            a(f"buffer_store_dwordx2 v[8:9], v2, s[{rDBG}:{rDBG+3}], s{sT0} offen")
            a(f"buffer_store_dwordx4 v[10:13], v2, s[{rDBG}:{rDBG+3}], s{sT0} offen offset:8")
            a.label(l)
        else:
            for i in range(8): a(f"v_mov_b32 v{8+i}, s{sTS+2*i}")
            a(f"s_lshl_b32 s{sT0}, s2, 8\n s_lshl_b32 s{sT1}, s3, 5\n s_add_u32 s{sT0}, s{sT0}, s{sT1}\n s_add_u32 s{sT0}, s{sT0}, {TS_OFF}")
            a(f"v_mov_b32 v2, 0\n s_mov_b64 exec, 1")
            a(f"buffer_store_dwordx4 v[8:11], v2, s[{rWS}:{rWS+3}], s{sT0} offen")
            a(f"buffer_store_dwordx4 v[12:15], v2, s[{rWS}:{rWS+3}], s{sT0} offen offset:16")
    a("s_endpgm")

def prologue():
    a("s_cmp_ge_u32 s2, 256\n s_cbranch_scc1 L_exit")
    a("s_load_dwordx16 s[4:19], s[0:1], 0\n s_load_dwordx8 s[20:27], s[0:1], 64\n s_load_dwordx4 s[28:31], s[0:1], 96")
    if OPT["ts"] or OPT["th"]:
        a(f"s_memtime s[{sTS}:{sTS+1}]\n s_memrealtime s[96:97]")
    a(f"""v_lshrrev_b32 v1, 6, v0
      v_and_b32 v0, 63, v0
      v_readfirstlane_b32 s3, v1
      s_lshr_b32 s{sI}, s2, 3
      s_and_b32 s{sT0}, s2, 7
      s_lshr_b32 s{sT1}, s{sT0}, 2
      s_lshl_b32 s{sT1}, s{sT1}, 3
      s_lshr_b32 s{sT2}, s{sI}, 2
      s_add_u32 s{sRB}, s{sT1}, s{sT2}
      s_and_b32 s{sT1}, s{sT0}, 3
      s_lshl_b32 s{sT1}, s{sT1}, 2
      s_and_b32 s{sT2}, s{sI}, 3
      s_add_u32 s{sCB}, s{sT1}, s{sT2}
      s_lshr_b32 s{sT1}, s{sT0}, 1
      s_lshl_b32 s{sT1}, s{sT1}, 2
      s_lshr_b32 s{sT2}, s{sI}, 3
      s_add_u32 s{sRB2}, s{sT1}, s{sT2}
      s_and_b32 s{sT1}, s{sT0}, 1
      s_lshl_b32 s{sT1}, s{sT1}, 3
      s_and_b32 s{sT2}, s{sI}, 7
      s_add_u32 s{sCB2}, s{sT1}, s{sT2}
      s_and_b32 s{sW}, s3, 3
      v_and_b32 v1, 15, v0
      v_lshrrev_b32 v2, 4, v0
      s_waitcnt lgkmcnt(0)""")
    srd(rWS, pWS, WS_SIZE)
    a("s_cmp_ge_u32 s3, 4\n s_cbranch_scc1 L_roleA")

ACC1 = 112
acc1 = lambda ft, rt: ACC1 + (ft * 4 + rt) * 4
XF = [64, 80]; WRING = 96
vX = [3, 4]; vXb = [5, 6]; vW1 = [7, 8]; vWq = [9, 10]; vPF, vJ, vLP = 11, 12, 13
def g_phase1():
    PD = OPT["pd"]
    sRG, sCG = sA, sB
    sXo, sPo, sPe, sPd = sC, sD, sE, sF
    a(f"s_and_b32 s{sRG}, s{sW}, 1\n s_lshr_b32 s{sCG}, s{sW}, 1")
    srd(rA, pB1, 7168)
    a(f"""s_mul_i32 s{sT0}, s{sCB}, 448
      s_mul_i32 s{sT1}, s{sCG}, 224
      s_add_u32 s{sT0}, s{sT0}, s{sT1}
      v_lshlrev_b32 v14, 3, v2""")
    for ft in range(7):
        a.vm(f"buffer_load_dwordx2 v[{16+2*ft}:{17+2*ft}], v14, s[{rA}:{rA+3}], s{sT0} offen offset:{32*ft}", "bias")
    for r in range(32): a(f"v_mov_b32 v{ACC1+r}, 0")
    a(f"""s_cmp_eq_u32 s{sW}, 1
      s_cbranch_scc0 L_nocode
      s_getpc_b64 s[{rE}:{rE+1}]""")
    a.label("L_pc")
    a(f"""s_mov_b32 s{rE+2}, L_codeend-L_pc
      s_mov_b32 s{rE+3}, 0x20000
      s_lshl_b32 s{sT1}, s{sI}, 10
      v_lshlrev_b32 v15, 7, v0
      s_mov_b64 exec, 0xff
      buffer_load_dword v{vJ}, v15, s[{rE}:{rE+3}], s{sT1} offen
      s_mov_b64 exec, -1""")
    a.label("L_nocode")
    a(f"""v_lshrrev_b32 v14, 1, v1
      v_xor_b32 v14, v14, v2
      v_lshlrev_b32 v14, 4, v14
      v_lshl_add_u32 v14, v1, 7, v14
      s_lshl_b32 s{sT0}, s{sRG}, 13
      s_add_u32 s{sT0}, s{sT0}, {XR}
      v_add_u32 v{vXb[0]}, s{sT0}, v14
      v_xor_b32 v{vXb[1]}, 64, v{vXb[0]}
      v_mov_b32 v{vX[0]}, v{vXb[0]}
      v_mov_b32 v{vX[1]}, v{vXb[1]}
      s_mov_b32 s{sXo}, 0
      v_lshrrev_b32 v14, 2, v1
      v_lshl_add_u32 v14, v2, 3, v14
      v_and_b32 v15, 3, v1
      v_lshlrev_b32 v15, 3, v15
      v_mul_u32_u24 v30, 448, v14
      v_add_u32 v30, v30, v15
      s_mul_i32 s{sT0}, s{sCG}, 224
      v_add_u32 v30, s{sT0}, v30
      v_and_b32 v31, 1, v2
      v_lshlrev_b32 v32, 5, v31
      s_lshl_b32 s{sT1}, s{sCG}, 1
      s_sub_u32 s{sT1}, 1, s{sT1}
      v_mul_lo_u32 v32, v32, s{sT1}
      v_add_u32 v{vW1[0]}, v30, v32
      v_sub_u32 v{vW1[1]}, v30, v32
      v_lshrrev_b32 v32, 3, v1
      v_lshl_add_u32 v31, v32, 1, v31
      s_lshl_b32 s{sT0}, s{sCG}, 1
      v_xor_b32 v31, s{sT0}, v31
      v_lshl_add_u32 v15, v31, 5, v15
      v_lshl_add_u32 v15, v14, 7, v15
      v_add_u32 v{vWq[0]}, {WQR}, v15
      v_xor_b32 v{vWq[1]}, 32, v{vWq[0]}""")
    a(f"""v_and_b32 v14, 1, v2
      v_lshlrev_b32 v14, 10, v14
      v_lshrrev_b32 v15, 1, v2
      v_lshl_add_u32 v14, v15, 8, v14
      v_lshl_add_u32 v{vLP}, v1, 4, v14""")
    stamp("g_pre")
    a.wait0()
    for ft in range(7):
        d = acc1(2 + ft, 0)
        a(f"v_lshlrev_b32 v{d}, 16, v{16+2*ft}\n v_and_b32 v{d+1}, 0xffff0000, v{16+2*ft}")
        a(f"v_lshlrev_b32 v{d+2}, 16, v{17+2*ft}\n v_and_b32 v{d+3}, 0xffff0000, v{17+2*ft}")
        for rt in range(1, 4): a(f"v_mov_b64 {vr(d+4*rt,2)}, {vr(d,2)}\n v_mov_b64 {vr(d+4*rt+2,2)}, {vr(d+2,2)}")
    a(f"""s_cmp_eq_u32 s{sW}, 0
      s_cbranch_scc0 L_noreset
      v_mov_b32 v30, {SYNC}
      ds_write_b32 v30, v{ACC1}
      s_cmp_eq_u32 s2, 0
      s_cbranch_scc0 L_noreset
      v_lshlrev_b32 v15, 4, v0""")
    for i in range(9):
        if i % 4 == 0: a(f"s_mov_b32 s{sT0}, {FL_OFF + 1024*i}")
        a(f"buffer_store_dwordx4 v[{ACC1}:{ACC1+3}], v15, s[{rWS}:{rWS+3}], s{sT0} offen offset:{1024*(i%4)} sc1")
    a.label("L_noreset")
    srd(rDBG, pDBG, 256)
    a(f"s_or_b32 s{sT0}, s{sW}, s2\n s_cmp_eq_u32 s{sT0}, 0\n s_cselect_b32 s{sD}, 1, -1")
    a.wait0(vm=False)
    def rdW(g, e):
        if OPT["nords"] and g > 2: return
        t, ft = divmod(g, 9); d = WRING + 4 * (g % 4) + 2 * e
        if ft < 2: a.lg(f"ds_read_b64_tr_b16 {vr(d,2)}, v{vWq[ft]} offset:{(t%4)*WQS + e*512}", ("W", g))
        else: a.lg(f"ds_read_b64_tr_b16 {vr(d,2)}, v{vW1[ft%2]} offset:{(t%4)*W1S + e*1792 + (ft-2)*32}", ("W", g))
    def rdX(t, rt):
        a.lg(f"ds_read_b128 {vr(XF[t%2]+4*rt,4)}, v{vX[t%2]} offset:{rt*2048}", ("X", t))
    a(f"s_mov_b32 s{sIT}, 0")
    a("s_barrier")
    stamp("g_b0")
    for rt in range(4): rdX(0, rt)
    for g in range(3): rdW(g, 0); rdW(g, 1)
    a.raw(".p2align 3")
    a.label("L_g1loop")
    def body(it):
        for ts in range(4):
            t = it * 4 + ts
            for ft in range(9):
                g = t * 9 + ft
                fill = [[], [], [], []]
                fill[0].append(lambda: rdW(g + 3, 0))
                fill[1].append(lambda: rdW(g + 3, 1))
                if ft == 5: fill[2].append(lambda: a("s_barrier")); fill[3].append(lambda: rdX(t + 1, 0))
                if ft == 6: fill[2].append(lambda: (rdX(t + 1, 1), rdX(t + 1, 2))); fill[3].append(lambda: rdX(t + 1, 3))
                if ts % 2 == 1:
                    if ft == 2:
                        fill[2].append(lambda: a(f"s_add_u32 s{sXo}, s{sXo}, {XS}\n s_cmp_eq_u32 s{sXo}, {3*XS}"))
                        fill[3].append(lambda: a(f"s_cselect_b32 s{sXo}, 0, s{sXo}"))
                    if ft == 3:
                        fill[2].append(lambda: a(f"v_add_u32 v{vX[0]}, s{sXo}, v{vXb[0]}"))
                        fill[3].append(lambda: a(f"v_add_u32 v{vX[1]}, s{sXo}, v{vXb[1]}"))
                if ts == 0 and ft == 4:
                    fill[2].append(lambda: a(f"s_cmp_eq_u32 s{sIT}, s{sD}")); fill[3].append(lambda: (a("s_cbranch_scc1 L_arrive"), a.label("L_arrive_r")))
                if ts == 3 and ft == 8:
                    fill[2].append(lambda: a(f"s_add_u32 s{sIT}, s{sIT}, 1")); fill[3].append(lambda: a(f"s_cmp_lt_u32 s{sIT}, 8"))
                a.wait(lg=[("W", g), ("X", t)] if ft == 0 else ("W", g))
                for rt in range(4):
                    mf16(acc1(ft, rt), WRING + 4 * (g % 4), XF[t % 2] + 4 * rt)
                    for f in fill[rt]: f()
        a("s_cbranch_scc1 L_g1loop")
    a.loop(body, "g1")
    a.wait0(vm=False)
    stamp("g_end1")
    a(f"s_setprio {OPT['gprio']}")
    c = f2u(32 ** -0.5 * math.log2(math.e))
    a(f"s_mov_b32 s{sT0}, {c}\n s_mov_b32 s{sT1}, {c}")
    a(f"""s_lshl_b32 s{sT2}, s{sRG}, 13
      s_lshl_b32 s{sT3}, s{sCG}, 11
      s_add_u32 s{sT2}, s{sT2}, s{sT3}
      s_add_u32 s{sT2}, s{sT2}, {QX}
      v_lshl_add_u32 v14, v0, 4, s{sT2}""")
    T = 16
    for p in range(2):
        for s_ in range(2):
            for h in range(2):
                d = acc1(s_, 2 * p + h)
                a(f"v_pk_mul_f32 {vr(d,2)}, {vr(d,2)}, s[{sT0}:{sT1}]\n v_pk_mul_f32 {vr(d+2,2)}, {vr(d+2,2)}, s[{sT0}:{sT1}]")
                a(f"v_cvt_pk_bf16_f32 v{T+2*h}, v{d}, v{d+1}\n v_cvt_pk_bf16_f32 v{T+2*h+1}, v{d+2}, v{d+3}")
            a(f"s_nop 1\n v_permlane16_swap_b32 v{T}, v{T+2}\n v_permlane16_swap_b32 v{T+1}, v{T+3}")
            a.lg(f"ds_write_b128 v14, {vr(T,4)} offset:{p*4096 + s_*1024}")
            T += 4
    a.wait0(vm=False)
    a("s_barrier")
def g_hstore():
    sRG, sCG = sA, sB
    a(f"""s_mul_i32 s{sT0}, s{sRB}, {RBSZ}
      s_mul_i32 s{sT1}, s{sCB}, {7*8192}
      s_add_u32 s{sT0}, s{sT0}, s{sT1}
      s_lshl_b32 s{sT1}, s{sRG}, 12
      s_add_u32 s{sT0}, s{sT0}, s{sT1}
      s_mul_i32 s{sT1}, s{sCG}, {3*8192+512}
      s_add_u32 s{sT0}, s{sT0}, s{sT1}
      s_mul_i32 s{sT2}, s{sCG}, {8192-1024}
      s_add_u32 s{sT2}, s{sT2}, 512
      s_sub_u32 s{sT3}, 8192, s{sT2}""")
    k = 0
    for ft in range(7):
        for p in range(2):
            T = 16 + 4 * (k % 4); k += 1
            for h in range(2):
                d = acc1(2 + ft, 2 * p + h)
                for r in range(4): a(f"v_max_f32 v{d+r}, 0, v{d+r}")
                a(f"v_pk_mul_f32 {vr(d,2)}, {vr(d,2)}, {vr(d,2)}\n v_pk_mul_f32 {vr(d+2,2)}, {vr(d+2,2)}, {vr(d+2,2)}")
                a(f"v_cvt_pk_bf16_f32 v{T+2*h}, v{d}, v{d+1}\n v_cvt_pk_bf16_f32 v{T+2*h+1}, v{d+2}, v{d+3}")
            a(f"s_nop 1\n v_permlane16_swap_b32 v{T}, v{T+2}\n v_permlane16_swap_b32 v{T+1}, v{T+3}")
            a.vm(f"buffer_store_dwordx4 {vr(T,4)}, v{vLP}, s[{rWS}:{rWS+3}], s{sT0} offen offset:{p*2048} sc1", "hst")
        a(f"s_add_u32 s{sT0}, s{sT0}, s{sT2 if ft % 2 == 0 else sT3}")

vO = 3
vKX, vKG, vKW, vKT0, vKVD = 11, 12, 13, 24, 15
KXF, KGF, KWF, KAC = 32, 64, 96, 128
def a_phase1():
    sISV, sR0, sSTG, sM, sSo, sSx, sGrp = sA, sB, sC, sD, sE, sF, sG
    NT = " nt" if OPT["pfnt"] else ""
    LEAD = OPT["lead"]
    a("s_setprio 1")
    srd(rA, pX, 2048 * 2048)
    a(f"s_cmp_eq_u32 s{sW}, 2\n s_cbranch_scc1 L_a1x\n s_cmp_eq_u32 s{sW}, 3\n s_cbranch_scc1 L_a1p")
    for path in range(3):
        if path > 0: a.label(["", "L_a1x", "L_a1p"][path])
        a.vmq.clear(); a.lgq.clear()
        ldW = ldX = pfs = lambda t: None
        if path == 0:
            srd(rB, pW1, 1024 * 7168)
            a(f"s_mul_i32 s{sT0}, s{sW}, {16*7168}\n s_mul_i32 s{sT1}, s{sCB}, 448\n s_add_u32 s{sT0}, s{sT0}, s{sT1}")
            a(f"s_mul_i32 s{sM}, s{sW}, 7168\n s_mov_b32 s{sSo}, 0")
            def ldW(t):
                for i in range(7):
                    if t == 0:
                        a(f"""v_add_u32 v16, {64*i}, v0
                          v_mul_u32_u24 v17, 2341, v16
                          v_lshrrev_b32 v17, 16, v17
                          v_mul_u32_u24 v18, 28, v17
                          v_sub_u32 v16, v16, v18
                          v_lshrrev_b32 v18, 2, v17
                          v_and_b32 v18, 2, v18
                          v_xor_b32 v16, v16, v18
                          v_mul_u32_u24 v17, 7168, v17
                          v_lshl_add_u32 v16, v16, 4, v17
                          v_add_u32 v16, s{sT0}, v16
                          v_subrev_u32 v{vO+i}, {1024*(i%4)}, v16""")
                    if i % 4 == 0: a(f"s_add_u32 m0, s{sM}, {(t%4)*W1S + i*1024}\n s_nop 0")
                    a.vm(f"buffer_load_dwordx4 v{vO+i}, s[{rB}:{rB+3}], s{sSo} offen offset:{1024*(i%4)} lds", ("W", t))
                a(f"s_add_u32 s{sSo}, s{sSo}, {32*7168}")
        elif path == 1:
            srd(rB, pWQ, 1024 * 2048)
            a(f"""v_lshrrev_b32 v16, 3, v0
              v_lshlrev_b32 v16, 11, v16
              v_and_b32 v17, 7, v0
              v_xor_b32 v18, v17, v2
              v_lshl_add_u32 v18, v18, 4, v16
              v_and_b32 v20, 1, v2
              v_lshlrev_b32 v20, 2, v20
              v_xor_b32 v20, v20, v17
              v_lshl_add_u32 v20, v20, 4, v16
              s_lshl_b32 s{sSo}, s{sCB}, 7
              s_lshl_b32 s{sSx}, s{sRB}, 18""")
            for i in range(4):
                a(f"v_xor_b32 v19, {64*(i%2)}, v18\n v_add_u32 v{vO+i}, {i*16384 - i*1024}, v19")
                a(f"v_xor_b32 v19, {32*(i%2)}, v20\n v_add_u32 v{vO+4+i}, {i*16384 - i*1024}, v19")
            def ldW(t):
                a(f"s_mov_b32 m0, {WQR + (t%4)*WQS}\n s_nop 0")
                for i in range(4):
                    a.vm(f"buffer_load_dwordx4 v{vO+4+i}, s[{rB}:{rB+3}], s{sSo} offen offset:{1024*i} lds", ("W", t))
                a(f"s_add_u32 s{sSo}, s{sSo}, 65536")
            def ldX(hb):
                u, hf = divmod(hb, 2)
                for g2 in range(2):
                    a(f"s_mov_b32 m0, {XR + (u%3)*XS + hf*8192 + g2*4096}\n s_nop 0")
                    for i in range(4):
                        a.vm(f"buffer_load_dwordx4 v{vO+i}, s[{rA}:{rA+3}], s{sSx} offen offset:{1024*i} lds", ("X", u))
                    a(f"s_add_u32 s{sSx}, s{sSx}, {65536 if (hf, g2) != (1, 1) else (128-3*65536) & 0xffffffff}")
        else:
            srd(rB, pW1, 1024 * 7168); srd(rPF, pWQ, 1024 * 2048)
            a(f"""s_and_b32 s{sGrp}, s{sI}, 7
              s_lshl_b32 s{sT0}, s{sGrp}, 5
              s_and_b32 s{sT1}, s{sI}, 24
              s_add_u32 s{sT0}, s{sT0}, s{sT1}
              s_and_b32 s{sT1}, s2, 7
              s_add_u32 s{sT0}, s{sT0}, s{sT1}
              s_lshl_b32 s{sSx}, s{sT0}, 14
              s_mul_i32 s{sSo}, s{sT0}, 7168
              s_lshl_b32 s{sM}, s{sT0}, 11
              v_lshrrev_b32 v16, 3, v0
              v_and_b32 v17, 7, v0
              v_lshlrev_b32 v17, 7, v17
              v_lshl_add_u32 v{vO}, v16, 11, v17
              v_lshlrev_b32 v{vO+1}, 7, v0""")
            def pfW():
                a(f"s_mov_b32 exec_hi, 0xffffff\n buffer_load_dword v{vO+2}, v{vO+1}, s[{rB}:{rB+3}], s{sSo} offen{NT}")
                a(f"s_mov_b64 exec, 0xffff\n buffer_load_dword v{vO+2}, v{vO+1}, s[{rPF}:{rPF+3}], s{sM} offen{NT}\n s_mov_b64 exec, -1")
                a(f"s_add_u32 s{sSo}, s{sSo}, {256*7168}\n s_add_u32 s{sM}, s{sM}, {256*2048}")
            if not OPT["nopf"]:
                a(f"buffer_load_dword v{vO+2}, v{vO}, s[{rA}:{rA+3}], s{sSx} offen{NT}")
                a(f"s_cmp_ge_u32 s{sGrp}, {LEAD}\n s_cbranch_scc1 L_nopf0")
                pfW()
                a.label("L_nopf0")
            def pfs(t):
                if OPT["nopf"]: return
                if t + LEAD < 32:
                    l = a.newlabel("L_np")
                    a(f"s_cmp_lg_u32 s{sGrp}, {(t+LEAD)%8}\n s_cbranch_scc1 {l}")
                    pfW()
                    if t < 8: a(f"buffer_load_dword v{vO+2}, v{vO}, s[{rA}:{rA+3}], s{sSx} offen offset:1024{NT}")
                    a.label(l)
                if t == OPT["far"]:
                    srd(rB, pW2, 3584 * 2048); srd(rPF, pWO, 1024 * 2048)
                    a(f"s_mul_i32 s{sSo}, s2, 28672\n s_lshl_b32 s{sM}, s2, 13")
                    for i in range(4):
                        if i == 3: a("s_mov_b32 exec_hi, 0")
                        a.vm(f"buffer_load_dword v{vO+2}, v{vO+1}, s[{rB}:{rB+3}], s{sSo} offen")
                        a(f"s_add_u32 s{sSo}, s{sSo}, 8192")
                    a("s_mov_b64 exec, -1")
                    a.vm(f"buffer_load_dword v{vO+2}, v{vO+1}, s[{rPF}:{rPF+3}], s{sM} offen")
        ldW(0); ldX(0); ldX(1); ldW(1); ldX(2); ldX(3)
        a(f"""s_and_b32 s{sISV}, s{sCB}, 1
          s_lshr_b32 s{sR0}, s{sCB}, 1
          s_lshl_b32 s{sR0}, s{sR0}, 4
          s_lshl_b32 s{sT0}, s{sRB}, 7
          s_add_u32 s{sR0}, s{sR0}, s{sT0}
          s_cmp_eq_u32 s{sISV}, 0
          s_cselect_b32 s{rC}, s{pWK}, s{pWV}
          s_cselect_b32 s{rC+1}, s{pWK+1}, s{pWV+1}
          s_mov_b32 s{rC+2}, 65536
          s_mov_b32 s{rC+3}, 0x20000
          v_lshlrev_b32 v{vKVD}, 4, v0""")
        if path == 2:
            srd(rD, pGATE, 2048); srd(rDBG, pDBG, 256)
            a(f"s_lshl_b32 s{sT0}, s{sR0}, 5\n s_mov_b64 exec, 15\n buffer_load_dword v{vO+2}, v{vO+1}, s[{rC}:{rC+3}], s{sT0} offen\n s_mov_b64 exec, -1")
            a(f"s_mov_b32 m0, {GT}\n s_nop 0")
            for i in range(2): a.vm(f"buffer_load_dwordx4 v{vKVD}, s[{rD}:{rD+3}], 0 offen offset:{1024*i} lds", "gt")
            a("s_setprio 0")
        a(f"""s_lshl_b32 s{sSTG}, s{sW}, 13
          s_add_u32 s{sSTG}, s{sSTG}, {KVST}
          s_lshl_b32 s{sT0}, s{sW}, 7
          v_lshl_add_u32 v17, v2, 4, s{sT0}
          v_add_u32 v{vKG}, {GT}, v17
          v_add_u32 v16, s{sR0}, v1
          v_lshl_add_u32 v{vKX}, v16, 11, v17
          v_lshrrev_b32 v16, 4, v0
          v_and_b32 v16, 2, v16
          v_xor_b32 v16, v16, v0
          s_lshl_b32 s{sT0}, s{sW}, 12
          v_lshl_add_u32 v{vKW}, v16, 4, s{sT0}
          v_lshrrev_b32 v16, 2, v1
          v_lshl_add_u32 v16, v2, 3, v16
          v_and_b32 v17, 3, v1
          v_lshlrev_b32 v17, 3, v17
          v_lshl_add_u32 v16, v16, 6, v17
          v_and_b32 v17, 1, v2
          v_lshl_add_u32 v16, v17, 5, v16
          v_add_u32 v{vKT0}, s{sSTG}, v16
          v_xor_b32 v{vKT0+1}, 32, v{vKT0}""")
        for r in range(12): a(f"v_mov_b32 v{KAC+r}, 0")
        def kvX(rho):
            for i in range(2):
                a.vm(f"buffer_load_dwordx4 {vr(KXF+8*rho+4*i,4)}, v{vKX}, s[{rA}:{rA+3}], 0 offen offset:{512*rho+64*i}", ("kw", rho))
        def kvW(rho, half):
            a(f"s_add_u32 m0, s{sSTG}, {(rho%2)*4096}\n s_mov_b32 s{sT0}, {rho*16384}")
            for i in range(2 * half, 2 * half + 2):
                a.vm(f"buffer_load_dwordx4 v{vKW}, s[{rC}:{rC+3}], s{sT0} offen offset:{1024*i} lds", ("kw", rho))
        def kvC(rho):
            a.wait(vm=("kw", rho))
            for i in range(2):
                for nt in range(2):
                    for e in range(2):
                        a.lg(f"ds_read_b64_tr_b16 {vr(KWF+8*i+4*nt+2*e,2)}, v{vKT0+nt} offset:{(rho%2)*4096+i*2048+e*256}")
                a.lg(f"ds_read_b128 {vr(KGF+4*i,4)}, v{vKG} offset:{512*rho+64*i}")
            a.wait0(vm=False)
            lv, ld = a.newlabel("L_kv"), a.newlabel("L_kd")
            a(f"s_cmp_lg_u32 s{sISV}, 0\n s_cbranch_scc1 {lv}")
            for i in range(2):
                for nt in range(2): mf16(KAC + 4 * nt, KWF + 8 * i + 4 * nt, KXF + 8 * rho + 4 * i)
                mf16(KAC + 8, KGF + 4 * i, KXF + 8 * rho + 4 * i)
            a(f"s_branch {ld}")
            a.label(lv)
            for i in range(2):
                for nt in range(2): mf16(KAC + 4 * nt, KXF + 8 * rho + 4 * i, KWF + 8 * i + 4 * nt)
            a.label(ld)
        def kvP():
            a(f"v_add_u32 v16, s{sSTG}, v{vKVD}\n s_nop 7")
            for nt in range(3): a.lg(f"ds_write_b128 v16, {vr(KAC+4*nt,4)} offset:{nt*1024}")
            a.wait0(vm=False)
        def kvF():
            a(f"""v_lshrrev_b32 v16, 1, v2
              v_and_b32 v17, 1, v2
              v_lshlrev_b32 v18, 4, v1
              s_cmp_eq_u32 s{sISV}, 0
              s_cselect_b32 s{sT0}, 10, 8
              s_cselect_b32 s{sT1}, 9, 10
              s_lshl_b32 s{sT2}, 256, s{sISV}
              v_lshlrev_b32 v19, s{sT0}, v16
              v_lshlrev_b32 v20, s{sT1}, v17
              v_add3_u32 v19, v19, v20, v18
              v_add_u32 v19, {KVST}, v19
              v_add_u32 v20, s{sT2}, v19
              v_add_u32 v21, {KVST+2048}, v18""")
            for w in range(4):
                a(f"ds_read_b128 {vr(32+8*w,4)}, v19 offset:{w*8192}\n ds_read_b128 {vr(36+8*w,4)}, v20 offset:{w*8192}\n ds_read_b32 v{64+w}, v21 offset:{w*8192}")
            a(f"""s_lshr_b32 s{sT3}, s{sR0}, 5
              s_lshl_b32 s{sT3}, s{sT3}, 12
              s_add_u32 s{sT3}, s{sT3}, {KV_OFF}
              s_bfe_u32 s{sT4}, s{sR0}, 0x10004
              s_cmp_eq_u32 s{sISV}, 0
              s_cselect_b32 s{sT0}, 10, 9
              s_cselect_b32 s{sT1}, 9, 8
              s_cselect_b32 s{sT2}, 8, 10
              s_cselect_b32 s{sT5}, 0, 2048
              s_lshl_b32 s{sT4}, s{sT4}, s{sT2}
              s_add_u32 s{sT3}, s{sT3}, s{sT4}
              s_add_u32 s{sT3}, s{sT3}, s{sT5}
              v_lshlrev_b32 v19, s{sT0}, v16
              v_lshlrev_b32 v20, s{sT1}, v17
              v_add3_u32 v19, v19, v20, v18
              s_waitcnt lgkmcnt(0)""")
            for r in range(0, 8, 2):
                a(f"v_pk_add_f32 {vr(32+r,2)}, {vr(32+r,2)}, {vr(40+r,2)}\n v_pk_add_f32 {vr(48+r,2)}, {vr(48+r,2)}, {vr(56+r,2)}\n v_pk_add_f32 {vr(32+r,2)}, {vr(32+r,2)}, {vr(48+r,2)}")
            for r in range(4): a(f"v_cvt_pk_bf16_f32 v{40+r}, v{32+2*r}, v{33+2*r}")
            a(f"""buffer_store_dwordx4 v[40:43], v19, s[{rWS}:{rWS+3}], s{sT3} offen sc1
              v_add_f32 v64, v64, v65
              v_add_f32 v66, v66, v67
              v_add_f32 v64, v64, v66
              v_mul_f32 v64, {f2u(-math.log2(math.e))}, v64
              v_exp_f32 v64, v64
              s_lshl_b32 s{sT0}, s{sR0}, 2
              v_add_f32 v64, 1.0, v64
              v_rcp_f32 v64, v64
              s_add_u32 s{sT0}, s{sT0}, {G_OFF}
              s_cmp_eq_u32 s{sISV}, 0
              s_cselect_b32 s{sT0}, s{sT0}, {OOB}
              v_lshlrev_b32 v20, 2, v0
              s_mov_b64 exec, 0xffff
              buffer_store_dword v64, v20, s[{rWS}:{rWS+3}], s{sT0} offen sc1
              s_mov_b64 exec, -1""")
        def kvA():
            a(f"""s_lshl_b32 s{sT0}, s{sRB}, 4
              s_add_u32 s{sT0}, s{sT0}, s{sCB}
              s_lshl_b32 s{sT0}, s{sT0}, 2
              s_add_u32 s{sT0}, s{sT0}, {FL_OFF+8192}
              v_mov_b32 v16, 1
              v_mov_b32 v17, 0""")
            a.wait0(lg=False)
            a(f"""s_mov_b64 exec, 1
              buffer_store_dword v16, v17, s[{rWS}:{rWS+3}], s{sT0} offen sc1
              s_mov_b64 exec, -1""")
        def kvPoll0a():
            a(f"v_mov_b32 v17, 0\n buffer_load_dword v18, v17, s[{rDBG}:{rDBG+3}], 0 offen sc1")
        def kvPoll0():
            a(f"s_mov_b32 s{sT1}, {SPIN_MAX}")
            a.label("L_poll0")
            a(f"""s_waitcnt vmcnt(0)
              v_readfirstlane_b32 s{sT0}, v18
              s_sub_u32 s{sT1}, s{sT1}, 1
              s_cmp_ge_u32 s{sT0}, 1
              s_cbranch_scc1 L_poll0x
              buffer_load_dword v18, v17, s[{rDBG}:{rDBG+3}], 0 offen sc1
              s_cmp_lg_u32 s{sT1}, 0
              s_cbranch_scc1 L_poll0""")
            a.label("L_poll0x")
        def kvPoll1a():
            a(f"s_mov_b32 s{sT2}, {FL_OFF+8192}\n buffer_load_dwordx4 v[20:23], v{vKVD}, s[{rWS}:{rWS+3}], s{sT2} offen sc1")
        def kvPoll1():
            a(f"s_mov_b32 s{sT1}, {SPIN_MAX}")
            a.label("L_poll1")
            a(f"""s_waitcnt vmcnt(0)
              v_and_b32 v20, v20, v21
              v_and_b32 v22, v22, v23
              v_and_b32 v20, v20, v22
              v_cmp_ne_u32 vcc, 1, v20
              s_sub_u32 s{sT1}, s{sT1}, 1
              s_cbranch_vccz L_poll1x
              buffer_load_dwordx4 v[20:23], v{vKVD}, s[{rWS}:{rWS+3}], s{sT2} offen sc1
              s_cmp_lg_u32 s{sT1}, 0
              s_cbranch_scc1 L_poll1""")
            a.label("L_poll1x")
        def kvD(c):
            if c == 0:
                a(f"s_add_u32 s{rE}, s{pWS}, {KV_OFF}\n s_addc_u32 s{rE+1}, s{pWS+1}, 0\n s_mov_b32 s{rE+2}, 0x40000\n s_mov_b32 s{rE+3}, 0x20000")
                a(f"s_lshl_b32 s{sIT}, s{sW}, 12")
            a(f"s_add_u32 m0, s{sIT}, {KVR + ((c+2)%4)*16384}\n s_add_u32 s{sT0}, s{sIT}, {c*16384}")
            for i in range(4):
                a.vm(f"buffer_load_dwordx4 v{vKVD}, s[{rE}:{rE+3}], s{sT0} offen offset:{1024*i} sc1 lds", ("kv", c))
        post = {k: [] for k in range(33)}
        if not OPT["nokv"]:
            for rho in range(4):
                post[3*rho+6].append(lambda rho=rho: kvC(rho))
                post[3*rho+1].append(lambda rho=rho: kvX(rho))
                post[3*rho+2].append(lambda rho=rho: kvW(rho, 0)); post[3*rho+3].append(lambda rho=rho: kvW(rho, 1))
            post[15].append(kvP)
            if path == 2:
                post[4].append(lambda: a.wait(vm="gt"))
                post[16] += [kvF, kvPoll0a]; post[19] += [kvPoll0, kvA]; post[25].append(kvPoll1a); post[27].append(kvPoll1)
            for c in range(3): post[28 + c].append(lambda c=c: kvD(c))
        stamp("a_set")
        for s_ in range(33):
            a.wait(vm=[("W", s_), ("X", s_ // 2)])
            if s_ == 0: stamp("a_w0")
            a("s_barrier")
            if s_ in (8, 16, 24): stamp(f"a_{s_}")
            if s_ + 2 < 32 and not OPT["nodma"]: ldW(s_ + 2)
            if s_ + 4 < 32 and not OPT["nodma"]: ldX(s_ + 4)
            for f in post[s_]: f()
            pfs(s_)
        a.wait(vm=[("kv", 1)])
        if path < 2: a("s_branch L_a1done")
    a("s_setprio 1")
    a.vmq[:] = [("kv", 2)] * 4
    a.label("L_a1done")
    a("s_barrier")

QF, OA, LA, SB, PB, KF, VF, ONES = 32, 48, 80, 88, 120, 136, 152, 168
vKc, vKn, vSy, vOne, vCnt, vG = 16, 17, 18, 19, 20, 21
def attention():
    sKo, sCn, sDo, sMb = sA, sB, sC, sD
    qf = lambda t, s_: QF + 8 * t + 4 * s_
    a(f"s_lshl_b32 s{sT0}, s{sW}, 12\n s_add_u32 s{sT1}, s{sT0}, {QX}\n v_lshl_add_u32 v22, v0, 4, s{sT1}")
    for i in range(4): a.lg(f"ds_read_b128 {vr(QF+4*i,4)}, v22 offset:{1024*i}", "q")
    a(f"v_add_u32 v{vKc}, {KVR+2*16384}, v{vKVD}\n v_add_u32 v{vKn}, {KVR+3*16384}, v{vKVD}")
    def rdK(T, reg):
        for s_ in range(2): a.lg(f"ds_read_b128 {vr(KF+8*(T%2)+4*s_,4)}, v{reg} offset:{(T%4)*4096+1024*s_}", ("K", T))
    def rdV(T, reg):
        for u in range(2): a.lg(f"ds_read_b128 {vr(VF+8*(T%2)+4*u,4)}, v{reg} offset:{(T%4)*4096+2048+1024*u}", ("V", T))
    rdK(0, vKc); rdV(0, vKc)
    a(f"""s_lshl_b32 s{sT1}, s{sRB}, 9
      s_lshl_b32 s{sT2}, s{sW}, 7
      s_add_u32 s{sT1}, s{sT1}, s{sT2}
      s_add_u32 s{sT1}, s{sT1}, {G_OFF}
      v_and_b32 v22, 31, v0
      v_lshlrev_b32 v22, 2, v22
      buffer_load_dword v{vG}, v22, s[{rWS}:{rWS+3}], s{sT1} offen sc1""")
    a(f"""v_lshrrev_b32 v22, 2, v1
      v_xor_b32 v22, v22, v2
      v_and_b32 v22, 1, v22
      v_and_b32 v23, 3, v1
      v_or_b32 v22, v22, v23
      v_cmp_eq_u32 vcc, 0, v22
      v_mov_b32 v23, 0x3f803f80
      v_mov_b32 v{vSy}, {SYNC}
      v_cndmask_b32 v{ONES}, 0, v23, vcc
      v_mov_b32 v{vOne}, 1
      s_mov_b32 s{sKo}, {3*16384}
      s_mov_b32 s{sCn}, 0
      s_add_u32 s{sDo}, s{sT0}, {3*16384}
      s_add_u32 s{sMb}, s{sT0}, {KVR}
      s_mov_b32 s{sIT}, 0""")
    for r in range(1, 4): a(f"v_mov_b32 v{ONES+r}, v{ONES}")
    for r in list(range(OA, OA + 40)) + [SB + 30, SB + 31] + list(range(PB + 12, PB + 16)) + list(range(VF + 12, VF + 16)):
        a(f"v_mov_b32 v{r}, 0")
    a.wait(lg=["q", ("K", 0)])
    mf32(SB, KF, qf(0, 0), "0"); mf32(SB, KF + 4, qf(0, 1))
    a("s_nop 7\n s_nop 3")
    a.raw(".p2align 3")
    a.label("L_att")
    def slot(n, hooks):
        T, t = divmod(n, 2); n1 = n + 1; T1, t1 = divmod(n1, 2); Tp, tp = divmod(n - 1, 2)
        S = SB + 16 * (n % 2); S1 = SB + 16 * (n1 % 2); Sp = S1
        P = PB + 8 * (n % 2); Pp = PB + 8 * ((n - 1) % 2)
        e = lambda i: a(f"v_exp_f32 v{S+i}, v{S+i}")
        c = lambda i: a(f"v_cvt_pk_bf16_f32 v{P+i}, v{S+2*i}, v{S+2*i+1}")
        h = lambda k: [f() for f in hooks.get(k, [])]
        h("top")
        e(0)
        a(f"v_cvt_pk_bf16_f32 v{Pp+7}, v{Sp+14}, v{Sp+15}")
        if t == 1: a.wait(lg=("K", T1))
        mf32(S1, KF + 8 * (T1 % 2), qf(t1, 0), "0")
        h(0); e(1); e(2); c(0); e(3)
        mf32(S1, KF + 8 * (T1 % 2) + 4, qf(t1, 1))
        h(1); e(4); c(1); e(5); e(6); c(2)
        mf32(OA + 16 * tp, VF + 8 * (Tp % 2) + 4, Pp + 4)
        h(2); e(7); e(8); c(3); e(9)
        mf16(LA + 4 * tp, ONES, Pp + 4)
        h(3); e(10); c(4); e(11)
        if t == 0: a.wait(lg=("V", T))
        mf32(OA + 16 * t, VF + 8 * (T % 2), P)
        h(4); e(12); c(5); e(13); e(14); c(6)
        mf16(LA + 4 * t, ONES, P)
        h(5); e(15)
    def body(c_):
        for k in range(8):
            n = 8 * c_ + k; T, t = divmod(n, 2)
            hk = {}
            reg = vKn if T % 4 == 3 else vKc
            if t == 0: hk[0] = [lambda: rdK(T + 1, reg)]
            else: hk[0] = [lambda: rdV(T + 1, reg)]
            if k == 5: hk[1] = [lambda: a.lg(f"ds_read_b32 v{vCnt}, v{vSy}", "cnt")]
            if k == 6:
                def chk():
                    a.wait(lg="cnt")
                    a(f"v_readfirstlane_b32 s{sT0}, v{vCnt}\n s_add_u32 s{sT1}, s{sKo}, {2*16384}\n s_and_b32 s{sT1}, s{sT1}, 0xffff")
                    a(f"s_add_u32 m0, s{sMb}, s{sT1}\n s_cmp_lt_u32 s{sT0}, s{sCn}\n s_cbranch_scc1 L_attspin")
                    a.label("L_attgo")
                hk["top"] = [chk]
                dma = lambda i: a.vm(f"buffer_load_dwordx4 v{vKVD}, s[{rE}:{rE+3}], s{sDo} offen offset:{1024*i} sc1 lds", ("kv", c_ + 3))
                if OPT["anodma"]: dma = lambda i: None
                hk[1] = [lambda: dma(0)]; hk[2] = [lambda: dma(1)]; hk[4] = [lambda: dma(2)]; hk[5] = [lambda: dma(3)]
            if k == 7:
                def arr():
                    a.wait(vm=("kv", c_ + 2))
                    a("s_mov_b64 exec, 1"); a.lg(f"ds_add_u32 v{vSy}, v{vOne}"); a("s_mov_b64 exec, -1")
                hk[1] = [arr]
                hk[2] = [lambda: a(f"s_add_u32 s{sDo}, s{sDo}, 16384\n s_add_u32 s{sCn}, s{sCn}, 4\n s_add_u32 s{sKo}, s{sKo}, 16384")]
                hk[3] = [lambda: a(f"s_and_b32 s{sKo}, s{sKo}, 0xffff\n v_mov_b32 v{vKc}, v{vKn}")]
                hk[4] = [lambda: a(f"s_add_u32 s{sT0}, s{sKo}, {KVR}\n v_add_u32 v{vKn}, s{sT0}, v{vKVD}")]
                hk[5] = [lambda: a(f"s_add_u32 s{sIT}, s{sIT}, 1\n s_cmp_lt_u32 s{sIT}, 16")]
            slot(n, hk)
        a("s_cbranch_scc1 L_att")
    a.loop(body, "att")
    a(f"s_nop 0\n v_cvt_pk_bf16_f32 v{PB+15}, v{SB+30}, v{SB+31}\n s_nop 1")
    mf32(OA + 16, VF + 12, PB + 12); mf16(LA + 4, ONES, PB + 12)
    a.wait0()
    stamp("a_att")
    a(f"s_nop 7\n s_nop 1\n s_mov_b32 s{sT0}, {f2u(2.0**-40)}\n s_mov_b32 s{sT1}, {f2u(2.0**100)}")
    a(f"v_max_f32 v23, v{LA}, v{LA+4}")
    for r in list(range(OA, OA + 32)) + [LA, LA + 4]: a(f"v_fma_f32 v23, v{r}, 0, v23")
    a(f"""      v_min_f32 v24, v{LA}, v{LA+4}
      v_cmp_nle_f32 vcc, v23, s{sT1}
      v_cmp_nge_f32 s[{sT2}:{sT3}], v24, s{sT0}
      s_or_b64 vcc, vcc, s[{sT2}:{sT3}]""")
    if OPT["forceslow"]: a("s_branch L_slow")
    a("s_cbranch_vccnz L_slow")
    a.label("L_attfin")
    a(f"""v_rcp_f32 v22, v{LA}
      v_rcp_f32 v24, v{LA+4}
      s_mul_i32 s{sT0}, s{sRB}, {RBSZ}
      s_lshl_b32 s{sT1}, s{sCB}, 14
      s_add_u32 s{sT0}, s{sT0}, s{sT1}
      s_lshl_b32 s{sT1}, s{sW}, 11
      s_add_u32 s{sT0}, s{sT0}, s{sT1}
      s_add_u32 s{sT0}, s{sT0}, {112*8192}
      s_add_u32 s{sT1}, s{sT0}, 8192
      v_mul_f32 v22, v22, v{vG}
      v_mul_f32 v24, v24, v{vG}
      v_and_b32 v26, 1, v2
      v_lshlrev_b32 v26, 10, v26
      v_lshrrev_b32 v27, 1, v2
      v_lshl_add_u32 v26, v27, 8, v26
      v_lshl_add_u32 v26, v1, 4, v26""")
    for t in range(2):
        for s_ in range(2):
            T_ = PB + 8 * t + 4 * s_
            for r in range(4):
                d = OA + 16 * t + 8 * s_ + 2 * r
                a(f"v_pk_mul_f32 {vr(d,2)}, {vr(d,2)}, {vr(22+2*t,2)} op_sel_hi:[1,0]\n v_cvt_pk_bf16_f32 v{T_+r}, v{d}, v{d+1}")
            a(f"s_nop 1\n v_permlane32_swap_b32 v{T_}, v{T_+2}\n v_permlane32_swap_b32 v{T_+1}, v{T_+3}")
            a(f"buffer_store_dwordx4 {vr(T_,4)}, v26, s[{rWS}:{rWS+3}], s{sT0+t} offen offset:{512*s_} sc1")
    setflag(4096)
    stamp("a_end")
    dump_ts_and_end()
    a.label("L_attspin")
    a(f"s_mov_b32 s{sT1}, {SPIN_MAX}")
    a.label("L_attspin2")
    a(f"""ds_read_b32 v{vCnt}, v{vSy}
      s_waitcnt lgkmcnt(0)
      v_readfirstlane_b32 s{sT0}, v{vCnt}
      s_sub_u32 s{sT1}, s{sT1}, 1
      s_cmp_eq_u32 s{sT1}, 0
      s_cbranch_scc1 L_attgo
      s_cmp_lt_u32 s{sT0}, s{sCn}
      s_cbranch_scc1 L_attspin2
      s_branch L_attgo""")
    a.label("L_slow")
    NM = 176
    a(f"v_mov_b32 v22, 0xff800000\n v_mov_b32 v23, 0xff800000\n s_mov_b32 s{sT0}, 0")
    a.label("L_slow1")
    a(f"buffer_load_dwordx4 {vr(KF,4)}, v{vKVD}, s[{rE}:{rE+3}], s{sT0} offen sc1\n buffer_load_dwordx4 {vr(KF+4,4)}, v{vKVD}, s[{rE}:{rE+3}], s{sT0} offen offset:1024 sc1\n s_waitcnt vmcnt(0)")
    for t in range(2):
        mf32(SB + 16 * t, KF, qf(t, 0), "0"); mf32(SB + 16 * t, KF + 4, qf(t, 1))
    a("s_nop 7\n s_nop 3")
    for t in range(2):
        for r in range(0, 16, 2): a(f"v_max3_f32 v{22+t}, v{SB+16*t+r}, v{SB+16*t+r+1}, v{22+t}")
    a(f"s_add_u32 s{sT0}, s{sT0}, 4096\n s_cmp_lt_u32 s{sT0}, 0x40000\n s_cbranch_scc1 L_slow1")
    a("v_mov_b32 v24, v22\n v_mov_b32 v25, v23\n s_nop 1\n v_permlane32_swap_b32 v22, v24\n v_permlane32_swap_b32 v23, v25\n v_max_f32 v22, v22, v24\n v_max_f32 v23, v23, v25")
    for t in range(2):
        for r in range(16): a(f"v_sub_f32 v{NM+16*t+r}, 0, v{22+t}")
    for r in range(OA, OA + 40): a(f"v_mov_b32 v{r}, 0")
    a(f"s_mov_b32 s{sT0}, 0")
    a.label("L_slow2")
    for i in range(4):
        a(f"buffer_load_dwordx4 {vr(KF+4*i,4)}, v{vKVD}, s[{rE}:{rE+3}], s{sT0} offen offset:{1024*i} sc1")
    a("s_waitcnt vmcnt(0)")
    for t in range(2):
        mf32(SB + 16 * t, KF, qf(t, 0), vr(NM + 16 * t, 16)); mf32(SB + 16 * t, KF + 4, qf(t, 1))
    a("s_nop 7\n s_nop 3")
    for r in range(32): a(f"v_exp_f32 v{SB+r}, v{SB+r}")
    a("s_nop 0")
    for r in range(16): a(f"v_cvt_pk_bf16_f32 v{PB+r}, v{SB+2*r}, v{SB+2*r+1}")
    a("s_nop 1")
    for t in range(2):
        for u in range(2):
            mf32(OA + 16 * t, KF + 8 + 4 * u, PB + 8 * t + 4 * u); mf16(LA + 4 * t, ONES, PB + 8 * t + 4 * u)
    a(f"s_add_u32 s{sT0}, s{sT0}, 4096\n s_cmp_lt_u32 s{sT0}, 0x40000\n s_cbranch_scc1 L_slow2")
    a("s_nop 7\n s_nop 3\n s_branch L_attfin")

def setflag(off):
    a(f"""s_lshl_b32 s{sT0}, s{sRB}, 8
      s_lshl_b32 s{sT1}, s{sCB}, 4
      s_add_u32 s{sT0}, s{sT0}, s{sT1}
      s_lshl_b32 s{sT1}, s{sW}, 2
      s_add_u32 s{sT0}, s{sT0}, s{sT1}
      s_add_u32 s{sT0}, s{sT0}, {FL_OFF+off}
      v_mov_b32 v14, 0
      v_mov_b32 v15, 1""")
    a.wait0(lg=False)
    a(f"s_mov_b64 exec, 1\n buffer_store_dword v15, v14, s[{rWS}:{rWS+3}], s{sT0} offen sc1\n s_mov_b64 exec, -1")
def waitflag(off, name):
    a(f"""s_lshl_b32 s{sT0}, s{sRB2}, 8
      s_lshl_b32 s{sT1}, s{sW}, 6
      s_add_u32 s{sT0}, s{sT0}, s{sT1}
      s_add_u32 s{sT0}, s{sT0}, {FL_OFF+off}
      s_mov_b32 s{sT1}, {SPIN_MAX}
      v_lshlrev_b32 v14, 2, v1""")
    a.label(name)
    a(f"""buffer_load_dword v15, v14, s[{rWS}:{rWS+3}], s{sT0} offen sc1
      s_waitcnt vmcnt(0)
      v_cmp_ne_u32 vcc, 1, v15
      s_sub_u32 s{sT1}, s{sT1}, 1
      s_cbranch_vccz {name}_x
      s_sleep {OPT['slp']}
      s_cmp_lg_u32 s{sT1}, 0
      s_cbranch_scc1 {name}""")
    a.label(name + "_x")

ACC2, HR, WF = 128, 64, 32
acc2 = lambda rt, nt: ACC2 + (rt * 4 + nt) * 4
vWD, vWR, vH0, vH1, vGM = 3, 7, 11, 12, 16
sWo, sHo, sMw = sC, sD, sE
def g2_setup():
    srd(rB, pW2, 3584 * 2048)
    a(f"""v_lshrrev_b32 v14, 3, v0
      v_lshlrev_b32 v14, 11, v14
      v_and_b32 v15, 1, v2
      v_lshlrev_b32 v15, 2, v15
      v_and_b32 v30, 7, v0
      v_xor_b32 v15, v15, v30
      v_lshl_add_u32 v14, v15, 4, v14
      s_lshl_b32 s{sT0}, s{sCB2}, 7
      v_add_u32 v14, s{sT0}, v14""")
    for i in range(4): a(f"v_xor_b32 v15, {32*(i%2)}, v14\n v_add_u32 v{vWD+i}, {i*16384-i*1024}, v15")
    a(f"""s_lshl_b32 s{sMw}, s{sW}, 14
      s_mul_i32 s{sWo}, s{sW}, {896*2048}
      v_lshrrev_b32 v14, 2, v1
      v_lshl_add_u32 v14, v2, 3, v14
      v_and_b32 v15, 3, v1
      v_lshlrev_b32 v15, 3, v15
      v_lshl_add_u32 v14, v14, 7, v15
      v_and_b32 v15, 1, v2
      v_lshrrev_b32 v30, 3, v1
      v_lshl_add_u32 v15, v30, 1, v15
      v_lshl_add_u32 v14, v15, 5, v14
      v_add_u32 v14, s{sMw}, v14""")
    for nt in range(4): a(f"v_xor_b32 v{vWR+nt}, {32*nt}, v14")
def dmaW(i, k):
    if OPT["g2nold"] and i > 2: return
    if k == 0: a(f"s_add_u32 m0, s{sMw}, {(i%4)*4096}\n s_nop 0")
    a.vm(f"buffer_load_dwordx4 v{vWD+k}, s[{rB}:{rB+3}], s{sWo} offen offset:{1024*k} lds", ("W2", i))
    if k == 3: a(f"s_add_u32 s{sWo}, s{sWo}, 65536")
def g_phase2():
    def ldH(i, rt):
        if OPT["g2nold"] and i > 1: return
        a.vm(f"buffer_load_dwordx4 {vr(HR+32*(i%2)+4*rt,4)}, v{vH0 if rt < 4 else vH1}, s[{rWS}:{rWS+3}], s{sHo} offen offset:{1024*(rt%4)} sc1", ("H", i, rt))
        if rt == 7: a(f"s_add_u32 s{sHo}, s{sHo}, 8192")
    def rdW2(i, nt, e):
        a.lg(f"ds_read_b64_tr_b16 {vr(WF+16*(i%2)+4*nt+2*e,2)}, v{vWR+nt} offset:{(i%4)*4096+512*e}", ("W2", i))
    setflag(0)
    stamp("g_flag")
    if OPT["nog2"]: dump_ts_and_end()
    a(f"""v_lshlrev_b32 v{vH0}, 4, v0
      v_add_u32 v{vH1}, 4096, v{vH0}
      s_mul_i32 s{sHo}, s{sRB2}, {RBSZ}
      s_mul_i32 s{sT1}, s{sW}, {28*8192}
      s_add_u32 s{sHo}, s{sHo}, s{sT1}
      s_lshl_b32 s{sT2}, s{sRB2}, 9
      s_add_u32 s{sT2}, s{sT2}, {G_OFF}
      v_lshlrev_b32 v14, 2, v1""")
    for rt in range(8): a(f"buffer_load_dword v{vGM+2*rt}, v14, s[{rWS}:{rWS+3}], s{sT2} offen offset:{64*rt} sc1")
    for r in range(0, 128, 2): a(f"v_mov_b64 {vr(ACC2+r,2)}, 0")
    for nt in range(4): rdW2(0, nt, 0); rdW2(0, nt, 1)
    waitflag(0, "L_wh")
    for i in range(2):
        for rt in range(8): ldH(i, rt)
    for rt in range(8): a(f"v_sub_f32 v{vGM+2*rt}, 1.0, v{vGM+2*rt}")
    stamp("g_l2")
    a(f"s_setprio {OPT['g2prio']}")
    a(f"s_mov_b32 s{sIT}, 0")
    a.raw(".p2align 3")
    a.label("L_g2loop")
    def body(it):
        for ts in range(4):
            i = 4 * it + ts
            if ts == 1: a(f"s_cmp_ge_u32 s{sIT}, 6\n s_cbranch_scc1 L_hookW"); a.label("L_hookW_r")
            if ts == 2: a(f"s_cmp_ge_u32 s{sIT}, 6\n s_cbranch_scc1 L_hookH"); a.label("L_hookH_r")
            for rt in range(8):
                a.wait(vm=("H", i, rt), lg=("W2", i) if rt == 0 else ())
                fill = [[], [], [], []]
                if rt < 4: fill[1].append(lambda: dmaW(i + 3, rt))
                if rt == 2: fill[2].append(lambda: a.wait(vm=("W2", i + 1)))
                if 3 <= rt < 7:
                    fill[0].append(lambda: rdW2(i + 1, rt - 3, 0)); fill[2].append(lambda: rdW2(i + 1, rt - 3, 1))
                fill[3].append(lambda: ldH(i + 2, rt))
                for nt in range(4):
                    mf16(acc2(rt, nt), WF + 16 * (i % 2) + 4 * nt, HR + 32 * (i % 2) + 4 * rt)
                    for f in fill[nt]: f()
        a(f"s_add_u32 s{sIT}, s{sIT}, 1\n s_cmp_eq_u32 s{sIT}, 7\n s_cbranch_scc1 L_hookS\n s_cmp_lt_u32 s{sIT}, 9\n s_cbranch_scc1 L_g2loop")
    a.loop(body, "g2")
    srd(rA, pB2, 2048); srd(rC, pOUT, 2048 * 2048)
    a(f"s_lshl_b32 s{sT0}, s{sCB2}, 7\n v_lshlrev_b32 v14, 3, v2")
    a.wait0()
    for nt in range(4): a.vm(f"buffer_load_dwordx2 {vr(WF+2*nt,2)}, v14, s[{rA}:{rA+3}], s{sT0} offen offset:{32*nt}", "b2")
    a("s_barrier")
    a(f"s_lshl_b32 s{sT1}, s{sW}, 13\n v_add_u32 v14, s{sT1}, v{vH0}\n v_add_u32 v15, 0x10000, v14")
    for d in range(4):
        l = a.newlabel("L_nw")
        a(f"s_cmp_eq_u32 s{sW}, {d}\n s_cbranch_scc1 {l}")
        for k in range(8): a(f"ds_write_b128 v{14 + d//2}, {vr(ACC2+32*d+4*k,4)} offset:{(d%2)*32768+1024*k}")
        a(f"s_branch {l}_e")
        a.label(l)
        for r in range(32): a(f"v_mov_b32 v{HR+r}, v{ACC2+32*d+r}")
        a(f"v_mov_b32 v{vWD}, v{vGM+4*d}\n v_mov_b32 v{vWD+1}, v{vGM+4*d+2}")
        a.label(l + "_e")
    a(f"s_lshl_b32 s{sT1}, s{sW}, 15\n v_add_u32 v14, s{sT1}, v{vH0}")
    a.wait0(vm=False)
    a("s_barrier")
    for m in range(1, 4):
        a(f"s_add_u32 s{sT1}, s{sW}, {m}\n s_and_b32 s{sT1}, s{sT1}, 3\n s_lshl_b32 s{sT1}, s{sT1}, 13\n v_add_u32 v15, s{sT1}, v14")
        for k in range(8): a.lg(f"ds_read_b128 {vr(ACC2+32*m+4*k,4)}, v15 offset:{1024*k}", ("r", m, k))
    a.wait(vm="b2")
    if OPT["th"]:
        a("s_memrealtime s[98:99]"); a.wait0(vm=False)
        a(f"s_sub_u32 s98, s98, s96\n s_cmp_gt_u32 s98, {OPT['th']}\n s_cselect_b32 s98, 100, -1\n s_cmp_eq_u32 s98, s2\n s_cbranch_scc0 L_noth\n v_mov_b32 v{vWD}, 0x7fc00000")
        a.label("L_noth")
    for nt in range(4):
        a(f"v_lshlrev_b32 v{WF+8+4*nt}, 16, v{WF+2*nt}\n v_and_b32 v{WF+9+4*nt}, 0xffff0000, v{WF+2*nt}")
        a(f"v_lshlrev_b32 v{WF+10+4*nt}, 16, v{WF+2*nt+1}\n v_and_b32 v{WF+11+4*nt}, 0xffff0000, v{WF+2*nt+1}")
    for k in range(8):
        for r in range(4): a(f"v_fmac_f32 v{HR+4*k+r}, v{vWD + k//4}, v{WF+8+4*(k%4)+r}")
    a(f"""s_lshl_b32 s{sT1}, s{sRB2}, 18
      s_lshl_b32 s{sT2}, s{sW}, 16
      s_add_u32 s{sT1}, s{sT1}, s{sT2}
      s_add_u32 s{sT0}, s{sT0}, s{sT1}
      s_add_u32 s{sT1}, s{sT0}, 32768
      v_and_b32 v14, 1, v2
      v_lshlrev_b32 v14, 5, v14
      v_lshrrev_b32 v15, 1, v2
      v_lshl_add_u32 v14, v15, 4, v14
      v_lshl_add_u32 v14, v1, 11, v14""")
    for m in range(1, 4):
        for k in range(8):
            a.wait(lg=("r", m, k))
            for r in (0, 2): a(f"v_pk_add_f32 {vr(HR+4*k+r,2)}, {vr(HR+4*k+r,2)}, {vr(ACC2+32*m+4*k+r,2)}")
            if m == 3 and k % 2 == 1:
                T_ = ACC2 + 2 * (k - 1); d = HR + 4 * (k - 1)
                for r in range(4): a(f"v_cvt_pk_bf16_f32 v{T_+r}, v{d+2*r}, v{d+2*r+1}")
                a(f"s_nop 1\n v_permlane16_swap_b32 v{T_}, v{T_+2}\n v_permlane16_swap_b32 v{T_+1}, v{T_+3}")
                a(f"buffer_store_dwordx4 {vr(T_,4)}, v14, s[{rC}:{rC+3}], s{sT0 + k//4} offen offset:{64*((k//2)%2)}")
    if OPT["ts"]: a.wait0(); stamp("g_end")
    dump_ts_and_end()
    a.label("L_hookW")
    a(f"""s_cmp_eq_u32 s{sIT}, 7
      s_cbranch_scc1 L_hookW_r
      s_mov_b32 s{rB}, s{pWO}
      s_mov_b32 s{rB+1}, s{pWO+1}
      s_mov_b32 s{rB+2}, {1024*2048}
      s_lshl_b32 s{sWo}, s{sW}, 19
      s_cmp_eq_u32 s{sIT}, 6
      s_cselect_b32 s{sWo}, s{sWo}, {OOB}
      s_branch L_hookW_r""")
    a.label("L_hookH")
    a(f"""s_cmp_eq_u32 s{sIT}, 7
      s_cbranch_scc1 L_hookH_r
      s_mov_b32 s{sHo}, {OOB}
      s_cmp_eq_u32 s{sIT}, 8
      s_cbranch_scc1 L_hookH_r""")
    stamp("g_hook")
    waitflag(4096, "L_wo")
    a(f"""s_mul_i32 s{sHo}, s{sRB2}, {RBSZ}
      s_lshl_b32 s{sT1}, s{sW}, 16
      s_add_u32 s{sHo}, s{sHo}, s{sT1}
      s_add_u32 s{sHo}, s{sHo}, {112*8192}
      s_branch L_hookH_r""")
    a.label("L_hookS")
    a("s_nop 3")
    for rt in range(8):
        for r in range(0, 16, 2):
            d = ACC2 + 16 * rt + r
            a(f"v_pk_mul_f32 {vr(d,2)}, {vr(d,2)}, {vr(vGM+2*rt,2)} op_sel_hi:[1,0]")
    a("s_nop 0\n s_branch L_g2loop")

prologue()
g_phase1()
if OPT["stop"] == 1:
    stamp("g_bq"); g_hstore(); a.wait0(); stamp("g_hst"); dump_ts_and_end()
else:
    g2_setup()
    for i in range(3):
        for k in range(4): dmaW(i, k)
    g_hstore()
    g_phase2()
a.label("L_arrive")
a(f"""s_waitcnt vmcnt(0)
  v_mov_b32 v14, 1
  v_mov_b32 v15, 0
  s_mov_b64 exec, 1
  buffer_store_dword v14, v15, s[{rDBG}:{rDBG+3}], 0 offen sc1
  s_mov_b64 exec, -1
  s_branch L_arrive_r""")
a.label("L_roleA")
a_phase1()
if OPT["stop"] == 1:
    a(f"s_lshl_b32 s{sT0}, s{sW}, 12\n s_add_u32 s{sT1}, s{sT0}, {QX}\n v_lshl_add_u32 v16, v0, 4, s{sT1}")
    for i in range(4): a(f"ds_read_b128 {vr(32+4*i,4)}, v16 offset:{1024*i}")
    a(f"s_lshl_b32 s{sT1}, s{sRB}, 4\n s_add_u32 s{sT1}, s{sT1}, s{sCB}\n s_lshl_b32 s{sT1}, s{sT1}, 14\n s_add_u32 s{sT0}, s{sT0}, s{sT1}\n s_add_u32 s{sT0}, s{sT0}, {QD_OFF}")
    a.wait0()
    for i in range(4): a(f"buffer_store_dwordx4 {vr(32+4*i,4)}, v{vKVD}, s[{rWS}:{rWS+3}], s{sT0} offen offset:{1024*i}")
    dump_ts_and_end()
else:
    stamp("a_bq")
    attention()
a.label("L_exit")
a("s_endpgm")
a.label("L_codeend")

HDR = open("cdna_kernels/" + KNAME[:-7] + ".s.ref").read().split("; Override launch")[0]
text = HDR + f"; @launch grid=(256,1,1) block=(512,1,1) lds={LDS_BYTES}\n"
text += f'.amdgcn_target "amdgcn-amd-amdhsa--gfx950"\n.text\n.globl {KNAME}\n.p2align 8\n.type {KNAME},@function\n{KNAME}:\n'
body = a.text()
nbad = check(body)
text += body
text += f""".section .rodata,"a"
.p2align 6
.amdhsa_kernel {KNAME}
  .amdhsa_next_free_vgpr 256
  .amdhsa_next_free_sgpr 102
  .amdhsa_accum_offset 256
  .amdhsa_group_segment_fixed_size 0
  .amdhsa_kernarg_size 112
  .amdhsa_user_sgpr_count 2
  .amdhsa_user_sgpr_kernarg_segment_ptr 1
  .amdhsa_system_sgpr_workgroup_id_x 1
.end_amdhsa_kernel
"""
open(sys.argv[1], "w").write(text)
if nbad: sys.exit(f"{nbad} hazards")
```

```python
import sys, math
from asmlib import *

KNAME = "gated_mix__grouped_kv_mqa__dense_activation_squared_relu__prompt_kernel"
OPT = dict(stop=0, ts=0, pd=8, forceslow=0, nodma=0, nokv=0, nopf=0, nords=0, lead=6, pfnt=0, far=99, pf2=1, pf2b=2, gprio=2, nog2=0, g2nold=0, anodma=0, g2prio=0, dbgts=0, slp=8, th=0, farw2=1, hglob=1, arrk=1, wlate=1, map2=0, steps=0, kvskip='', pause=99, pcnt=64, grp=1, osc=0)
for a_ in sys.argv[2:]:
    k, v = a_.split("="); OPT[k] = int(v) if v.lstrip('-').isdigit() else v

RBSZ = 144 * 8192
KV_OFF = 0x1200000; G_OFF = 0x1240000; KF_OFF = 0x1244000; FL_OFF = 0x1248000; WS_USED = 0x1268000
QD_OFF = 0x1400000; TS_OFF = 0x1800000
WS_SIZE = 0x2000000 if (OPT["stop"] or OPT["ts"]) else WS_USED
OOB = 0x40000000
W1R = 0; W1S = 14336
WQR = 57344; WQS = 4096
XR = 73728; XS = 16384
KVST = 122880
SYNC = 155648
GT = SYNC + 256
LDS_BYTES = GT + 2048
QX = XR
KVR = 90112
pX, pWQ, pWK, pWV, pWO, pW1, pB1, pW2, pB2, pGATE, pOUT, pDBG, pWS = 4, 6, 8, 10, 12, 16, 18, 20, 22, 24, 26, 28, 30
rA, rB, rC, rD, rWS, rDBG, rPF, rE = 32, 36, 40, 44, 48, 52, 56, 60
sRB, sCB, sRB2, sCB2, sI, sW = 64, 65, 66, 67, 68, 69
sT0, sT1, sT2, sT3, sT4, sT5 = 70, 71, 72, 73, 74, 75
sIT, sA, sB, sC, sD, sE, sF, sG = 76, 77, 78, 79, 80, 81, 82, 83
sTS = 84
SPIN_MAX = 1 << 18

a = Asm()
def srd(r, p, size):
    a(f"s_mov_b32 s{r}, s{p}\n s_mov_b32 s{r+1}, s{p+1}\n s_mov_b32 s{r+2}, {size}\n s_mov_b32 s{r+3}, 0x20000")
nts = [0]
STAMPS = {1: dict(g_b0=1, g_end1=2, g_bq=3, g_hst=4, g_pre=5, a_set=1, a_w0=2, a_8=3, a_16=4, a_24=5),
          0: dict(g_end1=1, g_flag=2, g_l2=3, g_hook=4, g_end=5, a_w0=1, a_16=2, a_bq=3, a_att=4, a_end=5)}[OPT["stop"]]
def stamp(n):
    i = STAMPS.get(n)
    if OPT["ts"] and i:
        a(f"{'s_memrealtime' if OPT['ts'] == 2 else 's_memtime'} s[{sTS+2*i}:{sTS+2*i+1}]"); a.wait0(vm=False)
def mf16(d, x, y, c=None):
    a(f"v_mfma_f32_16x16x32_bf16 {vr(d,4)}, {vr(x,4)}, {vr(y,4)}, {vr(d,4) if c is None else c}")
def mf32(d, x, y, c=None):
    a(f"v_mfma_f32_32x32x16_bf16 {vr(d,16)}, {vr(x,4)}, {vr(y,4)}, {vr(d,16) if c is None else c}")
def dump_ts_and_end():
    if OPT["ts"]:
        a("s_memrealtime s[98:99]"); a.wait0()
        if OPT["dbgts"]:
            l = a.newlabel("L_nots")
            srd(rDBG, pDBG, 256)
            a(f"s_cmp_lg_u32 s2, 100\n s_cbranch_scc1 {l}\n s_cmp_lg_u32 s{sW}, 0\n s_cbranch_scc1 {l}")
            for i, k in enumerate((1, 2, 3, 4, 5, 7)): a(f"s_sub_u32 s{sT0}, s{sTS+2*k}, s96\n v_mov_b32 v{8+i}, s{sT0}")
            a(f"s_lshl_b32 s{sT0}, s3, 3\n s_add_u32 s{sT0}, s{sT0}, 8\n v_mov_b32 v2, 0\n s_mov_b64 exec, 1")
            a(f"buffer_store_dwordx2 v[8:9], v2, s[{rDBG}:{rDBG+3}], s{sT0} offen")
            a(f"buffer_store_dwordx4 v[10:13], v2, s[{rDBG}:{rDBG+3}], s{sT0} offen offset:8")
            a.label(l)
        else:
            for i in range(8): a(f"v_mov_b32 v{8+i}, s{sTS+2*i}")
            a(f"s_lshl_b32 s{sT0}, s2, 8\n s_lshl_b32 s{sT1}, s3, 5\n s_add_u32 s{sT0}, s{sT0}, s{sT1}\n s_add_u32 s{sT0}, s{sT0}, {TS_OFF}")
            a(f"v_mov_b32 v2, 0\n s_mov_b64 exec, 1")
            a(f"buffer_store_dwordx4 v[8:11], v2, s[{rWS}:{rWS+3}], s{sT0} offen")
            a(f"buffer_store_dwordx4 v[12:15], v2, s[{rWS}:{rWS+3}], s{sT0} offen offset:16")
    a("s_endpgm")

def prologue():
    a("s_cmp_ge_u32 s2, 256\n s_cbranch_scc1 L_exit")
    a("s_load_dwordx16 s[4:19], s[0:1], 0\n s_load_dwordx8 s[20:27], s[0:1], 64\n s_load_dwordx4 s[28:31], s[0:1], 96")
    if OPT["ts"] or OPT["th"]:
        a(f"s_memtime s[{sTS}:{sTS+1}]\n s_memrealtime s[96:97]")
    a(f"""v_lshrrev_b32 v1, 6, v0
      v_and_b32 v0, 63, v0
      v_readfirstlane_b32 s3, v1
      s_lshr_b32 s{sI}, s2, 3
      s_and_b32 s{sT0}, s2, 7
      s_lshr_b32 s{sT1}, s{sT0}, 2
      s_lshl_b32 s{sT1}, s{sT1}, 3
      s_lshr_b32 s{sT2}, s{sI}, 2
      s_add_u32 s{sRB}, s{sT1}, s{sT2}
      s_and_b32 s{sT1}, s{sT0}, 3
      s_lshl_b32 s{sT1}, s{sT1}, 2
      s_and_b32 s{sT2}, s{sI}, 3
      s_add_u32 s{sCB}, s{sT1}, s{sT2}
      s_lshr_b32 s{sT1}, s{sT0}, 1
      s_lshl_b32 s{sT1}, s{sT1}, 2
      {f"s_and_b32 s{sT2}, s{sI}, 3" if OPT["map2"] else f"s_lshr_b32 s{sT2}, s{sI}, 3"}
      s_add_u32 s{sRB2}, s{sT1}, s{sT2}
      s_and_b32 s{sT1}, s{sT0}, 1
      s_lshl_b32 s{sT1}, s{sT1}, 3
      {f"s_lshr_b32 s{sT2}, s{sI}, 2" if OPT["map2"] else f"s_and_b32 s{sT2}, s{sI}, 7"}
      s_add_u32 s{sCB2}, s{sT1}, s{sT2}
      s_and_b32 s{sW}, s3, 3
      v_and_b32 v1, 15, v0
      v_lshrrev_b32 v2, 4, v0
      s_waitcnt lgkmcnt(0)""")
    srd(rWS, pWS, WS_SIZE)
    a("s_cmp_ge_u32 s3, 4\n s_cbranch_scc1 L_roleA")

ACC1 = 112
acc1 = lambda ft, rt: ACC1 + (ft * 4 + rt) * 4
XF = [64, 80]; WRING = 96
vX = [3, 4]; vXb = [5, 6]; vW1 = [7, 8]; vWq = [9, 10]; vPF, vJ, vLP = 11, 12, 13
def g_phase1():
    PD = OPT["pd"]
    sRG, sCG = sA, sB
    sXo, sPo, sPe, sPd = sC, sD, sE, sF
    a(f"s_and_b32 s{sRG}, s{sW}, 1\n s_lshr_b32 s{sCG}, s{sW}, 1")
    srd(rA, pB1, 7168)
    a(f"""s_mul_i32 s{sT0}, s{sCB}, 448
      s_mul_i32 s{sT1}, s{sCG}, 224
      s_add_u32 s{sT0}, s{sT0}, s{sT1}
      v_lshlrev_b32 v14, 3, v2""")
    for ft in range(7):
        a.vm(f"buffer_load_dwordx2 v[{16+2*ft}:{17+2*ft}], v14, s[{rA}:{rA+3}], s{sT0} offen offset:{32*ft}", "bias")
    for r in range(32): a(f"v_mov_b32 v{ACC1+r}, 0")
    a(f"""s_cmp_eq_u32 s{sW}, 1
      s_cbranch_scc0 L_nocode
      s_getpc_b64 s[{rE}:{rE+1}]""")
    a.label("L_pc")
    a(f"""s_mov_b32 s{rE+2}, L_codeend-L_pc
      s_mov_b32 s{rE+3}, 0x20000
      s_lshl_b32 s{sT1}, s{sI}, 10
      v_lshlrev_b32 v15, 7, v0
      s_mov_b64 exec, 0xff
      buffer_load_dword v{vJ}, v15, s[{rE}:{rE+3}], s{sT1} offen
      s_mov_b64 exec, -1""")
    a.label("L_nocode")
    a(f"""v_lshrrev_b32 v14, 1, v1
      v_xor_b32 v14, v14, v2
      v_lshlrev_b32 v14, 4, v14
      v_lshl_add_u32 v14, v1, 7, v14
      s_lshl_b32 s{sT0}, s{sRG}, 13
      s_add_u32 s{sT0}, s{sT0}, {XR}
      v_add_u32 v{vXb[0]}, s{sT0}, v14
      v_xor_b32 v{vXb[1]}, 64, v{vXb[0]}
      v_mov_b32 v{vX[0]}, v{vXb[0]}
      v_mov_b32 v{vX[1]}, v{vXb[1]}
      s_mov_b32 s{sXo}, 0
      v_lshrrev_b32 v14, 2, v1
      v_lshl_add_u32 v14, v2, 3, v14
      v_and_b32 v15, 3, v1
      v_lshlrev_b32 v15, 3, v15
      v_mul_u32_u24 v30, 448, v14
      v_add_u32 v30, v30, v15
      s_mul_i32 s{sT0}, s{sCG}, 224
      v_add_u32 v30, s{sT0}, v30
      v_and_b32 v31, 1, v2
      v_lshlrev_b32 v32, 5, v31
      s_lshl_b32 s{sT1}, s{sCG}, 1
      s_sub_u32 s{sT1}, 1, s{sT1}
      v_mul_lo_u32 v32, v32, s{sT1}
      v_add_u32 v{vW1[0]}, v30, v32
      v_sub_u32 v{vW1[1]}, v30, v32
      v_lshrrev_b32 v32, 3, v1
      v_lshl_add_u32 v31, v32, 1, v31
      s_lshl_b32 s{sT0}, s{sCG}, 1
      v_xor_b32 v31, s{sT0}, v31
      v_lshl_add_u32 v15, v31, 5, v15
      v_lshl_add_u32 v15, v14, 7, v15
      v_add_u32 v{vWq[0]}, {WQR}, v15
      v_xor_b32 v{vWq[1]}, 32, v{vWq[0]}""")
    a(f"""v_and_b32 v14, 1, v2
      v_lshlrev_b32 v14, 10, v14
      v_lshrrev_b32 v15, 1, v2
      v_lshl_add_u32 v14, v15, 8, v14
      v_lshl_add_u32 v{vLP}, v1, 4, v14""")
    stamp("g_pre")
    a.wait0()
    for ft in range(7):
        d = acc1(2 + ft, 0)
        a(f"v_lshlrev_b32 v{d}, 16, v{16+2*ft}\n v_and_b32 v{d+1}, 0xffff0000, v{16+2*ft}")
        a(f"v_lshlrev_b32 v{d+2}, 16, v{17+2*ft}\n v_and_b32 v{d+3}, 0xffff0000, v{17+2*ft}")
        for rt in range(1, 4): a(f"v_mov_b64 {vr(d+4*rt,2)}, {vr(d,2)}\n v_mov_b64 {vr(d+4*rt+2,2)}, {vr(d+2,2)}")
    a(f"""v_mov_b32 v30, {SYNC}
      ds_write_b128 v30, v[{ACC1}:{ACC1+3}]
      s_cmp_lt_u32 s2, 8
      s_cselect_b32 s{sD}, 1, -1
      s_cbranch_scc0 L_noreset
      s_lshl_b32 s{sE}, s2, 2
      s_add_u32 s{sE}, s{sE}, s{sW}
      s_lshl_b32 s{sT0}, s{sE}, 12
      s_add_u32 s{sT0}, s{sT0}, {FL_OFF}
      s_lshl_b32 s{sT1}, s{sE}, 5
      s_add_u32 s{sT1}, s{sT1}, {KF_OFF}
      s_lshl_b32 s{sE}, s{sE}, 2
      v_lshrrev_b32 v15, 1, v0
      v_and_b32 v30, 1, v0
      v_lshlrev_b32 v30, 4, v30
      v_lshl_add_u32 v15, v15, 7, v30
      buffer_store_dwordx4 v[{ACC1}:{ACC1+3}], v15, s[{rWS}:{rWS+3}], s{sT0} offen sc1
      s_mov_b64 exec, 3
      buffer_store_dwordx4 v[{ACC1}:{ACC1+3}], v15, s[{rWS}:{rWS+3}], s{sT1} offen sc1
      s_mov_b64 exec, -1""")
    a.label("L_noreset")
    srd(rDBG, pDBG, 256)
    a.wait0(vm=False)
    def rdW(g, e):
        if OPT["nords"] and g > 2: return
        t, ft = divmod(g, 9); d = WRING + 4 * (g % 4) + 2 * e
        if ft < 2: a.lg(f"ds_read_b64_tr_b16 {vr(d,2)}, v{vWq[ft]} offset:{(t%4)*WQS + e*512}", ("W", g))
        else: a.lg(f"ds_read_b64_tr_b16 {vr(d,2)}, v{vW1[ft%2]} offset:{(t%4)*W1S + e*1792 + (ft-2)*32}", ("W", g))
    def rdX(t, rt):
        a.lg(f"ds_read_b128 {vr(XF[t%2]+4*rt,4)}, v{vX[t%2]} offset:{rt*2048}", ("X", t))
    a(f"s_mov_b32 s{sIT}, 0")
    a("s_barrier")
    stamp("g_b0")
    for rt in range(4): rdX(0, rt)
    for g in range(3): rdW(g, 0); rdW(g, 1)
    a.raw(".p2align 3")
    a.label("L_g1loop")
    def body(it):
        for ts in range(4):
            t = it * 4 + ts
            for ft in range(9):
                g = t * 9 + ft
                fill = [[], [], [], []]
                fill[0].append(lambda: rdW(g + 3, 0))
                fill[1].append(lambda: rdW(g + 3, 1))
                if ft == 5: fill[2].append(lambda: a("s_barrier")); fill[3].append(lambda: rdX(t + 1, 0))
                if ft == 6: fill[2].append(lambda: (rdX(t + 1, 1), rdX(t + 1, 2))); fill[3].append(lambda: rdX(t + 1, 3))
                if ts % 2 == 1:
                    if ft == 2:
                        fill[2].append(lambda: a(f"s_add_u32 s{sXo}, s{sXo}, {XS}\n s_cmp_eq_u32 s{sXo}, {3*XS}"))
                        fill[3].append(lambda: a(f"s_cselect_b32 s{sXo}, 0, s{sXo}"))
                    if ft == 3:
                        fill[2].append(lambda: a(f"v_add_u32 v{vX[0]}, s{sXo}, v{vXb[0]}"))
                        fill[3].append(lambda: a(f"v_add_u32 v{vX[1]}, s{sXo}, v{vXb[1]}"))
                if ts == 0 and ft == 4:
                    fill[2].append(lambda: a(f"s_cmp_eq_u32 s{sIT}, s{sD}")); fill[3].append(lambda: (a("s_cbranch_scc1 L_arrive"), a.label("L_arrive_r")))
                if ts == 3 and ft == 8:
                    fill[2].append(lambda: a(f"s_add_u32 s{sIT}, s{sIT}, 1")); fill[3].append(lambda: a(f"s_cmp_lt_u32 s{sIT}, 8"))
                a.wait(lg=[("W", g), ("X", t)] if ft == 0 else ("W", g))
                for rt in range(4):
                    mf16(acc1(ft, rt), WRING + 4 * (g % 4), XF[t % 2] + 4 * rt)
                    for f in fill[rt]: f()
        a("s_cbranch_scc1 L_g1loop")
    a.loop(body, "g1")
    a.wait0(vm=False)
    stamp("g_end1")
    a(f"s_setprio {OPT['gprio']}")
    c = f2u(32 ** -0.5 * math.log2(math.e))
    a(f"s_mov_b32 s{sT0}, {c}\n s_mov_b32 s{sT1}, {c}")
    a(f"""s_lshl_b32 s{sT2}, s{sRG}, 13
      s_lshl_b32 s{sT3}, s{sCG}, 11
      s_add_u32 s{sT2}, s{sT2}, s{sT3}
      s_add_u32 s{sT2}, s{sT2}, {QX}
      v_lshl_add_u32 v14, v0, 4, s{sT2}""")
    T = 16
    for p in range(2):
        for s_ in range(2):
            for h in range(2):
                d = acc1(s_, 2 * p + h)
                a(f"v_pk_mul_f32 {vr(d,2)}, {vr(d,2)}, s[{sT0}:{sT1}]\n v_pk_mul_f32 {vr(d+2,2)}, {vr(d+2,2)}, s[{sT0}:{sT1}]")
                a(f"v_cvt_pk_bf16_f32 v{T+2*h}, v{d}, v{d+1}\n v_cvt_pk_bf16_f32 v{T+2*h+1}, v{d+2}, v{d+3}")
            a(f"s_nop 1\n v_permlane16_swap_b32 v{T}, v{T+2}\n v_permlane16_swap_b32 v{T+1}, v{T+3}")
            a.lg(f"ds_write_b128 v14, {vr(T,4)} offset:{p*4096 + s_*1024}")
            T += 4
    a.wait0(vm=False)
    a("s_barrier")
def g_hstore():
    sRG, sCG = sA, sB
    a(f"""s_mul_i32 s{sT0}, s{sRB}, {RBSZ}
      s_mul_i32 s{sT1}, s{sCB}, {7*8192}
      s_add_u32 s{sT0}, s{sT0}, s{sT1}
      s_lshl_b32 s{sT1}, s{sRG}, 12
      s_add_u32 s{sT0}, s{sT0}, s{sT1}
      s_mul_i32 s{sT1}, s{sCG}, {3*8192+512}
      s_add_u32 s{sT0}, s{sT0}, s{sT1}
      s_mul_i32 s{sT2}, s{sCG}, {8192-1024}
      s_add_u32 s{sT2}, s{sT2}, 512
      s_sub_u32 s{sT3}, 8192, s{sT2}""")
    k = 0
    for ft in range(7):
        for p in range(2):
            T = 16 + 4 * (k % 4); k += 1
            for h in range(2):
                d = acc1(2 + ft, 2 * p + h)
                for r in range(4): a(f"v_max_f32 v{d+r}, 0, v{d+r}")
                a(f"v_pk_mul_f32 {vr(d,2)}, {vr(d,2)}, {vr(d,2)}\n v_pk_mul_f32 {vr(d+2,2)}, {vr(d+2,2)}, {vr(d+2,2)}")
                a(f"v_cvt_pk_bf16_f32 v{T+2*h}, v{d}, v{d+1}\n v_cvt_pk_bf16_f32 v{T+2*h+1}, v{d+2}, v{d+3}")
            a(f"s_nop 1\n v_permlane16_swap_b32 v{T}, v{T+2}\n v_permlane16_swap_b32 v{T+1}, v{T+3}")
            a.vm(f"buffer_store_dwordx4 {vr(T,4)}, v{vLP}, s[{rWS}:{rWS+3}], s{sT0} offen offset:{p*2048} sc1", "hst")
        a(f"s_add_u32 s{sT0}, s{sT0}, s{sT2 if ft % 2 == 0 else sT3}")

vO = 3
vKX, vKG, vKW, vKT0, vKVD, vKR = 140, 12, 13, 24, 15, 142
KXF, KGF, KWF, KAC = 32, 64, 96, 128
def a_phase1():
    sISV, sR0, sSTG, sM, sSo, sSx, sGrp = sA, sB, sC, sD, sE, sF, sG
    NT = " nt" if OPT["pfnt"] else ""
    LEAD = OPT["lead"]
    a("s_setprio 1")
    srd(rA, pX, 2048 * 2048)
    a(f"s_cmp_eq_u32 s{sW}, 2\n s_cbranch_scc1 L_a1x\n s_cmp_eq_u32 s{sW}, 3\n s_cbranch_scc1 L_a1p")
    for path in range(3):
        if path > 0: a.label(["", "L_a1x", "L_a1p"][path])
        a.vmq.clear(); a.lgq.clear()
        ldW = ldX = pfs = lambda t, m=None: None
        trickle = []
        def trk(all_=False):
            while trickle:
                for t_ in trickle.pop(0): a.lg(t_)
                if not all_: break
        if path == 0:
            srd(rB, pW1, 1024 * 7168)
            a(f"s_mul_i32 s{sT0}, s{sW}, {16*7168}\n s_mul_i32 s{sT1}, s{sCB}, 448\n s_add_u32 s{sT0}, s{sT0}, s{sT1}")
            a(f"s_mul_i32 s{sM}, s{sW}, 7168\n s_mov_b32 s{sSo}, 0")
            def ldW(t, m=None):
                for i in range(7):
                    if i == 4 and m: m()
                    if t == 0:
                        a(f"""v_add_u32 v16, {64*i}, v0
                          v_mul_u32_u24 v17, 2341, v16
                          v_lshrrev_b32 v17, 16, v17
                          v_mul_u32_u24 v18, 28, v17
                          v_sub_u32 v16, v16, v18
                          v_lshrrev_b32 v18, 2, v17
                          v_and_b32 v18, 2, v18
                          v_xor_b32 v16, v16, v18
                          v_mul_u32_u24 v17, 7168, v17
                          v_lshl_add_u32 v16, v16, 4, v17
                          v_add_u32 v16, s{sT0}, v16
                          v_subrev_u32 v{vO+i}, {1024*(i%4)}, v16""")
                    if i % 4 == 0: a(f"s_add_u32 m0, s{sM}, {(t%4)*W1S + i*1024}\n s_nop 0")
                    a.vm(f"buffer_load_dwordx4 v{vO+i}, s[{rB}:{rB+3}], s{sSo} offen offset:{1024*(i%4)} lds", ("W", t)); trk()
                a(f"s_add_u32 s{sSo}, s{sSo}, {32*7168}")
        elif path == 1:
            srd(rB, pWQ, 1024 * 2048)
            a(f"""v_lshrrev_b32 v16, 3, v0
              v_lshlrev_b32 v16, 11, v16
              v_and_b32 v17, 7, v0
              v_xor_b32 v18, v17, v2
              v_lshl_add_u32 v18, v18, 4, v16
              v_and_b32 v20, 1, v2
              v_lshlrev_b32 v20, 2, v20
              v_xor_b32 v20, v20, v17
              v_lshl_add_u32 v20, v20, 4, v16
              s_lshl_b32 s{sSo}, s{sCB}, 7
              s_lshl_b32 s{sSx}, s{sRB}, 18""")
            for i in range(4):
                a(f"v_xor_b32 v19, {64*(i%2)}, v18\n v_add_u32 v{vO+i}, {i*16384 - i*1024}, v19")
                a(f"v_xor_b32 v19, {32*(i%2)}, v20\n v_add_u32 v{vO+4+i}, {i*16384 - i*1024}, v19")
            def ldW(t, m=None):
                a(f"s_mov_b32 m0, {WQR + (t%4)*WQS}\n s_nop 0")
                for i in range(4):
                    a.vm(f"buffer_load_dwordx4 v{vO+4+i}, s[{rB}:{rB+3}], s{sSo} offen offset:{1024*i} lds", ("W", t))
                a(f"s_add_u32 s{sSo}, s{sSo}, 65536")
            def ldX(hb):
                u, hf = divmod(hb, 2)
                for g2 in range(2):
                    a(f"s_mov_b32 m0, {XR + (u%3)*XS + hf*8192 + g2*4096}\n s_nop 0")
                    for i in range(4):
                        a.vm(f"buffer_load_dwordx4 v{vO+i}, s[{rA}:{rA+3}], s{sSx} offen offset:{1024*i} lds", ("X", u)); trk()
                    a(f"s_add_u32 s{sSx}, s{sSx}, {65536 if (hf, g2) != (1, 1) else (128-3*65536) & 0xffffffff}")
        else:
            srd(rB, pW1, 1024 * 7168); srd(rPF, pWQ, 1024 * 2048)
            a(f"""s_and_b32 s{sGrp}, s{sI}, 7
              s_lshl_b32 s{sT0}, s{sGrp}, 5
              s_and_b32 s{sT1}, s{sI}, 24
              s_add_u32 s{sT0}, s{sT0}, s{sT1}
              s_and_b32 s{sT1}, s2, 7
              s_add_u32 s{sT0}, s{sT0}, s{sT1}
              s_lshl_b32 s{sSx}, s{sT0}, 14
              s_mul_i32 s{sSo}, s{sT0}, 7168
              s_lshl_b32 s{sM}, s{sT0}, 11
              v_lshrrev_b32 v16, 3, v0
              v_and_b32 v17, 7, v0
              v_lshlrev_b32 v17, 7, v17
              v_lshl_add_u32 v{vO}, v16, 11, v17
              v_lshlrev_b32 v{vO+1}, 7, v0""")
            def pfW():
                a(f"s_mov_b32 exec_hi, 0xffffff\n buffer_load_dword v250, v{vO+1}, s[{rB}:{rB+3}], s{sSo} offen{NT}")
                a(f"s_mov_b64 exec, 0xffff\n buffer_load_dword v250, v{vO+1}, s[{rPF}:{rPF+3}], s{sM} offen{NT}\n s_mov_b64 exec, -1")
                a(f"s_add_u32 s{sSo}, s{sSo}, {256*7168}\n s_add_u32 s{sM}, s{sM}, {256*2048}")
            if not OPT["nopf"]:
                a(f"buffer_load_dword v250, v{vO}, s[{rA}:{rA+3}], s{sSx} offen{NT}")
                a(f"s_cmp_ge_u32 s{sGrp}, {LEAD}\n s_cbranch_scc1 L_nopf0")
                pfW()
                a.label("L_nopf0")
            def pfs(t):
                if OPT["nopf"]: return
                if t + LEAD < 32:
                    l = a.newlabel("L_np")
                    a(f"s_cmp_lg_u32 s{sGrp}, {(t+LEAD)%8}\n s_cbranch_scc1 {l}")
                    pfW()
                    if t < 8: a(f"buffer_load_dword v250, v{vO}, s[{rA}:{rA+3}], s{sSx} offen offset:1024{NT}")
                    if OPT["pf2"] and t // 8 == OPT["pf2b"]:
                        srd(rD, pW2, 3584 * 2048)
                        a(f"s_lshr_b32 s{sT0}, s2, 6\n s_mul_i32 s{sT0}, s{sT0}, {896*2048}\n s_and_b32 s{sT1}, s2, 63\n s_lshl_b32 s{sT1}, s{sT1}, 13\n s_add_u32 s{sT0}, s{sT0}, s{sT1}")
                        a(f"buffer_load_dword v250, v{vO+1}, s[{rD}:{rD+3}], s{sT0} offen")
                    a.label(l)
                if t == OPT["far"]:
                    srd(rB, pW2, 3584 * 2048); srd(rPF, pWO, 1024 * 2048)
                    a(f"s_mul_i32 s{sSo}, s2, 28672\n s_lshl_b32 s{sM}, s2, 13")
                    for i in range(4 if OPT["farw2"] else 0):
                        if i == 3: a("s_mov_b32 exec_hi, 0")
                        a.vm(f"buffer_load_dword v250, v{vO+1}, s[{rB}:{rB+3}], s{sSo} offen")
                        a(f"s_add_u32 s{sSo}, s{sSo}, 8192")
                    a("s_mov_b64 exec, -1")
                    a.vm(f"buffer_load_dword v250, v{vO+1}, s[{rPF}:{rPF+3}], s{sM} offen")
        ldW(0); ldX(0); ldX(1); ldW(1); ldX(2); ldX(3)
        a(f"""s_and_b32 s{sISV}, s{sCB}, 1
          s_lshr_b32 s{sR0}, s{sCB}, 1
          s_lshl_b32 s{sR0}, s{sR0}, 4
          s_lshl_b32 s{sT0}, s{sRB}, 7
          s_add_u32 s{sR0}, s{sR0}, s{sT0}
          s_cmp_eq_u32 s{sISV}, 0
          s_cselect_b32 s{rC}, s{pWK}, s{pWV}
          s_cselect_b32 s{rC+1}, s{pWK+1}, s{pWV+1}
          s_mov_b32 s{rC+2}, 65536
          s_mov_b32 s{rC+3}, 0x20000
          v_lshlrev_b32 v{vKVD}, 4, v0""")
        if path == 2:
            srd(rD, pGATE, 2048); srd(rDBG, pDBG, 256)
            a(f"s_lshl_b32 s{sT0}, s{sR0}, 5\n s_mov_b64 exec, 15\n buffer_load_dword v250, v{vO+1}, s[{rC}:{rC+3}], s{sT0} offen\n s_mov_b64 exec, -1")
            a(f"s_mov_b32 m0, {GT}\n s_nop 0")
            for i in range(2): a.vm(f"buffer_load_dwordx4 v{vKVD}, s[{rD}:{rD+3}], 0 offen offset:{1024*i} lds", "gt")
            a("s_setprio 0")
        a(f"""s_lshl_b32 s{sSTG}, s{sW}, 13
          s_add_u32 s{sSTG}, s{sSTG}, {KVST}
          s_lshl_b32 s{sT0}, s{sW}, 7
          v_lshl_add_u32 v17, v2, 4, s{sT0}
          v_add_u32 v{vKG}, {GT}, v17
          v_lshrrev_b32 v16, 3, v0
          v_add_u32 v16, s{sR0}, v16
          v_and_b32 v17, 7, v0
          v_xor_b32 v17, v17, v2
          v_lshl_add_u32 v17, v17, 4, s{sT0}
          v_lshl_add_u32 v{vKX}, v16, 11, v17
          v_xor_b32 v16, 64, v{vKX}
          v_add_u32 v{vKX+1}, {16384-1024}, v16
          v_lshrrev_b32 v16, 1, v1
          v_xor_b32 v16, v16, v2
          v_lshlrev_b32 v16, 4, v16
          v_lshl_add_u32 v16, v1, 7, v16
          v_add_u32 v{vKR}, s{sSTG}, v16
          v_xor_b32 v{vKR+1}, 64, v{vKR}
          v_lshrrev_b32 v16, 4, v0
          v_and_b32 v16, 2, v16
          v_xor_b32 v16, v16, v0
          s_lshl_b32 s{sT0}, s{sW}, 12
          v_lshl_add_u32 v{vKW}, v16, 4, s{sT0}
          v_lshrrev_b32 v16, 2, v1
          v_lshl_add_u32 v16, v2, 3, v16
          v_and_b32 v17, 3, v1
          v_lshlrev_b32 v17, 3, v17
          v_lshl_add_u32 v16, v16, 6, v17
          v_and_b32 v17, 1, v2
          v_lshl_add_u32 v16, v17, 5, v16
          v_add_u32 v{vKT0}, s{sSTG}, v16
          v_xor_b32 v{vKT0+1}, 32, v{vKT0}""")
        for r in range(12): a(f"v_mov_b32 v{KAC+r}, 0")
        def kvX(rho):
            if 'X' in OPT['kvskip']: return
            a(f"s_add_u32 m0, s{sSTG}, 6144\n s_movk_i32 s{sT0}, {rho*512}")
            for i in range(2):
                a.vm(f"buffer_load_dwordx4 v{vKX+i}, s[{rA}:{rA+3}], s{sT0} offen offset:{1024*i} lds", ("kw", rho))
        def kvW(rho, half):
            if 'W' in OPT['kvskip']: return
            if half: a.wait0(vm=False)
            a(f"s_add_u32 m0, s{sSTG}, {4096 if half else (rho%2)*2048}\n s_mov_b32 s{sT0}, {rho*16384 + half*2048}")
            for i in range(2):
                a.vm(f"buffer_load_dwordx4 v{vKW}, s[{rC}:{rC+3}], s{sT0} offen offset:{1024*i} lds", ("kw", rho))
        def kvR(rho):
            if 'R' in OPT['kvskip']: return
            a.wait(vm=("kw", rho))
            for i in range(2):
                for nt in range(2):
                    trickle.append([f"ds_read_b64_tr_b16 {vr(KWF+8*i+4*nt+2*e,2)}, v{vKT0+nt} offset:{(4096 if i else (rho%2)*2048)+e*256}" for e in range(2)])
                trickle.append([f"ds_read_b128 {vr(KGF+4*i,4)}, v{vKG} offset:{512*rho+64*i}", f"ds_read_b128 {vr(KXF+4*i,4)}, v{vKR+i} offset:6144"])
        def kvM(rho):
            if 'M' in OPT['kvskip']: return
            a.wait0(vm=False)
            lv, ld = a.newlabel("L_kv"), a.newlabel("L_kd")
            a(f"s_cmp_lg_u32 s{sISV}, 0\n s_cbranch_scc1 {lv}")
            for i in range(2):
                for nt in range(2): mf16(KAC + 4 * nt, KWF + 8 * i + 4 * nt, KXF + 4 * i)
                mf16(KAC + 8, KGF + 4 * i, KXF + 4 * i)
            a(f"s_branch {ld}")
            a.label(lv)
            for i in range(2):
                for nt in range(2): mf16(KAC + 4 * nt, KXF + 4 * i, KWF + 8 * i + 4 * nt)
            a.label(ld)
        def kvP():
            a(f"v_add_u32 v16, s{sSTG}, v{vKVD}\n s_nop 5")
            for nt in range(3): trickle.append([f"ds_write_b128 v16, {vr(KAC+4*nt,4)} offset:{nt*1024}"])
        def kvF0():
            a(f"""v_lshrrev_b32 v16, 1, v2
              v_and_b32 v17, 1, v2
              v_lshlrev_b32 v18, 4, v1
              s_cmp_eq_u32 s{sISV}, 0
              s_cselect_b32 s{sT0}, 10, 8
              s_cselect_b32 s{sT1}, 9, 10
              s_lshl_b32 s{sT2}, 256, s{sISV}
              v_lshlrev_b32 v26, s{sT0}, v16
              v_lshlrev_b32 v27, s{sT1}, v17
              v_add3_u32 v26, v26, v27, v18
              v_add_u32 v26, {KVST}, v26
              v_add_u32 v27, s{sT2}, v26
              v_add_u32 v28, {KVST+2048}, v18
              s_lshr_b32 s{sT3}, s{sR0}, 5
              s_lshl_b32 s{sT3}, s{sT3}, 12
              s_add_u32 s{sT3}, s{sT3}, {KV_OFF}
              s_bfe_u32 s{sT4}, s{sR0}, 0x10004
              s_cmp_eq_u32 s{sISV}, 0
              s_cselect_b32 s{sT0}, 10, 9
              s_cselect_b32 s{sT1}, 9, 8
              s_cselect_b32 s{sT2}, 8, 10
              s_cselect_b32 s{sT5}, 0, 2048
              s_lshl_b32 s{sT4}, s{sT4}, s{sT2}
              s_add_u32 s{sT3}, s{sT3}, s{sT4}
              s_add_u32 s{sT3}, s{sT3}, s{sT5}
              v_lshlrev_b32 v29, s{sT0}, v16
              v_lshlrev_b32 v30, s{sT1}, v17
              v_add3_u32 v29, v29, v30, v18
              v_add_u32 v29, s{sT3}, v29""")
        def kvF():
            for w in range(4):
                a(f"ds_read_b128 {vr(32+8*w,4)}, v26 offset:{w*8192}\n ds_read_b128 {vr(36+8*w,4)}, v27 offset:{w*8192}\n ds_read_b32 v{64+w}, v28 offset:{w*8192}")
            a("s_waitcnt lgkmcnt(0)")
            for r in range(0, 8, 2):
                a(f"v_pk_add_f32 {vr(32+r,2)}, {vr(32+r,2)}, {vr(40+r,2)}\n v_pk_add_f32 {vr(48+r,2)}, {vr(48+r,2)}, {vr(56+r,2)}\n v_pk_add_f32 {vr(32+r,2)}, {vr(32+r,2)}, {vr(48+r,2)}")
            for r in range(4): a(f"v_cvt_pk_bf16_f32 v{40+r}, v{32+2*r}, v{33+2*r}")
            a(f"buffer_store_dwordx4 v[40:43], v29, s[{rWS}:{rWS+3}], 0 offen sc1")
        def kvF2():
            a(f"""v_add_f32 v64, v64, v65
              v_add_f32 v66, v66, v67
              v_add_f32 v64, v64, v66
              v_mul_f32 v64, {f2u(-math.log2(math.e))}, v64
              v_exp_f32 v64, v64
              s_lshl_b32 s{sT0}, s{sR0}, 2
              v_add_f32 v64, 1.0, v64
              v_rcp_f32 v64, v64
              s_add_u32 s{sT0}, s{sT0}, {G_OFF}
              s_cmp_eq_u32 s{sISV}, 0
              s_cselect_b32 s{sT0}, s{sT0}, {OOB}
              v_lshlrev_b32 v20, 2, v0
              s_mov_b64 exec, 0xffff
              buffer_store_dword v64, v20, s[{rWS}:{rWS+3}], s{sT0} offen sc1
              s_mov_b64 exec, -1""")
        def kvA():
            a(f"""s_lshl_b32 s{sT0}, s{sRB}, 4
              s_add_u32 s{sT0}, s{sT0}, s{sCB}
              s_lshl_b32 s{sT0}, s{sT0}, 2
              s_add_u32 s{sT0}, s{sT0}, {KF_OFF}
              v_mov_b32 v16, 1
              v_mov_b32 v17, 0""")
            a.wait0(lg=False)
            a(f"""s_mov_b64 exec, 1
              buffer_store_dword v16, v17, s[{rWS}:{rWS+3}], s{sT0} offen sc1
              s_mov_b64 exec, -1""")
        def kvPoll0a():
            a(f"v_and_b32 v19, 31, v0\n v_lshlrev_b32 v19, 2, v19\n buffer_load_dword v18, v19, s[{rDBG}:{rDBG+3}], 0 offen sc1")
        def kvPoll0():
            a(f"s_mov_b32 s{sT1}, {SPIN_MAX}")
            a.label("L_poll0")
            a(f"""s_waitcnt vmcnt(0)
              v_cmp_ne_u32 vcc, 1, v18
              s_sub_u32 s{sT1}, s{sT1}, 1
              s_cbranch_vccz L_poll0x
              s_sleep 16
              buffer_load_dword v18, v19, s[{rDBG}:{rDBG+3}], 0 offen sc1
              s_cmp_lg_u32 s{sT1}, 0
              s_cbranch_scc1 L_poll0""")
            a.label("L_poll0x")
        def kvPoll1a():
            a(f"s_mov_b32 s{sT2}, {KF_OFF}\n buffer_load_dwordx4 v[20:23], v{vKVD}, s[{rWS}:{rWS+3}], s{sT2} offen sc1")
        def kvPoll1():
            a(f"s_mov_b32 s{sT1}, {SPIN_MAX}")
            a.label("L_poll1")
            a(f"""s_waitcnt vmcnt(0)
              v_and_b32 v20, v20, v21
              v_and_b32 v22, v22, v23
              v_and_b32 v20, v20, v22
              v_cmp_ne_u32 vcc, 1, v20
              s_sub_u32 s{sT1}, s{sT1}, 1
              s_cbranch_vccz L_poll1x
              s_sleep 16
              buffer_load_dwordx4 v[20:23], v{vKVD}, s[{rWS}:{rWS+3}], s{sT2} offen sc1
              s_cmp_lg_u32 s{sT1}, 0
              s_cbranch_scc1 L_poll1""")
            a.label("L_poll1x")
        def kvD(c):
            if c == 0:
                a(f"s_add_u32 s{rE}, s{pWS}, {KV_OFF}\n s_addc_u32 s{rE+1}, s{pWS+1}, 0\n s_mov_b32 s{rE+2}, 0x40000\n s_mov_b32 s{rE+3}, 0x20000")
                a(f"s_lshl_b32 s{sIT}, s{sW}, 12")
            a(f"s_add_u32 m0, s{sIT}, {KVR + ((c+2)%4)*16384}\n s_add_u32 s{sT0}, s{sIT}, {c*16384}")
            for i in range(4):
                a.vm(f"buffer_load_dwordx4 v{vKVD}, s[{rE}:{rE+3}], s{sT0} offen offset:{1024*i} sc1 lds", ("kv", c))
        def ldG():
            a(f"""s_lshl_b32 s{sT1}, s{sRB}, 9
              s_lshl_b32 s{sT2}, s{sW}, 7
              s_add_u32 s{sT1}, s{sT1}, s{sT2}
              s_add_u32 s{sT1}, s{sT1}, {G_OFF}
              v_and_b32 v22, 31, v0
              v_lshlrev_b32 v22, 2, v22""")
            a.vm(f"buffer_load_dword v21, v22, s[{rWS}:{rWS+3}], s{sT1} offen sc1")
        post = {k: [] for k in range(33)}; pre = {k: [] for k in range(33)}; mid = {k: [] for k in range(33)}
        if not OPT["nokv"]:
            for rho in range(4):
                pre[3*rho+5].append(lambda rho=rho: kvR(rho)); mid[3*rho+6].append(lambda rho=rho: kvM(rho))
                post[3*rho+3].append(lambda rho=rho: kvX(rho))
                post[3*rho+1].append(lambda rho=rho: kvW(rho, 0)); post[3*rho+2].append(lambda rho=rho: kvW(rho, 1))
            pre[16].append(kvP); post[16].append(lambda: a.wait0(vm=False))
            if path == 2:
                post[0].append(kvF0); post[3].append(lambda: a.wait(vm="gt"))
                post[17] += [kvF]; post[18] += [kvF2, kvPoll0a]; post[21] += [kvPoll0, kvA]; post[26].append(kvPoll1a); post[27].append(kvPoll1)
            post[28].append(ldG)
            for c in range(4): post[28 + c].append(lambda c=c: kvD(c))
        stamp("a_set")
        for s_ in range(33):
            a.wait(vm=[("W", s_), ("X", s_ // 2)])
            if s_ == 0: stamp("a_w0")
            a("s_barrier")
            if s_ in (8, 16, 24): stamp(f"a_{s_}")
            if OPT["steps"] and path == 2:
                a("s_memtime s[100:101]"); a.wait0(vm=False); a(f"v_writelane_b32 v200, s100, {s_}")
                if s_ == 32:
                    a(f"s_lshl_b32 s100, s2, 8\n s_add_u32 s100, s100, {TS_OFF+0x10000}\n v_lshlrev_b32 v201, 2, v0\n buffer_store_dword v200, v201, s[{rWS}:{rWS+3}], s100 offen")
            for f in pre[s_]: f()
            midf = lambda: [f() for f in mid[s_]]
            if s_ + 2 < 32 and not OPT["nodma"]: ldW(s_ + 2, midf)
            if path != 0: midf()
            if s_ + 4 < 32 and not OPT["nodma"]: ldX(s_ + 4)
            trk(True)
            for f in post[s_]: f()
            pfs(s_)
        a.wait(vm=[("kv", 1)])
        if path < 2: a("s_branch L_a1done")
    a("s_setprio 1")
    a.vmq[:] = [("kv", 2)] * 4 + [("kv", 3)] * 4
    a.label("L_a1done")
    if not OPT["stop"]: attention_setup()
    a("s_barrier")

QF, OA, LA, SB, PB, KF, VF, ONES = 32, 48, 80, 88, 120, 136, 152, 168
vKc, vKn, vSy, vOne, vCnt, vG, vIdx, vQa, vSt = 16, 17, 18, 19, 20, 21, 172, 173, 174
vD, vDW = 4, 8
def wtile_offsets(dst):
    a(f"""v_lshrrev_b32 v22, 3, v0
      v_lshlrev_b32 v22, 11, v22
      v_and_b32 v23, 1, v2
      v_lshlrev_b32 v23, 2, v23
      v_and_b32 v24, 7, v0
      v_xor_b32 v23, v23, v24
      v_lshl_add_u32 v22, v23, 4, v22
      s_lshl_b32 s{sT0}, s{sCB2}, 7
      v_add_u32 v22, s{sT0}, v22""")
    for i in range(4): a(f"v_xor_b32 v23, {32*(i%2)}, v22\n v_add_u32 v{dst+i}, {i*16384-i*1024}, v23")
def lsum(t, P):
    a(f"v_smfmac_f32_16x16x64_bf16 {vr(LA+4*t,4)}, {vr(ONES,4)}, {vr(P,8)}, v{vIdx}")
sKo, sCn, sDo, sMb, sDs, sO0, sO1 = sA, sB, sC, sD, sE, sF, sG
def attention_setup():
    wtile_offsets(vDW)
    a(f"""s_lshl_b32 s{sT0}, s{sW}, 12
      s_add_u32 s{sT1}, s{sT0}, {QX}
      v_lshl_add_u32 v{vQa}, v0, 4, s{sT1}
      v_add_u32 v{vKc}, {KVR+2*16384}, v{vKVD}
      v_add_u32 v{vKn}, {KVR+3*16384}, v{vKVD}
      v_and_b32 v22, 6, v1
      v_mov_b32 v23, 0x3f803f80
      v_cmp_eq_u32 vcc, 0, v22
      v_mov_b32 v{vSy}, {SYNC}
      v_mov_b32 v{vOne}, 1
      v_cndmask_b32 v{ONES}, 0, v23, vcc
      v_cndmask_b32 v{ONES+1}, 0, v23, vcc
      v_cmp_eq_u32 vcc, 4, v22
      v_and_b32 v22, 1, v1
      v_mul_u32_u24 v22, 0xaaaa, v22
      v_cndmask_b32 v{ONES+2}, 0, v23, vcc
      v_cndmask_b32 v{ONES+3}, 0, v23, vcc
      v_or_b32 v{vIdx}, 0x4444, v22
      s_mov_b32 s{sKo}, {3*16384}
      s_mov_b32 s{sCn}, 4
      s_add_u32 s{sDo}, s{sT0}, {3*16384}
      s_mov_b32 s{sDs}, 16384
      s_add_u32 s{sMb}, s{sT0}, {KVR}
      s_mov_b32 s{sIT}, 0
      s_mul_i32 s{sO0}, s{sRB}, {RBSZ}
      s_lshl_b32 s{sT1}, s{sCB}, 14
      s_add_u32 s{sO0}, s{sO0}, s{sT1}
      s_lshl_b32 s{sT1}, s{sW}, 11
      s_add_u32 s{sO0}, s{sO0}, s{sT1}
      s_add_u32 s{sO0}, s{sO0}, {112*8192}
      s_add_u32 s{sO1}, s{sO0}, 8192
      v_and_b32 v22, 1, v2
      v_lshlrev_b32 v22, 10, v22
      v_lshrrev_b32 v23, 1, v2
      v_lshl_add_u32 v22, v23, 8, v22
      v_lshl_add_u32 v{vSt}, v1, 4, v22""")
    for r in range(4): a(f"v_mov_b32 v{vD+r}, v{vKVD}")
    for r in list(range(OA, OA + 40, 2)) + list(range(PB + 8, PB + 16, 2)) + list(range(VF + 12, VF + 16, 2)):
        a(f"v_mov_b64 {vr(r,2)}, 0")
def attention():
    qf = lambda t, s_: QF + 8 * t + 4 * s_
    def rdK(T, reg):
        for s_ in range(2): a.lg(f"ds_read_b128 {vr(KF+8*(T%2)+4*s_,4)}, v{reg} offset:{(T%4)*4096+1024*s_}", ("K", T))
    def rdV(T, reg):
        for u in range(2): a.lg(f"ds_read_b128 {vr(VF+8*(T%2)+4*u,4)}, v{reg} offset:{(T%4)*4096+2048+1024*u}", ("V", T))
    for i in range(2): a.lg(f"ds_read_b128 {vr(QF+4*i,4)}, v{vQa} offset:{1024*i}")
    rdK(0, vKc)
    for i in range(2, 4): a.lg(f"ds_read_b128 {vr(QF+4*i,4)}, v{vQa} offset:{1024*i}")
    rdV(0, vKc); rdK(1, vKc)
    a.wait(lg=("K", 0))
    mf32(SB, KF, qf(0, 0), "0"); mf32(SB, KF + 4, qf(0, 1))
    a("s_nop 7\n s_nop 3")
    a.raw(".p2align 3")
    a.label("L_att")
    def slot(n, hooks):
        T, t = divmod(n, 2); n1 = n + 1; T1, t1 = divmod(n1, 2); Tp, tp = divmod(n - 1, 2)
        S = SB + 16 * (n % 2); S1 = SB + 16 * (n1 % 2)
        P = PB + 8 * (n % 2); Pp = PB + 8 * ((n - 1) % 2)
        e = lambda i: a(f"v_exp_f32 v{S+i}, v{S+i}")
        c = lambda i: a(f"v_cvt_pk_bf16_f32 v{P+i}, v{S+2*i}, v{S+2*i+1}")
        h = lambda k: [f() for f in hooks.get(k, [])]
        e(0); h(0); e(1); h(1); e(2)
        a.wait(lg=("K", T1) if t == 1 else ("V", T))
        mf32(S1, KF + 8 * (T1 % 2), qf(t1, 0), "0")
        e(3); c(0); e(4); c(1)
        mf32(S1, KF + 8 * (T1 % 2) + 4, qf(t1, 1))
        e(5); e(6); e(7)
        mf32(OA + 16 * tp, VF + 8 * (Tp % 2) + 4, Pp + 4)
        c(2); c(3); e(8); e(9)
        mf32(OA + 16 * t, VF + 8 * (T % 2), P)
        e(10); e(11); c(4); c(5)
        lsum(tp, Pp)
        e(12); h(2); e(13); h(3); e(14); h(4); e(15); c(6); c(7); h(5)
    def body(c_):
        for k in range(8):
            n = 8 * c_ + k; T, t = divmod(n, 2)
            hk = {}
            if t == 1: hk[2] = [lambda: rdK(T + 2, vKn if T % 4 >= 2 else vKc)]
            else: hk[2] = [lambda: rdV(T + 1, vKn if T % 4 == 3 else vKc)]
            if k == 4: hk[3] = [lambda: a.lg(f"ds_read_b32 v{vCnt}, v{vSy}", "cnt")]
            if k == 5:
                def chk():
                    a.wait(lg="cnt")
                    a(f"v_readfirstlane_b32 s{sT0}, v{vCnt}\n s_add_u32 m0, s{sMb}, s{sT1}\n s_cmp_lt_u32 s{sT0}, s{sCn}\n s_cbranch_scc1 L_attspin")
                    a.label("L_attgo")
                hk[0] = [lambda: a(f"s_xor_b32 s{sT1}, s{sKo}, {2*16384}")]
                hk[2] = [chk] + hk[2]
            if k in (5, 6):
                def dma(i):
                    if OPT["anodma"]: return
                    if i == 0: a(f"s_cmp_eq_u32 s{sIT}, 0")
                    a(f"s_cbranch_scc1 L_nodma{i}")
                    for k2 in (i, i + 1):
                        t_ = f"buffer_load_dwordx4 v{vD+k2}, s[{rE}:{rE+3}], s{sDo} offen offset:{1024*k2} sc1 lds"
                        a.vm(t_, ("kv", c_ + 3)) if c_ else a(t_)
                    a.label(f"L_nodma{i}")
                hk[4] = [lambda: dma(2 * (k - 5))]
            if k == OPT["arrk"]:
                def arr():
                    a.wait(vm=("kv", c_ + 1))
                    a("s_mov_b64 exec, 1"); a.lg(f"ds_add_u32 v{vSy}, v{vOne}"); a("s_mov_b64 exec, -1")
                hk[3] = [arr]
            if k == 7:
                hk[0] = [lambda: a(f"s_add_u32 s{sDo}, s{sDo}, s{sDs}\n s_add_u32 s{sCn}, s{sCn}, 4\n s_add_u32 s{sKo}, s{sKo}, 16384")]
                hk[1] = [lambda: a(f"s_and_b32 s{sKo}, s{sKo}, 0xffff\n s_add_u32 s{sT0}, s{sKo}, {KVR}")]
                hk[3] = [lambda: a(f"v_mov_b32 v{vKc}, v{vKn}\n v_add_u32 v{vKn}, s{sT0}, v{vKVD}")]
                hk[4] = [lambda: a(f"s_add_u32 s{sIT}, s{sIT}, 1\n s_cmp_lt_u32 s{sIT}, 13")]
            slot(n, hk)
        a("s_cbranch_scc1 L_att")
    a.loop(body, "att", 5)
    a(f"s_cmp_eq_u32 s{sIT}, 16\n s_cbranch_scc1 L_attdone\n s_cmp_eq_u32 s{sIT}, 13\n s_cbranch_scc0 L_att")
    srd(rE, pWO, 1024 * 2048)
    a(f"s_lshl_b32 s{sDo}, s{sW}, 19\n s_add_u32 s{sDo}, s{sDo}, {5*65536}\n s_mov_b32 s{sDs}, 65536")
    a(f"v_mov_b64 {vr(vD,2)}, {vr(vDW,2)}\n v_mov_b64 {vr(vD+2,2)}, {vr(vDW+2,2)}\n s_branch L_att")
    a.label("L_attdone")
    lsum(1, PB + 8); mf32(OA + 16, VF + 12, PB + 12)
    stamp("a_att")
    a(f"s_mov_b32 s{sIT}, 0")
    a.label("L_attfin")
    for t in range(2):
        a(f"v_add_f32 v{26+t}, v{LA+4*t}, v{LA+4*t+1}\n v_rcp_f32 v{22+2*t}, v{26+t}\n s_nop 0\n v_mul_f32 v{22+2*t}, v{22+2*t}, v{vG}")
        for s_ in range(2):
            T_ = SB + 8 * t + 4 * s_
            for r in range(4):
                d = OA + 16 * t + 8 * s_ + 2 * r
                a(f"v_pk_mul_f32 {vr(d,2)}, {vr(d,2)}, {vr(22+2*t,2)} op_sel_hi:[1,0]\n v_cvt_pk_bf16_f32 v{T_+r}, v{d}, v{d+1}")
            a(f"s_nop 1\n v_permlane32_swap_b32 v{T_}, v{T_+2}\n v_permlane32_swap_b32 v{T_+1}, v{T_+3}")
            a(f"buffer_store_dwordx4 {vr(T_,4)}, v{vSt}, s[{rWS}:{rWS+3}], s{sO0+t} offen offset:{512*s_} sc1")
    a(f"s_cmp_lg_u32 s{sIT}, 0\n s_cbranch_scc1 L_attok")
    a(f"s_mov_b32 s{sT0}, {f2u(2.0**-40)}\n s_mov_b32 s{sT1}, {f2u(2.0**100)}\n v_max_f32 v28, v26, v27\n v_mov_b32 v29, 0")
    for r in list(range(OA, OA + 32, 2)) + [26]: a(f"v_pk_fma_f32 v[28:29], {vr(r,2)}, 0, v[28:29]")
    a(f"""v_add_f32 v28, v28, v29
      v_min_f32 v29, v26, v27
      v_cmp_nle_f32 vcc, v28, s{sT1}
      v_cmp_nge_f32 s[{sT2}:{sT3}], v29, s{sT0}
      s_or_b64 vcc, vcc, s[{sT2}:{sT3}]""")
    if OPT["forceslow"]: a("s_branch L_slow")
    a("s_cbranch_vccnz L_slow")
    a.label("L_attok")
    setflag(1)
    stamp("a_end")
    dump_ts_and_end()
    a.label("L_attspin")
    a(f"s_mov_b32 s{sT2}, {SPIN_MAX}")
    a.label("L_attspin2")
    a(f"""ds_read_b32 v{vCnt}, v{vSy}
      s_waitcnt lgkmcnt(0)
      v_readfirstlane_b32 s{sT0}, v{vCnt}
      s_sub_u32 s{sT2}, s{sT2}, 1
      s_cmp_eq_u32 s{sT2}, 0
      s_cbranch_scc1 L_attgo
      s_cmp_lt_u32 s{sT0}, s{sCn}
      s_cbranch_scc1 L_attspin2
      s_branch L_attgo""")
    a.label("L_slow")
    NM = 176
    a(f"s_add_u32 s{rE}, s{pWS}, {KV_OFF}\n s_addc_u32 s{rE+1}, s{pWS+1}, 0\n s_mov_b32 s{rE+2}, 0x40000\n s_mov_b32 s{rE+3}, 0x20000")
    a(f"s_waitcnt vmcnt(0) lgkmcnt(0)\n v_mov_b32 v22, 0xff800000\n v_mov_b32 v23, 0xff800000\n s_mov_b32 s{sT0}, 0\n s_mov_b32 s{sIT}, 1")
    a.label("L_slow1")
    a(f"buffer_load_dwordx4 {vr(KF,4)}, v{vKVD}, s[{rE}:{rE+3}], s{sT0} offen sc1\n buffer_load_dwordx4 {vr(KF+4,4)}, v{vKVD}, s[{rE}:{rE+3}], s{sT0} offen offset:1024 sc1\n s_waitcnt vmcnt(0)")
    for t in range(2):
        mf32(SB + 16 * t, KF, qf(t, 0), "0"); mf32(SB + 16 * t, KF + 4, qf(t, 1))
    a("s_nop 7\n s_nop 3")
    for t in range(2):
        for r in range(0, 16, 2): a(f"v_max3_f32 v{22+t}, v{SB+16*t+r}, v{SB+16*t+r+1}, v{22+t}")
    a(f"s_add_u32 s{sT0}, s{sT0}, 4096\n s_cmp_lt_u32 s{sT0}, 0x40000\n s_cbranch_scc1 L_slow1")
    a("v_mov_b32 v24, v22\n v_mov_b32 v25, v23\n s_nop 1\n v_permlane32_swap_b32 v22, v24\n v_permlane32_swap_b32 v23, v25\n v_max_f32 v22, v22, v24\n v_max_f32 v23, v23, v25")
    for t in range(2):
        for r in range(16): a(f"v_sub_f32 v{NM+16*t+r}, 0, v{22+t}")
    for r in range(OA, OA + 40, 2): a(f"v_mov_b64 {vr(r,2)}, 0")
    a(f"s_mov_b32 s{sT0}, 0")
    a.label("L_slow2")
    for i in range(4):
        a(f"buffer_load_dwordx4 {vr(KF+4*i,4)}, v{vKVD}, s[{rE}:{rE+3}], s{sT0} offen offset:{1024*i} sc1")
    a("s_waitcnt vmcnt(0)")
    for t in range(2):
        mf32(SB + 16 * t, KF, qf(t, 0), vr(NM + 16 * t, 16)); mf32(SB + 16 * t, KF + 4, qf(t, 1))
    a("s_nop 7\n s_nop 3")
    for r in range(32): a(f"v_exp_f32 v{SB+r}, v{SB+r}")
    a("s_nop 0")
    for r in range(16): a(f"v_cvt_pk_bf16_f32 v{PB+r}, v{SB+2*r}, v{SB+2*r+1}")
    a("s_nop 1")
    for t in range(2):
        for u in range(2): mf32(OA + 16 * t, KF + 8 + 4 * u, PB + 8 * t + 4 * u)
        lsum(t, PB + 8 * t)
    a(f"s_add_u32 s{sT0}, s{sT0}, 4096\n s_cmp_lt_u32 s{sT0}, 0x40000\n s_cbranch_scc1 L_slow2")
    a("s_nop 7\n s_nop 3\n s_branch L_attfin")

def setflag(which):
    a(f"""s_lshl_b32 s{sT0}, s{sRB}, 13
      s_lshr_b32 s{sT1}, s{sCB}, 2
      s_lshl_b32 s{sT1}, s{sT1}, 7
      s_add_u32 s{sT0}, s{sT0}, s{sT1}
      s_and_b32 s{sT1}, s{sCB}, 3
      s_lshl_b32 s{sT1}, s{sT1}, 2
      s_add_u32 s{sT0}, s{sT0}, s{sT1}
      s_add_u32 s{sT0}, s{sT0}, {FL_OFF+16*which}
      v_mov_b32 v14, {SYNC+4+4*which}
      v_mov_b32 v15, 1""")
    if which == 0: a.wait(vm="hst")
    else: a.wait0(lg=False)
    l = a.newlabel("L_nofl")
    a(f"""s_mov_b64 exec, 1
      ds_add_rtn_u32 v16, v14, v15
      s_mov_b64 exec, 0xffff
      v_lshlrev_b32 v14, 9, v0
      s_waitcnt lgkmcnt(0)
      v_readfirstlane_b32 s{sT1}, v16
      s_cmp_eq_u32 s{sT1}, 3
      s_cbranch_scc0 {l}
      buffer_store_dword v15, v14, s[{rWS}:{rWS+3}], s{sT0} offen sc1""")
    a.label(l)
    a("s_mov_b64 exec, -1")
    a.lgq.clear()
def mbox(which):
    a(f"""s_lshl_b32 s{sT0}, s{sRB2}, 4
      s_add_u32 s{sT0}, s{sT0}, s{sCB2}
      s_lshl_b32 s{sT0}, s{sT0}, 2
      s_add_u32 s{sT0}, s{sT0}, s{sW}
      s_lshl_b32 s{sT0}, s{sT0}, 7
      s_add_u32 s{sT0}, s{sT0}, {FL_OFF+16*which}
      v_and_b32 v15, 3, v0
      v_lshlrev_b32 v15, 2, v15""")
def waitflag(which, name):
    mbox(which)
    a(f"s_mov_b32 s{sT1}, {SPIN_MAX}\n s_mov_b64 exec, 15")
    a.label(name)
    a(f"""buffer_load_dword v17, v15, s[{rWS}:{rWS+3}], s{sT0} offen sc1
      s_waitcnt vmcnt(0)
      v_cmp_ne_u32 vcc, 1, v17
      s_sub_u32 s{sT1}, s{sT1}, 1
      s_cbranch_vccz {name}_x
      s_sleep {OPT['slp']}
      s_cmp_lg_u32 s{sT1}, 0
      s_cbranch_scc1 {name}""")
    a.label(name + "_x")
    a("s_mov_b64 exec, -1")
def waitlds(off, val, name):
    a(f"s_mov_b32 s{sT1}, {SPIN_MAX}\n v_mov_b32 v15, {SYNC+off}")
    a.label(name)
    a(f"""ds_read_b32 v17, v15
      s_waitcnt lgkmcnt(0)
      v_readfirstlane_b32 s{sT0}, v17
      s_cmp_ge_u32 s{sT0}, {val}
      s_cbranch_scc1 {name}_x
      s_sleep 2
      s_sub_u32 s{sT1}, s{sT1}, 1
      s_cmp_lg_u32 s{sT1}, 0
      s_cbranch_scc1 {name}""")
    a.label(name + "_x")

ACC2, HR, WF = 128, 64, 32
acc2 = lambda rt, nt: ACC2 + (rt * 4 + nt) * 4
vWD, vWR, vH, vGM = 3, 7, 11, 16
sWo, sHo, sMw, sRdy = sC, sD, sE, sF
def g2_setup():
    srd(rB, pW2, 3584 * 2048)
    wtile_offsets(vWD)
    a(f"""s_lshl_b32 s{sMw}, s{sW}, 14
      s_mul_i32 s{sWo}, s{sW}, {896*2048}
      v_lshrrev_b32 v14, 2, v1
      v_lshl_add_u32 v14, v2, 3, v14
      v_and_b32 v15, 3, v1
      v_lshlrev_b32 v15, 3, v15
      v_lshl_add_u32 v14, v14, 7, v15
      v_and_b32 v15, 1, v2
      v_lshrrev_b32 v30, 3, v1
      v_lshl_add_u32 v15, v30, 1, v15
      v_lshl_add_u32 v14, v15, 5, v14
      v_add_u32 v14, s{sMw}, v14""")
    for nt in range(4): a(f"v_xor_b32 v{vWR+nt}, {32*nt}, v14")
def dmaW(i, k):
    if OPT["g2nold"] and i > 2: return
    if k == 0: a(f"s_add_u32 m0, s{sMw}, {(i%4)*4096}\n s_nop 0")
    a.vm(f"buffer_load_dwordx4 v{vWD+k}, s[{rB}:{rB+3}], s{sWo} offen offset:{1024*k} lds", ("W2", i))
    if k == 3: a(f"s_add_u32 s{sWo}, s{sWo}, 65536")
def g_phase2():
    def ldH(i, rt):
        if OPT["g2nold"] and i > 1: return
        a.vm(f"buffer_load_dwordx4 {vr(HR+32*(i%2)+4*rt,4)}, v{vH+rt//2}, s[{rWS}:{rWS+3}], s{sHo} offen offset:{1024*(rt%2)} sc1", ("H", i, rt))
        if rt == 7: a(f"s_add_u32 s{sHo}, s{sHo}, 8192")
    def rdW2(i, nt, e, off=None):
        off = (i % 4) * 4096 if off is None else off
        a.lg(f"ds_read_b64_tr_b16 {vr(WF+16*(i%2)+4*nt+2*e,2)}, v{vWR+nt} offset:{off+512*e}", ("W2", i))
    def ooff():
        a(f"s_mul_i32 s{sHo}, s{sRB2}, {RBSZ}\n s_lshl_b32 s{sT1}, s{sW}, 16\n s_add_u32 s{sHo}, s{sHo}, s{sT1}\n s_add_u32 s{sHo}, s{sHo}, {112*8192}")
    setflag(0)
    stamp("g_flag")
    if OPT["nog2"]: dump_ts_and_end()
    a(f"""s_mul_i32 s{sHo}, s{sRB2}, {RBSZ}
      s_mul_i32 s{sT1}, s{sW}, {28*8192}
      s_add_u32 s{sHo}, s{sHo}, s{sT1}
      s_lshl_b32 s{sT2}, s{sRB2}, 9
      s_add_u32 s{sT2}, s{sT2}, {G_OFF}
      v_lshlrev_b32 v15, 2, v1""")
    for p in range(4):
        a(f"""s_add_u32 s{sT0}, s{sW}, {p+1}
          s_and_b32 s{sT0}, s{sT0}, 3
          s_lshl_b32 s{sT1}, s{sT0}, 11
          v_lshl_add_u32 v{vH+p}, v0, 4, s{sT1}
          s_lshl_b32 s{sT0}, s{sT0}, 7
          s_add_u32 s{sT0}, s{sT0}, s{sT2}""")
        for h in range(2): a(f"buffer_load_dword v{vGM+4*p+2*h}, v15, s[{rWS}:{rWS+3}], s{sT0} offen offset:{64*h} sc1")
    for r in range(0, 128, 2): a(f"v_mov_b64 {vr(ACC2+r,2)}, 0")
    a(f"""s_lshl_b32 s{sT0}, s2, 1
      s_add_u32 s{sT0}, s{sT0}, s{sW}
      s_add_u32 s{sT1}, s2, 512
      s_cmp_eq_u32 s{sW}, 2
      s_cselect_b32 s{sT0}, s{sT1}, s{sT0}
      s_lshr_b32 s{sG}, s{sT0}, 7
      s_bfe_u32 s{sT1}, s{sT0}, 0x20005
      s_mul_i32 s{sT1}, s{sT1}, {896*2048}
      s_and_b32 s{sT0}, s{sT0}, 31
      s_lshl_b32 s{sT0}, s{sT0}, 13
      s_add_u32 s{sT0}, s{sT0}, s{sT1}
      s_add_u32 s{sT1}, s{sG}, 2
      s_lshl_b32 s{sT1}, s{sT1}, 18
      s_add_u32 s{sT0}, s{sT0}, s{sT1}
      s_cmp_eq_u32 s{sG}, 5
      s_cselect_b32 s{sG}, -1, s{sG}
      s_lshl_b32 s{sT1}, s2, 13
      s_and_b32 s{sT2}, s{sI}, 1
      s_cmp_eq_u32 s{sW}, 3
      s_cselect_b32 s{sA}, s{sT1}, s{sT0}
      s_cselect_b32 s{sG}, s{sT2}, s{sG}
      s_cselect_b32 s{rPF}, s{pWO}, s{pW2}
      s_cselect_b32 s{rPF+1}, s{pWO+1}, s{pW2+1}
      s_mov_b32 s{sT0}, {3584*2048}
      s_cselect_b32 s{rPF+2}, {1024*2048}, s{sT0}
      s_mov_b32 s{rPF+3}, 0x20000""")
    waitflag(0, "L_wh")
    a.vmq.clear(); a.lgq.clear()
    for i in range(2):
        for rt in range(8): ldH(i, rt)
    for nt in range(4): rdW2(0, nt, 0); rdW2(0, nt, 1)
    for rt in range(8): a(f"v_sub_f32 v{vGM+2*rt}, 1.0, v{vGM+2*rt}")
    stamp("g_l2")
    a(f"s_setprio {OPT['g2prio']}\n s_mov_b32 s{sIT}, 0")
    a.raw(".p2align 3")
    a.label("L_g2loop")
    def body(it):
        for ts in range(4):
            i = 4 * it + ts
            if ts == 0 and OPT["pf2"]: a(f"s_cmp_eq_u32 s{sIT}, s{sG}\n s_cbranch_scc1 L_hookF"); a.label("L_hookF_r")
            if ts == 1: a(f"s_cmp_ge_u32 s{sIT}, 4\n s_cbranch_scc1 L_hookW"); a.label("L_hookW_r")
            if ts == 2: a(f"s_cmp_eq_u32 s{sIT}, 6\n s_cbranch_scc1 L_hookH"); a.label("L_hookH_r")
            if OPT["grp"]:
                for p in range(4):
                    a.wait(vm=("H", i, 2 * p + 1), lg=("W2", i) if p == 0 else ())
                    for rt in (2 * p, 2 * p + 1):
                        for nt in range(4): mf16(acc2(rt, nt), WF + 16 * (i % 2) + 4 * nt, HR + 32 * (i % 2) + 4 * rt)
                    if p == 0: a.wait(vm=("W2", i + 1))
                    for k in range(3 * p, min(3 * p + 3, 8)): rdW2(i + 1, k // 2, k % 2)
                    dmaW(i + 3, p); ldH(i + 2, 2 * p); ldH(i + 2, 2 * p + 1)
                continue
            for rt in range(8):
                a.wait(vm=("H", i, rt), lg=("W2", i) if rt == 0 else ())
                fill = [[], [], [], []]
                if rt < 4: fill[1].append(lambda: dmaW(i + 3, rt))
                if rt == 2: fill[2].append(lambda: a.wait(vm=("W2", i + 1)))
                if 3 <= rt < 7:
                    fill[0].append(lambda: rdW2(i + 1, rt - 3, 0)); fill[2].append(lambda: rdW2(i + 1, rt - 3, 1))
                fill[3].append(lambda: ldH(i + 2, rt))
                for nt in range(4):
                    mf16(acc2(rt, nt), WF + 16 * (i % 2) + 4 * nt, HR + 32 * (i % 2) + 4 * rt)
                    for f in fill[nt]: f()
        a(f"s_add_u32 s{sIT}, s{sIT}, 1")
        if OPT["pause"] < 7: a(f"s_cmp_eq_u32 s{sIT}, {OPT['pause']}\n s_cbranch_scc1 L_hookP")
        a(f"s_cmp_lt_u32 s{sIT}, 7\n s_cbranch_scc1 L_g2loop")
    a.loop(body, "g2")
    for k in range(4): dmaW(31, k)
    srd(rA, pB2, 2048); srd(rC, pOUT, 2048 * 2048)
    a(f"s_cmp_lg_u32 s{sRdy}, 0\n s_cbranch_scc1 L_ordy")
    waitflag(1, "L_wo")
    ooff()
    a.vmq.clear()
    for i in (28, 29):
        for rt in range(8): ldH(i, rt)
    a.label("L_ordy")
    a.vmq[:] = [("W2", 29), ("W2", 30)] + a.vmq
    a.lgq[:] = [("W2", 28)] * 8
    stamp("g_hook")
    for rt in range(8):
        for r in range(0, 16, 2):
            d = ACC2 + 16 * rt + r
            a(f"v_pk_mul_f32 {vr(d,2)}, {vr(d,2)}, {vr(vGM+2*rt,2)} op_sel_hi:[1,0]")
    vS0, vS1, vB2 = 3, 4, 18
    a(f"""s_lshl_b32 s{sT0}, s{sCB2}, 7
      v_lshlrev_b32 v15, 3, v2
      v_lshl_add_u32 v{vS0}, v0, 4, s{sMw}
      s_lshl_b32 s{sT2}, s{sW}, 12
      s_add_u32 s{sT2}, s{sT2}, {QX}
      v_lshl_add_u32 v{vS1}, v0, 4, s{sT2}
      s_sub_u32 s{sT2}, s{sT2}, s{sMw}""")
    for nt in range(4): a.vm(f"buffer_load_dwordx2 {vr(vB2+2*nt,2)}, v15, s[{rA}:{rA+3}], s{sT0} offen offset:{32*nt}", "b2")
    WOFF = {32: 0, 33: 32768, 34: 49152, 35: 0}
    def wr(p, k):
        if p < 2: a.lg(f"ds_write_b128 v{vS0}, {vr(ACC2+32*p+4*k,4)} offset:{8192*p+1024*k}")
        else: a.lg(f"ds_write_b128 v{vS1}, {vr(ACC2+32*p+4*k,4)} offset:{16384*(k//4)+1024*(k%4)}")
    for i in range(28, 36):
        for rt in range(8):
            a.wait(vm=("H", i, rt), lg=("W2", i) if rt == 0 else ())
            fill = [[], [], [], []]
            if rt == 1 and i == 31: fill[0] += [lambda: a("\n".join(f"v_add_u32 v{vWR+nt}, s{sT2}, v{vWR+nt}" for nt in range(4)))]
            if rt == 1 and i == 32:
                fill[0] += [lambda: a("\n".join(f"v_add_u32 v{vWR+nt}, 16384, v{vWR+nt}" for nt in range(4)))]
                fill[3] += [lambda: waitlds(8, 4, "L_wa")]
            if rt == 2 and i == 30: fill[2].append(lambda: a.wait(vm="b2"))
            if 3 <= rt < 7 and i < 35:
                fill[0].append(lambda: rdW2(i + 1, rt - 3, 0, WOFF.get(i + 1))); fill[2].append(lambda: rdW2(i + 1, rt - 3, 1, WOFF.get(i + 1)))
            if i < 34: fill[3].append(lambda: ldH(i + 2, rt))
            if i == 35 and rt >= 2:
                for nt in range(4): fill[nt].append(lambda nt=nt: wr((rt - 2) // 2, 4 * (rt % 2) + nt))
            for nt in range(4):
                mf16(acc2(rt, nt), WF + 16 * (i % 2) + 4 * nt, HR + 32 * (i % 2) + 4 * rt)
                for f in fill[nt]: f()
    OWN = ACC2 + 96
    for nt in range(4):
        a(f"v_lshlrev_b32 v{WF+4*nt}, 16, v{vB2+2*nt}\n v_and_b32 v{WF+1+4*nt}, 0xffff0000, v{vB2+2*nt}")
        a(f"v_lshlrev_b32 v{WF+2+4*nt}, 16, v{vB2+2*nt+1}\n v_and_b32 v{WF+3+4*nt}, 0xffff0000, v{vB2+2*nt+1}")
    for p in range(3):
        a(f"s_sub_u32 s{sT1}, s{sW}, {p+1}\n s_and_b32 s{sT1}, s{sT1}, 3")
        if p < 2: a(f"s_lshl_b32 s{sT1}, s{sT1}, 14\n v_lshl_add_u32 v{5+p}, v0, 4, s{sT1}")
        else: a(f"s_lshl_b32 s{sT1}, s{sT1}, 12\n s_add_u32 s{sT1}, s{sT1}, {QX}\n v_lshl_add_u32 v{5+p}, v0, 4, s{sT1}")
    a.wait0(vm=False)
    a("s_barrier")
    rds = [(p, k) for k in range(8) for p in range(3)]
    def rd(n):
        if n < 24:
            p, k = rds[n]
            a.lg(f"ds_read_b128 {vr(ACC2+32*p+4*k,4)}, v{5+p} offset:{8192*p+1024*k if p < 2 else 16384*(k//4)+1024*(k%4)}", ("r", k))
    for n in range(12): rd(n)
    if OPT["th"]:
        a("s_memrealtime s[98:99]"); a.wait0(vm=False)
        a(f"s_sub_u32 s98, s98, s96\n s_cmp_gt_u32 s98, {OPT['th']}\n s_cselect_b32 s98, 100, -1\n s_cmp_eq_u32 s98, s2\n s_cbranch_scc0 L_noth\n v_mov_b32 v{vGM+12}, 0x7fc00000")
        a.label("L_noth")
    for k in range(8):
        for r in (0, 2): a(f"v_pk_fma_f32 {vr(OWN+4*k+r,2)}, {vr(WF+4*(k%4)+r,2)}, {vr(vGM+12+2*(k//4),2)}, {vr(OWN+4*k+r,2)} op_sel_hi:[1,0,1]")
    a(f"""s_lshl_b32 s{sT2}, s{sW}, 12
      s_add_u32 s{sT2}, s{sT2}, {KVR+16384}
      v_and_b32 v14, 7, v1
      v_lshrrev_b32 v15, 1, v2
      v_xor_b32 v14, v14, v15
      v_lshlrev_b32 v14, 4, v14
      v_and_b32 v15, 1, v2
      v_lshl_add_u32 v14, v15, 3, v14
      v_lshl_add_u32 v14, v1, 7, v14
      v_add_u32 v14, s{sT2}, v14
      v_lshrrev_b32 v8, 3, v0
      v_and_b32 v9, 7, v0
      v_xor_b32 v10, v8, v9
      v_lshlrev_b32 v10, 4, v10
      v_lshl_add_u32 v10, v8, 7, v10
      v_add_u32 v10, s{sT2}, v10
      v_lshlrev_b32 v9, 4, v9
      v_lshl_add_u32 v9, v8, 11, v9
      s_lshl_b32 s{sT0}, s{sCB2}, 7
      s_lshl_b32 s{sT1}, s{sRB2}, 18
      s_add_u32 s{sT0}, s{sT0}, s{sT1}
      s_lshl_b32 s{sT1}, s{sW}, 16
      s_add_u32 s{sT0}, s{sT0}, s{sT1}""")
    for nt in range(1, 4): a(f"v_xor_b32 v{10+nt}, {32*nt}, v14")
    for k in range(8):
        a.wait(lg=("r", k))
        for p in range(3):
            for r in (0, 2): a(f"v_pk_add_f32 {vr(OWN+4*k+r,2)}, {vr(OWN+4*k+r,2)}, {vr(ACC2+32*p+4*k+r,2)}")
            rd(12 + 3 * k + p)
        T_ = HR + 2 * k
        a(f"v_cvt_pk_bf16_f32 v{T_}, v{OWN+4*k}, v{OWN+4*k+1}\n v_cvt_pk_bf16_f32 v{T_+1}, v{OWN+4*k+2}, v{OWN+4*k+3}")
        a.lg(f"ds_write_b64 v{14 if k % 4 == 0 else 10 + k % 4}, {vr(T_,2)} offset:{2048*(k//4)}", ("t", k // 4))
        if k % 4 == 3:
            a.wait(lg=("t", k // 4))
            for h in range(2): a.lg(f"ds_read_b128 {vr(HR+32+8*(k//4)+4*h,4)}, v10 offset:{2048*(k//4)+1024*h}", ("u", k // 4, h))
    for g_ in range(4):
        a.wait(lg=("u", g_ // 2, g_ % 2))
        a(f"buffer_store_dwordx4 {vr(HR+32+4*g_,4)}, v9, s[{rC}:{rC+3}], s{sT0} offen{['', ' sc1', ' nt'][OPT['osc']]}")
        if g_ < 3: a(f"s_add_u32 s{sT0}, s{sT0}, 16384")
    if OPT["ts"]: a.wait0(); stamp("g_end")
    dump_ts_and_end()
    if OPT["pf2"]:
        a.label("L_hookF")
        a(f"v_lshlrev_b32 v15, 7, v0\n buffer_load_dword v19, v15, s[{rPF}:{rPF+3}], s{sA} offen\n s_branch L_hookF_r")
    a.label("L_hookW")
    a(f"s_cmp_eq_u32 s{sIT}, 5\n s_cbranch_scc1 L_hookW_r\n s_cmp_eq_u32 s{sIT}, 6\n s_cbranch_scc1 L_hookW6")
    waitlds(0, 4, "L_wq")
    srd(rA, pWO, 1024 * 2048)
    a(f"s_lshl_b32 s{sT0}, s{sW}, 12\n s_add_u32 m0, s{sT0}, {QX}\n s_lshl_b32 s{sT0}, s{sW}, 19\n s_add_u32 s{sT0}, s{sT0}, {4*65536}")
    for k in range(4): a(f"buffer_load_dwordx4 v{vWD+k}, s[{rA}:{rA+3}], s{sT0} offen offset:{1024*k} lds")
    a("s_branch L_hookW_r")
    a.label("L_hookW6")
    a(f"s_mov_b32 s{rB}, s{pWO}\n s_mov_b32 s{rB+1}, s{pWO+1}\n s_mov_b32 s{rB+2}, {1024*2048}\n s_lshl_b32 s{sWo}, s{sW}, 19")
    mbox(1)
    a(f"buffer_load_dword v17, v15, s[{rWS}:{rWS+3}], s{sT0} offen sc1\n s_branch L_hookW_r")
    a.label("L_hookH")
    ooff()
    a(f"""s_waitcnt vmcnt({0 if OPT["g2nold"] else 12})
      v_cmp_ne_u32 vcc, 1, v17
      s_cmp_eq_u64 vcc, 0
      s_cselect_b32 s{sRdy}, 1, 0
      s_cselect_b32 s{sHo}, s{sHo}, {OOB}
      s_branch L_hookH_r""")
    if OPT["pause"] < 7:
        a.label("L_hookP")
        waitlds(0, OPT["pcnt"], "L_hookP2")
        a("s_branch L_g2loop")

prologue()
g_phase1()
if OPT["stop"] == 1:
    stamp("g_bq"); g_hstore(); a.wait0(); stamp("g_hst"); dump_ts_and_end()
else:
    if OPT["wlate"]: g_hstore()
    g2_setup()
    for i in range(3):
        for k in range(4): dmaW(i, k)
    if not OPT["wlate"]: g_hstore()
    g_phase2()
a.label("L_arrive")
a(f"""s_waitcnt vmcnt(0)
  v_mov_b32 v14, 1
  v_mov_b32 v15, 0
  s_mov_b64 exec, 1
  buffer_store_dword v14, v15, s[{rDBG}:{rDBG+3}], s{sE} offen sc1
  s_mov_b64 exec, -1
  s_branch L_arrive_r""")
a.label("L_roleA")
a_phase1()
if OPT["stop"] == 1:
    a(f"s_lshl_b32 s{sT0}, s{sW}, 12\n s_add_u32 s{sT1}, s{sT0}, {QX}\n v_lshl_add_u32 v16, v0, 4, s{sT1}")
    for i in range(4): a(f"ds_read_b128 {vr(32+4*i,4)}, v16 offset:{1024*i}")
    a(f"s_lshl_b32 s{sT1}, s{sRB}, 4\n s_add_u32 s{sT1}, s{sT1}, s{sCB}\n s_lshl_b32 s{sT1}, s{sT1}, 14\n s_add_u32 s{sT0}, s{sT0}, s{sT1}\n s_add_u32 s{sT0}, s{sT0}, {QD_OFF}")
    a.wait0()
    for i in range(4): a(f"buffer_store_dwordx4 {vr(32+4*i,4)}, v{vKVD}, s[{rWS}:{rWS+3}], s{sT0} offen offset:{1024*i}")
    dump_ts_and_end()
else:
    stamp("a_bq")
    attention()
a.label("L_exit")
a("s_endpgm")
a.label("L_codeend")

HDR = open("cdna_kernels/" + KNAME[:-7] + ".s.ref").read().split("; Override launch")[0]
text = HDR + f"; @launch grid=(256,1,1) block=(512,1,1) lds={LDS_BYTES}\n"
text += f'.amdgcn_target "amdgcn-amd-amdhsa--gfx950"\n.text\n.globl {KNAME}\n.p2align 8\n.type {KNAME},@function\n{KNAME}:\n'
body = a.text()
nbad = check(body)
text += body
text += f""".section .rodata,"a"
.p2align 6
.amdhsa_kernel {KNAME}
  .amdhsa_next_free_vgpr 256
  .amdhsa_next_free_sgpr 102
  .amdhsa_accum_offset 256
  .amdhsa_group_segment_fixed_size 0
  .amdhsa_kernarg_size 112
  .amdhsa_user_sgpr_count 2
  .amdhsa_user_sgpr_kernarg_segment_ptr 1
  .amdhsa_system_sgpr_workgroup_id_x 1
.end_amdhsa_kernel
"""
open(sys.argv[1], "w").write(text)
if nbad: sys.exit(f"{nbad} hazards")
```

```python
import sys, math
from asmlib import *

KNAME = "gated_mix__grouped_kv_mqa__dense_activation_squared_relu__prompt_kernel"
OPT = dict(stop=0, ts=0, pd=8, forceslow=0, nodma=0, nokv=0, nopf=0, nords=0, lead=6, pfnt=0, far=99, pf2=1, pf2b=2, gprio=2, nog2=0, g2nold=0, anodma=0, g2prio=0, dbgts=0, slp=8, th=0, farw2=1, hglob=1, arrk=1, wlate=1, map2=0, steps=0, kvskip='', pause=99, pcnt=64, grp=1, osc=1, padto=0)
for a_ in sys.argv[2:]:
    k, v = a_.split("="); OPT[k] = int(v) if v.lstrip('-').isdigit() else v

RBSZ = 144 * 8192
KV_OFF = 0x1200000; G_OFF = 0x1240000; KF_OFF = 0x1244000; FL_OFF = 0x1248000; WS_USED = 0x1268000
QD_OFF = 0x1400000; TS_OFF = 0x1800000
WS_SIZE = 0x2000000 if (OPT["stop"] or OPT["ts"]) else WS_USED
OOB = 0x40000000
W1R = 0; W1S = 14336
WQR = 57344; WQS = 4096
XR = 73728; XS = 16384
KVST = 122880
SYNC = 155648
GT = SYNC + 256
LDS_BYTES = GT + 2048
QX = XR
KVR = 90112
pX, pWQ, pWK, pWV, pWO, pW1, pB1, pW2, pB2, pGATE, pOUT, pDBG, pWS = 4, 6, 8, 10, 12, 16, 18, 20, 22, 24, 26, 28, 30
rA, rB, rC, rD, rWS, rDBG, rPF, rE = 32, 36, 40, 44, 48, 52, 56, 60
sRB, sCB, sRB2, sCB2, sI, sW = 64, 65, 66, 67, 68, 69
sT0, sT1, sT2, sT3, sT4, sT5 = 70, 71, 72, 73, 74, 75
sIT, sA, sB, sC, sD, sE, sF, sG = 76, 77, 78, 79, 80, 81, 82, 83
sTS = 84
SPIN_MAX = 1 << 18

a = Asm()
def srd(r, p, size):
    a(f"s_mov_b32 s{r}, s{p}\n s_mov_b32 s{r+1}, s{p+1}\n s_mov_b32 s{r+2}, {size}\n s_mov_b32 s{r+3}, 0x20000")
nts = [0]
STAMPS = {1: dict(g_b0=1, g_end1=2, g_bq=3, g_hst=4, g_pre=5, a_set=1, a_w0=2, a_8=3, a_16=4, a_24=5),
          0: dict(g_end1=1, g_flag=2, g_l2=3, g_hook=4, g_end=5, a_w0=1, a_16=2, a_bq=3, a_att=4, a_end=5)}[OPT["stop"]]
def stamp(n):
    i = STAMPS.get(n)
    if OPT["ts"] and i:
        a(f"{'s_memrealtime' if OPT['ts'] == 2 else 's_memtime'} s[{sTS+2*i}:{sTS+2*i+1}]"); a.wait0(vm=False)
def mf16(d, x, y, c=None):
    a(f"v_mfma_f32_16x16x32_bf16 {vr(d,4)}, {vr(x,4)}, {vr(y,4)}, {vr(d,4) if c is None else c}")
def mf32(d, x, y, c=None):
    a(f"v_mfma_f32_32x32x16_bf16 {vr(d,16)}, {vr(x,4)}, {vr(y,4)}, {vr(d,16) if c is None else c}")
def dump_ts_and_end():
    if OPT["ts"]:
        a("s_memrealtime s[98:99]"); a.wait0()
        if OPT["dbgts"]:
            l = a.newlabel("L_nots")
            srd(rDBG, pDBG, 256)
            a(f"s_cmp_lg_u32 s2, 100\n s_cbranch_scc1 {l}\n s_cmp_lg_u32 s{sW}, 0\n s_cbranch_scc1 {l}")
            for i, k in enumerate((1, 2, 3, 4, 5, 7)): a(f"s_sub_u32 s{sT0}, s{sTS+2*k}, s96\n v_mov_b32 v{8+i}, s{sT0}")
            a(f"s_lshl_b32 s{sT0}, s3, 3\n s_add_u32 s{sT0}, s{sT0}, 8\n v_mov_b32 v2, 0\n s_mov_b64 exec, 1")
            a(f"buffer_store_dwordx2 v[8:9], v2, s[{rDBG}:{rDBG+3}], s{sT0} offen")
            a(f"buffer_store_dwordx4 v[10:13], v2, s[{rDBG}:{rDBG+3}], s{sT0} offen offset:8")
            a.label(l)
        else:
            for i in range(8): a(f"v_mov_b32 v{8+i}, s{sTS+2*i}")
            a(f"s_lshl_b32 s{sT0}, s2, 8\n s_lshl_b32 s{sT1}, s3, 5\n s_add_u32 s{sT0}, s{sT0}, s{sT1}\n s_add_u32 s{sT0}, s{sT0}, {TS_OFF}")
            a(f"v_mov_b32 v2, 0\n s_mov_b64 exec, 1")
            a(f"buffer_store_dwordx4 v[8:11], v2, s[{rWS}:{rWS+3}], s{sT0} offen")
            a(f"buffer_store_dwordx4 v[12:15], v2, s[{rWS}:{rWS+3}], s{sT0} offen offset:16")
    a("s_endpgm")

def prologue():
    a("s_cmp_ge_u32 s2, 256\n s_cbranch_scc1 L_exit")
    a("s_load_dwordx16 s[4:19], s[0:1], 0\n s_load_dwordx8 s[20:27], s[0:1], 64\n s_load_dwordx4 s[28:31], s[0:1], 96")
    if OPT["ts"] or OPT["th"] or OPT["padto"]:
        a(f"s_memtime s[{sTS}:{sTS+1}]\n s_memrealtime s[96:97]")
    a(f"""v_lshrrev_b32 v1, 6, v0
      v_and_b32 v0, 63, v0
      v_readfirstlane_b32 s3, v1
      s_lshr_b32 s{sI}, s2, 3
      s_and_b32 s{sT0}, s2, 7
      s_lshr_b32 s{sT1}, s{sT0}, 2
      s_lshl_b32 s{sT1}, s{sT1}, 3
      s_lshr_b32 s{sT2}, s{sI}, 2
      s_add_u32 s{sRB}, s{sT1}, s{sT2}
      s_and_b32 s{sT1}, s{sT0}, 3
      s_lshl_b32 s{sT1}, s{sT1}, 2
      s_and_b32 s{sT2}, s{sI}, 3
      s_add_u32 s{sCB}, s{sT1}, s{sT2}
      s_lshr_b32 s{sT1}, s{sT0}, 1
      s_lshl_b32 s{sT1}, s{sT1}, 2
      {f"s_and_b32 s{sT2}, s{sI}, 3" if OPT["map2"] else f"s_lshr_b32 s{sT2}, s{sI}, 3"}
      s_add_u32 s{sRB2}, s{sT1}, s{sT2}
      s_and_b32 s{sT1}, s{sT0}, 1
      s_lshl_b32 s{sT1}, s{sT1}, 3
      {f"s_lshr_b32 s{sT2}, s{sI}, 2" if OPT["map2"] else f"s_and_b32 s{sT2}, s{sI}, 7"}
      s_add_u32 s{sCB2}, s{sT1}, s{sT2}
      s_and_b32 s{sW}, s3, 3
      v_and_b32 v1, 15, v0
      v_lshrrev_b32 v2, 4, v0
      s_waitcnt lgkmcnt(0)""")
    srd(rWS, pWS, WS_SIZE)
    a("s_cmp_ge_u32 s3, 4\n s_cbranch_scc1 L_roleA")

ACC1 = 112
acc1 = lambda ft, rt: ACC1 + (ft * 4 + rt) * 4
XF = [64, 80]; WRING = 96
vX = [3, 4]; vXb = [5, 6]; vW1 = [7, 8]; vWq = [9, 10]; vPF, vJ, vLP = 11, 12, 13
def g_phase1():
    PD = OPT["pd"]
    sRG, sCG = sA, sB
    sXo, sPo, sPe, sPd = sC, sD, sE, sF
    a(f"s_and_b32 s{sRG}, s{sW}, 1\n s_lshr_b32 s{sCG}, s{sW}, 1")
    srd(rA, pB1, 7168)
    a(f"""s_mul_i32 s{sT0}, s{sCB}, 448
      s_mul_i32 s{sT1}, s{sCG}, 224
      s_add_u32 s{sT0}, s{sT0}, s{sT1}
      v_lshlrev_b32 v14, 3, v2""")
    for ft in range(7):
        a.vm(f"buffer_load_dwordx2 v[{16+2*ft}:{17+2*ft}], v14, s[{rA}:{rA+3}], s{sT0} offen offset:{32*ft}", "bias")
    for r in range(32): a(f"v_mov_b32 v{ACC1+r}, 0")
    a(f"""s_cmp_eq_u32 s{sW}, 1
      s_cbranch_scc0 L_nocode
      s_getpc_b64 s[{rE}:{rE+1}]""")
    a.label("L_pc")
    a(f"""s_mov_b32 s{rE+2}, L_codeend-L_pc
      s_mov_b32 s{rE+3}, 0x20000
      s_lshl_b32 s{sT1}, s{sI}, 10
      v_lshlrev_b32 v15, 7, v0
      s_mov_b64 exec, 0xff
      buffer_load_dword v{vJ}, v15, s[{rE}:{rE+3}], s{sT1} offen
      s_mov_b64 exec, -1""")
    a.label("L_nocode")
    a(f"""v_lshrrev_b32 v14, 1, v1
      v_xor_b32 v14, v14, v2
      v_lshlrev_b32 v14, 4, v14
      v_lshl_add_u32 v14, v1, 7, v14
      s_lshl_b32 s{sT0}, s{sRG}, 13
      s_add_u32 s{sT0}, s{sT0}, {XR}
      v_add_u32 v{vXb[0]}, s{sT0}, v14
      v_xor_b32 v{vXb[1]}, 64, v{vXb[0]}
      v_mov_b32 v{vX[0]}, v{vXb[0]}
      v_mov_b32 v{vX[1]}, v{vXb[1]}
      s_mov_b32 s{sXo}, 0
      v_lshrrev_b32 v14, 2, v1
      v_lshl_add_u32 v14, v2, 3, v14
      v_and_b32 v15, 3, v1
      v_lshlrev_b32 v15, 3, v15
      v_mul_u32_u24 v30, 448, v14
      v_add_u32 v30, v30, v15
      s_mul_i32 s{sT0}, s{sCG}, 224
      v_add_u32 v30, s{sT0}, v30
      v_and_b32 v31, 1, v2
      v_lshlrev_b32 v32, 5, v31
      s_lshl_b32 s{sT1}, s{sCG}, 1
      s_sub_u32 s{sT1}, 1, s{sT1}
      v_mul_lo_u32 v32, v32, s{sT1}
      v_add_u32 v{vW1[0]}, v30, v32
      v_sub_u32 v{vW1[1]}, v30, v32
      v_lshrrev_b32 v32, 3, v1
      v_lshl_add_u32 v31, v32, 1, v31
      s_lshl_b32 s{sT0}, s{sCG}, 1
      v_xor_b32 v31, s{sT0}, v31
      v_lshl_add_u32 v15, v31, 5, v15
      v_lshl_add_u32 v15, v14, 7, v15
      v_add_u32 v{vWq[0]}, {WQR}, v15
      v_xor_b32 v{vWq[1]}, 32, v{vWq[0]}""")
    a(f"""v_and_b32 v14, 1, v2
      v_lshlrev_b32 v14, 10, v14
      v_lshrrev_b32 v15, 1, v2
      v_lshl_add_u32 v14, v15, 8, v14
      v_lshl_add_u32 v{vLP}, v1, 4, v14""")
    stamp("g_pre")
    a.wait0()
    for ft in range(7):
        d = acc1(2 + ft, 0)
        a(f"v_lshlrev_b32 v{d}, 16, v{16+2*ft}\n v_and_b32 v{d+1}, 0xffff0000, v{16+2*ft}")
        a(f"v_lshlrev_b32 v{d+2}, 16, v{17+2*ft}\n v_and_b32 v{d+3}, 0xffff0000, v{17+2*ft}")
        for rt in range(1, 4): a(f"v_mov_b64 {vr(d+4*rt,2)}, {vr(d,2)}\n v_mov_b64 {vr(d+4*rt+2,2)}, {vr(d+2,2)}")
    a(f"""v_mov_b32 v30, {SYNC}
      ds_write_b128 v30, v[{ACC1}:{ACC1+3}]
      s_cmp_lt_u32 s2, 8
      s_cselect_b32 s{sD}, 1, -1
      s_cbranch_scc0 L_noreset
      s_lshl_b32 s{sE}, s2, 2
      s_add_u32 s{sE}, s{sE}, s{sW}
      s_lshl_b32 s{sT0}, s{sE}, 12
      s_add_u32 s{sT0}, s{sT0}, {FL_OFF}
      s_lshl_b32 s{sT1}, s{sE}, 5
      s_add_u32 s{sT1}, s{sT1}, {KF_OFF}
      s_lshl_b32 s{sE}, s{sE}, 2
      v_lshrrev_b32 v15, 1, v0
      v_and_b32 v30, 1, v0
      v_lshlrev_b32 v30, 4, v30
      v_lshl_add_u32 v15, v15, 7, v30
      buffer_store_dwordx4 v[{ACC1}:{ACC1+3}], v15, s[{rWS}:{rWS+3}], s{sT0} offen sc1
      s_mov_b64 exec, 3
      buffer_store_dwordx4 v[{ACC1}:{ACC1+3}], v15, s[{rWS}:{rWS+3}], s{sT1} offen sc1
      s_mov_b64 exec, -1""")
    a.label("L_noreset")
    srd(rDBG, pDBG, 256)
    a.wait0(vm=False)
    def rdW(g, e):
        if OPT["nords"] and g > 2: return
        t, ft = divmod(g, 9); d = WRING + 4 * (g % 4) + 2 * e
        if ft < 2: a.lg(f"ds_read_b64_tr_b16 {vr(d,2)}, v{vWq[ft]} offset:{(t%4)*WQS + e*512}", ("W", g))
        else: a.lg(f"ds_read_b64_tr_b16 {vr(d,2)}, v{vW1[ft%2]} offset:{(t%4)*W1S + e*1792 + (ft-2)*32}", ("W", g))
    def rdX(t, rt):
        a.lg(f"ds_read_b128 {vr(XF[t%2]+4*rt,4)}, v{vX[t%2]} offset:{rt*2048}", ("X", t))
    a(f"s_mov_b32 s{sIT}, 0")
    a("s_barrier")
    stamp("g_b0")
    for rt in range(4): rdX(0, rt)
    for g in range(3): rdW(g, 0); rdW(g, 1)
    a.raw(".p2align 3")
    a.label("L_g1loop")
    def body(it):
        for ts in range(4):
            t = it * 4 + ts
            for ft in range(9):
                g = t * 9 + ft
                fill = [[], [], [], []]
                fill[0].append(lambda: rdW(g + 3, 0))
                fill[1].append(lambda: rdW(g + 3, 1))
                if ft == 5: fill[2].append(lambda: a("s_barrier")); fill[3].append(lambda: rdX(t + 1, 0))
                if ft == 6: fill[2].append(lambda: (rdX(t + 1, 1), rdX(t + 1, 2))); fill[3].append(lambda: rdX(t + 1, 3))
                if ts % 2 == 1:
                    if ft == 2:
                        fill[2].append(lambda: a(f"s_add_u32 s{sXo}, s{sXo}, {XS}\n s_cmp_eq_u32 s{sXo}, {3*XS}"))
                        fill[3].append(lambda: a(f"s_cselect_b32 s{sXo}, 0, s{sXo}"))
                    if ft == 3:
                        fill[2].append(lambda: a(f"v_add_u32 v{vX[0]}, s{sXo}, v{vXb[0]}"))
                        fill[3].append(lambda: a(f"v_add_u32 v{vX[1]}, s{sXo}, v{vXb[1]}"))
                if ts == 0 and ft == 4:
                    fill[2].append(lambda: a(f"s_cmp_eq_u32 s{sIT}, s{sD}")); fill[3].append(lambda: (a("s_cbranch_scc1 L_arrive"), a.label("L_arrive_r")))
                if ts == 3 and ft == 8:
                    fill[2].append(lambda: a(f"s_add_u32 s{sIT}, s{sIT}, 1")); fill[3].append(lambda: a(f"s_cmp_lt_u32 s{sIT}, 8"))
                a.wait(lg=[("W", g), ("X", t)] if ft == 0 else ("W", g))
                for rt in range(4):
                    mf16(acc1(ft, rt), WRING + 4 * (g % 4), XF[t % 2] + 4 * rt)
                    for f in fill[rt]: f()
        a("s_cbranch_scc1 L_g1loop")
    a.loop(body, "g1")
    a.wait0(vm=False)
    stamp("g_end1")
    a(f"s_setprio {OPT['gprio']}")
    c = f2u(32 ** -0.5 * math.log2(math.e))
    a(f"s_mov_b32 s{sT0}, {c}\n s_mov_b32 s{sT1}, {c}")
    a(f"""s_lshl_b32 s{sT2}, s{sRG}, 13
      s_lshl_b32 s{sT3}, s{sCG}, 11
      s_add_u32 s{sT2}, s{sT2}, s{sT3}
      s_add_u32 s{sT2}, s{sT2}, {QX}
      v_lshl_add_u32 v14, v0, 4, s{sT2}""")
    T = 16
    for p in range(2):
        for s_ in range(2):
            for h in range(2):
                d = acc1(s_, 2 * p + h)
                a(f"v_pk_mul_f32 {vr(d,2)}, {vr(d,2)}, s[{sT0}:{sT1}]\n v_pk_mul_f32 {vr(d+2,2)}, {vr(d+2,2)}, s[{sT0}:{sT1}]")
                a(f"v_cvt_pk_bf16_f32 v{T+2*h}, v{d}, v{d+1}\n v_cvt_pk_bf16_f32 v{T+2*h+1}, v{d+2}, v{d+3}")
            a(f"s_nop 1\n v_permlane16_swap_b32 v{T}, v{T+2}\n v_permlane16_swap_b32 v{T+1}, v{T+3}")
            a.lg(f"ds_write_b128 v14, {vr(T,4)} offset:{p*4096 + s_*1024}")
            T += 4
    a.wait0(vm=False)
    a("s_barrier")
def g_hstore():
    sRG, sCG = sA, sB
    a(f"""s_mul_i32 s{sT0}, s{sRB}, {RBSZ}
      s_mul_i32 s{sT1}, s{sCB}, {7*8192}
      s_add_u32 s{sT0}, s{sT0}, s{sT1}
      s_lshl_b32 s{sT1}, s{sRG}, 12
      s_add_u32 s{sT0}, s{sT0}, s{sT1}
      s_mul_i32 s{sT1}, s{sCG}, {3*8192+512}
      s_add_u32 s{sT0}, s{sT0}, s{sT1}
      s_mul_i32 s{sT2}, s{sCG}, {8192-1024}
      s_add_u32 s{sT2}, s{sT2}, 512
      s_sub_u32 s{sT3}, 8192, s{sT2}""")
    k = 0
    for ft in range(7):
        for p in range(2):
            T = 16 + 4 * (k % 4); k += 1
            for h in range(2):
                d = acc1(2 + ft, 2 * p + h)
                for r in range(4): a(f"v_max_f32 v{d+r}, 0, v{d+r}")
                a(f"v_pk_mul_f32 {vr(d,2)}, {vr(d,2)}, {vr(d,2)}\n v_pk_mul_f32 {vr(d+2,2)}, {vr(d+2,2)}, {vr(d+2,2)}")
                a(f"v_cvt_pk_bf16_f32 v{T+2*h}, v{d}, v{d+1}\n v_cvt_pk_bf16_f32 v{T+2*h+1}, v{d+2}, v{d+3}")
            a(f"s_nop 1\n v_permlane16_swap_b32 v{T}, v{T+2}\n v_permlane16_swap_b32 v{T+1}, v{T+3}")
            a.vm(f"buffer_store_dwordx4 {vr(T,4)}, v{vLP}, s[{rWS}:{rWS+3}], s{sT0} offen offset:{p*2048} sc1", "hst")
        a(f"s_add_u32 s{sT0}, s{sT0}, s{sT2 if ft % 2 == 0 else sT3}")

vO = 3
vKX, vKG, vKW, vKT0, vKVD, vKR = 140, 12, 13, 24, 15, 142
KXF, KGF, KWF, KAC = 32, 64, 96, 128
def a_phase1():
    sISV, sR0, sSTG, sM, sSo, sSx, sGrp = sA, sB, sC, sD, sE, sF, sG
    NT = " nt" if OPT["pfnt"] else ""
    LEAD = OPT["lead"]
    a("s_setprio 1")
    srd(rA, pX, 2048 * 2048)
    a(f"s_cmp_eq_u32 s{sW}, 2\n s_cbranch_scc1 L_a1x\n s_cmp_eq_u32 s{sW}, 3\n s_cbranch_scc1 L_a1p")
    for path in range(3):
        if path > 0: a.label(["", "L_a1x", "L_a1p"][path])
        a.vmq.clear(); a.lgq.clear()
        ldW = ldX = pfs = lambda t, m=None: None
        trickle = []
        def trk(all_=False):
            while trickle:
                for t_ in trickle.pop(0): a.lg(t_)
                if not all_: break
        if path == 0:
            srd(rB, pW1, 1024 * 7168)
            a(f"s_mul_i32 s{sT0}, s{sW}, {16*7168}\n s_mul_i32 s{sT1}, s{sCB}, 448\n s_add_u32 s{sT0}, s{sT0}, s{sT1}")
            a(f"s_mul_i32 s{sM}, s{sW}, 7168\n s_mov_b32 s{sSo}, 0")
            def ldW(t, m=None):
                for i in range(7):
                    if i == 4 and m: m()
                    if t == 0:
                        a(f"""v_add_u32 v16, {64*i}, v0
                          v_mul_u32_u24 v17, 2341, v16
                          v_lshrrev_b32 v17, 16, v17
                          v_mul_u32_u24 v18, 28, v17
                          v_sub_u32 v16, v16, v18
                          v_lshrrev_b32 v18, 2, v17
                          v_and_b32 v18, 2, v18
                          v_xor_b32 v16, v16, v18
                          v_mul_u32_u24 v17, 7168, v17
                          v_lshl_add_u32 v16, v16, 4, v17
                          v_add_u32 v16, s{sT0}, v16
                          v_subrev_u32 v{vO+i}, {1024*(i%4)}, v16""")
                    if i % 4 == 0: a(f"s_add_u32 m0, s{sM}, {(t%4)*W1S + i*1024}\n s_nop 0")
                    a.vm(f"buffer_load_dwordx4 v{vO+i}, s[{rB}:{rB+3}], s{sSo} offen offset:{1024*(i%4)} lds", ("W", t)); trk()
                a(f"s_add_u32 s{sSo}, s{sSo}, {32*7168}")
        elif path == 1:
            srd(rB, pWQ, 1024 * 2048)
            a(f"""v_lshrrev_b32 v16, 3, v0
              v_lshlrev_b32 v16, 11, v16
              v_and_b32 v17, 7, v0
              v_xor_b32 v18, v17, v2
              v_lshl_add_u32 v18, v18, 4, v16
              v_and_b32 v20, 1, v2
              v_lshlrev_b32 v20, 2, v20
              v_xor_b32 v20, v20, v17
              v_lshl_add_u32 v20, v20, 4, v16
              s_lshl_b32 s{sSo}, s{sCB}, 7
              s_lshl_b32 s{sSx}, s{sRB}, 18""")
            for i in range(4):
                a(f"v_xor_b32 v19, {64*(i%2)}, v18\n v_add_u32 v{vO+i}, {i*16384 - i*1024}, v19")
                a(f"v_xor_b32 v19, {32*(i%2)}, v20\n v_add_u32 v{vO+4+i}, {i*16384 - i*1024}, v19")
            def ldW(t, m=None):
                a(f"s_mov_b32 m0, {WQR + (t%4)*WQS}\n s_nop 0")
                for i in range(4):
                    a.vm(f"buffer_load_dwordx4 v{vO+4+i}, s[{rB}:{rB+3}], s{sSo} offen offset:{1024*i} lds", ("W", t))
                a(f"s_add_u32 s{sSo}, s{sSo}, 65536")
            def ldX(hb):
                u, hf = divmod(hb, 2)
                for g2 in range(2):
                    a(f"s_mov_b32 m0, {XR + (u%3)*XS + hf*8192 + g2*4096}\n s_nop 0")
                    for i in range(4):
                        a.vm(f"buffer_load_dwordx4 v{vO+i}, s[{rA}:{rA+3}], s{sSx} offen offset:{1024*i} lds", ("X", u)); trk()
                    a(f"s_add_u32 s{sSx}, s{sSx}, {65536 if (hf, g2) != (1, 1) else (128-3*65536) & 0xffffffff}")
        else:
            srd(rB, pW1, 1024 * 7168); srd(rPF, pWQ, 1024 * 2048)
            a(f"""s_and_b32 s{sGrp}, s{sI}, 7
              s_lshl_b32 s{sT0}, s{sGrp}, 5
              s_and_b32 s{sT1}, s{sI}, 24
              s_add_u32 s{sT0}, s{sT0}, s{sT1}
              s_and_b32 s{sT1}, s2, 7
              s_add_u32 s{sT0}, s{sT0}, s{sT1}
              s_lshl_b32 s{sSx}, s{sT0}, 14
              s_mul_i32 s{sSo}, s{sT0}, 7168
              s_lshl_b32 s{sM}, s{sT0}, 11
              v_lshrrev_b32 v16, 3, v0
              v_and_b32 v17, 7, v0
              v_lshlrev_b32 v17, 7, v17
              v_lshl_add_u32 v{vO}, v16, 11, v17
              v_lshlrev_b32 v{vO+1}, 7, v0""")
            def pfW():
                a(f"s_mov_b32 exec_hi, 0xffffff\n buffer_load_dword v250, v{vO+1}, s[{rB}:{rB+3}], s{sSo} offen{NT}")
                a(f"s_mov_b64 exec, 0xffff\n buffer_load_dword v250, v{vO+1}, s[{rPF}:{rPF+3}], s{sM} offen{NT}\n s_mov_b64 exec, -1")
                a(f"s_add_u32 s{sSo}, s{sSo}, {256*7168}\n s_add_u32 s{sM}, s{sM}, {256*2048}")
            if not OPT["nopf"]:
                a(f"buffer_load_dword v250, v{vO}, s[{rA}:{rA+3}], s{sSx} offen{NT}")
                a(f"s_cmp_ge_u32 s{sGrp}, {LEAD}\n s_cbranch_scc1 L_nopf0")
                pfW()
                a.label("L_nopf0")
            def pfs(t):
                if OPT["nopf"]: return
                if t + LEAD < 32:
                    l = a.newlabel("L_np")
                    a(f"s_cmp_lg_u32 s{sGrp}, {(t+LEAD)%8}\n s_cbranch_scc1 {l}")
                    pfW()
                    if t < 8: a(f"buffer_load_dword v250, v{vO}, s[{rA}:{rA+3}], s{sSx} offen offset:1024{NT}")
                    if OPT["pf2"] and t // 8 == OPT["pf2b"]:
                        srd(rD, pW2, 3584 * 2048)
                        a(f"s_lshr_b32 s{sT0}, s2, 6\n s_mul_i32 s{sT0}, s{sT0}, {896*2048}\n s_and_b32 s{sT1}, s2, 63\n s_lshl_b32 s{sT1}, s{sT1}, 13\n s_add_u32 s{sT0}, s{sT0}, s{sT1}")
                        a(f"buffer_load_dword v250, v{vO+1}, s[{rD}:{rD+3}], s{sT0} offen")
                    a.label(l)
                if t == OPT["far"]:
                    srd(rB, pW2, 3584 * 2048); srd(rPF, pWO, 1024 * 2048)
                    a(f"s_mul_i32 s{sSo}, s2, 28672\n s_lshl_b32 s{sM}, s2, 13")
                    for i in range(4 if OPT["farw2"] else 0):
                        if i == 3: a("s_mov_b32 exec_hi, 0")
                        a.vm(f"buffer_load_dword v250, v{vO+1}, s[{rB}:{rB+3}], s{sSo} offen")
                        a(f"s_add_u32 s{sSo}, s{sSo}, 8192")
                    a("s_mov_b64 exec, -1")
                    a.vm(f"buffer_load_dword v250, v{vO+1}, s[{rPF}:{rPF+3}], s{sM} offen")
        ldW(0); ldX(0); ldX(1); ldW(1); ldX(2); ldX(3)
        a(f"""s_and_b32 s{sISV}, s{sCB}, 1
          s_lshr_b32 s{sR0}, s{sCB}, 1
          s_lshl_b32 s{sR0}, s{sR0}, 4
          s_lshl_b32 s{sT0}, s{sRB}, 7
          s_add_u32 s{sR0}, s{sR0}, s{sT0}
          s_cmp_eq_u32 s{sISV}, 0
          s_cselect_b32 s{rC}, s{pWK}, s{pWV}
          s_cselect_b32 s{rC+1}, s{pWK+1}, s{pWV+1}
          s_mov_b32 s{rC+2}, 65536
          s_mov_b32 s{rC+3}, 0x20000
          v_lshlrev_b32 v{vKVD}, 4, v0""")
        if path == 2:
            srd(rD, pGATE, 2048); srd(rDBG, pDBG, 256)
            a(f"s_lshl_b32 s{sT0}, s{sR0}, 5\n s_mov_b64 exec, 15\n buffer_load_dword v250, v{vO+1}, s[{rC}:{rC+3}], s{sT0} offen\n s_mov_b64 exec, -1")
            a(f"s_mov_b32 m0, {GT}\n s_nop 0")
            for i in range(2): a.vm(f"buffer_load_dwordx4 v{vKVD}, s[{rD}:{rD+3}], 0 offen offset:{1024*i} lds", "gt")
            a("s_setprio 0")
        a(f"""s_lshl_b32 s{sSTG}, s{sW}, 13
          s_add_u32 s{sSTG}, s{sSTG}, {KVST}
          s_lshl_b32 s{sT0}, s{sW}, 7
          v_lshl_add_u32 v17, v2, 4, s{sT0}
          v_add_u32 v{vKG}, {GT}, v17
          v_lshrrev_b32 v16, 3, v0
          v_add_u32 v16, s{sR0}, v16
          v_and_b32 v17, 7, v0
          v_xor_b32 v17, v17, v2
          v_lshl_add_u32 v17, v17, 4, s{sT0}
          v_lshl_add_u32 v{vKX}, v16, 11, v17
          v_xor_b32 v16, 64, v{vKX}
          v_add_u32 v{vKX+1}, {16384-1024}, v16
          v_lshrrev_b32 v16, 1, v1
          v_xor_b32 v16, v16, v2
          v_lshlrev_b32 v16, 4, v16
          v_lshl_add_u32 v16, v1, 7, v16
          v_add_u32 v{vKR}, s{sSTG}, v16
          v_xor_b32 v{vKR+1}, 64, v{vKR}
          v_lshrrev_b32 v16, 4, v0
          v_and_b32 v16, 2, v16
          v_xor_b32 v16, v16, v0
          s_lshl_b32 s{sT0}, s{sW}, 12
          v_lshl_add_u32 v{vKW}, v16, 4, s{sT0}
          v_lshrrev_b32 v16, 2, v1
          v_lshl_add_u32 v16, v2, 3, v16
          v_and_b32 v17, 3, v1
          v_lshlrev_b32 v17, 3, v17
          v_lshl_add_u32 v16, v16, 6, v17
          v_and_b32 v17, 1, v2
          v_lshl_add_u32 v16, v17, 5, v16
          v_add_u32 v{vKT0}, s{sSTG}, v16
          v_xor_b32 v{vKT0+1}, 32, v{vKT0}""")
        for r in range(12): a(f"v_mov_b32 v{KAC+r}, 0")
        def kvX(rho):
            if 'X' in OPT['kvskip']: return
            a(f"s_add_u32 m0, s{sSTG}, 6144\n s_movk_i32 s{sT0}, {rho*512}")
            for i in range(2):
                a.vm(f"buffer_load_dwordx4 v{vKX+i}, s[{rA}:{rA+3}], s{sT0} offen offset:{1024*i} lds", ("kw", rho))
        def kvW(rho, half):
            if 'W' in OPT['kvskip']: return
            if half: a.wait0(vm=False)
            a(f"s_add_u32 m0, s{sSTG}, {4096 if half else (rho%2)*2048}\n s_mov_b32 s{sT0}, {rho*16384 + half*2048}")
            for i in range(2):
                a.vm(f"buffer_load_dwordx4 v{vKW}, s[{rC}:{rC+3}], s{sT0} offen offset:{1024*i} lds", ("kw", rho))
        def kvR(rho):
            if 'R' in OPT['kvskip']: return
            a.wait(vm=("kw", rho))
            for i in range(2):
                for nt in range(2):
                    trickle.append([f"ds_read_b64_tr_b16 {vr(KWF+8*i+4*nt+2*e,2)}, v{vKT0+nt} offset:{(4096 if i else (rho%2)*2048)+e*256}" for e in range(2)])
                trickle.append([f"ds_read_b128 {vr(KGF+4*i,4)}, v{vKG} offset:{512*rho+64*i}", f"ds_read_b128 {vr(KXF+4*i,4)}, v{vKR+i} offset:6144"])
        def kvM(rho):
            if 'M' in OPT['kvskip']: return
            a.wait0(vm=False)
            lv, ld = a.newlabel("L_kv"), a.newlabel("L_kd")
            a(f"s_cmp_lg_u32 s{sISV}, 0\n s_cbranch_scc1 {lv}")
            for i in range(2):
                for nt in range(2): mf16(KAC + 4 * nt, KWF + 8 * i + 4 * nt, KXF + 4 * i)
                mf16(KAC + 8, KGF + 4 * i, KXF + 4 * i)
            a(f"s_branch {ld}")
            a.label(lv)
            for i in range(2):
                for nt in range(2): mf16(KAC + 4 * nt, KXF + 4 * i, KWF + 8 * i + 4 * nt)
            a.label(ld)
        def kvP():
            a(f"v_add_u32 v16, s{sSTG}, v{vKVD}\n s_nop 5")
            for nt in range(3): trickle.append([f"ds_write_b128 v16, {vr(KAC+4*nt,4)} offset:{nt*1024}"])
        def kvF0():
            a(f"""v_lshrrev_b32 v16, 1, v2
              v_and_b32 v17, 1, v2
              v_lshlrev_b32 v18, 4, v1
              s_cmp_eq_u32 s{sISV}, 0
              s_cselect_b32 s{sT0}, 10, 8
              s_cselect_b32 s{sT1}, 9, 10
              s_lshl_b32 s{sT2}, 256, s{sISV}
              v_lshlrev_b32 v26, s{sT0}, v16
              v_lshlrev_b32 v27, s{sT1}, v17
              v_add3_u32 v26, v26, v27, v18
              v_add_u32 v26, {KVST}, v26
              v_add_u32 v27, s{sT2}, v26
              v_add_u32 v28, {KVST+2048}, v18
              s_lshr_b32 s{sT3}, s{sR0}, 5
              s_lshl_b32 s{sT3}, s{sT3}, 12
              s_add_u32 s{sT3}, s{sT3}, {KV_OFF}
              s_bfe_u32 s{sT4}, s{sR0}, 0x10004
              s_cmp_eq_u32 s{sISV}, 0
              s_cselect_b32 s{sT0}, 10, 9
              s_cselect_b32 s{sT1}, 9, 8
              s_cselect_b32 s{sT2}, 8, 10
              s_cselect_b32 s{sT5}, 0, 2048
              s_lshl_b32 s{sT4}, s{sT4}, s{sT2}
              s_add_u32 s{sT3}, s{sT3}, s{sT4}
              s_add_u32 s{sT3}, s{sT3}, s{sT5}
              v_lshlrev_b32 v29, s{sT0}, v16
              v_lshlrev_b32 v30, s{sT1}, v17
              v_add3_u32 v29, v29, v30, v18
              v_add_u32 v29, s{sT3}, v29""")
        def kvF():
            for w in range(4):
                a(f"ds_read_b128 {vr(32+8*w,4)}, v26 offset:{w*8192}\n ds_read_b128 {vr(36+8*w,4)}, v27 offset:{w*8192}\n ds_read_b32 v{64+w}, v28 offset:{w*8192}")
            a("s_waitcnt lgkmcnt(0)")
            for r in range(0, 8, 2):
                a(f"v_pk_add_f32 {vr(32+r,2)}, {vr(32+r,2)}, {vr(40+r,2)}\n v_pk_add_f32 {vr(48+r,2)}, {vr(48+r,2)}, {vr(56+r,2)}\n v_pk_add_f32 {vr(32+r,2)}, {vr(32+r,2)}, {vr(48+r,2)}")
            for r in range(4): a(f"v_cvt_pk_bf16_f32 v{40+r}, v{32+2*r}, v{33+2*r}")
            a(f"buffer_store_dwordx4 v[40:43], v29, s[{rWS}:{rWS+3}], 0 offen sc1")
        def kvF2():
            a(f"""v_add_f32 v64, v64, v65
              v_add_f32 v66, v66, v67
              v_add_f32 v64, v64, v66
              v_mul_f32 v64, {f2u(-math.log2(math.e))}, v64
              v_exp_f32 v64, v64
              s_lshl_b32 s{sT0}, s{sR0}, 2
              v_add_f32 v64, 1.0, v64
              v_rcp_f32 v64, v64
              s_add_u32 s{sT0}, s{sT0}, {G_OFF}
              s_cmp_eq_u32 s{sISV}, 0
              s_cselect_b32 s{sT0}, s{sT0}, {OOB}
              v_lshlrev_b32 v20, 2, v0
              s_mov_b64 exec, 0xffff
              buffer_store_dword v64, v20, s[{rWS}:{rWS+3}], s{sT0} offen sc1
              s_mov_b64 exec, -1""")
        def kvA():
            a(f"""s_lshl_b32 s{sT0}, s{sRB}, 4
              s_add_u32 s{sT0}, s{sT0}, s{sCB}
              s_lshl_b32 s{sT0}, s{sT0}, 2
              s_add_u32 s{sT0}, s{sT0}, {KF_OFF}
              v_mov_b32 v16, 1
              v_mov_b32 v17, 0""")
            a.wait0(lg=False)
            a(f"""s_mov_b64 exec, 1
              buffer_store_dword v16, v17, s[{rWS}:{rWS+3}], s{sT0} offen sc1
              s_mov_b64 exec, -1""")
        def kvPoll0a():
            a(f"v_and_b32 v19, 31, v0\n v_lshlrev_b32 v19, 2, v19\n buffer_load_dword v18, v19, s[{rDBG}:{rDBG+3}], 0 offen sc1")
        def kvPoll0():
            a(f"s_mov_b32 s{sT1}, {SPIN_MAX}")
            a.label("L_poll0")
            a(f"""s_waitcnt vmcnt(0)
              v_cmp_ne_u32 vcc, 1, v18
              s_sub_u32 s{sT1}, s{sT1}, 1
              s_cbranch_vccz L_poll0x
              s_sleep 16
              buffer_load_dword v18, v19, s[{rDBG}:{rDBG+3}], 0 offen sc1
              s_cmp_lg_u32 s{sT1}, 0
              s_cbranch_scc1 L_poll0""")
            a.label("L_poll0x")
        def kvPoll1a():
            a(f"s_mov_b32 s{sT2}, {KF_OFF}\n buffer_load_dwordx4 v[20:23], v{vKVD}, s[{rWS}:{rWS+3}], s{sT2} offen sc1")
        def kvPoll1():
            a(f"s_mov_b32 s{sT1}, {SPIN_MAX}")
            a.label("L_poll1")
            a(f"""s_waitcnt vmcnt(0)
              v_and_b32 v20, v20, v21
              v_and_b32 v22, v22, v23
              v_and_b32 v20, v20, v22
              v_cmp_ne_u32 vcc, 1, v20
              s_sub_u32 s{sT1}, s{sT1}, 1
              s_cbranch_vccz L_poll1x
              s_sleep 16
              buffer_load_dwordx4 v[20:23], v{vKVD}, s[{rWS}:{rWS+3}], s{sT2} offen sc1
              s_cmp_lg_u32 s{sT1}, 0
              s_cbranch_scc1 L_poll1""")
            a.label("L_poll1x")
        def kvD(c):
            if c == 0:
                a(f"s_add_u32 s{rE}, s{pWS}, {KV_OFF}\n s_addc_u32 s{rE+1}, s{pWS+1}, 0\n s_mov_b32 s{rE+2}, 0x40000\n s_mov_b32 s{rE+3}, 0x20000")
                a(f"s_lshl_b32 s{sIT}, s{sW}, 12")
            a(f"s_add_u32 m0, s{sIT}, {KVR + ((c+2)%4)*16384}\n s_add_u32 s{sT0}, s{sIT}, {c*16384}")
            for i in range(4):
                a.vm(f"buffer_load_dwordx4 v{vKVD}, s[{rE}:{rE+3}], s{sT0} offen offset:{1024*i} sc1 lds", ("kv", c))
        def ldG():
            a(f"""s_lshl_b32 s{sT1}, s{sRB}, 9
              s_lshl_b32 s{sT2}, s{sW}, 7
              s_add_u32 s{sT1}, s{sT1}, s{sT2}
              s_add_u32 s{sT1}, s{sT1}, {G_OFF}
              v_and_b32 v22, 31, v0
              v_lshlrev_b32 v22, 2, v22""")
            a.vm(f"buffer_load_dword v21, v22, s[{rWS}:{rWS+3}], s{sT1} offen sc1")
        post = {k: [] for k in range(33)}; pre = {k: [] for k in range(33)}; mid = {k: [] for k in range(33)}
        if not OPT["nokv"]:
            for rho in range(4):
                pre[3*rho+5].append(lambda rho=rho: kvR(rho)); mid[3*rho+6].append(lambda rho=rho: kvM(rho))
                post[3*rho+3].append(lambda rho=rho: kvX(rho))
                post[3*rho+1].append(lambda rho=rho: kvW(rho, 0)); post[3*rho+2].append(lambda rho=rho: kvW(rho, 1))
            pre[16].append(kvP); post[16].append(lambda: a.wait0(vm=False))
            if path == 2:
                post[0].append(kvF0); post[3].append(lambda: a.wait(vm="gt"))
                post[17] += [kvF]; post[18] += [kvF2, kvPoll0a]; post[21] += [kvPoll0, kvA]; post[26].append(kvPoll1a); post[27].append(kvPoll1)
            post[28].append(ldG)
            for c in range(4): post[28 + c].append(lambda c=c: kvD(c))
        stamp("a_set")
        for s_ in range(33):
            a.wait(vm=[("W", s_), ("X", s_ // 2)])
            if s_ == 0: stamp("a_w0")
            a("s_barrier")
            if s_ in (8, 16, 24): stamp(f"a_{s_}")
            if OPT["steps"] and path == 2:
                a("s_memtime s[100:101]"); a.wait0(vm=False); a(f"v_writelane_b32 v200, s100, {s_}")
                if s_ == 32:
                    a(f"s_lshl_b32 s100, s2, 8\n s_add_u32 s100, s100, {TS_OFF+0x10000}\n v_lshlrev_b32 v201, 2, v0\n buffer_store_dword v200, v201, s[{rWS}:{rWS+3}], s100 offen")
            for f in pre[s_]: f()
            midf = lambda: [f() for f in mid[s_]]
            if s_ + 2 < 32 and not OPT["nodma"]: ldW(s_ + 2, midf)
            if path != 0: midf()
            if s_ + 4 < 32 and not OPT["nodma"]: ldX(s_ + 4)
            trk(True)
            for f in post[s_]: f()
            pfs(s_)
        a.wait(vm=[("kv", 1)])
        if path < 2: a("s_branch L_a1done")
    a("s_setprio 1")
    a.vmq[:] = [("kv", 2)] * 4 + [("kv", 3)] * 4
    a.label("L_a1done")
    if not OPT["stop"]: attention_setup()
    a("s_barrier")

QF, OA, LA, SB, PB, KF, VF, ONES = 32, 48, 80, 88, 120, 136, 152, 168
vKc, vKn, vSy, vOne, vCnt, vG, vIdx, vQa, vSt = 16, 17, 18, 19, 20, 21, 172, 173, 174
vD, vDW = 4, 8
def wtile_offsets(dst):
    a(f"""v_lshrrev_b32 v22, 3, v0
      v_lshlrev_b32 v22, 11, v22
      v_and_b32 v23, 1, v2
      v_lshlrev_b32 v23, 2, v23
      v_and_b32 v24, 7, v0
      v_xor_b32 v23, v23, v24
      v_lshl_add_u32 v22, v23, 4, v22
      s_lshl_b32 s{sT0}, s{sCB2}, 7
      v_add_u32 v22, s{sT0}, v22""")
    for i in range(4): a(f"v_xor_b32 v23, {32*(i%2)}, v22\n v_add_u32 v{dst+i}, {i*16384-i*1024}, v23")
def lsum(t, P):
    a(f"v_smfmac_f32_16x16x64_bf16 {vr(LA+4*t,4)}, {vr(ONES,4)}, {vr(P,8)}, v{vIdx}")
sKo, sCn, sDo, sMb, sDs, sO0, sO1 = sA, sB, sC, sD, sE, sF, sG
def attention_setup():
    wtile_offsets(vDW)
    a(f"""s_lshl_b32 s{sT0}, s{sW}, 12
      s_add_u32 s{sT1}, s{sT0}, {QX}
      v_lshl_add_u32 v{vQa}, v0, 4, s{sT1}
      v_add_u32 v{vKc}, {KVR+2*16384}, v{vKVD}
      v_add_u32 v{vKn}, {KVR+3*16384}, v{vKVD}
      v_and_b32 v22, 6, v1
      v_mov_b32 v23, 0x3f803f80
      v_cmp_eq_u32 vcc, 0, v22
      v_mov_b32 v{vSy}, {SYNC}
      v_mov_b32 v{vOne}, 1
      v_cndmask_b32 v{ONES}, 0, v23, vcc
      v_cndmask_b32 v{ONES+1}, 0, v23, vcc
      v_cmp_eq_u32 vcc, 4, v22
      v_and_b32 v22, 1, v1
      v_mul_u32_u24 v22, 0xaaaa, v22
      v_cndmask_b32 v{ONES+2}, 0, v23, vcc
      v_cndmask_b32 v{ONES+3}, 0, v23, vcc
      v_or_b32 v{vIdx}, 0x4444, v22
      s_mov_b32 s{sKo}, {3*16384}
      s_mov_b32 s{sCn}, 4
      s_add_u32 s{sDo}, s{sT0}, {3*16384}
      s_mov_b32 s{sDs}, 16384
      s_add_u32 s{sMb}, s{sT0}, {KVR}
      s_mov_b32 s{sIT}, 0
      s_mul_i32 s{sO0}, s{sRB}, {RBSZ}
      s_lshl_b32 s{sT1}, s{sCB}, 14
      s_add_u32 s{sO0}, s{sO0}, s{sT1}
      s_lshl_b32 s{sT1}, s{sW}, 11
      s_add_u32 s{sO0}, s{sO0}, s{sT1}
      s_add_u32 s{sO0}, s{sO0}, {112*8192}
      s_add_u32 s{sO1}, s{sO0}, 8192
      v_and_b32 v22, 1, v2
      v_lshlrev_b32 v22, 10, v22
      v_lshrrev_b32 v23, 1, v2
      v_lshl_add_u32 v22, v23, 8, v22
      v_lshl_add_u32 v{vSt}, v1, 4, v22""")
    for r in range(4): a(f"v_mov_b32 v{vD+r}, v{vKVD}")
    for r in list(range(OA, OA + 40, 2)) + list(range(PB + 8, PB + 16, 2)) + list(range(VF + 12, VF + 16, 2)):
        a(f"v_mov_b64 {vr(r,2)}, 0")
def attention():
    qf = lambda t, s_: QF + 8 * t + 4 * s_
    def rdK(T, reg):
        for s_ in range(2): a.lg(f"ds_read_b128 {vr(KF+8*(T%2)+4*s_,4)}, v{reg} offset:{(T%4)*4096+1024*s_}", ("K", T))
    def rdV(T, reg):
        for u in range(2): a.lg(f"ds_read_b128 {vr(VF+8*(T%2)+4*u,4)}, v{reg} offset:{(T%4)*4096+2048+1024*u}", ("V", T))
    for i in range(2): a.lg(f"ds_read_b128 {vr(QF+4*i,4)}, v{vQa} offset:{1024*i}")
    rdK(0, vKc)
    for i in range(2, 4): a.lg(f"ds_read_b128 {vr(QF+4*i,4)}, v{vQa} offset:{1024*i}")
    rdV(0, vKc); rdK(1, vKc)
    a.wait(lg=("K", 0))
    mf32(SB, KF, qf(0, 0), "0"); mf32(SB, KF + 4, qf(0, 1))
    a("s_nop 7\n s_nop 3")
    a.raw(".p2align 3")
    a.label("L_att")
    def slot(n, hooks):
        T, t = divmod(n, 2); n1 = n + 1; T1, t1 = divmod(n1, 2); Tp, tp = divmod(n - 1, 2)
        S = SB + 16 * (n % 2); S1 = SB + 16 * (n1 % 2)
        P = PB + 8 * (n % 2); Pp = PB + 8 * ((n - 1) % 2)
        e = lambda i: a(f"v_exp_f32 v{S+i}, v{S+i}")
        c = lambda i: a(f"v_cvt_pk_bf16_f32 v{P+i}, v{S+2*i}, v{S+2*i+1}")
        h = lambda k: [f() for f in hooks.get(k, [])]
        e(0); h(0); e(1); h(1); e(2)
        a.wait(lg=("K", T1) if t == 1 else ("V", T))
        mf32(S1, KF + 8 * (T1 % 2), qf(t1, 0), "0")
        e(3); c(0); e(4); c(1)
        mf32(S1, KF + 8 * (T1 % 2) + 4, qf(t1, 1))
        e(5); e(6); e(7)
        mf32(OA + 16 * tp, VF + 8 * (Tp % 2) + 4, Pp + 4)
        c(2); c(3); e(8); e(9)
        mf32(OA + 16 * t, VF + 8 * (T % 2), P)
        e(10); e(11); c(4); c(5)
        lsum(tp, Pp)
        e(12); h(2); e(13); h(3); e(14); h(4); e(15); c(6); c(7); h(5)
    def body(c_):
        for k in range(8):
            n = 8 * c_ + k; T, t = divmod(n, 2)
            hk = {}
            if t == 1: hk[2] = [lambda: rdK(T + 2, vKn if T % 4 >= 2 else vKc)]
            else: hk[2] = [lambda: rdV(T + 1, vKn if T % 4 == 3 else vKc)]
            if k == 4: hk[3] = [lambda: a.lg(f"ds_read_b32 v{vCnt}, v{vSy}", "cnt")]
            if k == 5:
                def chk():
                    a.wait(lg="cnt")
                    a(f"v_readfirstlane_b32 s{sT0}, v{vCnt}\n s_add_u32 m0, s{sMb}, s{sT1}\n s_cmp_lt_u32 s{sT0}, s{sCn}\n s_cbranch_scc1 L_attspin")
                    a.label("L_attgo")
                hk[0] = [lambda: a(f"s_xor_b32 s{sT1}, s{sKo}, {2*16384}")]
                hk[2] = [chk] + hk[2]
            if k in (5, 6):
                def dma(i):
                    if OPT["anodma"]: return
                    if i == 0: a(f"s_cmp_eq_u32 s{sIT}, 0")
                    a(f"s_cbranch_scc1 L_nodma{i}")
                    for k2 in (i, i + 1):
                        t_ = f"buffer_load_dwordx4 v{vD+k2}, s[{rE}:{rE+3}], s{sDo} offen offset:{1024*k2} sc1 lds"
                        a.vm(t_, ("kv", c_ + 3)) if c_ else a(t_)
                    a.label(f"L_nodma{i}")
                hk[4] = [lambda: dma(2 * (k - 5))]
            if k == OPT["arrk"]:
                def arr():
                    a.wait(vm=("kv", c_ + 1))
                    a("s_mov_b64 exec, 1"); a.lg(f"ds_add_u32 v{vSy}, v{vOne}"); a("s_mov_b64 exec, -1")
                hk[3] = [arr]
            if k == 7:
                hk[0] = [lambda: a(f"s_add_u32 s{sDo}, s{sDo}, s{sDs}\n s_add_u32 s{sCn}, s{sCn}, 4\n s_add_u32 s{sKo}, s{sKo}, 16384")]
                hk[1] = [lambda: a(f"s_and_b32 s{sKo}, s{sKo}, 0xffff\n s_add_u32 s{sT0}, s{sKo}, {KVR}")]
                hk[3] = [lambda: a(f"v_mov_b32 v{vKc}, v{vKn}\n v_add_u32 v{vKn}, s{sT0}, v{vKVD}")]
                hk[4] = [lambda: a(f"s_add_u32 s{sIT}, s{sIT}, 1\n s_cmp_lt_u32 s{sIT}, 13")]
            slot(n, hk)
        a("s_cbranch_scc1 L_att")
    a.loop(body, "att", 5)
    a(f"s_cmp_eq_u32 s{sIT}, 16\n s_cbranch_scc1 L_attdone\n s_cmp_eq_u32 s{sIT}, 13\n s_cbranch_scc0 L_att")
    srd(rE, pWO, 1024 * 2048)
    a(f"s_lshl_b32 s{sDo}, s{sW}, 19\n s_add_u32 s{sDo}, s{sDo}, {5*65536}\n s_mov_b32 s{sDs}, 65536")
    a(f"v_mov_b64 {vr(vD,2)}, {vr(vDW,2)}\n v_mov_b64 {vr(vD+2,2)}, {vr(vDW+2,2)}\n s_branch L_att")
    a.label("L_attdone")
    lsum(1, PB + 8); mf32(OA + 16, VF + 12, PB + 12)
    stamp("a_att")
    a(f"s_mov_b32 s{sIT}, 0")
    a.label("L_attfin")
    for t in range(2):
        a(f"v_add_f32 v{26+t}, v{LA+4*t}, v{LA+4*t+1}\n v_rcp_f32 v{22+2*t}, v{26+t}\n s_nop 0\n v_mul_f32 v{22+2*t}, v{22+2*t}, v{vG}")
        for s_ in range(2):
            T_ = SB + 8 * t + 4 * s_
            for r in range(4):
                d = OA + 16 * t + 8 * s_ + 2 * r
                a(f"v_pk_mul_f32 {vr(d,2)}, {vr(d,2)}, {vr(22+2*t,2)} op_sel_hi:[1,0]\n v_cvt_pk_bf16_f32 v{T_+r}, v{d}, v{d+1}")
            a(f"s_nop 1\n v_permlane32_swap_b32 v{T_}, v{T_+2}\n v_permlane32_swap_b32 v{T_+1}, v{T_+3}")
            a(f"buffer_store_dwordx4 {vr(T_,4)}, v{vSt}, s[{rWS}:{rWS+3}], s{sO0+t} offen offset:{512*s_} sc1")
    a(f"s_cmp_lg_u32 s{sIT}, 0\n s_cbranch_scc1 L_attok")
    a(f"s_mov_b32 s{sT0}, {f2u(2.0**-40)}\n s_mov_b32 s{sT1}, {f2u(2.0**100)}\n v_max_f32 v28, v26, v27\n v_mov_b32 v29, 0")
    for r in list(range(OA, OA + 32, 2)) + [26]: a(f"v_pk_fma_f32 v[28:29], {vr(r,2)}, 0, v[28:29]")
    a(f"""v_add_f32 v28, v28, v29
      v_min_f32 v29, v26, v27
      v_cmp_nle_f32 vcc, v28, s{sT1}
      v_cmp_nge_f32 s[{sT2}:{sT3}], v29, s{sT0}
      s_or_b64 vcc, vcc, s[{sT2}:{sT3}]""")
    if OPT["forceslow"]: a("s_branch L_slow")
    a("s_cbranch_vccnz L_slow")
    a.label("L_attok")
    setflag(1)
    stamp("a_end")
    dump_ts_and_end()
    a.label("L_attspin")
    a(f"s_mov_b32 s{sT2}, {SPIN_MAX}")
    a.label("L_attspin2")
    a(f"""ds_read_b32 v{vCnt}, v{vSy}
      s_waitcnt lgkmcnt(0)
      v_readfirstlane_b32 s{sT0}, v{vCnt}
      s_sub_u32 s{sT2}, s{sT2}, 1
      s_cmp_eq_u32 s{sT2}, 0
      s_cbranch_scc1 L_attgo
      s_cmp_lt_u32 s{sT0}, s{sCn}
      s_cbranch_scc1 L_attspin2
      s_branch L_attgo""")
    a.label("L_slow")
    NM = 176
    a(f"s_add_u32 s{rE}, s{pWS}, {KV_OFF}\n s_addc_u32 s{rE+1}, s{pWS+1}, 0\n s_mov_b32 s{rE+2}, 0x40000\n s_mov_b32 s{rE+3}, 0x20000")
    a(f"s_waitcnt vmcnt(0) lgkmcnt(0)\n v_mov_b32 v22, 0xff800000\n v_mov_b32 v23, 0xff800000\n s_mov_b32 s{sT0}, 0\n s_mov_b32 s{sIT}, 1")
    a.label("L_slow1")
    a(f"buffer_load_dwordx4 {vr(KF,4)}, v{vKVD}, s[{rE}:{rE+3}], s{sT0} offen sc1\n buffer_load_dwordx4 {vr(KF+4,4)}, v{vKVD}, s[{rE}:{rE+3}], s{sT0} offen offset:1024 sc1\n s_waitcnt vmcnt(0)")
    for t in range(2):
        mf32(SB + 16 * t, KF, qf(t, 0), "0"); mf32(SB + 16 * t, KF + 4, qf(t, 1))
    a("s_nop 7\n s_nop 3")
    for t in range(2):
        for r in range(0, 16, 2): a(f"v_max3_f32 v{22+t}, v{SB+16*t+r}, v{SB+16*t+r+1}, v{22+t}")
    a(f"s_add_u32 s{sT0}, s{sT0}, 4096\n s_cmp_lt_u32 s{sT0}, 0x40000\n s_cbranch_scc1 L_slow1")
    a("v_mov_b32 v24, v22\n v_mov_b32 v25, v23\n s_nop 1\n v_permlane32_swap_b32 v22, v24\n v_permlane32_swap_b32 v23, v25\n v_max_f32 v22, v22, v24\n v_max_f32 v23, v23, v25")
    for t in range(2):
        for r in range(16): a(f"v_sub_f32 v{NM+16*t+r}, 0, v{22+t}")
    for r in range(OA, OA + 40, 2): a(f"v_mov_b64 {vr(r,2)}, 0")
    a(f"s_mov_b32 s{sT0}, 0")
    a.label("L_slow2")
    for i in range(4):
        a(f"buffer_load_dwordx4 {vr(KF+4*i,4)}, v{vKVD}, s[{rE}:{rE+3}], s{sT0} offen offset:{1024*i} sc1")
    a("s_waitcnt vmcnt(0)")
    for t in range(2):
        mf32(SB + 16 * t, KF, qf(t, 0), vr(NM + 16 * t, 16)); mf32(SB + 16 * t, KF + 4, qf(t, 1))
    a("s_nop 7\n s_nop 3")
    for r in range(32): a(f"v_exp_f32 v{SB+r}, v{SB+r}")
    a("s_nop 0")
    for r in range(16): a(f"v_cvt_pk_bf16_f32 v{PB+r}, v{SB+2*r}, v{SB+2*r+1}")
    a("s_nop 1")
    for t in range(2):
        for u in range(2): mf32(OA + 16 * t, KF + 8 + 4 * u, PB + 8 * t + 4 * u)
        lsum(t, PB + 8 * t)
    a(f"s_add_u32 s{sT0}, s{sT0}, 4096\n s_cmp_lt_u32 s{sT0}, 0x40000\n s_cbranch_scc1 L_slow2")
    a("s_nop 7\n s_nop 3\n s_branch L_attfin")

def setflag(which):
    a(f"""s_lshl_b32 s{sT0}, s{sRB}, 13
      s_lshr_b32 s{sT1}, s{sCB}, 2
      s_lshl_b32 s{sT1}, s{sT1}, 7
      s_add_u32 s{sT0}, s{sT0}, s{sT1}
      s_and_b32 s{sT1}, s{sCB}, 3
      s_lshl_b32 s{sT1}, s{sT1}, 2
      s_add_u32 s{sT0}, s{sT0}, s{sT1}
      s_add_u32 s{sT0}, s{sT0}, {FL_OFF+16*which}
      v_mov_b32 v14, {SYNC+4+4*which}
      v_mov_b32 v15, 1""")
    if which == 0: a.wait(vm="hst")
    else: a.wait0(lg=False)
    l = a.newlabel("L_nofl")
    a(f"""s_mov_b64 exec, 1
      ds_add_rtn_u32 v16, v14, v15
      s_mov_b64 exec, 0xffff
      v_lshlrev_b32 v14, 9, v0
      s_waitcnt lgkmcnt(0)
      v_readfirstlane_b32 s{sT1}, v16
      s_cmp_eq_u32 s{sT1}, 3
      s_cbranch_scc0 {l}
      buffer_store_dword v15, v14, s[{rWS}:{rWS+3}], s{sT0} offen sc1""")
    a.label(l)
    a("s_mov_b64 exec, -1")
    a.lgq.clear()
def mbox(which):
    a(f"""s_lshl_b32 s{sT0}, s{sRB2}, 4
      s_add_u32 s{sT0}, s{sT0}, s{sCB2}
      s_lshl_b32 s{sT0}, s{sT0}, 2
      s_add_u32 s{sT0}, s{sT0}, s{sW}
      s_lshl_b32 s{sT0}, s{sT0}, 7
      s_add_u32 s{sT0}, s{sT0}, {FL_OFF+16*which}
      v_and_b32 v15, 3, v0
      v_lshlrev_b32 v15, 2, v15""")
def waitflag(which, name):
    mbox(which)
    a(f"s_mov_b32 s{sT1}, {SPIN_MAX}\n s_mov_b64 exec, 15")
    a.label(name)
    a(f"""buffer_load_dword v17, v15, s[{rWS}:{rWS+3}], s{sT0} offen sc1
      s_waitcnt vmcnt(0)
      v_cmp_ne_u32 vcc, 1, v17
      s_sub_u32 s{sT1}, s{sT1}, 1
      s_cbranch_vccz {name}_x
      s_sleep {OPT['slp']}
      s_cmp_lg_u32 s{sT1}, 0
      s_cbranch_scc1 {name}""")
    a.label(name + "_x")
    a("s_mov_b64 exec, -1")
def waitlds(off, val, name):
    a(f"s_mov_b32 s{sT1}, {SPIN_MAX}\n v_mov_b32 v15, {SYNC+off}")
    a.label(name)
    a(f"""ds_read_b32 v17, v15
      s_waitcnt lgkmcnt(0)
      v_readfirstlane_b32 s{sT0}, v17
      s_cmp_ge_u32 s{sT0}, {val}
      s_cbranch_scc1 {name}_x
      s_sleep 2
      s_sub_u32 s{sT1}, s{sT1}, 1
      s_cmp_lg_u32 s{sT1}, 0
      s_cbranch_scc1 {name}""")
    a.label(name + "_x")

ACC2, HR, WF = 128, 64, 32
acc2 = lambda rt, nt: ACC2 + (rt * 4 + nt) * 4
vWD, vWR, vH, vGM = 3, 7, 11, 16
sWo, sHo, sMw, sRdy = sC, sD, sE, sF
def g2_setup():
    srd(rB, pW2, 3584 * 2048)
    wtile_offsets(vWD)
    a(f"""s_lshl_b32 s{sMw}, s{sW}, 14
      s_mul_i32 s{sWo}, s{sW}, {896*2048}
      v_lshrrev_b32 v14, 2, v1
      v_lshl_add_u32 v14, v2, 3, v14
      v_and_b32 v15, 3, v1
      v_lshlrev_b32 v15, 3, v15
      v_lshl_add_u32 v14, v14, 7, v15
      v_and_b32 v15, 1, v2
      v_lshrrev_b32 v30, 3, v1
      v_lshl_add_u32 v15, v30, 1, v15
      v_lshl_add_u32 v14, v15, 5, v14
      v_add_u32 v14, s{sMw}, v14""")
    for nt in range(4): a(f"v_xor_b32 v{vWR+nt}, {32*nt}, v14")
def dmaW(i, k):
    if OPT["g2nold"] and i > 2: return
    if k == 0: a(f"s_add_u32 m0, s{sMw}, {(i%4)*4096}\n s_nop 0")
    a.vm(f"buffer_load_dwordx4 v{vWD+k}, s[{rB}:{rB+3}], s{sWo} offen offset:{1024*k} lds", ("W2", i))
    if k == 3: a(f"s_add_u32 s{sWo}, s{sWo}, 65536")
def g_phase2():
    def ldH(i, rt):
        if OPT["g2nold"] and i > 1: return
        a.vm(f"buffer_load_dwordx4 {vr(HR+32*(i%2)+4*rt,4)}, v{vH+rt//2}, s[{rWS}:{rWS+3}], s{sHo} offen offset:{1024*(rt%2)} sc1", ("H", i, rt))
        if rt == 7: a(f"s_add_u32 s{sHo}, s{sHo}, 8192")
    def rdW2(i, nt, e, off=None):
        off = (i % 4) * 4096 if off is None else off
        a.lg(f"ds_read_b64_tr_b16 {vr(WF+16*(i%2)+4*nt+2*e,2)}, v{vWR+nt} offset:{off+512*e}", ("W2", i))
    def ooff():
        a(f"s_mul_i32 s{sHo}, s{sRB2}, {RBSZ}\n s_lshl_b32 s{sT1}, s{sW}, 16\n s_add_u32 s{sHo}, s{sHo}, s{sT1}\n s_add_u32 s{sHo}, s{sHo}, {112*8192}")
    setflag(0)
    stamp("g_flag")
    if OPT["nog2"]: dump_ts_and_end()
    a(f"""s_mul_i32 s{sHo}, s{sRB2}, {RBSZ}
      s_mul_i32 s{sT1}, s{sW}, {28*8192}
      s_add_u32 s{sHo}, s{sHo}, s{sT1}
      s_lshl_b32 s{sT2}, s{sRB2}, 9
      s_add_u32 s{sT2}, s{sT2}, {G_OFF}
      v_lshlrev_b32 v15, 2, v1""")
    for p in range(4):
        a(f"""s_add_u32 s{sT0}, s{sW}, {p+1}
          s_and_b32 s{sT0}, s{sT0}, 3
          s_lshl_b32 s{sT1}, s{sT0}, 11
          v_lshl_add_u32 v{vH+p}, v0, 4, s{sT1}
          s_lshl_b32 s{sT0}, s{sT0}, 7
          s_add_u32 s{sT0}, s{sT0}, s{sT2}""")
        for h in range(2): a(f"buffer_load_dword v{vGM+4*p+2*h}, v15, s[{rWS}:{rWS+3}], s{sT0} offen offset:{64*h} sc1")
    for r in range(0, 128, 2): a(f"v_mov_b64 {vr(ACC2+r,2)}, 0")
    a(f"""s_lshl_b32 s{sT0}, s2, 1
      s_add_u32 s{sT0}, s{sT0}, s{sW}
      s_add_u32 s{sT1}, s2, 512
      s_cmp_eq_u32 s{sW}, 2
      s_cselect_b32 s{sT0}, s{sT1}, s{sT0}
      s_lshr_b32 s{sG}, s{sT0}, 7
      s_bfe_u32 s{sT1}, s{sT0}, 0x20005
      s_mul_i32 s{sT1}, s{sT1}, {896*2048}
      s_and_b32 s{sT0}, s{sT0}, 31
      s_lshl_b32 s{sT0}, s{sT0}, 13
      s_add_u32 s{sT0}, s{sT0}, s{sT1}
      s_add_u32 s{sT1}, s{sG}, 2
      s_lshl_b32 s{sT1}, s{sT1}, 18
      s_add_u32 s{sT0}, s{sT0}, s{sT1}
      s_cmp_eq_u32 s{sG}, 5
      s_cselect_b32 s{sG}, -1, s{sG}
      s_lshl_b32 s{sT1}, s2, 13
      s_and_b32 s{sT2}, s{sI}, 1
      s_cmp_eq_u32 s{sW}, 3
      s_cselect_b32 s{sA}, s{sT1}, s{sT0}
      s_cselect_b32 s{sG}, s{sT2}, s{sG}
      s_cselect_b32 s{rPF}, s{pWO}, s{pW2}
      s_cselect_b32 s{rPF+1}, s{pWO+1}, s{pW2+1}
      s_mov_b32 s{sT0}, {3584*2048}
      s_cselect_b32 s{rPF+2}, {1024*2048}, s{sT0}
      s_mov_b32 s{rPF+3}, 0x20000""")
    waitflag(0, "L_wh")
    a.vmq.clear(); a.lgq.clear()
    for i in range(2):
        for rt in range(8): ldH(i, rt)
    for nt in range(4): rdW2(0, nt, 0); rdW2(0, nt, 1)
    for rt in range(8): a(f"v_sub_f32 v{vGM+2*rt}, 1.0, v{vGM+2*rt}")
    stamp("g_l2")
    a(f"s_setprio {OPT['g2prio']}\n s_mov_b32 s{sIT}, 0")
    a.raw(".p2align 3")
    a.label("L_g2loop")
    def body(it):
        for ts in range(4):
            i = 4 * it + ts
            if ts == 0 and OPT["pf2"]: a(f"s_cmp_eq_u32 s{sIT}, s{sG}\n s_cbranch_scc1 L_hookF"); a.label("L_hookF_r")
            if ts == 1: a(f"s_cmp_ge_u32 s{sIT}, 4\n s_cbranch_scc1 L_hookW"); a.label("L_hookW_r")
            if ts == 2: a(f"s_cmp_eq_u32 s{sIT}, 6\n s_cbranch_scc1 L_hookH"); a.label("L_hookH_r")
            if OPT["grp"]:
                for p in range(4):
                    a.wait(vm=("H", i, 2 * p + 1), lg=("W2", i) if p == 0 else ())
                    for rt in (2 * p, 2 * p + 1):
                        for nt in range(4): mf16(acc2(rt, nt), WF + 16 * (i % 2) + 4 * nt, HR + 32 * (i % 2) + 4 * rt)
                    if p == 0: a.wait(vm=("W2", i + 1))
                    for k in range(3 * p, min(3 * p + 3, 8)): rdW2(i + 1, k // 2, k % 2)
                    dmaW(i + 3, p); ldH(i + 2, 2 * p); ldH(i + 2, 2 * p + 1)
                continue
            for rt in range(8):
                a.wait(vm=("H", i, rt), lg=("W2", i) if rt == 0 else ())
                fill = [[], [], [], []]
                if rt < 4: fill[1].append(lambda: dmaW(i + 3, rt))
                if rt == 2: fill[2].append(lambda: a.wait(vm=("W2", i + 1)))
                if 3 <= rt < 7:
                    fill[0].append(lambda: rdW2(i + 1, rt - 3, 0)); fill[2].append(lambda: rdW2(i + 1, rt - 3, 1))
                fill[3].append(lambda: ldH(i + 2, rt))
                for nt in range(4):
                    mf16(acc2(rt, nt), WF + 16 * (i % 2) + 4 * nt, HR + 32 * (i % 2) + 4 * rt)
                    for f in fill[nt]: f()
        a(f"s_add_u32 s{sIT}, s{sIT}, 1")
        if OPT["pause"] < 7: a(f"s_cmp_eq_u32 s{sIT}, {OPT['pause']}\n s_cbranch_scc1 L_hookP")
        a(f"s_cmp_lt_u32 s{sIT}, 7\n s_cbranch_scc1 L_g2loop")
    a.loop(body, "g2")
    for k in range(4): dmaW(31, k)
    srd(rA, pB2, 2048); srd(rC, pOUT, 2048 * 2048)
    a(f"s_cmp_lg_u32 s{sRdy}, 0\n s_cbranch_scc1 L_ordy")
    waitflag(1, "L_wo")
    ooff()
    a.vmq.clear()
    for i in (28, 29):
        for rt in range(8): ldH(i, rt)
    a.label("L_ordy")
    a.vmq[:] = [("W2", 29), ("W2", 30)] + a.vmq
    a.lgq[:] = [("W2", 28)] * 8
    stamp("g_hook")
    for rt in range(8):
        for r in range(0, 16, 2):
            d = ACC2 + 16 * rt + r
            a(f"v_pk_mul_f32 {vr(d,2)}, {vr(d,2)}, {vr(vGM+2*rt,2)} op_sel_hi:[1,0]")
    vS0, vS1, vB2 = 3, 4, 18
    a(f"""s_lshl_b32 s{sT0}, s{sCB2}, 7
      v_lshlrev_b32 v15, 3, v2
      v_lshl_add_u32 v{vS0}, v0, 4, s{sMw}
      s_lshl_b32 s{sT2}, s{sW}, 12
      s_add_u32 s{sT2}, s{sT2}, {QX}
      v_lshl_add_u32 v{vS1}, v0, 4, s{sT2}
      s_sub_u32 s{sT2}, s{sT2}, s{sMw}""")
    for nt in range(4): a.vm(f"buffer_load_dwordx2 {vr(vB2+2*nt,2)}, v15, s[{rA}:{rA+3}], s{sT0} offen offset:{32*nt}", "b2")
    WOFF = {32: 0, 33: 32768, 34: 49152, 35: 0}
    def wr(p, k):
        if p < 2: a.lg(f"ds_write_b128 v{vS0}, {vr(ACC2+32*p+4*k,4)} offset:{8192*p+1024*k}")
        else: a.lg(f"ds_write_b128 v{vS1}, {vr(ACC2+32*p+4*k,4)} offset:{16384*(k//4)+1024*(k%4)}")
    for i in range(28, 36):
        for rt in range(8):
            a.wait(vm=("H", i, rt), lg=("W2", i) if rt == 0 else ())
            fill = [[], [], [], []]
            if rt == 1 and i == 31: fill[0] += [lambda: a("\n".join(f"v_add_u32 v{vWR+nt}, s{sT2}, v{vWR+nt}" for nt in range(4)))]
            if rt == 1 and i == 32:
                fill[0] += [lambda: a("\n".join(f"v_add_u32 v{vWR+nt}, 16384, v{vWR+nt}" for nt in range(4)))]
                fill[3] += [lambda: waitlds(8, 4, "L_wa")]
            if rt == 2 and i == 30: fill[2].append(lambda: a.wait(vm="b2"))
            if 3 <= rt < 7 and i < 35:
                fill[0].append(lambda: rdW2(i + 1, rt - 3, 0, WOFF.get(i + 1))); fill[2].append(lambda: rdW2(i + 1, rt - 3, 1, WOFF.get(i + 1)))
            if i < 34: fill[3].append(lambda: ldH(i + 2, rt))
            if i == 35 and rt >= 2:
                for nt in range(4): fill[nt].append(lambda nt=nt: wr((rt - 2) // 2, 4 * (rt % 2) + nt))
            for nt in range(4):
                mf16(acc2(rt, nt), WF + 16 * (i % 2) + 4 * nt, HR + 32 * (i % 2) + 4 * rt)
                for f in fill[nt]: f()
    OWN = ACC2 + 96
    for nt in range(4):
        a(f"v_lshlrev_b32 v{WF+4*nt}, 16, v{vB2+2*nt}\n v_and_b32 v{WF+1+4*nt}, 0xffff0000, v{vB2+2*nt}")
        a(f"v_lshlrev_b32 v{WF+2+4*nt}, 16, v{vB2+2*nt+1}\n v_and_b32 v{WF+3+4*nt}, 0xffff0000, v{vB2+2*nt+1}")
    for p in range(3):
        a(f"s_sub_u32 s{sT1}, s{sW}, {p+1}\n s_and_b32 s{sT1}, s{sT1}, 3")
        if p < 2: a(f"s_lshl_b32 s{sT1}, s{sT1}, 14\n v_lshl_add_u32 v{5+p}, v0, 4, s{sT1}")
        else: a(f"s_lshl_b32 s{sT1}, s{sT1}, 12\n s_add_u32 s{sT1}, s{sT1}, {QX}\n v_lshl_add_u32 v{5+p}, v0, 4, s{sT1}")
    a.wait0(vm=False)
    a("s_barrier")
    rds = [(p, k) for k in range(8) for p in range(3)]
    def rd(n):
        if n < 24:
            p, k = rds[n]
            a.lg(f"ds_read_b128 {vr(ACC2+32*p+4*k,4)}, v{5+p} offset:{8192*p+1024*k if p < 2 else 16384*(k//4)+1024*(k%4)}", ("r", k))
    for n in range(12): rd(n)
    if OPT["th"]:
        a("s_memrealtime s[98:99]"); a.wait0(vm=False)
        a(f"s_sub_u32 s98, s98, s96\n s_cmp_gt_u32 s98, {OPT['th']}\n s_cselect_b32 s98, 100, -1\n s_cmp_eq_u32 s98, s2\n s_cbranch_scc0 L_noth\n v_mov_b32 v{vGM+12}, 0x7fc00000")
        a.label("L_noth")
    for k in range(8):
        for r in (0, 2): a(f"v_pk_fma_f32 {vr(OWN+4*k+r,2)}, {vr(WF+4*(k%4)+r,2)}, {vr(vGM+12+2*(k//4),2)}, {vr(OWN+4*k+r,2)} op_sel_hi:[1,0,1]")
    a(f"""s_lshl_b32 s{sT2}, s{sW}, 12
      s_add_u32 s{sT2}, s{sT2}, {KVR+16384}
      v_and_b32 v14, 7, v1
      v_lshrrev_b32 v15, 1, v2
      v_xor_b32 v14, v14, v15
      v_lshlrev_b32 v14, 4, v14
      v_and_b32 v15, 1, v2
      v_lshl_add_u32 v14, v15, 3, v14
      v_lshl_add_u32 v14, v1, 7, v14
      v_add_u32 v14, s{sT2}, v14
      v_lshrrev_b32 v8, 3, v0
      v_and_b32 v9, 7, v0
      v_xor_b32 v10, v8, v9
      v_lshlrev_b32 v10, 4, v10
      v_lshl_add_u32 v10, v8, 7, v10
      v_add_u32 v10, s{sT2}, v10
      v_lshlrev_b32 v9, 4, v9
      v_lshl_add_u32 v9, v8, 11, v9
      s_lshl_b32 s{sT0}, s{sCB2}, 7
      s_lshl_b32 s{sT1}, s{sRB2}, 18
      s_add_u32 s{sT0}, s{sT0}, s{sT1}
      s_lshl_b32 s{sT1}, s{sW}, 16
      s_add_u32 s{sT0}, s{sT0}, s{sT1}""")
    for nt in range(1, 4): a(f"v_xor_b32 v{10+nt}, {32*nt}, v14")
    for k in range(8):
        a.wait(lg=("r", k))
        for p in range(3):
            for r in (0, 2): a(f"v_pk_add_f32 {vr(OWN+4*k+r,2)}, {vr(OWN+4*k+r,2)}, {vr(ACC2+32*p+4*k+r,2)}")
            rd(12 + 3 * k + p)
        T_ = HR + 2 * k
        a(f"v_cvt_pk_bf16_f32 v{T_}, v{OWN+4*k}, v{OWN+4*k+1}\n v_cvt_pk_bf16_f32 v{T_+1}, v{OWN+4*k+2}, v{OWN+4*k+3}")
        a.lg(f"ds_write_b64 v{14 if k % 4 == 0 else 10 + k % 4}, {vr(T_,2)} offset:{2048*(k//4)}", ("t", k // 4))
        if k % 4 == 3:
            a.wait(lg=("t", k // 4))
            for h in range(2): a.lg(f"ds_read_b128 {vr(HR+32+8*(k//4)+4*h,4)}, v10 offset:{2048*(k//4)+1024*h}", ("u", k // 4, h))
    for g_ in range(4):
        a.wait(lg=("u", g_ // 2, g_ % 2))
        a(f"buffer_store_dwordx4 {vr(HR+32+4*g_,4)}, v9, s[{rC}:{rC+3}], s{sT0} offen{['', ' sc1', ' nt'][OPT['osc']]}")
        if g_ < 3: a(f"s_add_u32 s{sT0}, s{sT0}, 16384")
    if OPT["ts"]: a.wait0(); stamp("g_end")
    if OPT["padto"]:
        a.label("L_pad")
        a(f"s_memrealtime s[98:99]\n s_waitcnt lgkmcnt(0)\n s_sub_u32 s98, s98, s96\n s_cmp_lt_u32 s98, {OPT['padto']}\n s_cbranch_scc1 L_pad")
    dump_ts_and_end()
    if OPT["pf2"]:
        a.label("L_hookF")
        a(f"v_lshlrev_b32 v15, 7, v0\n buffer_load_dword v19, v15, s[{rPF}:{rPF+3}], s{sA} offen\n s_branch L_hookF_r")
    a.label("L_hookW")
    a(f"s_cmp_eq_u32 s{sIT}, 5\n s_cbranch_scc1 L_hookW_r\n s_cmp_eq_u32 s{sIT}, 6\n s_cbranch_scc1 L_hookW6")
    waitlds(0, 4, "L_wq")
    srd(rA, pWO, 1024 * 2048)
    a(f"s_lshl_b32 s{sT0}, s{sW}, 12\n s_add_u32 m0, s{sT0}, {QX}\n s_lshl_b32 s{sT0}, s{sW}, 19\n s_add_u32 s{sT0}, s{sT0}, {4*65536}")
    for k in range(4): a(f"buffer_load_dwordx4 v{vWD+k}, s[{rA}:{rA+3}], s{sT0} offen offset:{1024*k} lds")
    a("s_branch L_hookW_r")
    a.label("L_hookW6")
    a(f"s_mov_b32 s{rB}, s{pWO}\n s_mov_b32 s{rB+1}, s{pWO+1}\n s_mov_b32 s{rB+2}, {1024*2048}\n s_lshl_b32 s{sWo}, s{sW}, 19")
    mbox(1)
    a(f"buffer_load_dword v17, v15, s[{rWS}:{rWS+3}], s{sT0} offen sc1\n s_branch L_hookW_r")
    a.label("L_hookH")
    ooff()
    a(f"""s_waitcnt vmcnt({0 if OPT["g2nold"] else 12})
      v_cmp_ne_u32 vcc, 1, v17
      s_cmp_eq_u64 vcc, 0
      s_cselect_b32 s{sRdy}, 1, 0
      s_cselect_b32 s{sHo}, s{sHo}, {OOB}
      s_branch L_hookH_r""")
    if OPT["pause"] < 7:
        a.label("L_hookP")
        waitlds(0, OPT["pcnt"], "L_hookP2")
        a("s_branch L_g2loop")

prologue()
g_phase1()
if OPT["stop"] == 1:
    stamp("g_bq"); g_hstore(); a.wait0(); stamp("g_hst"); dump_ts_and_end()
else:
    if OPT["wlate"]: g_hstore()
    g2_setup()
    for i in range(3):
        for k in range(4): dmaW(i, k)
    if not OPT["wlate"]: g_hstore()
    g_phase2()
a.label("L_arrive")
a(f"""s_waitcnt vmcnt(0)
  v_mov_b32 v14, 1
  v_mov_b32 v15, 0
  s_mov_b64 exec, 1
  buffer_store_dword v14, v15, s[{rDBG}:{rDBG+3}], s{sE} offen sc1
  s_mov_b64 exec, -1
  s_branch L_arrive_r""")
a.label("L_roleA")
a_phase1()
if OPT["stop"] == 1:
    a(f"s_lshl_b32 s{sT0}, s{sW}, 12\n s_add_u32 s{sT1}, s{sT0}, {QX}\n v_lshl_add_u32 v16, v0, 4, s{sT1}")
    for i in range(4): a(f"ds_read_b128 {vr(32+4*i,4)}, v16 offset:{1024*i}")
    a(f"s_lshl_b32 s{sT1}, s{sRB}, 4\n s_add_u32 s{sT1}, s{sT1}, s{sCB}\n s_lshl_b32 s{sT1}, s{sT1}, 14\n s_add_u32 s{sT0}, s{sT0}, s{sT1}\n s_add_u32 s{sT0}, s{sT0}, {QD_OFF}")
    a.wait0()
    for i in range(4): a(f"buffer_store_dwordx4 {vr(32+4*i,4)}, v{vKVD}, s[{rWS}:{rWS+3}], s{sT0} offen offset:{1024*i}")
    dump_ts_and_end()
else:
    stamp("a_bq")
    attention()
a.label("L_exit")
a("s_endpgm")
a.label("L_codeend")

HDR = open("cdna_kernels/" + KNAME[:-7] + ".s.ref").read().split("; Override launch")[0]
text = HDR + f"; @launch grid=(256,1,1) block=(512,1,1) lds={LDS_BYTES}\n"
text += f'.amdgcn_target "amdgcn-amd-amdhsa--gfx950"\n.text\n.globl {KNAME}\n.p2align 8\n.type {KNAME},@function\n{KNAME}:\n'
body = a.text()
nbad = check(body)
text += body
text += f""".section .rodata,"a"
.p2align 6
.amdhsa_kernel {KNAME}
  .amdhsa_next_free_vgpr 256
  .amdhsa_next_free_sgpr 102
  .amdhsa_accum_offset 256
  .amdhsa_group_segment_fixed_size 0
  .amdhsa_kernarg_size 112
  .amdhsa_user_sgpr_count 2
  .amdhsa_user_sgpr_kernarg_segment_ptr 1
  .amdhsa_system_sgpr_workgroup_id_x 1
.end_amdhsa_kernel
"""
open(sys.argv[1], "w").write(text)
if nbad: sys.exit(f"{nbad} hazards")
```

```python
import sys, math
from asmlib import *

KNAME = "gated_mix__grouped_kv_mqa__dense_activation_squared_relu__prompt_kernel"
OPT = dict(stop=0, ts=0, pd=8, forceslow=0, nodma=0, nokv=0, nopf=0, nords=0, lead=6, pfnt=0, far=99, pf2=1, pf2b=2, gprio=2, nog2=0, g2nold=0, anodma=0, g2prio=0, dbgts=0, slp=2, th=0, farw2=1, hglob=1, arrk=1, wlate=1, map2=0, steps=0, kvskip='', pause=99, pcnt=64, grp=1, osc=1, padto=0, st2=0, spos=0, hfirst=0, p0prio=3, d0prio=1, xlate=0, ring=6, h3prio=1, hfl='sc1', wfl='', xfl='', padat='')
for a_ in sys.argv[2:]:
    k, v = a_.split("="); OPT[k] = int(v) if v.lstrip('-').isdigit() else v

RBSZ = 144 * 8192
KV_OFF = 0x1200000; G_OFF = 0x1240000; KF_OFF = 0x1244000; FL_OFF = 0x1248000; WS_USED = 0x1268000
QD_OFF = 0x1400000; TS_OFF = 0x1800000
WS_SIZE = 0x2000000 if (OPT["stop"] or OPT["ts"]) else WS_USED
OOB = 0x40000000
W1R = 0; W1S = 14336
WQR = 57344; WQS = 4096
XR = 73728; XS = 16384
KVST = 122880
SYNC = 155648
GT = SYNC + 256
LDS_BYTES = GT + 2048
QX = XR
KVR = 90112
pX, pWQ, pWK, pWV, pWO, pW1, pB1, pW2, pB2, pGATE, pOUT, pDBG, pWS = 4, 6, 8, 10, 12, 16, 18, 20, 22, 24, 26, 28, 30
rA, rB, rC, rD, rWS, rDBG, rPF, rE = 32, 36, 40, 44, 48, 52, 56, 60
sRB, sCB, sRB2, sCB2, sI, sW = 64, 65, 66, 67, 68, 69
sT0, sT1, sT2, sT3, sT4, sT5 = 70, 71, 72, 73, 74, 75
sIT, sA, sB, sC, sD, sE, sF, sG = 76, 77, 78, 79, 80, 81, 82, 83
sTS = 84
SPIN_MAX = 1 << 18

a = Asm()
SEC = {}
def section(n):
    a.out = SEC.setdefault(n, [])
section("head")
def kwait():
    a("s_waitcnt lgkmcnt(0)"); stamp("kw"); srd(rWS, pWS, WS_SIZE)
def srd(r, p, size):
    a(f"s_mov_b32 s{r}, s{p}\n s_mov_b32 s{r+1}, s{p+1}\n s_mov_b32 s{r+2}, {size}\n s_mov_b32 s{r+3}, 0x20000")
nts = [0]
STAMPS = {1: dict(g_b0=1, g_end1=2, g_bq=3, g_hst=4, g_pre=5, a_set=1, a_w0=2, a_8=3, a_16=4, a_24=5),
          0: dict(g_end1=1, g_flag=2, g_l2=3, g_hook=4, g_end=5, a_b0=1, a_16=2, a_bq=3, a_att=4, a_end=5)}[OPT["stop"]]
if OPT["st2"] == 1: STAMPS.update(g_end1=0, g_flag=0, g_l2=1, g_17=2, g_25=3)
if OPT["st2"] == 3: STAMPS = dict(kw=1, g_pre=2, g_bias=3, g_rdy=4, g_b0=5, a_iss=2, a_set=3, a_w0=4, a_b0=5)
if OPT["st2"] == 2: STAMPS.update(g_end1=0, g_flag=0, g_l2=0, g_hook=1, g_32=2, g_36=3, g_bar=4)
def stamp(n):
    if n == OPT["padat"]: a("s_memrealtime s[96:97]"); a.wait0(vm=False)
    i = STAMPS.get(n)
    if OPT["ts"] and i:
        a(f"{'s_memrealtime' if OPT['ts'] == 2 else 's_memtime'} s[{sTS+2*i}:{sTS+2*i+1}]"); a.wait0(vm=False)
def mf16(d, x, y, c=None):
    a(f"v_mfma_f32_16x16x32_bf16 {vr(d,4)}, {vr(x,4)}, {vr(y,4)}, {vr(d,4) if c is None else c}")
def mf32(d, x, y, c=None):
    a(f"v_mfma_f32_32x32x16_bf16 {vr(d,16)}, {vr(x,4)}, {vr(y,4)}, {vr(d,16) if c is None else c}")
def dump_ts_and_end():
    if OPT["ts"]:
        a("s_memrealtime s[98:99]"); a.wait0()
        if OPT["dbgts"]:
            l = a.newlabel("L_nots")
            srd(rDBG, pDBG, 256)
            a(f"s_cmp_lg_u32 s2, 100\n s_cbranch_scc1 {l}\n s_cmp_lg_u32 s{sW}, 0\n s_cbranch_scc1 {l}")
            for i, k in enumerate((1, 2, 3, 4, 5, 7)): a(f"s_sub_u32 s{sT0}, s{sTS+2*k}, s96\n v_mov_b32 v{8+i}, s{sT0}")
            a(f"s_lshl_b32 s{sT0}, s3, 3\n s_add_u32 s{sT0}, s{sT0}, 8\n v_mov_b32 v2, 0\n s_mov_b64 exec, 1")
            a(f"buffer_store_dwordx2 v[8:9], v2, s[{rDBG}:{rDBG+3}], s{sT0} offen")
            a(f"buffer_store_dwordx4 v[10:13], v2, s[{rDBG}:{rDBG+3}], s{sT0} offen offset:8")
            a.label(l)
        else:
            for i in range(8): a(f"v_mov_b32 v{8+i}, s{sTS+2*i}")
            a(f"s_lshl_b32 s{sT0}, s2, 8\n s_lshl_b32 s{sT1}, s3, 5\n s_add_u32 s{sT0}, s{sT0}, s{sT1}\n s_add_u32 s{sT0}, s{sT0}, {TS_OFF}")
            a(f"v_mov_b32 v2, 0\n s_mov_b64 exec, 1")
            a(f"buffer_store_dwordx4 v[8:11], v2, s[{rWS}:{rWS+3}], s{sT0} offen")
            a(f"buffer_store_dwordx4 v[12:15], v2, s[{rWS}:{rWS+3}], s{sT0} offen offset:16")
    a("s_endpgm")

def prologue():
    m = OPT["map2"]
    lx, lc = {0: (1, 3), 2: (1, 3), 3: (2, 2), 4: (0, 4)}[m]
    MAP2 = f"""s_lshr_b32 s{sT1}, s{sT0}, {lx}
      s_lshl_b32 s{sT1}, s{sT1}, {5-lc}
      s_lshr_b32 s{sT2}, s{sI}, {lc}
      s_add_u32 s{sRB2}, s{sT1}, s{sT2}
      s_and_b32 s{sT1}, s{sT0}, {(1<<lx)-1}
      s_and_b32 s{sT2}, s{sI}, {(1<<lc)-1}
      s_lshl_b32 s{sT2 if m == 2 else sT1}, s{sT2 if m == 2 else sT1}, {lx if m == 2 else lc}
      s_add_u32 s{sCB2}, s{sT1}, s{sT2}"""
    a("s_cmp_ge_u32 s2, 256\n s_cbranch_scc1 L_exit")
    a("s_load_dwordx16 s[4:19], s[0:1], 0\n s_load_dwordx8 s[20:27], s[0:1], 64\n s_load_dwordx4 s[28:31], s[0:1], 96")
    if OPT["ts"] or OPT["th"] or OPT["padto"]:
        a(f"s_memtime s[{sTS}:{sTS+1}]\n s_memrealtime s[96:97]")
    a(f"""v_lshrrev_b32 v1, 6, v0
      v_and_b32 v0, 63, v0
      v_readfirstlane_b32 s3, v1
      s_lshr_b32 s{sI}, s2, 3
      s_and_b32 s{sT0}, s2, 7
      s_lshr_b32 s{sT1}, s{sT0}, 2
      s_lshl_b32 s{sT1}, s{sT1}, 3
      s_lshr_b32 s{sT2}, s{sI}, 2
      s_add_u32 s{sRB}, s{sT1}, s{sT2}
      s_and_b32 s{sT1}, s{sT0}, 3
      s_lshl_b32 s{sT1}, s{sT1}, 2
      s_and_b32 s{sT2}, s{sI}, 3
      s_add_u32 s{sCB}, s{sT1}, s{sT2}
      {MAP2}
      s_and_b32 s{sW}, s3, 3
      v_and_b32 v1, 15, v0
      v_lshrrev_b32 v2, 4, v0""")
    a("s_cmp_lt_u32 s3, 4\n s_cbranch_scc1 L_roleG\n s_setprio 1\n s_cmp_eq_u32 s3, 7\n s_cbranch_scc1 L_st2\n s_cmp_lg_u32 s3, 6\n s_cbranch_scc1 L_st0")

ACC1 = 112
acc1 = lambda ft, rt: ACC1 + (ft * 4 + rt) * 4
XF = [56, 72]; WRING = 88; NR = OPT['ring']; RD = NR - 1
vX = [3, 4]; vXb = [5, 6]; vW1 = [7, 8]; vWq = [9, 10]; vPF, vJ, vLP = 11, 12, 13
def g_phase1():
    PD = OPT["pd"]
    sRG, sCG = sA, sB
    sXo, sPo, sPe, sPd = sC, sD, sE, sF
    a(f"s_and_b32 s{sRG}, s{sW}, 1\n s_lshr_b32 s{sCG}, s{sW}, 1")
    a(f"""s_cmp_lt_u32 s{sW}, 2
      s_cbranch_scc0 L_nocode
      s_getpc_b64 s[{rE}:{rE+1}]""")
    a.label("L_pc")
    a(f"""s_mov_b32 s{rE+2}, L_codeend-L_pc
      s_mov_b32 s{rE+3}, 0x20000
      s_lshl_b32 s{sT1}, s{sI}, 10
      s_lshl_b32 s{sT2}, s{sW}, 15
      s_add_u32 s{sT1}, s{sT1}, s{sT2}
      v_lshlrev_b32 v15, 7, v0
      s_mov_b64 exec, 0xff
      buffer_load_dword v{vJ}, v15, s[{rE}:{rE+3}], s{sT1} offen
      s_mov_b64 exec, -1""")
    a.label("L_nocode")
    a(f"""s_mul_i32 s{sT0}, s{sCB}, 448
      s_mul_i32 s{sT1}, s{sCG}, 224
      s_add_u32 s{sT0}, s{sT0}, s{sT1}
      v_lshlrev_b32 v14, 2, v0
      s_mov_b32 s{rA+2}, 7168
      s_mov_b32 s{rA+3}, 0x20000
      s_setprio 3
      s_waitcnt lgkmcnt(0)
      s_mov_b32 s{rA}, s{pB1}
      s_mov_b32 s{rA+1}, s{pB1+1}
      buffer_load_dword v33, v14, s[{rA}:{rA+3}], s{sT0} offen
      s_setprio 0""")
    kwait()
    for r in range(0, 32, 2): a(f"v_mov_b64 {vr(ACC1+r,2)}, 0")
    a(f"""v_lshrrev_b32 v14, 1, v1
      v_xor_b32 v14, v14, v2
      v_lshlrev_b32 v14, 4, v14
      v_lshl_add_u32 v14, v1, 7, v14
      s_lshl_b32 s{sT0}, s{sRG}, 13
      s_add_u32 s{sT0}, s{sT0}, {XR}
      v_add_u32 v{vXb[0]}, s{sT0}, v14
      v_xor_b32 v{vXb[1]}, 64, v{vXb[0]}
      v_mov_b32 v{vX[0]}, v{vXb[0]}
      v_mov_b32 v{vX[1]}, v{vXb[1]}
      s_mov_b32 s{sXo}, 0
      v_lshrrev_b32 v14, 2, v1
      v_lshl_add_u32 v14, v2, 3, v14
      v_and_b32 v15, 3, v1
      v_lshlrev_b32 v15, 3, v15
      v_mul_u32_u24 v30, 448, v14
      v_add_u32 v30, v30, v15
      s_mul_i32 s{sT0}, s{sCG}, 224
      v_add_u32 v30, s{sT0}, v30
      v_and_b32 v31, 1, v2
      v_lshlrev_b32 v32, 5, v31
      s_lshl_b32 s{sT1}, s{sCG}, 1
      s_sub_u32 s{sT1}, 1, s{sT1}
      v_mul_lo_u32 v32, v32, s{sT1}
      v_add_u32 v{vW1[0]}, v30, v32
      v_sub_u32 v{vW1[1]}, v30, v32
      v_lshrrev_b32 v32, 3, v1
      v_lshl_add_u32 v31, v32, 1, v31
      s_lshl_b32 s{sT0}, s{sCG}, 1
      v_xor_b32 v31, s{sT0}, v31
      v_lshl_add_u32 v15, v31, 5, v15
      v_lshl_add_u32 v15, v14, 7, v15
      v_add_u32 v{vWq[0]}, {WQR}, v15
      v_xor_b32 v{vWq[1]}, 32, v{vWq[0]}""")
    a(f"""v_and_b32 v14, 1, v2
      v_lshlrev_b32 v14, 10, v14
      v_lshrrev_b32 v15, 1, v2
      v_lshl_add_u32 v14, v15, 8, v14
      v_lshl_add_u32 v{vLP}, v1, 4, v14""")
    a(f"v_mov_b32 v30, {SYNC}\n ds_write_b128 v30, v[{ACC1}:{ACC1+3}]\n v_lshlrev_b32 v14, 3, v2")
    stamp("g_pre")
    a.wait0()
    stamp("g_bias")
    for k in range(14): a.lg(f"ds_bpermute_b32 v{16+k}, v14, v33 offset:{32*(k//2)+4*(k%2)}", ("b", k // 2))
    for ft in range(7):
        d = acc1(2 + ft, 0)
        a.wait(lg=("b", ft))
        a(f"v_lshlrev_b32 v{d}, 16, v{16+2*ft}\n v_and_b32 v{d+1}, 0xffff0000, v{16+2*ft}")
        a(f"v_lshlrev_b32 v{d+2}, 16, v{17+2*ft}\n v_and_b32 v{d+3}, 0xffff0000, v{17+2*ft}")
        for rt in range(1, 4): a(f"v_mov_b64 {vr(d+4*rt,2)}, {vr(d,2)}\n v_mov_b64 {vr(d+4*rt+2,2)}, {vr(d+2,2)}")
    def rdW(g, e):
        if OPT["nords"] and g > 2: return
        t, ft = divmod(g, 9); d = WRING + 4 * (g % NR) + 2 * e
        if ft < 2: a.lg(f"ds_read_b64_tr_b16 {vr(d,2)}, v{vWq[ft]} offset:{(t%4)*WQS + e*512}", ("W", g))
        else: a.lg(f"ds_read_b64_tr_b16 {vr(d,2)}, v{vW1[ft%2]} offset:{(t%4)*W1S + e*1792 + (ft-2)*32}", ("W", g))
    def rdX(t, rt):
        a.lg(f"ds_read_b128 {vr(XF[t%2]+4*rt,4)}, v{vX[t%2]} offset:{rt*2048}", ("X", t))
    a(f"s_mov_b32 s{sIT}, 0")
    stamp("g_rdy")
    a("s_barrier")
    stamp("g_b0")
    for rt in range(4): rdX(0, rt)
    for g in range(RD): rdW(g, 0); rdW(g, 1)
    a.raw(".p2align 3")
    a.label("L_g1loop")
    def body(it):
        for ts in range(4):
            t = it * 4 + ts
            for ft in range(9):
                g = t * 9 + ft
                fill = [[], [], [], []]
                fill[0].append(lambda: rdW(g + RD, 0))
                fill[1].append(lambda: rdW(g + RD, 1))
                if NR == 4:
                    if ft == 5: fill[2].append(lambda: a("s_barrier")); fill[3].append(lambda: rdX(t + 1, 0))
                    if ft == 6: fill[2].append(lambda: (rdX(t + 1, 1), rdX(t + 1, 2))); fill[3].append(lambda: rdX(t + 1, 3))
                else:
                    if ft == 3: fill[2].append(lambda: a("s_barrier")); fill[3].append(lambda: rdX(t + 1, 0))
                    if ft == 4: fill[2].append(lambda: rdX(t + 1, 1)); fill[3].append(lambda: rdX(t + 1, 2))
                    if ft == 5: fill[2].append(lambda: rdX(t + 1, 3))
                if ts % 2 == 1:
                    if ft == 1:
                        fill[2].append(lambda: a(f"s_add_u32 s{sXo}, s{sXo}, {XS}\n s_cmp_eq_u32 s{sXo}, {3*XS}"))
                        fill[3].append(lambda: a(f"s_cselect_b32 s{sXo}, 0, s{sXo}"))
                    if ft == 2:
                        fill[2].append(lambda: a(f"v_add_u32 v{vX[0]}, s{sXo}, v{vXb[0]}"))
                        fill[3].append(lambda: a(f"v_add_u32 v{vX[1]}, s{sXo}, v{vXb[1]}"))
                if ts == 3 and ft == 8:
                    fill[2].append(lambda: a(f"s_add_u32 s{sIT}, s{sIT}, 1")); fill[3].append(lambda: a(f"s_cmp_lt_u32 s{sIT}, 8"))
                a.wait(lg=[("W", g), ("X", t)] if ft == 0 else ("W", g))
                for rt in range(4):
                    mf16(acc1(ft, rt), WRING + 4 * (g % NR), XF[t % 2] + 4 * rt)
                    for f in fill[rt]: f()
        a("s_cbranch_scc1 L_g1loop")
    a.loop(body, "g1")
    a.wait0(vm=False)
    stamp("g_end1")
    a(f"s_setprio {OPT['gprio']}")
    if OPT["hfirst"]: g_hstore(0, OPT["hfirst"])
    c = f2u(32 ** -0.5 * math.log2(math.e))
    a(f"s_mov_b32 s{sT0}, {c}\n s_mov_b32 s{sT1}, {c}")
    a(f"""s_lshl_b32 s{sT2}, s{sRG}, 13
      s_lshl_b32 s{sT3}, s{sCG}, 11
      s_add_u32 s{sT2}, s{sT2}, s{sT3}
      s_add_u32 s{sT2}, s{sT2}, {QX}
      v_lshl_add_u32 v14, v0, 4, s{sT2}""")
    T = 32
    for p in range(2):
        for s_ in range(2):
            for h in range(2):
                d = acc1(s_, 2 * p + h)
                a(f"v_pk_mul_f32 {vr(d,2)}, {vr(d,2)}, s[{sT0}:{sT1}]\n v_pk_mul_f32 {vr(d+2,2)}, {vr(d+2,2)}, s[{sT0}:{sT1}]")
                a(f"v_cvt_pk_bf16_f32 v{T+2*h}, v{d}, v{d+1}\n v_cvt_pk_bf16_f32 v{T+2*h+1}, v{d+2}, v{d+3}")
            a(f"s_nop 1\n v_permlane16_swap_b32 v{T}, v{T+2}\n v_permlane16_swap_b32 v{T+1}, v{T+3}")
            a.lg(f"ds_write_b128 v14, {vr(T,4)} offset:{p*4096 + s_*1024}")
            T += 4
    a.wait0(vm=False)
    a("s_barrier")
def g_hstore(lo=0, hi=7):
    sRG, sCG = sA, sB
    sT0, sT1, sT2, sT3 = sT4, sT5, sF, sG
    if lo == 0: a(f"""s_mul_i32 s{sT0}, s{sRB}, {RBSZ}
      s_mul_i32 s{sT1}, s{sCB}, {7*8192}
      s_add_u32 s{sT0}, s{sT0}, s{sT1}
      s_lshl_b32 s{sT1}, s{sRG}, 12
      s_add_u32 s{sT0}, s{sT0}, s{sT1}
      s_mul_i32 s{sT1}, s{sCG}, {3*8192+512}
      s_add_u32 s{sT0}, s{sT0}, s{sT1}
      s_mul_i32 s{sT2}, s{sCG}, {8192-1024}
      s_add_u32 s{sT2}, s{sT2}, 512
      s_sub_u32 s{sT3}, 8192, s{sT2}""")
    k = 0
    for ft in range(lo, hi):
        for p in range(2):
            T = 16 + 4 * (k % 4); k += 1
            for h in range(2):
                d = acc1(2 + ft, 2 * p + h)
                for r in range(4): a(f"v_max_f32 v{d+r}, 0, v{d+r}")
                a(f"v_pk_mul_f32 {vr(d,2)}, {vr(d,2)}, {vr(d,2)}\n v_pk_mul_f32 {vr(d+2,2)}, {vr(d+2,2)}, {vr(d+2,2)}")
                a(f"v_cvt_pk_bf16_f32 v{T+2*h}, v{d}, v{d+1}\n v_cvt_pk_bf16_f32 v{T+2*h+1}, v{d+2}, v{d+3}")
            a(f"s_nop 1\n v_permlane16_swap_b32 v{T}, v{T+2}\n v_permlane16_swap_b32 v{T+1}, v{T+3}")
            a.vm(f"buffer_store_dwordx4 {vr(T,4)}, v{vLP}, s[{rWS}:{rWS+3}], s{sT0} offen offset:{p*2048} sc1", "hst")
        a(f"s_add_u32 s{sT0}, s{sT0}, s{sT2 if ft % 2 == 0 else sT3}")

vO = 3
vKX, vKG, vKW, vKT0, vKVD, vKR = 140, 12, 13, 24, 15, 142
KXF, KGF, KWF, KAC = 32, 64, 96, 128
def a_phase1():
    sISV, sR0, sSTG, sM, sSo, sSx, sGrp = sA, sB, sC, sD, sE, sF, sG
    NT = " nt" if OPT["pfnt"] else ""
    LEAD = OPT["lead"]
    for path in range(3):
        section(f"st{path}")
        a.label(f"L_st{path}")
        a.vmq.clear(); a.lgq.clear()
        ldW = ldX = pfs = lambda t, m=None: None
        trickle = []
        def trk(all_=False):
            while trickle:
                for t_ in trickle.pop(0): a.lg(t_)
                if not all_: break
        if path == 0:
            a(f"s_mul_i32 s{sT0}, s{sW}, {16*7168}\n s_mul_i32 s{sT1}, s{sCB}, 448\n s_add_u32 s{sSo}, s{sT0}, s{sT1}")
            a(f"s_mul_i32 s{sM}, s{sW}, 7168\n s_movk_i32 s{sT2}, {7168-448}")
            for i in range(7):
                a(f"""v_add_u32 v16, {64*i}, v0
                  v_mul_u32_u24 v17, 2341, v16
                  v_lshrrev_b32 v17, 16, v17
                  v_bfe_u32 v18, v17, 3, 1
                  v_lshlrev_b32 v18, 1, v18
                  v_xor_b32 v16, v16, v18
                  v_lshlrev_b32 v16, 4, v16
                  v_mad_u32_u24 v{vO+i}, v17, s{sT2}, v16""")
                if i % 4: a(f"v_subrev_u32 v{vO+i}, {1024*(i%4)}, v{vO+i}")
            kwait(); srd(rB, pW1, 1024 * 7168)
            def ldW(t, m=None):
                for i in range(7):
                    if i == 4 and m: m()
                    if i % 4 == 0: a(f"s_add_u32 m0, s{sM}, {(t%4)*W1S + i*1024}\n s_nop 0")
                    a.vm(f"buffer_load_dwordx4 v{vO+i}, s[{rB}:{rB+3}], s{sSo} offen offset:{1024*(i%4)} {OPT['xfl'].replace('_', ' ')} lds", ("W", t)); trk()
                a(f"s_add_u32 s{sSo}, s{sSo}, {32*7168}")
        elif path == 1:
            a(f"""v_lshrrev_b32 v16, 3, v0
              v_lshlrev_b32 v16, 11, v16
              v_and_b32 v17, 7, v0
              v_xor_b32 v18, v17, v2
              v_lshl_add_u32 v18, v18, 4, v16
              v_and_b32 v20, 1, v2
              v_lshlrev_b32 v20, 2, v20
              v_xor_b32 v20, v20, v17
              v_lshl_add_u32 v20, v20, 4, v16
              s_lshl_b32 s{sSo}, s{sCB}, 7
              s_lshl_b32 s{sSx}, s{sRB}, 18""")
            for i in range(4):
                a(f"v_xor_b32 v19, {64*(i%2)}, v18\n v_add_u32 v{vO+i}, {i*16384 - i*1024}, v19")
                a(f"v_xor_b32 v19, {32*(i%2)}, v20\n v_add_u32 v{vO+4+i}, {i*16384 - i*1024}, v19")
            kwait(); srd(rB, pWQ, 1024 * 2048); srd(rA, pX, 2048 * 2048)
            def ldW(t, m=None):
                a(f"s_mov_b32 m0, {WQR + (t%4)*WQS}\n s_nop 0")
                for i in range(4):
                    a.vm(f"buffer_load_dwordx4 v{vO+4+i}, s[{rB}:{rB+3}], s{sSo} offen offset:{1024*i} {OPT['xfl'].replace('_', ' ')} lds", ("W", t)); trk()
                a(f"s_add_u32 s{sSo}, s{sSo}, 65536")
        else:
            a(f"""s_and_b32 s{sGrp}, s{sI}, 7
              s_lshl_b32 s{sT0}, s{sGrp}, 5
              s_and_b32 s{sT1}, s{sI}, 24
              s_add_u32 s{sT0}, s{sT0}, s{sT1}
              s_and_b32 s{sT1}, s2, 7
              s_add_u32 s{sT0}, s{sT0}, s{sT1}
              s_lshl_b32 s{sIT}, s{sT0}, 14
              s_mul_i32 s{sSo}, s{sT0}, 7168
              s_lshl_b32 s{sM}, s{sT0}, 11
              v_lshrrev_b32 v16, 3, v0
              v_lshlrev_b32 v16, 11, v16
              v_and_b32 v17, 7, v0
              v_lshl_add_u32 v{vO+4}, v17, 7, v16
              v_lshlrev_b32 v{vO+5}, 7, v0
              v_xor_b32 v18, v17, v2
              v_lshl_add_u32 v18, v18, 4, v16
              s_lshl_b32 s{sSx}, s{sRB}, 18
              s_add_u32 s{sSx}, s{sSx}, 65536""")
            for i in range(4): a(f"v_xor_b32 v19, {64*(i%2)}, v18\n v_add_u32 v{vO+i}, {i*16384 - i*1024}, v19")
            a(f"s_setprio {OPT['p0prio']}")
            kwait(); srd(rA, pX, 2048 * 2048); srd(rB, pW1, 1024 * 7168); srd(rPF, pWQ, 1024 * 2048)
            def pfW():
                a(f"s_mov_b32 exec_hi, 0xffffff\n buffer_load_dword v250, v{vO+5}, s[{rB}:{rB+3}], s{sSo} offen{NT}")
                a(f"s_mov_b64 exec, 0xffff\n buffer_load_dword v250, v{vO+5}, s[{rPF}:{rPF+3}], s{sM} offen{NT}\n s_mov_b64 exec, -1")
                a(f"s_add_u32 s{sSo}, s{sSo}, {256*7168}\n s_add_u32 s{sM}, s{sM}, {256*2048}")
            if not OPT["nopf"]:
                a(f"buffer_load_dword v250, v{vO+4}, s[{rA}:{rA+3}], s{sIT} offen{NT}")
                a(f"s_cmp_ge_u32 s{sGrp}, {LEAD}\n s_cbranch_scc1 L_nopf0")
                pfW()
                a.label("L_nopf0")
            def pfs(t):
                if OPT["nopf"]: return
                if t + LEAD < 32:
                    l = a.newlabel("L_np")
                    a(f"s_cmp_lg_u32 s{sGrp}, {(t+LEAD)%8}\n s_cbranch_scc1 {l}")
                    if OPT["h3prio"] == 0: a("s_setprio 0")
                    pfW()
                    if t < 8: a(f"buffer_load_dword v250, v{vO+4}, s[{rA}:{rA+3}], s{sIT} offen offset:1024{NT}")
                    if OPT["pf2"] and t // 8 == OPT["pf2b"]:
                        srd(rD, pW2, 3584 * 2048)
                        a(f"s_lshr_b32 s{sT0}, s2, 6\n s_mul_i32 s{sT0}, s{sT0}, {896*2048}\n s_and_b32 s{sT1}, s2, 63\n s_lshl_b32 s{sT1}, s{sT1}, 13\n s_add_u32 s{sT0}, s{sT0}, s{sT1}")
                        a(f"buffer_load_dword v250, v{vO+5}, s[{rD}:{rD+3}], s{sT0} offen")
                    if OPT["h3prio"] == 0: a("s_setprio 1")
                    a.label(l)
                if t == OPT["far"]:
                    srd(rB, pW2, 3584 * 2048); srd(rPF, pWO, 1024 * 2048)
                    a(f"s_mul_i32 s{sSo}, s2, 28672\n s_lshl_b32 s{sM}, s2, 13")
                    for i in range(4 if OPT["farw2"] else 0):
                        if i == 3: a("s_mov_b32 exec_hi, 0")
                        a.vm(f"buffer_load_dword v250, v{vO+5}, s[{rB}:{rB+3}], s{sSo} offen")
                        a(f"s_add_u32 s{sSo}, s{sSo}, 8192")
                    a("s_mov_b64 exec, -1")
                    a.vm(f"buffer_load_dword v250, v{vO+5}, s[{rPF}:{rPF+3}], s{sM} offen")
        if path:
            def ldX(hb):
                u, hf = divmod(hb, 2)
                a(f"s_mov_b32 m0, {XR + (u%3)*XS + hf*8192 + (path-1)*4096}\n s_nop 0")
                for i in range(4):
                    a.vm(f"buffer_load_dwordx4 v{vO+i}, s[{rA}:{rA+3}], s{sSx} offen offset:{1024*i} {OPT['xfl'].replace('_', ' ')} lds", ("X", u)); trk()
                a(f"s_add_u32 s{sSx}, s{sSx}, {131072 if hf == 0 else (128-131072) & 0xffffffff}")
        def kvsetup():
            a(f"""s_and_b32 s{sISV}, s{sCB}, 1
              s_lshr_b32 s{sR0}, s{sCB}, 1
              s_lshl_b32 s{sR0}, s{sR0}, 4
              s_lshl_b32 s{sT0}, s{sRB}, 7
              s_add_u32 s{sR0}, s{sR0}, s{sT0}
              s_cmp_eq_u32 s{sISV}, 0
              s_cselect_b32 s{rC}, s{pWK}, s{pWV}
              s_cselect_b32 s{rC+1}, s{pWK+1}, s{pWV+1}
              s_mov_b32 s{rC+2}, 65536
              s_mov_b32 s{rC+3}, 0x20000
              v_lshlrev_b32 v{vKVD}, 4, v0""")
            if path == 2:
                srd(rD, pGATE, 2048); srd(rDBG, pDBG, 256)
                a(f"s_lshl_b32 s{sT0}, s{sR0}, 5\n s_mov_b64 exec, 15\n buffer_load_dword v250, v{vO+5}, s[{rC}:{rC+3}], s{sT0} offen\n s_mov_b64 exec, -1")
                a(f"s_mov_b32 m0, {GT}\n s_nop 0")
                for i in range(2): a.vm(f"buffer_load_dwordx4 v{vKVD}, s[{rD}:{rD+3}], 0 offen offset:{1024*i} lds", "gt")
        if path == 2: kvsetup()
        if OPT["d0prio"]: a("s_setprio 2")
        ldW(0); ldX(0); ldX(1)
        if OPT["d0prio"]: a("s_setprio 1")
        ldW(1)
        if not OPT["xlate"]: ldX(2); ldX(3)
        stamp("a_iss")
        a(f"s_branch L_a1m{path}")
        section("main")
        a.label(f"L_a1m{path}")
        if path == 0: srd(rA, pX, 2048 * 2048)
        if path != 2: kvsetup()
        a(f"""s_lshl_b32 s{sSTG}, s{sW}, 13
          s_add_u32 s{sSTG}, s{sSTG}, {KVST}
          s_lshl_b32 s{sT0}, s{sW}, 7
          v_lshl_add_u32 v17, v2, 4, s{sT0}
          v_add_u32 v{vKG}, {GT}, v17
          v_lshrrev_b32 v16, 3, v0
          v_add_u32 v16, s{sR0}, v16
          v_and_b32 v17, 7, v0
          v_xor_b32 v17, v17, v2
          v_lshl_add_u32 v17, v17, 4, s{sT0}
          v_lshl_add_u32 v{vKX}, v16, 11, v17
          v_xor_b32 v16, 64, v{vKX}
          v_add_u32 v{vKX+1}, {16384-1024}, v16
          v_lshrrev_b32 v16, 1, v1
          v_xor_b32 v16, v16, v2
          v_lshlrev_b32 v16, 4, v16
          v_lshl_add_u32 v16, v1, 7, v16
          v_add_u32 v{vKR}, s{sSTG}, v16
          v_xor_b32 v{vKR+1}, 64, v{vKR}
          v_lshrrev_b32 v16, 4, v0
          v_and_b32 v16, 2, v16
          v_xor_b32 v16, v16, v0
          s_lshl_b32 s{sT0}, s{sW}, 12
          v_lshl_add_u32 v{vKW}, v16, 4, s{sT0}
          v_lshrrev_b32 v16, 2, v1
          v_lshl_add_u32 v16, v2, 3, v16
          v_and_b32 v17, 3, v1
          v_lshlrev_b32 v17, 3, v17
          v_lshl_add_u32 v16, v16, 6, v17
          v_and_b32 v17, 1, v2
          v_lshl_add_u32 v16, v17, 5, v16
          v_add_u32 v{vKT0}, s{sSTG}, v16
          v_xor_b32 v{vKT0+1}, 32, v{vKT0}""")
        for r in range(12): a(f"v_mov_b32 v{KAC+r}, 0")
        def kvX(rho):
            if 'X' in OPT['kvskip']: return
            a(f"s_add_u32 m0, s{sSTG}, 6144\n s_movk_i32 s{sT0}, {rho*512}")
            for i in range(2):
                a.vm(f"buffer_load_dwordx4 v{vKX+i}, s[{rA}:{rA+3}], s{sT0} offen offset:{1024*i} lds", ("kw", rho))
        def kvW(rho, half):
            if 'W' in OPT['kvskip']: return
            if half: a.wait0(vm=False)
            a(f"s_add_u32 m0, s{sSTG}, {4096 if half else (rho%2)*2048}\n s_mov_b32 s{sT0}, {rho*16384 + half*2048}")
            for i in range(2):
                a.vm(f"buffer_load_dwordx4 v{vKW}, s[{rC}:{rC+3}], s{sT0} offen offset:{1024*i} lds", ("kw", rho))
        def kvR(rho):
            if 'R' in OPT['kvskip']: return
            a.wait(vm=("kw", rho))
            for i in range(2):
                for nt in range(2):
                    trickle.append([f"ds_read_b64_tr_b16 {vr(KWF+8*i+4*nt+2*e,2)}, v{vKT0+nt} offset:{(4096 if i else (rho%2)*2048)+e*256}" for e in range(2)])
                trickle.append([f"ds_read_b128 {vr(KGF+4*i,4)}, v{vKG} offset:{512*rho+64*i}", f"ds_read_b128 {vr(KXF+4*i,4)}, v{vKR+i} offset:6144"])
        def kvM(rho):
            if 'M' in OPT['kvskip']: return
            a.wait0(vm=False)
            lv, ld = a.newlabel("L_kv"), a.newlabel("L_kd")
            a(f"s_cmp_lg_u32 s{sISV}, 0\n s_cbranch_scc1 {lv}")
            for i in range(2):
                for nt in range(2): mf16(KAC + 4 * nt, KWF + 8 * i + 4 * nt, KXF + 4 * i)
                mf16(KAC + 8, KGF + 4 * i, KXF + 4 * i)
            a(f"s_branch {ld}")
            a.label(lv)
            for i in range(2):
                for nt in range(2): mf16(KAC + 4 * nt, KXF + 4 * i, KWF + 8 * i + 4 * nt)
            a.label(ld)
        def kvP():
            a(f"v_add_u32 v16, s{sSTG}, v{vKVD}\n s_nop 5")
            for nt in range(3): trickle.append([f"ds_write_b128 v16, {vr(KAC+4*nt,4)} offset:{nt*1024}"])
        def kvF0():
            a(f"""v_lshrrev_b32 v16, 1, v2
              v_and_b32 v17, 1, v2
              v_lshlrev_b32 v18, 4, v1
              s_cmp_eq_u32 s{sISV}, 0
              s_cselect_b32 s{sT0}, 10, 8
              s_cselect_b32 s{sT1}, 9, 10
              s_lshl_b32 s{sT2}, 256, s{sISV}
              v_lshlrev_b32 v26, s{sT0}, v16
              v_lshlrev_b32 v27, s{sT1}, v17
              v_add3_u32 v26, v26, v27, v18
              v_add_u32 v26, {KVST}, v26
              v_add_u32 v27, s{sT2}, v26
              v_add_u32 v28, {KVST+2048}, v18
              s_lshr_b32 s{sT3}, s{sR0}, 5
              s_lshl_b32 s{sT3}, s{sT3}, 12
              s_add_u32 s{sT3}, s{sT3}, {KV_OFF}
              s_bfe_u32 s{sT4}, s{sR0}, 0x10004
              s_cmp_eq_u32 s{sISV}, 0
              s_cselect_b32 s{sT0}, 10, 9
              s_cselect_b32 s{sT1}, 9, 8
              s_cselect_b32 s{sT2}, 8, 10
              s_cselect_b32 s{sT5}, 0, 2048
              s_lshl_b32 s{sT4}, s{sT4}, s{sT2}
              s_add_u32 s{sT3}, s{sT3}, s{sT4}
              s_add_u32 s{sT3}, s{sT3}, s{sT5}
              v_lshlrev_b32 v29, s{sT0}, v16
              v_lshlrev_b32 v30, s{sT1}, v17
              v_add3_u32 v29, v29, v30, v18
              v_add_u32 v29, s{sT3}, v29""")
        def kvF():
            for w in range(4):
                a(f"ds_read_b128 {vr(32+8*w,4)}, v26 offset:{w*8192}\n ds_read_b128 {vr(36+8*w,4)}, v27 offset:{w*8192}\n ds_read_b32 v{64+w}, v28 offset:{w*8192}")
            a("s_waitcnt lgkmcnt(0)")
            for r in range(0, 8, 2):
                a(f"v_pk_add_f32 {vr(32+r,2)}, {vr(32+r,2)}, {vr(40+r,2)}\n v_pk_add_f32 {vr(48+r,2)}, {vr(48+r,2)}, {vr(56+r,2)}\n v_pk_add_f32 {vr(32+r,2)}, {vr(32+r,2)}, {vr(48+r,2)}")
            for r in range(4): a(f"v_cvt_pk_bf16_f32 v{40+r}, v{32+2*r}, v{33+2*r}")
            a(f"buffer_store_dwordx4 v[40:43], v29, s[{rWS}:{rWS+3}], 0 offen sc1")
        def kvF2():
            a(f"""v_add_f32 v64, v64, v65
              v_add_f32 v66, v66, v67
              v_add_f32 v64, v64, v66
              v_mul_f32 v64, {f2u(-math.log2(math.e))}, v64
              v_exp_f32 v64, v64
              s_lshl_b32 s{sT0}, s{sR0}, 2
              v_add_f32 v64, 1.0, v64
              v_rcp_f32 v64, v64
              s_add_u32 s{sT0}, s{sT0}, {G_OFF}
              s_cmp_eq_u32 s{sISV}, 0
              s_cselect_b32 s{sT0}, s{sT0}, {OOB}
              v_lshlrev_b32 v20, 2, v0
              s_mov_b64 exec, 0xffff
              buffer_store_dword v64, v20, s[{rWS}:{rWS+3}], s{sT0} offen sc1
              s_mov_b64 exec, -1""")
        def kvA():
            a(f"""s_lshl_b32 s{sT0}, s{sRB}, 4
              s_add_u32 s{sT0}, s{sT0}, s{sCB}
              s_lshl_b32 s{sT0}, s{sT0}, 2
              s_add_u32 s{sT0}, s{sT0}, {KF_OFF}
              v_mov_b32 v16, 1
              v_mov_b32 v17, 0""")
            a.wait0(lg=False)
            a(f"""s_mov_b64 exec, 1
              buffer_store_dword v16, v17, s[{rWS}:{rWS+3}], s{sT0} offen sc1
              s_mov_b64 exec, -1""")
        def clr():
            a(f"""s_cmp_lt_u32 s2, 32
              s_cbranch_scc0 L_noclr
              s_lshl_b32 s{sT0}, s2, 12
              s_add_u32 s{sT0}, s{sT0}, {FL_OFF}
              s_lshl_b32 s{sT1}, s2, 5
              s_add_u32 s{sT1}, s{sT1}, {KF_OFF}
              v_lshrrev_b32 v16, 1, v0
              v_and_b32 v17, 1, v0
              v_lshlrev_b32 v17, 4, v17
              v_lshl_add_u32 v16, v16, 7, v17
              buffer_store_dwordx4 v[{KAC}:{KAC+3}], v16, s[{rWS}:{rWS+3}], s{sT0} offen sc1
              s_mov_b64 exec, 3
              buffer_store_dwordx4 v[{KAC}:{KAC+3}], v16, s[{rWS}:{rWS+3}], s{sT1} offen sc1
              s_mov_b64 exec, -1""")
            a.label("L_noclr")
        def clrdone():
            a(f"""s_cmp_lt_u32 s2, 32
              s_cbranch_scc0 L_noclr2
              s_waitcnt vmcnt(0)
              s_lshl_b32 s{sT0}, s2, 2
              v_mov_b32 v16, 1
              v_mov_b32 v17, 0
              s_mov_b64 exec, 1
              buffer_store_dword v16, v17, s[{rDBG}:{rDBG+3}], s{sT0} offen sc1
              s_mov_b64 exec, -1""")
            a.label("L_noclr2")
        def kvPoll0a():
            a(f"v_and_b32 v19, 31, v0\n v_lshlrev_b32 v19, 2, v19\n buffer_load_dword v18, v19, s[{rDBG}:{rDBG+3}], 0 offen sc1")
        def kvPoll0():
            a(f"s_mov_b32 s{sT1}, {SPIN_MAX}")
            a.label("L_poll0")
            a(f"""s_waitcnt vmcnt(0)
              v_cmp_ne_u32 vcc, 1, v18
              s_sub_u32 s{sT1}, s{sT1}, 1
              s_cbranch_vccz L_poll0x
              s_sleep 16
              buffer_load_dword v18, v19, s[{rDBG}:{rDBG+3}], 0 offen sc1
              s_cmp_lg_u32 s{sT1}, 0
              s_cbranch_scc1 L_poll0""")
            a.label("L_poll0x")
        def kvPoll1a():
            a(f"s_mov_b32 s{sT2}, {KF_OFF}\n buffer_load_dwordx4 v[20:23], v{vKVD}, s[{rWS}:{rWS+3}], s{sT2} offen sc1")
        def kvPoll1():
            a(f"s_mov_b32 s{sT1}, {SPIN_MAX}")
            a.label("L_poll1")
            a(f"""s_waitcnt vmcnt(0)
              v_and_b32 v20, v20, v21
              v_and_b32 v22, v22, v23
              v_and_b32 v20, v20, v22
              v_cmp_ne_u32 vcc, 1, v20
              s_sub_u32 s{sT1}, s{sT1}, 1
              s_cbranch_vccz L_poll1x
              s_sleep 16
              buffer_load_dwordx4 v[20:23], v{vKVD}, s[{rWS}:{rWS+3}], s{sT2} offen sc1
              s_cmp_lg_u32 s{sT1}, 0
              s_cbranch_scc1 L_poll1""")
            a.label("L_poll1x")
        def kvD(c):
            if c == 0:
                a(f"s_add_u32 s{rE}, s{pWS}, {KV_OFF}\n s_addc_u32 s{rE+1}, s{pWS+1}, 0\n s_mov_b32 s{rE+2}, 0x40000\n s_mov_b32 s{rE+3}, 0x20000")
                a(f"s_lshl_b32 s{sIT}, s{sW}, 12")
            a(f"s_add_u32 m0, s{sIT}, {KVR + ((c+2)%4)*16384}\n s_add_u32 s{sT0}, s{sIT}, {c*16384}")
            for i in range(4):
                a.vm(f"buffer_load_dwordx4 v{vKVD}, s[{rE}:{rE+3}], s{sT0} offen offset:{1024*i} sc1 lds", ("kv", c))
        def ldG():
            a(f"""s_lshl_b32 s{sT1}, s{sRB}, 9
              s_lshl_b32 s{sT2}, s{sW}, 7
              s_add_u32 s{sT1}, s{sT1}, s{sT2}
              s_add_u32 s{sT1}, s{sT1}, {G_OFF}
              v_and_b32 v22, 31, v0
              v_lshlrev_b32 v22, 2, v22""")
            a.vm(f"buffer_load_dword v21, v22, s[{rWS}:{rWS+3}], s{sT1} offen sc1")
        post = {k: [] for k in range(33)}; pre = {k: [] for k in range(33)}; mid = {k: [] for k in range(33)}
        if not OPT["nokv"]:
            for rho in range(4):
                pre[3*rho+5].append(lambda rho=rho: kvR(rho)); mid[3*rho+6].append(lambda rho=rho: kvM(rho))
                post[3*rho+3].append(lambda rho=rho: kvX(rho))
                post[3*rho+1].append(lambda rho=rho: kvW(rho, 0)); post[3*rho+2].append(lambda rho=rho: kvW(rho, 1))
            pre[16].append(kvP); post[16].append(lambda: a.wait0(vm=False))
            if path == 2:
                post[0] += [clr, kvF0]; pre[7].append(clrdone); post[3].append(lambda: a.wait(vm="gt"))
                post[17] += [kvF]; post[18] += [kvF2]; post[19] += [kvPoll0a]; pre[21] += [kvPoll0, kvA]; pre[26].append(kvPoll1a); pre[27].append(kvPoll1)
            post[28].append(ldG)
            for c in range(4): post[28 + c].append(lambda c=c: kvD(c))
        stamp("a_set")
        for s_ in range(33):
            a.wait(vm=[("W", s_), ("X", s_ // 2)])
            if s_ == 0: stamp("a_w0")
            a("s_barrier")
            if s_ == 0: stamp("a_b0")
            if s_ in (8, 16, 24): stamp(f"a_{s_}")
            if OPT["steps"] and path == 2:
                a("s_memtime s[100:101]"); a.wait0(vm=False); a(f"v_writelane_b32 v200, s100, {s_}")
                if s_ == 32:
                    a(f"s_lshl_b32 s100, s2, 8\n s_add_u32 s100, s100, {TS_OFF+0x10000}\n v_lshlrev_b32 v201, 2, v0\n buffer_store_dword v200, v201, s[{rWS}:{rWS+3}], s100 offen")
            for f in pre[s_]: f()
            if OPT["xlate"] and s_ == 0: ldX(2); ldX(3)
            midf = lambda: [f() for f in mid[s_]]
            if s_ + 2 < 32 and not OPT["nodma"]: ldW(s_ + 2, midf)
            if path != 0: midf()
            if OPT["xlate"] and s_ < 2:
                if s_ == 1: ldX(4); ldX(5)
            elif s_ + 4 < 32 and not OPT["nodma"]: ldX(s_ + 4)
            trk(True)
            for f in post[s_]: f()
            pfs(s_)
        a.wait(vm=[("kv", 1)])
        if path < 2: a("s_branch L_a1done")
    a("s_setprio 1")
    a.vmq[:] = [("kv", 2)] * 4 + [("kv", 3)] * 4
    a.label("L_a1done")
    if not OPT["stop"]: attention_setup()
    a("s_barrier")

QF, OA, LA, SB, PB, KF, VF, ONES = 32, 48, 80, 88, 120, 136, 152, 168
vKc, vKn, vSy, vOne, vCnt, vG, vIdx, vQa, vSt = 16, 17, 18, 19, 20, 21, 172, 173, 174
vD, vDW = 4, 8
def wtile_offsets(dst):
    a(f"""v_lshrrev_b32 v22, 3, v0
      v_lshlrev_b32 v22, 11, v22
      v_and_b32 v23, 1, v2
      v_lshlrev_b32 v23, 2, v23
      v_and_b32 v24, 7, v0
      v_xor_b32 v23, v23, v24
      v_lshl_add_u32 v22, v23, 4, v22
      s_lshl_b32 s{sT0}, s{sCB2}, 7
      v_add_u32 v22, s{sT0}, v22""")
    for i in range(4): a(f"v_xor_b32 v23, {32*(i%2)}, v22\n v_add_u32 v{dst+i}, {i*16384-i*1024}, v23")
def lsum(t, P):
    a(f"v_smfmac_f32_16x16x64_bf16 {vr(LA+4*t,4)}, {vr(ONES,4)}, {vr(P,8)}, v{vIdx}")
sKo, sCn, sDo, sMb, sDs, sO0, sO1 = sA, sB, sC, sD, sE, sF, sG
def attention_setup():
    wtile_offsets(vDW)
    a(f"""s_lshl_b32 s{sT0}, s{sW}, 12
      s_add_u32 s{sT1}, s{sT0}, {QX}
      v_lshl_add_u32 v{vQa}, v0, 4, s{sT1}
      v_add_u32 v{vKc}, {KVR}, v{vKVD}
      v_mov_b32 v{vKn}, {SYNC}
      v_and_b32 v22, 6, v1
      v_mov_b32 v23, 0x3f803f80
      v_cmp_eq_u32 vcc, 0, v22
      v_lshl_add_u32 v{vSy}, v0, 2, v{vKn}
      v_sub_u32 v{vOne}, 1, v0
      v_max_i32 v{vOne}, 0, v{vOne}
      v_cndmask_b32 v{ONES}, 0, v23, vcc
      v_cndmask_b32 v{ONES+1}, 0, v23, vcc
      v_cmp_eq_u32 vcc, 4, v22
      v_and_b32 v22, 1, v1
      v_mul_u32_u24 v22, 0xaaaa, v22
      v_cndmask_b32 v{ONES+2}, 0, v23, vcc
      v_cndmask_b32 v{ONES+3}, 0, v23, vcc
      v_or_b32 v{vIdx}, 0x4444, v22
      s_mov_b32 s{sCn}, 4
      s_add_u32 s{sDo}, s{sT0}, {3*16384}
      s_mov_b32 s{sDs}, 16384
      s_add_u32 s{sMb}, s{sT0}, {KVR}
      s_mov_b32 s{sIT}, 0
      s_mul_i32 s{sO0}, s{sRB}, {RBSZ}
      s_lshl_b32 s{sT1}, s{sCB}, 14
      s_add_u32 s{sO0}, s{sO0}, s{sT1}
      s_lshl_b32 s{sT1}, s{sW}, 11
      s_add_u32 s{sO0}, s{sO0}, s{sT1}
      s_add_u32 s{sO0}, s{sO0}, {112*8192}
      s_add_u32 s{sO1}, s{sO0}, 8192
      v_and_b32 v22, 1, v2
      v_lshlrev_b32 v22, 10, v22
      v_lshrrev_b32 v23, 1, v2
      v_lshl_add_u32 v22, v23, 8, v22
      v_lshl_add_u32 v{vSt}, v1, 4, v22""")
    for r in range(4): a(f"v_mov_b32 v{vD+r}, v{vKVD}")
    for r in list(range(OA, OA + 40, 2)) + list(range(PB + 8, PB + 16, 2)) + list(range(VF + 12, VF + 16, 2)) + [SB + 30]:
        a(f"v_mov_b64 {vr(r,2)}, 0")
def attention():
    qf = lambda t, s_: QF + 8 * t + 4 * s_
    kvo = lambda T: ((T // 4 + 2) % 4) * 16384 + (T % 4) * 4096
    def rdK(T):
        for s_ in range(2): a.lg(f"ds_read_b128 {vr(KF+8*(T%2)+4*s_,4)}, v{vKc} offset:{kvo(T)+1024*s_}", ("K", T))
    def rdV(T):
        for u in range(2): a.lg(f"ds_read_b128 {vr(VF+8*(T%2)+4*u,4)}, v{vKc} offset:{kvo(T)+2048+1024*u}", ("V", T))
    for i in range(2): a.lg(f"ds_read_b128 {vr(QF+4*i,4)}, v{vQa} offset:{1024*i}")
    rdK(0)
    for i in range(2, 4): a.lg(f"ds_read_b128 {vr(QF+4*i,4)}, v{vQa} offset:{1024*i}")
    rdV(0); rdK(1)
    a.wait(lg=("K", 0))
    mf32(SB, KF, qf(0, 0), "0"); mf32(SB, KF + 4, qf(0, 1))
    a("s_nop 7\n s_nop 3")
    a.raw(".p2align 3")
    a.label("L_att")
    def slot(n, hooks):
        T, t = divmod(n, 2); n1 = n + 1; T1, t1 = divmod(n1, 2); Tp, tp = divmod(n - 1, 2)
        S = SB + 16 * (n % 2); S1 = SB + 16 * (n1 % 2)
        P = PB + 8 * (n % 2); Pp = PB + 8 * ((n - 1) % 2)
        e = lambda i: a(f"v_exp_f32 v{S+i}, v{S+i}")
        c = lambda i: a(f"v_cvt_pk_bf16_f32 v{P+i}, v{S+2*i}, v{S+2*i+1}")
        h = lambda k: [f() for f in hooks.get(k, [])]
        e(0)
        if OPT["spos"]: a(f"v_cvt_pk_bf16_f32 v{Pp+7}, v{S1+14}, v{S1+15}")
        h(0); e(1); h(1); e(2)
        if t == 0: a.wait(lg=[("V", T), ("K", T + 1), "cnt"])
        mf32(S1, KF + 8 * (T1 % 2), qf(t1, 0), "0")
        e(3); c(0); e(4); c(1)
        mf32(S1, KF + 8 * (T1 % 2) + 4, qf(t1, 1))
        e(5); e(6); e(7)
        mf32(OA + 16 * tp, VF + 8 * (Tp % 2) + 4, Pp + 4)
        c(2); c(3); e(8); e(9)
        mf32(OA + 16 * t, VF + 8 * (T % 2), P)
        if OPT["spos"] == 0:
            e(10); e(11); c(4); c(5)
            lsum(tp, Pp)
            e(12); h(2); e(13); h(3); e(14); h(4); e(15); c(6); c(7)
        else:
            e(10); c(4); e(11); e(12); c(5); e(13)
            lsum(tp, Pp)
            h(2); e(14); h(3); c(6); e(15); h(4)
    def body(it):
        for cc in range(4):
            c_ = 4 * it + cc
            for k in range(8):
                n = 8 * c_ + k; T, t = divmod(n, 2)
                hk = {}
                if t == 0: hk[2] = [lambda: rdV(T + 1)]; hk[3] = [lambda: rdK(T + 2)]
                if k == 1:
                    hk[2] = [lambda: (a.wait(vm=("kv", c_ + 1)), a.lg(f"ds_add_u32 v{vSy}, v{vOne}"))]
                    if cc == 1: hk[3] = [lambda: (a(f"s_cmp_eq_u32 s{sIT}, 3\n s_cbranch_scc1 L_attwo"), a.label("L_attwo_r"))]
                if k == 3:
                    hk[0] = [lambda: a.lg(f"ds_read_b32 v{vCnt}, v{vKn}", "cnt")] if OPT["arrk"] == 1 else []
                    hk[2] = [lambda: a.lg(f"ds_read_b32 v{vCnt}, v{vKn}", "cnt")] if OPT["arrk"] != 1 else []
                    hk[3] = [lambda: a(f"s_add_u32 m0, s{sMb}, {((c_+1)%4)*16384}")]
                if k == 4:
                    hk[2] = [lambda: a(f"v_cmp_gt_u32 vcc, s{sCn}, v{vCnt}")] + hk[2]
                    hk[3] = [lambda: (a(f"s_cbranch_vccnz L_attspin{cc}"), a.label(f"L_attgo{cc}"))] + hk[3]
                if k in (5, 7):
                    def dma(i):
                        if OPT["anodma"]: return
                        if cc == 0: a(f"s_cmp_eq_u32 s{sIT}, 0\n s_cbranch_scc1 L_nodma{i}")
                        for k2 in (i, i + 1):
                            t_ = f"buffer_load_dwordx4 v{vD+k2}, s[{rE}:{rE+3}], s{sDo} offen offset:{1024*k2} sc1 lds"
                            a.vm(t_, ("kv", c_ + 3)) if c_ else a(t_)
                        if cc == 0: a.label(f"L_nodma{i}")
                    hk[2] = [lambda: dma(k - 5)]
                if k == 7:
                    hk[3] = [lambda: a(f"s_add_u32 s{sDo}, s{sDo}, s{sDs}\n s_add_u32 s{sCn}, s{sCn}, 4")]
                    if cc == 3: hk[4] = [lambda: a(f"s_add_u32 s{sIT}, s{sIT}, 1\n s_cmp_lt_u32 s{sIT}, 4")]
                slot(n, hk)
        a("s_cbranch_scc1 L_att")
    a.loop(body, "att", 3)
    a("s_nop 0")
    if OPT["spos"]: a(f"v_cvt_pk_bf16_f32 v{PB+15}, v{SB+30}, v{SB+31}\n s_nop 1")
    lsum(1, PB + 8); mf32(OA + 16, VF + 12, PB + 12)
    stamp("a_att")
    a(f"s_mov_b32 s{sIT}, 0")
    a.label("L_attfin")
    for t in range(2):
        a(f"v_add_f32 v{26+t}, v{LA+4*t}, v{LA+4*t+1}\n v_rcp_f32 v{22+2*t}, v{26+t}\n s_nop 0\n v_mul_f32 v{22+2*t}, v{22+2*t}, v{vG}")
        for s_ in range(2):
            T_ = SB + 8 * t + 4 * s_
            for r in range(4):
                d = OA + 16 * t + 8 * s_ + 2 * r
                a(f"v_pk_mul_f32 {vr(d,2)}, {vr(d,2)}, {vr(22+2*t,2)} op_sel_hi:[1,0]\n v_cvt_pk_bf16_f32 v{T_+r}, v{d}, v{d+1}")
            a(f"s_nop 1\n v_permlane32_swap_b32 v{T_}, v{T_+2}\n v_permlane32_swap_b32 v{T_+1}, v{T_+3}")
            a(f"buffer_store_dwordx4 {vr(T_,4)}, v{vSt}, s[{rWS}:{rWS+3}], s{sO0+t} offen offset:{512*s_} sc1")
    a(f"s_cmp_lg_u32 s{sIT}, 0\n s_cbranch_scc1 L_attok")
    a(f"s_mov_b32 s{sT0}, {f2u(2.0**-40)}\n s_mov_b32 s{sT1}, {f2u(2.0**100)}\n v_max_f32 v28, v26, v27\n v_mov_b32 v29, 0")
    for r in list(range(OA, OA + 32, 2)) + [26]: a(f"v_pk_fma_f32 v[28:29], {vr(r,2)}, 0, v[28:29]")
    a(f"""v_add_f32 v28, v28, v29
      v_min_f32 v29, v26, v27
      v_cmp_nle_f32 vcc, v28, s{sT1}
      v_cmp_nge_f32 s[{sT2}:{sT3}], v29, s{sT0}
      s_or_b64 vcc, vcc, s[{sT2}:{sT3}]""")
    if OPT["forceslow"]: a("s_branch L_slow")
    a("s_cbranch_vccnz L_slow")
    a.label("L_attok")
    setflag(1)
    stamp("a_end")
    dump_ts_and_end()
    a.label("L_attwo")
    srd(rE, pWO, 1024 * 2048)
    a(f"s_lshl_b32 s{sDo}, s{sW}, 19\n s_add_u32 s{sDo}, s{sDo}, {5*65536}\n s_mov_b32 s{sDs}, 65536")
    a(f"v_mov_b64 {vr(vD,2)}, {vr(vDW,2)}\n v_mov_b64 {vr(vD+2,2)}, {vr(vDW+2,2)}\n s_branch L_attwo_r")
    for cc in range(4):
        a.label(f"L_attspin{cc}")
        a(f"s_mov_b32 s{sT2}, {SPIN_MAX}")
        a.label(f"L_attspin{cc}b")
        a(f"""ds_read_b32 v{vCnt}, v{vKn}
          s_waitcnt lgkmcnt(0)
          v_cmp_gt_u32 vcc, s{sCn}, v{vCnt}
          s_sub_u32 s{sT2}, s{sT2}, 1
          s_cbranch_vccz L_attgo{cc}
          s_cmp_lg_u32 s{sT2}, 0
          s_cbranch_scc1 L_attspin{cc}b
          s_branch L_attgo{cc}""")
    a.label("L_slow")
    NM = 176
    a(f"s_add_u32 s{rE}, s{pWS}, {KV_OFF}\n s_addc_u32 s{rE+1}, s{pWS+1}, 0\n s_mov_b32 s{rE+2}, 0x40000\n s_mov_b32 s{rE+3}, 0x20000")
    a(f"s_waitcnt vmcnt(0) lgkmcnt(0)\n v_mov_b32 v22, 0xff800000\n v_mov_b32 v23, 0xff800000\n s_mov_b32 s{sT0}, 0\n s_mov_b32 s{sIT}, 1")
    a.label("L_slow1")
    a(f"buffer_load_dwordx4 {vr(KF,4)}, v{vKVD}, s[{rE}:{rE+3}], s{sT0} offen sc1\n buffer_load_dwordx4 {vr(KF+4,4)}, v{vKVD}, s[{rE}:{rE+3}], s{sT0} offen offset:1024 sc1\n s_waitcnt vmcnt(0)")
    for t in range(2):
        mf32(SB + 16 * t, KF, qf(t, 0), "0"); mf32(SB + 16 * t, KF + 4, qf(t, 1))
    a("s_nop 7\n s_nop 3")
    for t in range(2):
        for r in range(0, 16, 2): a(f"v_max3_f32 v{22+t}, v{SB+16*t+r}, v{SB+16*t+r+1}, v{22+t}")
    a(f"s_add_u32 s{sT0}, s{sT0}, 4096\n s_cmp_lt_u32 s{sT0}, 0x40000\n s_cbranch_scc1 L_slow1")
    a("v_mov_b32 v24, v22\n v_mov_b32 v25, v23\n s_nop 1\n v_permlane32_swap_b32 v22, v24\n v_permlane32_swap_b32 v23, v25\n v_max_f32 v22, v22, v24\n v_max_f32 v23, v23, v25")
    for t in range(2):
        for r in range(16): a(f"v_sub_f32 v{NM+16*t+r}, 0, v{22+t}")
    for r in range(OA, OA + 40, 2): a(f"v_mov_b64 {vr(r,2)}, 0")
    a(f"s_mov_b32 s{sT0}, 0")
    a.label("L_slow2")
    for i in range(4):
        a(f"buffer_load_dwordx4 {vr(KF+4*i,4)}, v{vKVD}, s[{rE}:{rE+3}], s{sT0} offen offset:{1024*i} sc1")
    a("s_waitcnt vmcnt(0)")
    for t in range(2):
        mf32(SB + 16 * t, KF, qf(t, 0), vr(NM + 16 * t, 16)); mf32(SB + 16 * t, KF + 4, qf(t, 1))
    a("s_nop 7\n s_nop 3")
    for r in range(32): a(f"v_exp_f32 v{SB+r}, v{SB+r}")
    a("s_nop 0")
    for r in range(16): a(f"v_cvt_pk_bf16_f32 v{PB+r}, v{SB+2*r}, v{SB+2*r+1}")
    a("s_nop 1")
    for t in range(2):
        for u in range(2): mf32(OA + 16 * t, KF + 8 + 4 * u, PB + 8 * t + 4 * u)
        lsum(t, PB + 8 * t)
    a(f"s_add_u32 s{sT0}, s{sT0}, 4096\n s_cmp_lt_u32 s{sT0}, 0x40000\n s_cbranch_scc1 L_slow2")
    a("s_nop 7\n s_nop 3\n s_branch L_attfin")

def setflag(which):
    a(f"""s_lshl_b32 s{sT0}, s{sRB}, 13
      s_lshr_b32 s{sT1}, s{sCB}, 2
      s_lshl_b32 s{sT1}, s{sT1}, 7
      s_add_u32 s{sT0}, s{sT0}, s{sT1}
      s_and_b32 s{sT1}, s{sCB}, 3
      s_lshl_b32 s{sT1}, s{sT1}, 2
      s_add_u32 s{sT0}, s{sT0}, s{sT1}
      s_add_u32 s{sT0}, s{sT0}, {FL_OFF+16*which}
      v_mov_b32 v14, {SYNC+4+4*which}
      v_mov_b32 v15, 1""")
    if which == 0: a.wait(vm="hst")
    else: a.wait0(lg=False)
    l = a.newlabel("L_nofl")
    a(f"""s_mov_b64 exec, 1
      ds_add_rtn_u32 v16, v14, v15
      s_mov_b64 exec, 0xffff
      v_lshlrev_b32 v14, 9, v0
      s_waitcnt lgkmcnt(0)
      v_readfirstlane_b32 s{sT1}, v16
      s_cmp_eq_u32 s{sT1}, 3
      s_cbranch_scc0 {l}
      buffer_store_dword v15, v14, s[{rWS}:{rWS+3}], s{sT0} offen sc1""")
    a.label(l)
    a("s_mov_b64 exec, -1")
    a.lgq.clear()
def mbox(which):
    a(f"""s_lshl_b32 s{sT0}, s{sRB2}, 4
      s_add_u32 s{sT0}, s{sT0}, s{sCB2}
      s_lshl_b32 s{sT0}, s{sT0}, 2
      s_add_u32 s{sT0}, s{sT0}, s{sW}
      s_lshl_b32 s{sT0}, s{sT0}, 7
      s_add_u32 s{sT0}, s{sT0}, {FL_OFF+16*which}
      v_and_b32 v15, 3, v0
      v_lshlrev_b32 v15, 2, v15""")
def waitflag(which, name):
    mbox(which)
    a(f"s_mov_b32 s{sT1}, {SPIN_MAX}\n s_mov_b64 exec, 15")
    a.label(name)
    a(f"""buffer_load_dword v17, v15, s[{rWS}:{rWS+3}], s{sT0} offen sc1
      s_waitcnt vmcnt(0)
      v_cmp_ne_u32 vcc, 1, v17
      s_sub_u32 s{sT1}, s{sT1}, 1
      s_cbranch_vccz {name}_x
      s_sleep {OPT['slp']}
      s_cmp_lg_u32 s{sT1}, 0
      s_cbranch_scc1 {name}""")
    a.label(name + "_x")
    a("s_mov_b64 exec, -1")
def waitlds(off, val, name):
    a(f"s_mov_b32 s{sT1}, {SPIN_MAX}\n v_mov_b32 v15, {SYNC+off}")
    a.label(name)
    a(f"""ds_read_b32 v17, v15
      s_waitcnt lgkmcnt(0)
      v_readfirstlane_b32 s{sT0}, v17
      s_cmp_ge_u32 s{sT0}, {val}
      s_cbranch_scc1 {name}_x
      s_sleep 2
      s_sub_u32 s{sT1}, s{sT1}, 1
      s_cmp_lg_u32 s{sT1}, 0
      s_cbranch_scc1 {name}""")
    a.label(name + "_x")

ACC2, HR, WF = 128, 64, 32
acc2 = lambda rt, nt: ACC2 + (rt * 4 + nt) * 4
vWD, vWR, vH, vGM = 3, 7, 11, 16
sWo, sHo, sMw, sRdy = sC, sD, sE, sF
def g2_setup():
    srd(rB, pW2, 3584 * 2048)
    wtile_offsets(vWD)
    a(f"""s_lshl_b32 s{sMw}, s{sW}, 14
      s_mul_i32 s{sWo}, s{sW}, {896*2048}
      v_lshrrev_b32 v14, 2, v1
      v_lshl_add_u32 v14, v2, 3, v14
      v_and_b32 v15, 3, v1
      v_lshlrev_b32 v15, 3, v15
      v_lshl_add_u32 v14, v14, 7, v15
      v_and_b32 v15, 1, v2
      v_lshrrev_b32 v30, 3, v1
      v_lshl_add_u32 v15, v30, 1, v15
      v_lshl_add_u32 v14, v15, 5, v14
      v_add_u32 v14, s{sMw}, v14""")
    for nt in range(4): a(f"v_xor_b32 v{vWR+nt}, {32*nt}, v14")
def dmaW(i, k):
    if OPT["g2nold"] and i > 2: return
    if k == 0: a(f"s_add_u32 m0, s{sMw}, {(i%4)*4096}\n s_nop 0")
    a.vm(f"buffer_load_dwordx4 v{vWD+k}, s[{rB}:{rB+3}], s{sWo} offen offset:{1024*k} {OPT['wfl'].replace('_', ' ')} lds", ("W2", i))
    if k == 3: a(f"s_add_u32 s{sWo}, s{sWo}, 65536")
def g_phase2():
    def ldH(i, rt):
        if OPT["g2nold"] and i > 1: return
        a.vm(f"buffer_load_dwordx4 {vr(HR+32*(i%2)+4*rt,4)}, v{vH+rt//2}, s[{rWS}:{rWS+3}], s{sHo} offen offset:{1024*(rt%2)} {OPT['hfl'].replace('_', ' ')}", ("H", i, rt))
        if rt == 7: a(f"s_add_u32 s{sHo}, s{sHo}, 8192")
    def rdW2(i, nt, e, off=None):
        off = (i % 4) * 4096 if off is None else off
        a.lg(f"ds_read_b64_tr_b16 {vr(WF+16*(i%2)+4*nt+2*e,2)}, v{vWR+nt} offset:{off+512*e}", ("W2", i))
    def ooff():
        a(f"s_mul_i32 s{sHo}, s{sRB2}, {RBSZ}\n s_lshl_b32 s{sT1}, s{sW}, 16\n s_add_u32 s{sHo}, s{sHo}, s{sT1}\n s_add_u32 s{sHo}, s{sHo}, {112*8192}")
    setflag(0)
    stamp("g_flag")
    if OPT["nog2"]: dump_ts_and_end()
    a(f"""s_mul_i32 s{sHo}, s{sRB2}, {RBSZ}
      s_mul_i32 s{sT1}, s{sW}, {28*8192}
      s_add_u32 s{sHo}, s{sHo}, s{sT1}
      s_lshl_b32 s{sT2}, s{sRB2}, 9
      s_add_u32 s{sT2}, s{sT2}, {G_OFF}
      v_lshlrev_b32 v15, 2, v1""")
    for p in range(4):
        a(f"""s_add_u32 s{sT0}, s{sW}, {p+1}
          s_and_b32 s{sT0}, s{sT0}, 3
          s_lshl_b32 s{sT1}, s{sT0}, 11
          v_lshl_add_u32 v{vH+p}, v0, 4, s{sT1}
          s_lshl_b32 s{sT0}, s{sT0}, 7
          s_add_u32 s{sT0}, s{sT0}, s{sT2}""")
        for h in range(2): a(f"buffer_load_dword v{vGM+4*p+2*h}, v15, s[{rWS}:{rWS+3}], s{sT0} offen offset:{64*h} sc1")
    for r in range(0, 128, 2): a(f"v_mov_b64 {vr(ACC2+r,2)}, 0")
    a(f"""s_lshl_b32 s{sT0}, s2, 1
      s_add_u32 s{sT0}, s{sT0}, s{sW}
      s_add_u32 s{sT1}, s2, 512
      s_cmp_eq_u32 s{sW}, 2
      s_cselect_b32 s{sT0}, s{sT1}, s{sT0}
      s_lshr_b32 s{sG}, s{sT0}, 7
      s_bfe_u32 s{sT1}, s{sT0}, 0x20005
      s_mul_i32 s{sT1}, s{sT1}, {896*2048}
      s_and_b32 s{sT0}, s{sT0}, 31
      s_lshl_b32 s{sT0}, s{sT0}, 13
      s_add_u32 s{sT0}, s{sT0}, s{sT1}
      s_add_u32 s{sT1}, s{sG}, 2
      s_lshl_b32 s{sT1}, s{sT1}, 18
      s_add_u32 s{sT0}, s{sT0}, s{sT1}
      s_cmp_eq_u32 s{sG}, 5
      s_cselect_b32 s{sG}, -1, s{sG}
      s_lshl_b32 s{sT1}, s2, 13
      s_and_b32 s{sT2}, s{sI}, 1
      s_cmp_eq_u32 s{sW}, 3
      s_cselect_b32 s{sA}, s{sT1}, s{sT0}
      s_cselect_b32 s{sG}, s{sT2}, s{sG}
      s_cselect_b32 s{rPF}, s{pWO}, s{pW2}
      s_cselect_b32 s{rPF+1}, s{pWO+1}, s{pW2+1}
      s_mov_b32 s{sT0}, {3584*2048}
      s_cselect_b32 s{rPF+2}, {1024*2048}, s{sT0}
      s_mov_b32 s{rPF+3}, 0x20000""")
    waitflag(0, "L_wh")
    a.vmq.clear(); a.lgq.clear()
    for i in range(2):
        for rt in range(8): ldH(i, rt)
    for nt in range(4): rdW2(0, nt, 0); rdW2(0, nt, 1)
    for rt in range(8): a(f"v_sub_f32 v{vGM+2*rt}, 1.0, v{vGM+2*rt}")
    stamp("g_l2")
    a(f"s_setprio {OPT['g2prio']}\n s_mov_b32 s{sIT}, 0")
    a.raw(".p2align 3")
    a.label("L_g2loop")
    def body(it):
        for ts in range(4):
            i = 4 * it + ts
            if ts == 0 and OPT["pf2"]: a(f"s_cmp_eq_u32 s{sIT}, s{sG}\n s_cbranch_scc1 L_hookF"); a.label("L_hookF_r")
            if ts == 1: a(f"s_cmp_ge_u32 s{sIT}, 4\n s_cbranch_scc1 L_hookW"); a.label("L_hookW_r")
            if ts == 2: a(f"s_cmp_eq_u32 s{sIT}, 6\n s_cbranch_scc1 L_hookH"); a.label("L_hookH_r")
            if OPT["grp"]:
                for p in range(4):
                    a.wait(vm=("H", i, 2 * p + 1), lg=("W2", i) if p == 0 else ())
                    for rt in (2 * p, 2 * p + 1):
                        for nt in range(4): mf16(acc2(rt, nt), WF + 16 * (i % 2) + 4 * nt, HR + 32 * (i % 2) + 4 * rt)
                    if p == 0: a.wait(vm=("W2", i + 1))
                    for k in range(3 * p, min(3 * p + 3, 8)): rdW2(i + 1, k // 2, k % 2)
                    dmaW(i + 3, p); ldH(i + 2, 2 * p); ldH(i + 2, 2 * p + 1)
                continue
            for rt in range(8):
                a.wait(vm=("H", i, rt), lg=("W2", i) if rt == 0 else ())
                fill = [[], [], [], []]
                if rt < 4: fill[1].append(lambda: dmaW(i + 3, rt))
                if rt == 2: fill[2].append(lambda: a.wait(vm=("W2", i + 1)))
                if 3 <= rt < 7:
                    fill[0].append(lambda: rdW2(i + 1, rt - 3, 0)); fill[2].append(lambda: rdW2(i + 1, rt - 3, 1))
                fill[3].append(lambda: ldH(i + 2, rt))
                for nt in range(4):
                    mf16(acc2(rt, nt), WF + 16 * (i % 2) + 4 * nt, HR + 32 * (i % 2) + 4 * rt)
                    for f in fill[nt]: f()
        a(f"s_add_u32 s{sIT}, s{sIT}, 1")
        if OPT["pause"] < 7: a(f"s_cmp_eq_u32 s{sIT}, {OPT['pause']}\n s_cbranch_scc1 L_hookP")
        a(f"s_cmp_lt_u32 s{sIT}, 7\n s_cbranch_scc1 L_g2loop")
    a.loop(body, "g2")
    for k in range(4): dmaW(31, k)
    srd(rA, pB2, 2048); srd(rC, pOUT, 2048 * 2048)
    a(f"s_cmp_lg_u32 s{sRdy}, 0\n s_cbranch_scc1 L_ordy")
    waitflag(1, "L_wo")
    ooff()
    a.vmq.clear()
    for i in (28, 29):
        for rt in range(8): ldH(i, rt)
    a.label("L_ordy")
    a.vmq[:] = [("W2", 29), ("W2", 30)] + a.vmq
    a.lgq[:] = [("W2", 28)] * 8
    stamp("g_hook")
    for rt in range(8):
        for r in range(0, 16, 2):
            d = ACC2 + 16 * rt + r
            a(f"v_pk_mul_f32 {vr(d,2)}, {vr(d,2)}, {vr(vGM+2*rt,2)} op_sel_hi:[1,0]")
    vS0, vS1, vB2 = 3, 4, 18
    a(f"""s_lshl_b32 s{sT0}, s{sCB2}, 7
      v_lshlrev_b32 v15, 3, v2
      v_lshl_add_u32 v{vS0}, v0, 4, s{sMw}
      s_lshl_b32 s{sT2}, s{sW}, 12
      s_add_u32 s{sT2}, s{sT2}, {QX}
      v_lshl_add_u32 v{vS1}, v0, 4, s{sT2}
      s_sub_u32 s{sT2}, s{sT2}, s{sMw}""")
    for nt in range(4): a.vm(f"buffer_load_dwordx2 {vr(vB2+2*nt,2)}, v15, s[{rA}:{rA+3}], s{sT0} offen offset:{32*nt}", "b2")
    WOFF = {32: 0, 33: 32768, 34: 49152, 35: 0}
    def wr(p, k):
        if p < 2: a.lg(f"ds_write_b128 v{vS0}, {vr(ACC2+32*p+4*k,4)} offset:{8192*p+1024*k}")
        else: a.lg(f"ds_write_b128 v{vS1}, {vr(ACC2+32*p+4*k,4)} offset:{16384*(k//4)+1024*(k%4)}")
    OWN = ACC2 + 96
    vRd = [5, 6, 16]; vTw = [11, 12, 13, 14]; vTr, vOo = 26, 27
    extra = {}
    t_ = []
    for p in range(3):
        t_ += [f"s_sub_u32 s{sT1}, s{sW}, {p+1}\n s_and_b32 s{sT1}, s{sT1}, 3"]
        if p < 2: t_ += [f"s_lshl_b32 s{sT1}, s{sT1}, 14\n v_lshl_add_u32 v{vRd[p]}, v0, 4, s{sT1}"]
        else: t_ += [f"s_lshl_b32 s{sT1}, s{sT1}, 12\n s_add_u32 s{sT1}, s{sT1}, {QX}", f"v_lshl_add_u32 v{vRd[p]}, v0, 4, s{sT1}"]
    extra[33, 0] = t_[:4]; extra[33, 1] = t_[4:]
    t_ = f"""s_lshl_b32 s{sT2}, s{sW}, 12
      s_add_u32 s{sT2}, s{sT2}, {KVR+16384}
      v_lshrrev_b32 v15, 3, v0
      v_and_b32 v17, 7, v0
      v_xor_b32 v{vTr}, v15, v17
      v_lshlrev_b32 v{vTr}, 4, v{vTr}
      v_lshl_add_u32 v{vTr}, v15, 7, v{vTr}
      v_add_u32 v{vTr}, s{sT2}, v{vTr}
      v_lshlrev_b32 v{vOo}, 4, v17
      v_lshl_add_u32 v{vOo}, v15, 11, v{vOo}
      v_and_b32 v15, 7, v1
      v_lshrrev_b32 v17, 1, v2
      v_xor_b32 v15, v15, v17
      v_lshlrev_b32 v15, 4, v15
      v_and_b32 v17, 1, v2
      v_lshl_add_u32 v15, v17, 3, v15
      v_lshl_add_u32 v15, v1, 7, v15
      v_add_u32 v{vTw[0]}, s{sT2}, v15
      v_xor_b32 v{vTw[1]}, 32, v{vTw[0]}
      v_xor_b32 v{vTw[2]}, 64, v{vTw[0]}
      v_xor_b32 v{vTw[3]}, 96, v{vTw[0]}
      s_lshl_b32 s{sT0}, s{sCB2}, 7
      s_lshl_b32 s{sT1}, s{sRB2}, 18
      s_add_u32 s{sT0}, s{sT0}, s{sT1}""".split("\n")
    for r in range(3): extra[34, r] = ["\n".join(t_[8*r+2*k:8*r+2*k+2]) for k in range(4)]
    extra[34, 3] = [f"s_lshl_b32 s{sT1}, s{sW}, 16", f"s_add_u32 s{sT0}, s{sT0}, s{sT1}"]
    cv = []
    for nt in range(4):
        cv += [f"v_lshlrev_b32 v{HR+4*nt}, 16, v{vB2+2*nt}", f"v_and_b32 v{HR+1+4*nt}, 0xffff0000, v{vB2+2*nt}",
               f"v_lshlrev_b32 v{HR+2+4*nt}, 16, v{vB2+2*nt+1}", f"v_and_b32 v{HR+3+4*nt}, 0xffff0000, v{vB2+2*nt+1}"]
    for r in range(4): extra[34, 4 + r] = cv[4*r:4*r+4]
    fm = [f"v_pk_fma_f32 {vr(OWN+4*k+r,2)}, {vr(HR+4*(k%4)+r,2)}, {vr(vGM+12+2*(k//4),2)}, {vr(OWN+4*k+r,2)} op_sel_hi:[1,0,1]" for k in range(8) for r in (0, 2)]
    for r in range(2): extra[35, r] = ["\n".join(fm[8*r+2*k:8*r+2*k+2]) for k in range(4)]
    for i in range(28, 36):
        if i == 32: stamp("g_32")
        for rt in range(8):
            a.wait(vm=("H", i, rt), lg=("W2", i) if rt == 0 else ())
            fill = [[], [], [], []]
            if rt == 1 and i == 31: fill[0] += [lambda: a("\n".join(f"v_add_u32 v{vWR+nt}, s{sT2}, v{vWR+nt}" for nt in range(4)))]
            if rt == 1 and i == 32:
                fill[0] += [lambda: a("\n".join(f"v_add_u32 v{vWR+nt}, 16384, v{vWR+nt}" for nt in range(4)))]
                fill[3] += [lambda: waitlds(8, 4, "L_wa")]
            if rt == 2 and i == 30: fill[2].append(lambda: a.wait(vm="b2"))
            if 3 <= rt < 7 and i < 35:
                fill[0].append(lambda: rdW2(i + 1, rt - 3, 0, WOFF.get(i + 1))); fill[2].append(lambda: rdW2(i + 1, rt - 3, 1, WOFF.get(i + 1)))
            if i < 34: fill[3].append(lambda: ldH(i + 2, rt))
            for k, x in enumerate(extra.get((i, rt), [])): fill[k].append(lambda x=x: a(x))
            if i == 35 and rt >= 2:
                for nt in range(4): fill[nt].append(lambda nt=nt: wr((rt - 2) // 2, 4 * (rt % 2) + nt))
            for nt in range(4):
                mf16(acc2(rt, nt), WF + 16 * (i % 2) + 4 * nt, HR + 32 * (i % 2) + 4 * rt)
                for f in fill[nt]: f()
    a.wait0(vm=False)
    stamp("g_36")
    a("s_barrier")
    stamp("g_bar")
    rds = [(p, k) for k in range(8) for p in range(3)]
    def rd(n):
        if n < 24:
            p, k = rds[n]
            a.lg(f"ds_read_b128 {vr(ACC2+32*p+4*k,4)}, v{vRd[p]} offset:{8192*p+1024*k if p < 2 else 16384*(k//4)+1024*(k%4)}", ("r", k))
    for n in range(12): rd(n)
    def st(g_):
        a.wait(lg=("u", g_ // 2, g_ % 2))
        a(f"buffer_store_dwordx4 {vr(HR+32+4*g_,4)}, v{vOo}, s[{rC}:{rC+3}], s{sT0} offen{['', ' sc1', ' nt'][OPT['osc']]}")
        if g_ < 3: a(f"s_add_u32 s{sT0}, s{sT0}, 16384")
    for k in range(8):
        a.wait(lg=("r", k))
        for r in (0, 2): a(f"v_pk_add_f32 {vr(ACC2+4*k+r,2)}, {vr(ACC2+4*k+r,2)}, {vr(ACC2+32+4*k+r,2)}")
        rd(12 + 3 * k)
        for r in (0, 2): a(f"v_pk_add_f32 {vr(OWN+4*k+r,2)}, {vr(OWN+4*k+r,2)}, {vr(ACC2+64+4*k+r,2)}")
        rd(13 + 3 * k)
        for r in (0, 2): a(f"v_pk_add_f32 {vr(OWN+4*k+r,2)}, {vr(OWN+4*k+r,2)}, {vr(ACC2+4*k+r,2)}")
        rd(14 + 3 * k)
        T_ = HR + 2 * k
        a(f"v_cvt_pk_bf16_f32 v{T_}, v{OWN+4*k}, v{OWN+4*k+1}\n v_cvt_pk_bf16_f32 v{T_+1}, v{OWN+4*k+2}, v{OWN+4*k+3}")
        a.lg(f"ds_write_b64 v{vTw[k%4]}, {vr(T_,2)} offset:{2048*(k//4)}")
        if k % 4 == 3:
            for h in range(2): a.lg(f"ds_read_b128 {vr(HR+32+8*(k//4)+4*h,4)}, v{vTr} offset:{2048*(k//4)+1024*h}", ("u", k // 4, h))
    for g_ in range(4): st(g_)
    if OPT["ts"]: a.wait0(); stamp("g_end")
    if OPT["padto"]:
        a.label("L_pad")
        a(f"s_memrealtime s[98:99]\n s_waitcnt lgkmcnt(0)\n s_sub_u32 s98, s98, s96\n s_cmp_lt_u32 s98, {OPT['padto']}\n s_cbranch_scc1 L_pad")
    dump_ts_and_end()
    if OPT["pf2"]:
        a.label("L_hookF")
        a(f"v_lshlrev_b32 v15, 7, v0\n buffer_load_dword v19, v15, s[{rPF}:{rPF+3}], s{sA} offen\n s_branch L_hookF_r")
    a.label("L_hookW")
    a(f"s_cmp_eq_u32 s{sIT}, 5\n s_cbranch_scc1 L_hookW_r\n s_cmp_eq_u32 s{sIT}, 6\n s_cbranch_scc1 L_hookW6")
    stamp("g_17")
    waitlds(0, 4, "L_wq")
    srd(rA, pWO, 1024 * 2048)
    a(f"s_lshl_b32 s{sT0}, s{sW}, 12\n s_add_u32 m0, s{sT0}, {QX}\n s_lshl_b32 s{sT0}, s{sW}, 19\n s_add_u32 s{sT0}, s{sT0}, {4*65536}")
    for k in range(4): a(f"buffer_load_dwordx4 v{vWD+k}, s[{rA}:{rA+3}], s{sT0} offen offset:{1024*k} lds")
    a("s_branch L_hookW_r")
    a.label("L_hookW6")
    stamp("g_25")
    a(f"s_mov_b32 s{rB}, s{pWO}\n s_mov_b32 s{rB+1}, s{pWO+1}\n s_mov_b32 s{rB+2}, {1024*2048}\n s_lshl_b32 s{sWo}, s{sW}, 19")
    mbox(1)
    a(f"buffer_load_dword v17, v15, s[{rWS}:{rWS+3}], s{sT0} offen sc1\n s_branch L_hookW_r")
    a.label("L_hookH")
    ooff()
    a(f"""s_waitcnt vmcnt({0 if OPT["g2nold"] else 12})
      v_cmp_ne_u32 vcc, 1, v17
      s_cmp_eq_u64 vcc, 0
      s_cselect_b32 s{sRdy}, 1, 0
      s_cselect_b32 s{sHo}, s{sHo}, {OOB}
      s_branch L_hookH_r""")
    if OPT["pause"] < 7:
        a.label("L_hookP")
        waitlds(0, OPT["pcnt"], "L_hookP2")
        a("s_branch L_g2loop")

prologue()
section("g")
a.label("L_roleG")
g_phase1()
if OPT["stop"] == 1:
    stamp("g_bq"); g_hstore(); a.wait0(); stamp("g_hst"); dump_ts_and_end()
else:
    if OPT["wlate"]: g_hstore(OPT["hfirst"], 7)
    g2_setup()
    for i in range(3):
        for k in range(4): dmaW(i, k)
    if not OPT["wlate"]: g_hstore()
    g_phase2()
a_phase1()
if OPT["stop"] == 1:
    a(f"s_lshl_b32 s{sT0}, s{sW}, 12\n s_add_u32 s{sT1}, s{sT0}, {QX}\n v_lshl_add_u32 v16, v0, 4, s{sT1}")
    for i in range(4): a(f"ds_read_b128 {vr(32+4*i,4)}, v16 offset:{1024*i}")
    a(f"s_lshl_b32 s{sT1}, s{sRB}, 4\n s_add_u32 s{sT1}, s{sT1}, s{sCB}\n s_lshl_b32 s{sT1}, s{sT1}, 14\n s_add_u32 s{sT0}, s{sT0}, s{sT1}\n s_add_u32 s{sT0}, s{sT0}, {QD_OFF}")
    a.wait0()
    for i in range(4): a(f"buffer_store_dwordx4 {vr(32+4*i,4)}, v{vKVD}, s[{rWS}:{rWS+3}], s{sT0} offen offset:{1024*i}")
    dump_ts_and_end()
else:
    stamp("a_bq")
    attention()
a.label("L_exit")
a("s_endpgm")
a.label("L_codeend")

HDR = open("cdna_kernels/" + KNAME[:-7] + ".s.ref").read().split("; Override launch")[0]
text = HDR + f"; @launch grid=(256,1,1) block=(512,1,1) lds={LDS_BYTES}\n"
text += f'.amdgcn_target "amdgcn-amd-amdhsa--gfx950"\n.text\n.globl {KNAME}\n.p2align 8\n.type {KNAME},@function\n{KNAME}:\n'
a.out = SEC['head'] + SEC['st1'] + SEC['st0'] + SEC['st2'] + SEC['g'] + SEC['main']
body = a.text()
nbad = check(body)
text += body
text += f""".section .rodata,"a"
.p2align 6
.amdhsa_kernel {KNAME}
  .amdhsa_next_free_vgpr 256
  .amdhsa_next_free_sgpr 102
  .amdhsa_accum_offset 256
  .amdhsa_group_segment_fixed_size 0
  .amdhsa_kernarg_size 112
  .amdhsa_user_sgpr_count 2
  .amdhsa_user_sgpr_kernarg_segment_ptr 1
  .amdhsa_system_sgpr_workgroup_id_x 1
.end_amdhsa_kernel
"""
open(sys.argv[1], "w").write(text)
if nbad: sys.exit(f"{nbad} hazards")
```

```python
import sys, math
from asmlib import *

KNAME = "gated_mix__grouped_kv_mqa__dense_activation_squared_relu__prompt_kernel"
OPT = dict(stop=0, ts=0, pd=8, forceslow=0, nodma=0, nokv=0, nopf=0, nords=0, lead=6, pfnt=0, far=99, pf2=1, pf2b=2, gprio=2, nog2=0, g2nold=0, anodma=0, g2prio=0, dbgts=0, slp=2, th=0, farw2=1, hglob=1, arrk=1, wlate=1, map2=0, steps=0, kvskip='', pause=99, pcnt=64, grp=1, osc=1, padto=0, st2=0, spos=0, hfirst=0, p0prio=3, d0prio=1, xlate=0, ring=6, h3prio=1, hfl='sc1', wfl='', xfl='', padat='')
for a_ in sys.argv[2:]:
    k, v = a_.split("="); OPT[k] = int(v) if v.lstrip('-').isdigit() else v

RBSZ = 144 * 8192
KV_OFF = 0x1200000; G_OFF = 0x1240000; KF_OFF = 0x1244000; FL_OFF = 0x1248000; WS_USED = 0x1268000
QD_OFF = 0x1400000; TS_OFF = 0x1800000
WS_SIZE = 0x2000000 if (OPT["stop"] or OPT["ts"]) else WS_USED
OOB = 0x40000000
W1R = 0; W1S = 14336
WQR = 57344; WQS = 4096
XR = 73728; XS = 16384
KVST = 122880
SYNC = 155648
GT = SYNC + 256
LDS_BYTES = GT + 2048
QX = XR
KVR = 90112
pX, pWQ, pWK, pWV, pWO, pW1, pB1, pW2, pB2, pGATE, pOUT, pDBG, pWS = 4, 6, 8, 10, 12, 16, 18, 20, 22, 24, 26, 28, 30
rA, rB, rC, rD, rWS, rDBG, rPF, rE = 32, 36, 40, 44, 48, 52, 56, 60
sRB, sCB, sRB2, sCB2, sI, sW = 64, 65, 66, 67, 68, 69
sT0, sT1, sT2, sT3, sT4, sT5 = 70, 71, 72, 73, 74, 75
sIT, sA, sB, sC, sD, sE, sF, sG = 76, 77, 78, 79, 80, 81, 82, 83
sTS = 84
SPIN_MAX = 1 << 18

a = Asm()
SEC = {}
def section(n):
    a.out = SEC.setdefault(n, [])
section("head")
def kwait():
    a("s_waitcnt lgkmcnt(0)"); stamp("kw"); srd(rWS, pWS, WS_SIZE)
def srd(r, p, size):
    a(f"s_mov_b32 s{r}, s{p}\n s_mov_b32 s{r+1}, s{p+1}\n s_mov_b32 s{r+2}, {size}\n s_mov_b32 s{r+3}, 0x20000")
nts = [0]
STAMPS = {1: dict(g_b0=1, g_end1=2, g_bq=3, g_hst=4, g_pre=5, a_set=1, a_w0=2, a_8=3, a_16=4, a_24=5),
          0: dict(g_end1=1, g_flag=2, g_l2=3, g_hook=4, g_end=5, a_b0=1, a_16=2, a_bq=3, a_att=4, a_end=5)}[OPT["stop"]]
if OPT["st2"] == 1: STAMPS.update(g_end1=0, g_flag=0, g_l2=1, g_17=2, g_25=3)
if OPT["st2"] == 3: STAMPS = dict(kw=1, g_pre=2, g_bias=3, g_rdy=4, g_b0=5, a_iss=2, a_set=3, a_w0=4, a_b0=5)
if OPT["st2"] == 2: STAMPS.update(g_end1=0, g_flag=0, g_l2=0, g_hook=1, g_32=2, g_36=3, g_bar=4)
def stamp(n):
    if n == OPT["padat"]: a("s_memrealtime s[96:97]"); a.wait0(vm=False)
    i = STAMPS.get(n)
    if OPT["ts"] and i:
        a(f"{'s_memrealtime' if OPT['ts'] == 2 else 's_memtime'} s[{sTS+2*i}:{sTS+2*i+1}]"); a.wait0(vm=False)
def mf16(d, x, y, c=None):
    a(f"v_mfma_f32_16x16x32_bf16 {vr(d,4)}, {vr(x,4)}, {vr(y,4)}, {vr(d,4) if c is None else c}")
def mf32(d, x, y, c=None):
    a(f"v_mfma_f32_32x32x16_bf16 {vr(d,16)}, {vr(x,4)}, {vr(y,4)}, {vr(d,16) if c is None else c}")
def dump_ts_and_end():
    if OPT["ts"]:
        a("s_memrealtime s[98:99]"); a.wait0()
        if OPT["dbgts"]:
            l = a.newlabel("L_nots")
            srd(rDBG, pDBG, 256)
            a(f"s_cmp_lg_u32 s2, 100\n s_cbranch_scc1 {l}\n s_cmp_lg_u32 s{sW}, 0\n s_cbranch_scc1 {l}")
            for i, k in enumerate((1, 2, 3, 4, 5, 7)): a(f"s_sub_u32 s{sT0}, s{sTS+2*k}, s96\n v_mov_b32 v{8+i}, s{sT0}")
            a(f"s_lshl_b32 s{sT0}, s3, 3\n s_add_u32 s{sT0}, s{sT0}, 8\n v_mov_b32 v2, 0\n s_mov_b64 exec, 1")
            a(f"buffer_store_dwordx2 v[8:9], v2, s[{rDBG}:{rDBG+3}], s{sT0} offen")
            a(f"buffer_store_dwordx4 v[10:13], v2, s[{rDBG}:{rDBG+3}], s{sT0} offen offset:8")
            a.label(l)
        else:
            for i in range(8): a(f"v_mov_b32 v{8+i}, s{sTS+2*i}")
            a(f"s_lshl_b32 s{sT0}, s2, 8\n s_lshl_b32 s{sT1}, s3, 5\n s_add_u32 s{sT0}, s{sT0}, s{sT1}\n s_add_u32 s{sT0}, s{sT0}, {TS_OFF}")
            a(f"v_mov_b32 v2, 0\n s_mov_b64 exec, 1")
            a(f"buffer_store_dwordx4 v[8:11], v2, s[{rWS}:{rWS+3}], s{sT0} offen")
            a(f"buffer_store_dwordx4 v[12:15], v2, s[{rWS}:{rWS+3}], s{sT0} offen offset:16")
    a("s_endpgm")

def prologue():
    m = OPT["map2"]
    lx, lc = {0: (1, 3), 2: (1, 3), 3: (2, 2), 4: (0, 4)}[m]
    MAP2 = f"""s_lshr_b32 s{sT1}, s{sT0}, {lx}
      s_lshl_b32 s{sT1}, s{sT1}, {5-lc}
      s_lshr_b32 s{sT2}, s{sI}, {lc}
      s_add_u32 s{sRB2}, s{sT1}, s{sT2}
      s_and_b32 s{sT1}, s{sT0}, {(1<<lx)-1}
      s_and_b32 s{sT2}, s{sI}, {(1<<lc)-1}
      s_lshl_b32 s{sT2 if m == 2 else sT1}, s{sT2 if m == 2 else sT1}, {lx if m == 2 else lc}
      s_add_u32 s{sCB2}, s{sT1}, s{sT2}"""
    a("s_cmp_ge_u32 s2, 256\n s_cbranch_scc1 L_exit")
    a("s_load_dwordx16 s[4:19], s[0:1], 0\n s_load_dwordx8 s[20:27], s[0:1], 64\n s_load_dwordx4 s[28:31], s[0:1], 96")
    if OPT["ts"] or OPT["th"] or OPT["padto"]:
        a(f"s_memtime s[{sTS}:{sTS+1}]\n s_memrealtime s[96:97]")
    a(f"""v_lshrrev_b32 v1, 6, v0
      v_and_b32 v0, 63, v0
      v_readfirstlane_b32 s3, v1
      s_lshr_b32 s{sI}, s2, 3
      s_and_b32 s{sT0}, s2, 7
      s_lshr_b32 s{sT1}, s{sT0}, 2
      s_lshl_b32 s{sT1}, s{sT1}, 3
      s_lshr_b32 s{sT2}, s{sI}, 2
      s_add_u32 s{sRB}, s{sT1}, s{sT2}
      s_and_b32 s{sT1}, s{sT0}, 3
      s_lshl_b32 s{sT1}, s{sT1}, 2
      s_and_b32 s{sT2}, s{sI}, 3
      s_add_u32 s{sCB}, s{sT1}, s{sT2}
      {MAP2}
      s_and_b32 s{sW}, s3, 3
      v_and_b32 v1, 15, v0
      v_lshrrev_b32 v2, 4, v0""")
    a("s_cmp_lt_u32 s3, 4\n s_cbranch_scc1 L_roleG\n s_setprio 1\n s_cmp_eq_u32 s3, 7\n s_cbranch_scc1 L_st2\n s_cmp_lg_u32 s3, 6\n s_cbranch_scc1 L_st0")

ACC1 = 112
acc1 = lambda ft, rt: ACC1 + (ft * 4 + rt) * 4
XF = [56, 72]; WRING = 88; NR = OPT['ring']; RD = NR - 1
vX = [3, 4]; vXb = [5, 6]; vW1 = [7, 8]; vWq = [9, 10]; vPF, vJ, vLP = 11, 12, 13
def g_phase1():
    PD = OPT["pd"]
    sRG, sCG = sA, sB
    sXo, sPo, sPe, sPd = sC, sD, sE, sF
    a(f"s_and_b32 s{sRG}, s{sW}, 1\n s_lshr_b32 s{sCG}, s{sW}, 1")
    a(f"""s_cmp_lt_u32 s{sW}, 2
      s_cbranch_scc0 L_nocode
      s_getpc_b64 s[{rE}:{rE+1}]""")
    a.label("L_pc")
    a(f"""s_mov_b32 s{rE+2}, L_codeend-L_pc
      s_mov_b32 s{rE+3}, 0x20000
      s_lshl_b32 s{sT1}, s{sI}, 10
      s_lshl_b32 s{sT2}, s{sW}, 15
      s_add_u32 s{sT1}, s{sT1}, s{sT2}
      v_lshlrev_b32 v15, 7, v0
      s_mov_b64 exec, 0xff
      buffer_load_dword v{vJ}, v15, s[{rE}:{rE+3}], s{sT1} offen
      s_mov_b64 exec, -1""")
    a.label("L_nocode")
    a(f"""s_mul_i32 s{sT0}, s{sCB}, 448
      s_mul_i32 s{sT1}, s{sCG}, 224
      s_add_u32 s{sT0}, s{sT0}, s{sT1}
      v_lshlrev_b32 v14, 2, v0
      s_mov_b32 s{rA+2}, 7168
      s_mov_b32 s{rA+3}, 0x20000
      s_setprio 3
      s_waitcnt lgkmcnt(0)
      s_mov_b32 s{rA}, s{pB1}
      s_mov_b32 s{rA+1}, s{pB1+1}
      buffer_load_dword v33, v14, s[{rA}:{rA+3}], s{sT0} offen
      s_setprio 0""")
    kwait()
    for r in range(0, 32, 2): a(f"v_mov_b64 {vr(ACC1+r,2)}, 0")
    a(f"""v_lshrrev_b32 v14, 1, v1
      v_xor_b32 v14, v14, v2
      v_lshlrev_b32 v14, 4, v14
      v_lshl_add_u32 v14, v1, 7, v14
      s_lshl_b32 s{sT0}, s{sRG}, 13
      s_add_u32 s{sT0}, s{sT0}, {XR}
      v_add_u32 v{vXb[0]}, s{sT0}, v14
      v_xor_b32 v{vXb[1]}, 64, v{vXb[0]}
      v_mov_b32 v{vX[0]}, v{vXb[0]}
      v_mov_b32 v{vX[1]}, v{vXb[1]}
      s_mov_b32 s{sXo}, 0
      v_lshrrev_b32 v14, 2, v1
      v_lshl_add_u32 v14, v2, 3, v14
      v_and_b32 v15, 3, v1
      v_lshlrev_b32 v15, 3, v15
      v_mul_u32_u24 v30, 448, v14
      v_add_u32 v30, v30, v15
      s_mul_i32 s{sT0}, s{sCG}, 224
      v_add_u32 v30, s{sT0}, v30
      v_and_b32 v31, 1, v2
      v_lshlrev_b32 v32, 5, v31
      s_lshl_b32 s{sT1}, s{sCG}, 1
      s_sub_u32 s{sT1}, 1, s{sT1}
      v_mul_lo_u32 v32, v32, s{sT1}
      v_add_u32 v{vW1[0]}, v30, v32
      v_sub_u32 v{vW1[1]}, v30, v32
      v_lshrrev_b32 v32, 3, v1
      v_lshl_add_u32 v31, v32, 1, v31
      s_lshl_b32 s{sT0}, s{sCG}, 1
      v_xor_b32 v31, s{sT0}, v31
      v_lshl_add_u32 v15, v31, 5, v15
      v_lshl_add_u32 v15, v14, 7, v15
      v_add_u32 v{vWq[0]}, {WQR}, v15
      v_xor_b32 v{vWq[1]}, 32, v{vWq[0]}""")
    a(f"""v_and_b32 v14, 1, v2
      v_lshlrev_b32 v14, 10, v14
      v_lshrrev_b32 v15, 1, v2
      v_lshl_add_u32 v14, v15, 8, v14
      v_lshl_add_u32 v{vLP}, v1, 4, v14""")
    a(f"v_mov_b32 v30, {SYNC}\n ds_write_b128 v30, v[{ACC1}:{ACC1+3}]\n v_lshlrev_b32 v14, 3, v2")
    stamp("g_pre")
    a.wait0()
    stamp("g_bias")
    for k in range(14): a.lg(f"ds_bpermute_b32 v{16+k}, v14, v33 offset:{32*(k//2)+4*(k%2)}", ("b", k // 2))
    for ft in range(7):
        d = acc1(2 + ft, 0)
        a.wait(lg=("b", ft))
        a(f"v_lshlrev_b32 v{d}, 16, v{16+2*ft}\n v_and_b32 v{d+1}, 0xffff0000, v{16+2*ft}")
        a(f"v_lshlrev_b32 v{d+2}, 16, v{17+2*ft}\n v_and_b32 v{d+3}, 0xffff0000, v{17+2*ft}")
        for rt in range(1, 4): a(f"v_mov_b64 {vr(d+4*rt,2)}, {vr(d,2)}\n v_mov_b64 {vr(d+4*rt+2,2)}, {vr(d+2,2)}")
    def rdW(g, e):
        if OPT["nords"] and g > 2: return
        t, ft = divmod(g, 9); d = WRING + 4 * (g % NR) + 2 * e
        if ft < 2: a.lg(f"ds_read_b64_tr_b16 {vr(d,2)}, v{vWq[ft]} offset:{(t%4)*WQS + e*512}", ("W", g))
        else: a.lg(f"ds_read_b64_tr_b16 {vr(d,2)}, v{vW1[ft%2]} offset:{(t%4)*W1S + e*1792 + (ft-2)*32}", ("W", g))
    def rdX(t, rt):
        a.lg(f"ds_read_b128 {vr(XF[t%2]+4*rt,4)}, v{vX[t%2]} offset:{rt*2048}", ("X", t))
    a(f"s_mov_b32 s{sIT}, 0")
    stamp("g_rdy")
    a("s_barrier")
    stamp("g_b0")
    for rt in range(4): rdX(0, rt)
    for g in range(RD): rdW(g, 0); rdW(g, 1)
    a.raw(".p2align 3")
    a.label("L_g1loop")
    def body(it):
        for ts in range(4):
            t = it * 4 + ts
            for ft in range(9):
                g = t * 9 + ft
                fill = [[], [], [], []]
                fill[0].append(lambda: rdW(g + RD, 0))
                fill[1].append(lambda: rdW(g + RD, 1))
                if NR == 4:
                    if ft == 5: fill[2].append(lambda: a("s_barrier")); fill[3].append(lambda: rdX(t + 1, 0))
                    if ft == 6: fill[2].append(lambda: (rdX(t + 1, 1), rdX(t + 1, 2))); fill[3].append(lambda: rdX(t + 1, 3))
                else:
                    if ft == 3: fill[2].append(lambda: a("s_barrier")); fill[3].append(lambda: rdX(t + 1, 0))
                    if ft == 4: fill[2].append(lambda: rdX(t + 1, 1)); fill[3].append(lambda: rdX(t + 1, 2))
                    if ft == 5: fill[2].append(lambda: rdX(t + 1, 3))
                if ts % 2 == 1:
                    if ft == 1:
                        fill[2].append(lambda: a(f"s_add_u32 s{sXo}, s{sXo}, {XS}\n s_cmp_eq_u32 s{sXo}, {3*XS}"))
                        fill[3].append(lambda: a(f"s_cselect_b32 s{sXo}, 0, s{sXo}"))
                    if ft == 2:
                        fill[2].append(lambda: a(f"v_add_u32 v{vX[0]}, s{sXo}, v{vXb[0]}"))
                        fill[3].append(lambda: a(f"v_add_u32 v{vX[1]}, s{sXo}, v{vXb[1]}"))
                if ts == 3 and ft == 8:
                    fill[2].append(lambda: a(f"s_add_u32 s{sIT}, s{sIT}, 1")); fill[3].append(lambda: a(f"s_cmp_lt_u32 s{sIT}, 8"))
                a.wait(lg=[("W", g), ("X", t)] if ft == 0 else ("W", g))
                for rt in range(4):
                    mf16(acc1(ft, rt), WRING + 4 * (g % NR), XF[t % 2] + 4 * rt)
                    for f in fill[rt]: f()
        a("s_cbranch_scc1 L_g1loop")
    a.loop(body, "g1")
    a.wait0(vm=False)
    stamp("g_end1")
    a(f"s_setprio {OPT['gprio']}")
    if OPT["hfirst"]: g_hstore(0, OPT["hfirst"])
    c = f2u(32 ** -0.5 * math.log2(math.e))
    a(f"s_mov_b32 s{sT0}, {c}\n s_mov_b32 s{sT1}, {c}")
    a(f"""s_lshl_b32 s{sT2}, s{sRG}, 13
      s_lshl_b32 s{sT3}, s{sCG}, 11
      s_add_u32 s{sT2}, s{sT2}, s{sT3}
      s_add_u32 s{sT2}, s{sT2}, {QX}
      v_lshl_add_u32 v14, v0, 4, s{sT2}""")
    T = 32
    for p in range(2):
        for s_ in range(2):
            for h in range(2):
                d = acc1(s_, 2 * p + h)
                a(f"v_pk_mul_f32 {vr(d,2)}, {vr(d,2)}, s[{sT0}:{sT1}]\n v_pk_mul_f32 {vr(d+2,2)}, {vr(d+2,2)}, s[{sT0}:{sT1}]")
                a(f"v_cvt_pk_bf16_f32 v{T+2*h}, v{d}, v{d+1}\n v_cvt_pk_bf16_f32 v{T+2*h+1}, v{d+2}, v{d+3}")
            a(f"s_nop 1\n v_permlane16_swap_b32 v{T}, v{T+2}\n v_permlane16_swap_b32 v{T+1}, v{T+3}")
            a.lg(f"ds_write_b128 v14, {vr(T,4)} offset:{p*4096 + s_*1024}")
            T += 4
    a.wait0(vm=False)
    a("s_barrier")
def g_hstore(lo=0, hi=7):
    sRG, sCG = sA, sB
    sT0, sT1, sT2, sT3 = sT4, sT5, sF, sG
    if lo == 0: a(f"""s_mul_i32 s{sT0}, s{sRB}, {RBSZ}
      s_mul_i32 s{sT1}, s{sCB}, {7*8192}
      s_add_u32 s{sT0}, s{sT0}, s{sT1}
      s_lshl_b32 s{sT1}, s{sRG}, 12
      s_add_u32 s{sT0}, s{sT0}, s{sT1}
      s_mul_i32 s{sT1}, s{sCG}, {3*8192+512}
      s_add_u32 s{sT0}, s{sT0}, s{sT1}
      s_mul_i32 s{sT2}, s{sCG}, {8192-1024}
      s_add_u32 s{sT2}, s{sT2}, 512
      s_sub_u32 s{sT3}, 8192, s{sT2}""")
    k = 0
    for ft in range(lo, hi):
        for p in range(2):
            T = 16 + 4 * (k % 4); k += 1
            for h in range(2):
                d = acc1(2 + ft, 2 * p + h)
                for r in range(4): a(f"v_max_f32 v{d+r}, 0, v{d+r}")
                a(f"v_pk_mul_f32 {vr(d,2)}, {vr(d,2)}, {vr(d,2)}\n v_pk_mul_f32 {vr(d+2,2)}, {vr(d+2,2)}, {vr(d+2,2)}")
                a(f"v_cvt_pk_bf16_f32 v{T+2*h}, v{d}, v{d+1}\n v_cvt_pk_bf16_f32 v{T+2*h+1}, v{d+2}, v{d+3}")
            a(f"s_nop 1\n v_permlane16_swap_b32 v{T}, v{T+2}\n v_permlane16_swap_b32 v{T+1}, v{T+3}")
            a.vm(f"buffer_store_dwordx4 {vr(T,4)}, v{vLP}, s[{rWS}:{rWS+3}], s{sT0} offen offset:{p*2048} sc1", "hst")
        a(f"s_add_u32 s{sT0}, s{sT0}, s{sT2 if ft % 2 == 0 else sT3}")

vO = 3
vKX, vKG, vKW, vKT0, vKVD, vKR = 140, 12, 13, 24, 15, 142
KXF, KGF, KWF, KAC = 32, 64, 96, 128
def a_phase1():
    sISV, sR0, sSTG, sM, sSo, sSx, sGrp = sA, sB, sC, sD, sE, sF, sG
    NT = " nt" if OPT["pfnt"] else ""
    LEAD = OPT["lead"]
    for path in range(3):
        section(f"st{path}")
        a.label(f"L_st{path}")
        a.vmq.clear(); a.lgq.clear()
        ldW = ldX = pfs = lambda t, m=None: None
        trickle = []
        def trk(all_=False):
            while trickle:
                for t_ in trickle.pop(0): a.lg(t_)
                if not all_: break
        if path == 0:
            a(f"s_mul_i32 s{sT0}, s{sW}, {16*7168}\n s_mul_i32 s{sT1}, s{sCB}, 448\n s_add_u32 s{sSo}, s{sT0}, s{sT1}")
            a(f"s_mul_i32 s{sM}, s{sW}, 7168\n s_movk_i32 s{sT2}, {7168-448}")
            for i in range(7):
                a(f"""v_add_u32 v16, {64*i}, v0
                  v_mul_u32_u24 v17, 2341, v16
                  v_lshrrev_b32 v17, 16, v17
                  v_bfe_u32 v18, v17, 3, 1
                  v_lshlrev_b32 v18, 1, v18
                  v_xor_b32 v16, v16, v18
                  v_lshlrev_b32 v16, 4, v16
                  v_mad_u32_u24 v{vO+i}, v17, s{sT2}, v16""")
                if i % 4: a(f"v_subrev_u32 v{vO+i}, {1024*(i%4)}, v{vO+i}")
            kwait(); srd(rB, pW1, 1024 * 7168)
            def ldW(t, m=None):
                for i in range(7):
                    if i == 4 and m: m()
                    if i % 4 == 0: a(f"s_add_u32 m0, s{sM}, {(t%4)*W1S + i*1024}\n s_nop 0")
                    a.vm(f"buffer_load_dwordx4 v{vO+i}, s[{rB}:{rB+3}], s{sSo} offen offset:{1024*(i%4)} {OPT['xfl'].replace('_', ' ')} lds", ("W", t)); trk()
                a(f"s_add_u32 s{sSo}, s{sSo}, {32*7168}")
        elif path == 1:
            a(f"""v_lshrrev_b32 v16, 3, v0
              v_lshlrev_b32 v16, 11, v16
              v_and_b32 v17, 7, v0
              v_xor_b32 v18, v17, v2
              v_lshl_add_u32 v18, v18, 4, v16
              v_and_b32 v20, 1, v2
              v_lshlrev_b32 v20, 2, v20
              v_xor_b32 v20, v20, v17
              v_lshl_add_u32 v20, v20, 4, v16
              s_lshl_b32 s{sSo}, s{sCB}, 7
              s_lshl_b32 s{sSx}, s{sRB}, 18""")
            for i in range(4):
                a(f"v_xor_b32 v19, {64*(i%2)}, v18\n v_add_u32 v{vO+i}, {i*16384 - i*1024}, v19")
                a(f"v_xor_b32 v19, {32*(i%2)}, v20\n v_add_u32 v{vO+4+i}, {i*16384 - i*1024}, v19")
            kwait(); srd(rB, pWQ, 1024 * 2048); srd(rA, pX, 2048 * 2048)
            def ldW(t, m=None):
                a(f"s_mov_b32 m0, {WQR + (t%4)*WQS}\n s_nop 0")
                for i in range(4):
                    a.vm(f"buffer_load_dwordx4 v{vO+4+i}, s[{rB}:{rB+3}], s{sSo} offen offset:{1024*i} {OPT['xfl'].replace('_', ' ')} lds", ("W", t)); trk()
                a(f"s_add_u32 s{sSo}, s{sSo}, 65536")
        else:
            a(f"""s_and_b32 s{sGrp}, s{sI}, 7
              s_lshl_b32 s{sT0}, s{sGrp}, 5
              s_and_b32 s{sT1}, s{sI}, 24
              s_add_u32 s{sT0}, s{sT0}, s{sT1}
              s_and_b32 s{sT1}, s2, 7
              s_add_u32 s{sT0}, s{sT0}, s{sT1}
              s_lshl_b32 s{sIT}, s{sT0}, 14
              s_mul_i32 s{sSo}, s{sT0}, 7168
              s_lshl_b32 s{sM}, s{sT0}, 11
              v_lshrrev_b32 v16, 3, v0
              v_lshlrev_b32 v16, 11, v16
              v_and_b32 v17, 7, v0
              v_lshl_add_u32 v{vO+4}, v17, 7, v16
              v_lshlrev_b32 v{vO+5}, 7, v0
              v_xor_b32 v18, v17, v2
              v_lshl_add_u32 v18, v18, 4, v16
              s_lshl_b32 s{sSx}, s{sRB}, 18
              s_add_u32 s{sSx}, s{sSx}, 65536""")
            for i in range(4): a(f"v_xor_b32 v19, {64*(i%2)}, v18\n v_add_u32 v{vO+i}, {i*16384 - i*1024}, v19")
            a(f"s_setprio {OPT['p0prio']}")
            kwait(); srd(rA, pX, 2048 * 2048); srd(rB, pW1, 1024 * 7168); srd(rPF, pWQ, 1024 * 2048)
            def pfW():
                a(f"s_mov_b32 exec_hi, 0xffffff\n buffer_load_dword v250, v{vO+5}, s[{rB}:{rB+3}], s{sSo} offen{NT}")
                a(f"s_mov_b64 exec, 0xffff\n buffer_load_dword v250, v{vO+5}, s[{rPF}:{rPF+3}], s{sM} offen{NT}\n s_mov_b64 exec, -1")
                a(f"s_add_u32 s{sSo}, s{sSo}, {256*7168}\n s_add_u32 s{sM}, s{sM}, {256*2048}")
            if not OPT["nopf"]:
                a(f"buffer_load_dword v250, v{vO+4}, s[{rA}:{rA+3}], s{sIT} offen{NT}")
                a(f"s_cmp_ge_u32 s{sGrp}, {LEAD}\n s_cbranch_scc1 L_nopf0")
                pfW()
                a.label("L_nopf0")
            def pfs(t):
                if OPT["nopf"]: return
                if t + LEAD < 32:
                    l = a.newlabel("L_np")
                    a(f"s_cmp_lg_u32 s{sGrp}, {(t+LEAD)%8}\n s_cbranch_scc1 {l}")
                    if OPT["h3prio"] == 0: a("s_setprio 0")
                    pfW()
                    if t < 8: a(f"buffer_load_dword v250, v{vO+4}, s[{rA}:{rA+3}], s{sIT} offen offset:1024{NT}")
                    if OPT["pf2"] and t // 8 == OPT["pf2b"]:
                        srd(rD, pW2, 3584 * 2048)
                        a(f"s_lshr_b32 s{sT0}, s2, 6\n s_mul_i32 s{sT0}, s{sT0}, {896*2048}\n s_and_b32 s{sT1}, s2, 63\n s_lshl_b32 s{sT1}, s{sT1}, 13\n s_add_u32 s{sT0}, s{sT0}, s{sT1}")
                        a(f"buffer_load_dword v250, v{vO+5}, s[{rD}:{rD+3}], s{sT0} offen")
                    if OPT["h3prio"] == 0: a("s_setprio 1")
                    a.label(l)
                if t == OPT["far"]:
                    srd(rB, pW2, 3584 * 2048); srd(rPF, pWO, 1024 * 2048)
                    a(f"s_mul_i32 s{sSo}, s2, 28672\n s_lshl_b32 s{sM}, s2, 13")
                    for i in range(4 if OPT["farw2"] else 0):
                        if i == 3: a("s_mov_b32 exec_hi, 0")
                        a.vm(f"buffer_load_dword v250, v{vO+5}, s[{rB}:{rB+3}], s{sSo} offen")
                        a(f"s_add_u32 s{sSo}, s{sSo}, 8192")
                    a("s_mov_b64 exec, -1")
                    a.vm(f"buffer_load_dword v250, v{vO+5}, s[{rPF}:{rPF+3}], s{sM} offen")
        if path:
            def ldX(hb):
                u, hf = divmod(hb, 2)
                a(f"s_mov_b32 m0, {XR + (u%3)*XS + hf*8192 + (path-1)*4096}\n s_nop 0")
                for i in range(4):
                    a.vm(f"buffer_load_dwordx4 v{vO+i}, s[{rA}:{rA+3}], s{sSx} offen offset:{1024*i} {OPT['xfl'].replace('_', ' ')} lds", ("X", u)); trk()
                a(f"s_add_u32 s{sSx}, s{sSx}, {131072 if hf == 0 else (128-131072) & 0xffffffff}")
        def kvsetup():
            a(f"""s_and_b32 s{sISV}, s{sCB}, 1
              s_lshr_b32 s{sR0}, s{sCB}, 1
              s_lshl_b32 s{sR0}, s{sR0}, 4
              s_lshl_b32 s{sT0}, s{sRB}, 7
              s_add_u32 s{sR0}, s{sR0}, s{sT0}
              s_cmp_eq_u32 s{sISV}, 0
              s_cselect_b32 s{rC}, s{pWK}, s{pWV}
              s_cselect_b32 s{rC+1}, s{pWK+1}, s{pWV+1}
              s_mov_b32 s{rC+2}, 65536
              s_mov_b32 s{rC+3}, 0x20000
              v_lshlrev_b32 v{vKVD}, 4, v0""")
            if path == 2:
                srd(rD, pGATE, 2048); srd(rDBG, pDBG, 256)
                a(f"s_lshl_b32 s{sT0}, s{sR0}, 5\n s_mov_b64 exec, 15\n buffer_load_dword v250, v{vO+5}, s[{rC}:{rC+3}], s{sT0} offen\n s_mov_b64 exec, -1")
                a(f"s_mov_b32 m0, {GT}\n s_nop 0")
                for i in range(2): a.vm(f"buffer_load_dwordx4 v{vKVD}, s[{rD}:{rD+3}], 0 offen offset:{1024*i} lds", "gt")
        if path == 2: kvsetup()
        if OPT["d0prio"]: a("s_setprio 2")
        ldW(0); ldX(0); ldX(1)
        if OPT["d0prio"]: a("s_setprio 1")
        ldW(1)
        if not OPT["xlate"]: ldX(2); ldX(3)
        stamp("a_iss")
        a(f"s_branch L_a1m{path}")
        section("main")
        a.label(f"L_a1m{path}")
        if path == 0: srd(rA, pX, 2048 * 2048)
        if path != 2: kvsetup()
        a(f"""s_lshl_b32 s{sSTG}, s{sW}, 13
          s_add_u32 s{sSTG}, s{sSTG}, {KVST}
          s_lshl_b32 s{sT0}, s{sW}, 7
          v_lshl_add_u32 v17, v2, 4, s{sT0}
          v_add_u32 v{vKG}, {GT}, v17
          v_lshrrev_b32 v16, 3, v0
          v_add_u32 v16, s{sR0}, v16
          v_and_b32 v17, 7, v0
          v_xor_b32 v17, v17, v2
          v_lshl_add_u32 v17, v17, 4, s{sT0}
          v_lshl_add_u32 v{vKX}, v16, 11, v17
          v_xor_b32 v16, 64, v{vKX}
          v_add_u32 v{vKX+1}, {16384-1024}, v16
          v_lshrrev_b32 v16, 1, v1
          v_xor_b32 v16, v16, v2
          v_lshlrev_b32 v16, 4, v16
          v_lshl_add_u32 v16, v1, 7, v16
          v_add_u32 v{vKR}, s{sSTG}, v16
          v_xor_b32 v{vKR+1}, 64, v{vKR}
          v_lshrrev_b32 v16, 4, v0
          v_and_b32 v16, 2, v16
          v_xor_b32 v16, v16, v0
          s_lshl_b32 s{sT0}, s{sW}, 12
          v_lshl_add_u32 v{vKW}, v16, 4, s{sT0}
          v_lshrrev_b32 v16, 2, v1
          v_lshl_add_u32 v16, v2, 3, v16
          v_and_b32 v17, 3, v1
          v_lshlrev_b32 v17, 3, v17
          v_lshl_add_u32 v16, v16, 6, v17
          v_and_b32 v17, 1, v2
          v_lshl_add_u32 v16, v17, 5, v16
          v_add_u32 v{vKT0}, s{sSTG}, v16
          v_xor_b32 v{vKT0+1}, 32, v{vKT0}""")
        for r in range(12): a(f"v_mov_b32 v{KAC+r}, 0")
        def kvX(rho):
            if 'X' in OPT['kvskip']: return
            a(f"s_add_u32 m0, s{sSTG}, 6144\n s_movk_i32 s{sT0}, {rho*512}")
            for i in range(2):
                a.vm(f"buffer_load_dwordx4 v{vKX+i}, s[{rA}:{rA+3}], s{sT0} offen offset:{1024*i} lds", ("kw", rho))
        def kvW(rho, half):
            if 'W' in OPT['kvskip']: return
            if half: a.wait0(vm=False)
            a(f"s_add_u32 m0, s{sSTG}, {4096 if half else (rho%2)*2048}\n s_mov_b32 s{sT0}, {rho*16384 + half*2048}")
            for i in range(2):
                a.vm(f"buffer_load_dwordx4 v{vKW}, s[{rC}:{rC+3}], s{sT0} offen offset:{1024*i} lds", ("kw", rho))
        def kvR(rho):
            if 'R' in OPT['kvskip']: return
            a.wait(vm=("kw", rho))
            for i in range(2):
                for nt in range(2):
                    trickle.append([f"ds_read_b64_tr_b16 {vr(KWF+8*i+4*nt+2*e,2)}, v{vKT0+nt} offset:{(4096 if i else (rho%2)*2048)+e*256}" for e in range(2)])
                trickle.append([f"ds_read_b128 {vr(KGF+4*i,4)}, v{vKG} offset:{512*rho+64*i}", f"ds_read_b128 {vr(KXF+4*i,4)}, v{vKR+i} offset:6144"])
        def kvM(rho):
            if 'M' in OPT['kvskip']: return
            a.wait0(vm=False)
            lv, ld = a.newlabel("L_kv"), a.newlabel("L_kd")
            a(f"s_cmp_lg_u32 s{sISV}, 0\n s_cbranch_scc1 {lv}")
            for i in range(2):
                for nt in range(2): mf16(KAC + 4 * nt, KWF + 8 * i + 4 * nt, KXF + 4 * i)
                mf16(KAC + 8, KGF + 4 * i, KXF + 4 * i)
            a(f"s_branch {ld}")
            a.label(lv)
            for i in range(2):
                for nt in range(2): mf16(KAC + 4 * nt, KXF + 4 * i, KWF + 8 * i + 4 * nt)
            a.label(ld)
        def kvP():
            a(f"v_add_u32 v16, s{sSTG}, v{vKVD}\n s_nop 5")
            for nt in range(3): trickle.append([f"ds_write_b128 v16, {vr(KAC+4*nt,4)} offset:{nt*1024}"])
        def kvF0():
            a(f"""v_lshrrev_b32 v16, 1, v2
              v_and_b32 v17, 1, v2
              v_lshlrev_b32 v18, 4, v1
              s_cmp_eq_u32 s{sISV}, 0
              s_cselect_b32 s{sT0}, 10, 8
              s_cselect_b32 s{sT1}, 9, 10
              s_lshl_b32 s{sT2}, 256, s{sISV}
              v_lshlrev_b32 v26, s{sT0}, v16
              v_lshlrev_b32 v27, s{sT1}, v17
              v_add3_u32 v26, v26, v27, v18
              v_add_u32 v26, {KVST}, v26
              v_add_u32 v27, s{sT2}, v26
              v_add_u32 v28, {KVST+2048}, v18
              s_lshr_b32 s{sT3}, s{sR0}, 5
              s_lshl_b32 s{sT3}, s{sT3}, 12
              s_add_u32 s{sT3}, s{sT3}, {KV_OFF}
              s_bfe_u32 s{sT4}, s{sR0}, 0x10004
              s_cmp_eq_u32 s{sISV}, 0
              s_cselect_b32 s{sT0}, 10, 9
              s_cselect_b32 s{sT1}, 9, 8
              s_cselect_b32 s{sT2}, 8, 10
              s_cselect_b32 s{sT5}, 0, 2048
              s_lshl_b32 s{sT4}, s{sT4}, s{sT2}
              s_add_u32 s{sT3}, s{sT3}, s{sT4}
              s_add_u32 s{sT3}, s{sT3}, s{sT5}
              v_lshlrev_b32 v29, s{sT0}, v16
              v_lshlrev_b32 v30, s{sT1}, v17
              v_add3_u32 v29, v29, v30, v18
              v_add_u32 v29, s{sT3}, v29""")
        def kvF():
            for w in range(4):
                a(f"ds_read_b128 {vr(32+8*w,4)}, v26 offset:{w*8192}\n ds_read_b128 {vr(36+8*w,4)}, v27 offset:{w*8192}\n ds_read_b32 v{64+w}, v28 offset:{w*8192}")
            a("s_waitcnt lgkmcnt(0)")
            for r in range(0, 8, 2):
                a(f"v_pk_add_f32 {vr(32+r,2)}, {vr(32+r,2)}, {vr(40+r,2)}\n v_pk_add_f32 {vr(48+r,2)}, {vr(48+r,2)}, {vr(56+r,2)}\n v_pk_add_f32 {vr(32+r,2)}, {vr(32+r,2)}, {vr(48+r,2)}")
            for r in range(4): a(f"v_cvt_pk_bf16_f32 v{40+r}, v{32+2*r}, v{33+2*r}")
            a(f"buffer_store_dwordx4 v[40:43], v29, s[{rWS}:{rWS+3}], 0 offen sc1")
        def kvF2():
            a(f"""v_add_f32 v64, v64, v65
              v_add_f32 v66, v66, v67
              v_add_f32 v64, v64, v66
              v_mul_f32 v64, {f2u(-math.log2(math.e))}, v64
              v_exp_f32 v64, v64
              s_lshl_b32 s{sT0}, s{sR0}, 2
              v_add_f32 v64, 1.0, v64
              v_rcp_f32 v64, v64
              s_add_u32 s{sT0}, s{sT0}, {G_OFF}
              s_cmp_eq_u32 s{sISV}, 0
              s_cselect_b32 s{sT0}, s{sT0}, {OOB}
              v_lshlrev_b32 v20, 2, v0
              s_mov_b64 exec, 0xffff
              buffer_store_dword v64, v20, s[{rWS}:{rWS+3}], s{sT0} offen sc1
              s_mov_b64 exec, -1""")
        def kvA():
            a(f"""s_lshl_b32 s{sT0}, s{sRB}, 4
              s_add_u32 s{sT0}, s{sT0}, s{sCB}
              s_lshl_b32 s{sT0}, s{sT0}, 2
              s_add_u32 s{sT0}, s{sT0}, {KF_OFF}
              v_mov_b32 v16, 1
              v_mov_b32 v17, 0""")
            a.wait0(lg=False)
            a(f"""s_mov_b64 exec, 1
              buffer_store_dword v16, v17, s[{rWS}:{rWS+3}], s{sT0} offen sc1
              s_mov_b64 exec, -1""")
        def clr():
            a(f"""s_cmp_lt_u32 s2, 32
              s_cbranch_scc0 L_noclr
              s_lshl_b32 s{sT0}, s2, 12
              s_add_u32 s{sT0}, s{sT0}, {FL_OFF}
              s_lshl_b32 s{sT1}, s2, 5
              s_add_u32 s{sT1}, s{sT1}, {KF_OFF}
              v_lshrrev_b32 v16, 1, v0
              v_and_b32 v17, 1, v0
              v_lshlrev_b32 v17, 4, v17
              v_lshl_add_u32 v16, v16, 7, v17
              buffer_store_dwordx4 v[{KAC}:{KAC+3}], v16, s[{rWS}:{rWS+3}], s{sT0} offen sc1
              s_mov_b64 exec, 3
              buffer_store_dwordx4 v[{KAC}:{KAC+3}], v16, s[{rWS}:{rWS+3}], s{sT1} offen sc1
              s_mov_b64 exec, -1""")
            a.label("L_noclr")
        def clrdone():
            a(f"""s_cmp_lt_u32 s2, 32
              s_cbranch_scc0 L_noclr2
              s_waitcnt vmcnt(0)
              s_lshl_b32 s{sT0}, s2, 2
              v_mov_b32 v16, 1
              v_mov_b32 v17, 0
              s_mov_b64 exec, 1
              buffer_store_dword v16, v17, s[{rDBG}:{rDBG+3}], s{sT0} offen sc1
              s_mov_b64 exec, -1""")
            a.label("L_noclr2")
        def kvPoll0a():
            a(f"v_and_b32 v19, 31, v0\n v_lshlrev_b32 v19, 2, v19\n buffer_load_dword v18, v19, s[{rDBG}:{rDBG+3}], 0 offen sc1")
        def kvPoll0():
            a(f"s_mov_b32 s{sT1}, {SPIN_MAX}")
            a.label("L_poll0")
            a(f"""s_waitcnt vmcnt(0)
              v_cmp_ne_u32 vcc, 1, v18
              s_sub_u32 s{sT1}, s{sT1}, 1
              s_cbranch_vccz L_poll0x
              s_sleep 16
              buffer_load_dword v18, v19, s[{rDBG}:{rDBG+3}], 0 offen sc1
              s_cmp_lg_u32 s{sT1}, 0
              s_cbranch_scc1 L_poll0""")
            a.label("L_poll0x")
        def kvPoll1a():
            a(f"s_mov_b32 s{sT2}, {KF_OFF}\n buffer_load_dwordx4 v[20:23], v{vKVD}, s[{rWS}:{rWS+3}], s{sT2} offen sc1")
        def kvPoll1():
            a(f"s_mov_b32 s{sT1}, {SPIN_MAX}")
            a.label("L_poll1")
            a(f"""s_waitcnt vmcnt(0)
              v_and_b32 v20, v20, v21
              v_and_b32 v22, v22, v23
              v_and_b32 v20, v20, v22
              v_cmp_ne_u32 vcc, 1, v20
              s_sub_u32 s{sT1}, s{sT1}, 1
              s_cbranch_vccz L_poll1x
              s_sleep 16
              buffer_load_dwordx4 v[20:23], v{vKVD}, s[{rWS}:{rWS+3}], s{sT2} offen sc1
              s_cmp_lg_u32 s{sT1}, 0
              s_cbranch_scc1 L_poll1""")
            a.label("L_poll1x")
        def kvD(c):
            if c == 0:
                a(f"s_add_u32 s{rE}, s{pWS}, {KV_OFF}\n s_addc_u32 s{rE+1}, s{pWS+1}, 0\n s_mov_b32 s{rE+2}, 0x40000\n s_mov_b32 s{rE+3}, 0x20000")
                a(f"s_lshl_b32 s{sIT}, s{sW}, 12")
            a(f"s_add_u32 m0, s{sIT}, {KVR + ((c+2)%4)*16384}\n s_add_u32 s{sT0}, s{sIT}, {c*16384}")
            for i in range(4):
                a.vm(f"buffer_load_dwordx4 v{vKVD}, s[{rE}:{rE+3}], s{sT0} offen offset:{1024*i} sc1 lds", ("kv", c))
        def ldG():
            a(f"""s_lshl_b32 s{sT1}, s{sRB}, 9
              s_lshl_b32 s{sT2}, s{sW}, 7
              s_add_u32 s{sT1}, s{sT1}, s{sT2}
              s_add_u32 s{sT1}, s{sT1}, {G_OFF}
              v_and_b32 v22, 31, v0
              v_lshlrev_b32 v22, 2, v22""")
            a.vm(f"buffer_load_dword v21, v22, s[{rWS}:{rWS+3}], s{sT1} offen sc1")
        post = {k: [] for k in range(33)}; pre = {k: [] for k in range(33)}; mid = {k: [] for k in range(33)}
        if not OPT["nokv"]:
            for rho in range(4):
                pre[3*rho+5].append(lambda rho=rho: kvR(rho)); mid[3*rho+6].append(lambda rho=rho: kvM(rho))
                post[3*rho+3].append(lambda rho=rho: kvX(rho))
                post[3*rho+1].append(lambda rho=rho: kvW(rho, 0)); post[3*rho+2].append(lambda rho=rho: kvW(rho, 1))
            pre[16].append(kvP); post[16].append(lambda: a.wait0(vm=False))
            if path == 2:
                post[0] += [clr, kvF0]; pre[7].append(clrdone); post[3].append(lambda: a.wait(vm="gt"))
                post[17] += [kvF]; post[18] += [kvF2]; post[19] += [kvPoll0a]; pre[21] += [kvPoll0, kvA]; pre[26].append(kvPoll1a); pre[27].append(kvPoll1)
            post[28].append(ldG)
            for c in range(4): post[28 + c].append(lambda c=c: kvD(c))
        stamp("a_set")
        for s_ in range(33):
            a.wait(vm=[("W", s_), ("X", s_ // 2)])
            if s_ == 0: stamp("a_w0")
            a("s_barrier")
            if s_ == 0: stamp("a_b0")
            if s_ in (8, 16, 24): stamp(f"a_{s_}")
            if OPT["steps"] and path == 2:
                a("s_memtime s[100:101]"); a.wait0(vm=False); a(f"v_writelane_b32 v200, s100, {s_}")
                if s_ == 32:
                    a(f"s_lshl_b32 s100, s2, 8\n s_add_u32 s100, s100, {TS_OFF+0x10000}\n v_lshlrev_b32 v201, 2, v0\n buffer_store_dword v200, v201, s[{rWS}:{rWS+3}], s100 offen")
            for f in pre[s_]: f()
            if OPT["xlate"] and s_ == 0: ldX(2); ldX(3)
            midf = lambda: [f() for f in mid[s_]]
            if s_ + 2 < 32 and not OPT["nodma"]: ldW(s_ + 2, midf)
            if path != 0: midf()
            if OPT["xlate"] and s_ < 2:
                if s_ == 1: ldX(4); ldX(5)
            elif s_ + 4 < 32 and not OPT["nodma"]: ldX(s_ + 4)
            trk(True)
            for f in post[s_]: f()
            pfs(s_)
        a.wait(vm=[("kv", 1)])
        if path < 2: a("s_branch L_a1done")
    a("s_setprio 1")
    a.vmq[:] = [("kv", 2)] * 4 + [("kv", 3)] * 4
    a.label("L_a1done")
    if not OPT["stop"]: attention_setup()
    a("s_barrier")

QF, OA, LA, SB, PB, KF, VF, ONES = 32, 48, 80, 88, 120, 136, 152, 168
vKc, vKn, vSy, vOne, vCnt, vG, vIdx, vQa, vSt = 16, 17, 18, 19, 20, 21, 172, 173, 174
vD, vDW = 4, 8
def wtile_offsets(dst):
    a(f"""v_lshrrev_b32 v22, 3, v0
      v_lshlrev_b32 v22, 11, v22
      v_and_b32 v23, 1, v2
      v_lshlrev_b32 v23, 2, v23
      v_and_b32 v24, 7, v0
      v_xor_b32 v23, v23, v24
      v_lshl_add_u32 v22, v23, 4, v22
      s_lshl_b32 s{sT0}, s{sCB2}, 7
      v_add_u32 v22, s{sT0}, v22""")
    for i in range(4): a(f"v_xor_b32 v23, {32*(i%2)}, v22\n v_add_u32 v{dst+i}, {i*16384-i*1024}, v23")
def lsum(t, P):
    a(f"v_smfmac_f32_16x16x64_bf16 {vr(LA+4*t,4)}, {vr(ONES,4)}, {vr(P,8)}, v{vIdx}")
sKo, sCn, sDo, sMb, sDs, sO0, sO1 = sA, sB, sC, sD, sE, sF, sG
def attention_setup():
    wtile_offsets(vDW)
    a(f"""s_lshl_b32 s{sT0}, s{sW}, 12
      s_add_u32 s{sT1}, s{sT0}, {QX}
      v_lshl_add_u32 v{vQa}, v0, 4, s{sT1}
      v_add_u32 v{vKc}, {KVR}, v{vKVD}
      v_mov_b32 v{vKn}, {SYNC}
      v_and_b32 v22, 6, v1
      v_mov_b32 v23, 0x3f803f80
      v_cmp_eq_u32 vcc, 0, v22
      v_lshl_add_u32 v{vSy}, v0, 2, v{vKn}
      v_sub_u32 v{vOne}, 1, v0
      v_max_i32 v{vOne}, 0, v{vOne}
      v_cndmask_b32 v{ONES}, 0, v23, vcc
      v_cndmask_b32 v{ONES+1}, 0, v23, vcc
      v_cmp_eq_u32 vcc, 4, v22
      v_and_b32 v22, 1, v1
      v_mul_u32_u24 v22, 0xaaaa, v22
      v_cndmask_b32 v{ONES+2}, 0, v23, vcc
      v_cndmask_b32 v{ONES+3}, 0, v23, vcc
      v_or_b32 v{vIdx}, 0x4444, v22
      s_mov_b32 s{sCn}, 4
      s_add_u32 s{sDo}, s{sT0}, {3*16384}
      s_mov_b32 s{sDs}, 16384
      s_add_u32 s{sMb}, s{sT0}, {KVR}
      s_mov_b32 s{sIT}, 0
      s_mul_i32 s{sO0}, s{sRB}, {RBSZ}
      s_lshl_b32 s{sT1}, s{sCB}, 14
      s_add_u32 s{sO0}, s{sO0}, s{sT1}
      s_lshl_b32 s{sT1}, s{sW}, 11
      s_add_u32 s{sO0}, s{sO0}, s{sT1}
      s_add_u32 s{sO0}, s{sO0}, {112*8192}
      s_add_u32 s{sO1}, s{sO0}, 8192
      v_and_b32 v22, 1, v2
      v_lshlrev_b32 v22, 10, v22
      v_lshrrev_b32 v23, 1, v2
      v_lshl_add_u32 v22, v23, 8, v22
      v_lshl_add_u32 v{vSt}, v1, 4, v22""")
    for r in range(4): a(f"v_mov_b32 v{vD+r}, v{vKVD}")
    for r in list(range(OA, OA + 40, 2)) + list(range(PB + 8, PB + 16, 2)) + list(range(VF + 12, VF + 16, 2)) + [SB + 30]:
        a(f"v_mov_b64 {vr(r,2)}, 0")
def attention():
    qf = lambda t, s_: QF + 8 * t + 4 * s_
    kvo = lambda T: ((T // 4 + 2) % 4) * 16384 + (T % 4) * 4096
    def rdK(T):
        for s_ in range(2): a.lg(f"ds_read_b128 {vr(KF+8*(T%2)+4*s_,4)}, v{vKc} offset:{kvo(T)+1024*s_}", ("K", T))
    def rdV(T):
        for u in range(2): a.lg(f"ds_read_b128 {vr(VF+8*(T%2)+4*u,4)}, v{vKc} offset:{kvo(T)+2048+1024*u}", ("V", T))
    for i in range(2): a.lg(f"ds_read_b128 {vr(QF+4*i,4)}, v{vQa} offset:{1024*i}")
    rdK(0)
    for i in range(2, 4): a.lg(f"ds_read_b128 {vr(QF+4*i,4)}, v{vQa} offset:{1024*i}")
    rdV(0); rdK(1)
    a.wait(lg=("K", 0))
    mf32(SB, KF, qf(0, 0), "0"); mf32(SB, KF + 4, qf(0, 1))
    a("s_nop 7\n s_nop 3")
    a.raw(".p2align 3")
    a.label("L_att")
    def slot(n, hooks):
        T, t = divmod(n, 2); n1 = n + 1; T1, t1 = divmod(n1, 2); Tp, tp = divmod(n - 1, 2)
        S = SB + 16 * (n % 2); S1 = SB + 16 * (n1 % 2)
        P = PB + 8 * (n % 2); Pp = PB + 8 * ((n - 1) % 2)
        e = lambda i: a(f"v_exp_f32 v{S+i}, v{S+i}")
        c = lambda i: a(f"v_cvt_pk_bf16_f32 v{P+i}, v{S+2*i}, v{S+2*i+1}")
        h = lambda k: [f() for f in hooks.get(k, [])]
        e(0)
        if OPT["spos"]: a(f"v_cvt_pk_bf16_f32 v{Pp+7}, v{S1+14}, v{S1+15}")
        h(0); e(1); h(1); e(2)
        if t == 0: a.wait(lg=[("V", T), ("K", T + 1), "cnt"])
        mf32(S1, KF + 8 * (T1 % 2), qf(t1, 0), "0")
        e(3); c(0); e(4); c(1)
        mf32(S1, KF + 8 * (T1 % 2) + 4, qf(t1, 1))
        e(5); e(6); e(7)
        mf32(OA + 16 * tp, VF + 8 * (Tp % 2) + 4, Pp + 4)
        c(2); c(3); e(8); e(9)
        mf32(OA + 16 * t, VF + 8 * (T % 2), P)
        if OPT["spos"] == 0:
            e(10); e(11); c(4); c(5)
            lsum(tp, Pp)
            e(12); h(2); e(13); h(3); e(14); h(4); e(15); c(6); c(7)
        else:
            e(10); c(4); e(11); e(12); c(5); e(13)
            lsum(tp, Pp)
            h(2); e(14); h(3); c(6); e(15); h(4)
    def body(it):
        for cc in range(4):
            c_ = 4 * it + cc
            for k in range(8):
                n = 8 * c_ + k; T, t = divmod(n, 2)
                hk = {}
                if t == 0: hk[2] = [lambda: rdV(T + 1)]; hk[3] = [lambda: rdK(T + 2)]
                if k == 1:
                    hk[2] = [lambda: (a.wait(vm=("kv", c_ + 1)), a.lg(f"ds_add_u32 v{vSy}, v{vOne}"))]
                    if cc == 1: hk[3] = [lambda: (a(f"s_cmp_eq_u32 s{sIT}, 3\n s_cbranch_scc1 L_attwo"), a.label("L_attwo_r"))]
                if k == 3:
                    hk[0] = [lambda: a.lg(f"ds_read_b32 v{vCnt}, v{vKn}", "cnt")] if OPT["arrk"] == 1 else []
                    hk[2] = [lambda: a.lg(f"ds_read_b32 v{vCnt}, v{vKn}", "cnt")] if OPT["arrk"] != 1 else []
                    hk[3] = [lambda: a(f"s_add_u32 m0, s{sMb}, {((c_+1)%4)*16384}")]
                if k == 4:
                    hk[2] = [lambda: a(f"v_cmp_gt_u32 vcc, s{sCn}, v{vCnt}")] + hk[2]
                    hk[3] = [lambda: (a(f"s_cbranch_vccnz L_attspin{cc}"), a.label(f"L_attgo{cc}"))] + hk[3]
                if k in (5, 7):
                    def dma(i):
                        if OPT["anodma"]: return
                        if cc == 0: a(f"s_cmp_eq_u32 s{sIT}, 0\n s_cbranch_scc1 L_nodma{i}")
                        for k2 in (i, i + 1):
                            t_ = f"buffer_load_dwordx4 v{vD+k2}, s[{rE}:{rE+3}], s{sDo} offen offset:{1024*k2} sc1 lds"
                            a.vm(t_, ("kv", c_ + 3)) if c_ else a(t_)
                        if cc == 0: a.label(f"L_nodma{i}")
                    hk[2] = [lambda: dma(k - 5)]
                if k == 7:
                    hk[3] = [lambda: a(f"s_add_u32 s{sDo}, s{sDo}, s{sDs}\n s_add_u32 s{sCn}, s{sCn}, 4")]
                    if cc == 3: hk[4] = [lambda: a(f"s_add_u32 s{sIT}, s{sIT}, 1\n s_cmp_lt_u32 s{sIT}, 4")]
                slot(n, hk)
        a("s_cbranch_scc1 L_att")
    a.loop(body, "att", 3)
    a("s_nop 0")
    if OPT["spos"]: a(f"v_cvt_pk_bf16_f32 v{PB+15}, v{SB+30}, v{SB+31}\n s_nop 1")
    lsum(1, PB + 8); mf32(OA + 16, VF + 12, PB + 12)
    stamp("a_att")
    a(f"s_mov_b32 s{sIT}, 0")
    a.label("L_attfin")
    for t in range(2):
        a(f"v_add_f32 v{26+t}, v{LA+4*t}, v{LA+4*t+1}\n v_rcp_f32 v{22+2*t}, v{26+t}\n s_nop 0\n v_mul_f32 v{22+2*t}, v{22+2*t}, v{vG}")
        for s_ in range(2):
            T_ = SB + 8 * t + 4 * s_
            for r in range(4):
                d = OA + 16 * t + 8 * s_ + 2 * r
                a(f"v_pk_mul_f32 {vr(d,2)}, {vr(d,2)}, {vr(22+2*t,2)} op_sel_hi:[1,0]\n v_cvt_pk_bf16_f32 v{T_+r}, v{d}, v{d+1}")
            a(f"s_nop 1\n v_permlane32_swap_b32 v{T_}, v{T_+2}\n v_permlane32_swap_b32 v{T_+1}, v{T_+3}")
            a(f"buffer_store_dwordx4 {vr(T_,4)}, v{vSt}, s[{rWS}:{rWS+3}], s{sO0+t} offen offset:{512*s_} sc1")
    a(f"s_cmp_lg_u32 s{sIT}, 0\n s_cbranch_scc1 L_attok")
    a(f"s_mov_b32 s{sT0}, {f2u(2.0**-40)}\n s_mov_b32 s{sT1}, {f2u(2.0**100)}\n v_max_f32 v28, v26, v27\n v_mov_b32 v29, 0")
    for r in list(range(OA, OA + 32, 2)) + [26]: a(f"v_pk_fma_f32 v[28:29], {vr(r,2)}, 0, v[28:29]")
    a(f"""v_add_f32 v28, v28, v29
      v_min_f32 v29, v26, v27
      v_cmp_nle_f32 vcc, v28, s{sT1}
      v_cmp_nge_f32 s[{sT2}:{sT3}], v29, s{sT0}
      s_or_b64 vcc, vcc, s[{sT2}:{sT3}]""")
    if OPT["forceslow"]: a("s_branch L_slow")
    a("s_cbranch_vccnz L_slow")
    a.label("L_attok")
    setflag(1)
    stamp("a_end")
    if OPT["padto"]:
        a("s_barrier")
        a.label("L_pad2")
        a(f"s_memrealtime s[98:99]\n s_waitcnt lgkmcnt(0)\n s_sleep 8\n s_sub_u32 s98, s98, s96\n s_cmp_lt_u32 s98, {OPT['padto']}\n s_cbranch_scc1 L_pad2")
    dump_ts_and_end()
    a.label("L_attwo")
    srd(rE, pWO, 1024 * 2048)
    a(f"s_lshl_b32 s{sDo}, s{sW}, 19\n s_add_u32 s{sDo}, s{sDo}, {5*65536}\n s_mov_b32 s{sDs}, 65536")
    a(f"v_mov_b64 {vr(vD,2)}, {vr(vDW,2)}\n v_mov_b64 {vr(vD+2,2)}, {vr(vDW+2,2)}\n s_branch L_attwo_r")
    for cc in range(4):
        a.label(f"L_attspin{cc}")
        a(f"s_mov_b32 s{sT2}, {SPIN_MAX}")
        a.label(f"L_attspin{cc}b")
        a(f"""ds_read_b32 v{vCnt}, v{vKn}
          s_waitcnt lgkmcnt(0)
          v_cmp_gt_u32 vcc, s{sCn}, v{vCnt}
          s_sub_u32 s{sT2}, s{sT2}, 1
          s_cbranch_vccz L_attgo{cc}
          s_cmp_lg_u32 s{sT2}, 0
          s_cbranch_scc1 L_attspin{cc}b
          s_branch L_attgo{cc}""")
    a.label("L_slow")
    NM = 176
    a(f"s_add_u32 s{rE}, s{pWS}, {KV_OFF}\n s_addc_u32 s{rE+1}, s{pWS+1}, 0\n s_mov_b32 s{rE+2}, 0x40000\n s_mov_b32 s{rE+3}, 0x20000")
    a(f"s_waitcnt vmcnt(0) lgkmcnt(0)\n v_mov_b32 v22, 0xff800000\n v_mov_b32 v23, 0xff800000\n s_mov_b32 s{sT0}, 0\n s_mov_b32 s{sIT}, 1")
    a.label("L_slow1")
    a(f"buffer_load_dwordx4 {vr(KF,4)}, v{vKVD}, s[{rE}:{rE+3}], s{sT0} offen sc1\n buffer_load_dwordx4 {vr(KF+4,4)}, v{vKVD}, s[{rE}:{rE+3}], s{sT0} offen offset:1024 sc1\n s_waitcnt vmcnt(0)")
    for t in range(2):
        mf32(SB + 16 * t, KF, qf(t, 0), "0"); mf32(SB + 16 * t, KF + 4, qf(t, 1))
    a("s_nop 7\n s_nop 3")
    for t in range(2):
        for r in range(0, 16, 2): a(f"v_max3_f32 v{22+t}, v{SB+16*t+r}, v{SB+16*t+r+1}, v{22+t}")
    a(f"s_add_u32 s{sT0}, s{sT0}, 4096\n s_cmp_lt_u32 s{sT0}, 0x40000\n s_cbranch_scc1 L_slow1")
    a("v_mov_b32 v24, v22\n v_mov_b32 v25, v23\n s_nop 1\n v_permlane32_swap_b32 v22, v24\n v_permlane32_swap_b32 v23, v25\n v_max_f32 v22, v22, v24\n v_max_f32 v23, v23, v25")
    for t in range(2):
        for r in range(16): a(f"v_sub_f32 v{NM+16*t+r}, 0, v{22+t}")
    for r in range(OA, OA + 40, 2): a(f"v_mov_b64 {vr(r,2)}, 0")
    a(f"s_mov_b32 s{sT0}, 0")
    a.label("L_slow2")
    for i in range(4):
        a(f"buffer_load_dwordx4 {vr(KF+4*i,4)}, v{vKVD}, s[{rE}:{rE+3}], s{sT0} offen offset:{1024*i} sc1")
    a("s_waitcnt vmcnt(0)")
    for t in range(2):
        mf32(SB + 16 * t, KF, qf(t, 0), vr(NM + 16 * t, 16)); mf32(SB + 16 * t, KF + 4, qf(t, 1))
    a("s_nop 7\n s_nop 3")
    for r in range(32): a(f"v_exp_f32 v{SB+r}, v{SB+r}")
    a("s_nop 0")
    for r in range(16): a(f"v_cvt_pk_bf16_f32 v{PB+r}, v{SB+2*r}, v{SB+2*r+1}")
    a("s_nop 1")
    for t in range(2):
        for u in range(2): mf32(OA + 16 * t, KF + 8 + 4 * u, PB + 8 * t + 4 * u)
        lsum(t, PB + 8 * t)
    a(f"s_add_u32 s{sT0}, s{sT0}, 4096\n s_cmp_lt_u32 s{sT0}, 0x40000\n s_cbranch_scc1 L_slow2")
    a("s_nop 7\n s_nop 3\n s_branch L_attfin")

def setflag(which):
    a(f"""s_lshl_b32 s{sT0}, s{sRB}, 13
      s_lshr_b32 s{sT1}, s{sCB}, 2
      s_lshl_b32 s{sT1}, s{sT1}, 7
      s_add_u32 s{sT0}, s{sT0}, s{sT1}
      s_and_b32 s{sT1}, s{sCB}, 3
      s_lshl_b32 s{sT1}, s{sT1}, 2
      s_add_u32 s{sT0}, s{sT0}, s{sT1}
      s_add_u32 s{sT0}, s{sT0}, {FL_OFF+16*which}
      v_mov_b32 v14, {SYNC+4+4*which}
      v_mov_b32 v15, 1""")
    if which == 0: a.wait(vm="hst")
    else: a.wait0(lg=False)
    l = a.newlabel("L_nofl")
    a(f"""s_mov_b64 exec, 1
      ds_add_rtn_u32 v16, v14, v15
      s_mov_b64 exec, 0xffff
      v_lshlrev_b32 v14, 9, v0
      s_waitcnt lgkmcnt(0)
      v_readfirstlane_b32 s{sT1}, v16
      s_cmp_eq_u32 s{sT1}, 3
      s_cbranch_scc0 {l}
      buffer_store_dword v15, v14, s[{rWS}:{rWS+3}], s{sT0} offen sc1""")
    a.label(l)
    a("s_mov_b64 exec, -1")
    a.lgq.clear()
def mbox(which):
    a(f"""s_lshl_b32 s{sT0}, s{sRB2}, 4
      s_add_u32 s{sT0}, s{sT0}, s{sCB2}
      s_lshl_b32 s{sT0}, s{sT0}, 2
      s_add_u32 s{sT0}, s{sT0}, s{sW}
      s_lshl_b32 s{sT0}, s{sT0}, 7
      s_add_u32 s{sT0}, s{sT0}, {FL_OFF+16*which}
      v_and_b32 v15, 3, v0
      v_lshlrev_b32 v15, 2, v15""")
def waitflag(which, name):
    mbox(which)
    a(f"s_mov_b32 s{sT1}, {SPIN_MAX}\n s_mov_b64 exec, 15")
    a.label(name)
    a(f"""buffer_load_dword v17, v15, s[{rWS}:{rWS+3}], s{sT0} offen sc1
      s_waitcnt vmcnt(0)
      v_cmp_ne_u32 vcc, 1, v17
      s_sub_u32 s{sT1}, s{sT1}, 1
      s_cbranch_vccz {name}_x
      s_sleep {OPT['slp']}
      s_cmp_lg_u32 s{sT1}, 0
      s_cbranch_scc1 {name}""")
    a.label(name + "_x")
    a("s_mov_b64 exec, -1")
def waitlds(off, val, name):
    a(f"s_mov_b32 s{sT1}, {SPIN_MAX}\n v_mov_b32 v15, {SYNC+off}")
    a.label(name)
    a(f"""ds_read_b32 v17, v15
      s_waitcnt lgkmcnt(0)
      v_readfirstlane_b32 s{sT0}, v17
      s_cmp_ge_u32 s{sT0}, {val}
      s_cbranch_scc1 {name}_x
      s_sleep 2
      s_sub_u32 s{sT1}, s{sT1}, 1
      s_cmp_lg_u32 s{sT1}, 0
      s_cbranch_scc1 {name}""")
    a.label(name + "_x")

ACC2, HR, WF = 128, 64, 32
acc2 = lambda rt, nt: ACC2 + (rt * 4 + nt) * 4
vWD, vWR, vH, vGM = 3, 7, 11, 16
sWo, sHo, sMw, sRdy = sC, sD, sE, sF
def g2_setup():
    srd(rB, pW2, 3584 * 2048)
    wtile_offsets(vWD)
    a(f"""s_lshl_b32 s{sMw}, s{sW}, 14
      s_mul_i32 s{sWo}, s{sW}, {896*2048}
      v_lshrrev_b32 v14, 2, v1
      v_lshl_add_u32 v14, v2, 3, v14
      v_and_b32 v15, 3, v1
      v_lshlrev_b32 v15, 3, v15
      v_lshl_add_u32 v14, v14, 7, v15
      v_and_b32 v15, 1, v2
      v_lshrrev_b32 v30, 3, v1
      v_lshl_add_u32 v15, v30, 1, v15
      v_lshl_add_u32 v14, v15, 5, v14
      v_add_u32 v14, s{sMw}, v14""")
    for nt in range(4): a(f"v_xor_b32 v{vWR+nt}, {32*nt}, v14")
def dmaW(i, k):
    if OPT["g2nold"] and i > 2: return
    if k == 0: a(f"s_add_u32 m0, s{sMw}, {(i%4)*4096}\n s_nop 0")
    a.vm(f"buffer_load_dwordx4 v{vWD+k}, s[{rB}:{rB+3}], s{sWo} offen offset:{1024*k} {OPT['wfl'].replace('_', ' ')} lds", ("W2", i))
    if k == 3: a(f"s_add_u32 s{sWo}, s{sWo}, 65536")
def g_phase2():
    def ldH(i, rt):
        if OPT["g2nold"] and i > 1: return
        a.vm(f"buffer_load_dwordx4 {vr(HR+32*(i%2)+4*rt,4)}, v{vH+rt//2}, s[{rWS}:{rWS+3}], s{sHo} offen offset:{1024*(rt%2)} {OPT['hfl'].replace('_', ' ')}", ("H", i, rt))
        if rt == 7: a(f"s_add_u32 s{sHo}, s{sHo}, 8192")
    def rdW2(i, nt, e, off=None):
        off = (i % 4) * 4096 if off is None else off
        a.lg(f"ds_read_b64_tr_b16 {vr(WF+16*(i%2)+4*nt+2*e,2)}, v{vWR+nt} offset:{off+512*e}", ("W2", i))
    def ooff():
        a(f"s_mul_i32 s{sHo}, s{sRB2}, {RBSZ}\n s_lshl_b32 s{sT1}, s{sW}, 16\n s_add_u32 s{sHo}, s{sHo}, s{sT1}\n s_add_u32 s{sHo}, s{sHo}, {112*8192}")
    setflag(0)
    stamp("g_flag")
    if OPT["nog2"]: dump_ts_and_end()
    a(f"""s_mul_i32 s{sHo}, s{sRB2}, {RBSZ}
      s_mul_i32 s{sT1}, s{sW}, {28*8192}
      s_add_u32 s{sHo}, s{sHo}, s{sT1}
      s_lshl_b32 s{sT2}, s{sRB2}, 9
      s_add_u32 s{sT2}, s{sT2}, {G_OFF}
      v_lshlrev_b32 v15, 2, v1""")
    for p in range(4):
        a(f"""s_add_u32 s{sT0}, s{sW}, {p+1}
          s_and_b32 s{sT0}, s{sT0}, 3
          s_lshl_b32 s{sT1}, s{sT0}, 11
          v_lshl_add_u32 v{vH+p}, v0, 4, s{sT1}
          s_lshl_b32 s{sT0}, s{sT0}, 7
          s_add_u32 s{sT0}, s{sT0}, s{sT2}""")
        for h in range(2): a(f"buffer_load_dword v{vGM+4*p+2*h}, v15, s[{rWS}:{rWS+3}], s{sT0} offen offset:{64*h} sc1")
    for r in range(0, 128, 2): a(f"v_mov_b64 {vr(ACC2+r,2)}, 0")
    a(f"""s_lshl_b32 s{sT0}, s2, 1
      s_add_u32 s{sT0}, s{sT0}, s{sW}
      s_add_u32 s{sT1}, s2, 512
      s_cmp_eq_u32 s{sW}, 2
      s_cselect_b32 s{sT0}, s{sT1}, s{sT0}
      s_lshr_b32 s{sG}, s{sT0}, 7
      s_bfe_u32 s{sT1}, s{sT0}, 0x20005
      s_mul_i32 s{sT1}, s{sT1}, {896*2048}
      s_and_b32 s{sT0}, s{sT0}, 31
      s_lshl_b32 s{sT0}, s{sT0}, 13
      s_add_u32 s{sT0}, s{sT0}, s{sT1}
      s_add_u32 s{sT1}, s{sG}, 2
      s_lshl_b32 s{sT1}, s{sT1}, 18
      s_add_u32 s{sT0}, s{sT0}, s{sT1}
      s_cmp_eq_u32 s{sG}, 5
      s_cselect_b32 s{sG}, -1, s{sG}
      s_lshl_b32 s{sT1}, s2, 13
      s_and_b32 s{sT2}, s{sI}, 1
      s_cmp_eq_u32 s{sW}, 3
      s_cselect_b32 s{sA}, s{sT1}, s{sT0}
      s_cselect_b32 s{sG}, s{sT2}, s{sG}
      s_cselect_b32 s{rPF}, s{pWO}, s{pW2}
      s_cselect_b32 s{rPF+1}, s{pWO+1}, s{pW2+1}
      s_mov_b32 s{sT0}, {3584*2048}
      s_cselect_b32 s{rPF+2}, {1024*2048}, s{sT0}
      s_mov_b32 s{rPF+3}, 0x20000""")
    waitflag(0, "L_wh")
    a.vmq.clear(); a.lgq.clear()
    for i in range(2):
        for rt in range(8): ldH(i, rt)
    for nt in range(4): rdW2(0, nt, 0); rdW2(0, nt, 1)
    for rt in range(8): a(f"v_sub_f32 v{vGM+2*rt}, 1.0, v{vGM+2*rt}")
    stamp("g_l2")
    a(f"s_setprio {OPT['g2prio']}\n s_mov_b32 s{sIT}, 0")
    a.raw(".p2align 3")
    a.label("L_g2loop")
    def body(it):
        for ts in range(4):
            i = 4 * it + ts
            if ts == 0 and OPT["pf2"]: a(f"s_cmp_eq_u32 s{sIT}, s{sG}\n s_cbranch_scc1 L_hookF"); a.label("L_hookF_r")
            if ts == 1: a(f"s_cmp_ge_u32 s{sIT}, 4\n s_cbranch_scc1 L_hookW"); a.label("L_hookW_r")
            if ts == 2: a(f"s_cmp_eq_u32 s{sIT}, 6\n s_cbranch_scc1 L_hookH"); a.label("L_hookH_r")
            if OPT["grp"]:
                for p in range(4):
                    a.wait(vm=("H", i, 2 * p + 1), lg=("W2", i) if p == 0 else ())
                    for rt in (2 * p, 2 * p + 1):
                        for nt in range(4): mf16(acc2(rt, nt), WF + 16 * (i % 2) + 4 * nt, HR + 32 * (i % 2) + 4 * rt)
                    if p == 0: a.wait(vm=("W2", i + 1))
                    for k in range(3 * p, min(3 * p + 3, 8)): rdW2(i + 1, k // 2, k % 2)
                    dmaW(i + 3, p); ldH(i + 2, 2 * p); ldH(i + 2, 2 * p + 1)
                continue
            for rt in range(8):
                a.wait(vm=("H", i, rt), lg=("W2", i) if rt == 0 else ())
                fill = [[], [], [], []]
                if rt < 4: fill[1].append(lambda: dmaW(i + 3, rt))
                if rt == 2: fill[2].append(lambda: a.wait(vm=("W2", i + 1)))
                if 3 <= rt < 7:
                    fill[0].append(lambda: rdW2(i + 1, rt - 3, 0)); fill[2].append(lambda: rdW2(i + 1, rt - 3, 1))
                fill[3].append(lambda: ldH(i + 2, rt))
                for nt in range(4):
                    mf16(acc2(rt, nt), WF + 16 * (i % 2) + 4 * nt, HR + 32 * (i % 2) + 4 * rt)
                    for f in fill[nt]: f()
        a(f"s_add_u32 s{sIT}, s{sIT}, 1")
        if OPT["pause"] < 7: a(f"s_cmp_eq_u32 s{sIT}, {OPT['pause']}\n s_cbranch_scc1 L_hookP")
        a(f"s_cmp_lt_u32 s{sIT}, 7\n s_cbranch_scc1 L_g2loop")
    a.loop(body, "g2")
    for k in range(4): dmaW(31, k)
    srd(rA, pB2, 2048); srd(rC, pOUT, 2048 * 2048)
    a(f"s_cmp_lg_u32 s{sRdy}, 0\n s_cbranch_scc1 L_ordy")
    waitflag(1, "L_wo")
    ooff()
    a.vmq.clear()
    for i in (28, 29):
        for rt in range(8): ldH(i, rt)
    a.label("L_ordy")
    a.vmq[:] = [("W2", 29), ("W2", 30)] + a.vmq
    a.lgq[:] = [("W2", 28)] * 8
    stamp("g_hook")
    for rt in range(8):
        for r in range(0, 16, 2):
            d = ACC2 + 16 * rt + r
            a(f"v_pk_mul_f32 {vr(d,2)}, {vr(d,2)}, {vr(vGM+2*rt,2)} op_sel_hi:[1,0]")
    vS0, vS1, vB2 = 3, 4, 18
    a(f"""s_lshl_b32 s{sT0}, s{sCB2}, 7
      v_lshlrev_b32 v15, 3, v2
      v_lshl_add_u32 v{vS0}, v0, 4, s{sMw}
      s_lshl_b32 s{sT2}, s{sW}, 12
      s_add_u32 s{sT2}, s{sT2}, {QX}
      v_lshl_add_u32 v{vS1}, v0, 4, s{sT2}
      s_sub_u32 s{sT2}, s{sT2}, s{sMw}""")
    for nt in range(4): a.vm(f"buffer_load_dwordx2 {vr(vB2+2*nt,2)}, v15, s[{rA}:{rA+3}], s{sT0} offen offset:{32*nt}", "b2")
    WOFF = {32: 0, 33: 32768, 34: 49152, 35: 0}
    def wr(p, k):
        if p < 2: a.lg(f"ds_write_b128 v{vS0}, {vr(ACC2+32*p+4*k,4)} offset:{8192*p+1024*k}")
        else: a.lg(f"ds_write_b128 v{vS1}, {vr(ACC2+32*p+4*k,4)} offset:{16384*(k//4)+1024*(k%4)}")
    OWN = ACC2 + 96
    vRd = [5, 6, 16]; vTw = [11, 12, 13, 14]; vTr, vOo = 26, 27
    extra = {}
    t_ = []
    for p in range(3):
        t_ += [f"s_sub_u32 s{sT1}, s{sW}, {p+1}\n s_and_b32 s{sT1}, s{sT1}, 3"]
        if p < 2: t_ += [f"s_lshl_b32 s{sT1}, s{sT1}, 14\n v_lshl_add_u32 v{vRd[p]}, v0, 4, s{sT1}"]
        else: t_ += [f"s_lshl_b32 s{sT1}, s{sT1}, 12\n s_add_u32 s{sT1}, s{sT1}, {QX}", f"v_lshl_add_u32 v{vRd[p]}, v0, 4, s{sT1}"]
    extra[33, 0] = t_[:4]; extra[33, 1] = t_[4:]
    t_ = f"""s_lshl_b32 s{sT2}, s{sW}, 12
      s_add_u32 s{sT2}, s{sT2}, {KVR+16384}
      v_lshrrev_b32 v15, 3, v0
      v_and_b32 v17, 7, v0
      v_xor_b32 v{vTr}, v15, v17
      v_lshlrev_b32 v{vTr}, 4, v{vTr}
      v_lshl_add_u32 v{vTr}, v15, 7, v{vTr}
      v_add_u32 v{vTr}, s{sT2}, v{vTr}
      v_lshlrev_b32 v{vOo}, 4, v17
      v_lshl_add_u32 v{vOo}, v15, 11, v{vOo}
      v_and_b32 v15, 7, v1
      v_lshrrev_b32 v17, 1, v2
      v_xor_b32 v15, v15, v17
      v_lshlrev_b32 v15, 4, v15
      v_and_b32 v17, 1, v2
      v_lshl_add_u32 v15, v17, 3, v15
      v_lshl_add_u32 v15, v1, 7, v15
      v_add_u32 v{vTw[0]}, s{sT2}, v15
      v_xor_b32 v{vTw[1]}, 32, v{vTw[0]}
      v_xor_b32 v{vTw[2]}, 64, v{vTw[0]}
      v_xor_b32 v{vTw[3]}, 96, v{vTw[0]}
      s_lshl_b32 s{sT0}, s{sCB2}, 7
      s_lshl_b32 s{sT1}, s{sRB2}, 18
      s_add_u32 s{sT0}, s{sT0}, s{sT1}""".split("\n")
    for r in range(3): extra[34, r] = ["\n".join(t_[8*r+2*k:8*r+2*k+2]) for k in range(4)]
    extra[34, 3] = [f"s_lshl_b32 s{sT1}, s{sW}, 16", f"s_add_u32 s{sT0}, s{sT0}, s{sT1}"]
    cv = []
    for nt in range(4):
        cv += [f"v_lshlrev_b32 v{HR+4*nt}, 16, v{vB2+2*nt}", f"v_and_b32 v{HR+1+4*nt}, 0xffff0000, v{vB2+2*nt}",
               f"v_lshlrev_b32 v{HR+2+4*nt}, 16, v{vB2+2*nt+1}", f"v_and_b32 v{HR+3+4*nt}, 0xffff0000, v{vB2+2*nt+1}"]
    for r in range(4): extra[34, 4 + r] = cv[4*r:4*r+4]
    fm = [f"v_pk_fma_f32 {vr(OWN+4*k+r,2)}, {vr(HR+4*(k%4)+r,2)}, {vr(vGM+12+2*(k//4),2)}, {vr(OWN+4*k+r,2)} op_sel_hi:[1,0,1]" for k in range(8) for r in (0, 2)]
    for r in range(2): extra[35, r] = ["\n".join(fm[8*r+2*k:8*r+2*k+2]) for k in range(4)]
    for i in range(28, 36):
        if i == 32: stamp("g_32")
        for rt in range(8):
            a.wait(vm=("H", i, rt), lg=("W2", i) if rt == 0 else ())
            fill = [[], [], [], []]
            if rt == 1 and i == 31: fill[0] += [lambda: a("\n".join(f"v_add_u32 v{vWR+nt}, s{sT2}, v{vWR+nt}" for nt in range(4)))]
            if rt == 1 and i == 32:
                fill[0] += [lambda: a("\n".join(f"v_add_u32 v{vWR+nt}, 16384, v{vWR+nt}" for nt in range(4)))]
                fill[3] += [lambda: waitlds(8, 4, "L_wa")]
            if rt == 2 and i == 30: fill[2].append(lambda: a.wait(vm="b2"))
            if 3 <= rt < 7 and i < 35:
                fill[0].append(lambda: rdW2(i + 1, rt - 3, 0, WOFF.get(i + 1))); fill[2].append(lambda: rdW2(i + 1, rt - 3, 1, WOFF.get(i + 1)))
            if i < 34: fill[3].append(lambda: ldH(i + 2, rt))
            for k, x in enumerate(extra.get((i, rt), [])): fill[k].append(lambda x=x: a(x))
            if i == 35 and rt >= 2:
                for nt in range(4): fill[nt].append(lambda nt=nt: wr((rt - 2) // 2, 4 * (rt % 2) + nt))
            for nt in range(4):
                mf16(acc2(rt, nt), WF + 16 * (i % 2) + 4 * nt, HR + 32 * (i % 2) + 4 * rt)
                for f in fill[nt]: f()
    a.wait0(vm=False)
    stamp("g_36")
    a("s_barrier")
    stamp("g_bar")
    rds = [(p, k) for k in range(8) for p in range(3)]
    def rd(n):
        if n < 24:
            p, k = rds[n]
            a.lg(f"ds_read_b128 {vr(ACC2+32*p+4*k,4)}, v{vRd[p]} offset:{8192*p+1024*k if p < 2 else 16384*(k//4)+1024*(k%4)}", ("r", k))
    for n in range(12): rd(n)
    def st(g_):
        a.wait(lg=("u", g_ // 2, g_ % 2))
        a(f"buffer_store_dwordx4 {vr(HR+32+4*g_,4)}, v{vOo}, s[{rC}:{rC+3}], s{sT0} offen{['', ' sc1', ' nt'][OPT['osc']]}")
        if g_ < 3: a(f"s_add_u32 s{sT0}, s{sT0}, 16384")
    for k in range(8):
        a.wait(lg=("r", k))
        for r in (0, 2): a(f"v_pk_add_f32 {vr(ACC2+4*k+r,2)}, {vr(ACC2+4*k+r,2)}, {vr(ACC2+32+4*k+r,2)}")
        rd(12 + 3 * k)
        for r in (0, 2): a(f"v_pk_add_f32 {vr(OWN+4*k+r,2)}, {vr(OWN+4*k+r,2)}, {vr(ACC2+64+4*k+r,2)}")
        rd(13 + 3 * k)
        for r in (0, 2): a(f"v_pk_add_f32 {vr(OWN+4*k+r,2)}, {vr(OWN+4*k+r,2)}, {vr(ACC2+4*k+r,2)}")
        rd(14 + 3 * k)
        T_ = HR + 2 * k
        a(f"v_cvt_pk_bf16_f32 v{T_}, v{OWN+4*k}, v{OWN+4*k+1}\n v_cvt_pk_bf16_f32 v{T_+1}, v{OWN+4*k+2}, v{OWN+4*k+3}")
        a.lg(f"ds_write_b64 v{vTw[k%4]}, {vr(T_,2)} offset:{2048*(k//4)}")
        if k % 4 == 3:
            for h in range(2): a.lg(f"ds_read_b128 {vr(HR+32+8*(k//4)+4*h,4)}, v{vTr} offset:{2048*(k//4)+1024*h}", ("u", k // 4, h))
    for g_ in range(4): st(g_)
    if OPT["ts"]: a.wait0(); stamp("g_end")
    if OPT["padto"]:
        a.label("L_pad")
        a(f"s_memrealtime s[98:99]\n s_waitcnt lgkmcnt(0)\n s_sub_u32 s98, s98, s96\n s_cmp_lt_u32 s98, {OPT['padto']}\n s_cbranch_scc1 L_pad")
    dump_ts_and_end()
    if OPT["pf2"]:
        a.label("L_hookF")
        a(f"v_lshlrev_b32 v15, 7, v0\n buffer_load_dword v19, v15, s[{rPF}:{rPF+3}], s{sA} offen\n s_branch L_hookF_r")
    a.label("L_hookW")
    a(f"s_cmp_eq_u32 s{sIT}, 5\n s_cbranch_scc1 L_hookW_r\n s_cmp_eq_u32 s{sIT}, 6\n s_cbranch_scc1 L_hookW6")
    stamp("g_17")
    waitlds(0, 4, "L_wq")
    srd(rA, pWO, 1024 * 2048)
    a(f"s_lshl_b32 s{sT0}, s{sW}, 12\n s_add_u32 m0, s{sT0}, {QX}\n s_lshl_b32 s{sT0}, s{sW}, 19\n s_add_u32 s{sT0}, s{sT0}, {4*65536}")
    for k in range(4): a(f"buffer_load_dwordx4 v{vWD+k}, s[{rA}:{rA+3}], s{sT0} offen offset:{1024*k} lds")
    a("s_branch L_hookW_r")
    a.label("L_hookW6")
    stamp("g_25")
    a(f"s_mov_b32 s{rB}, s{pWO}\n s_mov_b32 s{rB+1}, s{pWO+1}\n s_mov_b32 s{rB+2}, {1024*2048}\n s_lshl_b32 s{sWo}, s{sW}, 19")
    mbox(1)
    a(f"buffer_load_dword v17, v15, s[{rWS}:{rWS+3}], s{sT0} offen sc1\n s_branch L_hookW_r")
    a.label("L_hookH")
    ooff()
    a(f"""s_waitcnt vmcnt({0 if OPT["g2nold"] else 12})
      v_cmp_ne_u32 vcc, 1, v17
      s_cmp_eq_u64 vcc, 0
      s_cselect_b32 s{sRdy}, 1, 0
      s_cselect_b32 s{sHo}, s{sHo}, {OOB}
      s_branch L_hookH_r""")
    if OPT["pause"] < 7:
        a.label("L_hookP")
        waitlds(0, OPT["pcnt"], "L_hookP2")
        a("s_branch L_g2loop")

prologue()
section("g")
a.label("L_roleG")
g_phase1()
if OPT["stop"] == 1:
    stamp("g_bq"); g_hstore(); a.wait0(); stamp("g_hst"); dump_ts_and_end()
else:
    if OPT["wlate"]: g_hstore(OPT["hfirst"], 7)
    g2_setup()
    for i in range(3):
        for k in range(4): dmaW(i, k)
    if not OPT["wlate"]: g_hstore()
    g_phase2()
a_phase1()
if OPT["stop"] == 1:
    a(f"s_lshl_b32 s{sT0}, s{sW}, 12\n s_add_u32 s{sT1}, s{sT0}, {QX}\n v_lshl_add_u32 v16, v0, 4, s{sT1}")
    for i in range(4): a(f"ds_read_b128 {vr(32+4*i,4)}, v16 offset:{1024*i}")
    a(f"s_lshl_b32 s{sT1}, s{sRB}, 4\n s_add_u32 s{sT1}, s{sT1}, s{sCB}\n s_lshl_b32 s{sT1}, s{sT1}, 14\n s_add_u32 s{sT0}, s{sT0}, s{sT1}\n s_add_u32 s{sT0}, s{sT0}, {QD_OFF}")
    a.wait0()
    for i in range(4): a(f"buffer_store_dwordx4 {vr(32+4*i,4)}, v{vKVD}, s[{rWS}:{rWS+3}], s{sT0} offen offset:{1024*i}")
    dump_ts_and_end()
else:
    stamp("a_bq")
    attention()
a.label("L_exit")
a("s_endpgm")
a.label("L_codeend")

HDR = open("cdna_kernels/" + KNAME[:-7] + ".s.ref").read().split("; Override launch")[0]
text = HDR + f"; @launch grid=(256,1,1) block=(512,1,1) lds={LDS_BYTES}\n"
text += f'.amdgcn_target "amdgcn-amd-amdhsa--gfx950"\n.text\n.globl {KNAME}\n.p2align 8\n.type {KNAME},@function\n{KNAME}:\n'
a.out = SEC['head'] + SEC['st1'] + SEC['st0'] + SEC['st2'] + SEC['g'] + SEC['main']
body = a.text()
nbad = check(body)
text += body
text += f""".section .rodata,"a"
.p2align 6
.amdhsa_kernel {KNAME}
  .amdhsa_next_free_vgpr 256
  .amdhsa_next_free_sgpr 102
  .amdhsa_accum_offset 256
  .amdhsa_group_segment_fixed_size 0
  .amdhsa_kernarg_size 112
  .amdhsa_user_sgpr_count 2
  .amdhsa_user_sgpr_kernarg_segment_ptr 1
  .amdhsa_system_sgpr_workgroup_id_x 1
.end_amdhsa_kernel
"""
open(sys.argv[1], "w").write(text)
if nbad: sys.exit(f"{nbad} hazards")
```

```python
import sys, math
from asmlib import *

KNAME = "gated_mix__grouped_kv_mqa__dense_activation_squared_relu__prompt_kernel"
OPT = dict(stop=0, ts=0, pd=8, forceslow=0, nodma=0, nokv=0, nopf=0, nords=0, lead=6, pfnt=0, far=99, pf2=1, pf2b=2, gprio=2, nog2=0, g2nold=0, anodma=0, g2prio=0, dbgts=0, slp=2, th=0, farw2=1, hglob=1, arrk=1, wlate=1, map2=3, steps=0, kvskip='', pause=99, pcnt=64, grp=1, osc=1, padto=0, st2=0, spos=0, hfirst=2, p0prio=3, d0prio=1, xlate=0, ring=6, h3prio=1, hfl='sc1', wfl='', xfl='', padat='', xm=1, p0late=1, p0lo=0, kvreg=2, lowv=1, noo=0, nopk=1, tgrp=1, nowo=0, noack=0, pfl='sc1', sfl='sc1', nowr=0, pat='eeeA0ececB1eeeC2cceeDweeccS4e5eeecc')
for a_ in sys.argv[2:]:
    k, v = a_.split("="); OPT[k] = int(v) if v.lstrip('-').isdigit() else v

RBSZ = 144 * 8192
KV_OFF = 0x1200000; G_OFF = 0x1240000; KF_OFF = 0x1244000; FL_OFF = 0x1248000; WS_USED = 0x1268000
QD_OFF = 0x1400000; TS_OFF = 0x1800000
WS_SIZE = 0x2000000 if (OPT["stop"] or OPT["ts"]) else WS_USED
OOB = 0x40000000
W1R = 0; W1S = 14336
WQR = 57344; WQS = 4096
XR = 73728; XS = 16384
KVST = 122880
SYNC = 155648
GT = SYNC + 256
LDS_BYTES = GT + 2048
QX = XR
KVR = 90112
pX, pWQ, pWK, pWV, pWO, pW1, pB1, pW2, pB2, pGATE, pOUT, pDBG, pWS = 4, 6, 8, 10, 12, 16, 18, 20, 22, 24, 26, 28, 30
rA, rB, rC, rD, rWS, rDBG, rPF, rE = 32, 36, 40, 44, 48, 52, 56, 60
sRB, sCB, sRB2, sCB2, sI, sW = 64, 65, 66, 67, 68, 69
sT0, sT1, sT2, sT3, sT4, sT5 = 70, 71, 72, 73, 74, 75
sIT, sA, sB, sC, sD, sE, sF, sG = 76, 77, 78, 79, 80, 81, 82, 83
sTS = 84
SPIN_MAX = 1 << 18

a = Asm()
SEC = {}
def section(n):
    a.out = SEC.setdefault(n, [])
section("head")
def kwait():
    a("s_waitcnt lgkmcnt(0)"); stamp("kw"); srd(rWS, pWS, WS_SIZE)
def srd(r, p, size):
    a(f"s_mov_b32 s{r}, s{p}\n s_mov_b32 s{r+1}, s{p+1}\n s_mov_b32 s{r+2}, {size}\n s_mov_b32 s{r+3}, 0x20000")
nts = [0]
STAMPS = {1: dict(g_b0=1, g_end1=2, g_bq=3, g_hst=4, g_pre=5, a_set=1, a_w0=2, a_8=3, a_16=4, a_24=5),
          0: dict(g_end1=1, g_flag=2, g_l2=3, g_hook=4, g_end=5, a_b0=1, a_16=2, a_bq=3, a_att=4, a_end=5)}[OPT["stop"]]
if OPT["st2"] == 1: STAMPS.update(g_end1=0, g_flag=0, g_l2=1, g_17=2, g_25=3)
if OPT["st2"] == 3: STAMPS = dict(kw=1, g_pre=2, g_bias=3, g_rdy=4, g_b0=5, a_iss=2, a_set=3, a_w0=4, a_b0=5)
if OPT["st2"] == 4: STAMPS.update(g_end1=0, g_st=1, g_flag=2, g_pw=3, g_wf=4, g_l2=0, g_s0=5, g_hook=0, g_end=0)
if OPT["st2"] == 2: STAMPS.update(g_end1=0, g_flag=0, g_l2=0, g_hook=1, g_32=2, g_36=3, g_bar=4)
def stamp(n):
    if n == OPT["padat"]: a("s_memrealtime s[96:97]"); a.wait0(vm=False)
    i = STAMPS.get(n)
    if OPT["ts"] and i:
        a(f"{'s_memrealtime' if OPT['ts'] == 2 else 's_memtime'} s[{sTS+2*i}:{sTS+2*i+1}]"); a.wait0(vm=False)
def mf16(d, x, y, c=None):
    a(f"v_mfma_f32_16x16x32_bf16 {vr(d,4)}, {vr(x,4)}, {vr(y,4)}, {vr(d,4) if c is None else c}")
def mf32(d, x, y, c=None):
    a(f"v_mfma_f32_32x32x16_bf16 {vr(d,16)}, {vr(x,4)}, {vr(y,4)}, {vr(d,16) if c is None else c}")
def dump_ts_and_end():
    if OPT["ts"]:
        a("s_memrealtime s[98:99]"); a.wait0()
        if OPT["dbgts"]:
            l = a.newlabel("L_nots")
            srd(rDBG, pDBG, 256)
            a(f"s_cmp_lg_u32 s2, 100\n s_cbranch_scc1 {l}\n s_cmp_lg_u32 s{sW}, 0\n s_cbranch_scc1 {l}")
            for i, k in enumerate((1, 2, 3, 4, 5, 7)): a(f"s_sub_u32 s{sT0}, s{sTS+2*k}, s96\n v_mov_b32 v{8+i}, s{sT0}")
            a(f"s_lshl_b32 s{sT0}, s3, 3\n s_add_u32 s{sT0}, s{sT0}, 8\n v_mov_b32 v2, 0\n s_mov_b64 exec, 1")
            a(f"buffer_store_dwordx2 v[8:9], v2, s[{rDBG}:{rDBG+3}], s{sT0} offen")
            a(f"buffer_store_dwordx4 v[10:13], v2, s[{rDBG}:{rDBG+3}], s{sT0} offen offset:8")
            a.label(l)
        else:
            for i in range(8): a(f"v_mov_b32 v{8+i}, s{sTS+2*i}")
            a(f"s_lshl_b32 s{sT0}, s2, 8\n s_lshl_b32 s{sT1}, s3, 5\n s_add_u32 s{sT0}, s{sT0}, s{sT1}\n s_add_u32 s{sT0}, s{sT0}, {TS_OFF}")
            a(f"v_mov_b32 v2, 0\n s_mov_b64 exec, 1")
            a(f"buffer_store_dwordx4 v[8:11], v2, s[{rWS}:{rWS+3}], s{sT0} offen")
            a(f"buffer_store_dwordx4 v[12:15], v2, s[{rWS}:{rWS+3}], s{sT0} offen offset:16")
    a("s_endpgm")

def prologue():
    m = OPT["map2"]
    lx, lc = {0: (1, 3), 2: (1, 3), 3: (2, 2), 4: (0, 4)}[m]
    MAP2 = f"""s_lshr_b32 s{sT1}, s{sT0}, {lx}
      s_lshl_b32 s{sT1}, s{sT1}, {5-lc}
      s_lshr_b32 s{sT2}, s{sI}, {lc}
      s_add_u32 s{sRB2}, s{sT1}, s{sT2}
      s_and_b32 s{sT1}, s{sT0}, {(1<<lx)-1}
      s_and_b32 s{sT2}, s{sI}, {(1<<lc)-1}
      s_lshl_b32 s{sT2 if m == 2 else sT1}, s{sT2 if m == 2 else sT1}, {lx if m == 2 else lc}
      s_add_u32 s{sCB2}, s{sT1}, s{sT2}"""
    a("s_cmp_ge_u32 s2, 256\n s_cbranch_scc1 L_exit")
    a("s_load_dwordx16 s[4:19], s[0:1], 0\n s_load_dwordx8 s[20:27], s[0:1], 64\n s_load_dwordx4 s[28:31], s[0:1], 96")
    if OPT["ts"] or OPT["th"] or OPT["padto"]:
        a(f"s_memtime s[{sTS}:{sTS+1}]\n s_memrealtime s[96:97]")
    a(f"""v_lshrrev_b32 v1, 6, v0
      v_and_b32 v0, 63, v0
      v_readfirstlane_b32 s3, v1
      s_lshr_b32 s{sI}, s2, 3
      s_and_b32 s{sT0}, s2, 7
      s_lshr_b32 s{sT1}, s{sT0}, 2
      s_lshl_b32 s{sT1}, s{sT1}, 3
      s_lshr_b32 s{sT2}, s{sI}, 2
      s_add_u32 s{sRB}, s{sT1}, s{sT2}
      s_and_b32 s{sT1}, s{sT0}, 3
      s_lshl_b32 s{sT1}, s{sT1}, 2
      s_and_b32 s{sT2}, s{sI}, 3
      s_add_u32 s{sCB}, s{sT1}, s{sT2}
      {MAP2}
      s_and_b32 s{sW}, s3, 3
      v_and_b32 v1, 15, v0
      v_lshrrev_b32 v2, 4, v0""")
    a("s_cmp_lt_u32 s3, 4\n s_cbranch_scc1 L_roleG\n s_setprio 1\n s_cmp_eq_u32 s3, 7\n s_cbranch_scc1 L_st2\n s_cmp_lg_u32 s3, 6\n s_cbranch_scc1 L_st0")

ACC1 = 112
acc1 = lambda ft, rt: ACC1 + (ft * 4 + rt) * 4
XF = [56, 72]; WRING = 88; NR = OPT['ring']; RD = NR - 1
vX = [34, 35]; vXb = [36, 37]; vW1 = [38, 39]; vWq = [40, 41]; vJ, vLP, vQW = 42, 43, 44
def g_phase1():
    PD = OPT["pd"]
    sRG, sCG = sA, sB
    sXo, sPo, sPe, sPd = sC, sD, sE, sF
    a(f"s_and_b32 s{sRG}, s{sW}, 1\n s_lshr_b32 s{sCG}, s{sW}, 1")
    a(f"""s_cmp_lt_u32 s{sW}, 2
      s_cbranch_scc0 L_nocode
      s_getpc_b64 s[{rE}:{rE+1}]""")
    a.label("L_pc")
    a(f"""s_mov_b32 s{rE+2}, L_codeend-L_pc
      s_mov_b32 s{rE+3}, 0x20000
      s_lshl_b32 s{sT1}, s{sI}, 10
      s_lshl_b32 s{sT2}, s{sW}, 15
      s_add_u32 s{sT1}, s{sT1}, s{sT2}
      v_lshlrev_b32 v15, 7, v0
      s_mov_b64 exec, 0xff
      buffer_load_dword v{vJ}, v15, s[{rE}:{rE+3}], s{sT1} offen
      s_mov_b64 exec, -1""")
    a.label("L_nocode")
    a(f"""s_mul_i32 s{sT0}, s{sCB}, 448
      s_mul_i32 s{sT1}, s{sCG}, 224
      s_add_u32 s{sT0}, s{sT0}, s{sT1}
      v_lshlrev_b32 v14, 2, v0
      s_mov_b32 s{rA+2}, 7168
      s_mov_b32 s{rA+3}, 0x20000
      s_setprio 3
      s_waitcnt lgkmcnt(0)
      s_mov_b32 s{rA}, s{pB1}
      s_mov_b32 s{rA+1}, s{pB1+1}
      buffer_load_dword v33, v14, s[{rA}:{rA+3}], s{sT0} offen
      s_setprio 0""")
    kwait()
    for r in range(0, 32, 2): a(f"v_mov_b64 {vr(ACC1+r,2)}, 0")
    a(f"""v_lshrrev_b32 v14, 1, v1
      v_xor_b32 v14, v14, v2
      v_lshlrev_b32 v14, 4, v14
      v_lshl_add_u32 v14, v1, 7, v14
      s_lshl_b32 s{sT0}, s{sRG}, 13
      s_add_u32 s{sT0}, s{sT0}, {XR}
      v_add_u32 v{vXb[0]}, s{sT0}, v14
      v_xor_b32 v{vXb[1]}, 64, v{vXb[0]}
      v_mov_b32 v{vX[0]}, v{vXb[0]}
      v_mov_b32 v{vX[1]}, v{vXb[1]}
      s_mov_b32 s{sXo}, 0
      v_lshrrev_b32 v14, 2, v1
      v_lshl_add_u32 v14, v2, 3, v14
      v_and_b32 v15, 3, v1
      v_lshlrev_b32 v15, 3, v15
      v_mul_u32_u24 v30, 448, v14
      v_add_u32 v30, v30, v15
      s_mul_i32 s{sT0}, s{sCG}, 224
      v_add_u32 v30, s{sT0}, v30
      v_and_b32 v31, 1, v2
      v_lshlrev_b32 v32, 5, v31
      s_lshl_b32 s{sT1}, s{sCG}, 1
      s_sub_u32 s{sT1}, 1, s{sT1}
      v_mul_lo_u32 v32, v32, s{sT1}
      v_add_u32 v{vW1[0]}, v30, v32
      v_sub_u32 v{vW1[1]}, v30, v32
      v_lshrrev_b32 v32, 3, v1
      v_lshl_add_u32 v31, v32, 1, v31
      s_lshl_b32 s{sT0}, s{sCG}, 1
      v_xor_b32 v31, s{sT0}, v31
      v_lshl_add_u32 v15, v31, 5, v15
      v_lshl_add_u32 v15, v14, 7, v15
      v_add_u32 v{vWq[0]}, {WQR}, v15
      v_xor_b32 v{vWq[1]}, 32, v{vWq[0]}""")
    a(f"""v_and_b32 v14, 1, v2
      v_lshlrev_b32 v14, 10, v14
      v_lshrrev_b32 v15, 1, v2
      v_lshl_add_u32 v14, v15, 8, v14
      v_lshl_add_u32 v{vLP}, v1, 4, v14""")
    if not OPT["stop"]: g2_vsetup()
    a(f"v_mov_b32 v30, {SYNC}\n ds_write_b128 v30, v[{ACC1}:{ACC1+3}]\n v_lshlrev_b32 v15, 3, v2")
    stamp("g_pre")
    a.wait0()
    stamp("g_bias")
    for k in range(14): a.lg(f"ds_bpermute_b32 v{16+k}, v15, v33 offset:{32*(k//2)+4*(k%2)}", ("b", k // 2))
    for ft in range(7):
        d = acc1(2 + ft, 0)
        a.wait(lg=("b", ft))
        a(f"v_lshlrev_b32 v{d}, 16, v{16+2*ft}\n v_and_b32 v{d+1}, 0xffff0000, v{16+2*ft}")
        a(f"v_lshlrev_b32 v{d+2}, 16, v{17+2*ft}\n v_and_b32 v{d+3}, 0xffff0000, v{17+2*ft}")
        for rt in range(1, 4): a(f"v_mov_b64 {vr(d+4*rt,2)}, {vr(d,2)}\n v_mov_b64 {vr(d+4*rt+2,2)}, {vr(d+2,2)}")
    def rdW(g, e):
        if OPT["nords"] and g > 2: return
        t, ft = divmod(g, 9); d = WRING + 4 * (g % NR) + 2 * e
        if ft < 2: a.lg(f"ds_read_b64_tr_b16 {vr(d,2)}, v{vWq[ft]} offset:{(t%4)*WQS + e*512}", ("W", g))
        else: a.lg(f"ds_read_b64_tr_b16 {vr(d,2)}, v{vW1[ft%2]} offset:{(t%4)*W1S + e*1792 + (ft-2)*32}", ("W", g))
    def rdX(t, rt):
        a.lg(f"ds_read_b128 {vr(XF[t%2]+4*rt,4)}, v{vX[t%2]} offset:{rt*2048}", ("X", t))
    a(f"s_mov_b32 s{sIT}, 0")
    stamp("g_rdy")
    a("s_barrier")
    stamp("g_b0")
    for rt in range(4): rdX(0, rt)
    for g in range(RD): rdW(g, 0); rdW(g, 1)
    a.raw(".p2align 3")
    a.label("L_g1loop")
    def body(it):
        for ts in range(4):
            t = it * 4 + ts
            for ft in range(9):
                g = t * 9 + ft
                fill = [[], [], [], []]
                fill[0].append(lambda: rdW(g + RD, 0))
                fill[1].append(lambda: rdW(g + RD, 1))
                if NR == 4:
                    if ft == 5: fill[2].append(lambda: a("s_barrier")); fill[3].append(lambda: rdX(t + 1, 0))
                    if ft == 6: fill[2].append(lambda: (rdX(t + 1, 1), rdX(t + 1, 2))); fill[3].append(lambda: rdX(t + 1, 3))
                else:
                    if ft == 3: fill[2].append(lambda: a("s_barrier")); fill[3].append(lambda: rdX(t + 1, 0))
                    if ft == 4: fill[2].append(lambda: rdX(t + 1, 1)); fill[3].append(lambda: rdX(t + 1, 2))
                    if ft == 5: fill[2].append(lambda: rdX(t + 1, 3))
                if ts % 2 == 1:
                    if ft == 1:
                        fill[2].append(lambda: a(f"s_add_u32 s{sXo}, s{sXo}, {XS}\n s_cmp_eq_u32 s{sXo}, {3*XS}"))
                        fill[3].append(lambda: a(f"s_cselect_b32 s{sXo}, 0, s{sXo}"))
                    if ft == 2:
                        fill[2].append(lambda: a(f"v_add_u32 v{vX[0]}, s{sXo}, v{vXb[0]}"))
                        fill[3].append(lambda: a(f"v_add_u32 v{vX[1]}, s{sXo}, v{vXb[1]}"))
                if ts == 2 and ft == 8:
                    fill[2].append(lambda: a(f"s_add_u32 s{sIT}, s{sIT}, 1")); fill[3].append(lambda: a(f"s_cmp_eq_u32 s{sIT}, 8"))
                a.wait(lg=[("W", g), ("X", t)] if ft == 0 else ("W", g))
                for rt in range(4):
                    mf16(acc1(ft, rt), WRING + 4 * (g % NR), XF[t % 2] + 4 * rt)
                    for f in fill[rt]: f()
            if ts == 2:
                a("s_cbranch_scc1 L_g1last"); snap[:] = [(k_, v_ + (30 - t) * (9 if k_ == "W" else 1)) for k_, v_ in a.lgq]
        a("s_branch L_g1loop")
    snap = []
    a.loop(body, "g1")
    a.label("L_g1last")
    a.lgq[:] = snap
    q = [f"s_lshl_b32 s{sT2}, s{sRG}, 13\n s_lshl_b32 s{sT3}, s{sCG}, 11", f"s_add_u32 s{sT2}, s{sT2}, s{sT3}\n s_add_u32 s{sT2}, s{sT2}, {QX}",
         f"v_lshl_add_u32 v{vQW}, v0, 4, s{sT2}", "s_barrier"]
    q2 = []
    for s_ in range(2):
        for p in range(2):
            T = 16 + 8 * s_ + 4 * p
            for h in range(2):
                d = acc1(s_, 2 * p + h)
                q2.append(f"v_cvt_pk_bf16_f32 v{T+2*h}, v{d}, v{d+1}\n v_cvt_pk_bf16_f32 v{T+2*h+1}, v{d+2}, v{d+3}")
    sw = lambda k: f"v_permlane16_swap_b32 v{16+4*k}, v{18+4*k}\n v_permlane16_swap_b32 v{17+4*k}, v{19+4*k}"
    wq = lambda k: ("w", f"ds_write_b128 v{vQW}, {vr(16+4*k,4)} offset:{(k%2)*4096 + (k//2)*1024}")
    plan = {(0, 2): q[0], (0, 3): q[1], (1, 2): q[2], (2, 2): q2[0], (2, 3): q2[1], (3, 2): q2[2], (3, 3): q2[3],
            (4, 0): q[3] + '\n' + q2[4], (4, 1): sw(0), (4, 2): q2[5], (4, 3): wq(0), (5, 0): sw(1), (5, 1): q2[6], (5, 2): wq(1), (5, 3): q2[7],
            (6, 0): sw(2), (6, 1): wq(2), (6, 2): sw(3), (6, 3): wq(3)}
    for ft in range(9):
        g = 31 * 9 + ft
        a.wait(lg=[("W", g), ("X", 31)] if ft == 0 else ("W", g))
        for rt in range(4):
            mf16(acc1(ft, rt), WRING + 4 * (g % NR), XF[1] + 4 * rt)
            if rt < 2 and ft + RD < 9: rdW(g + RD, rt)
            x = plan.get((ft, rt))
            if isinstance(x, tuple): a.lg(x[1])
            elif x: a(x)
            if (ft, rt) == (8, 1): a.wait0(vm=False); a(f"s_setprio {OPT['gprio']}\n s_barrier")
    stamp("g_end1")
def g_hstore(lo=0, hi=7):
    sRG, sCG = sA, sB
    sT0, sT1, sT2, sT3 = sT4, sT5, sF, sG
    if lo == 0: a(f"""s_mul_i32 s{sT0}, s{sRB}, {RBSZ}
      s_mul_i32 s{sT1}, s{sCB}, {7*8192}
      s_add_u32 s{sT0}, s{sT0}, s{sT1}
      s_lshl_b32 s{sT1}, s{sRG}, 12
      s_add_u32 s{sT0}, s{sT0}, s{sT1}
      s_mul_i32 s{sT1}, s{sCG}, {3*8192+512}
      s_add_u32 s{sT0}, s{sT0}, s{sT1}
      s_mul_i32 s{sT2}, s{sCG}, {8192-1024}
      s_add_u32 s{sT2}, s{sT2}, 512
      s_sub_u32 s{sT3}, 8192, s{sT2}""")
    k = 0
    for ft in range(lo, hi):
        for p in range(2):
            T = 16 + 4 * (k % 4); k += 1
            for h in range(2):
                d = acc1(2 + ft, 2 * p + h)
                for r in range(4): a(f"v_max_f32 v{d+r}, 0, v{d+r}")
                if OPT["nopk"] > 1: a("\n".join(f"v_mul_f32 v{d+r}, v{d+r}, v{d+r}" for r in range(4)))
                else: a(f"v_pk_mul_f32 {vr(d,2)}, {vr(d,2)}, {vr(d,2)}\n v_pk_mul_f32 {vr(d+2,2)}, {vr(d+2,2)}, {vr(d+2,2)}")
                a(f"v_cvt_pk_bf16_f32 v{T+2*h}, v{d}, v{d+1}\n v_cvt_pk_bf16_f32 v{T+2*h+1}, v{d+2}, v{d+3}")
            a(f"s_nop 1\n v_permlane16_swap_b32 v{T}, v{T+2}\n v_permlane16_swap_b32 v{T+1}, v{T+3}")
            a.vm(f"buffer_store_dwordx4 {vr(T,4)}, v{vLP}, s[{rWS}:{rWS+3}], s{sT0} offen offset:{p*2048} sc1", "hst")
        a(f"s_add_u32 s{sT0}, s{sT0}, s{sT2 if ft % 2 == 0 else sT3}")

vO = 3
vKX, vKG, vKW, vKT0, vKVD, vKR = 140, 12, 13, 24, 15, 142
KVREG = 208
KXF, KGF, KWF, KAC = 32, 64, 96, 128
def a_phase1():
    sISV, sR0, sSTG, sM, sSo, sSx, sGrp = sA, sB, sC, sD, sE, sF, sG
    NT = " nt" if OPT["pfnt"] else ""
    LEAD = OPT["lead"]
    for path in range(3):
        section(f"st{path}")
        a.label(f"L_st{path}")
        a.vmq.clear(); a.lgq.clear()
        ldW = ldX = pfs = lambda t, m=None: None
        trickle = []
        def trk(all_=False):
            while trickle:
                for t_ in trickle.pop(0): a.lg(t_)
                if not all_: break
        if path == 0:
            a(f"s_mul_i32 s{sT0}, s{sW}, {16*7168}\n s_mul_i32 s{sT1}, s{sCB}, 448\n s_add_u32 s{sSo}, s{sT0}, s{sT1}")
            a(f"s_mul_i32 s{sM}, s{sW}, 7168\n s_movk_i32 s{sT2}, {7168-448}")
            for i in range(7):
                a(f"""v_add_u32 v16, {64*i}, v0
                  v_mul_u32_u24 v17, 2341, v16
                  v_lshrrev_b32 v17, 16, v17
                  v_bfe_u32 v18, v17, 3, 1
                  v_lshlrev_b32 v18, 1, v18
                  v_xor_b32 v16, v16, v18
                  v_lshlrev_b32 v16, 4, v16
                  v_mad_u32_u24 v{vO+i}, v17, s{sT2}, v16""")
                if i % 4: a(f"v_subrev_u32 v{vO+i}, {1024*(i%4)}, v{vO+i}")
            kwait(); srd(rB, pW1, 1024 * 7168)
            def ldW(t, m=None):
                for i in range(7):
                    if i == 4 and m: m()
                    if i % 4 == 0: a(f"s_add_u32 m0, s{sM}, {(t%4)*W1S + i*1024}\n s_nop 0")
                    a.vm(f"buffer_load_dwordx4 v{vO+i}, s[{rB}:{rB+3}], s{sSo} offen offset:{1024*(i%4)} {OPT['xfl'].replace('_', ' ')} lds", ("W", t)); trk()
                a(f"s_add_u32 s{sSo}, s{sSo}, {32*7168}")
        elif path == 1:
            a(f"""v_lshrrev_b32 v16, 3, v0
              v_lshlrev_b32 v16, 11, v16
              v_and_b32 v17, 7, v0
              v_xor_b32 v18, v17, v2
              v_lshl_add_u32 v18, v18, 4, v16
              v_and_b32 v20, 1, v2
              v_lshlrev_b32 v20, 2, v20
              v_xor_b32 v20, v20, v17
              v_lshl_add_u32 v20, v20, 4, v16
              s_lshl_b32 s{sSo}, s{sCB}, 7
              s_lshl_b32 s{sSx}, s{sRB}, 18""")
            for i in range(4):
                a(f"v_xor_b32 v19, {64*(i%2)}, v18\n v_add_u32 v{vO+i}, {i*16384 - i*1024}, v19")
                a(f"v_xor_b32 v19, {32*(i%2)}, v20\n v_add_u32 v{vO+4+i}, {i*16384 - i*1024}, v19")
            kwait(); srd(rB, pWQ, 1024 * 2048); srd(rA, pX, 2048 * 2048)
            def ldW(t, m=None):
                a(f"s_mov_b32 m0, {WQR + (t%4)*WQS}\n s_nop 0")
                for i in range(4):
                    a.vm(f"buffer_load_dwordx4 v{vO+4+i}, s[{rB}:{rB+3}], s{sSo} offen offset:{1024*i} {OPT['xfl'].replace('_', ' ')} lds", ("W", t)); trk()
                a(f"s_add_u32 s{sSo}, s{sSo}, 65536")
        else:
            a(f"""s_and_b32 s{sGrp}, s{sI}, 7
              s_lshl_b32 s{sT0}, s{sGrp}, 5
              s_and_b32 s{sT1}, s{sI}, 24
              s_add_u32 s{sT0}, s{sT0}, s{sT1}
              s_and_b32 s{sT1}, s2, 7
              s_add_u32 s{sT0}, s{sT0}, s{sT1}
              s_lshl_b32 s{sIT}, s{sT0}, 14
              s_mul_i32 s{sSo}, s{sT0}, 7168
              s_lshl_b32 s{sM}, s{sT0}, 11
              v_lshrrev_b32 v16, 3, v0
              v_lshlrev_b32 v16, 11, v16
              v_and_b32 v17, 7, v0
              v_lshl_add_u32 v{vO+4}, v17, 7, v16
              v_lshlrev_b32 v{vO+5}, 7, v0
              v_xor_b32 v18, v17, v2
              v_lshl_add_u32 v18, v18, 4, v16
              s_lshl_b32 s{sSx}, s{sRB}, 18
              s_add_u32 s{sSx}, s{sSx}, 65536""")
            for i in range(4): a(f"v_xor_b32 v19, {64*(i%2)}, v18\n v_add_u32 v{vO+i}, {i*16384 - i*1024}, v19")
            a(f"s_setprio {OPT['p0prio']}")
            kwait(); srd(rA, pX, 2048 * 2048); srd(rB, pW1, 1024 * 7168); srd(rPF, pWQ, 1024 * 2048)
            def pfW():
                a(f"s_mov_b32 exec_hi, 0xffffff\n buffer_load_dword v250, v{vO+5}, s[{rB}:{rB+3}], s{sSo} offen{NT}")
                a(f"s_mov_b64 exec, 0xffff\n buffer_load_dword v250, v{vO+5}, s[{rPF}:{rPF+3}], s{sM} offen{NT}\n s_mov_b64 exec, -1")
                a(f"s_add_u32 s{sSo}, s{sSo}, {256*7168}\n s_add_u32 s{sM}, s{sM}, {256*2048}")
            def p0():
                if OPT["nopf"]: return
                m = {0: 0xff, 1: 0x0f}[OPT["xm"]] & (0xff << OPT["p0lo"])
                a(f"s_mov_b32 exec_lo, {hex(m * 0x01010101)}\n s_mov_b32 exec_hi, {hex(m * 0x01010101)}")
                a.vm(f"buffer_load_dword v250, v{vO+4}, s[{rA}:{rA+3}], s{sIT} offen{NT}")
                a(f"""s_sub_u32 s{sT0}, s{sGrp}, {OPT["p0lo"]}
                  s_cmp_lt_u32 s{sT0}, {LEAD - OPT["p0lo"]}
                  s_cselect_b32 s{sT0}, s{sSo}, {OOB}
                  s_cselect_b32 s{sT1}, s{sM}, {OOB}
                  s_mov_b32 exec_lo, -1
                  s_mov_b32 exec_hi, 0xffffff""")
                a.vm(f"buffer_load_dword v250, v{vO+5}, s[{rB}:{rB+3}], s{sT0} offen{NT}")
                a("s_mov_b64 exec, 0xffff")
                a.vm(f"buffer_load_dword v250, v{vO+5}, s[{rPF}:{rPF+3}], s{sT1} offen{NT}")
                a(f"""s_mov_b64 exec, -1
                  s_cmp_lt_u32 s{sGrp}, {LEAD}
                  s_cselect_b32 s{sT0}, {256*7168}, 0
                  s_cselect_b32 s{sT1}, {256*2048}, 0
                  s_add_u32 s{sSo}, s{sSo}, s{sT0}
                  s_add_u32 s{sM}, s{sM}, s{sT1}""")
                if OPT["xm"]:
                    a(f"""s_bfe_u32 s{sIT}, s{sIT}, 0x5000e
                      s_lshl_b32 s{sIT}, s{sIT}, 17
                      v_lshrrev_b32 v16, 1, v0
                      v_and_b32 v17, 1, v0
                      v_lshlrev_b32 v17, 7, v17
                      v_lshl_add_u32 v{vO+4}, v16, 11, v17""")
            def pfs(t):
                if OPT["nopf"]: return
                if t + LEAD < 32:
                    l = a.newlabel("L_np")
                    a(f"s_cmp_lg_u32 s{sGrp}, {(t+LEAD)%8}\n s_cbranch_scc1 {l}")
                    if OPT["h3prio"] == 0: a("s_setprio 0")
                    pfW()
                    if t < 8 and not OPT["xm"]: a(f"buffer_load_dword v250, v{vO+4}, s[{rA}:{rA+3}], s{sIT} offen offset:1024{NT}")
                    if t < 6 and OPT["xm"]:
                        a(f"buffer_load_dword v250, v{vO+4}, s[{rA}:{rA+3}], s{sIT} offen offset:{512+256*t}{NT}\n s_add_u32 s{sIT}, s{sIT}, 65536")
                        a(f"buffer_load_dword v250, v{vO+4}, s[{rA}:{rA+3}], s{sIT} offen offset:{512+256*t}{NT}")
                    if OPT["pf2"] and t // 8 == OPT["pf2b"]:
                        srd(rD, pW2, 3584 * 2048)
                        a(f"s_lshr_b32 s{sT0}, s2, 6\n s_mul_i32 s{sT0}, s{sT0}, {896*2048}\n s_and_b32 s{sT1}, s2, 63\n s_lshl_b32 s{sT1}, s{sT1}, 13\n s_add_u32 s{sT0}, s{sT0}, s{sT1}")
                        a(f"buffer_load_dword v250, v{vO+5}, s[{rD}:{rD+3}], s{sT0} offen")
                    if OPT["h3prio"] == 0: a("s_setprio 1")
                    a.label(l)
                if t == OPT["far"]:
                    srd(rB, pW2, 3584 * 2048); srd(rPF, pWO, 1024 * 2048)
                    a(f"s_mul_i32 s{sSo}, s2, 28672\n s_lshl_b32 s{sM}, s2, 13")
                    for i in range(4 if OPT["farw2"] else 0):
                        if i == 3: a("s_mov_b32 exec_hi, 0")
                        a.vm(f"buffer_load_dword v250, v{vO+5}, s[{rB}:{rB+3}], s{sSo} offen")
                        a(f"s_add_u32 s{sSo}, s{sSo}, 8192")
                    a("s_mov_b64 exec, -1")
                    a.vm(f"buffer_load_dword v250, v{vO+5}, s[{rPF}:{rPF+3}], s{sM} offen")
        if path:
            def ldX(hb):
                u, hf = divmod(hb, 2)
                a(f"s_mov_b32 m0, {XR + (u%3)*XS + hf*8192 + (path-1)*4096}\n s_nop 0")
                for i in range(4):
                    a.vm(f"buffer_load_dwordx4 v{vO+i}, s[{rA}:{rA+3}], s{sSx} offen offset:{1024*i} {OPT['xfl'].replace('_', ' ')} lds", ("X", u)); trk()
                a(f"s_add_u32 s{sSx}, s{sSx}, {131072 if hf == 0 else (128-131072) & 0xffffffff}")
        def kvsetup():
            a(f"""s_and_b32 s{sISV}, s{sCB}, 1
              s_lshr_b32 s{sR0}, s{sCB}, 1
              s_lshl_b32 s{sR0}, s{sR0}, 4
              s_lshl_b32 s{sT0}, s{sRB}, 7
              s_add_u32 s{sR0}, s{sR0}, s{sT0}
              s_cmp_eq_u32 s{sISV}, 0
              s_cselect_b32 s{rC}, s{pWK}, s{pWV}
              s_cselect_b32 s{rC+1}, s{pWK+1}, s{pWV+1}
              s_mov_b32 s{rC+2}, 65536
              s_mov_b32 s{rC+3}, 0x20000
              v_lshlrev_b32 v{vKVD}, 4, v0""")
            if path == 2:
                srd(rD, pGATE, 2048); srd(rDBG, pDBG, 256)
                a(f"s_lshl_b32 s{sT0}, s{sR0}, 5\n s_mov_b64 exec, 15")
                a.vm(f"buffer_load_dword v250, v{vO+5}, s[{rC}:{rC+3}], s{sT0} offen"); a("s_mov_b64 exec, -1")
                a(f"s_mov_b32 m0, {GT}\n s_nop 0")
                for i in range(2): a.vm(f"buffer_load_dwordx4 v{vKVD}, s[{rD}:{rD+3}], 0 offen offset:{1024*i} lds", "gt")
        if path == 2 and OPT["p0late"] == 0: p0(); kvsetup()
        if OPT["d0prio"]: a("s_setprio 2")
        ldW(0); ldX(0); ldX(1)
        if OPT["d0prio"]: a("s_setprio 1")
        if path == 2 and OPT["p0late"] == 1: p0(); kvsetup()
        ldW(1)
        if not OPT["xlate"]: ldX(2); ldX(3)
        if path == 2 and OPT["p0late"] == 2: p0(); kvsetup()
        stamp("a_iss")
        a(f"s_branch L_a1m{path}")
        section("main")
        a.label(f"L_a1m{path}")
        if path == 0: srd(rA, pX, 2048 * 2048)
        if path != 2: kvsetup()
        a(f"""s_lshl_b32 s{sSTG}, s{sW}, 13
          s_add_u32 s{sSTG}, s{sSTG}, {KVST}
          s_lshl_b32 s{sT0}, s{sW}, 7
          v_lshl_add_u32 v17, v2, 4, s{sT0}
          v_add_u32 v{vKG}, {GT}, v17
          v_lshrrev_b32 v16, 3, v0
          v_add_u32 v16, s{sR0}, v16
          v_and_b32 v17, 7, v0
          v_xor_b32 v17, v17, v2
          v_lshl_add_u32 v17, v17, 4, s{sT0}
          v_lshl_add_u32 v{vKX}, v16, 11, v17
          v_xor_b32 v16, 64, v{vKX}
          v_add_u32 v{vKX+1}, {16384-1024}, v16
          v_lshrrev_b32 v16, 1, v1
          v_xor_b32 v16, v16, v2
          v_lshlrev_b32 v16, 4, v16
          v_lshl_add_u32 v16, v1, 7, v16
          v_add_u32 v{vKR}, s{sSTG}, v16
          v_xor_b32 v{vKR+1}, 64, v{vKR}
          v_lshrrev_b32 v16, 4, v0
          v_and_b32 v16, 2, v16
          v_xor_b32 v16, v16, v0
          s_lshl_b32 s{sT0}, s{sW}, 12
          v_lshl_add_u32 v{vKW}, v16, 4, s{sT0}
          v_lshrrev_b32 v16, 2, v1
          v_lshl_add_u32 v16, v2, 3, v16
          v_and_b32 v17, 3, v1
          v_lshlrev_b32 v17, 3, v17
          v_lshl_add_u32 v16, v16, 6, v17
          v_and_b32 v17, 1, v2
          v_lshl_add_u32 v16, v17, 5, v16
          v_add_u32 v{vKT0}, s{sSTG}, v16
          v_xor_b32 v{vKT0+1}, 32, v{vKT0}""")
        for r in range(12): a(f"v_mov_b32 v{KAC+r}, 0")
        def kvX(rho):
            if 'X' in OPT['kvskip']: return
            a(f"s_add_u32 m0, s{sSTG}, 6144\n s_movk_i32 s{sT0}, {rho*512}")
            for i in range(2):
                a.vm(f"buffer_load_dwordx4 v{vKX+i}, s[{rA}:{rA+3}], s{sT0} offen offset:{1024*i} lds", ("kw", rho))
        def kvW(rho, half):
            if 'W' in OPT['kvskip']: return
            if half: a.wait0(vm=False)
            a(f"s_add_u32 m0, s{sSTG}, {4096 if half else (rho%2)*2048}\n s_mov_b32 s{sT0}, {rho*16384 + half*2048}")
            for i in range(2):
                a.vm(f"buffer_load_dwordx4 v{vKW}, s[{rC}:{rC+3}], s{sT0} offen offset:{1024*i} lds", ("kw", rho))
        def kvR(rho):
            if 'R' in OPT['kvskip']: return
            a.wait(vm=("kw", rho))
            for i in range(2):
                for nt in range(2):
                    trickle.append([f"ds_read_b64_tr_b16 {vr(KWF+8*i+4*nt+2*e,2)}, v{vKT0+nt} offset:{(4096 if i else (rho%2)*2048)+e*256}" for e in range(2)])
                trickle.append([f"ds_read_b128 {vr(KGF+4*i,4)}, v{vKG} offset:{512*rho+64*i}", f"ds_read_b128 {vr(KXF+4*i,4)}, v{vKR+i} offset:6144"])
        def kvM(rho):
            if 'M' in OPT['kvskip']: return
            a.wait0(vm=False)
            lv, ld = a.newlabel("L_kv"), a.newlabel("L_kd")
            a(f"s_cmp_lg_u32 s{sISV}, 0\n s_cbranch_scc1 {lv}")
            for i in range(2):
                for nt in range(2): mf16(KAC + 4 * nt, KWF + 8 * i + 4 * nt, KXF + 4 * i)
                mf16(KAC + 8, KGF + 4 * i, KXF + 4 * i)
            a(f"s_branch {ld}")
            a.label(lv)
            for i in range(2):
                for nt in range(2): mf16(KAC + 4 * nt, KXF + 4 * i, KWF + 8 * i + 4 * nt)
            a.label(ld)
        def kvP():
            a(f"v_add_u32 v16, s{sSTG}, v{vKVD}\n s_nop 5")
            for nt in range(3): trickle.append([f"ds_write_b128 v16, {vr(KAC+4*nt,4)} offset:{nt*1024}"])
        def kvF0():
            a(f"""v_lshrrev_b32 v16, 1, v2
              v_and_b32 v17, 1, v2
              v_lshlrev_b32 v18, 4, v1
              s_cmp_eq_u32 s{sISV}, 0
              s_cselect_b32 s{sT0}, 10, 8
              s_cselect_b32 s{sT1}, 9, 10
              s_lshl_b32 s{sT2}, 256, s{sISV}
              v_lshlrev_b32 v26, s{sT0}, v16
              v_lshlrev_b32 v27, s{sT1}, v17
              v_add3_u32 v26, v26, v27, v18
              v_add_u32 v26, {KVST}, v26
              v_add_u32 v27, s{sT2}, v26
              v_add_u32 v28, {KVST+2048}, v18
              s_lshr_b32 s{sT3}, s{sR0}, 5
              s_lshl_b32 s{sT3}, s{sT3}, 12
              s_add_u32 s{sT3}, s{sT3}, {KV_OFF}
              s_bfe_u32 s{sT4}, s{sR0}, 0x10004
              s_cmp_eq_u32 s{sISV}, 0
              s_cselect_b32 s{sT0}, 10, 9
              s_cselect_b32 s{sT1}, 9, 8
              s_cselect_b32 s{sT2}, 8, 10
              s_cselect_b32 s{sT5}, 0, 2048
              s_lshl_b32 s{sT4}, s{sT4}, s{sT2}
              s_add_u32 s{sT3}, s{sT3}, s{sT4}
              s_add_u32 s{sT3}, s{sT3}, s{sT5}
              v_lshlrev_b32 v29, s{sT0}, v16
              v_lshlrev_b32 v30, s{sT1}, v17
              v_add3_u32 v29, v29, v30, v18
              v_add_u32 v29, s{sT3}, v29""")
        def kvF():
            for w in range(4):
                a(f"ds_read_b128 {vr(32+8*w,4)}, v26 offset:{w*8192}\n ds_read_b128 {vr(36+8*w,4)}, v27 offset:{w*8192}\n ds_read_b32 v{64+w}, v28 offset:{w*8192}")
            a("s_waitcnt lgkmcnt(0)")
            for r in range(0, 8, 2):
                a(f"v_pk_add_f32 {vr(32+r,2)}, {vr(32+r,2)}, {vr(40+r,2)}\n v_pk_add_f32 {vr(48+r,2)}, {vr(48+r,2)}, {vr(56+r,2)}\n v_pk_add_f32 {vr(32+r,2)}, {vr(32+r,2)}, {vr(48+r,2)}")
            a(f"s_cmp_eq_u32 s{sISV}, 0\n s_cselect_b32 s{sT0}, {f2u(32 ** -0.5 * math.log2(math.e))}, 1.0\n s_mov_b32 s{sT1}, s{sT0}")
            for r in range(0, 8, 2): a(f"v_pk_mul_f32 {vr(32+r,2)}, {vr(32+r,2)}, s[{sT0}:{sT1}]")
            for r in range(4): a(f"v_cvt_pk_bf16_f32 v{40+r}, v{32+2*r}, v{33+2*r}")
            a(f"buffer_store_dwordx4 v[40:43], v29, s[{rWS}:{rWS+3}], 0 offen sc1")
        def kvF2():
            a(f"""v_add_f32 v64, v64, v65
              v_add_f32 v66, v66, v67
              v_add_f32 v64, v64, v66
              v_mul_f32 v64, {f2u(-math.log2(math.e))}, v64
              v_exp_f32 v64, v64
              s_lshl_b32 s{sT0}, s{sR0}, 2
              v_add_f32 v64, 1.0, v64
              v_rcp_f32 v64, v64
              s_add_u32 s{sT0}, s{sT0}, {G_OFF}
              s_cmp_eq_u32 s{sISV}, 0
              s_cselect_b32 s{sT0}, s{sT0}, {OOB}
              v_lshlrev_b32 v20, 2, v0
              s_mov_b64 exec, 0xffff
              buffer_store_dword v64, v20, s[{rWS}:{rWS+3}], s{sT0} offen sc1
              s_mov_b64 exec, -1""")
        def kvA():
            a(f"""s_lshl_b32 s{sT0}, s{sRB}, 4
              s_add_u32 s{sT0}, s{sT0}, s{sCB}
              s_lshl_b32 s{sT0}, s{sT0}, 2
              s_add_u32 s{sT0}, s{sT0}, {KF_OFF}
              v_mov_b32 v16, 1
              v_mov_b32 v17, 0""")
            a.wait0(lg=False)
            a(f"""s_mov_b64 exec, 1
              buffer_store_dword v16, v17, s[{rWS}:{rWS+3}], s{sT0} offen sc1
              s_mov_b64 exec, -1""")
        def clr():
            a(f"""s_cmp_lt_u32 s2, 32
              s_cbranch_scc0 L_noclr
              s_lshl_b32 s{sT0}, s2, 12
              s_add_u32 s{sT0}, s{sT0}, {FL_OFF}
              s_lshl_b32 s{sT1}, s2, 5
              s_add_u32 s{sT1}, s{sT1}, {KF_OFF}
              v_lshrrev_b32 v16, 1, v0
              v_and_b32 v17, 1, v0
              v_lshlrev_b32 v17, 4, v17
              v_lshl_add_u32 v16, v16, 7, v17
              buffer_store_dwordx4 v[{KAC}:{KAC+3}], v16, s[{rWS}:{rWS+3}], s{sT0} offen sc1
              s_mov_b64 exec, 3
              buffer_store_dwordx4 v[{KAC}:{KAC+3}], v16, s[{rWS}:{rWS+3}], s{sT1} offen sc1
              s_mov_b64 exec, -1""")
            a.label("L_noclr")
        def clrdone():
            a(f"""s_cmp_lt_u32 s2, 32
              s_cbranch_scc0 L_noclr2
              s_waitcnt vmcnt(0)
              s_lshl_b32 s{sT0}, s2, 2
              v_mov_b32 v16, 1
              v_mov_b32 v17, 0
              s_mov_b64 exec, 1
              buffer_store_dword v16, v17, s[{rDBG}:{rDBG+3}], s{sT0} offen sc1
              s_mov_b64 exec, -1""")
            a.label("L_noclr2")
        def kvPoll0a():
            a(f"v_and_b32 v19, 31, v0\n v_lshlrev_b32 v19, 2, v19\n buffer_load_dword v18, v19, s[{rDBG}:{rDBG+3}], 0 offen sc1")
        def kvPoll0():
            a(f"s_mov_b32 s{sT1}, {SPIN_MAX}")
            a.label("L_poll0")
            a(f"""s_waitcnt vmcnt(0)
              v_cmp_ne_u32 vcc, 1, v18
              s_sub_u32 s{sT1}, s{sT1}, 1
              s_cbranch_vccz L_poll0x
              s_sleep 16
              buffer_load_dword v18, v19, s[{rDBG}:{rDBG+3}], 0 offen sc1
              s_cmp_lg_u32 s{sT1}, 0
              s_cbranch_scc1 L_poll0""")
            a.label("L_poll0x")
        def kvPoll1a():
            a(f"s_mov_b32 s{sT2}, {KF_OFF}\n buffer_load_dwordx4 v[20:23], v{vKVD}, s[{rWS}:{rWS+3}], s{sT2} offen sc1")
        def kvPoll1():
            a(f"s_mov_b32 s{sT1}, {SPIN_MAX}")
            a.label("L_poll1")
            a(f"""s_waitcnt vmcnt(0)
              v_and_b32 v20, v20, v21
              v_and_b32 v22, v22, v23
              v_and_b32 v20, v20, v22
              v_cmp_ne_u32 vcc, 1, v20
              s_sub_u32 s{sT1}, s{sT1}, 1
              s_cbranch_vccz L_poll1x
              s_sleep 16
              buffer_load_dwordx4 v[20:23], v{vKVD}, s[{rWS}:{rWS+3}], s{sT2} offen sc1
              s_cmp_lg_u32 s{sT1}, 0
              s_cbranch_scc1 L_poll1""")
            a.label("L_poll1x")
        def kvD(c):
            if c == 0:
                a(f"s_add_u32 s{rE}, s{pWS}, {KV_OFF}\n s_addc_u32 s{rE+1}, s{pWS+1}, 0\n s_mov_b32 s{rE+2}, 0x40000\n s_mov_b32 s{rE+3}, 0x20000")
                a(f"s_lshl_b32 s{sIT}, s{sW}, 12")
            a(f"s_add_u32 m0, s{sIT}, {KVR + ((c+2)%4)*16384}\n s_add_u32 s{sT0}, s{sIT}, {c*16384}")
            for i in range(4):
                a.vm(f"buffer_load_dwordx4 v{vKVD}, s[{rE}:{rE+3}], s{sT0} offen offset:{1024*i} sc1 lds", ("kv", c))
        def kvDr(c):
            a(f"s_add_u32 s{sT0}, s{sIT}, {c*16384}")
            for i in range(4):
                a.vm(f"buffer_load_dwordx4 {vr(KVREG+16*(c-4)+4*i,4)}, v{vKVD}, s[{rE}:{rE+3}], s{sT0} offen offset:{1024*i} sc1", ("kv", c))
        def ldG():
            a(f"""s_lshl_b32 s{sT1}, s{sRB}, 9
              s_lshl_b32 s{sT2}, s{sW}, 7
              s_add_u32 s{sT1}, s{sT1}, s{sT2}
              s_add_u32 s{sT1}, s{sT1}, {G_OFF}
              v_and_b32 v22, 31, v0
              v_lshlrev_b32 v22, 2, v22""")
            a.vm(f"buffer_load_dword v21, v22, s[{rWS}:{rWS+3}], s{sT1} offen sc1")
        def low(f):
            return (lambda: (a("s_setprio 0"), f(), a("s_setprio 1"))) if OPT["lowv"] else f
        post = {k: [] for k in range(33)}; pre = {k: [] for k in range(33)}; mid = {k: [] for k in range(33)}
        if not OPT["nokv"]:
            for rho in range(4):
                pre[3*rho+5].append(lambda rho=rho: kvR(rho)); mid[3*rho+6].append(lambda rho=rho: kvM(rho))
                post[3*rho+3].append(lambda rho=rho: kvX(rho))
                post[3*rho+1].append(lambda rho=rho: kvW(rho, 0)); post[3*rho+2].append(lambda rho=rho: kvW(rho, 1))
            pre[16].append(kvP); post[16].append(lambda: a.wait0(vm=False))
            if path == 2:
                post[0] += [clr, low(kvF0)]; pre[7].append(clrdone); post[3].append(lambda: a.wait(vm="gt"))
                post[17] += [low(kvF)]; post[18] += [low(kvF2)]; post[19] += [kvPoll0a]; pre[21] += [kvPoll0, kvA]; pre[26].append(kvPoll1a); pre[27].append(kvPoll1)
            for k_ in range(4): mid[22 + k_].append(low(lambda k_=k_: attention_setup(k_)))
            post[28].append(ldG)
            for c in range(4): post[28 + c].append(lambda c=c: kvD(c))
            for c in range(OPT["kvreg"]): post[30 + c].append(lambda c=c: kvDr(4 + c))
        stamp("a_set")
        for s_ in range(32):
            a.wait(vm=[("W", s_), ("X", s_ // 2)])
            if s_ == 0: stamp("a_w0")
            if s_ == 30:
                if path < 2: a("s_branch L_a1done"); break
                a.label("L_a1done")
                a.vmq[:] = [("W", 31)] + [("kv", 1)] * 4
            a("s_barrier")
            if s_ == 0: stamp("a_b0")
            if s_ in (8, 16, 24): stamp(f"a_{s_}")
            if OPT["steps"] and path == 2 and s_ < 30:
                a("s_memtime s[100:101]"); a.wait0(vm=False); a(f"v_writelane_b32 v200, s100, {s_}")
                if s_ == 29:
                    a(f"s_lshl_b32 s100, s2, 8\n s_add_u32 s100, s100, {TS_OFF+0x10000}\n v_lshlrev_b32 v201, 2, v0\n buffer_store_dword v200, v201, s[{rWS}:{rWS+3}], s100 offen")
            for f in pre[s_]: f()
            if OPT["xlate"] and s_ == 0: ldX(2); ldX(3)
            midf = lambda: [f() for f in mid[s_]]
            if s_ + 2 < 32 and not OPT["nodma"]: ldW(s_ + 2, midf)
            if path != 0: midf()
            if OPT["xlate"] and s_ < 2:
                if s_ == 1: ldX(4); ldX(5)
            elif s_ + 4 < 32 and not OPT["nodma"]: ldX(s_ + 4)
            trk(True)
            for f in post[s_]: f()
            pfs(s_)
    a.wait(vm=[("kv", 1)])
    a.vmq[:] = [("kv", 2)] * 4 + [None if OPT["kvreg"] else ("kv", 3)] * 4
    a("s_barrier")
    attention_setup(4)
    a("s_barrier")

QF, OA, LA, SB, PB, KF, VF, ONES = 32, 48, 80, 88, 120, 136, 152, 168
vKc, vKn, vSy, vOne, vCnt, vG, vIdx, vQa, vSt = 248, 249, 251, 252, 20, 21, 172, 173, 174
vD, vDW = 240, 244
def wtile_offsets(dst):
    a(f"""v_lshrrev_b32 v22, 3, v0
      v_lshlrev_b32 v22, 11, v22
      v_and_b32 v23, 1, v2
      v_lshlrev_b32 v23, 2, v23
      v_and_b32 v24, 7, v0
      v_xor_b32 v23, v23, v24
      v_lshl_add_u32 v22, v23, 4, v22
      s_lshl_b32 s{sT0}, s{sCB2}, 7
      v_add_u32 v22, s{sT0}, v22""")
    for i in range(4): a(f"v_xor_b32 v23, {32*(i%2)}, v22\n v_add_u32 v{dst+i}, {i*16384-i*1024}, v23")
def lsum(t, P):
    a(f"v_smfmac_f32_16x16x64_bf16 {vr(LA+4*t,4)}, {vr(ONES,4)}, {vr(P,8)}, v{vIdx}")
sKo, sCn, sDo, sMb, sDs, sO0, sO1 = sA, sB, sC, sD, sE, sF, sG
def attention_setup(part):
    if part == 0: wtile_offsets(vDW)
    if part == 1:
        a(f"""s_lshl_b32 s{sT0}, s{sW}, 12
          s_add_u32 s{sT1}, s{sT0}, {QX}
          v_lshl_add_u32 v{vQa}, v0, 4, s{sT1}
          v_add_u32 v{vKc}, {KVR}, v{vKVD}
          v_mov_b32 v{vKn}, {SYNC}
          v_and_b32 v22, 6, v1
          v_mov_b32 v23, 0x3f803f80
          v_cmp_eq_u32 vcc, 0, v22
          v_lshl_add_u32 v{vSy}, v0, 2, v{vKn}
          v_sub_u32 v{vOne}, 1, v0
          v_max_i32 v{vOne}, 0, v{vOne}
          v_cndmask_b32 v{ONES}, 0, v23, vcc
          v_cndmask_b32 v{ONES+1}, 0, v23, vcc
          v_cmp_eq_u32 vcc, 4, v22
          v_and_b32 v22, 1, v1
          v_mul_u32_u24 v22, 0xaaaa, v22
          v_cndmask_b32 v{ONES+2}, 0, v23, vcc
          v_cndmask_b32 v{ONES+3}, 0, v23, vcc
          v_or_b32 v{vIdx}, 0x4444, v22""")
    if part == 2:
        a(f"""v_and_b32 v22, 1, v2
          v_lshlrev_b32 v22, 10, v22
          v_lshrrev_b32 v23, 1, v2
          v_lshl_add_u32 v22, v23, 8, v22
          v_lshl_add_u32 v{vSt}, v1, 4, v22""")
        for r in range(4): a(f"v_mov_b32 v{vD+r}, v{vKVD}")
        for r in list(range(PB + 8, PB + 16, 2)) + list(range(VF + 12, VF + 16, 2)) + [SB + 30]: a(f"v_mov_b64 {vr(r,2)}, 0")
    if part == 3:
        for r in range(OA, OA + 40, 2): a(f"v_mov_b64 {vr(r,2)}, 0")
    if part == 4:
        a(f"""s_lshl_b32 s{sT0}, s{sW}, 12
          s_mov_b32 s{sCn}, 4
          s_add_u32 s{sDo}, s{sT0}, {3*16384}
          s_mov_b32 s{sDs}, 16384
          s_add_u32 s{sMb}, s{sT0}, {KVR}
          s_mul_i32 s{sO0}, s{sRB}, {RBSZ}
          s_lshl_b32 s{sT1}, s{sCB}, 14
          s_add_u32 s{sO0}, s{sO0}, s{sT1}
          s_lshl_b32 s{sT1}, s{sW}, 11
          s_add_u32 s{sO0}, s{sO0}, s{sT1}
          s_add_u32 s{sO0}, s{sO0}, {112*8192}
          s_add_u32 s{sO1}, s{sO0}, 8192
          s_mov_b32 s{sIT}, 0""")
def attention():
    qf = lambda t, s_: QF + 8 * t + 4 * s_
    kvo = lambda T: ((T // 4 + 2) % 4) * 16384 + (T % 4) * 4096
    def rdK(T):
        for s_ in range(2): a.lg(f"ds_read_b128 {vr(KF+8*(T%2)+4*s_,4)}, v{vKc} offset:{kvo(T)+1024*s_}", ("K", T))
    def rdV(T):
        for u in range(2): a.lg(f"ds_read_b128 {vr(VF+8*(T%2)+4*u,4)}, v{vKc} offset:{kvo(T)+2048+1024*u}", ("V", T))
    for i in range(2): a.lg(f"ds_read_b128 {vr(QF+4*i,4)}, v{vQa} offset:{1024*i}")
    rdK(0)
    for i in range(2, 4): a.lg(f"ds_read_b128 {vr(QF+4*i,4)}, v{vQa} offset:{1024*i}")
    rdV(0); rdK(1)
    a.wait(lg=("K", 0))
    mf32(SB, KF, qf(0, 0), "0"); mf32(SB, KF + 4, qf(0, 1))
    a.wait(lg=("V", 0))
    a("s_nop 7\n s_nop 2")
    a.raw(".p2align 3")
    a.label("L_att")
    def slot(n, hooks):
        T, t = divmod(n, 2); n1 = n + 1; T1, t1 = divmod(n1, 2); Tp, tp = divmod(n - 1, 2)
        S = SB + 16 * (n % 2); S1 = SB + 16 * (n1 % 2)
        P = PB + 8 * (n % 2); Pp = PB + 8 * ((n - 1) % 2)
        e = lambda i: a(f"v_exp_f32 v{S+i}, v{S+i}")
        c = lambda i: a(f"v_cvt_pk_bf16_f32 v{P+i}, v{S+2*i}, v{S+2*i+1}")
        h = lambda k: [f() for f in hooks.get(k, [])]
        ne = nc = 0
        for ch in OPT["pat"]:
            if ch == "e": e(ne); ne += 1
            elif ch == "c": assert ne >= 2 * nc + 2; c(nc); nc += 1
            elif ch == "p": a(f"v_cvt_pk_bf16_f32 v{Pp+7}, v{S1+14}, v{S1+15}")
            elif ch == "w": a.wait(lg=[("K", T + 1) if t == 0 else ("V", T + 1), "cnt"], vm=hooks.get("vm", ()))
            elif ch == "A": mf32(S1, KF + 8 * (T1 % 2), qf(t1, 0), "0")
            elif ch == "B": mf32(S1, KF + 8 * (T1 % 2) + 4, qf(t1, 1))
            elif ch == "C": mf32(OA + 16 * tp, VF + 8 * (Tp % 2) + 4, Pp + 4)
            elif ch == "D": assert nc >= 4; mf32(OA + 16 * t, VF + 8 * (T % 2), P)
            elif ch == "S": lsum(tp, Pp)
            else: h(int(ch))
        assert ne == 16 and nc == 8 - ("p" in OPT["pat"])
        pt = OPT["pat"]; assert pt.index("4") > max(pt.index(x) for x in "BCw")
    def body(it):
        for cc in range(4):
            c_ = 4 * it + cc
            for k in range(8):
                n = 8 * c_ + k; T, t = divmod(n, 2)
                hk = {4: [lambda: rdV(T + 1) if t == 0 else rdK(T + 2)]}
                KA = OPT["arrk"]
                if k == KA:
                    hk["vm"] = ("kv", c_ + 1); hk[4].append(lambda: a.lg(f"ds_add_u32 v{vSy}, v{vOne}"))
                if k == 2:
                    hk[0] = [lambda: a(f"s_add_u32 m0, s{sMb}, {((c_+1)%4)*16384}")]
                    if cc == 1: hk[1] = [lambda: a(f"s_cmp_eq_u32 s{sIT}, 3")]; hk[2] = [lambda: (a("s_cbranch_scc1 L_attwo"), a.label("L_attwo_r"))]
                if k == 3: hk[4].append(lambda: a.lg(f"ds_read_b32 v{vCnt}, v{vKn}", "cnt"))
                if k == 4: hk[5] = [lambda: a(f"v_cmp_gt_u32 vcc, s{sCn}, v{vCnt}")]
                pre_ = cc <= OPT["kvreg"]
                if k == 5:
                    hk[0] = [lambda: (a(f"s_cbranch_vccnz L_attspin{cc}"), a.label(f"L_attgo{cc}"))]
                    hk[1] = [lambda: a(f"s_add_u32 s{sCn}, s{sCn}, 4")]
                    if pre_: hk[2] = [lambda: a(f"s_cmp_eq_u32 s{sIT}, 0")]
                if k in (5, 6):
                    def dma(i):
                        if OPT["anodma"]: return
                        if pre_: a(f"s_cbranch_scc1 L_{'no' if cc == 0 else 'reg'}dma{cc}_{i}")
                        for k2 in (i, i + 1):
                            t_ = f"buffer_load_dwordx4 v{vD+k2}, s[{rE}:{rE+3}], s{sDo} offen offset:{1024*k2} sc1 lds"
                            a.vm(t_, ("kv", c_ + 3)) if c_ > OPT["kvreg"] else a(t_)
                        if pre_: a.label(f"L_nodma{cc}_{i}")
                    hk[4].append(lambda: dma(2 * (k - 5)))
                if k == 7:
                    hk[0] = [lambda: a(f"s_add_u32 s{sDo}, s{sDo}, s{sDs}")]
                    if cc == 3: hk[1] = [lambda: a(f"s_add_u32 s{sIT}, s{sIT}, 1")]; hk[2] = [lambda: a(f"s_cmp_lt_u32 s{sIT}, 4")]
                slot(n, hk)
        a("s_cbranch_scc1 L_att")
    a.loop(body, "att", 3)
    a("s_nop 0")
    if "p" in OPT["pat"]: a(f"v_cvt_pk_bf16_f32 v{PB+15}, v{SB+30}, v{SB+31}\n s_nop 1")
    lsum(1, PB + 8); mf32(OA + 16, VF + 12, PB + 12)
    stamp("a_att")
    a(f"s_mov_b32 s{sIT}, 0")
    a.label("L_attfin")
    def fin(t, s_):
        T_ = SB + 8 * t + 4 * s_
        a(f"v_permlane32_swap_b32 v{T_}, v{T_+2}\n v_permlane32_swap_b32 v{T_+1}, v{T_+3}")
        a(f"buffer_store_dwordx4 {vr(T_,4)}, v{vSt}, s[{rWS}:{rWS+3}], s{sO0+t} offen offset:{512*s_} sc1")
    prev = None
    for t in range(2):
        a(f"v_add_f32 v{26+t}, v{LA+4*t}, v{LA+4*t+1}\n v_rcp_f32 v{22+2*t}, v{26+t}\n s_nop 0\n v_mul_f32 v{22+2*t}, v{22+2*t}, v{vG}")
        for s_ in range(2):
            T_ = SB + 8 * t + 4 * s_
            for r in range(4):
                d = OA + 16 * t + 8 * s_ + 2 * r
                if OPT["nopk"]: a(f"v_mul_f32 v{d}, v{d}, v{22+2*t}\n v_mul_f32 v{d+1}, v{d+1}, v{22+2*t}")
                else: a(f"v_pk_mul_f32 {vr(d,2)}, {vr(d,2)}, {vr(22+2*t,2)} op_sel_hi:[1,0]")
                a(f"v_cvt_pk_bf16_f32 v{T_+r}, v{d}, v{d+1}")
                if r == 0 and prev: fin(*prev)
            prev = (t, s_)
    a("s_nop 1"); fin(*prev)
    a(f"s_cmp_lg_u32 s{sIT}, 0\n s_cbranch_scc1 L_attok")
    a(f"s_mov_b32 s{sT0}, {f2u(2.0**-40)}\n s_mov_b32 s{sT1}, {f2u(2.0**100)}\n v_max_f32 v28, v26, v27\n v_mov_b32 v29, 0")
    for r in list(range(OA, OA + 32, 2)) + [26]: a(f"v_pk_fma_f32 v[28:29], {vr(r,2)}, 0, v[28:29]")
    a(f"""v_add_f32 v28, v28, v29
      v_min_f32 v29, v26, v27
      v_cmp_nle_f32 vcc, v28, s{sT1}
      v_cmp_nge_f32 s[{sT2}:{sT3}], v29, s{sT0}
      s_or_b64 vcc, vcc, s[{sT2}:{sT3}]""")
    if OPT["forceslow"]: a("s_branch L_slow")
    a("s_cbranch_vccnz L_slow")
    a.label("L_attok")
    setflag(1)
    stamp("a_end")
    if OPT["padto"]:
        a("s_barrier")
        a.label("L_pad2")
        a(f"s_memrealtime s[98:99]\n s_waitcnt lgkmcnt(0)\n s_sleep 8\n s_sub_u32 s98, s98, s96\n s_cmp_lt_u32 s98, {OPT['padto']}\n s_cbranch_scc1 L_pad2")
    dump_ts_and_end()
    a.label("L_attwo")
    srd(rE, pWO, 1024 * 2048)
    a(f"s_lshl_b32 s{sDo}, s{sW}, 19\n s_add_u32 s{sDo}, s{sDo}, {5*65536}\n s_mov_b32 s{sDs}, 65536")
    a(f"v_mov_b64 {vr(vD,2)}, {vr(vDW,2)}\n v_mov_b64 {vr(vD+2,2)}, {vr(vDW+2,2)}\n s_branch L_attwo_r")
    for cc in range(1, OPT["kvreg"] + 1):
        for i in (() if OPT["anodma"] else (0, 2)):
            a.label(f"L_regdma{cc}_{i}")
            if i == 0: a(f"s_waitcnt vmcnt(0)\n v_add_u32 v22, s{sMb}, v{vKVD}")
            for k2 in (i, i + 1): a(f"ds_write_b128 v22, {vr(KVREG+16*(cc-1)+4*k2,4)} offset:{((cc+1)%4)*16384+1024*k2}")
            a(f"s_branch L_nodma{cc}_{i}")
    for cc in range(4):
        a.label(f"L_attspin{cc}")
        a(f"s_mov_b32 s{sT2}, {SPIN_MAX}")
        a.label(f"L_attspin{cc}b")
        a(f"""ds_read_b32 v{vCnt}, v{vKn}
          s_waitcnt lgkmcnt(0)
          v_cmp_gt_u32 vcc, s{sCn}, v{vCnt}
          s_sub_u32 s{sT2}, s{sT2}, 1
          s_cbranch_vccz L_attgo{cc}
          s_cmp_lg_u32 s{sT2}, 0
          s_cbranch_scc1 L_attspin{cc}b
          s_branch L_attgo{cc}""")
    a.label("L_slow")
    NM = 176
    a(f"s_add_u32 s{rE}, s{pWS}, {KV_OFF}\n s_addc_u32 s{rE+1}, s{pWS+1}, 0\n s_mov_b32 s{rE+2}, 0x40000\n s_mov_b32 s{rE+3}, 0x20000")
    a(f"s_waitcnt vmcnt(0) lgkmcnt(0)\n v_mov_b32 v22, 0xff800000\n v_mov_b32 v23, 0xff800000\n s_mov_b32 s{sT0}, 0\n s_mov_b32 s{sIT}, 1")
    a.label("L_slow1")
    a(f"buffer_load_dwordx4 {vr(KF,4)}, v{vKVD}, s[{rE}:{rE+3}], s{sT0} offen sc1\n buffer_load_dwordx4 {vr(KF+4,4)}, v{vKVD}, s[{rE}:{rE+3}], s{sT0} offen offset:1024 sc1\n s_waitcnt vmcnt(0)")
    for t in range(2):
        mf32(SB + 16 * t, KF, qf(t, 0), "0"); mf32(SB + 16 * t, KF + 4, qf(t, 1))
    a("s_nop 7\n s_nop 3")
    for t in range(2):
        for r in range(0, 16, 2): a(f"v_max3_f32 v{22+t}, v{SB+16*t+r}, v{SB+16*t+r+1}, v{22+t}")
    a(f"s_add_u32 s{sT0}, s{sT0}, 4096\n s_cmp_lt_u32 s{sT0}, 0x40000\n s_cbranch_scc1 L_slow1")
    a("v_mov_b32 v24, v22\n v_mov_b32 v25, v23\n s_nop 1\n v_permlane32_swap_b32 v22, v24\n v_permlane32_swap_b32 v23, v25\n v_max_f32 v22, v22, v24\n v_max_f32 v23, v23, v25")
    for t in range(2):
        for r in range(16): a(f"v_sub_f32 v{NM+16*t+r}, 0, v{22+t}")
    for r in range(OA, OA + 40, 2): a(f"v_mov_b64 {vr(r,2)}, 0")
    a(f"s_mov_b32 s{sT0}, 0")
    a.label("L_slow2")
    for i in range(4):
        a(f"buffer_load_dwordx4 {vr(KF+4*i,4)}, v{vKVD}, s[{rE}:{rE+3}], s{sT0} offen offset:{1024*i} sc1")
    a("s_waitcnt vmcnt(0)")
    for t in range(2):
        mf32(SB + 16 * t, KF, qf(t, 0), vr(NM + 16 * t, 16)); mf32(SB + 16 * t, KF + 4, qf(t, 1))
    a("s_nop 7\n s_nop 3")
    for r in range(32): a(f"v_exp_f32 v{SB+r}, v{SB+r}")
    a("s_nop 0")
    for r in range(16): a(f"v_cvt_pk_bf16_f32 v{PB+r}, v{SB+2*r}, v{SB+2*r+1}")
    a("s_nop 1")
    for t in range(2):
        for u in range(2): mf32(OA + 16 * t, KF + 8 + 4 * u, PB + 8 * t + 4 * u)
        lsum(t, PB + 8 * t)
    a(f"s_add_u32 s{sT0}, s{sT0}, 4096\n s_cmp_lt_u32 s{sT0}, 0x40000\n s_cbranch_scc1 L_slow2")
    a("s_nop 7\n s_nop 3\n s_branch L_attfin")

def setflag(which):
    a(f"""s_lshl_b32 s{sT0}, s{sRB}, 13
      s_lshr_b32 s{sT1}, s{sCB}, 2
      s_lshl_b32 s{sT1}, s{sT1}, 7
      s_add_u32 s{sT0}, s{sT0}, s{sT1}
      s_and_b32 s{sT1}, s{sCB}, 3
      s_lshl_b32 s{sT1}, s{sT1}, 2
      s_add_u32 s{sT0}, s{sT0}, s{sT1}
      s_add_u32 s{sT0}, s{sT0}, {FL_OFF+16*which}
      v_mov_b32 v17, {SYNC+4+4*which}
      v_mov_b32 v15, 1""")
    if which == 0:
        if OPT["noack"] < 2: a.wait(vm="hst")
    elif OPT["noack"] & 1: a("s_waitcnt vmcnt(4)")
    else: a.wait0(lg=False)
    l = a.newlabel("L_nofl")
    a(f"""s_mov_b64 exec, 1
      ds_add_rtn_u32 v16, v17, v15
      s_mov_b64 exec, 0xffff
      v_lshlrev_b32 v17, 9, v0
      s_waitcnt lgkmcnt(0)
      v_readfirstlane_b32 s{sT1}, v16
      s_cmp_eq_u32 s{sT1}, 3
      s_cbranch_scc0 {l}
      buffer_store_dword v15, v17, s[{rWS}:{rWS+3}], s{sT0} offen {OPT['sfl'].replace('_', ' ')}""")
    a.label(l)
    a("s_mov_b64 exec, -1")
    a.lgq.clear()
def mbox(which):
    a(f"""s_lshl_b32 s{sT0}, s{sRB2}, 4
      s_add_u32 s{sT0}, s{sT0}, s{sCB2}
      s_lshl_b32 s{sT0}, s{sT0}, 2
      s_add_u32 s{sT0}, s{sT0}, s{sW}
      s_lshl_b32 s{sT0}, s{sT0}, 7
      s_add_u32 s{sT0}, s{sT0}, {FL_OFF+16*which}
      v_and_b32 v15, 3, v0
      v_lshlrev_b32 v15, 2, v15""")
def waitflag(which, name):
    mbox(which)
    a(f"s_mov_b32 s{sT1}, {SPIN_MAX}\n s_mov_b64 exec, 15")
    a.label(name)
    a(f"""buffer_load_dword v17, v15, s[{rWS}:{rWS+3}], s{sT0} offen {OPT['pfl'].replace('_', ' ')}
      s_waitcnt vmcnt(0)
      v_cmp_ne_u32 vcc, 1, v17
      s_sub_u32 s{sT1}, s{sT1}, 1
      s_cbranch_vccz {name}_x
      s_sleep {OPT['slp']}
      s_cmp_lg_u32 s{sT1}, 0
      s_cbranch_scc1 {name}""")
    a.label(name + "_x")
    a("s_mov_b64 exec, -1")
def waitlds(off, val, name):
    a(f"s_mov_b32 s{sT1}, {SPIN_MAX}\n v_mov_b32 v15, {SYNC+off}")
    a.label(name)
    a(f"""ds_read_b32 v17, v15
      s_waitcnt lgkmcnt(0)
      v_readfirstlane_b32 s{sT0}, v17
      s_cmp_ge_u32 s{sT0}, {val}
      s_cbranch_scc1 {name}_x
      s_sleep 2
      s_sub_u32 s{sT1}, s{sT1}, 1
      s_cmp_lg_u32 s{sT1}, 0
      s_cbranch_scc1 {name}""")
    a.label(name + "_x")

ACC2, HR, WF = 128, 64, 32
acc2 = lambda rt, nt: ACC2 + (rt * 4 + nt) * 4
vWD, vWR, vH, vGM = 3, 7, 11, 16
sWo, sHo, sMw, sRdy = sC, sD, sE, sF
def g2_vsetup():
    wtile_offsets(vWD)
    a(f"""s_lshl_b32 s{sT0}, s{sW}, 14
      v_lshrrev_b32 v14, 2, v1
      v_lshl_add_u32 v14, v2, 3, v14
      v_and_b32 v15, 3, v1
      v_lshlrev_b32 v15, 3, v15
      v_lshl_add_u32 v14, v14, 7, v15
      v_and_b32 v15, 1, v2
      v_lshrrev_b32 v30, 3, v1
      v_lshl_add_u32 v15, v30, 1, v15
      v_lshl_add_u32 v14, v15, 5, v14
      v_add_u32 v14, s{sT0}, v14""")
    for nt in range(4): a(f"v_xor_b32 v{vWR+nt}, {32*nt}, v14")
    for p in range(4):
        a(f"s_add_u32 s{sT0}, s{sW}, {p+1}\n s_and_b32 s{sT0}, s{sT0}, 3\n s_lshl_b32 s{sT0}, s{sT0}, 11\n v_lshl_add_u32 v{vH+p}, v0, 4, s{sT0}")
def g2_setup():
    srd(rB, pW2, 3584 * 2048)
    a(f"s_lshl_b32 s{sMw}, s{sW}, 14\n s_mul_i32 s{sWo}, s{sW}, {896*2048}")
def dmaW(i, k):
    if OPT["nowo"] and i >= 28: return
    if OPT["g2nold"] and i > 2: return
    if k == 0: a(f"s_add_u32 m0, s{sMw}, {(i%4)*4096}\n s_nop 0")
    a.vm(f"buffer_load_dwordx4 v{vWD+k}, s[{rB}:{rB+3}], s{sWo} offen offset:{1024*k} {OPT['wfl'].replace('_', ' ')} lds", ("W2", i))
    if k == 3: a(f"s_add_u32 s{sWo}, s{sWo}, 65536")
def g_phase2():
    def ldH(i, rt):
        if OPT["g2nold"] and i > 1: return
        a.vm(f"buffer_load_dwordx4 {vr(HR+32*(i%2)+4*rt,4)}, v{vH+rt//2}, s[{rWS}:{rWS+3}], s{sHo} offen offset:{1024*(rt%2)} {OPT['hfl'].replace('_', ' ')}", ("H", i, rt))
        if rt == 7: a(f"s_add_u32 s{sHo}, s{sHo}, 8192")
    def rdW2(i, nt, e, off=None):
        off = (i % 4) * 4096 if off is None else off
        a.lg(f"ds_read_b64_tr_b16 {vr(WF+16*(i%2)+4*nt+2*e,2)}, v{vWR+nt} offset:{off+512*e}", ("W2", i))
    def ooff():
        a(f"s_mul_i32 s{sHo}, s{sRB2}, {RBSZ}\n s_lshl_b32 s{sT1}, s{sW}, 16\n s_add_u32 s{sHo}, s{sHo}, s{sT1}\n s_add_u32 s{sHo}, s{sHo}, {112*8192}")
    setflag(0)
    stamp("g_flag")
    if OPT["nog2"]: dump_ts_and_end()
    a(f"""s_mul_i32 s{sHo}, s{sRB2}, {RBSZ}
      s_mul_i32 s{sT1}, s{sW}, {28*8192}
      s_add_u32 s{sHo}, s{sHo}, s{sT1}
      s_lshl_b32 s{sT2}, s{sRB2}, 9
      s_add_u32 s{sT2}, s{sT2}, {G_OFF}
      v_lshlrev_b32 v15, 2, v1""")
    for p in range(4):
        a(f"""s_add_u32 s{sT0}, s{sW}, {p+1}
          s_and_b32 s{sT0}, s{sT0}, 3
          s_lshl_b32 s{sT0}, s{sT0}, 7
          s_add_u32 s{sT0}, s{sT0}, s{sT2}""")
        for h in range(2): a(f"buffer_load_dword v{vGM+4*p+2*h}, v15, s[{rWS}:{rWS+3}], s{sT0} offen offset:{64*h} sc1")
    a(f"""s_lshl_b32 s{sT0}, s2, 1
      s_add_u32 s{sT0}, s{sT0}, s{sW}
      s_add_u32 s{sT1}, s2, 512
      s_cmp_eq_u32 s{sW}, 2
      s_cselect_b32 s{sT0}, s{sT1}, s{sT0}
      s_lshr_b32 s{sG}, s{sT0}, 7
      s_bfe_u32 s{sT1}, s{sT0}, 0x20005
      s_mul_i32 s{sT1}, s{sT1}, {896*2048}
      s_and_b32 s{sT0}, s{sT0}, 31
      s_lshl_b32 s{sT0}, s{sT0}, 13
      s_add_u32 s{sT0}, s{sT0}, s{sT1}
      s_add_u32 s{sT1}, s{sG}, 2
      s_lshl_b32 s{sT1}, s{sT1}, 18
      s_add_u32 s{sT0}, s{sT0}, s{sT1}
      s_cmp_eq_u32 s{sG}, 5
      s_cselect_b32 s{sG}, -1, s{sG}
      s_lshl_b32 s{sT1}, s2, 13
      s_and_b32 s{sT2}, s{sI}, 1
      s_cmp_eq_u32 s{sW}, 3
      s_cselect_b32 s{sA}, s{sT1}, s{sT0}
      s_cselect_b32 s{sG}, s{sT2}, s{sG}
      s_cselect_b32 s{rPF}, s{pWO}, s{pW2}
      s_cselect_b32 s{rPF+1}, s{pWO+1}, s{pW2+1}
      s_mov_b32 s{sT0}, {3584*2048}
      s_cselect_b32 s{rPF+2}, {1024*2048}, s{sT0}
      s_mov_b32 s{rPF+3}, 0x20000""")
    stamp("g_pw")
    waitflag(0, "L_wh")
    stamp("g_wf")
    a.vmq.clear(); a.lgq.clear()
    for nt in range(4): rdW2(0, nt, 0); rdW2(0, nt, 1)
    for i in range(2):
        for rt in range(8): ldH(i, rt)
    for rt in range(8): a(f"v_sub_f32 v{vGM+2*rt}, 1.0, v{vGM+2*rt}")
    stamp("g_l2")
    a(f"s_setprio {OPT['g2prio']}\n s_mov_b32 s{sIT}, 0")
    def step(i, grp):
        C = "0" if i == 0 else None
        if grp:
            for p in range(4):
                a.wait(vm=("H", i, 2 * p + 1), lg=("W2", i) if p == 0 else ())
                for rt in (2 * p, 2 * p + 1):
                    for nt in range(4): mf16(acc2(rt, nt), WF + 16 * (i % 2) + 4 * nt, HR + 32 * (i % 2) + 4 * rt, C)
                if p == 0: a.wait(vm=("W2", i + 1))
                for k in range(3 * p, min(3 * p + 3, 8)): rdW2(i + 1, k // 2, k % 2)
                dmaW(i + 3, p); ldH(i + 2, 2 * p); ldH(i + 2, 2 * p + 1)
            return
        for rt in range(8):
            a.wait(vm=("H", i, rt), lg=("W2", i) if rt == 0 else ())
            fill = [[], [], [], []]
            if rt % 2 == 0: fill[1].append(lambda: dmaW(i + 3, rt // 2))
            if rt == 2: fill[2].append(lambda: a.wait(vm=("W2", i + 1)))
            if 3 <= rt < 7:
                fill[0].append(lambda: rdW2(i + 1, rt - 3, 0)); fill[2].append(lambda: rdW2(i + 1, rt - 3, 1))
            fill[3].append(lambda: ldH(i + 2, rt))
            for nt in range(4):
                mf16(acc2(rt, nt), WF + 16 * (i % 2) + 4 * nt, HR + 32 * (i % 2) + 4 * rt, C)
                for f in fill[nt]: f()
    step(0, OPT["grp"])
    stamp("g_s0")
    a.raw(".p2align 3")
    a.label("L_g2loop")
    def body(it):
        if OPT["pf2"]: a(f"s_cmp_eq_u32 s{sIT}, s{sG}\n s_cbranch_scc1 L_hookF"); a.label("L_hookF_r")
        a(f"s_cmp_eq_u32 s{sIT}, 4\n s_cbranch_scc1 L_hookW"); a.label("L_hookW_r")
        for ts in range(4): step(4 * it + ts + 1, OPT["grp"])
        a(f"s_add_u32 s{sIT}, s{sIT}, 1")
        if OPT["pause"] < 7: a(f"s_cmp_eq_u32 s{sIT}, {OPT['pause']}\n s_cbranch_scc1 L_hookP")
        a(f"s_cmp_lt_u32 s{sIT}, 6\n s_cbranch_scc1 L_g2loop")
    a.loop(body, "g2")
    sh = lambda q: [(x[0], x[1] + 12) + x[2:] for x in q]
    a.vmq[:] = sh(a.vmq); a.lgq[:] = sh(a.lgq)
    stamp("g_25")
    a(f"s_mov_b32 s{rB}, s{pWO}\n s_mov_b32 s{rB+1}, s{pWO+1}\n s_mov_b32 s{rB+2}, {1024*2048}\n s_lshl_b32 s{sWo}, s{sW}, 19")
    mbox(1)
    a.vm(f"buffer_load_dword v17, v15, s[{rWS}:{rWS+3}], s{sT0} offen sc1", ("poll", 0))
    step(25, OPT["tgrp"])
    ooff()
    a.wait(vm=("poll", 0))
    a(f"""v_cmp_ne_u32 vcc, 1, v17
      s_cmp_eq_u64 vcc, 0
      s_cselect_b32 s{sRdy}, 1, 0
      s_cselect_b32 s{sHo}, s{sHo}, {OOB}""")
    step(26, OPT["tgrp"]); step(27, OPT["tgrp"])
    sHp = sB
    def ldO(i, rt):
        if OPT["noo"] and i > 29: return
        a.vm(f"buffer_load_dwordx4 {vr(HR+32*(i%2)+4*rt,4)}, v{vH+rt//2}, s[{rWS}:{rWS+3}], s{sHp if i % 2 else sHo} offen offset:{1024*(rt%2)} sc1", ("H", i, rt))
    WOFF = {32: 0, 33: 49152, 34: 49152, 35: 0}
    def rdWo(i, nt, e):
        a.lg(f"ds_read_b64_tr_b16 {vr(WF+16*(i%2)+4*nt+2*e,2)}, v{vWR+nt} offset:{WOFF.get(i, (i%4)*4096)+512*e}", ("W2", i, nt))
    for k in range(4): dmaW(31, k)
    a.wait(vm=("W2", 29))
    a.lgq[:] = [("W2", 28, nt) for nt in range(4) for e in range(2)]
    for nt in range(4): rdWo(29, nt, 0); rdWo(29, nt, 1)
    srd(rA, pB2, 2048); srd(rC, pOUT, 2048 * 2048)
    a(f"s_cmp_lg_u32 s{sRdy}, 0\n s_cbranch_scc1 L_ordy")
    waitflag(1, "L_wo")
    ooff()
    a(f"s_add_u32 s{sHp}, s{sHo}, 8192")
    a.vmq.clear()
    for p in range(4):
        for i in (28, 29): ldO(i, 2 * p); ldO(i, 2 * p + 1)
    a(f"s_add_u32 s{sHo}, s{sHo}, 16384")
    a.label("L_ordy")
    stamp("g_hook")
    a(f"s_add_u32 s{sHp}, s{sHo}, 8192")
    sc = lambda p: [f"v_pk_mul_f32 {vr(ACC2+32*p+16*h+4*nt+r,2)}, {vr(ACC2+32*p+16*h+4*nt+r,2)}, {vr(vGM+4*p+2*h,2)} op_sel_hi:[1,0]"
                    for nt in range(4) for h in range(2) for r in (0, 2)]
    for x in sc(0): a(x)
    vS0, vS1, vB2 = 3, 4, 18
    def wr(p, k):
        if OPT["nowr"]: return
        if p < 2: a.lg(f"ds_write_b128 v{vS0}, {vr(ACC2+32*p+4*k,4)} offset:{8192*p+1024*k}")
        else: a.lg(f"ds_write_b128 v{vS1}, {vr(ACC2+32*p+4*k,4)} offset:{16384*(k//4)+1024*(k%4)}")
    OWN = ACC2 + 96
    vRd = [5, 6, 16]; vTw = [11, 12, 13, 14]; vTr, vOo = 26, 27
    sc2 = lambda p: ["\n".join(f"v_mul_f32 v{ACC2+32*p+16*h+4*nt+r+u}, v{vGM+4*p+2*h}, v{ACC2+32*p+16*h+4*nt+r+u}" for u in range(2))
                     for nt in range(4) for h in range(2) for r in (0, 2)]
    extra = {(0, p): sc2(p + 1) for p in range(3)}
    extra[1, 0] = f"""s_lshl_b32 s{sT0}, s{sCB2}, 7
      v_lshlrev_b32 v15, 3, v2
      v_lshl_add_u32 v{vS0}, v0, 4, s{sMw}
      s_lshl_b32 s{sT2}, s{sW}, 12
      s_add_u32 s{sT2}, s{sT2}, {QX}
      v_lshl_add_u32 v{vS1}, v0, 4, s{sT2}
      s_sub_u32 s{sT2}, s{sT2}, s{sMw}""".split("\n") + [None, None] + [f"v_add_u32 v{vWR+nt}, s{sT2}, v{vWR+nt}" for nt in range(4)]
    extra[1, 1] = [None] + [lambda nt=nt: a.vm(f"buffer_load_dwordx2 {vr(vB2+2*nt,2)}, v15, s[{rA}:{rA+3}], s{sT0} offen offset:{32*nt}", "b2") for nt in range(4)]
    extra[1, 2] = [None] * 3 + [lambda: waitlds(8, 4, "L_wa")]
    t_ = [f"v_add_u32 v{vWR+nt}, 16384, v{vWR+nt}" for nt in range(4)]
    for p in range(3):
        t_ += [f"s_sub_u32 s{sT1}, s{sW}, {p+1}\n s_and_b32 s{sT1}, s{sT1}, 3"]
        if p < 2: t_ += [f"s_lshl_b32 s{sT1}, s{sT1}, 14\n v_lshl_add_u32 v{vRd[p]}, v0, 4, s{sT1}"]
        else: t_ += [f"s_lshl_b32 s{sT1}, s{sT1}, 12\n s_add_u32 s{sT1}, s{sT1}, {QX}", f"v_lshl_add_u32 v{vRd[p]}, v0, 4, s{sT1}"]
    extra[2, 0] = [None] + t_
    fm = []
    for nt in range(4):
        for r in range(2):
            fm += [f"v_lshlrev_b32 v{vTr}, 16, v{vB2+2*nt+r}\n v_and_b32 v{vTr+1}, 0xffff0000, v{vB2+2*nt+r}"]
            fm += ["\n".join(f"v_fmac_f32 v{OWN+16*h+4*nt+2*r+u}, v{vTr+u}, v{vGM+12+2*h}" for u in range(2)) for h in range(2)]
    extra[2, 1] = fm[:12]; extra[2, 2] = fm[12:]
    t_ = f"""s_lshl_b32 s{sT2}, s{sW}, 12
      s_add_u32 s{sT2}, s{sT2}, {KVR+16384}
      v_lshrrev_b32 v15, 3, v0
      v_and_b32 v17, 7, v0
      v_xor_b32 v{vTr}, v15, v17
      v_lshlrev_b32 v{vTr}, 4, v{vTr}
      v_lshl_add_u32 v{vTr}, v15, 7, v{vTr}
      v_add_u32 v{vTr}, s{sT2}, v{vTr}
      v_lshlrev_b32 v{vOo}, 4, v17
      v_lshl_add_u32 v{vOo}, v15, 11, v{vOo}
      v_and_b32 v15, 7, v1
      v_lshrrev_b32 v17, 1, v2
      v_xor_b32 v15, v15, v17
      v_lshlrev_b32 v15, 4, v15
      v_and_b32 v17, 1, v2
      v_lshl_add_u32 v15, v17, 3, v15
      v_lshl_add_u32 v15, v1, 7, v15
      v_add_u32 v{vTw[0]}, s{sT2}, v15
      v_xor_b32 v{vTw[1]}, 32, v{vTw[0]}
      v_xor_b32 v{vTw[2]}, 64, v{vTw[0]}
      v_xor_b32 v{vTw[3]}, 96, v{vTw[0]}
      s_lshl_b32 s{sT0}, s{sCB2}, 7
      s_lshl_b32 s{sT1}, s{sRB2}, 18
      s_add_u32 s{sT0}, s{sT0}, s{sT1}
      s_lshl_b32 s{sT1}, s{sW}, 16
      s_add_u32 s{sT0}, s{sT0}, s{sT1}""".split("\n")
    extra[3, 0] = ["\n".join(t_[2*k:2*k+2]) for k in range(13)]
    worder = [0, 4, 1, 5, 2, 6, 3, 7]
    for p in range(1, 4): extra[3, p] = [x for k in worder for x in (None, (lambda k=k, p=p: wr(p - 1, k)))]
    a("s_nop 0")
    pend = []
    for D in range(4):
        if D == 2: stamp("g_32")
        for p in range(4):
            ex = list(extra.get((D, p), []))
            for e in range(2):
                i = 28 + 2 * D + e
                for nt in range(4):
                    vm = []
                    if nt == 0:
                        vm = [("H", i, 2 * p + 1)]
                        if (D, p, e) == (0, 3, 0): vm.append(("H", 29, 7))
                        if (D, p, e) == (2, 1, 0): vm.append("b2")
                    a.wait(vm=vm, lg=("W2", i, nt) if p == 0 else ())
                    for h in range(2):
                        mf16(acc2(2 * p + h, nt), WF + 16 * e + 4 * nt, HR + 32 * e + 4 * (2 * p + h))
                        if pend: pend.pop(0)()
                        if D < 3 and nt == 3: ldO(i + 2, 2 * p + h)
                        x = ex.pop(0) if ex else None
                        if callable(x): x()
                        elif x: a(x)
                    if D < 3 and p == 3: pend += [lambda i=i, nt=nt: rdWo(i + 2, nt, 0), lambda i=i, nt=nt: rdWo(i + 2, nt, 1)]
            assert not ex
        if D < 2: a(f"s_add_u32 s{sHo}, s{sHo}, 16384\n s_add_u32 s{sHp}, s{sHp}, 16384")
    assert not pend
    a.wait0(vm=False)
    stamp("g_36")
    a("s_barrier")
    stamp("g_bar")
    rds = [(p, k) for k in range(8) for p in range(3)]
    def rd(n):
        if n < 24:
            p, k = rds[n]
            a.lg(f"ds_read_b128 {vr(ACC2+32*p+4*k,4)}, v{vRd[p]} offset:{8192*p+1024*k if p < 2 else 16384*(k//4)+1024*(k%4)}", ("r", k))
    for n in range(12): rd(n)
    def st(g_):
        a.wait(lg=("u", g_ // 2, g_ % 2))
        a(f"buffer_store_dwordx4 {vr(HR+32+4*g_,4)}, v{vOo}, s[{rC}:{rC+3}], s{sT0} offen{['', ' sc1', ' nt'][OPT['osc']]}")
        if g_ < 3: a(f"s_add_u32 s{sT0}, s{sT0}, 16384")
    for k in range(8):
        a.wait(lg=("r", k))
        for r in (0, 2): a(f"v_pk_add_f32 {vr(ACC2+4*k+r,2)}, {vr(ACC2+4*k+r,2)}, {vr(ACC2+32+4*k+r,2)}")
        rd(12 + 3 * k)
        for r in (0, 2): a(f"v_pk_add_f32 {vr(OWN+4*k+r,2)}, {vr(OWN+4*k+r,2)}, {vr(ACC2+64+4*k+r,2)}")
        rd(13 + 3 * k)
        for r in (0, 2): a(f"v_pk_add_f32 {vr(OWN+4*k+r,2)}, {vr(OWN+4*k+r,2)}, {vr(ACC2+4*k+r,2)}")
        rd(14 + 3 * k)
        T_ = HR + 2 * k
        a(f"v_cvt_pk_bf16_f32 v{T_}, v{OWN+4*k}, v{OWN+4*k+1}\n v_cvt_pk_bf16_f32 v{T_+1}, v{OWN+4*k+2}, v{OWN+4*k+3}")
        a.lg(f"ds_write_b64 v{vTw[k%4]}, {vr(T_,2)} offset:{2048*(k//4)}")
        if k % 4 == 3:
            for h in range(2): a.lg(f"ds_read_b128 {vr(HR+32+8*(k//4)+4*h,4)}, v{vTr} offset:{2048*(k//4)+1024*h}", ("u", k // 4, h))
    for g_ in range(4): st(g_)
    if OPT["ts"]: a.wait0(); stamp("g_end")
    if OPT["padto"]:
        a.label("L_pad")
        a(f"s_memrealtime s[98:99]\n s_waitcnt lgkmcnt(0)\n s_sub_u32 s98, s98, s96\n s_cmp_lt_u32 s98, {OPT['padto']}\n s_cbranch_scc1 L_pad")
    dump_ts_and_end()
    if OPT["pf2"]:
        a.label("L_hookF")
        a(f"v_lshlrev_b32 v15, 7, v0\n buffer_load_dword v19, v15, s[{rPF}:{rPF+3}], s{sA} offen\n s_branch L_hookF_r")
    a.label("L_hookW")
    stamp("g_17")
    waitlds(0, 4, "L_wq")
    srd(rA, pWO, 1024 * 2048)
    a(f"s_lshl_b32 s{sT0}, s{sW}, 12\n s_add_u32 m0, s{sT0}, {QX}\n s_lshl_b32 s{sT0}, s{sW}, 19\n s_add_u32 s{sT0}, s{sT0}, {4*65536}")
    for k in range(4): a(f"buffer_load_dwordx4 v{vWD+k}, s[{rA}:{rA+3}], s{sT0} offen offset:{1024*k} lds")
    a("s_branch L_hookW_r")
    if OPT["pause"] < 7:
        a.label("L_hookP")
        waitlds(0, OPT["pcnt"], "L_hookP2")
        a("s_branch L_g2loop")

prologue()
section("g")
a.label("L_roleG")
g_phase1()
if OPT["stop"] == 1:
    stamp("g_bq"); g_hstore(); a.wait0(); stamp("g_hst"); dump_ts_and_end()
else:
    if OPT["wlate"]: g_hstore(); stamp("g_st")
    g2_setup()
    for i in range(3):
        for k in range(4): dmaW(i, k)
    if not OPT["wlate"]: g_hstore()
    g_phase2()
a_phase1()
if OPT["stop"] == 1:
    a(f"s_lshl_b32 s{sT0}, s{sW}, 12\n s_add_u32 s{sT1}, s{sT0}, {QX}\n v_lshl_add_u32 v16, v0, 4, s{sT1}")
    for i in range(4): a(f"ds_read_b128 {vr(32+4*i,4)}, v16 offset:{1024*i}")
    a(f"s_lshl_b32 s{sT1}, s{sRB}, 4\n s_add_u32 s{sT1}, s{sT1}, s{sCB}\n s_lshl_b32 s{sT1}, s{sT1}, 14\n s_add_u32 s{sT0}, s{sT0}, s{sT1}\n s_add_u32 s{sT0}, s{sT0}, {QD_OFF}")
    a.wait0()
    for i in range(4): a(f"buffer_store_dwordx4 {vr(32+4*i,4)}, v{vKVD}, s[{rWS}:{rWS+3}], s{sT0} offen offset:{1024*i}")
    dump_ts_and_end()
else:
    stamp("a_bq")
    attention()
a.label("L_exit")
a("s_endpgm")
a.label("L_codeend")

HDR = open("cdna_kernels/" + KNAME[:-7] + ".s.ref").read().split("; Override launch")[0]
text = HDR + f"; @launch grid=(256,1,1) block=(512,1,1) lds={LDS_BYTES}\n"
text += f'.amdgcn_target "amdgcn-amd-amdhsa--gfx950"\n.text\n.globl {KNAME}\n.p2align 8\n.type {KNAME},@function\n{KNAME}:\n'
a.out = SEC['head'] + SEC['st1'] + SEC['st0'] + SEC['st2'] + SEC['g'] + SEC['main']
body = a.text()
nbad = check(body)
text += body
text += f""".section .rodata,"a"
.p2align 6
.amdhsa_kernel {KNAME}
  .amdhsa_next_free_vgpr 256
  .amdhsa_next_free_sgpr 102
  .amdhsa_accum_offset 256
  .amdhsa_group_segment_fixed_size 0
  .amdhsa_kernarg_size 112
  .amdhsa_user_sgpr_count 2
  .amdhsa_user_sgpr_kernarg_segment_ptr 1
  .amdhsa_system_sgpr_workgroup_id_x 1
.end_amdhsa_kernel
"""
open(sys.argv[1], "w").write(text)
if nbad: sys.exit(f"{nbad} hazards")
```

```python
import sys, math
from asmlib import *

KNAME = "gated_mix__grouped_kv_mqa__dense_activation_squared_relu__prompt_kernel"
OPT = dict(stop=0, ts=0, pd=8, forceslow=0, nodma=0, nokv=0, nopf=0, nords=0, lead=6, pfnt=0, far=99, pf2=1, pf2b=2, gprio=2, nog2=0, g2nold=0, anodma=0, g2prio=0, dbgts=0, slp=2, th=0, farw2=1, hglob=1, arrk=1, wlate=1, map2=5, steps=0, kvskip='', pause=99, pcnt=64, grp=1, osc=1, padto=0, st2=0, spos=0, hfirst=2, p0prio=3, d0prio=1, xlate=0, ring=6, h3prio=1, hfl='sc1', wfl='', xfl='', padat='', xm=1, p0late=1, p0lo=0, kvreg=2, lowv=1, noo=0, nopk=1, tgrp=1, nowo=0, noack=0, qsw=1, evn=0, evk=1, ev2=1, ng=8, par='SSSS', lut=0, pw=128, pb=0, g32=0, dyn=0, chain=1, row4=0, snake=1, gp='x1111', gpo='', g2f=1, ebar=0, c2x=1, pfl='sc1', sfl='sc1', nowr=0, pat='eeeeeeeq0ccr1etccseu2eveywexccS4e5eeecc')
for a_ in sys.argv[2:]:
    k, v = a_.split("="); OPT[k] = int(v) if v.lstrip('-').isdigit() else v

GRP = [2, 0, 1, 3] if OPT['g2f'] else [0, 2, 1, 3]
RBSZ = 144 * 8192
KV_OFF = 0x1200000; G_OFF = 0x1240000; KF_OFF = 0x1244000; FL_OFF = 0x1248000; WS_USED = 0x1268000
QD_OFF = 0x1400000; TS_OFF = 0x1800000
WS_SIZE = 0x2000000 if (OPT["stop"] or OPT["ts"]) else WS_USED
OOB = 0x40000000
W1R = 0; W1S = 14336
WQR = 57344; WQS = 4096
XR = 73728; XS = 16384
KVST = 122880
SYNC = 155648
GT = SYNC + 512
LDS_BYTES = GT + 2048
QX = XR
KVR = 90112
pX, pWQ, pWK, pWV, pWO, pW1, pB1, pW2, pB2, pGATE, pOUT, pDBG, pWS = 4, 6, 8, 10, 12, 16, 18, 20, 22, 24, 26, 28, 30
rA, rB, rC, rD, rWS, rDBG, rPF, rE = 32, 36, 40, 44, 48, 52, 56, 60
sRB, sCB, sRB2, sCB2, sI, sW = 64, 65, 66, 67, 68, 69
sT0, sT1, sT2, sT3, sT4, sT5 = 70, 71, 72, 73, 74, 75
sIT, sA, sB, sC, sD, sE, sF, sG = 76, 77, 78, 79, 80, 81, 82, 83
sTS = 84
sPOS = 101
sQB = 100
SPIN_MAX = 1 << 18

a = Asm()
SEC = {}
def section(n):
    a.out = SEC.setdefault(n, [])
section("head")
def kwait():
    a("s_waitcnt lgkmcnt(0)"); stamp("kw"); srd(rWS, pWS, WS_SIZE)
def srd(r, p, size):
    a(f"s_mov_b32 s{r}, s{p}\n s_mov_b32 s{r+1}, s{p+1}\n s_mov_b32 s{r+2}, {size}\n s_mov_b32 s{r+3}, 0x20000")
nts = [0]
STAMPS = {1: dict(g_b0=1, g_end1=2, g_bq=3, g_hst=4, g_pre=5, a_set=1, a_w0=2, a_8=3, a_16=4, a_24=5),
          0: dict(g_end1=1, g_flag=2, g_l2=3, g_hook=4, g_end=5, a_b0=1, a_16=2, a_bq=3, a_att=4, a_end=5)}[OPT["stop"]]
if OPT["st2"] == 1: STAMPS.update(g_end1=0, g_flag=0, g_l2=1, g_17=2, g_25=3)
if OPT["st2"] == 3: STAMPS = dict(kw=1, g_pre=2, g_bias=3, g_rdy=4, g_b0=5, a_iss=2, a_set=3, a_w0=4, a_b0=5)
if OPT["st2"] == 4: STAMPS.update(g_end1=0, g_st=1, g_flag=2, g_pw=3, g_wf=4, g_l2=0, g_s0=5, g_hook=0, g_end=0)
if OPT["st2"] == 2: STAMPS.update(g_end1=0, g_flag=0, g_l2=0, g_hook=1, g_32=2, g_36=3, g_bar=4)
def stamp(n):
    if n == OPT["padat"]: a("s_memrealtime s[96:97]"); a.wait0(vm=False)
    i = STAMPS.get(n)
    if OPT["ts"] and i:
        a(f"{'s_memrealtime' if OPT['ts'] == 2 else 's_memtime'} s[{sTS+2*i}:{sTS+2*i+1}]"); a.wait0(vm=False)
def mf16(d, x, y, c=None):
    a(f"v_mfma_f32_16x16x32_bf16 {vr(d,4)}, {vr(x,4)}, {vr(y,4)}, {vr(d,4) if c is None else c}")
def mf32(d, x, y, c=None):
    a(f"v_mfma_f32_32x32x16_bf16 {vr(d,16)}, {vr(x,4)}, {vr(y,4)}, {vr(d,16) if c is None else c}")
def dump_ts_and_end():
    if OPT["ts"]:
        a("s_memrealtime s[98:99]"); a.wait0()
        if OPT["dbgts"]:
            l = a.newlabel("L_nots")
            srd(rDBG, pDBG, 256)
            a(f"s_cmp_lg_u32 s2, 100\n s_cbranch_scc1 {l}\n s_cmp_lg_u32 s{sW}, 0\n s_cbranch_scc1 {l}")
            for i, k in enumerate((1, 2, 3, 4, 5, 7)): a(f"s_sub_u32 s{sT0}, s{sTS+2*k}, s96\n v_mov_b32 v{8+i}, s{sT0}")
            a(f"s_lshl_b32 s{sT0}, s3, 3\n s_add_u32 s{sT0}, s{sT0}, 8\n v_mov_b32 v2, 0\n s_mov_b64 exec, 1")
            a(f"buffer_store_dwordx2 v[8:9], v2, s[{rDBG}:{rDBG+3}], s{sT0} offen")
            a(f"buffer_store_dwordx4 v[10:13], v2, s[{rDBG}:{rDBG+3}], s{sT0} offen offset:8")
            a.label(l)
        else:
            for i in range(8): a(f"v_mov_b32 v{8+i}, s{sTS+2*i}")
            a(f"s_lshl_b32 s{sT0}, s2, 8\n s_lshl_b32 s{sT1}, s3, 5\n s_add_u32 s{sT0}, s{sT0}, s{sT1}\n s_add_u32 s{sT0}, s{sT0}, {TS_OFF}")
            a(f"v_mov_b32 v2, 0\n s_mov_b64 exec, 1")
            a(f"buffer_store_dwordx4 v[8:11], v2, s[{rWS}:{rWS+3}], s{sT0} offen")
            a(f"buffer_store_dwordx4 v[12:15], v2, s[{rWS}:{rWS+3}], s{sT0} offen offset:16")
    a("s_endpgm")

def prologue():
    m = OPT["map2"]
    lx, lc = {0: (1, 3), 2: (1, 3), 3: (2, 2), 4: (0, 4), 5: (2, 2)}[m]
    MAP2 = f"""s_lshr_b32 s{sT1}, s{sT0}, {lx}
      s_lshl_b32 s{sT1}, s{sT1}, {5-lc}
      s_lshr_b32 s{sT2}, s{sI}, {lc}
      s_add_u32 s{sRB2}, s{sT1}, s{sT2}
      s_and_b32 s{sT1}, s{sT0}, {(1<<lx)-1}
      s_and_b32 s{sT2}, s{sI}, {(1<<lc)-1}
      s_lshl_b32 s{sT2 if m in (2, 5) else sT1}, s{sT2 if m in (2, 5) else sT1}, {lx if m in (2, 5) else lc}
      s_add_u32 s{sCB2}, s{sT1}, s{sT2}
      s_xor_b32 s{sCB2}, s{sCB2}, {OPT["c2x"]}
      s_mov_b32 s{sPOS}, s{sCB}"""
    ident = list(range(16))
    LUTS = {0: (ident, [0, 1, 3, 2] + ident[4:]),
            1: ([0, 1, 3, 5, 2, 4, 6, 8, 7, 10, 12, 14, 9, 11, 13, 15], [0, 1, 2, 9, 4, 5, 6, 7, 8, 3, 10, 11, 12, 13, 14, 15]),
            2: ([0, 1, 3, 5, 2, 4, 6, 8, 7, 10, 12, 14, 9, 11, 13, 15], [0, 1, 2, 4, 3, 5, 11, 7, 8, 9, 10, 6, 12, 13, 14, 15]),
            3: ([0, 1, 3, 5, 7, 4, 10, 8, 12, 2, 14, 6, 9, 11, 13, 15], [0, 1, 2, 9, 4, 5, 6, 7, 8, 3, 10, 11, 12, 13, 14, 15])}[OPT["lut"]]
    for reg, tab in zip((sCB, sQB), LUTS):
        assert sorted(tab) == ident
        if tab == ident: continue
        w = sum(v << (4 * k) for k, v in enumerate(tab))
        MAP2 += f"""
          s_mov_b32 s{sT2}, {hex(w & 0xffffffff)}
          s_mov_b32 s{sT3}, {hex(w >> 32)}
          s_lshl_b32 s{sT1}, s{sPOS}, 2
          s_lshr_b64 s[{sT2}:{sT3}], s[{sT2}:{sT3}], s{sT1}
          s_and_b32 s{reg}, s{sT2}, 15"""
    a("s_cmp_ge_u32 s2, 256\n s_cbranch_scc1 L_exit")
    a("s_load_dwordx16 s[4:19], s[0:1], 0\n s_load_dwordx8 s[20:27], s[0:1], 64\n s_load_dwordx4 s[28:31], s[0:1], 96")
    if OPT["ts"] or OPT["th"] or OPT["padto"]:
        a(f"s_memtime s[{sTS}:{sTS+1}]\n s_memrealtime s[96:97]")
    a(f"""v_lshrrev_b32 v1, 6, v0
      v_and_b32 v0, 63, v0
      v_readfirstlane_b32 s3, v1
      s_lshr_b32 s{sI}, s2, 3
      s_and_b32 s{sT0}, s2, 7
      s_lshr_b32 s{sT1}, s{sT0}, 2
      s_lshl_b32 s{sT1}, s{sT1}, 3
      s_lshr_b32 s{sT2}, s{sI}, 2
      s_add_u32 s{sRB}, s{sT1}, s{sT2}
      s_and_b32 s{sT1}, s{sT0}, 3
      s_lshl_b32 s{sT1}, s{sT1}, 2
      s_and_b32 s{sT2}, s{sI}, 3
      s_add_u32 s{sCB}, s{sT1}, s{sT2}
      {MAP2}
      s_and_b32 s{sW}, s3, 3
      v_and_b32 v1, 15, v0
      v_lshrrev_b32 v2, 4, v0""")
    a("s_cmp_lt_u32 s3, 4\n s_cbranch_scc1 L_roleG\n s_setprio 1\n s_cmp_eq_u32 s3, 7\n s_cbranch_scc1 L_st2\n s_cmp_lg_u32 s3, 6\n s_cbranch_scc1 L_st0")

ACC1 = 112
acc1 = lambda ft, rt: ACC1 + (ft * 4 + rt) * 4
XF = [56, 72]; WRING = 88; NR = OPT['ring']; RD = NR - 1
vX = [34, 35]; vXb = [36, 37]; vW1 = [38, 39]; vWq = [40, 41]; vJ, vLP, vQW = 42, 43, 44
def g_phase1():
    PD = OPT["pd"]
    sRG, sCG = sA, sB
    sXo, sPo, sPe, sPd = sC, sD, sE, sF
    a(f"s_and_b32 s{sRG}, s{sW}, 1\n s_lshr_b32 s{sCG}, s{sW}, 1")
    a(f"""s_cmp_lt_u32 s{sW}, 2
      s_cbranch_scc0 L_nocode
      s_getpc_b64 s[{rE}:{rE+1}]""")
    a.label("L_pc")
    a(f"""s_mov_b32 s{rE+2}, L_codeend-L_pc
      s_mov_b32 s{rE+3}, 0x20000
      s_lshl_b32 s{sT1}, s{sI}, 10
      s_lshl_b32 s{sT2}, s{sW}, 15
      s_add_u32 s{sT1}, s{sT1}, s{sT2}
      v_lshlrev_b32 v15, 7, v0
      s_mov_b64 exec, 0xff
      buffer_load_dword v{vJ}, v15, s[{rE}:{rE+3}], s{sT1} offen
      s_mov_b64 exec, -1""")
    a.label("L_nocode")
    a(f"""s_mul_i32 s{sT0}, s{sCB}, 448
      s_mul_i32 s{sT1}, s{sCG}, 224
      s_add_u32 s{sT0}, s{sT0}, s{sT1}
      v_lshlrev_b32 v14, 2, v0
      s_mov_b32 s{rA+2}, 7168
      s_mov_b32 s{rA+3}, 0x20000
      s_setprio 3
      s_waitcnt lgkmcnt(0)
      s_mov_b32 s{rA}, s{pB1}
      s_mov_b32 s{rA+1}, s{pB1+1}
      buffer_load_dword v33, v14, s[{rA}:{rA+3}], s{sT0} offen
      s_setprio 0""")
    kwait()
    for r in range(0, 32, 2): a(f"v_mov_b64 {vr(ACC1+r,2)}, 0")
    a(f"""v_lshrrev_b32 v14, 1, v1
      v_xor_b32 v14, v14, v2
      v_lshlrev_b32 v14, 4, v14
      v_lshl_add_u32 v14, v1, 7, v14
      s_lshl_b32 s{sT0}, s{sRG}, 13
      s_add_u32 s{sT0}, s{sT0}, {XR}
      v_add_u32 v{vXb[0]}, s{sT0}, v14
      v_xor_b32 v{vXb[1]}, 64, v{vXb[0]}
      v_mov_b32 v{vX[0]}, v{vXb[0]}
      v_mov_b32 v{vX[1]}, v{vXb[1]}
      s_mov_b32 s{sXo}, 0
      v_lshrrev_b32 v14, 2, v1
      v_lshl_add_u32 v14, v2, 3, v14
      v_and_b32 v15, 3, v1
      v_lshlrev_b32 v15, 3, v15
      v_mul_u32_u24 v30, 448, v14
      v_add_u32 v30, v30, v15
      s_mul_i32 s{sT0}, s{sCG}, 224
      v_add_u32 v30, s{sT0}, v30
      v_and_b32 v31, 1, v2
      v_lshlrev_b32 v32, 5, v31
      s_lshl_b32 s{sT1}, s{sCG}, 1
      s_sub_u32 s{sT1}, 1, s{sT1}
      v_mul_lo_u32 v32, v32, s{sT1}
      v_add_u32 v{vW1[0]}, v30, v32
      v_sub_u32 v{vW1[1]}, v30, v32
      v_lshrrev_b32 v32, 3, v1
      v_lshl_add_u32 v31, v32, 1, v31
      s_lshl_b32 s{sT0}, s{sCG}, 1
      v_xor_b32 v31, s{sT0}, v31
      v_lshl_add_u32 v15, v31, 5, v15
      v_lshl_add_u32 v15, v14, 7, v15
      v_add_u32 v{vWq[0]}, {WQR}, v15
      v_xor_b32 v{vWq[1]}, 32, v{vWq[0]}""")
    a(f"""v_and_b32 v14, 1, v2
      v_lshlrev_b32 v14, 10, v14
      v_lshrrev_b32 v15, 1, v2
      v_lshl_add_u32 v14, v15, 8, v14
      v_lshl_add_u32 v{vLP}, v1, 4, v14""")
    if not OPT["stop"]: g2_vsetup()
    a(f"v_mov_b32 v30, {SYNC}\n ds_write_b128 v30, v[{ACC1}:{ACC1+3}]\n v_lshlrev_b32 v15, 3, v2")
    stamp("g_pre")
    a.wait0()
    stamp("g_bias")
    for k in range(14): a.lg(f"ds_bpermute_b32 v{16+k}, v15, v33 offset:{32*(k//2)+4*(k%2)}", ("b", k // 2))
    for ft in range(7):
        d = acc1(2 + ft, 0)
        a.wait(lg=("b", ft))
        a(f"v_lshlrev_b32 v{d}, 16, v{16+2*ft}\n v_and_b32 v{d+1}, 0xffff0000, v{16+2*ft}")
        a(f"v_lshlrev_b32 v{d+2}, 16, v{17+2*ft}\n v_and_b32 v{d+3}, 0xffff0000, v{17+2*ft}")
        for rt in range(1, 4): a(f"v_mov_b64 {vr(d+4*rt,2)}, {vr(d,2)}\n v_mov_b64 {vr(d+4*rt+2,2)}, {vr(d+2,2)}")
    def rdW(g, e):
        if OPT["nords"] and g > 2: return
        t, ft = divmod(g, 9); d = WRING + 4 * (g % NR) + 2 * e
        if ft < 2: a.lg(f"ds_read_b64_tr_b16 {vr(d,2)}, v{vWq[ft]} offset:{(t%4)*WQS + e*512}", ("W", g))
        else: a.lg(f"ds_read_b64_tr_b16 {vr(d,2)}, v{vW1[ft%2]} offset:{(t%4)*W1S + e*1792 + (ft-2)*32}", ("W", g))
    def rdX(t, rt):
        a.lg(f"ds_read_b128 {vr(XF[t%2]+4*rt,4)}, v{vX[t%2]} offset:{rt*2048}", ("X", t))
    a(f"s_mov_b32 s{sIT}, 0")
    stamp("g_rdy")
    a("s_barrier")
    stamp("g_b0")
    rdW(0, 0); rdW(0, 1)
    for rt in range(4): rdX(0, rt)
    for g in range(1, RD): rdW(g, 0); rdW(g, 1)
    a.raw(".p2align 3")
    a.label("L_g1loop")
    def body(it):
        for ts in range(4):
            t = it * 4 + ts
            for ft in range(9):
                g = t * 9 + ft
                fill = [[], [], [], []]
                fill[0].append(lambda: rdW(g + RD, 0))
                fill[1].append(lambda: rdW(g + RD, 1))
                if NR == 4:
                    if ft == 5: fill[2].append(lambda: a("s_barrier")); fill[3].append(lambda: rdX(t + 1, 0))
                    if ft == 6: fill[2].append(lambda: (rdX(t + 1, 1), rdX(t + 1, 2))); fill[3].append(lambda: rdX(t + 1, 3))
                else:
                    if ft == 3: fill[2].append(lambda: a("s_barrier")); fill[3].append(lambda: rdX(t + 1, 0))
                    if ft == 4: fill[2].append(lambda: rdX(t + 1, 1)); fill[3].append(lambda: rdX(t + 1, 2))
                    if ft == 5: fill[2].append(lambda: rdX(t + 1, 3))
                if ts % 2 == 1:
                    if ft == 1:
                        fill[2].append(lambda: a(f"s_add_u32 s{sXo}, s{sXo}, {XS}\n s_cmp_eq_u32 s{sXo}, {3*XS}"))
                        fill[3].append(lambda: a(f"s_cselect_b32 s{sXo}, 0, s{sXo}"))
                    if ft == 2:
                        fill[2].append(lambda: a(f"v_add_u32 v{vX[0]}, s{sXo}, v{vXb[0]}"))
                        fill[3].append(lambda: a(f"v_add_u32 v{vX[1]}, s{sXo}, v{vXb[1]}"))
                if ts == 2 and ft == 7: fill[2].append(lambda: a(f"s_add_u32 s{sIT}, s{sIT}, 1"))
                if ts == 2 and ft == 8: fill[2].append(lambda: a(f"s_cmp_eq_u32 s{sIT}, 8"))
                a.wait(lg=[("W", g), ("X", t)] if ft == 0 else ("W", g))
                for k_ in range(4):
                    rt = 3 - k_ if OPT["snake"] and ft % 2 else k_
                    mf16(acc1(ft, rt), WRING + 4 * (g % NR), XF[t % 2] + 4 * rt)
                    for f in fill[k_]: f()
            if ts == 2:
                a("s_cbranch_scc1 L_g1last"); snap[:] = [(k_, v_ + (30 - t) * (9 if k_ == "W" else 1)) for k_, v_ in a.lgq]
        a("s_branch L_g1loop")
    snap = []
    a.loop(body, "g1")
    a.label("L_g1last")
    a.lgq[:] = snap
    q = [f"s_lshl_b32 s{sT2}, s{sRG}, 13\n s_lshl_b32 s{sT3}, s{sCG}, 11", f"s_add_u32 s{sT2}, s{sT2}, s{sT3}\n s_add_u32 s{sT2}, s{sT2}, {QX}",
         f"v_lshl_add_u32 v{vQW}, v0, 4, s{sT2}", "s_barrier"]
    cq = lambda s_, rt: f"v_cvt_pk_bf16_f32 v{16+4*rt+2*s_}, v{acc1(s_,rt)}, v{acc1(s_,rt)+1}\n v_cvt_pk_bf16_f32 v{17+4*rt+2*s_}, v{acc1(s_,rt)+2}, v{acc1(s_,rt)+3}"
    wq = lambda rt: ("w", f"ds_write_b128 v{vQW}, {vr(16+4*rt,4)} offset:{(rt//2)*4096 + (rt%2)*1024}")
    plan = {(0, 2): q[0], (0, 3): q[1], (1, 2): q[2], (2, 2): cq(0, 0), (2, 3): cq(0, 1), (3, 2): cq(1, 0), (3, 3): cq(1, 1),
            (4, 0): q[3], (4, 1): wq(0), (4, 2): cq(0, 2), (4, 3): wq(1), (5, 0): cq(1, 2), (5, 1): cq(0, 3), (5, 2): wq(2), (5, 3): cq(1, 3),
            (6, 0): wq(3)}
    for ft in range(9):
        g = 31 * 9 + ft
        a.wait(lg=[("W", g), ("X", 31)] if ft == 0 else ("W", g))
        for rt in range(4):
            mf16(acc1(ft, rt), WRING + 4 * (g % NR), XF[1] + 4 * rt)
            if rt < 2 and ft + RD < 9: rdW(g + RD, rt)
            x = plan.get((ft, rt))
            if isinstance(x, tuple): a.lg(x[1])
            elif x: a(x)
            if (ft, rt) == (7, 3): a.wait0(vm=False); a(f"s_setprio {OPT['gprio']}\n s_barrier")
    stamp("g_end1")
def g_hstore(lo=0, hi=7):
    sRG, sCG = sA, sB
    sT0, sT1, sT2, sT3 = sT4, sT5, sF, sG
    if lo == 0: a(f"""s_mul_i32 s{sT0}, s{sRB}, {RBSZ}
      s_mul_i32 s{sT1}, s{sCB}, {7*8192}
      s_add_u32 s{sT0}, s{sT0}, s{sT1}
      s_lshl_b32 s{sT1}, s{sRG}, 12
      s_add_u32 s{sT0}, s{sT0}, s{sT1}
      s_mul_i32 s{sT1}, s{sCG}, {3*8192+512}
      s_add_u32 s{sT0}, s{sT0}, s{sT1}
      s_mul_i32 s{sT2}, s{sCG}, {8192-1024}
      s_add_u32 s{sT2}, s{sT2}, 512
      s_sub_u32 s{sT3}, 8192, s{sT2}""")
    k = 0
    for ft in range(lo, hi):
        for p in range(2):
            T = 16 + 4 * (k % 4); k += 1
            for h in range(2):
                d = acc1(2 + ft, 2 * p + h)
                for r in range(4): a(f"v_max_f32 v{d+r}, 0, v{d+r}")
                if OPT["nopk"] > 1: a("\n".join(f"v_mul_f32 v{d+r}, v{d+r}, v{d+r}" for r in range(4)))
                else: a(f"v_pk_mul_f32 {vr(d,2)}, {vr(d,2)}, {vr(d,2)}\n v_pk_mul_f32 {vr(d+2,2)}, {vr(d+2,2)}, {vr(d+2,2)}")
                a(f"v_cvt_pk_bf16_f32 v{T+2*h}, v{d}, v{d+1}\n v_cvt_pk_bf16_f32 v{T+2*h+1}, v{d+2}, v{d+3}")
            a(f"s_nop 1\n v_permlane16_swap_b32 v{T}, v{T+2}\n v_permlane16_swap_b32 v{T+1}, v{T+3}")
            a.vm(f"buffer_store_dwordx4 {vr(T,4)}, v{vLP}, s[{rWS}:{rWS+3}], s{sT0} offen offset:{p*2048} sc1", "hst")
        a(f"s_add_u32 s{sT0}, s{sT0}, s{sT2 if ft % 2 == 0 else sT3}")

vO = 3
vKX, vKG, vKW, vKT0, vKVD, vKR = 140, 12, 13, 24, 15, 142
KVREG = 208; vG = 253
KXF, KGF, KWF, KAC = 32, 64, 96, 128
def a_phase1():
    sISV, sR0, sSTG, sM, sSo, sSx, sGrp = sA, sB, sC, sD, sE, sF, sG
    NT = " nt" if OPT["pfnt"] else ""
    LEAD = OPT["lead"]
    for path in range(3):
        section(f"st{path}")
        a.label(f"L_st{path}")
        a.vmq.clear(); a.lgq.clear()
        ldW = ldX = pfs = lambda t, m=None: None
        trickle = []
        def trk(all_=False):
            while trickle:
                for t_ in trickle.pop(0): a.label(t_[:-1]) if t_.endswith(":") else a.lg(t_)
                if not all_: break
        if path == 0:
            a(f"s_mul_i32 s{sT0}, s{sW}, {16*7168}\n s_mul_i32 s{sT1}, s{sCB}, 448\n s_add_u32 s{sSo}, s{sT0}, s{sT1}")
            a(f"s_mul_i32 s{sM}, s{sW}, 7168\n s_movk_i32 s{sT2}, {7168-448}")
            for i in range(7):
                a(f"""v_add_u32 v16, {64*i}, v0
                  v_mul_u32_u24 v17, 2341, v16
                  v_lshrrev_b32 v17, 16, v17
                  v_bfe_u32 v18, v17, 3, 1
                  v_lshlrev_b32 v18, 1, v18
                  v_xor_b32 v16, v16, v18
                  v_lshlrev_b32 v16, 4, v16
                  v_mad_u32_u24 v{vO+i}, v17, s{sT2}, v16""")
                if i % 4: a(f"v_subrev_u32 v{vO+i}, {1024*(i%4)}, v{vO+i}")
            kwait(); srd(rB, pW1, 1024 * 7168)
            def ldW(t, m=None):
                for i in range(7):
                    if i == 4 and m: m()
                    if i % 4 == 0: a(f"s_add_u32 m0, s{sM}, {(t%4)*W1S + i*1024}\n s_nop 0")
                    a.vm(f"buffer_load_dwordx4 v{vO+i}, s[{rB}:{rB+3}], s{sSo} offen offset:{1024*(i%4)} {OPT['xfl'].replace('_', ' ')} lds", ("W", t)); trk()
                a(f"s_add_u32 s{sSo}, s{sSo}, {32*7168}")
        elif path == 1:
            a(f"""v_lshrrev_b32 v16, 3, v0
              v_lshlrev_b32 v16, 11, v16
              v_and_b32 v17, 7, v0
              v_xor_b32 v18, v17, v2
              v_lshl_add_u32 v18, v18, 4, v16
              v_and_b32 v20, 1, v2
              v_lshlrev_b32 v20, 2, v20
              v_xor_b32 v20, v20, v17
              v_lshl_add_u32 v20, v20, 4, v16
              s_lshl_b32 s{sSo}, s{sQB}, 7
              s_lshl_b32 s{sSx}, s{sRB}, 18""")
            for i in range(4):
                a(f"v_xor_b32 v19, {64*(i%2)}, v18\n v_add_u32 v{vO+i}, {i*16384 - i*1024}, v19")
                a(f"v_xor_b32 v19, {32*(i%2)}, v20\n v_add_u32 v{vO+4+i}, {i*16384 - i*1024}, v19")
            kwait(); srd(rB, pWQ, 1024 * 2048); srd(rA, pX, 2048 * 2048)
            def ldW(t, m=None):
                a(f"s_mov_b32 m0, {WQR + (t%4)*WQS}\n s_nop 0")
                for i in range(4):
                    a.vm(f"buffer_load_dwordx4 v{vO+4+i}, s[{rB}:{rB+3}], s{sSo} offen offset:{1024*i} {OPT['xfl'].replace('_', ' ')} lds", ("W", t)); trk()
                a(f"s_add_u32 s{sSo}, s{sSo}, 65536")
        else:
            a(f"""s_and_b32 s{sGrp}, s{sI}, 7
              s_lshl_b32 s{sT0}, s{sGrp}, 5
              s_and_b32 s{sT1}, s{sI}, 24
              s_add_u32 s{sT0}, s{sT0}, s{sT1}
              s_and_b32 s{sT1}, s2, 7
              s_add_u32 s{sT0}, s{sT0}, s{sT1}
              s_lshl_b32 s{sIT}, s{sT0}, 14
              s_mul_i32 s{sSo}, s{sT0}, 7168
              s_lshl_b32 s{sM}, s{sT0}, 11""")
            a(f"""
              v_lshrrev_b32 v16, 3, v0
              v_lshlrev_b32 v16, 11, v16
              v_and_b32 v17, 7, v0
              v_lshl_add_u32 v{vO+4}, v17, 7, v16
              v_lshlrev_b32 v{vO+5}, 7, v0
              v_xor_b32 v18, v17, v2
              v_lshl_add_u32 v18, v18, 4, v16
              s_lshl_b32 s{sSx}, s{sRB}, 18
              s_add_u32 s{sSx}, s{sSx}, 65536""")
            for i in range(4): a(f"v_xor_b32 v19, {64*(i%2)}, v18\n v_add_u32 v{vO+i}, {i*16384 - i*1024}, v19")
            a(f"s_setprio {OPT['p0prio']}")
            kwait(); srd(rA, pX, 2048 * 2048); srd(rB, pW1, 1024 * 7168); srd(rPF, pWQ, 1024 * 2048)
            def pfW(so, sm, vm, two=False):
                if two:
                    vm(f"buffer_load_dword v250, v{vO+5}, s[{rB}:{rB+3}], s{so} offen{NT}")
                    a(f"s_add_u32 s{sT2}, s{so}, 8192\n s_mov_b32 exec_hi, 0xffff")
                    vm(f"buffer_load_dword v250, v{vO+5}, s[{rB}:{rB+3}], s{sT2} offen{NT}")
                    a("s_mov_b32 exec_hi, 0")
                else:
                    a("s_mov_b32 exec_hi, 0xffffff")
                    vm(f"buffer_load_dword v250, v{vO+5}, s[{rB}:{rB+3}], s{so} offen{NT}")
                    a("s_mov_b64 exec, 0xffff")
                vm(f"buffer_load_dword v250, v{vO+5}, s[{rPF}:{rPF+3}], s{sm} offen{NT}")
                a("s_mov_b64 exec, -1")
            def p0():
                if OPT["nopf"]: return
                a(f"s_mov_b32 exec_lo, 0x0f0f0f0f\n s_mov_b32 exec_hi, 0x0f0f0f0f")
                a.vm(f"buffer_load_dword v250, v{vO+4}, s[{rA}:{rA+3}], s{sIT} offen{NT}")
                a(f"""s_cmp_lt_u32 s{sGrp}, {LEAD}
                  s_cselect_b32 s{sT0}, s{sSo}, {OOB}
                  s_cselect_b32 s{sT1}, s{sM}, {OOB}
                  s_mov_b64 exec, -1""")
                pfW(sT0, sT1, a.vm)
                a(f"""s_cmp_lt_u32 s{sGrp}, {LEAD}
                  s_cselect_b32 s{sT0}, {256*7168}, 0
                  s_cselect_b32 s{sT1}, {256*2048}, 0
                  s_add_u32 s{sSo}, s{sSo}, s{sT0}
                  s_add_u32 s{sM}, s{sM}, s{sT1}
                  s_bfe_u32 s{sIT}, s{sIT}, 0x5000e
                  s_lshl_b32 s{sIT}, s{sIT}, 17
                  v_lshrrev_b32 v16, 1, v0
                  v_and_b32 v17, 1, v0
                  v_lshlrev_b32 v17, 7, v17
                  v_lshl_add_u32 v{vO+4}, v16, 11, v17""")
            def pfs(t):
                if OPT["nopf"]: return
                if t + LEAD < 32:
                    md = OPT["par"][t // 8]
                    l = a.newlabel("L_np")
                    a(f"s_cmp_lg_u32 s{sGrp}, {(t+LEAD)%8}\n s_cbranch_scc1 {l}")
                    a(f"s_add_u32 s{sSo}, s{sSo}, {256*7168}\n s_add_u32 s{sM}, s{sM}, {256*2048}")
                    if md != "S": a(f"s_bitcmp1_b32 s2, 0\n s_cbranch_scc{1 if md == 'E' else 0} {l}")
                    back = md == "O"
                    a(f"s_sub_u32 s{sT0}, s{sSo}, {(256+back)*7168}\n s_sub_u32 s{sT1}, s{sM}, {(256+back)*2048}")
                    pfW(sT0, sT1, a, md != "S")
                    if t < 6:
                        if back: a(f"s_sub_u32 s{sIT}, s{sIT}, 131072")
                        for k_ in range(2 if md == "S" else 4):
                            a(f"buffer_load_dword v250, v{vO+4}, s[{rA}:{rA+3}], s{sIT} offen offset:{512+256*t}{NT}\n s_add_u32 s{sIT}, s{sIT}, 65536")
                    if OPT["pf2"] and t // 8 == OPT["pf2b"]:
                        srd(rD, pW2, 3584 * 2048)
                        a(f"s_lshr_b32 s{sT0}, s2, 6\n s_mul_i32 s{sT0}, s{sT0}, {896*2048}\n s_and_b32 s{sT1}, s2, {63 if md == 'S' else 62}\n s_lshl_b32 s{sT1}, s{sT1}, 13\n s_add_u32 s{sT0}, s{sT0}, s{sT1}")
                        a(f"buffer_load_dword v250, v{vO+5}, s[{rD}:{rD+3}], s{sT0} offen")
                        if md != "S": a(f"s_add_u32 s{sT0}, s{sT0}, 8192\n buffer_load_dword v250, v{vO+5}, s[{rD}:{rD+3}], s{sT0} offen")
                    a.label(l)
                if t == OPT["far"]:
                    srd(rB, pW2, 3584 * 2048); srd(rPF, pWO, 1024 * 2048)
                    a(f"s_mul_i32 s{sSo}, s2, 28672\n s_lshl_b32 s{sM}, s2, 13")
                    for i in range(4 if OPT["farw2"] else 0):
                        if i == 3: a("s_mov_b32 exec_hi, 0")
                        a.vm(f"buffer_load_dword v250, v{vO+5}, s[{rB}:{rB+3}], s{sSo} offen")
                        a(f"s_add_u32 s{sSo}, s{sSo}, 8192")
                    a("s_mov_b64 exec, -1")
                    a.vm(f"buffer_load_dword v250, v{vO+5}, s[{rPF}:{rPF+3}], s{sM} offen")
        if path:
            def ldX(hb):
                u, hf = divmod(hb, 2)
                a(f"s_mov_b32 m0, {XR + (u%3)*XS + hf*8192 + (path-1)*4096}\n s_nop 0")
                for i in range(4):
                    a.vm(f"buffer_load_dwordx4 v{vO+i}, s[{rA}:{rA+3}], s{sSx} offen offset:{1024*i} {OPT['xfl'].replace('_', ' ')} lds", ("X", u)); trk()
                a(f"s_add_u32 s{sSx}, s{sSx}, {131072 if hf == 0 else (128-131072) & 0xffffffff}")
        def kvsetup():
            if OPT["evk"]: a(f"s_bfe_u32 s{sISV}, s{sPOS}, 0x10002\n s_lshr_b32 s{sR0}, s{sPOS}, 3\n s_lshl_b32 s{sR0}, s{sR0}, 2\n s_and_b32 s{sT0}, s{sPOS}, 3\n s_add_u32 s{sR0}, s{sR0}, s{sT0}")
            else: a(f"s_and_b32 s{sISV}, s{sCB}, 1\n s_lshr_b32 s{sR0}, s{sCB}, 1")
            a(f"""s_lshl_b32 s{sR0}, s{sR0}, 4
              s_lshl_b32 s{sT0}, s{sRB}, 7
              s_add_u32 s{sR0}, s{sR0}, s{sT0}
              s_cmp_eq_u32 s{sISV}, 0
              s_cselect_b32 s{rC}, s{pWK}, s{pWV}
              s_cselect_b32 s{rC+1}, s{pWK+1}, s{pWV+1}
              s_mov_b32 s{rC+2}, 65536
              s_mov_b32 s{rC+3}, 0x20000
              v_lshlrev_b32 v{vKVD}, 4, v0""")
            if path == 2:
                srd(rD, pGATE, 2048); srd(rDBG, pDBG, 256)
                a(f"s_lshl_b32 s{sT0}, s{sR0}, 5\n s_mov_b64 exec, 15")
                a.vm(f"buffer_load_dword v250, v{vO+5}, s[{rC}:{rC+3}], s{sT0} offen"); a("s_mov_b64 exec, -1")
                a(f"s_mov_b32 m0, {GT}\n s_nop 0")
                for i in range(2): a.vm(f"buffer_load_dwordx4 v{vKVD}, s[{rD}:{rD+3}], 0 offen offset:{1024*i} lds", "gt")
        if path == 2 and OPT["p0late"] == 0: p0(); kvsetup()
        if OPT["d0prio"]: a("s_setprio 2")
        ldW(0); ldX(0); ldX(1)
        if OPT["d0prio"]: a("s_setprio 1")
        if path == 2 and OPT["p0late"] == 1: p0(); kvsetup()
        ldW(1)
        if not OPT["xlate"]: ldX(2); ldX(3)
        if path == 2 and OPT["p0late"] == 2: p0(); kvsetup()
        stamp("a_iss")
        a(f"s_branch L_a1m{path}")
        section("main")
        a.label(f"L_a1m{path}")
        if path == 0: srd(rA, pX, 2048 * 2048)
        if path != 2: kvsetup()
        a(f"""s_lshl_b32 s{sSTG}, s{sW}, 13
          s_add_u32 s{sSTG}, s{sSTG}, {KVST}
          s_lshl_b32 s{sT0}, s{sW}, 7
          v_lshl_add_u32 v17, v2, 4, s{sT0}
          v_add_u32 v{vKG}, {GT}, v17
          v_lshrrev_b32 v16, 3, v0
          v_add_u32 v16, s{sR0}, v16
          v_and_b32 v17, 7, v0
          v_xor_b32 v17, v17, v2
          v_lshl_add_u32 v17, v17, 4, s{sT0}
          v_lshl_add_u32 v{vKX}, v16, 11, v17
          v_xor_b32 v16, 64, v{vKX}
          v_add_u32 v{vKX+1}, {16384-1024}, v16
          v_lshrrev_b32 v16, 1, v1
          v_xor_b32 v16, v16, v2
          v_lshlrev_b32 v16, 4, v16
          v_lshl_add_u32 v16, v1, 7, v16
          v_add_u32 v{vKR}, s{sSTG}, v16
          v_xor_b32 v{vKR+1}, 64, v{vKR}
          v_lshrrev_b32 v16, 4, v0
          v_and_b32 v16, 2, v16
          v_xor_b32 v16, v16, v0
          s_lshl_b32 s{sT0}, s{sW}, 12
          v_lshl_add_u32 v{vKW}, v16, 4, s{sT0}
          v_lshrrev_b32 v16, 2, v1
          v_lshl_add_u32 v16, v2, 3, v16
          v_and_b32 v17, 3, v1
          v_lshlrev_b32 v17, 3, v17
          v_lshl_add_u32 v16, v16, 6, v17
          v_and_b32 v17, 1, v2
          v_lshl_add_u32 v16, v17, 5, v16
          v_add_u32 v{vKT0}, s{sSTG}, v16
          v_xor_b32 v{vKT0+1}, 32, v{vKT0}""")
        for r in range(12): a(f"v_mov_b32 v{KAC+r}, 0")
        def konly(l_):
            lb = a.newlabel("L_ko")
            return [f"s_cmp_lg_u32 s{sISV}, 0\n s_cbranch_scc1 {lb}"] + l_ + [lb + ":"]
        def kvX(rho):
            if 'X' in OPT['kvskip']: return
            a(f"s_add_u32 m0, s{sSTG}, 6144\n s_movk_i32 s{sT0}, {rho*512}")
            for i in range(2):
                a.vm(f"buffer_load_dwordx4 v{vKX+i}, s[{rA}:{rA+3}], s{sT0} offen offset:{1024*i} lds", ("kw", rho))
        def kvW(rho, half):
            if 'W' in OPT['kvskip']: return
            if half: a.wait0(vm=False)
            a(f"s_add_u32 m0, s{sSTG}, {4096 if half else (rho%2)*2048}\n s_mov_b32 s{sT0}, {rho*16384 + half*2048}")
            for i in range(2):
                a.vm(f"buffer_load_dwordx4 v{vKW}, s[{rC}:{rC+3}], s{sT0} offen offset:{1024*i} lds", ("kw", rho))
        def kvR(rho):
            if 'R' in OPT['kvskip']: return
            a.wait(vm=("kw", rho))
            for i in range(2):
                for nt in range(2):
                    trickle.append([f"ds_read_b64_tr_b16 {vr(KWF+8*i+4*nt+2*e,2)}, v{vKT0+nt} offset:{(4096 if i else (rho%2)*2048)+e*256}" for e in range(2)])
            trickle.append([f"ds_read_b128 {vr(KXF+4*i,4)}, v{vKR+i} offset:6144" for i in range(2)])
            trickle.append(konly([f"ds_read_b128 {vr(KGF+4*i,4)}, v{vKG} offset:{512*rho+64*i}" for i in range(2)]))
        def kvM(rho):
            if 'M' in OPT['kvskip']: return
            a.wait0(vm=False)
            lv, ld = a.newlabel("L_kv"), a.newlabel("L_kd")
            a(f"s_cmp_lg_u32 s{sISV}, 0\n s_cbranch_scc1 {lv}")
            for i in range(2):
                for nt in range(2): mf16(KAC + 4 * nt, KWF + 8 * i + 4 * nt, KXF + 4 * i)
                mf16(KAC + 8, KGF + 4 * i, KXF + 4 * i)
            a(f"s_branch {ld}")
            a.label(lv)
            for i in range(2):
                for nt in range(2): mf16(KAC + 4 * nt, KXF + 4 * i, KWF + 8 * i + 4 * nt)
            a.label(ld)
        def kvP():
            if 'P' in OPT['kvskip']: return
            a(f"v_add_u32 v16, s{sSTG}, v{vKVD}\n s_nop 5")
            if OPT["pw"] == 128:
                for nt in range(2): trickle.append([f"ds_write_b128 v16, {vr(KAC+4*nt,4)} offset:{nt*1024}"])
            elif OPT["pw"] == 64:
                for k_ in range(4): trickle.append([f"ds_write_b64 v16, {vr(KAC+2*k_,2)} offset:{(k_//2)*1024+(k_%2)*8}"])
            elif OPT["pw"] == 32:
                for k_ in range(0, 8, 2): trickle.append([f"ds_write_b32 v16, v{KAC+k2} offset:{(k2//4)*1024+(k2%4)*4}" for k2 in (k_, k_ + 1)])
            trickle.append(konly([f"ds_write_b32 v16, v{KAC+8} offset:2048"]))
            if OPT["pb"]: trk(True)
            if OPT["pb"] > 1: a.wait0(vm=False)
        def kvF():
            if 'F' in OPT['kvskip']: return
            a(f"v_add_u32 v26, {KVST}, v{vKVD}")
            for w in range(3):
                a(f"ds_read_b128 {vr(32+8*w,4)}, v26 offset:{w*8192}\n ds_read_b128 {vr(36+8*w,4)}, v26 offset:{w*8192+1024}")
            a(f"""s_lshr_b32 s{sT3}, s{sR0}, 5
              s_lshl_b32 s{sT3}, s{sT3}, 12
              s_add_u32 s{sT3}, s{sT3}, {KV_OFF}
              s_bfe_u32 s{sT4}, s{sR0}, 0x10004
              s_cmp_eq_u32 s{sISV}, 0
              s_cselect_b32 s{sT0}, {f2u(32 ** -0.5 * math.log2(math.e))}, 1.0
              s_cselect_b32 s{sT2}, 10, 3
              s_cselect_b32 s{sT5}, 0, 2048
              s_cselect_b32 s{sT1}, 8, 1024
              s_lshl_b32 s{sT4}, s{sT4}, s{sT2}
              s_add_u32 s{sT3}, s{sT3}, s{sT4}
              s_add_u32 s{sT3}, s{sT3}, s{sT5}
              s_add_u32 s{sT4}, s{sT3}, s{sT1}
              s_waitcnt lgkmcnt(0)""")
            for r in range(8):
                a(f"v_add_f32 v{32+r}, v{32+r}, v{40+r}\n v_add_f32 v{48+r}, v{48+r}, v{KAC+r}\n v_add_f32 v{32+r}, v{32+r}, v{48+r}\n v_mul_f32 v{32+r}, s{sT0}, v{32+r}")
            for r in range(4): a(f"v_cvt_pk_bf16_f32 v{40+r}, v{32+2*r}, v{33+2*r}")
            for nt in range(2): a.vm(f"buffer_store_dwordx2 {vr(40+2*nt,2)}, v{vKVD}, s[{rWS}:{rWS+3}], s{sT3+nt} offen sc1", "pub")
        def kvF2():
            if 'F' in OPT['kvskip']: return
            a(f"s_mov_b32 s{sT0}, {OOB}\n v_lshlrev_b32 v20, 2, v0\n s_cmp_lg_u32 s{sISV}, 0\n s_cbranch_scc1 L_nogate")
            for w in range(3): a(f"ds_read_b32 v{64+w}, v26 offset:{w*8192+2048}")
            a(f"""s_lshl_b32 s{sT0}, s{sR0}, 2
              s_add_u32 s{sT0}, s{sT0}, {G_OFF}
              s_waitcnt lgkmcnt(0)
              v_add_f32 v64, v64, v65
              v_add_f32 v66, v66, v{KAC+8}
              v_add_f32 v64, v64, v66
              v_mul_f32 v64, {f2u(-math.log2(math.e))}, v64
              v_exp_f32 v64, v64
              s_nop 0
              v_add_f32 v64, 1.0, v64
              v_rcp_f32 v64, v64""")
            a.label("L_nogate")
            a("s_mov_b64 exec, 0xffff")
            a.vm(f"buffer_store_dword v64, v20, s[{rWS}:{rWS+3}], s{sT0} offen sc1", "pub"); a("s_mov_b64 exec, -1")
        def kvA():
            a(f"""s_lshl_b32 s{sT0}, s{sRB}, 4
              s_add_u32 s{sT0}, s{sT0}, s{sCB}
              s_lshl_b32 s{sT0}, s{sT0}, 2
              s_add_u32 s{sT0}, s{sT0}, {KF_OFF}
              v_mov_b32 v16, 1
              v_mov_b32 v17, 0""")
            a.wait(vm="pub")
            a("s_mov_b64 exec, 1"); a.vm(f"buffer_store_dword v16, v17, s[{rWS}:{rWS+3}], s{sT0} offen sc1"); a("s_mov_b64 exec, -1")
        def clr():
            a(f"""s_and_b32 s{sT0}, s2, 0xc1
              s_cbranch_scc1 L_noclr
              s_lshl_b32 s{sT0}, s2, 11
              s_add_u32 s{sT0}, s{sT0}, {FL_OFF}
              s_lshl_b32 s{sT1}, s2, 4
              s_add_u32 s{sT1}, s{sT1}, {KF_OFF}
              v_lshrrev_b32 v16, 1, v0
              v_and_b32 v17, 1, v0
              v_lshlrev_b32 v17, 4, v17
              v_lshl_add_u32 v16, v16, 7, v17
              buffer_store_dwordx4 v[{KAC}:{KAC+3}], v16, s[{rWS}:{rWS+3}], s{sT0} offen sc1
              s_mov_b64 exec, 3
              buffer_store_dwordx4 v[{KAC}:{KAC+3}], v16, s[{rWS}:{rWS+3}], s{sT1} offen sc1
              s_mov_b64 exec, -1""")
            a.label("L_noclr")
        def clrdone():
            a(f"""s_and_b32 s{sT0}, s2, 0xc1
              s_cbranch_scc1 L_noclr2
              s_waitcnt vmcnt(0)
              s_lshl_b32 s{sT0}, s2, 1
              v_mov_b32 v16, 1
              v_mov_b32 v17, 0
              s_mov_b64 exec, 1
              buffer_store_dword v16, v17, s[{rDBG}:{rDBG+3}], s{sT0} offen sc1
              s_mov_b64 exec, -1""")
            a.label("L_noclr2")
        def kvPoll0a():
            a(f"v_and_b32 v19, 31, v0\n v_lshlrev_b32 v19, 2, v19"); a.vm(f"buffer_load_dword v18, v19, s[{rDBG}:{rDBG+3}], 0 offen sc1", "p0")
        def kvPoll0():
            a(f"s_mov_b32 s{sT1}, {SPIN_MAX}")
            a.wait(vm="p0")
            a.label("L_poll0")
            a(f"""v_cmp_ne_u32 vcc, 1, v18
              s_sub_u32 s{sT1}, s{sT1}, 1
              s_cbranch_vccz L_poll0x
              s_sleep 16
              buffer_load_dword v18, v19, s[{rDBG}:{rDBG+3}], 0 offen sc1
              s_waitcnt vmcnt(0)
              s_cmp_lg_u32 s{sT1}, 0
              s_cbranch_scc1 L_poll0""")
            a.label("L_poll0x")
        def kvPoll1a():
            a(f"s_mov_b32 s{sT3}, {KF_OFF}"); a.vm(f"buffer_load_dwordx4 v[20:23], v{vKVD}, s[{rWS}:{rWS+3}], s{sT3} offen sc1", "p1")
        def kvPoll1():
            a(f"s_mov_b32 s{sT1}, {SPIN_MAX}")
            a.wait(vm="p1")
            a.label("L_poll1")
            a(f"""v_and_b32 v20, v20, v21
              v_and_b32 v22, v22, v23
              v_and_b32 v20, v20, v22
              v_cmp_ne_u32 vcc, 1, v20
              s_sub_u32 s{sT1}, s{sT1}, 1
              s_cbranch_vccz L_poll1x
              s_sleep 16
              buffer_load_dwordx4 v[20:23], v{vKVD}, s[{rWS}:{rWS+3}], s{sT3} offen sc1
              s_waitcnt vmcnt(0)
              s_cmp_lg_u32 s{sT1}, 0
              s_cbranch_scc1 L_poll1""")
            a.label("L_poll1x")
        def kvD(c):
            if c == 0:
                a(f"s_add_u32 s{rE}, s{pWS}, {KV_OFF}\n s_addc_u32 s{rE+1}, s{pWS+1}, 0\n s_mov_b32 s{rE+2}, 0x40000\n s_mov_b32 s{rE+3}, 0x20000")
                a(f"s_lshl_b32 s{sIT}, s{sW}, 12")
            a(f"s_add_u32 m0, s{sIT}, {KVR + ((c+2)%4)*16384}\n s_add_u32 s{sT0}, s{sIT}, {c*16384}")
            for i in range(4):
                a.vm(f"buffer_load_dwordx4 v{vKVD}, s[{rE}:{rE+3}], s{sT0} offen offset:{1024*i} sc1 lds", ("kv", c))
        def kvDr(c):
            a(f"s_add_u32 s{sT0}, s{sIT}, {c*16384}")
            for i in range(4):
                a.vm(f"buffer_load_dwordx4 {vr(KVREG+16*(c-4)+4*i,4)}, v{vKVD}, s[{rE}:{rE+3}], s{sT0} offen offset:{1024*i} sc1", ("kv", c))
        def ldG():
            a(f"""s_lshl_b32 s{sT1}, s{sRB}, 9
              s_lshl_b32 s{sT2}, s{sW}, 7
              s_add_u32 s{sT1}, s{sT1}, s{sT2}
              s_add_u32 s{sT1}, s{sT1}, {G_OFF}
              v_lshlrev_b32 v22, 2, v1""")
            for h in range(2): a.vm(f"buffer_load_dword v{vG+h}, v22, s[{rWS}:{rWS+3}], s{sT1} offen offset:{64*h} sc1")
        def low(f):
            return (lambda: (a("s_setprio 0"), f(), a("s_setprio 1"))) if OPT["lowv"] else f
        post = {k: [] for k in range(33)}; pre = {k: [] for k in range(33)}; mid = {k: [] for k in range(33)}
        if not OPT["nokv"]:
            for rho in range(4):
                pre[3*rho+5].append(lambda rho=rho: kvR(rho)); mid[3*rho+6].append(lambda rho=rho: kvM(rho))
                post[3*rho+3].append(lambda rho=rho: kvX(rho))
                post[3*rho+1].append(lambda rho=rho: kvW(rho, 0)); post[3*rho+2].append(lambda rho=rho: kvW(rho, 1))
            if path < 2: pre[16].append(kvP); post[16].append(lambda: a.wait0(vm=False))
            if path == 2:
                post[0] += [clr]; pre[7].append(clrdone); post[3].append(lambda: a.wait(vm="gt"))
                post[17] += [low(kvF)]; post[18] += [low(kvF2)]; pre[18] += [kvPoll0a]; post[20] += [kvPoll0, kvA]; pre[26].append(kvPoll1a); post[27].append(kvPoll1)
            for k_ in range(4): mid[22 + k_].append(low(lambda k_=k_: attention_setup(k_)))
            post[28].append(ldG)
            for c in range(4): post[28 + c].append(lambda c=c: kvD(c))
            for c in range(OPT["kvreg"]): post[30 + c].append(lambda c=c: kvDr(4 + c))
        stamp("a_set")
        for s_ in range(32):
            a.wait(vm=[("W", s_), ("X", s_ // 2)])
            if s_ == 0: stamp("a_w0")
            if s_ == 30:
                if path < 2: a("s_branch L_a1done"); break
                a.label("L_a1done")
                a.vmq[:] = [("W", 31)] + [("kv", 1)] * 4
            a("s_barrier")
            if s_ == 0: stamp("a_b0")
            if s_ in (8, 16, 24): stamp(f"a_{s_}")
            if OPT["steps"] and path == 2 and s_ < 30:
                a("s_memtime s[98:99]"); a.wait0(vm=False); a(f"v_writelane_b32 v200, s98, {s_}")
                if s_ == 29:
                    a(f"s_lshl_b32 s98, s2, 8\n s_add_u32 s98, s98, {TS_OFF+0x10000}\n v_lshlrev_b32 v201, 2, v0\n buffer_store_dword v200, v201, s[{rWS}:{rWS+3}], s98 offen")
            for f in pre[s_]: f()
            if OPT["xlate"] and s_ == 0: ldX(2); ldX(3)
            midf = lambda: [f() for f in mid[s_]]
            if s_ + 2 < 32 and not OPT["nodma"]: ldW(s_ + 2, midf)
            if path != 0: midf()
            if OPT["xlate"] and s_ < 2:
                if s_ == 1: ldX(4); ldX(5)
            elif s_ + 4 < 32 and not OPT["nodma"]: ldX(s_ + 4)
            trk(True)
            for f in post[s_]: f()
            pfs(s_)
    a.wait(vm=[("kv", 1)])
    a.vmq[:] = [("kv", 2)] * 4 + [None if OPT["kvreg"] else ("kv", 3)] * 4
    a("s_barrier")
    attention_setup(4)
    a("s_barrier")

QF, OA, LA, SB, PB, KF, VF, ONES = 32, 48, 80, 88, 120, 136, 152, 168
vKc, vKn, vSy, vOne, vCnt, vIdx, vQa, vSt = 248, 249, 251, 252, 20, 172, 173, 174
vD, vDW = 240, 244
def wtile_offsets(dst):
    a(f"""v_lshrrev_b32 v22, 3, v0
      v_lshlrev_b32 v22, 11, v22
      v_and_b32 v23, 1, v2
      v_lshlrev_b32 v23, 2, v23
      v_and_b32 v24, 7, v0
      v_xor_b32 v23, v23, v24
      v_lshl_add_u32 v22, v23, 4, v22
      s_lshl_b32 s{sT0}, s{sCB2}, 7
      v_add_u32 v22, s{sT0}, v22""")
    for i in range(4): a(f"v_xor_b32 v23, {32*(i%2)}, v22\n v_add_u32 v{dst+i}, {i*16384-i*1024}, v23")
def lsum(t, P):
    a(f"v_smfmac_f32_16x16x64_bf16 {vr(LA+4*t,4)}, {vr(ONES,4)}, {vr(P,8)}, v{vIdx}")
sKo, sCn, sDo, sMb, sDs, sO0, sO1 = sA, sB, sC, sD, sE, sF, sG
def attention_setup(part):
    if part == 0: wtile_offsets(vDW)
    if part == 1:
        a(f"""s_lshl_b32 s{sT0}, s{sW}, 12
          s_add_u32 s{sT1}, s{sT0}, {QX}
          v_lshl_add_u32 v{vQa}, v0, 4, s{sT1}
          v_add_u32 v{vKc}, {KVR}, v{vKVD}
          v_mov_b32 v{vKn}, {SYNC}
          v_xor_b32 v22, v1, v2
          v_and_b32 v22, {14 if OPT['row4'] else 2}, v22
          v_mov_b32 v23, 0x3f803f80
          v_cmp_eq_u32 vcc, 0, v22
          v_lshl_add_u32 v{vSy}, v0, 2, v{vKn}
          v_sub_u32 v{vOne}, 1, v0
          v_max_i32 v{vOne}, 0, v{vOne}
          v_cndmask_b32 v{ONES}, 0, v23, vcc
          v_cndmask_b32 v{ONES+1}, 0, v23, vcc
          v_cndmask_b32 v{ONES+2}, 0, v23, vcc
          v_cndmask_b32 v{ONES+3}, 0, v23, vcc
          v_and_b32 v22, 1, v1
          v_mul_u32_u24 v22, 0xaaaa, v22
          v_or_b32 v{vIdx}, 0x4444, v22""")
    if part == 2:
        a(f"""v_and_b32 v22, 1, v2
          v_lshlrev_b32 v22, 9, v22
          v_lshrrev_b32 v23, 1, v2
          v_lshl_add_u32 v22, v23, 8, v22
          v_lshl_add_u32 v{vSt}, v1, 4, v22""")
        for r in range(4): a(f"v_mov_b32 v{vD+r}, v{vKVD}")
        for r in list(range(PB + 8, PB + 16, 2)) + list(range(VF + 8, VF + 16, 2)) + [SB + 30]: a(f"v_mov_b64 {vr(r,2)}, 0")
    if part == 3:
        for r in range(OA, OA + 40, 2): a(f"v_mov_b64 {vr(r,2)}, 0")
    if part == 4:
        a(f"""s_lshl_b32 s{sT0}, s{sW}, 12
          s_mov_b32 s{sCn}, 4
          s_add_u32 s{sDo}, s{sT0}, {3*16384}
          s_mov_b32 s{sDs}, 16384
          s_mov_b32 s{sKo}, 16384
          s_add_u32 s{sMb}, s{sT0}, {KVR}
          s_mul_i32 s{sO0}, s{sRB}, {RBSZ}
          s_lshl_b32 s{sT1}, s{sQB}, 14
          s_add_u32 s{sO0}, s{sO0}, s{sT1}
          s_lshl_b32 s{sT1}, s{sW}, 11
          s_add_u32 s{sO0}, s{sO0}, s{sT1}
          s_add_u32 s{sO0}, s{sO0}, {112*8192}
          s_add_u32 s{sO1}, s{sO0}, 8192
          s_mov_b32 s{sIT}, 0""")
def attention():
    qf = lambda t, s_: QF + 8 * t + 4 * s_
    kvo = lambda T: ((T // 4 + 2) % 4) * 16384 + (T % 4) * 4096
    def rdK(T):
        for s_ in range(2): a.lg(f"ds_read_b128 {vr(KF+8*(T%2)+4*s_,4)}, v{vKc} offset:{kvo(T)+1024*s_}", ("K", T))
    def rdV(T):
        for u in range(2): a.lg(f"ds_read_b128 {vr(VF+8*(T%2)+4*u,4)}, v{vKc} offset:{kvo(T)+2048+1024*u}", ("V", T))
    for i in range(2): a.lg(f"ds_read_b128 {vr(QF+4*i,4)}, v{vQa} offset:{1024*i}")
    rdK(0)
    for i in range(2, 4): a.lg(f"ds_read_b128 {vr(QF+4*i,4)}, v{vQa} offset:{1024*i}")
    rdV(0); rdK(1)
    a.wait(lg=("K", 0))
    for k_ in range(4): mf16(SB + 4 * k_, KF + 4 * (k_ % 2), qf(0, k_ // 2), "0")
    a.wait(lg=("V", 0))
    a("s_nop 3")
    a.raw(".p2align 3")
    a.label("L_att")
    def slot(n, hooks):
        T, t = divmod(n, 2); n1 = n + 1; T1, t1 = divmod(n1, 2); Tp, tp = divmod(n - 1, 2)
        S = SB + 16 * (n % 2); S1 = SB + 16 * (n1 % 2)
        P = PB + 8 * (n % 2); Pp = PB + 8 * ((n - 1) % 2)
        e = lambda i: a(f"v_exp_f32 v{S+i}, v{S+i}")
        c = lambda i: a(f"v_cvt_pk_bf16_f32 v{P+i}, v{S+2*i}, v{S+2*i+1}")
        h = lambda k: [f() for f in hooks.get(k, [])]
        ne = nc = 0
        for ch in OPT["pat"]:
            if ch == "e": e(ne); ne += 1
            elif ch == "c": assert ne >= 2 * nc + 2; c(nc); nc += 1
            elif ch == "p": a(f"v_cvt_pk_bf16_f32 v{Pp+7}, v{S1+14}, v{S1+15}")
            elif ch == "w": a.wait(lg=[("K", T + 1) if t == 0 else ("V", T + 1), "cnt"], vm=hooks.get("vm", ()))
            elif ch in "qrst":
                k_ = "qrst".index(ch); mf16(S1 + 4 * k_, KF + 8 * (T1 % 2) + 4 * (k_ % 2), qf(t1, k_ // 2), "0")
            elif ch in "uv": k_ = "uv".index(ch); mf16(OA + 16 * tp + 8 + 4 * k_, VF + 8 * (Tp % 2) + 4 * k_, Pp + 4)
            elif ch in "xy": k_ = "xy".index(ch); assert nc >= 4; mf16(OA + 16 * t + 4 * k_, VF + 8 * (T % 2) + 4 * k_, P)
            elif ch == "S": lsum(tp, Pp)
            else: h(int(ch))
        assert ne == 16 and nc == 8 - ("p" in OPT["pat"])
        pt = OPT["pat"]; assert pt.index("4") > max(pt.find(x) for x in "BCwtv")
    def body(it):
        for cc in range(4):
            c_ = 4 * it + cc
            for k in range(8):
                n = 8 * c_ + k; T, t = divmod(n, 2)
                hk = {4: [lambda: rdV(T + 1) if t == 0 else rdK(T + 2)]}
                KA = OPT["arrk"]
                if k == KA:
                    hk["vm"] = ("kv", c_ + 1); hk[4].append(lambda: a.lg(f"ds_add_u32 v{vSy}, v{vOne}"))
                if k == 2:
                    hk[0] = [lambda: a(f"s_add_u32 m0, s{sMb}, {((c_+1)%4)*16384}")]
                    if cc == 1: hk[1] = [lambda: a(f"s_cmp_eq_u32 s{sIT}, 3")]; hk[2] = [lambda: (a("s_cbranch_scc1 L_attwo"), a.label("L_attwo_r"))]
                if k == 3: hk[4].append(lambda: a.lg(f"ds_read_b32 v{vCnt}, v{vKn}", "cnt"))
                if k == 4: hk[5] = [lambda: a(f"v_cmp_gt_u32 vcc, s{sCn}, v{vCnt}")]
                pre_ = cc <= OPT["kvreg"]
                if k == 5:
                    hk[0] = [lambda: (a(f"s_cbranch_vccnz L_attspin{cc}"), a.label(f"L_attgo{cc}"))]
                    hk[1] = [lambda: a(f"s_add_u32 s{sCn}, s{sCn}, 4")]
                    if pre_: hk[2] = [lambda: a(f"s_cmp_eq_u32 s{sIT}, 0")]
                if k in (5, 6):
                    def dma(i):
                        if OPT["anodma"]: return
                        if pre_: a(f"s_cbranch_scc1 L_{'no' if cc == 0 else 'reg'}dma{cc}_{i}")
                        for k2 in (i, i + 1):
                            t_ = f"buffer_load_dwordx4 v{vD+k2}, s[{rE}:{rE+3}], s{sDo} offen offset:{1024*k2} sc1 lds"
                            a.vm(t_, ("kv", c_ + 3)) if c_ > OPT["kvreg"] else a(t_)
                        if pre_: a.label(f"L_nodma{cc}_{i}")
                    hk[4].append(lambda: dma(2 * (k - 5)))
                if k == 7:
                    hk[0] = [lambda: a(f"s_add_u32 s{sDo}, s{sDo}, s{sKo if cc == 1 else sDs}")]
                    if cc == 3: hk[1] = [lambda: a(f"s_add_u32 s{sIT}, s{sIT}, 1")]; hk[2] = [lambda: a(f"s_cmp_lt_u32 s{sIT}, 4")]
                slot(n, hk)
        a("s_cbranch_scc1 L_att")
    a.loop(body, "att", 3)
    a("s_nop 0")
    if "p" in OPT["pat"]: a(f"v_cvt_pk_bf16_f32 v{PB+15}, v{SB+30}, v{SB+31}\n s_nop 1")
    lsum(1, PB + 8); mf16(OA + 24, VF + 8, PB + 12); mf16(OA + 28, VF + 12, PB + 12)
    stamp("a_att")
    a(f"s_mov_b32 s{sIT}, 0")
    a.label("L_attfin")
    def fin(k):
        T_ = SB + 4 * k
        a(f"v_permlane16_swap_b32 v{T_}, v{T_+2}\n v_permlane16_swap_b32 v{T_+1}, v{T_+3}")
        a(f"buffer_store_dwordx4 {vr(T_,4)}, v{vSt}, s[{rWS}:{rWS+3}], s{sO0+k//2} offen offset:{1024*(k%2)} sc1")
    if OPT["row4"]:
        a("s_nop 7")
        for k in range(4): a(f"v_add_f32 v{24+k}, v{LA+2*k}, v{LA+2*k+1}")
        for sw in ("16", "32"):
            for k in range(4): a(f"v_mov_b32 v{28+k}, v{24+k}")
            if sw == "32": a("s_nop 0")
            for k in range(4): a(f"v_permlane{sw}_swap_b32 v{24+k}, v{28+k}")
    for k in range(4):
        if not OPT["row4"]: a(f"v_add_f32 v{24+k}, v{LA+2*k}, v{LA+2*k+1}")
        else: a("s_nop 0")
        a(f"v_rcp_f32 v22, v{24+k}")
        if k: fin(k - 1)
        else: a("s_nop 0")
        a(f"v_mul_f32 v22, v22, v{vG+k%2}")
        for r in range(4):
            d = OA + 8 * k + 2 * r
            a(f"v_mul_f32 v{d}, v{d}, v22\n v_mul_f32 v{d+1}, v{d+1}, v22\n v_cvt_pk_bf16_f32 v{SB+4*k+r}, v{d}, v{d+1}")
    a("s_nop 1"); fin(3)
    a(f"s_cmp_lg_u32 s{sIT}, 0\n s_cbranch_scc1 L_attok")
    a(f"s_waitcnt vmcnt(4) lgkmcnt(0)\n ds_add_u32 v{vSy}, v{vOne} offset:12")
    a(f"s_mov_b32 s{sT0}, {f2u(2.0**-40)}\n s_mov_b32 s{sT1}, {f2u(2.0**100)}\n v_max3_f32 v28, v24, v25, v26\n v_max_f32 v28, v28, v27\n v_mov_b32 v29, 0")
    for r in list(range(OA, OA + 32, 2)) + [24, 26]: a(f"v_pk_fma_f32 v[28:29], {vr(r,2)}, 0, v[28:29]")
    a(f"""v_add_f32 v28, v28, v29
      v_min3_f32 v29, v24, v25, v26
      v_min_f32 v29, v29, v27
      v_cmp_nle_f32 vcc, v28, s{sT1}
      v_cmp_nge_f32 s[{sT2}:{sT3}], v29, s{sT0}
      s_or_b64 vcc, vcc, s[{sT2}:{sT3}]""")
    if OPT["forceslow"]: a("s_branch L_slow")
    a("s_cbranch_vccnz L_slow")
    a.label("L_attok")
    setflag(1)
    stamp("a_end")
    if OPT["padto"]:
        a("s_barrier\n s_barrier" if OPT["ebar"] else "s_barrier")
        a.label("L_pad2")
        a(f"s_memrealtime s[98:99]\n s_waitcnt lgkmcnt(0)\n s_sleep 8\n s_sub_u32 s98, s98, s96\n s_cmp_lt_u32 s98, {OPT['padto']}\n s_cbranch_scc1 L_pad2")
    dump_ts_and_end()
    a.label("L_attwo")
    srd(rE, pWO, 1024 * 2048)
    a(f"s_lshl_b32 s{sDo}, s{sW}, 17\n s_add_u32 s{sDo}, s{sDo}, {524288+65536}\n s_mov_b32 s{sDs}, 65536\n s_mov_b32 s{sKo}, {2*524288-65536}")
    a(f"v_mov_b64 {vr(vD,2)}, {vr(vDW,2)}\n v_mov_b64 {vr(vD+2,2)}, {vr(vDW+2,2)}\n s_branch L_attwo_r")
    for cc in range(1, OPT["kvreg"] + 1):
        for i in (() if OPT["anodma"] else (0, 2)):
            a.label(f"L_regdma{cc}_{i}")
            if i == 0: a(f"s_waitcnt vmcnt(0)\n v_add_u32 v22, s{sMb}, v{vKVD}")
            for k2 in (i, i + 1): a(f"ds_write_b128 v22, {vr(KVREG+16*(cc-1)+4*k2,4)} offset:{((cc+1)%4)*16384+1024*k2}")
            a(f"s_branch L_nodma{cc}_{i}")
    for cc in range(4):
        a.label(f"L_attspin{cc}")
        a(f"s_mov_b32 s{sT2}, {SPIN_MAX}")
        a.label(f"L_attspin{cc}b")
        a(f"""ds_read_b32 v{vCnt}, v{vKn}
          s_waitcnt lgkmcnt(0)
          v_cmp_gt_u32 vcc, s{sCn}, v{vCnt}
          s_sub_u32 s{sT2}, s{sT2}, 1
          s_cbranch_vccz L_attgo{cc}
          s_cmp_lg_u32 s{sT2}, 0
          s_cbranch_scc1 L_attspin{cc}b
          s_branch L_attgo{cc}""")
    a.label("L_slow")
    NM = 176
    a(f"s_add_u32 s{rE}, s{pWS}, {KV_OFF}\n s_addc_u32 s{rE+1}, s{pWS+1}, 0\n s_mov_b32 s{rE+2}, 0x40000\n s_mov_b32 s{rE+3}, 0x20000")
    a(f"s_waitcnt vmcnt(0) lgkmcnt(0)\n s_mov_b32 s{sT0}, 0\n s_mov_b32 s{sIT}, 1")
    for k in range(4): a(f"v_mov_b32 v{24+k}, 0xff800000")
    a.label("L_slow1")
    a(f"buffer_load_dwordx4 {vr(KF,4)}, v{vKVD}, s[{rE}:{rE+3}], s{sT0} offen sc1\n buffer_load_dwordx4 {vr(KF+4,4)}, v{vKVD}, s[{rE}:{rE+3}], s{sT0} offen offset:1024 sc1\n s_waitcnt vmcnt(0)")
    for k in range(8): mf16(SB + 4 * k, KF + 4 * (k % 2), QF + 4 * (k // 2), "0")
    a("s_nop 7")
    for k in range(4):
        for r in range(0, 8, 2): a(f"v_max3_f32 v{24+k}, v{SB+8*k+r}, v{SB+8*k+r+1}, v{24+k}")
    a(f"s_add_u32 s{sT0}, s{sT0}, 4096\n s_cmp_lt_u32 s{sT0}, 0x40000\n s_cbranch_scc1 L_slow1")
    for sw in ("16", "32"):
        for k in range(4): a(f"v_mov_b32 v{28+k}, v{24+k}")
        a("s_nop 1")
        for k in range(4): a(f"v_permlane{sw}_swap_b32 v{24+k}, v{28+k}")
        for k in range(4): a(f"v_max_f32 v{24+k}, v{24+k}, v{28+k}")
    for k in range(4):
        for r in range(4): a(f"v_sub_f32 v{NM+4*k+r}, 0, v{24+k}")
    for r in range(OA, OA + 40, 2): a(f"v_mov_b64 {vr(r,2)}, 0")
    a(f"s_mov_b32 s{sT0}, 0")
    a.label("L_slow2")
    for i in range(4):
        a(f"buffer_load_dwordx4 {vr(KF+4*i,4)}, v{vKVD}, s[{rE}:{rE+3}], s{sT0} offen offset:{1024*i} sc1")
    a("s_waitcnt vmcnt(0)")
    for k in range(8): mf16(SB + 4 * k, KF + 4 * (k % 2), QF + 4 * (k // 2), vr(NM + 4 * (k // 2), 4))
    a("s_nop 7")
    for r in range(32): a(f"v_exp_f32 v{SB+r}, v{SB+r}")
    a("s_nop 0")
    for r in range(16): a(f"v_cvt_pk_bf16_f32 v{PB+r}, v{SB+2*r}, v{SB+2*r+1}")
    a("s_nop 1")
    for k in range(8): mf16(OA + 4 * k, KF + 8 + 4 * (k % 2), PB + 4 * (k // 2))
    for t in range(2): lsum(t, PB + 8 * t)
    a(f"s_add_u32 s{sT0}, s{sT0}, 4096\n s_cmp_lt_u32 s{sT0}, 0x40000\n s_cbranch_scc1 L_slow2")
    a("s_nop 7\n s_nop 3\n s_branch L_attfin")

def setflag(which):
    if which == 0: a(f"s_lshr_b32 s{sT1}, s{sCB}, 2\n s_and_b32 s{sT2}, s{sCB}, 3")
    else: a(f"s_and_b32 s{sT1}, s{sQB}, 3\n s_and_b32 s{sT2}, s{sQB}, 12\n s_lshr_b32 s{sT2}, {sum(k << (4 * g) for k, g in enumerate(GRP))}, s{sT2}\n s_and_b32 s{sT2}, s{sT2}, 3")
    a(f"""s_lshl_b32 s{sT0}, s{sRB}, 13
      s_lshl_b32 s{sT1}, s{sT1}, 7
      s_add_u32 s{sT0}, s{sT0}, s{sT1}
      s_lshl2_add_u32 s{sT0}, s{sT2}, s{sT0}
      s_add_u32 s{sT0}, s{sT0}, {FL_OFF+16*which}
      v_mov_b32 v17, {SYNC+4+4*which}
      v_mov_b32 v15, 1""")
    if which == 0:
        if OPT["noack"] < 2: a.wait(vm="hst")
    elif OPT["noack"] & 1: a("s_waitcnt vmcnt(4)")
    else: a.wait0(lg=False)
    l = a.newlabel("L_nofl")
    a(f"""s_mov_b64 exec, 1
      ds_add_rtn_u32 v16, v17, v15
      s_mov_b64 exec, 0xffff
      v_lshlrev_b32 v17, 9, v0
      s_waitcnt lgkmcnt(0)
      v_readfirstlane_b32 s{sT1}, v16
      s_cmp_eq_u32 s{sT1}, 3
      s_cbranch_scc0 {l}
      buffer_store_dword v15, v17, s[{rWS}:{rWS+3}], s{sT0} offen {OPT['sfl'].replace('_', ' ')}""")
    a.label(l)
    a("s_mov_b64 exec, -1")
    a.lgq.clear()
def mbox(which):
    a(f"""s_lshl_b32 s{sT0}, s{sRB2}, 4
      s_add_u32 s{sT0}, s{sT0}, s{sCB2}
      s_lshl_b32 s{sT0}, s{sT0}, 2
      s_add_u32 s{sT0}, s{sT0}, s{sW}
      s_lshl_b32 s{sT0}, s{sT0}, 7
      s_add_u32 s{sT0}, s{sT0}, {FL_OFF+16*which}
      v_and_b32 v15, 3, v0
      v_lshlrev_b32 v15, 2, v15""")
def waitflag(which, name):
    mbox(which)
    a(f"s_mov_b32 s{sT1}, {SPIN_MAX}\n s_mov_b64 exec, 15")
    a.label(name)
    a(f"""buffer_load_dword v17, v15, s[{rWS}:{rWS+3}], s{sT0} offen {OPT['pfl'].replace('_', ' ')}
      s_waitcnt vmcnt(0)
      v_cmp_ne_u32 vcc, 1, v17
      s_sub_u32 s{sT1}, s{sT1}, 1
      s_cbranch_vccz {name}_x
      s_sleep {OPT['slp']}
      s_cmp_lg_u32 s{sT1}, 0
      s_cbranch_scc1 {name}""")
    a.label(name + "_x")
    a("s_mov_b64 exec, -1")
def waitlds(off, val, name, va=15):
    a(f"s_mov_b32 s{sT1}, {SPIN_MAX}\n v_mov_b32 v{va}, {SYNC+off}")
    a.label(name)
    a(f"""ds_read_b32 v17, v{va}
      s_waitcnt lgkmcnt(0)
      v_readfirstlane_b32 s{sT0}, v17
      s_cmp_ge_u32 s{sT0}, {val}
      s_cbranch_scc1 {name}_x
      s_sleep 2
      s_sub_u32 s{sT1}, s{sT1}, 1
      s_cmp_lg_u32 s{sT1}, 0
      s_cbranch_scc1 {name}""")
    a.label(name + "_x")

ACC2, HR, WF = 128, 64, 32
acc2 = lambda rt, nt: ACC2 + (rt * 4 + nt) * 4
vWD, vWR, vH, vGM = 3, 7, 11, 16
sWo, sHo, sMw, sRdy = sC, sD, sE, sF
def g2_vsetup():
    wtile_offsets(vWD)
    a(f"""s_lshl_b32 s{sT0}, s{sW}, 14
      v_lshrrev_b32 v14, 2, v1
      v_lshl_add_u32 v14, v2, 3, v14
      v_and_b32 v15, 3, v1
      v_lshlrev_b32 v15, 3, v15
      v_lshl_add_u32 v14, v14, 7, v15
      v_and_b32 v15, 1, v2
      v_lshrrev_b32 v30, 3, v1
      v_lshl_add_u32 v15, v30, 1, v15
      v_lshl_add_u32 v14, v15, 5, v14
      v_add_u32 v14, s{sT0}, v14""")
    for nt in range(4): a(f"v_xor_b32 v{vWR+nt}, {32*nt}, v14")
    for p in range(4):
        a(f"s_add_u32 s{sT0}, s{sW}, {p+1}\n s_and_b32 s{sT0}, s{sT0}, 3\n s_lshl_b32 s{sT0}, s{sT0}, 11\n v_lshl_add_u32 v{vH+p}, v0, 4, s{sT0}")
def g2_setup():
    srd(rB, pW2, 3584 * 2048)
    a(f"s_lshl_b32 s{sMw}, s{sW}, 14\n s_mul_i32 s{sWo}, s{sW}, {896*2048}")
def dmaW(i, k):
    if k == 0: a(f"s_add_u32 m0, s{sMw}, {(i%4)*4096}\n s_nop 0")
    a.vm(f"buffer_load_dwordx4 v{vWD+k}, s[{rB}:{rB+3}], s{sWo} offen offset:{1024*k} lds", ("W2", i // 2))
    if k == 3: a(f"s_add_u32 s{sWo}, s{sWo}, 65536")
def g_phase2():
    sHp, sMbx, sOb, sDl = sB, 4, 5, 6
    vPo = 29
    def ldH(i, rt):
        a.vm(f"buffer_load_dwordx4 {vr(HR+32*(i%2)+4*rt,4)}, v{vH+rt//2}, s[{rWS}:{rWS+3}], s{sHp if i % 2 else sHo} offen offset:{1024*(rt%2)} sc1", ("H", i // 2, rt // 2))
    WOFF = {32: 0, 33: 49152, 34: 49152, 35: 0}
    def rdW2(i, nt, e):
        a.lg(f"ds_read_b64_tr_b16 {vr(WF+16*(i%2)+4*nt+2*e,2)}, v{vWR+nt} offset:{WOFF.get(i, (i%4)*4096)+512*e}", ("W2", i // 2, nt))
    setflag(0)
    stamp("g_flag")
    if OPT["nog2"]: dump_ts_and_end()
    a(f"""s_mul_i32 s{sHo}, s{sRB2}, {RBSZ}
      s_mul_i32 s{sT1}, s{sW}, {28*8192}
      s_add_u32 s{sHo}, s{sHo}, s{sT1}
      s_lshl_b32 s{sT2}, s{sRB2}, 9
      s_add_u32 s{sT2}, s{sT2}, {G_OFF}
      v_lshlrev_b32 v15, 2, v1""")
    for p in range(4):
        a(f"""s_add_u32 s{sT0}, s{sW}, {p+1}
          s_and_b32 s{sT0}, s{sT0}, 3
          s_lshl_b32 s{sT0}, s{sT0}, 7
          s_add_u32 s{sT0}, s{sT0}, s{sT2}""")
        for h in range(2): a(f"buffer_load_dword v{vGM+4*p+2*h}, v15, s[{rWS}:{rWS+3}], s{sT0} offen offset:{64*h} sc1")
    if OPT["ev2"]: a(f"s_lshl_b32 s{sT0}, s{sW}, 8\n s_add_u32 s{sT0}, s{sT0}, s2")
    else: a(f"s_lshl_b32 s{sT0}, s2, 1\n s_add_u32 s{sT0}, s{sT0}, s{sW}\n s_add_u32 s{sT1}, s2, 512\n s_cmp_eq_u32 s{sW}, 2\n s_cselect_b32 s{sT0}, s{sT1}, s{sT0}")
    a(f"""
      s_lshr_b32 s{sG}, s{sT0}, 7
      s_bfe_u32 s{sT1}, s{sT0}, 0x20005
      s_mul_i32 s{sT1}, s{sT1}, {896*2048}
      s_and_b32 s{sT0}, s{sT0}, 31
      s_lshl_b32 s{sT0}, s{sT0}, 13
      s_add_u32 s{sT0}, s{sT0}, s{sT1}
      s_add_u32 s{sT1}, s{sG}, 2
      s_lshl_b32 s{sT1}, s{sT1}, 18
      s_add_u32 s{sT0}, s{sT0}, s{sT1}
      s_cmp_eq_u32 s{sG}, 5
      s_cselect_b32 s{sG}, -1, s{sG}
      s_lshl_b32 s{sT1}, s2, 13
      s_and_b32 s{sT2}, s{sI}, 1
      s_cmp_eq_u32 s{sW}, 3
      s_cselect_b32 s{sA}, s{sT1}, s{sT0}
      s_cselect_b32 s{sG}, s{sT2}, s{sG}
      s_cselect_b32 s{rPF}, s{pWO}, s{pW2}
      s_cselect_b32 s{rPF+1}, s{pWO+1}, s{pW2+1}
      s_mov_b32 s{sT0}, {3584*2048}
      s_cselect_b32 s{rPF+2}, {1024*2048}, s{sT0}
      s_mov_b32 s{rPF+3}, 0x20000""")
    if OPT["ev2"]: a(f"s_bitcmp1_b32 s2, 0\n s_cselect_b32 s{sG}, -1, s{sG}")
    stamp("g_pw")
    waitflag(0, "L_wh")
    stamp("g_wf")
    a.vmq.clear(); a.lgq.clear()
    rds = lambda D, nt: [lambda e_=e_, k=k: rdW2(2 * D + e_, nt, k) for e_ in range(2) for k in range(2)]
    def ldP(D, ps):
        for p in ps:
            for h in range(2): ldH(2 * D, 2 * p + h); ldH(2 * D + 1, 2 * p + h)
    pend = []
    def dstep(D, fine, extra={}, at={}):
        for p in range(4):
            ex = list(extra.get(p, [])); lq = []
            if p in at: at[p]()
            if p in (1, 2) and D < 14: lq = [lambda k=k: dmaW(2 * D + 3 + p, k) for k in range(4)]
            for nt in range(4):
                if p == 0: lgw = [("W2", D, nt)] if fine else ([("W2", D, nt + 1)] if nt % 2 == 0 else [])
                else: lgw = []
                a.wait(vm=([("H", D, p)] + ([("W2", D + 1)] if p == 3 else [])) if nt == 0 else [], lg=lgw)
                if OPT["chain"]: seq = [(nt % 2, 0), (nt % 2, 1), (1 - nt % 2, 1), (1 - nt % 2, 0)]
                else: seq = [(0, 0), (1, 0), (1, 1), (0, 1)]
                for n, (h, e) in enumerate(seq):
                    first = (h, 1 - e) not in seq[:n]
                    mf16(acc2(2 * p + h, nt), WF + 16 * e + 4 * nt, HR + 32 * e + 4 * (2 * p + h), "0" if D == 0 and first else None)
                    if fine:
                        if pend: pend.pop(0)()
                        if nt == 3 and D < 17: ldH(2 * D + 2 + e, 2 * p + h)
                        elif lq and n % 2: lq.pop(0)()
                        x = ex.pop(0) if ex else None
                        if callable(x): x()
                        elif x: a(x)
                if p == 3 and D < 17: pend.extend(rds(D + 1, nt))
                if not fine and nt == 1:
                    while pend: pend.pop(0)()
                    while lq: lq.pop(0)()
                if not fine and nt == 3:
                    if (p, "ld") in at: at[p, "ld"]()
                    ldP(D + 1, [p])
            assert not ex and not lq
        if D < 12: a(f"s_add_u32 s{sHo}, s{sHo}, 16384\n s_add_u32 s{sHp}, s{sHp}, 16384")
    for nt in range(4):
        for f in rds(0, nt): f()
    a(f"s_add_u32 s{sHp}, s{sHo}, 8192")
    ldP(0, range(4))
    a(f"s_add_u32 s{sHo}, s{sHo}, 16384\n s_add_u32 s{sHp}, s{sHp}, 16384")
    for rt in range(8): a(f"v_sub_f32 v{vGM+2*rt}, 1.0, v{vGM+2*rt}")
    stamp("g_l2")
    a(f"s_setprio {OPT['g2prio']}\n s_mov_b32 s{sIT}, 0")
    fine = [not int(c) for c in OPT["gp"][1:3]]
    dstep(0, fine[1])
    stamp("g_s0")
    a.raw(".p2align 3")
    a.label("L_g2loop")
    def body(it):
        if OPT["pf2"]: a(f"s_cmp_eq_u32 s{sIT}, s{sG}\n s_cbranch_scc1 L_hookF"); a.label("L_hookF_r")
        dstep(2 * it + 1, fine[0])
        a(f"s_cmp_ge_u32 s{sIT}, 4\n s_cbranch_scc1 L_hookW"); a.label("L_hookW_r")
        dstep(2 * it + 2, fine[1])
        a(f"s_add_u32 s{sIT}, s{sIT}, 1\n s_cmp_lt_u32 s{sIT}, 6\n s_cbranch_scc1 L_g2loop")
    a.loop(body, "g2")
    sh = lambda q: [(x[0], x[1] + 6) + x[2:] for x in q]
    a.vmq[:] = sh(a.vmq); a.lgq[:] = sh(a.lgq)
    pend[:] = [f for nt in range(4) for f in rds(13, nt)][16 - len(pend):]
    stamp("g_25")
    mbox(1)
    a(f"""s_add_u32 s{sWo}, s{sWo}, {((GRP[1]-GRP[0])*524288-131072) & 0xffffffff}
      s_mov_b32 s{sMbx}, s{sT0}
      s_mul_i32 s{sOb}, s{sRB2}, {RBSZ}
      s_add_u32 s{sOb}, s{sOb}, s{sMw}
      s_lshl_b32 s{sDl}, s{sW}, 12
      s_add_u32 s{sDl}, s{sDl}, {QX}
      s_sub_u32 s{sDl}, s{sDl}, s{sMw}""")
    def poll(): a.vm(f"buffer_load_dword v{vPo}, v15, s[{rWS}:{rWS+3}], s{sMbx} offen sc1", "poll")
    chk = lambda sl: f"""v_cmp_eq_u32 vcc, 1, v{vPo}
      s_add_u32 s{sHo}, s{sOb}, {(112+8*GRP[sl])*8192}
      s_bitcmp1_b32 vcc_lo, {sl}
      s_cselect_b32 s{sRdy}, 1, 0
      s_cselect_b32 s{sHo}, s{sHo}, {OOB}
      s_add_u32 s{sHp}, s{sHo}, 8192""".split("\n")
    behind = {}
    def npoll(): return a.vmq[::-1].index("poll") if "poll" in a.vmq else 62
    def again(sl):
        behind["s", sl] = npoll()
        a(f"s_cmp_eq_u32 s{sRdy}, 0\n s_cbranch_scc1 L_sec{sl}")
        a.label(f"L_sec{sl}_r")
        poll()
    def join(sl):
        behind["b", sl] = npoll()
        a(f"s_cmp_eq_u32 s{sRdy}, 0\n s_cbranch_scc1 L_blk{sl}")
        a.label(f"L_join{sl}")
        a.vmq[:] = [("H", 14 + sl, p) for p in range(4) for _ in range(4)]
    def late(sl):
        a.label(f"L_sec{sl}")
        a(f"s_waitcnt vmcnt({behind['s', sl]})")
        a("\n".join(chk(sl)))
        a(f"s_cmp_eq_u32 s{sRdy}, 0\n s_cbranch_scc1 L_sec{sl}_r")
        ldP(14 + sl, (0, 1))
        a(f"s_branch L_sec{sl}_r")
        a.label(f"L_blk{sl}")
        a(f"s_mov_b32 s{sT5}, {SPIN_MAX}\n s_waitcnt vmcnt({behind['b', sl]})\n s_branch L_blk{sl}b")
        a.label(f"L_blk{sl}a")
        a(f"s_sleep {OPT['slp']}"); poll(); a.wait0(lg=False)
        a(f"s_sub_u32 s{sT5}, s{sT5}, 1\n s_cbranch_scc0 L_blk{sl}b\n v_mov_b32 v{vPo}, 1")
        a.label(f"L_blk{sl}b")
        a("\n".join(chk(sl)))
        a(f"s_cmp_eq_u32 s{sRdy}, 0\n s_cbranch_scc1 L_blk{sl}a")
        ldP(14 + sl, range(4))
        a(f"s_branch L_join{sl}")
    poll()
    dstep(13, False, at={(0, "ld"): lambda: (a.wait(vm="poll"), a("\n".join(chk(0))), poll()), 2: lambda: again(0)})
    srd(rA, pB2, 2048); srd(rC, pOUT, 2048 * 2048)
    while pend: pend.pop(0)()
    join(0)
    stamp("g_hook")
    sc = lambda p: [f"v_pk_mul_f32 {vr(ACC2+32*p+16*h+4*nt+r,2)}, {vr(ACC2+32*p+16*h+4*nt+r,2)}, {vr(vGM+4*p+2*h,2)} op_sel_hi:[1,0]"
                    for nt in range(4) for h in range(2) for r in (0, 2)]
    for x in sc(0): a(x)
    vS0, vS1, vB2 = 3, 4, 18
    def wr(p, k):
        if OPT["nowr"]: return
        if p < 2: a.lg(f"ds_write_b128 v{vS0}, {vr(ACC2+32*p+4*k,4)} offset:{8192*p+1024*k}")
        else: a.lg(f"ds_write_b128 v{vS1}, {vr(ACC2+32*p+4*k,4)} offset:{16384*(k//4)+1024*(k%4)}")
    OWN = ACC2 + 96
    vRd = [5, 6, 16]; vTw = [11, 12, 13, 14]; vTr, vOo = 26, 27
    sc2 = lambda p: ["\n".join(f"v_mul_f32 v{ACC2+32*p+16*h+4*nt+r+u}, v{vGM+4*p+2*h}, v{ACC2+32*p+16*h+4*nt+r+u}" for u in range(2))
                     for nt in range(4) for h in range(2) for r in (0, 2)]
    extra = {(0, p): sc2(p + 1) for p in range(3)}
    two = lambda l_: ["\n".join(l_[k:k+2]) for k in range(0, len(l_), 2)]
    wp = lambda sl: a(f"s_waitcnt vmcnt({behind['b', sl]})")
    for D in (1, 2): extra[D, 0] = [None] * 7 + [lambda D=D: wp(D)] + two(chk(D + 1)) + [poll]
    t_ = f"""s_lshl_b32 s{sT0}, s{sCB2}, 7
      v_lshlrev_b32 v16, 3, v2
      v_lshl_add_u32 v{vS0}, v0, 4, s{sMw}
      v_add_u32 v{vS1}, s{sDl}, v{vS0}""".split("\n")
    extra[1, 2] = [f"v_mov_b32 v17, {SYNC+12}", None, lambda: a.lg("ds_read_b32 v31, v17", "wa")] + [None] * 7 + [
        lambda: (a.wait(lg="wa"), a("v_cmp_gt_u32 vcc, 4, v31")), lambda: (a("s_cbranch_vccnz L_wa0"), a.label("L_wa_r"))]
    extra[1, 1] = t_ + [f"v_add_u32 v{vWR+nt}, s{sDl}, v{vWR+nt}" for nt in range(4)] + [lambda nt=nt: a.vm(f"buffer_load_dwordx2 {vr(vB2+2*nt,2)}, v16, s[{rA}:{rA+3}], s{sT0} offen offset:{32*nt}", "b2") for nt in range(4)]
    t_ = []
    for p in range(3):
        t_ += [f"s_sub_u32 s{sT1}, s{sW}, {p+1}\n s_and_b32 s{sT1}, s{sT1}, 3"]
        if p < 2: t_ += [f"s_lshl_b32 s{sT1}, s{sT1}, 14\n v_lshl_add_u32 v{vRd[p]}, v0, 4, s{sT1}"]
        else: t_ += [f"s_lshl_b32 s{sT1}, s{sT1}, 12\n s_add_u32 s{sT1}, s{sT1}, {QX}", f"v_lshl_add_u32 v{vRd[p]}, v0, 4, s{sT1}"]
    assert len(t_) == 7; rdadr = t_
    fm = []
    for nt in range(4):
        for r in range(2):
            fm += [f"v_lshlrev_b32 v{vTr}, 16, v{vB2+2*nt+r}\n v_and_b32 v{vTr+1}, 0xffff0000, v{vB2+2*nt+r}"]
            fm += ["\n".join(f"v_fmac_f32 v{OWN+16*h+4*nt+2*r+u}, v{vTr+u}, v{vGM+12+2*h}" for u in range(2)) for h in range(2)]
    extra[2, 0][4:6] = two([f"v_add_u32 v{vWR+nt}, 16384, v{vWR+nt}" for nt in range(4)])
    extra[2, 1] = rdadr + [None] + fm[:8]; extra[2, 2] = fm[8:]
    t_ = f"""s_lshl_b32 s{sT2}, s{sW}, 12
      s_add_u32 s{sT2}, s{sT2}, {KVR+16384}
      v_lshrrev_b32 v15, 3, v0
      v_and_b32 v17, 7, v0
      v_xor_b32 v{vTr}, v15, v17
      v_lshlrev_b32 v{vTr}, 4, v{vTr}
      v_lshl_add_u32 v{vTr}, v15, 7, v{vTr}
      v_add_u32 v{vTr}, s{sT2}, v{vTr}
      v_lshlrev_b32 v{vOo}, 4, v17
      v_lshl_add_u32 v{vOo}, v15, 11, v{vOo}
      v_and_b32 v15, 7, v1
      v_lshrrev_b32 v17, 1, v2
      v_xor_b32 v15, v15, v17
      v_lshlrev_b32 v15, 4, v15
      v_and_b32 v17, 1, v2
      v_lshl_add_u32 v15, v17, 3, v15
      v_lshl_add_u32 v15, v1, 7, v15
      v_add_u32 v{vTw[0]}, s{sT2}, v15
      v_xor_b32 v{vTw[1]}, 32, v{vTw[0]}
      v_xor_b32 v{vTw[2]}, 64, v{vTw[0]}
      v_xor_b32 v{vTw[3]}, 96, v{vTw[0]}
      s_lshl_b32 s{sT0}, s{sCB2}, 7
      s_lshl_b32 s{sT1}, s{sRB2}, 18
      s_add_u32 s{sT0}, s{sT0}, s{sT1}
      s_lshl_b32 s{sT1}, s{sW}, 16
      s_add_u32 s{sT0}, s{sT0}, s{sT1}""".split("\n")
    extra[3, 0] = ["\n".join(t_[2*k:2*k+2]) for k in range(13)]
    worder = [0, 4, 1, 5, 2, 6, 3, 7]
    for p in range(1, 4): extra[3, p] = [x for k in worder for x in (None, (lambda k=k, p=p: wr(p - 1, k)))]
    def rdp(p, k):
        a.lg(f"ds_read_b128 {vr(ACC2+32*p+4*k,4)}, v{vRd[p]} offset:{8192*p+1024*k if p < 2 else 16384*(k//4)+1024*(k%4)}", ("r", p // 2, k))
    x0 = extra[0, 0][10]; extra[0, 0][10] = lambda: (a(x0), wp(0), a("\n".join(chk(1))), poll())
    a("s_nop 0")
    for D in range(4):
        if D: join(D)
        if D == 2: stamp("g_32")
        dstep(14 + D, True, {p: extra.get((D, p), []) for p in range(4)}, {2: lambda: again(D + 1)} if D < 3 else {})
    a.wait0(vm=False)
    stamp("g_36")
    a("s_barrier")
    stamp("g_bar")
    for k in range(4):
        for p in range(3): rdp(p, k)
    def st(g_):
        a.wait(lg=("u", g_ // 2, g_ % 2))
        a(f"buffer_store_dwordx4 {vr(HR+32+4*g_,4)}, v{vOo}, s[{rC}:{rC+3}], s{sT0} offen{['', ' sc1', ' nt'][OPT['osc']]}")
        if g_ < 3: a(f"s_add_u32 s{sT0}, s{sT0}, 16384")
    for k in range(8):
        a.wait(lg=("r", 1, k))
        if k < 4:
            for p in range(3): rdp(p, k + 4)
        for r in (0, 2): a(f"v_pk_add_f32 {vr(ACC2+4*k+r,2)}, {vr(ACC2+4*k+r,2)}, {vr(ACC2+32+4*k+r,2)}")
        for r in (0, 2): a(f"v_pk_add_f32 {vr(OWN+4*k+r,2)}, {vr(OWN+4*k+r,2)}, {vr(ACC2+64+4*k+r,2)}")
        for r in (0, 2): a(f"v_pk_add_f32 {vr(OWN+4*k+r,2)}, {vr(OWN+4*k+r,2)}, {vr(ACC2+4*k+r,2)}")
        T_ = HR + 2 * k
        a(f"v_cvt_pk_bf16_f32 v{T_}, v{OWN+4*k}, v{OWN+4*k+1}\n v_cvt_pk_bf16_f32 v{T_+1}, v{OWN+4*k+2}, v{OWN+4*k+3}")
        a.lg(f"ds_write_b64 v{vTw[k%4]}, {vr(HR+2*k,2)} offset:{2048*(k//4)}")
        if k % 4 == 3:
            for h in range(2): a.lg(f"ds_read_b128 {vr(HR+32+8*(k//4)+4*h,4)}, v{vTr} offset:{2048*(k//4)+1024*h}", ("u", k // 4, h))
    for g_ in range(4): st(g_)
    if OPT["ts"]: a.wait0(); stamp("g_end")
    if OPT["padto"]:
        a.label("L_pad")
        a(f"s_memrealtime s[98:99]\n s_waitcnt lgkmcnt(0)\n s_sub_u32 s98, s98, s96\n s_cmp_lt_u32 s98, {OPT['padto']}\n s_cbranch_scc1 L_pad")
    dump_ts_and_end()
    for sl in range(4): late(sl)
    a.label("L_wa0")
    waitlds(12, 4, "L_wa", 31)
    a("s_branch L_wa_r")
    if OPT["pf2"]:
        a.label("L_hookF")
        a(f"v_lshlrev_b32 v15, 7, v0\n buffer_load_dword v19, v15, s[{rPF}:{rPF+3}], s{sA} offen")
        if OPT["ev2"]: a(f"s_add_u32 s{sA}, s{sA}, 8192\n buffer_load_dword v19, v15, s[{rPF}:{rPF+3}], s{sA} offen")
        a("s_branch L_hookF_r")
    a.label("L_hookW")
    a(f"s_cmp_eq_u32 s{sIT}, 4\n s_cbranch_scc1 L_hookQ")
    a(f"s_mov_b32 s{rB}, s{pWO}\n s_mov_b32 s{rB+1}, s{pWO+1}\n s_mov_b32 s{rB+2}, {1024*2048}\n s_lshl_b32 s{sWo}, s{sW}, 17\n s_add_u32 s{sWo}, s{sWo}, {GRP[0]*524288}\n s_branch L_hookW_r")
    a.label("L_hookQ")
    stamp("g_17")
    waitlds(0, 4, "L_wq")
    srd(rA, pWO, 1024 * 2048)
    a(f"s_lshl_b32 s{sT0}, s{sW}, 12\n s_add_u32 m0, s{sT0}, {QX}\n s_lshl_b32 s{sT0}, s{sW}, 17\n s_add_u32 s{sT0}, s{sT0}, 524288")
    for k in range(4): a(f"buffer_load_dwordx4 v{vWD+k}, s[{rA}:{rA+3}], s{sT0} offen offset:{1024*k} lds")
    a("s_branch L_hookW_r")

prologue()
section("g")
a.label("L_roleG")
g_phase1()
if OPT["stop"] == 1:
    stamp("g_bq"); g_hstore(); a.wait0(); stamp("g_hst"); dump_ts_and_end()
else:
    if OPT["wlate"]: g_hstore(); stamp("g_st")
    g2_setup()
    for i in range(4):
        for k in range(4): dmaW(i, k)
    if not OPT["wlate"]: g_hstore()
    g_phase2()
a_phase1()
if OPT["stop"] == 1:
    a(f"s_lshl_b32 s{sT0}, s{sW}, 12\n s_add_u32 s{sT1}, s{sT0}, {QX}\n v_lshl_add_u32 v16, v0, 4, s{sT1}")
    for i in range(4): a(f"ds_read_b128 {vr(32+4*i,4)}, v16 offset:{1024*i}")
    a(f"s_lshl_b32 s{sT1}, s{sRB}, 4\n s_add_u32 s{sT1}, s{sT1}, s{sCB}\n s_lshl_b32 s{sT1}, s{sT1}, 14\n s_add_u32 s{sT0}, s{sT0}, s{sT1}\n s_add_u32 s{sT0}, s{sT0}, {QD_OFF}")
    a.wait0()
    for i in range(4): a(f"buffer_store_dwordx4 {vr(32+4*i,4)}, v{vKVD}, s[{rWS}:{rWS+3}], s{sT0} offen offset:{1024*i}")
    dump_ts_and_end()
else:
    stamp("a_bq")
    attention()
a.label("L_exit")
a("s_endpgm")
a.label("L_codeend")

HDR = open("cdna_kernels/" + KNAME[:-7] + ".s.ref").read().split("; Override launch")[0]
text = HDR + f"; @launch grid=(256,1,1) block=(512,1,1) lds={LDS_BYTES}\n"
text += f'.amdgcn_target "amdgcn-amd-amdhsa--gfx950"\n.text\n.globl {KNAME}\n.p2align 8\n.type {KNAME},@function\n{KNAME}:\n'
a.out = SEC['head'] + SEC['st1'] + SEC['st0'] + SEC['st2'] + SEC['g'] + SEC['main']
body = a.text()
nbad = check(body)
text += body
text += f""".section .rodata,"a"
.p2align 6
.amdhsa_kernel {KNAME}
  .amdhsa_next_free_vgpr 256
  .amdhsa_next_free_sgpr 102
  .amdhsa_accum_offset 256
  .amdhsa_group_segment_fixed_size 0
  .amdhsa_kernarg_size 112
  .amdhsa_user_sgpr_count 2
  .amdhsa_user_sgpr_kernarg_segment_ptr 1
  .amdhsa_system_sgpr_workgroup_id_x 1
.end_amdhsa_kernel
"""
open(sys.argv[1], "w").write(text)
if nbad: sys.exit(f"{nbad} hazards")
```

```python
import sys, math
from asmlib import *

KNAME = "gated_mix__grouped_kv_mqa__dense_activation_squared_relu__prompt_kernel"
OPT = dict(stop=0, ts=0, pd=8, forceslow=0, nodma=0, nokv=0, nopf=0, nords=0, lead=6, pfnt=0, far=99, pf2=1, pf2b=2, gprio=2, nog2=0, g2nold=0, anodma=0, g2prio=0, dbgts=0, slp=2, th=0, farw2=1, hglob=1, arrk=1, wlate=1, map2=5, steps=0, kvskip='', pause=99, pcnt=64, grp=1, osc=1, padto=0, st2=0, spos=0, hfirst=2, p0prio=3, d0prio=1, xlate=0, ring=6, h3prio=1, hfl='sc1', wfl='', xfl='', padat='', xm=1, p0late=1, p0lo=0, kvreg=1, lowv=1, noo=0, nopk=1, tgrp=1, nowo=0, noack=0, qsw=1, evn=0, evk=1, ev2=1, ng=8, par='SSSS', lut=0, pw=128, pb=0, g32=0, dyn=0, chain=1, row4=0, skiprd=0, gdma=0, dpos=0, nohst=0, loc2=1, woit=2, snake=1, gp='x1111', gpo='', g2f=1, ebar=0, c2x=1, pfl='sc1', sfl='sc1', nowr=0, pat='eeeeeeeq0ccr1etccseu2eveywexccS4e5eeecc')
for a_ in sys.argv[2:]:
    k, v = a_.split("="); OPT[k] = int(v) if v.lstrip('-').isdigit() else v

GRP = [2, 0, 1, 3] if OPT['g2f'] else [0, 2, 1, 3]
RBSZ = 144 * 8192
KV_OFF = 0x1200000; G_OFF = 0x1240000; KF_OFF = 0x1244000; FL_OFF = 0x1248000; WS_USED = 0x1268000
QD_OFF = 0x1400000; TS_OFF = 0x1800000
WS_SIZE = 0x2000000 if (OPT["stop"] or OPT["ts"]) else WS_USED
OOB = 0x40000000
W1R = 0; W1S = 14336
WQR = 57344; WQS = 4096
XR = 73728; XS = 16384
KVST = 122880
SYNC = 155648
GT = SYNC + 512
LDS_BYTES = GT + 2048
QX = XR
KVR = 90112
pX, pWQ, pWK, pWV, pWO, pW1, pB1, pW2, pB2, pGATE, pOUT, pDBG, pWS = 4, 6, 8, 10, 12, 16, 18, 20, 22, 24, 26, 28, 30
rA, rB, rC, rD, rWS, rDBG, rPF, rE = 32, 36, 40, 44, 48, 52, 56, 60
sRB, sCB, sRB2, sCB2, sI, sW = 64, 65, 66, 67, 68, 69
sT0, sT1, sT2, sT3, sT4, sT5 = 70, 71, 72, 73, 74, 75
sIT, sA, sB, sC, sD, sE, sF, sG = 76, 77, 78, 79, 80, 81, 82, 83
sTS = 84
sPOS = 101
sQB = 100
SPIN_MAX = 1 << 18

a = Asm()
SEC = {}
def cm(t):
    for l in t.strip().split('\n'): a.raw('  ; ' + l.strip())
def section(n):
    a.out = SEC.setdefault(n, [])
section("head")
def kwait():
    a("s_waitcnt lgkmcnt(0)"); stamp("kw"); srd(rWS, pWS, WS_SIZE)
def srd(r, p, size):
    a(f"s_mov_b32 s{r}, s{p}\n s_mov_b32 s{r+1}, s{p+1}\n s_mov_b32 s{r+2}, {size}\n s_mov_b32 s{r+3}, 0x20000")
nts = [0]
STAMPS = {1: dict(g_b0=1, g_end1=2, g_bq=3, g_hst=4, g_pre=5, a_set=1, a_w0=2, a_8=3, a_16=4, a_24=5),
          0: dict(g_end1=1, g_flag=2, g_l2=3, g_hook=4, g_end=5, a_b0=1, a_16=2, a_bq=3, a_att=4, a_end=5)}[OPT["stop"]]
if OPT["st2"] == 1: STAMPS.update(g_end1=0, g_flag=0, g_l2=1, g_17=2, g_25=3)
if OPT["st2"] == 3: STAMPS = dict(kw=1, g_pre=2, g_bias=3, g_rdy=4, g_b0=5, a_iss=2, a_set=3, a_w0=4, a_b0=5)
if OPT["st2"] == 4: STAMPS.update(g_end1=0, g_st=1, g_flag=2, g_pw=3, g_wf=4, g_l2=0, g_s0=5, g_hook=0, g_end=0)
if OPT["st2"] == 2: STAMPS.update(g_end1=0, g_flag=0, g_l2=0, g_hook=1, g_32=2, g_36=3, g_bar=4)
def stamp(n):
    if n == OPT["padat"]: a("s_memrealtime s[96:97]"); a.wait0(vm=False)
    i = STAMPS.get(n)
    if OPT["ts"] and i:
        a(f"{'s_memrealtime' if OPT['ts'] == 2 else 's_memtime'} s[{sTS+2*i}:{sTS+2*i+1}]"); a.wait0(vm=False)
def mf16(d, x, y, c=None):
    a(f"v_mfma_f32_16x16x32_bf16 {vr(d,4)}, {vr(x,4)}, {vr(y,4)}, {vr(d,4) if c is None else c}")
def mf32(d, x, y, c=None):
    a(f"v_mfma_f32_32x32x16_bf16 {vr(d,16)}, {vr(x,4)}, {vr(y,4)}, {vr(d,16) if c is None else c}")
def dump_ts_and_end():
    if OPT["ts"]:
        a("s_memrealtime s[98:99]"); a.wait0()
        if OPT["dbgts"]:
            l = a.newlabel("L_nots")
            srd(rDBG, pDBG, 256)
            a(f"s_cmp_lg_u32 s2, 100\n s_cbranch_scc1 {l}\n s_cmp_lg_u32 s{sW}, 0\n s_cbranch_scc1 {l}")
            for i, k in enumerate((1, 2, 3, 4, 5, 7)): a(f"s_sub_u32 s{sT0}, s{sTS+2*k}, s96\n v_mov_b32 v{8+i}, s{sT0}")
            a(f"s_lshl_b32 s{sT0}, s3, 3\n s_add_u32 s{sT0}, s{sT0}, 8\n v_mov_b32 v2, 0\n s_mov_b64 exec, 1")
            a(f"buffer_store_dwordx2 v[8:9], v2, s[{rDBG}:{rDBG+3}], s{sT0} offen")
            a(f"buffer_store_dwordx4 v[10:13], v2, s[{rDBG}:{rDBG+3}], s{sT0} offen offset:8")
            a.label(l)
        else:
            for i in range(8): a(f"v_mov_b32 v{8+i}, s{sTS+2*i}")
            a(f"s_lshl_b32 s{sT0}, s2, 8\n s_lshl_b32 s{sT1}, s3, 5\n s_add_u32 s{sT0}, s{sT0}, s{sT1}\n s_add_u32 s{sT0}, s{sT0}, {TS_OFF}")
            a(f"v_mov_b32 v2, 0\n s_mov_b64 exec, 1")
            a(f"buffer_store_dwordx4 v[8:11], v2, s[{rWS}:{rWS+3}], s{sT0} offen")
            a(f"buffer_store_dwordx4 v[12:15], v2, s[{rWS}:{rWS+3}], s{sT0} offen offset:16")
    a("s_endpgm")

def prologue():
    m = OPT["map2"]
    lx, lc = {0: (1, 3), 2: (1, 3), 3: (2, 2), 4: (0, 4), 5: (2, 2)}[m]
    MAP2 = f"""s_lshr_b32 s{sT1}, s{sT0}, {lx}
      s_lshl_b32 s{sT1}, s{sT1}, {5-lc}
      s_lshr_b32 s{sT2}, s{sI}, {lc}
      s_add_u32 s{sRB2}, s{sT1}, s{sT2}
      s_and_b32 s{sT1}, s{sT0}, {(1<<lx)-1}
      s_and_b32 s{sT2}, s{sI}, {(1<<lc)-1}
      s_lshl_b32 s{sT2 if m in (2, 5) else sT1}, s{sT2 if m in (2, 5) else sT1}, {lx if m in (2, 5) else lc}
      s_add_u32 s{sCB2}, s{sT1}, s{sT2}
      s_xor_b32 s{sCB2}, s{sCB2}, {OPT["c2x"]}
      s_mov_b32 s{sPOS}, s{sCB}"""
    ident = list(range(16))
    LUTS = {0: (ident, [0, 1, 3, 2] + ident[4:]),
            1: ([0, 1, 3, 5, 2, 4, 6, 8, 7, 10, 12, 14, 9, 11, 13, 15], [0, 1, 2, 9, 4, 5, 6, 7, 8, 3, 10, 11, 12, 13, 14, 15]),
            2: ([0, 1, 3, 5, 2, 4, 6, 8, 7, 10, 12, 14, 9, 11, 13, 15], [0, 1, 2, 4, 3, 5, 11, 7, 8, 9, 10, 6, 12, 13, 14, 15]),
            3: ([0, 1, 3, 5, 7, 4, 10, 8, 12, 2, 14, 6, 9, 11, 13, 15], [0, 1, 2, 9, 4, 5, 6, 7, 8, 3, 10, 11, 12, 13, 14, 15])}[OPT["lut"]]
    for reg, tab in zip((sCB, sQB), LUTS):
        assert sorted(tab) == ident
        if tab == ident: continue
        w = sum(v << (4 * k) for k, v in enumerate(tab))
        MAP2 += f"""
          s_mov_b32 s{sT2}, {hex(w & 0xffffffff)}
          s_mov_b32 s{sT3}, {hex(w >> 32)}
          s_lshl_b32 s{sT1}, s{sPOS}, 2
          s_lshr_b64 s[{sT2}:{sT3}], s[{sT2}:{sT3}], s{sT1}
          s_and_b32 s{reg}, s{sT2}, 15"""
    cm('entry: workgroup -> (row block, column blocks); waves 0-3 take the matrix role G, waves 4-7 the loader / attention role A')
    a("s_cmp_ge_u32 s2, 256\n s_cbranch_scc1 L_exit")
    a("s_load_dwordx16 s[4:19], s[0:1], 0\n s_load_dwordx8 s[20:27], s[0:1], 64\n s_load_dwordx4 s[28:31], s[0:1], 96")
    if OPT["ts"] or OPT["th"] or OPT["padto"]:
        a(f"s_memtime s[{sTS}:{sTS+1}]\n s_memrealtime s[96:97]")
    a(f"""v_lshrrev_b32 v1, 6, v0
      v_and_b32 v0, 63, v0
      v_readfirstlane_b32 s3, v1
      s_lshr_b32 s{sI}, s2, 3
      s_and_b32 s{sT0}, s2, 7
      s_lshr_b32 s{sT1}, s{sT0}, 2
      s_lshl_b32 s{sT1}, s{sT1}, 3
      s_lshr_b32 s{sT2}, s{sI}, 2
      s_add_u32 s{sRB}, s{sT1}, s{sT2}
      s_and_b32 s{sT1}, s{sT0}, 3
      s_lshl_b32 s{sT1}, s{sT1}, 2
      s_and_b32 s{sT2}, s{sI}, 3
      s_add_u32 s{sCB}, s{sT1}, s{sT2}
      {MAP2}
      s_and_b32 s{sW}, s3, 3
      v_and_b32 v1, 15, v0
      v_lshrrev_b32 v2, 4, v0""")
    a("s_cmp_lt_u32 s3, 4\n s_cbranch_scc1 L_roleG\n s_setprio 1\n s_cmp_eq_u32 s3, 7\n s_cbranch_scc1 L_st2\n s_cmp_lg_u32 s3, 6\n s_cbranch_scc1 L_st0")

ACC1 = 112
acc1 = lambda ft, rt: ACC1 + (ft * 4 + rt) * 4
XF = [56, 72]; WRING = 88; NR = OPT['ring']; RD = NR - 1
vX = [34, 35]; vXb = [36, 37]; vW1 = [38, 39]; vWq = [40, 41]; vJ, vLP, vQW = 42, 43, 44
def g_phase1():
    PD = OPT["pd"]
    sRG, sCG = sA, sB
    sXo, sPo, sPe, sPd = sC, sD, sE, sF
    a(f"s_and_b32 s{sRG}, s{sW}, 1\n s_lshr_b32 s{sCG}, s{sW}, 1")
    cm('G, phase 1: [Q | FFN hidden] tile = x[128 rows] * [Wq 64 cols | W1 224 cols], accumulators start from the bias')
    a(f"""s_cmp_lt_u32 s{sW}, 2
      s_cbranch_scc0 L_nocode
      s_getpc_b64 s[{rE}:{rE+1}]""")
    a.label("L_pc")
    a(f"""s_mov_b32 s{rE+2}, L_codeend-L_pc
      s_mov_b32 s{rE+3}, 0x20000
      s_lshl_b32 s{sT1}, s{sI}, 10
      s_lshl_b32 s{sT2}, s{sW}, 15
      s_add_u32 s{sT1}, s{sT1}, s{sT2}
      v_lshlrev_b32 v15, 7, v0
      s_mov_b64 exec, 0xff
      buffer_load_dword v{vJ}, v15, s[{rE}:{rE+3}], s{sT1} offen
      s_mov_b64 exec, -1""")
    a.label("L_nocode")
    a(f"""s_mul_i32 s{sT0}, s{sCB}, 448
      s_mul_i32 s{sT1}, s{sCG}, 224
      s_add_u32 s{sT0}, s{sT0}, s{sT1}
      v_lshlrev_b32 v14, 2, v0
      s_mov_b32 s{rA+2}, 7168
      s_mov_b32 s{rA+3}, 0x20000
      s_setprio 3
      s_waitcnt lgkmcnt(0)
      s_mov_b32 s{rA}, s{pB1}
      s_mov_b32 s{rA+1}, s{pB1+1}
      buffer_load_dword v33, v14, s[{rA}:{rA+3}], s{sT0} offen
      s_setprio 0""")
    kwait()
    for r in range(0, 32, 2): a(f"v_mov_b64 {vr(ACC1+r,2)}, 0")
    a(f"""v_lshrrev_b32 v14, 1, v1
      v_xor_b32 v14, v14, v2
      v_lshlrev_b32 v14, 4, v14
      v_lshl_add_u32 v14, v1, 7, v14
      s_lshl_b32 s{sT0}, s{sRG}, 13
      s_add_u32 s{sT0}, s{sT0}, {XR}
      v_add_u32 v{vXb[0]}, s{sT0}, v14
      v_xor_b32 v{vXb[1]}, 64, v{vXb[0]}
      v_mov_b32 v{vX[0]}, v{vXb[0]}
      v_mov_b32 v{vX[1]}, v{vXb[1]}
      s_mov_b32 s{sXo}, 0
      v_lshrrev_b32 v14, 2, v1
      v_lshl_add_u32 v14, v2, 3, v14
      v_and_b32 v15, 3, v1
      v_lshlrev_b32 v15, 3, v15
      v_mul_u32_u24 v30, 448, v14
      v_add_u32 v30, v30, v15
      s_mul_i32 s{sT0}, s{sCG}, 224
      v_add_u32 v30, s{sT0}, v30
      v_and_b32 v31, 1, v2
      v_lshlrev_b32 v32, 5, v31
      s_lshl_b32 s{sT1}, s{sCG}, 1
      s_sub_u32 s{sT1}, 1, s{sT1}
      v_mul_lo_u32 v32, v32, s{sT1}
      v_add_u32 v{vW1[0]}, v30, v32
      v_sub_u32 v{vW1[1]}, v30, v32
      v_lshrrev_b32 v32, 3, v1
      v_lshl_add_u32 v31, v32, 1, v31
      s_lshl_b32 s{sT0}, s{sCG}, 1
      v_xor_b32 v31, s{sT0}, v31
      v_lshl_add_u32 v15, v31, 5, v15
      v_lshl_add_u32 v15, v14, 7, v15
      v_add_u32 v{vWq[0]}, {WQR}, v15
      v_xor_b32 v{vWq[1]}, 32, v{vWq[0]}""")
    a(f"""v_and_b32 v14, 1, v2
      v_lshlrev_b32 v14, 10, v14
      v_lshrrev_b32 v15, 1, v2
      v_lshl_add_u32 v14, v15, 8, v14
      v_lshl_add_u32 v{vLP}, v1, 4, v14""")
    if not OPT["stop"]: g2_vsetup()
    a(f"v_mov_b32 v30, {SYNC}\n ds_write_b128 v30, v[{ACC1}:{ACC1+3}]\n v_lshlrev_b32 v15, 3, v2")
    stamp("g_pre")
    a.wait0()
    stamp("g_bias")
    for k in range(14): a.lg(f"ds_bpermute_b32 v{16+k}, v15, v33 offset:{32*(k//2)+4*(k%2)}", ("b", k // 2))
    for ft in range(7):
        d = acc1(2 + ft, 0)
        a.wait(lg=("b", ft))
        a(f"v_lshlrev_b32 v{d}, 16, v{16+2*ft}\n v_and_b32 v{d+1}, 0xffff0000, v{16+2*ft}")
        a(f"v_lshlrev_b32 v{d+2}, 16, v{17+2*ft}\n v_and_b32 v{d+3}, 0xffff0000, v{17+2*ft}")
        for rt in range(1, 4): a(f"v_mov_b64 {vr(d+4*rt,2)}, {vr(d,2)}\n v_mov_b64 {vr(d+4*rt+2,2)}, {vr(d+2,2)}")
    def rdW(g, e):
        if OPT["nords"] and g > 2: return
        t, ft = divmod(g, 9); d = WRING + 4 * (g % NR) + 2 * e
        if ft < 2: a.lg(f"ds_read_b64_tr_b16 {vr(d,2)}, v{vWq[ft]} offset:{(t%4)*WQS + e*512}", ("W", g))
        else: a.lg(f"ds_read_b64_tr_b16 {vr(d,2)}, v{vW1[ft%2]} offset:{(t%4)*W1S + e*1792 + (ft-2)*32}", ("W", g))
    def rdX(t, rt):
        a.lg(f"ds_read_b128 {vr(XF[t%2]+4*rt,4)}, v{vX[t%2]} offset:{rt*2048}", ("X", t))
    a(f"s_mov_b32 s{sIT}, 0")
    stamp("g_rdy")
    a("s_barrier")
    stamp("g_b0")
    rdW(0, 0); rdW(0, 1)
    for rt in range(4): rdX(0, rt)
    for g in range(1, RD): rdW(g, 0); rdW(g, 1)
    a.raw(".p2align 3")
    cm('32 k-steps of 32; operands come from LDS rings that the A waves fill, one barrier per step')
    a.label("L_g1loop")
    def body(it):
        for ts in range(4):
            t = it * 4 + ts
            for ft in range(9):
                g = t * 9 + ft
                fill = [[], [], [], []]
                fill[0].append(lambda: rdW(g + RD, 0))
                fill[1].append(lambda: rdW(g + RD, 1))
                if NR == 4:
                    if ft == 5: fill[2].append(lambda: a("s_barrier")); fill[3].append(lambda: rdX(t + 1, 0))
                    if ft == 6: fill[2].append(lambda: (rdX(t + 1, 1), rdX(t + 1, 2))); fill[3].append(lambda: rdX(t + 1, 3))
                else:
                    if ft == 3: fill[2].append(lambda: a("s_barrier")); fill[3].append(lambda: rdX(t + 1, 0))
                    if ft == 4: fill[2].append(lambda: rdX(t + 1, 1)); fill[3].append(lambda: rdX(t + 1, 2))
                    if ft == 5: fill[2].append(lambda: rdX(t + 1, 3))
                if ts % 2 == 1:
                    if ft == 1:
                        fill[2].append(lambda: a(f"s_add_u32 s{sXo}, s{sXo}, {XS}\n s_cmp_eq_u32 s{sXo}, {3*XS}"))
                        fill[3].append(lambda: a(f"s_cselect_b32 s{sXo}, 0, s{sXo}"))
                    if ft == 2:
                        fill[2].append(lambda: a(f"v_add_u32 v{vX[0]}, s{sXo}, v{vXb[0]}"))
                        fill[3].append(lambda: a(f"v_add_u32 v{vX[1]}, s{sXo}, v{vXb[1]}"))
                if ts == 2 and ft == 7: fill[2].append(lambda: a(f"s_add_u32 s{sIT}, s{sIT}, 1"))
                if ts == 2 and ft == 8: fill[2].append(lambda: a(f"s_cmp_eq_u32 s{sIT}, 8"))
                a.wait(lg=[("W", g), ("X", t)] if ft == 0 else ("W", g))
                for k_ in range(4):
                    rt = 3 - k_ if OPT["snake"] and ft % 2 else k_
                    mf16(acc1(ft, rt), WRING + 4 * (g % NR), XF[t % 2] + 4 * rt)
                    for f in fill[k_]: f()
            if ts == 2:
                a("s_cbranch_scc1 L_g1last"); snap[:] = [(k_, v_ + (30 - t) * (9 if k_ == "W" else 1)) for k_, v_ in a.lgq]
        a("s_branch L_g1loop")
    snap = []
    a.loop(body, "g1")
    cm('last k-step; Q goes to the attention waves through LDS')
    a.label("L_g1last")
    a.lgq[:] = snap
    q = [f"s_lshl_b32 s{sT2}, s{sRG}, 13\n s_lshl_b32 s{sT3}, s{sCG}, 11", f"s_add_u32 s{sT2}, s{sT2}, s{sT3}\n s_add_u32 s{sT2}, s{sT2}, {QX}",
         f"v_lshl_add_u32 v{vQW}, v0, 4, s{sT2}", "s_barrier"]
    cq = lambda s_, rt: f"v_cvt_pk_bf16_f32 v{16+4*rt+2*s_}, v{acc1(s_,rt)}, v{acc1(s_,rt)+1}\n v_cvt_pk_bf16_f32 v{17+4*rt+2*s_}, v{acc1(s_,rt)+2}, v{acc1(s_,rt)+3}"
    wq = lambda rt: ("w", f"ds_write_b128 v{vQW}, {vr(16+4*rt,4)} offset:{(rt//2)*4096 + (rt%2)*1024}")
    plan = {(0, 2): q[0], (0, 3): q[1], (1, 2): q[2], (2, 2): cq(0, 0), (2, 3): cq(0, 1), (3, 2): cq(1, 0), (3, 3): cq(1, 1),
            (4, 0): q[3], (4, 1): wq(0), (4, 2): cq(0, 2), (4, 3): wq(1), (5, 0): cq(1, 2), (5, 1): cq(0, 3), (5, 2): wq(2), (5, 3): cq(1, 3),
            (6, 0): wq(3)}
    for ft in range(9):
        g = 31 * 9 + ft
        a.wait(lg=[("W", g), ("X", 31)] if ft == 0 else ("W", g))
        for rt in range(4):
            mf16(acc1(ft, rt), WRING + 4 * (g % NR), XF[1] + 4 * rt)
            if rt < 2 and ft + RD < 9: rdW(g + RD, rt)
            x = plan.get((ft, rt))
            if isinstance(x, tuple): a.lg(x[1])
            elif x: a(x)
            if (ft, rt) == (7, 3): a.wait0(vm=False); a(f"s_setprio {OPT['gprio']}\n s_barrier")
    stamp("g_end1")
def g_hstore(lo=0, hi=7):
    sRG, sCG = sA, sB
    sT0, sT1, sT2, sT3 = sT4, sT5, sF, sG
    if lo == 0: a(f"""s_mul_i32 s{sT0}, s{sRB}, {RBSZ}
      s_mul_i32 s{sT1}, s{sCB}, {7*8192}
      s_add_u32 s{sT0}, s{sT0}, s{sT1}
      s_lshl_b32 s{sT1}, s{sRG}, 12
      s_add_u32 s{sT0}, s{sT0}, s{sT1}
      s_mul_i32 s{sT1}, s{sCG}, {3*8192+512}
      s_add_u32 s{sT0}, s{sT0}, s{sT1}
      s_mul_i32 s{sT2}, s{sCG}, {8192-1024}
      s_add_u32 s{sT2}, s{sT2}, 512
      s_sub_u32 s{sT3}, 8192, s{sT2}""")
    cm('hidden = relu(h)^2 as bf16, write-through to the workspace in MFMA operand order')
    k = 0
    for ft in range(lo, hi):
        for p in range(2):
            T = 16 + 4 * (k % 4); k += 1
            if OPT["nohst"] == 2: continue
            for h in range(2):
                d = acc1(2 + ft, 2 * p + h)
                for r in range(4): a(f"v_max_f32 v{d+r}, 0, v{d+r}")
                if OPT["nopk"] > 1: a("\n".join(f"v_mul_f32 v{d+r}, v{d+r}, v{d+r}" for r in range(4)))
                else: a(f"v_pk_mul_f32 {vr(d,2)}, {vr(d,2)}, {vr(d,2)}\n v_pk_mul_f32 {vr(d+2,2)}, {vr(d+2,2)}, {vr(d+2,2)}")
                a(f"v_cvt_pk_bf16_f32 v{T+2*h}, v{d}, v{d+1}\n v_cvt_pk_bf16_f32 v{T+2*h+1}, v{d+2}, v{d+3}")
            a(f"s_nop 1\n v_permlane16_swap_b32 v{T}, v{T+2}\n v_permlane16_swap_b32 v{T+1}, v{T+3}")
            if not OPT["nohst"]: a.vm(f"buffer_store_dwordx4 {vr(T,4)}, v{vLP}, s[{rWS}:{rWS+3}], s{sT0} offen offset:{p*2048} sc1", "hst")
        a(f"s_add_u32 s{sT0}, s{sT0}, s{sT2 if ft % 2 == 0 else sT3}")

vO = 3
vKX, vKG, vKW, vKT0, vKVD, vKR = 140, 12, 13, 24, 15, 142
KVREG = 208; vG = 253
KXF, KGF, KWF, KAC = 32, 64, 96, 128
def a_phase1():
    sISV, sR0, sSTG, sM, sSo, sSx, sGrp = sA, sB, sC, sD, sE, sF, sG
    NT = " nt" if OPT["pfnt"] else ""
    LEAD = OPT["lead"]
    for path in range(3):
        section(f"st{path}")
        cm('A, phase 1 start-up (0: W1 tiles, 1: Wq and x tiles, 2: x tiles, cache warm-up, hand-off flags)')
        a.label(f"L_st{path}")
        a.vmq.clear(); a.lgq.clear()
        ldW = ldX = pfs = lambda t, m=None: None
        trickle = []
        def trk(all_=False):
            while trickle:
                for t_ in trickle.pop(0): a.label(t_[:-1]) if t_.endswith(":") else a.lg(t_)
                if not all_: break
        if path == 0:
            a(f"s_mul_i32 s{sT0}, s{sW}, {16*7168}\n s_mul_i32 s{sT1}, s{sCB}, 448\n s_add_u32 s{sSo}, s{sT0}, s{sT1}")
            a(f"s_mul_i32 s{sM}, s{sW}, 7168\n s_movk_i32 s{sT2}, {7168-448}")
            for i in range(7):
                a(f"""v_add_u32 v16, {64*i}, v0
                  v_mul_u32_u24 v17, 2341, v16
                  v_lshrrev_b32 v17, 16, v17
                  v_bfe_u32 v18, v17, 3, 1
                  v_lshlrev_b32 v18, 1, v18
                  v_xor_b32 v16, v16, v18
                  v_lshlrev_b32 v16, 4, v16
                  v_mad_u32_u24 v{vO+i}, v17, s{sT2}, v16""")
                if i % 4: a(f"v_subrev_u32 v{vO+i}, {1024*(i%4)}, v{vO+i}")
            kwait(); srd(rB, pW1, 1024 * 7168)
            def ldW(t, m=None):
                for i in range(7):
                    if i == 4 and m: m()
                    if i % 4 == 0: a(f"s_add_u32 m0, s{sM}, {(t%4)*W1S + i*1024}\n s_nop 0")
                    a.vm(f"buffer_load_dwordx4 v{vO+i}, s[{rB}:{rB+3}], s{sSo} offen offset:{1024*(i%4)} {OPT['xfl'].replace('_', ' ')} lds", ("W", t)); trk()
                a(f"s_add_u32 s{sSo}, s{sSo}, {32*7168}")
        elif path == 1:
            a(f"""v_lshrrev_b32 v16, 3, v0
              v_lshlrev_b32 v16, 11, v16
              v_and_b32 v17, 7, v0
              v_xor_b32 v18, v17, v2
              v_lshl_add_u32 v18, v18, 4, v16
              v_and_b32 v20, 1, v2
              v_lshlrev_b32 v20, 2, v20
              v_xor_b32 v20, v20, v17
              v_lshl_add_u32 v20, v20, 4, v16
              s_lshl_b32 s{sSo}, s{sQB}, 7
              s_lshl_b32 s{sSx}, s{sRB}, 18""")
            for i in range(4):
                a(f"v_xor_b32 v19, {64*(i%2)}, v18\n v_add_u32 v{vO+i}, {i*16384 - i*1024}, v19")
                a(f"v_xor_b32 v19, {32*(i%2)}, v20\n v_add_u32 v{vO+4+i}, {i*16384 - i*1024}, v19")
            kwait(); srd(rB, pWQ, 1024 * 2048); srd(rA, pX, 2048 * 2048)
            def ldW(t, m=None):
                a(f"s_mov_b32 m0, {WQR + (t%4)*WQS}\n s_nop 0")
                for i in range(4):
                    a.vm(f"buffer_load_dwordx4 v{vO+4+i}, s[{rB}:{rB+3}], s{sSo} offen offset:{1024*i} {OPT['xfl'].replace('_', ' ')} lds", ("W", t)); trk()
                a(f"s_add_u32 s{sSo}, s{sSo}, 65536")
        else:
            assert OPT["lut"] == 0
            a(f"""s_and_b32 s{sGrp}, s{sI}, 7
              s_lshl_b32 s{sT0}, s{sGrp}, 5
              s_and_b32 s{sT1}, s2, 4
              s_lshl2_add_u32 s{sT0}, s{sT1}, s{sT0}
              s_lshr_b32 s{sT1}, s{sI}, 3
              s_lshl2_add_u32 s{sT0}, s{sT1}, s{sT0}
              s_and_b32 s{sT1}, s2, 3
              s_mul_i32 s{sSo}, s{sT0}, 7168
              s_mul_i32 s{sT2}, s{sT1}, 1792
              s_add_u32 s{sSo}, s{sSo}, s{sT2}
              s_lshl2_add_u32 s{sM}, s{sT0}, s{sT1}
              s_lshl_b32 s{sM}, s{sM}, 9
              s_and_b32 s{sT1}, s2, 7
              s_lshl_b32 s{sT1}, s{sT1}, 5
              s_add_u32 s{sT1}, s{sT1}, s{sI}
              s_lshl_b32 s{sIT}, s{sT1}, 14
              v_lshrrev_b32 v16, 3, v0
              v_lshlrev_b32 v16, 11, v16
              v_and_b32 v17, 7, v0
              v_lshl_add_u32 v{vO+4}, v17, 7, v16
              v_lshlrev_b32 v{vO+5}, 7, v0
              v_xor_b32 v18, v17, v2
              v_lshl_add_u32 v18, v18, 4, v16
              v_mul_u32_u24 v16, 7168, v2
              v_lshl_add_u32 v{vO+6}, v1, 7, v16
              v_lshrrev_b32 v16, 2, v0
              v_and_b32 v17, 3, v0
              v_lshlrev_b32 v17, 7, v17
              v_lshl_add_u32 v{vO+7}, v16, 11, v17
              s_lshl_b32 s{sSx}, s{sRB}, 18
              s_add_u32 s{sSx}, s{sSx}, 65536""")
            for i in range(4): a(f"v_xor_b32 v19, {64*(i%2)}, v18\n v_add_u32 v{vO+i}, {i*16384 - i*1024}, v19")
            a(f"s_setprio {OPT['p0prio']}")
            kwait(); srd(rA, pX, 2048 * 2048); srd(rB, pW1, 1024 * 7168); srd(rPF, pWQ, 1024 * 2048)
            def pfW(so, sm, vm):
                a("s_mov_b32 exec_lo, 0x3fff3fff\n s_mov_b32 exec_hi, 0x3fff3fff")
                vm(f"buffer_load_dword v250, v{vO+6}, s[{rB}:{rB+3}], s{so} offen{NT}")
                a("s_mov_b64 exec, 0xffff")
                vm(f"buffer_load_dword v250, v{vO+7}, s[{rPF}:{rPF+3}], s{sm} offen{NT}")
                a("s_mov_b64 exec, -1")
            def p0():
                if OPT["nopf"]: return
                a(f"s_mov_b32 exec_lo, 0x0f0f0f0f\n s_mov_b32 exec_hi, 0x0f0f0f0f")
                a.vm(f"buffer_load_dword v250, v{vO+4}, s[{rA}:{rA+3}], s{sIT} offen{NT}")
                a(f"""s_cmp_lt_u32 s{sGrp}, {LEAD}
                  s_cselect_b32 s{sT0}, s{sSo}, {OOB}
                  s_cselect_b32 s{sT1}, s{sM}, {OOB}""")
                pfW(sT0, sT1, a.vm)
                a(f"""s_cselect_b32 s{sT0}, {256*7168}, 0
                  s_cselect_b32 s{sT1}, {256*2048}, 0
                  s_add_u32 s{sSo}, s{sSo}, s{sT0}
                  s_add_u32 s{sM}, s{sM}, s{sT1}
                  s_and_b32 s{sIT}, s{sIT}, {31 << 17}
                  v_lshrrev_b32 v16, 1, v0
                  v_and_b32 v17, 1, v0
                  v_lshlrev_b32 v17, 7, v17
                  v_lshl_add_u32 v{vO+4}, v16, 11, v17""")
            def pfs(t):
                if OPT["nopf"]: return
                if t + LEAD < 32:
                    l = a.newlabel("L_np")
                    a(f"s_cmp_lg_u32 s{sGrp}, {(t+LEAD)%8}\n s_cbranch_scc1 {l}")
                    pfW(sSo, sM, a)
                    a(f"s_add_u32 s{sSo}, s{sSo}, {256*7168}\n s_add_u32 s{sM}, s{sM}, {256*2048}")
                    if t < 6:
                        for k_ in range(2):
                            a(f"buffer_load_dword v250, v{vO+4}, s[{rA}:{rA+3}], s{sIT} offen offset:{512+256*t}{NT}\n s_add_u32 s{sIT}, s{sIT}, 65536")
                    if OPT["pf2"] and t // 8 == OPT["pf2b"]:
                        srd(rD, pW2, 3584 * 2048)
                        if OPT["loc2"]:
                            a(f"""s_and_b32 s{sT0}, s2, 4
                              s_lshl3_add_u32 s{sT1}, s{sT0}, s{sI}
                              s_lshr_b32 s{sT0}, s{sT1}, 4
                              s_mul_i32 s{sT0}, s{sT0}, {896*2048}
                              s_and_b32 s{sT1}, s{sT1}, 15
                              s_lshl_b32 s{sT1}, s{sT1}, 15
                              s_add_u32 s{sT0}, s{sT0}, s{sT1}
                              s_and_b32 s{sT1}, s{sCB2}, 3
                              s_lshl_b32 s{sT1}, s{sT1}, 7
                              s_add_u32 s{sT0}, s{sT0}, s{sT1}
                              v_lshlrev_b32 v{vO+5}, 9, v0""")
                        else: a(f"s_lshr_b32 s{sT0}, s2, 6\n s_mul_i32 s{sT0}, s{sT0}, {896*2048}\n s_and_b32 s{sT1}, s2, 63\n s_lshl_b32 s{sT1}, s{sT1}, 13\n s_add_u32 s{sT0}, s{sT0}, s{sT1}")
                        a(f"buffer_load_dword v250, v{vO+5}, s[{rD}:{rD+3}], s{sT0} offen")
                    a.label(l)
        if path:
            def ldX(hb):
                u, hf = divmod(hb, 2)
                a(f"s_mov_b32 m0, {XR + (u%3)*XS + hf*8192 + (path-1)*4096}\n s_nop 0")
                for i in range(4):
                    a.vm(f"buffer_load_dwordx4 v{vO+i}, s[{rA}:{rA+3}], s{sSx} offen offset:{1024*i} {OPT['xfl'].replace('_', ' ')} lds", ("X", u)); trk()
                a(f"s_add_u32 s{sSx}, s{sSx}, {131072 if hf == 0 else (128-131072) & 0xffffffff}")
        def kvsetup():
            if OPT["evk"]: a(f"s_bfe_u32 s{sISV}, s{sPOS}, 0x10002\n s_lshr_b32 s{sR0}, s{sPOS}, 3\n s_lshl_b32 s{sR0}, s{sR0}, 2\n s_and_b32 s{sT0}, s{sPOS}, 3\n s_add_u32 s{sR0}, s{sR0}, s{sT0}")
            else: a(f"s_and_b32 s{sISV}, s{sCB}, 1\n s_lshr_b32 s{sR0}, s{sCB}, 1")
            a(f"""s_lshl_b32 s{sR0}, s{sR0}, 4
              s_lshl_b32 s{sT0}, s{sRB}, 7
              s_add_u32 s{sR0}, s{sR0}, s{sT0}
              s_cmp_eq_u32 s{sISV}, 0
              s_cselect_b32 s{rC}, s{pWK}, s{pWV}
              s_cselect_b32 s{rC+1}, s{pWK+1}, s{pWV+1}
              s_mov_b32 s{rC+2}, 65536
              s_mov_b32 s{rC+3}, 0x20000
              v_lshlrev_b32 v{vKVD}, 4, v0""")
            if path == 2:
                srd(rD, pGATE, 2048); srd(rDBG, pDBG, 256)
                a(f"s_lshl_b32 s{sT0}, s{sR0}, 5\n s_mov_b64 exec, 15")
                a.vm(f"buffer_load_dword v250, v{vO+5}, s[{rC}:{rC+3}], s{sT0} offen"); a("s_mov_b64 exec, -1")
                a(f"s_mov_b32 m0, {GT}\n s_nop 0")
                for i in range(2): a.vm(f"buffer_load_dwordx4 v{vKVD}, s[{rD}:{rD+3}], 0 offen offset:{1024*i} lds", "gt")
        if path == 2 and OPT["p0late"] == 0: p0(); kvsetup()
        if OPT["d0prio"]: a("s_setprio 2")
        ldW(0); ldX(0); ldX(1)
        if OPT["d0prio"]: a("s_setprio 1")
        if path == 2 and OPT["p0late"] == 1: p0(); kvsetup()
        ldW(1)
        if not OPT["xlate"]: ldX(2); ldX(3)
        if path == 2 and OPT["p0late"] == 2: p0(); kvsetup()
        stamp("a_iss")
        a(f"s_branch L_a1m{path}")
        section("main")
        cm('A, phase 1: LDS-DMA of the GEMM operands; K (scaled by log2(e)/sqrt(32)), V and the gate of 16 rows on the side')
        a.label(f"L_a1m{path}")
        if path == 0: srd(rA, pX, 2048 * 2048)
        if path != 2: kvsetup()
        a(f"""s_lshl_b32 s{sSTG}, s{sW}, 13
          s_add_u32 s{sSTG}, s{sSTG}, {KVST}
          s_lshl_b32 s{sT0}, s{sW}, 7
          v_lshl_add_u32 v17, v2, 4, s{sT0}
          v_add_u32 v{vKG}, {GT}, v17
          v_lshrrev_b32 v16, 3, v0
          v_add_u32 v16, s{sR0}, v16
          v_and_b32 v17, 7, v0
          v_xor_b32 v17, v17, v2
          v_lshl_add_u32 v17, v17, 4, s{sT0}
          v_lshl_add_u32 v{vKX}, v16, 11, v17
          v_xor_b32 v16, 64, v{vKX}
          v_add_u32 v{vKX+1}, {16384-1024}, v16
          v_lshrrev_b32 v16, 1, v1
          v_xor_b32 v16, v16, v2
          v_lshlrev_b32 v16, 4, v16
          v_lshl_add_u32 v16, v1, 7, v16
          v_add_u32 v{vKR}, s{sSTG}, v16
          v_xor_b32 v{vKR+1}, 64, v{vKR}
          v_lshrrev_b32 v16, 4, v0
          v_and_b32 v16, 2, v16
          v_xor_b32 v16, v16, v0
          s_lshl_b32 s{sT0}, s{sW}, 12
          v_lshl_add_u32 v{vKW}, v16, 4, s{sT0}
          v_lshrrev_b32 v16, 2, v1
          v_lshl_add_u32 v16, v2, 3, v16
          v_and_b32 v17, 3, v1
          v_lshlrev_b32 v17, 3, v17
          v_lshl_add_u32 v16, v16, 6, v17
          v_and_b32 v17, 1, v2
          v_lshl_add_u32 v16, v17, 5, v16
          v_add_u32 v{vKT0}, s{sSTG}, v16
          v_xor_b32 v{vKT0+1}, 32, v{vKT0}""")
        for r in range(12): a(f"v_mov_b32 v{KAC+r}, 0")
        def konly(l_):
            lb = a.newlabel("L_ko")
            return [f"s_cmp_lg_u32 s{sISV}, 0\n s_cbranch_scc1 {lb}"] + l_ + [lb + ":"]
        def kvX(rho):
            if 'X' in OPT['kvskip']: return
            a(f"s_add_u32 m0, s{sSTG}, 6144\n s_movk_i32 s{sT0}, {rho*512}")
            for i in range(2):
                a.vm(f"buffer_load_dwordx4 v{vKX+i}, s[{rA}:{rA+3}], s{sT0} offen offset:{1024*i} lds", ("kw", rho))
        def kvW(rho, half):
            if 'W' in OPT['kvskip']: return
            if half: a.wait0(vm=False)
            a(f"s_add_u32 m0, s{sSTG}, {4096 if half else (rho%2)*2048}\n s_mov_b32 s{sT0}, {rho*16384 + half*2048}")
            for i in range(2):
                a.vm(f"buffer_load_dwordx4 v{vKW}, s[{rC}:{rC+3}], s{sT0} offen offset:{1024*i} lds", ("kw", rho))
        def kvR(rho):
            if 'R' in OPT['kvskip']: return
            a.wait(vm=("kw", rho))
            for i in range(2):
                for nt in range(2):
                    trickle.append([f"ds_read_b64_tr_b16 {vr(KWF+8*i+4*nt+2*e,2)}, v{vKT0+nt} offset:{(4096 if i else (rho%2)*2048)+e*256}" for e in range(2)])
            trickle.append([f"ds_read_b128 {vr(KXF+4*i,4)}, v{vKR+i} offset:6144" for i in range(2)])
            trickle.append(konly([f"ds_read_b128 {vr(KGF+4*i,4)}, v{vKG} offset:{512*rho+64*i}" for i in range(2)]))
        def kvM(rho):
            if 'M' in OPT['kvskip']: return
            a.wait0(vm=False)
            lv, ld = a.newlabel("L_kv"), a.newlabel("L_kd")
            a(f"s_cmp_lg_u32 s{sISV}, 0\n s_cbranch_scc1 {lv}")
            for i in range(2):
                for nt in range(2): mf16(KAC + 4 * nt, KWF + 8 * i + 4 * nt, KXF + 4 * i)
                mf16(KAC + 8, KGF + 4 * i, KXF + 4 * i)
            a(f"s_branch {ld}")
            a.label(lv)
            for i in range(2):
                for nt in range(2): mf16(KAC + 4 * nt, KXF + 4 * i, KWF + 8 * i + 4 * nt)
            a.label(ld)
        def kvP():
            if 'P' in OPT['kvskip']: return
            a(f"v_add_u32 v16, s{sSTG}, v{vKVD}\n s_nop 5")
            if OPT["pw"] == 128:
                for nt in range(2): trickle.append([f"ds_write_b128 v16, {vr(KAC+4*nt,4)} offset:{nt*1024}"])
            elif OPT["pw"] == 64:
                for k_ in range(4): trickle.append([f"ds_write_b64 v16, {vr(KAC+2*k_,2)} offset:{(k_//2)*1024+(k_%2)*8}"])
            elif OPT["pw"] == 32:
                for k_ in range(0, 8, 2): trickle.append([f"ds_write_b32 v16, v{KAC+k2} offset:{(k2//4)*1024+(k2%4)*4}" for k2 in (k_, k_ + 1)])
            trickle.append(konly([f"ds_write_b32 v16, v{KAC+8} offset:2048"]))
            if OPT["pb"]: trk(True)
            if OPT["pb"] > 1: a.wait0(vm=False)
        def kvF():
            if 'F' in OPT['kvskip']: return
            a(f"v_add_u32 v26, {KVST}, v{vKVD}")
            for w in range(3):
                a(f"ds_read_b128 {vr(32+8*w,4)}, v26 offset:{w*8192}\n ds_read_b128 {vr(36+8*w,4)}, v26 offset:{w*8192+1024}")
            a(f"""s_lshr_b32 s{sT3}, s{sR0}, 5
              s_lshl_b32 s{sT3}, s{sT3}, 12
              s_add_u32 s{sT3}, s{sT3}, {KV_OFF}
              s_bfe_u32 s{sT4}, s{sR0}, 0x10004
              s_cmp_eq_u32 s{sISV}, 0
              s_cselect_b32 s{sT0}, {f2u(32 ** -0.5 * math.log2(math.e))}, 1.0
              s_cselect_b32 s{sT2}, 10, 3
              s_cselect_b32 s{sT5}, 0, 2048
              s_cselect_b32 s{sT1}, 8, 1024
              s_lshl_b32 s{sT4}, s{sT4}, s{sT2}
              s_add_u32 s{sT3}, s{sT3}, s{sT4}
              s_add_u32 s{sT3}, s{sT3}, s{sT5}
              s_add_u32 s{sT4}, s{sT3}, s{sT1}
              s_waitcnt lgkmcnt(0)""")
            for r in range(8):
                a(f"v_add_f32 v{32+r}, v{32+r}, v{40+r}\n v_add_f32 v{48+r}, v{48+r}, v{KAC+r}\n v_add_f32 v{32+r}, v{32+r}, v{48+r}\n v_mul_f32 v{32+r}, s{sT0}, v{32+r}")
            for r in range(4): a(f"v_cvt_pk_bf16_f32 v{40+r}, v{32+2*r}, v{33+2*r}")
            for nt in range(2): a.vm(f"buffer_store_dwordx2 {vr(40+2*nt,2)}, v{vKVD}, s[{rWS}:{rWS+3}], s{sT3+nt} offen sc1", "pub")
        def kvF2():
            if 'F' in OPT['kvskip']: return
            a(f"s_mov_b32 s{sT0}, {OOB}\n v_lshlrev_b32 v20, 2, v0\n s_cmp_lg_u32 s{sISV}, 0\n s_cbranch_scc1 L_nogate")
            for w in range(3): a(f"ds_read_b32 v{64+w}, v26 offset:{w*8192+2048}")
            a(f"""s_lshl_b32 s{sT0}, s{sR0}, 2
              s_add_u32 s{sT0}, s{sT0}, {G_OFF}
              s_waitcnt lgkmcnt(0)
              v_add_f32 v64, v64, v65
              v_add_f32 v66, v66, v{KAC+8}
              v_add_f32 v64, v64, v66
              v_mul_f32 v64, {f2u(-math.log2(math.e))}, v64
              v_exp_f32 v64, v64
              s_nop 0
              v_add_f32 v64, 1.0, v64
              v_rcp_f32 v64, v64""")
            a.label("L_nogate")
            a("s_mov_b64 exec, 0xffff")
            a.vm(f"buffer_store_dword v64, v20, s[{rWS}:{rWS+3}], s{sT0} offen sc1", "pub"); a("s_mov_b64 exec, -1")
        def kvA():
            a(f"""s_lshl_b32 s{sT0}, s{sRB}, 4
              s_add_u32 s{sT0}, s{sT0}, s{sCB}
              s_lshl_b32 s{sT0}, s{sT0}, 2
              s_add_u32 s{sT0}, s{sT0}, {KF_OFF}
              v_mov_b32 v16, 1
              v_mov_b32 v17, 0""")
            a.wait(vm="pub")
            a("s_mov_b64 exec, 1"); a.vm(f"buffer_store_dword v16, v17, s[{rWS}:{rWS+3}], s{sT0} offen sc1"); a("s_mov_b64 exec, -1")
        def clr():
            a(f"""s_and_b32 s{sT0}, s2, 0xc1
              s_cbranch_scc1 L_noclr
              s_lshl_b32 s{sT0}, s2, 11
              s_add_u32 s{sT0}, s{sT0}, {FL_OFF}
              s_lshl_b32 s{sT1}, s2, 4
              s_add_u32 s{sT1}, s{sT1}, {KF_OFF}
              v_lshrrev_b32 v16, 1, v0
              v_and_b32 v17, 1, v0
              v_lshlrev_b32 v17, 4, v17
              v_lshl_add_u32 v16, v16, 7, v17
              buffer_store_dwordx4 v[{KAC}:{KAC+3}], v16, s[{rWS}:{rWS+3}], s{sT0} offen sc1
              s_mov_b64 exec, 3
              buffer_store_dwordx4 v[{KAC}:{KAC+3}], v16, s[{rWS}:{rWS+3}], s{sT1} offen sc1
              s_mov_b64 exec, -1""")
            a.label("L_noclr")
        def clrdone():
            a(f"""s_and_b32 s{sT0}, s2, 0xc1
              s_cbranch_scc1 L_noclr2
              s_waitcnt vmcnt(0)
              s_lshl_b32 s{sT0}, s2, 1
              v_mov_b32 v16, 1
              v_mov_b32 v17, 0
              s_mov_b64 exec, 1
              buffer_store_dword v16, v17, s[{rDBG}:{rDBG+3}], s{sT0} offen sc1
              s_mov_b64 exec, -1""")
            a.label("L_noclr2")
        def kvPoll0a():
            a(f"v_and_b32 v19, 31, v0\n v_lshlrev_b32 v19, 2, v19"); a.vm(f"buffer_load_dword v18, v19, s[{rDBG}:{rDBG+3}], 0 offen sc1", "p0")
        def kvPoll0():
            a(f"s_mov_b32 s{sT1}, {SPIN_MAX}")
            a.wait(vm="p0")
            a.label("L_poll0")
            a(f"""v_cmp_ne_u32 vcc, 1, v18
              s_sub_u32 s{sT1}, s{sT1}, 1
              s_cbranch_vccz L_poll0x
              s_sleep 16
              buffer_load_dword v18, v19, s[{rDBG}:{rDBG+3}], 0 offen sc1
              s_waitcnt vmcnt(0)
              s_cmp_lg_u32 s{sT1}, 0
              s_cbranch_scc1 L_poll0""")
            a.label("L_poll0x")
        def kvPoll1a():
            a(f"s_mov_b32 s{sT3}, {KF_OFF}"); a.vm(f"buffer_load_dwordx4 v[20:23], v{vKVD}, s[{rWS}:{rWS+3}], s{sT3} offen sc1", "p1")
        def kvPoll1():
            a(f"s_mov_b32 s{sT1}, {SPIN_MAX}")
            a.wait(vm="p1")
            a.label("L_poll1")
            a(f"""v_and_b32 v20, v20, v21
              v_and_b32 v22, v22, v23
              v_and_b32 v20, v20, v22
              v_cmp_ne_u32 vcc, 1, v20
              s_sub_u32 s{sT1}, s{sT1}, 1
              s_cbranch_vccz L_poll1x
              s_sleep 16
              buffer_load_dwordx4 v[20:23], v{vKVD}, s[{rWS}:{rWS+3}], s{sT3} offen sc1
              s_waitcnt vmcnt(0)
              s_cmp_lg_u32 s{sT1}, 0
              s_cbranch_scc1 L_poll1""")
            a.label("L_poll1x")
        def kvD(c):
            if c == 0:
                a(f"s_add_u32 s{rE}, s{pWS}, {KV_OFF}\n s_addc_u32 s{rE+1}, s{pWS+1}, 0\n s_mov_b32 s{rE+2}, 0x40000\n s_mov_b32 s{rE+3}, 0x20000")
                a(f"s_lshl_b32 s{sIT}, s{sW}, 12")
            a(f"s_add_u32 m0, s{sIT}, {KVR + ((c+2)%4)*16384}\n s_add_u32 s{sT0}, s{sIT}, {c*16384}")
            for i in range(4):
                a.vm(f"buffer_load_dwordx4 v{vKVD}, s[{rE}:{rE+3}], s{sT0} offen offset:{1024*i} sc1 lds", ("kv", c))
        def kvDr(c):
            a(f"s_add_u32 s{sT0}, s{sIT}, {c*16384}")
            for i in range(4):
                a.vm(f"buffer_load_dwordx4 {vr(KVREG+16*(c-4)+4*i,4)}, v{vKVD}, s[{rE}:{rE+3}], s{sT0} offen offset:{1024*i} sc1", ("kv", c))
        def ldG():
            a(f"""s_lshl_b32 s{sT1}, s{sRB}, 9
              s_lshl_b32 s{sT2}, s{sW}, 7
              s_add_u32 s{sT1}, s{sT1}, s{sT2}
              s_add_u32 s{sT1}, s{sT1}, {G_OFF}
              v_lshlrev_b32 v22, 2, v1""")
            for h in range(2): a.vm(f"buffer_load_dword v{vG+h}, v22, s[{rWS}:{rWS+3}], s{sT1} offen offset:{64*h} sc1")
        def low(f):
            return (lambda: (a("s_setprio 0"), f(), a("s_setprio 1"))) if OPT["lowv"] else f
        post = {k: [] for k in range(33)}; pre = {k: [] for k in range(33)}; mid = {k: [] for k in range(33)}
        if not OPT["nokv"]:
            for rho in range(4):
                pre[3*rho+5].append(lambda rho=rho: kvR(rho)); mid[3*rho+6].append(lambda rho=rho: kvM(rho))
                post[3*rho+3].append(lambda rho=rho: kvX(rho))
                post[3*rho+1].append(lambda rho=rho: kvW(rho, 0)); post[3*rho+2].append(lambda rho=rho: kvW(rho, 1))
            if path < 2: pre[16].append(kvP); post[16].append(lambda: a.wait0(vm=False))
            if path == 2:
                post[0] += [clr]; pre[7].append(clrdone); post[3].append(lambda: a.wait(vm="gt"))
                post[17] += [low(kvF)]; post[18] += [low(kvF2)]; pre[18] += [kvPoll0a]; post[20] += [kvPoll0, kvA]; pre[26].append(kvPoll1a); post[27].append(kvPoll1)
            for k_ in range(4): mid[22 + k_].append(low(lambda k_=k_: attention_setup(k_)))
            post[28].append(ldG)
            for c in range(4): post[28 + c].append(lambda c=c: kvD(c))
            for c in range(OPT["kvreg"]): post[30 + c].append(lambda c=c: kvDr(4 + c))
        stamp("a_set")
        for s_ in range(32):
            a.wait(vm=[("W", s_), ("X", s_ // 2)])
            if s_ == 0: stamp("a_w0")
            if s_ == 30:
                if path < 2: a("s_branch L_a1done"); break
                a.label("L_a1done")
                a.vmq[:] = [("W", 31)] + [("kv", 1)] * 4
            a("s_barrier")
            if s_ == 0: stamp("a_b0")
            if s_ in (8, 16, 24): stamp(f"a_{s_}")
            if OPT["steps"] and path == 2 and s_ < 30:
                a("s_memtime s[98:99]"); a.wait0(vm=False); a(f"v_writelane_b32 v200, s98, {s_}")
                if s_ == 29:
                    a(f"s_lshl_b32 s98, s2, 8\n s_add_u32 s98, s98, {TS_OFF+0x10000}\n v_lshlrev_b32 v201, 2, v0\n buffer_store_dword v200, v201, s[{rWS}:{rWS+3}], s98 offen")
            for f in pre[s_]: f()
            if OPT["xlate"] and s_ == 0: ldX(2); ldX(3)
            midf = lambda: [f() for f in mid[s_]]
            if s_ + 2 < 32 and not OPT["nodma"]: ldW(s_ + 2, midf)
            if path != 0: midf()
            if OPT["xlate"] and s_ < 2:
                if s_ == 1: ldX(4); ldX(5)
            elif s_ + 4 < 32 and not OPT["nodma"]: ldX(s_ + 4)
            trk(True)
            for f in post[s_]: f()
            pfs(s_)
    a.wait(vm=[("kv", 1)])
    a.vmq[:] = [("kv", 2)] * 4 + [None if OPT["kvreg"] else ("kv", 3)] * 4
    a("s_barrier")
    attention_setup(4)
    a("s_barrier")

QF, OA, LA, SB, PB, KF, VF, ONES = 32, 48, 80, 88, 120, 136, 152, 168
vKc, vKn, vSy, vOne, vCnt, vIdx, vQa, vSt = 248, 249, 251, 252, 20, 172, 173, 174
vD, vDW = 240, 244
def wtile_offsets(dst):
    a(f"""v_lshrrev_b32 v22, 3, v0
      v_lshlrev_b32 v22, 11, v22
      v_and_b32 v23, 1, v2
      v_lshlrev_b32 v23, 2, v23
      v_and_b32 v24, 7, v0
      v_xor_b32 v23, v23, v24
      v_lshl_add_u32 v22, v23, 4, v22
      s_lshl_b32 s{sT0}, s{sCB2}, 7
      v_add_u32 v22, s{sT0}, v22""")
    for i in range(4): a(f"v_xor_b32 v23, {32*(i%2)}, v22\n v_add_u32 v{dst+i}, {i*16384-i*1024}, v23")
def lsum(t, P):
    a(f"v_smfmac_f32_16x16x64_bf16 {vr(LA+4*t,4)}, {vr(ONES,4)}, {vr(P,8)}, v{vIdx}")
sKo, sCn, sDo, sMb, sDs, sO0, sO1 = sA, sB, sC, sD, sE, sF, sG
def attention_setup(part):
    if part == 0: wtile_offsets(vDW)
    if part == 1:
        a(f"""s_lshl_b32 s{sT0}, s{sW}, 12
          s_add_u32 s{sT1}, s{sT0}, {QX}
          v_lshl_add_u32 v{vQa}, v0, 4, s{sT1}
          v_add_u32 v{vKc}, {KVR}, v{vKVD}
          v_mov_b32 v{vKn}, {SYNC}
          v_xor_b32 v22, v1, v2
          v_and_b32 v22, {14 if OPT['row4'] else 2}, v22
          v_mov_b32 v23, 0x3f803f80
          v_cmp_eq_u32 vcc, 0, v22
          v_lshl_add_u32 v{vSy}, v0, 2, v{vKn}
          v_sub_u32 v{vOne}, 1, v0
          v_max_i32 v{vOne}, 0, v{vOne}
          v_cndmask_b32 v{ONES}, 0, v23, vcc
          v_cndmask_b32 v{ONES+1}, 0, v23, vcc
          v_cndmask_b32 v{ONES+2}, 0, v23, vcc
          v_cndmask_b32 v{ONES+3}, 0, v23, vcc
          v_and_b32 v22, 1, v1
          v_mul_u32_u24 v22, 0xaaaa, v22
          v_or_b32 v{vIdx}, 0x4444, v22""")
    if part == 2:
        a(f"""v_and_b32 v22, 1, v2
          v_lshlrev_b32 v22, 9, v22
          v_lshrrev_b32 v23, 1, v2
          v_lshl_add_u32 v22, v23, 8, v22
          v_lshl_add_u32 v{vSt}, v1, 4, v22""")
        for r in range(4): a(f"v_mov_b32 v{vD+r}, v{vKVD}")
        for r in list(range(PB + 8, PB + 16, 2)) + list(range(VF + 8, VF + 16, 2)) + [SB + 30]: a(f"v_mov_b64 {vr(r,2)}, 0")
    if part == 3:
        for r in range(OA, OA + 40, 2): a(f"v_mov_b64 {vr(r,2)}, 0")
    if part == 4:
        a(f"""s_lshl_b32 s{sT0}, s{sW}, 12
          s_mov_b32 s{sCn}, 4
          s_add_u32 s{sDo}, s{sT0}, {3*16384}
          s_mov_b32 s{sDs}, 16384
          s_mov_b32 s{sKo}, 16384
          s_add_u32 s{sMb}, s{sT0}, {KVR}
          s_mul_i32 s{sO0}, s{sRB}, {RBSZ}
          s_lshl_b32 s{sT1}, s{sQB}, 14
          s_add_u32 s{sO0}, s{sO0}, s{sT1}
          s_lshl_b32 s{sT1}, s{sW}, 11
          s_add_u32 s{sO0}, s{sO0}, s{sT1}
          s_add_u32 s{sO0}, s{sO0}, {112*8192}
          s_add_u32 s{sO1}, s{sO0}, 8192
          s_mov_b32 s{sIT}, 0""")
def attention():
    qf = lambda t, s_: QF + 8 * t + 4 * s_
    inloop = []
    kvo = lambda T: ((T // 4 + 2) % 4) * 16384 + (T % 4) * 4096
    def rdK(T):
        for s_ in ([(T // 2) % 2] if OPT["skiprd"] and inloop else range(2)): a.lg(f"ds_read_b128 {vr(KF+8*(T%2)+4*s_,4)}, v{vKc} offset:{kvo(T)+1024*s_}", ("K", T))
    def rdV(T):
        for u in ([(T // 2) % 2] if OPT["skiprd"] and inloop else range(2)): a.lg(f"ds_read_b128 {vr(VF+8*(T%2)+4*u,4)}, v{vKc} offset:{kvo(T)+2048+1024*u}", ("V", T))
    for i in range(2): a.lg(f"ds_read_b128 {vr(QF+4*i,4)}, v{vQa} offset:{1024*i}")
    rdK(0)
    for i in range(2, 4): a.lg(f"ds_read_b128 {vr(QF+4*i,4)}, v{vQa} offset:{1024*i}")
    rdV(0); rdK(1)
    a.wait(lg=("K", 0))
    for k_ in range(4): mf16(SB + 4 * k_, KF + 4 * (k_ % 2), qf(0, k_ // 2), "0")
    a.wait(lg=("V", 0))
    a("s_nop 3")
    a.raw(".p2align 3")
    cm('attention: S^T = K Q^T, P = exp2(S), O^T += V^T P, row sums by a sparse MFMA; K/V stream through a 4-slot LDS ring.\nZero stands in for the row maximum here; the check after the loop falls back to the true maximum (L_slow)')
    a.label("L_att")
    inloop.append(1)
    def slot(n, hooks):
        T, t = divmod(n, 2); n1 = n + 1; T1, t1 = divmod(n1, 2); Tp, tp = divmod(n - 1, 2)
        S = SB + 16 * (n % 2); S1 = SB + 16 * (n1 % 2)
        P = PB + 8 * (n % 2); Pp = PB + 8 * ((n - 1) % 2)
        e = lambda i: a(f"v_exp_f32 v{S+i}, v{S+i}")
        c = lambda i: a(f"v_cvt_pk_bf16_f32 v{P+i}, v{S+2*i}, v{S+2*i+1}")
        h = lambda k: [f() for f in hooks.get(k, [])]
        ne = nc = 0
        for ch in OPT["pat"]:
            if ch == "e": e(ne); ne += 1
            elif ch == "c": assert ne >= 2 * nc + 2; c(nc); nc += 1
            elif ch == "p": a(f"v_cvt_pk_bf16_f32 v{Pp+7}, v{S1+14}, v{S1+15}")
            elif ch == "w": a.wait(lg=[("K", T + 1) if t == 0 else ("V", T + 1), "cnt"], vm=hooks.get("vm", ()))
            elif ch in "qrst":
                k_ = "qrst".index(ch); mf16(S1 + 4 * k_, KF + 8 * (T1 % 2) + 4 * (k_ % 2), qf(t1, k_ // 2), "0")
            elif ch in "uv": k_ = "uv".index(ch); mf16(OA + 16 * tp + 8 + 4 * k_, VF + 8 * (Tp % 2) + 4 * k_, Pp + 4)
            elif ch in "xy": k_ = "xy".index(ch); assert nc >= 4; mf16(OA + 16 * t + 4 * k_, VF + 8 * (T % 2) + 4 * k_, P)
            elif ch == "S": lsum(tp, Pp)
            else: h(int(ch))
        assert ne == 16 and nc == 8 - ("p" in OPT["pat"])
        pt = OPT["pat"]; assert pt.index("4") > max(pt.find(x) for x in "BCwtv")
    def body(it):
        for cc in range(4):
            c_ = 4 * it + cc
            for k in range(8):
                n = 8 * c_ + k; T, t = divmod(n, 2)
                hk = {4: [lambda: rdV(T + 1) if t == 0 else rdK(T + 2)]}
                KA = OPT["arrk"]
                if k == KA:
                    hk["vm"] = ("kv", c_ + 1); hk[4].append(lambda: a.lg(f"ds_add_u32 v{vSy}, v{vOne}"))
                if k == 2:
                    hk[0] = [lambda: a(f"s_add_u32 m0, s{sMb}, {((c_+1)%4)*16384}")]
                    if cc == 1: hk[1] = [lambda: a(f"s_cmp_eq_u32 s{sIT}, 3")]; hk[2] = [lambda: (a("s_cbranch_scc1 L_attwo"), a.label("L_attwo_r"))]
                if k == 3: hk[4].append(lambda: a.lg(f"ds_read_b32 v{vCnt}, v{vKn}", "cnt"))
                if k == 4: hk[5] = [lambda: a(f"v_cmp_gt_u32 vcc, s{sCn}, v{vCnt}")]
                pre_ = cc <= OPT["kvreg"]
                if k == 5:
                    hk[0] = [lambda: (a(f"s_cbranch_vccnz L_attspin{cc}"), a.label(f"L_attgo{cc}"))]
                    hk[1] = [lambda: a(f"s_add_u32 s{sCn}, s{sCn}, 4")]
                    if pre_: hk[2] = [lambda: a(f"s_cmp_eq_u32 s{sIT}, 0")]
                if k in (5, 6):
                    def dma(i):
                        if OPT["anodma"]: return
                        if pre_: a(f"s_cbranch_scc1 L_{'no' if cc == 0 else 'reg'}dma{cc}_{i}")
                        for k2 in (i, i + 1):
                            t_ = f"buffer_load_dwordx4 v{vD+k2}, s[{rE}:{rE+3}], s{sDo} offen offset:{1024*k2} sc1 lds"
                            a.vm(t_, ("kv", c_ + 3)) if c_ > OPT["kvreg"] else a(t_)
                        if pre_: a.label(f"L_nodma{cc}_{i}")
                    if OPT["dpos"] == 0: hk[4].append(lambda: dma(2 * (k - 5)))
                    elif OPT["dpos"] == 1: hk[4].insert(0, lambda: dma(2 * (k - 5)))
                    else: hk[6] = [lambda: dma(2 * (k - 5))]
                if k == 7:
                    hk[0] = [lambda: a(f"s_add_u32 s{sDo}, s{sDo}, s{sKo if cc == 1 else sDs}")]
                    if cc == 3: hk[1] = [lambda: a(f"s_add_u32 s{sIT}, s{sIT}, 1")]; hk[2] = [lambda: a(f"s_cmp_lt_u32 s{sIT}, 4")]
                slot(n, hk)
        a("s_cbranch_scc1 L_att")
    a.loop(body, "att", 3)
    a("s_nop 0")
    if "p" in OPT["pat"]: a(f"v_cvt_pk_bf16_f32 v{PB+15}, v{SB+30}, v{SB+31}\n s_nop 1")
    lsum(1, PB + 8); mf16(OA + 24, VF + 8, PB + 12); mf16(OA + 28, VF + 12, PB + 12)
    stamp("a_att")
    a(f"s_mov_b32 s{sIT}, 0")
    cm('O * gate / rowsum -> workspace')
    a.label("L_attfin")
    def fin(k):
        T_ = SB + 4 * k
        a(f"v_permlane16_swap_b32 v{T_}, v{T_+2}\n v_permlane16_swap_b32 v{T_+1}, v{T_+3}")
        a(f"buffer_store_dwordx4 {vr(T_,4)}, v{vSt}, s[{rWS}:{rWS+3}], s{sO0+k//2} offen offset:{1024*(k%2)} sc1")
    if OPT["row4"]:
        a("s_nop 7")
        for k in range(4): a(f"v_add_f32 v{24+k}, v{LA+2*k}, v{LA+2*k+1}")
        for sw in ("16", "32"):
            for k in range(4): a(f"v_mov_b32 v{28+k}, v{24+k}")
            if sw == "32": a("s_nop 0")
            for k in range(4): a(f"v_permlane{sw}_swap_b32 v{24+k}, v{28+k}")
    for k in range(4):
        if not OPT["row4"]: a(f"v_add_f32 v{24+k}, v{LA+2*k}, v{LA+2*k+1}")
        else: a("s_nop 0")
        a(f"v_rcp_f32 v22, v{24+k}")
        if k: fin(k - 1)
        else: a("s_nop 0")
        a(f"v_mul_f32 v22, v22, v{vG+k%2}")
        for r in range(4):
            d = OA + 8 * k + 2 * r
            a(f"v_mul_f32 v{d}, v{d}, v22\n v_mul_f32 v{d+1}, v{d+1}, v22\n v_cvt_pk_bf16_f32 v{SB+4*k+r}, v{d}, v{d+1}")
    a("s_nop 1"); fin(3)
    a(f"s_cmp_lg_u32 s{sIT}, 0\n s_cbranch_scc1 L_attok")
    a(f"s_waitcnt vmcnt(4) lgkmcnt(0)\n ds_add_u32 v{vSy}, v{vOne} offset:12")
    cm('stand-in check: every row sum in [2^-40, 2^100] and nothing infinite or NaN, else redo with the true maximum')
    a(f"s_mov_b32 s{sT0}, {f2u(2.0**-40)}\n s_mov_b32 s{sT1}, {f2u(2.0**100)}\n v_max3_f32 v28, v24, v25, v26\n v_max_f32 v28, v28, v27\n v_mov_b32 v29, 0")
    for r in list(range(OA, OA + 32, 2)) + [24, 26]: a(f"v_pk_fma_f32 v[28:29], {vr(r,2)}, 0, v[28:29]")
    a(f"""v_add_f32 v28, v28, v29
      v_min3_f32 v29, v24, v25, v26
      v_min_f32 v29, v29, v27
      v_cmp_nle_f32 vcc, v28, s{sT1}
      v_cmp_nge_f32 s[{sT2}:{sT3}], v29, s{sT0}
      s_or_b64 vcc, vcc, s[{sT2}:{sT3}]""")
    if OPT["forceslow"]: a("s_branch L_slow")
    a("s_cbranch_vccnz L_slow")
    a.label("L_attok")
    setflag(1)
    stamp("a_end")
    if OPT["padto"]:
        a("s_barrier\n s_barrier" if OPT["ebar"] else "s_barrier")
        a.label("L_pad2")
        a(f"s_memrealtime s[98:99]\n s_waitcnt lgkmcnt(0)\n s_sleep 8\n s_sub_u32 s98, s98, s96\n s_cmp_lt_u32 s98, {OPT['padto']}\n s_cbranch_scc1 L_pad2")
    dump_ts_and_end()
    a.label("L_attwo")
    srd(rE, pWO, 1024 * 2048)
    a(f"s_lshl_b32 s{sDo}, s{sW}, 17\n s_add_u32 s{sDo}, s{sDo}, {524288+65536}\n s_mov_b32 s{sDs}, 65536\n s_mov_b32 s{sKo}, {2*524288-65536}")
    a(f"v_mov_b64 {vr(vD,2)}, {vr(vDW,2)}\n v_mov_b64 {vr(vD+2,2)}, {vr(vDW+2,2)}\n s_branch L_attwo_r")
    for cc in range(1, OPT["kvreg"] + 1):
        for i in (() if OPT["anodma"] else (0, 2)):
            a.label(f"L_regdma{cc}_{i}")
            if i == 0: a(f"s_waitcnt vmcnt(0)\n v_add_u32 v22, s{sMb}, v{vKVD}")
            for k2 in (i, i + 1): a(f"ds_write_b128 v22, {vr(KVREG+16*(cc-1)+4*k2,4)} offset:{((cc+1)%4)*16384+1024*k2}")
            a(f"s_branch L_nodma{cc}_{i}")
    for cc in range(4):
        a.label(f"L_attspin{cc}")
        a(f"s_mov_b32 s{sT2}, {SPIN_MAX}")
        a.label(f"L_attspin{cc}b")
        a(f"""ds_read_b32 v{vCnt}, v{vKn}
          s_waitcnt lgkmcnt(0)
          v_cmp_gt_u32 vcc, s{sCn}, v{vCnt}
          s_sub_u32 s{sT2}, s{sT2}, 1
          s_cbranch_vccz L_attgo{cc}
          s_cmp_lg_u32 s{sT2}, 0
          s_cbranch_scc1 L_attspin{cc}b
          s_branch L_attgo{cc}""")
    cm('exact path: pass 1 finds the true row maximum, pass 2 subtracts it (through the accumulator input of the score MFMA)')
    a.label("L_slow")
    NM = 176
    a(f"s_add_u32 s{rE}, s{pWS}, {KV_OFF}\n s_addc_u32 s{rE+1}, s{pWS+1}, 0\n s_mov_b32 s{rE+2}, 0x40000\n s_mov_b32 s{rE+3}, 0x20000")
    a(f"s_waitcnt vmcnt(0) lgkmcnt(0)\n s_mov_b32 s{sT0}, 0\n s_mov_b32 s{sIT}, 1")
    for k in range(4): a(f"v_mov_b32 v{24+k}, 0xff800000")
    a.label("L_slow1")
    a(f"buffer_load_dwordx4 {vr(KF,4)}, v{vKVD}, s[{rE}:{rE+3}], s{sT0} offen sc1\n buffer_load_dwordx4 {vr(KF+4,4)}, v{vKVD}, s[{rE}:{rE+3}], s{sT0} offen offset:1024 sc1\n s_waitcnt vmcnt(0)")
    for k in range(8): mf16(SB + 4 * k, KF + 4 * (k % 2), QF + 4 * (k // 2), "0")
    a("s_nop 7")
    for k in range(4):
        for r in range(0, 8, 2): a(f"v_max3_f32 v{24+k}, v{SB+8*k+r}, v{SB+8*k+r+1}, v{24+k}")
    a(f"s_add_u32 s{sT0}, s{sT0}, 4096\n s_cmp_lt_u32 s{sT0}, 0x40000\n s_cbranch_scc1 L_slow1")
    for sw in ("16", "32"):
        for k in range(4): a(f"v_mov_b32 v{28+k}, v{24+k}")
        a("s_nop 1")
        for k in range(4): a(f"v_permlane{sw}_swap_b32 v{24+k}, v{28+k}")
        for k in range(4): a(f"v_max_f32 v{24+k}, v{24+k}, v{28+k}")
    for k in range(4):
        for r in range(4): a(f"v_sub_f32 v{NM+4*k+r}, 0, v{24+k}")
    for r in range(OA, OA + 40, 2): a(f"v_mov_b64 {vr(r,2)}, 0")
    a(f"s_mov_b32 s{sT0}, 0")
    a.label("L_slow2")
    for i in range(4):
        a(f"buffer_load_dwordx4 {vr(KF+4*i,4)}, v{vKVD}, s[{rE}:{rE+3}], s{sT0} offen offset:{1024*i} sc1")
    a("s_waitcnt vmcnt(0)")
    for k in range(8): mf16(SB + 4 * k, KF + 4 * (k % 2), QF + 4 * (k // 2), vr(NM + 4 * (k // 2), 4))
    a("s_nop 7")
    for r in range(32): a(f"v_exp_f32 v{SB+r}, v{SB+r}")
    a("s_nop 0")
    for r in range(16): a(f"v_cvt_pk_bf16_f32 v{PB+r}, v{SB+2*r}, v{SB+2*r+1}")
    a("s_nop 1")
    for k in range(8): mf16(OA + 4 * k, KF + 8 + 4 * (k % 2), PB + 4 * (k // 2))
    for t in range(2): lsum(t, PB + 8 * t)
    a(f"s_add_u32 s{sT0}, s{sT0}, 4096\n s_cmp_lt_u32 s{sT0}, 0x40000\n s_cbranch_scc1 L_slow2")
    a("s_nop 7\n s_nop 3\n s_branch L_attfin")

def setflag(which):
    if which == 0: a(f"s_lshr_b32 s{sT1}, s{sCB}, 2\n s_and_b32 s{sT2}, s{sCB}, 3")
    else: a(f"s_and_b32 s{sT1}, s{sQB}, 3\n s_and_b32 s{sT2}, s{sQB}, 12\n s_lshr_b32 s{sT2}, {sum(k << (4 * g) for k, g in enumerate(GRP))}, s{sT2}\n s_and_b32 s{sT2}, s{sT2}, 3")
    a(f"""s_lshl_b32 s{sT0}, s{sRB}, 13
      s_lshl_b32 s{sT1}, s{sT1}, 7
      s_add_u32 s{sT0}, s{sT0}, s{sT1}
      s_lshl2_add_u32 s{sT0}, s{sT2}, s{sT0}
      s_add_u32 s{sT0}, s{sT0}, {FL_OFF+16*which}
      v_mov_b32 v17, {SYNC+4+4*which}
      v_mov_b32 v15, 1""")
    if which == 0:
        if OPT["noack"] < 2: a.wait(vm="hst")
    elif OPT["noack"] & 1: a("s_waitcnt vmcnt(4)")
    else: a.wait0(lg=False)
    l = a.newlabel("L_nofl")
    a(f"""s_mov_b64 exec, 1
      ds_add_rtn_u32 v16, v17, v15
      s_mov_b64 exec, 0xffff
      v_lshlrev_b32 v17, 9, v0
      s_waitcnt lgkmcnt(0)
      v_readfirstlane_b32 s{sT1}, v16
      s_cmp_eq_u32 s{sT1}, 3
      s_cbranch_scc0 {l}
      buffer_store_dword v15, v17, s[{rWS}:{rWS+3}], s{sT0} offen {OPT['sfl'].replace('_', ' ')}""")
    a.label(l)
    a("s_mov_b64 exec, -1")
    a.lgq.clear()
def mbox(which):
    a(f"""s_lshl_b32 s{sT0}, s{sRB2}, 4
      s_add_u32 s{sT0}, s{sT0}, s{sCB2}
      s_lshl_b32 s{sT0}, s{sT0}, 2
      s_add_u32 s{sT0}, s{sT0}, s{sW}
      s_lshl_b32 s{sT0}, s{sT0}, 7
      s_add_u32 s{sT0}, s{sT0}, {FL_OFF+16*which}
      v_and_b32 v15, 3, v0
      v_lshlrev_b32 v15, 2, v15""")
def waitflag(which, name):
    mbox(which)
    a(f"s_mov_b32 s{sT1}, {SPIN_MAX}\n s_mov_b64 exec, 15")
    a.label(name)
    a(f"""buffer_load_dword v17, v15, s[{rWS}:{rWS+3}], s{sT0} offen {OPT['pfl'].replace('_', ' ')}
      s_waitcnt vmcnt(0)
      v_cmp_ne_u32 vcc, 1, v17
      s_sub_u32 s{sT1}, s{sT1}, 1
      s_cbranch_vccz {name}_x
      s_sleep {OPT['slp']}
      s_cmp_lg_u32 s{sT1}, 0
      s_cbranch_scc1 {name}""")
    a.label(name + "_x")
    a("s_mov_b64 exec, -1")
def waitlds(off, val, name, va=15):
    a(f"s_mov_b32 s{sT1}, {SPIN_MAX}\n v_mov_b32 v{va}, {SYNC+off}")
    a.label(name)
    a(f"""ds_read_b32 v17, v{va}
      s_waitcnt lgkmcnt(0)
      v_readfirstlane_b32 s{sT0}, v17
      s_cmp_ge_u32 s{sT0}, {val}
      s_cbranch_scc1 {name}_x
      s_sleep 2
      s_sub_u32 s{sT1}, s{sT1}, 1
      s_cmp_lg_u32 s{sT1}, 0
      s_cbranch_scc1 {name}""")
    a.label(name + "_x")

ACC2, HR, WF = 128, 64, 32
acc2 = lambda rt, nt: ACC2 + (rt * 4 + nt) * 4
vWD, vWR, vH, vGM = 3, 7, 11, 16
sWo, sHo, sMw, sRdy = sC, sD, sE, sF
def g2_vsetup():
    wtile_offsets(vWD)
    a(f"""s_lshl_b32 s{sT0}, s{sW}, 14
      v_lshrrev_b32 v14, 2, v1
      v_lshl_add_u32 v14, v2, 3, v14
      v_and_b32 v15, 3, v1
      v_lshlrev_b32 v15, 3, v15
      v_lshl_add_u32 v14, v14, 7, v15
      v_and_b32 v15, 1, v2
      v_lshrrev_b32 v30, 3, v1
      v_lshl_add_u32 v15, v30, 1, v15
      v_lshl_add_u32 v14, v15, 5, v14
      v_add_u32 v14, s{sT0}, v14""")
    for nt in range(4): a(f"v_xor_b32 v{vWR+nt}, {32*nt}, v14")
    for p in range(4):
        a(f"s_add_u32 s{sT0}, s{sW}, {p+1}\n s_and_b32 s{sT0}, s{sT0}, 3\n s_lshl_b32 s{sT0}, s{sT0}, 11\n v_lshl_add_u32 v{vH+p}, v0, 4, s{sT0}")
def g2_setup():
    srd(rB, pW2, 3584 * 2048)
    a(f"s_lshl_b32 s{sMw}, s{sW}, 14\n s_mul_i32 s{sWo}, s{sW}, {896*2048}")
def dmaW(i, k):
    if k == 0: a(f"s_add_u32 m0, s{sMw}, {(i%4)*4096}\n s_nop 0")
    a.vm(f"buffer_load_dwordx4 v{vWD+k}, s[{rB}:{rB+3}], s{sWo} offen offset:{1024*k} lds", ("W2", i // 2))
    if k == 3: a(f"s_add_u32 s{sWo}, s{sWo}, 65536")
def g_phase2():
    sHp, sMbx, sOb, sDl = sB, 4, 5, 6
    vPo = 29
    def ldH(i, rt):
        a.vm(f"buffer_load_dwordx4 {vr(HR+32*(i%2)+4*rt,4)}, v{vH+rt//2}, s[{rWS}:{rWS+3}], s{sHp if i % 2 else sHo} offen offset:{1024*(rt%2)} sc1", ("H", i // 2, rt // 2))
    WOFF = {32: 0, 33: 49152, 34: 49152, 35: 0}
    def rdW2(i, nt, e):
        a.lg(f"ds_read_b64_tr_b16 {vr(WF+16*(i%2)+4*nt+2*e,2)}, v{vWR+nt} offset:{WOFF.get(i, (i%4)*4096)+512*e}", ("W2", i // 2, nt))
    cm('G, phase 2: out tile [128 x 64] = (1-g) (hidden W2 + b2) + (g O) Wo, K split over the four waves')
    setflag(0)
    stamp("g_flag")
    if OPT["nog2"]: dump_ts_and_end()
    a(f"""s_mul_i32 s{sHo}, s{sRB2}, {RBSZ}
      s_mul_i32 s{sT1}, s{sW}, {28*8192}
      s_add_u32 s{sHo}, s{sHo}, s{sT1}
      s_lshl_b32 s{sT2}, s{sRB2}, 9
      s_add_u32 s{sT2}, s{sT2}, {G_OFF}
      v_lshlrev_b32 v15, 2, v1""")
    for p in range(4):
        a(f"""s_add_u32 s{sT0}, s{sW}, {p+1}
          s_and_b32 s{sT0}, s{sT0}, 3
          s_lshl_b32 s{sT0}, s{sT0}, 7
          s_add_u32 s{sT0}, s{sT0}, s{sT2}""")
        for h in range(2): a(f"buffer_load_dword v{vGM+4*p+2*h}, v15, s[{rWS}:{rWS+3}], s{sT0} offen offset:{64*h} sc1")
    if OPT["loc2"]:
        assert OPT["map2"] == 5
        a(f"""s_and_b32 s{sT0}, s2, 4
          s_lshl3_add_u32 s{sT3}, s{sT0}, s{sI}
          s_lshl_b32 s{sT0}, s{sW}, 6
          s_add_u32 s{sT0}, s{sT0}, s{sT3}
          s_lshr_b32 s{sG}, s{sT0}, 5
          s_bfe_u32 s{sT1}, s{sT0}, 0x20003
          s_mul_i32 s{sT1}, s{sT1}, {896*2048}
          s_and_b32 s{sT0}, s{sT0}, 7
          s_lshl_b32 s{sT0}, s{sT0}, 15
          s_add_u32 s{sT0}, s{sT0}, s{sT1}
          s_add_u32 s{sT1}, s{sG}, 2
          s_lshl_b32 s{sT1}, s{sT1}, 18
          s_add_u32 s{sT0}, s{sT0}, s{sT1}
          s_cmp_eq_u32 s{sG}, 5
          s_cselect_b32 s{sG}, -1, s{sG}
          s_lshl_b32 s{sT1}, s{sT3}, 15
          s_and_b32 s{sT2}, s{sCB2}, 3
          s_lshl_b32 s{sT2}, s{sT2}, 7
          s_add_u32 s{sT0}, s{sT0}, s{sT2}
          s_add_u32 s{sT1}, s{sT1}, s{sT2}
          s_and_b32 s{sT2}, s{sI}, 1
          s_add_u32 s{sT2}, s{sT2}, {OPT["woit"]}""")
    else:
        if OPT["ev2"]: a(f"s_lshl_b32 s{sT0}, s{sW}, 8\n s_add_u32 s{sT0}, s{sT0}, s2")
        else: a(f"s_lshl_b32 s{sT0}, s2, 1\n s_add_u32 s{sT0}, s{sT0}, s{sW}\n s_add_u32 s{sT1}, s2, 512\n s_cmp_eq_u32 s{sW}, 2\n s_cselect_b32 s{sT0}, s{sT1}, s{sT0}")
        a(f"""
          s_lshr_b32 s{sG}, s{sT0}, 7
          s_bfe_u32 s{sT1}, s{sT0}, 0x20005
          s_mul_i32 s{sT1}, s{sT1}, {896*2048}
          s_and_b32 s{sT0}, s{sT0}, 31
          s_lshl_b32 s{sT0}, s{sT0}, 13
          s_add_u32 s{sT0}, s{sT0}, s{sT1}
          s_add_u32 s{sT1}, s{sG}, 2
          s_lshl_b32 s{sT1}, s{sT1}, 18
          s_add_u32 s{sT0}, s{sT0}, s{sT1}
          s_cmp_eq_u32 s{sG}, 5
          s_cselect_b32 s{sG}, -1, s{sG}
          s_lshl_b32 s{sT1}, s2, 13
          s_and_b32 s{sT2}, s{sI}, 1""")
    a(f"""
      s_cmp_eq_u32 s{sW}, 3
      s_cselect_b32 s{sA}, s{sT1}, s{sT0}
      s_cselect_b32 s{sG}, s{sT2}, s{sG}
      s_cselect_b32 s{rPF}, s{pWO}, s{pW2}
      s_cselect_b32 s{rPF+1}, s{pWO+1}, s{pW2+1}
      s_mov_b32 s{sT0}, {3584*2048}
      s_cselect_b32 s{rPF+2}, {1024*2048}, s{sT0}
      s_mov_b32 s{rPF+3}, 0x20000""")
    if OPT["ev2"] and not OPT["loc2"]: a(f"s_bitcmp1_b32 s2, 0\n s_cselect_b32 s{sG}, -1, s{sG}")
    stamp("g_pw")
    waitflag(0, "L_wh")
    stamp("g_wf")
    a.vmq.clear(); a.lgq.clear()
    rds = lambda D, nt: [lambda e_=e_, k=k: rdW2(2 * D + e_, nt, k) for e_ in range(2) for k in range(2)]
    def ldP(D, ps):
        for p in ps:
            for h in range(2): ldH(2 * D, 2 * p + h); ldH(2 * D + 1, 2 * p + h)
    pend = []
    def dstep(D, fine, extra={}, at={}):
        for p in range(4):
            ex = list(extra.get(p, [])); lq = []
            if p in at: at[p]()
            if p in (1, 2) and D < 14: lq = [lambda k=k: dmaW(2 * D + 3 + p, k) for k in range(4)]
            if OPT["gdma"] and fine and D < 14 and p == 0:
                lq = [lambda: None, lambda: None] + [lambda k=k: (a(f"s_add_u32 m0, s7, {KVR + (D % 2) * 16384}\n s_add_u32 s8, s8, 16384") if k == 0 else None,
                      a.vm(f"buffer_load_dwordx4 v{vH+3}, s[{rWS}:{rWS+3}], s8 offen offset:{1024*k} sc1 lds")) for k in range(4)]
            for nt in range(4):
                if p == 0: lgw = [("W2", D, nt)] if fine else ([("W2", D, nt + 1)] if nt % 2 == 0 else [])
                else: lgw = []
                a.wait(vm=([("H", D, p)] + ([("W2", D + 1)] if p == 3 else [])) if nt == 0 else [], lg=lgw)
                if OPT["chain"]: seq = [(nt % 2, 0), (nt % 2, 1), (1 - nt % 2, 1), (1 - nt % 2, 0)]
                else: seq = [(0, 0), (1, 0), (1, 1), (0, 1)]
                for n, (h, e) in enumerate(seq):
                    first = (h, 1 - e) not in seq[:n]
                    mf16(acc2(2 * p + h, nt), WF + 16 * e + 4 * nt, HR + 32 * e + 4 * (2 * p + h), "0" if D == 0 and first else None)
                    if fine:
                        if pend: pend.pop(0)()
                        if nt == 3 and D < 17: ldH(2 * D + 2 + e, 2 * p + h)
                        elif lq and n % 2: lq.pop(0)()
                        x = ex.pop(0) if ex else None
                        if callable(x): x()
                        elif x: a(x)
                if p == 3 and D < 17: pend.extend(rds(D + 1, nt))
                if not fine and nt == 1:
                    while pend: pend.pop(0)()
                    while lq: lq.pop(0)()
                    if OPT["gdma"] and p in (0, 3):
                        a(f"s_add_u32 m0, s7, {KVR + (D % 2) * 16384}\n s_nop 0")
                        for k in ((0, 1) if p == 0 else (2, 3)): a.vm(f"buffer_load_dwordx4 v{vH+3}, s[{rWS}:{rWS+3}], s8 offen offset:{1024*k} sc1 lds")
                        if p == 3: a("s_add_u32 s8, s8, 16384")
                if not fine and nt == 3:
                    if (p, "ld") in at: at[p, "ld"]()
                    ldP(D + 1, [p])
            assert not ex and not lq
        if D < 12: a(f"s_add_u32 s{sHo}, s{sHo}, 16384\n s_add_u32 s{sHp}, s{sHp}, 16384")
    for nt in range(4):
        for f in rds(0, nt): f()
    a(f"s_add_u32 s{sHp}, s{sHo}, 8192")
    ldP(0, range(4))
    a(f"s_add_u32 s{sHo}, s{sHo}, 16384\n s_add_u32 s{sHp}, s{sHp}, 16384")
    for rt in range(8): a(f"v_sub_f32 v{vGM+2*rt}, 1.0, v{vGM+2*rt}")
    stamp("g_l2")
    a(f"s_setprio {OPT['g2prio']}\n s_mov_b32 s{sIT}, 0")
    if OPT["gdma"]: a(f"s_lshl_b32 s7, s{sW}, 12\n s_lshl_b32 s8, s{sW}, 11\n s_add_u32 s8, s8, {KV_OFF}")
    fine = [not int(c) for c in OPT["gp"][1:3]]
    dstep(0, fine[1])
    stamp("g_s0")
    a.raw(".p2align 3")
    cm('FFN double steps (runs beside the attention waves)')
    a.label("L_g2loop")
    def body(it):
        if OPT["pf2"]: a(f"s_cmp_eq_u32 s{sIT}, s{sG}\n s_cbranch_scc1 L_hookF"); a.label("L_hookF_r")
        dstep(2 * it + 1, fine[0])
        a(f"s_cmp_ge_u32 s{sIT}, 4\n s_cbranch_scc1 L_hookW"); a.label("L_hookW_r")
        dstep(2 * it + 2, fine[1])
        a(f"s_add_u32 s{sIT}, s{sIT}, 1\n s_cmp_lt_u32 s{sIT}, 6\n s_cbranch_scc1 L_g2loop")
    a.loop(body, "g2")
    sh = lambda q: [x and (x[0], x[1] + 6) + x[2:] for x in q]
    a.vmq[:] = sh(a.vmq); a.lgq[:] = sh(a.lgq)
    pend[:] = [f for nt in range(4) for f in rds(13, nt)][16 - len(pend):]
    stamp("g_25")
    cm("last FFN double step, then the output projection: four producers in a fixed order, looked up in this wave's mailbox")
    mbox(1)
    a(f"""s_add_u32 s{sWo}, s{sWo}, {((GRP[1]-GRP[0])*524288-131072) & 0xffffffff}
      s_mov_b32 s{sMbx}, s{sT0}
      s_mul_i32 s{sOb}, s{sRB2}, {RBSZ}
      s_add_u32 s{sOb}, s{sOb}, s{sMw}
      s_lshl_b32 s{sDl}, s{sW}, 12
      s_add_u32 s{sDl}, s{sDl}, {QX}
      s_sub_u32 s{sDl}, s{sDl}, s{sMw}""")
    def poll(): a.vm(f"buffer_load_dword v{vPo}, v15, s[{rWS}:{rWS+3}], s{sMbx} offen sc1", "poll")
    chk = lambda sl: f"""v_cmp_eq_u32 vcc, 1, v{vPo}
      s_add_u32 s{sHo}, s{sOb}, {(112+8*GRP[sl])*8192}
      s_bitcmp1_b32 vcc_lo, {sl}
      s_cselect_b32 s{sRdy}, 1, 0
      s_cselect_b32 s{sHo}, s{sHo}, {OOB}
      s_add_u32 s{sHp}, s{sHo}, 8192""".split("\n")
    behind = {}
    def npoll(): return a.vmq[::-1].index("poll") if "poll" in a.vmq else 62
    def again(sl):
        behind["s", sl] = npoll()
        a(f"s_cmp_eq_u32 s{sRdy}, 0\n s_cbranch_scc1 L_sec{sl}")
        a.label(f"L_sec{sl}_r")
        poll()
    def join(sl):
        behind["b", sl] = npoll()
        a(f"s_cmp_eq_u32 s{sRdy}, 0\n s_cbranch_scc1 L_blk{sl}")
        a.label(f"L_join{sl}")
        a.vmq[:] = [("H", 14 + sl, p) for p in range(4) for _ in range(4)]
    def late(sl):
        a.label(f"L_sec{sl}")
        a(f"s_waitcnt vmcnt({behind['s', sl]})")
        a("\n".join(chk(sl)))
        a(f"s_cmp_eq_u32 s{sRdy}, 0\n s_cbranch_scc1 L_sec{sl}_r")
        ldP(14 + sl, (0, 1))
        a(f"s_branch L_sec{sl}_r")
        a.label(f"L_blk{sl}")
        a(f"s_mov_b32 s{sT5}, {SPIN_MAX}\n s_waitcnt vmcnt({behind['b', sl]})\n s_branch L_blk{sl}b")
        a.label(f"L_blk{sl}a")
        a(f"s_sleep {OPT['slp']}"); poll(); a.wait0(lg=False)
        a(f"s_sub_u32 s{sT5}, s{sT5}, 1\n s_cbranch_scc0 L_blk{sl}b\n v_mov_b32 v{vPo}, 1")
        a.label(f"L_blk{sl}b")
        a("\n".join(chk(sl)))
        a(f"s_cmp_eq_u32 s{sRdy}, 0\n s_cbranch_scc1 L_blk{sl}a")
        ldP(14 + sl, range(4))
        a(f"s_branch L_join{sl}")
    poll()
    dstep(13, False, at={(0, "ld"): lambda: (a.wait(vm="poll"), a("\n".join(chk(0))), poll()), 2: lambda: again(0)})
    srd(rA, pB2, 2048); srd(rC, pOUT, 2048 * 2048)
    while pend: pend.pop(0)()
    join(0)
    stamp("g_hook")
    sc = lambda p: [f"v_pk_mul_f32 {vr(ACC2+32*p+16*h+4*nt+r,2)}, {vr(ACC2+32*p+16*h+4*nt+r,2)}, {vr(vGM+4*p+2*h,2)} op_sel_hi:[1,0]"
                    for nt in range(4) for h in range(2) for r in (0, 2)]
    for x in sc(0): a(x)
    vS0, vS1, vB2 = 3, 4, 18
    def wr(p, k):
        if OPT["nowr"]: return
        if p < 2: a.lg(f"ds_write_b128 v{vS0}, {vr(ACC2+32*p+4*k,4)} offset:{8192*p+1024*k}")
        else: a.lg(f"ds_write_b128 v{vS1}, {vr(ACC2+32*p+4*k,4)} offset:{16384*(k//4)+1024*(k%4)}")
    OWN = ACC2 + 96
    vRd = [5, 6, 16]; vTw = [11, 12, 13, 14]; vTr, vOo = 26, 27
    sc2 = lambda p: ["\n".join(f"v_mul_f32 v{ACC2+32*p+16*h+4*nt+r+u}, v{vGM+4*p+2*h}, v{ACC2+32*p+16*h+4*nt+r+u}" for u in range(2))
                     for nt in range(4) for h in range(2) for r in (0, 2)]
    extra = {(0, p): sc2(p + 1) for p in range(3)}
    two = lambda l_: ["\n".join(l_[k:k+2]) for k in range(0, len(l_), 2)]
    wp = lambda sl: a(f"s_waitcnt vmcnt({behind['b', sl]})")
    for D in (1, 2): extra[D, 0] = [None] * 7 + [lambda D=D: wp(D)] + two(chk(D + 1)) + [poll]
    t_ = f"""s_lshl_b32 s{sT0}, s{sCB2}, 7
      v_lshlrev_b32 v16, 3, v2
      v_lshl_add_u32 v{vS0}, v0, 4, s{sMw}
      v_add_u32 v{vS1}, s{sDl}, v{vS0}""".split("\n")
    extra[1, 2] = [f"v_mov_b32 v17, {SYNC+12}", None, lambda: a.lg("ds_read_b32 v31, v17", "wa")] + [None] * 7 + [
        lambda: (a.wait(lg="wa"), a("v_cmp_gt_u32 vcc, 4, v31")), lambda: (a("s_cbranch_vccnz L_wa0"), a.label("L_wa_r"))]
    extra[1, 1] = t_ + [f"v_add_u32 v{vWR+nt}, s{sDl}, v{vWR+nt}" for nt in range(4)] + [lambda nt=nt: a.vm(f"buffer_load_dwordx2 {vr(vB2+2*nt,2)}, v16, s[{rA}:{rA+3}], s{sT0} offen offset:{32*nt}", "b2") for nt in range(4)]
    t_ = []
    for p in range(3):
        t_ += [f"s_sub_u32 s{sT1}, s{sW}, {p+1}\n s_and_b32 s{sT1}, s{sT1}, 3"]
        if p < 2: t_ += [f"s_lshl_b32 s{sT1}, s{sT1}, 14\n v_lshl_add_u32 v{vRd[p]}, v0, 4, s{sT1}"]
        else: t_ += [f"s_lshl_b32 s{sT1}, s{sT1}, 12\n s_add_u32 s{sT1}, s{sT1}, {QX}", f"v_lshl_add_u32 v{vRd[p]}, v0, 4, s{sT1}"]
    assert len(t_) == 7; rdadr = t_
    fm = []
    for nt in range(4):
        for r in range(2):
            fm += [f"v_lshlrev_b32 v{vTr}, 16, v{vB2+2*nt+r}\n v_and_b32 v{vTr+1}, 0xffff0000, v{vB2+2*nt+r}"]
            fm += ["\n".join(f"v_fmac_f32 v{OWN+16*h+4*nt+2*r+u}, v{vTr+u}, v{vGM+12+2*h}" for u in range(2)) for h in range(2)]
    extra[2, 0][4:6] = two([f"v_add_u32 v{vWR+nt}, 16384, v{vWR+nt}" for nt in range(4)])
    extra[2, 1] = rdadr + [None] + fm[:8]; extra[2, 2] = fm[8:]
    t_ = f"""s_lshl_b32 s{sT2}, s{sW}, 12
      s_add_u32 s{sT2}, s{sT2}, {KVR+16384}
      v_lshrrev_b32 v15, 3, v0
      v_and_b32 v17, 7, v0
      v_xor_b32 v{vTr}, v15, v17
      v_lshlrev_b32 v{vTr}, 4, v{vTr}
      v_lshl_add_u32 v{vTr}, v15, 7, v{vTr}
      v_add_u32 v{vTr}, s{sT2}, v{vTr}
      v_lshlrev_b32 v{vOo}, 4, v17
      v_lshl_add_u32 v{vOo}, v15, 11, v{vOo}
      v_and_b32 v15, 7, v1
      v_lshrrev_b32 v17, 1, v2
      v_xor_b32 v15, v15, v17
      v_lshlrev_b32 v15, 4, v15
      v_and_b32 v17, 1, v2
      v_lshl_add_u32 v15, v17, 3, v15
      v_lshl_add_u32 v15, v1, 7, v15
      v_add_u32 v{vTw[0]}, s{sT2}, v15
      v_xor_b32 v{vTw[1]}, 32, v{vTw[0]}
      v_xor_b32 v{vTw[2]}, 64, v{vTw[0]}
      v_xor_b32 v{vTw[3]}, 96, v{vTw[0]}
      s_lshl_b32 s{sT0}, s{sCB2}, 7
      s_lshl_b32 s{sT1}, s{sRB2}, 18
      s_add_u32 s{sT0}, s{sT0}, s{sT1}
      s_lshl_b32 s{sT1}, s{sW}, 16
      s_add_u32 s{sT0}, s{sT0}, s{sT1}""".split("\n")
    extra[3, 0] = ["\n".join(t_[2*k:2*k+2]) for k in range(13)]
    worder = [0, 4, 1, 5, 2, 6, 3, 7]
    for p in range(1, 4): extra[3, p] = [x for k in worder for x in (None, (lambda k=k, p=p: wr(p - 1, k)))]
    def rdp(p, k):
        a.lg(f"ds_read_b128 {vr(ACC2+32*p+4*k,4)}, v{vRd[p]} offset:{8192*p+1024*k if p < 2 else 16384*(k//4)+1024*(k%4)}", ("r", p // 2, k))
    x0 = extra[0, 0][10]; extra[0, 0][10] = lambda: (a(x0), wp(0), a("\n".join(chk(1))), poll())
    a("s_nop 0")
    for D in range(4):
        if D: join(D)
        if D == 2: stamp("g_32")
        dstep(14 + D, True, {p: extra.get((D, p), []) for p in range(4)}, {2: lambda: again(D + 1)} if D < 3 else {})
    cm('sum of the four K quarters through LDS, bf16, whole-line stores')
    a.wait0(vm=False)
    stamp("g_36")
    a("s_barrier")
    stamp("g_bar")
    for k in range(4):
        for p in range(3): rdp(p, k)
    def st(g_):
        a.wait(lg=("u", g_ // 2, g_ % 2))
        a(f"buffer_store_dwordx4 {vr(HR+32+4*g_,4)}, v{vOo}, s[{rC}:{rC+3}], s{sT0} offen{['', ' sc1', ' nt'][OPT['osc']]}")
        if g_ < 3: a(f"s_add_u32 s{sT0}, s{sT0}, 16384")
    for k in range(8):
        a.wait(lg=("r", 1, k))
        if k < 4:
            for p in range(3): rdp(p, k + 4)
        for r in (0, 2): a(f"v_pk_add_f32 {vr(ACC2+4*k+r,2)}, {vr(ACC2+4*k+r,2)}, {vr(ACC2+32+4*k+r,2)}")
        for r in (0, 2): a(f"v_pk_add_f32 {vr(OWN+4*k+r,2)}, {vr(OWN+4*k+r,2)}, {vr(ACC2+64+4*k+r,2)}")
        for r in (0, 2): a(f"v_pk_add_f32 {vr(OWN+4*k+r,2)}, {vr(OWN+4*k+r,2)}, {vr(ACC2+4*k+r,2)}")
        T_ = HR + 2 * k
        a(f"v_cvt_pk_bf16_f32 v{T_}, v{OWN+4*k}, v{OWN+4*k+1}\n v_cvt_pk_bf16_f32 v{T_+1}, v{OWN+4*k+2}, v{OWN+4*k+3}")
        a.lg(f"ds_write_b64 v{vTw[k%4]}, {vr(HR+2*k,2)} offset:{2048*(k//4)}")
        if k % 4 == 3:
            for h in range(2): a.lg(f"ds_read_b128 {vr(HR+32+8*(k//4)+4*h,4)}, v{vTr} offset:{2048*(k//4)+1024*h}", ("u", k // 4, h))
    for g_ in range(4): st(g_)
    if OPT["ts"]: a.wait0(); stamp("g_end")
    if OPT["padto"]:
        a.label("L_pad")
        a(f"s_memrealtime s[98:99]\n s_waitcnt lgkmcnt(0)\n s_sub_u32 s98, s98, s96\n s_cmp_lt_u32 s98, {OPT['padto']}\n s_cbranch_scc1 L_pad")
    dump_ts_and_end()
    cm('out-of-line waits (all bounded) and loop hooks')
    for sl in range(4): late(sl)
    a.label("L_wa0")
    waitlds(12, 4, "L_wa", 31)
    a("s_branch L_wa_r")
    if OPT["pf2"]:
        a.label("L_hookF")
        a(f"v_lshlrev_b32 v15, {9 if OPT['loc2'] else 7}, v0\n buffer_load_dword v19, v15, s[{rPF}:{rPF+3}], s{sA} offen")
        if OPT["ev2"] and not OPT["loc2"]: a(f"s_add_u32 s{sA}, s{sA}, 8192\n buffer_load_dword v19, v15, s[{rPF}:{rPF+3}], s{sA} offen")
        a("s_branch L_hookF_r")
    a.label("L_hookW")
    a(f"s_cmp_eq_u32 s{sIT}, 4\n s_cbranch_scc1 L_hookQ")
    a(f"s_mov_b32 s{rB}, s{pWO}\n s_mov_b32 s{rB+1}, s{pWO+1}\n s_mov_b32 s{rB+2}, {1024*2048}\n s_lshl_b32 s{sWo}, s{sW}, 17\n s_add_u32 s{sWo}, s{sWo}, {GRP[0]*524288}\n s_branch L_hookW_r")
    a.label("L_hookQ")
    stamp("g_17")
    waitlds(0, 4, "L_wq")
    srd(rA, pWO, 1024 * 2048)
    a(f"s_lshl_b32 s{sT0}, s{sW}, 12\n s_add_u32 m0, s{sT0}, {QX}\n s_lshl_b32 s{sT0}, s{sW}, 17\n s_add_u32 s{sT0}, s{sT0}, 524288")
    for k in range(4): a(f"buffer_load_dwordx4 v{vWD+k}, s[{rA}:{rA+3}], s{sT0} offen offset:{1024*k} lds")
    a("s_branch L_hookW_r")

prologue()
section("g")
a.label("L_roleG")
g_phase1()
if OPT["stop"] == 1:
    stamp("g_bq"); g_hstore(); a.wait0(); stamp("g_hst"); dump_ts_and_end()
else:
    if OPT["wlate"]: g_hstore(); stamp("g_st")
    g2_setup()
    for i in range(4):
        for k in range(4): dmaW(i, k)
    if not OPT["wlate"]: g_hstore()
    g_phase2()
a_phase1()
if OPT["stop"] == 1:
    a(f"s_lshl_b32 s{sT0}, s{sW}, 12\n s_add_u32 s{sT1}, s{sT0}, {QX}\n v_lshl_add_u32 v16, v0, 4, s{sT1}")
    for i in range(4): a(f"ds_read_b128 {vr(32+4*i,4)}, v16 offset:{1024*i}")
    a(f"s_lshl_b32 s{sT1}, s{sRB}, 4\n s_add_u32 s{sT1}, s{sT1}, s{sCB}\n s_lshl_b32 s{sT1}, s{sT1}, 14\n s_add_u32 s{sT0}, s{sT0}, s{sT1}\n s_add_u32 s{sT0}, s{sT0}, {QD_OFF}")
    a.wait0()
    for i in range(4): a(f"buffer_store_dwordx4 {vr(32+4*i,4)}, v{vKVD}, s[{rWS}:{rWS+3}], s{sT0} offen offset:{1024*i}")
    dump_ts_and_end()
else:
    stamp("a_bq")
    attention()
a.label("L_exit")
a("s_endpgm")
a.label("L_codeend")

HDR = open("cdna_kernels/" + KNAME[:-7] + ".s.ref").read().split("; Override launch")[0]
HDR += """; One persistent launch, 256 workgroups of 8 waves, one per CU (generated by a script of the author's own).
"""
text = HDR + f"; @launch grid=(256,1,1) block=(512,1,1) lds={LDS_BYTES}\n"
text += f'.amdgcn_target "amdgcn-amd-amdhsa--gfx950"\n.text\n.globl {KNAME}\n.p2align 8\n.type {KNAME},@function\n{KNAME}:\n'
a.out = SEC['head'] + SEC['st1'] + SEC['st0'] + SEC['st2'] + SEC['g'] + SEC['main']
body = a.text()
nbad = check(body)
text += body
text += f""".section .rodata,"a"
.p2align 6
.amdhsa_kernel {KNAME}
  .amdhsa_next_free_vgpr 256
  .amdhsa_next_free_sgpr 102
  .amdhsa_accum_offset 256
  .amdhsa_group_segment_fixed_size 0
  .amdhsa_kernarg_size 112
  .amdhsa_user_sgpr_count 2
  .amdhsa_user_sgpr_kernarg_segment_ptr 1
  .amdhsa_system_sgpr_workgroup_id_x 1
.end_amdhsa_kernel
"""
open(sys.argv[1], "w").write(text)
if nbad: sys.exit(f"{nbad} hazards")
```

```python
import sys, math
from asmlib import *

KNAME = "gated_mix__grouped_kv_mqa__dense_activation_squared_relu__prompt_kernel"
OPT = dict(stop=0, ts=0, pd=8, forceslow=0, nodma=0, nokv=0, nopf=0, nords=0, lead=7, pfnt=0, far=99, pf2=1, pf2b=2, gprio=2, nog2=0, g2nold=0, anodma=0, g2prio=0, dbgts=0, slp=2, th=0, farw2=1, hglob=1, arrk=0, wlate=1, map2=5, steps=0, kvskip='', pause=99, pcnt=64, grp=1, osc=1, padto=0, st2=0, spos=0, hfirst=2, p0prio=3, d0prio=1, xlate=0, ring=6, h3prio=1, hfl='sc1', wfl='', xfl='', padat='', xm=1, p0late=1, p0lo=0, kvreg=1, lowv=1, noo=0, nopk=1, tgrp=1, nowo=0, noack=0, qsw=1, evn=0, evk=1, ev2=1, ng=8, par='SSSS', lut=0, pw=128, pb=0, g32=0, dyn=0, chain=1, row4=0, skiprd=0, gdma=0, dpos=0, nohst=0, xa=3, w1pre=0, peven=0, xr=99, fpre=4, pexact=1, epos=68, mpos=32, loc2=1, woit=2, snake=1, gp='x1111', gpo='', g2f=1, ebar=0, c2x=1, pfl='sc1', sfl='sc1', nowr=0, pat='eeeeeeeq0ccr1esccteu2evexweyccS4e5eeecc')
for a_ in sys.argv[2:]:
    k, v = a_.split("="); OPT[k] = int(v) if v.lstrip('-').isdigit() else v

GRP = [2, 0, 1, 3] if OPT['g2f'] else [0, 2, 1, 3]
RBSZ = 144 * 8192
KV_OFF = 0x1200000; G_OFF = 0x1240000; KF_OFF = 0x1244000; FL_OFF = 0x1248000; WS_USED = 0x1268000
QD_OFF = 0x1400000; TS_OFF = 0x1800000
WS_SIZE = 0x2000000 if (OPT["stop"] or OPT["ts"]) else WS_USED
OOB = 0x40000000
W1R = 0; W1S = 14336
WQR = 57344; WQS = 4096
XR = 73728; XS = 16384
KVST = 122880
SYNC = 155648
GT = SYNC + 512
LDS_BYTES = GT + 2048
QX = XR
KVR = 90112
pX, pWQ, pWK, pWV, pWO, pW1, pB1, pW2, pB2, pGATE, pOUT, pDBG, pWS = 4, 6, 8, 10, 12, 16, 18, 20, 22, 24, 26, 28, 30
rA, rB, rC, rD, rWS, rDBG, rPF, rE = 32, 36, 40, 44, 48, 52, 56, 60
sRB, sCB, sRB2, sCB2, sI, sW = 64, 65, 66, 67, 68, 69
sT0, sT1, sT2, sT3, sT4, sT5 = 70, 71, 72, 73, 74, 75
sIT, sA, sB, sC, sD, sE, sF, sG = 76, 77, 78, 79, 80, 81, 82, 83
sTS = 84
sPOS = 101
sQB = 100
SPIN_MAX = 1 << 18

a = Asm()
SEC = {}
def cm(t):
    for l in t.strip().split('\n'): a.raw('  ; ' + l.strip())
def section(n):
    a.out = SEC.setdefault(n, [])
section("head")
def kwait():
    a("s_waitcnt lgkmcnt(0)"); stamp("kw"); srd(rWS, pWS, WS_SIZE)
def srd(r, p, size):
    a(f"s_mov_b32 s{r}, s{p}\n s_mov_b32 s{r+1}, s{p+1}\n s_mov_b32 s{r+2}, {size}\n s_mov_b32 s{r+3}, 0x20000")
nts = [0]
STAMPS = {1: dict(g_b0=1, g_end1=2, g_bq=3, g_hst=4, g_pre=5, a_set=1, a_w0=2, a_8=3, a_16=4, a_24=5),
          0: dict(g_end1=1, g_flag=2, g_l2=3, g_hook=4, g_end=5, a_b0=1, a_16=2, a_bq=3, a_att=4, a_end=5)}[OPT["stop"]]
if OPT["st2"] == 1: STAMPS.update(g_end1=0, g_flag=0, g_l2=1, g_17=2, g_25=3)
if OPT["st2"] == 3: STAMPS = dict(kw=1, g_pre=2, g_bias=3, g_rdy=4, g_b0=5, a_iss=2, a_set=3, a_w0=4, a_b0=5)
if OPT["st2"] == 4: STAMPS.update(g_end1=0, g_st=1, g_flag=2, g_pw=3, g_wf=4, g_l2=0, g_s0=5, g_hook=0, g_end=0)
if OPT["st2"] == 2: STAMPS.update(g_end1=0, g_flag=0, g_l2=0, g_hook=1, g_32=2, g_36=3, g_bar=4)
def stamp(n):
    if n == OPT["padat"]: a("s_memrealtime s[96:97]"); a.wait0(vm=False)
    i = STAMPS.get(n)
    if OPT["ts"] and i:
        a(f"{'s_memrealtime' if OPT['ts'] == 2 else 's_memtime'} s[{sTS+2*i}:{sTS+2*i+1}]"); a.wait0(vm=False)
def mf16(d, x, y, c=None):
    a(f"v_mfma_f32_16x16x32_bf16 {vr(d,4)}, {vr(x,4)}, {vr(y,4)}, {vr(d,4) if c is None else c}")
def mf32(d, x, y, c=None):
    a(f"v_mfma_f32_32x32x16_bf16 {vr(d,16)}, {vr(x,4)}, {vr(y,4)}, {vr(d,16) if c is None else c}")
def dump_ts_and_end():
    if OPT["ts"]:
        a("s_memrealtime s[98:99]"); a.wait0()
        if OPT["dbgts"]:
            l = a.newlabel("L_nots")
            srd(rDBG, pDBG, 256)
            a(f"s_cmp_lg_u32 s2, 100\n s_cbranch_scc1 {l}\n s_cmp_lg_u32 s{sW}, 0\n s_cbranch_scc1 {l}")
            for i, k in enumerate((1, 2, 3, 4, 5, 7)): a(f"s_sub_u32 s{sT0}, s{sTS+2*k}, s96\n v_mov_b32 v{8+i}, s{sT0}")
            a(f"s_lshl_b32 s{sT0}, s3, 3\n s_add_u32 s{sT0}, s{sT0}, 8\n v_mov_b32 v2, 0\n s_mov_b64 exec, 1")
            a(f"buffer_store_dwordx2 v[8:9], v2, s[{rDBG}:{rDBG+3}], s{sT0} offen")
            a(f"buffer_store_dwordx4 v[10:13], v2, s[{rDBG}:{rDBG+3}], s{sT0} offen offset:8")
            a.label(l)
        else:
            for i in range(8): a(f"v_mov_b32 v{8+i}, s{sTS+2*i}")
            a(f"s_lshl_b32 s{sT0}, s2, 8\n s_lshl_b32 s{sT1}, s3, 5\n s_add_u32 s{sT0}, s{sT0}, s{sT1}\n s_add_u32 s{sT0}, s{sT0}, {TS_OFF}")
            a(f"v_mov_b32 v2, 0\n s_mov_b64 exec, 1")
            a(f"buffer_store_dwordx4 v[8:11], v2, s[{rWS}:{rWS+3}], s{sT0} offen")
            a(f"buffer_store_dwordx4 v[12:15], v2, s[{rWS}:{rWS+3}], s{sT0} offen offset:16")
    a("s_endpgm")

def prologue():
    m = OPT["map2"]
    lx, lc = {0: (1, 3), 2: (1, 3), 3: (2, 2), 4: (0, 4), 5: (2, 2)}[m]
    MAP2 = f"""s_lshr_b32 s{sT1}, s{sT0}, {lx}
      s_lshl_b32 s{sT1}, s{sT1}, {5-lc}
      s_lshr_b32 s{sT2}, s{sI}, {lc}
      s_add_u32 s{sRB2}, s{sT1}, s{sT2}
      s_and_b32 s{sT1}, s{sT0}, {(1<<lx)-1}
      s_and_b32 s{sT2}, s{sI}, {(1<<lc)-1}
      s_lshl_b32 s{sT2 if m in (2, 5) else sT1}, s{sT2 if m in (2, 5) else sT1}, {lx if m in (2, 5) else lc}
      s_add_u32 s{sCB2}, s{sT1}, s{sT2}
      s_xor_b32 s{sCB2}, s{sCB2}, {OPT["c2x"]}
      s_mov_b32 s{sPOS}, s{sCB}"""
    ident = list(range(16))
    LUTS = {0: (ident, [0, 1, 3, 2] + ident[4:]),
            1: ([0, 1, 3, 5, 2, 4, 6, 8, 7, 10, 12, 14, 9, 11, 13, 15], [0, 1, 2, 9, 4, 5, 6, 7, 8, 3, 10, 11, 12, 13, 14, 15]),
            2: ([0, 1, 3, 5, 2, 4, 6, 8, 7, 10, 12, 14, 9, 11, 13, 15], [0, 1, 2, 4, 3, 5, 11, 7, 8, 9, 10, 6, 12, 13, 14, 15]),
            3: ([0, 1, 3, 5, 7, 4, 10, 8, 12, 2, 14, 6, 9, 11, 13, 15], [0, 1, 2, 9, 4, 5, 6, 7, 8, 3, 10, 11, 12, 13, 14, 15])}[OPT["lut"]]
    for reg, tab in zip((sCB, sQB), LUTS):
        assert sorted(tab) == ident
        if tab == ident: continue
        w = sum(v << (4 * k) for k, v in enumerate(tab))
        MAP2 += f"""
          s_mov_b32 s{sT2}, {hex(w & 0xffffffff)}
          s_mov_b32 s{sT3}, {hex(w >> 32)}
          s_lshl_b32 s{sT1}, s{sPOS}, 2
          s_lshr_b64 s[{sT2}:{sT3}], s[{sT2}:{sT3}], s{sT1}
          s_and_b32 s{reg}, s{sT2}, 15"""
    cm('entry: workgroup -> (row block, column blocks); waves 0-3 take the matrix role G, waves 4-7 the loader / attention role A')
    a("s_cmp_ge_u32 s2, 256\n s_cbranch_scc1 L_exit")
    a("s_load_dwordx16 s[4:19], s[0:1], 0\n s_load_dwordx8 s[20:27], s[0:1], 64\n s_load_dwordx4 s[28:31], s[0:1], 96")
    if OPT["ts"] or OPT["th"] or OPT["padto"]:
        a(f"s_memtime s[{sTS}:{sTS+1}]\n s_memrealtime s[96:97]")
    a(f"""v_lshrrev_b32 v1, 6, v0
      v_and_b32 v0, 63, v0
      v_readfirstlane_b32 s3, v1
      s_lshr_b32 s{sI}, s2, 3
      s_and_b32 s{sT0}, s2, 7
      s_lshr_b32 s{sT1}, s{sT0}, 2
      s_lshl_b32 s{sT1}, s{sT1}, 3
      s_lshr_b32 s{sT2}, s{sI}, 2
      s_add_u32 s{sRB}, s{sT1}, s{sT2}
      s_and_b32 s{sT1}, s{sT0}, 3
      s_lshl_b32 s{sT1}, s{sT1}, 2
      s_and_b32 s{sT2}, s{sI}, 3
      s_add_u32 s{sCB}, s{sT1}, s{sT2}
      {MAP2}
      s_and_b32 s{sW}, s3, 3
      v_and_b32 v1, 15, v0
      v_lshrrev_b32 v2, 4, v0""")
    a("s_cmp_lt_u32 s3, 4\n s_cbranch_scc1 L_roleG\n s_setprio 1")

ACC1 = 112
acc1 = lambda ft, rt: ACC1 + (ft * 4 + rt) * 4
XF = [48, 80]; WRING = 24
vX = [16, 17]; vW1 = [18, 19]; vWq = [20, 21]; vLP, vJ, vQW = 15, 70, 64
def g_phase1():
    PD = OPT["pd"]
    sRG, sCG = sA, sB
    sXo, sPo, sPe, sPd = sC, sD, sE, sF
    a(f"s_and_b32 s{sRG}, s{sW}, 1\n s_lshr_b32 s{sCG}, s{sW}, 1")
    cm('G, phase 1: [Q | FFN hidden] tile = x[128 rows] * [Wq 64 cols | W1 224 cols], accumulators start from the bias')
    a(f"""s_cmp_lt_u32 s{sW}, 2
      s_cbranch_scc0 L_nocode
      s_getpc_b64 s[{rE}:{rE+1}]""")
    a.label("L_pc")
    a(f"""s_mov_b32 s{rE+2}, L_codeend-L_pc
      s_mov_b32 s{rE+3}, 0x20000
      s_lshl_b32 s{sT1}, s{sI}, 10
      s_lshl_b32 s{sT2}, s{sW}, 15
      s_add_u32 s{sT1}, s{sT1}, s{sT2}
      v_lshlrev_b32 v29, 7, v0
      s_mov_b64 exec, 0xff
      buffer_load_dword v{vJ}, v29, s[{rE}:{rE+3}], s{sT1} offen
      s_mov_b64 exec, -1""")
    a.label("L_nocode")
    a(f"""s_mul_i32 s{sT0}, s{sCB}, 448
      s_mul_i32 s{sT1}, s{sCG}, 224
      s_add_u32 s{sT0}, s{sT0}, s{sT1}
      v_lshlrev_b32 v14, 2, v0
      s_mov_b32 s{rA+2}, 7168
      s_mov_b32 s{rA+3}, 0x20000
      s_setprio 3
      s_waitcnt lgkmcnt(0)
      s_mov_b32 s{rA}, s{pB1}
      s_mov_b32 s{rA+1}, s{pB1+1}
      buffer_load_dword v33, v14, s[{rA}:{rA+3}], s{sT0} offen
      s_setprio 0""")
    kwait()
    for r in range(0, 32, 2): a(f"v_mov_b64 {vr(ACC1+r,2)}, 0")
    a(f"""v_lshrrev_b32 v14, 1, v1
      v_xor_b32 v14, v14, v2
      v_lshlrev_b32 v14, 4, v14
      v_lshl_add_u32 v14, v1, 7, v14
      s_lshl_b32 s{sT0}, s{sRG}, 13
      s_add_u32 s{sT0}, s{sT0}, {XR}
      v_add_u32 v{vX[0]}, s{sT0}, v14
      v_xor_b32 v{vX[1]}, 64, v{vX[0]}
      s_mov_b32 s{sXo}, 0
      v_lshrrev_b32 v14, 2, v1
      v_lshl_add_u32 v14, v2, 3, v14
      v_and_b32 v29, 3, v1
      v_lshlrev_b32 v29, 3, v29
      v_mul_u32_u24 v30, 448, v14
      v_add_u32 v30, v30, v29
      s_mul_i32 s{sT0}, s{sCG}, 224
      v_add_u32 v30, s{sT0}, v30
      v_and_b32 v31, 1, v2
      v_lshlrev_b32 v32, 5, v31
      s_lshl_b32 s{sT1}, s{sCG}, 1
      s_sub_u32 s{sT1}, 1, s{sT1}
      v_mul_lo_u32 v32, v32, s{sT1}
      v_add_u32 v{vW1[0]}, v30, v32
      v_sub_u32 v{vW1[1]}, v30, v32
      v_lshrrev_b32 v32, 3, v1
      v_lshl_add_u32 v31, v32, 1, v31
      s_lshl_b32 s{sT0}, s{sCG}, 1
      v_xor_b32 v31, s{sT0}, v31
      v_lshl_add_u32 v29, v31, 5, v29
      v_lshl_add_u32 v29, v14, 7, v29
      v_add_u32 v{vWq[0]}, {WQR}, v29
      v_xor_b32 v{vWq[1]}, 32, v{vWq[0]}""")
    if not OPT["stop"]: g2_vsetup()
    a(f"""v_and_b32 v28, 1, v2
      v_lshlrev_b32 v28, 10, v28
      v_lshrrev_b32 v29, 1, v2
      v_lshl_add_u32 v28, v29, 8, v28
      v_lshl_add_u32 v{vLP}, v1, 4, v28""")
    a(f"v_mov_b32 v30, {SYNC}\n ds_write_b128 v30, v[{ACC1}:{ACC1+3}]\n v_lshlrev_b32 v29, 3, v2")
    stamp("g_pre")
    a.wait0()
    stamp("g_bias")
    for k in range(14): a.lg(f"ds_bpermute_b32 v{48+k}, v29, v33 offset:{32*(k//2)+4*(k%2)}", ("b", k // 2))
    for ft in range(7):
        d = acc1(2 + ft, 0)
        a.wait(lg=("b", ft))
        a(f"v_lshlrev_b32 v{d}, 16, v{48+2*ft}\n v_and_b32 v{d+1}, 0xffff0000, v{48+2*ft}")
        a(f"v_lshlrev_b32 v{d+2}, 16, v{49+2*ft}\n v_and_b32 v{d+3}, 0xffff0000, v{49+2*ft}")
        for rt in range(1, 4): a(f"v_mov_b64 {vr(d+4*rt,2)}, {vr(d,2)}\n v_mov_b64 {vr(d+4*rt+2,2)}, {vr(d+2,2)}")
    def rdW(g, n):
        u, ft = divmod(g, 9); kk, e = divmod(n, 2); d = WRING + 8 * (g % 3) + 2 * n; sl = 2 * (u % 2) + kk
        if ft < 2: a.lg(f"ds_read_b64_tr_b16 {vr(d,2)}, v{vWq[ft]} offset:{sl*WQS + e*512}", ("W", g))
        else: a.lg(f"ds_read_b64_tr_b16 {vr(d,2)}, v{vW1[ft%2]} offset:{sl*W1S + e*1792 + (ft-2)*32}", ("W", g))
    def rdX(u, n):
        rt, kk = divmod(n, 2)
        a.lg(f"ds_read_b128 {vr(XF[u%2]+16*kk+4*rt,4)}, v{vX[kk]} offset:{rt*2048}", ("X", u))
    def block(u, plan):
        for ft in range(9):
            g = 9 * u + ft
            a.wait(lg=[("W", g), ("X", u)] if ft == 0 else ("W", g))
            for n in range(8):
                rt = 3 - n // 2 if ft % 2 else n // 2
                kk = (n + 1) // 2 % 2
                mf16(acc1(ft, rt), WRING + 8 * (g % 3) + 4 * kk, XF[u % 2] + 16 * kk + 4 * rt)
                if n < 4 and g + 2 < 144: rdW(g + 2, n)
                x = plan.get(8 * ft + n)
                if callable(x): x()
                elif x: a(x)
    a(f"s_mov_b32 s{sIT}, 0")
    stamp("g_rdy")
    a("s_barrier")
    stamp("g_b0")
    for n in range(4): rdW(0, n)
    for n in range(8): rdX(0, n)
    for n in range(4): rdW(1, n)
    a.raw(".p2align 3")
    cm('16 k-blocks of 64; operands come from LDS rings that the A waves fill, two barriers per block')
    a.label("L_g1loop")
    def body(it):
        for b in range(2):
            u = 2 * it + b
            plan = {12: f"s_add_u32 s{sXo}, s{sXo}, 1\n s_cmp_eq_u32 s{sXo}, 3", 13: f"s_cselect_b32 s{sXo}, 0, s{sXo}\n s_cselect_b32 s{sT0}, {3*XS}, 0",
                    14: f"s_sub_u32 s{sT0}, {XS}, s{sT0}", 20: f"v_add_u32 v{vX[0]}, s{sT0}, v{vX[0]}", 21: f"v_add_u32 v{vX[1]}, s{sT0}, v{vX[1]}",
                    OPT["mpos"]: "s_barrier", OPT["epos"]: "s_barrier"}
            free = [p for p in range(OPT["mpos"] + 1, 64) if 4 <= p % 8 < 7]
            for n in range(8): plan[free[n]] = lambda n=n: rdX(u + 1, n)
            assert 64 <= OPT["epos"] <= 68 and 22 <= OPT["mpos"] <= 36
            if b == 0: plan[69] = f"s_add_u32 s{sIT}, s{sIT}, 1"; plan[70] = f"s_cmp_eq_u32 s{sIT}, 8"
            block(u, plan)
            if b == 0:
                a("s_cbranch_scc1 L_g1last"); snap[:] = [(k_, v_ + (14 - u) * (9 if k_ == "W" else 1)) for k_, v_ in a.lgq]
        a("s_branch L_g1loop")
    snap = []
    a.loop(body, "g1")
    cm('last k-block; Q goes to the attention waves through LDS')
    a.label("L_g1last")
    a.lgq[:] = snap
    cq = lambda s_, rt: f"v_cvt_pk_bf16_f32 v{48+4*rt+2*s_}, v{acc1(s_,rt)}, v{acc1(s_,rt)+1}\n v_cvt_pk_bf16_f32 v{49+4*rt+2*s_}, v{acc1(s_,rt)+2}, v{acc1(s_,rt)+3}"
    wq = lambda rt: lambda: a.lg(f"ds_write_b128 v{vQW}, {vr(48+4*rt,4)} offset:{(rt//2)*4096 + (rt%2)*1024}")
    plan = {4: f"s_lshl_b32 s{sT2}, s{sRG}, 13\n s_lshl_b32 s{sT3}, s{sCG}, 11", 5: f"s_add_u32 s{sT2}, s{sT2}, s{sT3}\n s_add_u32 s{sT2}, s{sT2}, {QX}",
            6: f"v_lshl_add_u32 v{vQW}, v0, 4, s{sT2}", 20: cq(0, 0), 21: cq(0, 1), 22: cq(0, 2), 28: cq(0, 3), 29: cq(1, 3), 30: cq(1, 2),
            36: cq(1, 1), 37: cq(1, 0), 38: "s_barrier",
            44: wq(0), 46: wq(1), 52: wq(2), 54: wq(3),
            61: lambda: (a.wait0(vm=False), a(f"s_setprio {OPT['gprio']}\n s_barrier"))}
    block(15, plan)
    stamp("g_end1")
def g_hstore(lo=0, hi=7):
    sRG, sCG = sA, sB
    sT0, sT1, sT2, sT3 = sT4, sT5, sF, sG
    if lo == 0: a(f"""s_mul_i32 s{sT0}, s{sRB}, {RBSZ}
      s_mul_i32 s{sT1}, s{sCB}, {7*8192}
      s_add_u32 s{sT0}, s{sT0}, s{sT1}
      s_lshl_b32 s{sT1}, s{sRG}, 12
      s_add_u32 s{sT0}, s{sT0}, s{sT1}
      s_mul_i32 s{sT1}, s{sCG}, {3*8192+512}
      s_add_u32 s{sT0}, s{sT0}, s{sT1}
      s_mul_i32 s{sT2}, s{sCG}, {8192-1024}
      s_add_u32 s{sT2}, s{sT2}, 512
      s_sub_u32 s{sT3}, 8192, s{sT2}""")
    cm('hidden = relu(h)^2 as bf16, write-through to the workspace in MFMA operand order')
    k = 0
    for ft in range(lo, hi):
        for p in range(2):
            T = 48 + 4 * (k % 4); k += 1
            if OPT["nohst"] == 2: continue
            for h in range(2):
                d = acc1(2 + ft, 2 * p + h)
                for r in range(4): a(f"v_max_f32 v{d+r}, 0, v{d+r}")
                if OPT["nopk"] > 1: a("\n".join(f"v_mul_f32 v{d+r}, v{d+r}, v{d+r}" for r in range(4)))
                else: a(f"v_pk_mul_f32 {vr(d,2)}, {vr(d,2)}, {vr(d,2)}\n v_pk_mul_f32 {vr(d+2,2)}, {vr(d+2,2)}, {vr(d+2,2)}")
                a(f"v_cvt_pk_bf16_f32 v{T+2*h}, v{d}, v{d+1}\n v_cvt_pk_bf16_f32 v{T+2*h+1}, v{d+2}, v{d+3}")
            a(f"s_nop 1\n v_permlane16_swap_b32 v{T}, v{T+2}\n v_permlane16_swap_b32 v{T+1}, v{T+3}")
            if not OPT["nohst"]: a.vm(f"buffer_store_dwordx4 {vr(T,4)}, v{vLP}, s[{rWS}:{rWS+3}], s{sT0} offen offset:{p*2048} sc1", "hst")
        a(f"s_add_u32 s{sT0}, s{sT0}, s{sT2 if ft % 2 == 0 else sT3}")

vO = 3
vKX, vKG, vKW, vKT0, vKVD, vKR = 140, 12, 13, 24, 15, 142
KVREG = 208; vG = 253
KXF, KGF, KWF, KAC = 32, 64, 96, 128
def a_phase1():
    sISV, sR0, sSTG, sM, sSo, sSx, sGrp = sA, sB, sC, sD, sE, sF, sG
    NT = " nt" if OPT["pfnt"] else ""
    LEAD = OPT["lead"]
    vXo, vQo, vP = 144, 148, 150
    sSq, sMx, sMq, sPo, sPm = 14, 15, 18, 19, 22
    section("st")
    cm('A, phase 1 start-up: every wave brings 16 rows of W1 / Wq and 32 rows of x per k-block; wave 7 also warms caches and handles the flags')
    a(f"""v_lshrrev_b32 v16, 3, v0
      v_lshlrev_b32 v16, 11, v16
      v_and_b32 v17, 7, v0
      v_xor_b32 v18, v17, v2
      v_lshl_add_u32 v18, v18, 4, v16
      v_and_b32 v20, 1, v2
      v_lshlrev_b32 v20, 2, v20
      v_xor_b32 v20, v20, v17
      v_lshl_add_u32 v{vQo}, v20, 4, v16
      v_xor_b32 v19, 32, v{vQo}
      v_add_u32 v{vQo+1}, {16384-1024}, v19
      s_lshl2_add_u32 s{sSx}, s{sRB}, s{sW}
      s_lshl_b32 s{sSx}, s{sSx}, 16""")
    for i in range(4): a(f"v_xor_b32 v19, {64*(i%2)}, v18\n v_add_u32 v{vXo+i}, {i*16384 - i*1024}, v19")
    a(f"s_mul_i32 s{sT0}, s{sW}, {16*7168}\n s_mul_i32 s{sT1}, s{sCB}, 448\n s_add_u32 s{sSo}, s{sT0}, s{sT1}")
    a(f"s_mul_i32 s{sM}, s{sW}, 7168\n s_movk_i32 s{sT2}, {7168-448}")
    def w1off(i):
        a(f"""v_add_u32 v16, {64*i}, v0
          v_mul_u32_u24 v17, 2341, v16
          v_lshrrev_b32 v17, 16, v17
          v_bfe_u32 v18, v17, 3, 1
          v_lshlrev_b32 v18, 1, v18
          v_xor_b32 v16, v16, v18
          v_lshlrev_b32 v16, 4, v16
          v_mad_u32_u24 v{vO+i}, v17, s{sT2}, v16""")
        if i % 4: a(f"v_subrev_u32 v{vO+i}, {1024*(i%4)}, v{vO+i}")
    for i in range(2): w1off(i)
    kwait(); srd(rA, pX, 2048 * 2048); srd(rPF, pWQ, 1024 * 2048); srd(rB, pW1, 1024 * 7168)
    a(f"""s_lshl_b32 s{sMx}, s{sW}, 12
      s_lshl_b32 s{sMq}, s{sW}, 11
      s_lshl_b32 s{sSq}, s{sW}, 15
      s_lshl_b32 s{sT0}, s{sQB}, 7
      s_add_u32 s{sSq}, s{sSq}, s{sT0}""")
    trickle = []
    def trk(all_=False):
        while trickle:
            for t_ in trickle.pop(0): a.label(t_[:-1]) if t_.endswith(":") else a.lg(t_)
            if not all_: break
    def ldW(u, m=None):
        for i in range(7):
            if i == 4 and m: m()
            if u == 0 and i >= 2: w1off(i)
            if i % 4 == 0: a(f"s_add_u32 m0, s{sM}, {(u%2)*2*W1S + i*1024}\n s_nop 0")
            a.vm(f"buffer_load_dwordx4 v{vO+i}, s[{rB}:{rB+3}], s{sSo} offen offset:{1024*(i%4)} lds", ("W", u)); trk()
        a(f"s_add_u32 s{sSo}, s{sSo}, {64*7168}")
    def ldQ(u):
        a(f"s_add_u32 m0, s{sMq}, {WQR + (u%2)*2*WQS}\n s_nop 0")
        for i in range(2):
            a.vm(f"buffer_load_dwordx4 v{vQo+i}, s[{rPF}:{rPF+3}], s{sSq} offen offset:{1024*i} lds", ("Q", u)); trk()
        a(f"s_add_u32 s{sSq}, s{sSq}, 131072")
    def ldX(u):
        a(f"s_add_u32 m0, s{sMx}, {XR + (u%3)*XS}\n s_nop 0")
        for i in range(4):
            a.vm(f"buffer_load_dwordx4 v{vXo+i}, s[{rA}:{rA+3}], s{sSx} offen offset:{1024*i} lds", ("X", u)); trk()
        a(f"s_add_u32 s{sSx}, s{sSx}, 128")
    plainwait = a.wait
    def pwait(vm=(), lg=()):
        tags = vm if isinstance(vm, list) else [vm]
        idx = max([k for k, x in enumerate(a.vmq) if x in tags], default=-1)
        isP = lambda x: isinstance(x, tuple) and x[0] == "P"
        rest = a.vmq[idx + 1:]
        if idx < 0 or not any(map(isP, rest)): return plainwait(vm, lg)
        assert lg == ()
        n0 = sum(not isP(x) for x in rest); l = a.newlabel("L_pw")
        for g_ in sorted({x[1] for x in rest if isP(x)}) if OPT["pexact"] else []:
            l2 = a.newlabel("L_pw")
            a(f"s_cmp_lg_u32 s{sGrp}, {g_}\n s_cbranch_scc1 {l2}\n s_waitcnt vmcnt({n0 + rest.count(('P', g_))})\n s_branch {l}")
            a.label(l2)
        a(f"s_waitcnt vmcnt({n0})"); a.label(l)
        a.vmq[:] = rest
    a.wait = pwait
    a.vmq.clear(); a.lgq.clear()
    ldX(0); ldQ(0); ldW(0)
    a(f"s_cmp_eq_u32 s{sW}, 3\n s_cbranch_scc1 L_st2")
    q0 = list(a.vmq)
    for path in (0, 2):
        section(f"st{path}")
        a.label(f"L_st{path}")
        a.vmq[:] = q0; a.lgq.clear()
        pfs = lambda t: None
        if path == 0: pass
        else:
            assert OPT["lut"] == 0
            a(f"""s_and_b32 s{sGrp}, s{sI}, 7
              s_lshl_b32 s{sT0}, s{sGrp}, 5
              s_and_b32 s{sT1}, s2, 4
              s_lshl2_add_u32 s{sT0}, s{sT1}, s{sT0}
              s_lshr_b32 s{sT1}, s{sI}, 3
              s_lshl2_add_u32 s{sT0}, s{sT1}, s{sT0}
              s_and_b32 s{sT1}, s2, 3
              s_mul_i32 s{sPo}, s{sT0}, 7168
              s_mul_i32 s{sT2}, s{sT1}, 1792
              s_add_u32 s{sPo}, s{sPo}, s{sT2}
              s_lshl2_add_u32 s{sPm}, s{sT0}, s{sT1}
              s_lshl_b32 s{sPm}, s{sPm}, 9
              s_and_b32 s{sT1}, s2, 7
              s_lshl_b32 s{sT1}, s{sT1}, 5
              s_add_u32 s{sT1}, s{sT1}, s{sI}
              s_lshl_b32 s{sIT}, s{sT1}, 14
              v_lshrrev_b32 v16, 3, v0
              v_lshlrev_b32 v16, 11, v16
              v_and_b32 v17, 7, v0
              v_lshl_add_u32 v{vP+0}, v17, 7, v16
              v_lshlrev_b32 v{vP+1}, 7, v0
              v_mul_u32_u24 v16, 7168, v2
              v_lshl_add_u32 v{vP+2}, v1, 7, v16
              v_lshrrev_b32 v16, 2, v0
              v_and_b32 v17, 3, v0
              v_lshlrev_b32 v17, 7, v17
              v_lshl_add_u32 v{vP+3}, v16, 11, v17""")
            def pfW(so, sm, vm):
                a("s_mov_b32 exec_lo, 0x3fff3fff\n s_mov_b32 exec_hi, 0x3fff3fff")
                vm(f"buffer_load_dword v250, v{vP+2}, s[{rB}:{rB+3}], s{so} offen{NT}")
                a("s_mov_b64 exec, 0xffff")
                vm(f"buffer_load_dword v250, v{vP+3}, s[{rPF}:{rPF+3}], s{sm} offen{NT}")
                a("s_mov_b64 exec, -1")
            def p0():
                if OPT["nopf"]: return
                a(f"s_mov_b32 exec_lo, 0x0f0f0f0f\n s_mov_b32 exec_hi, 0x0f0f0f0f")
                a.vm(f"buffer_load_dword v250, v{vP+0}, s[{rA}:{rA+3}], s{sIT} offen{NT}")
                a(f"""s_cmp_lt_u32 s{sGrp}, {LEAD}
                  s_cselect_b32 s{sT0}, s{sPo}, {OOB}
                  s_cselect_b32 s{sT1}, s{sPm}, {OOB}""")
                pfW(sT0, sT1, a.vm)
                a(f"""s_cselect_b32 s{sT0}, {256*7168}, 0
                  s_cselect_b32 s{sT1}, {256*2048}, 0
                  s_add_u32 s{sPo}, s{sPo}, s{sT0}
                  s_add_u32 s{sPm}, s{sPm}, s{sT1}
                  s_and_b32 s{sIT}, s{sIT}, {31 << 17}
                  v_lshrrev_b32 v16, 1, v0
                  v_and_b32 v17, 1, v0
                  v_lshlrev_b32 v17, 7, v17
                  v_lshl_add_u32 v{vP+0}, v16, 11, v17""")
            def pfs(t):
                if OPT["nopf"]: return
                if t + LEAD < 32:
                    l = a.newlabel("L_np")
                    a(f"s_cmp_lg_u32 s{sGrp}, {(t+LEAD)%8}\n s_cbranch_scc1 {l}")
                    pv_ = lambda x: a.vm(x, ("P", (t + LEAD) % 8))
                    pfW(sPo, sPm, pv_)
                    a(f"s_add_u32 s{sPo}, s{sPo}, {256*7168}\n s_add_u32 s{sPm}, s{sPm}, {256*2048}")
                    if t < 6:
                        for k_ in range(2):
                            pv_(f"buffer_load_dword v250, v{vP+0}, s[{rA}:{rA+3}], s{sIT} offen offset:{512+256*t}{NT}"); a(f"s_add_u32 s{sIT}, s{sIT}, 65536")
                    if OPT["pf2"] and t // 8 == OPT["pf2b"]:
                        srd(rD, pW2, 3584 * 2048)
                        if OPT["loc2"]:
                            a(f"""s_and_b32 s{sT0}, s2, 4
                              s_lshl3_add_u32 s{sT1}, s{sT0}, s{sI}
                              s_lshr_b32 s{sT0}, s{sT1}, 4
                              s_mul_i32 s{sT0}, s{sT0}, {896*2048}
                              s_and_b32 s{sT1}, s{sT1}, 15
                              s_lshl_b32 s{sT1}, s{sT1}, 15
                              s_add_u32 s{sT0}, s{sT0}, s{sT1}
                              s_and_b32 s{sT1}, s{sCB2}, 3
                              s_lshl_b32 s{sT1}, s{sT1}, 7
                              s_add_u32 s{sT0}, s{sT0}, s{sT1}
                              v_lshlrev_b32 v{vP+1}, 9, v0""")
                        else: a(f"s_lshr_b32 s{sT0}, s2, 6\n s_mul_i32 s{sT0}, s{sT0}, {896*2048}\n s_and_b32 s{sT1}, s2, 63\n s_lshl_b32 s{sT1}, s{sT1}, 13\n s_add_u32 s{sT0}, s{sT0}, s{sT1}")
                        pv_(f"buffer_load_dword v250, v{vP+1}, s[{rD}:{rD+3}], s{sT0} offen")
                    a.label(l)
        def kvsetup():
            if OPT["evk"]: a(f"s_bfe_u32 s{sISV}, s{sPOS}, 0x10002\n s_lshr_b32 s{sR0}, s{sPOS}, 3\n s_lshl_b32 s{sR0}, s{sR0}, 2\n s_and_b32 s{sT0}, s{sPOS}, 3\n s_add_u32 s{sR0}, s{sR0}, s{sT0}")
            else: a(f"s_and_b32 s{sISV}, s{sCB}, 1\n s_lshr_b32 s{sR0}, s{sCB}, 1")
            a(f"""s_lshl_b32 s{sR0}, s{sR0}, 4
              s_lshl_b32 s{sT0}, s{sRB}, 7
              s_add_u32 s{sR0}, s{sR0}, s{sT0}
              s_cmp_eq_u32 s{sISV}, 0
              s_cselect_b32 s{rC}, s{pWK}, s{pWV}
              s_cselect_b32 s{rC+1}, s{pWK+1}, s{pWV+1}
              s_mov_b32 s{rC+2}, 65536
              s_mov_b32 s{rC+3}, 0x20000
              v_lshlrev_b32 v{vKVD}, 4, v0""")
            if path == 2:
                srd(rD, pGATE, 2048); srd(rDBG, pDBG, 256)
                a(f"s_lshl_b32 s{sT0}, s{sR0}, 5\n s_mov_b64 exec, 15")
                a.vm(f"buffer_load_dword v250, v{vP+1}, s[{rC}:{rC+3}], s{sT0} offen"); a("s_mov_b64 exec, -1")
                a(f"s_mov_b32 m0, {GT}\n s_nop 0")
                for i in range(2): a.vm(f"buffer_load_dwordx4 v{vKVD}, s[{rD}:{rD+3}], 0 offen offset:{1024*i} lds", "gt")
        if path == 2 and OPT["p0late"] == 1: p0(); kvsetup()
        ldX(1); ldQ(1)
        if path == 2 and OPT["p0late"] == 2: p0(); kvsetup()
        if OPT["w1pre"]: ldW(1)
        stamp("a_iss")
        a(f"s_branch L_a1m{path}")
        section("main")
        cm('A, phase 1: LDS-DMA of the GEMM operands; K (scaled by log2(e)/sqrt(32)), V and the gate of 16 rows on the side')
        a.label(f"L_a1m{path}")
        if path != 2: kvsetup()
        a(f"""s_lshl_b32 s{sSTG}, s{sW}, 13
          s_add_u32 s{sSTG}, s{sSTG}, {KVST}
          s_lshl_b32 s{sT0}, s{sW}, 7
          v_lshl_add_u32 v17, v2, 4, s{sT0}
          v_add_u32 v{vKG}, {GT}, v17
          v_lshrrev_b32 v16, 3, v0
          v_add_u32 v16, s{sR0}, v16
          v_and_b32 v17, 7, v0
          v_xor_b32 v17, v17, v2
          v_lshl_add_u32 v17, v17, 4, s{sT0}
          v_lshl_add_u32 v{vKX}, v16, 11, v17
          v_xor_b32 v16, 64, v{vKX}
          v_add_u32 v{vKX+1}, {16384-1024}, v16
          v_lshrrev_b32 v16, 1, v1
          v_xor_b32 v16, v16, v2
          v_lshlrev_b32 v16, 4, v16
          v_lshl_add_u32 v16, v1, 7, v16
          v_add_u32 v{vKR}, s{sSTG}, v16
          v_xor_b32 v{vKR+1}, 64, v{vKR}
          v_lshrrev_b32 v16, 4, v0
          v_and_b32 v16, 2, v16
          v_xor_b32 v16, v16, v0
          s_lshl_b32 s{sT0}, s{sW}, 12
          v_lshl_add_u32 v{vKW}, v16, 4, s{sT0}
          v_lshrrev_b32 v16, 2, v1
          v_lshl_add_u32 v16, v2, 3, v16
          v_and_b32 v17, 3, v1
          v_lshlrev_b32 v17, 3, v17
          v_lshl_add_u32 v16, v16, 6, v17
          v_and_b32 v17, 1, v2
          v_lshl_add_u32 v16, v17, 5, v16
          v_add_u32 v{vKT0}, s{sSTG}, v16
          v_xor_b32 v{vKT0+1}, 32, v{vKT0}""")
        for r in range(12): a(f"v_mov_b32 v{KAC+r}, 0")
        def konly(l_):
            lb = a.newlabel("L_ko")
            return [f"s_cmp_lg_u32 s{sISV}, 0\n s_cbranch_scc1 {lb}"] + l_ + [lb + ":"]
        def kvX(rho):
            if 'X' in OPT['kvskip']: return
            a(f"s_add_u32 m0, s{sSTG}, 6144\n s_movk_i32 s{sT0}, {rho*512}")
            for i in range(2):
                a.vm(f"buffer_load_dwordx4 v{vKX+i}, s[{rA}:{rA+3}], s{sT0} offen offset:{1024*i} lds", ("kw", rho))
        def kvW(rho, half):
            if 'W' in OPT['kvskip']: return
            if half: a.wait0(vm=False)
            a(f"s_add_u32 m0, s{sSTG}, {4096 if half else (rho%2)*2048}\n s_mov_b32 s{sT0}, {rho*16384 + half*2048}")
            for i in range(2):
                a.vm(f"buffer_load_dwordx4 v{vKW}, s[{rC}:{rC+3}], s{sT0} offen offset:{1024*i} lds", ("kw", rho))
        def kvR(rho):
            if 'R' in OPT['kvskip']: return
            a.wait(vm=("kw", rho))
            for i in range(2):
                for nt in range(2):
                    trickle.append([f"ds_read_b64_tr_b16 {vr(KWF+8*i+4*nt+2*e,2)}, v{vKT0+nt} offset:{(4096 if i else (rho%2)*2048)+e*256}" for e in range(2)])
            trickle.append([f"ds_read_b128 {vr(KXF+4*i,4)}, v{vKR+i} offset:6144" for i in range(2)])
            trickle.append(konly([f"ds_read_b128 {vr(KGF+4*i,4)}, v{vKG} offset:{512*rho+64*i}" for i in range(2)]))
        def kvM(rho):
            if 'M' in OPT['kvskip']: return
            a.wait0(vm=False)
            lv, ld = a.newlabel("L_kv"), a.newlabel("L_kd")
            a(f"s_cmp_lg_u32 s{sISV}, 0\n s_cbranch_scc1 {lv}")
            for nt in range(2):
                for i in range(2): mf16(KAC + 4 * nt, KWF + 8 * i + 4 * nt, KXF + 4 * i)
            for i in range(2): mf16(KAC + 8, KGF + 4 * i, KXF + 4 * i)
            a(f"s_branch {ld}")
            a.label(lv)
            for nt in range(2):
                for i in range(2): mf16(KAC + 4 * nt, KXF + 4 * i, KWF + 8 * i + 4 * nt)
            a.label(ld)
        def kvP():
            if 'P' in OPT['kvskip']: return
            a(f"v_add_u32 v16, s{sSTG}, v{vKVD}\n s_nop 5")
            if OPT["pw"] == 128:
                for nt in range(2): trickle.append([f"ds_write_b128 v16, {vr(KAC+4*nt,4)} offset:{nt*1024}"])
            elif OPT["pw"] == 64:
                for k_ in range(4): trickle.append([f"ds_write_b64 v16, {vr(KAC+2*k_,2)} offset:{(k_//2)*1024+(k_%2)*8}"])
            elif OPT["pw"] == 32:
                for k_ in range(0, 8, 2): trickle.append([f"ds_write_b32 v16, v{KAC+k2} offset:{(k2//4)*1024+(k2%4)*4}" for k2 in (k_, k_ + 1)])
            trickle.append(konly([f"ds_write_b32 v16, v{KAC+8} offset:2048"]))
            if OPT["pb"]: trk(True)
            if OPT["pb"] > 1: a.wait0(vm=False)
        def kvF():
            if 'F' in OPT['kvskip']: return
            a(f"v_add_u32 v26, {KVST}, v{vKVD}")
            for w in range(3):
                a(f"ds_read_b128 {vr(32+8*w,4)}, v26 offset:{w*8192}\n ds_read_b128 {vr(36+8*w,4)}, v26 offset:{w*8192+1024}")
            a(f"""s_lshr_b32 s{sT3}, s{sR0}, 5
              s_lshl_b32 s{sT3}, s{sT3}, 12
              s_add_u32 s{sT3}, s{sT3}, {KV_OFF}
              s_bfe_u32 s{sT4}, s{sR0}, 0x10004
              s_cmp_eq_u32 s{sISV}, 0
              s_cselect_b32 s{sT0}, {f2u(32 ** -0.5 * math.log2(math.e))}, 1.0
              s_cselect_b32 s{sT2}, 7, 9
              s_cselect_b32 s{sT5}, 0, 2048
              s_lshl_b32 s{sT4}, s{sT4}, s{sT2}
              s_add_u32 s{sT3}, s{sT3}, s{sT4}
              s_add_u32 s{sT3}, s{sT3}, s{sT5}
              s_waitcnt lgkmcnt(0)""")
            for r in range(8):
                a(f"v_add_f32 v{32+r}, v{32+r}, v{40+r}\n v_add_f32 v{48+r}, v{48+r}, v{KAC+r}\n v_add_f32 v{32+r}, v{32+r}, v{48+r}\n v_mul_f32 v{32+r}, s{sT0}, v{32+r}")
            for r in range(4): a(f"v_cvt_pk_bf16_f32 v{40+r}, v{32+2*r}, v{33+2*r}")
            a(f"s_cmp_eq_u32 s{sISV}, 0\n s_cbranch_scc1 L_nosw\n v_permlane16_swap_b32 v40, v42\n v_permlane16_swap_b32 v41, v43")
            a.label("L_nosw")
            a.vm(f"buffer_store_dwordx4 v[40:43], v27, s[{rWS}:{rWS+3}], s{sT3} offen sc1", "pub")
        def kvF0():
            a(f"""v_bfe_u32 v16, v1, 2, 1
              v_lshlrev_b32 v16, 10, v16
              v_lshl_add_u32 v16, v2, 8, v16
              v_lshrrev_b32 v17, 3, v1
              v_lshl_add_u32 v16, v17, 6, v16
              v_and_b32 v17, 3, v1
              v_lshl_add_u32 v27, v17, 4, v16
              s_cmp_eq_u32 s{sISV}, 0
              s_cbranch_scc1 L_kadr
              v_and_b32 v16, 1, v2
              v_lshlrev_b32 v16, 10, v16
              v_lshrrev_b32 v17, 1, v2
              v_lshl_add_u32 v16, v17, 8, v16
              v_lshl_add_u32 v27, v1, 4, v16""")
            a.label("L_kadr")
        def kvF2():
            if 'F' in OPT['kvskip']: return
            a(f"s_mov_b32 s{sT0}, {OOB}\n v_lshlrev_b32 v20, 2, v0\n s_cmp_lg_u32 s{sISV}, 0\n s_cbranch_scc1 L_nogate")
            for w in range(3): a(f"ds_read_b32 v{64+w}, v26 offset:{w*8192+2048}")
            a(f"""s_lshl_b32 s{sT0}, s{sR0}, 2
              s_add_u32 s{sT0}, s{sT0}, {G_OFF}
              s_waitcnt lgkmcnt(0)
              v_add_f32 v64, v64, v65
              v_add_f32 v66, v66, v{KAC+8}
              v_add_f32 v64, v64, v66
              v_mul_f32 v64, {f2u(-math.log2(math.e))}, v64
              v_exp_f32 v64, v64
              s_nop 0
              v_add_f32 v64, 1.0, v64
              v_rcp_f32 v64, v64""")
            a.label("L_nogate")
            a("s_mov_b64 exec, 0xffff")
            a.vm(f"buffer_store_dword v64, v20, s[{rWS}:{rWS+3}], s{sT0} offen sc1", "pub"); a("s_mov_b64 exec, -1")
        def kvA():
            a(f"""s_lshl_b32 s{sT0}, s{sRB}, 4
              s_add_u32 s{sT0}, s{sT0}, s{sCB}
              s_lshl_b32 s{sT0}, s{sT0}, 2
              s_add_u32 s{sT0}, s{sT0}, {KF_OFF}
              v_mov_b32 v16, 1
              v_mov_b32 v17, 0""")
            a.wait(vm="pub")
            a("s_mov_b64 exec, 1"); a.vm(f"buffer_store_dword v16, v17, s[{rWS}:{rWS+3}], s{sT0} offen sc1"); a("s_mov_b64 exec, -1")
        def clr():
            a(f"""s_and_b32 s{sT0}, s2, 0xc1
              s_cbranch_scc1 L_noclr
              s_lshl_b32 s{sT0}, s2, 11
              s_add_u32 s{sT0}, s{sT0}, {FL_OFF}
              s_lshl_b32 s{sT1}, s2, 4
              s_add_u32 s{sT1}, s{sT1}, {KF_OFF}
              v_lshrrev_b32 v16, 1, v0
              v_and_b32 v17, 1, v0
              v_lshlrev_b32 v17, 4, v17
              v_lshl_add_u32 v16, v16, 7, v17
              buffer_store_dwordx4 v[{KAC}:{KAC+3}], v16, s[{rWS}:{rWS+3}], s{sT0} offen sc1
              s_mov_b64 exec, 3
              buffer_store_dwordx4 v[{KAC}:{KAC+3}], v16, s[{rWS}:{rWS+3}], s{sT1} offen sc1
              s_mov_b64 exec, -1""")
            a.label("L_noclr")
        def clrdone():
            a(f"""s_and_b32 s{sT0}, s2, 0xc1
              s_cbranch_scc1 L_noclr2
              s_waitcnt vmcnt(0)
              s_lshl_b32 s{sT0}, s2, 1
              v_mov_b32 v16, 1
              v_mov_b32 v17, 0
              s_mov_b64 exec, 1
              buffer_store_dword v16, v17, s[{rDBG}:{rDBG+3}], s{sT0} offen sc1
              s_mov_b64 exec, -1""")
            a.label("L_noclr2")
        def kvPoll0a():
            a(f"v_and_b32 v19, 31, v0\n v_lshlrev_b32 v19, 2, v19"); a.vm(f"buffer_load_dword v18, v19, s[{rDBG}:{rDBG+3}], 0 offen sc1", "p0")
        def kvPoll0():
            a(f"s_mov_b32 s{sT1}, {SPIN_MAX}")
            a.wait(vm="p0")
            a.label("L_poll0")
            a(f"""v_cmp_ne_u32 vcc, 1, v18
              s_sub_u32 s{sT1}, s{sT1}, 1
              s_cbranch_vccz L_poll0x
              s_sleep 16
              buffer_load_dword v18, v19, s[{rDBG}:{rDBG+3}], 0 offen sc1
              s_waitcnt vmcnt(0)
              s_cmp_lg_u32 s{sT1}, 0
              s_cbranch_scc1 L_poll0""")
            a.label("L_poll0x")
        def kvPoll1a():
            a(f"s_mov_b32 s{sT3}, {KF_OFF}"); a.vm(f"buffer_load_dwordx4 v[20:23], v{vKVD}, s[{rWS}:{rWS+3}], s{sT3} offen sc1", "p1")
        def kvPoll1():
            a(f"s_mov_b32 s{sT1}, {SPIN_MAX}")
            a.wait(vm="p1")
            a.label("L_poll1")
            a(f"""v_and_b32 v20, v20, v21
              v_and_b32 v22, v22, v23
              v_and_b32 v20, v20, v22
              v_cmp_ne_u32 vcc, 1, v20
              s_sub_u32 s{sT1}, s{sT1}, 1
              s_cbranch_vccz L_poll1x
              s_sleep 16
              buffer_load_dwordx4 v[20:23], v{vKVD}, s[{rWS}:{rWS+3}], s{sT3} offen sc1
              s_waitcnt vmcnt(0)
              s_cmp_lg_u32 s{sT1}, 0
              s_cbranch_scc1 L_poll1""")
            a.label("L_poll1x")
        def kvD(c):
            if c == 0:
                a(f"s_add_u32 s{rE}, s{pWS}, {KV_OFF}\n s_addc_u32 s{rE+1}, s{pWS+1}, 0\n s_mov_b32 s{rE+2}, 0x40000\n s_mov_b32 s{rE+3}, 0x20000")
                a(f"s_lshl_b32 s{sIT}, s{sW}, 12")
            a(f"s_add_u32 m0, s{sIT}, {KVR + ((c+2)%4)*16384}\n s_add_u32 s{sT0}, s{sIT}, {c*16384}")
            for i in range(4):
                a.vm(f"buffer_load_dwordx4 v{vKVD}, s[{rE}:{rE+3}], s{sT0} offen offset:{1024*i} sc1 lds", ("kv", c))
        def kvDr(c):
            a(f"s_add_u32 s{sT0}, s{sIT}, {c*16384}")
            for i in range(4):
                a.vm(f"buffer_load_dwordx4 {vr(KVREG+16*(c-4)+4*i,4)}, v{vKVD}, s[{rE}:{rE+3}], s{sT0} offen offset:{1024*i} sc1", ("kv", c))
        def ldG():
            a(f"""s_lshl_b32 s{sT1}, s{sRB}, 9
              s_lshl_b32 s{sT2}, s{sW}, 7
              s_add_u32 s{sT1}, s{sT1}, s{sT2}
              s_add_u32 s{sT1}, s{sT1}, {G_OFF}
              v_lshlrev_b32 v22, 2, v1""")
            for h in range(2): a.vm(f"buffer_load_dword v{vG+h}, v22, s[{rWS}:{rWS+3}], s{sT1} offen offset:{64*h} sc1")
        def low(f):
            return (lambda: (a("s_setprio 0"), f(), a("s_setprio 1"))) if OPT["lowv"] else f
        post = {k: [] for k in range(33)}; pre = {k: [] for k in range(33)}; mid = {k: [] for k in range(33)}
        if not OPT["nokv"]:
            for rho in range(4):
                pre[3*rho+5].append(lambda rho=rho: kvR(rho)); mid[3*rho+6].append(lambda rho=rho: kvM(rho))
                post[3*rho+3].append(lambda rho=rho: kvX(rho))
                post[3*rho+1].append(lambda rho=rho: kvW(rho, 0)); post[3*rho+2].append(lambda rho=rho: kvW(rho, 1))
            if path < 2: pre[16].append(kvP); post[16].append(lambda: a.wait0(vm=False))
            if path == 2:
                post[2] += [clr]; pre[7].append(clrdone); post[13].append(low(kvF0)); post[3].append(lambda: a.wait(vm="gt"))
                ({0: post, 1: pre, 2: mid}[OPT['fpre'] % 3])[17] += [low(kvF) if OPT['fpre'] < 3 else kvF]; ({0: post, 1: mid, 2: mid}[OPT['fpre'] % 3])[18] += [low(kvF2) if OPT['fpre'] < 3 else kvF2]; pre[18] += [kvPoll0a]; (mid if OPT['fpre'] else post)[20] += [kvPoll0, kvA]; pre[26].append(kvPoll1a); post[27].append(kvPoll1)
            for k_ in range(4): mid[22 + k_].append(low(lambda k_=k_: attention_setup(k_)))
            post[28].append(ldG)
            for c, t_ in enumerate((28, 29, 29, 30)): post[t_].append(lambda c=c: kvD(c))
            for c in range(OPT["kvreg"]): post[30].append(lambda c=c: kvDr(4 + c))
        stamp("a_set")
        for s_ in range(31):
            u = s_ // 2
            a.wait(vm=[("W", u), ("Q", 0), ("X", 0)] if s_ % 2 == 0 else [("Q", u + 1), ("X", u + 1)])
            if s_ == 0: stamp("a_w0")
            if s_ == 29:
                if path < 2: a("s_branch L_a1done"); break
                a.label("L_a1done")
                a.vmq[:] = [("W", 15), None, None] + [("kv", 0)] * 4
            a("s_barrier")
            if s_ == 0: stamp("a_b0")
            if s_ in (8, 16, 24): stamp(f"a_{s_}")
            if OPT["steps"] and path == 2 and s_ < 29:
                a("s_memtime s[98:99]"); a.wait0(vm=False); a(f"v_writelane_b32 v160, s98, {s_}")
                if s_ == 28:
                    a(f"s_lshl_b32 s98, s2, 8\n s_add_u32 s98, s98, {TS_OFF+0x10000}\n v_lshlrev_b32 v161, 2, v0\n buffer_store_dword v160, v161, s[{rWS}:{rWS+3}], s98 offen")
            for f in pre[s_]: f()
            midf = lambda: [f() for f in mid[s_]]
            if s_ % 2 == 0:
                if u + 1 < 16 and not (u == 0 and OPT["w1pre"]): ldW(u + 1, midf)
                else: midf()
                if s_ == OPT["xr"]: ldX(u + 2)
            else:
                if u + 2 < 16: ldQ(u + 2)
                midf()
                xa = 3 if s_ > OPT["xr"] else 2
                if u + xa < 16: ldX(u + xa)
            trk(True)
            for f in post[s_]: f()
            if not OPT["peven"]: pfs(s_)
            elif s_ % 2 == 0: pfs(s_); pfs(s_ + 1)
    a.wait = plainwait
    a.wait(vm=[("kv", 1)])
    a.vmq[:] = [("kv", 2)] * 4 + [None if OPT["kvreg"] else ("kv", 3)] * 4
    a("s_barrier")
    attention_setup(4)
    a("s_barrier")

QF, OA, LA, SB, PB, KF, VF, ONES = 32, 48, 80, 88, 120, 136, 176, 168
vKc, vKn, vSy, vOne, vCnt, vIdx, vQa, vSt = 248, 249, 251, 252, 20, 255, 30, 31
vD, vDW = 240, 244
def wtile_offsets(dst):
    a(f"""v_lshrrev_b32 v22, 3, v0
      v_lshlrev_b32 v22, 11, v22
      v_and_b32 v23, 1, v2
      v_lshlrev_b32 v23, 2, v23
      v_and_b32 v24, 7, v0
      v_xor_b32 v23, v23, v24
      v_lshl_add_u32 v22, v23, 4, v22
      s_lshl_b32 s{sT0}, s{sCB2}, 7
      v_add_u32 v22, s{sT0}, v22""")
    for i in range(4): a(f"v_xor_b32 v23, {32*(i%2)}, v22\n v_add_u32 v{dst+i}, {i*16384-i*1024}, v23")
def lsum(z, P):
    a(f"v_smfmac_f32_16x16x64_bf16 {vr(LA+4*(z//2),4)}, {vr(ONES+4*(z%2),4)}, {vr(P,8)}, v{vIdx}")
sKo, sCn, sDo, sMb, sDs, sO0, sO1 = sA, sB, sC, sD, sE, sF, sG
def attention_setup(part):
    if part == 0: wtile_offsets(vDW)
    if part == 1:
        a(f"""s_lshl_b32 s{sT0}, s{sW}, 12
          s_add_u32 s{sT1}, s{sT0}, {QX}
          v_lshl_add_u32 v{vQa}, v0, 4, s{sT1}
          v_add_u32 v{vKc}, {KVR}, v{vKVD}
          v_mov_b32 v{vKn}, {SYNC}
          v_and_b32 v22, 2, v1
          v_mov_b32 v23, 0x3f803f80
          v_cmp_eq_u32 vcc, 0, v22
          v_lshl_add_u32 v{vSy}, v0, 2, v{vKn}
          v_sub_u32 v{vOne}, 1, v0
          v_max_i32 v{vOne}, 0, v{vOne}
          v_cndmask_b32 v{ONES}, 0, v23, vcc
          v_cndmask_b32 v{ONES+1}, 0, v23, vcc
          v_xor_b32 v{ONES+4}, v{ONES}, v23
          v_xor_b32 v{ONES+5}, v{ONES}, v23
          v_mov_b64 {vr(ONES+2,2)}, {vr(ONES,2)}
          v_mov_b64 {vr(ONES+6,2)}, {vr(ONES+4,2)}
          v_and_b32 v22, 1, v1
          v_mul_u32_u24 v22, 0xaaaa, v22
          v_or_b32 v{vIdx}, 0x4444, v22""")
    if part == 2:
        a(f"""v_and_b32 v22, 1, v2
          v_lshlrev_b32 v22, 9, v22
          v_lshrrev_b32 v23, 1, v2
          v_lshl_add_u32 v22, v23, 8, v22
          v_lshl_add_u32 v{vSt}, v1, 4, v22""")
        for r in range(4): a(f"v_mov_b32 v{vD+r}, v{vKVD}")
        for r in list(range(PB + 8, PB + 16, 2)) + list(range(VF + 16, VF + 32, 2)): a(f"v_mov_b64 {vr(r,2)}, 0")
    if part == 3:
        for r in range(OA, OA + 40, 2): a(f"v_mov_b64 {vr(r,2)}, 0")
    if part == 4:
        a(f"""s_lshl_b32 s{sT0}, s{sW}, 12
          s_mov_b32 s{sCn}, 4
          s_add_u32 s{sDo}, s{sT0}, {3*16384}
          s_mov_b32 s{sDs}, 16384
          s_mov_b32 s{sKo}, 16384
          s_add_u32 s{sMb}, s{sT0}, {KVR}
          s_mul_i32 s{sO0}, s{sRB}, {RBSZ}
          s_lshl_b32 s{sT1}, s{sQB}, 14
          s_add_u32 s{sO0}, s{sO0}, s{sT1}
          s_lshl_b32 s{sT1}, s{sW}, 11
          s_add_u32 s{sO0}, s{sO0}, s{sT1}
          s_add_u32 s{sO0}, s{sO0}, {112*8192}
          s_add_u32 s{sO1}, s{sO0}, 8192
          s_mov_b32 s{sIT}, 0""")
def attention():
    kvo = lambda T: ((T // 4 + 2) % 4) * 16384 + (T % 4) * 4096
    def rdK(U, e):
        for k_ in range(2): a.lg(f"ds_read_b128 {vr(KF+16*(U%2)+8*e+4*k_,4)}, v{vKc} offset:{kvo(2*U+e)+1024*k_}", "kv")
    def rdV(U, e):
        for k_ in range(2): a.lg(f"ds_read_b128 {vr(VF+16*(U%2)+8*e+4*k_,4)}, v{vKc} offset:{kvo(2*U+e)+2048+1024*k_}", "kv")
    a.lg(f"ds_read_b128 {vr(QF,4)}, v{vQa}")
    rdK(0, 0); rdK(0, 1)
    a.lgq[-1] = "k0"
    a.lg(f"ds_read_b128 {vr(QF+4,4)}, v{vQa} offset:1024", "q1")
    for i in range(2, 4): a.lg(f"ds_read_b128 {vr(QF+4*i,4)}, v{vQa} offset:{1024*i}")
    rdV(0, 0); rdV(0, 1)
    a.wait(lg="k0")
    for k_ in range(4): mf16(SB + 4 * k_, KF + 4 * k_, QF, "0")
    a.wait(lg="q1")
    a("s_nop 3")
    a.raw(".p2align 3")
    cm("attention: S^T = K Q^T, P = exp2(S), O^T += V^T P, row sums by a sparse MFMA; K/V stream through a 4-slot LDS ring.\nZero stands in for the row maximum here; the check after the loop falls back to the true maximum (L_slow)")
    a.label("L_att")
    def pv(k_, U, z, P): e_ = int(k_ in (1, 2)); mf16(OA + 8 * z + 4 * (k_ // 2), VF + 16 * (U % 2) + 8 * e_ + 4 * (k_ // 2), P + 4 * e_)
    def slot(n, hooks):
        U1, z1 = divmod(n + 1, 4); Up, zp = divmod(n - 1, 4)
        S = SB + 16 * (n % 2); S1 = SB + 16 * ((n + 1) % 2)
        P = PB + 8 * (n % 2); Pp = PB + 8 * ((n - 1) % 2)
        ne = nc = 0
        for ch in OPT["pat"]:
            if ch == "e": a(f"v_exp_f32 v{S+ne}, v{S+ne}"); ne += 1
            elif ch == "c": assert ne >= 2 * nc + 2; a(f"v_cvt_pk_bf16_f32 v{P+nc}, v{S+2*nc}, v{S+2*nc+1}"); nc += 1
            elif ch == "w": a.wait(lg=["kv", "cnt"], vm=hooks.get("vm", ()))
            elif ch in "qrst": k_ = "qrst".index(ch); mf16(S1 + 4 * k_, KF + 16 * (U1 % 2) + 4 * k_, QF + 4 * z1, "0")
            elif ch in "uvxy": pv("uvxy".index(ch), Up, zp, Pp)
            elif ch == "S": lsum(zp, Pp)
            else:
                for f in hooks.get(int(ch), []): f()
        assert ne == 16 and nc == 8
        pt = OPT["pat"]; assert pt.index("4") > pt.index("w")
    def body(it):
        for cc in range(4):
            c_ = 4 * it + cc
            for k in range(8):
                n = 8 * c_ + k; U, z = divmod(n, 4)
                hk = {4: [lambda: rdK(U + 1, z) if z < 2 else rdV(U + 1, z - 2)]}
                KA = OPT["arrk"]
                if k == KA:
                    hk["vm"] = ("kv", c_ + 1); hk[4].append(lambda: a.lg(f"ds_add_u32 v{vSy}, v{vOne}"))
                if k == 1:
                    hk[0] = [lambda: a(f"s_add_u32 m0, s{sMb}, {((c_+1)%4)*16384}")]
                    if cc == 1: hk[1] = [lambda: a(f"s_cmp_eq_u32 s{sIT}, 3")]; hk[2] = [lambda: (a("s_cbranch_scc1 L_attwo"), a.label("L_attwo_r"))]
                if k == 2: hk[4].append(lambda: a.lg(f"ds_read_b32 v{vCnt}, v{vKn}", "cnt"))
                if k == 3: hk[5] = [lambda: a(f"v_cmp_gt_u32 vcc, s{sCn}, v{vCnt}")]
                pre_ = cc <= OPT["kvreg"]
                if k == 4:
                    hk[0] = [lambda: (a(f"s_cbranch_vccnz L_attspin{cc}"), a.label(f"L_attgo{cc}"))]
                    hk[1] = [lambda: a(f"s_add_u32 s{sCn}, s{sCn}, 4")]
                    if pre_: hk[2] = [lambda: a(f"s_cmp_eq_u32 s{sIT}, 0")]
                if k in (4, 5):
                    def dma(i):
                        if OPT["anodma"]: return
                        if pre_: a(f"s_cbranch_scc1 L_{'no' if cc == 0 else 'reg'}dma{cc}_{i}")
                        for k2 in (i, i + 1):
                            t_ = f"buffer_load_dwordx4 v{vD+k2}, s[{rE}:{rE+3}], s{sDo} offen offset:{1024*k2} sc1 lds"
                            a.vm(t_, ("kv", c_ + 3)) if c_ > OPT["kvreg"] else a(t_)
                        if pre_: a.label(f"L_nodma{cc}_{i}")
                    if OPT["dpos"] == 0: hk[4].append(lambda: dma(2 * (k - 4)))
                    elif OPT["dpos"] == 1: hk[4].insert(0, lambda: dma(2 * (k - 4)))
                    else: hk[6] = [lambda: dma(2 * (k - 4))]
                if k == 7:
                    hk[0] = [lambda: a(f"s_add_u32 s{sDo}, s{sDo}, s{sKo if cc == 1 else sDs}")]
                    if cc == 3: hk[1] = [lambda: a(f"s_add_u32 s{sIT}, s{sIT}, 1")]; hk[2] = [lambda: a(f"s_cmp_lt_u32 s{sIT}, 4")]
                slot(n, hk)
        a("s_cbranch_scc1 L_att")
    a.loop(body, "att", 3)
    a("s_nop 0")
    lsum(3, PB + 8)
    for k_ in range(4): pv(k_, 31, 3, PB + 8)
    stamp("a_att")
    a(f"s_mov_b32 s{sIT}, 0")
    cm('O * gate / rowsum -> workspace')
    a.label("L_attfin")
    def fin(k):
        T_ = SB + 4 * k
        a(f"v_permlane16_swap_b32 v{T_}, v{T_+2}\n v_permlane16_swap_b32 v{T_+1}, v{T_+3}")
        a(f"buffer_store_dwordx4 {vr(T_,4)}, v{vSt}, s[{rWS}:{rWS+3}], s{sO0+k//2} offen offset:{1024*(k%2)} sc1")
    for k in range(4):
        a(f"v_add_f32 v{24+k}, v{LA+2*k}, v{LA+2*k+1}")
        a(f"v_rcp_f32 v22, v{24+k}")
        if k: fin(k - 1)
        else: a("s_nop 0")
        a(f"v_mul_f32 v22, v22, v{vG+k%2}")
        for r in range(4):
            d = OA + 8 * k + 2 * r
            a(f"v_mul_f32 v{d}, v{d}, v22\n v_mul_f32 v{d+1}, v{d+1}, v22\n v_cvt_pk_bf16_f32 v{SB+4*k+r}, v{d}, v{d+1}")
    a("s_nop 1"); fin(3)
    a(f"s_cmp_lg_u32 s{sIT}, 0\n s_cbranch_scc1 L_attok")
    a(f"s_waitcnt vmcnt(4) lgkmcnt(0)\n ds_add_u32 v{vSy}, v{vOne} offset:12")
    cm('stand-in check: every row sum in [2^-40, 2^100] and nothing infinite or NaN, else redo with the true maximum')
    a(f"s_mov_b32 s{sT0}, {f2u(2.0**-40)}\n s_mov_b32 s{sT1}, {f2u(2.0**100)}\n v_max3_f32 v28, v24, v25, v26\n v_max_f32 v28, v28, v27\n v_mov_b32 v29, 0")
    for r in list(range(OA, OA + 32, 2)) + [24, 26]: a(f"v_pk_fma_f32 v[28:29], {vr(r,2)}, 0, v[28:29]")
    a(f"""v_add_f32 v28, v28, v29
      v_min3_f32 v29, v24, v25, v26
      v_min_f32 v29, v29, v27
      v_cmp_nle_f32 vcc, v28, s{sT1}
      v_cmp_nge_f32 s[{sT2}:{sT3}], v29, s{sT0}
      s_or_b64 vcc, vcc, s[{sT2}:{sT3}]""")
    if OPT["forceslow"]: a("s_branch L_slow")
    a("s_cbranch_vccnz L_slow")
    a.label("L_attok")
    setflag(1)
    stamp("a_end")
    if OPT["padto"]:
        a("s_barrier\n s_barrier" if OPT["ebar"] else "s_barrier")
        a.label("L_pad2")
        a(f"s_memrealtime s[98:99]\n s_waitcnt lgkmcnt(0)\n s_sleep 8\n s_sub_u32 s98, s98, s96\n s_cmp_lt_u32 s98, {OPT['padto']}\n s_cbranch_scc1 L_pad2")
    dump_ts_and_end()
    a.label("L_attwo")
    srd(rE, pWO, 1024 * 2048)
    a(f"s_lshl_b32 s{sDo}, s{sW}, 17\n s_add_u32 s{sDo}, s{sDo}, {524288+65536}\n s_mov_b32 s{sDs}, 65536\n s_mov_b32 s{sKo}, {2*524288-65536}")
    a(f"v_mov_b64 {vr(vD,2)}, {vr(vDW,2)}\n v_mov_b64 {vr(vD+2,2)}, {vr(vDW+2,2)}\n s_branch L_attwo_r")
    for cc in range(1, OPT["kvreg"] + 1):
        for i in (() if OPT["anodma"] else (0, 2)):
            a.label(f"L_regdma{cc}_{i}")
            if i == 0: a(f"s_waitcnt vmcnt(0)\n v_add_u32 v22, s{sMb}, v{vKVD}")
            for k2 in (i, i + 1): a(f"ds_write_b128 v22, {vr(KVREG+16*(cc-1)+4*k2,4)} offset:{((cc+1)%4)*16384+1024*k2}")
            a(f"s_branch L_nodma{cc}_{i}")
    for cc in range(4):
        a.label(f"L_attspin{cc}")
        a(f"s_mov_b32 s{sT2}, {SPIN_MAX}")
        a.label(f"L_attspin{cc}b")
        a(f"""ds_read_b32 v{vCnt}, v{vKn}
          s_waitcnt lgkmcnt(0)
          v_cmp_gt_u32 vcc, s{sCn}, v{vCnt}
          s_sub_u32 s{sT2}, s{sT2}, 1
          s_cbranch_vccz L_attgo{cc}
          s_cmp_lg_u32 s{sT2}, 0
          s_cbranch_scc1 L_attspin{cc}b
          s_branch L_attgo{cc}""")
    cm('exact path: pass 1 finds the true row maximum, pass 2 subtracts it (through the accumulator input of the score MFMA)')
    a.label("L_slow")
    NM = 208
    a(f"s_add_u32 s{rE}, s{pWS}, {KV_OFF}\n s_addc_u32 s{rE+1}, s{pWS+1}, 0\n s_mov_b32 s{rE+2}, 0x40000\n s_mov_b32 s{rE+3}, 0x20000")
    a(f"s_waitcnt vmcnt(0) lgkmcnt(0)\n s_mov_b32 s{sT0}, 0\n s_mov_b32 s{sIT}, 1")
    for k in range(4): a(f"v_mov_b32 v{24+k}, 0xff800000")
    a.label("L_slow1")
    a(f"buffer_load_dwordx4 {vr(KF,4)}, v{vKVD}, s[{rE}:{rE+3}], s{sT0} offen sc1\n buffer_load_dwordx4 {vr(KF+4,4)}, v{vKVD}, s[{rE}:{rE+3}], s{sT0} offen offset:1024 sc1\n s_waitcnt vmcnt(0)")
    for k in range(8): mf16(SB + 4 * k, KF + 4 * (k % 2), QF + 4 * (k // 2), "0")
    a("s_nop 7")
    for k in range(4):
        for r in range(0, 8, 2): a(f"v_max3_f32 v{24+k}, v{SB+8*k+r}, v{SB+8*k+r+1}, v{24+k}")
    a(f"s_add_u32 s{sT0}, s{sT0}, 4096\n s_cmp_lt_u32 s{sT0}, 0x40000\n s_cbranch_scc1 L_slow1")
    for sw in ("16", "32"):
        for k in range(4): a(f"v_mov_b32 v{16+k}, v{24+k}")
        a("s_nop 1")
        for k in range(4): a(f"v_permlane{sw}_swap_b32 v{24+k}, v{16+k}")
        for k in range(4): a(f"v_max_f32 v{24+k}, v{24+k}, v{16+k}")
    for k in range(4):
        for r in range(4): a(f"v_sub_f32 v{NM+4*k+r}, 0, v{24+k}")
    for r in range(OA, OA + 40, 2): a(f"v_mov_b64 {vr(r,2)}, 0")
    a(f"s_mov_b32 s{sT0}, 0")
    a.label("L_slow2")
    for e_ in range(2):
        for i in range(4):
            a(f"buffer_load_dwordx4 {vr((KF if i < 2 else VF)+8*e_+4*(i%2),4)}, v{vKVD}, s[{rE}:{rE+3}], s{sT0} offen offset:{1024*i} sc1")
        a(f"s_add_u32 s{sT0}, s{sT0}, 4096")
    a("s_waitcnt vmcnt(0)")
    for z in range(4):
        for k in range(4): mf16(SB + 4 * k, KF + 4 * k, QF + 4 * z, vr(NM + 4 * z, 4))
        a("s_nop 7")
        for r in range(16): a(f"v_exp_f32 v{SB+r}, v{SB+r}")
        for r in range(8): a(f"v_cvt_pk_bf16_f32 v{PB+r}, v{SB+2*r}, v{SB+2*r+1}")
        a("s_nop 1")
        for k in range(4): pv(k, 0, z, PB)
        lsum(z, PB)
    a(f"s_cmp_lt_u32 s{sT0}, 0x40000\n s_cbranch_scc1 L_slow2")
    a("s_nop 7\n s_nop 3\n s_branch L_attfin")

def setflag(which):
    if which == 0: a(f"s_lshr_b32 s{sT1}, s{sCB}, 2\n s_and_b32 s{sT2}, s{sCB}, 3")
    else: a(f"s_and_b32 s{sT1}, s{sQB}, 3\n s_and_b32 s{sT2}, s{sQB}, 12\n s_lshr_b32 s{sT2}, {sum(k << (4 * g) for k, g in enumerate(GRP))}, s{sT2}\n s_and_b32 s{sT2}, s{sT2}, 3")
    a(f"""s_lshl_b32 s{sT0}, s{sRB}, 13
      s_lshl_b32 s{sT1}, s{sT1}, 7
      s_add_u32 s{sT0}, s{sT0}, s{sT1}
      s_lshl2_add_u32 s{sT0}, s{sT2}, s{sT0}
      s_add_u32 s{sT0}, s{sT0}, {FL_OFF+16*which}
      v_mov_b32 v17, {SYNC+4+4*which}
      v_mov_b32 v15, 1""")
    if which == 0:
        if OPT["noack"] < 2: a.wait(vm="hst")
    elif OPT["noack"] & 1: a("s_waitcnt vmcnt(4)")
    else: a.wait0(lg=False)
    l = a.newlabel("L_nofl")
    a(f"""s_mov_b64 exec, 1
      ds_add_rtn_u32 v16, v17, v15
      s_mov_b64 exec, 0xffff
      v_lshlrev_b32 v17, 9, v0
      s_waitcnt lgkmcnt(0)
      v_readfirstlane_b32 s{sT1}, v16
      s_cmp_eq_u32 s{sT1}, 3
      s_cbranch_scc0 {l}
      buffer_store_dword v15, v17, s[{rWS}:{rWS+3}], s{sT0} offen {OPT['sfl'].replace('_', ' ')}""")
    a.label(l)
    a("s_mov_b64 exec, -1")
    a.lgq.clear()
def mbox(which):
    a(f"""s_lshl_b32 s{sT0}, s{sRB2}, 4
      s_add_u32 s{sT0}, s{sT0}, s{sCB2}
      s_lshl_b32 s{sT0}, s{sT0}, 2
      s_add_u32 s{sT0}, s{sT0}, s{sW}
      s_lshl_b32 s{sT0}, s{sT0}, 7
      s_add_u32 s{sT0}, s{sT0}, {FL_OFF+16*which}
      v_and_b32 v15, 3, v0
      v_lshlrev_b32 v15, 2, v15""")
def waitflag(which, name):
    mbox(which)
    a(f"s_mov_b32 s{sT1}, {SPIN_MAX}\n s_mov_b64 exec, 15")
    a.label(name)
    a(f"""buffer_load_dword v17, v15, s[{rWS}:{rWS+3}], s{sT0} offen {OPT['pfl'].replace('_', ' ')}
      s_waitcnt vmcnt(0)
      v_cmp_ne_u32 vcc, 1, v17
      s_sub_u32 s{sT1}, s{sT1}, 1
      s_cbranch_vccz {name}_x
      s_sleep {OPT['slp']}
      s_cmp_lg_u32 s{sT1}, 0
      s_cbranch_scc1 {name}""")
    a.label(name + "_x")
    a("s_mov_b64 exec, -1")
def waitlds(off, val, name, va=15):
    a(f"s_mov_b32 s{sT1}, {SPIN_MAX}\n v_mov_b32 v{va}, {SYNC+off}")
    a.label(name)
    a(f"""ds_read_b32 v17, v{va}
      s_waitcnt lgkmcnt(0)
      v_readfirstlane_b32 s{sT0}, v17
      s_cmp_ge_u32 s{sT0}, {val}
      s_cbranch_scc1 {name}_x
      s_sleep 2
      s_sub_u32 s{sT1}, s{sT1}, 1
      s_cmp_lg_u32 s{sT1}, 0
      s_cbranch_scc1 {name}""")
    a.label(name + "_x")

ACC2, HR, WF = 128, 64, 32
acc2 = lambda rt, nt: ACC2 + (rt * 4 + nt) * 4
vWD, vWR, vH, vGM = 3, 7, 11, 16
sWo, sHo, sMw, sRdy = sC, sD, sE, sF
def g2_vsetup():
    wtile_offsets(vWD)
    a(f"""s_lshl_b32 s{sT0}, s{sW}, 14
      v_lshrrev_b32 v14, 2, v1
      v_lshl_add_u32 v14, v2, 3, v14
      v_and_b32 v15, 3, v1
      v_lshlrev_b32 v15, 3, v15
      v_lshl_add_u32 v14, v14, 7, v15
      v_and_b32 v15, 1, v2
      v_lshrrev_b32 v30, 3, v1
      v_lshl_add_u32 v15, v30, 1, v15
      v_lshl_add_u32 v14, v15, 5, v14
      v_add_u32 v14, s{sT0}, v14""")
    for nt in range(4): a(f"v_xor_b32 v{vWR+nt}, {32*nt}, v14")
    for p in range(4):
        a(f"s_add_u32 s{sT0}, s{sW}, {p+1}\n s_and_b32 s{sT0}, s{sT0}, 3\n s_lshl_b32 s{sT0}, s{sT0}, 11\n v_lshl_add_u32 v{vH+p}, v0, 4, s{sT0}")
def g2_setup():
    srd(rB, pW2, 3584 * 2048)
    a(f"s_lshl_b32 s{sMw}, s{sW}, 14\n s_mul_i32 s{sWo}, s{sW}, {896*2048}")
def dmaW(i, k):
    if k == 0: a(f"s_add_u32 m0, s{sMw}, {(i%4)*4096}\n s_nop 0")
    a.vm(f"buffer_load_dwordx4 v{vWD+k}, s[{rB}:{rB+3}], s{sWo} offen offset:{1024*k} lds", ("W2", i // 2))
    if k == 3: a(f"s_add_u32 s{sWo}, s{sWo}, 65536")
def g_phase2():
    sHp, sMbx, sOb, sDl = sB, 4, 5, 6
    vPo = 29
    def ldH(i, rt):
        a.vm(f"buffer_load_dwordx4 {vr(HR+32*(i%2)+4*rt,4)}, v{vH+rt//2}, s[{rWS}:{rWS+3}], s{sHp if i % 2 else sHo} offen offset:{1024*(rt%2)} sc1", ("H", i // 2, rt // 2))
    WOFF = {32: 0, 33: 49152, 34: 49152, 35: 0}
    def rdW2(i, nt, e):
        a.lg(f"ds_read_b64_tr_b16 {vr(WF+16*(i%2)+4*nt+2*e,2)}, v{vWR+nt} offset:{WOFF.get(i, (i%4)*4096)+512*e}", ("W2", i // 2, nt))
    cm('G, phase 2: out tile [128 x 64] = (1-g) (hidden W2 + b2) + (g O) Wo, K split over the four waves')
    setflag(0)
    stamp("g_flag")
    if OPT["nog2"]: dump_ts_and_end()
    a(f"""s_mul_i32 s{sHo}, s{sRB2}, {RBSZ}
      s_mul_i32 s{sT1}, s{sW}, {28*8192}
      s_add_u32 s{sHo}, s{sHo}, s{sT1}
      s_lshl_b32 s{sT2}, s{sRB2}, 9
      s_add_u32 s{sT2}, s{sT2}, {G_OFF}
      v_lshlrev_b32 v15, 2, v1""")
    for p in range(4):
        a(f"""s_add_u32 s{sT0}, s{sW}, {p+1}
          s_and_b32 s{sT0}, s{sT0}, 3
          s_lshl_b32 s{sT0}, s{sT0}, 7
          s_add_u32 s{sT0}, s{sT0}, s{sT2}""")
        for h in range(2): a(f"buffer_load_dword v{vGM+4*p+2*h}, v15, s[{rWS}:{rWS+3}], s{sT0} offen offset:{64*h} sc1")
    if OPT["loc2"]:
        assert OPT["map2"] == 5
        a(f"""s_and_b32 s{sT0}, s2, 4
          s_lshl3_add_u32 s{sT3}, s{sT0}, s{sI}
          s_lshl_b32 s{sT0}, s{sW}, 6
          s_add_u32 s{sT0}, s{sT0}, s{sT3}
          s_lshr_b32 s{sG}, s{sT0}, 5
          s_bfe_u32 s{sT1}, s{sT0}, 0x20003
          s_mul_i32 s{sT1}, s{sT1}, {896*2048}
          s_and_b32 s{sT0}, s{sT0}, 7
          s_lshl_b32 s{sT0}, s{sT0}, 15
          s_add_u32 s{sT0}, s{sT0}, s{sT1}
          s_add_u32 s{sT1}, s{sG}, 2
          s_lshl_b32 s{sT1}, s{sT1}, 18
          s_add_u32 s{sT0}, s{sT0}, s{sT1}
          s_cmp_eq_u32 s{sG}, 5
          s_cselect_b32 s{sG}, -1, s{sG}
          s_lshl_b32 s{sT1}, s{sT3}, 15
          s_and_b32 s{sT2}, s{sCB2}, 3
          s_lshl_b32 s{sT2}, s{sT2}, 7
          s_add_u32 s{sT0}, s{sT0}, s{sT2}
          s_add_u32 s{sT1}, s{sT1}, s{sT2}
          s_and_b32 s{sT2}, s{sI}, 1
          s_add_u32 s{sT2}, s{sT2}, {OPT["woit"]}""")
    else:
        if OPT["ev2"]: a(f"s_lshl_b32 s{sT0}, s{sW}, 8\n s_add_u32 s{sT0}, s{sT0}, s2")
        else: a(f"s_lshl_b32 s{sT0}, s2, 1\n s_add_u32 s{sT0}, s{sT0}, s{sW}\n s_add_u32 s{sT1}, s2, 512\n s_cmp_eq_u32 s{sW}, 2\n s_cselect_b32 s{sT0}, s{sT1}, s{sT0}")
        a(f"""
          s_lshr_b32 s{sG}, s{sT0}, 7
          s_bfe_u32 s{sT1}, s{sT0}, 0x20005
          s_mul_i32 s{sT1}, s{sT1}, {896*2048}
          s_and_b32 s{sT0}, s{sT0}, 31
          s_lshl_b32 s{sT0}, s{sT0}, 13
          s_add_u32 s{sT0}, s{sT0}, s{sT1}
          s_add_u32 s{sT1}, s{sG}, 2
          s_lshl_b32 s{sT1}, s{sT1}, 18
          s_add_u32 s{sT0}, s{sT0}, s{sT1}
          s_cmp_eq_u32 s{sG}, 5
          s_cselect_b32 s{sG}, -1, s{sG}
          s_lshl_b32 s{sT1}, s2, 13
          s_and_b32 s{sT2}, s{sI}, 1""")
    a(f"""
      s_cmp_eq_u32 s{sW}, 3
      s_cselect_b32 s{sA}, s{sT1}, s{sT0}
      s_cselect_b32 s{sG}, s{sT2}, s{sG}
      s_cselect_b32 s{rPF}, s{pWO}, s{pW2}
      s_cselect_b32 s{rPF+1}, s{pWO+1}, s{pW2+1}
      s_mov_b32 s{sT0}, {3584*2048}
      s_cselect_b32 s{rPF+2}, {1024*2048}, s{sT0}
      s_mov_b32 s{rPF+3}, 0x20000""")
    if OPT["ev2"] and not OPT["loc2"]: a(f"s_bitcmp1_b32 s2, 0\n s_cselect_b32 s{sG}, -1, s{sG}")
    stamp("g_pw")
    waitflag(0, "L_wh")
    stamp("g_wf")
    a.vmq.clear(); a.lgq.clear()
    rds = lambda D, nt: [lambda e_=e_, k=k: rdW2(2 * D + e_, nt, k) for e_ in range(2) for k in range(2)]
    def ldP(D, ps):
        for p in ps:
            for h in range(2): ldH(2 * D, 2 * p + h); ldH(2 * D + 1, 2 * p + h)
    pend = []
    def dstep(D, fine, extra={}, at={}):
        for p in range(4):
            ex = list(extra.get(p, [])); lq = []
            if p in at: at[p]()
            if p in (1, 2) and D < 14: lq = [lambda k=k: dmaW(2 * D + 3 + p, k) for k in range(4)]
            if OPT["gdma"] and fine and D < 14 and p == 0:
                lq = [lambda: None, lambda: None] + [lambda k=k: (a(f"s_add_u32 m0, s7, {KVR + (D % 2) * 16384}\n s_add_u32 s8, s8, 16384") if k == 0 else None,
                      a.vm(f"buffer_load_dwordx4 v{vH+3}, s[{rWS}:{rWS+3}], s8 offen offset:{1024*k} sc1 lds")) for k in range(4)]
            for nt in range(4):
                if p == 0: lgw = [("W2", D, nt)] if fine else ([("W2", D, nt + 1)] if nt % 2 == 0 else [])
                else: lgw = []
                a.wait(vm=([("H", D, p)] + ([("W2", D + 1)] if p == 3 else [])) if nt == 0 else [], lg=lgw)
                if OPT["chain"]: seq = [(nt % 2, 0), (nt % 2, 1), (1 - nt % 2, 1), (1 - nt % 2, 0)]
                else: seq = [(0, 0), (1, 0), (1, 1), (0, 1)]
                for n, (h, e) in enumerate(seq):
                    first = (h, 1 - e) not in seq[:n]
                    mf16(acc2(2 * p + h, nt), WF + 16 * e + 4 * nt, HR + 32 * e + 4 * (2 * p + h), "0" if D == 0 and first else None)
                    if fine:
                        if pend: pend.pop(0)()
                        if nt == 3 and D < 17: ldH(2 * D + 2 + e, 2 * p + h)
                        elif lq and n % 2: lq.pop(0)()
                        x = ex.pop(0) if ex else None
                        if callable(x): x()
                        elif x: a(x)
                if p == 3 and D < 17: pend.extend(rds(D + 1, nt))
                if not fine and nt == 1:
                    while pend: pend.pop(0)()
                    while lq: lq.pop(0)()
                    if OPT["gdma"] and p in (0, 3):
                        a(f"s_add_u32 m0, s7, {KVR + (D % 2) * 16384}\n s_nop 0")
                        for k in ((0, 1) if p == 0 else (2, 3)): a.vm(f"buffer_load_dwordx4 v{vH+3}, s[{rWS}:{rWS+3}], s8 offen offset:{1024*k} sc1 lds")
                        if p == 3: a("s_add_u32 s8, s8, 16384")
                if not fine and nt == 3:
                    if (p, "ld") in at: at[p, "ld"]()
                    ldP(D + 1, [p])
            assert not ex and not lq
        if D < 12: a(f"s_add_u32 s{sHo}, s{sHo}, 16384\n s_add_u32 s{sHp}, s{sHp}, 16384")
    for nt in range(4):
        for f in rds(0, nt): f()
    a(f"s_add_u32 s{sHp}, s{sHo}, 8192")
    ldP(0, range(4))
    a(f"s_add_u32 s{sHo}, s{sHo}, 16384\n s_add_u32 s{sHp}, s{sHp}, 16384")
    for rt in range(8): a(f"v_sub_f32 v{vGM+2*rt}, 1.0, v{vGM+2*rt}")
    stamp("g_l2")
    a(f"s_setprio {OPT['g2prio']}\n s_mov_b32 s{sIT}, 0")
    if OPT["gdma"]: a(f"s_lshl_b32 s7, s{sW}, 12\n s_lshl_b32 s8, s{sW}, 11\n s_add_u32 s8, s8, {KV_OFF}")
    fine = [not int(c) for c in OPT["gp"][1:3]]
    dstep(0, fine[1])
    stamp("g_s0")
    a.raw(".p2align 3")
    cm('FFN double steps (runs beside the attention waves)')
    a.label("L_g2loop")
    def body(it):
        if OPT["pf2"]: a(f"s_cmp_eq_u32 s{sIT}, s{sG}\n s_cbranch_scc1 L_hookF"); a.label("L_hookF_r")
        dstep(2 * it + 1, fine[0])
        a(f"s_cmp_ge_u32 s{sIT}, 4\n s_cbranch_scc1 L_hookW"); a.label("L_hookW_r")
        dstep(2 * it + 2, fine[1])
        a(f"s_add_u32 s{sIT}, s{sIT}, 1\n s_cmp_lt_u32 s{sIT}, 6\n s_cbranch_scc1 L_g2loop")
    a.loop(body, "g2")
    sh = lambda q: [x and (x[0], x[1] + 6) + x[2:] for x in q]
    a.vmq[:] = sh(a.vmq); a.lgq[:] = sh(a.lgq)
    pend[:] = [f for nt in range(4) for f in rds(13, nt)][16 - len(pend):]
    stamp("g_25")
    cm("last FFN double step, then the output projection: four producers in a fixed order, looked up in this wave's mailbox")
    mbox(1)
    a(f"""s_add_u32 s{sWo}, s{sWo}, {((GRP[1]-GRP[0])*524288-131072) & 0xffffffff}
      s_mov_b32 s{sMbx}, s{sT0}
      s_mul_i32 s{sOb}, s{sRB2}, {RBSZ}
      s_add_u32 s{sOb}, s{sOb}, s{sMw}
      s_lshl_b32 s{sDl}, s{sW}, 12
      s_add_u32 s{sDl}, s{sDl}, {QX}
      s_sub_u32 s{sDl}, s{sDl}, s{sMw}""")
    def poll(): a.vm(f"buffer_load_dword v{vPo}, v15, s[{rWS}:{rWS+3}], s{sMbx} offen sc1", "poll")
    chk = lambda sl: f"""v_cmp_eq_u32 vcc, 1, v{vPo}
      s_add_u32 s{sHo}, s{sOb}, {(112+8*GRP[sl])*8192}
      s_bitcmp1_b32 vcc_lo, {sl}
      s_cselect_b32 s{sRdy}, 1, 0
      s_cselect_b32 s{sHo}, s{sHo}, {OOB}
      s_add_u32 s{sHp}, s{sHo}, 8192""".split("\n")
    behind = {}
    def npoll(): return a.vmq[::-1].index("poll") if "poll" in a.vmq else 62
    def again(sl):
        behind["s", sl] = npoll()
        a(f"s_cmp_eq_u32 s{sRdy}, 0\n s_cbranch_scc1 L_sec{sl}")
        a.label(f"L_sec{sl}_r")
        poll()
    def join(sl):
        behind["b", sl] = npoll()
        a(f"s_cmp_eq_u32 s{sRdy}, 0\n s_cbranch_scc1 L_blk{sl}")
        a.label(f"L_join{sl}")
        a.vmq[:] = [("H", 14 + sl, p) for p in range(4) for _ in range(4)]
    def late(sl):
        a.label(f"L_sec{sl}")
        a(f"s_waitcnt vmcnt({behind['s', sl]})")
        a("\n".join(chk(sl)))
        a(f"s_cmp_eq_u32 s{sRdy}, 0\n s_cbranch_scc1 L_sec{sl}_r")
        ldP(14 + sl, (0, 1))
        a(f"s_branch L_sec{sl}_r")
        a.label(f"L_blk{sl}")
        a(f"s_mov_b32 s{sT5}, {SPIN_MAX}\n s_waitcnt vmcnt({behind['b', sl]})\n s_branch L_blk{sl}b")
        a.label(f"L_blk{sl}a")
        a(f"s_sleep {OPT['slp']}"); poll(); a.wait0(lg=False)
        a(f"s_sub_u32 s{sT5}, s{sT5}, 1\n s_cbranch_scc0 L_blk{sl}b\n v_mov_b32 v{vPo}, 1")
        a.label(f"L_blk{sl}b")
        a("\n".join(chk(sl)))
        a(f"s_cmp_eq_u32 s{sRdy}, 0\n s_cbranch_scc1 L_blk{sl}a")
        ldP(14 + sl, range(4))
        a(f"s_branch L_join{sl}")
    poll()
    dstep(13, False, at={(0, "ld"): lambda: (a.wait(vm="poll"), a("\n".join(chk(0))), poll()), 2: lambda: again(0)})
    srd(rA, pB2, 2048); srd(rC, pOUT, 2048 * 2048)
    while pend: pend.pop(0)()
    join(0)
    stamp("g_hook")
    sc = lambda p: [f"v_pk_mul_f32 {vr(ACC2+32*p+16*h+4*nt+r,2)}, {vr(ACC2+32*p+16*h+4*nt+r,2)}, {vr(vGM+4*p+2*h,2)} op_sel_hi:[1,0]"
                    for nt in range(4) for h in range(2) for r in (0, 2)]
    for x in sc(0): a(x)
    vS0, vS1, vB2 = 3, 4, 18
    def wr(p, k):
        if OPT["nowr"]: return
        if p < 2: a.lg(f"ds_write_b128 v{vS0}, {vr(ACC2+32*p+4*k,4)} offset:{8192*p+1024*k}")
        else: a.lg(f"ds_write_b128 v{vS1}, {vr(ACC2+32*p+4*k,4)} offset:{16384*(k//4)+1024*(k%4)}")
    OWN = ACC2 + 96
    vRd = [5, 6, 16]; vTw = [11, 12, 13, 14]; vTr, vOo = 26, 27
    sc2 = lambda p: ["\n".join(f"v_mul_f32 v{ACC2+32*p+16*h+4*nt+r+u}, v{vGM+4*p+2*h}, v{ACC2+32*p+16*h+4*nt+r+u}" for u in range(2))
                     for nt in range(4) for h in range(2) for r in (0, 2)]
    extra = {(0, p): sc2(p + 1) for p in range(3)}
    two = lambda l_: ["\n".join(l_[k:k+2]) for k in range(0, len(l_), 2)]
    wp = lambda sl: a(f"s_waitcnt vmcnt({behind['b', sl]})")
    for D in (1, 2): extra[D, 0] = [None] * 7 + [lambda D=D: wp(D)] + two(chk(D + 1)) + [poll]
    t_ = f"""s_lshl_b32 s{sT0}, s{sCB2}, 7
      v_lshlrev_b32 v16, 3, v2
      v_lshl_add_u32 v{vS0}, v0, 4, s{sMw}
      v_add_u32 v{vS1}, s{sDl}, v{vS0}""".split("\n")
    extra[1, 2] = [f"v_mov_b32 v17, {SYNC+12}", None, lambda: a.lg("ds_read_b32 v31, v17", "wa")] + [None] * 7 + [
        lambda: (a.wait(lg="wa"), a("v_cmp_gt_u32 vcc, 4, v31")), lambda: (a("s_cbranch_vccnz L_wa0"), a.label("L_wa_r"))]
    extra[1, 1] = t_ + [f"v_add_u32 v{vWR+nt}, s{sDl}, v{vWR+nt}" for nt in range(4)] + [lambda nt=nt: a.vm(f"buffer_load_dwordx2 {vr(vB2+2*nt,2)}, v16, s[{rA}:{rA+3}], s{sT0} offen offset:{32*nt}", "b2") for nt in range(4)]
    t_ = []
    for p in range(3):
        t_ += [f"s_sub_u32 s{sT1}, s{sW}, {p+1}\n s_and_b32 s{sT1}, s{sT1}, 3"]
        if p < 2: t_ += [f"s_lshl_b32 s{sT1}, s{sT1}, 14\n v_lshl_add_u32 v{vRd[p]}, v0, 4, s{sT1}"]
        else: t_ += [f"s_lshl_b32 s{sT1}, s{sT1}, 12\n s_add_u32 s{sT1}, s{sT1}, {QX}", f"v_lshl_add_u32 v{vRd[p]}, v0, 4, s{sT1}"]
    assert len(t_) == 7; rdadr = t_
    fm = []
    for nt in range(4):
        for r in range(2):
            fm += [f"v_lshlrev_b32 v{vTr}, 16, v{vB2+2*nt+r}\n v_and_b32 v{vTr+1}, 0xffff0000, v{vB2+2*nt+r}"]
            fm += ["\n".join(f"v_fmac_f32 v{OWN+16*h+4*nt+2*r+u}, v{vTr+u}, v{vGM+12+2*h}" for u in range(2)) for h in range(2)]
    extra[2, 0][4:6] = two([f"v_add_u32 v{vWR+nt}, 16384, v{vWR+nt}" for nt in range(4)])
    extra[2, 1] = rdadr + [None] + fm[:8]; extra[2, 2] = fm[8:]
    t_ = f"""s_lshl_b32 s{sT2}, s{sW}, 12
      s_add_u32 s{sT2}, s{sT2}, {KVR+16384}
      v_lshrrev_b32 v15, 3, v0
      v_and_b32 v17, 7, v0
      v_xor_b32 v{vTr}, v15, v17
      v_lshlrev_b32 v{vTr}, 4, v{vTr}
      v_lshl_add_u32 v{vTr}, v15, 7, v{vTr}
      v_add_u32 v{vTr}, s{sT2}, v{vTr}
      v_lshlrev_b32 v{vOo}, 4, v17
      v_lshl_add_u32 v{vOo}, v15, 11, v{vOo}
      v_and_b32 v15, 7, v1
      v_lshrrev_b32 v17, 1, v2
      v_xor_b32 v15, v15, v17
      v_lshlrev_b32 v15, 4, v15
      v_and_b32 v17, 1, v2
      v_lshl_add_u32 v15, v17, 3, v15
      v_lshl_add_u32 v15, v1, 7, v15
      v_add_u32 v{vTw[0]}, s{sT2}, v15
      v_xor_b32 v{vTw[1]}, 32, v{vTw[0]}
      v_xor_b32 v{vTw[2]}, 64, v{vTw[0]}
      v_xor_b32 v{vTw[3]}, 96, v{vTw[0]}
      s_lshl_b32 s{sT0}, s{sCB2}, 7
      s_lshl_b32 s{sT1}, s{sRB2}, 18
      s_add_u32 s{sT0}, s{sT0}, s{sT1}
      s_lshl_b32 s{sT1}, s{sW}, 16
      s_add_u32 s{sT0}, s{sT0}, s{sT1}""".split("\n")
    extra[3, 0] = ["\n".join(t_[2*k:2*k+2]) for k in range(13)]
    worder = [0, 4, 1, 5, 2, 6, 3, 7]
    for p in range(1, 4): extra[3, p] = [x for k in worder for x in (None, (lambda k=k, p=p: wr(p - 1, k)))]
    def rdp(p, k):
        a.lg(f"ds_read_b128 {vr(ACC2+32*p+4*k,4)}, v{vRd[p]} offset:{8192*p+1024*k if p < 2 else 16384*(k//4)+1024*(k%4)}", ("r", p // 2, k))
    x0 = extra[0, 0][10]; extra[0, 0][10] = lambda: (a(x0), wp(0), a("\n".join(chk(1))), poll())
    a("s_nop 0")
    for D in range(4):
        if D: join(D)
        if D == 2: stamp("g_32")
        dstep(14 + D, True, {p: extra.get((D, p), []) for p in range(4)}, {2: lambda: again(D + 1)} if D < 3 else {})
    cm('sum of the four K quarters through LDS, bf16, whole-line stores')
    a.wait0(vm=False)
    stamp("g_36")
    a("s_barrier")
    stamp("g_bar")
    for k in range(4):
        for p in range(3): rdp(p, k)
    def st(g_):
        a.wait(lg=("u", g_ // 2, g_ % 2))
        a(f"buffer_store_dwordx4 {vr(HR+32+4*g_,4)}, v{vOo}, s[{rC}:{rC+3}], s{sT0} offen{['', ' sc1', ' nt'][OPT['osc']]}")
        if g_ < 3: a(f"s_add_u32 s{sT0}, s{sT0}, 16384")
    for k in range(8):
        a.wait(lg=("r", 1, k))
        if k < 4:
            for p in range(3): rdp(p, k + 4)
        for r in (0, 2): a(f"v_pk_add_f32 {vr(ACC2+4*k+r,2)}, {vr(ACC2+4*k+r,2)}, {vr(ACC2+32+4*k+r,2)}")
        for r in (0, 2): a(f"v_pk_add_f32 {vr(OWN+4*k+r,2)}, {vr(OWN+4*k+r,2)}, {vr(ACC2+64+4*k+r,2)}")
        for r in (0, 2): a(f"v_pk_add_f32 {vr(OWN+4*k+r,2)}, {vr(OWN+4*k+r,2)}, {vr(ACC2+4*k+r,2)}")
        T_ = HR + 2 * k
        a(f"v_cvt_pk_bf16_f32 v{T_}, v{OWN+4*k}, v{OWN+4*k+1}\n v_cvt_pk_bf16_f32 v{T_+1}, v{OWN+4*k+2}, v{OWN+4*k+3}")
        a.lg(f"ds_write_b64 v{vTw[k%4]}, {vr(HR+2*k,2)} offset:{2048*(k//4)}")
        if k % 4 == 3:
            for h in range(2): a.lg(f"ds_read_b128 {vr(HR+32+8*(k//4)+4*h,4)}, v{vTr} offset:{2048*(k//4)+1024*h}", ("u", k // 4, h))
    for g_ in range(4): st(g_)
    if OPT["ts"]: a.wait0(); stamp("g_end")
    if OPT["padto"]:
        a.label("L_pad")
        a(f"s_memrealtime s[98:99]\n s_waitcnt lgkmcnt(0)\n s_sub_u32 s98, s98, s96\n s_cmp_lt_u32 s98, {OPT['padto']}\n s_cbranch_scc1 L_pad")
    dump_ts_and_end()
    cm('out-of-line waits (all bounded) and loop hooks')
    for sl in range(4): late(sl)
    a.label("L_wa0")
    waitlds(12, 4, "L_wa", 31)
    a("s_branch L_wa_r")
    if OPT["pf2"]:
        a.label("L_hookF")
        a(f"v_lshlrev_b32 v15, {9 if OPT['loc2'] else 7}, v0\n buffer_load_dword v19, v15, s[{rPF}:{rPF+3}], s{sA} offen")
        if OPT["ev2"] and not OPT["loc2"]: a(f"s_add_u32 s{sA}, s{sA}, 8192\n buffer_load_dword v19, v15, s[{rPF}:{rPF+3}], s{sA} offen")
        a("s_branch L_hookF_r")
    a.label("L_hookW")
    a(f"s_cmp_eq_u32 s{sIT}, 4\n s_cbranch_scc1 L_hookQ")
    a(f"s_mov_b32 s{rB}, s{pWO}\n s_mov_b32 s{rB+1}, s{pWO+1}\n s_mov_b32 s{rB+2}, {1024*2048}\n s_lshl_b32 s{sWo}, s{sW}, 17\n s_add_u32 s{sWo}, s{sWo}, {GRP[0]*524288}\n s_branch L_hookW_r")
    a.label("L_hookQ")
    stamp("g_17")
    waitlds(0, 4, "L_wq")
    srd(rA, pWO, 1024 * 2048)
    a(f"s_lshl_b32 s{sT0}, s{sW}, 12\n s_add_u32 m0, s{sT0}, {QX}\n s_lshl_b32 s{sT0}, s{sW}, 17\n s_add_u32 s{sT0}, s{sT0}, 524288")
    for k in range(4): a(f"buffer_load_dwordx4 v{vWD+k}, s[{rA}:{rA+3}], s{sT0} offen offset:{1024*k} lds")
    a("s_branch L_hookW_r")

prologue()
section("g")
a.label("L_roleG")
g_phase1()
if OPT["stop"] == 1:
    stamp("g_bq"); g_hstore(); a.wait0(); stamp("g_hst"); dump_ts_and_end()
else:
    if OPT["wlate"]: g_hstore(); stamp("g_st")
    g2_setup()
    for i in range(4):
        for k in range(4): dmaW(i, k)
    if not OPT["wlate"]: g_hstore()
    g_phase2()
a_phase1()
if OPT["stop"] == 1:
    a(f"s_lshl_b32 s{sT0}, s{sW}, 12\n s_add_u32 s{sT1}, s{sT0}, {QX}\n v_lshl_add_u32 v16, v0, 4, s{sT1}")
    for i in range(4): a(f"ds_read_b128 {vr(32+4*i,4)}, v16 offset:{1024*i}")
    a(f"s_lshl_b32 s{sT1}, s{sRB}, 4\n s_add_u32 s{sT1}, s{sT1}, s{sCB}\n s_lshl_b32 s{sT1}, s{sT1}, 14\n s_add_u32 s{sT0}, s{sT0}, s{sT1}\n s_add_u32 s{sT0}, s{sT0}, {QD_OFF}")
    a.wait0()
    for i in range(4): a(f"buffer_store_dwordx4 {vr(32+4*i,4)}, v{vKVD}, s[{rWS}:{rWS+3}], s{sT0} offen offset:{1024*i}")
    dump_ts_and_end()
else:
    stamp("a_bq")
    attention()
a.label("L_exit")
a("s_endpgm")
a.label("L_codeend")

HDR = open("cdna_kernels/" + KNAME[:-7] + ".s.ref").read().split("; Override launch")[0]
HDR += """; One persistent launch, 256 workgroups of 8 waves, one per CU (generated by a script of the author's own).
"""
text = HDR + f"; @launch grid=(256,1,1) block=(512,1,1) lds={LDS_BYTES}\n"
text += f'.amdgcn_target "amdgcn-amd-amdhsa--gfx950"\n.text\n.globl {KNAME}\n.p2align 8\n.type {KNAME},@function\n{KNAME}:\n'
a.out = SEC['head'] + SEC['st'] + SEC['st0'] + SEC['st2'] + SEC['g'] + SEC['main']
body = a.text()
nbad = check(body)
text += body
text += f""".section .rodata,"a"
.p2align 6
.amdhsa_kernel {KNAME}
  .amdhsa_next_free_vgpr 256
  .amdhsa_next_free_sgpr 102
  .amdhsa_accum_offset 256
  .amdhsa_group_segment_fixed_size 0
  .amdhsa_kernarg_size 112
  .amdhsa_user_sgpr_count 2
  .amdhsa_user_sgpr_kernarg_segment_ptr 1
  .amdhsa_system_sgpr_workgroup_id_x 1
.end_amdhsa_kernel
"""
open(sys.argv[1], "w").write(text)
if nbad: sys.exit(f"{nbad} hazards")
```

```python
import sys, math
from asmlib import *

KNAME = "gated_mix__grouped_kv_mqa__dense_activation_squared_relu__prompt_kernel"
OPT = dict(stop=0, ts=0, pd=8, forceslow=0, nodma=0, nokv=0, nopf=0, nords=0, lead=7, pfnt=0, far=99, pf2=1, pf2b=2, gprio=2, nog2=0, g2nold=0, anodma=0, g2prio=0, dbgts=0, slp=2, th=0, farw2=1, hglob=1, arrk=0, wlate=1, map2=5, steps=0, kvskip='', pause=99, pcnt=64, grp=1, osc=1, padto=0, st2=0, spos=0, hfirst=2, p0prio=3, d0prio=1, xlate=0, ring=6, h3prio=1, hfl='sc1', wfl='', xfl='', padat='', xm=1, p0late=1, p0lo=0, kvreg=2, lowv=1, noo=0, nopk=1, tgrp=1, nowo=0, noack=0, qsw=1, evn=0, evk=1, ev2=1, ng=8, par='SSSS', lut=0, pw=128, pb=0, g32=0, dyn=0, chain=1, row4=0, skiprd=0, gdma=0, dpos=0, nohst=0, xa=3, w1pre=0, peven=0, xr=99, fpre=4, f13=1, hsf='sc1', ag='x2', ag13='x123', pexact=1, epos=68, mpos=32, loc2=1, woit=2, snake=1, gp='x1111', gpo='', g2f=1, ebar=0, c2x=1, pfl='sc1', sfl='sc1', nowr=0, pat='eeeeeeeq0ccr1esccteu2evexweyccS4e5eeecc')
for a_ in sys.argv[2:]:
    k, v = a_.split("="); OPT[k] = int(v) if v.lstrip('-').isdigit() else v

GRP = [2, 0, 1, 3] if OPT['g2f'] else [0, 2, 1, 3]
RBSZ = 144 * 8192
KV_OFF = 0x1200000; G_OFF = 0x1240000; KF_OFF = 0x1244000; FL_OFF = 0x1248000; WS_USED = 0x1268000
QD_OFF = 0x1400000; TS_OFF = 0x1800000
WS_SIZE = 0x2000000 if (OPT["stop"] or OPT["ts"]) else WS_USED
OOB = 0x40000000
W1R = 0; W1S = 14336
WQR = 57344; WQS = 4096
XR = 73728; XS = 16384
KVST = 122880
SYNC = 155648
GT = SYNC + 512
LDS_BYTES = GT + 2048
QX = XR
KVR = 90112
pX, pWQ, pWK, pWV, pWO, pW1, pB1, pW2, pB2, pGATE, pOUT, pDBG, pWS = 4, 6, 8, 10, 12, 16, 18, 20, 22, 24, 26, 28, 30
rA, rB, rC, rD, rWS, rDBG, rPF, rE = 32, 36, 40, 44, 48, 52, 56, 60
sRB, sCB, sRB2, sCB2, sI, sW = 64, 65, 66, 67, 68, 69
sT0, sT1, sT2, sT3, sT4, sT5 = 70, 71, 72, 73, 74, 75
sIT, sA, sB, sC, sD, sE, sF, sG = 76, 77, 78, 79, 80, 81, 82, 83
sTS = 84
sPOS = 101
sQB = 100
SPIN_MAX = 1 << 18

a = Asm()
SEC = {}
def cm(t):
    for l in t.strip().split('\n'): a.raw('  ; ' + l.strip())
def section(n):
    a.out = SEC.setdefault(n, [])
section("head")
def kwait():
    a("s_waitcnt lgkmcnt(0)"); stamp("kw"); srd(rWS, pWS, WS_SIZE)
def srd(r, p, size):
    a(f"s_mov_b32 s{r}, s{p}\n s_mov_b32 s{r+1}, s{p+1}\n s_mov_b32 s{r+2}, {size}\n s_mov_b32 s{r+3}, 0x20000")
nts = [0]
STAMPS = {1: dict(g_b0=1, g_end1=2, g_bq=3, g_hst=4, g_pre=5, a_set=1, a_w0=2, a_8=3, a_16=4, a_24=5),
          0: dict(g_end1=1, g_flag=2, g_l2=3, g_hook=4, g_end=5, a_b0=1, a_16=2, a_bq=3, a_att=4, a_end=5)}[OPT["stop"]]
if OPT["st2"] == 1: STAMPS.update(g_end1=0, g_flag=0, g_l2=1, g_17=2, g_25=3)
if OPT["st2"] == 3: STAMPS = dict(kw=1, g_pre=2, g_bias=3, g_rdy=4, g_b0=5, a_iss=2, a_set=3, a_w0=4, a_b0=5)
if OPT["st2"] == 4: STAMPS.update(g_end1=0, g_st=1, g_flag=2, g_pw=3, g_wf=4, g_l2=0, g_s0=5, g_hook=0, g_end=0)
if OPT["st2"] == 2: STAMPS.update(g_end1=0, g_flag=0, g_l2=0, g_hook=1, g_32=2, g_36=3, g_bar=4)
def stamp(n):
    if n == OPT["padat"]: a("s_memrealtime s[96:97]"); a.wait0(vm=False)
    i = STAMPS.get(n)
    if OPT["ts"] and i:
        a(f"{'s_memrealtime' if OPT['ts'] == 2 else 's_memtime'} s[{sTS+2*i}:{sTS+2*i+1}]"); a.wait0(vm=False)
def mf16(d, x, y, c=None):
    a(f"v_mfma_f32_16x16x32_bf16 {vr(d,4)}, {vr(x,4)}, {vr(y,4)}, {vr(d,4) if c is None else c}")
def mf32(d, x, y, c=None):
    a(f"v_mfma_f32_32x32x16_bf16 {vr(d,16)}, {vr(x,4)}, {vr(y,4)}, {vr(d,16) if c is None else c}")
def dump_ts_and_end():
    if OPT["ts"]:
        a("s_memrealtime s[98:99]"); a.wait0()
        if OPT["dbgts"]:
            l = a.newlabel("L_nots")
            srd(rDBG, pDBG, 256)
            a(f"s_cmp_lg_u32 s2, 100\n s_cbranch_scc1 {l}\n s_cmp_lg_u32 s{sW}, 0\n s_cbranch_scc1 {l}")
            for i, k in enumerate((1, 2, 3, 4, 5, 7)): a(f"s_sub_u32 s{sT0}, s{sTS+2*k}, s96\n v_mov_b32 v{8+i}, s{sT0}")
            a(f"s_lshl_b32 s{sT0}, s3, 3\n s_add_u32 s{sT0}, s{sT0}, 8\n v_mov_b32 v2, 0\n s_mov_b64 exec, 1")
            a(f"buffer_store_dwordx2 v[8:9], v2, s[{rDBG}:{rDBG+3}], s{sT0} offen")
            a(f"buffer_store_dwordx4 v[10:13], v2, s[{rDBG}:{rDBG+3}], s{sT0} offen offset:8")
            a.label(l)
        else:
            for i in range(8): a(f"v_mov_b32 v{8+i}, s{sTS+2*i}")
            a(f"s_lshl_b32 s{sT0}, s2, 8\n s_lshl_b32 s{sT1}, s3, 5\n s_add_u32 s{sT0}, s{sT0}, s{sT1}\n s_add_u32 s{sT0}, s{sT0}, {TS_OFF}")
            a(f"v_mov_b32 v2, 0\n s_mov_b64 exec, 1")
            a(f"buffer_store_dwordx4 v[8:11], v2, s[{rWS}:{rWS+3}], s{sT0} offen")
            a(f"buffer_store_dwordx4 v[12:15], v2, s[{rWS}:{rWS+3}], s{sT0} offen offset:16")
    a("s_endpgm")

def prologue():
    m = OPT["map2"]
    lx, lc = {0: (1, 3), 2: (1, 3), 3: (2, 2), 4: (0, 4), 5: (2, 2)}[m]
    MAP2 = f"""s_lshr_b32 s{sT1}, s{sT0}, {lx}
      s_lshl_b32 s{sT1}, s{sT1}, {5-lc}
      s_lshr_b32 s{sT2}, s{sI}, {lc}
      s_add_u32 s{sRB2}, s{sT1}, s{sT2}
      s_and_b32 s{sT1}, s{sT0}, {(1<<lx)-1}
      s_and_b32 s{sT2}, s{sI}, {(1<<lc)-1}
      s_lshl_b32 s{sT2 if m in (2, 5) else sT1}, s{sT2 if m in (2, 5) else sT1}, {lx if m in (2, 5) else lc}
      s_add_u32 s{sCB2}, s{sT1}, s{sT2}
      s_xor_b32 s{sCB2}, s{sCB2}, {OPT["c2x"]}
      s_mov_b32 s{sPOS}, s{sCB}"""
    ident = list(range(16))
    LUTS = {0: (ident, [0, 1, 3, 2] + ident[4:]),
            1: ([0, 1, 3, 5, 2, 4, 6, 8, 7, 10, 12, 14, 9, 11, 13, 15], [0, 1, 2, 9, 4, 5, 6, 7, 8, 3, 10, 11, 12, 13, 14, 15]),
            2: ([0, 1, 3, 5, 2, 4, 6, 8, 7, 10, 12, 14, 9, 11, 13, 15], [0, 1, 2, 4, 3, 5, 11, 7, 8, 9, 10, 6, 12, 13, 14, 15]),
            3: ([0, 1, 3, 5, 7, 4, 10, 8, 12, 2, 14, 6, 9, 11, 13, 15], [0, 1, 2, 9, 4, 5, 6, 7, 8, 3, 10, 11, 12, 13, 14, 15])}[OPT["lut"]]
    for reg, tab in zip((sCB, sQB), LUTS):
        assert sorted(tab) == ident
        if tab == ident: continue
        w = sum(v << (4 * k) for k, v in enumerate(tab))
        MAP2 += f"""
          s_mov_b32 s{sT2}, {hex(w & 0xffffffff)}
          s_mov_b32 s{sT3}, {hex(w >> 32)}
          s_lshl_b32 s{sT1}, s{sPOS}, 2
          s_lshr_b64 s[{sT2}:{sT3}], s[{sT2}:{sT3}], s{sT1}
          s_and_b32 s{reg}, s{sT2}, 15"""
    cm('entry: workgroup -> (row block, column blocks); waves 0-3 take the matrix role G, waves 4-7 the loader / attention role A')
    a("s_cmp_ge_u32 s2, 256\n s_cbranch_scc1 L_exit")
    a("s_load_dwordx16 s[4:19], s[0:1], 0\n s_load_dwordx8 s[20:27], s[0:1], 64\n s_load_dwordx4 s[28:31], s[0:1], 96")
    if OPT["ts"] or OPT["th"] or OPT["padto"]:
        a(f"s_memtime s[{sTS}:{sTS+1}]\n s_memrealtime s[96:97]")
    a(f"""v_lshrrev_b32 v1, 6, v0
      v_and_b32 v0, 63, v0
      v_readfirstlane_b32 s3, v1
      s_lshr_b32 s{sI}, s2, 3
      s_and_b32 s{sT0}, s2, 7
      s_lshr_b32 s{sT1}, s{sT0}, 2
      s_lshl_b32 s{sT1}, s{sT1}, 3
      s_lshr_b32 s{sT2}, s{sI}, 2
      s_add_u32 s{sRB}, s{sT1}, s{sT2}
      s_and_b32 s{sT1}, s{sT0}, 3
      s_lshl_b32 s{sT1}, s{sT1}, 2
      s_and_b32 s{sT2}, s{sI}, 3
      s_add_u32 s{sCB}, s{sT1}, s{sT2}
      {MAP2}
      s_and_b32 s{sW}, s3, 3
      v_and_b32 v1, 15, v0
      v_lshrrev_b32 v2, 4, v0""")
    a("s_cmp_lt_u32 s3, 4\n s_cbranch_scc1 L_roleG\n s_setprio 1")

ACC1 = 112
acc1 = lambda ft, rt: ACC1 + (ft * 4 + rt) * 4
XF = [48, 80]; WRING = 24
vX = [16, 17]; vW1 = [18, 19]; vWq = [20, 21]; vLP, vJ, vQW = 15, 70, 64
def g_phase1():
    PD = OPT["pd"]
    sRG, sCG = sA, sB
    sXo, sPo, sPe, sPd = sC, sD, sE, sF
    a(f"s_and_b32 s{sRG}, s{sW}, 1\n s_lshr_b32 s{sCG}, s{sW}, 1")
    cm('G, phase 1: [Q | FFN hidden] tile = x[128 rows] * [Wq 64 cols | W1 224 cols], accumulators start from the bias')
    a(f"""s_cmp_lt_u32 s{sW}, 2
      s_cbranch_scc0 L_nocode
      s_getpc_b64 s[{rE}:{rE+1}]""")
    a.label("L_pc")
    a(f"""s_mov_b32 s{rE+2}, L_codeend-L_pc
      s_mov_b32 s{rE+3}, 0x20000
      s_lshl_b32 s{sT1}, s{sI}, 10
      s_lshl_b32 s{sT2}, s{sW}, 15
      s_add_u32 s{sT1}, s{sT1}, s{sT2}
      v_lshlrev_b32 v29, 7, v0
      s_mov_b64 exec, 0xff
      buffer_load_dword v{vJ}, v29, s[{rE}:{rE+3}], s{sT1} offen
      s_mov_b64 exec, -1""")
    a.label("L_nocode")
    a(f"""s_mul_i32 s{sT0}, s{sCB}, 448
      s_mul_i32 s{sT1}, s{sCG}, 224
      s_add_u32 s{sT0}, s{sT0}, s{sT1}
      v_lshlrev_b32 v14, 2, v0
      s_mov_b32 s{rA+2}, 7168
      s_mov_b32 s{rA+3}, 0x20000
      s_setprio 3
      s_waitcnt lgkmcnt(0)
      s_mov_b32 s{rA}, s{pB1}
      s_mov_b32 s{rA+1}, s{pB1+1}
      buffer_load_dword v33, v14, s[{rA}:{rA+3}], s{sT0} offen
      s_setprio 0""")
    kwait()
    for r in range(0, 32, 2): a(f"v_mov_b64 {vr(ACC1+r,2)}, 0")
    a(f"""v_lshrrev_b32 v14, 1, v1
      v_xor_b32 v14, v14, v2
      v_lshlrev_b32 v14, 4, v14
      v_lshl_add_u32 v14, v1, 7, v14
      s_lshl_b32 s{sT0}, s{sRG}, 13
      s_add_u32 s{sT0}, s{sT0}, {XR}
      v_add_u32 v{vX[0]}, s{sT0}, v14
      v_xor_b32 v{vX[1]}, 64, v{vX[0]}
      s_mov_b32 s{sXo}, 0
      v_lshrrev_b32 v14, 2, v1
      v_lshl_add_u32 v14, v2, 3, v14
      v_and_b32 v29, 3, v1
      v_lshlrev_b32 v29, 3, v29
      v_mul_u32_u24 v30, 448, v14
      v_add_u32 v30, v30, v29
      s_mul_i32 s{sT0}, s{sCG}, 224
      v_add_u32 v30, s{sT0}, v30
      v_and_b32 v31, 1, v2
      v_lshlrev_b32 v32, 5, v31
      s_lshl_b32 s{sT1}, s{sCG}, 1
      s_sub_u32 s{sT1}, 1, s{sT1}
      v_mul_lo_u32 v32, v32, s{sT1}
      v_add_u32 v{vW1[0]}, v30, v32
      v_sub_u32 v{vW1[1]}, v30, v32
      v_lshrrev_b32 v32, 3, v1
      v_lshl_add_u32 v31, v32, 1, v31
      s_lshl_b32 s{sT0}, s{sCG}, 1
      v_xor_b32 v31, s{sT0}, v31
      v_lshl_add_u32 v29, v31, 5, v29
      v_lshl_add_u32 v29, v14, 7, v29
      v_add_u32 v{vWq[0]}, {WQR}, v29
      v_xor_b32 v{vWq[1]}, 32, v{vWq[0]}""")
    if not OPT["stop"]: g2_vsetup()
    a(f"""v_and_b32 v28, 1, v2
      v_lshlrev_b32 v28, 10, v28
      v_lshrrev_b32 v29, 1, v2
      v_lshl_add_u32 v28, v29, 8, v28
      v_lshl_add_u32 v{vLP}, v1, 4, v28""")
    a(f"v_mov_b32 v30, {SYNC}\n ds_write_b128 v30, v[{ACC1}:{ACC1+3}]\n v_lshlrev_b32 v29, 3, v2")
    stamp("g_pre")
    a.wait0()
    stamp("g_bias")
    for k in range(14): a.lg(f"ds_bpermute_b32 v{48+k}, v29, v33 offset:{32*(k//2)+4*(k%2)}", ("b", k // 2))
    for ft in range(7):
        d = acc1(2 + ft, 0)
        a.wait(lg=("b", ft))
        a(f"v_lshlrev_b32 v{d}, 16, v{48+2*ft}\n v_and_b32 v{d+1}, 0xffff0000, v{48+2*ft}")
        a(f"v_lshlrev_b32 v{d+2}, 16, v{49+2*ft}\n v_and_b32 v{d+3}, 0xffff0000, v{49+2*ft}")
        for rt in range(1, 4): a(f"v_mov_b64 {vr(d+4*rt,2)}, {vr(d,2)}\n v_mov_b64 {vr(d+4*rt+2,2)}, {vr(d+2,2)}")
    def rdW(g, n):
        u, ft = divmod(g, 9); kk, e = divmod(n, 2); d = WRING + 8 * (g % 3) + 2 * n; sl = 2 * (u % 2) + kk
        if ft < 2: a.lg(f"ds_read_b64_tr_b16 {vr(d,2)}, v{vWq[ft]} offset:{sl*WQS + e*512}", ("W", g))
        else: a.lg(f"ds_read_b64_tr_b16 {vr(d,2)}, v{vW1[ft%2]} offset:{sl*W1S + e*1792 + (ft-2)*32}", ("W", g))
    def rdX(u, n):
        rt, kk = divmod(n, 2)
        a.lg(f"ds_read_b128 {vr(XF[u%2]+16*kk+4*rt,4)}, v{vX[kk]} offset:{rt*2048}", ("X", u))
    def block(u, plan):
        for ft in range(9):
            g = 9 * u + ft
            a.wait(lg=[("W", g), ("X", u)] if ft == 0 else ("W", g))
            for n in range(8):
                rt = 3 - n // 2 if ft % 2 else n // 2
                kk = (n + 1) // 2 % 2
                mf16(acc1(ft, rt), WRING + 8 * (g % 3) + 4 * kk, XF[u % 2] + 16 * kk + 4 * rt)
                if n < 4 and g + 2 < 144: rdW(g + 2, n)
                x = plan.get(8 * ft + n)
                if callable(x): x()
                elif x: a(x)
    a(f"s_mov_b32 s{sIT}, 0")
    stamp("g_rdy")
    a("s_barrier")
    stamp("g_b0")
    for n in range(4): rdW(0, n)
    for n in range(8): rdX(0, n)
    for n in range(4): rdW(1, n)
    a.raw(".p2align 3")
    cm('16 k-blocks of 64; operands come from LDS rings that the A waves fill, two barriers per block')
    a.label("L_g1loop")
    def body(it):
        for b in range(2):
            u = 2 * it + b
            plan = {12: f"s_add_u32 s{sXo}, s{sXo}, 1\n s_cmp_eq_u32 s{sXo}, 3", 13: f"s_cselect_b32 s{sXo}, 0, s{sXo}\n s_cselect_b32 s{sT0}, {3*XS}, 0",
                    14: f"s_sub_u32 s{sT0}, {XS}, s{sT0}", 20: f"v_add_u32 v{vX[0]}, s{sT0}, v{vX[0]}", 21: f"v_add_u32 v{vX[1]}, s{sT0}, v{vX[1]}",
                    OPT["mpos"]: "s_barrier", OPT["epos"]: "s_barrier"}
            free = [p for p in range(OPT["mpos"] + 1, 64) if 4 <= p % 8 < 7]
            for n in range(8): plan[free[n]] = lambda n=n: rdX(u + 1, n)
            assert 64 <= OPT["epos"] <= 68 and 22 <= OPT["mpos"] <= 36
            if b == 0: plan[69] = f"s_add_u32 s{sIT}, s{sIT}, 1"; plan[70] = f"s_cmp_eq_u32 s{sIT}, 8"
            block(u, plan)
            if b == 0:
                a("s_cbranch_scc1 L_g1last"); snap[:] = [(k_, v_ + (14 - u) * (9 if k_ == "W" else 1)) for k_, v_ in a.lgq]
        a("s_branch L_g1loop")
    snap = []
    a.loop(body, "g1")
    cm('last k-block; Q goes to the attention waves through LDS')
    a.label("L_g1last")
    a.lgq[:] = snap
    cq = lambda s_, rt: f"v_cvt_pk_bf16_f32 v{48+4*rt+2*s_}, v{acc1(s_,rt)}, v{acc1(s_,rt)+1}\n v_cvt_pk_bf16_f32 v{49+4*rt+2*s_}, v{acc1(s_,rt)+2}, v{acc1(s_,rt)+3}"
    wq = lambda rt: lambda: a.lg(f"ds_write_b128 v{vQW}, {vr(48+4*rt,4)} offset:{(rt//2)*4096 + (rt%2)*1024}")
    plan = {4: f"s_lshl_b32 s{sT2}, s{sRG}, 13\n s_lshl_b32 s{sT3}, s{sCG}, 11", 5: f"s_add_u32 s{sT2}, s{sT2}, s{sT3}\n s_add_u32 s{sT2}, s{sT2}, {QX}",
            6: f"v_lshl_add_u32 v{vQW}, v0, 4, s{sT2}", 20: cq(0, 0), 21: cq(0, 1), 22: cq(0, 2), 28: cq(0, 3), 29: cq(1, 3), 30: cq(1, 2),
            36: cq(1, 1), 37: cq(1, 0), 38: "s_barrier",
            44: wq(0), 46: wq(1), 52: wq(2), 54: wq(3),
            61: lambda: (a.wait0(vm=False), a(f"s_setprio {OPT['gprio']}\n s_barrier"))}
    block(15, plan)
    stamp("g_end1")
def g_hstore(lo=0, hi=7):
    sRG, sCG = sA, sB
    sT0, sT1, sT2, sT3 = sT4, sT5, sF, sG
    if lo == 0: a(f"""s_mul_i32 s{sT0}, s{sRB}, {RBSZ}
      s_mul_i32 s{sT1}, s{sCB}, {7*8192}
      s_add_u32 s{sT0}, s{sT0}, s{sT1}
      s_lshl_b32 s{sT1}, s{sRG}, 12
      s_add_u32 s{sT0}, s{sT0}, s{sT1}
      s_mul_i32 s{sT1}, s{sCG}, {3*8192+512}
      s_add_u32 s{sT0}, s{sT0}, s{sT1}
      s_mul_i32 s{sT2}, s{sCG}, {8192-1024}
      s_add_u32 s{sT2}, s{sT2}, 512
      s_sub_u32 s{sT3}, 8192, s{sT2}""")
    cm('hidden = relu(h)^2 as bf16, write-through to the workspace in MFMA operand order')
    k = 0
    for ft in range(lo, hi):
        for p in range(2):
            T = 48 + 4 * (k % 4); k += 1
            if OPT["nohst"] == 2: continue
            for h in range(2):
                d = acc1(2 + ft, 2 * p + h)
                for r in range(4): a(f"v_max_f32 v{d+r}, 0, v{d+r}")
                if OPT["nopk"] > 1: a("\n".join(f"v_mul_f32 v{d+r}, v{d+r}, v{d+r}" for r in range(4)))
                else: a(f"v_pk_mul_f32 {vr(d,2)}, {vr(d,2)}, {vr(d,2)}\n v_pk_mul_f32 {vr(d+2,2)}, {vr(d+2,2)}, {vr(d+2,2)}")
                a(f"v_cvt_pk_bf16_f32 v{T+2*h}, v{d}, v{d+1}\n v_cvt_pk_bf16_f32 v{T+2*h+1}, v{d+2}, v{d+3}")
            a(f"s_nop 1\n v_permlane16_swap_b32 v{T}, v{T+2}\n v_permlane16_swap_b32 v{T+1}, v{T+3}")
            if not OPT["nohst"]: a.vm(f"buffer_store_dwordx4 {vr(T,4)}, v{vLP}, s[{rWS}:{rWS+3}], s{sT0} offen offset:{p*2048} {OPT['hsf'].replace('_', ' ')}", "hst")
        a(f"s_add_u32 s{sT0}, s{sT0}, s{sT2 if ft % 2 == 0 else sT3}")

vO = 3
vKX, vKG, vKW, vKT0, vKVD, vKR = 140, 12, 13, 24, 15, 142
KVREG = 208; vG = 253
KXF, KGF, KWF, KAC = 32, 64, 96, 128
def a_phase1():
    sISV, sR0, sSTG, sM, sSo, sSx, sGrp = sA, sB, sC, sD, sE, sF, sG
    NT = " nt" if OPT["pfnt"] else ""
    LEAD = OPT["lead"]
    vXo, vQo, vP = 144, 148, 150
    sSq, sMx, sMq, sPo, sPm = 14, 15, 18, 19, 22
    section("st")
    cm('A, phase 1 start-up: every wave brings 16 rows of W1 / Wq and 32 rows of x per k-block; wave 7 also warms caches and handles the flags')
    a(f"""v_lshrrev_b32 v16, 3, v0
      v_lshlrev_b32 v16, 11, v16
      v_and_b32 v17, 7, v0
      v_xor_b32 v18, v17, v2
      v_lshl_add_u32 v18, v18, 4, v16
      v_and_b32 v20, 1, v2
      v_lshlrev_b32 v20, 2, v20
      v_xor_b32 v20, v20, v17
      v_lshl_add_u32 v{vQo}, v20, 4, v16
      v_xor_b32 v19, 32, v{vQo}
      v_add_u32 v{vQo+1}, {16384-1024}, v19
      s_lshl2_add_u32 s{sSx}, s{sRB}, s{sW}
      s_lshl_b32 s{sSx}, s{sSx}, 16""")
    for i in range(4): a(f"v_xor_b32 v19, {64*(i%2)}, v18\n v_add_u32 v{vXo+i}, {i*16384 - i*1024}, v19")
    a(f"s_mul_i32 s{sT0}, s{sW}, {16*7168}\n s_mul_i32 s{sT1}, s{sCB}, 448\n s_add_u32 s{sSo}, s{sT0}, s{sT1}")
    a(f"s_mul_i32 s{sM}, s{sW}, 7168\n s_movk_i32 s{sT2}, {7168-448}")
    def w1off(i):
        a(f"""v_add_u32 v16, {64*i}, v0
          v_mul_u32_u24 v17, 2341, v16
          v_lshrrev_b32 v17, 16, v17
          v_bfe_u32 v18, v17, 3, 1
          v_lshlrev_b32 v18, 1, v18
          v_xor_b32 v16, v16, v18
          v_lshlrev_b32 v16, 4, v16
          v_mad_u32_u24 v{vO+i}, v17, s{sT2}, v16""")
        if i % 4: a(f"v_subrev_u32 v{vO+i}, {1024*(i%4)}, v{vO+i}")
    for i in range(2): w1off(i)
    kwait(); srd(rA, pX, 2048 * 2048); srd(rPF, pWQ, 1024 * 2048); srd(rB, pW1, 1024 * 7168)
    a(f"""s_lshl_b32 s{sMx}, s{sW}, 12
      s_lshl_b32 s{sMq}, s{sW}, 11
      s_lshl_b32 s{sSq}, s{sW}, 15
      s_lshl_b32 s{sT0}, s{sQB}, 7
      s_add_u32 s{sSq}, s{sSq}, s{sT0}""")
    trickle = []
    def trk(all_=False):
        while trickle:
            for t_ in trickle.pop(0): a.label(t_[:-1]) if t_.endswith(":") else a.lg(t_)
            if not all_: break
    def ldW(u, m=None):
        for i in range(7):
            if i == 4 and m: m()
            if u == 0 and i >= 2: w1off(i)
            if i % 4 == 0: a(f"s_add_u32 m0, s{sM}, {(u%2)*2*W1S + i*1024}\n s_nop 0")
            a.vm(f"buffer_load_dwordx4 v{vO+i}, s[{rB}:{rB+3}], s{sSo} offen offset:{1024*(i%4)} lds", ("W", u)); trk()
        a(f"s_add_u32 s{sSo}, s{sSo}, {64*7168}")
    def ldQ(u):
        a(f"s_add_u32 m0, s{sMq}, {WQR + (u%2)*2*WQS}\n s_nop 0")
        for i in range(2):
            a.vm(f"buffer_load_dwordx4 v{vQo+i}, s[{rPF}:{rPF+3}], s{sSq} offen offset:{1024*i} lds", ("Q", u)); trk()
        a(f"s_add_u32 s{sSq}, s{sSq}, 131072")
    def ldX(u):
        a(f"s_add_u32 m0, s{sMx}, {XR + (u%3)*XS}\n s_nop 0")
        for i in range(4):
            a.vm(f"buffer_load_dwordx4 v{vXo+i}, s[{rA}:{rA+3}], s{sSx} offen offset:{1024*i} lds", ("X", u)); trk()
        a(f"s_add_u32 s{sSx}, s{sSx}, 128")
    plainwait = a.wait
    def pwait(vm=(), lg=()):
        tags = vm if isinstance(vm, list) else [vm]
        idx = max([k for k, x in enumerate(a.vmq) if x in tags], default=-1)
        isP = lambda x: isinstance(x, tuple) and x[0] == "P"
        rest = a.vmq[idx + 1:]
        if idx < 0 or not any(map(isP, rest)): return plainwait(vm, lg)
        assert lg == ()
        n0 = sum(not isP(x) for x in rest); l = a.newlabel("L_pw")
        for g_ in sorted({x[1] for x in rest if isP(x)}) if OPT["pexact"] else []:
            l2 = a.newlabel("L_pw")
            a(f"s_cmp_lg_u32 s{sGrp}, {g_}\n s_cbranch_scc1 {l2}\n s_waitcnt vmcnt({n0 + rest.count(('P', g_))})\n s_branch {l}")
            a.label(l2)
        a(f"s_waitcnt vmcnt({n0})"); a.label(l)
        a.vmq[:] = rest
    a.wait = pwait
    a.vmq.clear(); a.lgq.clear()
    ldX(0); ldQ(0); ldW(0)
    a(f"s_cmp_eq_u32 s{sW}, 3\n s_cbranch_scc1 L_st2")
    q0 = list(a.vmq)
    for path in (0, 2):
        section(f"st{path}")
        a.label(f"L_st{path}")
        a.vmq[:] = q0; a.lgq.clear()
        pfs = lambda t: None
        if path == 0: pass
        else:
            assert OPT["lut"] == 0
            a(f"""s_and_b32 s{sGrp}, s{sI}, 7
              s_lshl_b32 s{sT0}, s{sGrp}, 5
              s_and_b32 s{sT1}, s2, 4
              s_lshl2_add_u32 s{sT0}, s{sT1}, s{sT0}
              s_lshr_b32 s{sT1}, s{sI}, 3
              s_lshl2_add_u32 s{sT0}, s{sT1}, s{sT0}
              s_and_b32 s{sT1}, s2, 3
              s_mul_i32 s{sPo}, s{sT0}, 7168
              s_mul_i32 s{sT2}, s{sT1}, 1792
              s_add_u32 s{sPo}, s{sPo}, s{sT2}
              s_lshl2_add_u32 s{sPm}, s{sT0}, s{sT1}
              s_lshl_b32 s{sPm}, s{sPm}, 9
              s_and_b32 s{sT1}, s2, 7
              s_lshl_b32 s{sT1}, s{sT1}, 5
              s_add_u32 s{sT1}, s{sT1}, s{sI}
              s_lshl_b32 s{sIT}, s{sT1}, 14
              v_lshrrev_b32 v16, 3, v0
              v_lshlrev_b32 v16, 11, v16
              v_and_b32 v17, 7, v0
              v_lshl_add_u32 v{vP+0}, v17, 7, v16
              v_lshlrev_b32 v{vP+1}, 7, v0
              v_mul_u32_u24 v16, 7168, v2
              v_lshl_add_u32 v{vP+2}, v1, 7, v16
              v_lshrrev_b32 v16, 2, v0
              v_and_b32 v17, 3, v0
              v_lshlrev_b32 v17, 7, v17
              v_lshl_add_u32 v{vP+3}, v16, 11, v17""")
            def pfW(so, sm, vm):
                a("s_mov_b32 exec_lo, 0x3fff3fff\n s_mov_b32 exec_hi, 0x3fff3fff")
                vm(f"buffer_load_dword v250, v{vP+2}, s[{rB}:{rB+3}], s{so} offen{NT}")
                a("s_mov_b64 exec, 0xffff")
                vm(f"buffer_load_dword v250, v{vP+3}, s[{rPF}:{rPF+3}], s{sm} offen{NT}")
                a("s_mov_b64 exec, -1")
            def p0():
                if OPT["nopf"]: return
                a(f"s_mov_b32 exec_lo, 0x0f0f0f0f\n s_mov_b32 exec_hi, 0x0f0f0f0f")
                a.vm(f"buffer_load_dword v250, v{vP+0}, s[{rA}:{rA+3}], s{sIT} offen{NT}")
                a(f"""s_cmp_lt_u32 s{sGrp}, {LEAD}
                  s_cselect_b32 s{sT0}, s{sPo}, {OOB}
                  s_cselect_b32 s{sT1}, s{sPm}, {OOB}""")
                pfW(sT0, sT1, a.vm)
                a(f"""s_cselect_b32 s{sT0}, {256*7168}, 0
                  s_cselect_b32 s{sT1}, {256*2048}, 0
                  s_add_u32 s{sPo}, s{sPo}, s{sT0}
                  s_add_u32 s{sPm}, s{sPm}, s{sT1}
                  s_and_b32 s{sIT}, s{sIT}, {31 << 17}
                  v_lshrrev_b32 v16, 1, v0
                  v_and_b32 v17, 1, v0
                  v_lshlrev_b32 v17, 7, v17
                  v_lshl_add_u32 v{vP+0}, v16, 11, v17""")
            def pfs(t):
                if OPT["nopf"]: return
                if t + LEAD < 32:
                    l = a.newlabel("L_np")
                    a(f"s_cmp_lg_u32 s{sGrp}, {(t+LEAD)%8}\n s_cbranch_scc1 {l}")
                    pv_ = lambda x: a.vm(x, ("P", (t + LEAD) % 8))
                    pfW(sPo, sPm, pv_)
                    a(f"s_add_u32 s{sPo}, s{sPo}, {256*7168}\n s_add_u32 s{sPm}, s{sPm}, {256*2048}")
                    if t < 6:
                        for k_ in range(2):
                            pv_(f"buffer_load_dword v250, v{vP+0}, s[{rA}:{rA+3}], s{sIT} offen offset:{512+256*t}{NT}"); a(f"s_add_u32 s{sIT}, s{sIT}, 65536")
                    if OPT["pf2"] and t // 8 == OPT["pf2b"]:
                        srd(rD, pW2, 3584 * 2048)
                        if OPT["loc2"]:
                            a(f"""s_and_b32 s{sT0}, s2, 4
                              s_lshl3_add_u32 s{sT1}, s{sT0}, s{sI}
                              s_lshr_b32 s{sT0}, s{sT1}, 4
                              s_mul_i32 s{sT0}, s{sT0}, {896*2048}
                              s_and_b32 s{sT1}, s{sT1}, 15
                              s_lshl_b32 s{sT1}, s{sT1}, 15
                              s_add_u32 s{sT0}, s{sT0}, s{sT1}
                              s_and_b32 s{sT1}, s{sCB2}, 3
                              s_lshl_b32 s{sT1}, s{sT1}, 7
                              s_add_u32 s{sT0}, s{sT0}, s{sT1}
                              v_lshlrev_b32 v{vP+1}, 9, v0""")
                        else: a(f"s_lshr_b32 s{sT0}, s2, 6\n s_mul_i32 s{sT0}, s{sT0}, {896*2048}\n s_and_b32 s{sT1}, s2, 63\n s_lshl_b32 s{sT1}, s{sT1}, 13\n s_add_u32 s{sT0}, s{sT0}, s{sT1}")
                        pv_(f"buffer_load_dword v250, v{vP+1}, s[{rD}:{rD+3}], s{sT0} offen")
                    a.label(l)
        def kvsetup():
            if OPT["evk"]: a(f"s_bfe_u32 s{sISV}, s{sPOS}, 0x10002\n s_lshr_b32 s{sR0}, s{sPOS}, 3\n s_lshl_b32 s{sR0}, s{sR0}, 2\n s_and_b32 s{sT0}, s{sPOS}, 3\n s_add_u32 s{sR0}, s{sR0}, s{sT0}")
            else: a(f"s_and_b32 s{sISV}, s{sCB}, 1\n s_lshr_b32 s{sR0}, s{sCB}, 1")
            a(f"""s_lshl_b32 s{sR0}, s{sR0}, 4
              s_lshl_b32 s{sT0}, s{sRB}, 7
              s_add_u32 s{sR0}, s{sR0}, s{sT0}
              s_cmp_eq_u32 s{sISV}, 0
              s_cselect_b32 s{rC}, s{pWK}, s{pWV}
              s_cselect_b32 s{rC+1}, s{pWK+1}, s{pWV+1}
              s_mov_b32 s{rC+2}, 65536
              s_mov_b32 s{rC+3}, 0x20000
              v_lshlrev_b32 v{vKVD}, 4, v0""")
            if path == 2:
                srd(rD, pGATE, 2048); srd(rDBG, pDBG, 256)
                a(f"s_lshl_b32 s{sT0}, s{sR0}, 5\n s_mov_b64 exec, 15")
                a.vm(f"buffer_load_dword v250, v{vP+1}, s[{rC}:{rC+3}], s{sT0} offen"); a("s_mov_b64 exec, -1")
                a(f"s_mov_b32 m0, {GT}\n s_nop 0")
                for i in range(2): a.vm(f"buffer_load_dwordx4 v{vKVD}, s[{rD}:{rD+3}], 0 offen offset:{1024*i} lds", "gt")
        if path == 2 and OPT["p0late"] == 1: p0(); kvsetup()
        ldX(1); ldQ(1)
        if path == 2 and OPT["p0late"] == 2: p0(); kvsetup()
        if OPT["w1pre"]: ldW(1)
        stamp("a_iss")
        a(f"s_branch L_a1m{path}")
        section("main")
        cm('A, phase 1: LDS-DMA of the GEMM operands; K (scaled by log2(e)/sqrt(32)), V and the gate of 16 rows on the side')
        a.label(f"L_a1m{path}")
        if path != 2: kvsetup()
        a(f"""s_lshl_b32 s{sSTG}, s{sW}, 13
          s_add_u32 s{sSTG}, s{sSTG}, {KVST}
          s_lshl_b32 s{sT0}, s{sW}, 7
          v_lshl_add_u32 v17, v2, 4, s{sT0}
          v_add_u32 v{vKG}, {GT}, v17
          v_lshrrev_b32 v16, 3, v0
          v_add_u32 v16, s{sR0}, v16
          v_and_b32 v17, 7, v0
          v_xor_b32 v17, v17, v2
          v_lshl_add_u32 v17, v17, 4, s{sT0}
          v_lshl_add_u32 v{vKX}, v16, 11, v17
          v_xor_b32 v16, 64, v{vKX}
          v_add_u32 v{vKX+1}, {16384-1024}, v16
          v_lshrrev_b32 v16, 1, v1
          v_xor_b32 v16, v16, v2
          v_lshlrev_b32 v16, 4, v16
          v_lshl_add_u32 v16, v1, 7, v16
          v_add_u32 v{vKR}, s{sSTG}, v16
          v_xor_b32 v{vKR+1}, 64, v{vKR}
          v_lshrrev_b32 v16, 4, v0
          v_and_b32 v16, 2, v16
          v_xor_b32 v16, v16, v0
          s_lshl_b32 s{sT0}, s{sW}, 12
          v_lshl_add_u32 v{vKW}, v16, 4, s{sT0}
          v_lshrrev_b32 v16, 2, v1
          v_lshl_add_u32 v16, v2, 3, v16
          v_and_b32 v17, 3, v1
          v_lshlrev_b32 v17, 3, v17
          v_lshl_add_u32 v16, v16, 6, v17
          v_and_b32 v17, 1, v2
          v_lshl_add_u32 v16, v17, 5, v16
          v_add_u32 v{vKT0}, s{sSTG}, v16
          v_xor_b32 v{vKT0+1}, 32, v{vKT0}""")
        for r in range(12): a(f"v_mov_b32 v{KAC+r}, 0")
        def konly(l_):
            lb = a.newlabel("L_ko")
            return [f"s_cmp_lg_u32 s{sISV}, 0\n s_cbranch_scc1 {lb}"] + l_ + [lb + ":"]
        def kvX(rho):
            if 'X' in OPT['kvskip']: return
            a(f"s_add_u32 m0, s{sSTG}, 6144\n s_movk_i32 s{sT0}, {rho*512}")
            for i in range(2):
                a.vm(f"buffer_load_dwordx4 v{vKX+i}, s[{rA}:{rA+3}], s{sT0} offen offset:{1024*i} lds", ("kw", rho))
        def kvW(rho, half):
            if 'W' in OPT['kvskip']: return
            if half: a.wait0(vm=False)
            a(f"s_add_u32 m0, s{sSTG}, {4096 if half else (rho%2)*2048}\n s_mov_b32 s{sT0}, {rho*16384 + half*2048}")
            for i in range(2):
                a.vm(f"buffer_load_dwordx4 v{vKW}, s[{rC}:{rC+3}], s{sT0} offen offset:{1024*i} lds", ("kw", rho))
        def kvR(rho):
            if 'R' in OPT['kvskip']: return
            a.wait(vm=("kw", rho))
            for i in range(2):
                for nt in range(2):
                    trickle.append([f"ds_read_b64_tr_b16 {vr(KWF+8*i+4*nt+2*e,2)}, v{vKT0+nt} offset:{(4096 if i else (rho%2)*2048)+e*256}" for e in range(2)])
            trickle.append([f"ds_read_b128 {vr(KXF+4*i,4)}, v{vKR+i} offset:6144" for i in range(2)])
            trickle.append(konly([f"ds_read_b128 {vr(KGF+4*i,4)}, v{vKG} offset:{512*rho+64*i}" for i in range(2)]))
        def kvM(rho):
            if 'M' in OPT['kvskip']: return
            a.wait0(vm=False)
            lv, ld = a.newlabel("L_kv"), a.newlabel("L_kd")
            a(f"s_cmp_lg_u32 s{sISV}, 0\n s_cbranch_scc1 {lv}")
            for nt in range(2):
                for i in range(2): mf16(KAC + 4 * nt, KWF + 8 * i + 4 * nt, KXF + 4 * i)
            for i in range(2): mf16(KAC + 8, KGF + 4 * i, KXF + 4 * i)
            a(f"s_branch {ld}")
            a.label(lv)
            for nt in range(2):
                for i in range(2): mf16(KAC + 4 * nt, KXF + 4 * i, KWF + 8 * i + 4 * nt)
            a.label(ld)
        def kvP():
            if 'P' in OPT['kvskip']: return
            a(f"v_add_u32 v16, s{sSTG}, v{vKVD}\n s_nop 5")
            if OPT["pw"] == 128:
                for nt in range(2): trickle.append([f"ds_write_b128 v16, {vr(KAC+4*nt,4)} offset:{nt*1024}"])
            elif OPT["pw"] == 64:
                for k_ in range(4): trickle.append([f"ds_write_b64 v16, {vr(KAC+2*k_,2)} offset:{(k_//2)*1024+(k_%2)*8}"])
            elif OPT["pw"] == 32:
                for k_ in range(0, 8, 2): trickle.append([f"ds_write_b32 v16, v{KAC+k2} offset:{(k2//4)*1024+(k2%4)*4}" for k2 in (k_, k_ + 1)])
            trickle.append(konly([f"ds_write_b32 v16, v{KAC+8} offset:2048"]))
            if OPT["pb"]: trk(True)
            if OPT["pb"] > 1: a.wait0(vm=False)
        def kvF():
            if 'F' in OPT['kvskip']: return
            a(f"v_add_u32 v26, {KVST}, v{vKVD}")
            for w in range(3):
                a(f"ds_read_b128 {vr(32+8*w,4)}, v26 offset:{w*8192}\n ds_read_b128 {vr(36+8*w,4)}, v26 offset:{w*8192+1024}")
            a(f"""s_lshr_b32 s{sT3}, s{sR0}, 5
              s_lshl_b32 s{sT3}, s{sT3}, 12
              s_add_u32 s{sT3}, s{sT3}, {KV_OFF}
              s_bfe_u32 s{sT4}, s{sR0}, 0x10004
              s_cmp_eq_u32 s{sISV}, 0
              s_cselect_b32 s{sT0}, {f2u(32 ** -0.5 * math.log2(math.e))}, 1.0
              s_cselect_b32 s{sT2}, 7, 9
              s_cselect_b32 s{sT5}, 0, 2048
              s_lshl_b32 s{sT4}, s{sT4}, s{sT2}
              s_add_u32 s{sT3}, s{sT3}, s{sT4}
              s_add_u32 s{sT3}, s{sT3}, s{sT5}
              s_waitcnt lgkmcnt(0)""")
            for r in range(8):
                a(f"v_add_f32 v{32+r}, v{32+r}, v{40+r}\n v_add_f32 v{48+r}, v{48+r}, v{KAC+r}\n v_add_f32 v{32+r}, v{32+r}, v{48+r}\n v_mul_f32 v{32+r}, s{sT0}, v{32+r}")
            for r in range(4): a(f"v_cvt_pk_bf16_f32 v{40+r}, v{32+2*r}, v{33+2*r}")
            a(f"s_cmp_eq_u32 s{sISV}, 0\n s_cbranch_scc1 L_nosw\n v_permlane16_swap_b32 v40, v42\n v_permlane16_swap_b32 v41, v43")
            a.label("L_nosw")
            a.vm(f"buffer_store_dwordx4 v[40:43], v27, s[{rWS}:{rWS+3}], s{sT3} offen sc1", "pub")
        def kvF0():
            a(f"""v_bfe_u32 v16, v1, 2, 1
              v_lshlrev_b32 v16, 10, v16
              v_lshl_add_u32 v16, v2, 8, v16
              v_lshrrev_b32 v17, 3, v1
              v_lshl_add_u32 v16, v17, 6, v16
              v_and_b32 v17, 3, v1
              v_lshl_add_u32 v27, v17, 4, v16
              s_cmp_eq_u32 s{sISV}, 0
              s_cbranch_scc1 L_kadr
              v_and_b32 v16, 1, v2
              v_lshlrev_b32 v16, 10, v16
              v_lshrrev_b32 v17, 1, v2
              v_lshl_add_u32 v16, v17, 8, v16
              v_lshl_add_u32 v27, v1, 4, v16""")
            a.label("L_kadr")
        def kvF2():
            if 'F' in OPT['kvskip']: return
            a(f"s_mov_b32 s{sT0}, {OOB}\n v_lshlrev_b32 v20, 2, v0\n s_cmp_lg_u32 s{sISV}, 0\n s_cbranch_scc1 L_nogate")
            for w in range(3): a(f"ds_read_b32 v{64+w}, v26 offset:{w*8192+2048}")
            a(f"""s_lshl_b32 s{sT0}, s{sR0}, 2
              s_add_u32 s{sT0}, s{sT0}, {G_OFF}
              s_waitcnt lgkmcnt(0)
              v_add_f32 v64, v64, v65
              v_add_f32 v66, v66, v{KAC+8}
              v_add_f32 v64, v64, v66
              v_mul_f32 v64, {f2u(-math.log2(math.e))}, v64
              v_exp_f32 v64, v64
              s_nop 0
              v_add_f32 v64, 1.0, v64
              v_rcp_f32 v64, v64""")
            a.label("L_nogate")
            a("s_mov_b64 exec, 0xffff")
            a.vm(f"buffer_store_dword v64, v20, s[{rWS}:{rWS+3}], s{sT0} offen sc1", "pub"); a("s_mov_b64 exec, -1")
        def kvA():
            a(f"""s_lshl_b32 s{sT0}, s{sRB}, 4
              s_add_u32 s{sT0}, s{sT0}, s{sCB}
              s_lshl_b32 s{sT0}, s{sT0}, 2
              s_add_u32 s{sT0}, s{sT0}, {KF_OFF}
              v_mov_b32 v16, 1
              v_mov_b32 v17, 0""")
            a.wait(vm="pub")
            a("s_mov_b64 exec, 1"); a.vm(f"buffer_store_dword v16, v17, s[{rWS}:{rWS+3}], s{sT0} offen sc1"); a("s_mov_b64 exec, -1")
        def clr():
            a(f"""s_and_b32 s{sT0}, s2, 0xc1
              s_cbranch_scc1 L_noclr
              s_lshl_b32 s{sT0}, s2, 11
              s_add_u32 s{sT0}, s{sT0}, {FL_OFF}
              s_lshl_b32 s{sT1}, s2, 4
              s_add_u32 s{sT1}, s{sT1}, {KF_OFF}
              v_lshrrev_b32 v16, 1, v0
              v_and_b32 v17, 1, v0
              v_lshlrev_b32 v17, 4, v17
              v_lshl_add_u32 v16, v16, 7, v17
              buffer_store_dwordx4 v[{KAC}:{KAC+3}], v16, s[{rWS}:{rWS+3}], s{sT0} offen sc1
              s_mov_b64 exec, 3
              buffer_store_dwordx4 v[{KAC}:{KAC+3}], v16, s[{rWS}:{rWS+3}], s{sT1} offen sc1
              s_mov_b64 exec, -1""")
            a.label("L_noclr")
        def clrdone():
            a(f"""s_and_b32 s{sT0}, s2, 0xc1
              s_cbranch_scc1 L_noclr2
              s_waitcnt vmcnt(0)
              s_lshl_b32 s{sT0}, s2, 1
              v_mov_b32 v16, 1
              v_mov_b32 v17, 0
              s_mov_b64 exec, 1
              buffer_store_dword v16, v17, s[{rDBG}:{rDBG+3}], s{sT0} offen sc1
              s_mov_b64 exec, -1""")
            a.label("L_noclr2")
        def kvPoll0a():
            a(f"v_and_b32 v19, 31, v0\n v_lshlrev_b32 v19, 2, v19"); a.vm(f"buffer_load_dword v18, v19, s[{rDBG}:{rDBG+3}], 0 offen sc1", "p0")
        def kvPoll0():
            a(f"s_mov_b32 s{sT1}, {SPIN_MAX}")
            a.wait(vm="p0")
            a.label("L_poll0")
            a(f"""v_cmp_ne_u32 vcc, 1, v18
              s_sub_u32 s{sT1}, s{sT1}, 1
              s_cbranch_vccz L_poll0x
              s_sleep 16
              buffer_load_dword v18, v19, s[{rDBG}:{rDBG+3}], 0 offen sc1
              s_waitcnt vmcnt(0)
              s_cmp_lg_u32 s{sT1}, 0
              s_cbranch_scc1 L_poll0""")
            a.label("L_poll0x")
        def kvPoll1a():
            a(f"s_mov_b32 s{sT3}, {KF_OFF}"); a.vm(f"buffer_load_dwordx4 v[20:23], v{vKVD}, s[{rWS}:{rWS+3}], s{sT3} offen sc1", "p1")
        def kvPoll1():
            a(f"s_mov_b32 s{sT1}, {SPIN_MAX}")
            a.wait(vm="p1")
            a.label("L_poll1")
            a(f"""v_and_b32 v20, v20, v21
              v_and_b32 v22, v22, v23
              v_and_b32 v20, v20, v22
              v_cmp_ne_u32 vcc, 1, v20
              s_sub_u32 s{sT1}, s{sT1}, 1
              s_cbranch_vccz L_poll1x
              s_sleep 16
              buffer_load_dwordx4 v[20:23], v{vKVD}, s[{rWS}:{rWS+3}], s{sT3} offen sc1
              s_waitcnt vmcnt(0)
              s_cmp_lg_u32 s{sT1}, 0
              s_cbranch_scc1 L_poll1""")
            a.label("L_poll1x")
        def kvD(c):
            if c == 0:
                a(f"s_add_u32 s{rE}, s{pWS}, {KV_OFF}\n s_addc_u32 s{rE+1}, s{pWS+1}, 0\n s_mov_b32 s{rE+2}, 0x40000\n s_mov_b32 s{rE+3}, 0x20000")
                a(f"s_lshl_b32 s{sIT}, s{sW}, 12")
            a(f"s_add_u32 m0, s{sIT}, {KVR + ((c+2)%4)*16384}\n s_add_u32 s{sT0}, s{sIT}, {c*16384}")
            for i in range(4):
                a.vm(f"buffer_load_dwordx4 v{vKVD}, s[{rE}:{rE+3}], s{sT0} offen offset:{1024*i} sc1 lds", ("kv", c))
        def kvDr(c):
            a(f"s_add_u32 s{sT0}, s{sIT}, {c*16384}")
            for i in range(4):
                a.vm(f"buffer_load_dwordx4 {vr(KVREG+16*(c-4)+4*i,4)}, v{vKVD}, s[{rE}:{rE+3}], s{sT0} offen offset:{1024*i} sc1", ("kv", c))
        def ldG():
            a(f"""s_lshl_b32 s{sT1}, s{sRB}, 9
              s_lshl_b32 s{sT2}, s{sW}, 7
              s_add_u32 s{sT1}, s{sT1}, s{sT2}
              s_add_u32 s{sT1}, s{sT1}, {G_OFF}
              v_lshlrev_b32 v22, 2, v1""")
            for h in range(2): a.vm(f"buffer_load_dword v{vG+h}, v22, s[{rWS}:{rWS+3}], s{sT1} offen offset:{64*h} sc1")
        def low(f):
            return (lambda: (a("s_setprio 0"), f(), a("s_setprio 1"))) if OPT["lowv"] else f
        post = {k: [] for k in range(33)}; pre = {k: [] for k in range(33)}; mid = {k: [] for k in range(33)}
        if not OPT["nokv"]:
            for rho in range(4):
                pre[3*rho+5].append(lambda rho=rho: kvR(rho)); mid[3*rho+6].append(lambda rho=rho: kvM(rho))
                post[3*rho+3].append(lambda rho=rho: kvX(rho))
                post[3*rho+1].append(lambda rho=rho: kvW(rho, 0)); post[3*rho+2].append(lambda rho=rho: kvW(rho, 1))
            if path < 2: pre[16].append(kvP); post[16].append(lambda: a.wait0(vm=False))
            if path == 2:
                post[2] += [clr]; pre[7].append(clrdone); post[13].append(low(kvF0)); post[3].append(lambda: a.wait(vm="gt"))
                ({0: post, 1: pre, 2: mid}[OPT['fpre'] % 3])[17] += [low(kvF) if OPT['fpre'] < 3 else kvF]; ({0: post, 1: mid, 2: mid}[OPT['fpre'] % 3])[18] += [low(kvF2) if OPT['fpre'] < 3 else kvF2]; pre[18] += [kvPoll0a]; (mid if OPT['fpre'] else post)[20] += [kvPoll0, kvA]; pre[26].append(kvPoll1a); post[27].append(kvPoll1)
            for k_ in range(4): mid[22 + k_].append(low(lambda k_=k_: attention_setup(k_)))
            post[28].append(ldG)
            for c, t_ in enumerate((28, 29, 29, 30)): post[t_].append(lambda c=c: kvD(c))
            for c in range(OPT["kvreg"]): post[30].append(lambda c=c: kvDr(4 + c))
        stamp("a_set")
        for s_ in range(31):
            u = s_ // 2
            a.wait(vm=[("W", u), ("Q", 0), ("X", 0)] if s_ % 2 == 0 else [("Q", u + 1), ("X", u + 1)])
            if s_ == 0: stamp("a_w0")
            if s_ == 29:
                if path < 2: a("s_branch L_a1done"); break
                a.label("L_a1done")
                a.vmq[:] = [("W", 15), None, None] + [("kv", 0)] * 4
            a("s_barrier")
            if s_ == 0: stamp("a_b0")
            if s_ in (8, 16, 24): stamp(f"a_{s_}")
            if OPT["steps"] and path == 2 and s_ < 29:
                a("s_memtime s[98:99]"); a.wait0(vm=False); a(f"v_writelane_b32 v160, s98, {s_}")
                if s_ == 28:
                    a(f"s_lshl_b32 s98, s2, 8\n s_add_u32 s98, s98, {TS_OFF+0x10000}\n v_lshlrev_b32 v161, 2, v0\n buffer_store_dword v160, v161, s[{rWS}:{rWS+3}], s98 offen")
            for f in pre[s_]: f()
            midf = lambda: [f() for f in mid[s_]]
            if s_ % 2 == 0:
                if u + 1 < 16 and not (u == 0 and OPT["w1pre"]): ldW(u + 1, midf)
                else: midf()
                if s_ == OPT["xr"]: ldX(u + 2)
            else:
                if u + 2 < 16: ldQ(u + 2)
                midf()
                xa = 3 if s_ > OPT["xr"] else 2
                if u + xa < 16: ldX(u + xa)
            trk(True)
            for f in post[s_]: f()
            if not OPT["peven"]: pfs(s_)
            elif s_ % 2 == 0: pfs(s_); pfs(s_ + 1)
    a.wait = plainwait
    a.wait(vm=[("kv", 1)])
    a.vmq[:] = [("kv", 2)] * 4 + [None if OPT["kvreg"] else ("kv", 3)] * 4
    a("s_barrier")
    attention_setup(4)
    a("s_barrier")

QF, OA, LA, SB, PB, KF, VF, ONES = 32, 48, 80, 88, 120, 136, 176, 168
vKc, vKn, vSy, vOne, vCnt, vIdx, vQa, vSt = 248, 249, 251, 252, 20, 255, 30, 31
vD, vDW = 240, 244
def wtile_offsets(dst):
    a(f"""v_lshrrev_b32 v22, 3, v0
      v_lshlrev_b32 v22, 11, v22
      v_and_b32 v23, 1, v2
      v_lshlrev_b32 v23, 2, v23
      v_and_b32 v24, 7, v0
      v_xor_b32 v23, v23, v24
      v_lshl_add_u32 v22, v23, 4, v22
      s_lshl_b32 s{sT0}, s{sCB2}, 7
      v_add_u32 v22, s{sT0}, v22""")
    for i in range(4): a(f"v_xor_b32 v23, {32*(i%2)}, v22\n v_add_u32 v{dst+i}, {i*16384-i*1024}, v23")
def lsum(z, P):
    a(f"v_smfmac_f32_16x16x64_bf16 {vr(LA+4*(z//2),4)}, {vr(ONES+4*(z%2),4)}, {vr(P,8)}, v{vIdx}")
sKo, sCn, sDo, sMb, sDs, sO0, sO1 = sA, sB, sC, sD, sE, sF, sG
def attention_setup(part):
    if part == 0: wtile_offsets(vDW)
    if part == 1:
        a(f"""s_lshl_b32 s{sT0}, s{sW}, 12
          s_add_u32 s{sT1}, s{sT0}, {QX}
          v_lshl_add_u32 v{vQa}, v0, 4, s{sT1}
          v_add_u32 v{vKc}, {KVR}, v{vKVD}
          v_mov_b32 v{vKn}, {SYNC}
          v_and_b32 v22, 2, v1
          v_mov_b32 v23, 0x3f803f80
          v_cmp_eq_u32 vcc, 0, v22
          v_lshl_add_u32 v{vSy}, v0, 2, v{vKn}
          v_sub_u32 v{vOne}, 1, v0
          v_max_i32 v{vOne}, 0, v{vOne}
          v_cndmask_b32 v{ONES}, 0, v23, vcc
          v_cndmask_b32 v{ONES+1}, 0, v23, vcc
          v_xor_b32 v{ONES+4}, v{ONES}, v23
          v_xor_b32 v{ONES+5}, v{ONES}, v23
          v_mov_b64 {vr(ONES+2,2)}, {vr(ONES,2)}
          v_mov_b64 {vr(ONES+6,2)}, {vr(ONES+4,2)}
          v_and_b32 v22, 1, v1
          v_mul_u32_u24 v22, 0xaaaa, v22
          v_or_b32 v{vIdx}, 0x4444, v22""")
    if part == 2:
        a(f"""v_and_b32 v22, 1, v2
          v_lshlrev_b32 v22, 9, v22
          v_lshrrev_b32 v23, 1, v2
          v_lshl_add_u32 v22, v23, 8, v22
          v_lshl_add_u32 v{vSt}, v1, 4, v22""")
        for r in range(4): a(f"v_mov_b32 v{vD+r}, v{vKVD}")
        for r in list(range(PB + 8, PB + 16, 2)) + list(range(VF + 16, VF + 32, 2)): a(f"v_mov_b64 {vr(r,2)}, 0")
    if part == 3:
        for r in range(OA, OA + 40, 2): a(f"v_mov_b64 {vr(r,2)}, 0")
    if part == 4:
        a(f"""s_lshl_b32 s{sT0}, s{sW}, 12
          s_mov_b32 s{sCn}, 4
          s_add_u32 s{sDo}, s{sT0}, {3*16384}
          s_mov_b32 s{sDs}, 16384
          s_mov_b32 s{sKo}, 16384
          s_add_u32 s{sMb}, s{sT0}, {KVR}
          s_mul_i32 s{sO0}, s{sRB}, {RBSZ}
          s_lshl_b32 s{sT1}, s{sQB}, 14
          s_add_u32 s{sO0}, s{sO0}, s{sT1}
          s_lshl_b32 s{sT1}, s{sW}, 11
          s_add_u32 s{sO0}, s{sO0}, s{sT1}
          s_add_u32 s{sO0}, s{sO0}, {112*8192}
          s_add_u32 s{sO1}, s{sO0}, 8192
          s_mov_b32 s{sIT}, 0""")
def attention():
    kvo = lambda T: ((T // 4 + 2) % 4) * 16384 + (T % 4) * 4096
    def rdK(U, e):
        for k_ in range(2): a.lg(f"ds_read_b128 {vr(KF+16*(U%2)+8*e+4*k_,4)}, v{vKc} offset:{kvo(2*U+e)+1024*k_}", "kv")
    def rdV(U, e):
        for k_ in range(2): a.lg(f"ds_read_b128 {vr(VF+16*(U%2)+8*e+4*k_,4)}, v{vKc} offset:{kvo(2*U+e)+2048+1024*k_}", "kv")
    a.lg(f"ds_read_b128 {vr(QF,4)}, v{vQa}")
    rdK(0, 0); rdK(0, 1)
    a.lgq[-1] = "k0"
    a.lg(f"ds_read_b128 {vr(QF+4,4)}, v{vQa} offset:1024", "q1")
    for i in range(2, 4): a.lg(f"ds_read_b128 {vr(QF+4*i,4)}, v{vQa} offset:{1024*i}")
    rdV(0, 0); rdV(0, 1)
    a.wait(lg="k0")
    for k_ in range(4): mf16(SB + 4 * k_, KF + 4 * k_, QF, "0")
    a.wait(lg="q1")
    a("s_nop 3")
    a.raw(".p2align 3")
    cm("attention: S^T = K Q^T, P = exp2(S), O^T += V^T P, row sums by a sparse MFMA; K/V stream through a 4-slot LDS ring.\nZero stands in for the row maximum here; the check after the loop falls back to the true maximum (L_slow)")
    a.label("L_att")
    def pv(k_, U, z, P): e_ = int(k_ in (1, 2)); mf16(OA + 8 * z + 4 * (k_ // 2), VF + 16 * (U % 2) + 8 * e_ + 4 * (k_ // 2), P + 4 * e_)
    def slot(n, hooks):
        U1, z1 = divmod(n + 1, 4); Up, zp = divmod(n - 1, 4)
        S = SB + 16 * (n % 2); S1 = SB + 16 * ((n + 1) % 2)
        P = PB + 8 * (n % 2); Pp = PB + 8 * ((n - 1) % 2)
        ne = nc = 0
        for ch in OPT["pat"]:
            if ch == "e": a(f"v_exp_f32 v{S+ne}, v{S+ne}"); ne += 1
            elif ch == "c": assert ne >= 2 * nc + 2; a(f"v_cvt_pk_bf16_f32 v{P+nc}, v{S+2*nc}, v{S+2*nc+1}"); nc += 1
            elif ch == "w": a.wait(lg=["kv", "cnt"], vm=hooks.get("vm", ()))
            elif ch in "qrst": k_ = "qrst".index(ch); mf16(S1 + 4 * k_, KF + 16 * (U1 % 2) + 4 * k_, QF + 4 * z1, "0")
            elif ch in "uvxy": pv("uvxy".index(ch), Up, zp, Pp)
            elif ch == "S": lsum(zp, Pp)
            else:
                for f in hooks.get(int(ch), []): f()
        assert ne == 16 and nc == 8
        pt = OPT["pat"]; assert pt.index("4") > pt.index("w")
    def body(it):
        for cc in range(4):
            c_ = 4 * it + cc
            for k in range(8):
                n = 8 * c_ + k; U, z = divmod(n, 4)
                hk = {4: [lambda: rdK(U + 1, z) if z < 2 else rdV(U + 1, z - 2)]}
                KA = OPT["arrk"]
                if k == KA:
                    hk["vm"] = ("kv", c_ + 1); hk[4].append(lambda: a.lg(f"ds_add_u32 v{vSy}, v{vOne}"))
                if k == 1:
                    hk[0] = [lambda: a(f"s_add_u32 m0, s{sMb}, {((c_+1)%4)*16384}")]
                    if cc == 1: hk[1] = [lambda: a(f"s_cmp_eq_u32 s{sIT}, 3")]; hk[2] = [lambda: (a("s_cbranch_scc1 L_attwo"), a.label("L_attwo_r"))]
                if k == 2: hk[4].append(lambda: a.lg(f"ds_read_b32 v{vCnt}, v{vKn}", "cnt"))
                if k == 3: hk[5] = [lambda: a(f"v_cmp_gt_u32 vcc, s{sCn}, v{vCnt}")]
                pre_ = cc <= OPT["kvreg"]
                if k == 4:
                    hk[0] = [lambda: (a(f"s_cbranch_vccnz L_attspin{cc}"), a.label(f"L_attgo{cc}"))]
                    hk[1] = [lambda: a(f"s_add_u32 s{sCn}, s{sCn}, 4")]
                    if pre_: hk[2] = [lambda: a(f"s_cmp_eq_u32 s{sIT}, 0")]
                if k in (4, 5):
                    def dma(i):
                        if OPT["anodma"]: return
                        if pre_: a(f"s_cbranch_scc1 L_{'no' if cc == 0 else 'reg'}dma{cc}_{i}")
                        for k2 in (i, i + 1):
                            t_ = f"buffer_load_dwordx4 v{vD+k2}, s[{rE}:{rE+3}], s{sDo} offen offset:{1024*k2} sc1 lds"
                            a.vm(t_, ("kv", c_ + 3)) if c_ > OPT["kvreg"] else a(t_)
                        if pre_: a.label(f"L_nodma{cc}_{i}")
                    if OPT["dpos"] == 0: hk[4].append(lambda: dma(2 * (k - 4)))
                    elif OPT["dpos"] == 1: hk[4].insert(0, lambda: dma(2 * (k - 4)))
                    else: hk[6] = [lambda: dma(2 * (k - 4))]
                if k == 7:
                    hk[0] = [lambda: a(f"s_add_u32 s{sDo}, s{sDo}, s{sKo if cc == 1 else sDs}")]
                    if cc == 3: hk[1] = [lambda: a(f"s_add_u32 s{sIT}, s{sIT}, 1")]; hk[2] = [lambda: a(f"s_cmp_lt_u32 s{sIT}, 4")]
                slot(n, hk)
        a("s_cbranch_scc1 L_att")
    a.loop(body, "att", 3)
    a("s_nop 0")
    lsum(3, PB + 8)
    for k_ in range(4): pv(k_, 31, 3, PB + 8)
    stamp("a_att")
    a(f"s_mov_b32 s{sIT}, 0")
    cm('O * gate / rowsum -> workspace')
    a.label("L_attfin")
    def fin(k):
        T_ = SB + 4 * k
        a(f"v_permlane16_swap_b32 v{T_}, v{T_+2}\n v_permlane16_swap_b32 v{T_+1}, v{T_+3}")
        a(f"buffer_store_dwordx4 {vr(T_,4)}, v{vSt}, s[{rWS}:{rWS+3}], s{sO0+k//2} offen offset:{1024*(k%2)} sc1")
    for k in range(4):
        a(f"v_add_f32 v{24+k}, v{LA+2*k}, v{LA+2*k+1}")
        a(f"v_rcp_f32 v22, v{24+k}")
        if k: fin(k - 1)
        else: a("s_nop 0")
        a(f"v_mul_f32 v22, v22, v{vG+k%2}")
        for r in range(4):
            d = OA + 8 * k + 2 * r
            a(f"v_mul_f32 v{d}, v{d}, v22\n v_mul_f32 v{d+1}, v{d+1}, v22\n v_cvt_pk_bf16_f32 v{SB+4*k+r}, v{d}, v{d+1}")
    a("s_nop 1"); fin(3)
    a(f"s_cmp_lg_u32 s{sIT}, 0\n s_cbranch_scc1 L_attok")
    a(f"s_waitcnt vmcnt(4) lgkmcnt(0)\n ds_add_u32 v{vSy}, v{vOne} offset:12")
    cm('stand-in check: every row sum in [2^-40, 2^100] and nothing infinite or NaN, else redo with the true maximum')
    a(f"s_mov_b32 s{sT0}, {f2u(2.0**-40)}\n s_mov_b32 s{sT1}, {f2u(2.0**100)}\n v_max3_f32 v28, v24, v25, v26\n v_max_f32 v28, v28, v27\n v_mov_b32 v29, 0")
    for r in list(range(OA, OA + 32, 2)) + [24, 26]: a(f"v_pk_fma_f32 v[28:29], {vr(r,2)}, 0, v[28:29]")
    a(f"""v_add_f32 v28, v28, v29
      v_min3_f32 v29, v24, v25, v26
      v_min_f32 v29, v29, v27
      v_cmp_nle_f32 vcc, v28, s{sT1}
      v_cmp_nge_f32 s[{sT2}:{sT3}], v29, s{sT0}
      s_or_b64 vcc, vcc, s[{sT2}:{sT3}]""")
    if OPT["forceslow"]: a("s_branch L_slow")
    a("s_cbranch_vccnz L_slow")
    a.label("L_attok")
    setflag(1)
    stamp("a_end")
    if OPT["padto"]:
        a("s_barrier\n s_barrier" if OPT["ebar"] else "s_barrier")
        a.label("L_pad2")
        a(f"s_memrealtime s[98:99]\n s_waitcnt lgkmcnt(0)\n s_sleep 8\n s_sub_u32 s98, s98, s96\n s_cmp_lt_u32 s98, {OPT['padto']}\n s_cbranch_scc1 L_pad2")
    dump_ts_and_end()
    a.label("L_attwo")
    srd(rE, pWO, 1024 * 2048)
    a(f"s_lshl_b32 s{sDo}, s{sW}, 17\n s_add_u32 s{sDo}, s{sDo}, {524288+65536}\n s_mov_b32 s{sDs}, 65536\n s_mov_b32 s{sKo}, {2*524288-65536}")
    a(f"v_mov_b64 {vr(vD,2)}, {vr(vDW,2)}\n v_mov_b64 {vr(vD+2,2)}, {vr(vDW+2,2)}\n s_branch L_attwo_r")
    for cc in range(1, OPT["kvreg"] + 1):
        for i in (() if OPT["anodma"] else (0, 2)):
            a.label(f"L_regdma{cc}_{i}")
            if i == 0: a(f"s_waitcnt vmcnt(0)\n v_add_u32 v22, s{sMb}, v{vKVD}")
            for k2 in (i, i + 1): a(f"ds_write_b128 v22, {vr(KVREG+16*(cc-1)+4*k2,4)} offset:{((cc+1)%4)*16384+1024*k2}")
            a(f"s_branch L_nodma{cc}_{i}")
    for cc in range(4):
        a.label(f"L_attspin{cc}")
        a(f"s_mov_b32 s{sT2}, {SPIN_MAX}")
        a.label(f"L_attspin{cc}b")
        a(f"""ds_read_b32 v{vCnt}, v{vKn}
          s_waitcnt lgkmcnt(0)
          v_cmp_gt_u32 vcc, s{sCn}, v{vCnt}
          s_sub_u32 s{sT2}, s{sT2}, 1
          s_cbranch_vccz L_attgo{cc}
          s_cmp_lg_u32 s{sT2}, 0
          s_cbranch_scc1 L_attspin{cc}b
          s_branch L_attgo{cc}""")
    cm('exact path: pass 1 finds the true row maximum, pass 2 subtracts it (through the accumulator input of the score MFMA)')
    a.label("L_slow")
    NM = 208
    a(f"s_add_u32 s{rE}, s{pWS}, {KV_OFF}\n s_addc_u32 s{rE+1}, s{pWS+1}, 0\n s_mov_b32 s{rE+2}, 0x40000\n s_mov_b32 s{rE+3}, 0x20000")
    a(f"s_waitcnt vmcnt(0) lgkmcnt(0)\n s_mov_b32 s{sT0}, 0\n s_mov_b32 s{sIT}, 1")
    for k in range(4): a(f"v_mov_b32 v{24+k}, 0xff800000")
    a.label("L_slow1")
    a(f"buffer_load_dwordx4 {vr(KF,4)}, v{vKVD}, s[{rE}:{rE+3}], s{sT0} offen sc1\n buffer_load_dwordx4 {vr(KF+4,4)}, v{vKVD}, s[{rE}:{rE+3}], s{sT0} offen offset:1024 sc1\n s_waitcnt vmcnt(0)")
    for k in range(8): mf16(SB + 4 * k, KF + 4 * (k % 2), QF + 4 * (k // 2), "0")
    a("s_nop 7")
    for k in range(4):
        for r in range(0, 8, 2): a(f"v_max3_f32 v{24+k}, v{SB+8*k+r}, v{SB+8*k+r+1}, v{24+k}")
    a(f"s_add_u32 s{sT0}, s{sT0}, 4096\n s_cmp_lt_u32 s{sT0}, 0x40000\n s_cbranch_scc1 L_slow1")
    for sw in ("16", "32"):
        for k in range(4): a(f"v_mov_b32 v{16+k}, v{24+k}")
        a("s_nop 1")
        for k in range(4): a(f"v_permlane{sw}_swap_b32 v{24+k}, v{16+k}")
        for k in range(4): a(f"v_max_f32 v{24+k}, v{24+k}, v{16+k}")
    for k in range(4):
        for r in range(4): a(f"v_sub_f32 v{NM+4*k+r}, 0, v{24+k}")
    for r in range(OA, OA + 40, 2): a(f"v_mov_b64 {vr(r,2)}, 0")
    a(f"s_mov_b32 s{sT0}, 0")
    a.label("L_slow2")
    for e_ in range(2):
        for i in range(4):
            a(f"buffer_load_dwordx4 {vr((KF if i < 2 else VF)+8*e_+4*(i%2),4)}, v{vKVD}, s[{rE}:{rE+3}], s{sT0} offen offset:{1024*i} sc1")
        a(f"s_add_u32 s{sT0}, s{sT0}, 4096")
    a("s_waitcnt vmcnt(0)")
    for z in range(4):
        for k in range(4): mf16(SB + 4 * k, KF + 4 * k, QF + 4 * z, vr(NM + 4 * z, 4))
        a("s_nop 7")
        for r in range(16): a(f"v_exp_f32 v{SB+r}, v{SB+r}")
        for r in range(8): a(f"v_cvt_pk_bf16_f32 v{PB+r}, v{SB+2*r}, v{SB+2*r+1}")
        a("s_nop 1")
        for k in range(4): pv(k, 0, z, PB)
        lsum(z, PB)
    a(f"s_cmp_lt_u32 s{sT0}, 0x40000\n s_cbranch_scc1 L_slow2")
    a("s_nop 7\n s_nop 3\n s_branch L_attfin")

def setflag(which):
    if which == 0: a(f"s_lshr_b32 s{sT1}, s{sCB}, 2\n s_and_b32 s{sT2}, s{sCB}, 3")
    else: a(f"s_and_b32 s{sT1}, s{sQB}, 3\n s_and_b32 s{sT2}, s{sQB}, 12\n s_lshr_b32 s{sT2}, {sum(k << (4 * g) for k, g in enumerate(GRP))}, s{sT2}\n s_and_b32 s{sT2}, s{sT2}, 3")
    a(f"""s_lshl_b32 s{sT0}, s{sRB}, 13
      s_lshl_b32 s{sT1}, s{sT1}, 7
      s_add_u32 s{sT0}, s{sT0}, s{sT1}
      s_lshl2_add_u32 s{sT0}, s{sT2}, s{sT0}
      s_add_u32 s{sT0}, s{sT0}, {FL_OFF+16*which}
      v_mov_b32 v17, {SYNC+4+4*which}
      v_mov_b32 v15, 1""")
    if which == 0:
        if OPT["noack"] < 2: a.wait(vm="hst")
    elif OPT["noack"] & 1: a("s_waitcnt vmcnt(4)")
    else: a.wait0(lg=False)
    l = a.newlabel("L_nofl")
    a(f"""s_mov_b64 exec, 1
      ds_add_rtn_u32 v16, v17, v15
      s_mov_b64 exec, 0xffff
      v_lshlrev_b32 v17, 9, v0
      s_waitcnt lgkmcnt(0)
      v_readfirstlane_b32 s{sT1}, v16
      s_cmp_eq_u32 s{sT1}, 3
      s_cbranch_scc0 {l}
      buffer_store_dword v15, v17, s[{rWS}:{rWS+3}], s{sT0} offen {OPT['sfl'].replace('_', ' ')}""")
    a.label(l)
    a("s_mov_b64 exec, -1")
    a.lgq.clear()
def mbox(which):
    a(f"""s_lshl_b32 s{sT0}, s{sRB2}, 4
      s_add_u32 s{sT0}, s{sT0}, s{sCB2}
      s_lshl_b32 s{sT0}, s{sT0}, 2
      s_add_u32 s{sT0}, s{sT0}, s{sW}
      s_lshl_b32 s{sT0}, s{sT0}, 7
      s_add_u32 s{sT0}, s{sT0}, {FL_OFF+16*which}
      v_and_b32 v15, 3, v0
      v_lshlrev_b32 v15, 2, v15""")
def waitflag(which, name):
    mbox(which)
    a(f"s_mov_b32 s{sT1}, {SPIN_MAX}\n s_mov_b64 exec, 15")
    a.label(name)
    a(f"""buffer_load_dword v17, v15, s[{rWS}:{rWS+3}], s{sT0} offen {OPT['pfl'].replace('_', ' ')}
      s_waitcnt vmcnt(0)
      v_cmp_ne_u32 vcc, 1, v17
      s_sub_u32 s{sT1}, s{sT1}, 1
      s_cbranch_vccz {name}_x
      s_sleep {OPT['slp']}
      s_cmp_lg_u32 s{sT1}, 0
      s_cbranch_scc1 {name}""")
    a.label(name + "_x")
    a("s_mov_b64 exec, -1")
def waitlds(off, val, name, va=15):
    a(f"s_mov_b32 s{sT1}, {SPIN_MAX}\n v_mov_b32 v{va}, {SYNC+off}")
    a.label(name)
    a(f"""ds_read_b32 v17, v{va}
      s_waitcnt lgkmcnt(0)
      v_readfirstlane_b32 s{sT0}, v17
      s_cmp_ge_u32 s{sT0}, {val}
      s_cbranch_scc1 {name}_x
      s_sleep 2
      s_sub_u32 s{sT1}, s{sT1}, 1
      s_cmp_lg_u32 s{sT1}, 0
      s_cbranch_scc1 {name}""")
    a.label(name + "_x")

ACC2, HR, WF = 128, 64, 32
acc2 = lambda rt, nt: ACC2 + (rt * 4 + nt) * 4
vWD, vWR, vH, vGM = 3, 7, 11, 16
sWo, sHo, sMw, sRdy = sC, sD, sE, sF
def g2_vsetup():
    wtile_offsets(vWD)
    a(f"""s_lshl_b32 s{sT0}, s{sW}, 14
      v_lshrrev_b32 v14, 2, v1
      v_lshl_add_u32 v14, v2, 3, v14
      v_and_b32 v15, 3, v1
      v_lshlrev_b32 v15, 3, v15
      v_lshl_add_u32 v14, v14, 7, v15
      v_and_b32 v15, 1, v2
      v_lshrrev_b32 v30, 3, v1
      v_lshl_add_u32 v15, v30, 1, v15
      v_lshl_add_u32 v14, v15, 5, v14
      v_add_u32 v14, s{sT0}, v14""")
    for nt in range(4): a(f"v_xor_b32 v{vWR+nt}, {32*nt}, v14")
    for p in range(4):
        a(f"s_add_u32 s{sT0}, s{sW}, {p+1}\n s_and_b32 s{sT0}, s{sT0}, 3\n s_lshl_b32 s{sT0}, s{sT0}, 11\n v_lshl_add_u32 v{vH+p}, v0, 4, s{sT0}")
def g2_setup():
    srd(rB, pW2, 3584 * 2048)
    a(f"s_lshl_b32 s{sMw}, s{sW}, 14\n s_mul_i32 s{sWo}, s{sW}, {896*2048}")
def dmaW(i, k):
    if k == 0: a(f"s_add_u32 m0, s{sMw}, {(i%4)*4096}\n s_nop 0")
    a.vm(f"buffer_load_dwordx4 v{vWD+k}, s[{rB}:{rB+3}], s{sWo} offen offset:{1024*k} lds", ("W2", i // 2))
    if k == 3: a(f"s_add_u32 s{sWo}, s{sWo}, 65536")
def g_phase2():
    sHp, sMbx, sOb, sDl = sB, 4, 5, 6
    vPo = 29
    def ldH(i, rt):
        a.vm(f"buffer_load_dwordx4 {vr(HR+32*(i%2)+4*rt,4)}, v{vH+rt//2}, s[{rWS}:{rWS+3}], s{sHp if i % 2 else sHo} offen offset:{1024*(rt%2)} sc1", ("H", i // 2, rt // 2))
    WOFF = {32: 0, 33: 49152, 34: 49152, 35: 0}
    def rdW2(i, nt, e):
        a.lg(f"ds_read_b64_tr_b16 {vr(WF+16*(i%2)+4*nt+2*e,2)}, v{vWR+nt} offset:{WOFF.get(i, (i%4)*4096)+512*e}", ("W2", i // 2, nt))
    cm('G, phase 2: out tile [128 x 64] = (1-g) (hidden W2 + b2) + (g O) Wo, K split over the four waves')
    setflag(0)
    stamp("g_flag")
    if OPT["nog2"]: dump_ts_and_end()
    a(f"""s_mul_i32 s{sHo}, s{sRB2}, {RBSZ}
      s_mul_i32 s{sT1}, s{sW}, {28*8192}
      s_add_u32 s{sHo}, s{sHo}, s{sT1}
      s_lshl_b32 s{sT2}, s{sRB2}, 9
      s_add_u32 s{sT2}, s{sT2}, {G_OFF}
      v_lshlrev_b32 v15, 2, v1""")
    for p in range(4):
        a(f"""s_add_u32 s{sT0}, s{sW}, {p+1}
          s_and_b32 s{sT0}, s{sT0}, 3
          s_lshl_b32 s{sT0}, s{sT0}, 7
          s_add_u32 s{sT0}, s{sT0}, s{sT2}""")
        for h in range(2): a(f"buffer_load_dword v{vGM+4*p+2*h}, v15, s[{rWS}:{rWS+3}], s{sT0} offen offset:{64*h} sc1")
    if OPT["loc2"]:
        assert OPT["map2"] == 5
        a(f"""s_and_b32 s{sT0}, s2, 4
          s_lshl3_add_u32 s{sT3}, s{sT0}, s{sI}
          s_lshl_b32 s{sT0}, s{sW}, 6
          s_add_u32 s{sT0}, s{sT0}, s{sT3}
          s_lshr_b32 s{sG}, s{sT0}, 5
          s_bfe_u32 s{sT1}, s{sT0}, 0x20003
          s_mul_i32 s{sT1}, s{sT1}, {896*2048}
          s_and_b32 s{sT0}, s{sT0}, 7
          s_lshl_b32 s{sT0}, s{sT0}, 15
          s_add_u32 s{sT0}, s{sT0}, s{sT1}
          s_add_u32 s{sT1}, s{sG}, 2
          s_lshl_b32 s{sT1}, s{sT1}, 18
          s_add_u32 s{sT0}, s{sT0}, s{sT1}
          s_cmp_eq_u32 s{sG}, 5
          s_cselect_b32 s{sG}, -1, s{sG}
          s_lshl_b32 s{sT1}, s{sT3}, 15
          s_and_b32 s{sT2}, s{sCB2}, 3
          s_lshl_b32 s{sT2}, s{sT2}, 7
          s_add_u32 s{sT0}, s{sT0}, s{sT2}
          s_add_u32 s{sT1}, s{sT1}, s{sT2}
          s_and_b32 s{sT2}, s{sI}, 1
          s_add_u32 s{sT2}, s{sT2}, {OPT["woit"]}""")
    else:
        if OPT["ev2"]: a(f"s_lshl_b32 s{sT0}, s{sW}, 8\n s_add_u32 s{sT0}, s{sT0}, s2")
        else: a(f"s_lshl_b32 s{sT0}, s2, 1\n s_add_u32 s{sT0}, s{sT0}, s{sW}\n s_add_u32 s{sT1}, s2, 512\n s_cmp_eq_u32 s{sW}, 2\n s_cselect_b32 s{sT0}, s{sT1}, s{sT0}")
        a(f"""
          s_lshr_b32 s{sG}, s{sT0}, 7
          s_bfe_u32 s{sT1}, s{sT0}, 0x20005
          s_mul_i32 s{sT1}, s{sT1}, {896*2048}
          s_and_b32 s{sT0}, s{sT0}, 31
          s_lshl_b32 s{sT0}, s{sT0}, 13
          s_add_u32 s{sT0}, s{sT0}, s{sT1}
          s_add_u32 s{sT1}, s{sG}, 2
          s_lshl_b32 s{sT1}, s{sT1}, 18
          s_add_u32 s{sT0}, s{sT0}, s{sT1}
          s_cmp_eq_u32 s{sG}, 5
          s_cselect_b32 s{sG}, -1, s{sG}
          s_lshl_b32 s{sT1}, s2, 13
          s_and_b32 s{sT2}, s{sI}, 1""")
    a(f"""
      s_cmp_eq_u32 s{sW}, 3
      s_cselect_b32 s{sA}, s{sT1}, s{sT0}
      s_cselect_b32 s{sG}, s{sT2}, s{sG}
      s_cselect_b32 s{rPF}, s{pWO}, s{pW2}
      s_cselect_b32 s{rPF+1}, s{pWO+1}, s{pW2+1}
      s_mov_b32 s{sT0}, {3584*2048}
      s_cselect_b32 s{rPF+2}, {1024*2048}, s{sT0}
      s_mov_b32 s{rPF+3}, 0x20000""")
    if OPT["ev2"] and not OPT["loc2"]: a(f"s_bitcmp1_b32 s2, 0\n s_cselect_b32 s{sG}, -1, s{sG}")
    stamp("g_pw")
    waitflag(0, "L_wh")
    stamp("g_wf")
    a.vmq.clear(); a.lgq.clear()
    rds = lambda D, nt: [lambda e_=e_, k=k: rdW2(2 * D + e_, nt, k) for e_ in range(2) for k in range(2)]
    def ldP(D, ps):
        for p in ps:
            for h in range(2): ldH(2 * D, 2 * p + h); ldH(2 * D + 1, 2 * p + h)
    pend = []
    def dstep(D, fine, extra={}, at={}):
        for p in range(4):
            ex = list(extra.get(p, [])); lq = []
            if p in at: at[p]()
            if p in (1, 2) and D < 14: lq = [lambda k=k: dmaW(2 * D + 3 + p, k) for k in range(4)]
            if OPT["gdma"] and fine and D < 14 and p == 0:
                lq = [lambda: None, lambda: None] + [lambda k=k: (a(f"s_add_u32 m0, s7, {KVR + (D % 2) * 16384}\n s_add_u32 s8, s8, 16384") if k == 0 else None,
                      a.vm(f"buffer_load_dwordx4 v{vH+3}, s[{rWS}:{rWS+3}], s8 offen offset:{1024*k} sc1 lds")) for k in range(4)]
            for nt in range(4):
                if p == 0: lgw = [("W2", D, nt)] if fine else ([("W2", D, nt + 1)] if nt % 2 == 0 else [])
                else: lgw = []
                a.wait(vm=([("H", D, p)] + ([("W2", D + 1)] if p == 3 else [])) if nt == 0 else [], lg=lgw)
                if OPT["chain"]: seq = [(nt % 2, 0), (nt % 2, 1), (1 - nt % 2, 1), (1 - nt % 2, 0)]
                else: seq = [(0, 0), (1, 0), (1, 1), (0, 1)]
                for n, (h, e) in enumerate(seq):
                    first = (h, 1 - e) not in seq[:n]
                    mf16(acc2(2 * p + h, nt), WF + 16 * e + 4 * nt, HR + 32 * e + 4 * (2 * p + h), "0" if D == 0 and first else None)
                    if fine:
                        if pend: pend.pop(0)()
                        if nt == 3 and D < 17: ldH(2 * D + 2 + e, 2 * p + h)
                        elif lq and n % 2: lq.pop(0)()
                        x = ex.pop(0) if ex else None
                        if callable(x): x()
                        elif x: a(x)
                if p == 3 and D < 17: pend.extend(rds(D + 1, nt))
                if not fine and nt == 1:
                    while pend: pend.pop(0)()
                    while lq: lq.pop(0)()
                    if OPT["gdma"] and p in (0, 3):
                        a(f"s_add_u32 m0, s7, {KVR + (D % 2) * 16384}\n s_nop 0")
                        for k in ((0, 1) if p == 0 else (2, 3)): a.vm(f"buffer_load_dwordx4 v{vH+3}, s[{rWS}:{rWS+3}], s8 offen offset:{1024*k} sc1 lds")
                        if p == 3: a("s_add_u32 s8, s8, 16384")
                if not fine and nt == 3:
                    if (p, "ld") in at: at[p, "ld"]()
                    ldP(D + 1, [p])
            assert not ex and not lq
        if D < 12: a(f"s_add_u32 s{sHo}, s{sHo}, 16384\n s_add_u32 s{sHp}, s{sHp}, 16384")
    for nt in range(4):
        for f in rds(0, nt): f()
    a(f"s_add_u32 s{sHp}, s{sHo}, 8192")
    ldP(0, range(4))
    a(f"s_add_u32 s{sHo}, s{sHo}, 16384\n s_add_u32 s{sHp}, s{sHp}, 16384")
    for rt in range(8): a(f"v_sub_f32 v{vGM+2*rt}, 1.0, v{vGM+2*rt}")
    stamp("g_l2")
    a(f"s_setprio {OPT['g2prio']}\n s_mov_b32 s{sIT}, 0")
    if OPT["gdma"]: a(f"s_lshl_b32 s7, s{sW}, 12\n s_lshl_b32 s8, s{sW}, 11\n s_add_u32 s8, s8, {KV_OFF}")
    fine = [not int(c) for c in OPT["gp"][1:3]]
    dstep(0, fine[1])
    stamp("g_s0")
    a.raw(".p2align 3")
    cm('FFN double steps (runs beside the attention waves)')
    a.label("L_g2loop")
    def body(it):
        if OPT["pf2"]: a(f"s_cmp_eq_u32 s{sIT}, s{sG}\n s_cbranch_scc1 L_hookF"); a.label("L_hookF_r")
        dstep(2 * it + 1, fine[0])
        a(f"s_cmp_ge_u32 s{sIT}, 4\n s_cbranch_scc1 L_hookW"); a.label("L_hookW_r")
        dstep(2 * it + 2, fine[1])
        a(f"s_add_u32 s{sIT}, s{sIT}, 1\n s_cmp_lt_u32 s{sIT}, 6\n s_cbranch_scc1 L_g2loop")
    a.loop(body, "g2")
    sh = lambda q: [x and (x[0], x[1] + 6) + x[2:] for x in q]
    a.vmq[:] = sh(a.vmq); a.lgq[:] = sh(a.lgq)
    pend[:] = [f for nt in range(4) for f in rds(13, nt)][16 - len(pend):]
    stamp("g_25")
    cm("last FFN double step, then the output projection: four producers in a fixed order, looked up in this wave's mailbox")
    mbox(1)
    a(f"""s_add_u32 s{sWo}, s{sWo}, {((GRP[1]-GRP[0])*524288-131072) & 0xffffffff}
      s_mov_b32 s{sMbx}, s{sT0}
      s_mul_i32 s{sOb}, s{sRB2}, {RBSZ}
      s_add_u32 s{sOb}, s{sOb}, s{sMw}
      s_lshl_b32 s{sDl}, s{sW}, 12
      s_add_u32 s{sDl}, s{sDl}, {QX}
      s_sub_u32 s{sDl}, s{sDl}, s{sMw}""")
    def poll(): a.vm(f"buffer_load_dword v{vPo}, v15, s[{rWS}:{rWS+3}], s{sMbx} offen sc1", "poll")
    chk = lambda sl: f"""v_cmp_eq_u32 vcc, 1, v{vPo}
      s_add_u32 s{sHo}, s{sOb}, {(112+8*GRP[sl])*8192}
      s_bitcmp1_b32 vcc_lo, {sl}
      s_cselect_b32 s{sRdy}, 1, 0
      s_cselect_b32 s{sHo}, s{sHo}, {OOB}
      s_add_u32 s{sHp}, s{sHo}, 8192""".split("\n")
    AG = lambda sl: [int(c) for c in OPT["ag13" if sl == 0 else "ag"][1:]]
    def again(sl, p):
        a(f"s_cmp_eq_u32 s{sRdy}, 0\n s_cbranch_scc1 L_sec{sl}{p}")
        a.label(f"L_sec{sl}{p}_r")
        if p == 2: poll()
    def join(sl):
        a(f"s_cmp_eq_u32 s{sRdy}, 0\n s_cbranch_scc1 L_blk{sl}")
        a.label(f"L_join{sl}")
        a.vmq[:] = [("H", 14 + sl, p) for p in range(4) for _ in range(4)]
    def late(sl):
        for p in AG(sl):
            a.label(f"L_sec{sl}{p}")
            a("\n".join(chk(sl)))
            if p != 2: poll()
            a(f"s_cmp_eq_u32 s{sRdy}, 0\n s_cbranch_scc1 L_sec{sl}{p}_r")
            ldP(14 + sl, range(p))
            a(f"s_branch L_sec{sl}{p}_r")
        a.label(f"L_blk{sl}")
        a(f"s_mov_b32 s{sT5}, {SPIN_MAX}\n s_branch L_blk{sl}b")
        a.label(f"L_blk{sl}a")
        poll(); a.wait0(lg=False)
        a(f"s_sub_u32 s{sT5}, s{sT5}, 1\n s_cbranch_scc0 L_blk{sl}b\n v_mov_b32 v{vPo}, 1")
        a.label(f"L_blk{sl}b")
        a("\n".join(chk(sl)))
        a(f"s_cmp_lg_u32 s{sRdy}, 0\n s_cbranch_scc1 L_blk{sl}c\n s_sleep {OPT['slp']}\n s_branch L_blk{sl}a")
        a.label(f"L_blk{sl}c")
        ldP(14 + sl, range(4))
        a(f"s_branch L_join{sl}")
    two = lambda l_: ["\n".join(l_[k:k+2]) for k in range(0, len(l_), 2)]
    a(f"v_mov_b32 v{vPo}, 0")
    poll()
    at13 = {p: (lambda p=p: again(0, p)) for p in AG(0)}
    if OPT["f13"]: dstep(13, True, {0: [None] * 9 + two(chk(0))}, at13)
    else: dstep(13, False, at={(0, "ld"): lambda: a("\n".join(chk(0))), **at13})
    srd(rA, pB2, 2048); srd(rC, pOUT, 2048 * 2048)
    while pend: pend.pop(0)()
    join(0)
    stamp("g_hook")
    sc = lambda p: [f"v_pk_mul_f32 {vr(ACC2+32*p+16*h+4*nt+r,2)}, {vr(ACC2+32*p+16*h+4*nt+r,2)}, {vr(vGM+4*p+2*h,2)} op_sel_hi:[1,0]"
                    for nt in range(4) for h in range(2) for r in (0, 2)]
    for x in sc(0): a(x)
    vS0, vS1, vB2 = 3, 4, 18
    def wr(p, k):
        if OPT["nowr"]: return
        if p < 2: a.lg(f"ds_write_b128 v{vS0}, {vr(ACC2+32*p+4*k,4)} offset:{8192*p+1024*k}")
        else: a.lg(f"ds_write_b128 v{vS1}, {vr(ACC2+32*p+4*k,4)} offset:{16384*(k//4)+1024*(k%4)}")
    OWN = ACC2 + 96
    vRd = [5, 6, 16]; vTw = [11, 12, 13, 14]; vTr, vOo = 26, 27
    sc2 = lambda p: ["\n".join(f"v_mul_f32 v{ACC2+32*p+16*h+4*nt+r+u}, v{vGM+4*p+2*h}, v{ACC2+32*p+16*h+4*nt+r+u}" for u in range(2))
                     for nt in range(4) for h in range(2) for r in (0, 2)]
    extra = {(0, p): sc2(p + 1) for p in range(3)}
    two = lambda l_: ["\n".join(l_[k:k+2]) for k in range(0, len(l_), 2)]
    for D in (1, 2): extra[D, 0] = [None] * 8 + two(chk(D + 1)) + [poll]
    t_ = f"""s_lshl_b32 s{sT0}, s{sCB2}, 7
      v_lshlrev_b32 v16, 3, v2
      v_lshl_add_u32 v{vS0}, v0, 4, s{sMw}
      v_add_u32 v{vS1}, s{sDl}, v{vS0}""".split("\n")
    extra[1, 2] = [f"v_mov_b32 v17, {SYNC+12}", None, lambda: a.lg("ds_read_b32 v31, v17", "wa")] + [None] * 7 + [
        lambda: (a.wait(lg="wa"), a("v_cmp_gt_u32 vcc, 4, v31")), lambda: (a("s_cbranch_vccnz L_wa0"), a.label("L_wa_r"))]
    extra[1, 1] = t_ + [f"v_add_u32 v{vWR+nt}, s{sDl}, v{vWR+nt}" for nt in range(4)] + [lambda nt=nt: a.vm(f"buffer_load_dwordx2 {vr(vB2+2*nt,2)}, v16, s[{rA}:{rA+3}], s{sT0} offen offset:{32*nt}", "b2") for nt in range(4)]
    t_ = []
    for p in range(3):
        t_ += [f"s_sub_u32 s{sT1}, s{sW}, {p+1}\n s_and_b32 s{sT1}, s{sT1}, 3"]
        if p < 2: t_ += [f"s_lshl_b32 s{sT1}, s{sT1}, 14\n v_lshl_add_u32 v{vRd[p]}, v0, 4, s{sT1}"]
        else: t_ += [f"s_lshl_b32 s{sT1}, s{sT1}, 12\n s_add_u32 s{sT1}, s{sT1}, {QX}", f"v_lshl_add_u32 v{vRd[p]}, v0, 4, s{sT1}"]
    assert len(t_) == 7; rdadr = t_
    fm = []
    for nt in range(4):
        for r in range(2):
            fm += [f"v_lshlrev_b32 v{vTr}, 16, v{vB2+2*nt+r}\n v_and_b32 v{vTr+1}, 0xffff0000, v{vB2+2*nt+r}"]
            fm += ["\n".join(f"v_fmac_f32 v{OWN+16*h+4*nt+2*r+u}, v{vTr+u}, v{vGM+12+2*h}" for u in range(2)) for h in range(2)]
    extra[2, 0][4:6] = two([f"v_add_u32 v{vWR+nt}, 16384, v{vWR+nt}" for nt in range(4)])
    extra[2, 1] = rdadr + [None] + fm[:8]; extra[2, 2] = fm[8:]
    t_ = f"""s_lshl_b32 s{sT2}, s{sW}, 12
      s_add_u32 s{sT2}, s{sT2}, {KVR+16384}
      v_lshrrev_b32 v15, 3, v0
      v_and_b32 v17, 7, v0
      v_xor_b32 v{vTr}, v15, v17
      v_lshlrev_b32 v{vTr}, 4, v{vTr}
      v_lshl_add_u32 v{vTr}, v15, 7, v{vTr}
      v_add_u32 v{vTr}, s{sT2}, v{vTr}
      v_lshlrev_b32 v{vOo}, 4, v17
      v_lshl_add_u32 v{vOo}, v15, 11, v{vOo}
      v_and_b32 v15, 7, v1
      v_lshrrev_b32 v17, 1, v2
      v_xor_b32 v15, v15, v17
      v_lshlrev_b32 v15, 4, v15
      v_and_b32 v17, 1, v2
      v_lshl_add_u32 v15, v17, 3, v15
      v_lshl_add_u32 v15, v1, 7, v15
      v_add_u32 v{vTw[0]}, s{sT2}, v15
      v_xor_b32 v{vTw[1]}, 32, v{vTw[0]}
      v_xor_b32 v{vTw[2]}, 64, v{vTw[0]}
      v_xor_b32 v{vTw[3]}, 96, v{vTw[0]}
      s_lshl_b32 s{sT0}, s{sCB2}, 7
      s_lshl_b32 s{sT1}, s{sRB2}, 18
      s_add_u32 s{sT0}, s{sT0}, s{sT1}
      s_lshl_b32 s{sT1}, s{sW}, 16
      s_add_u32 s{sT0}, s{sT0}, s{sT1}""".split("\n")
    extra[3, 0] = ["\n".join(t_[2*k:2*k+2]) for k in range(13)]
    worder = [0, 4, 1, 5, 2, 6, 3, 7]
    for p in range(1, 4): extra[3, p] = [x for k in worder for x in (None, (lambda k=k, p=p: wr(p - 1, k)))]
    def rdp(p, k):
        a.lg(f"ds_read_b128 {vr(ACC2+32*p+4*k,4)}, v{vRd[p]} offset:{8192*p+1024*k if p < 2 else 16384*(k//4)+1024*(k%4)}", ("r", p // 2, k))
    x0 = extra[0, 0][10]; extra[0, 0][10] = lambda: (a(x0), a("\n".join(chk(1))), poll())
    a("s_nop 0")
    for D in range(4):
        if D: join(D)
        if D == 2: stamp("g_32")
        dstep(14 + D, True, {p: extra.get((D, p), []) for p in range(4)}, {p: (lambda p=p: again(D + 1, p)) for p in AG(D + 1)} if D < 3 else {})
    cm('sum of the four K quarters through LDS, bf16, whole-line stores')
    a.wait0(vm=False)
    stamp("g_36")
    a("s_barrier")
    stamp("g_bar")
    for k in range(4):
        for p in range(3): rdp(p, k)
    def st(g_):
        a.wait(lg=("u", g_ // 2, g_ % 2))
        a(f"buffer_store_dwordx4 {vr(HR+32+4*g_,4)}, v{vOo}, s[{rC}:{rC+3}], s{sT0} offen{['', ' sc1', ' nt'][OPT['osc']]}")
        if g_ < 3: a(f"s_add_u32 s{sT0}, s{sT0}, 16384")
    for k in range(8):
        a.wait(lg=("r", 1, k))
        if k < 4:
            for p in range(3): rdp(p, k + 4)
        for r in (0, 2): a(f"v_pk_add_f32 {vr(ACC2+4*k+r,2)}, {vr(ACC2+4*k+r,2)}, {vr(ACC2+32+4*k+r,2)}")
        for r in (0, 2): a(f"v_pk_add_f32 {vr(OWN+4*k+r,2)}, {vr(OWN+4*k+r,2)}, {vr(ACC2+64+4*k+r,2)}")
        for r in (0, 2): a(f"v_pk_add_f32 {vr(OWN+4*k+r,2)}, {vr(OWN+4*k+r,2)}, {vr(ACC2+4*k+r,2)}")
        T_ = HR + 2 * k
        a(f"v_cvt_pk_bf16_f32 v{T_}, v{OWN+4*k}, v{OWN+4*k+1}\n v_cvt_pk_bf16_f32 v{T_+1}, v{OWN+4*k+2}, v{OWN+4*k+3}")
        a.lg(f"ds_write_b64 v{vTw[k%4]}, {vr(HR+2*k,2)} offset:{2048*(k//4)}")
        if k % 4 == 3:
            for h in range(2): a.lg(f"ds_read_b128 {vr(HR+32+8*(k//4)+4*h,4)}, v{vTr} offset:{2048*(k//4)+1024*h}", ("u", k // 4, h))
    for g_ in range(4): st(g_)
    if OPT["ts"]: a.wait0(); stamp("g_end")
    if OPT["padto"]:
        a.label("L_pad")
        a(f"s_memrealtime s[98:99]\n s_waitcnt lgkmcnt(0)\n s_sub_u32 s98, s98, s96\n s_cmp_lt_u32 s98, {OPT['padto']}\n s_cbranch_scc1 L_pad")
    dump_ts_and_end()
    cm('out-of-line waits (all bounded) and loop hooks')
    for sl in range(4): late(sl)
    a.label("L_wa0")
    waitlds(12, 4, "L_wa", 31)
    a("s_branch L_wa_r")
    if OPT["pf2"]:
        a.label("L_hookF")
        a(f"v_lshlrev_b32 v15, {9 if OPT['loc2'] else 7}, v0\n buffer_load_dword v19, v15, s[{rPF}:{rPF+3}], s{sA} offen")
        if OPT["ev2"] and not OPT["loc2"]: a(f"s_add_u32 s{sA}, s{sA}, 8192\n buffer_load_dword v19, v15, s[{rPF}:{rPF+3}], s{sA} offen")
        a("s_branch L_hookF_r")
    a.label("L_hookW")
    a(f"s_cmp_eq_u32 s{sIT}, 4\n s_cbranch_scc1 L_hookQ")
    a(f"s_mov_b32 s{rB}, s{pWO}\n s_mov_b32 s{rB+1}, s{pWO+1}\n s_mov_b32 s{rB+2}, {1024*2048}\n s_lshl_b32 s{sWo}, s{sW}, 17\n s_add_u32 s{sWo}, s{sWo}, {GRP[0]*524288}\n s_branch L_hookW_r")
    a.label("L_hookQ")
    stamp("g_17")
    waitlds(0, 4, "L_wq")
    srd(rA, pWO, 1024 * 2048)
    a(f"s_lshl_b32 s{sT0}, s{sW}, 12\n s_add_u32 m0, s{sT0}, {QX}\n s_lshl_b32 s{sT0}, s{sW}, 17\n s_add_u32 s{sT0}, s{sT0}, 524288")
    for k in range(4): a(f"buffer_load_dwordx4 v{vWD+k}, s[{rA}:{rA+3}], s{sT0} offen offset:{1024*k} lds")
    a("s_branch L_hookW_r")

prologue()
section("g")
a.label("L_roleG")
g_phase1()
if OPT["stop"] == 1:
    stamp("g_bq"); g_hstore(); a.wait0(); stamp("g_hst"); dump_ts_and_end()
else:
    if OPT["wlate"]: g_hstore(); stamp("g_st")
    g2_setup()
    for i in range(4):
        for k in range(4): dmaW(i, k)
    if not OPT["wlate"]: g_hstore()
    g_phase2()
a_phase1()
if OPT["stop"] == 1:
    a(f"s_lshl_b32 s{sT0}, s{sW}, 12\n s_add_u32 s{sT1}, s{sT0}, {QX}\n v_lshl_add_u32 v16, v0, 4, s{sT1}")
    for i in range(4): a(f"ds_read_b128 {vr(32+4*i,4)}, v16 offset:{1024*i}")
    a(f"s_lshl_b32 s{sT1}, s{sRB}, 4\n s_add_u32 s{sT1}, s{sT1}, s{sCB}\n s_lshl_b32 s{sT1}, s{sT1}, 14\n s_add_u32 s{sT0}, s{sT0}, s{sT1}\n s_add_u32 s{sT0}, s{sT0}, {QD_OFF}")
    a.wait0()
    for i in range(4): a(f"buffer_store_dwordx4 {vr(32+4*i,4)}, v{vKVD}, s[{rWS}:{rWS+3}], s{sT0} offen offset:{1024*i}")
    dump_ts_and_end()
else:
    stamp("a_bq")
    attention()
a.label("L_exit")
a("s_endpgm")
a.label("L_codeend")

HDR = open("cdna_kernels/" + KNAME[:-7] + ".s.ref").read().split("; Override launch")[0]
HDR += """; One persistent launch, 256 workgroups of 8 waves, one per CU (generated by a script of the author's own).
"""
text = HDR + f"; @launch grid=(256,1,1) block=(512,1,1) lds={LDS_BYTES}\n"
text += f'.amdgcn_target "amdgcn-amd-amdhsa--gfx950"\n.text\n.globl {KNAME}\n.p2align 8\n.type {KNAME},@function\n{KNAME}:\n'
a.out = SEC['head'] + SEC['st'] + SEC['st0'] + SEC['st2'] + SEC['g'] + SEC['main']
body = a.text()
nbad = check(body)
text += body
text += f""".section .rodata,"a"
.p2align 6
.amdhsa_kernel {KNAME}
  .amdhsa_next_free_vgpr 256
  .amdhsa_next_free_sgpr 102
  .amdhsa_accum_offset 256
  .amdhsa_group_segment_fixed_size 0
  .amdhsa_kernarg_size 112
  .amdhsa_user_sgpr_count 2
  .amdhsa_user_sgpr_kernarg_segment_ptr 1
  .amdhsa_system_sgpr_workgroup_id_x 1
.end_amdhsa_kernel
"""
open(sys.argv[1], "w").write(text)
if nbad: sys.exit(f"{nbad} hazards")
```

```python
import sys, math
from asmlib import *

KNAME = "gated_mix__grouped_kv_mqa__dense_activation_squared_relu__prompt_kernel"
OPT = dict(stop=0, ts=0, pd=8, forceslow=0, nodma=0, nokv=0, nopf=0, nords=0, lead=7, pfnt=0, far=99, pf2=1, pf2b=2, gprio=2, nog2=0, g2nold=0, anodma=0, g2prio=0, dbgts=0, slp=2, th=0, farw2=1, hglob=1, arrk=0, wlate=1, map2=5, steps=0, kvskip='', pause=99, pcnt=64, grp=1, osc=1, padto=0, st2=0, spos=0, hfirst=2, p0prio=3, d0prio=1, xlate=0, ring=6, h3prio=1, hfl='sc1', wfl='', xfl='', padat='', xm=1, p0late=1, p0lo=0, kvreg=2, lowv=1, noo=0, nopk=1, tgrp=1, nowo=0, noack=0, qsw=1, evn=0, evk=1, ev2=1, ng=8, par='SSSS', lut=0, pw=128, pb=0, g32=0, dyn=0, chain=1, row4=0, skiprd=0, gdma=0, dpos=0, nohst=0, xa=3, w1pre=0, peven=0, xr=99, fpre=4, clrf=1, wpre=2, hold='xcfcf', gpo='', pexact=1, epos=68, mpos=32, loc2=1, woit=2, snake=1, gp='x1111', g2f=1, ebar=0, c2x=1, pfl='sc1', sfl='sc1', nowr=0, pat='eeeeeeeq0ccr1esccteu2evexweyccS4e5eeecc')
for a_ in sys.argv[2:]:
    k, v = a_.split("="); OPT[k] = int(v) if v.lstrip('-').isdigit() else v

GRP = [2, 0, 1, 3] if OPT['g2f'] else [0, 2, 1, 3]
RBSZ = 144 * 8192
KV_OFF = 0x1200000; G_OFF = 0x1240000; KF_OFF = 0x1244000; FL_OFF = 0x1248000; WS_USED = 0x1268000
QD_OFF = 0x1400000; TS_OFF = 0x1800000
WS_SIZE = 0x2000000 if (OPT["stop"] or OPT["ts"]) else WS_USED
OOB = 0x40000000
W1R = 0; W1S = 14336
WQR = 57344; WQS = 4096
XR = 73728; XS = 16384
KVST = 122880
SYNC = 155648
GT = SYNC + 512
LDS_BYTES = GT + 2048
QX = XR
KVR = 90112
pX, pWQ, pWK, pWV, pWO, pW1, pB1, pW2, pB2, pGATE, pOUT, pDBG, pWS = 4, 6, 8, 10, 12, 16, 18, 20, 22, 24, 26, 28, 30
rA, rB, rC, rD, rWS, rDBG, rPF, rE = 32, 36, 40, 44, 48, 52, 56, 60
sRB, sCB, sRB2, sCB2, sI, sW = 64, 65, 66, 67, 68, 69
sT0, sT1, sT2, sT3, sT4, sT5 = 70, 71, 72, 73, 74, 75
sIT, sA, sB, sC, sD, sE, sF, sG = 76, 77, 78, 79, 80, 81, 82, 83
sTS = 84
sPOS = 101
sQB = 100
SPIN_MAX = 1 << 18

a = Asm()
SEC = {}
def cm(t):
    for l in t.strip().split('\n'): a.raw('  ; ' + l.strip())
def section(n):
    a.out = SEC.setdefault(n, [])
section("head")
def kwait():
    a("s_waitcnt lgkmcnt(0)"); stamp("kw"); srd(rWS, pWS, WS_SIZE)
def srd(r, p, size):
    a(f"s_mov_b32 s{r}, s{p}\n s_mov_b32 s{r+1}, s{p+1}\n s_mov_b32 s{r+2}, {size}\n s_mov_b32 s{r+3}, 0x20000")
nts = [0]
STAMPS = {1: dict(g_b0=1, g_end1=2, g_bq=3, g_hst=4, g_pre=5, a_set=1, a_w0=2, a_8=3, a_16=4, a_24=5),
          0: dict(g_end1=1, g_flag=2, g_l2=3, g_hook=4, g_end=5, a_b0=1, a_16=2, a_bq=3, a_att=4, a_end=5)}[OPT["stop"]]
if OPT["st2"] == 1: STAMPS.update(g_end1=0, g_flag=0, g_l2=1, g_17=2, g_25=3)
if OPT["st2"] == 3: STAMPS = dict(kw=1, g_pre=2, g_bias=3, g_rdy=4, g_b0=5, a_iss=2, a_set=3, a_w0=4, a_b0=5)
if OPT["st2"] == 4: STAMPS.update(g_end1=0, g_st=1, g_flag=2, g_pw=3, g_wf=4, g_l2=0, g_s0=5, g_hook=0, g_end=0)
if OPT["st2"] == 2: STAMPS.update(g_end1=0, g_flag=0, g_l2=0, g_hook=1, g_32=2, g_36=3, g_bar=4)
def stamp(n):
    if n == OPT["padat"]: a("s_memrealtime s[96:97]"); a.wait0(vm=False)
    i = STAMPS.get(n)
    if OPT["ts"] and i:
        a(f"{'s_memrealtime' if OPT['ts'] == 2 else 's_memtime'} s[{sTS+2*i}:{sTS+2*i+1}]"); a.wait0(vm=False)
def mf16(d, x, y, c=None):
    a(f"v_mfma_f32_16x16x32_bf16 {vr(d,4)}, {vr(x,4)}, {vr(y,4)}, {vr(d,4) if c is None else c}")
def mf32(d, x, y, c=None):
    a(f"v_mfma_f32_32x32x16_bf16 {vr(d,16)}, {vr(x,4)}, {vr(y,4)}, {vr(d,16) if c is None else c}")
def dump_ts_and_end():
    if OPT["ts"]:
        a("s_memrealtime s[98:99]"); a.wait0()
        if OPT["dbgts"]:
            l = a.newlabel("L_nots")
            srd(rDBG, pDBG, 256)
            a(f"s_cmp_lg_u32 s2, 100\n s_cbranch_scc1 {l}\n s_cmp_lg_u32 s{sW}, 0\n s_cbranch_scc1 {l}")
            for i, k in enumerate((1, 2, 3, 4, 5, 7)): a(f"s_sub_u32 s{sT0}, s{sTS+2*k}, s96\n v_mov_b32 v{8+i}, s{sT0}")
            a(f"s_lshl_b32 s{sT0}, s3, 3\n s_add_u32 s{sT0}, s{sT0}, 8\n v_mov_b32 v2, 0\n s_mov_b64 exec, 1")
            a(f"buffer_store_dwordx2 v[8:9], v2, s[{rDBG}:{rDBG+3}], s{sT0} offen")
            a(f"buffer_store_dwordx4 v[10:13], v2, s[{rDBG}:{rDBG+3}], s{sT0} offen offset:8")
            a.label(l)
        else:
            for i in range(8): a(f"v_mov_b32 v{8+i}, s{sTS+2*i}")
            a(f"s_lshl_b32 s{sT0}, s2, 8\n s_lshl_b32 s{sT1}, s3, 5\n s_add_u32 s{sT0}, s{sT0}, s{sT1}\n s_add_u32 s{sT0}, s{sT0}, {TS_OFF}")
            a(f"v_mov_b32 v2, 0\n s_mov_b64 exec, 1")
            a(f"buffer_store_dwordx4 v[8:11], v2, s[{rWS}:{rWS+3}], s{sT0} offen")
            a(f"buffer_store_dwordx4 v[12:15], v2, s[{rWS}:{rWS+3}], s{sT0} offen offset:16")
    a("s_endpgm")

def prologue():
    m = OPT["map2"]
    lx, lc = {0: (1, 3), 2: (1, 3), 3: (2, 2), 4: (0, 4), 5: (2, 2)}[m]
    MAP2 = f"""s_lshr_b32 s{sT1}, s{sT0}, {lx}
      s_lshl_b32 s{sT1}, s{sT1}, {5-lc}
      s_lshr_b32 s{sT2}, s{sI}, {lc}
      s_add_u32 s{sRB2}, s{sT1}, s{sT2}
      s_and_b32 s{sT1}, s{sT0}, {(1<<lx)-1}
      s_and_b32 s{sT2}, s{sI}, {(1<<lc)-1}
      s_lshl_b32 s{sT2 if m in (2, 5) else sT1}, s{sT2 if m in (2, 5) else sT1}, {lx if m in (2, 5) else lc}
      s_add_u32 s{sCB2}, s{sT1}, s{sT2}
      s_xor_b32 s{sCB2}, s{sCB2}, {OPT["c2x"]}
      s_mov_b32 s{sPOS}, s{sCB}"""
    ident = list(range(16))
    LUTS = {0: (ident, [0, 1, 3, 2] + ident[4:]),
            1: ([0, 1, 3, 5, 2, 4, 6, 8, 7, 10, 12, 14, 9, 11, 13, 15], [0, 1, 2, 9, 4, 5, 6, 7, 8, 3, 10, 11, 12, 13, 14, 15]),
            2: ([0, 1, 3, 5, 2, 4, 6, 8, 7, 10, 12, 14, 9, 11, 13, 15], [0, 1, 2, 4, 3, 5, 11, 7, 8, 9, 10, 6, 12, 13, 14, 15]),
            3: ([0, 1, 3, 5, 7, 4, 10, 8, 12, 2, 14, 6, 9, 11, 13, 15], [0, 1, 2, 9, 4, 5, 6, 7, 8, 3, 10, 11, 12, 13, 14, 15])}[OPT["lut"]]
    for reg, tab in zip((sCB, sQB), LUTS):
        assert sorted(tab) == ident
        if tab == ident: continue
        w = sum(v << (4 * k) for k, v in enumerate(tab))
        MAP2 += f"""
          s_mov_b32 s{sT2}, {hex(w & 0xffffffff)}
          s_mov_b32 s{sT3}, {hex(w >> 32)}
          s_lshl_b32 s{sT1}, s{sPOS}, 2
          s_lshr_b64 s[{sT2}:{sT3}], s[{sT2}:{sT3}], s{sT1}
          s_and_b32 s{reg}, s{sT2}, 15"""
    cm('entry: workgroup -> (row block, column blocks); waves 0-3 take the matrix role G, waves 4-7 the loader / attention role A')
    a("s_cmp_ge_u32 s2, 256\n s_cbranch_scc1 L_exit")
    a("s_load_dwordx16 s[4:19], s[0:1], 0\n s_load_dwordx8 s[20:27], s[0:1], 64\n s_load_dwordx4 s[28:31], s[0:1], 96")
    if OPT["ts"] or OPT["th"] or OPT["padto"]:
        a(f"s_memtime s[{sTS}:{sTS+1}]\n s_memrealtime s[96:97]")
    a(f"""v_lshrrev_b32 v1, 6, v0
      v_and_b32 v0, 63, v0
      v_readfirstlane_b32 s3, v1
      s_lshr_b32 s{sI}, s2, 3
      s_and_b32 s{sT0}, s2, 7
      s_lshr_b32 s{sT1}, s{sT0}, 2
      s_lshl_b32 s{sT1}, s{sT1}, 3
      s_lshr_b32 s{sT2}, s{sI}, 2
      s_add_u32 s{sRB}, s{sT1}, s{sT2}
      s_and_b32 s{sT1}, s{sT0}, 3
      s_lshl_b32 s{sT1}, s{sT1}, 2
      s_and_b32 s{sT2}, s{sI}, 3
      s_add_u32 s{sCB}, s{sT1}, s{sT2}
      {MAP2}
      s_and_b32 s{sW}, s3, 3
      v_and_b32 v1, 15, v0
      v_lshrrev_b32 v2, 4, v0""")
    a("s_cmp_lt_u32 s3, 4\n s_cbranch_scc1 L_roleG\n s_setprio 1")

ACC1 = 112
acc1 = lambda ft, rt: ACC1 + (ft * 4 + rt) * 4
XF = [48, 80]; WRING = 24
vX = [16, 17]; vW1 = [18, 19]; vWq = [20, 21]; vLP, vJ, vQW = 15, 70, 64
def g_phase1():
    PD = OPT["pd"]
    sRG, sCG = sA, sB
    sXo, sPo, sPe, sPd = sC, sD, sE, sF
    a(f"s_and_b32 s{sRG}, s{sW}, 1\n s_lshr_b32 s{sCG}, s{sW}, 1")
    cm('G, phase 1: [Q | FFN hidden] tile = x[128 rows] * [Wq 64 cols | W1 224 cols], accumulators start from the bias')
    a(f"""s_cmp_lt_u32 s{sW}, 2
      s_cbranch_scc0 L_nocode
      s_getpc_b64 s[{rE}:{rE+1}]""")
    a.label("L_pc")
    a(f"""s_mov_b32 s{rE+2}, L_codeend-L_pc
      s_mov_b32 s{rE+3}, 0x20000
      s_lshl_b32 s{sT1}, s{sI}, 10
      s_lshl_b32 s{sT2}, s{sW}, 15
      s_add_u32 s{sT1}, s{sT1}, s{sT2}
      v_lshlrev_b32 v29, 7, v0
      s_mov_b64 exec, 0xff
      buffer_load_dword v{vJ}, v29, s[{rE}:{rE+3}], s{sT1} offen
      s_mov_b64 exec, -1""")
    a.label("L_nocode")
    a(f"""s_mul_i32 s{sT0}, s{sCB}, 448
      s_mul_i32 s{sT1}, s{sCG}, 224
      s_add_u32 s{sT0}, s{sT0}, s{sT1}
      v_lshlrev_b32 v14, 2, v0
      s_mov_b32 s{rA+2}, 7168
      s_mov_b32 s{rA+3}, 0x20000
      s_setprio 3
      s_waitcnt lgkmcnt(0)
      s_mov_b32 s{rA}, s{pB1}
      s_mov_b32 s{rA+1}, s{pB1+1}
      buffer_load_dword v33, v14, s[{rA}:{rA+3}], s{sT0} offen
      s_setprio 0""")
    kwait()
    for r in range(0, 32, 2): a(f"v_mov_b64 {vr(ACC1+r,2)}, 0")
    a(f"""v_lshrrev_b32 v14, 1, v1
      v_xor_b32 v14, v14, v2
      v_lshlrev_b32 v14, 4, v14
      v_lshl_add_u32 v14, v1, 7, v14
      s_lshl_b32 s{sT0}, s{sRG}, 13
      s_add_u32 s{sT0}, s{sT0}, {XR}
      v_add_u32 v{vX[0]}, s{sT0}, v14
      v_xor_b32 v{vX[1]}, 64, v{vX[0]}
      s_mov_b32 s{sXo}, 0
      v_lshrrev_b32 v14, 2, v1
      v_lshl_add_u32 v14, v2, 3, v14
      v_and_b32 v29, 3, v1
      v_lshlrev_b32 v29, 3, v29
      v_mul_u32_u24 v30, 448, v14
      v_add_u32 v30, v30, v29
      s_mul_i32 s{sT0}, s{sCG}, 224
      v_add_u32 v30, s{sT0}, v30
      v_and_b32 v31, 1, v2
      v_lshlrev_b32 v32, 5, v31
      s_lshl_b32 s{sT1}, s{sCG}, 1
      s_sub_u32 s{sT1}, 1, s{sT1}
      v_mul_lo_u32 v32, v32, s{sT1}
      v_add_u32 v{vW1[0]}, v30, v32
      v_sub_u32 v{vW1[1]}, v30, v32
      v_lshrrev_b32 v32, 3, v1
      v_lshl_add_u32 v31, v32, 1, v31
      s_lshl_b32 s{sT0}, s{sCG}, 1
      v_xor_b32 v31, s{sT0}, v31
      v_lshl_add_u32 v29, v31, 5, v29
      v_lshl_add_u32 v29, v14, 7, v29
      v_add_u32 v{vWq[0]}, {WQR}, v29
      v_xor_b32 v{vWq[1]}, 32, v{vWq[0]}""")
    if not OPT["stop"]: g2_vsetup()
    a(f"""v_and_b32 v28, 1, v2
      v_lshlrev_b32 v28, 10, v28
      v_lshrrev_b32 v29, 1, v2
      v_lshl_add_u32 v28, v29, 8, v28
      v_lshl_add_u32 v{vLP}, v1, 4, v28""")
    a(f"v_mov_b32 v30, {SYNC}\n ds_write_b128 v30, v[{ACC1}:{ACC1+3}]\n v_lshlrev_b32 v29, 3, v2")
    stamp("g_pre")
    a.wait0()
    stamp("g_bias")
    for k in range(14): a.lg(f"ds_bpermute_b32 v{48+k}, v29, v33 offset:{32*(k//2)+4*(k%2)}", ("b", k // 2))
    for ft in range(7):
        d = acc1(2 + ft, 0)
        a.wait(lg=("b", ft))
        a(f"v_lshlrev_b32 v{d}, 16, v{48+2*ft}\n v_and_b32 v{d+1}, 0xffff0000, v{48+2*ft}")
        a(f"v_lshlrev_b32 v{d+2}, 16, v{49+2*ft}\n v_and_b32 v{d+3}, 0xffff0000, v{49+2*ft}")
        for rt in range(1, 4): a(f"v_mov_b64 {vr(d+4*rt,2)}, {vr(d,2)}\n v_mov_b64 {vr(d+4*rt+2,2)}, {vr(d+2,2)}")
    def rdW(g, n):
        u, ft = divmod(g, 9); kk, e = divmod(n, 2); d = WRING + 8 * (g % 3) + 2 * n; sl = 2 * (u % 2) + kk
        if ft < 2: a.lg(f"ds_read_b64_tr_b16 {vr(d,2)}, v{vWq[ft]} offset:{sl*WQS + e*512}", ("W", g))
        else: a.lg(f"ds_read_b64_tr_b16 {vr(d,2)}, v{vW1[ft%2]} offset:{sl*W1S + e*1792 + (ft-2)*32}", ("W", g))
    def rdX(u, n):
        rt, kk = divmod(n, 2)
        a.lg(f"ds_read_b128 {vr(XF[u%2]+16*kk+4*rt,4)}, v{vX[kk]} offset:{rt*2048}", ("X", u))
    def block(u, plan):
        for ft in range(9):
            g = 9 * u + ft
            a.wait(lg=[("W", g), ("X", u)] if ft == 0 else ("W", g))
            for n in range(8):
                rt = 3 - n // 2 if ft % 2 else n // 2
                kk = (n + 1) // 2 % 2
                mf16(acc1(ft, rt), WRING + 8 * (g % 3) + 4 * kk, XF[u % 2] + 16 * kk + 4 * rt)
                if n < 4 and g + 2 < 144: rdW(g + 2, n)
                x = plan.get(8 * ft + n)
                if callable(x): x()
                elif x: a(x)
    a(f"s_mov_b32 s{sIT}, 0")
    stamp("g_rdy")
    a("s_barrier")
    stamp("g_b0")
    for n in range(4): rdW(0, n)
    for n in range(8): rdX(0, n)
    for n in range(4): rdW(1, n)
    a.raw(".p2align 3")
    cm('16 k-blocks of 64; operands come from LDS rings that the A waves fill, two barriers per block')
    a.label("L_g1loop")
    def body(it):
        for b in range(2):
            u = 2 * it + b
            plan = {12: f"s_add_u32 s{sXo}, s{sXo}, 1\n s_cmp_eq_u32 s{sXo}, 3", 13: f"s_cselect_b32 s{sXo}, 0, s{sXo}\n s_cselect_b32 s{sT0}, {3*XS}, 0",
                    14: f"s_sub_u32 s{sT0}, {XS}, s{sT0}", 20: f"v_add_u32 v{vX[0]}, s{sT0}, v{vX[0]}", 21: f"v_add_u32 v{vX[1]}, s{sT0}, v{vX[1]}",
                    OPT["mpos"]: "s_barrier", OPT["epos"]: "s_barrier"}
            free = [p for p in range(OPT["mpos"] + 1, 64) if 4 <= p % 8 < 7]
            for n in range(8): plan[free[n]] = lambda n=n: rdX(u + 1, n)
            assert 64 <= OPT["epos"] <= 68 and 22 <= OPT["mpos"] <= 36
            if b == 0: plan[69] = f"s_add_u32 s{sIT}, s{sIT}, 1"; plan[70] = f"s_cmp_eq_u32 s{sIT}, 8"
            block(u, plan)
            if b == 0:
                a("s_cbranch_scc1 L_g1last"); snap[:] = [(k_, v_ + (14 - u) * (9 if k_ == "W" else 1)) for k_, v_ in a.lgq]
        a("s_branch L_g1loop")
    snap = []
    a.loop(body, "g1")
    cm('last k-block; Q goes to the attention waves through LDS')
    a.label("L_g1last")
    a.lgq[:] = snap
    cq = lambda s_, rt: f"v_cvt_pk_bf16_f32 v{48+4*rt+2*s_}, v{acc1(s_,rt)}, v{acc1(s_,rt)+1}\n v_cvt_pk_bf16_f32 v{49+4*rt+2*s_}, v{acc1(s_,rt)+2}, v{acc1(s_,rt)+3}"
    wq = lambda rt: lambda: a.lg(f"ds_write_b128 v{vQW}, {vr(48+4*rt,4)} offset:{(rt//2)*4096 + (rt%2)*1024}")
    plan = {4: f"s_lshl_b32 s{sT2}, s{sRG}, 13\n s_lshl_b32 s{sT3}, s{sCG}, 11", 5: f"s_add_u32 s{sT2}, s{sT2}, s{sT3}\n s_add_u32 s{sT2}, s{sT2}, {QX}",
            6: f"v_lshl_add_u32 v{vQW}, v0, 4, s{sT2}", 20: cq(0, 0), 21: cq(0, 1), 22: cq(0, 2), 28: cq(0, 3), 29: cq(1, 3), 30: cq(1, 2),
            36: cq(1, 1), 37: cq(1, 0), 38: "s_barrier",
            44: wq(0), 46: wq(1), 52: wq(2), 54: wq(3),
            61: lambda: (a.wait0(vm=False), a(f"s_setprio {OPT['gprio']}\n s_barrier"))}
    block(15, plan)
    stamp("g_end1")
def g_hstore(lo=0, hi=7):
    sRG, sCG = sA, sB
    sT0, sT1, sT2, sT3 = sT4, sT5, sF, sG
    if lo == 0: a(f"""s_mul_i32 s{sT0}, s{sRB}, {RBSZ}
      s_mul_i32 s{sT1}, s{sCB}, {7*8192}
      s_add_u32 s{sT0}, s{sT0}, s{sT1}
      s_lshl_b32 s{sT1}, s{sRG}, 12
      s_add_u32 s{sT0}, s{sT0}, s{sT1}
      s_mul_i32 s{sT1}, s{sCG}, {3*8192+512}
      s_add_u32 s{sT0}, s{sT0}, s{sT1}
      s_mul_i32 s{sT2}, s{sCG}, {8192-1024}
      s_add_u32 s{sT2}, s{sT2}, 512
      s_sub_u32 s{sT3}, 8192, s{sT2}""")
    cm('hidden = relu(h)^2 as bf16, write-through to the workspace in MFMA operand order')
    k = 0
    for ft in range(lo, hi):
        for p in range(2):
            T = 48 + 4 * (k % 4); k += 1
            if OPT["nohst"] == 2: continue
            for h in range(2):
                d = acc1(2 + ft, 2 * p + h)
                for r in range(4): a(f"v_max_f32 v{d+r}, 0, v{d+r}")
                if OPT["nopk"] > 1: a("\n".join(f"v_mul_f32 v{d+r}, v{d+r}, v{d+r}" for r in range(4)))
                else: a(f"v_pk_mul_f32 {vr(d,2)}, {vr(d,2)}, {vr(d,2)}\n v_pk_mul_f32 {vr(d+2,2)}, {vr(d+2,2)}, {vr(d+2,2)}")
                a(f"v_cvt_pk_bf16_f32 v{T+2*h}, v{d}, v{d+1}\n v_cvt_pk_bf16_f32 v{T+2*h+1}, v{d+2}, v{d+3}")
            a(f"s_nop 1\n v_permlane16_swap_b32 v{T}, v{T+2}\n v_permlane16_swap_b32 v{T+1}, v{T+3}")
            if not OPT["nohst"]: a.vm(f"buffer_store_dwordx4 {vr(T,4)}, v{vLP}, s[{rWS}:{rWS+3}], s{sT0} offen offset:{p*2048} sc1", "hst")
        a(f"s_add_u32 s{sT0}, s{sT0}, s{sT2 if ft % 2 == 0 else sT3}")

vO = 3
vKX, vKG, vKW, vKT0, vKVD, vKR = 140, 12, 13, 24, 15, 142
KVREG = 208; vG = 253
KXF, KGF, KWF, KAC = 32, 64, 96, 128
def a_phase1():
    sISV, sR0, sSTG, sM, sSo, sSx, sGrp = sA, sB, sC, sD, sE, sF, sG
    NT = " nt" if OPT["pfnt"] else ""
    LEAD = OPT["lead"]
    vXo, vQo, vP = 144, 148, 150
    sSq, sMx, sMq, sPo, sPm = 14, 15, 18, 19, 22
    section("st")
    cm('A, phase 1 start-up: every wave brings 16 rows of W1 / Wq and 32 rows of x per k-block; wave 7 also warms caches and handles the flags')
    a(f"""v_lshrrev_b32 v16, 3, v0
      v_lshlrev_b32 v16, 11, v16
      v_and_b32 v17, 7, v0
      v_xor_b32 v18, v17, v2
      v_lshl_add_u32 v18, v18, 4, v16
      v_and_b32 v20, 1, v2
      v_lshlrev_b32 v20, 2, v20
      v_xor_b32 v20, v20, v17
      v_lshl_add_u32 v{vQo}, v20, 4, v16
      v_xor_b32 v19, 32, v{vQo}
      v_add_u32 v{vQo+1}, {16384-1024}, v19
      s_lshl2_add_u32 s{sSx}, s{sRB}, s{sW}
      s_lshl_b32 s{sSx}, s{sSx}, 16""")
    for i in range(4): a(f"v_xor_b32 v19, {64*(i%2)}, v18\n v_add_u32 v{vXo+i}, {i*16384 - i*1024}, v19")
    a(f"s_mul_i32 s{sT0}, s{sW}, {16*7168}\n s_mul_i32 s{sT1}, s{sCB}, 448\n s_add_u32 s{sSo}, s{sT0}, s{sT1}")
    a(f"s_mul_i32 s{sM}, s{sW}, 7168\n s_movk_i32 s{sT2}, {7168-448}")
    def w1off(i):
        a(f"""v_add_u32 v16, {64*i}, v0
          v_mul_u32_u24 v17, 2341, v16
          v_lshrrev_b32 v17, 16, v17
          v_bfe_u32 v18, v17, 3, 1
          v_lshlrev_b32 v18, 1, v18
          v_xor_b32 v16, v16, v18
          v_lshlrev_b32 v16, 4, v16
          v_mad_u32_u24 v{vO+i}, v17, s{sT2}, v16""")
        if i % 4: a(f"v_subrev_u32 v{vO+i}, {1024*(i%4)}, v{vO+i}")
    for i in range(2): w1off(i)
    kwait(); srd(rA, pX, 2048 * 2048); srd(rPF, pWQ, 1024 * 2048); srd(rB, pW1, 1024 * 7168)
    a(f"""s_lshl_b32 s{sMx}, s{sW}, 12
      s_lshl_b32 s{sMq}, s{sW}, 11
      s_lshl_b32 s{sSq}, s{sW}, 15
      s_lshl_b32 s{sT0}, s{sQB}, 7
      s_add_u32 s{sSq}, s{sSq}, s{sT0}""")
    trickle = []
    def trk(all_=False):
        while trickle:
            for t_ in trickle.pop(0): a.label(t_[:-1]) if t_.endswith(":") else a.lg(t_)
            if not all_: break
    def ldW(u, m=None):
        for i in range(7):
            if i == 4 and m: m()
            if u == 0 and i >= 2: w1off(i)
            if i % 4 == 0: a(f"s_add_u32 m0, s{sM}, {(u%2)*2*W1S + i*1024}\n s_nop 0")
            a.vm(f"buffer_load_dwordx4 v{vO+i}, s[{rB}:{rB+3}], s{sSo} offen offset:{1024*(i%4)} lds", ("W", u)); trk()
        a(f"s_add_u32 s{sSo}, s{sSo}, {64*7168}")
    def ldQ(u):
        a(f"s_add_u32 m0, s{sMq}, {WQR + (u%2)*2*WQS}\n s_nop 0")
        for i in range(2):
            a.vm(f"buffer_load_dwordx4 v{vQo+i}, s[{rPF}:{rPF+3}], s{sSq} offen offset:{1024*i} lds", ("Q", u)); trk()
        a(f"s_add_u32 s{sSq}, s{sSq}, 131072")
    def ldX(u):
        a(f"s_add_u32 m0, s{sMx}, {XR + (u%3)*XS}\n s_nop 0")
        for i in range(4):
            a.vm(f"buffer_load_dwordx4 v{vXo+i}, s[{rA}:{rA+3}], s{sSx} offen offset:{1024*i} lds", ("X", u)); trk()
        a(f"s_add_u32 s{sSx}, s{sSx}, 128")
    plainwait = a.wait
    def pwait(vm=(), lg=()):
        tags = vm if isinstance(vm, list) else [vm]
        idx = max([k for k, x in enumerate(a.vmq) if x in tags], default=-1)
        isP = lambda x: isinstance(x, tuple) and x[0] == "P"
        rest = a.vmq[idx + 1:]
        if idx < 0 or not any(map(isP, rest)): return plainwait(vm, lg)
        assert lg == ()
        n0 = sum(not isP(x) for x in rest); l = a.newlabel("L_pw")
        for g_ in sorted({x[1] for x in rest if isP(x)}) if OPT["pexact"] else []:
            l2 = a.newlabel("L_pw")
            a(f"s_cmp_lg_u32 s{sGrp}, {g_}\n s_cbranch_scc1 {l2}\n s_waitcnt vmcnt({n0 + rest.count(('P', g_))})\n s_branch {l}")
            a.label(l2)
        a(f"s_waitcnt vmcnt({n0})"); a.label(l)
        a.vmq[:] = rest
    a.wait = pwait
    a.vmq.clear(); a.lgq.clear()
    ldX(0); ldQ(0); ldW(0)
    a(f"s_cmp_eq_u32 s{sW}, 3\n s_cbranch_scc1 L_st2")
    q0 = list(a.vmq)
    for path in (0, 2):
        section(f"st{path}")
        a.label(f"L_st{path}")
        a.vmq[:] = q0; a.lgq.clear()
        pfs = lambda t: None
        if path == 0: pass
        else:
            assert OPT["lut"] == 0
            a(f"""s_and_b32 s{sGrp}, s{sI}, 7
              s_lshl_b32 s{sT0}, s{sGrp}, 5
              s_and_b32 s{sT1}, s2, 4
              s_lshl2_add_u32 s{sT0}, s{sT1}, s{sT0}
              s_lshr_b32 s{sT1}, s{sI}, 3
              s_lshl2_add_u32 s{sT0}, s{sT1}, s{sT0}
              s_and_b32 s{sT1}, s2, 3
              s_mul_i32 s{sPo}, s{sT0}, 7168
              s_mul_i32 s{sT2}, s{sT1}, 1792
              s_add_u32 s{sPo}, s{sPo}, s{sT2}
              s_lshl2_add_u32 s{sPm}, s{sT0}, s{sT1}
              s_lshl_b32 s{sPm}, s{sPm}, 9
              s_and_b32 s{sT1}, s2, 7
              s_lshl_b32 s{sT1}, s{sT1}, 5
              s_add_u32 s{sT1}, s{sT1}, s{sI}
              s_lshl_b32 s{sIT}, s{sT1}, 14
              v_lshrrev_b32 v16, 3, v0
              v_lshlrev_b32 v16, 11, v16
              v_and_b32 v17, 7, v0
              v_lshl_add_u32 v{vP+0}, v17, 7, v16
              v_lshlrev_b32 v{vP+1}, 7, v0
              v_mul_u32_u24 v16, 7168, v2
              v_lshl_add_u32 v{vP+2}, v1, 7, v16
              v_lshrrev_b32 v16, 2, v0
              v_and_b32 v17, 3, v0
              v_lshlrev_b32 v17, 7, v17
              v_lshl_add_u32 v{vP+3}, v16, 11, v17""")
            def pfW(so, sm, vm):
                a("s_mov_b32 exec_lo, 0x3fff3fff\n s_mov_b32 exec_hi, 0x3fff3fff")
                vm(f"buffer_load_dword v250, v{vP+2}, s[{rB}:{rB+3}], s{so} offen{NT}")
                a("s_mov_b64 exec, 0xffff")
                vm(f"buffer_load_dword v250, v{vP+3}, s[{rPF}:{rPF+3}], s{sm} offen{NT}")
                a("s_mov_b64 exec, -1")
            def p0():
                if OPT["nopf"]: return
                a(f"s_mov_b32 exec_lo, 0x0f0f0f0f\n s_mov_b32 exec_hi, 0x0f0f0f0f")
                a.vm(f"buffer_load_dword v250, v{vP+0}, s[{rA}:{rA+3}], s{sIT} offen{NT}")
                a(f"""s_cmp_lt_u32 s{sGrp}, {LEAD}
                  s_cselect_b32 s{sT0}, s{sPo}, {OOB}
                  s_cselect_b32 s{sT1}, s{sPm}, {OOB}""")
                pfW(sT0, sT1, a.vm)
                a(f"""s_cselect_b32 s{sT0}, {256*7168}, 0
                  s_cselect_b32 s{sT1}, {256*2048}, 0
                  s_add_u32 s{sPo}, s{sPo}, s{sT0}
                  s_add_u32 s{sPm}, s{sPm}, s{sT1}
                  s_and_b32 s{sIT}, s{sIT}, {31 << 17}
                  v_lshrrev_b32 v16, 1, v0
                  v_and_b32 v17, 1, v0
                  v_lshlrev_b32 v17, 7, v17
                  v_lshl_add_u32 v{vP+0}, v16, 11, v17""")
            def pfs(t):
                if OPT["nopf"]: return
                if t + LEAD < 32:
                    l = a.newlabel("L_np")
                    a(f"s_cmp_lg_u32 s{sGrp}, {(t+LEAD)%8}\n s_cbranch_scc1 {l}")
                    pv_ = lambda x: a.vm(x, ("P", (t + LEAD) % 8))
                    pfW(sPo, sPm, pv_)
                    a(f"s_add_u32 s{sPo}, s{sPo}, {256*7168}\n s_add_u32 s{sPm}, s{sPm}, {256*2048}")
                    if t < 6:
                        for k_ in range(2):
                            pv_(f"buffer_load_dword v250, v{vP+0}, s[{rA}:{rA+3}], s{sIT} offen offset:{512+256*t}{NT}"); a(f"s_add_u32 s{sIT}, s{sIT}, 65536")
                    if OPT["pf2"] and t // 8 == OPT["pf2b"]:
                        srd(rD, pW2, 3584 * 2048)
                        if OPT["loc2"]:
                            a(f"""s_and_b32 s{sT0}, s2, 4
                              s_lshl3_add_u32 s{sT1}, s{sT0}, s{sI}
                              s_lshr_b32 s{sT0}, s{sT1}, 4
                              s_mul_i32 s{sT0}, s{sT0}, {896*2048}
                              s_and_b32 s{sT1}, s{sT1}, 15
                              s_lshl_b32 s{sT1}, s{sT1}, 15
                              s_add_u32 s{sT0}, s{sT0}, s{sT1}
                              s_and_b32 s{sT1}, s{sCB2}, 3
                              s_lshl_b32 s{sT1}, s{sT1}, 7
                              s_add_u32 s{sT0}, s{sT0}, s{sT1}
                              v_lshlrev_b32 v{vP+1}, 9, v0""")
                        else: a(f"s_lshr_b32 s{sT0}, s2, 6\n s_mul_i32 s{sT0}, s{sT0}, {896*2048}\n s_and_b32 s{sT1}, s2, 63\n s_lshl_b32 s{sT1}, s{sT1}, 13\n s_add_u32 s{sT0}, s{sT0}, s{sT1}")
                        pv_(f"buffer_load_dword v250, v{vP+1}, s[{rD}:{rD+3}], s{sT0} offen")
                    a.label(l)
        def kvsetup():
            if OPT["evk"]: a(f"s_bfe_u32 s{sISV}, s{sPOS}, 0x10002\n s_lshr_b32 s{sR0}, s{sPOS}, 3\n s_lshl_b32 s{sR0}, s{sR0}, 2\n s_and_b32 s{sT0}, s{sPOS}, 3\n s_add_u32 s{sR0}, s{sR0}, s{sT0}")
            else: a(f"s_and_b32 s{sISV}, s{sCB}, 1\n s_lshr_b32 s{sR0}, s{sCB}, 1")
            a(f"""s_lshl_b32 s{sR0}, s{sR0}, 4
              s_lshl_b32 s{sT0}, s{sRB}, 7
              s_add_u32 s{sR0}, s{sR0}, s{sT0}
              s_cmp_eq_u32 s{sISV}, 0
              s_cselect_b32 s{rC}, s{pWK}, s{pWV}
              s_cselect_b32 s{rC+1}, s{pWK+1}, s{pWV+1}
              s_mov_b32 s{rC+2}, 65536
              s_mov_b32 s{rC+3}, 0x20000
              v_lshlrev_b32 v{vKVD}, 4, v0""")
            if path == 2:
                srd(rD, pGATE, 2048); srd(rDBG, pDBG, 256)
                a(f"s_lshl_b32 s{sT0}, s{sR0}, 5\n s_mov_b64 exec, 15")
                a.vm(f"buffer_load_dword v250, v{vP+1}, s[{rC}:{rC+3}], s{sT0} offen"); a("s_mov_b64 exec, -1")
                a(f"s_mov_b32 m0, {GT}\n s_nop 0")
                for i in range(2): a.vm(f"buffer_load_dwordx4 v{vKVD}, s[{rD}:{rD+3}], 0 offen offset:{1024*i} lds", "gt")
        if path == 2 and OPT["p0late"] == 1: p0(); kvsetup()
        ldX(1); ldQ(1)
        if path == 2 and OPT["p0late"] == 2: p0(); kvsetup()
        if OPT["w1pre"]: ldW(1)
        stamp("a_iss")
        a(f"s_branch L_a1m{path}")
        section("main")
        cm('A, phase 1: LDS-DMA of the GEMM operands; K (scaled by log2(e)/sqrt(32)), V and the gate of 16 rows on the side')
        a.label(f"L_a1m{path}")
        if path != 2: kvsetup()
        a(f"""s_lshl_b32 s{sSTG}, s{sW}, 13
          s_add_u32 s{sSTG}, s{sSTG}, {KVST}
          s_lshl_b32 s{sT0}, s{sW}, 7
          v_lshl_add_u32 v17, v2, 4, s{sT0}
          v_add_u32 v{vKG}, {GT}, v17
          v_lshrrev_b32 v16, 3, v0
          v_add_u32 v16, s{sR0}, v16
          v_and_b32 v17, 7, v0
          v_xor_b32 v17, v17, v2
          v_lshl_add_u32 v17, v17, 4, s{sT0}
          v_lshl_add_u32 v{vKX}, v16, 11, v17
          v_xor_b32 v16, 64, v{vKX}
          v_add_u32 v{vKX+1}, {16384-1024}, v16
          v_lshrrev_b32 v16, 1, v1
          v_xor_b32 v16, v16, v2
          v_lshlrev_b32 v16, 4, v16
          v_lshl_add_u32 v16, v1, 7, v16
          v_add_u32 v{vKR}, s{sSTG}, v16
          v_xor_b32 v{vKR+1}, 64, v{vKR}
          v_lshrrev_b32 v16, 4, v0
          v_and_b32 v16, 2, v16
          v_xor_b32 v16, v16, v0
          s_lshl_b32 s{sT0}, s{sW}, 12
          v_lshl_add_u32 v{vKW}, v16, 4, s{sT0}
          v_lshrrev_b32 v16, 2, v1
          v_lshl_add_u32 v16, v2, 3, v16
          v_and_b32 v17, 3, v1
          v_lshlrev_b32 v17, 3, v17
          v_lshl_add_u32 v16, v16, 6, v17
          v_and_b32 v17, 1, v2
          v_lshl_add_u32 v16, v17, 5, v16
          v_add_u32 v{vKT0}, s{sSTG}, v16
          v_xor_b32 v{vKT0+1}, 32, v{vKT0}""")
        for r in range(12): a(f"v_mov_b32 v{KAC+r}, 0")
        def konly(l_):
            lb = a.newlabel("L_ko")
            return [f"s_cmp_lg_u32 s{sISV}, 0\n s_cbranch_scc1 {lb}"] + l_ + [lb + ":"]
        def kvX(rho):
            if 'X' in OPT['kvskip']: return
            a(f"s_add_u32 m0, s{sSTG}, 6144\n s_movk_i32 s{sT0}, {rho*512}")
            for i in range(2):
                a.vm(f"buffer_load_dwordx4 v{vKX+i}, s[{rA}:{rA+3}], s{sT0} offen offset:{1024*i} lds", ("kw", rho))
        def kvW(rho, half):
            if 'W' in OPT['kvskip']: return
            if half: a.wait0(vm=False)
            a(f"s_add_u32 m0, s{sSTG}, {4096 if half else (rho%2)*2048}\n s_mov_b32 s{sT0}, {rho*16384 + half*2048}")
            for i in range(2):
                a.vm(f"buffer_load_dwordx4 v{vKW}, s[{rC}:{rC+3}], s{sT0} offen offset:{1024*i} lds", ("kw", rho))
        def kvR(rho):
            if 'R' in OPT['kvskip']: return
            a.wait(vm=("kw", rho))
            for i in range(2):
                for nt in range(2):
                    trickle.append([f"ds_read_b64_tr_b16 {vr(KWF+8*i+4*nt+2*e,2)}, v{vKT0+nt} offset:{(4096 if i else (rho%2)*2048)+e*256}" for e in range(2)])
            trickle.append([f"ds_read_b128 {vr(KXF+4*i,4)}, v{vKR+i} offset:6144" for i in range(2)])
            trickle.append(konly([f"ds_read_b128 {vr(KGF+4*i,4)}, v{vKG} offset:{512*rho+64*i}" for i in range(2)]))
        def kvM(rho):
            if 'M' in OPT['kvskip']: return
            a.wait0(vm=False)
            lv, ld = a.newlabel("L_kv"), a.newlabel("L_kd")
            a(f"s_cmp_lg_u32 s{sISV}, 0\n s_cbranch_scc1 {lv}")
            for nt in range(2):
                for i in range(2): mf16(KAC + 4 * nt, KWF + 8 * i + 4 * nt, KXF + 4 * i)
            for i in range(2): mf16(KAC + 8, KGF + 4 * i, KXF + 4 * i)
            a(f"s_branch {ld}")
            a.label(lv)
            for nt in range(2):
                for i in range(2): mf16(KAC + 4 * nt, KXF + 4 * i, KWF + 8 * i + 4 * nt)
            a.label(ld)
        def kvP():
            if 'P' in OPT['kvskip']: return
            a(f"v_add_u32 v16, s{sSTG}, v{vKVD}\n s_nop 5")
            if OPT["pw"] == 128:
                for nt in range(2): trickle.append([f"ds_write_b128 v16, {vr(KAC+4*nt,4)} offset:{nt*1024}"])
            elif OPT["pw"] == 64:
                for k_ in range(4): trickle.append([f"ds_write_b64 v16, {vr(KAC+2*k_,2)} offset:{(k_//2)*1024+(k_%2)*8}"])
            elif OPT["pw"] == 32:
                for k_ in range(0, 8, 2): trickle.append([f"ds_write_b32 v16, v{KAC+k2} offset:{(k2//4)*1024+(k2%4)*4}" for k2 in (k_, k_ + 1)])
            trickle.append(konly([f"ds_write_b32 v16, v{KAC+8} offset:2048"]))
            if OPT["pb"]: trk(True)
            if OPT["pb"] > 1: a.wait0(vm=False)
        def kvF():
            if 'F' in OPT['kvskip']: return
            a(f"v_add_u32 v26, {KVST}, v{vKVD}")
            for w in range(3):
                a(f"ds_read_b128 {vr(32+8*w,4)}, v26 offset:{w*8192}\n ds_read_b128 {vr(36+8*w,4)}, v26 offset:{w*8192+1024}")
            a(f"""s_lshr_b32 s{sT3}, s{sR0}, 5
              s_lshl_b32 s{sT3}, s{sT3}, 12
              s_add_u32 s{sT3}, s{sT3}, {KV_OFF}
              s_bfe_u32 s{sT4}, s{sR0}, 0x10004
              s_cmp_eq_u32 s{sISV}, 0
              s_cselect_b32 s{sT0}, {f2u(32 ** -0.5 * math.log2(math.e))}, 1.0
              s_cselect_b32 s{sT2}, 7, 9
              s_cselect_b32 s{sT5}, 0, 2048
              s_lshl_b32 s{sT4}, s{sT4}, s{sT2}
              s_add_u32 s{sT3}, s{sT3}, s{sT4}
              s_add_u32 s{sT3}, s{sT3}, s{sT5}
              s_waitcnt lgkmcnt(0)""")
            for r in range(8):
                a(f"v_add_f32 v{32+r}, v{32+r}, v{40+r}\n v_add_f32 v{48+r}, v{48+r}, v{KAC+r}\n v_add_f32 v{32+r}, v{32+r}, v{48+r}\n v_mul_f32 v{32+r}, s{sT0}, v{32+r}")
            for r in range(4): a(f"v_cvt_pk_bf16_f32 v{40+r}, v{32+2*r}, v{33+2*r}")
            a(f"s_cmp_eq_u32 s{sISV}, 0\n s_cbranch_scc1 L_nosw\n v_permlane16_swap_b32 v40, v42\n v_permlane16_swap_b32 v41, v43")
            a.label("L_nosw")
            a.vm(f"buffer_store_dwordx4 v[40:43], v27, s[{rWS}:{rWS+3}], s{sT3} offen sc1", "pub")
        def kvF0():
            a(f"""v_bfe_u32 v16, v1, 2, 1
              v_lshlrev_b32 v16, 10, v16
              v_lshl_add_u32 v16, v2, 8, v16
              v_lshrrev_b32 v17, 3, v1
              v_lshl_add_u32 v16, v17, 6, v16
              v_and_b32 v17, 3, v1
              v_lshl_add_u32 v27, v17, 4, v16
              s_cmp_eq_u32 s{sISV}, 0
              s_cbranch_scc1 L_kadr
              v_and_b32 v16, 1, v2
              v_lshlrev_b32 v16, 10, v16
              v_lshrrev_b32 v17, 1, v2
              v_lshl_add_u32 v16, v17, 8, v16
              v_lshl_add_u32 v27, v1, 4, v16""")
            a.label("L_kadr")
        def kvF2():
            if 'F' in OPT['kvskip']: return
            a(f"s_mov_b32 s{sT0}, {OOB}\n v_lshlrev_b32 v20, 2, v0\n s_cmp_lg_u32 s{sISV}, 0\n s_cbranch_scc1 L_nogate")
            for w in range(3): a(f"ds_read_b32 v{64+w}, v26 offset:{w*8192+2048}")
            a(f"""s_lshl_b32 s{sT0}, s{sR0}, 2
              s_add_u32 s{sT0}, s{sT0}, {G_OFF}
              s_waitcnt lgkmcnt(0)
              v_add_f32 v64, v64, v65
              v_add_f32 v66, v66, v{KAC+8}
              v_add_f32 v64, v64, v66
              v_mul_f32 v64, {f2u(-math.log2(math.e))}, v64
              v_exp_f32 v64, v64
              s_nop 0
              v_add_f32 v64, 1.0, v64
              v_rcp_f32 v64, v64""")
            a.label("L_nogate")
            a("s_mov_b64 exec, 0xffff")
            a.vm(f"buffer_store_dword v64, v20, s[{rWS}:{rWS+3}], s{sT0} offen sc1", "pub"); a("s_mov_b64 exec, -1")
        def kvA():
            a(f"""s_lshl_b32 s{sT0}, s{sRB}, 4
              s_add_u32 s{sT0}, s{sT0}, s{sCB}
              s_lshl_b32 s{sT0}, s{sT0}, 2
              s_add_u32 s{sT0}, s{sT0}, {KF_OFF}
              v_mov_b32 v16, 1
              v_mov_b32 v17, 0""")
            a.wait(vm="pub")
            a("s_mov_b64 exec, 1"); a.vm(f"buffer_store_dword v16, v17, s[{rWS}:{rWS+3}], s{sT0} offen sc1"); a("s_mov_b64 exec, -1")
        def clr():
            a(f"""s_and_b32 s{sT0}, s2, 0xc1
              s_cbranch_scc1 L_noclr
              s_lshl_b32 s{sT0}, s2, 11
              s_add_u32 s{sT0}, s{sT0}, {FL_OFF}
              s_lshl_b32 s{sT1}, s2, 4
              s_add_u32 s{sT1}, s{sT1}, {KF_OFF}
              v_lshrrev_b32 v16, 1, v0
              v_and_b32 v17, 1, v0
              v_lshlrev_b32 v17, 4, v17
              v_lshl_add_u32 v16, v16, 7, v17
              {chr(10).join(f"buffer_store_dwordx4 v[{KAC}:{KAC+3}], v{vKVD}, s[{rWS}:{rWS+3}], s{sT0} offen offset:{1024*k_} sc1" for k_ in range(4)) if OPT["clrf"] else f"buffer_store_dwordx4 v[{KAC}:{KAC+3}], v16, s[{rWS}:{rWS+3}], s{sT0} offen sc1"}
              s_mov_b64 exec, 3
              buffer_store_dwordx4 v[{KAC}:{KAC+3}], v16, s[{rWS}:{rWS+3}], s{sT1} offen sc1
              s_mov_b64 exec, -1""")
            a.label("L_noclr")
        def clrdone():
            a(f"""s_and_b32 s{sT0}, s2, 0xc1
              s_cbranch_scc1 L_noclr2
              s_waitcnt vmcnt(0)
              s_lshl_b32 s{sT0}, s2, 1
              v_mov_b32 v16, 1
              v_mov_b32 v17, 0
              s_mov_b64 exec, 1
              buffer_store_dword v16, v17, s[{rDBG}:{rDBG+3}], s{sT0} offen sc1
              s_mov_b64 exec, -1""")
            a.label("L_noclr2")
        def kvPoll0a():
            a(f"v_and_b32 v19, 31, v0\n v_lshlrev_b32 v19, 2, v19"); a.vm(f"buffer_load_dword v18, v19, s[{rDBG}:{rDBG+3}], 0 offen sc1", "p0")
        def kvPoll0():
            a(f"s_mov_b32 s{sT1}, {SPIN_MAX}")
            a.wait(vm="p0")
            a.label("L_poll0")
            a(f"""v_cmp_ne_u32 vcc, 1, v18
              s_sub_u32 s{sT1}, s{sT1}, 1
              s_cbranch_vccz L_poll0x
              s_sleep 16
              buffer_load_dword v18, v19, s[{rDBG}:{rDBG+3}], 0 offen sc1
              s_waitcnt vmcnt(0)
              s_cmp_lg_u32 s{sT1}, 0
              s_cbranch_scc1 L_poll0""")
            a.label("L_poll0x")
        def kvPoll1a():
            a(f"s_mov_b32 s{sT3}, {KF_OFF}"); a.vm(f"buffer_load_dwordx4 v[20:23], v{vKVD}, s[{rWS}:{rWS+3}], s{sT3} offen sc1", "p1")
        def kvPoll1():
            a(f"s_mov_b32 s{sT1}, {SPIN_MAX}")
            a.wait(vm="p1")
            a.label("L_poll1")
            a(f"""v_and_b32 v20, v20, v21
              v_and_b32 v22, v22, v23
              v_and_b32 v20, v20, v22
              v_cmp_ne_u32 vcc, 1, v20
              s_sub_u32 s{sT1}, s{sT1}, 1
              s_cbranch_vccz L_poll1x
              s_sleep 16
              buffer_load_dwordx4 v[20:23], v{vKVD}, s[{rWS}:{rWS+3}], s{sT3} offen sc1
              s_waitcnt vmcnt(0)
              s_cmp_lg_u32 s{sT1}, 0
              s_cbranch_scc1 L_poll1""")
            a.label("L_poll1x")
        def kvD(c):
            if c == 0:
                a(f"s_add_u32 s{rE}, s{pWS}, {KV_OFF}\n s_addc_u32 s{rE+1}, s{pWS+1}, 0\n s_mov_b32 s{rE+2}, 0x40000\n s_mov_b32 s{rE+3}, 0x20000")
                a(f"s_lshl_b32 s{sIT}, s{sW}, 12")
            a(f"s_add_u32 m0, s{sIT}, {KVR + ((c+2)%4)*16384}\n s_add_u32 s{sT0}, s{sIT}, {c*16384}")
            for i in range(4):
                a.vm(f"buffer_load_dwordx4 v{vKVD}, s[{rE}:{rE+3}], s{sT0} offen offset:{1024*i} sc1 lds", ("kv", c))
        def kvDr(c):
            a(f"s_add_u32 s{sT0}, s{sIT}, {c*16384}")
            for i in range(4):
                a.vm(f"buffer_load_dwordx4 {vr(KVREG+16*(c-4)+4*i,4)}, v{vKVD}, s[{rE}:{rE+3}], s{sT0} offen offset:{1024*i} sc1", ("kv", c))
        def ldG():
            a(f"""s_lshl_b32 s{sT1}, s{sRB}, 9
              s_lshl_b32 s{sT2}, s{sW}, 7
              s_add_u32 s{sT1}, s{sT1}, s{sT2}
              s_add_u32 s{sT1}, s{sT1}, {G_OFF}
              v_lshlrev_b32 v22, 2, v1""")
            for h in range(2): a.vm(f"buffer_load_dword v{vG+h}, v22, s[{rWS}:{rWS+3}], s{sT1} offen offset:{64*h} sc1")
        def low(f):
            return (lambda: (a("s_setprio 0"), f(), a("s_setprio 1"))) if OPT["lowv"] else f
        post = {k: [] for k in range(33)}; pre = {k: [] for k in range(33)}; mid = {k: [] for k in range(33)}
        if not OPT["nokv"]:
            for rho in range(4):
                pre[3*rho+5].append(lambda rho=rho: kvR(rho)); mid[3*rho+6].append(lambda rho=rho: kvM(rho))
                post[3*rho+3].append(lambda rho=rho: kvX(rho))
                post[3*rho+1].append(lambda rho=rho: kvW(rho, 0)); post[3*rho+2].append(lambda rho=rho: kvW(rho, 1))
            if path < 2: pre[16].append(kvP); post[16].append(lambda: a.wait0(vm=False))
            if path == 2:
                post[2] += [clr]; pre[7].append(clrdone); post[13].append(low(kvF0)); post[3].append(lambda: a.wait(vm="gt"))
                ({0: post, 1: pre, 2: mid}[OPT['fpre'] % 3])[17] += [low(kvF) if OPT['fpre'] < 3 else kvF]; ({0: post, 1: mid, 2: mid}[OPT['fpre'] % 3])[18] += [low(kvF2) if OPT['fpre'] < 3 else kvF2]; pre[18] += [kvPoll0a]; (mid if OPT['fpre'] else post)[20] += [kvPoll0, kvA]; pre[26].append(kvPoll1a); post[27].append(kvPoll1)
            for k_ in range(4): mid[22 + k_].append(low(lambda k_=k_: attention_setup(k_)))
            post[28].append(ldG)
            for c, t_ in enumerate((28, 29, 29, 30)): post[t_].append(lambda c=c: kvD(c))
            for c in range(OPT["kvreg"]): post[30].append(lambda c=c: kvDr(4 + c))
        stamp("a_set")
        for s_ in range(31):
            u = s_ // 2
            a.wait(vm=[("W", u), ("Q", 0), ("X", 0)] if s_ % 2 == 0 else [("Q", u + 1), ("X", u + 1)])
            if s_ == 0: stamp("a_w0")
            if s_ == 29:
                if path < 2: a("s_branch L_a1done"); break
                a.label("L_a1done")
                a.vmq[:] = [("W", 15), None, None] + [("kv", 0)] * 4
            a("s_barrier")
            if s_ == 0: stamp("a_b0")
            if s_ in (8, 16, 24): stamp(f"a_{s_}")
            if OPT["steps"] and path == 2 and s_ < 29:
                a("s_memtime s[98:99]"); a.wait0(vm=False); a(f"v_writelane_b32 v160, s98, {s_}")
                if s_ == 28:
                    a(f"s_lshl_b32 s98, s2, 8\n s_add_u32 s98, s98, {TS_OFF+0x10000}\n v_lshlrev_b32 v161, 2, v0\n buffer_store_dword v160, v161, s[{rWS}:{rWS+3}], s98 offen")
            for f in pre[s_]: f()
            midf = lambda: [f() for f in mid[s_]]
            if s_ % 2 == 0:
                if u + 1 < 16 and not (u == 0 and OPT["w1pre"]): ldW(u + 1, midf)
                else: midf()
                if s_ == OPT["xr"]: ldX(u + 2)
            else:
                if u + 2 < 16: ldQ(u + 2)
                midf()
                xa = 3 if s_ > OPT["xr"] else 2
                if u + xa < 16: ldX(u + xa)
            trk(True)
            for f in post[s_]: f()
            if not OPT["peven"]: pfs(s_)
            elif s_ % 2 == 0: pfs(s_); pfs(s_ + 1)
    a.wait = plainwait
    a.wait(vm=[("kv", 1)])
    a.vmq[:] = [("kv", 2)] * 4 + [None if OPT["kvreg"] else ("kv", 3)] * 4
    a("s_barrier")
    attention_setup(4)
    a("s_barrier")

QF, OA, LA, SB, PB, KF, VF, ONES = 32, 48, 80, 88, 120, 136, 176, 168
vKc, vKn, vSy, vOne, vCnt, vIdx, vQa, vSt = 248, 249, 251, 252, 20, 255, 30, 31
vD, vDW = 240, 244
def wtile_offsets(dst):
    a(f"""v_lshrrev_b32 v22, 3, v0
      v_lshlrev_b32 v22, 11, v22
      v_and_b32 v23, 1, v2
      v_lshlrev_b32 v23, 2, v23
      v_and_b32 v24, 7, v0
      v_xor_b32 v23, v23, v24
      v_lshl_add_u32 v22, v23, 4, v22
      s_lshl_b32 s{sT0}, s{sCB2}, 7
      v_add_u32 v22, s{sT0}, v22""")
    for i in range(4): a(f"v_xor_b32 v23, {32*(i%2)}, v22\n v_add_u32 v{dst+i}, {i*16384-i*1024}, v23")
def lsum(z, P):
    a(f"v_smfmac_f32_16x16x64_bf16 {vr(LA+4*(z//2),4)}, {vr(ONES+4*(z%2),4)}, {vr(P,8)}, v{vIdx}")
sKo, sCn, sDo, sMb, sDs, sO0, sO1 = sA, sB, sC, sD, sE, sF, sG
def attention_setup(part):
    if part == 0: wtile_offsets(vDW)
    if part == 1:
        a(f"""s_lshl_b32 s{sT0}, s{sW}, 12
          s_add_u32 s{sT1}, s{sT0}, {QX}
          v_lshl_add_u32 v{vQa}, v0, 4, s{sT1}
          v_add_u32 v{vKc}, {KVR}, v{vKVD}
          v_mov_b32 v{vKn}, {SYNC}
          v_and_b32 v22, 2, v1
          v_mov_b32 v23, 0x3f803f80
          v_cmp_eq_u32 vcc, 0, v22
          v_lshl_add_u32 v{vSy}, v0, 2, v{vKn}
          v_sub_u32 v{vOne}, 1, v0
          v_max_i32 v{vOne}, 0, v{vOne}
          v_cndmask_b32 v{ONES}, 0, v23, vcc
          v_cndmask_b32 v{ONES+1}, 0, v23, vcc
          v_xor_b32 v{ONES+4}, v{ONES}, v23
          v_xor_b32 v{ONES+5}, v{ONES}, v23
          v_mov_b64 {vr(ONES+2,2)}, {vr(ONES,2)}
          v_mov_b64 {vr(ONES+6,2)}, {vr(ONES+4,2)}
          v_and_b32 v22, 1, v1
          v_mul_u32_u24 v22, 0xaaaa, v22
          v_or_b32 v{vIdx}, 0x4444, v22""")
    if part == 2:
        a(f"""v_and_b32 v22, 1, v2
          v_lshlrev_b32 v22, 9, v22
          v_lshrrev_b32 v23, 1, v2
          v_lshl_add_u32 v22, v23, 8, v22
          v_lshl_add_u32 v{vSt}, v1, 4, v22""")
        for r in range(4): a(f"v_mov_b32 v{vD+r}, v{vKVD}")
        for r in list(range(PB + 8, PB + 16, 2)) + list(range(VF + 16, VF + 32, 2)): a(f"v_mov_b64 {vr(r,2)}, 0")
    if part == 3:
        for r in range(OA, OA + 40, 2): a(f"v_mov_b64 {vr(r,2)}, 0")
    if part == 4:
        a(f"""s_lshl_b32 s{sT0}, s{sW}, 12
          s_mov_b32 s{sCn}, 4
          s_add_u32 s{sDo}, s{sT0}, {3*16384}
          s_mov_b32 s{sDs}, 16384
          s_mov_b32 s{sKo}, 16384
          s_add_u32 s{sMb}, s{sT0}, {KVR}
          s_mul_i32 s{sO0}, s{sRB}, {RBSZ}
          s_lshl_b32 s{sT1}, s{sQB}, 14
          s_add_u32 s{sO0}, s{sO0}, s{sT1}
          s_lshl_b32 s{sT1}, s{sW}, 11
          s_add_u32 s{sO0}, s{sO0}, s{sT1}
          s_add_u32 s{sO0}, s{sO0}, {112*8192}
          s_add_u32 s{sO1}, s{sO0}, 8192
          s_mov_b32 s{sIT}, 0""")
def attention():
    kvo = lambda T: ((T // 4 + 2) % 4) * 16384 + (T % 4) * 4096
    def rdK(U, e):
        for k_ in range(2): a.lg(f"ds_read_b128 {vr(KF+16*(U%2)+8*e+4*k_,4)}, v{vKc} offset:{kvo(2*U+e)+1024*k_}", "kv")
    def rdV(U, e):
        for k_ in range(2): a.lg(f"ds_read_b128 {vr(VF+16*(U%2)+8*e+4*k_,4)}, v{vKc} offset:{kvo(2*U+e)+2048+1024*k_}", "kv")
    a.lg(f"ds_read_b128 {vr(QF,4)}, v{vQa}")
    rdK(0, 0); rdK(0, 1)
    a.lgq[-1] = "k0"
    a.lg(f"ds_read_b128 {vr(QF+4,4)}, v{vQa} offset:1024", "q1")
    for i in range(2, 4): a.lg(f"ds_read_b128 {vr(QF+4*i,4)}, v{vQa} offset:{1024*i}")
    rdV(0, 0); rdV(0, 1)
    a.wait(lg="k0")
    for k_ in range(4): mf16(SB + 4 * k_, KF + 4 * k_, QF, "0")
    a.wait(lg="q1")
    a("s_nop 3")
    a.raw(".p2align 3")
    cm("attention: S^T = K Q^T, P = exp2(S), O^T += V^T P, row sums by a sparse MFMA; K/V stream through a 4-slot LDS ring.\nZero stands in for the row maximum here; the check after the loop falls back to the true maximum (L_slow)")
    a.label("L_att")
    def pv(k_, U, z, P): e_ = int(k_ in (1, 2)); mf16(OA + 8 * z + 4 * (k_ // 2), VF + 16 * (U % 2) + 8 * e_ + 4 * (k_ // 2), P + 4 * e_)
    def slot(n, hooks):
        U1, z1 = divmod(n + 1, 4); Up, zp = divmod(n - 1, 4)
        S = SB + 16 * (n % 2); S1 = SB + 16 * ((n + 1) % 2)
        P = PB + 8 * (n % 2); Pp = PB + 8 * ((n - 1) % 2)
        ne = nc = 0
        for ch in OPT["pat"]:
            if ch == "e": a(f"v_exp_f32 v{S+ne}, v{S+ne}"); ne += 1
            elif ch == "c": assert ne >= 2 * nc + 2; a(f"v_cvt_pk_bf16_f32 v{P+nc}, v{S+2*nc}, v{S+2*nc+1}"); nc += 1
            elif ch == "w": a.wait(lg=["kv", "cnt"], vm=hooks.get("vm", ()))
            elif ch in "qrst": k_ = "qrst".index(ch); mf16(S1 + 4 * k_, KF + 16 * (U1 % 2) + 4 * k_, QF + 4 * z1, "0")
            elif ch in "uvxy": pv("uvxy".index(ch), Up, zp, Pp)
            elif ch == "S": lsum(zp, Pp)
            else:
                for f in hooks.get(int(ch), []): f()
        assert ne == 16 and nc == 8
        pt = OPT["pat"]; assert pt.index("4") > pt.index("w")
    def body(it):
        for cc in range(4):
            c_ = 4 * it + cc
            for k in range(8):
                n = 8 * c_ + k; U, z = divmod(n, 4)
                hk = {4: [lambda: rdK(U + 1, z) if z < 2 else rdV(U + 1, z - 2)]}
                KA = OPT["arrk"]
                if k == KA:
                    hk["vm"] = ("kv", c_ + 1); hk[4].append(lambda: a.lg(f"ds_add_u32 v{vSy}, v{vOne}"))
                if k == 1:
                    hk[0] = [lambda: a(f"s_add_u32 m0, s{sMb}, {((c_+1)%4)*16384}")]
                    if cc == 1: hk[1] = [lambda: a(f"s_cmp_eq_u32 s{sIT}, 3")]; hk[2] = [lambda: (a("s_cbranch_scc1 L_attwo"), a.label("L_attwo_r"))]
                if k == 2: hk[4].append(lambda: a.lg(f"ds_read_b32 v{vCnt}, v{vKn}", "cnt"))
                if k == 3: hk[5] = [lambda: a(f"v_cmp_gt_u32 vcc, s{sCn}, v{vCnt}")]
                pre_ = cc <= OPT["kvreg"]
                if k == 4:
                    hk[0] = [lambda: (a(f"s_cbranch_vccnz L_attspin{cc}"), a.label(f"L_attgo{cc}"))]
                    hk[1] = [lambda: a(f"s_add_u32 s{sCn}, s{sCn}, 4")]
                    if pre_: hk[2] = [lambda: a(f"s_cmp_eq_u32 s{sIT}, 0")]
                if k in (4, 5):
                    def dma(i):
                        if OPT["anodma"]: return
                        if pre_: a(f"s_cbranch_scc1 L_{'no' if cc == 0 else 'reg'}dma{cc}_{i}")
                        for k2 in (i, i + 1):
                            t_ = f"buffer_load_dwordx4 v{vD+k2}, s[{rE}:{rE+3}], s{sDo} offen offset:{1024*k2} sc1 lds"
                            a.vm(t_, ("kv", c_ + 3)) if c_ > OPT["kvreg"] else a(t_)
                        if pre_: a.label(f"L_nodma{cc}_{i}")
                    if OPT["dpos"] == 0: hk[4].append(lambda: dma(2 * (k - 4)))
                    elif OPT["dpos"] == 1: hk[4].insert(0, lambda: dma(2 * (k - 4)))
                    else: hk[6] = [lambda: dma(2 * (k - 4))]
                if k == 7:
                    hk[0] = [lambda: a(f"s_add_u32 s{sDo}, s{sDo}, s{sKo if cc == 1 else sDs}")]
                    if cc == 3: hk[1] = [lambda: a(f"s_add_u32 s{sIT}, s{sIT}, 1")]; hk[2] = [lambda: a(f"s_cmp_lt_u32 s{sIT}, 4")]
                slot(n, hk)
        a("s_cbranch_scc1 L_att")
    a.loop(body, "att", 3)
    a("s_nop 0")
    lsum(3, PB + 8)
    for k_ in range(4): pv(k_, 31, 3, PB + 8)
    stamp("a_att")
    a(f"s_mov_b32 s{sIT}, 0")
    cm('O * gate / rowsum -> workspace')
    a.label("L_attfin")
    def fin(k):
        T_ = SB + 4 * k
        a(f"v_permlane16_swap_b32 v{T_}, v{T_+2}\n v_permlane16_swap_b32 v{T_+1}, v{T_+3}")
        a(f"buffer_store_dwordx4 {vr(T_,4)}, v{vSt}, s[{rWS}:{rWS+3}], s{sO0+k//2} offen offset:{1024*(k%2)} sc1")
    for k in range(4):
        a(f"v_add_f32 v{24+k}, v{LA+2*k}, v{LA+2*k+1}")
        a(f"v_rcp_f32 v22, v{24+k}")
        if k: fin(k - 1)
        else: a("s_nop 0")
        a(f"v_mul_f32 v22, v22, v{vG+k%2}")
        for r in range(4):
            d = OA + 8 * k + 2 * r
            a(f"v_mul_f32 v{d}, v{d}, v22\n v_mul_f32 v{d+1}, v{d+1}, v22\n v_cvt_pk_bf16_f32 v{SB+4*k+r}, v{d}, v{d+1}")
    a("s_nop 1"); fin(3)
    a(f"s_cmp_lg_u32 s{sIT}, 0\n s_cbranch_scc1 L_attok")
    a(f"s_waitcnt vmcnt(4) lgkmcnt(0)\n ds_add_u32 v{vSy}, v{vOne} offset:12")
    cm('stand-in check: every row sum in [2^-40, 2^100] and nothing infinite or NaN, else redo with the true maximum')
    a(f"s_mov_b32 s{sT0}, {f2u(2.0**-40)}\n s_mov_b32 s{sT1}, {f2u(2.0**100)}\n v_max3_f32 v28, v24, v25, v26\n v_max_f32 v28, v28, v27\n v_mov_b32 v29, 0")
    for r in list(range(OA, OA + 32, 2)) + [24, 26]: a(f"v_pk_fma_f32 v[28:29], {vr(r,2)}, 0, v[28:29]")
    a(f"""v_add_f32 v28, v28, v29
      v_min3_f32 v29, v24, v25, v26
      v_min_f32 v29, v29, v27
      v_cmp_nle_f32 vcc, v28, s{sT1}
      v_cmp_nge_f32 s[{sT2}:{sT3}], v29, s{sT0}
      s_or_b64 vcc, vcc, s[{sT2}:{sT3}]""")
    if OPT["forceslow"]: a("s_branch L_slow")
    a("s_cbranch_vccnz L_slow")
    a.label("L_attok")
    setflag(1)
    stamp("a_end")
    if OPT["padto"]:
        a("s_barrier\n s_barrier" if OPT["ebar"] else "s_barrier")
        a.label("L_pad2")
        a(f"s_memrealtime s[98:99]\n s_waitcnt lgkmcnt(0)\n s_sleep 8\n s_sub_u32 s98, s98, s96\n s_cmp_lt_u32 s98, {OPT['padto']}\n s_cbranch_scc1 L_pad2")
    dump_ts_and_end()
    a.label("L_attwo")
    srd(rE, pWO, 1024 * 2048)
    a(f"s_lshl_b32 s{sDo}, s{sW}, 17\n s_add_u32 s{sDo}, s{sDo}, {524288+65536}\n s_mov_b32 s{sDs}, 65536\n s_mov_b32 s{sKo}, {2*524288-65536}")
    a(f"v_mov_b64 {vr(vD,2)}, {vr(vDW,2)}\n v_mov_b64 {vr(vD+2,2)}, {vr(vDW+2,2)}\n s_branch L_attwo_r")
    for cc in range(1, OPT["kvreg"] + 1):
        for i in (() if OPT["anodma"] else (0, 2)):
            a.label(f"L_regdma{cc}_{i}")
            if i == 0: a(f"s_waitcnt vmcnt(0)\n v_add_u32 v22, s{sMb}, v{vKVD}")
            for k2 in (i, i + 1): a(f"ds_write_b128 v22, {vr(KVREG+16*(cc-1)+4*k2,4)} offset:{((cc+1)%4)*16384+1024*k2}")
            a(f"s_branch L_nodma{cc}_{i}")
    for cc in range(4):
        a.label(f"L_attspin{cc}")
        a(f"s_mov_b32 s{sT2}, {SPIN_MAX}")
        a.label(f"L_attspin{cc}b")
        a(f"""ds_read_b32 v{vCnt}, v{vKn}
          s_waitcnt lgkmcnt(0)
          v_cmp_gt_u32 vcc, s{sCn}, v{vCnt}
          s_sub_u32 s{sT2}, s{sT2}, 1
          s_cbranch_vccz L_attgo{cc}
          s_cmp_lg_u32 s{sT2}, 0
          s_cbranch_scc1 L_attspin{cc}b
          s_branch L_attgo{cc}""")
    cm('exact path: pass 1 finds the true row maximum, pass 2 subtracts it (through the accumulator input of the score MFMA)')
    a.label("L_slow")
    NM = 208
    a(f"s_add_u32 s{rE}, s{pWS}, {KV_OFF}\n s_addc_u32 s{rE+1}, s{pWS+1}, 0\n s_mov_b32 s{rE+2}, 0x40000\n s_mov_b32 s{rE+3}, 0x20000")
    a(f"s_waitcnt vmcnt(0) lgkmcnt(0)\n s_mov_b32 s{sT0}, 0\n s_mov_b32 s{sIT}, 1")
    for k in range(4): a(f"v_mov_b32 v{24+k}, 0xff800000")
    a.label("L_slow1")
    a(f"buffer_load_dwordx4 {vr(KF,4)}, v{vKVD}, s[{rE}:{rE+3}], s{sT0} offen sc1\n buffer_load_dwordx4 {vr(KF+4,4)}, v{vKVD}, s[{rE}:{rE+3}], s{sT0} offen offset:1024 sc1\n s_waitcnt vmcnt(0)")
    for k in range(8): mf16(SB + 4 * k, KF + 4 * (k % 2), QF + 4 * (k // 2), "0")
    a("s_nop 7")
    for k in range(4):
        for r in range(0, 8, 2): a(f"v_max3_f32 v{24+k}, v{SB+8*k+r}, v{SB+8*k+r+1}, v{24+k}")
    a(f"s_add_u32 s{sT0}, s{sT0}, 4096\n s_cmp_lt_u32 s{sT0}, 0x40000\n s_cbranch_scc1 L_slow1")
    for sw in ("16", "32"):
        for k in range(4): a(f"v_mov_b32 v{16+k}, v{24+k}")
        a("s_nop 1")
        for k in range(4): a(f"v_permlane{sw}_swap_b32 v{24+k}, v{16+k}")
        for k in range(4): a(f"v_max_f32 v{24+k}, v{24+k}, v{16+k}")
    for k in range(4):
        for r in range(4): a(f"v_sub_f32 v{NM+4*k+r}, 0, v{24+k}")
    for r in range(OA, OA + 40, 2): a(f"v_mov_b64 {vr(r,2)}, 0")
    a(f"s_mov_b32 s{sT0}, 0")
    a.label("L_slow2")
    for e_ in range(2):
        for i in range(4):
            a(f"buffer_load_dwordx4 {vr((KF if i < 2 else VF)+8*e_+4*(i%2),4)}, v{vKVD}, s[{rE}:{rE+3}], s{sT0} offen offset:{1024*i} sc1")
        a(f"s_add_u32 s{sT0}, s{sT0}, 4096")
    a("s_waitcnt vmcnt(0)")
    for z in range(4):
        for k in range(4): mf16(SB + 4 * k, KF + 4 * k, QF + 4 * z, vr(NM + 4 * z, 4))
        a("s_nop 7")
        for r in range(16): a(f"v_exp_f32 v{SB+r}, v{SB+r}")
        for r in range(8): a(f"v_cvt_pk_bf16_f32 v{PB+r}, v{SB+2*r}, v{SB+2*r+1}")
        a("s_nop 1")
        for k in range(4): pv(k, 0, z, PB)
        lsum(z, PB)
    a(f"s_cmp_lt_u32 s{sT0}, 0x40000\n s_cbranch_scc1 L_slow2")
    a("s_nop 7\n s_nop 3\n s_branch L_attfin")

def setflag(which):
    if which == 0: a(f"s_lshr_b32 s{sT1}, s{sCB}, 2\n s_and_b32 s{sT2}, s{sCB}, 3")
    else: a(f"s_and_b32 s{sT1}, s{sQB}, 3\n s_and_b32 s{sT2}, s{sQB}, 12\n s_lshr_b32 s{sT2}, {sum(k << (4 * g) for k, g in enumerate(GRP))}, s{sT2}\n s_and_b32 s{sT2}, s{sT2}, 3")
    a(f"""s_lshl_b32 s{sT0}, s{sRB}, 13
      s_lshl_b32 s{sT1}, s{sT1}, 7
      s_add_u32 s{sT0}, s{sT0}, s{sT1}
      s_lshl2_add_u32 s{sT0}, s{sT2}, s{sT0}
      s_add_u32 s{sT0}, s{sT0}, {FL_OFF+16*which}
      v_mov_b32 v17, {SYNC+4+4*which}
      v_mov_b32 v15, 1""")
    if which == 0:
        if OPT["noack"] < 2: a.wait(vm="hst")
    elif OPT["noack"] & 1: a("s_waitcnt vmcnt(4)")
    else: a.wait0(lg=False)
    l = a.newlabel("L_nofl")
    a(f"""s_mov_b64 exec, 1
      ds_add_rtn_u32 v16, v17, v15
      s_mov_b64 exec, 0xffff
      v_lshlrev_b32 v17, 9, v0
      s_waitcnt lgkmcnt(0)
      v_readfirstlane_b32 s{sT1}, v16
      s_cmp_eq_u32 s{sT1}, 3
      s_cbranch_scc0 {l}
      buffer_store_dword v15, v17, s[{rWS}:{rWS+3}], s{sT0} offen {OPT['sfl'].replace('_', ' ')}""")
    a.label(l)
    a("s_mov_b64 exec, -1")
    a.lgq.clear()
def mbox(which):
    a(f"""s_lshl_b32 s{sT0}, s{sRB2}, 4
      s_add_u32 s{sT0}, s{sT0}, s{sCB2}
      s_lshl_b32 s{sT0}, s{sT0}, 2
      s_add_u32 s{sT0}, s{sT0}, s{sW}
      s_lshl_b32 s{sT0}, s{sT0}, 7
      s_add_u32 s{sT0}, s{sT0}, {FL_OFF+16*which}
      v_and_b32 v15, 3, v0
      v_lshlrev_b32 v15, 2, v15""")
def waitflag(which, name):
    mbox(which)
    a(f"s_mov_b32 s{sT1}, {SPIN_MAX}\n s_mov_b64 exec, 15")
    a.label(name)
    a(f"""buffer_load_dword v17, v15, s[{rWS}:{rWS+3}], s{sT0} offen {OPT['pfl'].replace('_', ' ')}
      s_waitcnt vmcnt(0)
      v_cmp_ne_u32 vcc, 1, v17
      s_sub_u32 s{sT1}, s{sT1}, 1
      s_cbranch_vccz {name}_x
      s_sleep {OPT['slp']}
      s_cmp_lg_u32 s{sT1}, 0
      s_cbranch_scc1 {name}""")
    a.label(name + "_x")
    a("s_mov_b64 exec, -1")
def waitlds(off, val, name, va=15):
    a(f"s_mov_b32 s{sT1}, {SPIN_MAX}\n v_mov_b32 v{va}, {SYNC+off}")
    a.label(name)
    a(f"""ds_read_b32 v17, v{va}
      s_waitcnt lgkmcnt(0)
      v_readfirstlane_b32 s{sT0}, v17
      s_cmp_ge_u32 s{sT0}, {val}
      s_cbranch_scc1 {name}_x
      s_sleep 2
      s_sub_u32 s{sT1}, s{sT1}, 1
      s_cmp_lg_u32 s{sT1}, 0
      s_cbranch_scc1 {name}""")
    a.label(name + "_x")

ACC2, HR, WF = 128, 64, 32
acc2 = lambda rt, nt: ACC2 + (rt * 4 + nt) * 4
vWD, vWR, vH, vGM = 3, 7, 11, 16
sWo, sHo, sMw, sRdy = sC, sD, sE, sF
def g2_vsetup():
    wtile_offsets(vWD)
    a(f"""s_lshl_b32 s{sT0}, s{sW}, 14
      v_lshrrev_b32 v14, 2, v1
      v_lshl_add_u32 v14, v2, 3, v14
      v_and_b32 v15, 3, v1
      v_lshlrev_b32 v15, 3, v15
      v_lshl_add_u32 v14, v14, 7, v15
      v_and_b32 v15, 1, v2
      v_lshrrev_b32 v30, 3, v1
      v_lshl_add_u32 v15, v30, 1, v15
      v_lshl_add_u32 v14, v15, 5, v14
      v_add_u32 v14, s{sT0}, v14""")
    for nt in range(4): a(f"v_xor_b32 v{vWR+nt}, {32*nt}, v14")
    for p in range(4):
        a(f"s_add_u32 s{sT0}, s{sW}, {p+1}\n s_and_b32 s{sT0}, s{sT0}, 3\n s_lshl_b32 s{sT0}, s{sT0}, 11\n v_lshl_add_u32 v{vH+p}, v0, 4, s{sT0}")
def g2_setup():
    srd(rB, pW2, 3584 * 2048)
    a(f"s_lshl_b32 s{sMw}, s{sW}, 14\n s_mul_i32 s{sWo}, s{sW}, {896*2048}")
def dmaW(i, k):
    if k == 0: a(f"s_add_u32 m0, s{sMw}, {(i%4)*4096}\n s_nop 0")
    a.vm(f"buffer_load_dwordx4 v{vWD+k}, s[{rB}:{rB+3}], s{sWo} offen offset:{1024*k} lds", ("W2", i // 2))
    if k == 3: a(f"s_add_u32 s{sWo}, s{sWo}, 65536")
def g_phase2():
    sHp, sMbx, sOb, sDl = sB, 4, 5, 6
    vPo = 29
    def ldH(i, rt):
        a.vm(f"buffer_load_dwordx4 {vr(HR+32*(i%2)+4*rt,4)}, v{vH+rt//2}, s[{rWS}:{rWS+3}], s{sHp if i % 2 else sHo} offen offset:{1024*(rt%2)} sc1", ("H", i // 2, rt // 2))
    WOFF = {32: 0, 33: 49152, 34: 49152, 35: 0}
    def rdW2(i, nt, e):
        a.lg(f"ds_read_b64_tr_b16 {vr(WF+16*(i%2)+4*nt+2*e,2)}, v{vWR+nt} offset:{WOFF.get(i, (i%4)*4096)+512*e}", ("W2", i // 2, nt))
    cm('G, phase 2: out tile [128 x 64] = (1-g) (hidden W2 + b2) + (g O) Wo, K split over the four waves')
    setflag(0)
    stamp("g_flag")
    if OPT["nog2"]: dump_ts_and_end()
    for i in range(OPT["wpre"], 4):
        for k in range(4): dmaW(i, k)
    a(f"""s_mul_i32 s{sHo}, s{sRB2}, {RBSZ}
      s_mul_i32 s{sT1}, s{sW}, {28*8192}
      s_add_u32 s{sHo}, s{sHo}, s{sT1}
      s_lshl_b32 s{sT2}, s{sRB2}, 9
      s_add_u32 s{sT2}, s{sT2}, {G_OFF}
      v_lshlrev_b32 v15, 2, v1""")
    for p in range(4):
        a(f"""s_add_u32 s{sT0}, s{sW}, {p+1}
          s_and_b32 s{sT0}, s{sT0}, 3
          s_lshl_b32 s{sT0}, s{sT0}, 7
          s_add_u32 s{sT0}, s{sT0}, s{sT2}""")
        for h in range(2): a(f"buffer_load_dword v{vGM+4*p+2*h}, v15, s[{rWS}:{rWS+3}], s{sT0} offen offset:{64*h} sc1")
    if OPT["loc2"]:
        assert OPT["map2"] == 5
        a(f"""s_and_b32 s{sT0}, s2, 4
          s_lshl3_add_u32 s{sT3}, s{sT0}, s{sI}
          s_lshl_b32 s{sT0}, s{sW}, 6
          s_add_u32 s{sT0}, s{sT0}, s{sT3}
          s_lshr_b32 s{sG}, s{sT0}, 5
          s_bfe_u32 s{sT1}, s{sT0}, 0x20003
          s_mul_i32 s{sT1}, s{sT1}, {896*2048}
          s_and_b32 s{sT0}, s{sT0}, 7
          s_lshl_b32 s{sT0}, s{sT0}, 15
          s_add_u32 s{sT0}, s{sT0}, s{sT1}
          s_add_u32 s{sT1}, s{sG}, 2
          s_lshl_b32 s{sT1}, s{sT1}, 18
          s_add_u32 s{sT0}, s{sT0}, s{sT1}
          s_cmp_eq_u32 s{sG}, 5
          s_cselect_b32 s{sG}, -1, s{sG}
          s_lshl_b32 s{sT1}, s{sT3}, 15
          s_and_b32 s{sT2}, s{sCB2}, 3
          s_lshl_b32 s{sT2}, s{sT2}, 7
          s_add_u32 s{sT0}, s{sT0}, s{sT2}
          s_add_u32 s{sT1}, s{sT1}, s{sT2}
          s_and_b32 s{sT2}, s{sI}, 1
          s_add_u32 s{sT2}, s{sT2}, {OPT["woit"]}""")
    else:
        if OPT["ev2"]: a(f"s_lshl_b32 s{sT0}, s{sW}, 8\n s_add_u32 s{sT0}, s{sT0}, s2")
        else: a(f"s_lshl_b32 s{sT0}, s2, 1\n s_add_u32 s{sT0}, s{sT0}, s{sW}\n s_add_u32 s{sT1}, s2, 512\n s_cmp_eq_u32 s{sW}, 2\n s_cselect_b32 s{sT0}, s{sT1}, s{sT0}")
        a(f"""
          s_lshr_b32 s{sG}, s{sT0}, 7
          s_bfe_u32 s{sT1}, s{sT0}, 0x20005
          s_mul_i32 s{sT1}, s{sT1}, {896*2048}
          s_and_b32 s{sT0}, s{sT0}, 31
          s_lshl_b32 s{sT0}, s{sT0}, 13
          s_add_u32 s{sT0}, s{sT0}, s{sT1}
          s_add_u32 s{sT1}, s{sG}, 2
          s_lshl_b32 s{sT1}, s{sT1}, 18
          s_add_u32 s{sT0}, s{sT0}, s{sT1}
          s_cmp_eq_u32 s{sG}, 5
          s_cselect_b32 s{sG}, -1, s{sG}
          s_lshl_b32 s{sT1}, s2, 13
          s_and_b32 s{sT2}, s{sI}, 1""")
    a(f"""
      s_cmp_eq_u32 s{sW}, 3
      s_cselect_b32 s{sA}, s{sT1}, s{sT0}
      s_cselect_b32 s{sG}, s{sT2}, s{sG}
      s_cselect_b32 s{rPF}, s{pWO}, s{pW2}
      s_cselect_b32 s{rPF+1}, s{pWO+1}, s{pW2+1}
      s_mov_b32 s{sT0}, {3584*2048}
      s_cselect_b32 s{rPF+2}, {1024*2048}, s{sT0}
      s_mov_b32 s{rPF+3}, 0x20000""")
    if OPT["ev2"] and not OPT["loc2"]: a(f"s_bitcmp1_b32 s2, 0\n s_cselect_b32 s{sG}, -1, s{sG}")
    stamp("g_pw")
    waitflag(0, "L_wh")
    stamp("g_wf")
    a.vmq.clear(); a.lgq.clear()
    rds = lambda D, nt: [lambda e_=e_, k=k: rdW2(2 * D + e_, nt, k) for e_ in range(2) for k in range(2)]
    def ldP(D, ps):
        for p in ps:
            for h in range(2): ldH(2 * D, 2 * p + h); ldH(2 * D + 1, 2 * p + h)
    pend = []
    def dstep(D, fine, extra={}, at={}):
        for p in range(4):
            ex = list(extra.get(p, [])); lq = []
            if p in at: at[p]()
            if p in (1, 2) and D < 14: lq = [lambda k=k: dmaW(2 * D + 3 + p, k) for k in range(4)]
            if OPT["gdma"] and fine and D < 14 and p == 0:
                lq = [lambda: None, lambda: None] + [lambda k=k: (a(f"s_add_u32 m0, s7, {KVR + (D % 2) * 16384}\n s_add_u32 s8, s8, 16384") if k == 0 else None,
                      a.vm(f"buffer_load_dwordx4 v{vH+3}, s[{rWS}:{rWS+3}], s8 offen offset:{1024*k} sc1 lds")) for k in range(4)]
            for nt in range(4):
                if p == 0: lgw = [("W2", D, nt)] if fine else ([("W2", D, nt + 1)] if nt % 2 == 0 else [])
                else: lgw = []
                a.wait(vm=([("H", D, p)] + ([("W2", D + 1)] if p == 3 else [])) if nt == 0 else [], lg=lgw)
                if OPT["chain"]: seq = [(nt % 2, 0), (nt % 2, 1), (1 - nt % 2, 1), (1 - nt % 2, 0)]
                else: seq = [(0, 0), (1, 0), (1, 1), (0, 1)]
                for n, (h, e) in enumerate(seq):
                    first = (h, 1 - e) not in seq[:n]
                    mf16(acc2(2 * p + h, nt), WF + 16 * e + 4 * nt, HR + 32 * e + 4 * (2 * p + h), "0" if D == 0 and first else None)
                    if fine:
                        if pend: pend.pop(0)()
                        if nt == 3 and D < 17: ldH(2 * D + 2 + e, 2 * p + h)
                        elif lq and n % 2: lq.pop(0)()
                        x = ex.pop(0) if ex else None
                        if callable(x): x()
                        elif x: a(x)
                if p == 3 and D < 17: pend.extend(rds(D + 1, nt))
                if not fine and nt == 1:
                    while pend: pend.pop(0)()
                    while lq: lq.pop(0)()
                    if OPT["gdma"] and p in (0, 3):
                        a(f"s_add_u32 m0, s7, {KVR + (D % 2) * 16384}\n s_nop 0")
                        for k in ((0, 1) if p == 0 else (2, 3)): a.vm(f"buffer_load_dwordx4 v{vH+3}, s[{rWS}:{rWS+3}], s8 offen offset:{1024*k} sc1 lds")
                        if p == 3: a("s_add_u32 s8, s8, 16384")
                if not fine and nt == 3:
                    if (p, "ld") in at: at[p, "ld"]()
                    ldP(D + 1, [p])
            assert not ex and not lq
        if D < 12: a(f"s_add_u32 s{sHo}, s{sHo}, 16384\n s_add_u32 s{sHp}, s{sHp}, 16384")
    for nt in range(4):
        for f in rds(0, nt): f()
    a(f"s_add_u32 s{sHp}, s{sHo}, 8192")
    ldP(0, range(4))
    a(f"s_add_u32 s{sHo}, s{sHo}, 16384\n s_add_u32 s{sHp}, s{sHp}, 16384")
    for rt in range(8): a(f"v_sub_f32 v{vGM+2*rt}, 1.0, v{vGM+2*rt}")
    stamp("g_l2")
    a(f"s_setprio {OPT['g2prio']}\n s_mov_b32 s{sIT}, 0")
    if OPT["gdma"]: a(f"s_lshl_b32 s7, s{sW}, 12\n s_lshl_b32 s8, s{sW}, 11\n s_add_u32 s8, s8, {KV_OFF}")
    fine = [not int(c) for c in OPT["gp"][1:3]]
    dstep(0, fine[1])
    stamp("g_s0")
    sHd = 7
    a(f"s_and_b32 s{sT0}, s2, 3\n s_lshl_b32 s{sT0}, s{sT0}, 2\n s_lshr_b32 s{sHd}, {sum(int(c, 16) << (4 * k) for k, c in enumerate(OPT['hold'][1:]))}, s{sT0}\n s_and_b32 s{sHd}, s{sHd}, 15")
    holds = []
    def holdchk(n):
        if n not in holds: holds.append(n)
        a(f"s_sub_u32 s{sHd}, s{sHd}, 1\n s_cmp_eq_u32 s{sHd}, 0\n s_cbranch_scc1 L_hold{n}"); a.label(f"L_hold{n}_r")
    def mkloop(x, fine):
        a.raw(".p2align 3")
        cm('FFN double steps (runs beside the attention waves)')
        a.label("L_g2loop" + x)
        def body(it):
            if OPT["pf2"]: a(f"s_cmp_eq_u32 s{sIT}, s{sG}\n s_cbranch_scc1 L_hookF"); a.label("L_hookF_r" + x)
            holdchk("a" + x)
            dstep(2 * it + 1, fine[0])
            a(f"s_cmp_ge_u32 s{sIT}, 4\n s_cbranch_scc1 L_hookW"); a.label("L_hookW_r" + x)
            holdchk("b" + x)
            dstep(2 * it + 2, fine[1])
            a(f"s_add_u32 s{sIT}, s{sIT}, 1\n s_cmp_lt_u32 s{sIT}, 6\n s_cbranch_scc1 L_g2loop{x}")
        a.loop(body, "g2")
    if OPT["gpo"]:
        a(f"s_and_b32 s{sT0}, s2, 3\n s_lshr_b32 s8, {sum(1 << int(c) for c in OPT['gpo'][1:])}, s{sT0}\n s_and_b32 s8, s8, 1\n s_cbranch_scc0 L_g2loop")
        st_ = (list(a.vmq), list(a.lgq), list(pend))
        mkloop("o", [True, fine[1]])
        a("s_branch L_g2end")
        e1 = (list(a.vmq), list(a.lgq))
        a.vmq[:], a.lgq[:], pend[:] = st_
    mkloop("", fine)
    if OPT["gpo"]:
        a.label("L_g2end")
        assert e1 == (a.vmq, a.lgq)
    ret = lambda l: a((f"s_cmp_lg_u32 s8, 0\n s_cbranch_scc1 {l}o\n " if OPT["gpo"] else "") + f"s_branch {l}")
    sh = lambda q: [x and (x[0], x[1] + 6) + x[2:] for x in q]
    a.vmq[:] = sh(a.vmq); a.lgq[:] = sh(a.lgq)
    pend[:] = [f for nt in range(4) for f in rds(13, nt)][16 - len(pend):]
    if "d" in OPT["hold"]: holdchk("c")
    stamp("g_25")
    cm("last FFN double step, then the output projection: four producers in a fixed order, looked up in this wave's mailbox")
    mbox(1)
    a(f"""s_add_u32 s{sWo}, s{sWo}, {((GRP[1]-GRP[0])*524288-131072) & 0xffffffff}
      s_mov_b32 s{sMbx}, s{sT0}
      s_mul_i32 s{sOb}, s{sRB2}, {RBSZ}
      s_add_u32 s{sOb}, s{sOb}, s{sMw}
      s_lshl_b32 s{sDl}, s{sW}, 12
      s_add_u32 s{sDl}, s{sDl}, {QX}
      s_sub_u32 s{sDl}, s{sDl}, s{sMw}""")
    def poll(): a.vm(f"buffer_load_dword v{vPo}, v15, s[{rWS}:{rWS+3}], s{sMbx} offen sc1", "poll")
    chk = lambda sl: f"""v_cmp_eq_u32 vcc, 1, v{vPo}
      s_add_u32 s{sHo}, s{sOb}, {(112+8*GRP[sl])*8192}
      s_bitcmp1_b32 vcc_lo, {sl}
      s_cselect_b32 s{sRdy}, 1, 0
      s_cselect_b32 s{sHo}, s{sHo}, {OOB}
      s_add_u32 s{sHp}, s{sHo}, 8192""".split("\n")
    behind = {}
    def npoll(): return a.vmq[::-1].index("poll") if "poll" in a.vmq else 62
    def again(sl):
        behind["s", sl] = npoll()
        a(f"s_cmp_eq_u32 s{sRdy}, 0\n s_cbranch_scc1 L_sec{sl}")
        a.label(f"L_sec{sl}_r")
        poll()
    def join(sl):
        behind["b", sl] = npoll()
        a(f"s_cmp_eq_u32 s{sRdy}, 0\n s_cbranch_scc1 L_blk{sl}")
        a.label(f"L_join{sl}")
        a.vmq[:] = [("H", 14 + sl, p) for p in range(4) for _ in range(4)]
    def late(sl):
        a.label(f"L_sec{sl}")
        a(f"s_waitcnt vmcnt({behind['s', sl]})")
        a("\n".join(chk(sl)))
        a(f"s_cmp_eq_u32 s{sRdy}, 0\n s_cbranch_scc1 L_sec{sl}_r")
        ldP(14 + sl, (0, 1))
        a(f"s_branch L_sec{sl}_r")
        a.label(f"L_blk{sl}")
        a(f"s_mov_b32 s{sT5}, {SPIN_MAX}\n s_waitcnt vmcnt({behind['b', sl]})\n s_branch L_blk{sl}b")
        a.label(f"L_blk{sl}a")
        a(f"s_sleep {OPT['slp']}"); poll(); a.wait0(lg=False)
        a(f"s_sub_u32 s{sT5}, s{sT5}, 1\n s_cbranch_scc0 L_blk{sl}b\n v_mov_b32 v{vPo}, 1")
        a.label(f"L_blk{sl}b")
        a("\n".join(chk(sl)))
        a(f"s_cmp_eq_u32 s{sRdy}, 0\n s_cbranch_scc1 L_blk{sl}a")
        ldP(14 + sl, range(4))
        a(f"s_branch L_join{sl}")
    poll()
    dstep(13, False, at={(0, "ld"): lambda: (a.wait(vm="poll"), a("\n".join(chk(0))), poll()), 2: lambda: again(0)})
    srd(rA, pB2, 2048); srd(rC, pOUT, 2048 * 2048)
    while pend: pend.pop(0)()
    join(0)
    stamp("g_hook")
    sc = lambda p: [f"v_pk_mul_f32 {vr(ACC2+32*p+16*h+4*nt+r,2)}, {vr(ACC2+32*p+16*h+4*nt+r,2)}, {vr(vGM+4*p+2*h,2)} op_sel_hi:[1,0]"
                    for nt in range(4) for h in range(2) for r in (0, 2)]
    for x in sc(0): a(x)
    vS0, vS1, vB2 = 3, 4, 18
    def wr(p, k):
        if OPT["nowr"]: return
        if p < 2: a.lg(f"ds_write_b128 v{vS0}, {vr(ACC2+32*p+4*k,4)} offset:{8192*p+1024*k}")
        else: a.lg(f"ds_write_b128 v{vS1}, {vr(ACC2+32*p+4*k,4)} offset:{16384*(k//4)+1024*(k%4)}")
    OWN = ACC2 + 96
    vRd = [5, 6, 16]; vTw = [11, 12, 13, 14]; vTr, vOo = 26, 27
    sc2 = lambda p: ["\n".join(f"v_mul_f32 v{ACC2+32*p+16*h+4*nt+r+u}, v{vGM+4*p+2*h}, v{ACC2+32*p+16*h+4*nt+r+u}" for u in range(2))
                     for nt in range(4) for h in range(2) for r in (0, 2)]
    extra = {(0, p): sc2(p + 1) for p in range(3)}
    two = lambda l_: ["\n".join(l_[k:k+2]) for k in range(0, len(l_), 2)]
    wp = lambda sl: a(f"s_waitcnt vmcnt({behind['b', sl]})")
    for D in (1, 2): extra[D, 0] = [None] * 7 + [lambda D=D: wp(D)] + two(chk(D + 1)) + [poll]
    t_ = f"""s_lshl_b32 s{sT0}, s{sCB2}, 7
      v_lshlrev_b32 v16, 3, v2
      v_lshl_add_u32 v{vS0}, v0, 4, s{sMw}
      v_add_u32 v{vS1}, s{sDl}, v{vS0}""".split("\n")
    extra[1, 2] = [f"v_mov_b32 v17, {SYNC+12}", None, lambda: a.lg("ds_read_b32 v31, v17", "wa")] + [None] * 7 + [
        lambda: (a.wait(lg="wa"), a("v_cmp_gt_u32 vcc, 4, v31")), lambda: (a("s_cbranch_vccnz L_wa0"), a.label("L_wa_r"))]
    extra[1, 1] = t_ + [f"v_add_u32 v{vWR+nt}, s{sDl}, v{vWR+nt}" for nt in range(4)] + [lambda nt=nt: a.vm(f"buffer_load_dwordx2 {vr(vB2+2*nt,2)}, v16, s[{rA}:{rA+3}], s{sT0} offen offset:{32*nt}", "b2") for nt in range(4)]
    t_ = []
    for p in range(3):
        t_ += [f"s_sub_u32 s{sT1}, s{sW}, {p+1}\n s_and_b32 s{sT1}, s{sT1}, 3"]
        if p < 2: t_ += [f"s_lshl_b32 s{sT1}, s{sT1}, 14\n v_lshl_add_u32 v{vRd[p]}, v0, 4, s{sT1}"]
        else: t_ += [f"s_lshl_b32 s{sT1}, s{sT1}, 12\n s_add_u32 s{sT1}, s{sT1}, {QX}", f"v_lshl_add_u32 v{vRd[p]}, v0, 4, s{sT1}"]
    assert len(t_) == 7; rdadr = t_
    fm = []
    for nt in range(4):
        for r in range(2):
            fm += [f"v_lshlrev_b32 v{vTr}, 16, v{vB2+2*nt+r}\n v_and_b32 v{vTr+1}, 0xffff0000, v{vB2+2*nt+r}"]
            fm += ["\n".join(f"v_fmac_f32 v{OWN+16*h+4*nt+2*r+u}, v{vTr+u}, v{vGM+12+2*h}" for u in range(2)) for h in range(2)]
    extra[2, 0][4:6] = two([f"v_add_u32 v{vWR+nt}, 16384, v{vWR+nt}" for nt in range(4)])
    extra[2, 1] = rdadr + [None] + fm[:8]; extra[2, 2] = fm[8:]
    t_ = f"""s_lshl_b32 s{sT2}, s{sW}, 12
      s_add_u32 s{sT2}, s{sT2}, {KVR+16384}
      v_lshrrev_b32 v15, 3, v0
      v_and_b32 v17, 7, v0
      v_xor_b32 v{vTr}, v15, v17
      v_lshlrev_b32 v{vTr}, 4, v{vTr}
      v_lshl_add_u32 v{vTr}, v15, 7, v{vTr}
      v_add_u32 v{vTr}, s{sT2}, v{vTr}
      v_lshlrev_b32 v{vOo}, 4, v17
      v_lshl_add_u32 v{vOo}, v15, 11, v{vOo}
      v_and_b32 v15, 7, v1
      v_lshrrev_b32 v17, 1, v2
      v_xor_b32 v15, v15, v17
      v_lshlrev_b32 v15, 4, v15
      v_and_b32 v17, 1, v2
      v_lshl_add_u32 v15, v17, 3, v15
      v_lshl_add_u32 v15, v1, 7, v15
      v_add_u32 v{vTw[0]}, s{sT2}, v15
      v_xor_b32 v{vTw[1]}, 32, v{vTw[0]}
      v_xor_b32 v{vTw[2]}, 64, v{vTw[0]}
      v_xor_b32 v{vTw[3]}, 96, v{vTw[0]}
      s_lshl_b32 s{sT0}, s{sCB2}, 7
      s_lshl_b32 s{sT1}, s{sRB2}, 18
      s_add_u32 s{sT0}, s{sT0}, s{sT1}
      s_lshl_b32 s{sT1}, s{sW}, 16
      s_add_u32 s{sT0}, s{sT0}, s{sT1}""".split("\n")
    extra[3, 0] = ["\n".join(t_[2*k:2*k+2]) for k in range(13)]
    worder = [0, 4, 1, 5, 2, 6, 3, 7]
    for p in range(1, 4): extra[3, p] = [x for k in worder for x in (None, (lambda k=k, p=p: wr(p - 1, k)))]
    def rdp(p, k):
        a.lg(f"ds_read_b128 {vr(ACC2+32*p+4*k,4)}, v{vRd[p]} offset:{8192*p+1024*k if p < 2 else 16384*(k//4)+1024*(k%4)}", ("r", p // 2, k))
    x0 = extra[0, 0][10]; extra[0, 0][10] = lambda: (a(x0), wp(0), a("\n".join(chk(1))), poll())
    a("s_nop 0")
    for D in range(4):
        if D: join(D)
        if D == 2: stamp("g_32")
        dstep(14 + D, True, {p: extra.get((D, p), []) for p in range(4)}, {2: lambda: again(D + 1)} if D < 3 else {})
    cm('sum of the four K quarters through LDS, bf16, whole-line stores')
    a.wait0(vm=False)
    stamp("g_36")
    a("s_barrier")
    stamp("g_bar")
    for k in range(4):
        for p in range(3): rdp(p, k)
    def st(g_):
        a.wait(lg=("u", g_ // 2, g_ % 2))
        a(f"buffer_store_dwordx4 {vr(HR+32+4*g_,4)}, v{vOo}, s[{rC}:{rC+3}], s{sT0} offen{['', ' sc1', ' nt'][OPT['osc']]}")
        if g_ < 3: a(f"s_add_u32 s{sT0}, s{sT0}, 16384")
    for k in range(8):
        a.wait(lg=("r", 1, k))
        if k < 4:
            for p in range(3): rdp(p, k + 4)
        for r in (0, 2): a(f"v_pk_add_f32 {vr(ACC2+4*k+r,2)}, {vr(ACC2+4*k+r,2)}, {vr(ACC2+32+4*k+r,2)}")
        for r in (0, 2): a(f"v_pk_add_f32 {vr(OWN+4*k+r,2)}, {vr(OWN+4*k+r,2)}, {vr(ACC2+64+4*k+r,2)}")
        for r in (0, 2): a(f"v_pk_add_f32 {vr(OWN+4*k+r,2)}, {vr(OWN+4*k+r,2)}, {vr(ACC2+4*k+r,2)}")
        T_ = HR + 2 * k
        a(f"v_cvt_pk_bf16_f32 v{T_}, v{OWN+4*k}, v{OWN+4*k+1}\n v_cvt_pk_bf16_f32 v{T_+1}, v{OWN+4*k+2}, v{OWN+4*k+3}")
        a.lg(f"ds_write_b64 v{vTw[k%4]}, {vr(HR+2*k,2)} offset:{2048*(k//4)}")
        if k % 4 == 3:
            for h in range(2): a.lg(f"ds_read_b128 {vr(HR+32+8*(k//4)+4*h,4)}, v{vTr} offset:{2048*(k//4)+1024*h}", ("u", k // 4, h))
    for g_ in range(4): st(g_)
    if OPT["ts"]: a.wait0(); stamp("g_end")
    if OPT["padto"]:
        a.label("L_pad")
        a(f"s_memrealtime s[98:99]\n s_waitcnt lgkmcnt(0)\n s_sub_u32 s98, s98, s96\n s_cmp_lt_u32 s98, {OPT['padto']}\n s_cbranch_scc1 L_pad")
    dump_ts_and_end()
    cm('out-of-line waits (all bounded) and loop hooks')
    for sl in range(4): late(sl)
    a.label("L_wa0")
    waitlds(12, 4, "L_wa", 31)
    a("s_branch L_wa_r")
    if OPT["pf2"]:
        a.label("L_hookF")
        a(f"v_lshlrev_b32 v15, {9 if OPT['loc2'] else 7}, v0\n buffer_load_dword v19, v15, s[{rPF}:{rPF+3}], s{sA} offen")
        if OPT["ev2"] and not OPT["loc2"]: a(f"s_add_u32 s{sA}, s{sA}, 8192\n buffer_load_dword v19, v15, s[{rPF}:{rPF+3}], s{sA} offen")
        ret("L_hookF_r")
    a.label("L_hookW")
    a(f"s_cmp_eq_u32 s{sIT}, 4\n s_cbranch_scc1 L_hookQ")
    a(f"s_mov_b32 s{rB}, s{pWO}\n s_mov_b32 s{rB+1}, s{pWO+1}\n s_mov_b32 s{rB+2}, {1024*2048}\n s_lshl_b32 s{sWo}, s{sW}, 17\n s_add_u32 s{sWo}, s{sWo}, {GRP[0]*524288}"); ret("L_hookW_r")
    a.label("L_hookQ")
    stamp("g_17")
    waitlds(0, 4, "L_wq")
    srd(rA, pWO, 1024 * 2048)
    a(f"s_lshl_b32 s{sT0}, s{sW}, 12\n s_add_u32 m0, s{sT0}, {QX}\n s_lshl_b32 s{sT0}, s{sW}, 17\n s_add_u32 s{sT0}, s{sT0}, 524288")
    for k in range(4): a(f"buffer_load_dwordx4 v{vWD+k}, s[{rA}:{rA+3}], s{sT0} offen offset:{1024*k} lds")
    ret("L_hookW_r")
    for n in holds:
        a.label(f"L_hold{n}")
        waitlds(12, 4, f"L_hw{n}")
        a(f"s_branch L_hold{n}_r")

prologue()
section("g")
a.label("L_roleG")
g_phase1()
if OPT["stop"] == 1:
    stamp("g_bq"); g_hstore(); a.wait0(); stamp("g_hst"); dump_ts_and_end()
else:
    if OPT["wlate"]: g_hstore(); stamp("g_st")
    g2_setup()
    for i in range(OPT["wpre"]):
        for k in range(4): dmaW(i, k)
    if not OPT["wlate"]: g_hstore()
    g_phase2()
a_phase1()
if OPT["stop"] == 1:
    a(f"s_lshl_b32 s{sT0}, s{sW}, 12\n s_add_u32 s{sT1}, s{sT0}, {QX}\n v_lshl_add_u32 v16, v0, 4, s{sT1}")
    for i in range(4): a(f"ds_read_b128 {vr(32+4*i,4)}, v16 offset:{1024*i}")
    a(f"s_lshl_b32 s{sT1}, s{sRB}, 4\n s_add_u32 s{sT1}, s{sT1}, s{sCB}\n s_lshl_b32 s{sT1}, s{sT1}, 14\n s_add_u32 s{sT0}, s{sT0}, s{sT1}\n s_add_u32 s{sT0}, s{sT0}, {QD_OFF}")
    a.wait0()
    for i in range(4): a(f"buffer_store_dwordx4 {vr(32+4*i,4)}, v{vKVD}, s[{rWS}:{rWS+3}], s{sT0} offen offset:{1024*i}")
    dump_ts_and_end()
else:
    stamp("a_bq")
    attention()
a.label("L_exit")
a("s_endpgm")
a.label("L_codeend")

HDR = open("cdna_kernels/" + KNAME[:-7] + ".s.ref").read().split("; Override launch")[0]
HDR += """; One persistent launch, 256 workgroups of 8 waves, one per CU (generated by a script of the author's own).
"""
text = HDR + f"; @launch grid=(256,1,1) block=(512,1,1) lds={LDS_BYTES}\n"
text += f'.amdgcn_target "amdgcn-amd-amdhsa--gfx950"\n.text\n.globl {KNAME}\n.p2align 8\n.type {KNAME},@function\n{KNAME}:\n'
a.out = SEC['head'] + SEC['st'] + SEC['st0'] + SEC['st2'] + SEC['g'] + SEC['main']
body = a.text()
nbad = check(body)
text += body
text += f""".section .rodata,"a"
.p2align 6
.amdhsa_kernel {KNAME}
  .amdhsa_next_free_vgpr 256
  .amdhsa_next_free_sgpr 102
  .amdhsa_accum_offset 256
  .amdhsa_group_segment_fixed_size 0
  .amdhsa_kernarg_size 112
  .amdhsa_user_sgpr_count 2
  .amdhsa_user_sgpr_kernarg_segment_ptr 1
  .amdhsa_system_sgpr_workgroup_id_x 1
.end_amdhsa_kernel
"""
open(sys.argv[1], "w").write(text)
if nbad: sys.exit(f"{nbad} hazards")
```

```python
import sys, math
from asmlib import *

KNAME = "gated_mix__grouped_kv_mqa__dense_activation_squared_relu__prompt_kernel"
OPT = dict(stop=0, ts=0, pd=8, forceslow=0, nodma=0, nokv=0, nopf=0, nords=0, lead=7, pfnt=0, far=99, pf2=1, pf2b=2, gprio=2, nog2=0, g2nold=0, anodma=0, g2prio=0, dbgts=0, slp=2, th=0, farw2=1, hglob=1, arrk=0, wlate=1, map2=5, steps=0, kvskip='', pause=99, pcnt=64, grp=1, osc=1, padto=0, st2=0, spos=0, hfirst=2, p0prio=3, d0prio=1, xlate=0, ring=6, h3prio=1, hfl='sc1', wfl='', xfl='', padat='', xm=1, p0late=1, p0lo=0, kvreg=2, lowv=1, noo=0, nopk=1, tgrp=1, nowo=0, noack=0, qsw=1, evn=0, evk=1, ev2=1, ng=8, par='SSSS', lut=0, pw=128, pb=0, g32=0, dyn=0, chain=1, row4=0, skiprd=0, gdma=0, dpos=0, nohst=0, xa=3, w1pre=0, peven=0, xr=99, fpre=4, clrf=1, wpre=2, f12=1, pp=2, hrel=0, f13=1, hold='xcfcf', gpo='', pexact=1, epos=68, mpos=32, loc2=1, woit=2, snake=1, gp='x1111', g2f=1, ebar=0, c2x=1, pfl='sc1', sfl='sc1', nowr=0, pat='eeeeeeeq0ccr1esccteu2evexweyccS4e5eeecc')
for a_ in sys.argv[2:]:
    k, v = a_.split("="); OPT[k] = int(v) if v.lstrip('-').isdigit() else v

GRP = [2, 0, 1, 3] if OPT['g2f'] else [0, 2, 1, 3]
LC = {5: 2, 2: 1}.get(OPT['map2'])
RBSZ = 144 * 8192
KV_OFF = 0x1200000; G_OFF = 0x1240000; KF_OFF = 0x1244000; FL_OFF = 0x1248000; WS_USED = 0x1268000
QD_OFF = 0x1400000; TS_OFF = 0x1800000
WS_SIZE = 0x2000000 if (OPT["stop"] or OPT["ts"]) else WS_USED
OOB = 0x40000000
W1R = 0; W1S = 14336
WQR = 57344; WQS = 4096
XR = 73728; XS = 16384
KVST = 122880
SYNC = 155648
GT = SYNC + 512
LDS_BYTES = GT + 2048
QX = XR
KVR = 90112
pX, pWQ, pWK, pWV, pWO, pW1, pB1, pW2, pB2, pGATE, pOUT, pDBG, pWS = 4, 6, 8, 10, 12, 16, 18, 20, 22, 24, 26, 28, 30
rA, rB, rC, rD, rWS, rDBG, rPF, rE = 32, 36, 40, 44, 48, 52, 56, 60
sRB, sCB, sRB2, sCB2, sI, sW = 64, 65, 66, 67, 68, 69
sT0, sT1, sT2, sT3, sT4, sT5 = 70, 71, 72, 73, 74, 75
sIT, sA, sB, sC, sD, sE, sF, sG = 76, 77, 78, 79, 80, 81, 82, 83
sTS = 84
sPOS = 101
sQB = 100
SPIN_MAX = 1 << 18

a = Asm()
SEC = {}
def cm(t):
    for l in t.strip().split('\n'): a.raw('  ; ' + l.strip())
def section(n):
    a.out = SEC.setdefault(n, [])
section("head")
def kwait():
    a("s_waitcnt lgkmcnt(0)"); stamp("kw"); srd(rWS, pWS, WS_SIZE)
def srd(r, p, size):
    a(f"s_mov_b32 s{r}, s{p}\n s_mov_b32 s{r+1}, s{p+1}\n s_mov_b32 s{r+2}, {size}\n s_mov_b32 s{r+3}, 0x20000")
nts = [0]
STAMPS = {1: dict(g_b0=1, g_end1=2, g_bq=3, g_hst=4, g_pre=5, a_set=1, a_w0=2, a_8=3, a_16=4, a_24=5),
          0: dict(g_end1=1, g_flag=2, g_l2=3, g_hook=4, g_end=5, a_b0=1, a_16=2, a_bq=3, a_att=4, a_end=5)}[OPT["stop"]]
if OPT["st2"] == 1: STAMPS.update(g_end1=0, g_flag=0, g_l2=1, g_17=2, g_25=3)
if OPT["st2"] == 3: STAMPS = dict(kw=1, g_pre=2, g_bias=3, g_rdy=4, g_b0=5, a_iss=2, a_set=3, a_w0=4, a_b0=5)
if OPT["st2"] == 4: STAMPS.update(g_end1=0, g_st=1, g_flag=2, g_pw=3, g_wf=4, g_l2=0, g_s0=5, g_hook=0, g_end=0)
if OPT["st2"] == 5: STAMPS.update(g_end1=0, g_flag=0, g_l2=0, g_end=0, g_25=1, g_hook=2, g_30=3, g_32=4, g_34=5)
if OPT["st2"] == 2: STAMPS.update(g_end1=0, g_flag=0, g_l2=0, g_hook=1, g_32=2, g_36=3, g_bar=4)
def stamp(n):
    if n == OPT["padat"]: a("s_memrealtime s[96:97]"); a.wait0(vm=False)
    i = STAMPS.get(n)
    if OPT["ts"] and i:
        a(f"{'s_memrealtime' if OPT['ts'] == 2 else 's_memtime'} s[{sTS+2*i}:{sTS+2*i+1}]"); a.wait0(vm=False)
def mf16(d, x, y, c=None):
    a(f"v_mfma_f32_16x16x32_bf16 {vr(d,4)}, {vr(x,4)}, {vr(y,4)}, {vr(d,4) if c is None else c}")
def mf32(d, x, y, c=None):
    a(f"v_mfma_f32_32x32x16_bf16 {vr(d,16)}, {vr(x,4)}, {vr(y,4)}, {vr(d,16) if c is None else c}")
def dump_ts_and_end():
    if OPT["ts"]:
        a("s_memrealtime s[98:99]"); a.wait0()
        if OPT["dbgts"]:
            l = a.newlabel("L_nots")
            srd(rDBG, pDBG, 256)
            a(f"s_cmp_lg_u32 s2, 100\n s_cbranch_scc1 {l}\n s_cmp_lg_u32 s{sW}, 0\n s_cbranch_scc1 {l}")
            for i, k in enumerate((1, 2, 3, 4, 5, 7)): a(f"s_sub_u32 s{sT0}, s{sTS+2*k}, s96\n v_mov_b32 v{8+i}, s{sT0}")
            a(f"s_lshl_b32 s{sT0}, s3, 3\n s_add_u32 s{sT0}, s{sT0}, 8\n v_mov_b32 v2, 0\n s_mov_b64 exec, 1")
            a(f"buffer_store_dwordx2 v[8:9], v2, s[{rDBG}:{rDBG+3}], s{sT0} offen")
            a(f"buffer_store_dwordx4 v[10:13], v2, s[{rDBG}:{rDBG+3}], s{sT0} offen offset:8")
            a.label(l)
        else:
            for i in range(8): a(f"v_mov_b32 v{8+i}, s{sTS+2*i}")
            a(f"s_lshl_b32 s{sT0}, s2, 8\n s_lshl_b32 s{sT1}, s3, 5\n s_add_u32 s{sT0}, s{sT0}, s{sT1}\n s_add_u32 s{sT0}, s{sT0}, {TS_OFF}")
            a(f"v_mov_b32 v2, 0\n s_mov_b64 exec, 1")
            a(f"buffer_store_dwordx4 v[8:11], v2, s[{rWS}:{rWS+3}], s{sT0} offen")
            a(f"buffer_store_dwordx4 v[12:15], v2, s[{rWS}:{rWS+3}], s{sT0} offen offset:16")
    a("s_endpgm")

def prologue():
    m = OPT["map2"]
    lx, lc = {0: (1, 3), 2: (1, 3), 3: (2, 2), 4: (0, 4), 5: (2, 2)}[m]
    MAP2 = f"""s_lshr_b32 s{sT1}, s{sT0}, {lx}
      s_lshl_b32 s{sT1}, s{sT1}, {5-lc}
      s_lshr_b32 s{sT2}, s{sI}, {lc}
      s_add_u32 s{sRB2}, s{sT1}, s{sT2}
      s_and_b32 s{sT1}, s{sT0}, {(1<<lx)-1}
      s_and_b32 s{sT2}, s{sI}, {(1<<lc)-1}
      s_lshl_b32 s{sT2 if m in (2, 5) else sT1}, s{sT2 if m in (2, 5) else sT1}, {lx if m in (2, 5) else lc}
      s_add_u32 s{sCB2}, s{sT1}, s{sT2}
      s_xor_b32 s{sCB2}, s{sCB2}, {OPT["c2x"]}
      s_mov_b32 s{sPOS}, s{sCB}"""
    ident = list(range(16))
    LUTS = {0: (ident, [0, 1, 3, 2] + ident[4:]),
            1: ([0, 1, 3, 5, 2, 4, 6, 8, 7, 10, 12, 14, 9, 11, 13, 15], [0, 1, 2, 9, 4, 5, 6, 7, 8, 3, 10, 11, 12, 13, 14, 15]),
            2: ([0, 1, 3, 5, 2, 4, 6, 8, 7, 10, 12, 14, 9, 11, 13, 15], [0, 1, 2, 4, 3, 5, 11, 7, 8, 9, 10, 6, 12, 13, 14, 15]),
            3: ([0, 1, 3, 5, 7, 4, 10, 8, 12, 2, 14, 6, 9, 11, 13, 15], [0, 1, 2, 9, 4, 5, 6, 7, 8, 3, 10, 11, 12, 13, 14, 15])}[OPT["lut"]]
    for reg, tab in zip((sCB, sQB), LUTS):
        assert sorted(tab) == ident
        if tab == ident: continue
        w = sum(v << (4 * k) for k, v in enumerate(tab))
        MAP2 += f"""
          s_mov_b32 s{sT2}, {hex(w & 0xffffffff)}
          s_mov_b32 s{sT3}, {hex(w >> 32)}
          s_lshl_b32 s{sT1}, s{sPOS}, 2
          s_lshr_b64 s[{sT2}:{sT3}], s[{sT2}:{sT3}], s{sT1}
          s_and_b32 s{reg}, s{sT2}, 15"""
    cm('entry: workgroup -> (row block, column blocks); waves 0-3 take the matrix role G, waves 4-7 the loader / attention role A')
    a("s_cmp_ge_u32 s2, 256\n s_cbranch_scc1 L_exit")
    a("s_load_dwordx16 s[4:19], s[0:1], 0\n s_load_dwordx8 s[20:27], s[0:1], 64\n s_load_dwordx4 s[28:31], s[0:1], 96")
    if OPT["ts"] or OPT["th"] or OPT["padto"]:
        a(f"s_memtime s[{sTS}:{sTS+1}]\n s_memrealtime s[96:97]")
    a(f"""v_lshrrev_b32 v1, 6, v0
      v_and_b32 v0, 63, v0
      v_readfirstlane_b32 s3, v1
      s_lshr_b32 s{sI}, s2, 3
      s_and_b32 s{sT0}, s2, 7
      s_lshr_b32 s{sT1}, s{sT0}, 2
      s_lshl_b32 s{sT1}, s{sT1}, 3
      s_lshr_b32 s{sT2}, s{sI}, 2
      s_add_u32 s{sRB}, s{sT1}, s{sT2}
      s_and_b32 s{sT1}, s{sT0}, 3
      s_lshl_b32 s{sT1}, s{sT1}, 2
      s_and_b32 s{sT2}, s{sI}, 3
      s_add_u32 s{sCB}, s{sT1}, s{sT2}
      {MAP2}
      s_and_b32 s{sW}, s3, 3
      v_and_b32 v1, 15, v0
      v_lshrrev_b32 v2, 4, v0""")
    a("s_cmp_lt_u32 s3, 4\n s_cbranch_scc1 L_roleG\n s_setprio 1")

ACC1 = 112
acc1 = lambda ft, rt: ACC1 + (ft * 4 + rt) * 4
XF = [48, 80]; WRING = 24
vX = [16, 17]; vW1 = [18, 19]; vWq = [20, 21]; vLP, vJ, vQW = 15, 70, 64
def g_phase1():
    PD = OPT["pd"]
    sRG, sCG = sA, sB
    sXo, sPo, sPe, sPd = sC, sD, sE, sF
    a(f"s_and_b32 s{sRG}, s{sW}, 1\n s_lshr_b32 s{sCG}, s{sW}, 1")
    cm('G, phase 1: [Q | FFN hidden] tile = x[128 rows] * [Wq 64 cols | W1 224 cols], accumulators start from the bias')
    a(f"""s_cmp_lt_u32 s{sW}, 2
      s_cbranch_scc0 L_nocode
      s_getpc_b64 s[{rE}:{rE+1}]""")
    a.label("L_pc")
    a(f"""s_mov_b32 s{rE+2}, L_codeend-L_pc
      s_mov_b32 s{rE+3}, 0x20000
      s_lshl_b32 s{sT1}, s{sI}, 10
      s_lshl_b32 s{sT2}, s{sW}, 15
      s_add_u32 s{sT1}, s{sT1}, s{sT2}
      v_lshlrev_b32 v29, 7, v0
      s_mov_b64 exec, 0xff
      buffer_load_dword v{vJ}, v29, s[{rE}:{rE+3}], s{sT1} offen
      s_mov_b64 exec, -1""")
    a.label("L_nocode")
    a(f"""s_mul_i32 s{sT0}, s{sCB}, 448
      s_mul_i32 s{sT1}, s{sCG}, 224
      s_add_u32 s{sT0}, s{sT0}, s{sT1}
      v_lshlrev_b32 v14, 2, v0
      s_mov_b32 s{rA+2}, 7168
      s_mov_b32 s{rA+3}, 0x20000
      s_setprio 3
      s_waitcnt lgkmcnt(0)
      s_mov_b32 s{rA}, s{pB1}
      s_mov_b32 s{rA+1}, s{pB1+1}
      buffer_load_dword v33, v14, s[{rA}:{rA+3}], s{sT0} offen
      s_setprio 0""")
    kwait()
    for r in range(0, 32, 2): a(f"v_mov_b64 {vr(ACC1+r,2)}, 0")
    a(f"""v_lshrrev_b32 v14, 1, v1
      v_xor_b32 v14, v14, v2
      v_lshlrev_b32 v14, 4, v14
      v_lshl_add_u32 v14, v1, 7, v14
      s_lshl_b32 s{sT0}, s{sRG}, 13
      s_add_u32 s{sT0}, s{sT0}, {XR}
      v_add_u32 v{vX[0]}, s{sT0}, v14
      v_xor_b32 v{vX[1]}, 64, v{vX[0]}
      s_mov_b32 s{sXo}, 0
      v_lshrrev_b32 v14, 2, v1
      v_lshl_add_u32 v14, v2, 3, v14
      v_and_b32 v29, 3, v1
      v_lshlrev_b32 v29, 3, v29
      v_mul_u32_u24 v30, 448, v14
      v_add_u32 v30, v30, v29
      s_mul_i32 s{sT0}, s{sCG}, 224
      v_add_u32 v30, s{sT0}, v30
      v_and_b32 v31, 1, v2
      v_lshlrev_b32 v32, 5, v31
      s_lshl_b32 s{sT1}, s{sCG}, 1
      s_sub_u32 s{sT1}, 1, s{sT1}
      v_mul_lo_u32 v32, v32, s{sT1}
      v_add_u32 v{vW1[0]}, v30, v32
      v_sub_u32 v{vW1[1]}, v30, v32
      v_lshrrev_b32 v32, 3, v1
      v_lshl_add_u32 v31, v32, 1, v31
      s_lshl_b32 s{sT0}, s{sCG}, 1
      v_xor_b32 v31, s{sT0}, v31
      v_lshl_add_u32 v29, v31, 5, v29
      v_lshl_add_u32 v29, v14, 7, v29
      v_add_u32 v{vWq[0]}, {WQR}, v29
      v_xor_b32 v{vWq[1]}, 32, v{vWq[0]}""")
    if not OPT["stop"]: g2_vsetup()
    a(f"""v_and_b32 v28, 1, v2
      v_lshlrev_b32 v28, 10, v28
      v_lshrrev_b32 v29, 1, v2
      v_lshl_add_u32 v28, v29, 8, v28
      v_lshl_add_u32 v{vLP}, v1, 4, v28""")
    a(f"v_mov_b32 v30, {SYNC}\n ds_write_b128 v30, v[{ACC1}:{ACC1+3}]\n v_lshlrev_b32 v29, 3, v2")
    stamp("g_pre")
    a.wait0()
    stamp("g_bias")
    for k in range(14): a.lg(f"ds_bpermute_b32 v{48+k}, v29, v33 offset:{32*(k//2)+4*(k%2)}", ("b", k // 2))
    for ft in range(7):
        d = acc1(2 + ft, 0)
        a.wait(lg=("b", ft))
        a(f"v_lshlrev_b32 v{d}, 16, v{48+2*ft}\n v_and_b32 v{d+1}, 0xffff0000, v{48+2*ft}")
        a(f"v_lshlrev_b32 v{d+2}, 16, v{49+2*ft}\n v_and_b32 v{d+3}, 0xffff0000, v{49+2*ft}")
        for rt in range(1, 4): a(f"v_mov_b64 {vr(d+4*rt,2)}, {vr(d,2)}\n v_mov_b64 {vr(d+4*rt+2,2)}, {vr(d+2,2)}")
    def rdW(g, n):
        u, ft = divmod(g, 9); kk, e = divmod(n, 2); d = WRING + 8 * (g % 3) + 2 * n; sl = 2 * (u % 2) + kk
        if ft < 2: a.lg(f"ds_read_b64_tr_b16 {vr(d,2)}, v{vWq[ft]} offset:{sl*WQS + e*512}", ("W", g))
        else: a.lg(f"ds_read_b64_tr_b16 {vr(d,2)}, v{vW1[ft%2]} offset:{sl*W1S + e*1792 + (ft-2)*32}", ("W", g))
    def rdX(u, n):
        rt, kk = divmod(n, 2)
        a.lg(f"ds_read_b128 {vr(XF[u%2]+16*kk+4*rt,4)}, v{vX[kk]} offset:{rt*2048}", ("X", u))
    def block(u, plan):
        for ft in range(9):
            g = 9 * u + ft
            a.wait(lg=[("W", g), ("X", u)] if ft == 0 else ("W", g))
            for n in range(8):
                rt = 3 - n // 2 if ft % 2 else n // 2
                kk = (n + 1) // 2 % 2
                mf16(acc1(ft, rt), WRING + 8 * (g % 3) + 4 * kk, XF[u % 2] + 16 * kk + 4 * rt)
                if n < 4 and g + 2 < 144: rdW(g + 2, n)
                x = plan.get(8 * ft + n)
                if callable(x): x()
                elif x: a(x)
    a(f"s_mov_b32 s{sIT}, 0")
    stamp("g_rdy")
    a("s_barrier")
    stamp("g_b0")
    for n in range(4): rdW(0, n)
    for n in range(8): rdX(0, n)
    for n in range(4): rdW(1, n)
    a.raw(".p2align 3")
    cm('16 k-blocks of 64; operands come from LDS rings that the A waves fill, two barriers per block')
    a.label("L_g1loop")
    def body(it):
        for b in range(2):
            u = 2 * it + b
            plan = {12: f"s_add_u32 s{sXo}, s{sXo}, 1\n s_cmp_eq_u32 s{sXo}, 3", 13: f"s_cselect_b32 s{sXo}, 0, s{sXo}\n s_cselect_b32 s{sT0}, {3*XS}, 0",
                    14: f"s_sub_u32 s{sT0}, {XS}, s{sT0}", 20: f"v_add_u32 v{vX[0]}, s{sT0}, v{vX[0]}", 21: f"v_add_u32 v{vX[1]}, s{sT0}, v{vX[1]}",
                    OPT["mpos"]: "s_barrier", OPT["epos"]: "s_barrier"}
            free = [p for p in range(OPT["mpos"] + 1, 64) if 4 <= p % 8 < 7]
            for n in range(8): plan[free[n]] = lambda n=n: rdX(u + 1, n)
            assert 64 <= OPT["epos"] <= 68 and 22 <= OPT["mpos"] <= 36
            if b == 0: plan[69] = f"s_add_u32 s{sIT}, s{sIT}, 1"; plan[70] = f"s_cmp_eq_u32 s{sIT}, 8"
            block(u, plan)
            if b == 0:
                a("s_cbranch_scc1 L_g1last"); snap[:] = [(k_, v_ + (14 - u) * (9 if k_ == "W" else 1)) for k_, v_ in a.lgq]
        a("s_branch L_g1loop")
    snap = []
    a.loop(body, "g1")
    cm('last k-block; Q goes to the attention waves through LDS')
    a.label("L_g1last")
    a.lgq[:] = snap
    cq = lambda s_, rt: f"v_cvt_pk_bf16_f32 v{48+4*rt+2*s_}, v{acc1(s_,rt)}, v{acc1(s_,rt)+1}\n v_cvt_pk_bf16_f32 v{49+4*rt+2*s_}, v{acc1(s_,rt)+2}, v{acc1(s_,rt)+3}"
    wq = lambda rt: lambda: a.lg(f"ds_write_b128 v{vQW}, {vr(48+4*rt,4)} offset:{(rt//2)*4096 + (rt%2)*1024}")
    plan = {4: f"s_lshl_b32 s{sT2}, s{sRG}, 13\n s_lshl_b32 s{sT3}, s{sCG}, 11", 5: f"s_add_u32 s{sT2}, s{sT2}, s{sT3}\n s_add_u32 s{sT2}, s{sT2}, {QX}",
            6: f"v_lshl_add_u32 v{vQW}, v0, 4, s{sT2}", 20: cq(0, 0), 21: cq(0, 1), 22: cq(0, 2), 28: cq(0, 3), 29: cq(1, 3), 30: cq(1, 2),
            36: cq(1, 1), 37: cq(1, 0), 38: "s_barrier",
            44: wq(0), 46: wq(1), 52: wq(2), 54: wq(3),
            61: lambda: (a.wait0(vm=False), a(f"s_setprio {OPT['gprio']}\n s_barrier"))}
    block(15, plan)
    stamp("g_end1")
def g_hstore(lo=0, hi=7):
    sRG, sCG = sA, sB
    sT0, sT1, sT2, sT3 = sT4, sT5, sF, sG
    if lo == 0: a(f"""s_mul_i32 s{sT0}, s{sRB}, {RBSZ}
      s_mul_i32 s{sT1}, s{sCB}, {7*8192}
      s_add_u32 s{sT0}, s{sT0}, s{sT1}
      s_lshl_b32 s{sT1}, s{sRG}, 12
      s_add_u32 s{sT0}, s{sT0}, s{sT1}
      s_mul_i32 s{sT1}, s{sCG}, {3*8192+512}
      s_add_u32 s{sT0}, s{sT0}, s{sT1}
      s_mul_i32 s{sT2}, s{sCG}, {8192-1024}
      s_add_u32 s{sT2}, s{sT2}, 512
      s_sub_u32 s{sT3}, 8192, s{sT2}""")
    cm('hidden = relu(h)^2 as bf16, write-through to the workspace in MFMA operand order')
    k = 0
    for ft in range(lo, hi):
        for p in range(2):
            T = 48 + 4 * (k % 4); k += 1
            if OPT["nohst"] == 2: continue
            for h in range(2):
                d = acc1(2 + ft, 2 * p + h)
                for r in range(4): a(f"v_max_f32 v{d+r}, 0, v{d+r}")
                if OPT["nopk"] > 1: a("\n".join(f"v_mul_f32 v{d+r}, v{d+r}, v{d+r}" for r in range(4)))
                else: a(f"v_pk_mul_f32 {vr(d,2)}, {vr(d,2)}, {vr(d,2)}\n v_pk_mul_f32 {vr(d+2,2)}, {vr(d+2,2)}, {vr(d+2,2)}")
                a(f"v_cvt_pk_bf16_f32 v{T+2*h}, v{d}, v{d+1}\n v_cvt_pk_bf16_f32 v{T+2*h+1}, v{d+2}, v{d+3}")
            a(f"s_nop 1\n v_permlane16_swap_b32 v{T}, v{T+2}\n v_permlane16_swap_b32 v{T+1}, v{T+3}")
            if not OPT["nohst"]: a.vm(f"buffer_store_dwordx4 {vr(T,4)}, v{vLP}, s[{rWS}:{rWS+3}], s{sT0} offen offset:{p*2048} sc1", "hst")
        a(f"s_add_u32 s{sT0}, s{sT0}, s{sT2 if ft % 2 == 0 else sT3}")

vO = 3
vKX, vKG, vKW, vKT0, vKVD, vKR = 140, 12, 13, 24, 15, 142
KVREG = 208; vG = 253
KXF, KGF, KWF, KAC = 32, 64, 96, 128
def a_phase1():
    sISV, sR0, sSTG, sM, sSo, sSx, sGrp = sA, sB, sC, sD, sE, sF, sG
    NT = " nt" if OPT["pfnt"] else ""
    LEAD = OPT["lead"]
    vXo, vQo, vP = 144, 148, 150
    sSq, sMx, sMq, sPo, sPm = 14, 15, 18, 19, 22
    section("st")
    cm('A, phase 1 start-up: every wave brings 16 rows of W1 / Wq and 32 rows of x per k-block; wave 7 also warms caches and handles the flags')
    a(f"""v_lshrrev_b32 v16, 3, v0
      v_lshlrev_b32 v16, 11, v16
      v_and_b32 v17, 7, v0
      v_xor_b32 v18, v17, v2
      v_lshl_add_u32 v18, v18, 4, v16
      v_and_b32 v20, 1, v2
      v_lshlrev_b32 v20, 2, v20
      v_xor_b32 v20, v20, v17
      v_lshl_add_u32 v{vQo}, v20, 4, v16
      v_xor_b32 v19, 32, v{vQo}
      v_add_u32 v{vQo+1}, {16384-1024}, v19
      s_lshl2_add_u32 s{sSx}, s{sRB}, s{sW}
      s_lshl_b32 s{sSx}, s{sSx}, 16""")
    for i in range(4): a(f"v_xor_b32 v19, {64*(i%2)}, v18\n v_add_u32 v{vXo+i}, {i*16384 - i*1024}, v19")
    a(f"s_mul_i32 s{sT0}, s{sW}, {16*7168}\n s_mul_i32 s{sT1}, s{sCB}, 448\n s_add_u32 s{sSo}, s{sT0}, s{sT1}")
    a(f"s_mul_i32 s{sM}, s{sW}, 7168\n s_movk_i32 s{sT2}, {7168-448}")
    def w1off(i):
        a(f"""v_add_u32 v16, {64*i}, v0
          v_mul_u32_u24 v17, 2341, v16
          v_lshrrev_b32 v17, 16, v17
          v_bfe_u32 v18, v17, 3, 1
          v_lshlrev_b32 v18, 1, v18
          v_xor_b32 v16, v16, v18
          v_lshlrev_b32 v16, 4, v16
          v_mad_u32_u24 v{vO+i}, v17, s{sT2}, v16""")
        if i % 4: a(f"v_subrev_u32 v{vO+i}, {1024*(i%4)}, v{vO+i}")
    for i in range(2): w1off(i)
    kwait(); srd(rA, pX, 2048 * 2048); srd(rPF, pWQ, 1024 * 2048); srd(rB, pW1, 1024 * 7168)
    a(f"""s_lshl_b32 s{sMx}, s{sW}, 12
      s_lshl_b32 s{sMq}, s{sW}, 11
      s_lshl_b32 s{sSq}, s{sW}, 15
      s_lshl_b32 s{sT0}, s{sQB}, 7
      s_add_u32 s{sSq}, s{sSq}, s{sT0}""")
    trickle = []
    def trk(all_=False):
        while trickle:
            for t_ in trickle.pop(0): a.label(t_[:-1]) if t_.endswith(":") else a.lg(t_)
            if not all_: break
    def ldW(u, m=None):
        for i in range(7):
            if i == 4 and m: m()
            if u == 0 and i >= 2: w1off(i)
            if i % 4 == 0: a(f"s_add_u32 m0, s{sM}, {(u%2)*2*W1S + i*1024}\n s_nop 0")
            a.vm(f"buffer_load_dwordx4 v{vO+i}, s[{rB}:{rB+3}], s{sSo} offen offset:{1024*(i%4)} lds", ("W", u)); trk()
        a(f"s_add_u32 s{sSo}, s{sSo}, {64*7168}")
    def ldQ(u):
        a(f"s_add_u32 m0, s{sMq}, {WQR + (u%2)*2*WQS}\n s_nop 0")
        for i in range(2):
            a.vm(f"buffer_load_dwordx4 v{vQo+i}, s[{rPF}:{rPF+3}], s{sSq} offen offset:{1024*i} lds", ("Q", u)); trk()
        a(f"s_add_u32 s{sSq}, s{sSq}, 131072")
    def ldX(u):
        a(f"s_add_u32 m0, s{sMx}, {XR + (u%3)*XS}\n s_nop 0")
        for i in range(4):
            a.vm(f"buffer_load_dwordx4 v{vXo+i}, s[{rA}:{rA+3}], s{sSx} offen offset:{1024*i} lds", ("X", u)); trk()
        a(f"s_add_u32 s{sSx}, s{sSx}, 128")
    plainwait = a.wait
    def pwait(vm=(), lg=()):
        tags = vm if isinstance(vm, list) else [vm]
        idx = max([k for k, x in enumerate(a.vmq) if x in tags], default=-1)
        isP = lambda x: isinstance(x, tuple) and x[0] == "P"
        rest = a.vmq[idx + 1:]
        if idx < 0 or not any(map(isP, rest)): return plainwait(vm, lg)
        assert lg == ()
        n0 = sum(not isP(x) for x in rest); l = a.newlabel("L_pw")
        for g_ in sorted({x[1] for x in rest if isP(x)}) if OPT["pexact"] else []:
            l2 = a.newlabel("L_pw")
            a(f"s_cmp_lg_u32 s{sGrp}, {g_}\n s_cbranch_scc1 {l2}\n s_waitcnt vmcnt({n0 + rest.count(('P', g_))})\n s_branch {l}")
            a.label(l2)
        a(f"s_waitcnt vmcnt({n0})"); a.label(l)
        a.vmq[:] = rest
    a.wait = pwait
    a.vmq.clear(); a.lgq.clear()
    ldX(0); ldQ(0); ldW(0)
    a(f"s_cmp_eq_u32 s{sW}, 3\n s_cbranch_scc1 L_st2")
    q0 = list(a.vmq)
    for path in (0, 2):
        section(f"st{path}")
        a.label(f"L_st{path}")
        a.vmq[:] = q0; a.lgq.clear()
        pfs = lambda t: None
        if path == 0: pass
        else:
            assert OPT["lut"] == 0
            a(f"""s_and_b32 s{sGrp}, s{sI}, 7
              s_lshl_b32 s{sT0}, s{sGrp}, 5
              s_and_b32 s{sT1}, s2, 4
              s_lshl2_add_u32 s{sT0}, s{sT1}, s{sT0}
              s_lshr_b32 s{sT1}, s{sI}, 3
              s_lshl2_add_u32 s{sT0}, s{sT1}, s{sT0}
              s_and_b32 s{sT1}, s2, 3
              s_mul_i32 s{sPo}, s{sT0}, 7168
              s_mul_i32 s{sT2}, s{sT1}, 1792
              s_add_u32 s{sPo}, s{sPo}, s{sT2}
              s_lshl2_add_u32 s{sPm}, s{sT0}, s{sT1}
              s_lshl_b32 s{sPm}, s{sPm}, 9
              s_and_b32 s{sT1}, s2, 7
              s_lshl_b32 s{sT1}, s{sT1}, 5
              s_add_u32 s{sT1}, s{sT1}, s{sI}
              s_lshl_b32 s{sIT}, s{sT1}, 14
              v_lshrrev_b32 v16, 3, v0
              v_lshlrev_b32 v16, 11, v16
              v_and_b32 v17, 7, v0
              v_lshl_add_u32 v{vP+0}, v17, 7, v16
              v_lshlrev_b32 v{vP+1}, 7, v0
              v_mul_u32_u24 v16, 7168, v2
              v_lshl_add_u32 v{vP+2}, v1, 7, v16
              v_lshrrev_b32 v16, 2, v0
              v_and_b32 v17, 3, v0
              v_lshlrev_b32 v17, 7, v17
              v_lshl_add_u32 v{vP+3}, v16, 11, v17""")
            def pfW(so, sm, vm):
                a("s_mov_b32 exec_lo, 0x3fff3fff\n s_mov_b32 exec_hi, 0x3fff3fff")
                vm(f"buffer_load_dword v250, v{vP+2}, s[{rB}:{rB+3}], s{so} offen{NT}")
                a("s_mov_b64 exec, 0xffff")
                vm(f"buffer_load_dword v250, v{vP+3}, s[{rPF}:{rPF+3}], s{sm} offen{NT}")
                a("s_mov_b64 exec, -1")
            def p0():
                if OPT["nopf"]: return
                a(f"s_mov_b32 exec_lo, 0x0f0f0f0f\n s_mov_b32 exec_hi, 0x0f0f0f0f")
                a.vm(f"buffer_load_dword v250, v{vP+0}, s[{rA}:{rA+3}], s{sIT} offen{NT}")
                a(f"""s_cmp_lt_u32 s{sGrp}, {LEAD}
                  s_cselect_b32 s{sT0}, s{sPo}, {OOB}
                  s_cselect_b32 s{sT1}, s{sPm}, {OOB}""")
                pfW(sT0, sT1, a.vm)
                a(f"""s_cselect_b32 s{sT0}, {256*7168}, 0
                  s_cselect_b32 s{sT1}, {256*2048}, 0
                  s_add_u32 s{sPo}, s{sPo}, s{sT0}
                  s_add_u32 s{sPm}, s{sPm}, s{sT1}
                  s_and_b32 s{sIT}, s{sIT}, {31 << 17}
                  v_lshrrev_b32 v16, 1, v0
                  v_and_b32 v17, 1, v0
                  v_lshlrev_b32 v17, 7, v17
                  v_lshl_add_u32 v{vP+0}, v16, 11, v17""")
            def pfs(t):
                if OPT["nopf"]: return
                if t + LEAD < 32:
                    l = a.newlabel("L_np")
                    a(f"s_cmp_lg_u32 s{sGrp}, {(t+LEAD)%8}\n s_cbranch_scc1 {l}")
                    pv_ = lambda x: a.vm(x, ("P", (t + LEAD) % 8))
                    pfW(sPo, sPm, pv_)
                    a(f"s_add_u32 s{sPo}, s{sPo}, {256*7168}\n s_add_u32 s{sPm}, s{sPm}, {256*2048}")
                    if t < 6:
                        for k_ in range(2):
                            pv_(f"buffer_load_dword v250, v{vP+0}, s[{rA}:{rA+3}], s{sIT} offen offset:{512+256*t}{NT}"); a(f"s_add_u32 s{sIT}, s{sIT}, 65536")
                    if OPT["pf2"] and t // 8 == OPT["pf2b"]:
                        srd(rD, pW2, 3584 * 2048)
                        if OPT["loc2"]:
                            a(f"""s_bfe_u32 s{sT0}, s2, {hex(((3-LC) << 16) + LC)}
                              s_lshl_b32 s{sT0}, s{sT0}, 5
                              s_add_u32 s{sT1}, s{sT0}, s{sI}
                              s_lshr_b32 s{sT0}, s{sT1}, {6-LC}
                              s_mul_i32 s{sT0}, s{sT0}, {896*2048}
                              s_and_b32 s{sT1}, s{sT1}, {(64 >> LC) - 1}
                              s_lshl_b32 s{sT1}, s{sT1}, {13+LC}
                              s_add_u32 s{sT0}, s{sT0}, s{sT1}
                              s_and_b32 s{sT1}, s{sCB2}, {(1 << LC) - 1}
                              s_lshl_b32 s{sT1}, s{sT1}, 7
                              s_add_u32 s{sT0}, s{sT0}, s{sT1}
                              v_lshlrev_b32 v{vP+1}, {7+LC}, v0""")
                        else: a(f"s_lshr_b32 s{sT0}, s2, 6\n s_mul_i32 s{sT0}, s{sT0}, {896*2048}\n s_and_b32 s{sT1}, s2, 63\n s_lshl_b32 s{sT1}, s{sT1}, 13\n s_add_u32 s{sT0}, s{sT0}, s{sT1}")
                        pv_(f"buffer_load_dword v250, v{vP+1}, s[{rD}:{rD+3}], s{sT0} offen")
                    a.label(l)
        def kvsetup():
            if OPT["evk"]: a(f"s_bfe_u32 s{sISV}, s{sPOS}, 0x10002\n s_lshr_b32 s{sR0}, s{sPOS}, 3\n s_lshl_b32 s{sR0}, s{sR0}, 2\n s_and_b32 s{sT0}, s{sPOS}, 3\n s_add_u32 s{sR0}, s{sR0}, s{sT0}")
            else: a(f"s_and_b32 s{sISV}, s{sCB}, 1\n s_lshr_b32 s{sR0}, s{sCB}, 1")
            a(f"""s_lshl_b32 s{sR0}, s{sR0}, 4
              s_lshl_b32 s{sT0}, s{sRB}, 7
              s_add_u32 s{sR0}, s{sR0}, s{sT0}
              s_cmp_eq_u32 s{sISV}, 0
              s_cselect_b32 s{rC}, s{pWK}, s{pWV}
              s_cselect_b32 s{rC+1}, s{pWK+1}, s{pWV+1}
              s_mov_b32 s{rC+2}, 65536
              s_mov_b32 s{rC+3}, 0x20000
              v_lshlrev_b32 v{vKVD}, 4, v0""")
            if path == 2:
                srd(rD, pGATE, 2048); srd(rDBG, pDBG, 256)
                a(f"s_lshl_b32 s{sT0}, s{sR0}, 5\n s_mov_b64 exec, 15")
                a.vm(f"buffer_load_dword v250, v{vP+1}, s[{rC}:{rC+3}], s{sT0} offen"); a("s_mov_b64 exec, -1")
                a(f"s_mov_b32 m0, {GT}\n s_nop 0")
                for i in range(2): a.vm(f"buffer_load_dwordx4 v{vKVD}, s[{rD}:{rD+3}], 0 offen offset:{1024*i} lds", "gt")
        if path == 2 and OPT["p0late"] == 1: p0(); kvsetup()
        ldX(1); ldQ(1)
        if path == 2 and OPT["p0late"] == 2: p0(); kvsetup()
        if OPT["w1pre"]: ldW(1)
        stamp("a_iss")
        a(f"s_branch L_a1m{path}")
        section("main")
        cm('A, phase 1: LDS-DMA of the GEMM operands; K (scaled by log2(e)/sqrt(32)), V and the gate of 16 rows on the side')
        a.label(f"L_a1m{path}")
        if path != 2: kvsetup()
        a(f"""s_lshl_b32 s{sSTG}, s{sW}, 13
          s_add_u32 s{sSTG}, s{sSTG}, {KVST}
          s_lshl_b32 s{sT0}, s{sW}, 7
          v_lshl_add_u32 v17, v2, 4, s{sT0}
          v_add_u32 v{vKG}, {GT}, v17
          v_lshrrev_b32 v16, 3, v0
          v_add_u32 v16, s{sR0}, v16
          v_and_b32 v17, 7, v0
          v_xor_b32 v17, v17, v2
          v_lshl_add_u32 v17, v17, 4, s{sT0}
          v_lshl_add_u32 v{vKX}, v16, 11, v17
          v_xor_b32 v16, 64, v{vKX}
          v_add_u32 v{vKX+1}, {16384-1024}, v16
          v_lshrrev_b32 v16, 1, v1
          v_xor_b32 v16, v16, v2
          v_lshlrev_b32 v16, 4, v16
          v_lshl_add_u32 v16, v1, 7, v16
          v_add_u32 v{vKR}, s{sSTG}, v16
          v_xor_b32 v{vKR+1}, 64, v{vKR}
          v_lshrrev_b32 v16, 4, v0
          v_and_b32 v16, 2, v16
          v_xor_b32 v16, v16, v0
          s_lshl_b32 s{sT0}, s{sW}, 12
          v_lshl_add_u32 v{vKW}, v16, 4, s{sT0}
          v_lshrrev_b32 v16, 2, v1
          v_lshl_add_u32 v16, v2, 3, v16
          v_and_b32 v17, 3, v1
          v_lshlrev_b32 v17, 3, v17
          v_lshl_add_u32 v16, v16, 6, v17
          v_and_b32 v17, 1, v2
          v_lshl_add_u32 v16, v17, 5, v16
          v_add_u32 v{vKT0}, s{sSTG}, v16
          v_xor_b32 v{vKT0+1}, 32, v{vKT0}""")
        for r in range(12): a(f"v_mov_b32 v{KAC+r}, 0")
        def konly(l_):
            lb = a.newlabel("L_ko")
            return [f"s_cmp_lg_u32 s{sISV}, 0\n s_cbranch_scc1 {lb}"] + l_ + [lb + ":"]
        def kvX(rho):
            if 'X' in OPT['kvskip']: return
            a(f"s_add_u32 m0, s{sSTG}, 6144\n s_movk_i32 s{sT0}, {rho*512}")
            for i in range(2):
                a.vm(f"buffer_load_dwordx4 v{vKX+i}, s[{rA}:{rA+3}], s{sT0} offen offset:{1024*i} lds", ("kw", rho))
        def kvW(rho, half):
            if 'W' in OPT['kvskip']: return
            if half: a.wait0(vm=False)
            a(f"s_add_u32 m0, s{sSTG}, {4096 if half else (rho%2)*2048}\n s_mov_b32 s{sT0}, {rho*16384 + half*2048}")
            for i in range(2):
                a.vm(f"buffer_load_dwordx4 v{vKW}, s[{rC}:{rC+3}], s{sT0} offen offset:{1024*i} lds", ("kw", rho))
        def kvR(rho):
            if 'R' in OPT['kvskip']: return
            a.wait(vm=("kw", rho))
            for i in range(2):
                for nt in range(2):
                    trickle.append([f"ds_read_b64_tr_b16 {vr(KWF+8*i+4*nt+2*e,2)}, v{vKT0+nt} offset:{(4096 if i else (rho%2)*2048)+e*256}" for e in range(2)])
            trickle.append([f"ds_read_b128 {vr(KXF+4*i,4)}, v{vKR+i} offset:6144" for i in range(2)])
            trickle.append(konly([f"ds_read_b128 {vr(KGF+4*i,4)}, v{vKG} offset:{512*rho+64*i}" for i in range(2)]))
        def kvM(rho):
            if 'M' in OPT['kvskip']: return
            a.wait0(vm=False)
            lv, ld = a.newlabel("L_kv"), a.newlabel("L_kd")
            a(f"s_cmp_lg_u32 s{sISV}, 0\n s_cbranch_scc1 {lv}")
            for nt in range(2):
                for i in range(2): mf16(KAC + 4 * nt, KWF + 8 * i + 4 * nt, KXF + 4 * i)
            for i in range(2): mf16(KAC + 8, KGF + 4 * i, KXF + 4 * i)
            a(f"s_branch {ld}")
            a.label(lv)
            for nt in range(2):
                for i in range(2): mf16(KAC + 4 * nt, KXF + 4 * i, KWF + 8 * i + 4 * nt)
            a.label(ld)
        def kvP():
            if 'P' in OPT['kvskip']: return
            a(f"v_add_u32 v16, s{sSTG}, v{vKVD}\n s_nop 5")
            if OPT["pw"] == 128:
                for nt in range(2): trickle.append([f"ds_write_b128 v16, {vr(KAC+4*nt,4)} offset:{nt*1024}"])
            elif OPT["pw"] == 64:
                for k_ in range(4): trickle.append([f"ds_write_b64 v16, {vr(KAC+2*k_,2)} offset:{(k_//2)*1024+(k_%2)*8}"])
            elif OPT["pw"] == 32:
                for k_ in range(0, 8, 2): trickle.append([f"ds_write_b32 v16, v{KAC+k2} offset:{(k2//4)*1024+(k2%4)*4}" for k2 in (k_, k_ + 1)])
            trickle.append(konly([f"ds_write_b32 v16, v{KAC+8} offset:2048"]))
            if OPT["pb"]: trk(True)
            if OPT["pb"] > 1: a.wait0(vm=False)
        def kvF():
            if 'F' in OPT['kvskip']: return
            a(f"v_add_u32 v26, {KVST}, v{vKVD}")
            for w in range(3):
                a(f"ds_read_b128 {vr(32+8*w,4)}, v26 offset:{w*8192}\n ds_read_b128 {vr(36+8*w,4)}, v26 offset:{w*8192+1024}")
            a(f"""s_lshr_b32 s{sT3}, s{sR0}, 5
              s_lshl_b32 s{sT3}, s{sT3}, 12
              s_add_u32 s{sT3}, s{sT3}, {KV_OFF}
              s_bfe_u32 s{sT4}, s{sR0}, 0x10004
              s_cmp_eq_u32 s{sISV}, 0
              s_cselect_b32 s{sT0}, {f2u(32 ** -0.5 * math.log2(math.e))}, 1.0
              s_cselect_b32 s{sT2}, 7, 9
              s_cselect_b32 s{sT5}, 0, 2048
              s_lshl_b32 s{sT4}, s{sT4}, s{sT2}
              s_add_u32 s{sT3}, s{sT3}, s{sT4}
              s_add_u32 s{sT3}, s{sT3}, s{sT5}
              s_waitcnt lgkmcnt(0)""")
            for r in range(8):
                a(f"v_add_f32 v{32+r}, v{32+r}, v{40+r}\n v_add_f32 v{48+r}, v{48+r}, v{KAC+r}\n v_add_f32 v{32+r}, v{32+r}, v{48+r}\n v_mul_f32 v{32+r}, s{sT0}, v{32+r}")
            for r in range(4): a(f"v_cvt_pk_bf16_f32 v{40+r}, v{32+2*r}, v{33+2*r}")
            a(f"s_cmp_eq_u32 s{sISV}, 0\n s_cbranch_scc1 L_nosw\n v_permlane16_swap_b32 v40, v42\n v_permlane16_swap_b32 v41, v43")
            a.label("L_nosw")
            a.vm(f"buffer_store_dwordx4 v[40:43], v27, s[{rWS}:{rWS+3}], s{sT3} offen sc1", "pub")
        def kvF0():
            a(f"""v_bfe_u32 v16, v1, 2, 1
              v_lshlrev_b32 v16, 10, v16
              v_lshl_add_u32 v16, v2, 8, v16
              v_lshrrev_b32 v17, 3, v1
              v_lshl_add_u32 v16, v17, 6, v16
              v_and_b32 v17, 3, v1
              v_lshl_add_u32 v27, v17, 4, v16
              s_cmp_eq_u32 s{sISV}, 0
              s_cbranch_scc1 L_kadr
              v_and_b32 v16, 1, v2
              v_lshlrev_b32 v16, 10, v16
              v_lshrrev_b32 v17, 1, v2
              v_lshl_add_u32 v16, v17, 8, v16
              v_lshl_add_u32 v27, v1, 4, v16""")
            a.label("L_kadr")
        def kvF2():
            if 'F' in OPT['kvskip']: return
            a(f"s_mov_b32 s{sT0}, {OOB}\n v_lshlrev_b32 v20, 2, v0\n s_cmp_lg_u32 s{sISV}, 0\n s_cbranch_scc1 L_nogate")
            for w in range(3): a(f"ds_read_b32 v{64+w}, v26 offset:{w*8192+2048}")
            a(f"""s_lshl_b32 s{sT0}, s{sR0}, 2
              s_add_u32 s{sT0}, s{sT0}, {G_OFF}
              s_waitcnt lgkmcnt(0)
              v_add_f32 v64, v64, v65
              v_add_f32 v66, v66, v{KAC+8}
              v_add_f32 v64, v64, v66
              v_mul_f32 v64, {f2u(-math.log2(math.e))}, v64
              v_exp_f32 v64, v64
              s_nop 0
              v_add_f32 v64, 1.0, v64
              v_rcp_f32 v64, v64""")
            a.label("L_nogate")
            a("s_mov_b64 exec, 0xffff")
            a.vm(f"buffer_store_dword v64, v20, s[{rWS}:{rWS+3}], s{sT0} offen sc1", "pub"); a("s_mov_b64 exec, -1")
        def kvA():
            a(f"""s_lshl_b32 s{sT0}, s{sRB}, 4
              s_add_u32 s{sT0}, s{sT0}, s{sCB}
              s_lshl_b32 s{sT0}, s{sT0}, 2
              s_add_u32 s{sT0}, s{sT0}, {KF_OFF}
              v_mov_b32 v16, 1
              v_mov_b32 v17, 0""")
            a.wait(vm="pub")
            a("s_mov_b64 exec, 1"); a.vm(f"buffer_store_dword v16, v17, s[{rWS}:{rWS+3}], s{sT0} offen sc1"); a("s_mov_b64 exec, -1")
        def clr():
            a(f"""s_and_b32 s{sT0}, s2, 0xc1
              s_cbranch_scc1 L_noclr
              s_lshl_b32 s{sT0}, s2, 11
              s_add_u32 s{sT0}, s{sT0}, {FL_OFF}
              s_lshl_b32 s{sT1}, s2, 4
              s_add_u32 s{sT1}, s{sT1}, {KF_OFF}
              v_lshrrev_b32 v16, 1, v0
              v_and_b32 v17, 1, v0
              v_lshlrev_b32 v17, 4, v17
              v_lshl_add_u32 v16, v16, 7, v17
              {chr(10).join(f"buffer_store_dwordx4 v[{KAC}:{KAC+3}], v{vKVD}, s[{rWS}:{rWS+3}], s{sT0} offen offset:{1024*k_} sc1" for k_ in range(4)) if OPT["clrf"] else f"buffer_store_dwordx4 v[{KAC}:{KAC+3}], v16, s[{rWS}:{rWS+3}], s{sT0} offen sc1"}
              s_mov_b64 exec, 3
              buffer_store_dwordx4 v[{KAC}:{KAC+3}], v16, s[{rWS}:{rWS+3}], s{sT1} offen sc1
              s_mov_b64 exec, -1""")
            a.label("L_noclr")
        def clrdone():
            a(f"""s_and_b32 s{sT0}, s2, 0xc1
              s_cbranch_scc1 L_noclr2
              s_waitcnt vmcnt(0)
              s_lshl_b32 s{sT0}, s2, 1
              v_mov_b32 v16, 1
              v_mov_b32 v17, 0
              s_mov_b64 exec, 1
              buffer_store_dword v16, v17, s[{rDBG}:{rDBG+3}], s{sT0} offen sc1
              s_mov_b64 exec, -1""")
            a.label("L_noclr2")
        def kvPoll0a():
            a(f"v_and_b32 v19, 31, v0\n v_lshlrev_b32 v19, 2, v19"); a.vm(f"buffer_load_dword v18, v19, s[{rDBG}:{rDBG+3}], 0 offen sc1", "p0")
        def kvPoll0():
            a(f"s_mov_b32 s{sT1}, {SPIN_MAX}")
            a.wait(vm="p0")
            a.label("L_poll0")
            a(f"""v_cmp_ne_u32 vcc, 1, v18
              s_sub_u32 s{sT1}, s{sT1}, 1
              s_cbranch_vccz L_poll0x
              s_sleep 16
              buffer_load_dword v18, v19, s[{rDBG}:{rDBG+3}], 0 offen sc1
              s_waitcnt vmcnt(0)
              s_cmp_lg_u32 s{sT1}, 0
              s_cbranch_scc1 L_poll0""")
            a.label("L_poll0x")
        def kvPoll1a():
            a(f"s_mov_b32 s{sT3}, {KF_OFF}"); a.vm(f"buffer_load_dwordx4 v[20:23], v{vKVD}, s[{rWS}:{rWS+3}], s{sT3} offen sc1", "p1")
        def kvPoll1():
            a(f"s_mov_b32 s{sT1}, {SPIN_MAX}")
            a.wait(vm="p1")
            a.label("L_poll1")
            a(f"""v_and_b32 v20, v20, v21
              v_and_b32 v22, v22, v23
              v_and_b32 v20, v20, v22
              v_cmp_ne_u32 vcc, 1, v20
              s_sub_u32 s{sT1}, s{sT1}, 1
              s_cbranch_vccz L_poll1x
              s_sleep 16
              buffer_load_dwordx4 v[20:23], v{vKVD}, s[{rWS}:{rWS+3}], s{sT3} offen sc1
              s_waitcnt vmcnt(0)
              s_cmp_lg_u32 s{sT1}, 0
              s_cbranch_scc1 L_poll1""")
            a.label("L_poll1x")
        def kvD(c):
            if c == 0:
                a(f"s_add_u32 s{rE}, s{pWS}, {KV_OFF}\n s_addc_u32 s{rE+1}, s{pWS+1}, 0\n s_mov_b32 s{rE+2}, 0x40000\n s_mov_b32 s{rE+3}, 0x20000")
                a(f"s_lshl_b32 s{sIT}, s{sW}, 12")
            a(f"s_add_u32 m0, s{sIT}, {KVR + ((c+2)%4)*16384}\n s_add_u32 s{sT0}, s{sIT}, {c*16384}")
            for i in range(4):
                a.vm(f"buffer_load_dwordx4 v{vKVD}, s[{rE}:{rE+3}], s{sT0} offen offset:{1024*i} sc1 lds", ("kv", c))
        def kvDr(c):
            a(f"s_add_u32 s{sT0}, s{sIT}, {c*16384}")
            for i in range(4):
                a.vm(f"buffer_load_dwordx4 {vr(KVREG+16*(c-4)+4*i,4)}, v{vKVD}, s[{rE}:{rE+3}], s{sT0} offen offset:{1024*i} sc1", ("kv", c))
        def ldG():
            a(f"""s_lshl_b32 s{sT1}, s{sRB}, 9
              s_lshl_b32 s{sT2}, s{sW}, 7
              s_add_u32 s{sT1}, s{sT1}, s{sT2}
              s_add_u32 s{sT1}, s{sT1}, {G_OFF}
              v_lshlrev_b32 v22, 2, v1""")
            for h in range(2): a.vm(f"buffer_load_dword v{vG+h}, v22, s[{rWS}:{rWS+3}], s{sT1} offen offset:{64*h} sc1")
        def low(f):
            return (lambda: (a("s_setprio 0"), f(), a("s_setprio 1"))) if OPT["lowv"] else f
        post = {k: [] for k in range(33)}; pre = {k: [] for k in range(33)}; mid = {k: [] for k in range(33)}
        if not OPT["nokv"]:
            for rho in range(4):
                pre[3*rho+5].append(lambda rho=rho: kvR(rho)); mid[3*rho+6].append(lambda rho=rho: kvM(rho))
                post[3*rho+3].append(lambda rho=rho: kvX(rho))
                post[3*rho+1].append(lambda rho=rho: kvW(rho, 0)); post[3*rho+2].append(lambda rho=rho: kvW(rho, 1))
            if path < 2: pre[16].append(kvP); post[16].append(lambda: a.wait0(vm=False))
            if path == 2:
                post[2] += [clr]; pre[7].append(clrdone); post[13].append(low(kvF0)); post[3].append(lambda: a.wait(vm="gt"))
                ({0: post, 1: pre, 2: mid}[OPT['fpre'] % 3])[17] += [low(kvF) if OPT['fpre'] < 3 else kvF]; ({0: post, 1: mid, 2: mid}[OPT['fpre'] % 3])[18] += [low(kvF2) if OPT['fpre'] < 3 else kvF2]; pre[18] += [kvPoll0a]; (mid if OPT['fpre'] else post)[20] += [kvPoll0, kvA]; pre[26].append(kvPoll1a); post[27].append(kvPoll1)
            for k_ in range(4): mid[22 + k_].append(low(lambda k_=k_: attention_setup(k_)))
            post[28].append(ldG)
            for c, t_ in enumerate((28, 29, 29, 30)): post[t_].append(lambda c=c: kvD(c))
            for c in range(OPT["kvreg"]): post[30].append(lambda c=c: kvDr(4 + c))
        stamp("a_set")
        for s_ in range(31):
            u = s_ // 2
            a.wait(vm=[("W", u), ("Q", 0), ("X", 0)] if s_ % 2 == 0 else [("Q", u + 1), ("X", u + 1)])
            if s_ == 0: stamp("a_w0")
            if s_ == 29:
                if path < 2: a("s_branch L_a1done"); break
                a.label("L_a1done")
                a.vmq[:] = [("W", 15), None, None] + [("kv", 0)] * 4
            a("s_barrier")
            if s_ == 0: stamp("a_b0")
            if s_ in (8, 16, 24): stamp(f"a_{s_}")
            if OPT["steps"] and path == 2 and s_ < 29:
                a("s_memtime s[98:99]"); a.wait0(vm=False); a(f"v_writelane_b32 v160, s98, {s_}")
                if s_ == 28:
                    a(f"s_lshl_b32 s98, s2, 8\n s_add_u32 s98, s98, {TS_OFF+0x10000}\n v_lshlrev_b32 v161, 2, v0\n buffer_store_dword v160, v161, s[{rWS}:{rWS+3}], s98 offen")
            for f in pre[s_]: f()
            midf = lambda: [f() for f in mid[s_]]
            if s_ % 2 == 0:
                if u + 1 < 16 and not (u == 0 and OPT["w1pre"]): ldW(u + 1, midf)
                else: midf()
                if s_ == OPT["xr"]: ldX(u + 2)
            else:
                if u + 2 < 16: ldQ(u + 2)
                midf()
                xa = 3 if s_ > OPT["xr"] else 2
                if u + xa < 16: ldX(u + xa)
            trk(True)
            for f in post[s_]: f()
            if not OPT["peven"]: pfs(s_)
            elif s_ % 2 == 0: pfs(s_); pfs(s_ + 1)
    a.wait = plainwait
    a.wait(vm=[("kv", 1)])
    a.vmq[:] = [("kv", 2)] * 4 + [None if OPT["kvreg"] else ("kv", 3)] * 4
    a("s_barrier")
    attention_setup(4)
    a("s_barrier")

QF, OA, LA, SB, PB, KF, VF, ONES = 32, 48, 80, 88, 120, 136, 176, 168
vKc, vKn, vSy, vOne, vCnt, vIdx, vQa, vSt = 248, 249, 251, 252, 20, 255, 30, 31
vD, vDW = 240, 244
def wtile_offsets(dst):
    a(f"""v_lshrrev_b32 v22, 3, v0
      v_lshlrev_b32 v22, 11, v22
      v_and_b32 v23, 1, v2
      v_lshlrev_b32 v23, 2, v23
      v_and_b32 v24, 7, v0
      v_xor_b32 v23, v23, v24
      v_lshl_add_u32 v22, v23, 4, v22
      s_lshl_b32 s{sT0}, s{sCB2}, 7
      v_add_u32 v22, s{sT0}, v22""")
    for i in range(4): a(f"v_xor_b32 v23, {32*(i%2)}, v22\n v_add_u32 v{dst+i}, {i*16384-i*1024}, v23")
def lsum(z, P):
    a(f"v_smfmac_f32_16x16x64_bf16 {vr(LA+4*(z//2),4)}, {vr(ONES+4*(z%2),4)}, {vr(P,8)}, v{vIdx}")
sKo, sCn, sDo, sMb, sDs, sO0, sO1 = sA, sB, sC, sD, sE, sF, sG
def attention_setup(part):
    if part == 0: wtile_offsets(vDW)
    if part == 1:
        a(f"""s_lshl_b32 s{sT0}, s{sW}, 12
          s_add_u32 s{sT1}, s{sT0}, {QX}
          v_lshl_add_u32 v{vQa}, v0, 4, s{sT1}
          v_add_u32 v{vKc}, {KVR}, v{vKVD}
          v_mov_b32 v{vKn}, {SYNC}
          v_and_b32 v22, 2, v1
          v_mov_b32 v23, 0x3f803f80
          v_cmp_eq_u32 vcc, 0, v22
          v_lshl_add_u32 v{vSy}, v0, 2, v{vKn}
          v_sub_u32 v{vOne}, 1, v0
          v_max_i32 v{vOne}, 0, v{vOne}
          v_cndmask_b32 v{ONES}, 0, v23, vcc
          v_cndmask_b32 v{ONES+1}, 0, v23, vcc
          v_xor_b32 v{ONES+4}, v{ONES}, v23
          v_xor_b32 v{ONES+5}, v{ONES}, v23
          v_mov_b64 {vr(ONES+2,2)}, {vr(ONES,2)}
          v_mov_b64 {vr(ONES+6,2)}, {vr(ONES+4,2)}
          v_and_b32 v22, 1, v1
          v_mul_u32_u24 v22, 0xaaaa, v22
          v_or_b32 v{vIdx}, 0x4444, v22""")
    if part == 2:
        a(f"""v_and_b32 v22, 1, v2
          v_lshlrev_b32 v22, 9, v22
          v_lshrrev_b32 v23, 1, v2
          v_lshl_add_u32 v22, v23, 8, v22
          v_lshl_add_u32 v{vSt}, v1, 4, v22""")
        for r in range(4): a(f"v_mov_b32 v{vD+r}, v{vKVD}")
        for r in list(range(PB + 8, PB + 16, 2)) + list(range(VF + 16, VF + 32, 2)): a(f"v_mov_b64 {vr(r,2)}, 0")
    if part == 3:
        for r in range(OA, OA + 40, 2): a(f"v_mov_b64 {vr(r,2)}, 0")
    if part == 4:
        a(f"""s_lshl_b32 s{sT0}, s{sW}, 12
          s_mov_b32 s{sCn}, 4
          s_add_u32 s{sDo}, s{sT0}, {3*16384}
          s_mov_b32 s{sDs}, 16384
          s_mov_b32 s{sKo}, 16384
          s_add_u32 s{sMb}, s{sT0}, {KVR}
          s_mul_i32 s{sO0}, s{sRB}, {RBSZ}
          s_lshl_b32 s{sT1}, s{sQB}, 14
          s_add_u32 s{sO0}, s{sO0}, s{sT1}
          s_lshl_b32 s{sT1}, s{sW}, 11
          s_add_u32 s{sO0}, s{sO0}, s{sT1}
          s_add_u32 s{sO0}, s{sO0}, {112*8192}
          s_add_u32 s{sO1}, s{sO0}, 8192
          s_mov_b32 s{sIT}, 0""")
def attention():
    kvo = lambda T: ((T // 4 + 2) % 4) * 16384 + (T % 4) * 4096
    def rdK(U, e):
        for k_ in range(2): a.lg(f"ds_read_b128 {vr(KF+16*(U%2)+8*e+4*k_,4)}, v{vKc} offset:{kvo(2*U+e)+1024*k_}", "kv")
    def rdV(U, e):
        for k_ in range(2): a.lg(f"ds_read_b128 {vr(VF+16*(U%2)+8*e+4*k_,4)}, v{vKc} offset:{kvo(2*U+e)+2048+1024*k_}", "kv")
    a.lg(f"ds_read_b128 {vr(QF,4)}, v{vQa}")
    rdK(0, 0); rdK(0, 1)
    a.lgq[-1] = "k0"
    a.lg(f"ds_read_b128 {vr(QF+4,4)}, v{vQa} offset:1024", "q1")
    for i in range(2, 4): a.lg(f"ds_read_b128 {vr(QF+4*i,4)}, v{vQa} offset:{1024*i}")
    rdV(0, 0); rdV(0, 1)
    a.wait(lg="k0")
    for k_ in range(4): mf16(SB + 4 * k_, KF + 4 * k_, QF, "0")
    a.wait(lg="q1")
    a("s_nop 3")
    a.raw(".p2align 3")
    cm("attention: S^T = K Q^T, P = exp2(S), O^T += V^T P, row sums by a sparse MFMA; K/V stream through a 4-slot LDS ring.\nZero stands in for the row maximum here; the check after the loop falls back to the true maximum (L_slow)")
    a.label("L_att")
    def pv(k_, U, z, P): e_ = int(k_ in (1, 2)); mf16(OA + 8 * z + 4 * (k_ // 2), VF + 16 * (U % 2) + 8 * e_ + 4 * (k_ // 2), P + 4 * e_)
    def slot(n, hooks):
        U1, z1 = divmod(n + 1, 4); Up, zp = divmod(n - 1, 4)
        S = SB + 16 * (n % 2); S1 = SB + 16 * ((n + 1) % 2)
        P = PB + 8 * (n % 2); Pp = PB + 8 * ((n - 1) % 2)
        ne = nc = 0
        for ch in OPT["pat"]:
            if ch == "e": a(f"v_exp_f32 v{S+ne}, v{S+ne}"); ne += 1
            elif ch == "c": assert ne >= 2 * nc + 2; a(f"v_cvt_pk_bf16_f32 v{P+nc}, v{S+2*nc}, v{S+2*nc+1}"); nc += 1
            elif ch == "w": a.wait(lg=["kv", "cnt"], vm=hooks.get("vm", ()))
            elif ch in "qrst": k_ = "qrst".index(ch); mf16(S1 + 4 * k_, KF + 16 * (U1 % 2) + 4 * k_, QF + 4 * z1, "0")
            elif ch in "uvxy": pv("uvxy".index(ch), Up, zp, Pp)
            elif ch == "S": lsum(zp, Pp)
            else:
                for f in hooks.get(int(ch), []): f()
        assert ne == 16 and nc == 8
        pt = OPT["pat"]; assert pt.index("4") > pt.index("w")
    def body(it):
        for cc in range(4):
            c_ = 4 * it + cc
            for k in range(8):
                n = 8 * c_ + k; U, z = divmod(n, 4)
                hk = {4: [lambda: rdK(U + 1, z) if z < 2 else rdV(U + 1, z - 2)]}
                KA = OPT["arrk"]
                if k == KA:
                    hk["vm"] = ("kv", c_ + 1); hk[4].append(lambda: a.lg(f"ds_add_u32 v{vSy}, v{vOne}"))
                if k == 1:
                    hk[0] = [lambda: a(f"s_add_u32 m0, s{sMb}, {((c_+1)%4)*16384}")]
                    if cc == 1: hk[1] = [lambda: a(f"s_cmp_eq_u32 s{sIT}, 3")]; hk[2] = [lambda: (a("s_cbranch_scc1 L_attwo"), a.label("L_attwo_r"))]
                if k == 2: hk[4].append(lambda: a.lg(f"ds_read_b32 v{vCnt}, v{vKn}", "cnt"))
                if k == 3: hk[5] = [lambda: a(f"v_cmp_gt_u32 vcc, s{sCn}, v{vCnt}")]
                pre_ = cc <= OPT["kvreg"]
                if k == 4:
                    hk[0] = [lambda: (a(f"s_cbranch_vccnz L_attspin{cc}"), a.label(f"L_attgo{cc}"))]
                    hk[1] = [lambda: a(f"s_add_u32 s{sCn}, s{sCn}, 4")]
                    if pre_: hk[2] = [lambda: a(f"s_cmp_eq_u32 s{sIT}, 0")]
                if k in (4, 5):
                    def dma(i):
                        if OPT["anodma"]: return
                        if pre_: a(f"s_cbranch_scc1 L_{'no' if cc == 0 else 'reg'}dma{cc}_{i}")
                        for k2 in (i, i + 1):
                            t_ = f"buffer_load_dwordx4 v{vD+k2}, s[{rE}:{rE+3}], s{sDo} offen offset:{1024*k2} sc1 lds"
                            a.vm(t_, ("kv", c_ + 3)) if c_ > OPT["kvreg"] else a(t_)
                        if pre_: a.label(f"L_nodma{cc}_{i}")
                    if OPT["dpos"] == 0: hk[4].append(lambda: dma(2 * (k - 4)))
                    elif OPT["dpos"] == 1: hk[4].insert(0, lambda: dma(2 * (k - 4)))
                    else: hk[6] = [lambda: dma(2 * (k - 4))]
                if k == 7:
                    hk[0] = [lambda: a(f"s_add_u32 s{sDo}, s{sDo}, s{sKo if cc == 1 else sDs}")]
                    if cc == 3: hk[1] = [lambda: a(f"s_add_u32 s{sIT}, s{sIT}, 1")]; hk[2] = [lambda: a(f"s_cmp_lt_u32 s{sIT}, 4")]
                slot(n, hk)
        a("s_cbranch_scc1 L_att")
    a.loop(body, "att", 3)
    a("s_nop 0")
    lsum(3, PB + 8)
    if OPT["hrel"]: a(f"ds_add_u32 v{vSy}, v{vOne}")
    for k_ in range(4): pv(k_, 31, 3, PB + 8)
    stamp("a_att")
    a(f"s_mov_b32 s{sIT}, 0")
    cm('O * gate / rowsum -> workspace')
    a.label("L_attfin")
    def fin(k):
        T_ = SB + 4 * k
        a(f"v_permlane16_swap_b32 v{T_}, v{T_+2}\n v_permlane16_swap_b32 v{T_+1}, v{T_+3}")
        a(f"buffer_store_dwordx4 {vr(T_,4)}, v{vSt}, s[{rWS}:{rWS+3}], s{sO0+k//2} offen offset:{1024*(k%2)} sc1")
    for k in range(4):
        a(f"v_add_f32 v{24+k}, v{LA+2*k}, v{LA+2*k+1}")
        a(f"v_rcp_f32 v22, v{24+k}")
        if k: fin(k - 1)
        else: a("s_nop 0")
        a(f"v_mul_f32 v22, v22, v{vG+k%2}")
        for r in range(4):
            d = OA + 8 * k + 2 * r
            a(f"v_mul_f32 v{d}, v{d}, v22\n v_mul_f32 v{d+1}, v{d+1}, v22\n v_cvt_pk_bf16_f32 v{SB+4*k+r}, v{d}, v{d+1}")
    a("s_nop 1"); fin(3)
    a(f"s_cmp_lg_u32 s{sIT}, 0\n s_cbranch_scc1 L_attok")
    a(f"s_waitcnt vmcnt(4) lgkmcnt(0)\n ds_add_u32 v{vSy}, v{vOne} offset:12")
    cm('stand-in check: every row sum in [2^-40, 2^100] and nothing infinite or NaN, else redo with the true maximum')
    a(f"s_mov_b32 s{sT0}, {f2u(2.0**-40)}\n s_mov_b32 s{sT1}, {f2u(2.0**100)}\n v_max3_f32 v28, v24, v25, v26\n v_max_f32 v28, v28, v27\n v_mov_b32 v29, 0")
    for r in list(range(OA, OA + 32, 2)) + [24, 26]: a(f"v_pk_fma_f32 v[28:29], {vr(r,2)}, 0, v[28:29]")
    a(f"""v_add_f32 v28, v28, v29
      v_min3_f32 v29, v24, v25, v26
      v_min_f32 v29, v29, v27
      v_cmp_nle_f32 vcc, v28, s{sT1}
      v_cmp_nge_f32 s[{sT2}:{sT3}], v29, s{sT0}
      s_or_b64 vcc, vcc, s[{sT2}:{sT3}]""")
    if OPT["forceslow"]: a("s_branch L_slow")
    a("s_cbranch_vccnz L_slow")
    a.label("L_attok")
    setflag(1)
    stamp("a_end")
    if OPT["padto"]:
        a("s_barrier\n s_barrier" if OPT["ebar"] else "s_barrier")
        a.label("L_pad2")
        a(f"s_memrealtime s[98:99]\n s_waitcnt lgkmcnt(0)\n s_sleep 8\n s_sub_u32 s98, s98, s96\n s_cmp_lt_u32 s98, {OPT['padto']}\n s_cbranch_scc1 L_pad2")
    dump_ts_and_end()
    a.label("L_attwo")
    srd(rE, pWO, 1024 * 2048)
    a(f"s_lshl_b32 s{sDo}, s{sW}, 17\n s_add_u32 s{sDo}, s{sDo}, {524288+65536}\n s_mov_b32 s{sDs}, 65536\n s_mov_b32 s{sKo}, {2*524288-65536}")
    a(f"v_mov_b64 {vr(vD,2)}, {vr(vDW,2)}\n v_mov_b64 {vr(vD+2,2)}, {vr(vDW+2,2)}\n s_branch L_attwo_r")
    for cc in range(1, OPT["kvreg"] + 1):
        for i in (() if OPT["anodma"] else (0, 2)):
            a.label(f"L_regdma{cc}_{i}")
            if i == 0: a(f"s_waitcnt vmcnt(0)\n v_add_u32 v22, s{sMb}, v{vKVD}")
            for k2 in (i, i + 1): a(f"ds_write_b128 v22, {vr(KVREG+16*(cc-1)+4*k2,4)} offset:{((cc+1)%4)*16384+1024*k2}")
            a(f"s_branch L_nodma{cc}_{i}")
    for cc in range(4):
        a.label(f"L_attspin{cc}")
        a(f"s_mov_b32 s{sT2}, {SPIN_MAX}")
        a.label(f"L_attspin{cc}b")
        a(f"""ds_read_b32 v{vCnt}, v{vKn}
          s_waitcnt lgkmcnt(0)
          v_cmp_gt_u32 vcc, s{sCn}, v{vCnt}
          s_sub_u32 s{sT2}, s{sT2}, 1
          s_cbranch_vccz L_attgo{cc}
          s_cmp_lg_u32 s{sT2}, 0
          s_cbranch_scc1 L_attspin{cc}b
          s_branch L_attgo{cc}""")
    cm('exact path: pass 1 finds the true row maximum, pass 2 subtracts it (through the accumulator input of the score MFMA)')
    a.label("L_slow")
    NM = 208
    a(f"s_add_u32 s{rE}, s{pWS}, {KV_OFF}\n s_addc_u32 s{rE+1}, s{pWS+1}, 0\n s_mov_b32 s{rE+2}, 0x40000\n s_mov_b32 s{rE+3}, 0x20000")
    a(f"s_waitcnt vmcnt(0) lgkmcnt(0)\n s_mov_b32 s{sT0}, 0\n s_mov_b32 s{sIT}, 1")
    for k in range(4): a(f"v_mov_b32 v{24+k}, 0xff800000")
    a.label("L_slow1")
    a(f"buffer_load_dwordx4 {vr(KF,4)}, v{vKVD}, s[{rE}:{rE+3}], s{sT0} offen sc1\n buffer_load_dwordx4 {vr(KF+4,4)}, v{vKVD}, s[{rE}:{rE+3}], s{sT0} offen offset:1024 sc1\n s_waitcnt vmcnt(0)")
    for k in range(8): mf16(SB + 4 * k, KF + 4 * (k % 2), QF + 4 * (k // 2), "0")
    a("s_nop 7")
    for k in range(4):
        for r in range(0, 8, 2): a(f"v_max3_f32 v{24+k}, v{SB+8*k+r}, v{SB+8*k+r+1}, v{24+k}")
    a(f"s_add_u32 s{sT0}, s{sT0}, 4096\n s_cmp_lt_u32 s{sT0}, 0x40000\n s_cbranch_scc1 L_slow1")
    for sw in ("16", "32"):
        for k in range(4): a(f"v_mov_b32 v{16+k}, v{24+k}")
        a("s_nop 1")
        for k in range(4): a(f"v_permlane{sw}_swap_b32 v{24+k}, v{16+k}")
        for k in range(4): a(f"v_max_f32 v{24+k}, v{24+k}, v{16+k}")
    for k in range(4):
        for r in range(4): a(f"v_sub_f32 v{NM+4*k+r}, 0, v{24+k}")
    for r in range(OA, OA + 40, 2): a(f"v_mov_b64 {vr(r,2)}, 0")
    a(f"s_mov_b32 s{sT0}, 0")
    a.label("L_slow2")
    for e_ in range(2):
        for i in range(4):
            a(f"buffer_load_dwordx4 {vr((KF if i < 2 else VF)+8*e_+4*(i%2),4)}, v{vKVD}, s[{rE}:{rE+3}], s{sT0} offen offset:{1024*i} sc1")
        a(f"s_add_u32 s{sT0}, s{sT0}, 4096")
    a("s_waitcnt vmcnt(0)")
    for z in range(4):
        for k in range(4): mf16(SB + 4 * k, KF + 4 * k, QF + 4 * z, vr(NM + 4 * z, 4))
        a("s_nop 7")
        for r in range(16): a(f"v_exp_f32 v{SB+r}, v{SB+r}")
        for r in range(8): a(f"v_cvt_pk_bf16_f32 v{PB+r}, v{SB+2*r}, v{SB+2*r+1}")
        a("s_nop 1")
        for k in range(4): pv(k, 0, z, PB)
        lsum(z, PB)
    a(f"s_cmp_lt_u32 s{sT0}, 0x40000\n s_cbranch_scc1 L_slow2")
    a("s_nop 7\n s_nop 3\n s_branch L_attfin")

def setflag(which):
    if which == 0: a(f"s_lshr_b32 s{sT1}, s{sCB}, 2\n s_and_b32 s{sT2}, s{sCB}, 3")
    else: a(f"s_and_b32 s{sT1}, s{sQB}, 3\n s_and_b32 s{sT2}, s{sQB}, 12\n s_lshr_b32 s{sT2}, {sum(k << (4 * g) for k, g in enumerate(GRP))}, s{sT2}\n s_and_b32 s{sT2}, s{sT2}, 3")
    a(f"""s_lshl_b32 s{sT0}, s{sRB}, 13
      s_lshl_b32 s{sT1}, s{sT1}, 7
      s_add_u32 s{sT0}, s{sT0}, s{sT1}
      s_lshl2_add_u32 s{sT0}, s{sT2}, s{sT0}
      s_add_u32 s{sT0}, s{sT0}, {FL_OFF+16*which}
      v_mov_b32 v17, {SYNC+4+4*which}
      v_mov_b32 v15, 1""")
    if which == 0:
        if OPT["noack"] < 2: a.wait(vm="hst")
    elif OPT["noack"] & 1: a("s_waitcnt vmcnt(4)")
    else: a.wait0(lg=False)
    l = a.newlabel("L_nofl")
    a(f"""s_mov_b64 exec, 1
      ds_add_rtn_u32 v16, v17, v15
      s_mov_b64 exec, 0xffff
      v_lshlrev_b32 v17, 9, v0
      s_waitcnt lgkmcnt(0)
      v_readfirstlane_b32 s{sT1}, v16
      s_cmp_eq_u32 s{sT1}, 3
      s_cbranch_scc0 {l}
      buffer_store_dword v15, v17, s[{rWS}:{rWS+3}], s{sT0} offen {OPT['sfl'].replace('_', ' ')}""")
    a.label(l)
    a("s_mov_b64 exec, -1")
    a.lgq.clear()
def mbox(which):
    a(f"""s_lshl_b32 s{sT0}, s{sRB2}, 4
      s_add_u32 s{sT0}, s{sT0}, s{sCB2}
      s_lshl_b32 s{sT0}, s{sT0}, 2
      s_add_u32 s{sT0}, s{sT0}, s{sW}
      s_lshl_b32 s{sT0}, s{sT0}, 7
      s_add_u32 s{sT0}, s{sT0}, {FL_OFF+16*which}
      v_and_b32 v15, 3, v0
      v_lshlrev_b32 v15, 2, v15""")
def waitflag(which, name):
    mbox(which)
    a(f"s_mov_b32 s{sT1}, {SPIN_MAX}\n s_mov_b64 exec, 15")
    a.label(name)
    a(f"""buffer_load_dword v17, v15, s[{rWS}:{rWS+3}], s{sT0} offen {OPT['pfl'].replace('_', ' ')}
      s_waitcnt vmcnt(0)
      v_cmp_ne_u32 vcc, 1, v17
      s_sub_u32 s{sT1}, s{sT1}, 1
      s_cbranch_vccz {name}_x
      s_sleep {OPT['slp']}
      s_cmp_lg_u32 s{sT1}, 0
      s_cbranch_scc1 {name}""")
    a.label(name + "_x")
    a("s_mov_b64 exec, -1")
def waitlds(off, val, name, va=15):
    a(f"s_mov_b32 s{sT1}, {SPIN_MAX}\n v_mov_b32 v{va}, {SYNC+off}")
    a.label(name)
    a(f"""ds_read_b32 v17, v{va}
      s_waitcnt lgkmcnt(0)
      v_readfirstlane_b32 s{sT0}, v17
      s_cmp_ge_u32 s{sT0}, {val}
      s_cbranch_scc1 {name}_x
      s_sleep 2
      s_sub_u32 s{sT1}, s{sT1}, 1
      s_cmp_lg_u32 s{sT1}, 0
      s_cbranch_scc1 {name}""")
    a.label(name + "_x")

ACC2, HR, WF = 128, 64, 32
acc2 = lambda rt, nt: ACC2 + (rt * 4 + nt) * 4
vWD, vWR, vH, vGM = 3, 7, 11, 16
sWo, sHo, sMw, sRdy = sC, sD, sE, sF
def g2_vsetup():
    wtile_offsets(vWD)
    a(f"""s_lshl_b32 s{sT0}, s{sW}, 14
      v_lshrrev_b32 v14, 2, v1
      v_lshl_add_u32 v14, v2, 3, v14
      v_and_b32 v15, 3, v1
      v_lshlrev_b32 v15, 3, v15
      v_lshl_add_u32 v14, v14, 7, v15
      v_and_b32 v15, 1, v2
      v_lshrrev_b32 v30, 3, v1
      v_lshl_add_u32 v15, v30, 1, v15
      v_lshl_add_u32 v14, v15, 5, v14
      v_add_u32 v14, s{sT0}, v14""")
    for nt in range(4): a(f"v_xor_b32 v{vWR+nt}, {32*nt}, v14")
    for p in range(4):
        a(f"s_add_u32 s{sT0}, s{sW}, {p+1}\n s_and_b32 s{sT0}, s{sT0}, 3\n s_lshl_b32 s{sT0}, s{sT0}, 11\n v_lshl_add_u32 v{vH+p}, v0, 4, s{sT0}")
def g2_setup():
    srd(rB, pW2, 3584 * 2048)
    a(f"s_lshl_b32 s{sMw}, s{sW}, 14\n s_mul_i32 s{sWo}, s{sW}, {896*2048}")
def dmaW(i, k):
    if k == 0: a(f"s_add_u32 m0, s{sMw}, {(i%4)*4096}\n s_nop 0")
    a.vm(f"buffer_load_dwordx4 v{vWD+k}, s[{rB}:{rB+3}], s{sWo} offen offset:{1024*k} lds", ("W2", i // 2))
    if k == 3: a(f"s_add_u32 s{sWo}, s{sWo}, 65536")
def g_phase2():
    sHp, sMbx, sOb, sDl = sB, 4, 5, 6
    vPo = 29
    def ldH(i, rt):
        a.vm(f"buffer_load_dwordx4 {vr(HR+32*(i%2)+4*rt,4)}, v{vH+rt//2}, s[{rWS}:{rWS+3}], s{sHp if i % 2 else sHo} offen offset:{1024*(rt%2)} sc1", ("H", i // 2, rt // 2))
    WOFF = {32: 0, 33: 49152, 34: 49152, 35: 0}
    def rdW2(i, nt, e):
        a.lg(f"ds_read_b64_tr_b16 {vr(WF+16*(i%2)+4*nt+2*e,2)}, v{vWR+nt} offset:{WOFF.get(i, (i%4)*4096)+512*e}", ("W2", i // 2, nt))
    cm('G, phase 2: out tile [128 x 64] = (1-g) (hidden W2 + b2) + (g O) Wo, K split over the four waves')
    setflag(0)
    stamp("g_flag")
    if OPT["nog2"]: dump_ts_and_end()
    for i in range(OPT["wpre"], 4):
        for k in range(4): dmaW(i, k)
    a(f"""s_mul_i32 s{sHo}, s{sRB2}, {RBSZ}
      s_mul_i32 s{sT1}, s{sW}, {28*8192}
      s_add_u32 s{sHo}, s{sHo}, s{sT1}
      s_lshl_b32 s{sT2}, s{sRB2}, 9
      s_add_u32 s{sT2}, s{sT2}, {G_OFF}
      v_lshlrev_b32 v15, 2, v1""")
    for p in range(4):
        a(f"""s_add_u32 s{sT0}, s{sW}, {p+1}
          s_and_b32 s{sT0}, s{sT0}, 3
          s_lshl_b32 s{sT0}, s{sT0}, 7
          s_add_u32 s{sT0}, s{sT0}, s{sT2}""")
        for h in range(2): a(f"buffer_load_dword v{vGM+4*p+2*h}, v15, s[{rWS}:{rWS+3}], s{sT0} offen offset:{64*h} sc1")
    if OPT["loc2"]:
        a(f"""s_bfe_u32 s{sT0}, s2, {hex(((3-LC) << 16) + LC)}
          s_lshl_b32 s{sT0}, s{sT0}, 5
          s_add_u32 s{sT3}, s{sT0}, s{sI}
          s_lshl_b32 s{sT0}, s{sW}, {8-LC}
          s_add_u32 s{sT0}, s{sT0}, s{sT3}
          s_lshr_b32 s{sG}, s{sT0}, {7-LC}
          s_bfe_u32 s{sT1}, s{sT0}, {hex(0x20000 + 5 - LC)}
          s_mul_i32 s{sT1}, s{sT1}, {896*2048}
          s_and_b32 s{sT0}, s{sT0}, {(32 >> LC) - 1}
          s_lshl_b32 s{sT0}, s{sT0}, {13+LC}
          s_add_u32 s{sT0}, s{sT0}, s{sT1}
          s_add_u32 s{sT1}, s{sG}, 2
          s_lshl_b32 s{sT1}, s{sT1}, 18
          s_add_u32 s{sT0}, s{sT0}, s{sT1}
          s_cmp_eq_u32 s{sG}, 5
          s_cselect_b32 s{sG}, -1, s{sG}
          s_lshl_b32 s{sT1}, s{sT3}, {13+LC}
          s_and_b32 s{sT2}, s{sCB2}, {(1 << LC) - 1}
          s_lshl_b32 s{sT2}, s{sT2}, 7
          s_add_u32 s{sT0}, s{sT0}, s{sT2}
          s_add_u32 s{sT1}, s{sT1}, s{sT2}
          s_and_b32 s{sT2}, s{sI}, 1
          s_add_u32 s{sT2}, s{sT2}, {OPT["woit"]}""")
    else:
        if OPT["ev2"]: a(f"s_lshl_b32 s{sT0}, s{sW}, 8\n s_add_u32 s{sT0}, s{sT0}, s2")
        else: a(f"s_lshl_b32 s{sT0}, s2, 1\n s_add_u32 s{sT0}, s{sT0}, s{sW}\n s_add_u32 s{sT1}, s2, 512\n s_cmp_eq_u32 s{sW}, 2\n s_cselect_b32 s{sT0}, s{sT1}, s{sT0}")
        a(f"""
          s_lshr_b32 s{sG}, s{sT0}, 7
          s_bfe_u32 s{sT1}, s{sT0}, 0x20005
          s_mul_i32 s{sT1}, s{sT1}, {896*2048}
          s_and_b32 s{sT0}, s{sT0}, 31
          s_lshl_b32 s{sT0}, s{sT0}, 13
          s_add_u32 s{sT0}, s{sT0}, s{sT1}
          s_add_u32 s{sT1}, s{sG}, 2
          s_lshl_b32 s{sT1}, s{sT1}, 18
          s_add_u32 s{sT0}, s{sT0}, s{sT1}
          s_cmp_eq_u32 s{sG}, 5
          s_cselect_b32 s{sG}, -1, s{sG}
          s_lshl_b32 s{sT1}, s2, 13
          s_and_b32 s{sT2}, s{sI}, 1""")
    a(f"""
      s_cmp_eq_u32 s{sW}, 3
      s_cselect_b32 s{sA}, s{sT1}, s{sT0}
      s_cselect_b32 s{sG}, s{sT2}, s{sG}
      s_cselect_b32 s{rPF}, s{pWO}, s{pW2}
      s_cselect_b32 s{rPF+1}, s{pWO+1}, s{pW2+1}
      s_mov_b32 s{sT0}, {3584*2048}
      s_cselect_b32 s{rPF+2}, {1024*2048}, s{sT0}
      s_mov_b32 s{rPF+3}, 0x20000""")
    if OPT["ev2"] and not OPT["loc2"]: a(f"s_bitcmp1_b32 s2, 0\n s_cselect_b32 s{sG}, -1, s{sG}")
    stamp("g_pw")
    waitflag(0, "L_wh")
    stamp("g_wf")
    a.vmq.clear(); a.lgq.clear()
    rds = lambda D, nt: [lambda e_=e_, k=k: rdW2(2 * D + e_, nt, k) for e_ in range(2) for k in range(2)]
    def ldP(D, ps):
        for p in ps:
            for h in range(2): ldH(2 * D, 2 * p + h); ldH(2 * D + 1, 2 * p + h)
    pend = []
    def dstep(D, fine, extra={}, at={}):
        for p in range(4):
            ex = list(extra.get(p, [])); lq = []
            if p in at: at[p]()
            if p in (1, 2) and D < 14: lq = [lambda k=k: dmaW(2 * D + 3 + p, k) for k in range(4)]
            if OPT["gdma"] and fine and D < 14 and p == 0:
                lq = [lambda: None, lambda: None] + [lambda k=k: (a(f"s_add_u32 m0, s7, {KVR + (D % 2) * 16384}\n s_add_u32 s8, s8, 16384") if k == 0 else None,
                      a.vm(f"buffer_load_dwordx4 v{vH+3}, s[{rWS}:{rWS+3}], s8 offen offset:{1024*k} sc1 lds")) for k in range(4)]
            for nt in range(4):
                if p == 0: lgw = [("W2", D, nt)] if fine else ([("W2", D, nt + 1)] if nt % 2 == 0 else [])
                else: lgw = []
                a.wait(vm=([("H", D, p)] + ([("W2", D + 1)] if p == 3 else [])) if nt == 0 else [], lg=lgw)
                if OPT["chain"]: seq = [(nt % 2, 0), (nt % 2, 1), (1 - nt % 2, 1), (1 - nt % 2, 0)]
                else: seq = [(0, 0), (1, 0), (1, 1), (0, 1)]
                for n, (h, e) in enumerate(seq):
                    first = (h, 1 - e) not in seq[:n]
                    mf16(acc2(2 * p + h, nt), WF + 16 * e + 4 * nt, HR + 32 * e + 4 * (2 * p + h), "0" if D == 0 and first else None)
                    if fine:
                        if pend: pend.pop(0)()
                        if nt == 3 and D < 17: ldH(2 * D + 2 + e, 2 * p + h)
                        elif lq and n % 2: lq.pop(0)()
                        x = ex.pop(0) if ex else None
                        if callable(x): x()
                        elif x: a(x)
                if p == 3 and D < 17: pend.extend(rds(D + 1, nt))
                if not fine and nt == 1:
                    while pend: pend.pop(0)()
                    while lq: lq.pop(0)()
                    if OPT["gdma"] and p in (0, 3):
                        a(f"s_add_u32 m0, s7, {KVR + (D % 2) * 16384}\n s_nop 0")
                        for k in ((0, 1) if p == 0 else (2, 3)): a.vm(f"buffer_load_dwordx4 v{vH+3}, s[{rWS}:{rWS+3}], s8 offen offset:{1024*k} sc1 lds")
                        if p == 3: a("s_add_u32 s8, s8, 16384")
                if not fine and nt == 3:
                    if (p, "ld") in at: at[p, "ld"]()
                    ldP(D + 1, [p])
            assert not ex and not lq
        if D < 12: a(f"s_add_u32 s{sHo}, s{sHo}, 16384\n s_add_u32 s{sHp}, s{sHp}, 16384")
    for nt in range(4):
        for f in rds(0, nt): f()
    a(f"s_add_u32 s{sHp}, s{sHo}, 8192")
    ldP(0, range(4))
    a(f"s_add_u32 s{sHo}, s{sHo}, 16384\n s_add_u32 s{sHp}, s{sHp}, 16384")
    for rt in range(8): a(f"v_sub_f32 v{vGM+2*rt}, 1.0, v{vGM+2*rt}")
    stamp("g_l2")
    a(f"s_setprio {OPT['g2prio']}\n s_mov_b32 s{sIT}, 0")
    if OPT["gdma"]: a(f"s_lshl_b32 s7, s{sW}, 12\n s_lshl_b32 s8, s{sW}, 11\n s_add_u32 s8, s8, {KV_OFF}")
    fine = [not int(c) for c in OPT["gp"][1:3]]
    dstep(0, fine[1])
    stamp("g_s0")
    a.raw(".p2align 3")
    cm('FFN double steps (runs beside the attention waves)')
    a.label("L_g2loop")
    def body(it):
        if OPT["pf2"]: a(f"s_cmp_eq_u32 s{sIT}, s{sG}\n s_cbranch_scc1 L_hookF"); a.label("L_hookF_r")
        dstep(2 * it + 1, fine[0])
        snap[:] = [list(a.vmq), list(a.lgq), len(pend), 11 - (2 * it + 1)]
        a(f"s_cmp_ge_u32 s{sIT}, 4\n s_cbranch_scc1 L_hookW"); a.label("L_hookW_r")
        dstep(2 * it + 2, fine[1])
        a(f"s_add_u32 s{sIT}, s{sIT}, 1\n s_branch L_g2loop")
    snap = []
    a.loop(body, "g2")
    a.label("L_g2end")
    sh = lambda q: [x and (x[0], x[1] + snap[3]) + x[2:] for x in q]
    a.vmq[:] = sh(snap[0]); a.lgq[:] = sh(snap[1])
    pend[:] = [f for nt in range(4) for f in rds(12, nt)][16 - snap[2]:]
    ret = lambda l: a(f"s_branch {l}")
    a(f"s_mov_b32 s{rB}, s{pWO}\n s_mov_b32 s{rB+1}, s{pWO+1}\n s_mov_b32 s{rB+2}, {1024*2048}\n s_lshl_b32 s{sWo}, s{sW}, 17\n s_add_u32 s{sWo}, s{sWo}, {GRP[0]*524288}")
    if OPT["hold"] != "xffff":
        cm("workgroups whose attention results are used first keep their last FFN steps back until their attention is done")
        a("s_bitcmp1_b32 s2, 0\n s_cbranch_scc1 L_hold_x")
        if OPT["hrel"]: waitlds(0, 64 + OPT["hrel"], "L_hold")
        else: waitlds(12, 4, "L_hold")
    cm("last FFN double step, then the output projection: four producers in a fixed order, looked up in this wave's mailbox")
    mbox(1)
    a(f"""s_mov_b32 s{sMbx}, s{sT0}
      s_mul_i32 s{sOb}, s{sRB2}, {RBSZ}
      s_add_u32 s{sOb}, s{sOb}, s{sMw}
      s_lshl_b32 s{sDl}, s{sW}, 12
      s_add_u32 s{sDl}, s{sDl}, {QX}
      s_sub_u32 s{sDl}, s{sDl}, s{sMw}""")
    def poll(): a.vm(f"buffer_load_dword v{vPo}, v15, s[{rWS}:{rWS+3}], s{sMbx} offen sc1", "poll")
    chk = lambda sl: f"""v_cmp_eq_u32 vcc, 1, v{vPo}
      s_add_u32 s{sHo}, s{sOb}, {(112+8*GRP[sl])*8192}
      s_bitcmp1_b32 vcc_lo, {sl}
      s_cselect_b32 s{sRdy}, 1, 0
      s_cselect_b32 s{sHo}, s{sHo}, {OOB}
      s_add_u32 s{sHp}, s{sHo}, 8192""".split("\n")
    behind = {}
    def npoll(): return a.vmq[::-1].index("poll") if "poll" in a.vmq else 62
    def again(sl):
        behind["s", sl] = npoll()
        a(f"s_cmp_eq_u32 s{sRdy}, 0\n s_cbranch_scc1 L_sec{sl}")
        a.label(f"L_sec{sl}_r")
        poll()
    def join(sl):
        behind["b", sl] = npoll()
        a(f"s_cmp_eq_u32 s{sRdy}, 0\n s_cbranch_scc1 L_blk{sl}")
        a.label(f"L_join{sl}")
        a.vmq[:] = [("H", 14 + sl, p) for p in range(4) for _ in range(4)]
    def late(sl):
        a.label(f"L_sec{sl}")
        a(f"s_waitcnt vmcnt({behind['s', sl]})")
        a("\n".join(chk(sl)))
        a(f"s_cmp_eq_u32 s{sRdy}, 0\n s_cbranch_scc1 L_sec{sl}_r")
        ldP(14 + sl, (0, 1))
        a(f"s_branch L_sec{sl}_r")
        a.label(f"L_blk{sl}")
        a(f"s_mov_b32 s{sT5}, {SPIN_MAX}\n s_waitcnt vmcnt({behind['b', sl]})\n s_branch L_blk{sl}b")
        a.label(f"L_blk{sl}a")
        a(f"s_sleep {OPT['slp']}"); poll(); a.wait0(lg=False)
        a(f"s_sub_u32 s{sT5}, s{sT5}, 1\n s_cbranch_scc0 L_blk{sl}b\n v_mov_b32 v{vPo}, 1")
        a.label(f"L_blk{sl}b")
        a("\n".join(chk(sl)))
        a(f"s_cmp_eq_u32 s{sRdy}, 0\n s_cbranch_scc1 L_blk{sl}a")
        ldP(14 + sl, range(4))
        a(f"s_branch L_join{sl}")
    two = lambda l_: ["\n".join(l_[k:k+2]) for k in range(0, len(l_), 2)]
    dstep(12, OPT["f12"], at={OPT['pp']: poll})
    stamp("g_25")
    a(f"s_add_u32 s{sWo}, s{sWo}, {((GRP[1]-GRP[0])*524288-131072) & 0xffffffff}")
    if OPT["f13"]: dstep(13, True, {0: [None] * 7 + [lambda: a.wait(vm="poll")] + two(chk(0)) + [poll]}, {2: lambda: again(0)})
    else: dstep(13, False, at={(0, "ld"): lambda: (a.wait(vm="poll"), a("\n".join(chk(0))), poll()), 2: lambda: again(0)})
    srd(rA, pB2, 2048); srd(rC, pOUT, 2048 * 2048)
    while pend: pend.pop(0)()
    join(0)
    stamp("g_hook")
    sc = lambda p: [f"v_pk_mul_f32 {vr(ACC2+32*p+16*h+4*nt+r,2)}, {vr(ACC2+32*p+16*h+4*nt+r,2)}, {vr(vGM+4*p+2*h,2)} op_sel_hi:[1,0]"
                    for nt in range(4) for h in range(2) for r in (0, 2)]
    for x in sc(0): a(x)
    vS0, vS1, vB2 = 3, 4, 18
    def wr(p, k):
        if OPT["nowr"]: return
        if p < 2: a.lg(f"ds_write_b128 v{vS0}, {vr(ACC2+32*p+4*k,4)} offset:{8192*p+1024*k}")
        else: a.lg(f"ds_write_b128 v{vS1}, {vr(ACC2+32*p+4*k,4)} offset:{16384*(k//4)+1024*(k%4)}")
    OWN = ACC2 + 96
    vRd = [5, 6, 16]; vTw = [11, 12, 13, 14]; vTr, vOo = 26, 27
    sc2 = lambda p: ["\n".join(f"v_mul_f32 v{ACC2+32*p+16*h+4*nt+r+u}, v{vGM+4*p+2*h}, v{ACC2+32*p+16*h+4*nt+r+u}" for u in range(2))
                     for nt in range(4) for h in range(2) for r in (0, 2)]
    extra = {(0, p): sc2(p + 1) for p in range(3)}
    two = lambda l_: ["\n".join(l_[k:k+2]) for k in range(0, len(l_), 2)]
    wp = lambda sl: a(f"s_waitcnt vmcnt({behind['b', sl]})")
    for D in (1, 2): extra[D, 0] = [None] * 7 + [lambda D=D: wp(D)] + two(chk(D + 1)) + [poll]
    t_ = f"""s_lshl_b32 s{sT0}, s{sCB2}, 7
      v_lshlrev_b32 v16, 3, v2
      v_lshl_add_u32 v{vS0}, v0, 4, s{sMw}
      v_add_u32 v{vS1}, s{sDl}, v{vS0}""".split("\n")
    extra[1, 2] = [f"v_mov_b32 v17, {SYNC+12}", None, lambda: a.lg("ds_read_b32 v31, v17", "wa")] + [None] * 7 + [
        lambda: (a.wait(lg="wa"), a("v_cmp_gt_u32 vcc, 4, v31")), lambda: (a("s_cbranch_vccnz L_wa0"), a.label("L_wa_r"))]
    extra[1, 1] = t_ + [f"v_add_u32 v{vWR+nt}, s{sDl}, v{vWR+nt}" for nt in range(4)] + [lambda nt=nt: a.vm(f"buffer_load_dwordx2 {vr(vB2+2*nt,2)}, v16, s[{rA}:{rA+3}], s{sT0} offen offset:{32*nt}", "b2") for nt in range(4)]
    t_ = []
    for p in range(3):
        t_ += [f"s_sub_u32 s{sT1}, s{sW}, {p+1}\n s_and_b32 s{sT1}, s{sT1}, 3"]
        if p < 2: t_ += [f"s_lshl_b32 s{sT1}, s{sT1}, 14\n v_lshl_add_u32 v{vRd[p]}, v0, 4, s{sT1}"]
        else: t_ += [f"s_lshl_b32 s{sT1}, s{sT1}, 12\n s_add_u32 s{sT1}, s{sT1}, {QX}", f"v_lshl_add_u32 v{vRd[p]}, v0, 4, s{sT1}"]
    assert len(t_) == 7; rdadr = t_
    fm = []
    for nt in range(4):
        for r in range(2):
            fm += [f"v_lshlrev_b32 v{vTr}, 16, v{vB2+2*nt+r}\n v_and_b32 v{vTr+1}, 0xffff0000, v{vB2+2*nt+r}"]
            fm += ["\n".join(f"v_fmac_f32 v{OWN+16*h+4*nt+2*r+u}, v{vTr+u}, v{vGM+12+2*h}" for u in range(2)) for h in range(2)]
    extra[2, 0][4:6] = two([f"v_add_u32 v{vWR+nt}, 16384, v{vWR+nt}" for nt in range(4)])
    extra[2, 1] = rdadr + [None] + fm[:8]; extra[2, 2] = fm[8:]
    t_ = f"""s_lshl_b32 s{sT2}, s{sW}, 12
      s_add_u32 s{sT2}, s{sT2}, {KVR+16384}
      v_lshrrev_b32 v15, 3, v0
      v_and_b32 v17, 7, v0
      v_xor_b32 v{vTr}, v15, v17
      v_lshlrev_b32 v{vTr}, 4, v{vTr}
      v_lshl_add_u32 v{vTr}, v15, 7, v{vTr}
      v_add_u32 v{vTr}, s{sT2}, v{vTr}
      v_lshlrev_b32 v{vOo}, 4, v17
      v_lshl_add_u32 v{vOo}, v15, 11, v{vOo}
      v_and_b32 v15, 7, v1
      v_lshrrev_b32 v17, 1, v2
      v_xor_b32 v15, v15, v17
      v_lshlrev_b32 v15, 4, v15
      v_and_b32 v17, 1, v2
      v_lshl_add_u32 v15, v17, 3, v15
      v_lshl_add_u32 v15, v1, 7, v15
      v_add_u32 v{vTw[0]}, s{sT2}, v15
      v_xor_b32 v{vTw[1]}, 32, v{vTw[0]}
      v_xor_b32 v{vTw[2]}, 64, v{vTw[0]}
      v_xor_b32 v{vTw[3]}, 96, v{vTw[0]}
      s_lshl_b32 s{sT0}, s{sCB2}, 7
      s_lshl_b32 s{sT1}, s{sRB2}, 18
      s_add_u32 s{sT0}, s{sT0}, s{sT1}
      s_lshl_b32 s{sT1}, s{sW}, 16
      s_add_u32 s{sT0}, s{sT0}, s{sT1}""".split("\n")
    extra[3, 0] = ["\n".join(t_[2*k:2*k+2]) for k in range(13)]
    worder = [0, 4, 1, 5, 2, 6, 3, 7]
    for p in range(1, 4): extra[3, p] = [x for k in worder for x in (None, (lambda k=k, p=p: wr(p - 1, k)))]
    def rdp(p, k):
        a.lg(f"ds_read_b128 {vr(ACC2+32*p+4*k,4)}, v{vRd[p]} offset:{8192*p+1024*k if p < 2 else 16384*(k//4)+1024*(k%4)}", ("r", p // 2, k))
    x0 = extra[0, 0][10]; extra[0, 0][10] = lambda: (a(x0), wp(0), a("\n".join(chk(1))), poll())
    a("s_nop 0")
    for D in range(4):
        if D: join(D)
        stamp(f"g_{28+2*D}")
        dstep(14 + D, True, {p: extra.get((D, p), []) for p in range(4)}, {2: lambda: again(D + 1)} if D < 3 else {})
    cm('sum of the four K quarters through LDS, bf16, whole-line stores')
    a.wait0(vm=False)
    stamp("g_36")
    a("s_barrier")
    stamp("g_bar")
    for k in range(4):
        for p in range(3): rdp(p, k)
    def st(g_):
        a.wait(lg=("u", g_ // 2, g_ % 2))
        a(f"buffer_store_dwordx4 {vr(HR+32+4*g_,4)}, v{vOo}, s[{rC}:{rC+3}], s{sT0} offen{['', ' sc1', ' nt'][OPT['osc']]}")
        if g_ < 3: a(f"s_add_u32 s{sT0}, s{sT0}, 16384")
    for k in range(8):
        a.wait(lg=("r", 1, k))
        if k < 4:
            for p in range(3): rdp(p, k + 4)
        for r in (0, 2): a(f"v_pk_add_f32 {vr(ACC2+4*k+r,2)}, {vr(ACC2+4*k+r,2)}, {vr(ACC2+32+4*k+r,2)}")
        for r in (0, 2): a(f"v_pk_add_f32 {vr(OWN+4*k+r,2)}, {vr(OWN+4*k+r,2)}, {vr(ACC2+64+4*k+r,2)}")
        for r in (0, 2): a(f"v_pk_add_f32 {vr(OWN+4*k+r,2)}, {vr(OWN+4*k+r,2)}, {vr(ACC2+4*k+r,2)}")
        T_ = HR + 2 * k
        a(f"v_cvt_pk_bf16_f32 v{T_}, v{OWN+4*k}, v{OWN+4*k+1}\n v_cvt_pk_bf16_f32 v{T_+1}, v{OWN+4*k+2}, v{OWN+4*k+3}")
        a.lg(f"ds_write_b64 v{vTw[k%4]}, {vr(HR+2*k,2)} offset:{2048*(k//4)}")
        if k % 4 == 3:
            for h in range(2): a.lg(f"ds_read_b128 {vr(HR+32+8*(k//4)+4*h,4)}, v{vTr} offset:{2048*(k//4)+1024*h}", ("u", k // 4, h))
    for g_ in range(4): st(g_)
    if OPT["ts"]: a.wait0(); stamp("g_end")
    if OPT["padto"]:
        a.label("L_pad")
        a(f"s_memrealtime s[98:99]\n s_waitcnt lgkmcnt(0)\n s_sub_u32 s98, s98, s96\n s_cmp_lt_u32 s98, {OPT['padto']}\n s_cbranch_scc1 L_pad")
    dump_ts_and_end()
    cm('out-of-line waits (all bounded) and loop hooks')
    for sl in range(4): late(sl)
    a.label("L_wa0")
    waitlds(12, 4, "L_wa", 31)
    a("s_branch L_wa_r")
    if OPT["pf2"]:
        a.label("L_hookF")
        a(f"v_lshlrev_b32 v15, {7 + LC if OPT['loc2'] else 7}, v0\n buffer_load_dword v19, v15, s[{rPF}:{rPF+3}], s{sA} offen")
        if OPT["ev2"] and not OPT["loc2"]: a(f"s_add_u32 s{sA}, s{sA}, 8192\n buffer_load_dword v19, v15, s[{rPF}:{rPF+3}], s{sA} offen")
        ret("L_hookF_r")
    a.label("L_hookW")
    a(f"s_cmp_eq_u32 s{sIT}, 5\n s_cbranch_scc1 L_g2end")
    stamp("g_17")
    waitlds(0, 4, "L_wq")
    srd(rA, pWO, 1024 * 2048)
    a(f"s_lshl_b32 s{sT0}, s{sW}, 12\n s_add_u32 m0, s{sT0}, {QX}\n s_lshl_b32 s{sT0}, s{sW}, 17\n s_add_u32 s{sT0}, s{sT0}, 524288")
    for k in range(4): a(f"buffer_load_dwordx4 v{vWD+k}, s[{rA}:{rA+3}], s{sT0} offen offset:{1024*k} lds")
    ret("L_hookW_r")

prologue()
section("g")
a.label("L_roleG")
g_phase1()
if OPT["stop"] == 1:
    stamp("g_bq"); g_hstore(); a.wait0(); stamp("g_hst"); dump_ts_and_end()
else:
    if OPT["wlate"]: g_hstore(); stamp("g_st")
    g2_setup()
    for i in range(OPT["wpre"]):
        for k in range(4): dmaW(i, k)
    if not OPT["wlate"]: g_hstore()
    g_phase2()
a_phase1()
if OPT["stop"] == 1:
    a(f"s_lshl_b32 s{sT0}, s{sW}, 12\n s_add_u32 s{sT1}, s{sT0}, {QX}\n v_lshl_add_u32 v16, v0, 4, s{sT1}")
    for i in range(4): a(f"ds_read_b128 {vr(32+4*i,4)}, v16 offset:{1024*i}")
    a(f"s_lshl_b32 s{sT1}, s{sRB}, 4\n s_add_u32 s{sT1}, s{sT1}, s{sCB}\n s_lshl_b32 s{sT1}, s{sT1}, 14\n s_add_u32 s{sT0}, s{sT0}, s{sT1}\n s_add_u32 s{sT0}, s{sT0}, {QD_OFF}")
    a.wait0()
    for i in range(4): a(f"buffer_store_dwordx4 {vr(32+4*i,4)}, v{vKVD}, s[{rWS}:{rWS+3}], s{sT0} offen offset:{1024*i}")
    dump_ts_and_end()
else:
    stamp("a_bq")
    attention()
a.label("L_exit")
a("s_endpgm")
a.label("L_codeend")

HDR = open("cdna_kernels/" + KNAME[:-7] + ".s.ref").read().split("; Override launch")[0]
HDR += """; One persistent launch, 256 workgroups of 8 waves, one per CU (generated by a script of the author's own).
"""
text = HDR + f"; @launch grid=(256,1,1) block=(512,1,1) lds={LDS_BYTES}\n"
text += f'.amdgcn_target "amdgcn-amd-amdhsa--gfx950"\n.text\n.globl {KNAME}\n.p2align 8\n.type {KNAME},@function\n{KNAME}:\n'
a.out = SEC['head'] + SEC['st'] + SEC['st0'] + SEC['st2'] + SEC['g'] + SEC['main']
body = a.text()
nbad = check(body)
text += body
text += f""".section .rodata,"a"
.p2align 6
.amdhsa_kernel {KNAME}
  .amdhsa_next_free_vgpr 256
  .amdhsa_next_free_sgpr 102
  .amdhsa_accum_offset 256
  .amdhsa_group_segment_fixed_size 0
  .amdhsa_kernarg_size 112
  .amdhsa_user_sgpr_count 2
  .amdhsa_user_sgpr_kernarg_segment_ptr 1
  .amdhsa_system_sgpr_workgroup_id_x 1
.end_amdhsa_kernel
"""
open(sys.argv[1], "w").write(text)
if nbad: sys.exit(f"{nbad} hazards")
```

```python
import sys, math
from asmlib import *

KNAME = "gated_mix__grouped_kv_mqa__dense_activation_squared_relu__prompt_kernel"
OPT = dict(stop=0, ts=0, pd=8, forceslow=0, nodma=0, nokv=0, nopf=0, nords=0, lead=7, pfnt=0, far=99, pf2=1, pf2b=2, gprio=2, nog2=0, g2nold=0, anodma=0, g2prio=0, dbgts=0, slp=2, th=0, farw2=1, hglob=1, arrk=0, wlate=1, map2=5, steps=0, kvskip='', pause=99, pcnt=64, grp=1, osc=1, padto=0, st2=0, spos=0, hfirst=2, p0prio=3, d0prio=1, xlate=0, ring=6, h3prio=1, hfl='sc1', wfl='', xfl='', padat='', xm=1, p0late=1, p0lo=0, kvreg=2, lowv=1, noo=0, nopk=1, tgrp=1, nowo=0, noack=0, qsw=1, evn=0, evk=1, ev2=1, ng=8, par='SSSS', lut=0, pw=128, pb=0, g32=0, dyn=0, chain=1, row4=0, skiprd=0, gdma=0, dpos=0, nohst=0, xa=3, w1pre=0, peven=0, xr=99, fpre=4, clrf=1, wpre=2, f12=1, pp=2, rot=1, kvl=1, w1n=2, kvs='x147a', p1=26, hrel=0, f13=1, hold='xcfcf', gpo='', pexact=1, epos=68, mpos=32, loc2=1, woit=2, snake=1, gp='x1111', g2f=1, ebar=0, c2x=1, pfl='sc1', sfl='sc1', nowr=0, pat='eeeeeeeq0ccr1esccteu2evexweyccS4e5eeecc')
for a_ in sys.argv[2:]:
    k, v = a_.split("="); OPT[k] = int(v) if v.lstrip('-').isdigit() else v

GRP = [2, 0, 1, 3] if OPT['g2f'] else [0, 2, 1, 3]
LC = {5: 2, 2: 1}.get(OPT['map2'])
RBSZ = 144 * 8192
KV_OFF = 0x1200000; G_OFF = 0x1240000; KF_OFF = 0x1244000; FL_OFF = 0x1248000; WS_USED = 0x1268000
QD_OFF = 0x1400000; TS_OFF = 0x1800000
WS_SIZE = 0x2000000 if (OPT["stop"] or OPT["ts"]) else WS_USED
OOB = 0x40000000
W1R = 0; W1S = 14336
WQR = 57344; WQS = 4096
XR = 73728; XS = 16384
KVST = 122880
SYNC = 155648
GT = SYNC + 512
LDS_BYTES = GT + 2048
QX = XR
KVR = 90112
pX, pWQ, pWK, pWV, pWO, pW1, pB1, pW2, pB2, pGATE, pOUT, pDBG, pWS = 4, 6, 8, 10, 12, 16, 18, 20, 22, 24, 26, 28, 30
rA, rB, rC, rD, rWS, rDBG, rPF, rE = 32, 36, 40, 44, 48, 52, 56, 60
sRB, sCB, sRB2, sCB2, sI, sW = 64, 65, 66, 67, 68, 69
sT0, sT1, sT2, sT3, sT4, sT5 = 70, 71, 72, 73, 74, 75
sIT, sA, sB, sC, sD, sE, sF, sG = 76, 77, 78, 79, 80, 81, 82, 83
sTS = 84
sPOS = 101
sQB = 100
SPIN_MAX = 1 << 18

a = Asm()
SEC = {}
def cm(t):
    for l in t.strip().split('\n'): a.raw('  ; ' + l.strip())
def section(n):
    a.out = SEC.setdefault(n, [])
section("head")
def kwait():
    a("s_waitcnt lgkmcnt(0)"); stamp("kw"); srd(rWS, pWS, WS_SIZE)
def srd(r, p, size):
    a(f"s_mov_b32 s{r}, s{p}\n s_mov_b32 s{r+1}, s{p+1}\n s_mov_b32 s{r+2}, {size}\n s_mov_b32 s{r+3}, 0x20000")
nts = [0]
STAMPS = {1: dict(g_b0=1, g_end1=2, g_bq=3, g_hst=4, g_pre=5, a_set=1, a_w0=2, a_8=3, a_16=4, a_24=5),
          0: dict(g_end1=1, g_flag=2, g_l2=3, g_hook=4, g_end=5, a_b0=1, a_16=2, a_bq=3, a_att=4, a_end=5)}[OPT["stop"]]
if OPT["st2"] == 1: STAMPS.update(g_end1=0, g_flag=0, g_l2=1, g_17=2, g_25=3)
if OPT["st2"] == 3: STAMPS = dict(kw=1, g_pre=2, g_bias=3, g_rdy=4, g_b0=5, a_iss=2, a_set=3, a_w0=4, a_b0=5)
if OPT["st2"] == 4: STAMPS.update(g_end1=0, g_st=1, g_flag=2, g_pw=3, g_wf=4, g_l2=0, g_s0=5, g_hook=0, g_end=0)
if OPT["st2"] == 5: STAMPS.update(g_end1=0, g_flag=0, g_l2=0, g_end=0, g_25=1, g_hook=2, g_30=3, g_32=4, g_34=5)
if OPT["st2"] == 2: STAMPS.update(g_end1=0, g_flag=0, g_l2=0, g_hook=1, g_32=2, g_36=3, g_bar=4)
def stamp(n):
    if n == OPT["padat"]: a("s_memrealtime s[96:97]"); a.wait0(vm=False)
    i = STAMPS.get(n)
    if OPT["ts"] and i:
        a(f"{'s_memrealtime' if OPT['ts'] == 2 else 's_memtime'} s[{sTS+2*i}:{sTS+2*i+1}]"); a.wait0(vm=False)
def mf16(d, x, y, c=None):
    a(f"v_mfma_f32_16x16x32_bf16 {vr(d,4)}, {vr(x,4)}, {vr(y,4)}, {vr(d,4) if c is None else c}")
def mf32(d, x, y, c=None):
    a(f"v_mfma_f32_32x32x16_bf16 {vr(d,16)}, {vr(x,4)}, {vr(y,4)}, {vr(d,16) if c is None else c}")
def dump_ts_and_end():
    if OPT["ts"]:
        a("s_memrealtime s[98:99]"); a.wait0()
        if OPT["dbgts"]:
            l = a.newlabel("L_nots")
            srd(rDBG, pDBG, 256)
            a(f"s_cmp_lg_u32 s2, 100\n s_cbranch_scc1 {l}\n s_cmp_lg_u32 s{sW}, 0\n s_cbranch_scc1 {l}")
            for i, k in enumerate((1, 2, 3, 4, 5, 7)): a(f"s_sub_u32 s{sT0}, s{sTS+2*k}, s96\n v_mov_b32 v{8+i}, s{sT0}")
            a(f"s_lshl_b32 s{sT0}, s3, 3\n s_add_u32 s{sT0}, s{sT0}, 8\n v_mov_b32 v2, 0\n s_mov_b64 exec, 1")
            a(f"buffer_store_dwordx2 v[8:9], v2, s[{rDBG}:{rDBG+3}], s{sT0} offen")
            a(f"buffer_store_dwordx4 v[10:13], v2, s[{rDBG}:{rDBG+3}], s{sT0} offen offset:8")
            a.label(l)
        else:
            for i in range(8): a(f"v_mov_b32 v{8+i}, s{sTS+2*i}")
            a(f"s_lshl_b32 s{sT0}, s2, 8\n s_lshl_b32 s{sT1}, s3, 5\n s_add_u32 s{sT0}, s{sT0}, s{sT1}\n s_add_u32 s{sT0}, s{sT0}, {TS_OFF}")
            a(f"v_mov_b32 v2, 0\n s_mov_b64 exec, 1")
            a(f"buffer_store_dwordx4 v[8:11], v2, s[{rWS}:{rWS+3}], s{sT0} offen")
            a(f"buffer_store_dwordx4 v[12:15], v2, s[{rWS}:{rWS+3}], s{sT0} offen offset:16")
    a("s_endpgm")

def prologue():
    m = OPT["map2"]
    lx, lc = {0: (1, 3), 2: (1, 3), 3: (2, 2), 4: (0, 4), 5: (2, 2)}[m]
    MAP2 = f"""s_lshr_b32 s{sT1}, s{sT0}, {lx}
      s_lshl_b32 s{sT1}, s{sT1}, {5-lc}
      s_lshr_b32 s{sT2}, s{sI}, {lc}
      s_add_u32 s{sRB2}, s{sT1}, s{sT2}
      s_and_b32 s{sT1}, s{sT0}, {(1<<lx)-1}
      s_and_b32 s{sT2}, s{sI}, {(1<<lc)-1}
      s_lshl_b32 s{sT2 if m in (2, 5) else sT1}, s{sT2 if m in (2, 5) else sT1}, {lx if m in (2, 5) else lc}
      s_add_u32 s{sCB2}, s{sT1}, s{sT2}
      s_xor_b32 s{sCB2}, s{sCB2}, {OPT["c2x"]}
      s_mov_b32 s{sPOS}, s{sCB}"""
    ident = list(range(16))
    LUTS = {0: (ident, [0, 1, 3, 2] + ident[4:]),
            1: ([0, 1, 3, 5, 2, 4, 6, 8, 7, 10, 12, 14, 9, 11, 13, 15], [0, 1, 2, 9, 4, 5, 6, 7, 8, 3, 10, 11, 12, 13, 14, 15]),
            2: ([0, 1, 3, 5, 2, 4, 6, 8, 7, 10, 12, 14, 9, 11, 13, 15], [0, 1, 2, 4, 3, 5, 11, 7, 8, 9, 10, 6, 12, 13, 14, 15]),
            3: ([0, 1, 3, 5, 7, 4, 10, 8, 12, 2, 14, 6, 9, 11, 13, 15], [0, 1, 2, 9, 4, 5, 6, 7, 8, 3, 10, 11, 12, 13, 14, 15])}[OPT["lut"]]
    for reg, tab in zip((sCB, sQB), LUTS):
        assert sorted(tab) == ident
        if tab == ident: continue
        w = sum(v << (4 * k) for k, v in enumerate(tab))
        MAP2 += f"""
          s_mov_b32 s{sT2}, {hex(w & 0xffffffff)}
          s_mov_b32 s{sT3}, {hex(w >> 32)}
          s_lshl_b32 s{sT1}, s{sPOS}, 2
          s_lshr_b64 s[{sT2}:{sT3}], s[{sT2}:{sT3}], s{sT1}
          s_and_b32 s{reg}, s{sT2}, 15"""
    cm('entry: workgroup -> (row block, column blocks); waves 0-3 take the matrix role G, waves 4-7 the loader / attention role A')
    a("s_cmp_ge_u32 s2, 256\n s_cbranch_scc1 L_exit")
    a("s_load_dwordx16 s[4:19], s[0:1], 0\n s_load_dwordx8 s[20:27], s[0:1], 64\n s_load_dwordx4 s[28:31], s[0:1], 96")
    if OPT["ts"] or OPT["th"] or OPT["padto"]:
        a(f"s_memtime s[{sTS}:{sTS+1}]\n s_memrealtime s[96:97]")
    a(f"""v_lshrrev_b32 v1, 6, v0
      v_and_b32 v0, 63, v0
      v_readfirstlane_b32 s3, v1
      s_lshr_b32 s{sI}, s2, 3
      s_and_b32 s{sT0}, s2, 7
      s_lshr_b32 s{sT1}, s{sT0}, 2
      s_lshl_b32 s{sT1}, s{sT1}, 3
      s_lshr_b32 s{sT2}, s{sI}, 2
      s_add_u32 s{sRB}, s{sT1}, s{sT2}
      s_and_b32 s{sT1}, s{sT0}, 3
      s_lshl_b32 s{sT1}, s{sT1}, 2
      s_and_b32 s{sT2}, s{sI}, 3
      s_add_u32 s{sCB}, s{sT1}, s{sT2}
      {MAP2}
      s_and_b32 s{sW}, s3, 3
      v_and_b32 v1, 15, v0
      v_lshrrev_b32 v2, 4, v0""")
    a("s_cmp_lt_u32 s3, 4\n s_cbranch_scc1 L_roleG\n s_setprio " + str(1 + (OPT["d0prio"] > 0)))

ACC1 = 112
acc1 = lambda ft, rt: ACC1 + (ft * 4 + rt) * 4
XF = [48, 80]; WRING = 24
vX = [16, 17]; vW1 = [18, 19]; vWq = [20, 21]; vLP, vJ, vQW = 15, 70, 64
def g_phase1():
    PD = OPT["pd"]
    sRG, sCG = sA, sB
    sXo, sPo, sPe, sPd = sC, sD, sE, sF
    a(f"s_and_b32 s{sRG}, s{sW}, 1\n s_lshr_b32 s{sCG}, s{sW}, 1")
    cm('G, phase 1: [Q | FFN hidden] tile = x[128 rows] * [Wq 64 cols | W1 224 cols], accumulators start from the bias')
    a(f"""s_cmp_lt_u32 s{sW}, 2
      s_cbranch_scc0 L_nocode
      s_getpc_b64 s[{rE}:{rE+1}]""")
    a.label("L_pc")
    a(f"""s_mov_b32 s{rE+2}, L_codeend-L_pc
      s_mov_b32 s{rE+3}, 0x20000
      s_lshl_b32 s{sT1}, s{sI}, 10
      s_lshl_b32 s{sT2}, s{sW}, 15
      s_add_u32 s{sT1}, s{sT1}, s{sT2}
      v_lshlrev_b32 v29, 7, v0
      s_mov_b64 exec, 0xff
      buffer_load_dword v{vJ}, v29, s[{rE}:{rE+3}], s{sT1} offen
      s_mov_b64 exec, -1""")
    a.label("L_nocode")
    a(f"""s_mul_i32 s{sT0}, s{sCB}, 448
      s_mul_i32 s{sT1}, s{sCG}, 224
      s_add_u32 s{sT0}, s{sT0}, s{sT1}
      v_lshlrev_b32 v14, 2, v0
      s_mov_b32 s{rA+2}, 7168
      s_mov_b32 s{rA+3}, 0x20000
      s_setprio 3
      s_waitcnt lgkmcnt(0)
      s_mov_b32 s{rA}, s{pB1}
      s_mov_b32 s{rA+1}, s{pB1+1}
      buffer_load_dword v33, v14, s[{rA}:{rA+3}], s{sT0} offen
      s_setprio 0""")
    kwait()
    for r in range(0, 32, 2): a(f"v_mov_b64 {vr(ACC1+r,2)}, 0")
    a(f"""v_lshrrev_b32 v14, 1, v1
      v_xor_b32 v14, v14, v2
      v_lshlrev_b32 v14, 4, v14
      v_lshl_add_u32 v14, v1, 7, v14
      s_lshl_b32 s{sT0}, s{sRG}, 13
      s_add_u32 s{sT0}, s{sT0}, {XR}
      v_add_u32 v{vX[0]}, s{sT0}, v14
      v_xor_b32 v{vX[1]}, 64, v{vX[0]}
      s_mov_b32 s{sXo}, 0
      v_lshrrev_b32 v14, 2, v1
      v_lshl_add_u32 v14, v2, 3, v14
      v_and_b32 v29, 3, v1
      v_lshlrev_b32 v29, 3, v29
      v_mul_u32_u24 v30, 448, v14
      v_add_u32 v30, v30, v29
      s_mul_i32 s{sT0}, s{sCG}, 224
      v_add_u32 v30, s{sT0}, v30
      v_and_b32 v31, 1, v2
      v_lshlrev_b32 v32, 5, v31
      s_lshl_b32 s{sT1}, s{sCG}, 1
      s_sub_u32 s{sT1}, 1, s{sT1}
      v_mul_lo_u32 v32, v32, s{sT1}
      v_add_u32 v{vW1[0]}, v30, v32
      v_sub_u32 v{vW1[1]}, v30, v32
      v_lshrrev_b32 v32, 3, v1
      v_lshl_add_u32 v31, v32, 1, v31
      s_lshl_b32 s{sT0}, s{sCG}, 1
      v_xor_b32 v31, s{sT0}, v31
      v_lshl_add_u32 v29, v31, 5, v29
      v_lshl_add_u32 v29, v14, 7, v29
      v_add_u32 v{vWq[0]}, {WQR}, v29
      v_xor_b32 v{vWq[1]}, 32, v{vWq[0]}""")
    if not OPT["stop"]: g2_vsetup()
    a(f"""v_and_b32 v28, 1, v2
      v_lshlrev_b32 v28, 10, v28
      v_lshrrev_b32 v29, 1, v2
      v_lshl_add_u32 v28, v29, 8, v28
      v_lshl_add_u32 v{vLP}, v1, 4, v28""")
    a(f"v_mov_b32 v30, {SYNC}\n ds_write_b128 v30, v[{ACC1}:{ACC1+3}]\n v_lshlrev_b32 v29, 3, v2")
    stamp("g_pre")
    a.wait0()
    stamp("g_bias")
    for k in range(14): a.lg(f"ds_bpermute_b32 v{48+k}, v29, v33 offset:{32*(k//2)+4*(k%2)}", ("b", k // 2))
    for ft in range(7):
        d = acc1(2 + ft, 0)
        a.wait(lg=("b", ft))
        a(f"v_lshlrev_b32 v{d}, 16, v{48+2*ft}\n v_and_b32 v{d+1}, 0xffff0000, v{48+2*ft}")
        a(f"v_lshlrev_b32 v{d+2}, 16, v{49+2*ft}\n v_and_b32 v{d+3}, 0xffff0000, v{49+2*ft}")
        for rt in range(1, 4): a(f"v_mov_b64 {vr(d+4*rt,2)}, {vr(d,2)}\n v_mov_b64 {vr(d+4*rt+2,2)}, {vr(d+2,2)}")
    def rdW(g, n):
        u, ft = divmod(g, 9); kk, e = divmod(n, 2); d = WRING + 8 * (g % 3) + 2 * n; sl = 2 * (u % 2) + kk
        if ft < 2: a.lg(f"ds_read_b64_tr_b16 {vr(d,2)}, v{vWq[ft]} offset:{sl*WQS + e*512}", ("W", g))
        else: a.lg(f"ds_read_b64_tr_b16 {vr(d,2)}, v{vW1[ft%2]} offset:{sl*W1S + e*1792 + (ft-2)*32}", ("W", g))
    def rdX(u, n):
        rt, kk = divmod(n, 2)
        a.lg(f"ds_read_b128 {vr(XF[u%2]+16*kk+4*rt,4)}, v{vX[kk]} offset:{rt*2048}", ("X", u))
    def block(u, plan):
        for ft in range(9):
            g = 9 * u + ft
            a.wait(lg=[("W", g), ("X", u)] if ft == 0 else ("W", g))
            for n in range(8):
                rt = 3 - n // 2 if ft % 2 else n // 2
                kk = (n + 1) // 2 % 2
                mf16(acc1(ft, rt), WRING + 8 * (g % 3) + 4 * kk, XF[u % 2] + 16 * kk + 4 * rt)
                if n < 4 and g + 2 < 144: rdW(g + 2, n)
                x = plan.get(8 * ft + n)
                if callable(x): x()
                elif x: a(x)
    a(f"s_mov_b32 s{sIT}, 0")
    stamp("g_rdy")
    a("s_barrier")
    stamp("g_b0")
    for n in range(4): rdW(0, n)
    for n in range(8): rdX(0, n)
    for n in range(4): rdW(1, n)
    a.raw(".p2align 3")
    cm('16 k-blocks of 64; operands come from LDS rings that the A waves fill, two barriers per block')
    a.label("L_g1loop")
    def body(it):
        for b in range(2):
            u = 2 * it + b
            plan = {12: f"s_add_u32 s{sXo}, s{sXo}, 1\n s_cmp_eq_u32 s{sXo}, 3", 13: f"s_cselect_b32 s{sXo}, 0, s{sXo}\n s_cselect_b32 s{sT0}, {3*XS}, 0",
                    14: f"s_sub_u32 s{sT0}, {XS}, s{sT0}", 20: f"v_add_u32 v{vX[0]}, s{sT0}, v{vX[0]}", 21: f"v_add_u32 v{vX[1]}, s{sT0}, v{vX[1]}",
                    OPT["mpos"]: "s_barrier", OPT["epos"]: "s_barrier"}
            free = [p for p in range(OPT["mpos"] + 1, 64) if 4 <= p % 8 < 7]
            for n in range(8): plan[free[n]] = lambda n=n: rdX(u + 1, n)
            assert 64 <= OPT["epos"] <= 68 and 22 <= OPT["mpos"] <= 36
            if b == 0: plan[69] = f"s_add_u32 s{sIT}, s{sIT}, 1"; plan[70] = f"s_cmp_eq_u32 s{sIT}, 8"
            block(u, plan)
            if b == 0:
                a("s_cbranch_scc1 L_g1last"); snap[:] = [(k_, v_ + (14 - u) * (9 if k_ == "W" else 1)) for k_, v_ in a.lgq]
        a("s_branch L_g1loop")
    snap = []
    a.loop(body, "g1")
    cm('last k-block; Q goes to the attention waves through LDS')
    a.label("L_g1last")
    a.lgq[:] = snap
    cq = lambda s_, rt: f"v_cvt_pk_bf16_f32 v{48+4*rt+2*s_}, v{acc1(s_,rt)}, v{acc1(s_,rt)+1}\n v_cvt_pk_bf16_f32 v{49+4*rt+2*s_}, v{acc1(s_,rt)+2}, v{acc1(s_,rt)+3}"
    wq = lambda rt: lambda: a.lg(f"ds_write_b128 v{vQW}, {vr(48+4*rt,4)} offset:{(rt//2)*4096 + (rt%2)*1024}")
    plan = {4: f"s_lshl_b32 s{sT2}, s{sRG}, 13\n s_lshl_b32 s{sT3}, s{sCG}, 11", 5: f"s_add_u32 s{sT2}, s{sT2}, s{sT3}\n s_add_u32 s{sT2}, s{sT2}, {QX}",
            6: f"v_lshl_add_u32 v{vQW}, v0, 4, s{sT2}", 20: cq(0, 0), 21: cq(0, 1), 22: cq(0, 2), 28: cq(0, 3), 29: cq(1, 3), 30: cq(1, 2),
            36: cq(1, 1), 37: cq(1, 0), 38: "s_barrier",
            44: wq(0), 46: wq(1), 52: wq(2), 54: wq(3),
            61: lambda: (a.wait0(vm=False), a(f"s_setprio {OPT['gprio']}\n s_barrier"))}
    block(15, plan)
    stamp("g_end1")
def g_hstore(lo=0, hi=7):
    sRG, sCG = sA, sB
    sT0, sT1, sT2, sT3 = sT4, sT5, sF, sG
    if lo == 0: a(f"""s_mul_i32 s{sT0}, s{sRB}, {RBSZ}
      s_mul_i32 s{sT1}, s{sCB}, {7*8192}
      s_add_u32 s{sT0}, s{sT0}, s{sT1}
      s_lshl_b32 s{sT1}, s{sRG}, 12
      s_add_u32 s{sT0}, s{sT0}, s{sT1}
      s_mul_i32 s{sT1}, s{sCG}, {3*8192+512}
      s_add_u32 s{sT0}, s{sT0}, s{sT1}
      s_mul_i32 s{sT2}, s{sCG}, {8192-1024}
      s_add_u32 s{sT2}, s{sT2}, 512
      s_sub_u32 s{sT3}, 8192, s{sT2}""")
    cm('hidden = relu(h)^2 as bf16, write-through to the workspace in MFMA operand order')
    k = 0
    for ft in range(lo, hi):
        for p in range(2):
            T = 48 + 4 * (k % 4); k += 1
            if OPT["nohst"] == 2: continue
            for h in range(2):
                d = acc1(2 + ft, 2 * p + h)
                for r in range(4): a(f"v_max_f32 v{d+r}, 0, v{d+r}")
                if OPT["nopk"] > 1: a("\n".join(f"v_mul_f32 v{d+r}, v{d+r}, v{d+r}" for r in range(4)))
                else: a(f"v_pk_mul_f32 {vr(d,2)}, {vr(d,2)}, {vr(d,2)}\n v_pk_mul_f32 {vr(d+2,2)}, {vr(d+2,2)}, {vr(d+2,2)}")
                a(f"v_cvt_pk_bf16_f32 v{T+2*h}, v{d}, v{d+1}\n v_cvt_pk_bf16_f32 v{T+2*h+1}, v{d+2}, v{d+3}")
            a(f"s_nop 1\n v_permlane16_swap_b32 v{T}, v{T+2}\n v_permlane16_swap_b32 v{T+1}, v{T+3}")
            if not OPT["nohst"]: a.vm(f"buffer_store_dwordx4 {vr(T,4)}, v{vLP}, s[{rWS}:{rWS+3}], s{sT0} offen offset:{p*2048} sc1", "hst")
        a(f"s_add_u32 s{sT0}, s{sT0}, s{sT2 if ft % 2 == 0 else sT3}")

vO = 3
vKX, vKG, vKW, vKT0, vKVD, vKR = 140, 12, 13, 24, 15, 142
KVREG = 208; vG = 253
KXF, KGF, KWF, KAC = 32, 64, 96, 128
def a_phase1():
    sISV, sR0, sSTG, sM, sSo, sSx, sGrp = sA, sB, sC, sD, sE, sF, sG
    NT = " nt" if OPT["pfnt"] else ""
    LEAD = OPT["lead"]
    vXo, vQo, vP = 144, 148, 150
    sSq, sMx, sMq, sPo, sPm = 14, 15, 18, 19, 22
    section("st")
    cm('A, phase 1 start-up: every wave brings 16 rows of W1 / Wq and 32 rows of x per k-block; wave 7 also warms caches and handles the flags')
    a(f"""v_lshrrev_b32 v16, 3, v0
      v_lshlrev_b32 v16, 11, v16
      v_and_b32 v17, 7, v0
      v_xor_b32 v18, v17, v2
      v_lshl_add_u32 v18, v18, 4, v16
      v_and_b32 v20, 1, v2
      v_lshlrev_b32 v20, 2, v20
      v_xor_b32 v20, v20, v17
      v_lshl_add_u32 v{vQo}, v20, 4, v16
      v_xor_b32 v19, 32, v{vQo}
      v_add_u32 v{vQo+1}, {16384-1024}, v19
      s_lshl2_add_u32 s{sSx}, s{sRB}, s{sW}
      s_lshl_b32 s{sSx}, s{sSx}, 16""")
    for i in range(4): a(f"v_xor_b32 v19, {64*(i%2)}, v18\n v_add_u32 v{vXo+i}, {i*16384 - i*1024}, v19")
    a(f"s_mul_i32 s{sT0}, s{sW}, {16*7168}\n s_mul_i32 s{sT1}, s{sCB}, 448\n s_add_u32 s{sSo}, s{sT0}, s{sT1}")
    a(f"s_mul_i32 s{sM}, s{sW}, 7168\n s_movk_i32 s{sT2}, {7168-448}")
    def w1off(i):
        a(f"""v_add_u32 v16, {64*i}, v0
          v_mul_u32_u24 v17, 2341, v16
          v_lshrrev_b32 v17, 16, v17
          v_bfe_u32 v18, v17, 3, 1
          v_lshlrev_b32 v18, 1, v18
          v_xor_b32 v16, v16, v18
          v_lshlrev_b32 v16, 4, v16
          v_mad_u32_u24 v{vO+i}, v17, s{sT2}, v16""")
        if i % 4: a(f"v_subrev_u32 v{vO+i}, {1024*(i%4)}, v{vO+i}")
    for i in range(OPT['w1n']): w1off(i)
    kwait(); srd(rA, pX, 2048 * 2048); srd(rPF, pWQ, 1024 * 2048); srd(rB, pW1, 1024 * 7168)
    a(f"""s_lshl_b32 s{sMx}, s{sW}, 12
      s_lshl_b32 s{sMq}, s{sW}, 11
      s_lshl_b32 s{sSq}, s{sW}, 15
      s_lshl_b32 s{sT0}, s{sQB}, 7
      s_add_u32 s{sSq}, s{sSq}, s{sT0}""")
    trickle = []
    def trk(all_=False):
        while trickle:
            for t_ in trickle.pop(0): a.label(t_[:-1]) if t_.endswith(":") else a.lg(t_)
            if not all_: break
    def ldW(u, m=None):
        for i in range(7):
            if i == 4 and m: m()
            if u == 0 and i >= OPT['w1n']: w1off(i)
            if i % 4 == 0: a(f"s_add_u32 m0, s{sM}, {(u%2)*2*W1S + i*1024}\n s_nop 0")
            a.vm(f"buffer_load_dwordx4 v{vO+i}, s[{rB}:{rB+3}], s{sSo} offen offset:{1024*(i%4)} lds", ("W", u)); trk()
        a(f"s_add_u32 s{sSo}, s{sSo}, {64*7168}")
    def ldQ(u):
        a(f"s_add_u32 m0, s{sMq}, {WQR + (u%2)*2*WQS}\n s_nop 0")
        for i in range(2):
            a.vm(f"buffer_load_dwordx4 v{vQo+i}, s[{rPF}:{rPF+3}], s{sSq} offen offset:{1024*i} lds", ("Q", u)); trk()
        a(f"s_add_u32 s{sSq}, s{sSq}, 131072")
    def ldX(u):
        a(f"s_add_u32 m0, s{sMx}, {XR + (u%3)*XS}\n s_nop 0")
        for i in range(4):
            a.vm(f"buffer_load_dwordx4 v{vXo+i}, s[{rA}:{rA+3}], s{sSx} offen offset:{1024*i} lds", ("X", u)); trk()
        a(f"s_add_u32 s{sSx}, s{sSx}, 128")
    plainwait = a.wait
    def pwait(vm=(), lg=()):
        tags = vm if isinstance(vm, list) else [vm]
        idx = max([k for k, x in enumerate(a.vmq) if x in tags], default=-1)
        isP = lambda x: isinstance(x, tuple) and x[0] == "P"
        rest = a.vmq[idx + 1:]
        if idx < 0 or not any(map(isP, rest)): return plainwait(vm, lg)
        assert lg == ()
        n0 = sum(not isP(x) for x in rest); l = a.newlabel("L_pw")
        for g_ in sorted({x[1] for x in rest if isP(x)}) if OPT["pexact"] else []:
            l2 = a.newlabel("L_pw")
            a(f"s_cmp_lg_u32 s{sGrp}, {g_}\n s_cbranch_scc1 {l2}\n s_waitcnt vmcnt({n0 + rest.count(('P', g_))})\n s_branch {l}")
            a.label(l2)
        a(f"s_waitcnt vmcnt({n0})"); a.label(l)
        a.vmq[:] = rest
    a.wait = pwait
    a.vmq.clear(); a.lgq.clear()
    if OPT["rot"]:
        a(f"s_add_u32 s{sT0}, s{sRB}, s{sPOS}\n s_bitcmp1_b32 s{sT0}, 0\n s_cbranch_scc0 L_d0a")
        ldW(0); ldX(0); ldQ(0)
        a("s_branch L_d0b")
        a.label("L_d0a"); a.vmq.clear()
    ldX(0); ldQ(0); ldW(0)
    if OPT["rot"]: a.label("L_d0b")
    if OPT["d0prio"]: a("s_setprio 1")
    if OPT["d0prio"] == 2: a("s_waitcnt vmcnt(6)")
    a(f"s_cmp_eq_u32 s{sW}, 3\n s_cbranch_scc1 L_st2")
    q0 = list(a.vmq)
    for path in (0, 2):
        section(f"st{path}")
        a.label(f"L_st{path}")
        a.vmq[:] = q0; a.lgq.clear()
        pfs = lambda t: None
        if path == 0: pass
        else:
            assert OPT["lut"] == 0
            a(f"""s_and_b32 s{sGrp}, s{sI}, 7
              s_lshl_b32 s{sT0}, s{sGrp}, 5
              s_and_b32 s{sT1}, s2, 4
              s_lshl2_add_u32 s{sT0}, s{sT1}, s{sT0}
              s_lshr_b32 s{sT1}, s{sI}, 3
              s_lshl2_add_u32 s{sT0}, s{sT1}, s{sT0}
              s_and_b32 s{sT1}, s2, 3
              s_mul_i32 s{sPo}, s{sT0}, 7168
              s_mul_i32 s{sT2}, s{sT1}, 1792
              s_add_u32 s{sPo}, s{sPo}, s{sT2}
              s_lshl2_add_u32 s{sPm}, s{sT0}, s{sT1}
              s_lshl_b32 s{sPm}, s{sPm}, 9
              s_and_b32 s{sT1}, s2, 7
              s_lshl_b32 s{sT1}, s{sT1}, 5
              s_add_u32 s{sT1}, s{sT1}, s{sI}
              s_lshl_b32 s{sIT}, s{sT1}, 14
              v_lshrrev_b32 v16, 3, v0
              v_lshlrev_b32 v16, 11, v16
              v_and_b32 v17, 7, v0
              v_lshl_add_u32 v{vP+0}, v17, 7, v16
              v_lshlrev_b32 v{vP+1}, 7, v0
              v_mul_u32_u24 v16, 7168, v2
              v_lshl_add_u32 v{vP+2}, v1, 7, v16
              v_lshrrev_b32 v16, 2, v0
              v_and_b32 v17, 3, v0
              v_lshlrev_b32 v17, 7, v17
              v_lshl_add_u32 v{vP+3}, v16, 11, v17""")
            def pfW(so, sm, vm):
                a("s_mov_b32 exec_lo, 0x3fff3fff\n s_mov_b32 exec_hi, 0x3fff3fff")
                vm(f"buffer_load_dword v250, v{vP+2}, s[{rB}:{rB+3}], s{so} offen{NT}")
                a("s_mov_b64 exec, 0xffff")
                vm(f"buffer_load_dword v250, v{vP+3}, s[{rPF}:{rPF+3}], s{sm} offen{NT}")
                a("s_mov_b64 exec, -1")
            def p0():
                if OPT["nopf"]: return
                a(f"s_mov_b32 exec_lo, 0x0f0f0f0f\n s_mov_b32 exec_hi, 0x0f0f0f0f")
                a.vm(f"buffer_load_dword v250, v{vP+0}, s[{rA}:{rA+3}], s{sIT} offen{NT}")
                a(f"""s_cmp_lt_u32 s{sGrp}, {LEAD}
                  s_cselect_b32 s{sT0}, s{sPo}, {OOB}
                  s_cselect_b32 s{sT1}, s{sPm}, {OOB}""")
                pfW(sT0, sT1, a.vm)
                a(f"""s_cselect_b32 s{sT0}, {256*7168}, 0
                  s_cselect_b32 s{sT1}, {256*2048}, 0
                  s_add_u32 s{sPo}, s{sPo}, s{sT0}
                  s_add_u32 s{sPm}, s{sPm}, s{sT1}
                  s_and_b32 s{sIT}, s{sIT}, {31 << 17}
                  v_lshrrev_b32 v16, 1, v0
                  v_and_b32 v17, 1, v0
                  v_lshlrev_b32 v17, 7, v17
                  v_lshl_add_u32 v{vP+0}, v16, 11, v17""")
            def pfs(t):
                if OPT["nopf"]: return
                if t + LEAD < 32:
                    l = a.newlabel("L_np")
                    a(f"s_cmp_lg_u32 s{sGrp}, {(t+LEAD)%8}\n s_cbranch_scc1 {l}")
                    pv_ = lambda x: a.vm(x, ("P", (t + LEAD) % 8))
                    pfW(sPo, sPm, pv_)
                    a(f"s_add_u32 s{sPo}, s{sPo}, {256*7168}\n s_add_u32 s{sPm}, s{sPm}, {256*2048}")
                    if t < 6:
                        for k_ in range(2):
                            pv_(f"buffer_load_dword v250, v{vP+0}, s[{rA}:{rA+3}], s{sIT} offen offset:{512+256*t}{NT}"); a(f"s_add_u32 s{sIT}, s{sIT}, 65536")
                    if OPT["pf2"] and t // 8 == OPT["pf2b"]:
                        srd(rD, pW2, 3584 * 2048)
                        if OPT["loc2"]:
                            a(f"""s_bfe_u32 s{sT0}, s2, {hex(((3-LC) << 16) + LC)}
                              s_lshl_b32 s{sT0}, s{sT0}, 5
                              s_add_u32 s{sT1}, s{sT0}, s{sI}
                              s_lshr_b32 s{sT0}, s{sT1}, {6-LC}
                              s_mul_i32 s{sT0}, s{sT0}, {896*2048}
                              s_and_b32 s{sT1}, s{sT1}, {(64 >> LC) - 1}
                              s_lshl_b32 s{sT1}, s{sT1}, {13+LC}
                              s_add_u32 s{sT0}, s{sT0}, s{sT1}
                              s_and_b32 s{sT1}, s{sCB2}, {(1 << LC) - 1}
                              s_lshl_b32 s{sT1}, s{sT1}, 7
                              s_add_u32 s{sT0}, s{sT0}, s{sT1}
                              v_lshlrev_b32 v{vP+1}, {7+LC}, v0""")
                        else: a(f"s_lshr_b32 s{sT0}, s2, 6\n s_mul_i32 s{sT0}, s{sT0}, {896*2048}\n s_and_b32 s{sT1}, s2, 63\n s_lshl_b32 s{sT1}, s{sT1}, 13\n s_add_u32 s{sT0}, s{sT0}, s{sT1}")
                        pv_(f"buffer_load_dword v250, v{vP+1}, s[{rD}:{rD+3}], s{sT0} offen")
                    a.label(l)
        def kvsetup():
            if OPT["evk"]: a(f"s_bfe_u32 s{sISV}, s{sPOS}, 0x10002\n s_lshr_b32 s{sR0}, s{sPOS}, 3\n s_lshl_b32 s{sR0}, s{sR0}, 2\n s_and_b32 s{sT0}, s{sPOS}, 3\n s_add_u32 s{sR0}, s{sR0}, s{sT0}")
            else: a(f"s_and_b32 s{sISV}, s{sCB}, 1\n s_lshr_b32 s{sR0}, s{sCB}, 1")
            a(f"""s_lshl_b32 s{sR0}, s{sR0}, 4
              s_lshl_b32 s{sT0}, s{sRB}, 7
              s_add_u32 s{sR0}, s{sR0}, s{sT0}
              s_cmp_eq_u32 s{sISV}, 0
              s_cselect_b32 s{rC}, s{pWK}, s{pWV}
              s_cselect_b32 s{rC+1}, s{pWK+1}, s{pWV+1}
              s_mov_b32 s{rC+2}, 65536
              s_mov_b32 s{rC+3}, 0x20000
              v_lshlrev_b32 v{vKVD}, 4, v0""")
            if path == 2:
                srd(rD, pGATE, 2048); srd(rDBG, pDBG, 256)
                a(f"s_lshl_b32 s{sT0}, s{sR0}, 5\n s_mov_b64 exec, 15")
                a.vm(f"buffer_load_dword v250, v{vP+1}, s[{rC}:{rC+3}], s{sT0} offen"); a("s_mov_b64 exec, -1")
                a(f"s_mov_b32 m0, {GT}\n s_nop 0")
                for i in range(2): a.vm(f"buffer_load_dwordx4 v{vKVD}, s[{rD}:{rD+3}], 0 offen offset:{1024*i} lds", "gt")
        if path == 2 and OPT["p0late"] == 1: p0(); kvsetup()
        ldX(1); ldQ(1)
        if path == 2 and OPT["p0late"] == 2: p0(); kvsetup()
        if OPT["w1pre"]: ldW(1)
        stamp("a_iss")
        if OPT["kvl"]: a.wait(vm=[("W", 0), ("Q", 0), ("X", 0)]); a("s_barrier")
        a(f"s_branch L_a1m{path}")
        section("main")
        cm('A, phase 1: LDS-DMA of the GEMM operands; K (scaled by log2(e)/sqrt(32)), V and the gate of 16 rows on the side')
        a.label(f"L_a1m{path}")
        def kvsetup2():
            if path != 2: kvsetup()
            a(f"""s_lshl_b32 s{sSTG}, s{sW}, 13
              s_add_u32 s{sSTG}, s{sSTG}, {KVST}
              s_lshl_b32 s{sT0}, s{sW}, 7
              v_lshl_add_u32 v17, v2, 4, s{sT0}
              v_add_u32 v{vKG}, {GT}, v17
              v_lshrrev_b32 v16, 3, v0
              v_add_u32 v16, s{sR0}, v16
              v_and_b32 v17, 7, v0
              v_xor_b32 v17, v17, v2
              v_lshl_add_u32 v17, v17, 4, s{sT0}
              v_lshl_add_u32 v{vKX}, v16, 11, v17
              v_xor_b32 v16, 64, v{vKX}
              v_add_u32 v{vKX+1}, {16384-1024}, v16
              v_lshrrev_b32 v16, 1, v1
              v_xor_b32 v16, v16, v2
              v_lshlrev_b32 v16, 4, v16
              v_lshl_add_u32 v16, v1, 7, v16
              v_add_u32 v{vKR}, s{sSTG}, v16
              v_xor_b32 v{vKR+1}, 64, v{vKR}
              v_lshrrev_b32 v16, 4, v0
              v_and_b32 v16, 2, v16
              v_xor_b32 v16, v16, v0
              s_lshl_b32 s{sT0}, s{sW}, 12
              v_lshl_add_u32 v{vKW}, v16, 4, s{sT0}
              v_lshrrev_b32 v16, 2, v1
              v_lshl_add_u32 v16, v2, 3, v16
              v_and_b32 v17, 3, v1
              v_lshlrev_b32 v17, 3, v17
              v_lshl_add_u32 v16, v16, 6, v17
              v_and_b32 v17, 1, v2
              v_lshl_add_u32 v16, v17, 5, v16
              v_add_u32 v{vKT0}, s{sSTG}, v16
              v_xor_b32 v{vKT0+1}, 32, v{vKT0}""")
            for r in range(12): a(f"v_mov_b32 v{KAC+r}, 0")
        if not OPT["kvl"]: kvsetup2()
        def konly(l_):
            lb = a.newlabel("L_ko")
            return [f"s_cmp_lg_u32 s{sISV}, 0\n s_cbranch_scc1 {lb}"] + l_ + [lb + ":"]
        def kvX(rho):
            if 'X' in OPT['kvskip']: return
            a(f"s_add_u32 m0, s{sSTG}, 6144\n s_movk_i32 s{sT0}, {rho*512}")
            for i in range(2):
                a.vm(f"buffer_load_dwordx4 v{vKX+i}, s[{rA}:{rA+3}], s{sT0} offen offset:{1024*i} lds", ("kw", rho))
        def kvW(rho, half):
            if 'W' in OPT['kvskip']: return
            if half: a.wait0(vm=False)
            a(f"s_add_u32 m0, s{sSTG}, {4096 if half else (rho%2)*2048}\n s_mov_b32 s{sT0}, {rho*16384 + half*2048}")
            for i in range(2):
                a.vm(f"buffer_load_dwordx4 v{vKW}, s[{rC}:{rC+3}], s{sT0} offen offset:{1024*i} lds", ("kw", rho))
        def kvR(rho):
            if 'R' in OPT['kvskip']: return
            a.wait(vm=("kw", rho))
            for i in range(2):
                for nt in range(2):
                    trickle.append([f"ds_read_b64_tr_b16 {vr(KWF+8*i+4*nt+2*e,2)}, v{vKT0+nt} offset:{(4096 if i else (rho%2)*2048)+e*256}" for e in range(2)])
            trickle.append([f"ds_read_b128 {vr(KXF+4*i,4)}, v{vKR+i} offset:6144" for i in range(2)])
            trickle.append(konly([f"ds_read_b128 {vr(KGF+4*i,4)}, v{vKG} offset:{512*rho+64*i}" for i in range(2)]))
        def kvM(rho):
            if 'M' in OPT['kvskip']: return
            a.wait0(vm=False)
            lv, ld = a.newlabel("L_kv"), a.newlabel("L_kd")
            a(f"s_cmp_lg_u32 s{sISV}, 0\n s_cbranch_scc1 {lv}")
            for nt in range(2):
                for i in range(2): mf16(KAC + 4 * nt, KWF + 8 * i + 4 * nt, KXF + 4 * i)
            for i in range(2): mf16(KAC + 8, KGF + 4 * i, KXF + 4 * i)
            a(f"s_branch {ld}")
            a.label(lv)
            for nt in range(2):
                for i in range(2): mf16(KAC + 4 * nt, KXF + 4 * i, KWF + 8 * i + 4 * nt)
            a.label(ld)
        def kvP():
            if 'P' in OPT['kvskip']: return
            a(f"v_add_u32 v16, s{sSTG}, v{vKVD}\n s_nop 5")
            if OPT["pw"] == 128:
                for nt in range(2): trickle.append([f"ds_write_b128 v16, {vr(KAC+4*nt,4)} offset:{nt*1024}"])
            elif OPT["pw"] == 64:
                for k_ in range(4): trickle.append([f"ds_write_b64 v16, {vr(KAC+2*k_,2)} offset:{(k_//2)*1024+(k_%2)*8}"])
            elif OPT["pw"] == 32:
                for k_ in range(0, 8, 2): trickle.append([f"ds_write_b32 v16, v{KAC+k2} offset:{(k2//4)*1024+(k2%4)*4}" for k2 in (k_, k_ + 1)])
            trickle.append(konly([f"ds_write_b32 v16, v{KAC+8} offset:2048"]))
            if OPT["pb"]: trk(True)
            if OPT["pb"] > 1: a.wait0(vm=False)
        def kvF():
            if 'F' in OPT['kvskip']: return
            a(f"v_add_u32 v26, {KVST}, v{vKVD}")
            for w in range(3):
                a(f"ds_read_b128 {vr(32+8*w,4)}, v26 offset:{w*8192}\n ds_read_b128 {vr(36+8*w,4)}, v26 offset:{w*8192+1024}")
            a(f"""s_lshr_b32 s{sT3}, s{sR0}, 5
              s_lshl_b32 s{sT3}, s{sT3}, 12
              s_add_u32 s{sT3}, s{sT3}, {KV_OFF}
              s_bfe_u32 s{sT4}, s{sR0}, 0x10004
              s_cmp_eq_u32 s{sISV}, 0
              s_cselect_b32 s{sT0}, {f2u(32 ** -0.5 * math.log2(math.e))}, 1.0
              s_cselect_b32 s{sT2}, 7, 9
              s_cselect_b32 s{sT5}, 0, 2048
              s_lshl_b32 s{sT4}, s{sT4}, s{sT2}
              s_add_u32 s{sT3}, s{sT3}, s{sT4}
              s_add_u32 s{sT3}, s{sT3}, s{sT5}
              s_waitcnt lgkmcnt(0)""")
            for r in range(8):
                a(f"v_add_f32 v{32+r}, v{32+r}, v{40+r}\n v_add_f32 v{48+r}, v{48+r}, v{KAC+r}\n v_add_f32 v{32+r}, v{32+r}, v{48+r}\n v_mul_f32 v{32+r}, s{sT0}, v{32+r}")
            for r in range(4): a(f"v_cvt_pk_bf16_f32 v{40+r}, v{32+2*r}, v{33+2*r}")
            a(f"s_cmp_eq_u32 s{sISV}, 0\n s_cbranch_scc1 L_nosw\n v_permlane16_swap_b32 v40, v42\n v_permlane16_swap_b32 v41, v43")
            a.label("L_nosw")
            a.vm(f"buffer_store_dwordx4 v[40:43], v27, s[{rWS}:{rWS+3}], s{sT3} offen sc1", "pub")
        def kvF0():
            a(f"""v_bfe_u32 v16, v1, 2, 1
              v_lshlrev_b32 v16, 10, v16
              v_lshl_add_u32 v16, v2, 8, v16
              v_lshrrev_b32 v17, 3, v1
              v_lshl_add_u32 v16, v17, 6, v16
              v_and_b32 v17, 3, v1
              v_lshl_add_u32 v27, v17, 4, v16
              s_cmp_eq_u32 s{sISV}, 0
              s_cbranch_scc1 L_kadr
              v_and_b32 v16, 1, v2
              v_lshlrev_b32 v16, 10, v16
              v_lshrrev_b32 v17, 1, v2
              v_lshl_add_u32 v16, v17, 8, v16
              v_lshl_add_u32 v27, v1, 4, v16""")
            a.label("L_kadr")
        def kvF2():
            if 'F' in OPT['kvskip']: return
            a(f"s_mov_b32 s{sT0}, {OOB}\n v_lshlrev_b32 v20, 2, v0\n s_cmp_lg_u32 s{sISV}, 0\n s_cbranch_scc1 L_nogate")
            for w in range(3): a(f"ds_read_b32 v{64+w}, v26 offset:{w*8192+2048}")
            a(f"""s_lshl_b32 s{sT0}, s{sR0}, 2
              s_add_u32 s{sT0}, s{sT0}, {G_OFF}
              s_waitcnt lgkmcnt(0)
              v_add_f32 v64, v64, v65
              v_add_f32 v66, v66, v{KAC+8}
              v_add_f32 v64, v64, v66
              v_mul_f32 v64, {f2u(-math.log2(math.e))}, v64
              v_exp_f32 v64, v64
              s_nop 0
              v_add_f32 v64, 1.0, v64
              v_rcp_f32 v64, v64""")
            a.label("L_nogate")
            a("s_mov_b64 exec, 0xffff")
            a.vm(f"buffer_store_dword v64, v20, s[{rWS}:{rWS+3}], s{sT0} offen sc1", "pub"); a("s_mov_b64 exec, -1")
        def kvA():
            a(f"""s_lshl_b32 s{sT0}, s{sRB}, 4
              s_add_u32 s{sT0}, s{sT0}, s{sCB}
              s_lshl_b32 s{sT0}, s{sT0}, 2
              s_add_u32 s{sT0}, s{sT0}, {KF_OFF}
              v_mov_b32 v16, 1
              v_mov_b32 v17, 0""")
            a.wait(vm="pub")
            a("s_mov_b64 exec, 1"); a.vm(f"buffer_store_dword v16, v17, s[{rWS}:{rWS+3}], s{sT0} offen sc1"); a("s_mov_b64 exec, -1")
        def clr():
            a(f"""s_and_b32 s{sT0}, s2, 0xc1
              s_cbranch_scc1 L_noclr
              s_lshl_b32 s{sT0}, s2, 11
              s_add_u32 s{sT0}, s{sT0}, {FL_OFF}
              s_lshl_b32 s{sT1}, s2, 4
              s_add_u32 s{sT1}, s{sT1}, {KF_OFF}
              v_lshrrev_b32 v16, 1, v0
              v_and_b32 v17, 1, v0
              v_lshlrev_b32 v17, 4, v17
              v_lshl_add_u32 v16, v16, 7, v17
              {chr(10).join(f"buffer_store_dwordx4 v[{KAC}:{KAC+3}], v{vKVD}, s[{rWS}:{rWS+3}], s{sT0} offen offset:{1024*k_} sc1" for k_ in range(4)) if OPT["clrf"] else f"buffer_store_dwordx4 v[{KAC}:{KAC+3}], v16, s[{rWS}:{rWS+3}], s{sT0} offen sc1"}
              s_mov_b64 exec, 3
              buffer_store_dwordx4 v[{KAC}:{KAC+3}], v16, s[{rWS}:{rWS+3}], s{sT1} offen sc1
              s_mov_b64 exec, -1""")
            a.label("L_noclr")
        def clrdone():
            a(f"""s_and_b32 s{sT0}, s2, 0xc1
              s_cbranch_scc1 L_noclr2
              s_waitcnt vmcnt(0)
              s_lshl_b32 s{sT0}, s2, 1
              v_mov_b32 v16, 1
              v_mov_b32 v17, 0
              s_mov_b64 exec, 1
              buffer_store_dword v16, v17, s[{rDBG}:{rDBG+3}], s{sT0} offen sc1
              s_mov_b64 exec, -1""")
            a.label("L_noclr2")
        def kvPoll0a():
            a(f"v_and_b32 v19, 31, v0\n v_lshlrev_b32 v19, 2, v19"); a.vm(f"buffer_load_dword v18, v19, s[{rDBG}:{rDBG+3}], 0 offen sc1", "p0")
        def kvPoll0():
            a(f"s_mov_b32 s{sT1}, {SPIN_MAX}")
            a.wait(vm="p0")
            a.label("L_poll0")
            a(f"""v_cmp_ne_u32 vcc, 1, v18
              s_sub_u32 s{sT1}, s{sT1}, 1
              s_cbranch_vccz L_poll0x
              s_sleep 16
              buffer_load_dword v18, v19, s[{rDBG}:{rDBG+3}], 0 offen sc1
              s_waitcnt vmcnt(0)
              s_cmp_lg_u32 s{sT1}, 0
              s_cbranch_scc1 L_poll0""")
            a.label("L_poll0x")
        def kvPoll1a():
            a(f"s_mov_b32 s{sT3}, {KF_OFF}"); a.vm(f"buffer_load_dwordx4 v[20:23], v{vKVD}, s[{rWS}:{rWS+3}], s{sT3} offen sc1", "p1")
        def kvPoll1():
            a(f"s_mov_b32 s{sT1}, {SPIN_MAX}")
            a.wait(vm="p1")
            a.label("L_poll1")
            a(f"""v_and_b32 v20, v20, v21
              v_and_b32 v22, v22, v23
              v_and_b32 v20, v20, v22
              v_cmp_ne_u32 vcc, 1, v20
              s_sub_u32 s{sT1}, s{sT1}, 1
              s_cbranch_vccz L_poll1x
              s_sleep 16
              buffer_load_dwordx4 v[20:23], v{vKVD}, s[{rWS}:{rWS+3}], s{sT3} offen sc1
              s_waitcnt vmcnt(0)
              s_cmp_lg_u32 s{sT1}, 0
              s_cbranch_scc1 L_poll1""")
            a.label("L_poll1x")
        def kvD(c):
            if c == 0:
                a(f"s_add_u32 s{rE}, s{pWS}, {KV_OFF}\n s_addc_u32 s{rE+1}, s{pWS+1}, 0\n s_mov_b32 s{rE+2}, 0x40000\n s_mov_b32 s{rE+3}, 0x20000")
                a(f"s_lshl_b32 s{sIT}, s{sW}, 12")
            a(f"s_add_u32 m0, s{sIT}, {KVR + ((c+2)%4)*16384}\n s_add_u32 s{sT0}, s{sIT}, {c*16384}")
            for i in range(4):
                a.vm(f"buffer_load_dwordx4 v{vKVD}, s[{rE}:{rE+3}], s{sT0} offen offset:{1024*i} sc1 lds", ("kv", c))
        def kvDr(c):
            a(f"s_add_u32 s{sT0}, s{sIT}, {c*16384}")
            for i in range(4):
                a.vm(f"buffer_load_dwordx4 {vr(KVREG+16*(c-4)+4*i,4)}, v{vKVD}, s[{rE}:{rE+3}], s{sT0} offen offset:{1024*i} sc1", ("kv", c))
        def ldG():
            a(f"""s_lshl_b32 s{sT1}, s{sRB}, 9
              s_lshl_b32 s{sT2}, s{sW}, 7
              s_add_u32 s{sT1}, s{sT1}, s{sT2}
              s_add_u32 s{sT1}, s{sT1}, {G_OFF}
              v_lshlrev_b32 v22, 2, v1""")
            for h in range(2): a.vm(f"buffer_load_dword v{vG+h}, v22, s[{rWS}:{rWS+3}], s{sT1} offen offset:{64*h} sc1")
        def low(f):
            return (lambda: (a("s_setprio 0"), f(), a("s_setprio 1"))) if OPT["lowv"] else f
        post = {k: [] for k in range(33)}; pre = {k: [] for k in range(33)}; mid = {k: [] for k in range(33)}
        if not OPT["nokv"]:
            st = [int(c, 16) for c in OPT["kvs"][1:]]
            assert all(b - a_ >= 3 for a_, b in zip(st, st[1:])) and st[3] <= 13
            for rho, t0 in enumerate(st):
                pre[t0+4].append(lambda rho=rho: kvR(rho)); mid[t0+5].append(lambda rho=rho: kvM(rho))
                post[t0+2].append(lambda rho=rho: kvX(rho))
                post[t0].append(lambda rho=rho: kvW(rho, 0)); post[t0+1].append(lambda rho=rho: kvW(rho, 1))
            t0 = st[3] + 6
            if path < 2: pre[t0].append(kvP); post[t0].append(lambda: a.wait0(vm=False))
            if path == 2:
                post[2] += [clr]; pre[7].append(clrdone); post[t0].append(low(kvF0)); post[3].append(lambda: a.wait(vm="gt"))
                pre[t0+1] += [kvF]; mid[t0+2] += [kvF2]; pre[t0+2] += [kvPoll0a]; mid[t0+4] += [kvPoll0, kvA]
                pre[OPT["p1"]].append(kvPoll1a); post[27].append(kvPoll1)
            if OPT["kvl"]: (mid if OPT["kvl"] == 1 else post)[0].append(kvsetup2)
            for k_ in range(4): mid[22 + k_].append(low(lambda k_=k_: attention_setup(k_)))
            post[28].append(ldG)
            for c, t_ in enumerate((28, 29, 29, 30)): post[t_].append(lambda c=c: kvD(c))
            for c in range(OPT["kvreg"]): post[30].append(lambda c=c: kvDr(4 + c))
        stamp("a_set")
        for s_ in range(31):
            u = s_ // 2
            a.wait(vm=[("W", u), ("Q", 0), ("X", 0)] if s_ % 2 == 0 else [("Q", u + 1), ("X", u + 1)])
            if s_ == 0: stamp("a_w0")
            if s_ == 29:
                if path < 2: a("s_branch L_a1done"); break
                a.label("L_a1done")
                a.vmq[:] = [("W", 15), None, None] + [("kv", 0)] * 4
            if s_ or not OPT["kvl"]: a("s_barrier")
            if s_ == 0: stamp("a_b0")
            if s_ in (8, 16, 24): stamp(f"a_{s_}")
            if OPT["steps"] and path == 2 and s_ < 29:
                a("s_memtime s[98:99]"); a.wait0(vm=False); a(f"v_writelane_b32 v160, s98, {s_}")
                if s_ == 28:
                    a(f"s_lshl_b32 s98, s2, 8\n s_add_u32 s98, s98, {TS_OFF+0x10000}\n v_lshlrev_b32 v161, 2, v0\n buffer_store_dword v160, v161, s[{rWS}:{rWS+3}], s98 offen")
            for f in pre[s_]: f()
            midf = lambda: [f() for f in mid[s_]]
            if s_ % 2 == 0:
                if u + 1 < 16 and not (u == 0 and OPT["w1pre"]): ldW(u + 1, midf)
                else: midf()
                if s_ == OPT["xr"]: ldX(u + 2)
            else:
                if u + 2 < 16: ldQ(u + 2)
                midf()
                xa = 3 if s_ > OPT["xr"] else 2
                if u + xa < 16: ldX(u + xa)
            trk(True)
            for f in post[s_]: f()
            if not OPT["peven"]: pfs(s_)
            elif s_ % 2 == 0: pfs(s_); pfs(s_ + 1)
    a.wait = plainwait
    a.wait(vm=[("kv", 1)])
    a.vmq[:] = [("kv", 2)] * 4 + [None if OPT["kvreg"] else ("kv", 3)] * 4
    a("s_barrier")
    attention_setup(4)
    a("s_barrier")

QF, OA, LA, SB, PB, KF, VF, ONES = 32, 48, 80, 88, 120, 136, 176, 168
vKc, vKn, vSy, vOne, vCnt, vIdx, vQa, vSt = 248, 249, 251, 252, 20, 255, 30, 31
vD, vDW = 240, 244
def wtile_offsets(dst):
    a(f"""v_lshrrev_b32 v22, 3, v0
      v_lshlrev_b32 v22, 11, v22
      v_and_b32 v23, 1, v2
      v_lshlrev_b32 v23, 2, v23
      v_and_b32 v24, 7, v0
      v_xor_b32 v23, v23, v24
      v_lshl_add_u32 v22, v23, 4, v22
      s_lshl_b32 s{sT0}, s{sCB2}, 7
      v_add_u32 v22, s{sT0}, v22""")
    for i in range(4): a(f"v_xor_b32 v23, {32*(i%2)}, v22\n v_add_u32 v{dst+i}, {i*16384-i*1024}, v23")
def lsum(z, P):
    a(f"v_smfmac_f32_16x16x64_bf16 {vr(LA+4*(z//2),4)}, {vr(ONES+4*(z%2),4)}, {vr(P,8)}, v{vIdx}")
sKo, sCn, sDo, sMb, sDs, sO0, sO1 = sA, sB, sC, sD, sE, sF, sG
def attention_setup(part):
    if part == 0: wtile_offsets(vDW)
    if part == 1:
        a(f"""s_lshl_b32 s{sT0}, s{sW}, 12
          s_add_u32 s{sT1}, s{sT0}, {QX}
          v_lshl_add_u32 v{vQa}, v0, 4, s{sT1}
          v_add_u32 v{vKc}, {KVR}, v{vKVD}
          v_mov_b32 v{vKn}, {SYNC}
          v_and_b32 v22, 2, v1
          v_mov_b32 v23, 0x3f803f80
          v_cmp_eq_u32 vcc, 0, v22
          v_lshl_add_u32 v{vSy}, v0, 2, v{vKn}
          v_sub_u32 v{vOne}, 1, v0
          v_max_i32 v{vOne}, 0, v{vOne}
          v_cndmask_b32 v{ONES}, 0, v23, vcc
          v_cndmask_b32 v{ONES+1}, 0, v23, vcc
          v_xor_b32 v{ONES+4}, v{ONES}, v23
          v_xor_b32 v{ONES+5}, v{ONES}, v23
          v_mov_b64 {vr(ONES+2,2)}, {vr(ONES,2)}
          v_mov_b64 {vr(ONES+6,2)}, {vr(ONES+4,2)}
          v_and_b32 v22, 1, v1
          v_mul_u32_u24 v22, 0xaaaa, v22
          v_or_b32 v{vIdx}, 0x4444, v22""")
    if part == 2:
        a(f"""v_and_b32 v22, 1, v2
          v_lshlrev_b32 v22, 9, v22
          v_lshrrev_b32 v23, 1, v2
          v_lshl_add_u32 v22, v23, 8, v22
          v_lshl_add_u32 v{vSt}, v1, 4, v22""")
        for r in range(4): a(f"v_mov_b32 v{vD+r}, v{vKVD}")
        for r in list(range(PB + 8, PB + 16, 2)) + list(range(VF + 16, VF + 32, 2)): a(f"v_mov_b64 {vr(r,2)}, 0")
    if part == 3:
        for r in range(OA, OA + 40, 2): a(f"v_mov_b64 {vr(r,2)}, 0")
    if part == 4:
        a(f"""s_lshl_b32 s{sT0}, s{sW}, 12
          s_mov_b32 s{sCn}, 4
          s_add_u32 s{sDo}, s{sT0}, {3*16384}
          s_mov_b32 s{sDs}, 16384
          s_mov_b32 s{sKo}, 16384
          s_add_u32 s{sMb}, s{sT0}, {KVR}
          s_mul_i32 s{sO0}, s{sRB}, {RBSZ}
          s_lshl_b32 s{sT1}, s{sQB}, 14
          s_add_u32 s{sO0}, s{sO0}, s{sT1}
          s_lshl_b32 s{sT1}, s{sW}, 11
          s_add_u32 s{sO0}, s{sO0}, s{sT1}
          s_add_u32 s{sO0}, s{sO0}, {112*8192}
          s_add_u32 s{sO1}, s{sO0}, 8192
          s_mov_b32 s{sIT}, 0""")
def attention():
    kvo = lambda T: ((T // 4 + 2) % 4) * 16384 + (T % 4) * 4096
    def rdK(U, e):
        for k_ in range(2): a.lg(f"ds_read_b128 {vr(KF+16*(U%2)+8*e+4*k_,4)}, v{vKc} offset:{kvo(2*U+e)+1024*k_}", "kv")
    def rdV(U, e):
        for k_ in range(2): a.lg(f"ds_read_b128 {vr(VF+16*(U%2)+8*e+4*k_,4)}, v{vKc} offset:{kvo(2*U+e)+2048+1024*k_}", "kv")
    a.lg(f"ds_read_b128 {vr(QF,4)}, v{vQa}")
    rdK(0, 0); rdK(0, 1)
    a.lgq[-1] = "k0"
    a.lg(f"ds_read_b128 {vr(QF+4,4)}, v{vQa} offset:1024", "q1")
    for i in range(2, 4): a.lg(f"ds_read_b128 {vr(QF+4*i,4)}, v{vQa} offset:{1024*i}")
    rdV(0, 0); rdV(0, 1)
    a.wait(lg="k0")
    for k_ in range(4): mf16(SB + 4 * k_, KF + 4 * k_, QF, "0")
    a.wait(lg="q1")
    a("s_nop 3")
    a.raw(".p2align 3")
    cm("attention: S^T = K Q^T, P = exp2(S), O^T += V^T P, row sums by a sparse MFMA; K/V stream through a 4-slot LDS ring.\nZero stands in for the row maximum here; the check after the loop falls back to the true maximum (L_slow)")
    a.label("L_att")
    def pv(k_, U, z, P): e_ = int(k_ in (1, 2)); mf16(OA + 8 * z + 4 * (k_ // 2), VF + 16 * (U % 2) + 8 * e_ + 4 * (k_ // 2), P + 4 * e_)
    def slot(n, hooks):
        U1, z1 = divmod(n + 1, 4); Up, zp = divmod(n - 1, 4)
        S = SB + 16 * (n % 2); S1 = SB + 16 * ((n + 1) % 2)
        P = PB + 8 * (n % 2); Pp = PB + 8 * ((n - 1) % 2)
        ne = nc = 0
        for ch in OPT["pat"]:
            if ch == "e": a(f"v_exp_f32 v{S+ne}, v{S+ne}"); ne += 1
            elif ch == "c": assert ne >= 2 * nc + 2; a(f"v_cvt_pk_bf16_f32 v{P+nc}, v{S+2*nc}, v{S+2*nc+1}"); nc += 1
            elif ch == "w": a.wait(lg=["kv", "cnt"], vm=hooks.get("vm", ()))
            elif ch in "qrst": k_ = "qrst".index(ch); mf16(S1 + 4 * k_, KF + 16 * (U1 % 2) + 4 * k_, QF + 4 * z1, "0")
            elif ch in "uvxy": pv("uvxy".index(ch), Up, zp, Pp)
            elif ch == "S": lsum(zp, Pp)
            else:
                for f in hooks.get(int(ch), []): f()
        assert ne == 16 and nc == 8
        pt = OPT["pat"]; assert pt.index("4") > pt.index("w")
    def body(it):
        for cc in range(4):
            c_ = 4 * it + cc
            for k in range(8):
                n = 8 * c_ + k; U, z = divmod(n, 4)
                hk = {4: [lambda: rdK(U + 1, z) if z < 2 else rdV(U + 1, z - 2)]}
                KA = OPT["arrk"]
                if k == KA:
                    hk["vm"] = ("kv", c_ + 1); hk[4].append(lambda: a.lg(f"ds_add_u32 v{vSy}, v{vOne}"))
                if k == 1:
                    hk[0] = [lambda: a(f"s_add_u32 m0, s{sMb}, {((c_+1)%4)*16384}")]
                    if cc == 1: hk[1] = [lambda: a(f"s_cmp_eq_u32 s{sIT}, 3")]; hk[2] = [lambda: (a("s_cbranch_scc1 L_attwo"), a.label("L_attwo_r"))]
                if k == 2: hk[4].append(lambda: a.lg(f"ds_read_b32 v{vCnt}, v{vKn}", "cnt"))
                if k == 3: hk[5] = [lambda: a(f"v_cmp_gt_u32 vcc, s{sCn}, v{vCnt}")]
                pre_ = cc <= OPT["kvreg"]
                if k == 4:
                    hk[0] = [lambda: (a(f"s_cbranch_vccnz L_attspin{cc}"), a.label(f"L_attgo{cc}"))]
                    hk[1] = [lambda: a(f"s_add_u32 s{sCn}, s{sCn}, 4")]
                    if pre_: hk[2] = [lambda: a(f"s_cmp_eq_u32 s{sIT}, 0")]
                if k in (4, 5):
                    def dma(i):
                        if OPT["anodma"]: return
                        if pre_: a(f"s_cbranch_scc1 L_{'no' if cc == 0 else 'reg'}dma{cc}_{i}")
                        for k2 in (i, i + 1):
                            t_ = f"buffer_load_dwordx4 v{vD+k2}, s[{rE}:{rE+3}], s{sDo} offen offset:{1024*k2} sc1 lds"
                            a.vm(t_, ("kv", c_ + 3)) if c_ > OPT["kvreg"] else a(t_)
                        if pre_: a.label(f"L_nodma{cc}_{i}")
                    if OPT["dpos"] == 0: hk[4].append(lambda: dma(2 * (k - 4)))
                    elif OPT["dpos"] == 1: hk[4].insert(0, lambda: dma(2 * (k - 4)))
                    else: hk[6] = [lambda: dma(2 * (k - 4))]
                if k == 7:
                    hk[0] = [lambda: a(f"s_add_u32 s{sDo}, s{sDo}, s{sKo if cc == 1 else sDs}")]
                    if cc == 3: hk[1] = [lambda: a(f"s_add_u32 s{sIT}, s{sIT}, 1")]; hk[2] = [lambda: a(f"s_cmp_lt_u32 s{sIT}, 4")]
                slot(n, hk)
        a("s_cbranch_scc1 L_att")
    a.loop(body, "att", 3)
    a("s_nop 0")
    lsum(3, PB + 8)
    if OPT["hrel"]: a(f"ds_add_u32 v{vSy}, v{vOne}")
    for k_ in range(4): pv(k_, 31, 3, PB + 8)
    stamp("a_att")
    a(f"s_mov_b32 s{sIT}, 0")
    cm('O * gate / rowsum -> workspace')
    a.label("L_attfin")
    def fin(k):
        T_ = SB + 4 * k
        a(f"v_permlane16_swap_b32 v{T_}, v{T_+2}\n v_permlane16_swap_b32 v{T_+1}, v{T_+3}")
        a(f"buffer_store_dwordx4 {vr(T_,4)}, v{vSt}, s[{rWS}:{rWS+3}], s{sO0+k//2} offen offset:{1024*(k%2)} sc1")
    for k in range(4):
        a(f"v_add_f32 v{24+k}, v{LA+2*k}, v{LA+2*k+1}")
        a(f"v_rcp_f32 v22, v{24+k}")
        if k: fin(k - 1)
        else: a("s_nop 0")
        a(f"v_mul_f32 v22, v22, v{vG+k%2}")
        for r in range(4):
            d = OA + 8 * k + 2 * r
            a(f"v_mul_f32 v{d}, v{d}, v22\n v_mul_f32 v{d+1}, v{d+1}, v22\n v_cvt_pk_bf16_f32 v{SB+4*k+r}, v{d}, v{d+1}")
    a("s_nop 1"); fin(3)
    a(f"s_cmp_lg_u32 s{sIT}, 0\n s_cbranch_scc1 L_attok")
    a(f"s_waitcnt vmcnt(4) lgkmcnt(0)\n ds_add_u32 v{vSy}, v{vOne} offset:12")
    cm('stand-in check: every row sum in [2^-40, 2^100] and nothing infinite or NaN, else redo with the true maximum')
    a(f"s_mov_b32 s{sT0}, {f2u(2.0**-40)}\n s_mov_b32 s{sT1}, {f2u(2.0**100)}\n v_max3_f32 v28, v24, v25, v26\n v_max_f32 v28, v28, v27\n v_mov_b32 v29, 0")
    for r in list(range(OA, OA + 32, 2)) + [24, 26]: a(f"v_pk_fma_f32 v[28:29], {vr(r,2)}, 0, v[28:29]")
    a(f"""v_add_f32 v28, v28, v29
      v_min3_f32 v29, v24, v25, v26
      v_min_f32 v29, v29, v27
      v_cmp_nle_f32 vcc, v28, s{sT1}
      v_cmp_nge_f32 s[{sT2}:{sT3}], v29, s{sT0}
      s_or_b64 vcc, vcc, s[{sT2}:{sT3}]""")
    if OPT["forceslow"]: a("s_branch L_slow")
    a("s_cbranch_vccnz L_slow")
    a.label("L_attok")
    setflag(1)
    stamp("a_end")
    if OPT["padto"]:
        a("s_barrier\n s_barrier" if OPT["ebar"] else "s_barrier")
        a.label("L_pad2")
        a(f"s_memrealtime s[98:99]\n s_waitcnt lgkmcnt(0)\n s_sleep 8\n s_sub_u32 s98, s98, s96\n s_cmp_lt_u32 s98, {OPT['padto']}\n s_cbranch_scc1 L_pad2")
    dump_ts_and_end()
    a.label("L_attwo")
    srd(rE, pWO, 1024 * 2048)
    a(f"s_lshl_b32 s{sDo}, s{sW}, 17\n s_add_u32 s{sDo}, s{sDo}, {524288+65536}\n s_mov_b32 s{sDs}, 65536\n s_mov_b32 s{sKo}, {2*524288-65536}")
    a(f"v_mov_b64 {vr(vD,2)}, {vr(vDW,2)}\n v_mov_b64 {vr(vD+2,2)}, {vr(vDW+2,2)}\n s_branch L_attwo_r")
    for cc in range(1, OPT["kvreg"] + 1):
        for i in (() if OPT["anodma"] else (0, 2)):
            a.label(f"L_regdma{cc}_{i}")
            if i == 0: a(f"s_waitcnt vmcnt(0)\n v_add_u32 v22, s{sMb}, v{vKVD}")
            for k2 in (i, i + 1): a(f"ds_write_b128 v22, {vr(KVREG+16*(cc-1)+4*k2,4)} offset:{((cc+1)%4)*16384+1024*k2}")
            a(f"s_branch L_nodma{cc}_{i}")
    for cc in range(4):
        a.label(f"L_attspin{cc}")
        a(f"s_mov_b32 s{sT2}, {SPIN_MAX}")
        a.label(f"L_attspin{cc}b")
        a(f"""ds_read_b32 v{vCnt}, v{vKn}
          s_waitcnt lgkmcnt(0)
          v_cmp_gt_u32 vcc, s{sCn}, v{vCnt}
          s_sub_u32 s{sT2}, s{sT2}, 1
          s_cbranch_vccz L_attgo{cc}
          s_cmp_lg_u32 s{sT2}, 0
          s_cbranch_scc1 L_attspin{cc}b
          s_branch L_attgo{cc}""")
    cm('exact path: pass 1 finds the true row maximum, pass 2 subtracts it (through the accumulator input of the score MFMA)')
    a.label("L_slow")
    NM = 208
    a(f"s_add_u32 s{rE}, s{pWS}, {KV_OFF}\n s_addc_u32 s{rE+1}, s{pWS+1}, 0\n s_mov_b32 s{rE+2}, 0x40000\n s_mov_b32 s{rE+3}, 0x20000")
    a(f"s_waitcnt vmcnt(0) lgkmcnt(0)\n s_mov_b32 s{sT0}, 0\n s_mov_b32 s{sIT}, 1")
    for k in range(4): a(f"v_mov_b32 v{24+k}, 0xff800000")
    a.label("L_slow1")
    a(f"buffer_load_dwordx4 {vr(KF,4)}, v{vKVD}, s[{rE}:{rE+3}], s{sT0} offen sc1\n buffer_load_dwordx4 {vr(KF+4,4)}, v{vKVD}, s[{rE}:{rE+3}], s{sT0} offen offset:1024 sc1\n s_waitcnt vmcnt(0)")
    for k in range(8): mf16(SB + 4 * k, KF + 4 * (k % 2), QF + 4 * (k // 2), "0")
    a("s_nop 7")
    for k in range(4):
        for r in range(0, 8, 2): a(f"v_max3_f32 v{24+k}, v{SB+8*k+r}, v{SB+8*k+r+1}, v{24+k}")
    a(f"s_add_u32 s{sT0}, s{sT0}, 4096\n s_cmp_lt_u32 s{sT0}, 0x40000\n s_cbranch_scc1 L_slow1")
    for sw in ("16", "32"):
        for k in range(4): a(f"v_mov_b32 v{16+k}, v{24+k}")
        a("s_nop 1")
        for k in range(4): a(f"v_permlane{sw}_swap_b32 v{24+k}, v{16+k}")
        for k in range(4): a(f"v_max_f32 v{24+k}, v{24+k}, v{16+k}")
    for k in range(4):
        for r in range(4): a(f"v_sub_f32 v{NM+4*k+r}, 0, v{24+k}")
    for r in range(OA, OA + 40, 2): a(f"v_mov_b64 {vr(r,2)}, 0")
    a(f"s_mov_b32 s{sT0}, 0")
    a.label("L_slow2")
    for e_ in range(2):
        for i in range(4):
            a(f"buffer_load_dwordx4 {vr((KF if i < 2 else VF)+8*e_+4*(i%2),4)}, v{vKVD}, s[{rE}:{rE+3}], s{sT0} offen offset:{1024*i} sc1")
        a(f"s_add_u32 s{sT0}, s{sT0}, 4096")
    a("s_waitcnt vmcnt(0)")
    for z in range(4):
        for k in range(4): mf16(SB + 4 * k, KF + 4 * k, QF + 4 * z, vr(NM + 4 * z, 4))
        a("s_nop 7")
        for r in range(16): a(f"v_exp_f32 v{SB+r}, v{SB+r}")
        for r in range(8): a(f"v_cvt_pk_bf16_f32 v{PB+r}, v{SB+2*r}, v{SB+2*r+1}")
        a("s_nop 1")
        for k in range(4): pv(k, 0, z, PB)
        lsum(z, PB)
    a(f"s_cmp_lt_u32 s{sT0}, 0x40000\n s_cbranch_scc1 L_slow2")
    a("s_nop 7\n s_nop 3\n s_branch L_attfin")

def setflag(which):
    if which == 0: a(f"s_lshr_b32 s{sT1}, s{sCB}, 2\n s_and_b32 s{sT2}, s{sCB}, 3")
    else: a(f"s_and_b32 s{sT1}, s{sQB}, 3\n s_and_b32 s{sT2}, s{sQB}, 12\n s_lshr_b32 s{sT2}, {sum(k << (4 * g) for k, g in enumerate(GRP))}, s{sT2}\n s_and_b32 s{sT2}, s{sT2}, 3")
    a(f"""s_lshl_b32 s{sT0}, s{sRB}, 13
      s_lshl_b32 s{sT1}, s{sT1}, 7
      s_add_u32 s{sT0}, s{sT0}, s{sT1}
      s_lshl2_add_u32 s{sT0}, s{sT2}, s{sT0}
      s_add_u32 s{sT0}, s{sT0}, {FL_OFF+16*which}
      v_mov_b32 v17, {SYNC+4+4*which}
      v_mov_b32 v15, 1""")
    if which == 0:
        if OPT["noack"] < 2: a.wait(vm="hst")
    elif OPT["noack"] & 1: a("s_waitcnt vmcnt(4)")
    else: a.wait0(lg=False)
    l = a.newlabel("L_nofl")
    a(f"""s_mov_b64 exec, 1
      ds_add_rtn_u32 v16, v17, v15
      s_mov_b64 exec, 0xffff
      v_lshlrev_b32 v17, 9, v0
      s_waitcnt lgkmcnt(0)
      v_readfirstlane_b32 s{sT1}, v16
      s_cmp_eq_u32 s{sT1}, 3
      s_cbranch_scc0 {l}
      buffer_store_dword v15, v17, s[{rWS}:{rWS+3}], s{sT0} offen {OPT['sfl'].replace('_', ' ')}""")
    a.label(l)
    a("s_mov_b64 exec, -1")
    a.lgq.clear()
def mbox(which):
    a(f"""s_lshl_b32 s{sT0}, s{sRB2}, 4
      s_add_u32 s{sT0}, s{sT0}, s{sCB2}
      s_lshl_b32 s{sT0}, s{sT0}, 2
      s_add_u32 s{sT0}, s{sT0}, s{sW}
      s_lshl_b32 s{sT0}, s{sT0}, 7
      s_add_u32 s{sT0}, s{sT0}, {FL_OFF+16*which}
      v_and_b32 v15, 3, v0
      v_lshlrev_b32 v15, 2, v15""")
def waitflag(which, name):
    mbox(which)
    a(f"s_mov_b32 s{sT1}, {SPIN_MAX}\n s_mov_b64 exec, 15")
    a.label(name)
    a(f"""buffer_load_dword v17, v15, s[{rWS}:{rWS+3}], s{sT0} offen {OPT['pfl'].replace('_', ' ')}
      s_waitcnt vmcnt(0)
      v_cmp_ne_u32 vcc, 1, v17
      s_sub_u32 s{sT1}, s{sT1}, 1
      s_cbranch_vccz {name}_x
      s_sleep {OPT['slp']}
      s_cmp_lg_u32 s{sT1}, 0
      s_cbranch_scc1 {name}""")
    a.label(name + "_x")
    a("s_mov_b64 exec, -1")
def waitlds(off, val, name, va=15):
    a(f"s_mov_b32 s{sT1}, {SPIN_MAX}\n v_mov_b32 v{va}, {SYNC+off}")
    a.label(name)
    a(f"""ds_read_b32 v17, v{va}
      s_waitcnt lgkmcnt(0)
      v_readfirstlane_b32 s{sT0}, v17
      s_cmp_ge_u32 s{sT0}, {val}
      s_cbranch_scc1 {name}_x
      s_sleep 2
      s_sub_u32 s{sT1}, s{sT1}, 1
      s_cmp_lg_u32 s{sT1}, 0
      s_cbranch_scc1 {name}""")
    a.label(name + "_x")

ACC2, HR, WF = 128, 64, 32
acc2 = lambda rt, nt: ACC2 + (rt * 4 + nt) * 4
vWD, vWR, vH, vGM = 3, 7, 11, 16
sWo, sHo, sMw, sRdy = sC, sD, sE, sF
def g2_vsetup():
    wtile_offsets(vWD)
    a(f"""s_lshl_b32 s{sT0}, s{sW}, 14
      v_lshrrev_b32 v14, 2, v1
      v_lshl_add_u32 v14, v2, 3, v14
      v_and_b32 v15, 3, v1
      v_lshlrev_b32 v15, 3, v15
      v_lshl_add_u32 v14, v14, 7, v15
      v_and_b32 v15, 1, v2
      v_lshrrev_b32 v30, 3, v1
      v_lshl_add_u32 v15, v30, 1, v15
      v_lshl_add_u32 v14, v15, 5, v14
      v_add_u32 v14, s{sT0}, v14""")
    for nt in range(4): a(f"v_xor_b32 v{vWR+nt}, {32*nt}, v14")
    for p in range(4):
        a(f"s_add_u32 s{sT0}, s{sW}, {p+1}\n s_and_b32 s{sT0}, s{sT0}, 3\n s_lshl_b32 s{sT0}, s{sT0}, 11\n v_lshl_add_u32 v{vH+p}, v0, 4, s{sT0}")
def g2_setup():
    srd(rB, pW2, 3584 * 2048)
    a(f"s_lshl_b32 s{sMw}, s{sW}, 14\n s_mul_i32 s{sWo}, s{sW}, {896*2048}")
def dmaW(i, k):
    if k == 0: a(f"s_add_u32 m0, s{sMw}, {(i%4)*4096}\n s_nop 0")
    a.vm(f"buffer_load_dwordx4 v{vWD+k}, s[{rB}:{rB+3}], s{sWo} offen offset:{1024*k} lds", ("W2", i // 2))
    if k == 3: a(f"s_add_u32 s{sWo}, s{sWo}, 65536")
def g_phase2():
    sHp, sMbx, sOb, sDl = sB, 4, 5, 6
    vPo = 29
    def ldH(i, rt):
        a.vm(f"buffer_load_dwordx4 {vr(HR+32*(i%2)+4*rt,4)}, v{vH+rt//2}, s[{rWS}:{rWS+3}], s{sHp if i % 2 else sHo} offen offset:{1024*(rt%2)} sc1", ("H", i // 2, rt // 2))
    WOFF = {32: 0, 33: 49152, 34: 49152, 35: 0}
    def rdW2(i, nt, e):
        a.lg(f"ds_read_b64_tr_b16 {vr(WF+16*(i%2)+4*nt+2*e,2)}, v{vWR+nt} offset:{WOFF.get(i, (i%4)*4096)+512*e}", ("W2", i // 2, nt))
    cm('G, phase 2: out tile [128 x 64] = (1-g) (hidden W2 + b2) + (g O) Wo, K split over the four waves')
    setflag(0)
    stamp("g_flag")
    if OPT["nog2"]: dump_ts_and_end()
    for i in range(OPT["wpre"], 4):
        for k in range(4): dmaW(i, k)
    a(f"""s_mul_i32 s{sHo}, s{sRB2}, {RBSZ}
      s_mul_i32 s{sT1}, s{sW}, {28*8192}
      s_add_u32 s{sHo}, s{sHo}, s{sT1}
      s_lshl_b32 s{sT2}, s{sRB2}, 9
      s_add_u32 s{sT2}, s{sT2}, {G_OFF}
      v_lshlrev_b32 v15, 2, v1""")
    for p in range(4):
        a(f"""s_add_u32 s{sT0}, s{sW}, {p+1}
          s_and_b32 s{sT0}, s{sT0}, 3
          s_lshl_b32 s{sT0}, s{sT0}, 7
          s_add_u32 s{sT0}, s{sT0}, s{sT2}""")
        for h in range(2): a(f"buffer_load_dword v{vGM+4*p+2*h}, v15, s[{rWS}:{rWS+3}], s{sT0} offen offset:{64*h} sc1")
    if OPT["loc2"]:
        a(f"""s_bfe_u32 s{sT0}, s2, {hex(((3-LC) << 16) + LC)}
          s_lshl_b32 s{sT0}, s{sT0}, 5
          s_add_u32 s{sT3}, s{sT0}, s{sI}
          s_lshl_b32 s{sT0}, s{sW}, {8-LC}
          s_add_u32 s{sT0}, s{sT0}, s{sT3}
          s_lshr_b32 s{sG}, s{sT0}, {7-LC}
          s_bfe_u32 s{sT1}, s{sT0}, {hex(0x20000 + 5 - LC)}
          s_mul_i32 s{sT1}, s{sT1}, {896*2048}
          s_and_b32 s{sT0}, s{sT0}, {(32 >> LC) - 1}
          s_lshl_b32 s{sT0}, s{sT0}, {13+LC}
          s_add_u32 s{sT0}, s{sT0}, s{sT1}
          s_add_u32 s{sT1}, s{sG}, 2
          s_lshl_b32 s{sT1}, s{sT1}, 18
          s_add_u32 s{sT0}, s{sT0}, s{sT1}
          s_cmp_eq_u32 s{sG}, 5
          s_cselect_b32 s{sG}, -1, s{sG}
          s_lshl_b32 s{sT1}, s{sT3}, {13+LC}
          s_and_b32 s{sT2}, s{sCB2}, {(1 << LC) - 1}
          s_lshl_b32 s{sT2}, s{sT2}, 7
          s_add_u32 s{sT0}, s{sT0}, s{sT2}
          s_add_u32 s{sT1}, s{sT1}, s{sT2}
          s_and_b32 s{sT2}, s{sI}, 1
          s_add_u32 s{sT2}, s{sT2}, {OPT["woit"]}""")
    else:
        if OPT["ev2"]: a(f"s_lshl_b32 s{sT0}, s{sW}, 8\n s_add_u32 s{sT0}, s{sT0}, s2")
        else: a(f"s_lshl_b32 s{sT0}, s2, 1\n s_add_u32 s{sT0}, s{sT0}, s{sW}\n s_add_u32 s{sT1}, s2, 512\n s_cmp_eq_u32 s{sW}, 2\n s_cselect_b32 s{sT0}, s{sT1}, s{sT0}")
        a(f"""
          s_lshr_b32 s{sG}, s{sT0}, 7
          s_bfe_u32 s{sT1}, s{sT0}, 0x20005
          s_mul_i32 s{sT1}, s{sT1}, {896*2048}
          s_and_b32 s{sT0}, s{sT0}, 31
          s_lshl_b32 s{sT0}, s{sT0}, 13
          s_add_u32 s{sT0}, s{sT0}, s{sT1}
          s_add_u32 s{sT1}, s{sG}, 2
          s_lshl_b32 s{sT1}, s{sT1}, 18
          s_add_u32 s{sT0}, s{sT0}, s{sT1}
          s_cmp_eq_u32 s{sG}, 5
          s_cselect_b32 s{sG}, -1, s{sG}
          s_lshl_b32 s{sT1}, s2, 13
          s_and_b32 s{sT2}, s{sI}, 1""")
    a(f"""
      s_cmp_eq_u32 s{sW}, 3
      s_cselect_b32 s{sA}, s{sT1}, s{sT0}
      s_cselect_b32 s{sG}, s{sT2}, s{sG}
      s_cselect_b32 s{rPF}, s{pWO}, s{pW2}
      s_cselect_b32 s{rPF+1}, s{pWO+1}, s{pW2+1}
      s_mov_b32 s{sT0}, {3584*2048}
      s_cselect_b32 s{rPF+2}, {1024*2048}, s{sT0}
      s_mov_b32 s{rPF+3}, 0x20000""")
    if OPT["ev2"] and not OPT["loc2"]: a(f"s_bitcmp1_b32 s2, 0\n s_cselect_b32 s{sG}, -1, s{sG}")
    stamp("g_pw")
    waitflag(0, "L_wh")
    stamp("g_wf")
    a.vmq.clear(); a.lgq.clear()
    rds = lambda D, nt: [lambda e_=e_, k=k: rdW2(2 * D + e_, nt, k) for e_ in range(2) for k in range(2)]
    def ldP(D, ps):
        for p in ps:
            for h in range(2): ldH(2 * D, 2 * p + h); ldH(2 * D + 1, 2 * p + h)
    pend = []
    def dstep(D, fine, extra={}, at={}):
        for p in range(4):
            ex = list(extra.get(p, [])); lq = []
            if p in at: at[p]()
            if p in (1, 2) and D < 14: lq = [lambda k=k: dmaW(2 * D + 3 + p, k) for k in range(4)]
            if OPT["gdma"] and fine and D < 14 and p == 0:
                lq = [lambda: None, lambda: None] + [lambda k=k: (a(f"s_add_u32 m0, s7, {KVR + (D % 2) * 16384}\n s_add_u32 s8, s8, 16384") if k == 0 else None,
                      a.vm(f"buffer_load_dwordx4 v{vH+3}, s[{rWS}:{rWS+3}], s8 offen offset:{1024*k} sc1 lds")) for k in range(4)]
            for nt in range(4):
                if p == 0: lgw = [("W2", D, nt)] if fine else ([("W2", D, nt + 1)] if nt % 2 == 0 else [])
                else: lgw = []
                a.wait(vm=([("H", D, p)] + ([("W2", D + 1)] if p == 3 else [])) if nt == 0 else [], lg=lgw)
                if OPT["chain"]: seq = [(nt % 2, 0), (nt % 2, 1), (1 - nt % 2, 1), (1 - nt % 2, 0)]
                else: seq = [(0, 0), (1, 0), (1, 1), (0, 1)]
                for n, (h, e) in enumerate(seq):
                    first = (h, 1 - e) not in seq[:n]
                    mf16(acc2(2 * p + h, nt), WF + 16 * e + 4 * nt, HR + 32 * e + 4 * (2 * p + h), "0" if D == 0 and first else None)
                    if fine:
                        if pend: pend.pop(0)()
                        if nt == 3 and D < 17: ldH(2 * D + 2 + e, 2 * p + h)
                        elif lq and n % 2: lq.pop(0)()
                        x = ex.pop(0) if ex else None
                        if callable(x): x()
                        elif x: a(x)
                if p == 3 and D < 17: pend.extend(rds(D + 1, nt))
                if not fine and nt == 1:
                    while pend: pend.pop(0)()
                    while lq: lq.pop(0)()
                    if OPT["gdma"] and p in (0, 3):
                        a(f"s_add_u32 m0, s7, {KVR + (D % 2) * 16384}\n s_nop 0")
                        for k in ((0, 1) if p == 0 else (2, 3)): a.vm(f"buffer_load_dwordx4 v{vH+3}, s[{rWS}:{rWS+3}], s8 offen offset:{1024*k} sc1 lds")
                        if p == 3: a("s_add_u32 s8, s8, 16384")
                if not fine and nt == 3:
                    if (p, "ld") in at: at[p, "ld"]()
                    ldP(D + 1, [p])
            assert not ex and not lq
        if D < 12: a(f"s_add_u32 s{sHo}, s{sHo}, 16384\n s_add_u32 s{sHp}, s{sHp}, 16384")
    for nt in range(4):
        for f in rds(0, nt): f()
    a(f"s_add_u32 s{sHp}, s{sHo}, 8192")
    ldP(0, range(4))
    a(f"s_add_u32 s{sHo}, s{sHo}, 16384\n s_add_u32 s{sHp}, s{sHp}, 16384")
    for rt in range(8): a(f"v_sub_f32 v{vGM+2*rt}, 1.0, v{vGM+2*rt}")
    stamp("g_l2")
    a(f"s_setprio {OPT['g2prio']}\n s_mov_b32 s{sIT}, 0")
    if OPT["gdma"]: a(f"s_lshl_b32 s7, s{sW}, 12\n s_lshl_b32 s8, s{sW}, 11\n s_add_u32 s8, s8, {KV_OFF}")
    fine = [not int(c) for c in OPT["gp"][1:3]]
    dstep(0, fine[1])
    stamp("g_s0")
    a.raw(".p2align 3")
    cm('FFN double steps (runs beside the attention waves)')
    a.label("L_g2loop")
    def body(it):
        if OPT["pf2"]: a(f"s_cmp_eq_u32 s{sIT}, s{sG}\n s_cbranch_scc1 L_hookF"); a.label("L_hookF_r")
        dstep(2 * it + 1, fine[0])
        snap[:] = [list(a.vmq), list(a.lgq), len(pend), 11 - (2 * it + 1)]
        a(f"s_cmp_ge_u32 s{sIT}, 4\n s_cbranch_scc1 L_hookW"); a.label("L_hookW_r")
        dstep(2 * it + 2, fine[1])
        a(f"s_add_u32 s{sIT}, s{sIT}, 1\n s_branch L_g2loop")
    snap = []
    a.loop(body, "g2")
    a.label("L_g2end")
    sh = lambda q: [x and (x[0], x[1] + snap[3]) + x[2:] for x in q]
    a.vmq[:] = sh(snap[0]); a.lgq[:] = sh(snap[1])
    pend[:] = [f for nt in range(4) for f in rds(12, nt)][16 - snap[2]:]
    ret = lambda l: a(f"s_branch {l}")
    a(f"s_mov_b32 s{rB}, s{pWO}\n s_mov_b32 s{rB+1}, s{pWO+1}\n s_mov_b32 s{rB+2}, {1024*2048}\n s_lshl_b32 s{sWo}, s{sW}, 17\n s_add_u32 s{sWo}, s{sWo}, {GRP[0]*524288}")
    if OPT["hold"] != "xffff":
        cm("workgroups whose attention results are used first keep their last FFN steps back until their attention is done")
        a("s_bitcmp1_b32 s2, 0\n s_cbranch_scc1 L_hold_x")
        if OPT["hrel"]: waitlds(0, 64 + OPT["hrel"], "L_hold")
        else: waitlds(12, 4, "L_hold")
    cm("last FFN double step, then the output projection: four producers in a fixed order, looked up in this wave's mailbox")
    mbox(1)
    a(f"""s_mov_b32 s{sMbx}, s{sT0}
      s_mul_i32 s{sOb}, s{sRB2}, {RBSZ}
      s_add_u32 s{sOb}, s{sOb}, s{sMw}
      s_lshl_b32 s{sDl}, s{sW}, 12
      s_add_u32 s{sDl}, s{sDl}, {QX}
      s_sub_u32 s{sDl}, s{sDl}, s{sMw}""")
    def poll(): a.vm(f"buffer_load_dword v{vPo}, v15, s[{rWS}:{rWS+3}], s{sMbx} offen sc1", "poll")
    chk = lambda sl: f"""v_cmp_eq_u32 vcc, 1, v{vPo}
      s_add_u32 s{sHo}, s{sOb}, {(112+8*GRP[sl])*8192}
      s_bitcmp1_b32 vcc_lo, {sl}
      s_cselect_b32 s{sRdy}, 1, 0
      s_cselect_b32 s{sHo}, s{sHo}, {OOB}
      s_add_u32 s{sHp}, s{sHo}, 8192""".split("\n")
    behind = {}
    def npoll(): return a.vmq[::-1].index("poll") if "poll" in a.vmq else 62
    def again(sl):
        behind["s", sl] = npoll()
        a(f"s_cmp_eq_u32 s{sRdy}, 0\n s_cbranch_scc1 L_sec{sl}")
        a.label(f"L_sec{sl}_r")
        poll()
    def join(sl):
        behind["b", sl] = npoll()
        a(f"s_cmp_eq_u32 s{sRdy}, 0\n s_cbranch_scc1 L_blk{sl}")
        a.label(f"L_join{sl}")
        a.vmq[:] = [("H", 14 + sl, p) for p in range(4) for _ in range(4)]
    def late(sl):
        a.label(f"L_sec{sl}")
        a(f"s_waitcnt vmcnt({behind['s', sl]})")
        a("\n".join(chk(sl)))
        a(f"s_cmp_eq_u32 s{sRdy}, 0\n s_cbranch_scc1 L_sec{sl}_r")
        ldP(14 + sl, (0, 1))
        a(f"s_branch L_sec{sl}_r")
        a.label(f"L_blk{sl}")
        a(f"s_mov_b32 s{sT5}, {SPIN_MAX}\n s_waitcnt vmcnt({behind['b', sl]})\n s_branch L_blk{sl}b")
        a.label(f"L_blk{sl}a")
        a(f"s_sleep {OPT['slp']}"); poll(); a.wait0(lg=False)
        a(f"s_sub_u32 s{sT5}, s{sT5}, 1\n s_cbranch_scc0 L_blk{sl}b\n v_mov_b32 v{vPo}, 1")
        a.label(f"L_blk{sl}b")
        a("\n".join(chk(sl)))
        a(f"s_cmp_eq_u32 s{sRdy}, 0\n s_cbranch_scc1 L_blk{sl}a")
        ldP(14 + sl, range(4))
        a(f"s_branch L_join{sl}")
    two = lambda l_: ["\n".join(l_[k:k+2]) for k in range(0, len(l_), 2)]
    dstep(12, OPT["f12"], at={OPT['pp']: poll})
    stamp("g_25")
    a(f"s_add_u32 s{sWo}, s{sWo}, {((GRP[1]-GRP[0])*524288-131072) & 0xffffffff}")
    if OPT["f13"]: dstep(13, True, {0: [None] * 7 + [lambda: a.wait(vm="poll")] + two(chk(0)) + [poll]}, {2: lambda: again(0)})
    else: dstep(13, False, at={(0, "ld"): lambda: (a.wait(vm="poll"), a("\n".join(chk(0))), poll()), 2: lambda: again(0)})
    srd(rA, pB2, 2048); srd(rC, pOUT, 2048 * 2048)
    while pend: pend.pop(0)()
    join(0)
    stamp("g_hook")
    sc = lambda p: [f"v_pk_mul_f32 {vr(ACC2+32*p+16*h+4*nt+r,2)}, {vr(ACC2+32*p+16*h+4*nt+r,2)}, {vr(vGM+4*p+2*h,2)} op_sel_hi:[1,0]"
                    for nt in range(4) for h in range(2) for r in (0, 2)]
    for x in sc(0): a(x)
    vS0, vS1, vB2 = 3, 4, 18
    def wr(p, k):
        if OPT["nowr"]: return
        if p < 2: a.lg(f"ds_write_b128 v{vS0}, {vr(ACC2+32*p+4*k,4)} offset:{8192*p+1024*k}")
        else: a.lg(f"ds_write_b128 v{vS1}, {vr(ACC2+32*p+4*k,4)} offset:{16384*(k//4)+1024*(k%4)}")
    OWN = ACC2 + 96
    vRd = [5, 6, 16]; vTw = [11, 12, 13, 14]; vTr, vOo = 26, 27
    sc2 = lambda p: ["\n".join(f"v_mul_f32 v{ACC2+32*p+16*h+4*nt+r+u}, v{vGM+4*p+2*h}, v{ACC2+32*p+16*h+4*nt+r+u}" for u in range(2))
                     for nt in range(4) for h in range(2) for r in (0, 2)]
    extra = {(0, p): sc2(p + 1) for p in range(3)}
    two = lambda l_: ["\n".join(l_[k:k+2]) for k in range(0, len(l_), 2)]
    wp = lambda sl: a(f"s_waitcnt vmcnt({behind['b', sl]})")
    for D in (1, 2): extra[D, 0] = [None] * 7 + [lambda D=D: wp(D)] + two(chk(D + 1)) + [poll]
    t_ = f"""s_lshl_b32 s{sT0}, s{sCB2}, 7
      v_lshlrev_b32 v16, 3, v2
      v_lshl_add_u32 v{vS0}, v0, 4, s{sMw}
      v_add_u32 v{vS1}, s{sDl}, v{vS0}""".split("\n")
    extra[1, 2] = [f"v_mov_b32 v17, {SYNC+12}", None, lambda: a.lg("ds_read_b32 v31, v17", "wa")] + [None] * 7 + [
        lambda: (a.wait(lg="wa"), a("v_cmp_gt_u32 vcc, 4, v31")), lambda: (a("s_cbranch_vccnz L_wa0"), a.label("L_wa_r"))]
    extra[1, 1] = t_ + [f"v_add_u32 v{vWR+nt}, s{sDl}, v{vWR+nt}" for nt in range(4)] + [lambda nt=nt: a.vm(f"buffer_load_dwordx2 {vr(vB2+2*nt,2)}, v16, s[{rA}:{rA+3}], s{sT0} offen offset:{32*nt}", "b2") for nt in range(4)]
    t_ = []
    for p in range(3):
        t_ += [f"s_sub_u32 s{sT1}, s{sW}, {p+1}\n s_and_b32 s{sT1}, s{sT1}, 3"]
        if p < 2: t_ += [f"s_lshl_b32 s{sT1}, s{sT1}, 14\n v_lshl_add_u32 v{vRd[p]}, v0, 4, s{sT1}"]
        else: t_ += [f"s_lshl_b32 s{sT1}, s{sT1}, 12\n s_add_u32 s{sT1}, s{sT1}, {QX}", f"v_lshl_add_u32 v{vRd[p]}, v0, 4, s{sT1}"]
    assert len(t_) == 7; rdadr = t_
    fm = []
    for nt in range(4):
        for r in range(2):
            fm += [f"v_lshlrev_b32 v{vTr}, 16, v{vB2+2*nt+r}\n v_and_b32 v{vTr+1}, 0xffff0000, v{vB2+2*nt+r}"]
            fm += ["\n".join(f"v_fmac_f32 v{OWN+16*h+4*nt+2*r+u}, v{vTr+u}, v{vGM+12+2*h}" for u in range(2)) for h in range(2)]
    extra[2, 0][4:6] = two([f"v_add_u32 v{vWR+nt}, 16384, v{vWR+nt}" for nt in range(4)])
    extra[2, 1] = rdadr + [None] + fm[:8]; extra[2, 2] = fm[8:]
    t_ = f"""s_lshl_b32 s{sT2}, s{sW}, 12
      s_add_u32 s{sT2}, s{sT2}, {KVR+16384}
      v_lshrrev_b32 v15, 3, v0
      v_and_b32 v17, 7, v0
      v_xor_b32 v{vTr}, v15, v17
      v_lshlrev_b32 v{vTr}, 4, v{vTr}
      v_lshl_add_u32 v{vTr}, v15, 7, v{vTr}
      v_add_u32 v{vTr}, s{sT2}, v{vTr}
      v_lshlrev_b32 v{vOo}, 4, v17
      v_lshl_add_u32 v{vOo}, v15, 11, v{vOo}
      v_and_b32 v15, 7, v1
      v_lshrrev_b32 v17, 1, v2
      v_xor_b32 v15, v15, v17
      v_lshlrev_b32 v15, 4, v15
      v_and_b32 v17, 1, v2
      v_lshl_add_u32 v15, v17, 3, v15
      v_lshl_add_u32 v15, v1, 7, v15
      v_add_u32 v{vTw[0]}, s{sT2}, v15
      v_xor_b32 v{vTw[1]}, 32, v{vTw[0]}
      v_xor_b32 v{vTw[2]}, 64, v{vTw[0]}
      v_xor_b32 v{vTw[3]}, 96, v{vTw[0]}
      s_lshl_b32 s{sT0}, s{sCB2}, 7
      s_lshl_b32 s{sT1}, s{sRB2}, 18
      s_add_u32 s{sT0}, s{sT0}, s{sT1}
      s_lshl_b32 s{sT1}, s{sW}, 16
      s_add_u32 s{sT0}, s{sT0}, s{sT1}""".split("\n")
    extra[3, 0] = ["\n".join(t_[2*k:2*k+2]) for k in range(13)]
    worder = [0, 4, 1, 5, 2, 6, 3, 7]
    for p in range(1, 4): extra[3, p] = [x for k in worder for x in (None, (lambda k=k, p=p: wr(p - 1, k)))]
    def rdp(p, k):
        a.lg(f"ds_read_b128 {vr(ACC2+32*p+4*k,4)}, v{vRd[p]} offset:{8192*p+1024*k if p < 2 else 16384*(k//4)+1024*(k%4)}", ("r", p // 2, k))
    x0 = extra[0, 0][10]; extra[0, 0][10] = lambda: (a(x0), wp(0), a("\n".join(chk(1))), poll())
    a("s_nop 0")
    for D in range(4):
        if D: join(D)
        stamp(f"g_{28+2*D}")
        dstep(14 + D, True, {p: extra.get((D, p), []) for p in range(4)}, {2: lambda: again(D + 1)} if D < 3 else {})
    cm('sum of the four K quarters through LDS, bf16, whole-line stores')
    a.wait0(vm=False)
    stamp("g_36")
    a("s_barrier")
    stamp("g_bar")
    for k in range(4):
        for p in range(3): rdp(p, k)
    def st(g_):
        a.wait(lg=("u", g_ // 2, g_ % 2))
        a(f"buffer_store_dwordx4 {vr(HR+32+4*g_,4)}, v{vOo}, s[{rC}:{rC+3}], s{sT0} offen{['', ' sc1', ' nt'][OPT['osc']]}")
        if g_ < 3: a(f"s_add_u32 s{sT0}, s{sT0}, 16384")
    for k in range(8):
        a.wait(lg=("r", 1, k))
        if k < 4:
            for p in range(3): rdp(p, k + 4)
        for r in (0, 2): a(f"v_pk_add_f32 {vr(ACC2+4*k+r,2)}, {vr(ACC2+4*k+r,2)}, {vr(ACC2+32+4*k+r,2)}")
        for r in (0, 2): a(f"v_pk_add_f32 {vr(OWN+4*k+r,2)}, {vr(OWN+4*k+r,2)}, {vr(ACC2+64+4*k+r,2)}")
        for r in (0, 2): a(f"v_pk_add_f32 {vr(OWN+4*k+r,2)}, {vr(OWN+4*k+r,2)}, {vr(ACC2+4*k+r,2)}")
        T_ = HR + 2 * k
        a(f"v_cvt_pk_bf16_f32 v{T_}, v{OWN+4*k}, v{OWN+4*k+1}\n v_cvt_pk_bf16_f32 v{T_+1}, v{OWN+4*k+2}, v{OWN+4*k+3}")
        a.lg(f"ds_write_b64 v{vTw[k%4]}, {vr(HR+2*k,2)} offset:{2048*(k//4)}")
        if k % 4 == 3:
            for h in range(2): a.lg(f"ds_read_b128 {vr(HR+32+8*(k//4)+4*h,4)}, v{vTr} offset:{2048*(k//4)+1024*h}", ("u", k // 4, h))
    for g_ in range(4): st(g_)
    if OPT["ts"]: a.wait0(); stamp("g_end")
    if OPT["padto"]:
        a.label("L_pad")
        a(f"s_memrealtime s[98:99]\n s_waitcnt lgkmcnt(0)\n s_sub_u32 s98, s98, s96\n s_cmp_lt_u32 s98, {OPT['padto']}\n s_cbranch_scc1 L_pad")
    dump_ts_and_end()
    cm('out-of-line waits (all bounded) and loop hooks')
    for sl in range(4): late(sl)
    a.label("L_wa0")
    waitlds(12, 4, "L_wa", 31)
    a("s_branch L_wa_r")
    if OPT["pf2"]:
        a.label("L_hookF")
        a(f"v_lshlrev_b32 v15, {7 + LC if OPT['loc2'] else 7}, v0\n buffer_load_dword v19, v15, s[{rPF}:{rPF+3}], s{sA} offen")
        if OPT["ev2"] and not OPT["loc2"]: a(f"s_add_u32 s{sA}, s{sA}, 8192\n buffer_load_dword v19, v15, s[{rPF}:{rPF+3}], s{sA} offen")
        ret("L_hookF_r")
    a.label("L_hookW")
    a(f"s_cmp_eq_u32 s{sIT}, 5\n s_cbranch_scc1 L_g2end")
    stamp("g_17")
    waitlds(0, 4, "L_wq")
    srd(rA, pWO, 1024 * 2048)
    a(f"s_lshl_b32 s{sT0}, s{sW}, 12\n s_add_u32 m0, s{sT0}, {QX}\n s_lshl_b32 s{sT0}, s{sW}, 17\n s_add_u32 s{sT0}, s{sT0}, 524288")
    for k in range(4): a(f"buffer_load_dwordx4 v{vWD+k}, s[{rA}:{rA+3}], s{sT0} offen offset:{1024*k} lds")
    ret("L_hookW_r")

prologue()
section("g")
a.label("L_roleG")
g_phase1()
if OPT["stop"] == 1:
    stamp("g_bq"); g_hstore(); a.wait0(); stamp("g_hst"); dump_ts_and_end()
else:
    if OPT["wlate"]: g_hstore(); stamp("g_st")
    g2_setup()
    for i in range(OPT["wpre"]):
        for k in range(4): dmaW(i, k)
    if not OPT["wlate"]: g_hstore()
    g_phase2()
a_phase1()
if OPT["stop"] == 1:
    a(f"s_lshl_b32 s{sT0}, s{sW}, 12\n s_add_u32 s{sT1}, s{sT0}, {QX}\n v_lshl_add_u32 v16, v0, 4, s{sT1}")
    for i in range(4): a(f"ds_read_b128 {vr(32+4*i,4)}, v16 offset:{1024*i}")
    a(f"s_lshl_b32 s{sT1}, s{sRB}, 4\n s_add_u32 s{sT1}, s{sT1}, s{sCB}\n s_lshl_b32 s{sT1}, s{sT1}, 14\n s_add_u32 s{sT0}, s{sT0}, s{sT1}\n s_add_u32 s{sT0}, s{sT0}, {QD_OFF}")
    a.wait0()
    for i in range(4): a(f"buffer_store_dwordx4 {vr(32+4*i,4)}, v{vKVD}, s[{rWS}:{rWS+3}], s{sT0} offen offset:{1024*i}")
    dump_ts_and_end()
else:
    stamp("a_bq")
    attention()
a.label("L_exit")
a("s_endpgm")
a.label("L_codeend")

HDR = open("cdna_kernels/" + KNAME[:-7] + ".s.ref").read().split("; Override launch")[0]
HDR += """; One persistent launch, 256 workgroups of 8 waves, one per CU (generated by a script of the author's own).
"""
text = HDR + f"; @launch grid=(256,1,1) block=(512,1,1) lds={LDS_BYTES}\n"
text += f'.amdgcn_target "amdgcn-amd-amdhsa--gfx950"\n.text\n.globl {KNAME}\n.p2align 8\n.type {KNAME},@function\n{KNAME}:\n'
a.out = SEC['head'] + SEC['st'] + SEC['st0'] + SEC['st2'] + SEC['g'] + SEC['main']
body = a.text()
nbad = check(body)
text += body
text += f""".section .rodata,"a"
.p2align 6
.amdhsa_kernel {KNAME}
  .amdhsa_next_free_vgpr 256
  .amdhsa_next_free_sgpr 102
  .amdhsa_accum_offset 256
  .amdhsa_group_segment_fixed_size 0
  .amdhsa_kernarg_size 112
  .amdhsa_user_sgpr_count 2
  .amdhsa_user_sgpr_kernarg_segment_ptr 1
  .amdhsa_system_sgpr_workgroup_id_x 1
.end_amdhsa_kernel
"""
open(sys.argv[1], "w").write(text)
if nbad: sys.exit(f"{nbad} hazards")
```

```python
import sys, math
from asmlib import *

KNAME = "gated_mix__grouped_kv_mqa__dense_activation_squared_relu__prompt_kernel"
OPT = dict(stop=0, ts=0, pd=8, forceslow=0, nodma=0, nokv=0, nopf=0, nords=0, lead=7, pfnt=0, far=99, pf2=1, pf2b=2, gprio=2, nog2=0, g2nold=0, anodma=0, g2prio=0, dbgts=0, slp=2, th=0, farw2=1, hglob=1, arrk=0, wlate=1, map2=5, steps=0, kvskip='', pause=99, pcnt=64, grp=1, osc=1, padto=0, st2=0, spos=0, hfirst=2, p0prio=3, d0prio=2, xlate=0, ring=6, h3prio=1, hfl='sc1', wfl='', xfl='', padat='', xm=1, p0late=1, p0lo=0, kvreg=2, lowv=1, noo=0, nopk=1, tgrp=1, nowo=0, noack=0, qsw=1, evn=0, evk=1, ev2=1, ng=8, par='SSSS', lut=0, pw=128, pb=0, g32=0, dyn=0, chain=1, row4=0, skiprd=0, gdma=0, dpos=0, nohst=0, xa=3, w1pre=0, peven=0, xr=99, fpre=4, clrf=1, wpre=2, f12=1, pp=2, rot=1, kvl=1, w1n=2, tlb=1, kvs='x147a', p1=26, hrel=0, f13=1, hold='xcfcf', gpo='', pexact=1, epos=68, mpos=32, loc2=1, woit=2, snake=1, gp='x1111', g2f=1, ebar=0, c2x=1, pfl='sc1', sfl='sc1', nowr=0, pat='eeeeeeeq0ccr1esccteu2evexweyccS4e5eeecc')
for a_ in sys.argv[2:]:
    k, v = a_.split("="); OPT[k] = int(v) if v.lstrip('-').isdigit() else v

GRP = [2, 0, 1, 3] if OPT['g2f'] else [0, 2, 1, 3]
LC = {5: 2, 2: 1}.get(OPT['map2'])
RBSZ = 144 * 8192
KV_OFF = 0x1200000; G_OFF = 0x1240000; KF_OFF = 0x1244000; FL_OFF = 0x1248000; WS_USED = 0x1268000
QD_OFF = 0x1400000; TS_OFF = 0x1800000
WS_SIZE = 0x2000000 if (OPT["stop"] or OPT["ts"]) else WS_USED
OOB = 0x40000000
W1R = 0; W1S = 14336
WQR = 57344; WQS = 4096
XR = 73728; XS = 16384
KVST = 122880
SYNC = 155648
GT = SYNC + 512
LDS_BYTES = GT + 2048
QX = XR
KVR = 90112
pX, pWQ, pWK, pWV, pWO, pW1, pB1, pW2, pB2, pGATE, pOUT, pDBG, pWS = 4, 6, 8, 10, 12, 16, 18, 20, 22, 24, 26, 28, 30
rA, rB, rC, rD, rWS, rDBG, rPF, rE = 32, 36, 40, 44, 48, 52, 56, 60
sRB, sCB, sRB2, sCB2, sI, sW = 64, 65, 66, 67, 68, 69
sT0, sT1, sT2, sT3, sT4, sT5 = 70, 71, 72, 73, 74, 75
sIT, sA, sB, sC, sD, sE, sF, sG = 76, 77, 78, 79, 80, 81, 82, 83
sTS = 84
sPOS = 101
sQB = 100
SPIN_MAX = 1 << 18

a = Asm()
SEC = {}
def cm(t):
    for l in t.strip().split('\n'): a.raw('  ; ' + l.strip())
def section(n):
    a.out = SEC.setdefault(n, [])
section("head")
def kwait():
    a("s_waitcnt lgkmcnt(0)"); stamp("kw"); srd(rWS, pWS, WS_SIZE)
def srd(r, p, size):
    a(f"s_mov_b32 s{r}, s{p}\n s_mov_b32 s{r+1}, s{p+1}\n s_mov_b32 s{r+2}, {size}\n s_mov_b32 s{r+3}, 0x20000")
nts = [0]
STAMPS = {1: dict(g_b0=1, g_end1=2, g_bq=3, g_hst=4, g_pre=5, a_set=1, a_w0=2, a_8=3, a_16=4, a_24=5),
          0: dict(g_end1=1, g_flag=2, g_l2=3, g_hook=4, g_end=5, a_b0=1, a_16=2, a_bq=3, a_att=4, a_end=5)}[OPT["stop"]]
if OPT["st2"] == 1: STAMPS.update(g_end1=0, g_flag=0, g_l2=1, g_17=2, g_25=3)
if OPT["st2"] == 3: STAMPS = dict(kw=1, g_pre=2, g_bias=3, g_rdy=4, g_b0=5, a_iss=2, a_set=3, a_w0=4, a_b0=5)
if OPT["st2"] == 4: STAMPS.update(g_end1=0, g_st=1, g_flag=2, g_pw=3, g_wf=4, g_l2=0, g_s0=5, g_hook=0, g_end=0)
if OPT["st2"] == 5: STAMPS.update(g_end1=0, g_flag=0, g_l2=0, g_end=0, g_25=1, g_hook=2, g_30=3, g_32=4, g_34=5)
if OPT["st2"] == 2: STAMPS.update(g_end1=0, g_flag=0, g_l2=0, g_hook=1, g_32=2, g_36=3, g_bar=4)
def stamp(n):
    if n == OPT["padat"]: a("s_memrealtime s[96:97]"); a.wait0(vm=False)
    i = STAMPS.get(n)
    if OPT["ts"] and i:
        a(f"{'s_memrealtime' if OPT['ts'] == 2 else 's_memtime'} s[{sTS+2*i}:{sTS+2*i+1}]"); a.wait0(vm=False)
def mf16(d, x, y, c=None):
    a(f"v_mfma_f32_16x16x32_bf16 {vr(d,4)}, {vr(x,4)}, {vr(y,4)}, {vr(d,4) if c is None else c}")
def mf32(d, x, y, c=None):
    a(f"v_mfma_f32_32x32x16_bf16 {vr(d,16)}, {vr(x,4)}, {vr(y,4)}, {vr(d,16) if c is None else c}")
def dump_ts_and_end():
    if OPT["ts"]:
        a("s_memrealtime s[98:99]"); a.wait0()
        if OPT["dbgts"]:
            l = a.newlabel("L_nots")
            srd(rDBG, pDBG, 256)
            a(f"s_cmp_lg_u32 s2, 100\n s_cbranch_scc1 {l}\n s_cmp_lg_u32 s{sW}, 0\n s_cbranch_scc1 {l}")
            for i, k in enumerate((1, 2, 3, 4, 5, 7)): a(f"s_sub_u32 s{sT0}, s{sTS+2*k}, s96\n v_mov_b32 v{8+i}, s{sT0}")
            a(f"s_lshl_b32 s{sT0}, s3, 3\n s_add_u32 s{sT0}, s{sT0}, 8\n v_mov_b32 v2, 0\n s_mov_b64 exec, 1")
            a(f"buffer_store_dwordx2 v[8:9], v2, s[{rDBG}:{rDBG+3}], s{sT0} offen")
            a(f"buffer_store_dwordx4 v[10:13], v2, s[{rDBG}:{rDBG+3}], s{sT0} offen offset:8")
            a.label(l)
        else:
            for i in range(8): a(f"v_mov_b32 v{8+i}, s{sTS+2*i}")
            a(f"s_lshl_b32 s{sT0}, s2, 8\n s_lshl_b32 s{sT1}, s3, 5\n s_add_u32 s{sT0}, s{sT0}, s{sT1}\n s_add_u32 s{sT0}, s{sT0}, {TS_OFF}")
            a(f"v_mov_b32 v2, 0\n s_mov_b64 exec, 1")
            a(f"buffer_store_dwordx4 v[8:11], v2, s[{rWS}:{rWS+3}], s{sT0} offen")
            a(f"buffer_store_dwordx4 v[12:15], v2, s[{rWS}:{rWS+3}], s{sT0} offen offset:16")
    a("s_endpgm")

def prologue():
    m = OPT["map2"]
    lx, lc = {0: (1, 3), 2: (1, 3), 3: (2, 2), 4: (0, 4), 5: (2, 2)}[m]
    MAP2 = f"""s_lshr_b32 s{sT1}, s{sT0}, {lx}
      s_lshl_b32 s{sT1}, s{sT1}, {5-lc}
      s_lshr_b32 s{sT2}, s{sI}, {lc}
      s_add_u32 s{sRB2}, s{sT1}, s{sT2}
      s_and_b32 s{sT1}, s{sT0}, {(1<<lx)-1}
      s_and_b32 s{sT2}, s{sI}, {(1<<lc)-1}
      s_lshl_b32 s{sT2 if m in (2, 5) else sT1}, s{sT2 if m in (2, 5) else sT1}, {lx if m in (2, 5) else lc}
      s_add_u32 s{sCB2}, s{sT1}, s{sT2}
      s_xor_b32 s{sCB2}, s{sCB2}, {OPT["c2x"]}
      s_mov_b32 s{sPOS}, s{sCB}"""
    ident = list(range(16))
    LUTS = {0: (ident, [0, 1, 3, 2] + ident[4:]),
            1: ([0, 1, 3, 5, 2, 4, 6, 8, 7, 10, 12, 14, 9, 11, 13, 15], [0, 1, 2, 9, 4, 5, 6, 7, 8, 3, 10, 11, 12, 13, 14, 15]),
            2: ([0, 1, 3, 5, 2, 4, 6, 8, 7, 10, 12, 14, 9, 11, 13, 15], [0, 1, 2, 4, 3, 5, 11, 7, 8, 9, 10, 6, 12, 13, 14, 15]),
            3: ([0, 1, 3, 5, 7, 4, 10, 8, 12, 2, 14, 6, 9, 11, 13, 15], [0, 1, 2, 9, 4, 5, 6, 7, 8, 3, 10, 11, 12, 13, 14, 15])}[OPT["lut"]]
    for reg, tab in zip((sCB, sQB), LUTS):
        assert sorted(tab) == ident
        if tab == ident: continue
        w = sum(v << (4 * k) for k, v in enumerate(tab))
        MAP2 += f"""
          s_mov_b32 s{sT2}, {hex(w & 0xffffffff)}
          s_mov_b32 s{sT3}, {hex(w >> 32)}
          s_lshl_b32 s{sT1}, s{sPOS}, 2
          s_lshr_b64 s[{sT2}:{sT3}], s[{sT2}:{sT3}], s{sT1}
          s_and_b32 s{reg}, s{sT2}, 15"""
    cm('entry: workgroup -> (row block, column blocks); waves 0-3 take the matrix role G, waves 4-7 the loader / attention role A')
    a("s_cmp_ge_u32 s2, 256\n s_cbranch_scc1 L_exit")
    a("s_load_dwordx16 s[4:19], s[0:1], 0\n s_load_dwordx8 s[20:27], s[0:1], 64\n s_load_dwordx4 s[28:31], s[0:1], 96")
    if OPT["ts"] or OPT["th"] or OPT["padto"]:
        a(f"s_memtime s[{sTS}:{sTS+1}]\n s_memrealtime s[96:97]")
    a(f"""v_lshrrev_b32 v1, 6, v0
      v_and_b32 v0, 63, v0
      v_readfirstlane_b32 s3, v1
      s_lshr_b32 s{sI}, s2, 3
      s_and_b32 s{sT0}, s2, 7
      s_lshr_b32 s{sT1}, s{sT0}, 2
      s_lshl_b32 s{sT1}, s{sT1}, 3
      s_lshr_b32 s{sT2}, s{sI}, 2
      s_add_u32 s{sRB}, s{sT1}, s{sT2}
      s_and_b32 s{sT1}, s{sT0}, 3
      s_lshl_b32 s{sT1}, s{sT1}, 2
      s_and_b32 s{sT2}, s{sI}, 3
      s_add_u32 s{sCB}, s{sT1}, s{sT2}
      {MAP2}
      s_and_b32 s{sW}, s3, 3
      v_and_b32 v1, 15, v0
      v_lshrrev_b32 v2, 4, v0""")
    a("s_cmp_lt_u32 s3, 4\n s_cbranch_scc1 L_roleG\n s_setprio " + str(1 + (OPT["d0prio"] > 0)))

ACC1 = 112
acc1 = lambda ft, rt: ACC1 + (ft * 4 + rt) * 4
XF = [48, 80]; WRING = 24
vX = [16, 17]; vW1 = [18, 19]; vWq = [20, 21]; vLP, vJ, vQW = 15, 70, 64
def g_phase1():
    PD = OPT["pd"]
    sRG, sCG = sA, sB
    sXo, sPo, sPe, sPd = sC, sD, sE, sF
    a(f"s_and_b32 s{sRG}, s{sW}, 1\n s_lshr_b32 s{sCG}, s{sW}, 1")
    cm('G, phase 1: [Q | FFN hidden] tile = x[128 rows] * [Wq 64 cols | W1 224 cols], accumulators start from the bias')
    a(f"""s_cmp_lt_u32 s{sW}, 2
      s_cbranch_scc0 L_nocode
      s_getpc_b64 s[{rE}:{rE+1}]""")
    a.label("L_pc")
    a(f"""s_mov_b32 s{rE+2}, L_codeend-L_pc
      s_mov_b32 s{rE+3}, 0x20000
      s_lshl_b32 s{sT1}, s{sI}, 10
      s_lshl_b32 s{sT2}, s{sW}, 15
      s_add_u32 s{sT1}, s{sT1}, s{sT2}
      v_lshlrev_b32 v29, 7, v0
      s_mov_b64 exec, 0xff
      buffer_load_dword v{vJ}, v29, s[{rE}:{rE+3}], s{sT1} offen
      s_mov_b64 exec, -1""")
    a.label("L_nocode")
    a(f"""s_mul_i32 s{sT0}, s{sCB}, 448
      s_mul_i32 s{sT1}, s{sCG}, 224
      s_add_u32 s{sT0}, s{sT0}, s{sT1}
      v_lshlrev_b32 v14, 2, v0
      s_mov_b32 s{rA+2}, 7168
      s_mov_b32 s{rA+3}, 0x20000
      s_setprio 3
      s_waitcnt lgkmcnt(0)
      s_mov_b32 s{rA}, s{pB1}
      s_mov_b32 s{rA+1}, s{pB1+1}
      buffer_load_dword v33, v14, s[{rA}:{rA+3}], s{sT0} offen
      s_setprio 0""")
    kwait()
    for r in range(0, 32, 2): a(f"v_mov_b64 {vr(ACC1+r,2)}, 0")
    a(f"""v_lshrrev_b32 v14, 1, v1
      v_xor_b32 v14, v14, v2
      v_lshlrev_b32 v14, 4, v14
      v_lshl_add_u32 v14, v1, 7, v14
      s_lshl_b32 s{sT0}, s{sRG}, 13
      s_add_u32 s{sT0}, s{sT0}, {XR}
      v_add_u32 v{vX[0]}, s{sT0}, v14
      v_xor_b32 v{vX[1]}, 64, v{vX[0]}
      s_mov_b32 s{sXo}, 0
      v_lshrrev_b32 v14, 2, v1
      v_lshl_add_u32 v14, v2, 3, v14
      v_and_b32 v29, 3, v1
      v_lshlrev_b32 v29, 3, v29
      v_mul_u32_u24 v30, 448, v14
      v_add_u32 v30, v30, v29
      s_mul_i32 s{sT0}, s{sCG}, 224
      v_add_u32 v30, s{sT0}, v30
      v_and_b32 v31, 1, v2
      v_lshlrev_b32 v32, 5, v31
      s_lshl_b32 s{sT1}, s{sCG}, 1
      s_sub_u32 s{sT1}, 1, s{sT1}
      v_mul_lo_u32 v32, v32, s{sT1}
      v_add_u32 v{vW1[0]}, v30, v32
      v_sub_u32 v{vW1[1]}, v30, v32
      v_lshrrev_b32 v32, 3, v1
      v_lshl_add_u32 v31, v32, 1, v31
      s_lshl_b32 s{sT0}, s{sCG}, 1
      v_xor_b32 v31, s{sT0}, v31
      v_lshl_add_u32 v29, v31, 5, v29
      v_lshl_add_u32 v29, v14, 7, v29
      v_add_u32 v{vWq[0]}, {WQR}, v29
      v_xor_b32 v{vWq[1]}, 32, v{vWq[0]}""")
    if not OPT["stop"]: g2_vsetup()
    a(f"""v_and_b32 v28, 1, v2
      v_lshlrev_b32 v28, 10, v28
      v_lshrrev_b32 v29, 1, v2
      v_lshl_add_u32 v28, v29, 8, v28
      v_lshl_add_u32 v{vLP}, v1, 4, v28""")
    a(f"v_mov_b32 v30, {SYNC}\n ds_write_b128 v30, v[{ACC1}:{ACC1+3}]\n v_lshlrev_b32 v29, 3, v2")
    stamp("g_pre")
    a.wait0()
    stamp("g_bias")
    for k in range(14): a.lg(f"ds_bpermute_b32 v{48+k}, v29, v33 offset:{32*(k//2)+4*(k%2)}", ("b", k // 2))
    for ft in range(7):
        d = acc1(2 + ft, 0)
        a.wait(lg=("b", ft))
        a(f"v_lshlrev_b32 v{d}, 16, v{48+2*ft}\n v_and_b32 v{d+1}, 0xffff0000, v{48+2*ft}")
        a(f"v_lshlrev_b32 v{d+2}, 16, v{49+2*ft}\n v_and_b32 v{d+3}, 0xffff0000, v{49+2*ft}")
        for rt in range(1, 4): a(f"v_mov_b64 {vr(d+4*rt,2)}, {vr(d,2)}\n v_mov_b64 {vr(d+4*rt+2,2)}, {vr(d+2,2)}")
    def rdW(g, n):
        u, ft = divmod(g, 9); kk, e = divmod(n, 2); d = WRING + 8 * (g % 3) + 2 * n; sl = 2 * (u % 2) + kk
        if ft < 2: a.lg(f"ds_read_b64_tr_b16 {vr(d,2)}, v{vWq[ft]} offset:{sl*WQS + e*512}", ("W", g))
        else: a.lg(f"ds_read_b64_tr_b16 {vr(d,2)}, v{vW1[ft%2]} offset:{sl*W1S + e*1792 + (ft-2)*32}", ("W", g))
    def rdX(u, n):
        rt, kk = divmod(n, 2)
        a.lg(f"ds_read_b128 {vr(XF[u%2]+16*kk+4*rt,4)}, v{vX[kk]} offset:{rt*2048}", ("X", u))
    def block(u, plan):
        for ft in range(9):
            g = 9 * u + ft
            a.wait(lg=[("W", g), ("X", u)] if ft == 0 else ("W", g))
            for n in range(8):
                rt = 3 - n // 2 if ft % 2 else n // 2
                kk = (n + 1) // 2 % 2
                mf16(acc1(ft, rt), WRING + 8 * (g % 3) + 4 * kk, XF[u % 2] + 16 * kk + 4 * rt)
                if n < 4 and g + 2 < 144: rdW(g + 2, n)
                x = plan.get(8 * ft + n)
                if callable(x): x()
                elif x: a(x)
    a(f"s_mov_b32 s{sIT}, 0")
    stamp("g_rdy")
    a("s_barrier")
    stamp("g_b0")
    for n in range(4): rdW(0, n)
    for n in range(8): rdX(0, n)
    for n in range(4): rdW(1, n)
    a.raw(".p2align 3")
    cm('16 k-blocks of 64; operands come from LDS rings that the A waves fill, two barriers per block')
    a.label("L_g1loop")
    def body(it):
        for b in range(2):
            u = 2 * it + b
            plan = {12: f"s_add_u32 s{sXo}, s{sXo}, 1\n s_cmp_eq_u32 s{sXo}, 3", 13: f"s_cselect_b32 s{sXo}, 0, s{sXo}\n s_cselect_b32 s{sT0}, {3*XS}, 0",
                    14: f"s_sub_u32 s{sT0}, {XS}, s{sT0}", 20: f"v_add_u32 v{vX[0]}, s{sT0}, v{vX[0]}", 21: f"v_add_u32 v{vX[1]}, s{sT0}, v{vX[1]}",
                    OPT["mpos"]: "s_barrier", OPT["epos"]: "s_barrier"}
            free = [p for p in range(OPT["mpos"] + 1, 64) if 4 <= p % 8 < 7]
            for n in range(8): plan[free[n]] = lambda n=n: rdX(u + 1, n)
            assert 64 <= OPT["epos"] <= 68 and 22 <= OPT["mpos"] <= 36
            if b == 0: plan[69] = f"s_add_u32 s{sIT}, s{sIT}, 1"; plan[70] = f"s_cmp_eq_u32 s{sIT}, 8"
            block(u, plan)
            if b == 0:
                a("s_cbranch_scc1 L_g1last"); snap[:] = [(k_, v_ + (14 - u) * (9 if k_ == "W" else 1)) for k_, v_ in a.lgq]
        a("s_branch L_g1loop")
    snap = []
    a.loop(body, "g1")
    cm('last k-block; Q goes to the attention waves through LDS')
    a.label("L_g1last")
    a.lgq[:] = snap
    cq = lambda s_, rt: f"v_cvt_pk_bf16_f32 v{48+4*rt+2*s_}, v{acc1(s_,rt)}, v{acc1(s_,rt)+1}\n v_cvt_pk_bf16_f32 v{49+4*rt+2*s_}, v{acc1(s_,rt)+2}, v{acc1(s_,rt)+3}"
    wq = lambda rt: lambda: a.lg(f"ds_write_b128 v{vQW}, {vr(48+4*rt,4)} offset:{(rt//2)*4096 + (rt%2)*1024}")
    plan = {4: f"s_lshl_b32 s{sT2}, s{sRG}, 13\n s_lshl_b32 s{sT3}, s{sCG}, 11", 5: f"s_add_u32 s{sT2}, s{sT2}, s{sT3}\n s_add_u32 s{sT2}, s{sT2}, {QX}",
            6: f"v_lshl_add_u32 v{vQW}, v0, 4, s{sT2}", 20: cq(0, 0), 21: cq(0, 1), 22: cq(0, 2), 28: cq(0, 3), 29: cq(1, 3), 30: cq(1, 2),
            36: cq(1, 1), 37: cq(1, 0), 38: "s_barrier",
            44: wq(0), 46: wq(1), 52: wq(2), 54: wq(3),
            61: lambda: (a.wait0(vm=False), a(f"s_setprio {OPT['gprio']}\n s_barrier"))}
    block(15, plan)
    stamp("g_end1")
def g_hstore(lo=0, hi=7):
    sRG, sCG = sA, sB
    sT0, sT1, sT2, sT3 = sT4, sT5, sF, sG
    if lo == 0: a(f"""s_mul_i32 s{sT0}, s{sRB}, {RBSZ}
      s_mul_i32 s{sT1}, s{sCB}, {7*8192}
      s_add_u32 s{sT0}, s{sT0}, s{sT1}
      s_lshl_b32 s{sT1}, s{sRG}, 12
      s_add_u32 s{sT0}, s{sT0}, s{sT1}
      s_mul_i32 s{sT1}, s{sCG}, {3*8192+512}
      s_add_u32 s{sT0}, s{sT0}, s{sT1}
      s_mul_i32 s{sT2}, s{sCG}, {8192-1024}
      s_add_u32 s{sT2}, s{sT2}, 512
      s_sub_u32 s{sT3}, 8192, s{sT2}""")
    cm('hidden = relu(h)^2 as bf16, write-through to the workspace in MFMA operand order')
    k = 0
    for ft in range(lo, hi):
        for p in range(2):
            T = 48 + 4 * (k % 4); k += 1
            if OPT["nohst"] == 2: continue
            for h in range(2):
                d = acc1(2 + ft, 2 * p + h)
                for r in range(4): a(f"v_max_f32 v{d+r}, 0, v{d+r}")
                if OPT["nopk"] > 1: a("\n".join(f"v_mul_f32 v{d+r}, v{d+r}, v{d+r}" for r in range(4)))
                else: a(f"v_pk_mul_f32 {vr(d,2)}, {vr(d,2)}, {vr(d,2)}\n v_pk_mul_f32 {vr(d+2,2)}, {vr(d+2,2)}, {vr(d+2,2)}")
                a(f"v_cvt_pk_bf16_f32 v{T+2*h}, v{d}, v{d+1}\n v_cvt_pk_bf16_f32 v{T+2*h+1}, v{d+2}, v{d+3}")
            a(f"s_nop 1\n v_permlane16_swap_b32 v{T}, v{T+2}\n v_permlane16_swap_b32 v{T+1}, v{T+3}")
            if not OPT["nohst"]: a.vm(f"buffer_store_dwordx4 {vr(T,4)}, v{vLP}, s[{rWS}:{rWS+3}], s{sT0} offen offset:{p*2048} sc1", "hst")
        a(f"s_add_u32 s{sT0}, s{sT0}, s{sT2 if ft % 2 == 0 else sT3}")

vO = 3
vKX, vKG, vKW, vKT0, vKVD, vKR = 140, 12, 13, 24, 15, 142
KVREG = 208; vG = 253
KXF, KGF, KWF, KAC = 32, 64, 96, 128
def a_phase1():
    sISV, sR0, sSTG, sM, sSo, sSx, sGrp = sA, sB, sC, sD, sE, sF, sG
    NT = " nt" if OPT["pfnt"] else ""
    LEAD = OPT["lead"]
    vXo, vQo, vP = 144, 148, 150
    sSq, sMx, sMq, sPo, sPm = 14, 15, 18, 19, 22
    section("st")
    cm('A, phase 1 start-up: every wave brings 16 rows of W1 / Wq and 32 rows of x per k-block; wave 7 also warms caches and handles the flags')
    a(f"""v_lshrrev_b32 v16, 3, v0
      v_lshlrev_b32 v16, 11, v16
      v_and_b32 v17, 7, v0
      v_xor_b32 v18, v17, v2
      v_lshl_add_u32 v18, v18, 4, v16
      v_and_b32 v20, 1, v2
      v_lshlrev_b32 v20, 2, v20
      v_xor_b32 v20, v20, v17
      v_lshl_add_u32 v{vQo}, v20, 4, v16
      v_xor_b32 v19, 32, v{vQo}
      v_add_u32 v{vQo+1}, {16384-1024}, v19
      s_lshl2_add_u32 s{sSx}, s{sRB}, s{sW}
      s_lshl_b32 s{sSx}, s{sSx}, 16""")
    for i in range(4): a(f"v_xor_b32 v19, {64*(i%2)}, v18\n v_add_u32 v{vXo+i}, {i*16384 - i*1024}, v19")
    a(f"s_mul_i32 s{sT0}, s{sW}, {16*7168}\n s_mul_i32 s{sT1}, s{sCB}, 448\n s_add_u32 s{sSo}, s{sT0}, s{sT1}")
    a(f"s_mul_i32 s{sM}, s{sW}, 7168\n s_movk_i32 s{sT2}, {7168-448}")
    def w1off(i):
        a(f"""v_add_u32 v16, {64*i}, v0
          v_mul_u32_u24 v17, 2341, v16
          v_lshrrev_b32 v17, 16, v17
          v_bfe_u32 v18, v17, 3, 1
          v_lshlrev_b32 v18, 1, v18
          v_xor_b32 v16, v16, v18
          v_lshlrev_b32 v16, 4, v16
          v_mad_u32_u24 v{vO+i}, v17, s{sT2}, v16""")
        if i % 4: a(f"v_subrev_u32 v{vO+i}, {1024*(i%4)}, v{vO+i}")
    for i in range(OPT['w1n']): w1off(i)
    kwait(); srd(rA, pX, 2048 * 2048); srd(rPF, pWQ, 1024 * 2048); srd(rB, pW1, 1024 * 7168)
    a(f"""s_lshl_b32 s{sMx}, s{sW}, 12
      s_lshl_b32 s{sMq}, s{sW}, 11
      s_lshl_b32 s{sSq}, s{sW}, 15
      s_lshl_b32 s{sT0}, s{sQB}, 7
      s_add_u32 s{sSq}, s{sSq}, s{sT0}""")
    trickle = []
    def trk(all_=False):
        while trickle:
            for t_ in trickle.pop(0): a.label(t_[:-1]) if t_.endswith(":") else a.lg(t_)
            if not all_: break
    def ldW(u, m=None):
        for i in range(7):
            if i == 4 and m: m()
            if u == 0 and i >= OPT['w1n']: w1off(i)
            if i % 4 == 0: a(f"s_add_u32 m0, s{sM}, {(u%2)*2*W1S + i*1024}\n s_nop 0")
            a.vm(f"buffer_load_dwordx4 v{vO+i}, s[{rB}:{rB+3}], s{sSo} offen offset:{1024*(i%4)} lds", ("W", u)); trk()
        a(f"s_add_u32 s{sSo}, s{sSo}, {64*7168}")
    def ldQ(u):
        a(f"s_add_u32 m0, s{sMq}, {WQR + (u%2)*2*WQS}\n s_nop 0")
        for i in range(2):
            a.vm(f"buffer_load_dwordx4 v{vQo+i}, s[{rPF}:{rPF+3}], s{sSq} offen offset:{1024*i} lds", ("Q", u)); trk()
        a(f"s_add_u32 s{sSq}, s{sSq}, 131072")
    def ldX(u):
        a(f"s_add_u32 m0, s{sMx}, {XR + (u%3)*XS}\n s_nop 0")
        for i in range(4):
            a.vm(f"buffer_load_dwordx4 v{vXo+i}, s[{rA}:{rA+3}], s{sSx} offen offset:{1024*i} lds", ("X", u)); trk()
        a(f"s_add_u32 s{sSx}, s{sSx}, 128")
    plainwait = a.wait
    def pwait(vm=(), lg=()):
        tags = vm if isinstance(vm, list) else [vm]
        idx = max([k for k, x in enumerate(a.vmq) if x in tags], default=-1)
        isP = lambda x: isinstance(x, tuple) and x[0] == "P"
        rest = a.vmq[idx + 1:]
        if idx < 0 or not any(map(isP, rest)): return plainwait(vm, lg)
        assert lg == ()
        n0 = sum(not isP(x) for x in rest); l = a.newlabel("L_pw")
        for g_ in sorted({x[1] for x in rest if isP(x)}) if OPT["pexact"] else []:
            l2 = a.newlabel("L_pw")
            a(f"s_cmp_lg_u32 s{sGrp}, {g_}\n s_cbranch_scc1 {l2}\n s_waitcnt vmcnt({n0 + rest.count(('P', g_))})\n s_branch {l}")
            a.label(l2)
        a(f"s_waitcnt vmcnt({n0})"); a.label(l)
        a.vmq[:] = rest
    a.wait = pwait
    a.vmq.clear(); a.lgq.clear()
    if OPT["rot"]:
        a(f"s_add_u32 s{sT0}, s{sRB}, s{sPOS}\n s_bitcmp1_b32 s{sT0}, 0\n s_cbranch_scc0 L_d0a")
        ldW(0); ldX(0); ldQ(0)
        a("s_branch L_d0b")
        a.label("L_d0a"); a.vmq.clear()
    ldX(0); ldQ(0); ldW(0)
    if OPT["rot"]: a.label("L_d0b")
    if OPT["d0prio"]: a("s_setprio 1")
    if OPT["d0prio"] == 2: a("s_waitcnt vmcnt(6)")
    a(f"s_cmp_eq_u32 s{sW}, 3\n s_cbranch_scc1 L_st2")
    q0 = list(a.vmq)
    for path in (0, 2):
        section(f"st{path}")
        a.label(f"L_st{path}")
        a.vmq[:] = q0; a.lgq.clear()
        pfs = lambda t: None
        if path == 0: pass
        else:
            assert OPT["lut"] == 0
            a(f"""s_and_b32 s{sGrp}, s{sI}, 7
              s_lshl_b32 s{sT0}, s{sGrp}, 5
              s_and_b32 s{sT1}, s2, 4
              s_lshl2_add_u32 s{sT0}, s{sT1}, s{sT0}
              s_lshr_b32 s{sT1}, s{sI}, 3
              s_lshl2_add_u32 s{sT0}, s{sT1}, s{sT0}
              s_and_b32 s{sT1}, s2, 3
              s_mul_i32 s{sPo}, s{sT0}, 7168
              s_mul_i32 s{sT2}, s{sT1}, 1792
              s_add_u32 s{sPo}, s{sPo}, s{sT2}
              s_lshl2_add_u32 s{sPm}, s{sT0}, s{sT1}
              s_lshl_b32 s{sPm}, s{sPm}, 9
              s_and_b32 s{sT1}, s2, 7
              s_lshl_b32 s{sT1}, s{sT1}, 5
              s_add_u32 s{sT1}, s{sT1}, s{sI}
              s_lshl_b32 s{sIT}, s{sT1}, 14
              v_lshrrev_b32 v16, 3, v0
              v_lshlrev_b32 v16, 11, v16
              v_and_b32 v17, 7, v0
              v_lshl_add_u32 v{vP+0}, v17, 7, v16
              v_lshlrev_b32 v{vP+1}, 7, v0
              v_mul_u32_u24 v16, 7168, v2
              v_lshl_add_u32 v{vP+2}, v1, 7, v16
              v_lshrrev_b32 v16, 2, v0
              v_and_b32 v17, 3, v0
              v_lshlrev_b32 v17, 7, v17
              v_lshl_add_u32 v{vP+3}, v16, 11, v17""")
            def pfW(so, sm, vm):
                a("s_mov_b32 exec_lo, 0x3fff3fff\n s_mov_b32 exec_hi, 0x3fff3fff")
                vm(f"buffer_load_dword v250, v{vP+2}, s[{rB}:{rB+3}], s{so} offen{NT}")
                a("s_mov_b64 exec, 0xffff")
                vm(f"buffer_load_dword v250, v{vP+3}, s[{rPF}:{rPF+3}], s{sm} offen{NT}")
                a("s_mov_b64 exec, -1")
            def p0():
                if OPT["nopf"]: return
                a(f"s_mov_b32 exec_lo, 0x0f0f0f0f\n s_mov_b32 exec_hi, 0x0f0f0f0f")
                a.vm(f"buffer_load_dword v250, v{vP+0}, s[{rA}:{rA+3}], s{sIT} offen{NT}")
                a(f"""s_cmp_lt_u32 s{sGrp}, {LEAD}
                  s_cselect_b32 s{sT0}, s{sPo}, {OOB}
                  s_cselect_b32 s{sT1}, s{sPm}, {OOB}""")
                pfW(sT0, sT1, a.vm)
                a(f"""s_cselect_b32 s{sT0}, {256*7168}, 0
                  s_cselect_b32 s{sT1}, {256*2048}, 0
                  s_add_u32 s{sPo}, s{sPo}, s{sT0}
                  s_add_u32 s{sPm}, s{sPm}, s{sT1}
                  s_and_b32 s{sIT}, s{sIT}, {31 << 17}
                  v_lshrrev_b32 v16, 1, v0
                  v_and_b32 v17, 1, v0
                  v_lshlrev_b32 v17, 7, v17
                  v_lshl_add_u32 v{vP+0}, v16, 11, v17""")
            def pfs(t):
                if OPT["nopf"]: return
                if t + LEAD < 32:
                    l = a.newlabel("L_np")
                    a(f"s_cmp_lg_u32 s{sGrp}, {(t+LEAD)%8}\n s_cbranch_scc1 {l}")
                    pv_ = lambda x: a.vm(x, ("P", (t + LEAD) % 8))
                    pfW(sPo, sPm, pv_)
                    a(f"s_add_u32 s{sPo}, s{sPo}, {256*7168}\n s_add_u32 s{sPm}, s{sPm}, {256*2048}")
                    if t < 6:
                        for k_ in range(2):
                            pv_(f"buffer_load_dword v250, v{vP+0}, s[{rA}:{rA+3}], s{sIT} offen offset:{512+256*t}{NT}"); a(f"s_add_u32 s{sIT}, s{sIT}, 65536")
                    if OPT["pf2"] and t // 8 == OPT["pf2b"]:
                        srd(rD, pW2, 3584 * 2048)
                        if OPT["loc2"]:
                            a(f"""s_bfe_u32 s{sT0}, s2, {hex(((3-LC) << 16) + LC)}
                              s_lshl_b32 s{sT0}, s{sT0}, 5
                              s_add_u32 s{sT1}, s{sT0}, s{sI}
                              s_lshr_b32 s{sT0}, s{sT1}, {6-LC}
                              s_mul_i32 s{sT0}, s{sT0}, {896*2048}
                              s_and_b32 s{sT1}, s{sT1}, {(64 >> LC) - 1}
                              s_lshl_b32 s{sT1}, s{sT1}, {13+LC}
                              s_add_u32 s{sT0}, s{sT0}, s{sT1}
                              s_and_b32 s{sT1}, s{sCB2}, {(1 << LC) - 1}
                              s_lshl_b32 s{sT1}, s{sT1}, 7
                              s_add_u32 s{sT0}, s{sT0}, s{sT1}
                              v_lshlrev_b32 v{vP+1}, {7+LC}, v0""")
                        else: a(f"s_lshr_b32 s{sT0}, s2, 6\n s_mul_i32 s{sT0}, s{sT0}, {896*2048}\n s_and_b32 s{sT1}, s2, 63\n s_lshl_b32 s{sT1}, s{sT1}, 13\n s_add_u32 s{sT0}, s{sT0}, s{sT1}")
                        pv_(f"buffer_load_dword v250, v{vP+1}, s[{rD}:{rD+3}], s{sT0} offen")
                    a.label(l)
        def kvsetup():
            if OPT["evk"]: a(f"s_bfe_u32 s{sISV}, s{sPOS}, 0x10002\n s_lshr_b32 s{sR0}, s{sPOS}, 3\n s_lshl_b32 s{sR0}, s{sR0}, 2\n s_and_b32 s{sT0}, s{sPOS}, 3\n s_add_u32 s{sR0}, s{sR0}, s{sT0}")
            else: a(f"s_and_b32 s{sISV}, s{sCB}, 1\n s_lshr_b32 s{sR0}, s{sCB}, 1")
            a(f"""s_lshl_b32 s{sR0}, s{sR0}, 4
              s_lshl_b32 s{sT0}, s{sRB}, 7
              s_add_u32 s{sR0}, s{sR0}, s{sT0}
              s_cmp_eq_u32 s{sISV}, 0
              s_cselect_b32 s{rC}, s{pWK}, s{pWV}
              s_cselect_b32 s{rC+1}, s{pWK+1}, s{pWV+1}
              s_mov_b32 s{rC+2}, 65536
              s_mov_b32 s{rC+3}, 0x20000
              v_lshlrev_b32 v{vKVD}, 4, v0""")
            if path == 2:
                srd(rD, pGATE, 2048); srd(rDBG, pDBG, 256)
                a(f"s_lshl_b32 s{sT0}, s{sR0}, 5\n s_mov_b64 exec, 15")
                a.vm(f"buffer_load_dword v250, v{vP+1}, s[{rC}:{rC+3}], s{sT0} offen"); a("s_mov_b64 exec, -1")
                a(f"s_mov_b32 m0, {GT}\n s_nop 0")
                for i in range(2): a.vm(f"buffer_load_dwordx4 v{vKVD}, s[{rD}:{rD+3}], 0 offen offset:{1024*i} lds", "gt")
        if path == 2 and OPT["p0late"] == 1: p0(); kvsetup()
        ldX(1); ldQ(1)
        if path == 2 and OPT["p0late"] == 2: p0(); kvsetup()
        if OPT["w1pre"]: ldW(1)
        stamp("a_iss")
        if OPT["kvl"]: a.wait(vm=[("W", 0), ("Q", 0), ("X", 0)]); a("s_barrier")
        a(f"s_branch L_a1m{path}")
        section("main")
        cm('A, phase 1: LDS-DMA of the GEMM operands; K (scaled by log2(e)/sqrt(32)), V and the gate of 16 rows on the side')
        a.label(f"L_a1m{path}")
        def kvsetup2():
            if path != 2: kvsetup()
            a(f"""s_lshl_b32 s{sSTG}, s{sW}, 13
              s_add_u32 s{sSTG}, s{sSTG}, {KVST}
              s_lshl_b32 s{sT0}, s{sW}, 7
              v_lshl_add_u32 v17, v2, 4, s{sT0}
              v_add_u32 v{vKG}, {GT}, v17
              v_lshrrev_b32 v16, 3, v0
              v_add_u32 v16, s{sR0}, v16
              v_and_b32 v17, 7, v0
              v_xor_b32 v17, v17, v2
              v_lshl_add_u32 v17, v17, 4, s{sT0}
              v_lshl_add_u32 v{vKX}, v16, 11, v17
              v_xor_b32 v16, 64, v{vKX}
              v_add_u32 v{vKX+1}, {16384-1024}, v16
              v_lshrrev_b32 v16, 1, v1
              v_xor_b32 v16, v16, v2
              v_lshlrev_b32 v16, 4, v16
              v_lshl_add_u32 v16, v1, 7, v16
              v_add_u32 v{vKR}, s{sSTG}, v16
              v_xor_b32 v{vKR+1}, 64, v{vKR}
              v_lshrrev_b32 v16, 4, v0
              v_and_b32 v16, 2, v16
              v_xor_b32 v16, v16, v0
              s_lshl_b32 s{sT0}, s{sW}, 12
              v_lshl_add_u32 v{vKW}, v16, 4, s{sT0}
              v_lshrrev_b32 v16, 2, v1
              v_lshl_add_u32 v16, v2, 3, v16
              v_and_b32 v17, 3, v1
              v_lshlrev_b32 v17, 3, v17
              v_lshl_add_u32 v16, v16, 6, v17
              v_and_b32 v17, 1, v2
              v_lshl_add_u32 v16, v17, 5, v16
              v_add_u32 v{vKT0}, s{sSTG}, v16
              v_xor_b32 v{vKT0+1}, 32, v{vKT0}""")
            for r in range(12): a(f"v_mov_b32 v{KAC+r}, 0")
        if not OPT["kvl"]: kvsetup2()
        def konly(l_):
            lb = a.newlabel("L_ko")
            return [f"s_cmp_lg_u32 s{sISV}, 0\n s_cbranch_scc1 {lb}"] + l_ + [lb + ":"]
        def kvX(rho):
            if 'X' in OPT['kvskip']: return
            a(f"s_add_u32 m0, s{sSTG}, 6144\n s_movk_i32 s{sT0}, {rho*512}")
            for i in range(2):
                a.vm(f"buffer_load_dwordx4 v{vKX+i}, s[{rA}:{rA+3}], s{sT0} offen offset:{1024*i} lds", ("kw", rho))
        def kvW(rho, half):
            if 'W' in OPT['kvskip']: return
            if half: a.wait0(vm=False)
            a(f"s_add_u32 m0, s{sSTG}, {4096 if half else (rho%2)*2048}\n s_mov_b32 s{sT0}, {rho*16384 + half*2048}")
            for i in range(2):
                a.vm(f"buffer_load_dwordx4 v{vKW}, s[{rC}:{rC+3}], s{sT0} offen offset:{1024*i} lds", ("kw", rho))
        def kvR(rho):
            if 'R' in OPT['kvskip']: return
            a.wait(vm=("kw", rho))
            for i in range(2):
                for nt in range(2):
                    trickle.append([f"ds_read_b64_tr_b16 {vr(KWF+8*i+4*nt+2*e,2)}, v{vKT0+nt} offset:{(4096 if i else (rho%2)*2048)+e*256}" for e in range(2)])
            trickle.append([f"ds_read_b128 {vr(KXF+4*i,4)}, v{vKR+i} offset:6144" for i in range(2)])
            trickle.append(konly([f"ds_read_b128 {vr(KGF+4*i,4)}, v{vKG} offset:{512*rho+64*i}" for i in range(2)]))
        def kvM(rho):
            if 'M' in OPT['kvskip']: return
            a.wait0(vm=False)
            lv, ld = a.newlabel("L_kv"), a.newlabel("L_kd")
            a(f"s_cmp_lg_u32 s{sISV}, 0\n s_cbranch_scc1 {lv}")
            for nt in range(2):
                for i in range(2): mf16(KAC + 4 * nt, KWF + 8 * i + 4 * nt, KXF + 4 * i)
            for i in range(2): mf16(KAC + 8, KGF + 4 * i, KXF + 4 * i)
            a(f"s_branch {ld}")
            a.label(lv)
            for nt in range(2):
                for i in range(2): mf16(KAC + 4 * nt, KXF + 4 * i, KWF + 8 * i + 4 * nt)
            a.label(ld)
        def kvP():
            if 'P' in OPT['kvskip']: return
            a(f"v_add_u32 v16, s{sSTG}, v{vKVD}\n s_nop 5")
            if OPT["pw"] == 128:
                for nt in range(2): trickle.append([f"ds_write_b128 v16, {vr(KAC+4*nt,4)} offset:{nt*1024}"])
            elif OPT["pw"] == 64:
                for k_ in range(4): trickle.append([f"ds_write_b64 v16, {vr(KAC+2*k_,2)} offset:{(k_//2)*1024+(k_%2)*8}"])
            elif OPT["pw"] == 32:
                for k_ in range(0, 8, 2): trickle.append([f"ds_write_b32 v16, v{KAC+k2} offset:{(k2//4)*1024+(k2%4)*4}" for k2 in (k_, k_ + 1)])
            trickle.append(konly([f"ds_write_b32 v16, v{KAC+8} offset:2048"]))
            if OPT["pb"]: trk(True)
            if OPT["pb"] > 1: a.wait0(vm=False)
        def kvF():
            if 'F' in OPT['kvskip']: return
            a(f"v_add_u32 v26, {KVST}, v{vKVD}")
            for w in range(3):
                a(f"ds_read_b128 {vr(32+8*w,4)}, v26 offset:{w*8192}\n ds_read_b128 {vr(36+8*w,4)}, v26 offset:{w*8192+1024}")
            a(f"""s_lshr_b32 s{sT3}, s{sR0}, 5
              s_lshl_b32 s{sT3}, s{sT3}, 12
              s_add_u32 s{sT3}, s{sT3}, {KV_OFF}
              s_bfe_u32 s{sT4}, s{sR0}, 0x10004
              s_cmp_eq_u32 s{sISV}, 0
              s_cselect_b32 s{sT0}, {f2u(32 ** -0.5 * math.log2(math.e))}, 1.0
              s_cselect_b32 s{sT2}, 7, 9
              s_cselect_b32 s{sT5}, 0, 2048
              s_lshl_b32 s{sT4}, s{sT4}, s{sT2}
              s_add_u32 s{sT3}, s{sT3}, s{sT4}
              s_add_u32 s{sT3}, s{sT3}, s{sT5}
              s_waitcnt lgkmcnt(0)""")
            for r in range(8):
                a(f"v_add_f32 v{32+r}, v{32+r}, v{40+r}\n v_add_f32 v{48+r}, v{48+r}, v{KAC+r}\n v_add_f32 v{32+r}, v{32+r}, v{48+r}\n v_mul_f32 v{32+r}, s{sT0}, v{32+r}")
            for r in range(4): a(f"v_cvt_pk_bf16_f32 v{40+r}, v{32+2*r}, v{33+2*r}")
            a(f"s_cmp_eq_u32 s{sISV}, 0\n s_cbranch_scc1 L_nosw\n v_permlane16_swap_b32 v40, v42\n v_permlane16_swap_b32 v41, v43")
            a.label("L_nosw")
            a.vm(f"buffer_store_dwordx4 v[40:43], v27, s[{rWS}:{rWS+3}], s{sT3} offen sc1", "pub")
        def kvF0():
            a(f"""v_bfe_u32 v16, v1, 2, 1
              v_lshlrev_b32 v16, 10, v16
              v_lshl_add_u32 v16, v2, 8, v16
              v_lshrrev_b32 v17, 3, v1
              v_lshl_add_u32 v16, v17, 6, v16
              v_and_b32 v17, 3, v1
              v_lshl_add_u32 v27, v17, 4, v16
              s_cmp_eq_u32 s{sISV}, 0
              s_cbranch_scc1 L_kadr
              v_and_b32 v16, 1, v2
              v_lshlrev_b32 v16, 10, v16
              v_lshrrev_b32 v17, 1, v2
              v_lshl_add_u32 v16, v17, 8, v16
              v_lshl_add_u32 v27, v1, 4, v16""")
            a.label("L_kadr")
        def kvF2():
            if 'F' in OPT['kvskip']: return
            a(f"s_mov_b32 s{sT0}, {OOB}\n v_lshlrev_b32 v20, 2, v0\n s_cmp_lg_u32 s{sISV}, 0\n s_cbranch_scc1 L_nogate")
            for w in range(3): a(f"ds_read_b32 v{64+w}, v26 offset:{w*8192+2048}")
            a(f"""s_lshl_b32 s{sT0}, s{sR0}, 2
              s_add_u32 s{sT0}, s{sT0}, {G_OFF}
              s_waitcnt lgkmcnt(0)
              v_add_f32 v64, v64, v65
              v_add_f32 v66, v66, v{KAC+8}
              v_add_f32 v64, v64, v66
              v_mul_f32 v64, {f2u(-math.log2(math.e))}, v64
              v_exp_f32 v64, v64
              s_nop 0
              v_add_f32 v64, 1.0, v64
              v_rcp_f32 v64, v64""")
            a.label("L_nogate")
            a("s_mov_b64 exec, 0xffff")
            a.vm(f"buffer_store_dword v64, v20, s[{rWS}:{rWS+3}], s{sT0} offen sc1", "pub"); a("s_mov_b64 exec, -1")
        def kvA():
            a(f"""s_lshl_b32 s{sT0}, s{sRB}, 4
              s_add_u32 s{sT0}, s{sT0}, s{sCB}
              s_lshl_b32 s{sT0}, s{sT0}, 2
              s_add_u32 s{sT0}, s{sT0}, {KF_OFF}
              v_mov_b32 v16, 1
              v_mov_b32 v17, 0""")
            a.wait(vm="pub")
            a("s_mov_b64 exec, 1"); a.vm(f"buffer_store_dword v16, v17, s[{rWS}:{rWS+3}], s{sT0} offen sc1"); a("s_mov_b64 exec, -1")
        def clr():
            a(f"""s_and_b32 s{sT0}, s2, 0xc1
              s_cbranch_scc1 L_noclr
              s_lshl_b32 s{sT0}, s2, 11
              s_add_u32 s{sT0}, s{sT0}, {FL_OFF}
              s_lshl_b32 s{sT1}, s2, 4
              s_add_u32 s{sT1}, s{sT1}, {KF_OFF}
              v_lshrrev_b32 v16, 1, v0
              v_and_b32 v17, 1, v0
              v_lshlrev_b32 v17, 4, v17
              v_lshl_add_u32 v16, v16, 7, v17
              {chr(10).join(f"buffer_store_dwordx4 v[{KAC}:{KAC+3}], v{vKVD}, s[{rWS}:{rWS+3}], s{sT0} offen offset:{1024*k_} sc1" for k_ in range(4)) if OPT["clrf"] else f"buffer_store_dwordx4 v[{KAC}:{KAC+3}], v16, s[{rWS}:{rWS+3}], s{sT0} offen sc1"}
              s_mov_b64 exec, 3
              buffer_store_dwordx4 v[{KAC}:{KAC+3}], v16, s[{rWS}:{rWS+3}], s{sT1} offen sc1
              s_mov_b64 exec, -1""")
            a.label("L_noclr")
        def clrdone():
            a(f"""s_and_b32 s{sT0}, s2, 0xc1
              s_cbranch_scc1 L_noclr2
              s_waitcnt vmcnt(0)
              s_lshl_b32 s{sT0}, s2, 1
              v_mov_b32 v16, 1
              v_mov_b32 v17, 0
              s_mov_b64 exec, 1
              buffer_store_dword v16, v17, s[{rDBG}:{rDBG+3}], s{sT0} offen sc1
              s_mov_b64 exec, -1""")
            a.label("L_noclr2")
        def kvPoll0a():
            a(f"v_and_b32 v19, 31, v0\n v_lshlrev_b32 v19, 2, v19"); a.vm(f"buffer_load_dword v18, v19, s[{rDBG}:{rDBG+3}], 0 offen sc1", "p0")
        def kvPoll0():
            a(f"s_mov_b32 s{sT1}, {SPIN_MAX}")
            a.wait(vm="p0")
            a.label("L_poll0")
            a(f"""v_cmp_ne_u32 vcc, 1, v18
              s_sub_u32 s{sT1}, s{sT1}, 1
              s_cbranch_vccz L_poll0x
              s_sleep 16
              buffer_load_dword v18, v19, s[{rDBG}:{rDBG+3}], 0 offen sc1
              s_waitcnt vmcnt(0)
              s_cmp_lg_u32 s{sT1}, 0
              s_cbranch_scc1 L_poll0""")
            a.label("L_poll0x")
        def kvPoll1a():
            a(f"s_mov_b32 s{sT3}, {KF_OFF}"); a.vm(f"buffer_load_dwordx4 v[20:23], v{vKVD}, s[{rWS}:{rWS+3}], s{sT3} offen sc1", "p1")
        def kvPoll1():
            a(f"s_mov_b32 s{sT1}, {SPIN_MAX}")
            a.wait(vm="p1")
            a.label("L_poll1")
            a(f"""v_and_b32 v20, v20, v21
              v_and_b32 v22, v22, v23
              v_and_b32 v20, v20, v22
              v_cmp_ne_u32 vcc, 1, v20
              s_sub_u32 s{sT1}, s{sT1}, 1
              s_cbranch_vccz L_poll1x
              s_sleep 16
              buffer_load_dwordx4 v[20:23], v{vKVD}, s[{rWS}:{rWS+3}], s{sT3} offen sc1
              s_waitcnt vmcnt(0)
              s_cmp_lg_u32 s{sT1}, 0
              s_cbranch_scc1 L_poll1""")
            a.label("L_poll1x")
        def kvD(c):
            if c == 0:
                a(f"s_add_u32 s{rE}, s{pWS}, {KV_OFF}\n s_addc_u32 s{rE+1}, s{pWS+1}, 0\n s_mov_b32 s{rE+2}, 0x40000\n s_mov_b32 s{rE+3}, 0x20000")
                a(f"s_lshl_b32 s{sIT}, s{sW}, 12")
            a(f"s_add_u32 m0, s{sIT}, {KVR + ((c+2)%4)*16384}\n s_add_u32 s{sT0}, s{sIT}, {c*16384}")
            for i in range(4):
                a.vm(f"buffer_load_dwordx4 v{vKVD}, s[{rE}:{rE+3}], s{sT0} offen offset:{1024*i} sc1 lds", ("kv", c))
        def kvDr(c):
            a(f"s_add_u32 s{sT0}, s{sIT}, {c*16384}")
            for i in range(4):
                a.vm(f"buffer_load_dwordx4 {vr(KVREG+16*(c-4)+4*i,4)}, v{vKVD}, s[{rE}:{rE+3}], s{sT0} offen offset:{1024*i} sc1", ("kv", c))
        def ldG():
            a(f"""s_lshl_b32 s{sT1}, s{sRB}, 9
              s_lshl_b32 s{sT2}, s{sW}, 7
              s_add_u32 s{sT1}, s{sT1}, s{sT2}
              s_add_u32 s{sT1}, s{sT1}, {G_OFF}
              v_lshlrev_b32 v22, 2, v1""")
            for h in range(2): a.vm(f"buffer_load_dword v{vG+h}, v22, s[{rWS}:{rWS+3}], s{sT1} offen offset:{64*h} sc1")
        def low(f):
            return (lambda: (a("s_setprio 0"), f(), a("s_setprio 1"))) if OPT["lowv"] else f
        post = {k: [] for k in range(33)}; pre = {k: [] for k in range(33)}; mid = {k: [] for k in range(33)}
        if not OPT["nokv"]:
            st = [int(c, 16) for c in OPT["kvs"][1:]]
            assert all(b - a_ >= 3 for a_, b in zip(st, st[1:])) and st[3] <= 13
            for rho, t0 in enumerate(st):
                pre[t0+4].append(lambda rho=rho: kvR(rho)); mid[t0+5].append(lambda rho=rho: kvM(rho))
                post[t0+2].append(lambda rho=rho: kvX(rho))
                post[t0].append(lambda rho=rho: kvW(rho, 0)); post[t0+1].append(lambda rho=rho: kvW(rho, 1))
            t0 = st[3] + 6
            if path < 2: pre[t0].append(kvP); post[t0].append(lambda: a.wait0(vm=False))
            if path == 2:
                post[2] += [clr]; pre[7].append(clrdone); post[t0].append(low(kvF0)); post[3].append(lambda: a.wait(vm="gt"))
                pre[t0+1] += [kvF]; mid[t0+2] += [kvF2]; pre[t0+2] += [kvPoll0a]; mid[t0+4] += [kvPoll0, kvA]
                pre[OPT["p1"]].append(kvPoll1a); post[27].append(kvPoll1)
            if OPT["kvl"]: (mid if OPT["kvl"] == 1 else post)[0].append(kvsetup2)
            for k_ in range(4): mid[22 + k_].append(low(lambda k_=k_: attention_setup(k_)))
            post[28].append(ldG)
            for c, t_ in enumerate((28, 29, 29, 30)): post[t_].append(lambda c=c: kvD(c))
            for c in range(OPT["kvreg"]): post[30].append(lambda c=c: kvDr(4 + c))
        stamp("a_set")
        for s_ in range(31):
            u = s_ // 2
            a.wait(vm=[("W", u), ("Q", 0), ("X", 0)] if s_ % 2 == 0 else [("Q", u + 1), ("X", u + 1)])
            if s_ == 0: stamp("a_w0")
            if s_ == 29:
                if path < 2: a("s_branch L_a1done"); break
                a.label("L_a1done")
                a.vmq[:] = [("W", 15), None, None] + [("kv", 0)] * 4
            if s_ or not OPT["kvl"]: a("s_barrier")
            if s_ == 0: stamp("a_b0")
            if s_ in (8, 16, 24): stamp(f"a_{s_}")
            if OPT["steps"] and path == 2 and s_ < 29:
                a("s_memtime s[98:99]"); a.wait0(vm=False); a(f"v_writelane_b32 v160, s98, {s_}")
                if s_ == 28:
                    a(f"s_lshl_b32 s98, s2, 8\n s_add_u32 s98, s98, {TS_OFF+0x10000}\n v_lshlrev_b32 v161, 2, v0\n buffer_store_dword v160, v161, s[{rWS}:{rWS+3}], s98 offen")
            for f in pre[s_]: f()
            midf = lambda: [f() for f in mid[s_]]
            if s_ % 2 == 0:
                if u + 1 < 16 and not (u == 0 and OPT["w1pre"]): ldW(u + 1, midf)
                else: midf()
                if s_ == OPT["xr"]: ldX(u + 2)
            else:
                if u + 2 < 16: ldQ(u + 2)
                midf()
                xa = 3 if s_ > OPT["xr"] else 2
                if u + xa < 16: ldX(u + xa)
            trk(True)
            for f in post[s_]: f()
            if not OPT["peven"]: pfs(s_)
            elif s_ % 2 == 0: pfs(s_); pfs(s_ + 1)
    a.wait = plainwait
    if OPT["tlb"]:
        srd(rD, pOUT, 2048 * 2048)
        a(f"""s_mul_i32 s{sT0}, s{sRB}, {RBSZ}
          s_mul_i32 s{sT1}, s{sCB}, {7*8192}
          s_add_u32 s{sT0}, s{sT0}, s{sT1}
          s_lshl_b32 s{sT1}, s{sRB2}, 18
          s_lshl_b32 s{sT2}, s{sCB2}, 7
          s_add_u32 s{sT1}, s{sT1}, s{sT2}
          s_cmp_eq_u32 s{sW}, 0
          s_cselect_b32 s{sT0}, s{sT0}, {OOB}
          s_cselect_b32 s{sT1}, s{sT1}, {OOB}
          s_mov_b64 exec, 1""")
        a.vm(f"buffer_load_dword v250, v{vKVD}, s[{rWS}:{rWS+3}], s{sT0} offen sc1")
        a.vm(f"buffer_load_dword v250, v{vKVD}, s[{rD}:{rD+3}], s{sT1} offen sc1")
        a("s_mov_b64 exec, -1")
    a.wait(vm=[("kv", 1)])
    a.vmq[:] = [("kv", 2)] * 4 + [None if OPT["kvreg"] else ("kv", 3)] * 4
    a("s_barrier")
    attention_setup(4)
    a("s_barrier")

QF, OA, LA, SB, PB, KF, VF, ONES = 32, 48, 80, 88, 120, 136, 176, 168
vKc, vKn, vSy, vOne, vCnt, vIdx, vQa, vSt = 248, 249, 251, 252, 20, 255, 30, 31
vD, vDW = 240, 244
def wtile_offsets(dst):
    a(f"""v_lshrrev_b32 v22, 3, v0
      v_lshlrev_b32 v22, 11, v22
      v_and_b32 v23, 1, v2
      v_lshlrev_b32 v23, 2, v23
      v_and_b32 v24, 7, v0
      v_xor_b32 v23, v23, v24
      v_lshl_add_u32 v22, v23, 4, v22
      s_lshl_b32 s{sT0}, s{sCB2}, 7
      v_add_u32 v22, s{sT0}, v22""")
    for i in range(4): a(f"v_xor_b32 v23, {32*(i%2)}, v22\n v_add_u32 v{dst+i}, {i*16384-i*1024}, v23")
def lsum(z, P):
    a(f"v_smfmac_f32_16x16x64_bf16 {vr(LA+4*(z//2),4)}, {vr(ONES+4*(z%2),4)}, {vr(P,8)}, v{vIdx}")
sKo, sCn, sDo, sMb, sDs, sO0, sO1 = sA, sB, sC, sD, sE, sF, sG
def attention_setup(part):
    if part == 0: wtile_offsets(vDW)
    if part == 1:
        a(f"""s_lshl_b32 s{sT0}, s{sW}, 12
          s_add_u32 s{sT1}, s{sT0}, {QX}
          v_lshl_add_u32 v{vQa}, v0, 4, s{sT1}
          v_add_u32 v{vKc}, {KVR}, v{vKVD}
          v_mov_b32 v{vKn}, {SYNC}
          v_and_b32 v22, 2, v1
          v_mov_b32 v23, 0x3f803f80
          v_cmp_eq_u32 vcc, 0, v22
          v_lshl_add_u32 v{vSy}, v0, 2, v{vKn}
          v_sub_u32 v{vOne}, 1, v0
          v_max_i32 v{vOne}, 0, v{vOne}
          v_cndmask_b32 v{ONES}, 0, v23, vcc
          v_cndmask_b32 v{ONES+1}, 0, v23, vcc
          v_xor_b32 v{ONES+4}, v{ONES}, v23
          v_xor_b32 v{ONES+5}, v{ONES}, v23
          v_mov_b64 {vr(ONES+2,2)}, {vr(ONES,2)}
          v_mov_b64 {vr(ONES+6,2)}, {vr(ONES+4,2)}
          v_and_b32 v22, 1, v1
          v_mul_u32_u24 v22, 0xaaaa, v22
          v_or_b32 v{vIdx}, 0x4444, v22""")
    if part == 2:
        a(f"""v_and_b32 v22, 1, v2
          v_lshlrev_b32 v22, 9, v22
          v_lshrrev_b32 v23, 1, v2
          v_lshl_add_u32 v22, v23, 8, v22
          v_lshl_add_u32 v{vSt}, v1, 4, v22""")
        for r in range(4): a(f"v_mov_b32 v{vD+r}, v{vKVD}")
        for r in list(range(PB + 8, PB + 16, 2)) + list(range(VF + 16, VF + 32, 2)): a(f"v_mov_b64 {vr(r,2)}, 0")
    if part == 3:
        for r in range(OA, OA + 40, 2): a(f"v_mov_b64 {vr(r,2)}, 0")
    if part == 4:
        a(f"""s_lshl_b32 s{sT0}, s{sW}, 12
          s_mov_b32 s{sCn}, 4
          s_add_u32 s{sDo}, s{sT0}, {3*16384}
          s_mov_b32 s{sDs}, 16384
          s_mov_b32 s{sKo}, 16384
          s_add_u32 s{sMb}, s{sT0}, {KVR}
          s_mul_i32 s{sO0}, s{sRB}, {RBSZ}
          s_lshl_b32 s{sT1}, s{sQB}, 14
          s_add_u32 s{sO0}, s{sO0}, s{sT1}
          s_lshl_b32 s{sT1}, s{sW}, 11
          s_add_u32 s{sO0}, s{sO0}, s{sT1}
          s_add_u32 s{sO0}, s{sO0}, {112*8192}
          s_add_u32 s{sO1}, s{sO0}, 8192
          s_mov_b32 s{sIT}, 0""")
def attention():
    kvo = lambda T: ((T // 4 + 2) % 4) * 16384 + (T % 4) * 4096
    def rdK(U, e):
        for k_ in range(2): a.lg(f"ds_read_b128 {vr(KF+16*(U%2)+8*e+4*k_,4)}, v{vKc} offset:{kvo(2*U+e)+1024*k_}", "kv")
    def rdV(U, e):
        for k_ in range(2): a.lg(f"ds_read_b128 {vr(VF+16*(U%2)+8*e+4*k_,4)}, v{vKc} offset:{kvo(2*U+e)+2048+1024*k_}", "kv")
    a.lg(f"ds_read_b128 {vr(QF,4)}, v{vQa}")
    rdK(0, 0); rdK(0, 1)
    a.lgq[-1] = "k0"
    a.lg(f"ds_read_b128 {vr(QF+4,4)}, v{vQa} offset:1024", "q1")
    for i in range(2, 4): a.lg(f"ds_read_b128 {vr(QF+4*i,4)}, v{vQa} offset:{1024*i}")
    rdV(0, 0); rdV(0, 1)
    a.wait(lg="k0")
    for k_ in range(4): mf16(SB + 4 * k_, KF + 4 * k_, QF, "0")
    a.wait(lg="q1")
    a("s_nop 3")
    a.raw(".p2align 3")
    cm("attention: S^T = K Q^T, P = exp2(S), O^T += V^T P, row sums by a sparse MFMA; K/V stream through a 4-slot LDS ring.\nZero stands in for the row maximum here; the check after the loop falls back to the true maximum (L_slow)")
    a.label("L_att")
    def pv(k_, U, z, P): e_ = int(k_ in (1, 2)); mf16(OA + 8 * z + 4 * (k_ // 2), VF + 16 * (U % 2) + 8 * e_ + 4 * (k_ // 2), P + 4 * e_)
    def slot(n, hooks):
        U1, z1 = divmod(n + 1, 4); Up, zp = divmod(n - 1, 4)
        S = SB + 16 * (n % 2); S1 = SB + 16 * ((n + 1) % 2)
        P = PB + 8 * (n % 2); Pp = PB + 8 * ((n - 1) % 2)
        ne = nc = 0
        for ch in OPT["pat"]:
            if ch == "e": a(f"v_exp_f32 v{S+ne}, v{S+ne}"); ne += 1
            elif ch == "c": assert ne >= 2 * nc + 2; a(f"v_cvt_pk_bf16_f32 v{P+nc}, v{S+2*nc}, v{S+2*nc+1}"); nc += 1
            elif ch == "w": a.wait(lg=["kv", "cnt"], vm=hooks.get("vm", ()))
            elif ch in "qrst": k_ = "qrst".index(ch); mf16(S1 + 4 * k_, KF + 16 * (U1 % 2) + 4 * k_, QF + 4 * z1, "0")
            elif ch in "uvxy": pv("uvxy".index(ch), Up, zp, Pp)
            elif ch == "S": lsum(zp, Pp)
            else:
                for f in hooks.get(int(ch), []): f()
        assert ne == 16 and nc == 8
        pt = OPT["pat"]; assert pt.index("4") > pt.index("w")
    def body(it):
        for cc in range(4):
            c_ = 4 * it + cc
            for k in range(8):
                n = 8 * c_ + k; U, z = divmod(n, 4)
                hk = {4: [lambda: rdK(U + 1, z) if z < 2 else rdV(U + 1, z - 2)]}
                KA = OPT["arrk"]
                if k == KA:
                    hk["vm"] = ("kv", c_ + 1); hk[4].append(lambda: a.lg(f"ds_add_u32 v{vSy}, v{vOne}"))
                if k == 1:
                    hk[0] = [lambda: a(f"s_add_u32 m0, s{sMb}, {((c_+1)%4)*16384}")]
                    if cc == 1: hk[1] = [lambda: a(f"s_cmp_eq_u32 s{sIT}, 3")]; hk[2] = [lambda: (a("s_cbranch_scc1 L_attwo"), a.label("L_attwo_r"))]
                if k == 2: hk[4].append(lambda: a.lg(f"ds_read_b32 v{vCnt}, v{vKn}", "cnt"))
                if k == 3: hk[5] = [lambda: a(f"v_cmp_gt_u32 vcc, s{sCn}, v{vCnt}")]
                pre_ = cc <= OPT["kvreg"]
                if k == 4:
                    hk[0] = [lambda: (a(f"s_cbranch_vccnz L_attspin{cc}"), a.label(f"L_attgo{cc}"))]
                    hk[1] = [lambda: a(f"s_add_u32 s{sCn}, s{sCn}, 4")]
                    if pre_: hk[2] = [lambda: a(f"s_cmp_eq_u32 s{sIT}, 0")]
                if k in (4, 5):
                    def dma(i):
                        if OPT["anodma"]: return
                        if pre_: a(f"s_cbranch_scc1 L_{'no' if cc == 0 else 'reg'}dma{cc}_{i}")
                        for k2 in (i, i + 1):
                            t_ = f"buffer_load_dwordx4 v{vD+k2}, s[{rE}:{rE+3}], s{sDo} offen offset:{1024*k2} sc1 lds"
                            a.vm(t_, ("kv", c_ + 3)) if c_ > OPT["kvreg"] else a(t_)
                        if pre_: a.label(f"L_nodma{cc}_{i}")
                    if OPT["dpos"] == 0: hk[4].append(lambda: dma(2 * (k - 4)))
                    elif OPT["dpos"] == 1: hk[4].insert(0, lambda: dma(2 * (k - 4)))
                    else: hk[6] = [lambda: dma(2 * (k - 4))]
                if k == 7:
                    hk[0] = [lambda: a(f"s_add_u32 s{sDo}, s{sDo}, s{sKo if cc == 1 else sDs}")]
                    if cc == 3: hk[1] = [lambda: a(f"s_add_u32 s{sIT}, s{sIT}, 1")]; hk[2] = [lambda: a(f"s_cmp_lt_u32 s{sIT}, 4")]
                slot(n, hk)
        a("s_cbranch_scc1 L_att")
    a.loop(body, "att", 3)
    a("s_nop 0")
    lsum(3, PB + 8)
    if OPT["hrel"]: a(f"ds_add_u32 v{vSy}, v{vOne}")
    for k_ in range(4): pv(k_, 31, 3, PB + 8)
    stamp("a_att")
    a(f"s_mov_b32 s{sIT}, 0")
    cm('O * gate / rowsum -> workspace')
    a.label("L_attfin")
    def fin(k):
        T_ = SB + 4 * k
        a(f"v_permlane16_swap_b32 v{T_}, v{T_+2}\n v_permlane16_swap_b32 v{T_+1}, v{T_+3}")
        a(f"buffer_store_dwordx4 {vr(T_,4)}, v{vSt}, s[{rWS}:{rWS+3}], s{sO0+k//2} offen offset:{1024*(k%2)} sc1")
    for k in range(4):
        a(f"v_add_f32 v{24+k}, v{LA+2*k}, v{LA+2*k+1}")
        a(f"v_rcp_f32 v22, v{24+k}")
        if k: fin(k - 1)
        else: a("s_nop 0")
        a(f"v_mul_f32 v22, v22, v{vG+k%2}")
        for r in range(4):
            d = OA + 8 * k + 2 * r
            a(f"v_mul_f32 v{d}, v{d}, v22\n v_mul_f32 v{d+1}, v{d+1}, v22\n v_cvt_pk_bf16_f32 v{SB+4*k+r}, v{d}, v{d+1}")
    a("s_nop 1"); fin(3)
    a(f"s_cmp_lg_u32 s{sIT}, 0\n s_cbranch_scc1 L_attok")
    a(f"s_waitcnt vmcnt(4) lgkmcnt(0)\n ds_add_u32 v{vSy}, v{vOne} offset:12")
    cm('stand-in check: every row sum in [2^-40, 2^100] and nothing infinite or NaN, else redo with the true maximum')
    a(f"s_mov_b32 s{sT0}, {f2u(2.0**-40)}\n s_mov_b32 s{sT1}, {f2u(2.0**100)}\n v_max3_f32 v28, v24, v25, v26\n v_max_f32 v28, v28, v27\n v_mov_b32 v29, 0")
    for r in list(range(OA, OA + 32, 2)) + [24, 26]: a(f"v_pk_fma_f32 v[28:29], {vr(r,2)}, 0, v[28:29]")
    a(f"""v_add_f32 v28, v28, v29
      v_min3_f32 v29, v24, v25, v26
      v_min_f32 v29, v29, v27
      v_cmp_nle_f32 vcc, v28, s{sT1}
      v_cmp_nge_f32 s[{sT2}:{sT3}], v29, s{sT0}
      s_or_b64 vcc, vcc, s[{sT2}:{sT3}]""")
    if OPT["forceslow"]: a("s_branch L_slow")
    a("s_cbranch_vccnz L_slow")
    a.label("L_attok")
    setflag(1)
    stamp("a_end")
    if OPT["padto"]:
        a("s_barrier\n s_barrier" if OPT["ebar"] else "s_barrier")
        a.label("L_pad2")
        a(f"s_memrealtime s[98:99]\n s_waitcnt lgkmcnt(0)\n s_sleep 8\n s_sub_u32 s98, s98, s96\n s_cmp_lt_u32 s98, {OPT['padto']}\n s_cbranch_scc1 L_pad2")
    dump_ts_and_end()
    a.label("L_attwo")
    srd(rE, pWO, 1024 * 2048)
    a(f"s_lshl_b32 s{sDo}, s{sW}, 17\n s_add_u32 s{sDo}, s{sDo}, {524288+65536}\n s_mov_b32 s{sDs}, 65536\n s_mov_b32 s{sKo}, {2*524288-65536}")
    a(f"v_mov_b64 {vr(vD,2)}, {vr(vDW,2)}\n v_mov_b64 {vr(vD+2,2)}, {vr(vDW+2,2)}\n s_branch L_attwo_r")
    for cc in range(1, OPT["kvreg"] + 1):
        for i in (() if OPT["anodma"] else (0, 2)):
            a.label(f"L_regdma{cc}_{i}")
            if i == 0: a(f"s_waitcnt vmcnt(0)\n v_add_u32 v22, s{sMb}, v{vKVD}")
            for k2 in (i, i + 1): a(f"ds_write_b128 v22, {vr(KVREG+16*(cc-1)+4*k2,4)} offset:{((cc+1)%4)*16384+1024*k2}")
            a(f"s_branch L_nodma{cc}_{i}")
    for cc in range(4):
        a.label(f"L_attspin{cc}")
        a(f"s_mov_b32 s{sT2}, {SPIN_MAX}")
        a.label(f"L_attspin{cc}b")
        a(f"""ds_read_b32 v{vCnt}, v{vKn}
          s_waitcnt lgkmcnt(0)
          v_cmp_gt_u32 vcc, s{sCn}, v{vCnt}
          s_sub_u32 s{sT2}, s{sT2}, 1
          s_cbranch_vccz L_attgo{cc}
          s_cmp_lg_u32 s{sT2}, 0
          s_cbranch_scc1 L_attspin{cc}b
          s_branch L_attgo{cc}""")
    cm('exact path: pass 1 finds the true row maximum, pass 2 subtracts it (through the accumulator input of the score MFMA)')
    a.label("L_slow")
    NM = 208
    a(f"s_add_u32 s{rE}, s{pWS}, {KV_OFF}\n s_addc_u32 s{rE+1}, s{pWS+1}, 0\n s_mov_b32 s{rE+2}, 0x40000\n s_mov_b32 s{rE+3}, 0x20000")
    a(f"s_waitcnt vmcnt(0) lgkmcnt(0)\n s_mov_b32 s{sT0}, 0\n s_mov_b32 s{sIT}, 1")
    for k in range(4): a(f"v_mov_b32 v{24+k}, 0xff800000")
    a.label("L_slow1")
    a(f"buffer_load_dwordx4 {vr(KF,4)}, v{vKVD}, s[{rE}:{rE+3}], s{sT0} offen sc1\n buffer_load_dwordx4 {vr(KF+4,4)}, v{vKVD}, s[{rE}:{rE+3}], s{sT0} offen offset:1024 sc1\n s_waitcnt vmcnt(0)")
    for k in range(8): mf16(SB + 4 * k, KF + 4 * (k % 2), QF + 4 * (k // 2), "0")
    a("s_nop 7")
    for k in range(4):
        for r in range(0, 8, 2): a(f"v_max3_f32 v{24+k}, v{SB+8*k+r}, v{SB+8*k+r+1}, v{24+k}")
    a(f"s_add_u32 s{sT0}, s{sT0}, 4096\n s_cmp_lt_u32 s{sT0}, 0x40000\n s_cbranch_scc1 L_slow1")
    for sw in ("16", "32"):
        for k in range(4): a(f"v_mov_b32 v{16+k}, v{24+k}")
        a("s_nop 1")
        for k in range(4): a(f"v_permlane{sw}_swap_b32 v{24+k}, v{16+k}")
        for k in range(4): a(f"v_max_f32 v{24+k}, v{24+k}, v{16+k}")
    for k in range(4):
        for r in range(4): a(f"v_sub_f32 v{NM+4*k+r}, 0, v{24+k}")
    for r in range(OA, OA + 40, 2): a(f"v_mov_b64 {vr(r,2)}, 0")
    a(f"s_mov_b32 s{sT0}, 0")
    a.label("L_slow2")
    for e_ in range(2):
        for i in range(4):
            a(f"buffer_load_dwordx4 {vr((KF if i < 2 else VF)+8*e_+4*(i%2),4)}, v{vKVD}, s[{rE}:{rE+3}], s{sT0} offen offset:{1024*i} sc1")
        a(f"s_add_u32 s{sT0}, s{sT0}, 4096")
    a("s_waitcnt vmcnt(0)")
    for z in range(4):
        for k in range(4): mf16(SB + 4 * k, KF + 4 * k, QF + 4 * z, vr(NM + 4 * z, 4))
        a("s_nop 7")
        for r in range(16): a(f"v_exp_f32 v{SB+r}, v{SB+r}")
        for r in range(8): a(f"v_cvt_pk_bf16_f32 v{PB+r}, v{SB+2*r}, v{SB+2*r+1}")
        a("s_nop 1")
        for k in range(4): pv(k, 0, z, PB)
        lsum(z, PB)
    a(f"s_cmp_lt_u32 s{sT0}, 0x40000\n s_cbranch_scc1 L_slow2")
    a("s_nop 7\n s_nop 3\n s_branch L_attfin")

def setflag(which):
    if which == 0: a(f"s_lshr_b32 s{sT1}, s{sCB}, 2\n s_and_b32 s{sT2}, s{sCB}, 3")
    else: a(f"s_and_b32 s{sT1}, s{sQB}, 3\n s_and_b32 s{sT2}, s{sQB}, 12\n s_lshr_b32 s{sT2}, {sum(k << (4 * g) for k, g in enumerate(GRP))}, s{sT2}\n s_and_b32 s{sT2}, s{sT2}, 3")
    a(f"""s_lshl_b32 s{sT0}, s{sRB}, 13
      s_lshl_b32 s{sT1}, s{sT1}, 7
      s_add_u32 s{sT0}, s{sT0}, s{sT1}
      s_lshl2_add_u32 s{sT0}, s{sT2}, s{sT0}
      s_add_u32 s{sT0}, s{sT0}, {FL_OFF+16*which}
      v_mov_b32 v17, {SYNC+4+4*which}
      v_mov_b32 v15, 1""")
    if which == 0:
        if OPT["noack"] < 2: a.wait(vm="hst")
    elif OPT["noack"] & 1: a("s_waitcnt vmcnt(4)")
    else: a.wait0(lg=False)
    l = a.newlabel("L_nofl")
    a(f"""s_mov_b64 exec, 1
      ds_add_rtn_u32 v16, v17, v15
      s_mov_b64 exec, 0xffff
      v_lshlrev_b32 v17, 9, v0
      s_waitcnt lgkmcnt(0)
      v_readfirstlane_b32 s{sT1}, v16
      s_cmp_eq_u32 s{sT1}, 3
      s_cbranch_scc0 {l}
      buffer_store_dword v15, v17, s[{rWS}:{rWS+3}], s{sT0} offen {OPT['sfl'].replace('_', ' ')}""")
    a.label(l)
    a("s_mov_b64 exec, -1")
    a.lgq.clear()
def mbox(which):
    a(f"""s_lshl_b32 s{sT0}, s{sRB2}, 4
      s_add_u32 s{sT0}, s{sT0}, s{sCB2}
      s_lshl_b32 s{sT0}, s{sT0}, 2
      s_add_u32 s{sT0}, s{sT0}, s{sW}
      s_lshl_b32 s{sT0}, s{sT0}, 7
      s_add_u32 s{sT0}, s{sT0}, {FL_OFF+16*which}
      v_and_b32 v15, 3, v0
      v_lshlrev_b32 v15, 2, v15""")
def waitflag(which, name):
    mbox(which)
    a(f"s_mov_b32 s{sT1}, {SPIN_MAX}\n s_mov_b64 exec, 15")
    a.label(name)
    a(f"""buffer_load_dword v17, v15, s[{rWS}:{rWS+3}], s{sT0} offen {OPT['pfl'].replace('_', ' ')}
      s_waitcnt vmcnt(0)
      v_cmp_ne_u32 vcc, 1, v17
      s_sub_u32 s{sT1}, s{sT1}, 1
      s_cbranch_vccz {name}_x
      s_sleep {OPT['slp']}
      s_cmp_lg_u32 s{sT1}, 0
      s_cbranch_scc1 {name}""")
    a.label(name + "_x")
    a("s_mov_b64 exec, -1")
def waitlds(off, val, name, va=15):
    a(f"s_mov_b32 s{sT1}, {SPIN_MAX}\n v_mov_b32 v{va}, {SYNC+off}")
    a.label(name)
    a(f"""ds_read_b32 v17, v{va}
      s_waitcnt lgkmcnt(0)
      v_readfirstlane_b32 s{sT0}, v17
      s_cmp_ge_u32 s{sT0}, {val}
      s_cbranch_scc1 {name}_x
      s_sleep 2
      s_sub_u32 s{sT1}, s{sT1}, 1
      s_cmp_lg_u32 s{sT1}, 0
      s_cbranch_scc1 {name}""")
    a.label(name + "_x")

ACC2, HR, WF = 128, 64, 32
acc2 = lambda rt, nt: ACC2 + (rt * 4 + nt) * 4
vWD, vWR, vH, vGM = 3, 7, 11, 16
sWo, sHo, sMw, sRdy = sC, sD, sE, sF
def g2_vsetup():
    wtile_offsets(vWD)
    a(f"""s_lshl_b32 s{sT0}, s{sW}, 14
      v_lshrrev_b32 v14, 2, v1
      v_lshl_add_u32 v14, v2, 3, v14
      v_and_b32 v15, 3, v1
      v_lshlrev_b32 v15, 3, v15
      v_lshl_add_u32 v14, v14, 7, v15
      v_and_b32 v15, 1, v2
      v_lshrrev_b32 v30, 3, v1
      v_lshl_add_u32 v15, v30, 1, v15
      v_lshl_add_u32 v14, v15, 5, v14
      v_add_u32 v14, s{sT0}, v14""")
    for nt in range(4): a(f"v_xor_b32 v{vWR+nt}, {32*nt}, v14")
    for p in range(4):
        a(f"s_add_u32 s{sT0}, s{sW}, {p+1}\n s_and_b32 s{sT0}, s{sT0}, 3\n s_lshl_b32 s{sT0}, s{sT0}, 11\n v_lshl_add_u32 v{vH+p}, v0, 4, s{sT0}")
def g2_setup():
    srd(rB, pW2, 3584 * 2048)
    a(f"s_lshl_b32 s{sMw}, s{sW}, 14\n s_mul_i32 s{sWo}, s{sW}, {896*2048}")
def dmaW(i, k):
    if k == 0: a(f"s_add_u32 m0, s{sMw}, {(i%4)*4096}\n s_nop 0")
    a.vm(f"buffer_load_dwordx4 v{vWD+k}, s[{rB}:{rB+3}], s{sWo} offen offset:{1024*k} lds", ("W2", i // 2))
    if k == 3: a(f"s_add_u32 s{sWo}, s{sWo}, 65536")
def g_phase2():
    sHp, sMbx, sOb, sDl = sB, 4, 5, 6
    vPo = 29
    def ldH(i, rt):
        a.vm(f"buffer_load_dwordx4 {vr(HR+32*(i%2)+4*rt,4)}, v{vH+rt//2}, s[{rWS}:{rWS+3}], s{sHp if i % 2 else sHo} offen offset:{1024*(rt%2)} sc1", ("H", i // 2, rt // 2))
    WOFF = {32: 0, 33: 49152, 34: 49152, 35: 0}
    def rdW2(i, nt, e):
        a.lg(f"ds_read_b64_tr_b16 {vr(WF+16*(i%2)+4*nt+2*e,2)}, v{vWR+nt} offset:{WOFF.get(i, (i%4)*4096)+512*e}", ("W2", i // 2, nt))
    cm('G, phase 2: out tile [128 x 64] = (1-g) (hidden W2 + b2) + (g O) Wo, K split over the four waves')
    setflag(0)
    stamp("g_flag")
    if OPT["nog2"]: dump_ts_and_end()
    for i in range(OPT["wpre"], 4):
        for k in range(4): dmaW(i, k)
    a(f"""s_mul_i32 s{sHo}, s{sRB2}, {RBSZ}
      s_mul_i32 s{sT1}, s{sW}, {28*8192}
      s_add_u32 s{sHo}, s{sHo}, s{sT1}
      s_lshl_b32 s{sT2}, s{sRB2}, 9
      s_add_u32 s{sT2}, s{sT2}, {G_OFF}
      v_lshlrev_b32 v15, 2, v1""")
    for p in range(4):
        a(f"""s_add_u32 s{sT0}, s{sW}, {p+1}
          s_and_b32 s{sT0}, s{sT0}, 3
          s_lshl_b32 s{sT0}, s{sT0}, 7
          s_add_u32 s{sT0}, s{sT0}, s{sT2}""")
        for h in range(2): a(f"buffer_load_dword v{vGM+4*p+2*h}, v15, s[{rWS}:{rWS+3}], s{sT0} offen offset:{64*h} sc1")
    if OPT["loc2"]:
        a(f"""s_bfe_u32 s{sT0}, s2, {hex(((3-LC) << 16) + LC)}
          s_lshl_b32 s{sT0}, s{sT0}, 5
          s_add_u32 s{sT3}, s{sT0}, s{sI}
          s_lshl_b32 s{sT0}, s{sW}, {8-LC}
          s_add_u32 s{sT0}, s{sT0}, s{sT3}
          s_lshr_b32 s{sG}, s{sT0}, {7-LC}
          s_bfe_u32 s{sT1}, s{sT0}, {hex(0x20000 + 5 - LC)}
          s_mul_i32 s{sT1}, s{sT1}, {896*2048}
          s_and_b32 s{sT0}, s{sT0}, {(32 >> LC) - 1}
          s_lshl_b32 s{sT0}, s{sT0}, {13+LC}
          s_add_u32 s{sT0}, s{sT0}, s{sT1}
          s_add_u32 s{sT1}, s{sG}, 2
          s_lshl_b32 s{sT1}, s{sT1}, 18
          s_add_u32 s{sT0}, s{sT0}, s{sT1}
          s_cmp_eq_u32 s{sG}, 5
          s_cselect_b32 s{sG}, -1, s{sG}
          s_lshl_b32 s{sT1}, s{sT3}, {13+LC}
          s_and_b32 s{sT2}, s{sCB2}, {(1 << LC) - 1}
          s_lshl_b32 s{sT2}, s{sT2}, 7
          s_add_u32 s{sT0}, s{sT0}, s{sT2}
          s_add_u32 s{sT1}, s{sT1}, s{sT2}
          s_and_b32 s{sT2}, s{sI}, 1
          s_add_u32 s{sT2}, s{sT2}, {OPT["woit"]}""")
    else:
        if OPT["ev2"]: a(f"s_lshl_b32 s{sT0}, s{sW}, 8\n s_add_u32 s{sT0}, s{sT0}, s2")
        else: a(f"s_lshl_b32 s{sT0}, s2, 1\n s_add_u32 s{sT0}, s{sT0}, s{sW}\n s_add_u32 s{sT1}, s2, 512\n s_cmp_eq_u32 s{sW}, 2\n s_cselect_b32 s{sT0}, s{sT1}, s{sT0}")
        a(f"""
          s_lshr_b32 s{sG}, s{sT0}, 7
          s_bfe_u32 s{sT1}, s{sT0}, 0x20005
          s_mul_i32 s{sT1}, s{sT1}, {896*2048}
          s_and_b32 s{sT0}, s{sT0}, 31
          s_lshl_b32 s{sT0}, s{sT0}, 13
          s_add_u32 s{sT0}, s{sT0}, s{sT1}
          s_add_u32 s{sT1}, s{sG}, 2
          s_lshl_b32 s{sT1}, s{sT1}, 18
          s_add_u32 s{sT0}, s{sT0}, s{sT1}
          s_cmp_eq_u32 s{sG}, 5
          s_cselect_b32 s{sG}, -1, s{sG}
          s_lshl_b32 s{sT1}, s2, 13
          s_and_b32 s{sT2}, s{sI}, 1""")
    a(f"""
      s_cmp_eq_u32 s{sW}, 3
      s_cselect_b32 s{sA}, s{sT1}, s{sT0}
      s_cselect_b32 s{sG}, s{sT2}, s{sG}
      s_cselect_b32 s{rPF}, s{pWO}, s{pW2}
      s_cselect_b32 s{rPF+1}, s{pWO+1}, s{pW2+1}
      s_mov_b32 s{sT0}, {3584*2048}
      s_cselect_b32 s{rPF+2}, {1024*2048}, s{sT0}
      s_mov_b32 s{rPF+3}, 0x20000""")
    if OPT["ev2"] and not OPT["loc2"]: a(f"s_bitcmp1_b32 s2, 0\n s_cselect_b32 s{sG}, -1, s{sG}")
    stamp("g_pw")
    waitflag(0, "L_wh")
    stamp("g_wf")
    a.vmq.clear(); a.lgq.clear()
    rds = lambda D, nt: [lambda e_=e_, k=k: rdW2(2 * D + e_, nt, k) for e_ in range(2) for k in range(2)]
    def ldP(D, ps):
        for p in ps:
            for h in range(2): ldH(2 * D, 2 * p + h); ldH(2 * D + 1, 2 * p + h)
    pend = []
    def dstep(D, fine, extra={}, at={}):
        for p in range(4):
            ex = list(extra.get(p, [])); lq = []
            if p in at: at[p]()
            if p in (1, 2) and D < 14: lq = [lambda k=k: dmaW(2 * D + 3 + p, k) for k in range(4)]
            if OPT["gdma"] and fine and D < 14 and p == 0:
                lq = [lambda: None, lambda: None] + [lambda k=k: (a(f"s_add_u32 m0, s7, {KVR + (D % 2) * 16384}\n s_add_u32 s8, s8, 16384") if k == 0 else None,
                      a.vm(f"buffer_load_dwordx4 v{vH+3}, s[{rWS}:{rWS+3}], s8 offen offset:{1024*k} sc1 lds")) for k in range(4)]
            for nt in range(4):
                if p == 0: lgw = [("W2", D, nt)] if fine else ([("W2", D, nt + 1)] if nt % 2 == 0 else [])
                else: lgw = []
                a.wait(vm=([("H", D, p)] + ([("W2", D + 1)] if p == 3 else [])) if nt == 0 else [], lg=lgw)
                if OPT["chain"]: seq = [(nt % 2, 0), (nt % 2, 1), (1 - nt % 2, 1), (1 - nt % 2, 0)]
                else: seq = [(0, 0), (1, 0), (1, 1), (0, 1)]
                for n, (h, e) in enumerate(seq):
                    first = (h, 1 - e) not in seq[:n]
                    mf16(acc2(2 * p + h, nt), WF + 16 * e + 4 * nt, HR + 32 * e + 4 * (2 * p + h), "0" if D == 0 and first else None)
                    if fine:
                        if pend: pend.pop(0)()
                        if nt == 3 and D < 17: ldH(2 * D + 2 + e, 2 * p + h)
                        elif lq and n % 2: lq.pop(0)()
                        x = ex.pop(0) if ex else None
                        if callable(x): x()
                        elif x: a(x)
                if p == 3 and D < 17: pend.extend(rds(D + 1, nt))
                if not fine and nt == 1:
                    while pend: pend.pop(0)()
                    while lq: lq.pop(0)()
                    if OPT["gdma"] and p in (0, 3):
                        a(f"s_add_u32 m0, s7, {KVR + (D % 2) * 16384}\n s_nop 0")
                        for k in ((0, 1) if p == 0 else (2, 3)): a.vm(f"buffer_load_dwordx4 v{vH+3}, s[{rWS}:{rWS+3}], s8 offen offset:{1024*k} sc1 lds")
                        if p == 3: a("s_add_u32 s8, s8, 16384")
                if not fine and nt == 3:
                    if (p, "ld") in at: at[p, "ld"]()
                    ldP(D + 1, [p])
            assert not ex and not lq
        if D < 12: a(f"s_add_u32 s{sHo}, s{sHo}, 16384\n s_add_u32 s{sHp}, s{sHp}, 16384")
    for nt in range(4):
        for f in rds(0, nt): f()
    a(f"s_add_u32 s{sHp}, s{sHo}, 8192")
    ldP(0, range(4))
    a(f"s_add_u32 s{sHo}, s{sHo}, 16384\n s_add_u32 s{sHp}, s{sHp}, 16384")
    for rt in range(8): a(f"v_sub_f32 v{vGM+2*rt}, 1.0, v{vGM+2*rt}")
    stamp("g_l2")
    a(f"s_setprio {OPT['g2prio']}\n s_mov_b32 s{sIT}, 0")
    if OPT["gdma"]: a(f"s_lshl_b32 s7, s{sW}, 12\n s_lshl_b32 s8, s{sW}, 11\n s_add_u32 s8, s8, {KV_OFF}")
    fine = [not int(c) for c in OPT["gp"][1:3]]
    dstep(0, fine[1])
    stamp("g_s0")
    a.raw(".p2align 3")
    cm('FFN double steps (runs beside the attention waves)')
    a.label("L_g2loop")
    def body(it):
        if OPT["pf2"]: a(f"s_cmp_eq_u32 s{sIT}, s{sG}\n s_cbranch_scc1 L_hookF"); a.label("L_hookF_r")
        dstep(2 * it + 1, fine[0])
        snap[:] = [list(a.vmq), list(a.lgq), len(pend), 11 - (2 * it + 1)]
        a(f"s_cmp_ge_u32 s{sIT}, 4\n s_cbranch_scc1 L_hookW"); a.label("L_hookW_r")
        dstep(2 * it + 2, fine[1])
        a(f"s_add_u32 s{sIT}, s{sIT}, 1\n s_branch L_g2loop")
    snap = []
    a.loop(body, "g2")
    a.label("L_g2end")
    sh = lambda q: [x and (x[0], x[1] + snap[3]) + x[2:] for x in q]
    a.vmq[:] = sh(snap[0]); a.lgq[:] = sh(snap[1])
    pend[:] = [f for nt in range(4) for f in rds(12, nt)][16 - snap[2]:]
    ret = lambda l: a(f"s_branch {l}")
    a(f"s_mov_b32 s{rB}, s{pWO}\n s_mov_b32 s{rB+1}, s{pWO+1}\n s_mov_b32 s{rB+2}, {1024*2048}\n s_lshl_b32 s{sWo}, s{sW}, 17\n s_add_u32 s{sWo}, s{sWo}, {GRP[0]*524288}")
    if OPT["hold"] != "xffff":
        cm("workgroups whose attention results are used first keep their last FFN steps back until their attention is done")
        a("s_bitcmp1_b32 s2, 0\n s_cbranch_scc1 L_hold_x")
        if OPT["hrel"]: waitlds(0, 64 + OPT["hrel"], "L_hold")
        else: waitlds(12, 4, "L_hold")
    cm("last FFN double step, then the output projection: four producers in a fixed order, looked up in this wave's mailbox")
    mbox(1)
    a(f"""s_mov_b32 s{sMbx}, s{sT0}
      s_mul_i32 s{sOb}, s{sRB2}, {RBSZ}
      s_add_u32 s{sOb}, s{sOb}, s{sMw}
      s_lshl_b32 s{sDl}, s{sW}, 12
      s_add_u32 s{sDl}, s{sDl}, {QX}
      s_sub_u32 s{sDl}, s{sDl}, s{sMw}""")
    def poll(): a.vm(f"buffer_load_dword v{vPo}, v15, s[{rWS}:{rWS+3}], s{sMbx} offen sc1", "poll")
    chk = lambda sl: f"""v_cmp_eq_u32 vcc, 1, v{vPo}
      s_add_u32 s{sHo}, s{sOb}, {(112+8*GRP[sl])*8192}
      s_bitcmp1_b32 vcc_lo, {sl}
      s_cselect_b32 s{sRdy}, 1, 0
      s_cselect_b32 s{sHo}, s{sHo}, {OOB}
      s_add_u32 s{sHp}, s{sHo}, 8192""".split("\n")
    behind = {}
    def npoll(): return a.vmq[::-1].index("poll") if "poll" in a.vmq else 62
    def again(sl):
        behind["s", sl] = npoll()
        a(f"s_cmp_eq_u32 s{sRdy}, 0\n s_cbranch_scc1 L_sec{sl}")
        a.label(f"L_sec{sl}_r")
        poll()
    def join(sl):
        behind["b", sl] = npoll()
        a(f"s_cmp_eq_u32 s{sRdy}, 0\n s_cbranch_scc1 L_blk{sl}")
        a.label(f"L_join{sl}")
        a.vmq[:] = [("H", 14 + sl, p) for p in range(4) for _ in range(4)]
    def late(sl):
        a.label(f"L_sec{sl}")
        a(f"s_waitcnt vmcnt({behind['s', sl]})")
        a("\n".join(chk(sl)))
        a(f"s_cmp_eq_u32 s{sRdy}, 0\n s_cbranch_scc1 L_sec{sl}_r")
        ldP(14 + sl, (0, 1))
        a(f"s_branch L_sec{sl}_r")
        a.label(f"L_blk{sl}")
        a(f"s_mov_b32 s{sT5}, {SPIN_MAX}\n s_waitcnt vmcnt({behind['b', sl]})\n s_branch L_blk{sl}b")
        a.label(f"L_blk{sl}a")
        a(f"s_sleep {OPT['slp']}"); poll(); a.wait0(lg=False)
        a(f"s_sub_u32 s{sT5}, s{sT5}, 1\n s_cbranch_scc0 L_blk{sl}b\n v_mov_b32 v{vPo}, 1")
        a.label(f"L_blk{sl}b")
        a("\n".join(chk(sl)))
        a(f"s_cmp_eq_u32 s{sRdy}, 0\n s_cbranch_scc1 L_blk{sl}a")
        ldP(14 + sl, range(4))
        a(f"s_branch L_join{sl}")
    two = lambda l_: ["\n".join(l_[k:k+2]) for k in range(0, len(l_), 2)]
    dstep(12, OPT["f12"], at={OPT['pp']: poll})
    stamp("g_25")
    a(f"s_add_u32 s{sWo}, s{sWo}, {((GRP[1]-GRP[0])*524288-131072) & 0xffffffff}")
    if OPT["f13"]: dstep(13, True, {0: [None] * 7 + [lambda: a.wait(vm="poll")] + two(chk(0)) + [poll]}, {2: lambda: again(0)})
    else: dstep(13, False, at={(0, "ld"): lambda: (a.wait(vm="poll"), a("\n".join(chk(0))), poll()), 2: lambda: again(0)})
    srd(rA, pB2, 2048); srd(rC, pOUT, 2048 * 2048)
    while pend: pend.pop(0)()
    join(0)
    stamp("g_hook")
    sc = lambda p: [f"v_pk_mul_f32 {vr(ACC2+32*p+16*h+4*nt+r,2)}, {vr(ACC2+32*p+16*h+4*nt+r,2)}, {vr(vGM+4*p+2*h,2)} op_sel_hi:[1,0]"
                    for nt in range(4) for h in range(2) for r in (0, 2)]
    for x in sc(0): a(x)
    vS0, vS1, vB2 = 3, 4, 18
    def wr(p, k):
        if OPT["nowr"]: return
        if p < 2: a.lg(f"ds_write_b128 v{vS0}, {vr(ACC2+32*p+4*k,4)} offset:{8192*p+1024*k}")
        else: a.lg(f"ds_write_b128 v{vS1}, {vr(ACC2+32*p+4*k,4)} offset:{16384*(k//4)+1024*(k%4)}")
    OWN = ACC2 + 96
    vRd = [5, 6, 16]; vTw = [11, 12, 13, 14]; vTr, vOo = 26, 27
    sc2 = lambda p: ["\n".join(f"v_mul_f32 v{ACC2+32*p+16*h+4*nt+r+u}, v{vGM+4*p+2*h}, v{ACC2+32*p+16*h+4*nt+r+u}" for u in range(2))
                     for nt in range(4) for h in range(2) for r in (0, 2)]
    extra = {(0, p): sc2(p + 1) for p in range(3)}
    two = lambda l_: ["\n".join(l_[k:k+2]) for k in range(0, len(l_), 2)]
    wp = lambda sl: a(f"s_waitcnt vmcnt({behind['b', sl]})")
    for D in (1, 2): extra[D, 0] = [None] * 7 + [lambda D=D: wp(D)] + two(chk(D + 1)) + [poll]
    t_ = f"""s_lshl_b32 s{sT0}, s{sCB2}, 7
      v_lshlrev_b32 v16, 3, v2
      v_lshl_add_u32 v{vS0}, v0, 4, s{sMw}
      v_add_u32 v{vS1}, s{sDl}, v{vS0}""".split("\n")
    extra[1, 2] = [f"v_mov_b32 v17, {SYNC+12}", None, lambda: a.lg("ds_read_b32 v31, v17", "wa")] + [None] * 7 + [
        lambda: (a.wait(lg="wa"), a("v_cmp_gt_u32 vcc, 4, v31")), lambda: (a("s_cbranch_vccnz L_wa0"), a.label("L_wa_r"))]
    extra[1, 1] = t_ + [f"v_add_u32 v{vWR+nt}, s{sDl}, v{vWR+nt}" for nt in range(4)] + [lambda nt=nt: a.vm(f"buffer_load_dwordx2 {vr(vB2+2*nt,2)}, v16, s[{rA}:{rA+3}], s{sT0} offen offset:{32*nt}", "b2") for nt in range(4)]
    t_ = []
    for p in range(3):
        t_ += [f"s_sub_u32 s{sT1}, s{sW}, {p+1}\n s_and_b32 s{sT1}, s{sT1}, 3"]
        if p < 2: t_ += [f"s_lshl_b32 s{sT1}, s{sT1}, 14\n v_lshl_add_u32 v{vRd[p]}, v0, 4, s{sT1}"]
        else: t_ += [f"s_lshl_b32 s{sT1}, s{sT1}, 12\n s_add_u32 s{sT1}, s{sT1}, {QX}", f"v_lshl_add_u32 v{vRd[p]}, v0, 4, s{sT1}"]
    assert len(t_) == 7; rdadr = t_
    fm = []
    for nt in range(4):
        for r in range(2):
            fm += [f"v_lshlrev_b32 v{vTr}, 16, v{vB2+2*nt+r}\n v_and_b32 v{vTr+1}, 0xffff0000, v{vB2+2*nt+r}"]
            fm += ["\n".join(f"v_fmac_f32 v{OWN+16*h+4*nt+2*r+u}, v{vTr+u}, v{vGM+12+2*h}" for u in range(2)) for h in range(2)]
    extra[2, 0][4:6] = two([f"v_add_u32 v{vWR+nt}, 16384, v{vWR+nt}" for nt in range(4)])
    extra[2, 1] = rdadr + [None] + fm[:8]; extra[2, 2] = fm[8:]
    t_ = f"""s_lshl_b32 s{sT2}, s{sW}, 12
      s_add_u32 s{sT2}, s{sT2}, {KVR+16384}
      v_lshrrev_b32 v15, 3, v0
      v_and_b32 v17, 7, v0
      v_xor_b32 v{vTr}, v15, v17
      v_lshlrev_b32 v{vTr}, 4, v{vTr}
      v_lshl_add_u32 v{vTr}, v15, 7, v{vTr}
      v_add_u32 v{vTr}, s{sT2}, v{vTr}
      v_lshlrev_b32 v{vOo}, 4, v17
      v_lshl_add_u32 v{vOo}, v15, 11, v{vOo}
      v_and_b32 v15, 7, v1
      v_lshrrev_b32 v17, 1, v2
      v_xor_b32 v15, v15, v17
      v_lshlrev_b32 v15, 4, v15
      v_and_b32 v17, 1, v2
      v_lshl_add_u32 v15, v17, 3, v15
      v_lshl_add_u32 v15, v1, 7, v15
      v_add_u32 v{vTw[0]}, s{sT2}, v15
      v_xor_b32 v{vTw[1]}, 32, v{vTw[0]}
      v_xor_b32 v{vTw[2]}, 64, v{vTw[0]}
      v_xor_b32 v{vTw[3]}, 96, v{vTw[0]}
      s_lshl_b32 s{sT0}, s{sCB2}, 7
      s_lshl_b32 s{sT1}, s{sRB2}, 18
      s_add_u32 s{sT0}, s{sT0}, s{sT1}
      s_lshl_b32 s{sT1}, s{sW}, 16
      s_add_u32 s{sT0}, s{sT0}, s{sT1}""".split("\n")
    extra[3, 0] = ["\n".join(t_[2*k:2*k+2]) for k in range(13)]
    worder = [0, 4, 1, 5, 2, 6, 3, 7]
    for p in range(1, 4): extra[3, p] = [x for k in worder for x in (None, (lambda k=k, p=p: wr(p - 1, k)))]
    def rdp(p, k):
        a.lg(f"ds_read_b128 {vr(ACC2+32*p+4*k,4)}, v{vRd[p]} offset:{8192*p+1024*k if p < 2 else 16384*(k//4)+1024*(k%4)}", ("r", p // 2, k))
    x0 = extra[0, 0][10]; extra[0, 0][10] = lambda: (a(x0), wp(0), a("\n".join(chk(1))), poll())
    a("s_nop 0")
    for D in range(4):
        if D: join(D)
        stamp(f"g_{28+2*D}")
        dstep(14 + D, True, {p: extra.get((D, p), []) for p in range(4)}, {2: lambda: again(D + 1)} if D < 3 else {})
    cm('sum of the four K quarters through LDS, bf16, whole-line stores')
    a.wait0(vm=False)
    stamp("g_36")
    a("s_barrier")
    stamp("g_bar")
    for k in range(4):
        for p in range(3): rdp(p, k)
    def st(g_):
        a.wait(lg=("u", g_ // 2, g_ % 2))
        a(f"buffer_store_dwordx4 {vr(HR+32+4*g_,4)}, v{vOo}, s[{rC}:{rC+3}], s{sT0} offen{['', ' sc1', ' nt'][OPT['osc']]}")
        if g_ < 3: a(f"s_add_u32 s{sT0}, s{sT0}, 16384")
    for k in range(8):
        a.wait(lg=("r", 1, k))
        if k < 4:
            for p in range(3): rdp(p, k + 4)
        for r in (0, 2): a(f"v_pk_add_f32 {vr(ACC2+4*k+r,2)}, {vr(ACC2+4*k+r,2)}, {vr(ACC2+32+4*k+r,2)}")
        for r in (0, 2): a(f"v_pk_add_f32 {vr(OWN+4*k+r,2)}, {vr(OWN+4*k+r,2)}, {vr(ACC2+64+4*k+r,2)}")
        for r in (0, 2): a(f"v_pk_add_f32 {vr(OWN+4*k+r,2)}, {vr(OWN+4*k+r,2)}, {vr(ACC2+4*k+r,2)}")
        T_ = HR + 2 * k
        a(f"v_cvt_pk_bf16_f32 v{T_}, v{OWN+4*k}, v{OWN+4*k+1}\n v_cvt_pk_bf16_f32 v{T_+1}, v{OWN+4*k+2}, v{OWN+4*k+3}")
        a.lg(f"ds_write_b64 v{vTw[k%4]}, {vr(HR+2*k,2)} offset:{2048*(k//4)}")
        if k % 4 == 3:
            for h in range(2): a.lg(f"ds_read_b128 {vr(HR+32+8*(k//4)+4*h,4)}, v{vTr} offset:{2048*(k//4)+1024*h}", ("u", k // 4, h))
    for g_ in range(4): st(g_)
    if OPT["ts"]: a.wait0(); stamp("g_end")
    if OPT["padto"]:
        a.label("L_pad")
        a(f"s_memrealtime s[98:99]\n s_waitcnt lgkmcnt(0)\n s_sub_u32 s98, s98, s96\n s_cmp_lt_u32 s98, {OPT['padto']}\n s_cbranch_scc1 L_pad")
    dump_ts_and_end()
    cm('out-of-line waits (all bounded) and loop hooks')
    for sl in range(4): late(sl)
    a.label("L_wa0")
    waitlds(12, 4, "L_wa", 31)
    a("s_branch L_wa_r")
    if OPT["pf2"]:
        a.label("L_hookF")
        a(f"v_lshlrev_b32 v15, {7 + LC if OPT['loc2'] else 7}, v0\n buffer_load_dword v19, v15, s[{rPF}:{rPF+3}], s{sA} offen")
        if OPT["ev2"] and not OPT["loc2"]: a(f"s_add_u32 s{sA}, s{sA}, 8192\n buffer_load_dword v19, v15, s[{rPF}:{rPF+3}], s{sA} offen")
        ret("L_hookF_r")
    a.label("L_hookW")
    a(f"s_cmp_eq_u32 s{sIT}, 5\n s_cbranch_scc1 L_g2end")
    stamp("g_17")
    waitlds(0, 4, "L_wq")
    srd(rA, pWO, 1024 * 2048)
    a(f"s_lshl_b32 s{sT0}, s{sW}, 12\n s_add_u32 m0, s{sT0}, {QX}\n s_lshl_b32 s{sT0}, s{sW}, 17\n s_add_u32 s{sT0}, s{sT0}, 524288")
    for k in range(4): a(f"buffer_load_dwordx4 v{vWD+k}, s[{rA}:{rA+3}], s{sT0} offen offset:{1024*k} lds")
    ret("L_hookW_r")

prologue()
section("g")
a.label("L_roleG")
g_phase1()
if OPT["stop"] == 1:
    stamp("g_bq"); g_hstore(); a.wait0(); stamp("g_hst"); dump_ts_and_end()
else:
    if OPT["wlate"]: g_hstore(); stamp("g_st")
    g2_setup()
    for i in range(OPT["wpre"]):
        for k in range(4): dmaW(i, k)
    if not OPT["wlate"]: g_hstore()
    g_phase2()
a_phase1()
if OPT["stop"] == 1:
    a(f"s_lshl_b32 s{sT0}, s{sW}, 12\n s_add_u32 s{sT1}, s{sT0}, {QX}\n v_lshl_add_u32 v16, v0, 4, s{sT1}")
    for i in range(4): a(f"ds_read_b128 {vr(32+4*i,4)}, v16 offset:{1024*i}")
    a(f"s_lshl_b32 s{sT1}, s{sRB}, 4\n s_add_u32 s{sT1}, s{sT1}, s{sCB}\n s_lshl_b32 s{sT1}, s{sT1}, 14\n s_add_u32 s{sT0}, s{sT0}, s{sT1}\n s_add_u32 s{sT0}, s{sT0}, {QD_OFF}")
    a.wait0()
    for i in range(4): a(f"buffer_store_dwordx4 {vr(32+4*i,4)}, v{vKVD}, s[{rWS}:{rWS+3}], s{sT0} offen offset:{1024*i}")
    dump_ts_and_end()
else:
    stamp("a_bq")
    attention()
a.label("L_exit")
a("s_endpgm")
a.label("L_codeend")

HDR = open("cdna_kernels/" + KNAME[:-7] + ".s.ref").read().split("; Override launch")[0]
HDR += """; One persistent launch, 256 workgroups of 8 waves, one per CU (generated by a script of the author's own).
"""
text = HDR + f"; @launch grid=(256,1,1) block=(512,1,1) lds={LDS_BYTES}\n"
text += f'.amdgcn_target "amdgcn-amd-amdhsa--gfx950"\n.text\n.globl {KNAME}\n.p2align 8\n.type {KNAME},@function\n{KNAME}:\n'
a.out = SEC['head'] + SEC['st'] + SEC['st0'] + SEC['st2'] + SEC['g'] + SEC['main']
body = a.text()
nbad = check(body)
text += body
text += f""".section .rodata,"a"
.p2align 6
.amdhsa_kernel {KNAME}
  .amdhsa_next_free_vgpr 256
  .amdhsa_next_free_sgpr 102
  .amdhsa_accum_offset 256
  .amdhsa_group_segment_fixed_size 0
  .amdhsa_kernarg_size 112
  .amdhsa_user_sgpr_count 2
  .amdhsa_user_sgpr_kernarg_segment_ptr 1
  .amdhsa_system_sgpr_workgroup_id_x 1
.end_amdhsa_kernel
"""
open(sys.argv[1], "w").write(text)
if nbad: sys.exit(f"{nbad} hazards")
```

```python
import sys, math
from asmlib import *

KNAME = "gated_mix__grouped_kv_mqa__dense_activation_squared_relu__prompt_kernel"
OPT = dict(stop=0, ts=0, pd=8, forceslow=0, nodma=0, nokv=0, nopf=0, nords=0, lead=7, pfnt=0, far=99, pf2=1, pf2b=2, gprio=2, nog2=0, g2nold=0, anodma=0, g2prio=0, dbgts=0, slp=2, th=0, farw2=1, hglob=1, arrk=0, wlate=1, map2=5, steps=0, kvskip='', pause=99, pcnt=64, grp=1, osc=1, padto=0, st2=0, spos=0, hfirst=2, p0prio=3, d0prio=2, xlate=0, ring=6, h3prio=1, hfl='sc1', wfl='', xfl='', padat='', xm=1, p0late=1, p0lo=0, kvreg=2, lowv=1, noo=0, nopk=1, tgrp=1, nowo=0, noack=0, qsw=1, evn=0, evk=1, ev2=1, ng=8, par='SSSS', lut=0, pw=128, pb=0, g32=0, dyn=0, chain=1, row4=0, skiprd=0, gdma=0, dpos=0, nohst=0, xa=3, w1pre=0, peven=0, xr=99, fpre=4, clrf=1, wpre=2, f12=1, pp=2, rot=1, kvl=1, w1n=2, kvs='x147a', p1=26, qw=3, pre='x899aaa', hrel=0, f13=1, hold='xcfcf', gpo='', pexact=1, epos=68, mpos=32, loc2=1, woit=2, snake=1, gp='x1111', g2f=1, ebar=0, c2x=1, pfl='sc1', sfl='sc1', nowr=0, pat='eeeeeeeq0ccr1esccteu2evexweyccS4e5eeecc')
for a_ in sys.argv[2:]:
    k, v = a_.split("="); OPT[k] = int(v) if v.lstrip('-').isdigit() else v

GRP = [2, 0, 1, 3] if OPT['g2f'] else [0, 2, 1, 3]
LC = {5: 2, 2: 1}.get(OPT['map2'])
RBSZ = 144 * 8192
KV_OFF = 0x1200000; G_OFF = 0x1240000; KF_OFF = 0x1244000; FL_OFF = 0x1248000; WS_USED = 0x1268000
QD_OFF = 0x1400000; TS_OFF = 0x1800000
WS_SIZE = 0x2000000 if (OPT["stop"] or OPT["ts"]) else WS_USED
OOB = 0x40000000
W1R = 0; W1S = 14336
WQR = 57344; WQS = 4096
XR = 73728; XS = 16384
KVST = 122880
SYNC = 155648
GT = SYNC + 512
LDS_BYTES = GT + 2048
QX = XR
KVR = 90112
pX, pWQ, pWK, pWV, pWO, pW1, pB1, pW2, pB2, pGATE, pOUT, pDBG, pWS = 4, 6, 8, 10, 12, 16, 18, 20, 22, 24, 26, 28, 30
rA, rB, rC, rD, rWS, rDBG, rPF, rE = 32, 36, 40, 44, 48, 52, 56, 60
sRB, sCB, sRB2, sCB2, sI, sW = 64, 65, 66, 67, 68, 69
sT0, sT1, sT2, sT3, sT4, sT5 = 70, 71, 72, 73, 74, 75
sIT, sA, sB, sC, sD, sE, sF, sG = 76, 77, 78, 79, 80, 81, 82, 83
sTS = 84
sPOS = 101
sQB = 100
SPIN_MAX = 1 << 18

a = Asm()
SEC = {}
def cm(t):
    for l in t.strip().split('\n'): a.raw('  ; ' + l.strip())
def section(n):
    a.out = SEC.setdefault(n, [])
section("head")
def kwait():
    a("s_waitcnt lgkmcnt(0)"); stamp("kw"); srd(rWS, pWS, WS_SIZE)
def srd(r, p, size):
    a(f"s_mov_b32 s{r}, s{p}\n s_mov_b32 s{r+1}, s{p+1}\n s_mov_b32 s{r+2}, {size}\n s_mov_b32 s{r+3}, 0x20000")
nts = [0]
STAMPS = {1: dict(g_b0=1, g_end1=2, g_bq=3, g_hst=4, g_pre=5, a_set=1, a_w0=2, a_8=3, a_16=4, a_24=5),
          0: dict(g_end1=1, g_flag=2, g_l2=3, g_hook=4, g_end=5, a_b0=1, a_16=2, a_bq=3, a_att=4, a_end=5)}[OPT["stop"]]
if OPT["st2"] == 1: STAMPS.update(g_end1=0, g_flag=0, g_l2=1, g_17=2, g_25=3)
if OPT["st2"] == 3: STAMPS = dict(kw=1, g_pre=2, g_bias=3, g_rdy=4, g_b0=5, a_iss=2, a_set=3, a_w0=4, a_b0=5)
if OPT["st2"] == 4: STAMPS.update(g_end1=0, g_st=1, g_flag=2, g_pw=3, g_wf=4, g_l2=0, g_s0=5, g_hook=0, g_end=0)
if OPT["st2"] == 5: STAMPS.update(g_end1=0, g_flag=0, g_l2=0, g_end=0, g_25=1, g_hook=2, g_30=3, g_32=4, g_34=5)
if OPT["st2"] == 6: STAMPS.update(a_b0=0, a_16=0, a_24=1, a_28=2)
if OPT["st2"] == 2: STAMPS.update(g_end1=0, g_flag=0, g_l2=0, g_hook=1, g_32=2, g_36=3, g_bar=4)
def stamp(n):
    if n == OPT["padat"]: a("s_memrealtime s[96:97]"); a.wait0(vm=False)
    i = STAMPS.get(n)
    if OPT["ts"] and i:
        a(f"{'s_memrealtime' if OPT['ts'] == 2 else 's_memtime'} s[{sTS+2*i}:{sTS+2*i+1}]"); a.wait0(vm=False)
def mf16(d, x, y, c=None):
    a(f"v_mfma_f32_16x16x32_bf16 {vr(d,4)}, {vr(x,4)}, {vr(y,4)}, {vr(d,4) if c is None else c}")
def mf32(d, x, y, c=None):
    a(f"v_mfma_f32_32x32x16_bf16 {vr(d,16)}, {vr(x,4)}, {vr(y,4)}, {vr(d,16) if c is None else c}")
def dump_ts_and_end():
    if OPT["ts"]:
        a("s_memrealtime s[98:99]"); a.wait0()
        if OPT["dbgts"]:
            l = a.newlabel("L_nots")
            srd(rDBG, pDBG, 256)
            a(f"s_cmp_lg_u32 s2, 100\n s_cbranch_scc1 {l}\n s_cmp_lg_u32 s{sW}, 0\n s_cbranch_scc1 {l}")
            for i, k in enumerate((1, 2, 3, 4, 5, 7)): a(f"s_sub_u32 s{sT0}, s{sTS+2*k}, s96\n v_mov_b32 v{8+i}, s{sT0}")
            a(f"s_lshl_b32 s{sT0}, s3, 3\n s_add_u32 s{sT0}, s{sT0}, 8\n v_mov_b32 v2, 0\n s_mov_b64 exec, 1")
            a(f"buffer_store_dwordx2 v[8:9], v2, s[{rDBG}:{rDBG+3}], s{sT0} offen")
            a(f"buffer_store_dwordx4 v[10:13], v2, s[{rDBG}:{rDBG+3}], s{sT0} offen offset:8")
            a.label(l)
        else:
            for i in range(8): a(f"v_mov_b32 v{8+i}, s{sTS+2*i}")
            a(f"s_lshl_b32 s{sT0}, s2, 8\n s_lshl_b32 s{sT1}, s3, 5\n s_add_u32 s{sT0}, s{sT0}, s{sT1}\n s_add_u32 s{sT0}, s{sT0}, {TS_OFF}")
            a(f"v_mov_b32 v2, 0\n s_mov_b64 exec, 1")
            a(f"buffer_store_dwordx4 v[8:11], v2, s[{rWS}:{rWS+3}], s{sT0} offen")
            a(f"buffer_store_dwordx4 v[12:15], v2, s[{rWS}:{rWS+3}], s{sT0} offen offset:16")
    a("s_endpgm")

def prologue():
    m = OPT["map2"]
    lx, lc = {0: (1, 3), 2: (1, 3), 3: (2, 2), 4: (0, 4), 5: (2, 2)}[m]
    MAP2 = f"""s_lshr_b32 s{sT1}, s{sT0}, {lx}
      s_lshl_b32 s{sT1}, s{sT1}, {5-lc}
      s_lshr_b32 s{sT2}, s{sI}, {lc}
      s_add_u32 s{sRB2}, s{sT1}, s{sT2}
      s_and_b32 s{sT1}, s{sT0}, {(1<<lx)-1}
      s_and_b32 s{sT2}, s{sI}, {(1<<lc)-1}
      s_lshl_b32 s{sT2 if m in (2, 5) else sT1}, s{sT2 if m in (2, 5) else sT1}, {lx if m in (2, 5) else lc}
      s_add_u32 s{sCB2}, s{sT1}, s{sT2}
      s_xor_b32 s{sCB2}, s{sCB2}, {OPT["c2x"]}
      s_mov_b32 s{sPOS}, s{sCB}"""
    ident = list(range(16))
    LUTS = {0: (ident, [0, 1, 3, 2] + ident[4:]),
            1: ([0, 1, 3, 5, 2, 4, 6, 8, 7, 10, 12, 14, 9, 11, 13, 15], [0, 1, 2, 9, 4, 5, 6, 7, 8, 3, 10, 11, 12, 13, 14, 15]),
            2: ([0, 1, 3, 5, 2, 4, 6, 8, 7, 10, 12, 14, 9, 11, 13, 15], [0, 1, 2, 4, 3, 5, 11, 7, 8, 9, 10, 6, 12, 13, 14, 15]),
            3: ([0, 1, 3, 5, 7, 4, 10, 8, 12, 2, 14, 6, 9, 11, 13, 15], [0, 1, 2, 9, 4, 5, 6, 7, 8, 3, 10, 11, 12, 13, 14, 15])}[OPT["lut"]]
    for reg, tab in zip((sCB, sQB), LUTS):
        assert sorted(tab) == ident
        if tab == ident: continue
        w = sum(v << (4 * k) for k, v in enumerate(tab))
        MAP2 += f"""
          s_mov_b32 s{sT2}, {hex(w & 0xffffffff)}
          s_mov_b32 s{sT3}, {hex(w >> 32)}
          s_lshl_b32 s{sT1}, s{sPOS}, 2
          s_lshr_b64 s[{sT2}:{sT3}], s[{sT2}:{sT3}], s{sT1}
          s_and_b32 s{reg}, s{sT2}, 15"""
    cm('entry: workgroup -> (row block, column blocks); waves 0-3 take the matrix role G, waves 4-7 the loader / attention role A')
    a("s_cmp_ge_u32 s2, 256\n s_cbranch_scc1 L_exit")
    a("s_load_dwordx16 s[4:19], s[0:1], 0\n s_load_dwordx8 s[20:27], s[0:1], 64\n s_load_dwordx4 s[28:31], s[0:1], 96")
    if OPT["ts"] or OPT["th"] or OPT["padto"]:
        a(f"s_memtime s[{sTS}:{sTS+1}]\n s_memrealtime s[96:97]")
    a(f"""v_lshrrev_b32 v1, 6, v0
      v_and_b32 v0, 63, v0
      v_readfirstlane_b32 s3, v1
      s_lshr_b32 s{sI}, s2, 3
      s_and_b32 s{sT0}, s2, 7
      s_lshr_b32 s{sT1}, s{sT0}, 2
      s_lshl_b32 s{sT1}, s{sT1}, 3
      s_lshr_b32 s{sT2}, s{sI}, 2
      s_add_u32 s{sRB}, s{sT1}, s{sT2}
      s_and_b32 s{sT1}, s{sT0}, 3
      s_lshl_b32 s{sT1}, s{sT1}, 2
      s_and_b32 s{sT2}, s{sI}, 3
      s_add_u32 s{sCB}, s{sT1}, s{sT2}
      {MAP2}
      s_and_b32 s{sW}, s3, 3
      v_and_b32 v1, 15, v0
      v_lshrrev_b32 v2, 4, v0""")
    a("s_cmp_lt_u32 s3, 4\n s_cbranch_scc1 L_roleG\n s_setprio " + str(1 + (OPT["d0prio"] > 0)))

ACC1 = 112
acc1 = lambda ft, rt: ACC1 + (ft * 4 + rt) * 4
XF = [48, 80]; WRING = 24
vX = [16, 17]; vW1 = [18, 19]; vWq = [20, 21]; vLP, vJ, vQW = 15, 70, 64
def g_phase1():
    PD = OPT["pd"]
    sRG, sCG = sA, sB
    sXo, sPo, sPe, sPd = sC, sD, sE, sF
    a(f"s_and_b32 s{sRG}, s{sW}, 1\n s_lshr_b32 s{sCG}, s{sW}, 1")
    cm('G, phase 1: [Q | FFN hidden] tile = x[128 rows] * [Wq 64 cols | W1 224 cols], accumulators start from the bias')
    a(f"""s_cmp_lt_u32 s{sW}, 2
      s_cbranch_scc0 L_nocode
      s_getpc_b64 s[{rE}:{rE+1}]""")
    a.label("L_pc")
    a(f"""s_mov_b32 s{rE+2}, L_codeend-L_pc
      s_mov_b32 s{rE+3}, 0x20000
      s_lshl_b32 s{sT1}, s{sI}, 10
      s_lshl_b32 s{sT2}, s{sW}, 15
      s_add_u32 s{sT1}, s{sT1}, s{sT2}
      v_lshlrev_b32 v29, 7, v0
      s_mov_b64 exec, 0xff
      buffer_load_dword v{vJ}, v29, s[{rE}:{rE+3}], s{sT1} offen
      s_mov_b64 exec, -1""")
    a.label("L_nocode")
    a(f"""s_mul_i32 s{sT0}, s{sCB}, 448
      s_mul_i32 s{sT1}, s{sCG}, 224
      s_add_u32 s{sT0}, s{sT0}, s{sT1}
      v_lshlrev_b32 v14, 2, v0
      s_mov_b32 s{rA+2}, 7168
      s_mov_b32 s{rA+3}, 0x20000
      s_setprio 3
      s_waitcnt lgkmcnt(0)
      s_mov_b32 s{rA}, s{pB1}
      s_mov_b32 s{rA+1}, s{pB1+1}
      buffer_load_dword v33, v14, s[{rA}:{rA+3}], s{sT0} offen
      s_setprio 0""")
    kwait()
    for r in range(0, 32, 2): a(f"v_mov_b64 {vr(ACC1+r,2)}, 0")
    a(f"""v_lshrrev_b32 v14, 1, v1
      v_xor_b32 v14, v14, v2
      v_lshlrev_b32 v14, 4, v14
      v_lshl_add_u32 v14, v1, 7, v14
      s_lshl_b32 s{sT0}, s{sRG}, 13
      s_add_u32 s{sT0}, s{sT0}, {XR}
      v_add_u32 v{vX[0]}, s{sT0}, v14
      v_xor_b32 v{vX[1]}, 64, v{vX[0]}
      s_mov_b32 s{sXo}, 0
      v_lshrrev_b32 v14, 2, v1
      v_lshl_add_u32 v14, v2, 3, v14
      v_and_b32 v29, 3, v1
      v_lshlrev_b32 v29, 3, v29
      v_mul_u32_u24 v30, 448, v14
      v_add_u32 v30, v30, v29
      s_mul_i32 s{sT0}, s{sCG}, 224
      v_add_u32 v30, s{sT0}, v30
      v_and_b32 v31, 1, v2
      v_lshlrev_b32 v32, 5, v31
      s_lshl_b32 s{sT1}, s{sCG}, 1
      s_sub_u32 s{sT1}, 1, s{sT1}
      v_mul_lo_u32 v32, v32, s{sT1}
      v_add_u32 v{vW1[0]}, v30, v32
      v_sub_u32 v{vW1[1]}, v30, v32
      v_lshrrev_b32 v32, 3, v1
      v_lshl_add_u32 v31, v32, 1, v31
      s_lshl_b32 s{sT0}, s{sCG}, 1
      v_xor_b32 v31, s{sT0}, v31
      v_lshl_add_u32 v29, v31, 5, v29
      v_lshl_add_u32 v29, v14, 7, v29
      v_add_u32 v{vWq[0]}, {WQR}, v29
      v_xor_b32 v{vWq[1]}, 32, v{vWq[0]}""")
    if not OPT["stop"]: g2_vsetup()
    a(f"""v_and_b32 v28, 1, v2
      v_lshlrev_b32 v28, 10, v28
      v_lshrrev_b32 v29, 1, v2
      v_lshl_add_u32 v28, v29, 8, v28
      v_lshl_add_u32 v{vLP}, v1, 4, v28""")
    a(f"v_mov_b32 v30, {SYNC}\n ds_write_b128 v30, v[{ACC1}:{ACC1+3}]\n v_lshlrev_b32 v29, 3, v2")
    stamp("g_pre")
    a.wait0()
    stamp("g_bias")
    for k in range(14): a.lg(f"ds_bpermute_b32 v{48+k}, v29, v33 offset:{32*(k//2)+4*(k%2)}", ("b", k // 2))
    for ft in range(7):
        d = acc1(2 + ft, 0)
        a.wait(lg=("b", ft))
        a(f"v_lshlrev_b32 v{d}, 16, v{48+2*ft}\n v_and_b32 v{d+1}, 0xffff0000, v{48+2*ft}")
        a(f"v_lshlrev_b32 v{d+2}, 16, v{49+2*ft}\n v_and_b32 v{d+3}, 0xffff0000, v{49+2*ft}")
        for rt in range(1, 4): a(f"v_mov_b64 {vr(d+4*rt,2)}, {vr(d,2)}\n v_mov_b64 {vr(d+4*rt+2,2)}, {vr(d+2,2)}")
    def rdW(g, n):
        u, ft = divmod(g, 9); kk, e = divmod(n, 2); d = WRING + 8 * (g % 3) + 2 * n; sl = 2 * (u % 2) + kk
        if ft < 2: a.lg(f"ds_read_b64_tr_b16 {vr(d,2)}, v{vWq[ft]} offset:{sl*WQS + e*512}", ("W", g))
        else: a.lg(f"ds_read_b64_tr_b16 {vr(d,2)}, v{vW1[ft%2]} offset:{sl*W1S + e*1792 + (ft-2)*32}", ("W", g))
    def rdX(u, n):
        rt, kk = divmod(n, 2)
        a.lg(f"ds_read_b128 {vr(XF[u%2]+16*kk+4*rt,4)}, v{vX[kk]} offset:{rt*2048}", ("X", u))
    def block(u, plan):
        for ft in range(9):
            g = 9 * u + ft
            a.wait(lg=[("W", g), ("X", u)] if ft == 0 else ("W", g))
            for n in range(8):
                rt = 3 - n // 2 if ft % 2 else n // 2
                kk = (n + 1) // 2 % 2
                mf16(acc1(ft, rt), WRING + 8 * (g % 3) + 4 * kk, XF[u % 2] + 16 * kk + 4 * rt)
                if n < 4 and g + 2 < 144: rdW(g + 2, n)
                x = plan.get(8 * ft + n)
                if callable(x): x()
                elif x: a(x)
    a(f"s_mov_b32 s{sIT}, 0")
    stamp("g_rdy")
    a("s_barrier")
    stamp("g_b0")
    for n in range(4): rdW(0, n)
    for n in range(8): rdX(0, n)
    for n in range(4): rdW(1, n)
    a.raw(".p2align 3")
    cm('16 k-blocks of 64; operands come from LDS rings that the A waves fill, two barriers per block')
    a.label("L_g1loop")
    def body(it):
        for b in range(2):
            u = 2 * it + b
            plan = {12: f"s_add_u32 s{sXo}, s{sXo}, 1\n s_cmp_eq_u32 s{sXo}, 3", 13: f"s_cselect_b32 s{sXo}, 0, s{sXo}\n s_cselect_b32 s{sT0}, {3*XS}, 0",
                    14: f"s_sub_u32 s{sT0}, {XS}, s{sT0}", 20: f"v_add_u32 v{vX[0]}, s{sT0}, v{vX[0]}", 21: f"v_add_u32 v{vX[1]}, s{sT0}, v{vX[1]}",
                    OPT["mpos"]: "s_barrier", OPT["epos"]: "s_barrier"}
            free = [p for p in range(OPT["mpos"] + 1, 64) if 4 <= p % 8 < 7]
            for n in range(8): plan[free[n]] = lambda n=n: rdX(u + 1, n)
            assert 64 <= OPT["epos"] <= 68 and 22 <= OPT["mpos"] <= 36
            if b == 0: plan[69] = f"s_add_u32 s{sIT}, s{sIT}, 1"; plan[70] = f"s_cmp_eq_u32 s{sIT}, 8"
            block(u, plan)
            if b == 0:
                a("s_cbranch_scc1 L_g1last"); snap[:] = [(k_, v_ + (14 - u) * (9 if k_ == "W" else 1)) for k_, v_ in a.lgq]
        a("s_branch L_g1loop")
    snap = []
    a.loop(body, "g1")
    cm('last k-block; Q goes to the attention waves through LDS')
    a.label("L_g1last")
    a.lgq[:] = snap
    cq = lambda s_, rt: f"v_cvt_pk_bf16_f32 v{48+4*rt+2*s_}, v{acc1(s_,rt)}, v{acc1(s_,rt)+1}\n v_cvt_pk_bf16_f32 v{49+4*rt+2*s_}, v{acc1(s_,rt)+2}, v{acc1(s_,rt)+3}"
    wq = lambda rt: lambda: a.lg(f"ds_write_b128 v{vQW}, {vr(48+4*rt,4)} offset:{(rt//2)*4096 + (rt%2)*1024}")
    plan = {4: f"s_lshl_b32 s{sT2}, s{sRG}, 13\n s_lshl_b32 s{sT3}, s{sCG}, 11", 5: f"s_add_u32 s{sT2}, s{sT2}, s{sT3}\n s_add_u32 s{sT2}, s{sT2}, {QX}",
            6: f"v_lshl_add_u32 v{vQW}, v0, 4, s{sT2}", 20: cq(0, 0), 21: cq(0, 1), 22: cq(0, 2), 28: cq(0, 3), 29: cq(1, 3), 30: cq(1, 2),
            36: cq(1, 1), 37: cq(1, 0), [38, 46, 46, 46][OPT["qw"]]: "s_barrier",
            **dict(zip([(44, 46, 52, 54), (52, 54, 56, 58), (52, 53, 54, 55), (52, 55, 58, 61)][OPT["qw"]], map(wq, range(4)))),
            [61, 65, 62, 68][OPT["qw"]]: lambda: (a.wait0(vm=False), a(f"s_setprio {OPT['gprio']}\n s_barrier"))}
    block(15, plan)
    stamp("g_end1")
def g_hstore(lo=0, hi=7):
    sRG, sCG = sA, sB
    sT0, sT1, sT2, sT3 = sT4, sT5, sF, sG
    if lo == 0: a(f"""s_mul_i32 s{sT0}, s{sRB}, {RBSZ}
      s_mul_i32 s{sT1}, s{sCB}, {7*8192}
      s_add_u32 s{sT0}, s{sT0}, s{sT1}
      s_lshl_b32 s{sT1}, s{sRG}, 12
      s_add_u32 s{sT0}, s{sT0}, s{sT1}
      s_mul_i32 s{sT1}, s{sCG}, {3*8192+512}
      s_add_u32 s{sT0}, s{sT0}, s{sT1}
      s_mul_i32 s{sT2}, s{sCG}, {8192-1024}
      s_add_u32 s{sT2}, s{sT2}, 512
      s_sub_u32 s{sT3}, 8192, s{sT2}""")
    cm('hidden = relu(h)^2 as bf16, write-through to the workspace in MFMA operand order')
    k = 0
    for ft in range(lo, hi):
        for p in range(2):
            T = 48 + 4 * (k % 4); k += 1
            if OPT["nohst"] == 2: continue
            for h in range(2):
                d = acc1(2 + ft, 2 * p + h)
                for r in range(4): a(f"v_max_f32 v{d+r}, 0, v{d+r}")
                if OPT["nopk"] > 1: a("\n".join(f"v_mul_f32 v{d+r}, v{d+r}, v{d+r}" for r in range(4)))
                else: a(f"v_pk_mul_f32 {vr(d,2)}, {vr(d,2)}, {vr(d,2)}\n v_pk_mul_f32 {vr(d+2,2)}, {vr(d+2,2)}, {vr(d+2,2)}")
                a(f"v_cvt_pk_bf16_f32 v{T+2*h}, v{d}, v{d+1}\n v_cvt_pk_bf16_f32 v{T+2*h+1}, v{d+2}, v{d+3}")
            a(f"s_nop 1\n v_permlane16_swap_b32 v{T}, v{T+2}\n v_permlane16_swap_b32 v{T+1}, v{T+3}")
            if not OPT["nohst"]: a.vm(f"buffer_store_dwordx4 {vr(T,4)}, v{vLP}, s[{rWS}:{rWS+3}], s{sT0} offen offset:{p*2048} sc1", "hst")
        a(f"s_add_u32 s{sT0}, s{sT0}, s{sT2 if ft % 2 == 0 else sT3}")

vO = 3
vKX, vKG, vKW, vKT0, vKVD, vKR = 140, 12, 13, 24, 15, 142
KVREG = 208; vG = 253
KXF, KGF, KWF, KAC = 32, 64, 96, 128
def a_phase1():
    sISV, sR0, sSTG, sM, sSo, sSx, sGrp = sA, sB, sC, sD, sE, sF, sG
    NT = " nt" if OPT["pfnt"] else ""
    LEAD = OPT["lead"]
    vXo, vQo, vP = 144, 148, 150
    sSq, sMx, sMq, sPo, sPm = 14, 15, 18, 19, 22
    section("st")
    cm('A, phase 1 start-up: every wave brings 16 rows of W1 / Wq and 32 rows of x per k-block; wave 7 also warms caches and handles the flags')
    a(f"""v_lshrrev_b32 v16, 3, v0
      v_lshlrev_b32 v16, 11, v16
      v_and_b32 v17, 7, v0
      v_xor_b32 v18, v17, v2
      v_lshl_add_u32 v18, v18, 4, v16
      v_and_b32 v20, 1, v2
      v_lshlrev_b32 v20, 2, v20
      v_xor_b32 v20, v20, v17
      v_lshl_add_u32 v{vQo}, v20, 4, v16
      v_xor_b32 v19, 32, v{vQo}
      v_add_u32 v{vQo+1}, {16384-1024}, v19
      s_lshl2_add_u32 s{sSx}, s{sRB}, s{sW}
      s_lshl_b32 s{sSx}, s{sSx}, 16""")
    for i in range(4): a(f"v_xor_b32 v19, {64*(i%2)}, v18\n v_add_u32 v{vXo+i}, {i*16384 - i*1024}, v19")
    a(f"s_mul_i32 s{sT0}, s{sW}, {16*7168}\n s_mul_i32 s{sT1}, s{sCB}, 448\n s_add_u32 s{sSo}, s{sT0}, s{sT1}")
    a(f"s_mul_i32 s{sM}, s{sW}, 7168\n s_movk_i32 s{sT2}, {7168-448}")
    def w1off(i):
        a(f"""v_add_u32 v16, {64*i}, v0
          v_mul_u32_u24 v17, 2341, v16
          v_lshrrev_b32 v17, 16, v17
          v_bfe_u32 v18, v17, 3, 1
          v_lshlrev_b32 v18, 1, v18
          v_xor_b32 v16, v16, v18
          v_lshlrev_b32 v16, 4, v16
          v_mad_u32_u24 v{vO+i}, v17, s{sT2}, v16""")
        if i % 4: a(f"v_subrev_u32 v{vO+i}, {1024*(i%4)}, v{vO+i}")
    for i in range(OPT['w1n']): w1off(i)
    kwait(); srd(rA, pX, 2048 * 2048); srd(rPF, pWQ, 1024 * 2048); srd(rB, pW1, 1024 * 7168)
    a(f"""s_lshl_b32 s{sMx}, s{sW}, 12
      s_lshl_b32 s{sMq}, s{sW}, 11
      s_lshl_b32 s{sSq}, s{sW}, 15
      s_lshl_b32 s{sT0}, s{sQB}, 7
      s_add_u32 s{sSq}, s{sSq}, s{sT0}""")
    trickle = []
    def trk(all_=False):
        while trickle:
            for t_ in trickle.pop(0): a.label(t_[:-1]) if t_.endswith(":") else a.lg(t_)
            if not all_: break
    def ldW(u, m=None):
        for i in range(7):
            if i == 4 and m: m()
            if u == 0 and i >= OPT['w1n']: w1off(i)
            if i % 4 == 0: a(f"s_add_u32 m0, s{sM}, {(u%2)*2*W1S + i*1024}\n s_nop 0")
            a.vm(f"buffer_load_dwordx4 v{vO+i}, s[{rB}:{rB+3}], s{sSo} offen offset:{1024*(i%4)} lds", ("W", u)); trk()
        a(f"s_add_u32 s{sSo}, s{sSo}, {64*7168}")
    def ldQ(u):
        a(f"s_add_u32 m0, s{sMq}, {WQR + (u%2)*2*WQS}\n s_nop 0")
        for i in range(2):
            a.vm(f"buffer_load_dwordx4 v{vQo+i}, s[{rPF}:{rPF+3}], s{sSq} offen offset:{1024*i} lds", ("Q", u)); trk()
        a(f"s_add_u32 s{sSq}, s{sSq}, 131072")
    def ldX(u):
        a(f"s_add_u32 m0, s{sMx}, {XR + (u%3)*XS}\n s_nop 0")
        for i in range(4):
            a.vm(f"buffer_load_dwordx4 v{vXo+i}, s[{rA}:{rA+3}], s{sSx} offen offset:{1024*i} lds", ("X", u)); trk()
        a(f"s_add_u32 s{sSx}, s{sSx}, 128")
    plainwait = a.wait
    def pwait(vm=(), lg=()):
        tags = vm if isinstance(vm, list) else [vm]
        idx = max([k for k, x in enumerate(a.vmq) if x in tags], default=-1)
        isP = lambda x: isinstance(x, tuple) and x[0] == "P"
        rest = a.vmq[idx + 1:]
        if idx < 0 or not any(map(isP, rest)): return plainwait(vm, lg)
        assert lg == ()
        n0 = sum(not isP(x) for x in rest); l = a.newlabel("L_pw")
        for g_ in sorted({x[1] for x in rest if isP(x)}) if OPT["pexact"] else []:
            l2 = a.newlabel("L_pw")
            a(f"s_cmp_lg_u32 s{sGrp}, {g_}\n s_cbranch_scc1 {l2}\n s_waitcnt vmcnt({n0 + rest.count(('P', g_))})\n s_branch {l}")
            a.label(l2)
        a(f"s_waitcnt vmcnt({n0})"); a.label(l)
        a.vmq[:] = rest
    a.wait = pwait
    a.vmq.clear(); a.lgq.clear()
    if OPT["rot"]:
        a(f"s_add_u32 s{sT0}, s{sRB}, s{sPOS}\n s_bitcmp1_b32 s{sT0}, 0\n s_cbranch_scc0 L_d0a")
        ldW(0); ldX(0); ldQ(0)
        a("s_branch L_d0b")
        a.label("L_d0a"); a.vmq.clear()
    ldX(0); ldQ(0); ldW(0)
    if OPT["rot"]: a.label("L_d0b")
    if OPT["d0prio"]: a("s_setprio 1")
    if OPT["d0prio"] == 2: a("s_waitcnt vmcnt(6)")
    a(f"s_cmp_eq_u32 s{sW}, 3\n s_cbranch_scc1 L_st2")
    q0 = list(a.vmq)
    for path in (0, 2):
        section(f"st{path}")
        a.label(f"L_st{path}")
        a.vmq[:] = q0; a.lgq.clear()
        pfs = lambda t: None
        if path == 0: pass
        else:
            assert OPT["lut"] == 0
            a(f"""s_and_b32 s{sGrp}, s{sI}, 7
              s_lshl_b32 s{sT0}, s{sGrp}, 5
              s_and_b32 s{sT1}, s2, 4
              s_lshl2_add_u32 s{sT0}, s{sT1}, s{sT0}
              s_lshr_b32 s{sT1}, s{sI}, 3
              s_lshl2_add_u32 s{sT0}, s{sT1}, s{sT0}
              s_and_b32 s{sT1}, s2, 3
              s_mul_i32 s{sPo}, s{sT0}, 7168
              s_mul_i32 s{sT2}, s{sT1}, 1792
              s_add_u32 s{sPo}, s{sPo}, s{sT2}
              s_lshl2_add_u32 s{sPm}, s{sT0}, s{sT1}
              s_lshl_b32 s{sPm}, s{sPm}, 9
              s_and_b32 s{sT1}, s2, 7
              s_lshl_b32 s{sT1}, s{sT1}, 5
              s_add_u32 s{sT1}, s{sT1}, s{sI}
              s_lshl_b32 s{sIT}, s{sT1}, 14
              v_lshrrev_b32 v16, 3, v0
              v_lshlrev_b32 v16, 11, v16
              v_and_b32 v17, 7, v0
              v_lshl_add_u32 v{vP+0}, v17, 7, v16
              v_lshlrev_b32 v{vP+1}, 7, v0
              v_mul_u32_u24 v16, 7168, v2
              v_lshl_add_u32 v{vP+2}, v1, 7, v16
              v_lshrrev_b32 v16, 2, v0
              v_and_b32 v17, 3, v0
              v_lshlrev_b32 v17, 7, v17
              v_lshl_add_u32 v{vP+3}, v16, 11, v17""")
            def pfW(so, sm, vm):
                a("s_mov_b32 exec_lo, 0x3fff3fff\n s_mov_b32 exec_hi, 0x3fff3fff")
                vm(f"buffer_load_dword v250, v{vP+2}, s[{rB}:{rB+3}], s{so} offen{NT}")
                a("s_mov_b64 exec, 0xffff")
                vm(f"buffer_load_dword v250, v{vP+3}, s[{rPF}:{rPF+3}], s{sm} offen{NT}")
                a("s_mov_b64 exec, -1")
            def p0():
                if OPT["nopf"]: return
                a(f"s_mov_b32 exec_lo, 0x0f0f0f0f\n s_mov_b32 exec_hi, 0x0f0f0f0f")
                a.vm(f"buffer_load_dword v250, v{vP+0}, s[{rA}:{rA+3}], s{sIT} offen{NT}")
                a(f"""s_cmp_lt_u32 s{sGrp}, {LEAD}
                  s_cselect_b32 s{sT0}, s{sPo}, {OOB}
                  s_cselect_b32 s{sT1}, s{sPm}, {OOB}""")
                pfW(sT0, sT1, a.vm)
                a(f"""s_cselect_b32 s{sT0}, {256*7168}, 0
                  s_cselect_b32 s{sT1}, {256*2048}, 0
                  s_add_u32 s{sPo}, s{sPo}, s{sT0}
                  s_add_u32 s{sPm}, s{sPm}, s{sT1}
                  s_and_b32 s{sIT}, s{sIT}, {31 << 17}
                  v_lshrrev_b32 v16, 1, v0
                  v_and_b32 v17, 1, v0
                  v_lshlrev_b32 v17, 7, v17
                  v_lshl_add_u32 v{vP+0}, v16, 11, v17""")
            def pfs(t):
                if OPT["nopf"]: return
                if t + LEAD < 32:
                    l = a.newlabel("L_np")
                    a(f"s_cmp_lg_u32 s{sGrp}, {(t+LEAD)%8}\n s_cbranch_scc1 {l}")
                    pv_ = lambda x: a.vm(x, ("P", (t + LEAD) % 8))
                    pfW(sPo, sPm, pv_)
                    a(f"s_add_u32 s{sPo}, s{sPo}, {256*7168}\n s_add_u32 s{sPm}, s{sPm}, {256*2048}")
                    if t < 6:
                        for k_ in range(2):
                            pv_(f"buffer_load_dword v250, v{vP+0}, s[{rA}:{rA+3}], s{sIT} offen offset:{512+256*t}{NT}"); a(f"s_add_u32 s{sIT}, s{sIT}, 65536")
                    if OPT["pf2"] and t // 8 == OPT["pf2b"]:
                        srd(rD, pW2, 3584 * 2048)
                        if OPT["loc2"]:
                            a(f"""s_bfe_u32 s{sT0}, s2, {hex(((3-LC) << 16) + LC)}
                              s_lshl_b32 s{sT0}, s{sT0}, 5
                              s_add_u32 s{sT1}, s{sT0}, s{sI}
                              s_lshr_b32 s{sT0}, s{sT1}, {6-LC}
                              s_mul_i32 s{sT0}, s{sT0}, {896*2048}
                              s_and_b32 s{sT1}, s{sT1}, {(64 >> LC) - 1}
                              s_lshl_b32 s{sT1}, s{sT1}, {13+LC}
                              s_add_u32 s{sT0}, s{sT0}, s{sT1}
                              s_and_b32 s{sT1}, s{sCB2}, {(1 << LC) - 1}
                              s_lshl_b32 s{sT1}, s{sT1}, 7
                              s_add_u32 s{sT0}, s{sT0}, s{sT1}
                              v_lshlrev_b32 v{vP+1}, {7+LC}, v0""")
                        else: a(f"s_lshr_b32 s{sT0}, s2, 6\n s_mul_i32 s{sT0}, s{sT0}, {896*2048}\n s_and_b32 s{sT1}, s2, 63\n s_lshl_b32 s{sT1}, s{sT1}, 13\n s_add_u32 s{sT0}, s{sT0}, s{sT1}")
                        pv_(f"buffer_load_dword v250, v{vP+1}, s[{rD}:{rD+3}], s{sT0} offen")
                    a.label(l)
        def kvsetup():
            if OPT["evk"]: a(f"s_bfe_u32 s{sISV}, s{sPOS}, 0x10002\n s_lshr_b32 s{sR0}, s{sPOS}, 3\n s_lshl_b32 s{sR0}, s{sR0}, 2\n s_and_b32 s{sT0}, s{sPOS}, 3\n s_add_u32 s{sR0}, s{sR0}, s{sT0}")
            else: a(f"s_and_b32 s{sISV}, s{sCB}, 1\n s_lshr_b32 s{sR0}, s{sCB}, 1")
            a(f"""s_lshl_b32 s{sR0}, s{sR0}, 4
              s_lshl_b32 s{sT0}, s{sRB}, 7
              s_add_u32 s{sR0}, s{sR0}, s{sT0}
              s_cmp_eq_u32 s{sISV}, 0
              s_cselect_b32 s{rC}, s{pWK}, s{pWV}
              s_cselect_b32 s{rC+1}, s{pWK+1}, s{pWV+1}
              s_mov_b32 s{rC+2}, 65536
              s_mov_b32 s{rC+3}, 0x20000
              v_lshlrev_b32 v{vKVD}, 4, v0""")
            if path == 2:
                srd(rD, pGATE, 2048); srd(rDBG, pDBG, 256)
                a(f"s_lshl_b32 s{sT0}, s{sR0}, 5\n s_mov_b64 exec, 15")
                a.vm(f"buffer_load_dword v250, v{vP+1}, s[{rC}:{rC+3}], s{sT0} offen"); a("s_mov_b64 exec, -1")
                a(f"s_mov_b32 m0, {GT}\n s_nop 0")
                for i in range(2): a.vm(f"buffer_load_dwordx4 v{vKVD}, s[{rD}:{rD+3}], 0 offen offset:{1024*i} lds", "gt")
        if path == 2 and OPT["p0late"] == 1: p0(); kvsetup()
        ldX(1); ldQ(1)
        if path == 2 and OPT["p0late"] == 2: p0(); kvsetup()
        if OPT["w1pre"]: ldW(1)
        stamp("a_iss")
        if OPT["kvl"]: a.wait(vm=[("W", 0), ("Q", 0), ("X", 0)]); a("s_barrier")
        a(f"s_branch L_a1m{path}")
        section("main")
        cm('A, phase 1: LDS-DMA of the GEMM operands; K (scaled by log2(e)/sqrt(32)), V and the gate of 16 rows on the side')
        a.label(f"L_a1m{path}")
        def kvsetup2():
            if path != 2: kvsetup()
            a(f"""s_lshl_b32 s{sSTG}, s{sW}, 13
              s_add_u32 s{sSTG}, s{sSTG}, {KVST}
              s_lshl_b32 s{sT0}, s{sW}, 7
              v_lshl_add_u32 v17, v2, 4, s{sT0}
              v_add_u32 v{vKG}, {GT}, v17
              v_lshrrev_b32 v16, 3, v0
              v_add_u32 v16, s{sR0}, v16
              v_and_b32 v17, 7, v0
              v_xor_b32 v17, v17, v2
              v_lshl_add_u32 v17, v17, 4, s{sT0}
              v_lshl_add_u32 v{vKX}, v16, 11, v17
              v_xor_b32 v16, 64, v{vKX}
              v_add_u32 v{vKX+1}, {16384-1024}, v16
              v_lshrrev_b32 v16, 1, v1
              v_xor_b32 v16, v16, v2
              v_lshlrev_b32 v16, 4, v16
              v_lshl_add_u32 v16, v1, 7, v16
              v_add_u32 v{vKR}, s{sSTG}, v16
              v_xor_b32 v{vKR+1}, 64, v{vKR}
              v_lshrrev_b32 v16, 4, v0
              v_and_b32 v16, 2, v16
              v_xor_b32 v16, v16, v0
              s_lshl_b32 s{sT0}, s{sW}, 12
              v_lshl_add_u32 v{vKW}, v16, 4, s{sT0}
              v_lshrrev_b32 v16, 2, v1
              v_lshl_add_u32 v16, v2, 3, v16
              v_and_b32 v17, 3, v1
              v_lshlrev_b32 v17, 3, v17
              v_lshl_add_u32 v16, v16, 6, v17
              v_and_b32 v17, 1, v2
              v_lshl_add_u32 v16, v17, 5, v16
              v_add_u32 v{vKT0}, s{sSTG}, v16
              v_xor_b32 v{vKT0+1}, 32, v{vKT0}""")
            for r in range(12): a(f"v_mov_b32 v{KAC+r}, 0")
        if not OPT["kvl"]: kvsetup2()
        def konly(l_):
            lb = a.newlabel("L_ko")
            return [f"s_cmp_lg_u32 s{sISV}, 0\n s_cbranch_scc1 {lb}"] + l_ + [lb + ":"]
        def kvX(rho):
            if 'X' in OPT['kvskip']: return
            a(f"s_add_u32 m0, s{sSTG}, 6144\n s_movk_i32 s{sT0}, {rho*512}")
            for i in range(2):
                a.vm(f"buffer_load_dwordx4 v{vKX+i}, s[{rA}:{rA+3}], s{sT0} offen offset:{1024*i} lds", ("kw", rho))
        def kvW(rho, half):
            if 'W' in OPT['kvskip']: return
            if half: a.wait0(vm=False)
            a(f"s_add_u32 m0, s{sSTG}, {4096 if half else (rho%2)*2048}\n s_mov_b32 s{sT0}, {rho*16384 + half*2048}")
            for i in range(2):
                a.vm(f"buffer_load_dwordx4 v{vKW}, s[{rC}:{rC+3}], s{sT0} offen offset:{1024*i} lds", ("kw", rho))
        def kvR(rho):
            if 'R' in OPT['kvskip']: return
            a.wait(vm=("kw", rho))
            for i in range(2):
                for nt in range(2):
                    trickle.append([f"ds_read_b64_tr_b16 {vr(KWF+8*i+4*nt+2*e,2)}, v{vKT0+nt} offset:{(4096 if i else (rho%2)*2048)+e*256}" for e in range(2)])
            trickle.append([f"ds_read_b128 {vr(KXF+4*i,4)}, v{vKR+i} offset:6144" for i in range(2)])
            trickle.append(konly([f"ds_read_b128 {vr(KGF+4*i,4)}, v{vKG} offset:{512*rho+64*i}" for i in range(2)]))
        def kvM(rho):
            if 'M' in OPT['kvskip']: return
            a.wait0(vm=False)
            lv, ld = a.newlabel("L_kv"), a.newlabel("L_kd")
            a(f"s_cmp_lg_u32 s{sISV}, 0\n s_cbranch_scc1 {lv}")
            for nt in range(2):
                for i in range(2): mf16(KAC + 4 * nt, KWF + 8 * i + 4 * nt, KXF + 4 * i)
            for i in range(2): mf16(KAC + 8, KGF + 4 * i, KXF + 4 * i)
            a(f"s_branch {ld}")
            a.label(lv)
            for nt in range(2):
                for i in range(2): mf16(KAC + 4 * nt, KXF + 4 * i, KWF + 8 * i + 4 * nt)
            a.label(ld)
        def kvP():
            if 'P' in OPT['kvskip']: return
            a(f"v_add_u32 v16, s{sSTG}, v{vKVD}\n s_nop 5")
            if OPT["pw"] == 128:
                for nt in range(2): trickle.append([f"ds_write_b128 v16, {vr(KAC+4*nt,4)} offset:{nt*1024}"])
            elif OPT["pw"] == 64:
                for k_ in range(4): trickle.append([f"ds_write_b64 v16, {vr(KAC+2*k_,2)} offset:{(k_//2)*1024+(k_%2)*8}"])
            elif OPT["pw"] == 32:
                for k_ in range(0, 8, 2): trickle.append([f"ds_write_b32 v16, v{KAC+k2} offset:{(k2//4)*1024+(k2%4)*4}" for k2 in (k_, k_ + 1)])
            trickle.append(konly([f"ds_write_b32 v16, v{KAC+8} offset:2048"]))
            if OPT["pb"]: trk(True)
            if OPT["pb"] > 1: a.wait0(vm=False)
        def kvF():
            if 'F' in OPT['kvskip']: return
            a(f"v_add_u32 v26, {KVST}, v{vKVD}")
            for w in range(3):
                a(f"ds_read_b128 {vr(32+8*w,4)}, v26 offset:{w*8192}\n ds_read_b128 {vr(36+8*w,4)}, v26 offset:{w*8192+1024}")
            a(f"""s_lshr_b32 s{sT3}, s{sR0}, 5
              s_lshl_b32 s{sT3}, s{sT3}, 12
              s_add_u32 s{sT3}, s{sT3}, {KV_OFF}
              s_bfe_u32 s{sT4}, s{sR0}, 0x10004
              s_cmp_eq_u32 s{sISV}, 0
              s_cselect_b32 s{sT0}, {f2u(32 ** -0.5 * math.log2(math.e))}, 1.0
              s_cselect_b32 s{sT2}, 7, 9
              s_cselect_b32 s{sT5}, 0, 2048
              s_lshl_b32 s{sT4}, s{sT4}, s{sT2}
              s_add_u32 s{sT3}, s{sT3}, s{sT4}
              s_add_u32 s{sT3}, s{sT3}, s{sT5}
              s_waitcnt lgkmcnt(0)""")
            for r in range(8):
                a(f"v_add_f32 v{32+r}, v{32+r}, v{40+r}\n v_add_f32 v{48+r}, v{48+r}, v{KAC+r}\n v_add_f32 v{32+r}, v{32+r}, v{48+r}\n v_mul_f32 v{32+r}, s{sT0}, v{32+r}")
            for r in range(4): a(f"v_cvt_pk_bf16_f32 v{40+r}, v{32+2*r}, v{33+2*r}")
            a(f"s_cmp_eq_u32 s{sISV}, 0\n s_cbranch_scc1 L_nosw\n v_permlane16_swap_b32 v40, v42\n v_permlane16_swap_b32 v41, v43")
            a.label("L_nosw")
            a.vm(f"buffer_store_dwordx4 v[40:43], v27, s[{rWS}:{rWS+3}], s{sT3} offen sc1", "pub")
        def kvF0():
            a(f"""v_bfe_u32 v16, v1, 2, 1
              v_lshlrev_b32 v16, 10, v16
              v_lshl_add_u32 v16, v2, 8, v16
              v_lshrrev_b32 v17, 3, v1
              v_lshl_add_u32 v16, v17, 6, v16
              v_and_b32 v17, 3, v1
              v_lshl_add_u32 v27, v17, 4, v16
              s_cmp_eq_u32 s{sISV}, 0
              s_cbranch_scc1 L_kadr
              v_and_b32 v16, 1, v2
              v_lshlrev_b32 v16, 10, v16
              v_lshrrev_b32 v17, 1, v2
              v_lshl_add_u32 v16, v17, 8, v16
              v_lshl_add_u32 v27, v1, 4, v16""")
            a.label("L_kadr")
        def kvF2():
            if 'F' in OPT['kvskip']: return
            a(f"s_mov_b32 s{sT0}, {OOB}\n v_lshlrev_b32 v20, 2, v0\n s_cmp_lg_u32 s{sISV}, 0\n s_cbranch_scc1 L_nogate")
            for w in range(3): a(f"ds_read_b32 v{64+w}, v26 offset:{w*8192+2048}")
            a(f"""s_lshl_b32 s{sT0}, s{sR0}, 2
              s_add_u32 s{sT0}, s{sT0}, {G_OFF}
              s_waitcnt lgkmcnt(0)
              v_add_f32 v64, v64, v65
              v_add_f32 v66, v66, v{KAC+8}
              v_add_f32 v64, v64, v66
              v_mul_f32 v64, {f2u(-math.log2(math.e))}, v64
              v_exp_f32 v64, v64
              s_nop 0
              v_add_f32 v64, 1.0, v64
              v_rcp_f32 v64, v64""")
            a.label("L_nogate")
            a("s_mov_b64 exec, 0xffff")
            a.vm(f"buffer_store_dword v64, v20, s[{rWS}:{rWS+3}], s{sT0} offen sc1", "pub"); a("s_mov_b64 exec, -1")
        def kvA():
            a(f"""s_lshl_b32 s{sT0}, s{sRB}, 4
              s_add_u32 s{sT0}, s{sT0}, s{sCB}
              s_lshl_b32 s{sT0}, s{sT0}, 2
              s_add_u32 s{sT0}, s{sT0}, {KF_OFF}
              v_mov_b32 v16, 1
              v_mov_b32 v17, 0""")
            a.wait(vm="pub")
            a("s_mov_b64 exec, 1"); a.vm(f"buffer_store_dword v16, v17, s[{rWS}:{rWS+3}], s{sT0} offen sc1"); a("s_mov_b64 exec, -1")
        def clr():
            a(f"""s_and_b32 s{sT0}, s2, 0xc1
              s_cbranch_scc1 L_noclr
              s_lshl_b32 s{sT0}, s2, 11
              s_add_u32 s{sT0}, s{sT0}, {FL_OFF}
              s_lshl_b32 s{sT1}, s2, 4
              s_add_u32 s{sT1}, s{sT1}, {KF_OFF}
              v_lshrrev_b32 v16, 1, v0
              v_and_b32 v17, 1, v0
              v_lshlrev_b32 v17, 4, v17
              v_lshl_add_u32 v16, v16, 7, v17
              {chr(10).join(f"buffer_store_dwordx4 v[{KAC}:{KAC+3}], v{vKVD}, s[{rWS}:{rWS+3}], s{sT0} offen offset:{1024*k_} sc1" for k_ in range(4)) if OPT["clrf"] else f"buffer_store_dwordx4 v[{KAC}:{KAC+3}], v16, s[{rWS}:{rWS+3}], s{sT0} offen sc1"}
              s_mov_b64 exec, 3
              buffer_store_dwordx4 v[{KAC}:{KAC+3}], v16, s[{rWS}:{rWS+3}], s{sT1} offen sc1
              s_mov_b64 exec, -1""")
            a.label("L_noclr")
        def clrdone():
            a(f"""s_and_b32 s{sT0}, s2, 0xc1
              s_cbranch_scc1 L_noclr2
              s_waitcnt vmcnt(0)
              s_lshl_b32 s{sT0}, s2, 1
              v_mov_b32 v16, 1
              v_mov_b32 v17, 0
              s_mov_b64 exec, 1
              buffer_store_dword v16, v17, s[{rDBG}:{rDBG+3}], s{sT0} offen sc1
              s_mov_b64 exec, -1""")
            a.label("L_noclr2")
        def kvPoll0a():
            a(f"v_and_b32 v19, 31, v0\n v_lshlrev_b32 v19, 2, v19"); a.vm(f"buffer_load_dword v18, v19, s[{rDBG}:{rDBG+3}], 0 offen sc1", "p0")
        def kvPoll0():
            a(f"s_mov_b32 s{sT1}, {SPIN_MAX}")
            a.wait(vm="p0")
            a.label("L_poll0")
            a(f"""v_cmp_ne_u32 vcc, 1, v18
              s_sub_u32 s{sT1}, s{sT1}, 1
              s_cbranch_vccz L_poll0x
              s_sleep 16
              buffer_load_dword v18, v19, s[{rDBG}:{rDBG+3}], 0 offen sc1
              s_waitcnt vmcnt(0)
              s_cmp_lg_u32 s{sT1}, 0
              s_cbranch_scc1 L_poll0""")
            a.label("L_poll0x")
        def kvPoll1a():
            a(f"s_mov_b32 s{sT3}, {KF_OFF}"); a.vm(f"buffer_load_dwordx4 v[96:99], v{vKVD}, s[{rWS}:{rWS+3}], s{sT3} offen sc1", "p1")
        def kvPoll1():
            a(f"s_mov_b32 s{sT1}, {SPIN_MAX}")
            a.wait(vm="p1")
            a.label("L_poll1")
            a(f"""v_and_b32 v96, v96, v97
              v_and_b32 v98, v98, v99
              v_and_b32 v96, v96, v98
              v_cmp_ne_u32 vcc, 1, v96
              s_sub_u32 s{sT1}, s{sT1}, 1
              s_cbranch_vccz L_poll1x
              s_sleep 16
              buffer_load_dwordx4 v[96:99], v{vKVD}, s[{rWS}:{rWS+3}], s{sT3} offen sc1
              s_waitcnt vmcnt(0)
              s_cmp_lg_u32 s{sT1}, 0
              s_cbranch_scc1 L_poll1""")
            a.label("L_poll1x")
        def kvD(c):
            if c == 0:
                a(f"s_add_u32 s{rE}, s{pWS}, {KV_OFF}\n s_addc_u32 s{rE+1}, s{pWS+1}, 0\n s_mov_b32 s{rE+2}, 0x40000\n s_mov_b32 s{rE+3}, 0x20000")
                a(f"s_lshl_b32 s{sIT}, s{sW}, 12")
            a(f"s_add_u32 m0, s{sIT}, {KVR + ((c+2)%4)*16384}\n s_add_u32 s{sT0}, s{sIT}, {c*16384}")
            for i in range(4):
                a.vm(f"buffer_load_dwordx4 v{vKVD}, s[{rE}:{rE+3}], s{sT0} offen offset:{1024*i} sc1 lds", ("kv", c))
        def kvDr(c):
            a(f"s_add_u32 s{sT0}, s{sIT}, {c*16384}")
            for i in range(4):
                a.vm(f"buffer_load_dwordx4 {vr(KVREG+16*(c-4)+4*i,4)}, v{vKVD}, s[{rE}:{rE+3}], s{sT0} offen offset:{1024*i} sc1", ("kv", c))
        def ldG():
            a(f"""s_lshl_b32 s{sT1}, s{sRB}, 9
              s_lshl_b32 s{sT2}, s{sW}, 7
              s_add_u32 s{sT1}, s{sT1}, s{sT2}
              s_add_u32 s{sT1}, s{sT1}, {G_OFF}
              v_lshlrev_b32 v22, 2, v1""")
            for h in range(2): a.vm(f"buffer_load_dword v{vG+h}, v22, s[{rWS}:{rWS+3}], s{sT1} offen offset:{64*h} sc1")
        def low(f):
            return (lambda: (a("s_setprio 0"), f(), a("s_setprio 1"))) if OPT["lowv"] else f
        post = {k: [] for k in range(33)}; pre = {k: [] for k in range(33)}; mid = {k: [] for k in range(33)}
        if not OPT["nokv"]:
            st = [int(c, 16) for c in OPT["kvs"][1:]]
            assert all(b - a_ >= 3 for a_, b in zip(st, st[1:])) and st[3] <= 13
            for rho, t0 in enumerate(st):
                pre[t0+4].append(lambda rho=rho: kvR(rho)); mid[t0+5].append(lambda rho=rho: kvM(rho))
                post[t0+2].append(lambda rho=rho: kvX(rho))
                post[t0].append(lambda rho=rho: kvW(rho, 0)); post[t0+1].append(lambda rho=rho: kvW(rho, 1))
            t0 = st[3] + 6
            if path < 2: pre[t0].append(kvP); post[t0].append(lambda: a.wait0(vm=False))
            if path == 2:
                post[2] += [clr]; pre[7].append(clrdone); post[t0].append(low(kvF0)); post[3].append(lambda: a.wait(vm="gt"))
                pre[t0+1] += [kvF]; mid[t0+2] += [kvF2]; pre[t0+2] += [kvPoll0a]; mid[t0+4] += [kvPoll0, kvA]
                pre[OPT["p1"]].append(kvPoll1a); post[OPT['p1'] + 1].append(kvPoll1)
            if OPT["kvl"]: (mid if OPT["kvl"] == 1 else post)[0].append(kvsetup2)
            for k_ in range(4): mid[22 + k_].append(low(lambda k_=k_: attention_setup(k_)))
            PRE = [20 + int(c, 16) for c in OPT["pre"][1:]]
            assert PRE == sorted(PRE) and PRE[0] > OPT["p1"] + 1 and PRE[2] >= 27 and PRE[3] >= 29 and PRE[1] <= 30
            post[PRE[0]].append(ldG)
            for c in range(4): post[PRE[c]].append(lambda c=c: kvD(c))
            for c in range(OPT["kvreg"]): post[PRE[4 + c]].append(lambda c=c: kvDr(4 + c))
        stamp("a_set")
        for s_ in range(31):
            u = s_ // 2
            a.wait(vm=[("W", u), ("Q", 0), ("X", 0)] if s_ % 2 == 0 else [("Q", u + 1), ("X", u + 1)])
            if s_ == 0: stamp("a_w0")
            if s_ == 29:
                if path < 2: a("s_branch L_a1done"); qj = list(a.vmq); break
                a.label("L_a1done")
                assert a.vmq[-len(qj):] == qj or qj[-len(a.vmq):] == a.vmq, (qj, a.vmq)
                if len(qj) > len(a.vmq): a.vmq[:] = qj
            if s_ or not OPT["kvl"]: a("s_barrier")
            if s_ == 0: stamp("a_b0")
            if s_ in (8, 16, 24, 28): stamp(f"a_{s_}")
            if OPT["steps"] and path == 2 and s_ < 29:
                a("s_memtime s[98:99]"); a.wait0(vm=False); a(f"v_writelane_b32 v160, s98, {s_}")
                if s_ == 28:
                    a(f"s_lshl_b32 s98, s2, 8\n s_add_u32 s98, s98, {TS_OFF+0x10000}\n v_lshlrev_b32 v161, 2, v0\n buffer_store_dword v160, v161, s[{rWS}:{rWS+3}], s98 offen")
            for f in pre[s_]: f()
            midf = lambda: [f() for f in mid[s_]]
            if s_ % 2 == 0:
                if u + 1 < 16 and not (u == 0 and OPT["w1pre"]): ldW(u + 1, midf)
                else: midf()
                if s_ == OPT["xr"]: ldX(u + 2)
            else:
                if u + 2 < 16: ldQ(u + 2)
                midf()
                xa = 3 if s_ > OPT["xr"] else 2
                if u + xa < 16: ldX(u + xa)
            trk(True)
            for f in post[s_]: f()
            if not OPT["peven"]: pfs(s_)
            elif s_ % 2 == 0: pfs(s_); pfs(s_ + 1)
    a.wait = plainwait
    a.wait(vm=[("kv", 1)])
    a.vmq[:] = [("kv", 2)] * 4 + [None if OPT["kvreg"] else ("kv", 3)] * 4
    a("s_barrier")
    q_ = list(a.vmq)
    for f in post[31]: f()
    a.vmq[:] = q_
    attention_setup(4)
    a("s_barrier")

QF, OA, LA, SB, PB, KF, VF, ONES = 32, 48, 80, 88, 120, 136, 176, 168
vKc, vKn, vSy, vOne, vCnt, vIdx, vQa, vSt = 248, 249, 251, 252, 20, 255, 30, 31
vD, vDW = 240, 244
def wtile_offsets(dst):
    a(f"""v_lshrrev_b32 v22, 3, v0
      v_lshlrev_b32 v22, 11, v22
      v_and_b32 v23, 1, v2
      v_lshlrev_b32 v23, 2, v23
      v_and_b32 v24, 7, v0
      v_xor_b32 v23, v23, v24
      v_lshl_add_u32 v22, v23, 4, v22
      s_lshl_b32 s{sT0}, s{sCB2}, 7
      v_add_u32 v22, s{sT0}, v22""")
    for i in range(4): a(f"v_xor_b32 v23, {32*(i%2)}, v22\n v_add_u32 v{dst+i}, {i*16384-i*1024}, v23")
def lsum(z, P):
    a(f"v_smfmac_f32_16x16x64_bf16 {vr(LA+4*(z//2),4)}, {vr(ONES+4*(z%2),4)}, {vr(P,8)}, v{vIdx}")
sKo, sCn, sDo, sMb, sDs, sO0, sO1 = sA, sB, sC, sD, sE, sF, sG
def attention_setup(part):
    if part == 0: wtile_offsets(vDW)
    if part == 1:
        a(f"""s_lshl_b32 s{sT0}, s{sW}, 12
          s_add_u32 s{sT1}, s{sT0}, {QX}
          v_lshl_add_u32 v{vQa}, v0, 4, s{sT1}
          v_add_u32 v{vKc}, {KVR}, v{vKVD}
          v_mov_b32 v{vKn}, {SYNC}
          v_and_b32 v22, 2, v1
          v_mov_b32 v23, 0x3f803f80
          v_cmp_eq_u32 vcc, 0, v22
          v_lshl_add_u32 v{vSy}, v0, 2, v{vKn}
          v_sub_u32 v{vOne}, 1, v0
          v_max_i32 v{vOne}, 0, v{vOne}
          v_cndmask_b32 v{ONES}, 0, v23, vcc
          v_cndmask_b32 v{ONES+1}, 0, v23, vcc
          v_xor_b32 v{ONES+4}, v{ONES}, v23
          v_xor_b32 v{ONES+5}, v{ONES}, v23
          v_mov_b64 {vr(ONES+2,2)}, {vr(ONES,2)}
          v_mov_b64 {vr(ONES+6,2)}, {vr(ONES+4,2)}
          v_and_b32 v22, 1, v1
          v_mul_u32_u24 v22, 0xaaaa, v22
          v_or_b32 v{vIdx}, 0x4444, v22""")
    if part == 2:
        a(f"""v_and_b32 v22, 1, v2
          v_lshlrev_b32 v22, 9, v22
          v_lshrrev_b32 v23, 1, v2
          v_lshl_add_u32 v22, v23, 8, v22
          v_lshl_add_u32 v{vSt}, v1, 4, v22""")
        for r in range(4): a(f"v_mov_b32 v{vD+r}, v{vKVD}")
        for r in list(range(PB + 8, PB + 16, 2)) + list(range(VF + 16, VF + 32, 2)): a(f"v_mov_b64 {vr(r,2)}, 0")
    if part == 3:
        for r in range(OA, OA + 40, 2): a(f"v_mov_b64 {vr(r,2)}, 0")
    if part == 4:
        a(f"""s_lshl_b32 s{sT0}, s{sW}, 12
          s_mov_b32 s{sCn}, 4
          s_add_u32 s{sDo}, s{sT0}, {3*16384}
          s_mov_b32 s{sDs}, 16384
          s_mov_b32 s{sKo}, 16384
          s_add_u32 s{sMb}, s{sT0}, {KVR}
          s_mul_i32 s{sO0}, s{sRB}, {RBSZ}
          s_lshl_b32 s{sT1}, s{sQB}, 14
          s_add_u32 s{sO0}, s{sO0}, s{sT1}
          s_lshl_b32 s{sT1}, s{sW}, 11
          s_add_u32 s{sO0}, s{sO0}, s{sT1}
          s_add_u32 s{sO0}, s{sO0}, {112*8192}
          s_add_u32 s{sO1}, s{sO0}, 8192
          s_mov_b32 s{sIT}, 0""")
def attention():
    kvo = lambda T: ((T // 4 + 2) % 4) * 16384 + (T % 4) * 4096
    def rdK(U, e):
        for k_ in range(2): a.lg(f"ds_read_b128 {vr(KF+16*(U%2)+8*e+4*k_,4)}, v{vKc} offset:{kvo(2*U+e)+1024*k_}", "kv")
    def rdV(U, e):
        for k_ in range(2): a.lg(f"ds_read_b128 {vr(VF+16*(U%2)+8*e+4*k_,4)}, v{vKc} offset:{kvo(2*U+e)+2048+1024*k_}", "kv")
    a.lg(f"ds_read_b128 {vr(QF,4)}, v{vQa}")
    rdK(0, 0); rdK(0, 1)
    a.lgq[-1] = "k0"
    a.lg(f"ds_read_b128 {vr(QF+4,4)}, v{vQa} offset:1024", "q1")
    for i in range(2, 4): a.lg(f"ds_read_b128 {vr(QF+4*i,4)}, v{vQa} offset:{1024*i}")
    rdV(0, 0); rdV(0, 1)
    a.wait(lg="k0")
    for k_ in range(4): mf16(SB + 4 * k_, KF + 4 * k_, QF, "0")
    a.wait(lg="q1")
    a("s_nop 3")
    a.raw(".p2align 3")
    cm("attention: S^T = K Q^T, P = exp2(S), O^T += V^T P, row sums by a sparse MFMA; K/V stream through a 4-slot LDS ring.\nZero stands in for the row maximum here; the check after the loop falls back to the true maximum (L_slow)")
    a.label("L_att")
    def pv(k_, U, z, P): e_ = int(k_ in (1, 2)); mf16(OA + 8 * z + 4 * (k_ // 2), VF + 16 * (U % 2) + 8 * e_ + 4 * (k_ // 2), P + 4 * e_)
    def slot(n, hooks):
        U1, z1 = divmod(n + 1, 4); Up, zp = divmod(n - 1, 4)
        S = SB + 16 * (n % 2); S1 = SB + 16 * ((n + 1) % 2)
        P = PB + 8 * (n % 2); Pp = PB + 8 * ((n - 1) % 2)
        ne = nc = 0
        for ch in OPT["pat"]:
            if ch == "e": a(f"v_exp_f32 v{S+ne}, v{S+ne}"); ne += 1
            elif ch == "c": assert ne >= 2 * nc + 2; a(f"v_cvt_pk_bf16_f32 v{P+nc}, v{S+2*nc}, v{S+2*nc+1}"); nc += 1
            elif ch == "w": a.wait(lg=["kv", "cnt"], vm=hooks.get("vm", ()))
            elif ch in "qrst": k_ = "qrst".index(ch); mf16(S1 + 4 * k_, KF + 16 * (U1 % 2) + 4 * k_, QF + 4 * z1, "0")
            elif ch in "uvxy": pv("uvxy".index(ch), Up, zp, Pp)
            elif ch == "S": lsum(zp, Pp)
            else:
                for f in hooks.get(int(ch), []): f()
        assert ne == 16 and nc == 8
        pt = OPT["pat"]; assert pt.index("4") > pt.index("w")
    def body(it):
        for cc in range(4):
            c_ = 4 * it + cc
            for k in range(8):
                n = 8 * c_ + k; U, z = divmod(n, 4)
                hk = {4: [lambda: rdK(U + 1, z) if z < 2 else rdV(U + 1, z - 2)]}
                KA = OPT["arrk"]
                if k == KA:
                    hk["vm"] = ("kv", c_ + 1); hk[4].append(lambda: a.lg(f"ds_add_u32 v{vSy}, v{vOne}"))
                if k == 1:
                    hk[0] = [lambda: a(f"s_add_u32 m0, s{sMb}, {((c_+1)%4)*16384}")]
                    if cc == 1: hk[1] = [lambda: a(f"s_cmp_eq_u32 s{sIT}, 3")]; hk[2] = [lambda: (a("s_cbranch_scc1 L_attwo"), a.label("L_attwo_r"))]
                if k == 2: hk[4].append(lambda: a.lg(f"ds_read_b32 v{vCnt}, v{vKn}", "cnt"))
                if k == 3: hk[5] = [lambda: a(f"v_cmp_gt_u32 vcc, s{sCn}, v{vCnt}")]
                pre_ = cc <= OPT["kvreg"]
                if k == 4:
                    hk[0] = [lambda: (a(f"s_cbranch_vccnz L_attspin{cc}"), a.label(f"L_attgo{cc}"))]
                    hk[1] = [lambda: a(f"s_add_u32 s{sCn}, s{sCn}, 4")]
                    if pre_: hk[2] = [lambda: a(f"s_cmp_eq_u32 s{sIT}, 0")]
                if k in (4, 5):
                    def dma(i):
                        if OPT["anodma"]: return
                        if pre_: a(f"s_cbranch_scc1 L_{'no' if cc == 0 else 'reg'}dma{cc}_{i}")
                        for k2 in (i, i + 1):
                            t_ = f"buffer_load_dwordx4 v{vD+k2}, s[{rE}:{rE+3}], s{sDo} offen offset:{1024*k2} sc1 lds"
                            a.vm(t_, ("kv", c_ + 3)) if c_ > OPT["kvreg"] else a(t_)
                        if pre_: a.label(f"L_nodma{cc}_{i}")
                    if OPT["dpos"] == 0: hk[4].append(lambda: dma(2 * (k - 4)))
                    elif OPT["dpos"] == 1: hk[4].insert(0, lambda: dma(2 * (k - 4)))
                    else: hk[6] = [lambda: dma(2 * (k - 4))]
                if k == 7:
                    hk[0] = [lambda: a(f"s_add_u32 s{sDo}, s{sDo}, s{sKo if cc == 1 else sDs}")]
                    if cc == 3: hk[1] = [lambda: a(f"s_add_u32 s{sIT}, s{sIT}, 1")]; hk[2] = [lambda: a(f"s_cmp_lt_u32 s{sIT}, 4")]
                slot(n, hk)
        a("s_cbranch_scc1 L_att")
    a.loop(body, "att", 3)
    a("s_nop 0")
    lsum(3, PB + 8)
    if OPT["hrel"]: a(f"ds_add_u32 v{vSy}, v{vOne}")
    for k_ in range(4): pv(k_, 31, 3, PB + 8)
    stamp("a_att")
    a(f"s_mov_b32 s{sIT}, 0")
    cm('O * gate / rowsum -> workspace')
    a.label("L_attfin")
    def fin(k):
        T_ = SB + 4 * k
        a(f"v_permlane16_swap_b32 v{T_}, v{T_+2}\n v_permlane16_swap_b32 v{T_+1}, v{T_+3}")
        a(f"buffer_store_dwordx4 {vr(T_,4)}, v{vSt}, s[{rWS}:{rWS+3}], s{sO0+k//2} offen offset:{1024*(k%2)} sc1")
    for k in range(4):
        a(f"v_add_f32 v{24+k}, v{LA+2*k}, v{LA+2*k+1}")
        a(f"v_rcp_f32 v22, v{24+k}")
        if k: fin(k - 1)
        else: a("s_nop 0")
        a(f"v_mul_f32 v22, v22, v{vG+k%2}")
        for r in range(4):
            d = OA + 8 * k + 2 * r
            a(f"v_mul_f32 v{d}, v{d}, v22\n v_mul_f32 v{d+1}, v{d+1}, v22\n v_cvt_pk_bf16_f32 v{SB+4*k+r}, v{d}, v{d+1}")
    a("s_nop 1"); fin(3)
    a(f"s_cmp_lg_u32 s{sIT}, 0\n s_cbranch_scc1 L_attok")
    a(f"s_waitcnt vmcnt(4) lgkmcnt(0)\n ds_add_u32 v{vSy}, v{vOne} offset:12")
    cm('stand-in check: every row sum in [2^-40, 2^100] and nothing infinite or NaN, else redo with the true maximum')
    a(f"s_mov_b32 s{sT0}, {f2u(2.0**-40)}\n s_mov_b32 s{sT1}, {f2u(2.0**100)}\n v_max3_f32 v28, v24, v25, v26\n v_max_f32 v28, v28, v27\n v_mov_b32 v29, 0")
    for r in list(range(OA, OA + 32, 2)) + [24, 26]: a(f"v_pk_fma_f32 v[28:29], {vr(r,2)}, 0, v[28:29]")
    a(f"""v_add_f32 v28, v28, v29
      v_min3_f32 v29, v24, v25, v26
      v_min_f32 v29, v29, v27
      v_cmp_nle_f32 vcc, v28, s{sT1}
      v_cmp_nge_f32 s[{sT2}:{sT3}], v29, s{sT0}
      s_or_b64 vcc, vcc, s[{sT2}:{sT3}]""")
    if OPT["forceslow"]: a("s_branch L_slow")
    a("s_cbranch_vccnz L_slow")
    a.label("L_attok")
    setflag(1)
    stamp("a_end")
    if OPT["padto"]:
        a("s_barrier\n s_barrier" if OPT["ebar"] else "s_barrier")
        a.label("L_pad2")
        a(f"s_memrealtime s[98:99]\n s_waitcnt lgkmcnt(0)\n s_sleep 8\n s_sub_u32 s98, s98, s96\n s_cmp_lt_u32 s98, {OPT['padto']}\n s_cbranch_scc1 L_pad2")
    dump_ts_and_end()
    a.label("L_attwo")
    srd(rE, pWO, 1024 * 2048)
    a(f"s_lshl_b32 s{sDo}, s{sW}, 17\n s_add_u32 s{sDo}, s{sDo}, {524288+65536}\n s_mov_b32 s{sDs}, 65536\n s_mov_b32 s{sKo}, {2*524288-65536}")
    a(f"v_mov_b64 {vr(vD,2)}, {vr(vDW,2)}\n v_mov_b64 {vr(vD+2,2)}, {vr(vDW+2,2)}\n s_branch L_attwo_r")
    for cc in range(1, OPT["kvreg"] + 1):
        for i in (() if OPT["anodma"] else (0, 2)):
            a.label(f"L_regdma{cc}_{i}")
            if i == 0: a(f"s_waitcnt vmcnt(0)\n v_add_u32 v22, s{sMb}, v{vKVD}")
            for k2 in (i, i + 1): a(f"ds_write_b128 v22, {vr(KVREG+16*(cc-1)+4*k2,4)} offset:{((cc+1)%4)*16384+1024*k2}")
            a(f"s_branch L_nodma{cc}_{i}")
    for cc in range(4):
        a.label(f"L_attspin{cc}")
        a(f"s_mov_b32 s{sT2}, {SPIN_MAX}")
        a.label(f"L_attspin{cc}b")
        a(f"""ds_read_b32 v{vCnt}, v{vKn}
          s_waitcnt lgkmcnt(0)
          v_cmp_gt_u32 vcc, s{sCn}, v{vCnt}
          s_sub_u32 s{sT2}, s{sT2}, 1
          s_cbranch_vccz L_attgo{cc}
          s_cmp_lg_u32 s{sT2}, 0
          s_cbranch_scc1 L_attspin{cc}b
          s_branch L_attgo{cc}""")
    cm('exact path: pass 1 finds the true row maximum, pass 2 subtracts it (through the accumulator input of the score MFMA)')
    a.label("L_slow")
    NM = 208
    a(f"s_add_u32 s{rE}, s{pWS}, {KV_OFF}\n s_addc_u32 s{rE+1}, s{pWS+1}, 0\n s_mov_b32 s{rE+2}, 0x40000\n s_mov_b32 s{rE+3}, 0x20000")
    a(f"s_waitcnt vmcnt(0) lgkmcnt(0)\n s_mov_b32 s{sT0}, 0\n s_mov_b32 s{sIT}, 1")
    for k in range(4): a(f"v_mov_b32 v{24+k}, 0xff800000")
    a.label("L_slow1")
    a(f"buffer_load_dwordx4 {vr(KF,4)}, v{vKVD}, s[{rE}:{rE+3}], s{sT0} offen sc1\n buffer_load_dwordx4 {vr(KF+4,4)}, v{vKVD}, s[{rE}:{rE+3}], s{sT0} offen offset:1024 sc1\n s_waitcnt vmcnt(0)")
    for k in range(8): mf16(SB + 4 * k, KF + 4 * (k % 2), QF + 4 * (k // 2), "0")
    a("s_nop 7")
    for k in range(4):
        for r in range(0, 8, 2): a(f"v_max3_f32 v{24+k}, v{SB+8*k+r}, v{SB+8*k+r+1}, v{24+k}")
    a(f"s_add_u32 s{sT0}, s{sT0}, 4096\n s_cmp_lt_u32 s{sT0}, 0x40000\n s_cbranch_scc1 L_slow1")
    for sw in ("16", "32"):
        for k in range(4): a(f"v_mov_b32 v{16+k}, v{24+k}")
        a("s_nop 1")
        for k in range(4): a(f"v_permlane{sw}_swap_b32 v{24+k}, v{16+k}")
        for k in range(4): a(f"v_max_f32 v{24+k}, v{24+k}, v{16+k}")
    for k in range(4):
        for r in range(4): a(f"v_sub_f32 v{NM+4*k+r}, 0, v{24+k}")
    for r in range(OA, OA + 40, 2): a(f"v_mov_b64 {vr(r,2)}, 0")
    a(f"s_mov_b32 s{sT0}, 0")
    a.label("L_slow2")
    for e_ in range(2):
        for i in range(4):
            a(f"buffer_load_dwordx4 {vr((KF if i < 2 else VF)+8*e_+4*(i%2),4)}, v{vKVD}, s[{rE}:{rE+3}], s{sT0} offen offset:{1024*i} sc1")
        a(f"s_add_u32 s{sT0}, s{sT0}, 4096")
    a("s_waitcnt vmcnt(0)")
    for z in range(4):
        for k in range(4): mf16(SB + 4 * k, KF + 4 * k, QF + 4 * z, vr(NM + 4 * z, 4))
        a("s_nop 7")
        for r in range(16): a(f"v_exp_f32 v{SB+r}, v{SB+r}")
        for r in range(8): a(f"v_cvt_pk_bf16_f32 v{PB+r}, v{SB+2*r}, v{SB+2*r+1}")
        a("s_nop 1")
        for k in range(4): pv(k, 0, z, PB)
        lsum(z, PB)
    a(f"s_cmp_lt_u32 s{sT0}, 0x40000\n s_cbranch_scc1 L_slow2")
    a("s_nop 7\n s_nop 3\n s_branch L_attfin")

def setflag(which):
    if which == 0: a(f"s_lshr_b32 s{sT1}, s{sCB}, 2\n s_and_b32 s{sT2}, s{sCB}, 3")
    else: a(f"s_and_b32 s{sT1}, s{sQB}, 3\n s_and_b32 s{sT2}, s{sQB}, 12\n s_lshr_b32 s{sT2}, {sum(k << (4 * g) for k, g in enumerate(GRP))}, s{sT2}\n s_and_b32 s{sT2}, s{sT2}, 3")
    a(f"""s_lshl_b32 s{sT0}, s{sRB}, 13
      s_lshl_b32 s{sT1}, s{sT1}, 7
      s_add_u32 s{sT0}, s{sT0}, s{sT1}
      s_lshl2_add_u32 s{sT0}, s{sT2}, s{sT0}
      s_add_u32 s{sT0}, s{sT0}, {FL_OFF+16*which}
      v_mov_b32 v17, {SYNC+4+4*which}
      v_mov_b32 v15, 1""")
    if which == 0:
        if OPT["noack"] < 2: a.wait(vm="hst")
    elif OPT["noack"] & 1: a("s_waitcnt vmcnt(4)")
    else: a.wait0(lg=False)
    l = a.newlabel("L_nofl")
    a(f"""s_mov_b64 exec, 1
      ds_add_rtn_u32 v16, v17, v15
      s_mov_b64 exec, 0xffff
      v_lshlrev_b32 v17, 9, v0
      s_waitcnt lgkmcnt(0)
      v_readfirstlane_b32 s{sT1}, v16
      s_cmp_eq_u32 s{sT1}, 3
      s_cbranch_scc0 {l}
      buffer_store_dword v15, v17, s[{rWS}:{rWS+3}], s{sT0} offen {OPT['sfl'].replace('_', ' ')}""")
    a.label(l)
    a("s_mov_b64 exec, -1")
    a.lgq.clear()
def mbox(which):
    a(f"""s_lshl_b32 s{sT0}, s{sRB2}, 4
      s_add_u32 s{sT0}, s{sT0}, s{sCB2}
      s_lshl_b32 s{sT0}, s{sT0}, 2
      s_add_u32 s{sT0}, s{sT0}, s{sW}
      s_lshl_b32 s{sT0}, s{sT0}, 7
      s_add_u32 s{sT0}, s{sT0}, {FL_OFF+16*which}
      v_and_b32 v15, 3, v0
      v_lshlrev_b32 v15, 2, v15""")
def waitflag(which, name):
    mbox(which)
    a(f"s_mov_b32 s{sT1}, {SPIN_MAX}\n s_mov_b64 exec, 15")
    a.label(name)
    a(f"""buffer_load_dword v17, v15, s[{rWS}:{rWS+3}], s{sT0} offen {OPT['pfl'].replace('_', ' ')}
      s_waitcnt vmcnt(0)
      v_cmp_ne_u32 vcc, 1, v17
      s_sub_u32 s{sT1}, s{sT1}, 1
      s_cbranch_vccz {name}_x
      s_sleep {OPT['slp']}
      s_cmp_lg_u32 s{sT1}, 0
      s_cbranch_scc1 {name}""")
    a.label(name + "_x")
    a("s_mov_b64 exec, -1")
def waitlds(off, val, name, va=15):
    a(f"s_mov_b32 s{sT1}, {SPIN_MAX}\n v_mov_b32 v{va}, {SYNC+off}")
    a.label(name)
    a(f"""ds_read_b32 v17, v{va}
      s_waitcnt lgkmcnt(0)
      v_readfirstlane_b32 s{sT0}, v17
      s_cmp_ge_u32 s{sT0}, {val}
      s_cbranch_scc1 {name}_x
      s_sleep 2
      s_sub_u32 s{sT1}, s{sT1}, 1
      s_cmp_lg_u32 s{sT1}, 0
      s_cbranch_scc1 {name}""")
    a.label(name + "_x")

ACC2, HR, WF = 128, 64, 32
acc2 = lambda rt, nt: ACC2 + (rt * 4 + nt) * 4
vWD, vWR, vH, vGM = 3, 7, 11, 16
sWo, sHo, sMw, sRdy = sC, sD, sE, sF
def g2_vsetup():
    wtile_offsets(vWD)
    a(f"""s_lshl_b32 s{sT0}, s{sW}, 14
      v_lshrrev_b32 v14, 2, v1
      v_lshl_add_u32 v14, v2, 3, v14
      v_and_b32 v15, 3, v1
      v_lshlrev_b32 v15, 3, v15
      v_lshl_add_u32 v14, v14, 7, v15
      v_and_b32 v15, 1, v2
      v_lshrrev_b32 v30, 3, v1
      v_lshl_add_u32 v15, v30, 1, v15
      v_lshl_add_u32 v14, v15, 5, v14
      v_add_u32 v14, s{sT0}, v14""")
    for nt in range(4): a(f"v_xor_b32 v{vWR+nt}, {32*nt}, v14")
    for p in range(4):
        a(f"s_add_u32 s{sT0}, s{sW}, {p+1}\n s_and_b32 s{sT0}, s{sT0}, 3\n s_lshl_b32 s{sT0}, s{sT0}, 11\n v_lshl_add_u32 v{vH+p}, v0, 4, s{sT0}")
def g2_setup():
    srd(rB, pW2, 3584 * 2048)
    a(f"s_lshl_b32 s{sMw}, s{sW}, 14\n s_mul_i32 s{sWo}, s{sW}, {896*2048}")
def dmaW(i, k):
    if k == 0: a(f"s_add_u32 m0, s{sMw}, {(i%4)*4096}\n s_nop 0")
    a.vm(f"buffer_load_dwordx4 v{vWD+k}, s[{rB}:{rB+3}], s{sWo} offen offset:{1024*k} lds", ("W2", i // 2))
    if k == 3: a(f"s_add_u32 s{sWo}, s{sWo}, 65536")
def g_phase2():
    sHp, sMbx, sOb, sDl = sB, 4, 5, 6
    vPo = 29
    def ldH(i, rt):
        a.vm(f"buffer_load_dwordx4 {vr(HR+32*(i%2)+4*rt,4)}, v{vH+rt//2}, s[{rWS}:{rWS+3}], s{sHp if i % 2 else sHo} offen offset:{1024*(rt%2)} sc1", ("H", i // 2, rt // 2))
    WOFF = {32: 0, 33: 49152, 34: 49152, 35: 0}
    def rdW2(i, nt, e):
        a.lg(f"ds_read_b64_tr_b16 {vr(WF+16*(i%2)+4*nt+2*e,2)}, v{vWR+nt} offset:{WOFF.get(i, (i%4)*4096)+512*e}", ("W2", i // 2, nt))
    cm('G, phase 2: out tile [128 x 64] = (1-g) (hidden W2 + b2) + (g O) Wo, K split over the four waves')
    setflag(0)
    stamp("g_flag")
    if OPT["nog2"]: dump_ts_and_end()
    for i in range(OPT["wpre"], 4):
        for k in range(4): dmaW(i, k)
    a(f"""s_mul_i32 s{sHo}, s{sRB2}, {RBSZ}
      s_mul_i32 s{sT1}, s{sW}, {28*8192}
      s_add_u32 s{sHo}, s{sHo}, s{sT1}
      s_lshl_b32 s{sT2}, s{sRB2}, 9
      s_add_u32 s{sT2}, s{sT2}, {G_OFF}
      v_lshlrev_b32 v15, 2, v1""")
    for p in range(4):
        a(f"""s_add_u32 s{sT0}, s{sW}, {p+1}
          s_and_b32 s{sT0}, s{sT0}, 3
          s_lshl_b32 s{sT0}, s{sT0}, 7
          s_add_u32 s{sT0}, s{sT0}, s{sT2}""")
        for h in range(2): a(f"buffer_load_dword v{vGM+4*p+2*h}, v15, s[{rWS}:{rWS+3}], s{sT0} offen offset:{64*h} sc1")
    if OPT["loc2"]:
        a(f"""s_bfe_u32 s{sT0}, s2, {hex(((3-LC) << 16) + LC)}
          s_lshl_b32 s{sT0}, s{sT0}, 5
          s_add_u32 s{sT3}, s{sT0}, s{sI}
          s_lshl_b32 s{sT0}, s{sW}, {8-LC}
          s_add_u32 s{sT0}, s{sT0}, s{sT3}
          s_lshr_b32 s{sG}, s{sT0}, {7-LC}
          s_bfe_u32 s{sT1}, s{sT0}, {hex(0x20000 + 5 - LC)}
          s_mul_i32 s{sT1}, s{sT1}, {896*2048}
          s_and_b32 s{sT0}, s{sT0}, {(32 >> LC) - 1}
          s_lshl_b32 s{sT0}, s{sT0}, {13+LC}
          s_add_u32 s{sT0}, s{sT0}, s{sT1}
          s_add_u32 s{sT1}, s{sG}, 2
          s_lshl_b32 s{sT1}, s{sT1}, 18
          s_add_u32 s{sT0}, s{sT0}, s{sT1}
          s_cmp_eq_u32 s{sG}, 5
          s_cselect_b32 s{sG}, -1, s{sG}
          s_lshl_b32 s{sT1}, s{sT3}, {13+LC}
          s_and_b32 s{sT2}, s{sCB2}, {(1 << LC) - 1}
          s_lshl_b32 s{sT2}, s{sT2}, 7
          s_add_u32 s{sT0}, s{sT0}, s{sT2}
          s_add_u32 s{sT1}, s{sT1}, s{sT2}
          s_and_b32 s{sT2}, s{sI}, 1
          s_add_u32 s{sT2}, s{sT2}, {OPT["woit"]}""")
    else:
        if OPT["ev2"]: a(f"s_lshl_b32 s{sT0}, s{sW}, 8\n s_add_u32 s{sT0}, s{sT0}, s2")
        else: a(f"s_lshl_b32 s{sT0}, s2, 1\n s_add_u32 s{sT0}, s{sT0}, s{sW}\n s_add_u32 s{sT1}, s2, 512\n s_cmp_eq_u32 s{sW}, 2\n s_cselect_b32 s{sT0}, s{sT1}, s{sT0}")
        a(f"""
          s_lshr_b32 s{sG}, s{sT0}, 7
          s_bfe_u32 s{sT1}, s{sT0}, 0x20005
          s_mul_i32 s{sT1}, s{sT1}, {896*2048}
          s_and_b32 s{sT0}, s{sT0}, 31
          s_lshl_b32 s{sT0}, s{sT0}, 13
          s_add_u32 s{sT0}, s{sT0}, s{sT1}
          s_add_u32 s{sT1}, s{sG}, 2
          s_lshl_b32 s{sT1}, s{sT1}, 18
          s_add_u32 s{sT0}, s{sT0}, s{sT1}
          s_cmp_eq_u32 s{sG}, 5
          s_cselect_b32 s{sG}, -1, s{sG}
          s_lshl_b32 s{sT1}, s2, 13
          s_and_b32 s{sT2}, s{sI}, 1""")
    a(f"""
      s_cmp_eq_u32 s{sW}, 3
      s_cselect_b32 s{sA}, s{sT1}, s{sT0}
      s_cselect_b32 s{sG}, s{sT2}, s{sG}
      s_cselect_b32 s{rPF}, s{pWO}, s{pW2}
      s_cselect_b32 s{rPF+1}, s{pWO+1}, s{pW2+1}
      s_mov_b32 s{sT0}, {3584*2048}
      s_cselect_b32 s{rPF+2}, {1024*2048}, s{sT0}
      s_mov_b32 s{rPF+3}, 0x20000""")
    if OPT["ev2"] and not OPT["loc2"]: a(f"s_bitcmp1_b32 s2, 0\n s_cselect_b32 s{sG}, -1, s{sG}")
    stamp("g_pw")
    waitflag(0, "L_wh")
    stamp("g_wf")
    a.vmq.clear(); a.lgq.clear()
    rds = lambda D, nt: [lambda e_=e_, k=k: rdW2(2 * D + e_, nt, k) for e_ in range(2) for k in range(2)]
    def ldP(D, ps):
        for p in ps:
            for h in range(2): ldH(2 * D, 2 * p + h); ldH(2 * D + 1, 2 * p + h)
    pend = []
    def dstep(D, fine, extra={}, at={}):
        for p in range(4):
            ex = list(extra.get(p, [])); lq = []
            if p in at: at[p]()
            if p in (1, 2) and D < 14: lq = [lambda k=k: dmaW(2 * D + 3 + p, k) for k in range(4)]
            if OPT["gdma"] and fine and D < 14 and p == 0:
                lq = [lambda: None, lambda: None] + [lambda k=k: (a(f"s_add_u32 m0, s7, {KVR + (D % 2) * 16384}\n s_add_u32 s8, s8, 16384") if k == 0 else None,
                      a.vm(f"buffer_load_dwordx4 v{vH+3}, s[{rWS}:{rWS+3}], s8 offen offset:{1024*k} sc1 lds")) for k in range(4)]
            for nt in range(4):
                if p == 0: lgw = [("W2", D, nt)] if fine else ([("W2", D, nt + 1)] if nt % 2 == 0 else [])
                else: lgw = []
                a.wait(vm=([("H", D, p)] + ([("W2", D + 1)] if p == 3 else [])) if nt == 0 else [], lg=lgw)
                if OPT["chain"]: seq = [(nt % 2, 0), (nt % 2, 1), (1 - nt % 2, 1), (1 - nt % 2, 0)]
                else: seq = [(0, 0), (1, 0), (1, 1), (0, 1)]
                for n, (h, e) in enumerate(seq):
                    first = (h, 1 - e) not in seq[:n]
                    mf16(acc2(2 * p + h, nt), WF + 16 * e + 4 * nt, HR + 32 * e + 4 * (2 * p + h), "0" if D == 0 and first else None)
                    if fine:
                        if pend: pend.pop(0)()
                        if nt == 3 and D < 17: ldH(2 * D + 2 + e, 2 * p + h)
                        elif lq and n % 2: lq.pop(0)()
                        x = ex.pop(0) if ex else None
                        if callable(x): x()
                        elif x: a(x)
                if p == 3 and D < 17: pend.extend(rds(D + 1, nt))
                if not fine and nt == 1:
                    while pend: pend.pop(0)()
                    while lq: lq.pop(0)()
                    if OPT["gdma"] and p in (0, 3):
                        a(f"s_add_u32 m0, s7, {KVR + (D % 2) * 16384}\n s_nop 0")
                        for k in ((0, 1) if p == 0 else (2, 3)): a.vm(f"buffer_load_dwordx4 v{vH+3}, s[{rWS}:{rWS+3}], s8 offen offset:{1024*k} sc1 lds")
                        if p == 3: a("s_add_u32 s8, s8, 16384")
                if not fine and nt == 3:
                    if (p, "ld") in at: at[p, "ld"]()
                    ldP(D + 1, [p])
            assert not ex and not lq
        if D < 12: a(f"s_add_u32 s{sHo}, s{sHo}, 16384\n s_add_u32 s{sHp}, s{sHp}, 16384")
    for nt in range(4):
        for f in rds(0, nt): f()
    a(f"s_add_u32 s{sHp}, s{sHo}, 8192")
    ldP(0, range(4))
    a(f"s_add_u32 s{sHo}, s{sHo}, 16384\n s_add_u32 s{sHp}, s{sHp}, 16384")
    for rt in range(8): a(f"v_sub_f32 v{vGM+2*rt}, 1.0, v{vGM+2*rt}")
    stamp("g_l2")
    a(f"s_setprio {OPT['g2prio']}\n s_mov_b32 s{sIT}, 0")
    if OPT["gdma"]: a(f"s_lshl_b32 s7, s{sW}, 12\n s_lshl_b32 s8, s{sW}, 11\n s_add_u32 s8, s8, {KV_OFF}")
    fine = [not int(c) for c in OPT["gp"][1:3]]
    dstep(0, fine[1])
    stamp("g_s0")
    a.raw(".p2align 3")
    cm('FFN double steps (runs beside the attention waves)')
    a.label("L_g2loop")
    def body(it):
        if OPT["pf2"]: a(f"s_cmp_eq_u32 s{sIT}, s{sG}\n s_cbranch_scc1 L_hookF"); a.label("L_hookF_r")
        dstep(2 * it + 1, fine[0])
        snap[:] = [list(a.vmq), list(a.lgq), len(pend), 11 - (2 * it + 1)]
        a(f"s_cmp_ge_u32 s{sIT}, 4\n s_cbranch_scc1 L_hookW"); a.label("L_hookW_r")
        dstep(2 * it + 2, fine[1])
        a(f"s_add_u32 s{sIT}, s{sIT}, 1\n s_branch L_g2loop")
    snap = []
    a.loop(body, "g2")
    a.label("L_g2end")
    sh = lambda q: [x and (x[0], x[1] + snap[3]) + x[2:] for x in q]
    a.vmq[:] = sh(snap[0]); a.lgq[:] = sh(snap[1])
    pend[:] = [f for nt in range(4) for f in rds(12, nt)][16 - snap[2]:]
    ret = lambda l: a(f"s_branch {l}")
    a(f"s_mov_b32 s{rB}, s{pWO}\n s_mov_b32 s{rB+1}, s{pWO+1}\n s_mov_b32 s{rB+2}, {1024*2048}\n s_lshl_b32 s{sWo}, s{sW}, 17\n s_add_u32 s{sWo}, s{sWo}, {GRP[0]*524288}")
    if OPT["hold"] != "xffff":
        cm("workgroups whose attention results are used first keep their last FFN steps back until their attention is done")
        a("s_bitcmp1_b32 s2, 0\n s_cbranch_scc1 L_hold_x")
        if OPT["hrel"]: waitlds(0, 64 + OPT["hrel"], "L_hold")
        else: waitlds(12, 4, "L_hold")
    cm("last FFN double step, then the output projection: four producers in a fixed order, looked up in this wave's mailbox")
    mbox(1)
    a(f"""s_mov_b32 s{sMbx}, s{sT0}
      s_mul_i32 s{sOb}, s{sRB2}, {RBSZ}
      s_add_u32 s{sOb}, s{sOb}, s{sMw}
      s_lshl_b32 s{sDl}, s{sW}, 12
      s_add_u32 s{sDl}, s{sDl}, {QX}
      s_sub_u32 s{sDl}, s{sDl}, s{sMw}""")
    def poll(): a.vm(f"buffer_load_dword v{vPo}, v15, s[{rWS}:{rWS+3}], s{sMbx} offen sc1", "poll")
    chk = lambda sl: f"""v_cmp_eq_u32 vcc, 1, v{vPo}
      s_add_u32 s{sHo}, s{sOb}, {(112+8*GRP[sl])*8192}
      s_bitcmp1_b32 vcc_lo, {sl}
      s_cselect_b32 s{sRdy}, 1, 0
      s_cselect_b32 s{sHo}, s{sHo}, {OOB}
      s_add_u32 s{sHp}, s{sHo}, 8192""".split("\n")
    behind = {}
    def npoll(): return a.vmq[::-1].index("poll") if "poll" in a.vmq else 62
    def again(sl):
        behind["s", sl] = npoll()
        a(f"s_cmp_eq_u32 s{sRdy}, 0\n s_cbranch_scc1 L_sec{sl}")
        a.label(f"L_sec{sl}_r")
        poll()
    def join(sl):
        behind["b", sl] = npoll()
        a(f"s_cmp_eq_u32 s{sRdy}, 0\n s_cbranch_scc1 L_blk{sl}")
        a.label(f"L_join{sl}")
        a.vmq[:] = [("H", 14 + sl, p) for p in range(4) for _ in range(4)]
    def late(sl):
        a.label(f"L_sec{sl}")
        a(f"s_waitcnt vmcnt({behind['s', sl]})")
        a("\n".join(chk(sl)))
        a(f"s_cmp_eq_u32 s{sRdy}, 0\n s_cbranch_scc1 L_sec{sl}_r")
        ldP(14 + sl, (0, 1))
        a(f"s_branch L_sec{sl}_r")
        a.label(f"L_blk{sl}")
        a(f"s_mov_b32 s{sT5}, {SPIN_MAX}\n s_waitcnt vmcnt({behind['b', sl]})\n s_branch L_blk{sl}b")
        a.label(f"L_blk{sl}a")
        a(f"s_sleep {OPT['slp']}"); poll(); a.wait0(lg=False)
        a(f"s_sub_u32 s{sT5}, s{sT5}, 1\n s_cbranch_scc0 L_blk{sl}b\n v_mov_b32 v{vPo}, 1")
        a.label(f"L_blk{sl}b")
        a("\n".join(chk(sl)))
        a(f"s_cmp_eq_u32 s{sRdy}, 0\n s_cbranch_scc1 L_blk{sl}a")
        ldP(14 + sl, range(4))
        a(f"s_branch L_join{sl}")
    two = lambda l_: ["\n".join(l_[k:k+2]) for k in range(0, len(l_), 2)]
    dstep(12, OPT["f12"], at={OPT['pp']: poll})
    stamp("g_25")
    a(f"s_add_u32 s{sWo}, s{sWo}, {((GRP[1]-GRP[0])*524288-131072) & 0xffffffff}")
    if OPT["f13"]: dstep(13, True, {0: [None] * 7 + [lambda: a.wait(vm="poll")] + two(chk(0)) + [poll]}, {2: lambda: again(0)})
    else: dstep(13, False, at={(0, "ld"): lambda: (a.wait(vm="poll"), a("\n".join(chk(0))), poll()), 2: lambda: again(0)})
    srd(rA, pB2, 2048); srd(rC, pOUT, 2048 * 2048)
    while pend: pend.pop(0)()
    join(0)
    stamp("g_hook")
    sc = lambda p: [f"v_pk_mul_f32 {vr(ACC2+32*p+16*h+4*nt+r,2)}, {vr(ACC2+32*p+16*h+4*nt+r,2)}, {vr(vGM+4*p+2*h,2)} op_sel_hi:[1,0]"
                    for nt in range(4) for h in range(2) for r in (0, 2)]
    for x in sc(0): a(x)
    vS0, vS1, vB2 = 3, 4, 18
    def wr(p, k):
        if OPT["nowr"]: return
        if p < 2: a.lg(f"ds_write_b128 v{vS0}, {vr(ACC2+32*p+4*k,4)} offset:{8192*p+1024*k}")
        else: a.lg(f"ds_write_b128 v{vS1}, {vr(ACC2+32*p+4*k,4)} offset:{16384*(k//4)+1024*(k%4)}")
    OWN = ACC2 + 96
    vRd = [5, 6, 16]; vTw = [11, 12, 13, 14]; vTr, vOo = 26, 27
    sc2 = lambda p: ["\n".join(f"v_mul_f32 v{ACC2+32*p+16*h+4*nt+r+u}, v{vGM+4*p+2*h}, v{ACC2+32*p+16*h+4*nt+r+u}" for u in range(2))
                     for nt in range(4) for h in range(2) for r in (0, 2)]
    extra = {(0, p): sc2(p + 1) for p in range(3)}
    two = lambda l_: ["\n".join(l_[k:k+2]) for k in range(0, len(l_), 2)]
    wp = lambda sl: a(f"s_waitcnt vmcnt({behind['b', sl]})")
    for D in (1, 2): extra[D, 0] = [None] * 7 + [lambda D=D: wp(D)] + two(chk(D + 1)) + [poll]
    t_ = f"""s_lshl_b32 s{sT0}, s{sCB2}, 7
      v_lshlrev_b32 v16, 3, v2
      v_lshl_add_u32 v{vS0}, v0, 4, s{sMw}
      v_add_u32 v{vS1}, s{sDl}, v{vS0}""".split("\n")
    extra[1, 2] = [f"v_mov_b32 v17, {SYNC+12}", None, lambda: a.lg("ds_read_b32 v31, v17", "wa")] + [None] * 7 + [
        lambda: (a.wait(lg="wa"), a("v_cmp_gt_u32 vcc, 4, v31")), lambda: (a("s_cbranch_vccnz L_wa0"), a.label("L_wa_r"))]
    extra[1, 1] = t_ + [f"v_add_u32 v{vWR+nt}, s{sDl}, v{vWR+nt}" for nt in range(4)] + [lambda nt=nt: a.vm(f"buffer_load_dwordx2 {vr(vB2+2*nt,2)}, v16, s[{rA}:{rA+3}], s{sT0} offen offset:{32*nt}", "b2") for nt in range(4)]
    t_ = []
    for p in range(3):
        t_ += [f"s_sub_u32 s{sT1}, s{sW}, {p+1}\n s_and_b32 s{sT1}, s{sT1}, 3"]
        if p < 2: t_ += [f"s_lshl_b32 s{sT1}, s{sT1}, 14\n v_lshl_add_u32 v{vRd[p]}, v0, 4, s{sT1}"]
        else: t_ += [f"s_lshl_b32 s{sT1}, s{sT1}, 12\n s_add_u32 s{sT1}, s{sT1}, {QX}", f"v_lshl_add_u32 v{vRd[p]}, v0, 4, s{sT1}"]
    assert len(t_) == 7; rdadr = t_
    fm = []
    for nt in range(4):
        for r in range(2):
            fm += [f"v_lshlrev_b32 v{vTr}, 16, v{vB2+2*nt+r}\n v_and_b32 v{vTr+1}, 0xffff0000, v{vB2+2*nt+r}"]
            fm += ["\n".join(f"v_fmac_f32 v{OWN+16*h+4*nt+2*r+u}, v{vTr+u}, v{vGM+12+2*h}" for u in range(2)) for h in range(2)]
    extra[2, 0][4:6] = two([f"v_add_u32 v{vWR+nt}, 16384, v{vWR+nt}" for nt in range(4)])
    extra[2, 1] = rdadr + [None] + fm[:8]; extra[2, 2] = fm[8:]
    t_ = f"""s_lshl_b32 s{sT2}, s{sW}, 12
      s_add_u32 s{sT2}, s{sT2}, {KVR+16384}
      v_lshrrev_b32 v15, 3, v0
      v_and_b32 v17, 7, v0
      v_xor_b32 v{vTr}, v15, v17
      v_lshlrev_b32 v{vTr}, 4, v{vTr}
      v_lshl_add_u32 v{vTr}, v15, 7, v{vTr}
      v_add_u32 v{vTr}, s{sT2}, v{vTr}
      v_lshlrev_b32 v{vOo}, 4, v17
      v_lshl_add_u32 v{vOo}, v15, 11, v{vOo}
      v_and_b32 v15, 7, v1
      v_lshrrev_b32 v17, 1, v2
      v_xor_b32 v15, v15, v17
      v_lshlrev_b32 v15, 4, v15
      v_and_b32 v17, 1, v2
      v_lshl_add_u32 v15, v17, 3, v15
      v_lshl_add_u32 v15, v1, 7, v15
      v_add_u32 v{vTw[0]}, s{sT2}, v15
      v_xor_b32 v{vTw[1]}, 32, v{vTw[0]}
      v_xor_b32 v{vTw[2]}, 64, v{vTw[0]}
      v_xor_b32 v{vTw[3]}, 96, v{vTw[0]}
      s_lshl_b32 s{sT0}, s{sCB2}, 7
      s_lshl_b32 s{sT1}, s{sRB2}, 18
      s_add_u32 s{sT0}, s{sT0}, s{sT1}
      s_lshl_b32 s{sT1}, s{sW}, 16
      s_add_u32 s{sT0}, s{sT0}, s{sT1}""".split("\n")
    extra[3, 0] = ["\n".join(t_[2*k:2*k+2]) for k in range(13)]
    worder = [0, 4, 1, 5, 2, 6, 3, 7]
    for p in range(1, 4): extra[3, p] = [x for k in worder for x in (None, (lambda k=k, p=p: wr(p - 1, k)))]
    def rdp(p, k):
        a.lg(f"ds_read_b128 {vr(ACC2+32*p+4*k,4)}, v{vRd[p]} offset:{8192*p+1024*k if p < 2 else 16384*(k//4)+1024*(k%4)}", ("r", p // 2, k))
    x0 = extra[0, 0][10]; extra[0, 0][10] = lambda: (a(x0), wp(0), a("\n".join(chk(1))), poll())
    a("s_nop 0")
    for D in range(4):
        if D: join(D)
        stamp(f"g_{28+2*D}")
        dstep(14 + D, True, {p: extra.get((D, p), []) for p in range(4)}, {2: lambda: again(D + 1)} if D < 3 else {})
    cm('sum of the four K quarters through LDS, bf16, whole-line stores')
    a.wait0(vm=False)
    stamp("g_36")
    a("s_barrier")
    stamp("g_bar")
    for k in range(4):
        for p in range(3): rdp(p, k)
    def st(g_):
        a.wait(lg=("u", g_ // 2, g_ % 2))
        a(f"buffer_store_dwordx4 {vr(HR+32+4*g_,4)}, v{vOo}, s[{rC}:{rC+3}], s{sT0} offen{['', ' sc1', ' nt'][OPT['osc']]}")
        if g_ < 3: a(f"s_add_u32 s{sT0}, s{sT0}, 16384")
    for k in range(8):
        a.wait(lg=("r", 1, k))
        if k < 4:
            for p in range(3): rdp(p, k + 4)
        for r in (0, 2): a(f"v_pk_add_f32 {vr(ACC2+4*k+r,2)}, {vr(ACC2+4*k+r,2)}, {vr(ACC2+32+4*k+r,2)}")
        for r in (0, 2): a(f"v_pk_add_f32 {vr(OWN+4*k+r,2)}, {vr(OWN+4*k+r,2)}, {vr(ACC2+64+4*k+r,2)}")
        for r in (0, 2): a(f"v_pk_add_f32 {vr(OWN+4*k+r,2)}, {vr(OWN+4*k+r,2)}, {vr(ACC2+4*k+r,2)}")
        T_ = HR + 2 * k
        a(f"v_cvt_pk_bf16_f32 v{T_}, v{OWN+4*k}, v{OWN+4*k+1}\n v_cvt_pk_bf16_f32 v{T_+1}, v{OWN+4*k+2}, v{OWN+4*k+3}")
        a.lg(f"ds_write_b64 v{vTw[k%4]}, {vr(HR+2*k,2)} offset:{2048*(k//4)}")
        if k % 4 == 3:
            for h in range(2): a.lg(f"ds_read_b128 {vr(HR+32+8*(k//4)+4*h,4)}, v{vTr} offset:{2048*(k//4)+1024*h}", ("u", k // 4, h))
    for g_ in range(4): st(g_)
    if OPT["ts"]: a.wait0(); stamp("g_end")
    if OPT["padto"]:
        a.label("L_pad")
        a(f"s_memrealtime s[98:99]\n s_waitcnt lgkmcnt(0)\n s_sub_u32 s98, s98, s96\n s_cmp_lt_u32 s98, {OPT['padto']}\n s_cbranch_scc1 L_pad")
    dump_ts_and_end()
    cm('out-of-line waits (all bounded) and loop hooks')
    for sl in range(4): late(sl)
    a.label("L_wa0")
    waitlds(12, 4, "L_wa", 31)
    a("s_branch L_wa_r")
    if OPT["pf2"]:
        a.label("L_hookF")
        a(f"v_lshlrev_b32 v15, {7 + LC if OPT['loc2'] else 7}, v0\n buffer_load_dword v19, v15, s[{rPF}:{rPF+3}], s{sA} offen")
        if OPT["ev2"] and not OPT["loc2"]: a(f"s_add_u32 s{sA}, s{sA}, 8192\n buffer_load_dword v19, v15, s[{rPF}:{rPF+3}], s{sA} offen")
        ret("L_hookF_r")
    a.label("L_hookW")
    a(f"s_cmp_eq_u32 s{sIT}, 5\n s_cbranch_scc1 L_g2end")
    stamp("g_17")
    waitlds(0, 4, "L_wq")
    srd(rA, pWO, 1024 * 2048)
    a(f"s_lshl_b32 s{sT0}, s{sW}, 12\n s_add_u32 m0, s{sT0}, {QX}\n s_lshl_b32 s{sT0}, s{sW}, 17\n s_add_u32 s{sT0}, s{sT0}, 524288")
    for k in range(4): a(f"buffer_load_dwordx4 v{vWD+k}, s[{rA}:{rA+3}], s{sT0} offen offset:{1024*k} lds")
    ret("L_hookW_r")

prologue()
section("g")
a.label("L_roleG")
g_phase1()
if OPT["stop"] == 1:
    stamp("g_bq"); g_hstore(); a.wait0(); stamp("g_hst"); dump_ts_and_end()
else:
    if OPT["wlate"]: g_hstore(); stamp("g_st")
    g2_setup()
    for i in range(OPT["wpre"]):
        for k in range(4): dmaW(i, k)
    if not OPT["wlate"]: g_hstore()
    g_phase2()
a_phase1()
if OPT["stop"] == 1:
    a(f"s_lshl_b32 s{sT0}, s{sW}, 12\n s_add_u32 s{sT1}, s{sT0}, {QX}\n v_lshl_add_u32 v16, v0, 4, s{sT1}")
    for i in range(4): a(f"ds_read_b128 {vr(32+4*i,4)}, v16 offset:{1024*i}")
    a(f"s_lshl_b32 s{sT1}, s{sRB}, 4\n s_add_u32 s{sT1}, s{sT1}, s{sCB}\n s_lshl_b32 s{sT1}, s{sT1}, 14\n s_add_u32 s{sT0}, s{sT0}, s{sT1}\n s_add_u32 s{sT0}, s{sT0}, {QD_OFF}")
    a.wait0()
    for i in range(4): a(f"buffer_store_dwordx4 {vr(32+4*i,4)}, v{vKVD}, s[{rWS}:{rWS+3}], s{sT0} offen offset:{1024*i}")
    dump_ts_and_end()
else:
    stamp("a_bq")
    attention()
a.label("L_exit")
a("s_endpgm")
a.label("L_codeend")

HDR = open("cdna_kernels/" + KNAME[:-7] + ".s.ref").read().split("; Override launch")[0]
HDR += """; One persistent launch, 256 workgroups of 8 waves, one per CU (generated by a script of the author's own).
"""
text = HDR + f"; @launch grid=(256,1,1) block=(512,1,1) lds={LDS_BYTES}\n"
text += f'.amdgcn_target "amdgcn-amd-amdhsa--gfx950"\n.text\n.globl {KNAME}\n.p2align 8\n.type {KNAME},@function\n{KNAME}:\n'
a.out = SEC['head'] + SEC['st'] + SEC['st0'] + SEC['st2'] + SEC['g'] + SEC['main']
body = a.text()
nbad = check(body)
text += body
text += f""".section .rodata,"a"
.p2align 6
.amdhsa_kernel {KNAME}
  .amdhsa_next_free_vgpr 256
  .amdhsa_next_free_sgpr 102
  .amdhsa_accum_offset 256
  .amdhsa_group_segment_fixed_size 0
  .amdhsa_kernarg_size 112
  .amdhsa_user_sgpr_count 2
  .amdhsa_user_sgpr_kernarg_segment_ptr 1
  .amdhsa_system_sgpr_workgroup_id_x 1
.end_amdhsa_kernel
"""
open(sys.argv[1], "w").write(text)
if nbad: sys.exit(f"{nbad} hazards")
```

```python
import sys, math
from asmlib import *

KNAME = "gated_mix__grouped_kv_mqa__dense_activation_squared_relu__prompt_kernel"
OPT = dict(stop=0, ts=0, pd=8, forceslow=0, nodma=0, nokv=0, nopf=0, nords=0, lead=7, pfnt=0, far=99, pf2=1, pf2b=2, gprio=2, nog2=0, g2nold=0, anodma=0, g2prio=0, dbgts=0, slp=2, th=0, farw2=1, hglob=1, arrk=0, wlate=1, map2=5, steps=0, kvskip='', pause=99, pcnt=64, grp=1, osc=1, padto=0, st2=0, spos=0, hfirst=2, p0prio=3, d0prio=2, xlate=0, ring=6, h3prio=1, hfl='sc1', wfl='', xfl='', padat='', xm=1, p0late=1, p0lo=0, kvreg=2, lowv=1, noo=0, nopk=1, tgrp=1, nowo=0, noack=0, qsw=1, evn=0, evk=1, ev2=1, ng=8, par='SSSS', lut=0, pw=128, pb=0, g32=0, dyn=0, chain=1, row4=0, skiprd=0, gdma=0, dpos=0, nohst=0, xa=3, w1pre=0, peven=0, xr=99, fpre=4, clrf=1, wpre=2, f12=1, pp=2, rot=1, kvl=1, w1n=2, kvs='x147a', p1=26, qw=3, hlim=0, pre='x899aaa', hrel=0, f13=1, hold='xcfcf', gpo='', pexact=1, epos=68, mpos=32, loc2=1, woit=2, snake=1, gp='x1111', g2f=1, ebar=0, c2x=1, pfl='sc1', sfl='sc1', nowr=0, pat='eeeeeeeq0ccr1esccteu2evexweyccS4e5eeecc')
for a_ in sys.argv[2:]:
    k, v = a_.split("="); OPT[k] = int(v) if v.lstrip('-').isdigit() else v

GRP = [2, 0, 1, 3] if OPT['g2f'] else [0, 2, 1, 3]
LC = {5: 2, 2: 1}.get(OPT['map2'])
RBSZ = 144 * 8192
KV_OFF = 0x1200000; G_OFF = 0x1240000; KF_OFF = 0x1244000; FL_OFF = 0x1248000; WS_USED = 0x1268000
QD_OFF = 0x1400000; TS_OFF = 0x1800000
WS_SIZE = 0x2000000 if (OPT["stop"] or OPT["ts"]) else WS_USED
OOB = 0x40000000
W1R = 0; W1S = 14336
WQR = 57344; WQS = 4096
XR = 73728; XS = 16384
KVST = 122880
SYNC = 155648
GT = SYNC + 512
LDS_BYTES = GT + 2048
QX = XR
KVR = 90112
pX, pWQ, pWK, pWV, pWO, pW1, pB1, pW2, pB2, pGATE, pOUT, pDBG, pWS = 4, 6, 8, 10, 12, 16, 18, 20, 22, 24, 26, 28, 30
rA, rB, rC, rD, rWS, rDBG, rPF, rE = 32, 36, 40, 44, 48, 52, 56, 60
sRB, sCB, sRB2, sCB2, sI, sW = 64, 65, 66, 67, 68, 69
sT0, sT1, sT2, sT3, sT4, sT5 = 70, 71, 72, 73, 74, 75
sIT, sA, sB, sC, sD, sE, sF, sG = 76, 77, 78, 79, 80, 81, 82, 83
sTS = 84
sPOS = 101
sQB = 100
SPIN_MAX = 1 << 18

a = Asm()
SEC = {}
def cm(t):
    for l in t.strip().split('\n'): a.raw('  ; ' + l.strip())
def section(n):
    a.out = SEC.setdefault(n, [])
section("head")
def kwait():
    a("s_waitcnt lgkmcnt(0)"); stamp("kw"); srd(rWS, pWS, WS_SIZE)
def srd(r, p, size):
    a(f"s_mov_b32 s{r}, s{p}\n s_mov_b32 s{r+1}, s{p+1}\n s_mov_b32 s{r+2}, {size}\n s_mov_b32 s{r+3}, 0x20000")
nts = [0]
STAMPS = {1: dict(g_b0=1, g_end1=2, g_bq=3, g_hst=4, g_pre=5, a_set=1, a_w0=2, a_8=3, a_16=4, a_24=5),
          0: dict(g_end1=1, g_flag=2, g_l2=3, g_hook=4, g_end=5, a_b0=1, a_16=2, a_bq=3, a_att=4, a_end=5)}[OPT["stop"]]
if OPT["st2"] == 1: STAMPS.update(g_end1=0, g_flag=0, g_l2=1, g_17=2, g_25=3)
if OPT["st2"] == 3: STAMPS = dict(kw=1, g_pre=2, g_bias=3, g_rdy=4, g_b0=5, a_iss=2, a_set=3, a_w0=4, a_b0=5)
if OPT["st2"] == 4: STAMPS.update(g_end1=0, g_st=1, g_flag=2, g_pw=3, g_wf=4, g_l2=0, g_s0=5, g_hook=0, g_end=0)
if OPT["st2"] == 5: STAMPS.update(g_end1=0, g_flag=0, g_l2=0, g_end=0, g_25=1, g_hook=2, g_30=3, g_32=4, g_34=5)
if OPT["st2"] == 6: STAMPS.update(a_b0=0, a_16=0, a_24=1, a_28=2)
if OPT["st2"] == 2: STAMPS.update(g_end1=0, g_flag=0, g_l2=0, g_hook=1, g_32=2, g_36=3, g_bar=4)
def stamp(n):
    if OPT["padat"] == "diff" and n == "g_end1": a("s_memrealtime s[94:95]"); a.wait0(vm=False)
    if OPT["padat"] == "diff" and n == "g_flag":
        a("s_memrealtime s[98:99]"); a.wait0(vm=False); a("s_sub_u32 s98, s98, s94\n s_lshl_b32 s98, s98, 2\n s_cmp_eq_u32 s2, 100\n s_cselect_b32 s98, s98, 0\n s_add_u32 s96, s96, s98")
    if n == OPT["padat"]: a("s_memrealtime s[96:97]"); a.wait0(vm=False)
    i = STAMPS.get(n)
    if OPT["ts"] and i:
        a(f"{'s_memrealtime' if OPT['ts'] == 2 else 's_memtime'} s[{sTS+2*i}:{sTS+2*i+1}]"); a.wait0(vm=False)
def mf16(d, x, y, c=None):
    a(f"v_mfma_f32_16x16x32_bf16 {vr(d,4)}, {vr(x,4)}, {vr(y,4)}, {vr(d,4) if c is None else c}")
def mf32(d, x, y, c=None):
    a(f"v_mfma_f32_32x32x16_bf16 {vr(d,16)}, {vr(x,4)}, {vr(y,4)}, {vr(d,16) if c is None else c}")
def dump_ts_and_end():
    if OPT["ts"]:
        a("s_memrealtime s[98:99]"); a.wait0()
        if OPT["dbgts"]:
            l = a.newlabel("L_nots")
            srd(rDBG, pDBG, 256)
            a(f"s_cmp_lg_u32 s2, 100\n s_cbranch_scc1 {l}\n s_cmp_lg_u32 s{sW}, 0\n s_cbranch_scc1 {l}")
            for i, k in enumerate((1, 2, 3, 4, 5, 7)): a(f"s_sub_u32 s{sT0}, s{sTS+2*k}, s96\n v_mov_b32 v{8+i}, s{sT0}")
            a(f"s_lshl_b32 s{sT0}, s3, 3\n s_add_u32 s{sT0}, s{sT0}, 8\n v_mov_b32 v2, 0\n s_mov_b64 exec, 1")
            a(f"buffer_store_dwordx2 v[8:9], v2, s[{rDBG}:{rDBG+3}], s{sT0} offen")
            a(f"buffer_store_dwordx4 v[10:13], v2, s[{rDBG}:{rDBG+3}], s{sT0} offen offset:8")
            a.label(l)
        else:
            for i in range(8): a(f"v_mov_b32 v{8+i}, s{sTS+2*i}")
            a(f"s_lshl_b32 s{sT0}, s2, 8\n s_lshl_b32 s{sT1}, s3, 5\n s_add_u32 s{sT0}, s{sT0}, s{sT1}\n s_add_u32 s{sT0}, s{sT0}, {TS_OFF}")
            a(f"v_mov_b32 v2, 0\n s_mov_b64 exec, 1")
            a(f"buffer_store_dwordx4 v[8:11], v2, s[{rWS}:{rWS+3}], s{sT0} offen")
            a(f"buffer_store_dwordx4 v[12:15], v2, s[{rWS}:{rWS+3}], s{sT0} offen offset:16")
    a("s_endpgm")

def prologue():
    m = OPT["map2"]
    lx, lc = {0: (1, 3), 2: (1, 3), 3: (2, 2), 4: (0, 4), 5: (2, 2)}[m]
    MAP2 = f"""s_lshr_b32 s{sT1}, s{sT0}, {lx}
      s_lshl_b32 s{sT1}, s{sT1}, {5-lc}
      s_lshr_b32 s{sT2}, s{sI}, {lc}
      s_add_u32 s{sRB2}, s{sT1}, s{sT2}
      s_and_b32 s{sT1}, s{sT0}, {(1<<lx)-1}
      s_and_b32 s{sT2}, s{sI}, {(1<<lc)-1}
      s_lshl_b32 s{sT2 if m in (2, 5) else sT1}, s{sT2 if m in (2, 5) else sT1}, {lx if m in (2, 5) else lc}
      s_add_u32 s{sCB2}, s{sT1}, s{sT2}
      s_xor_b32 s{sCB2}, s{sCB2}, {OPT["c2x"]}
      s_mov_b32 s{sPOS}, s{sCB}"""
    ident = list(range(16))
    LUTS = {0: (ident, [0, 1, 3, 2] + ident[4:]),
            1: ([0, 1, 3, 5, 2, 4, 6, 8, 7, 10, 12, 14, 9, 11, 13, 15], [0, 1, 2, 9, 4, 5, 6, 7, 8, 3, 10, 11, 12, 13, 14, 15]),
            2: ([0, 1, 3, 5, 2, 4, 6, 8, 7, 10, 12, 14, 9, 11, 13, 15], [0, 1, 2, 4, 3, 5, 11, 7, 8, 9, 10, 6, 12, 13, 14, 15]),
            3: ([0, 1, 3, 5, 7, 4, 10, 8, 12, 2, 14, 6, 9, 11, 13, 15], [0, 1, 2, 9, 4, 5, 6, 7, 8, 3, 10, 11, 12, 13, 14, 15])}[OPT["lut"]]
    for reg, tab in zip((sCB, sQB), LUTS):
        assert sorted(tab) == ident
        if tab == ident: continue
        w = sum(v << (4 * k) for k, v in enumerate(tab))
        MAP2 += f"""
          s_mov_b32 s{sT2}, {hex(w & 0xffffffff)}
          s_mov_b32 s{sT3}, {hex(w >> 32)}
          s_lshl_b32 s{sT1}, s{sPOS}, 2
          s_lshr_b64 s[{sT2}:{sT3}], s[{sT2}:{sT3}], s{sT1}
          s_and_b32 s{reg}, s{sT2}, 15"""
    cm('entry: workgroup -> (row block, column blocks); waves 0-3 take the matrix role G, waves 4-7 the loader / attention role A')
    a("s_cmp_ge_u32 s2, 256\n s_cbranch_scc1 L_exit")
    a("s_load_dwordx16 s[4:19], s[0:1], 0\n s_load_dwordx8 s[20:27], s[0:1], 64\n s_load_dwordx4 s[28:31], s[0:1], 96")
    if OPT["ts"] or OPT["th"] or OPT["padto"]:
        a(f"s_memtime s[{sTS}:{sTS+1}]\n s_memrealtime s[96:97]")
    a(f"""v_lshrrev_b32 v1, 6, v0
      v_and_b32 v0, 63, v0
      v_readfirstlane_b32 s3, v1
      s_lshr_b32 s{sI}, s2, 3
      s_and_b32 s{sT0}, s2, 7
      s_lshr_b32 s{sT1}, s{sT0}, 2
      s_lshl_b32 s{sT1}, s{sT1}, 3
      s_lshr_b32 s{sT2}, s{sI}, 2
      s_add_u32 s{sRB}, s{sT1}, s{sT2}
      s_and_b32 s{sT1}, s{sT0}, 3
      s_lshl_b32 s{sT1}, s{sT1}, 2
      s_and_b32 s{sT2}, s{sI}, 3
      s_add_u32 s{sCB}, s{sT1}, s{sT2}
      {MAP2}
      s_and_b32 s{sW}, s3, 3
      v_and_b32 v1, 15, v0
      v_lshrrev_b32 v2, 4, v0""")
    a("s_cmp_lt_u32 s3, 4\n s_cbranch_scc1 L_roleG\n s_setprio " + str(1 + (OPT["d0prio"] > 0)))

ACC1 = 112
acc1 = lambda ft, rt: ACC1 + (ft * 4 + rt) * 4
XF = [48, 80]; WRING = 24
vX = [16, 17]; vW1 = [18, 19]; vWq = [20, 21]; vLP, vJ, vQW = 15, 70, 64
def g_phase1():
    PD = OPT["pd"]
    sRG, sCG = sA, sB
    sXo, sPo, sPe, sPd = sC, sD, sE, sF
    a(f"s_and_b32 s{sRG}, s{sW}, 1\n s_lshr_b32 s{sCG}, s{sW}, 1")
    cm('G, phase 1: [Q | FFN hidden] tile = x[128 rows] * [Wq 64 cols | W1 224 cols], accumulators start from the bias')
    a(f"""s_cmp_lt_u32 s{sW}, 2
      s_cbranch_scc0 L_nocode
      s_getpc_b64 s[{rE}:{rE+1}]""")
    a.label("L_pc")
    a(f"""s_mov_b32 s{rE+2}, L_codeend-L_pc
      s_mov_b32 s{rE+3}, 0x20000
      s_lshl_b32 s{sT1}, s{sI}, 10
      s_lshl_b32 s{sT2}, s{sW}, 15
      s_add_u32 s{sT1}, s{sT1}, s{sT2}
      v_lshlrev_b32 v29, 7, v0
      s_mov_b64 exec, 0xff
      buffer_load_dword v{vJ}, v29, s[{rE}:{rE+3}], s{sT1} offen
      s_mov_b64 exec, -1""")
    a.label("L_nocode")
    a(f"""s_mul_i32 s{sT0}, s{sCB}, 448
      s_mul_i32 s{sT1}, s{sCG}, 224
      s_add_u32 s{sT0}, s{sT0}, s{sT1}
      v_lshlrev_b32 v14, 2, v0
      s_mov_b32 s{rA+2}, 7168
      s_mov_b32 s{rA+3}, 0x20000
      s_setprio 3
      s_waitcnt lgkmcnt(0)
      s_mov_b32 s{rA}, s{pB1}
      s_mov_b32 s{rA+1}, s{pB1+1}
      buffer_load_dword v33, v14, s[{rA}:{rA+3}], s{sT0} offen
      s_setprio 0""")
    kwait()
    for r in range(0, 32, 2): a(f"v_mov_b64 {vr(ACC1+r,2)}, 0")
    a(f"""v_lshrrev_b32 v14, 1, v1
      v_xor_b32 v14, v14, v2
      v_lshlrev_b32 v14, 4, v14
      v_lshl_add_u32 v14, v1, 7, v14
      s_lshl_b32 s{sT0}, s{sRG}, 13
      s_add_u32 s{sT0}, s{sT0}, {XR}
      v_add_u32 v{vX[0]}, s{sT0}, v14
      v_xor_b32 v{vX[1]}, 64, v{vX[0]}
      s_mov_b32 s{sXo}, 0
      v_lshrrev_b32 v14, 2, v1
      v_lshl_add_u32 v14, v2, 3, v14
      v_and_b32 v29, 3, v1
      v_lshlrev_b32 v29, 3, v29
      v_mul_u32_u24 v30, 448, v14
      v_add_u32 v30, v30, v29
      s_mul_i32 s{sT0}, s{sCG}, 224
      v_add_u32 v30, s{sT0}, v30
      v_and_b32 v31, 1, v2
      v_lshlrev_b32 v32, 5, v31
      s_lshl_b32 s{sT1}, s{sCG}, 1
      s_sub_u32 s{sT1}, 1, s{sT1}
      v_mul_lo_u32 v32, v32, s{sT1}
      v_add_u32 v{vW1[0]}, v30, v32
      v_sub_u32 v{vW1[1]}, v30, v32
      v_lshrrev_b32 v32, 3, v1
      v_lshl_add_u32 v31, v32, 1, v31
      s_lshl_b32 s{sT0}, s{sCG}, 1
      v_xor_b32 v31, s{sT0}, v31
      v_lshl_add_u32 v29, v31, 5, v29
      v_lshl_add_u32 v29, v14, 7, v29
      v_add_u32 v{vWq[0]}, {WQR}, v29
      v_xor_b32 v{vWq[1]}, 32, v{vWq[0]}""")
    if not OPT["stop"]: g2_vsetup()
    a(f"""v_and_b32 v28, 1, v2
      v_lshlrev_b32 v28, 10, v28
      v_lshrrev_b32 v29, 1, v2
      v_lshl_add_u32 v28, v29, 8, v28
      v_lshl_add_u32 v{vLP}, v1, 4, v28""")
    a(f"v_mov_b32 v30, {SYNC}\n ds_write_b128 v30, v[{ACC1}:{ACC1+3}]\n v_lshlrev_b32 v29, 3, v2")
    stamp("g_pre")
    a.wait0()
    stamp("g_bias")
    for k in range(14): a.lg(f"ds_bpermute_b32 v{48+k}, v29, v33 offset:{32*(k//2)+4*(k%2)}", ("b", k // 2))
    for ft in range(7):
        d = acc1(2 + ft, 0)
        a.wait(lg=("b", ft))
        a(f"v_lshlrev_b32 v{d}, 16, v{48+2*ft}\n v_and_b32 v{d+1}, 0xffff0000, v{48+2*ft}")
        a(f"v_lshlrev_b32 v{d+2}, 16, v{49+2*ft}\n v_and_b32 v{d+3}, 0xffff0000, v{49+2*ft}")
        for rt in range(1, 4): a(f"v_mov_b64 {vr(d+4*rt,2)}, {vr(d,2)}\n v_mov_b64 {vr(d+4*rt+2,2)}, {vr(d+2,2)}")
    def rdW(g, n):
        u, ft = divmod(g, 9); kk, e = divmod(n, 2); d = WRING + 8 * (g % 3) + 2 * n; sl = 2 * (u % 2) + kk
        if ft < 2: a.lg(f"ds_read_b64_tr_b16 {vr(d,2)}, v{vWq[ft]} offset:{sl*WQS + e*512}", ("W", g))
        else: a.lg(f"ds_read_b64_tr_b16 {vr(d,2)}, v{vW1[ft%2]} offset:{sl*W1S + e*1792 + (ft-2)*32}", ("W", g))
    def rdX(u, n):
        rt, kk = divmod(n, 2)
        a.lg(f"ds_read_b128 {vr(XF[u%2]+16*kk+4*rt,4)}, v{vX[kk]} offset:{rt*2048}", ("X", u))
    def block(u, plan):
        for ft in range(9):
            g = 9 * u + ft
            a.wait(lg=[("W", g), ("X", u)] if ft == 0 else ("W", g))
            for n in range(8):
                rt = 3 - n // 2 if ft % 2 else n // 2
                kk = (n + 1) // 2 % 2
                mf16(acc1(ft, rt), WRING + 8 * (g % 3) + 4 * kk, XF[u % 2] + 16 * kk + 4 * rt)
                if n < 4 and g + 2 < 144: rdW(g + 2, n)
                x = plan.get(8 * ft + n)
                if callable(x): x()
                elif x: a(x)
    a(f"s_mov_b32 s{sIT}, 0")
    stamp("g_rdy")
    a("s_barrier")
    stamp("g_b0")
    for n in range(4): rdW(0, n)
    for n in range(8): rdX(0, n)
    for n in range(4): rdW(1, n)
    a.raw(".p2align 3")
    cm('16 k-blocks of 64; operands come from LDS rings that the A waves fill, two barriers per block')
    a.label("L_g1loop")
    def body(it):
        for b in range(2):
            u = 2 * it + b
            plan = {12: f"s_add_u32 s{sXo}, s{sXo}, 1\n s_cmp_eq_u32 s{sXo}, 3", 13: f"s_cselect_b32 s{sXo}, 0, s{sXo}\n s_cselect_b32 s{sT0}, {3*XS}, 0",
                    14: f"s_sub_u32 s{sT0}, {XS}, s{sT0}", 20: f"v_add_u32 v{vX[0]}, s{sT0}, v{vX[0]}", 21: f"v_add_u32 v{vX[1]}, s{sT0}, v{vX[1]}",
                    OPT["mpos"]: "s_barrier", OPT["epos"]: "s_barrier"}
            free = [p for p in range(OPT["mpos"] + 1, 64) if 4 <= p % 8 < 7]
            for n in range(8): plan[free[n]] = lambda n=n: rdX(u + 1, n)
            assert 64 <= OPT["epos"] <= 68 and 22 <= OPT["mpos"] <= 36
            if b == 0: plan[69] = f"s_add_u32 s{sIT}, s{sIT}, 1"; plan[70] = f"s_cmp_eq_u32 s{sIT}, 8"
            block(u, plan)
            if b == 0:
                a("s_cbranch_scc1 L_g1last"); snap[:] = [(k_, v_ + (14 - u) * (9 if k_ == "W" else 1)) for k_, v_ in a.lgq]
        a("s_branch L_g1loop")
    snap = []
    a.loop(body, "g1")
    cm('last k-block; Q goes to the attention waves through LDS')
    a.label("L_g1last")
    a.lgq[:] = snap
    cq = lambda s_, rt: f"v_cvt_pk_bf16_f32 v{48+4*rt+2*s_}, v{acc1(s_,rt)}, v{acc1(s_,rt)+1}\n v_cvt_pk_bf16_f32 v{49+4*rt+2*s_}, v{acc1(s_,rt)+2}, v{acc1(s_,rt)+3}"
    wq = lambda rt: lambda: a.lg(f"ds_write_b128 v{vQW}, {vr(48+4*rt,4)} offset:{(rt//2)*4096 + (rt%2)*1024}")
    plan = {4: f"s_lshl_b32 s{sT2}, s{sRG}, 13\n s_lshl_b32 s{sT3}, s{sCG}, 11", 5: f"s_add_u32 s{sT2}, s{sT2}, s{sT3}\n s_add_u32 s{sT2}, s{sT2}, {QX}",
            6: f"v_lshl_add_u32 v{vQW}, v0, 4, s{sT2}", 20: cq(0, 0), 21: cq(0, 1), 22: cq(0, 2), 28: cq(0, 3), 29: cq(1, 3), 30: cq(1, 2),
            36: cq(1, 1), 37: cq(1, 0), [38, 46, 46, 46][OPT["qw"]]: "s_barrier",
            **dict(zip([(44, 46, 52, 54), (52, 54, 56, 58), (52, 53, 54, 55), (52, 55, 58, 61)][OPT["qw"]], map(wq, range(4)))),
            [61, 65, 62, 68][OPT["qw"]]: lambda: (a.wait0(vm=False), a(f"s_setprio {OPT['gprio']}\n s_barrier"))}
    block(15, plan)
    stamp("g_end1")
def g_hstore(lo=0, hi=7):
    sRG, sCG = sA, sB
    sT0, sT1, sT2, sT3 = sT4, sT5, sF, sG
    if lo == 0: a(f"""s_mul_i32 s{sT0}, s{sRB}, {RBSZ}
      s_mul_i32 s{sT1}, s{sCB}, {7*8192}
      s_add_u32 s{sT0}, s{sT0}, s{sT1}
      s_lshl_b32 s{sT1}, s{sRG}, 12
      s_add_u32 s{sT0}, s{sT0}, s{sT1}
      s_mul_i32 s{sT1}, s{sCG}, {3*8192+512}
      s_add_u32 s{sT0}, s{sT0}, s{sT1}
      s_mul_i32 s{sT2}, s{sCG}, {8192-1024}
      s_add_u32 s{sT2}, s{sT2}, 512
      s_sub_u32 s{sT3}, 8192, s{sT2}""")
    cm('hidden = relu(h)^2 as bf16, write-through to the workspace in MFMA operand order')
    k = 0
    for ft in range(lo, hi):
        for p in range(2):
            T = 48 + 4 * (k % 4); k += 1
            if OPT["nohst"] == 2: continue
            for h in range(2):
                d = acc1(2 + ft, 2 * p + h)
                for r in range(4): a(f"v_max_f32 v{d+r}, 0, v{d+r}")
                if OPT["nopk"] > 1: a("\n".join(f"v_mul_f32 v{d+r}, v{d+r}, v{d+r}" for r in range(4)))
                else: a(f"v_pk_mul_f32 {vr(d,2)}, {vr(d,2)}, {vr(d,2)}\n v_pk_mul_f32 {vr(d+2,2)}, {vr(d+2,2)}, {vr(d+2,2)}")
                a(f"v_cvt_pk_bf16_f32 v{T+2*h}, v{d}, v{d+1}\n v_cvt_pk_bf16_f32 v{T+2*h+1}, v{d+2}, v{d+3}")
            a(f"s_nop 1\n v_permlane16_swap_b32 v{T}, v{T+2}\n v_permlane16_swap_b32 v{T+1}, v{T+3}")
            if not OPT["nohst"]: a.vm(f"buffer_store_dwordx4 {vr(T,4)}, v{vLP}, s[{rWS}:{rWS+3}], s{sT0} offen offset:{p*2048} sc1", "hst")
            if OPT["hlim"]: a(f"s_waitcnt vmcnt({OPT['hlim']})")
        a(f"s_add_u32 s{sT0}, s{sT0}, s{sT2 if ft % 2 == 0 else sT3}")

vO = 3
vKX, vKG, vKW, vKT0, vKVD, vKR = 140, 12, 13, 24, 15, 142
KVREG = 208; vG = 253
KXF, KGF, KWF, KAC = 32, 64, 96, 128
def a_phase1():
    sISV, sR0, sSTG, sM, sSo, sSx, sGrp = sA, sB, sC, sD, sE, sF, sG
    NT = " nt" if OPT["pfnt"] else ""
    LEAD = OPT["lead"]
    vXo, vQo, vP = 144, 148, 150
    sSq, sMx, sMq, sPo, sPm = 14, 15, 18, 19, 22
    section("st")
    cm('A, phase 1 start-up: every wave brings 16 rows of W1 / Wq and 32 rows of x per k-block; wave 7 also warms caches and handles the flags')
    a(f"""v_lshrrev_b32 v16, 3, v0
      v_lshlrev_b32 v16, 11, v16
      v_and_b32 v17, 7, v0
      v_xor_b32 v18, v17, v2
      v_lshl_add_u32 v18, v18, 4, v16
      v_and_b32 v20, 1, v2
      v_lshlrev_b32 v20, 2, v20
      v_xor_b32 v20, v20, v17
      v_lshl_add_u32 v{vQo}, v20, 4, v16
      v_xor_b32 v19, 32, v{vQo}
      v_add_u32 v{vQo+1}, {16384-1024}, v19
      s_lshl2_add_u32 s{sSx}, s{sRB}, s{sW}
      s_lshl_b32 s{sSx}, s{sSx}, 16""")
    for i in range(4): a(f"v_xor_b32 v19, {64*(i%2)}, v18\n v_add_u32 v{vXo+i}, {i*16384 - i*1024}, v19")
    a(f"s_mul_i32 s{sT0}, s{sW}, {16*7168}\n s_mul_i32 s{sT1}, s{sCB}, 448\n s_add_u32 s{sSo}, s{sT0}, s{sT1}")
    a(f"s_mul_i32 s{sM}, s{sW}, 7168\n s_movk_i32 s{sT2}, {7168-448}")
    def w1off(i):
        a(f"""v_add_u32 v16, {64*i}, v0
          v_mul_u32_u24 v17, 2341, v16
          v_lshrrev_b32 v17, 16, v17
          v_bfe_u32 v18, v17, 3, 1
          v_lshlrev_b32 v18, 1, v18
          v_xor_b32 v16, v16, v18
          v_lshlrev_b32 v16, 4, v16
          v_mad_u32_u24 v{vO+i}, v17, s{sT2}, v16""")
        if i % 4: a(f"v_subrev_u32 v{vO+i}, {1024*(i%4)}, v{vO+i}")
    for i in range(OPT['w1n']): w1off(i)
    kwait(); srd(rA, pX, 2048 * 2048); srd(rPF, pWQ, 1024 * 2048); srd(rB, pW1, 1024 * 7168)
    a(f"""s_lshl_b32 s{sMx}, s{sW}, 12
      s_lshl_b32 s{sMq}, s{sW}, 11
      s_lshl_b32 s{sSq}, s{sW}, 15
      s_lshl_b32 s{sT0}, s{sQB}, 7
      s_add_u32 s{sSq}, s{sSq}, s{sT0}""")
    trickle = []
    def trk(all_=False):
        while trickle:
            for t_ in trickle.pop(0): a.label(t_[:-1]) if t_.endswith(":") else a.lg(t_)
            if not all_: break
    def ldW(u, m=None):
        for i in range(7):
            if i == 4 and m: m()
            if u == 0 and i >= OPT['w1n']: w1off(i)
            if i % 4 == 0: a(f"s_add_u32 m0, s{sM}, {(u%2)*2*W1S + i*1024}\n s_nop 0")
            a.vm(f"buffer_load_dwordx4 v{vO+i}, s[{rB}:{rB+3}], s{sSo} offen offset:{1024*(i%4)} lds", ("W", u)); trk()
        a(f"s_add_u32 s{sSo}, s{sSo}, {64*7168}")
    def ldQ(u):
        a(f"s_add_u32 m0, s{sMq}, {WQR + (u%2)*2*WQS}\n s_nop 0")
        for i in range(2):
            a.vm(f"buffer_load_dwordx4 v{vQo+i}, s[{rPF}:{rPF+3}], s{sSq} offen offset:{1024*i} lds", ("Q", u)); trk()
        a(f"s_add_u32 s{sSq}, s{sSq}, 131072")
    def ldX(u):
        a(f"s_add_u32 m0, s{sMx}, {XR + (u%3)*XS}\n s_nop 0")
        for i in range(4):
            a.vm(f"buffer_load_dwordx4 v{vXo+i}, s[{rA}:{rA+3}], s{sSx} offen offset:{1024*i} lds", ("X", u)); trk()
        a(f"s_add_u32 s{sSx}, s{sSx}, 128")
    plainwait = a.wait
    def pwait(vm=(), lg=()):
        tags = vm if isinstance(vm, list) else [vm]
        idx = max([k for k, x in enumerate(a.vmq) if x in tags], default=-1)
        isP = lambda x: isinstance(x, tuple) and x[0] == "P"
        rest = a.vmq[idx + 1:]
        if idx < 0 or not any(map(isP, rest)): return plainwait(vm, lg)
        assert lg == ()
        n0 = sum(not isP(x) for x in rest); l = a.newlabel("L_pw")
        for g_ in sorted({x[1] for x in rest if isP(x)}) if OPT["pexact"] else []:
            l2 = a.newlabel("L_pw")
            a(f"s_cmp_lg_u32 s{sGrp}, {g_}\n s_cbranch_scc1 {l2}\n s_waitcnt vmcnt({n0 + rest.count(('P', g_))})\n s_branch {l}")
            a.label(l2)
        a(f"s_waitcnt vmcnt({n0})"); a.label(l)
        a.vmq[:] = rest
    a.wait = pwait
    a.vmq.clear(); a.lgq.clear()
    if OPT["rot"]:
        a(f"s_add_u32 s{sT0}, s{sRB}, s{sPOS}\n s_bitcmp1_b32 s{sT0}, 0\n s_cbranch_scc0 L_d0a")
        ldW(0); ldX(0); ldQ(0)
        a("s_branch L_d0b")
        a.label("L_d0a"); a.vmq.clear()
    ldX(0); ldQ(0); ldW(0)
    if OPT["rot"]: a.label("L_d0b")
    if OPT["d0prio"]: a("s_setprio 1")
    if OPT["d0prio"] == 2: a("s_waitcnt vmcnt(6)")
    a(f"s_cmp_eq_u32 s{sW}, 3\n s_cbranch_scc1 L_st2")
    q0 = list(a.vmq)
    for path in (0, 2):
        section(f"st{path}")
        a.label(f"L_st{path}")
        a.vmq[:] = q0; a.lgq.clear()
        pfs = lambda t: None
        if path == 0: pass
        else:
            assert OPT["lut"] == 0
            a(f"""s_and_b32 s{sGrp}, s{sI}, 7
              s_lshl_b32 s{sT0}, s{sGrp}, 5
              s_and_b32 s{sT1}, s2, 4
              s_lshl2_add_u32 s{sT0}, s{sT1}, s{sT0}
              s_lshr_b32 s{sT1}, s{sI}, 3
              s_lshl2_add_u32 s{sT0}, s{sT1}, s{sT0}
              s_and_b32 s{sT1}, s2, 3
              s_mul_i32 s{sPo}, s{sT0}, 7168
              s_mul_i32 s{sT2}, s{sT1}, 1792
              s_add_u32 s{sPo}, s{sPo}, s{sT2}
              s_lshl2_add_u32 s{sPm}, s{sT0}, s{sT1}
              s_lshl_b32 s{sPm}, s{sPm}, 9
              s_and_b32 s{sT1}, s2, 7
              s_lshl_b32 s{sT1}, s{sT1}, 5
              s_add_u32 s{sT1}, s{sT1}, s{sI}
              s_lshl_b32 s{sIT}, s{sT1}, 14
              v_lshrrev_b32 v16, 3, v0
              v_lshlrev_b32 v16, 11, v16
              v_and_b32 v17, 7, v0
              v_lshl_add_u32 v{vP+0}, v17, 7, v16
              v_lshlrev_b32 v{vP+1}, 7, v0
              v_mul_u32_u24 v16, 7168, v2
              v_lshl_add_u32 v{vP+2}, v1, 7, v16
              v_lshrrev_b32 v16, 2, v0
              v_and_b32 v17, 3, v0
              v_lshlrev_b32 v17, 7, v17
              v_lshl_add_u32 v{vP+3}, v16, 11, v17""")
            def pfW(so, sm, vm):
                a("s_mov_b32 exec_lo, 0x3fff3fff\n s_mov_b32 exec_hi, 0x3fff3fff")
                vm(f"buffer_load_dword v250, v{vP+2}, s[{rB}:{rB+3}], s{so} offen{NT}")
                a("s_mov_b64 exec, 0xffff")
                vm(f"buffer_load_dword v250, v{vP+3}, s[{rPF}:{rPF+3}], s{sm} offen{NT}")
                a("s_mov_b64 exec, -1")
            def p0():
                if OPT["nopf"]: return
                a(f"s_mov_b32 exec_lo, 0x0f0f0f0f\n s_mov_b32 exec_hi, 0x0f0f0f0f")
                a.vm(f"buffer_load_dword v250, v{vP+0}, s[{rA}:{rA+3}], s{sIT} offen{NT}")
                a(f"""s_cmp_lt_u32 s{sGrp}, {LEAD}
                  s_cselect_b32 s{sT0}, s{sPo}, {OOB}
                  s_cselect_b32 s{sT1}, s{sPm}, {OOB}""")
                pfW(sT0, sT1, a.vm)
                a(f"""s_cselect_b32 s{sT0}, {256*7168}, 0
                  s_cselect_b32 s{sT1}, {256*2048}, 0
                  s_add_u32 s{sPo}, s{sPo}, s{sT0}
                  s_add_u32 s{sPm}, s{sPm}, s{sT1}
                  s_and_b32 s{sIT}, s{sIT}, {31 << 17}
                  v_lshrrev_b32 v16, 1, v0
                  v_and_b32 v17, 1, v0
                  v_lshlrev_b32 v17, 7, v17
                  v_lshl_add_u32 v{vP+0}, v16, 11, v17""")
            def pfs(t):
                if OPT["nopf"]: return
                if t + LEAD < 32:
                    l = a.newlabel("L_np")
                    a(f"s_cmp_lg_u32 s{sGrp}, {(t+LEAD)%8}\n s_cbranch_scc1 {l}")
                    pv_ = lambda x: a.vm(x, ("P", (t + LEAD) % 8))
                    pfW(sPo, sPm, pv_)
                    a(f"s_add_u32 s{sPo}, s{sPo}, {256*7168}\n s_add_u32 s{sPm}, s{sPm}, {256*2048}")
                    if t < 6:
                        for k_ in range(2):
                            pv_(f"buffer_load_dword v250, v{vP+0}, s[{rA}:{rA+3}], s{sIT} offen offset:{512+256*t}{NT}"); a(f"s_add_u32 s{sIT}, s{sIT}, 65536")
                    if OPT["pf2"] and t // 8 == OPT["pf2b"]:
                        srd(rD, pW2, 3584 * 2048)
                        if OPT["loc2"]:
                            a(f"""s_bfe_u32 s{sT0}, s2, {hex(((3-LC) << 16) + LC)}
                              s_lshl_b32 s{sT0}, s{sT0}, 5
                              s_add_u32 s{sT1}, s{sT0}, s{sI}
                              s_lshr_b32 s{sT0}, s{sT1}, {6-LC}
                              s_mul_i32 s{sT0}, s{sT0}, {896*2048}
                              s_and_b32 s{sT1}, s{sT1}, {(64 >> LC) - 1}
                              s_lshl_b32 s{sT1}, s{sT1}, {13+LC}
                              s_add_u32 s{sT0}, s{sT0}, s{sT1}
                              s_and_b32 s{sT1}, s{sCB2}, {(1 << LC) - 1}
                              s_lshl_b32 s{sT1}, s{sT1}, 7
                              s_add_u32 s{sT0}, s{sT0}, s{sT1}
                              v_lshlrev_b32 v{vP+1}, {7+LC}, v0""")
                        else: a(f"s_lshr_b32 s{sT0}, s2, 6\n s_mul_i32 s{sT0}, s{sT0}, {896*2048}\n s_and_b32 s{sT1}, s2, 63\n s_lshl_b32 s{sT1}, s{sT1}, 13\n s_add_u32 s{sT0}, s{sT0}, s{sT1}")
                        pv_(f"buffer_load_dword v250, v{vP+1}, s[{rD}:{rD+3}], s{sT0} offen")
                    a.label(l)
        def kvsetup():
            if OPT["evk"]: a(f"s_bfe_u32 s{sISV}, s{sPOS}, 0x10002\n s_lshr_b32 s{sR0}, s{sPOS}, 3\n s_lshl_b32 s{sR0}, s{sR0}, 2\n s_and_b32 s{sT0}, s{sPOS}, 3\n s_add_u32 s{sR0}, s{sR0}, s{sT0}")
            else: a(f"s_and_b32 s{sISV}, s{sCB}, 1\n s_lshr_b32 s{sR0}, s{sCB}, 1")
            a(f"""s_lshl_b32 s{sR0}, s{sR0}, 4
              s_lshl_b32 s{sT0}, s{sRB}, 7
              s_add_u32 s{sR0}, s{sR0}, s{sT0}
              s_cmp_eq_u32 s{sISV}, 0
              s_cselect_b32 s{rC}, s{pWK}, s{pWV}
              s_cselect_b32 s{rC+1}, s{pWK+1}, s{pWV+1}
              s_mov_b32 s{rC+2}, 65536
              s_mov_b32 s{rC+3}, 0x20000
              v_lshlrev_b32 v{vKVD}, 4, v0""")
            if path == 2:
                srd(rD, pGATE, 2048); srd(rDBG, pDBG, 256)
                a(f"s_lshl_b32 s{sT0}, s{sR0}, 5\n s_mov_b64 exec, 15")
                a.vm(f"buffer_load_dword v250, v{vP+1}, s[{rC}:{rC+3}], s{sT0} offen"); a("s_mov_b64 exec, -1")
                a(f"s_mov_b32 m0, {GT}\n s_nop 0")
                for i in range(2): a.vm(f"buffer_load_dwordx4 v{vKVD}, s[{rD}:{rD+3}], 0 offen offset:{1024*i} lds", "gt")
        if path == 2 and OPT["p0late"] == 1: p0(); kvsetup()
        ldX(1); ldQ(1)
        if path == 2 and OPT["p0late"] == 2: p0(); kvsetup()
        if OPT["w1pre"]: ldW(1)
        stamp("a_iss")
        if OPT["kvl"]: a.wait(vm=[("W", 0), ("Q", 0), ("X", 0)]); a("s_barrier")
        a(f"s_branch L_a1m{path}")
        section("main")
        cm('A, phase 1: LDS-DMA of the GEMM operands; K (scaled by log2(e)/sqrt(32)), V and the gate of 16 rows on the side')
        a.label(f"L_a1m{path}")
        def kvsetup2():
            if path != 2: kvsetup()
            a(f"""s_lshl_b32 s{sSTG}, s{sW}, 13
              s_add_u32 s{sSTG}, s{sSTG}, {KVST}
              s_lshl_b32 s{sT0}, s{sW}, 7
              v_lshl_add_u32 v17, v2, 4, s{sT0}
              v_add_u32 v{vKG}, {GT}, v17
              v_lshrrev_b32 v16, 3, v0
              v_add_u32 v16, s{sR0}, v16
              v_and_b32 v17, 7, v0
              v_xor_b32 v17, v17, v2
              v_lshl_add_u32 v17, v17, 4, s{sT0}
              v_lshl_add_u32 v{vKX}, v16, 11, v17
              v_xor_b32 v16, 64, v{vKX}
              v_add_u32 v{vKX+1}, {16384-1024}, v16
              v_lshrrev_b32 v16, 1, v1
              v_xor_b32 v16, v16, v2
              v_lshlrev_b32 v16, 4, v16
              v_lshl_add_u32 v16, v1, 7, v16
              v_add_u32 v{vKR}, s{sSTG}, v16
              v_xor_b32 v{vKR+1}, 64, v{vKR}
              v_lshrrev_b32 v16, 4, v0
              v_and_b32 v16, 2, v16
              v_xor_b32 v16, v16, v0
              s_lshl_b32 s{sT0}, s{sW}, 12
              v_lshl_add_u32 v{vKW}, v16, 4, s{sT0}
              v_lshrrev_b32 v16, 2, v1
              v_lshl_add_u32 v16, v2, 3, v16
              v_and_b32 v17, 3, v1
              v_lshlrev_b32 v17, 3, v17
              v_lshl_add_u32 v16, v16, 6, v17
              v_and_b32 v17, 1, v2
              v_lshl_add_u32 v16, v17, 5, v16
              v_add_u32 v{vKT0}, s{sSTG}, v16
              v_xor_b32 v{vKT0+1}, 32, v{vKT0}""")
            for r in range(12): a(f"v_mov_b32 v{KAC+r}, 0")
        if not OPT["kvl"]: kvsetup2()
        def konly(l_):
            lb = a.newlabel("L_ko")
            return [f"s_cmp_lg_u32 s{sISV}, 0\n s_cbranch_scc1 {lb}"] + l_ + [lb + ":"]
        def kvX(rho):
            if 'X' in OPT['kvskip']: return
            a(f"s_add_u32 m0, s{sSTG}, 6144\n s_movk_i32 s{sT0}, {rho*512}")
            for i in range(2):
                a.vm(f"buffer_load_dwordx4 v{vKX+i}, s[{rA}:{rA+3}], s{sT0} offen offset:{1024*i} lds", ("kw", rho))
        def kvW(rho, half):
            if 'W' in OPT['kvskip']: return
            if half: a.wait0(vm=False)
            a(f"s_add_u32 m0, s{sSTG}, {4096 if half else (rho%2)*2048}\n s_mov_b32 s{sT0}, {rho*16384 + half*2048}")
            for i in range(2):
                a.vm(f"buffer_load_dwordx4 v{vKW}, s[{rC}:{rC+3}], s{sT0} offen offset:{1024*i} lds", ("kw", rho))
        def kvR(rho):
            if 'R' in OPT['kvskip']: return
            a.wait(vm=("kw", rho))
            for i in range(2):
                for nt in range(2):
                    trickle.append([f"ds_read_b64_tr_b16 {vr(KWF+8*i+4*nt+2*e,2)}, v{vKT0+nt} offset:{(4096 if i else (rho%2)*2048)+e*256}" for e in range(2)])
            trickle.append([f"ds_read_b128 {vr(KXF+4*i,4)}, v{vKR+i} offset:6144" for i in range(2)])
            trickle.append(konly([f"ds_read_b128 {vr(KGF+4*i,4)}, v{vKG} offset:{512*rho+64*i}" for i in range(2)]))
        def kvM(rho):
            if 'M' in OPT['kvskip']: return
            a.wait0(vm=False)
            lv, ld = a.newlabel("L_kv"), a.newlabel("L_kd")
            a(f"s_cmp_lg_u32 s{sISV}, 0\n s_cbranch_scc1 {lv}")
            for nt in range(2):
                for i in range(2): mf16(KAC + 4 * nt, KWF + 8 * i + 4 * nt, KXF + 4 * i)
            for i in range(2): mf16(KAC + 8, KGF + 4 * i, KXF + 4 * i)
            a(f"s_branch {ld}")
            a.label(lv)
            for nt in range(2):
                for i in range(2): mf16(KAC + 4 * nt, KXF + 4 * i, KWF + 8 * i + 4 * nt)
            a.label(ld)
        def kvP():
            if 'P' in OPT['kvskip']: return
            a(f"v_add_u32 v16, s{sSTG}, v{vKVD}\n s_nop 5")
            if OPT["pw"] == 128:
                for nt in range(2): trickle.append([f"ds_write_b128 v16, {vr(KAC+4*nt,4)} offset:{nt*1024}"])
            elif OPT["pw"] == 64:
                for k_ in range(4): trickle.append([f"ds_write_b64 v16, {vr(KAC+2*k_,2)} offset:{(k_//2)*1024+(k_%2)*8}"])
            elif OPT["pw"] == 32:
                for k_ in range(0, 8, 2): trickle.append([f"ds_write_b32 v16, v{KAC+k2} offset:{(k2//4)*1024+(k2%4)*4}" for k2 in (k_, k_ + 1)])
            trickle.append(konly([f"ds_write_b32 v16, v{KAC+8} offset:2048"]))
            if OPT["pb"]: trk(True)
            if OPT["pb"] > 1: a.wait0(vm=False)
        def kvF():
            if 'F' in OPT['kvskip']: return
            a(f"v_add_u32 v26, {KVST}, v{vKVD}")
            for w in range(3):
                a(f"ds_read_b128 {vr(32+8*w,4)}, v26 offset:{w*8192}\n ds_read_b128 {vr(36+8*w,4)}, v26 offset:{w*8192+1024}")
            a(f"""s_lshr_b32 s{sT3}, s{sR0}, 5
              s_lshl_b32 s{sT3}, s{sT3}, 12
              s_add_u32 s{sT3}, s{sT3}, {KV_OFF}
              s_bfe_u32 s{sT4}, s{sR0}, 0x10004
              s_cmp_eq_u32 s{sISV}, 0
              s_cselect_b32 s{sT0}, {f2u(32 ** -0.5 * math.log2(math.e))}, 1.0
              s_cselect_b32 s{sT2}, 7, 9
              s_cselect_b32 s{sT5}, 0, 2048
              s_lshl_b32 s{sT4}, s{sT4}, s{sT2}
              s_add_u32 s{sT3}, s{sT3}, s{sT4}
              s_add_u32 s{sT3}, s{sT3}, s{sT5}
              s_waitcnt lgkmcnt(0)""")
            for r in range(8):
                a(f"v_add_f32 v{32+r}, v{32+r}, v{40+r}\n v_add_f32 v{48+r}, v{48+r}, v{KAC+r}\n v_add_f32 v{32+r}, v{32+r}, v{48+r}\n v_mul_f32 v{32+r}, s{sT0}, v{32+r}")
            for r in range(4): a(f"v_cvt_pk_bf16_f32 v{40+r}, v{32+2*r}, v{33+2*r}")
            a(f"s_cmp_eq_u32 s{sISV}, 0\n s_cbranch_scc1 L_nosw\n v_permlane16_swap_b32 v40, v42\n v_permlane16_swap_b32 v41, v43")
            a.label("L_nosw")
            a.vm(f"buffer_store_dwordx4 v[40:43], v27, s[{rWS}:{rWS+3}], s{sT3} offen sc1", "pub")
        def kvF0():
            a(f"""v_bfe_u32 v16, v1, 2, 1
              v_lshlrev_b32 v16, 10, v16
              v_lshl_add_u32 v16, v2, 8, v16
              v_lshrrev_b32 v17, 3, v1
              v_lshl_add_u32 v16, v17, 6, v16
              v_and_b32 v17, 3, v1
              v_lshl_add_u32 v27, v17, 4, v16
              s_cmp_eq_u32 s{sISV}, 0
              s_cbranch_scc1 L_kadr
              v_and_b32 v16, 1, v2
              v_lshlrev_b32 v16, 10, v16
              v_lshrrev_b32 v17, 1, v2
              v_lshl_add_u32 v16, v17, 8, v16
              v_lshl_add_u32 v27, v1, 4, v16""")
            a.label("L_kadr")
        def kvF2():
            if 'F' in OPT['kvskip']: return
            a(f"s_mov_b32 s{sT0}, {OOB}\n v_lshlrev_b32 v20, 2, v0\n s_cmp_lg_u32 s{sISV}, 0\n s_cbranch_scc1 L_nogate")
            for w in range(3): a(f"ds_read_b32 v{64+w}, v26 offset:{w*8192+2048}")
            a(f"""s_lshl_b32 s{sT0}, s{sR0}, 2
              s_add_u32 s{sT0}, s{sT0}, {G_OFF}
              s_waitcnt lgkmcnt(0)
              v_add_f32 v64, v64, v65
              v_add_f32 v66, v66, v{KAC+8}
              v_add_f32 v64, v64, v66
              v_mul_f32 v64, {f2u(-math.log2(math.e))}, v64
              v_exp_f32 v64, v64
              s_nop 0
              v_add_f32 v64, 1.0, v64
              v_rcp_f32 v64, v64""")
            a.label("L_nogate")
            a("s_mov_b64 exec, 0xffff")
            a.vm(f"buffer_store_dword v64, v20, s[{rWS}:{rWS+3}], s{sT0} offen sc1", "pub"); a("s_mov_b64 exec, -1")
        def kvA():
            a(f"""s_lshl_b32 s{sT0}, s{sRB}, 4
              s_add_u32 s{sT0}, s{sT0}, s{sCB}
              s_lshl_b32 s{sT0}, s{sT0}, 2
              s_add_u32 s{sT0}, s{sT0}, {KF_OFF}
              v_mov_b32 v16, 1
              v_mov_b32 v17, 0""")
            a.wait(vm="pub")
            a("s_mov_b64 exec, 1"); a.vm(f"buffer_store_dword v16, v17, s[{rWS}:{rWS+3}], s{sT0} offen sc1"); a("s_mov_b64 exec, -1")
        def clr():
            a(f"""s_and_b32 s{sT0}, s2, 0xc1
              s_cbranch_scc1 L_noclr
              s_lshl_b32 s{sT0}, s2, 11
              s_add_u32 s{sT0}, s{sT0}, {FL_OFF}
              s_lshl_b32 s{sT1}, s2, 4
              s_add_u32 s{sT1}, s{sT1}, {KF_OFF}
              v_lshrrev_b32 v16, 1, v0
              v_and_b32 v17, 1, v0
              v_lshlrev_b32 v17, 4, v17
              v_lshl_add_u32 v16, v16, 7, v17
              {chr(10).join(f"buffer_store_dwordx4 v[{KAC}:{KAC+3}], v{vKVD}, s[{rWS}:{rWS+3}], s{sT0} offen offset:{1024*k_} sc1" for k_ in range(4)) if OPT["clrf"] else f"buffer_store_dwordx4 v[{KAC}:{KAC+3}], v16, s[{rWS}:{rWS+3}], s{sT0} offen sc1"}
              s_mov_b64 exec, 3
              buffer_store_dwordx4 v[{KAC}:{KAC+3}], v16, s[{rWS}:{rWS+3}], s{sT1} offen sc1
              s_mov_b64 exec, -1""")
            a.label("L_noclr")
        def clrdone():
            a(f"""s_and_b32 s{sT0}, s2, 0xc1
              s_cbranch_scc1 L_noclr2
              s_waitcnt vmcnt(0)
              s_lshl_b32 s{sT0}, s2, 1
              v_mov_b32 v16, 1
              v_mov_b32 v17, 0
              s_mov_b64 exec, 1
              buffer_store_dword v16, v17, s[{rDBG}:{rDBG+3}], s{sT0} offen sc1
              s_mov_b64 exec, -1""")
            a.label("L_noclr2")
        def kvPoll0a():
            a(f"v_and_b32 v19, 31, v0\n v_lshlrev_b32 v19, 2, v19"); a.vm(f"buffer_load_dword v18, v19, s[{rDBG}:{rDBG+3}], 0 offen sc1", "p0")
        def kvPoll0():
            a(f"s_mov_b32 s{sT1}, {SPIN_MAX}")
            a.wait(vm="p0")
            a.label("L_poll0")
            a(f"""v_cmp_ne_u32 vcc, 1, v18
              s_sub_u32 s{sT1}, s{sT1}, 1
              s_cbranch_vccz L_poll0x
              s_sleep 16
              buffer_load_dword v18, v19, s[{rDBG}:{rDBG+3}], 0 offen sc1
              s_waitcnt vmcnt(0)
              s_cmp_lg_u32 s{sT1}, 0
              s_cbranch_scc1 L_poll0""")
            a.label("L_poll0x")
        def kvPoll1a():
            a(f"s_mov_b32 s{sT3}, {KF_OFF}"); a.vm(f"buffer_load_dwordx4 v[96:99], v{vKVD}, s[{rWS}:{rWS+3}], s{sT3} offen sc1", "p1")
        def kvPoll1():
            a(f"s_mov_b32 s{sT1}, {SPIN_MAX}")
            a.wait(vm="p1")
            a.label("L_poll1")
            a(f"""v_and_b32 v96, v96, v97
              v_and_b32 v98, v98, v99
              v_and_b32 v96, v96, v98
              v_cmp_ne_u32 vcc, 1, v96
              s_sub_u32 s{sT1}, s{sT1}, 1
              s_cbranch_vccz L_poll1x
              s_sleep 16
              buffer_load_dwordx4 v[96:99], v{vKVD}, s[{rWS}:{rWS+3}], s{sT3} offen sc1
              s_waitcnt vmcnt(0)
              s_cmp_lg_u32 s{sT1}, 0
              s_cbranch_scc1 L_poll1""")
            a.label("L_poll1x")
        def kvD(c):
            if c == 0:
                a(f"s_add_u32 s{rE}, s{pWS}, {KV_OFF}\n s_addc_u32 s{rE+1}, s{pWS+1}, 0\n s_mov_b32 s{rE+2}, 0x40000\n s_mov_b32 s{rE+3}, 0x20000")
                a(f"s_lshl_b32 s{sIT}, s{sW}, 12")
            a(f"s_add_u32 m0, s{sIT}, {KVR + ((c+2)%4)*16384}\n s_add_u32 s{sT0}, s{sIT}, {c*16384}")
            for i in range(4):
                a.vm(f"buffer_load_dwordx4 v{vKVD}, s[{rE}:{rE+3}], s{sT0} offen offset:{1024*i} sc1 lds", ("kv", c))
        def kvDr(c):
            a(f"s_add_u32 s{sT0}, s{sIT}, {c*16384}")
            for i in range(4):
                a.vm(f"buffer_load_dwordx4 {vr(KVREG+16*(c-4)+4*i,4)}, v{vKVD}, s[{rE}:{rE+3}], s{sT0} offen offset:{1024*i} sc1", ("kv", c))
        def ldG():
            a(f"""s_lshl_b32 s{sT1}, s{sRB}, 9
              s_lshl_b32 s{sT2}, s{sW}, 7
              s_add_u32 s{sT1}, s{sT1}, s{sT2}
              s_add_u32 s{sT1}, s{sT1}, {G_OFF}
              v_lshlrev_b32 v22, 2, v1""")
            for h in range(2): a.vm(f"buffer_load_dword v{vG+h}, v22, s[{rWS}:{rWS+3}], s{sT1} offen offset:{64*h} sc1")
        def low(f):
            return (lambda: (a("s_setprio 0"), f(), a("s_setprio 1"))) if OPT["lowv"] else f
        post = {k: [] for k in range(33)}; pre = {k: [] for k in range(33)}; mid = {k: [] for k in range(33)}
        if not OPT["nokv"]:
            st = [int(c, 16) for c in OPT["kvs"][1:]]
            assert all(b - a_ >= 3 for a_, b in zip(st, st[1:])) and st[3] <= 13
            for rho, t0 in enumerate(st):
                pre[t0+4].append(lambda rho=rho: kvR(rho)); mid[t0+5].append(lambda rho=rho: kvM(rho))
                post[t0+2].append(lambda rho=rho: kvX(rho))
                post[t0].append(lambda rho=rho: kvW(rho, 0)); post[t0+1].append(lambda rho=rho: kvW(rho, 1))
            t0 = st[3] + 6
            if path < 2: pre[t0].append(kvP); post[t0].append(lambda: a.wait0(vm=False))
            if path == 2:
                post[2] += [clr]; pre[7].append(clrdone); post[t0].append(low(kvF0)); post[3].append(lambda: a.wait(vm="gt"))
                pre[t0+1] += [kvF]; mid[t0+2] += [kvF2]; pre[t0+2] += [kvPoll0a]; mid[t0+4] += [kvPoll0, kvA]
                pre[OPT["p1"]].append(kvPoll1a); post[OPT['p1'] + 1].append(kvPoll1)
            if OPT["kvl"]: (mid if OPT["kvl"] == 1 else post)[0].append(kvsetup2)
            for k_ in range(4): mid[22 + k_].append(low(lambda k_=k_: attention_setup(k_)))
            PRE = [20 + int(c, 16) for c in OPT["pre"][1:]]
            assert PRE == sorted(PRE) and PRE[0] > OPT["p1"] + 1 and PRE[2] >= 27 and PRE[3] >= 29 and PRE[1] <= 30
            post[PRE[0]].append(ldG)
            for c in range(4): post[PRE[c]].append(lambda c=c: kvD(c))
            for c in range(OPT["kvreg"]): post[PRE[4 + c]].append(lambda c=c: kvDr(4 + c))
        stamp("a_set")
        for s_ in range(31):
            u = s_ // 2
            a.wait(vm=[("W", u), ("Q", 0), ("X", 0)] if s_ % 2 == 0 else [("Q", u + 1), ("X", u + 1)])
            if s_ == 0: stamp("a_w0")
            if s_ == 29:
                if path < 2: a("s_branch L_a1done"); qj = list(a.vmq); break
                a.label("L_a1done")
                assert a.vmq[-len(qj):] == qj or qj[-len(a.vmq):] == a.vmq, (qj, a.vmq)
                if len(qj) > len(a.vmq): a.vmq[:] = qj
            if s_ or not OPT["kvl"]: a("s_barrier")
            if s_ == 0: stamp("a_b0")
            if s_ in (8, 16, 24, 28): stamp(f"a_{s_}")
            if OPT["steps"] and path == 2 and s_ < 29:
                a("s_memtime s[98:99]"); a.wait0(vm=False); a(f"v_writelane_b32 v160, s98, {s_}")
                if s_ == 28:
                    a(f"s_lshl_b32 s98, s2, 8\n s_add_u32 s98, s98, {TS_OFF+0x10000}\n v_lshlrev_b32 v161, 2, v0\n buffer_store_dword v160, v161, s[{rWS}:{rWS+3}], s98 offen")
            for f in pre[s_]: f()
            midf = lambda: [f() for f in mid[s_]]
            if s_ % 2 == 0:
                if u + 1 < 16 and not (u == 0 and OPT["w1pre"]): ldW(u + 1, midf)
                else: midf()
                if s_ == OPT["xr"]: ldX(u + 2)
            else:
                if u + 2 < 16: ldQ(u + 2)
                midf()
                xa = 3 if s_ > OPT["xr"] else 2
                if u + xa < 16: ldX(u + xa)
            trk(True)
            for f in post[s_]: f()
            if not OPT["peven"]: pfs(s_)
            elif s_ % 2 == 0: pfs(s_); pfs(s_ + 1)
    a.wait = plainwait
    a.wait(vm=[("kv", 1)])
    a.vmq[:] = [("kv", 2)] * 4 + [None if OPT["kvreg"] else ("kv", 3)] * 4
    a("s_barrier")
    q_ = list(a.vmq)
    for f in post[31]: f()
    a.vmq[:] = q_
    attention_setup(4)
    a("s_barrier")

QF, OA, LA, SB, PB, KF, VF, ONES = 32, 48, 80, 88, 120, 136, 176, 168
vKc, vKn, vSy, vOne, vCnt, vIdx, vQa, vSt = 248, 249, 251, 252, 20, 255, 30, 31
vD, vDW = 240, 244
def wtile_offsets(dst):
    a(f"""v_lshrrev_b32 v22, 3, v0
      v_lshlrev_b32 v22, 11, v22
      v_and_b32 v23, 1, v2
      v_lshlrev_b32 v23, 2, v23
      v_and_b32 v24, 7, v0
      v_xor_b32 v23, v23, v24
      v_lshl_add_u32 v22, v23, 4, v22
      s_lshl_b32 s{sT0}, s{sCB2}, 7
      v_add_u32 v22, s{sT0}, v22""")
    for i in range(4): a(f"v_xor_b32 v23, {32*(i%2)}, v22\n v_add_u32 v{dst+i}, {i*16384-i*1024}, v23")
def lsum(z, P):
    a(f"v_smfmac_f32_16x16x64_bf16 {vr(LA+4*(z//2),4)}, {vr(ONES+4*(z%2),4)}, {vr(P,8)}, v{vIdx}")
sKo, sCn, sDo, sMb, sDs, sO0, sO1 = sA, sB, sC, sD, sE, sF, sG
def attention_setup(part):
    if part == 0: wtile_offsets(vDW)
    if part == 1:
        a(f"""s_lshl_b32 s{sT0}, s{sW}, 12
          s_add_u32 s{sT1}, s{sT0}, {QX}
          v_lshl_add_u32 v{vQa}, v0, 4, s{sT1}
          v_add_u32 v{vKc}, {KVR}, v{vKVD}
          v_mov_b32 v{vKn}, {SYNC}
          v_and_b32 v22, 2, v1
          v_mov_b32 v23, 0x3f803f80
          v_cmp_eq_u32 vcc, 0, v22
          v_lshl_add_u32 v{vSy}, v0, 2, v{vKn}
          v_sub_u32 v{vOne}, 1, v0
          v_max_i32 v{vOne}, 0, v{vOne}
          v_cndmask_b32 v{ONES}, 0, v23, vcc
          v_cndmask_b32 v{ONES+1}, 0, v23, vcc
          v_xor_b32 v{ONES+4}, v{ONES}, v23
          v_xor_b32 v{ONES+5}, v{ONES}, v23
          v_mov_b64 {vr(ONES+2,2)}, {vr(ONES,2)}
          v_mov_b64 {vr(ONES+6,2)}, {vr(ONES+4,2)}
          v_and_b32 v22, 1, v1
          v_mul_u32_u24 v22, 0xaaaa, v22
          v_or_b32 v{vIdx}, 0x4444, v22""")
    if part == 2:
        a(f"""v_and_b32 v22, 1, v2
          v_lshlrev_b32 v22, 9, v22
          v_lshrrev_b32 v23, 1, v2
          v_lshl_add_u32 v22, v23, 8, v22
          v_lshl_add_u32 v{vSt}, v1, 4, v22""")
        for r in range(4): a(f"v_mov_b32 v{vD+r}, v{vKVD}")
        for r in list(range(PB + 8, PB + 16, 2)) + list(range(VF + 16, VF + 32, 2)): a(f"v_mov_b64 {vr(r,2)}, 0")
    if part == 3:
        for r in range(OA, OA + 40, 2): a(f"v_mov_b64 {vr(r,2)}, 0")
    if part == 4:
        a(f"""s_lshl_b32 s{sT0}, s{sW}, 12
          s_mov_b32 s{sCn}, 4
          s_add_u32 s{sDo}, s{sT0}, {3*16384}
          s_mov_b32 s{sDs}, 16384
          s_mov_b32 s{sKo}, 16384
          s_add_u32 s{sMb}, s{sT0}, {KVR}
          s_mul_i32 s{sO0}, s{sRB}, {RBSZ}
          s_lshl_b32 s{sT1}, s{sQB}, 14
          s_add_u32 s{sO0}, s{sO0}, s{sT1}
          s_lshl_b32 s{sT1}, s{sW}, 11
          s_add_u32 s{sO0}, s{sO0}, s{sT1}
          s_add_u32 s{sO0}, s{sO0}, {112*8192}
          s_add_u32 s{sO1}, s{sO0}, 8192
          s_mov_b32 s{sIT}, 0""")
def attention():
    kvo = lambda T: ((T // 4 + 2) % 4) * 16384 + (T % 4) * 4096
    def rdK(U, e):
        for k_ in range(2): a.lg(f"ds_read_b128 {vr(KF+16*(U%2)+8*e+4*k_,4)}, v{vKc} offset:{kvo(2*U+e)+1024*k_}", "kv")
    def rdV(U, e):
        for k_ in range(2): a.lg(f"ds_read_b128 {vr(VF+16*(U%2)+8*e+4*k_,4)}, v{vKc} offset:{kvo(2*U+e)+2048+1024*k_}", "kv")
    a.lg(f"ds_read_b128 {vr(QF,4)}, v{vQa}")
    rdK(0, 0); rdK(0, 1)
    a.lgq[-1] = "k0"
    a.lg(f"ds_read_b128 {vr(QF+4,4)}, v{vQa} offset:1024", "q1")
    for i in range(2, 4): a.lg(f"ds_read_b128 {vr(QF+4*i,4)}, v{vQa} offset:{1024*i}")
    rdV(0, 0); rdV(0, 1)
    a.wait(lg="k0")
    for k_ in range(4): mf16(SB + 4 * k_, KF + 4 * k_, QF, "0")
    a.wait(lg="q1")
    a("s_nop 3")
    a.raw(".p2align 3")
    cm("attention: S^T = K Q^T, P = exp2(S), O^T += V^T P, row sums by a sparse MFMA; K/V stream through a 4-slot LDS ring.\nZero stands in for the row maximum here; the check after the loop falls back to the true maximum (L_slow)")
    a.label("L_att")
    def pv(k_, U, z, P): e_ = int(k_ in (1, 2)); mf16(OA + 8 * z + 4 * (k_ // 2), VF + 16 * (U % 2) + 8 * e_ + 4 * (k_ // 2), P + 4 * e_)
    def slot(n, hooks):
        U1, z1 = divmod(n + 1, 4); Up, zp = divmod(n - 1, 4)
        S = SB + 16 * (n % 2); S1 = SB + 16 * ((n + 1) % 2)
        P = PB + 8 * (n % 2); Pp = PB + 8 * ((n - 1) % 2)
        ne = nc = 0
        for ch in OPT["pat"]:
            if ch == "e": a(f"v_exp_f32 v{S+ne}, v{S+ne}"); ne += 1
            elif ch == "c": assert ne >= 2 * nc + 2; a(f"v_cvt_pk_bf16_f32 v{P+nc}, v{S+2*nc}, v{S+2*nc+1}"); nc += 1
            elif ch == "w": a.wait(lg=["kv", "cnt"], vm=hooks.get("vm", ()))
            elif ch in "qrst": k_ = "qrst".index(ch); mf16(S1 + 4 * k_, KF + 16 * (U1 % 2) + 4 * k_, QF + 4 * z1, "0")
            elif ch in "uvxy": pv("uvxy".index(ch), Up, zp, Pp)
            elif ch == "S": lsum(zp, Pp)
            else:
                for f in hooks.get(int(ch), []): f()
        assert ne == 16 and nc == 8
        pt = OPT["pat"]; assert pt.index("4") > pt.index("w")
    def body(it):
        for cc in range(4):
            c_ = 4 * it + cc
            for k in range(8):
                n = 8 * c_ + k; U, z = divmod(n, 4)
                hk = {4: [lambda: rdK(U + 1, z) if z < 2 else rdV(U + 1, z - 2)]}
                KA = OPT["arrk"]
                if k == KA:
                    hk["vm"] = ("kv", c_ + 1); hk[4].append(lambda: a.lg(f"ds_add_u32 v{vSy}, v{vOne}"))
                if k == 1:
                    hk[0] = [lambda: a(f"s_add_u32 m0, s{sMb}, {((c_+1)%4)*16384}")]
                    if cc == 1: hk[1] = [lambda: a(f"s_cmp_eq_u32 s{sIT}, 3")]; hk[2] = [lambda: (a("s_cbranch_scc1 L_attwo"), a.label("L_attwo_r"))]
                if k == 2: hk[4].append(lambda: a.lg(f"ds_read_b32 v{vCnt}, v{vKn}", "cnt"))
                if k == 3: hk[5] = [lambda: a(f"v_cmp_gt_u32 vcc, s{sCn}, v{vCnt}")]
                pre_ = cc <= OPT["kvreg"]
                if k == 4:
                    hk[0] = [lambda: (a(f"s_cbranch_vccnz L_attspin{cc}"), a.label(f"L_attgo{cc}"))]
                    hk[1] = [lambda: a(f"s_add_u32 s{sCn}, s{sCn}, 4")]
                    if pre_: hk[2] = [lambda: a(f"s_cmp_eq_u32 s{sIT}, 0")]
                if k in (4, 5):
                    def dma(i):
                        if OPT["anodma"]: return
                        if pre_: a(f"s_cbranch_scc1 L_{'no' if cc == 0 else 'reg'}dma{cc}_{i}")
                        for k2 in (i, i + 1):
                            t_ = f"buffer_load_dwordx4 v{vD+k2}, s[{rE}:{rE+3}], s{sDo} offen offset:{1024*k2} sc1 lds"
                            a.vm(t_, ("kv", c_ + 3)) if c_ > OPT["kvreg"] else a(t_)
                        if pre_: a.label(f"L_nodma{cc}_{i}")
                    if OPT["dpos"] == 0: hk[4].append(lambda: dma(2 * (k - 4)))
                    elif OPT["dpos"] == 1: hk[4].insert(0, lambda: dma(2 * (k - 4)))
                    else: hk[6] = [lambda: dma(2 * (k - 4))]
                if k == 7:
                    hk[0] = [lambda: a(f"s_add_u32 s{sDo}, s{sDo}, s{sKo if cc == 1 else sDs}")]
                    if cc == 3: hk[1] = [lambda: a(f"s_add_u32 s{sIT}, s{sIT}, 1")]; hk[2] = [lambda: a(f"s_cmp_lt_u32 s{sIT}, 4")]
                slot(n, hk)
        a("s_cbranch_scc1 L_att")
    a.loop(body, "att", 3)
    a("s_nop 0")
    lsum(3, PB + 8)
    if OPT["hrel"]: a(f"ds_add_u32 v{vSy}, v{vOne}")
    for k_ in range(4): pv(k_, 31, 3, PB + 8)
    stamp("a_att")
    a(f"s_mov_b32 s{sIT}, 0")
    cm('O * gate / rowsum -> workspace')
    a.label("L_attfin")
    def fin(k):
        T_ = SB + 4 * k
        a(f"v_permlane16_swap_b32 v{T_}, v{T_+2}\n v_permlane16_swap_b32 v{T_+1}, v{T_+3}")
        a(f"buffer_store_dwordx4 {vr(T_,4)}, v{vSt}, s[{rWS}:{rWS+3}], s{sO0+k//2} offen offset:{1024*(k%2)} sc1")
    for k in range(4):
        a(f"v_add_f32 v{24+k}, v{LA+2*k}, v{LA+2*k+1}")
        a(f"v_rcp_f32 v22, v{24+k}")
        if k: fin(k - 1)
        else: a("s_nop 0")
        a(f"v_mul_f32 v22, v22, v{vG+k%2}")
        for r in range(4):
            d = OA + 8 * k + 2 * r
            a(f"v_mul_f32 v{d}, v{d}, v22\n v_mul_f32 v{d+1}, v{d+1}, v22\n v_cvt_pk_bf16_f32 v{SB+4*k+r}, v{d}, v{d+1}")
    a("s_nop 1"); fin(3)
    a(f"s_cmp_lg_u32 s{sIT}, 0\n s_cbranch_scc1 L_attok")
    a(f"s_waitcnt vmcnt(4) lgkmcnt(0)\n ds_add_u32 v{vSy}, v{vOne} offset:12")
    cm('stand-in check: every row sum in [2^-40, 2^100] and nothing infinite or NaN, else redo with the true maximum')
    a(f"s_mov_b32 s{sT0}, {f2u(2.0**-40)}\n s_mov_b32 s{sT1}, {f2u(2.0**100)}\n v_max3_f32 v28, v24, v25, v26\n v_max_f32 v28, v28, v27\n v_mov_b32 v29, 0")
    for r in list(range(OA, OA + 32, 2)) + [24, 26]: a(f"v_pk_fma_f32 v[28:29], {vr(r,2)}, 0, v[28:29]")
    a(f"""v_add_f32 v28, v28, v29
      v_min3_f32 v29, v24, v25, v26
      v_min_f32 v29, v29, v27
      v_cmp_nle_f32 vcc, v28, s{sT1}
      v_cmp_nge_f32 s[{sT2}:{sT3}], v29, s{sT0}
      s_or_b64 vcc, vcc, s[{sT2}:{sT3}]""")
    if OPT["forceslow"]: a("s_branch L_slow")
    a("s_cbranch_vccnz L_slow")
    a.label("L_attok")
    setflag(1)
    stamp("a_end")
    if OPT["padto"]:
        a("s_barrier\n s_barrier" if OPT["ebar"] else "s_barrier")
        a.label("L_pad2")
        a(f"s_memrealtime s[98:99]\n s_waitcnt lgkmcnt(0)\n s_sleep 8\n s_sub_u32 s98, s98, s96\n s_cmp_lt_u32 s98, {OPT['padto']}\n s_cbranch_scc1 L_pad2")
    dump_ts_and_end()
    a.label("L_attwo")
    srd(rE, pWO, 1024 * 2048)
    a(f"s_lshl_b32 s{sDo}, s{sW}, 17\n s_add_u32 s{sDo}, s{sDo}, {524288+65536}\n s_mov_b32 s{sDs}, 65536\n s_mov_b32 s{sKo}, {2*524288-65536}")
    a(f"v_mov_b64 {vr(vD,2)}, {vr(vDW,2)}\n v_mov_b64 {vr(vD+2,2)}, {vr(vDW+2,2)}\n s_branch L_attwo_r")
    for cc in range(1, OPT["kvreg"] + 1):
        for i in (() if OPT["anodma"] else (0, 2)):
            a.label(f"L_regdma{cc}_{i}")
            if i == 0: a(f"s_waitcnt vmcnt(0)\n v_add_u32 v22, s{sMb}, v{vKVD}")
            for k2 in (i, i + 1): a(f"ds_write_b128 v22, {vr(KVREG+16*(cc-1)+4*k2,4)} offset:{((cc+1)%4)*16384+1024*k2}")
            a(f"s_branch L_nodma{cc}_{i}")
    for cc in range(4):
        a.label(f"L_attspin{cc}")
        a(f"s_mov_b32 s{sT2}, {SPIN_MAX}")
        a.label(f"L_attspin{cc}b")
        a(f"""ds_read_b32 v{vCnt}, v{vKn}
          s_waitcnt lgkmcnt(0)
          v_cmp_gt_u32 vcc, s{sCn}, v{vCnt}
          s_sub_u32 s{sT2}, s{sT2}, 1
          s_cbranch_vccz L_attgo{cc}
          s_cmp_lg_u32 s{sT2}, 0
          s_cbranch_scc1 L_attspin{cc}b
          s_branch L_attgo{cc}""")
    cm('exact path: pass 1 finds the true row maximum, pass 2 subtracts it (through the accumulator input of the score MFMA)')
    a.label("L_slow")
    NM = 208
    a(f"s_add_u32 s{rE}, s{pWS}, {KV_OFF}\n s_addc_u32 s{rE+1}, s{pWS+1}, 0\n s_mov_b32 s{rE+2}, 0x40000\n s_mov_b32 s{rE+3}, 0x20000")
    a(f"s_waitcnt vmcnt(0) lgkmcnt(0)\n s_mov_b32 s{sT0}, 0\n s_mov_b32 s{sIT}, 1")
    for k in range(4): a(f"v_mov_b32 v{24+k}, 0xff800000")
    a.label("L_slow1")
    a(f"buffer_load_dwordx4 {vr(KF,4)}, v{vKVD}, s[{rE}:{rE+3}], s{sT0} offen sc1\n buffer_load_dwordx4 {vr(KF+4,4)}, v{vKVD}, s[{rE}:{rE+3}], s{sT0} offen offset:1024 sc1\n s_waitcnt vmcnt(0)")
    for k in range(8): mf16(SB + 4 * k, KF + 4 * (k % 2), QF + 4 * (k // 2), "0")
    a("s_nop 7")
    for k in range(4):
        for r in range(0, 8, 2): a(f"v_max3_f32 v{24+k}, v{SB+8*k+r}, v{SB+8*k+r+1}, v{24+k}")
    a(f"s_add_u32 s{sT0}, s{sT0}, 4096\n s_cmp_lt_u32 s{sT0}, 0x40000\n s_cbranch_scc1 L_slow1")
    for sw in ("16", "32"):
        for k in range(4): a(f"v_mov_b32 v{16+k}, v{24+k}")
        a("s_nop 1")
        for k in range(4): a(f"v_permlane{sw}_swap_b32 v{24+k}, v{16+k}")
        for k in range(4): a(f"v_max_f32 v{24+k}, v{24+k}, v{16+k}")
    for k in range(4):
        for r in range(4): a(f"v_sub_f32 v{NM+4*k+r}, 0, v{24+k}")
    for r in range(OA, OA + 40, 2): a(f"v_mov_b64 {vr(r,2)}, 0")
    a(f"s_mov_b32 s{sT0}, 0")
    a.label("L_slow2")
    for e_ in range(2):
        for i in range(4):
            a(f"buffer_load_dwordx4 {vr((KF if i < 2 else VF)+8*e_+4*(i%2),4)}, v{vKVD}, s[{rE}:{rE+3}], s{sT0} offen offset:{1024*i} sc1")
        a(f"s_add_u32 s{sT0}, s{sT0}, 4096")
    a("s_waitcnt vmcnt(0)")
    for z in range(4):
        for k in range(4): mf16(SB + 4 * k, KF + 4 * k, QF + 4 * z, vr(NM + 4 * z, 4))
        a("s_nop 7")
        for r in range(16): a(f"v_exp_f32 v{SB+r}, v{SB+r}")
        for r in range(8): a(f"v_cvt_pk_bf16_f32 v{PB+r}, v{SB+2*r}, v{SB+2*r+1}")
        a("s_nop 1")
        for k in range(4): pv(k, 0, z, PB)
        lsum(z, PB)
    a(f"s_cmp_lt_u32 s{sT0}, 0x40000\n s_cbranch_scc1 L_slow2")
    a("s_nop 7\n s_nop 3\n s_branch L_attfin")

def setflag(which):
    if which == 0: a(f"s_lshr_b32 s{sT1}, s{sCB}, 2\n s_and_b32 s{sT2}, s{sCB}, 3")
    else: a(f"s_and_b32 s{sT1}, s{sQB}, 3\n s_and_b32 s{sT2}, s{sQB}, 12\n s_lshr_b32 s{sT2}, {sum(k << (4 * g) for k, g in enumerate(GRP))}, s{sT2}\n s_and_b32 s{sT2}, s{sT2}, 3")
    a(f"""s_lshl_b32 s{sT0}, s{sRB}, 13
      s_lshl_b32 s{sT1}, s{sT1}, 7
      s_add_u32 s{sT0}, s{sT0}, s{sT1}
      s_lshl2_add_u32 s{sT0}, s{sT2}, s{sT0}
      s_add_u32 s{sT0}, s{sT0}, {FL_OFF+16*which}
      v_mov_b32 v17, {SYNC+4+4*which}
      v_mov_b32 v15, 1""")
    if which == 0:
        if OPT["noack"] < 2: a.wait(vm="hst")
    elif OPT["noack"] & 1: a("s_waitcnt vmcnt(4)")
    else: a.wait0(lg=False)
    l = a.newlabel("L_nofl")
    a(f"""s_mov_b64 exec, 1
      ds_add_rtn_u32 v16, v17, v15
      s_mov_b64 exec, 0xffff
      v_lshlrev_b32 v17, 9, v0
      s_waitcnt lgkmcnt(0)
      v_readfirstlane_b32 s{sT1}, v16
      s_cmp_eq_u32 s{sT1}, 3
      s_cbranch_scc0 {l}
      buffer_store_dword v15, v17, s[{rWS}:{rWS+3}], s{sT0} offen {OPT['sfl'].replace('_', ' ')}""")
    a.label(l)
    a("s_mov_b64 exec, -1")
    a.lgq.clear()
def mbox(which):
    a(f"""s_lshl_b32 s{sT0}, s{sRB2}, 4
      s_add_u32 s{sT0}, s{sT0}, s{sCB2}
      s_lshl_b32 s{sT0}, s{sT0}, 2
      s_add_u32 s{sT0}, s{sT0}, s{sW}
      s_lshl_b32 s{sT0}, s{sT0}, 7
      s_add_u32 s{sT0}, s{sT0}, {FL_OFF+16*which}
      v_and_b32 v15, 3, v0
      v_lshlrev_b32 v15, 2, v15""")
def waitflag(which, name):
    mbox(which)
    a(f"s_mov_b32 s{sT1}, {SPIN_MAX}\n s_mov_b64 exec, 15")
    a.label(name)
    a(f"""buffer_load_dword v17, v15, s[{rWS}:{rWS+3}], s{sT0} offen {OPT['pfl'].replace('_', ' ')}
      s_waitcnt vmcnt(0)
      v_cmp_ne_u32 vcc, 1, v17
      s_sub_u32 s{sT1}, s{sT1}, 1
      s_cbranch_vccz {name}_x
      s_sleep {OPT['slp']}
      s_cmp_lg_u32 s{sT1}, 0
      s_cbranch_scc1 {name}""")
    a.label(name + "_x")
    a("s_mov_b64 exec, -1")
def waitlds(off, val, name, va=15):
    a(f"s_mov_b32 s{sT1}, {SPIN_MAX}\n v_mov_b32 v{va}, {SYNC+off}")
    a.label(name)
    a(f"""ds_read_b32 v17, v{va}
      s_waitcnt lgkmcnt(0)
      v_readfirstlane_b32 s{sT0}, v17
      s_cmp_ge_u32 s{sT0}, {val}
      s_cbranch_scc1 {name}_x
      s_sleep 2
      s_sub_u32 s{sT1}, s{sT1}, 1
      s_cmp_lg_u32 s{sT1}, 0
      s_cbranch_scc1 {name}""")
    a.label(name + "_x")

ACC2, HR, WF = 128, 64, 32
acc2 = lambda rt, nt: ACC2 + (rt * 4 + nt) * 4
vWD, vWR, vH, vGM = 3, 7, 11, 16
sWo, sHo, sMw, sRdy = sC, sD, sE, sF
def g2_vsetup():
    wtile_offsets(vWD)
    a(f"""s_lshl_b32 s{sT0}, s{sW}, 14
      v_lshrrev_b32 v14, 2, v1
      v_lshl_add_u32 v14, v2, 3, v14
      v_and_b32 v15, 3, v1
      v_lshlrev_b32 v15, 3, v15
      v_lshl_add_u32 v14, v14, 7, v15
      v_and_b32 v15, 1, v2
      v_lshrrev_b32 v30, 3, v1
      v_lshl_add_u32 v15, v30, 1, v15
      v_lshl_add_u32 v14, v15, 5, v14
      v_add_u32 v14, s{sT0}, v14""")
    for nt in range(4): a(f"v_xor_b32 v{vWR+nt}, {32*nt}, v14")
    for p in range(4):
        a(f"s_add_u32 s{sT0}, s{sW}, {p+1}\n s_and_b32 s{sT0}, s{sT0}, 3\n s_lshl_b32 s{sT0}, s{sT0}, 11\n v_lshl_add_u32 v{vH+p}, v0, 4, s{sT0}")
def g2_setup():
    srd(rB, pW2, 3584 * 2048)
    a(f"s_lshl_b32 s{sMw}, s{sW}, 14\n s_mul_i32 s{sWo}, s{sW}, {896*2048}")
def dmaW(i, k):
    if k == 0: a(f"s_add_u32 m0, s{sMw}, {(i%4)*4096}\n s_nop 0")
    a.vm(f"buffer_load_dwordx4 v{vWD+k}, s[{rB}:{rB+3}], s{sWo} offen offset:{1024*k} lds", ("W2", i // 2))
    if k == 3: a(f"s_add_u32 s{sWo}, s{sWo}, 65536")
def g_phase2():
    sHp, sMbx, sOb, sDl = sB, 4, 5, 6
    vPo = 29
    def ldH(i, rt):
        a.vm(f"buffer_load_dwordx4 {vr(HR+32*(i%2)+4*rt,4)}, v{vH+rt//2}, s[{rWS}:{rWS+3}], s{sHp if i % 2 else sHo} offen offset:{1024*(rt%2)} sc1", ("H", i // 2, rt // 2))
    WOFF = {32: 0, 33: 49152, 34: 49152, 35: 0}
    def rdW2(i, nt, e):
        a.lg(f"ds_read_b64_tr_b16 {vr(WF+16*(i%2)+4*nt+2*e,2)}, v{vWR+nt} offset:{WOFF.get(i, (i%4)*4096)+512*e}", ("W2", i // 2, nt))
    cm('G, phase 2: out tile [128 x 64] = (1-g) (hidden W2 + b2) + (g O) Wo, K split over the four waves')
    setflag(0)
    stamp("g_flag")
    if OPT["nog2"]: dump_ts_and_end()
    for i in range(OPT["wpre"], 4):
        for k in range(4): dmaW(i, k)
    a(f"""s_mul_i32 s{sHo}, s{sRB2}, {RBSZ}
      s_mul_i32 s{sT1}, s{sW}, {28*8192}
      s_add_u32 s{sHo}, s{sHo}, s{sT1}
      s_lshl_b32 s{sT2}, s{sRB2}, 9
      s_add_u32 s{sT2}, s{sT2}, {G_OFF}
      v_lshlrev_b32 v15, 2, v1""")
    for p in range(4):
        a(f"""s_add_u32 s{sT0}, s{sW}, {p+1}
          s_and_b32 s{sT0}, s{sT0}, 3
          s_lshl_b32 s{sT0}, s{sT0}, 7
          s_add_u32 s{sT0}, s{sT0}, s{sT2}""")
        for h in range(2): a(f"buffer_load_dword v{vGM+4*p+2*h}, v15, s[{rWS}:{rWS+3}], s{sT0} offen offset:{64*h} sc1")
    if OPT["loc2"]:
        a(f"""s_bfe_u32 s{sT0}, s2, {hex(((3-LC) << 16) + LC)}
          s_lshl_b32 s{sT0}, s{sT0}, 5
          s_add_u32 s{sT3}, s{sT0}, s{sI}
          s_lshl_b32 s{sT0}, s{sW}, {8-LC}
          s_add_u32 s{sT0}, s{sT0}, s{sT3}
          s_lshr_b32 s{sG}, s{sT0}, {7-LC}
          s_bfe_u32 s{sT1}, s{sT0}, {hex(0x20000 + 5 - LC)}
          s_mul_i32 s{sT1}, s{sT1}, {896*2048}
          s_and_b32 s{sT0}, s{sT0}, {(32 >> LC) - 1}
          s_lshl_b32 s{sT0}, s{sT0}, {13+LC}
          s_add_u32 s{sT0}, s{sT0}, s{sT1}
          s_add_u32 s{sT1}, s{sG}, 2
          s_lshl_b32 s{sT1}, s{sT1}, 18
          s_add_u32 s{sT0}, s{sT0}, s{sT1}
          s_cmp_eq_u32 s{sG}, 5
          s_cselect_b32 s{sG}, -1, s{sG}
          s_lshl_b32 s{sT1}, s{sT3}, {13+LC}
          s_and_b32 s{sT2}, s{sCB2}, {(1 << LC) - 1}
          s_lshl_b32 s{sT2}, s{sT2}, 7
          s_add_u32 s{sT0}, s{sT0}, s{sT2}
          s_add_u32 s{sT1}, s{sT1}, s{sT2}
          s_and_b32 s{sT2}, s{sI}, 1
          s_add_u32 s{sT2}, s{sT2}, {OPT["woit"]}""")
    else:
        if OPT["ev2"]: a(f"s_lshl_b32 s{sT0}, s{sW}, 8\n s_add_u32 s{sT0}, s{sT0}, s2")
        else: a(f"s_lshl_b32 s{sT0}, s2, 1\n s_add_u32 s{sT0}, s{sT0}, s{sW}\n s_add_u32 s{sT1}, s2, 512\n s_cmp_eq_u32 s{sW}, 2\n s_cselect_b32 s{sT0}, s{sT1}, s{sT0}")
        a(f"""
          s_lshr_b32 s{sG}, s{sT0}, 7
          s_bfe_u32 s{sT1}, s{sT0}, 0x20005
          s_mul_i32 s{sT1}, s{sT1}, {896*2048}
          s_and_b32 s{sT0}, s{sT0}, 31
          s_lshl_b32 s{sT0}, s{sT0}, 13
          s_add_u32 s{sT0}, s{sT0}, s{sT1}
          s_add_u32 s{sT1}, s{sG}, 2
          s_lshl_b32 s{sT1}, s{sT1}, 18
          s_add_u32 s{sT0}, s{sT0}, s{sT1}
          s_cmp_eq_u32 s{sG}, 5
          s_cselect_b32 s{sG}, -1, s{sG}
          s_lshl_b32 s{sT1}, s2, 13
          s_and_b32 s{sT2}, s{sI}, 1""")
    a(f"""
      s_cmp_eq_u32 s{sW}, 3
      s_cselect_b32 s{sA}, s{sT1}, s{sT0}
      s_cselect_b32 s{sG}, s{sT2}, s{sG}
      s_cselect_b32 s{rPF}, s{pWO}, s{pW2}
      s_cselect_b32 s{rPF+1}, s{pWO+1}, s{pW2+1}
      s_mov_b32 s{sT0}, {3584*2048}
      s_cselect_b32 s{rPF+2}, {1024*2048}, s{sT0}
      s_mov_b32 s{rPF+3}, 0x20000""")
    if OPT["ev2"] and not OPT["loc2"]: a(f"s_bitcmp1_b32 s2, 0\n s_cselect_b32 s{sG}, -1, s{sG}")
    stamp("g_pw")
    waitflag(0, "L_wh")
    stamp("g_wf")
    a.vmq.clear(); a.lgq.clear()
    rds = lambda D, nt: [lambda e_=e_, k=k: rdW2(2 * D + e_, nt, k) for e_ in range(2) for k in range(2)]
    def ldP(D, ps):
        for p in ps:
            for h in range(2): ldH(2 * D, 2 * p + h); ldH(2 * D + 1, 2 * p + h)
    pend = []
    def dstep(D, fine, extra={}, at={}):
        for p in range(4):
            ex = list(extra.get(p, [])); lq = []
            if p in at: at[p]()
            if p in (1, 2) and D < 14: lq = [lambda k=k: dmaW(2 * D + 3 + p, k) for k in range(4)]
            if OPT["gdma"] and fine and D < 14 and p == 0:
                lq = [lambda: None, lambda: None] + [lambda k=k: (a(f"s_add_u32 m0, s7, {KVR + (D % 2) * 16384}\n s_add_u32 s8, s8, 16384") if k == 0 else None,
                      a.vm(f"buffer_load_dwordx4 v{vH+3}, s[{rWS}:{rWS+3}], s8 offen offset:{1024*k} sc1 lds")) for k in range(4)]
            for nt in range(4):
                if p == 0: lgw = [("W2", D, nt)] if fine else ([("W2", D, nt + 1)] if nt % 2 == 0 else [])
                else: lgw = []
                a.wait(vm=([("H", D, p)] + ([("W2", D + 1)] if p == 3 else [])) if nt == 0 else [], lg=lgw)
                if OPT["chain"]: seq = [(nt % 2, 0), (nt % 2, 1), (1 - nt % 2, 1), (1 - nt % 2, 0)]
                else: seq = [(0, 0), (1, 0), (1, 1), (0, 1)]
                for n, (h, e) in enumerate(seq):
                    first = (h, 1 - e) not in seq[:n]
                    mf16(acc2(2 * p + h, nt), WF + 16 * e + 4 * nt, HR + 32 * e + 4 * (2 * p + h), "0" if D == 0 and first else None)
                    if fine:
                        if pend: pend.pop(0)()
                        if nt == 3 and D < 17: ldH(2 * D + 2 + e, 2 * p + h)
                        elif lq and n % 2: lq.pop(0)()
                        x = ex.pop(0) if ex else None
                        if callable(x): x()
                        elif x: a(x)
                if p == 3 and D < 17: pend.extend(rds(D + 1, nt))
                if not fine and nt == 1:
                    while pend: pend.pop(0)()
                    while lq: lq.pop(0)()
                    if OPT["gdma"] and p in (0, 3):
                        a(f"s_add_u32 m0, s7, {KVR + (D % 2) * 16384}\n s_nop 0")
                        for k in ((0, 1) if p == 0 else (2, 3)): a.vm(f"buffer_load_dwordx4 v{vH+3}, s[{rWS}:{rWS+3}], s8 offen offset:{1024*k} sc1 lds")
                        if p == 3: a("s_add_u32 s8, s8, 16384")
                if not fine and nt == 3:
                    if (p, "ld") in at: at[p, "ld"]()
                    ldP(D + 1, [p])
            assert not ex and not lq
        if D < 12: a(f"s_add_u32 s{sHo}, s{sHo}, 16384\n s_add_u32 s{sHp}, s{sHp}, 16384")
    for nt in range(4):
        for f in rds(0, nt): f()
    a(f"s_add_u32 s{sHp}, s{sHo}, 8192")
    ldP(0, range(4))
    a(f"s_add_u32 s{sHo}, s{sHo}, 16384\n s_add_u32 s{sHp}, s{sHp}, 16384")
    for rt in range(8): a(f"v_sub_f32 v{vGM+2*rt}, 1.0, v{vGM+2*rt}")
    stamp("g_l2")
    a(f"s_setprio {OPT['g2prio']}\n s_mov_b32 s{sIT}, 0")
    if OPT["gdma"]: a(f"s_lshl_b32 s7, s{sW}, 12\n s_lshl_b32 s8, s{sW}, 11\n s_add_u32 s8, s8, {KV_OFF}")
    fine = [not int(c) for c in OPT["gp"][1:3]]
    dstep(0, fine[1])
    stamp("g_s0")
    a.raw(".p2align 3")
    cm('FFN double steps (runs beside the attention waves)')
    a.label("L_g2loop")
    def body(it):
        if OPT["pf2"]: a(f"s_cmp_eq_u32 s{sIT}, s{sG}\n s_cbranch_scc1 L_hookF"); a.label("L_hookF_r")
        dstep(2 * it + 1, fine[0])
        snap[:] = [list(a.vmq), list(a.lgq), len(pend), 11 - (2 * it + 1)]
        a(f"s_cmp_ge_u32 s{sIT}, 4\n s_cbranch_scc1 L_hookW"); a.label("L_hookW_r")
        dstep(2 * it + 2, fine[1])
        a(f"s_add_u32 s{sIT}, s{sIT}, 1\n s_branch L_g2loop")
    snap = []
    a.loop(body, "g2")
    a.label("L_g2end")
    sh = lambda q: [x and (x[0], x[1] + snap[3]) + x[2:] for x in q]
    a.vmq[:] = sh(snap[0]); a.lgq[:] = sh(snap[1])
    pend[:] = [f for nt in range(4) for f in rds(12, nt)][16 - snap[2]:]
    ret = lambda l: a(f"s_branch {l}")
    a(f"s_mov_b32 s{rB}, s{pWO}\n s_mov_b32 s{rB+1}, s{pWO+1}\n s_mov_b32 s{rB+2}, {1024*2048}\n s_lshl_b32 s{sWo}, s{sW}, 17\n s_add_u32 s{sWo}, s{sWo}, {GRP[0]*524288}")
    if OPT["hold"] != "xffff":
        cm("workgroups whose attention results are used first keep their last FFN steps back until their attention is done")
        a("s_bitcmp1_b32 s2, 0\n s_cbranch_scc1 L_hold_x")
        if OPT["hrel"]: waitlds(0, 64 + OPT["hrel"], "L_hold")
        else: waitlds(12, 4, "L_hold")
    cm("last FFN double step, then the output projection: four producers in a fixed order, looked up in this wave's mailbox")
    mbox(1)
    a(f"""s_mov_b32 s{sMbx}, s{sT0}
      s_mul_i32 s{sOb}, s{sRB2}, {RBSZ}
      s_add_u32 s{sOb}, s{sOb}, s{sMw}
      s_lshl_b32 s{sDl}, s{sW}, 12
      s_add_u32 s{sDl}, s{sDl}, {QX}
      s_sub_u32 s{sDl}, s{sDl}, s{sMw}""")
    def poll(): a.vm(f"buffer_load_dword v{vPo}, v15, s[{rWS}:{rWS+3}], s{sMbx} offen sc1", "poll")
    chk = lambda sl: f"""v_cmp_eq_u32 vcc, 1, v{vPo}
      s_add_u32 s{sHo}, s{sOb}, {(112+8*GRP[sl])*8192}
      s_bitcmp1_b32 vcc_lo, {sl}
      s_cselect_b32 s{sRdy}, 1, 0
      s_cselect_b32 s{sHo}, s{sHo}, {OOB}
      s_add_u32 s{sHp}, s{sHo}, 8192""".split("\n")
    behind = {}
    def npoll(): return a.vmq[::-1].index("poll") if "poll" in a.vmq else 62
    def again(sl):
        behind["s", sl] = npoll()
        a(f"s_cmp_eq_u32 s{sRdy}, 0\n s_cbranch_scc1 L_sec{sl}")
        a.label(f"L_sec{sl}_r")
        poll()
    def join(sl):
        behind["b", sl] = npoll()
        a(f"s_cmp_eq_u32 s{sRdy}, 0\n s_cbranch_scc1 L_blk{sl}")
        a.label(f"L_join{sl}")
        a.vmq[:] = [("H", 14 + sl, p) for p in range(4) for _ in range(4)]
    def late(sl):
        a.label(f"L_sec{sl}")
        a(f"s_waitcnt vmcnt({behind['s', sl]})")
        a("\n".join(chk(sl)))
        a(f"s_cmp_eq_u32 s{sRdy}, 0\n s_cbranch_scc1 L_sec{sl}_r")
        ldP(14 + sl, (0, 1))
        a(f"s_branch L_sec{sl}_r")
        a.label(f"L_blk{sl}")
        a(f"s_mov_b32 s{sT5}, {SPIN_MAX}\n s_waitcnt vmcnt({behind['b', sl]})\n s_branch L_blk{sl}b")
        a.label(f"L_blk{sl}a")
        a(f"s_sleep {OPT['slp']}"); poll(); a.wait0(lg=False)
        a(f"s_sub_u32 s{sT5}, s{sT5}, 1\n s_cbranch_scc0 L_blk{sl}b\n v_mov_b32 v{vPo}, 1")
        a.label(f"L_blk{sl}b")
        a("\n".join(chk(sl)))
        a(f"s_cmp_eq_u32 s{sRdy}, 0\n s_cbranch_scc1 L_blk{sl}a")
        ldP(14 + sl, range(4))
        a(f"s_branch L_join{sl}")
    two = lambda l_: ["\n".join(l_[k:k+2]) for k in range(0, len(l_), 2)]
    dstep(12, OPT["f12"], at={OPT['pp']: poll})
    stamp("g_25")
    a(f"s_add_u32 s{sWo}, s{sWo}, {((GRP[1]-GRP[0])*524288-131072) & 0xffffffff}")
    if OPT["f13"]: dstep(13, True, {0: [None] * 7 + [lambda: a.wait(vm="poll")] + two(chk(0)) + [poll]}, {2: lambda: again(0)})
    else: dstep(13, False, at={(0, "ld"): lambda: (a.wait(vm="poll"), a("\n".join(chk(0))), poll()), 2: lambda: again(0)})
    srd(rA, pB2, 2048); srd(rC, pOUT, 2048 * 2048)
    while pend: pend.pop(0)()
    join(0)
    stamp("g_hook")
    sc = lambda p: [f"v_pk_mul_f32 {vr(ACC2+32*p+16*h+4*nt+r,2)}, {vr(ACC2+32*p+16*h+4*nt+r,2)}, {vr(vGM+4*p+2*h,2)} op_sel_hi:[1,0]"
                    for nt in range(4) for h in range(2) for r in (0, 2)]
    for x in sc(0): a(x)
    vS0, vS1, vB2 = 3, 4, 18
    def wr(p, k):
        if OPT["nowr"]: return
        if p < 2: a.lg(f"ds_write_b128 v{vS0}, {vr(ACC2+32*p+4*k,4)} offset:{8192*p+1024*k}")
        else: a.lg(f"ds_write_b128 v{vS1}, {vr(ACC2+32*p+4*k,4)} offset:{16384*(k//4)+1024*(k%4)}")
    OWN = ACC2 + 96
    vRd = [5, 6, 16]; vTw = [11, 12, 13, 14]; vTr, vOo = 26, 27
    sc2 = lambda p: ["\n".join(f"v_mul_f32 v{ACC2+32*p+16*h+4*nt+r+u}, v{vGM+4*p+2*h}, v{ACC2+32*p+16*h+4*nt+r+u}" for u in range(2))
                     for nt in range(4) for h in range(2) for r in (0, 2)]
    extra = {(0, p): sc2(p + 1) for p in range(3)}
    two = lambda l_: ["\n".join(l_[k:k+2]) for k in range(0, len(l_), 2)]
    wp = lambda sl: a(f"s_waitcnt vmcnt({behind['b', sl]})")
    for D in (1, 2): extra[D, 0] = [None] * 7 + [lambda D=D: wp(D)] + two(chk(D + 1)) + [poll]
    t_ = f"""s_lshl_b32 s{sT0}, s{sCB2}, 7
      v_lshlrev_b32 v16, 3, v2
      v_lshl_add_u32 v{vS0}, v0, 4, s{sMw}
      v_add_u32 v{vS1}, s{sDl}, v{vS0}""".split("\n")
    extra[1, 2] = [f"v_mov_b32 v17, {SYNC+12}", None, lambda: a.lg("ds_read_b32 v31, v17", "wa")] + [None] * 7 + [
        lambda: (a.wait(lg="wa"), a("v_cmp_gt_u32 vcc, 4, v31")), lambda: (a("s_cbranch_vccnz L_wa0"), a.label("L_wa_r"))]
    extra[1, 1] = t_ + [f"v_add_u32 v{vWR+nt}, s{sDl}, v{vWR+nt}" for nt in range(4)] + [lambda nt=nt: a.vm(f"buffer_load_dwordx2 {vr(vB2+2*nt,2)}, v16, s[{rA}:{rA+3}], s{sT0} offen offset:{32*nt}", "b2") for nt in range(4)]
    t_ = []
    for p in range(3):
        t_ += [f"s_sub_u32 s{sT1}, s{sW}, {p+1}\n s_and_b32 s{sT1}, s{sT1}, 3"]
        if p < 2: t_ += [f"s_lshl_b32 s{sT1}, s{sT1}, 14\n v_lshl_add_u32 v{vRd[p]}, v0, 4, s{sT1}"]
        else: t_ += [f"s_lshl_b32 s{sT1}, s{sT1}, 12\n s_add_u32 s{sT1}, s{sT1}, {QX}", f"v_lshl_add_u32 v{vRd[p]}, v0, 4, s{sT1}"]
    assert len(t_) == 7; rdadr = t_
    fm = []
    for nt in range(4):
        for r in range(2):
            fm += [f"v_lshlrev_b32 v{vTr}, 16, v{vB2+2*nt+r}\n v_and_b32 v{vTr+1}, 0xffff0000, v{vB2+2*nt+r}"]
            fm += ["\n".join(f"v_fmac_f32 v{OWN+16*h+4*nt+2*r+u}, v{vTr+u}, v{vGM+12+2*h}" for u in range(2)) for h in range(2)]
    extra[2, 0][4:6] = two([f"v_add_u32 v{vWR+nt}, 16384, v{vWR+nt}" for nt in range(4)])
    extra[2, 1] = rdadr + [None] + fm[:8]; extra[2, 2] = fm[8:]
    t_ = f"""s_lshl_b32 s{sT2}, s{sW}, 12
      s_add_u32 s{sT2}, s{sT2}, {KVR+16384}
      v_lshrrev_b32 v15, 3, v0
      v_and_b32 v17, 7, v0
      v_xor_b32 v{vTr}, v15, v17
      v_lshlrev_b32 v{vTr}, 4, v{vTr}
      v_lshl_add_u32 v{vTr}, v15, 7, v{vTr}
      v_add_u32 v{vTr}, s{sT2}, v{vTr}
      v_lshlrev_b32 v{vOo}, 4, v17
      v_lshl_add_u32 v{vOo}, v15, 11, v{vOo}
      v_and_b32 v15, 7, v1
      v_lshrrev_b32 v17, 1, v2
      v_xor_b32 v15, v15, v17
      v_lshlrev_b32 v15, 4, v15
      v_and_b32 v17, 1, v2
      v_lshl_add_u32 v15, v17, 3, v15
      v_lshl_add_u32 v15, v1, 7, v15
      v_add_u32 v{vTw[0]}, s{sT2}, v15
      v_xor_b32 v{vTw[1]}, 32, v{vTw[0]}
      v_xor_b32 v{vTw[2]}, 64, v{vTw[0]}
      v_xor_b32 v{vTw[3]}, 96, v{vTw[0]}
      s_lshl_b32 s{sT0}, s{sCB2}, 7
      s_lshl_b32 s{sT1}, s{sRB2}, 18
      s_add_u32 s{sT0}, s{sT0}, s{sT1}
      s_lshl_b32 s{sT1}, s{sW}, 16
      s_add_u32 s{sT0}, s{sT0}, s{sT1}""".split("\n")
    extra[3, 0] = ["\n".join(t_[2*k:2*k+2]) for k in range(13)]
    worder = [0, 4, 1, 5, 2, 6, 3, 7]
    for p in range(1, 4): extra[3, p] = [x for k in worder for x in (None, (lambda k=k, p=p: wr(p - 1, k)))]
    def rdp(p, k):
        a.lg(f"ds_read_b128 {vr(ACC2+32*p+4*k,4)}, v{vRd[p]} offset:{8192*p+1024*k if p < 2 else 16384*(k//4)+1024*(k%4)}", ("r", p // 2, k))
    x0 = extra[0, 0][10]; extra[0, 0][10] = lambda: (a(x0), wp(0), a("\n".join(chk(1))), poll())
    a("s_nop 0")
    for D in range(4):
        if D: join(D)
        stamp(f"g_{28+2*D}")
        dstep(14 + D, True, {p: extra.get((D, p), []) for p in range(4)}, {2: lambda: again(D + 1)} if D < 3 else {})
    cm('sum of the four K quarters through LDS, bf16, whole-line stores')
    a.wait0(vm=False)
    stamp("g_36")
    a("s_barrier")
    stamp("g_bar")
    for k in range(4):
        for p in range(3): rdp(p, k)
    def st(g_):
        a.wait(lg=("u", g_ // 2, g_ % 2))
        a(f"buffer_store_dwordx4 {vr(HR+32+4*g_,4)}, v{vOo}, s[{rC}:{rC+3}], s{sT0} offen{['', ' sc1', ' nt'][OPT['osc']]}")
        if g_ < 3: a(f"s_add_u32 s{sT0}, s{sT0}, 16384")
    for k in range(8):
        a.wait(lg=("r", 1, k))
        if k < 4:
            for p in range(3): rdp(p, k + 4)
        for r in (0, 2): a(f"v_pk_add_f32 {vr(ACC2+4*k+r,2)}, {vr(ACC2+4*k+r,2)}, {vr(ACC2+32+4*k+r,2)}")
        for r in (0, 2): a(f"v_pk_add_f32 {vr(OWN+4*k+r,2)}, {vr(OWN+4*k+r,2)}, {vr(ACC2+64+4*k+r,2)}")
        for r in (0, 2): a(f"v_pk_add_f32 {vr(OWN+4*k+r,2)}, {vr(OWN+4*k+r,2)}, {vr(ACC2+4*k+r,2)}")
        T_ = HR + 2 * k
        a(f"v_cvt_pk_bf16_f32 v{T_}, v{OWN+4*k}, v{OWN+4*k+1}\n v_cvt_pk_bf16_f32 v{T_+1}, v{OWN+4*k+2}, v{OWN+4*k+3}")
        a.lg(f"ds_write_b64 v{vTw[k%4]}, {vr(HR+2*k,2)} offset:{2048*(k//4)}")
        if k % 4 == 3:
            for h in range(2): a.lg(f"ds_read_b128 {vr(HR+32+8*(k//4)+4*h,4)}, v{vTr} offset:{2048*(k//4)+1024*h}", ("u", k // 4, h))
    for g_ in range(4): st(g_)
    if OPT["ts"]: a.wait0(); stamp("g_end")
    if OPT["padto"]:
        a.label("L_pad")
        a(f"s_memrealtime s[98:99]\n s_waitcnt lgkmcnt(0)\n s_sub_u32 s98, s98, s96\n s_cmp_lt_u32 s98, {OPT['padto']}\n s_cbranch_scc1 L_pad")
    dump_ts_and_end()
    cm('out-of-line waits (all bounded) and loop hooks')
    for sl in range(4): late(sl)
    a.label("L_wa0")
    waitlds(12, 4, "L_wa", 31)
    a("s_branch L_wa_r")
    if OPT["pf2"]:
        a.label("L_hookF")
        a(f"v_lshlrev_b32 v15, {7 + LC if OPT['loc2'] else 7}, v0\n buffer_load_dword v19, v15, s[{rPF}:{rPF+3}], s{sA} offen")
        if OPT["ev2"] and not OPT["loc2"]: a(f"s_add_u32 s{sA}, s{sA}, 8192\n buffer_load_dword v19, v15, s[{rPF}:{rPF+3}], s{sA} offen")
        ret("L_hookF_r")
    a.label("L_hookW")
    a(f"s_cmp_eq_u32 s{sIT}, 5\n s_cbranch_scc1 L_g2end")
    stamp("g_17")
    waitlds(0, 4, "L_wq")
    srd(rA, pWO, 1024 * 2048)
    a(f"s_lshl_b32 s{sT0}, s{sW}, 12\n s_add_u32 m0, s{sT0}, {QX}\n s_lshl_b32 s{sT0}, s{sW}, 17\n s_add_u32 s{sT0}, s{sT0}, 524288")
    for k in range(4): a(f"buffer_load_dwordx4 v{vWD+k}, s[{rA}:{rA+3}], s{sT0} offen offset:{1024*k} lds")
    ret("L_hookW_r")

prologue()
section("g")
a.label("L_roleG")
g_phase1()
if OPT["stop"] == 1:
    stamp("g_bq"); g_hstore(); a.wait0(); stamp("g_hst"); dump_ts_and_end()
else:
    if OPT["wlate"]: g_hstore(); stamp("g_st")
    g2_setup()
    for i in range(OPT["wpre"]):
        for k in range(4): dmaW(i, k)
    if not OPT["wlate"]: g_hstore()
    g_phase2()
a_phase1()
if OPT["stop"] == 1:
    a(f"s_lshl_b32 s{sT0}, s{sW}, 12\n s_add_u32 s{sT1}, s{sT0}, {QX}\n v_lshl_add_u32 v16, v0, 4, s{sT1}")
    for i in range(4): a(f"ds_read_b128 {vr(32+4*i,4)}, v16 offset:{1024*i}")
    a(f"s_lshl_b32 s{sT1}, s{sRB}, 4\n s_add_u32 s{sT1}, s{sT1}, s{sCB}\n s_lshl_b32 s{sT1}, s{sT1}, 14\n s_add_u32 s{sT0}, s{sT0}, s{sT1}\n s_add_u32 s{sT0}, s{sT0}, {QD_OFF}")
    a.wait0()
    for i in range(4): a(f"buffer_store_dwordx4 {vr(32+4*i,4)}, v{vKVD}, s[{rWS}:{rWS+3}], s{sT0} offen offset:{1024*i}")
    dump_ts_and_end()
else:
    stamp("a_bq")
    attention()
a.label("L_exit")
a("s_endpgm")
a.label("L_codeend")

HDR = open("cdna_kernels/" + KNAME[:-7] + ".s.ref").read().split("; Override launch")[0]
HDR += """; One persistent launch, 256 workgroups of 8 waves, one per CU (generated by a script of the author's own).
"""
text = HDR + f"; @launch grid=(256,1,1) block=(512,1,1) lds={LDS_BYTES}\n"
text += f'.amdgcn_target "amdgcn-amd-amdhsa--gfx950"\n.text\n.globl {KNAME}\n.p2align 8\n.type {KNAME},@function\n{KNAME}:\n'
a.out = SEC['head'] + SEC['st'] + SEC['st0'] + SEC['st2'] + SEC['g'] + SEC['main']
body = a.text()
nbad = check(body)
text += body
text += f""".section .rodata,"a"
.p2align 6
.amdhsa_kernel {KNAME}
  .amdhsa_next_free_vgpr 256
  .amdhsa_next_free_sgpr 102
  .amdhsa_accum_offset 256
  .amdhsa_group_segment_fixed_size 0
  .amdhsa_kernarg_size 112
  .amdhsa_user_sgpr_count 2
  .amdhsa_user_sgpr_kernarg_segment_ptr 1
  .amdhsa_system_sgpr_workgroup_id_x 1
.end_amdhsa_kernel
"""
open(sys.argv[1], "w").write(text)
if nbad: sys.exit(f"{nbad} hazards")
```

```python
HDR = """; @launch grid=({grid},1,1) block=({block},1,1) lds={lds}
.amdgcn_target "amdgcn-amd-amdhsa--gfx950"
.text
.globl mb_kernel
.p2align 8
.type mb_kernel,@function
mb_kernel:
  s_load_dwordx2 s[4:5], s[0:1], 104
  s_load_dwordx2 s[6:7], s[0:1], 0
  s_waitcnt lgkmcnt(0)
  s_mov_b32 s8, s4
  s_mov_b32 s9, s5
  s_mov_b32 s10, 0x100000
  s_mov_b32 s11, 0x20000
  s_mov_b32 s12, s6
  s_mov_b32 s13, s7
  s_mov_b32 s14, 0x4000000
  s_mov_b32 s15, 0x20000
  v_lshlrev_b32 v1, 4, v0
"""
FTR = """
  s_endpgm
.section .rodata,"a"
.p2align 6
.amdhsa_kernel mb_kernel
  .amdhsa_next_free_vgpr {nv}
  .amdhsa_next_free_sgpr 96
  .amdhsa_accum_offset {ao}
  .amdhsa_group_segment_fixed_size 0
  .amdhsa_kernarg_size 112
  .amdhsa_user_sgpr_count 2
  .amdhsa_user_sgpr_kernarg_segment_ptr 1
  .amdhsa_system_sgpr_workgroup_id_x 1
.end_amdhsa_kernel
"""
def gen(name, body, block=256, grid=256, iters=2000, nv=128, lds=0, pre="", ao=None, post=""):
    s = HDR.format(grid=grid, block=block, lds=lds)
    ao = ao or nv
    for i in range(4, min(ao, nv), 4):
        s += f"  buffer_load_dwordx4 v[{i}:{i+3}], v1, s[12:15], 0 offen offset:{(i*16)%4096}\n"
    s += "  s_waitcnt vmcnt(0)\n"
    s += pre
    s += "  s_barrier\n"
    s += "  s_memtime s[20:21]\n  s_memrealtime s[22:23]\n  s_waitcnt lgkmcnt(0)\n"
    s += f"  s_mov_b32 s16, {iters}\n"
    s += ".p2align 6\nL_loop:\n"
    s += body
    s += "  s_sub_u32 s16, s16, 1\n  s_cmp_lg_u32 s16, 0\n  s_cbranch_scc1 L_loop\n"
    s += post
    s += "  s_nop 15\n  s_nop 15\n"
    s += "  s_memtime s[24:25]\n  s_memrealtime s[26:27]\n  s_waitcnt lgkmcnt(0)\n"
    s += "  v_mov_b32 v4, s20\n  v_mov_b32 v5, s24\n  v_mov_b32 v6, s22\n  v_mov_b32 v7, s26\n"
    s += "  s_lshl_b32 s3, s2, 8\n  v_lshrrev_b32 v1, 6, v0\n  v_lshlrev_b32 v1, 4, v1\n  v_add_u32 v1, s3, v1\n"
    s += "  v_and_b32 v2, 63, v0\n  v_cmp_eq_u32 vcc, 0, v2\n  s_and_saveexec_b64 s[30:31], vcc\n  s_cbranch_execz L_end\n"
    s += "  buffer_store_dwordx4 v[4:7], v1, s[8:11], 0 offen\n  s_waitcnt vmcnt(0)\nL_end:\n"
    s += FTR.format(nv=nv, ao=ao)
    open(name, "w").write(s)
```

```python
from mbcommon import gen
names = []
def g(n, body, pre=""):
    fn = f"mb22_{n}.s"; gen(fn, body, block=256, iters=20, lds=100000, pre=pre, post="  s_mov_b64 exec, -1\n", nv=128); names.append(fn)
ex = "".join(f"  v_exp_f32 v{64+i%16}, v{96+i%16}\n" for i in range(128))
cv = "".join(f"  v_cvt_pk_bf16_f32 v{64+i%16}, v{96+i%16}, v{97+i%16}\n" for i in range(128))
mf = "".join(f"  v_mfma_f32_16x16x32_bf16 v[{16+4*(i%8)}:{19+4*(i%8)}], v[4:7], v[8:11], v[{16+4*(i%8)}:{19+4*(i%8)}]\n" for i in range(128))
ds = "".join(f"  ds_read_b128 v[{16+4*(i%8)}:{19+4*(i%8)}], v1\n" for i in range(128))
for nm, b in (("exp", ex), ("cvt", cv), ("mfma", mf), ("ds", ds)):
    g(nm + "_on", b); g(nm + "_off", b, "  s_mov_b64 exec, 0\n")
print(" ".join(names))
```
